```python
import torch

def _softmax(x, axis=-1):
    return torch.softmax(x, dim=axis)
def _gelu(x):
    return torch.nn.functional.gelu(x, approximate="tanh")
def _silu(x):
    return torch.nn.functional.silu(x)
def _sigmoid(x):
    return torch.sigmoid(x)
def _layernorm(x, axis=-1, eps=1e-5):
    m = x.mean(dim=axis, keepdim=True)
    v = x.var(dim=axis, keepdim=True, unbiased=False)
    return (x - m) / torch.sqrt(v + eps)
def _scatter_add(tgt, idx, src, axis=0):
    return tgt.clone().index_add_(axis, idx, src)
def _segment_sum(src, seg, n):
    out = torch.zeros((n,) + src.shape[1:], dtype=src.dtype)
    return out.index_add_(0, seg, src)
def _pad(x, pw):
    flat = tuple(v for pair in reversed(pw) for v in pair)
    return torch.nn.functional.pad(x, flat)

kernel_name = 'gated_mix__grouped_kv_mqa__glu_gated_reglu__prompt'

def setup_inputs():

    _w = (lambda a: (lambda t: t.to(torch.bfloat16) if t.is_floating_point() else t)(torch.as_tensor(a)))
    def _A_setup():
        B, S, D, H = 1, 2048, 1024, 32
        Dh = D // H
        return {
            "x": _w((lambda *s: torch.randn(*s, dtype=torch.bfloat16) * 0.05)(B, S, D)),
            "wq": _w((lambda *s: torch.randn(*s, dtype=torch.bfloat16) * 0.8)(D, H * Dh)),
            "wk": _w((lambda *s: torch.randn(*s, dtype=torch.bfloat16) * 0.8)(D, Dh)),
            "wv": _w((lambda *s: torch.randn(*s, dtype=torch.bfloat16) * 0.05)(D, Dh)),
            "wo": _w((lambda *s: torch.randn(*s, dtype=torch.bfloat16) * 0.05)(H * Dh, D)),
        }
    _A_in = _A_setup()

    def _B_setup():
        B, S, D, F = 1, 2048, 1024, 3584
        return {
            "x": _w((lambda *s: torch.randn(*s, dtype=torch.bfloat16) * 0.05)(B, S, D)),
            "W_gate": _w((lambda *s: torch.randn(*s, dtype=torch.bfloat16) * 1.6)(D, F) * (2.0 / D) ** 0.5),
            "W_up": _w((lambda *s: torch.randn(*s, dtype=torch.bfloat16) * 1.6)(D, F) * (2.0 / D) ** 0.5),
            "W_down": _w((lambda *s: torch.randn(*s, dtype=torch.bfloat16) * 1.6)(F, D) * (1.0 / F) ** 0.5),
        }
    _B_in = _B_setup()

    return {
        "A_x": _A_in["x"],
        "A_wq": _A_in["wq"],
        "A_wk": _A_in["wk"],
        "A_wv": _A_in["wv"],
        "A_wo": _A_in["wo"],
        "B_x": _B_in["x"],
        "B_W_gate": _B_in["W_gate"],
        "B_W_up": _B_in["W_up"],
        "B_W_down": _B_in["W_down"],
        "gate_w": _w((lambda *s: torch.randn(*s, dtype=torch.bfloat16) * 0.05)(1024) * 16.0),
    }

def reference(A_x, A_wq, A_wk, A_wv, A_wo, B_x, B_W_gate, B_W_up, B_W_down, gate_w):
    def _A_ref(x, wq, wk, wv, wo):
        B, S, D = x.shape
        H = 32
        Dh = D // H
        q = (lambda x, *d: x.permute(*d))((x @ wq).reshape(B, S, H, Dh), 0, 2, 1, 3)
        k = x @ wk
        v = x @ wv
        scores = torch.einsum("bhqd,bkd->bhqk", q, k) * (Dh ** -0.5)
        p = _softmax(scores, axis=-1)
        o = torch.einsum("bhqk,bkd->bhqd", p, v)
        return (lambda x, *d: x.permute(*d))(o, 0, 2, 1, 3).reshape(B, S, H * Dh) @ wo

    def _B_ref(x, W_gate, W_up, W_down):
        gate = torch.einsum("bsd,df->bsf", x, W_gate)
        up = torch.einsum("bsd,df->bsf", x, W_up)
        gate = gate * (lambda x, dt: x.to(dt))(gate > 0, gate.dtype)
        h = gate * up
        return torch.einsum("bsf,fd->bsd", h, W_down)

    x = A_x
    g = _sigmoid((x * gate_w).sum(-1, keepdims=True))
    a = _A_ref(x, A_wq, A_wk, A_wv, A_wo)
    b = _B_ref(x, B_W_gate, B_W_up, B_W_down)
    return g * a + (1 - g) * b
```

```python
NAME = "gated_mix__grouped_kv_mqa__glu_gated_reglu__prompt"

WS_H  = 0x0
WS_Q  = 0xE00000
WS_KV = 0x1200000
WS_FLAG = 0x1250000
WS_G  = 0x1240000
WS_O  = 0x1300000
WS_WT = 0x1700000
WS_SIZE = 0x2000000

KA_X, KA_WQ, KA_WK, KA_WV, KA_WO, KA_BX, KA_WG, KA_WU, KA_WD, KA_GW, KA_OUT, KA_DBG, KA_WS = [8*i for i in range(13)]

class Asm:
    def __init__(self):
        self.lines = []
    def __call__(self, s):
        for l in s.split("\n"):
            l = l.strip()
            if l:
                self.lines.append(("" if l.endswith(":") else "    ") + l)
    def label(self, n):
        self.lines.append(n + ":")
    def text(self):
        return "\n".join(self.lines) + "\n"

def vr(b, n=1, p="v"):
    return f"{p}{b}" if n == 1 else f"{p}[{b}:{b+n-1}]"
def ar(b, n=1):
    return vr(b, n, "a")
def sr(b, n=1):
    return vr(b, n, "s")

def kernel_header(name):
    return f""".text
.globl {name}
.p2align 8
.type {name},@function
{name}:
"""

def kernel_desc(name, nv, acc, ns=102):
    return f""".section .rodata,"a"
.p2align 6
.amdhsa_kernel {name}
  .amdhsa_next_free_vgpr {nv}
  .amdhsa_next_free_sgpr {ns}
  .amdhsa_accum_offset {acc}
  .amdhsa_group_segment_fixed_size 0
  .amdhsa_kernarg_size 104
  .amdhsa_user_sgpr_count 2
  .amdhsa_user_sgpr_kernarg_segment_ptr 1
  .amdhsa_system_sgpr_workgroup_id_x 1
  .amdhsa_float_denorm_mode_32 3
.end_amdhsa_kernel
"""

def srd(a, d, base, size):
    a(f"s_mov_b32 s{d}, s{base}")
    a(f"s_and_b32 s{d+1}, s{base+1}, 0xffff")
    a(f"s_mov_b32 s{d+2}, {size:#x}")
    a(f"s_mov_b32 s{d+3}, 0x00020000")

def interleave(mfmas, fillers):
    out = []
    for i, m in enumerate(mfmas):
        out.append(m)
        out.extend(fillers.get(i, []))
    return out

def code_prefetch(a, pfx, sb, vd, nload=1, end=None):
    a(f"s_getpc_b64 s[{sb}:{sb+1}]")
    a.label(f"{pfx}_PC")
    a(f"s_and_b32 s{sb+1}, s{sb+1}, 0xffff")
    a(f"s_mov_b32 s{sb+2}, {end or pfx + '_END'}-{pfx}_PC")
    a(f"s_mov_b32 s{sb+3}, 0x00020000")
    a("v_lshlrev_b32 v1, 7, v0")
    for k in range(nload):
        if k: a(f"s_mov_b32 s{sb+4}, {k*32768}")
        a(f"buffer_load_dword {vd if isinstance(vd, str) else 'v%d' % vd}, v1, s[{sb}:{sb+3}], {'s%d' % (sb+4) if k else '0'} offen")

WS_DBG = 0x2000000
class Stamps:
    def __init__(self, a, on, vreg=31):
        self.a, self.on, self.n, self.v = a, on, 0, vreg
    def stamp(self, force=False):
        if not self.on: return
        if self.on == "lite" and self.n >= 1 and not force: return
        a = self.a
        a("s_memtime s[90:91]")
        a("s_memrealtime s[92:93]")
        a("s_waitcnt lgkmcnt(0)")
        a(f"v_writelane_b32 v{self.v}, s90, {self.n}")
        a(f"v_writelane_b32 v{self.v}, s92, {32+self.n}")
        self.n += 1
        assert self.n <= 31
    def dump(self, kidx, s_wave, ptr_pair):
        if not self.on: return
        a = self.a
        a(f"v_writelane_b32 v{self.v}, {self.n}, 31")
        a("s_lshl_b32 s90, s2, 2")
        a(f"s_add_u32 s90, s90, s{s_wave}")
        a("s_lshl_b32 s90, s90, 8")
        a(f"s_add_u32 s90, s90, {WS_DBG + kidx*262144:#x}")
        a("v_mbcnt_lo_u32_b32 v0, -1, 0")
        a("v_mbcnt_hi_u32_b32 v0, -1, v0")
        a("v_lshlrev_b32 v0, 2, v0")
        a("v_add_u32 v0, s90, v0")
        a(f"global_store_dword v0, v{self.v}, s[{ptr_pair}:{ptr_pair+1}]")
        a("s_mov_b64 exec, -1")

class Trace:
    def __init__(self):
        self.items = []
    def ins(self, text, vm=None, lg=None):
        self.items.append(dict(text=text, vm=vm, lg=lg)); return self.items[-1]
    def wait(self, vm=(), lg=()):
        self.items.append(dict(text=None, needvm=list(vm), needlg=list(lg))); return self.items[-1]
    def raw(self, text):
        for l in text.split("\n"):
            l = l.strip()
            if l: self.ins(l)

def resolve(segments):
    vmq, lgq = [], []
    vmdone = lgdone = 0
    for seg in segments:
        for it in seg.items:
            if it["text"] is not None:
                t = it["text"]
                if it.get("vm") is not None or t.startswith(("buffer_", "global_")):
                    vmq.append(it.get("vm") if "vm2" not in it else ("both", it["vm"], it["vm2"]))
                if it.get("lg") is not None or t.startswith("ds_"):
                    lgq.append(it.get("lg"))
                if t.startswith("s_waitcnt"):
                    import re
                    m = re.search(r"vmcnt\((\d+)\)", t)
                    if m: vmdone = max(vmdone, len(vmq) - int(m.group(1)))
                    m = re.search(r"lgkmcnt\((\d+)\)", t)
                    if m: lgdone = max(lgdone, len(lgq) - int(m.group(1)))
            else:
                def need(q, tags, done, cap):
                    hi = 0
                    for tg in tags:
                        idx = [i for i, x in enumerate(q) if x == tg or (x and x[0] == 'both' and tg in x[1:])]
                        assert idx, f"tag {tg} never issued"
                        hi = max(hi, idx[-1] + 1)
                    if hi <= done: return None, done
                    n = min(len(q) - hi, cap)
                    return n, len(q) - n
                it["wvm"], nv = need(vmq, it["needvm"], vmdone, 63)
                it["wlg"], nl = need(lgq, it["needlg"], lgdone, 15)
                vmdone, lgdone = nv, nl

def wait_text(wvm, wlg):
    p = []
    if wvm is not None: p.append(f"vmcnt({wvm})")
    if wlg is not None: p.append(f"lgkmcnt({wlg})")
    return "s_waitcnt " + " ".join(p) if p else None

def emit_trace(a, segs):
    n = len(segs[0].items)
    assert all(len(s.items) == n for s in segs)
    for k in range(n):
        it = segs[0].items[k]
        if it["text"] is not None:
            assert all(s.items[k]["text"] == it["text"] for s in segs), (it["text"], [s.items[k]["text"] for s in segs])
            a(it["text"])
        else:
            vs = [s.items[k]["wvm"] for s in segs if s.items[k]["wvm"] is not None]
            ls = [s.items[k]["wlg"] for s in segs if s.items[k]["wlg"] is not None]
            t = wait_text(min(vs) if vs else None, min(ls) if ls else None)
            if t: a(t)
```

```python
from common import *
import math, struct

K1 = "gm_gemm1_kernel"
LDS_X = 0
LDS_W = 65536
LDS_KV = 131072
LDS_T = 139264
K1_LDS = LDS_T + 3*4096
NST = 16

def accn(j, i):
    return ("v", 32 + (j*8 + i)*4) if j < 7 else ("a", 128 + i*4)
def acc(j, i):
    p, b = accn(j, i); return vr(b, 4, p)
XF = [0, 64]; WF = [32, 96]
KVX, KVW, KVA = 160, 164, 168
A_GX, A_GW = 172, 188
A_T = 204

V_DX, V_DW = 2, 6
V_RX = [10, 11]
V_RW = 12
V_RKX, V_RKW, V_T, V_TD, V_LANE = 16, 17, 18, 19, 20
V_DK, V_DT, V_RT, V_L16 = 30, 29, 28, 27
V_GROW = 26
S_X, S_G, S_U, S_KV, S_WS, S_GW, S_TSRD, S_WD, S_WO = 8, 12, 16, 20, 24, 28, 32, 52, 76
S_W, S_MT, S_NT, S_OK = 36, 37, 38, 39
S_OX, S_OX2, S_OG, S_OU, S_WSTEP = 40, 41, 42, 43, 44
S_M0X, S_M0W, S_M0K, S_M0T = 45, 46, 47, 51
S_TOFF, S_TSTEP, S_ISQ = 48, 49, 50
S_TSRC, S_TDST, S_TSRC2, S_TDST2 = 3, 4, 5, 6

I = lambda text, vm=None, lg=None: dict(text=text, vm=vm, lg=lg)
W = lambda vm=(), lg=(): dict(text=None, needvm=list(vm), needlg=list(lg))

NTW = False
def dma_group(s):
    b = s % 2
    g = []
    for half in range(2):
        so = S_OX if half == 0 else S_OX2
        for j in range(4):
            pre = f"s_add_u32 m0, s{S_M0X}, {b*32768 + half*4096}" if j == 0 else None
            g.append((pre, I(f"buffer_load_dwordx4 v{V_DX+j}, s[{S_X}:{S_X+3}], s{so} offen offset:{j*1024} lds", vm=("st", s))))
    for part in range(2):
        srdn, so2 = (S_G, S_OG) if part == 0 else (S_U, S_OU)
        for j in range(4):
            pre = f"s_add_u32 m0, s{S_M0W}, {b*32768 + part*16384}" if j == 0 else None
            g.append((pre, I(f"buffer_load_dwordx4 v{V_DW+j}, s[{srdn}:{srdn+3}], s{so2} offen offset:{j*1024}{' nt' if NTW else ''} lds", vm=("st", s))))
    g.append((f"s_add_u32 m0, s{S_M0K}, {b*4096}", I(f"buffer_load_dwordx4 v{V_DK}, s[{S_KV}:{S_KV+3}], s{S_OK} offen lds", vm=("st", s))))
    adv = {7: [f"s_add_u32 s{S_OX}, s{S_OX}, 128", f"s_add_u32 s{S_OX2}, s{S_OX2}, 128"],
           11: [f"s_add_u32 s{S_OG}, s{S_OG}, s{S_WSTEP}"], 15: [f"s_add_u32 s{S_OU}, s{S_OU}, s{S_WSTEP}"],
           16: [f"s_add_u32 s{S_OK}, s{S_OK}, 4096"]}
    return g, adv
def xread(s, kk, i):
    setb = kk
    return I(f"ds_read_b128 {ar(XF[setb]+4*i,4)}, v{V_RX[kk]} offset:{(s%2)*32768 + i*2048}", lg=("fr", s, kk))
def wread(s, kk, j, h):
    off = (s % 2)*32768 + h*1024 + kk*8192 + (16384 if j >= 4 else 0)
    return I(f"ds_read_b64_tr_b16 {ar(WF[kk]+4*j+2*h,2)}, v{V_RW + (j&3)} offset:{off}", lg=("fr", s, kk))
def reads(s, kk):
    r = [wread(s, kk, 0, 0), wread(s, kk, 0, 1)] + [xread(s, kk, i) for i in range(8)]
    for j in range(1, 8): r += [wread(s, kk, j, 0), wread(s, kk, j, 1)]
    return r
def mfma(kk, j, i, first=False):
    c = "0" if first else acc(j, i)
    return f"v_mfma_f32_16x16x32_bf16 {acc(j,i)}, {ar(WF[kk]+4*j,4)}, {ar(XF[kk]+4*i,4)}, {c}"

def vcap(items):
    c = 2
    for x in items:
        t = x["text"] or "s_"
        if t.startswith("ds_"): c -= 1
        elif t.startswith("buffer_"): c -= 2
    return max(c, 0)

def g_ops():
    o = ["v_mov_b32 v25, 0", "v_mov_b32 v24, 0"]
    for q in range(8):
        o += [f"v_accvgpr_read_b32 v22, a{A_GW+q}", "v_lshlrev_b32 v1, 16, v22", "v_and_b32 v22, 0xffff0000, v22"]
        for row, accv_ in ((0, 25), (1, 24)):
            o += [f"v_accvgpr_read_b32 v21, a{A_GX+8*row+q}", "v_lshlrev_b32 v23, 16, v21", "v_and_b32 v21, 0xffff0000, v21",
                  "v_mul_f32 v23, v23, v1", "v_mul_f32 v21, v21, v22", "v_cvt_pk_bf16_f32 v21, v23, v21",
                  "v_lshlrev_b32 v23, 16, v21", "v_and_b32 v21, 0xffff0000, v21",
                  f"v_add_f32 v{accv_}, v{accv_}, v23", f"v_add_f32 v{accv_}, v{accv_}, v21"]
    slow = ["v_permlane32_swap_b32 v25, v24", "v_add_f32 v25, v25, v24"]
    for sh in (8, 4, 2, 1):
        slow.append(f"v_add_f32_dpp v25, v25, v25 row_ror:{sh} row_mask:0xf bank_mask:0xf")
    slow += ["v_mov_b32 v24, v25", "v_permlane16_swap_b32 v25, v24", "v_add_f32 v25, v25, v24",
             "v_cvt_pk_bf16_f32 v25, v25, v25", "v_lshlrev_b32 v25, 16, v25", "v_mul_f32 v25, 0xbfb8aa3b, v25",
             "v_exp_f32 v25, v25", "v_add_f32 v25, 1.0, v25", "v_rcp_f32 v25, v25",
             "v_cvt_pk_bf16_f32 v25, v25, v25", "v_lshlrev_b32 v24, 16, v25", "v_sub_f32 v25, 1.0, v24",
             "v_cvt_pk_bf16_f32 v25, v25, v25", "v_lshlrev_b32 v25, 16, v25"]
    return o, slow

def gen_k1(touch=2, dbg=False, nhead=13, p1=13, exp='', k2pref=True, t0=0, gs=12, tpre=0, tq0=5, ttouch=0, xmap=84, ntw=True, ntt=True):
    global NTW
    NTW = ntw in (True, 'all')
    tfirst = touch + 1 - t0 - tpre
    assert tfirst >= 0
    a = Asm()
    L = f"v{V_LANE}"
    a("s_cmp_ge_u32 s2, 256")
    a("s_cbranch_scc1 K1_END")
    st = Stamps(a, dbg)
    st.stamp()
    a("s_load_dwordx8 s[56:63], s[0:1], 0")
    a("s_load_dwordx8 s[64:71], s[0:1], 48")
    a("s_load_dwordx2 s[88:89], s[0:1], 32")
    a("s_load_dwordx2 s[86:87], s[0:1], 96")
    code_prefetch(a, "K1", 72, V_TD, 3 if k2pref else 2, end="K2_END" if k2pref else None)
    a(f"""
    v_and_b32 {L}, 63, v0
    v_lshrrev_b32 v1, 6, v0
    s_and_b32 s80, s2, 7
    v_readfirstlane_b32 s{S_W}, v1
    """)
    if xmap == 48:
        a(f"""
        s_lshr_b32 s81, s2, 3
        s_and_b32 s82, s80, 1
        s_lshl_b32 s82, s82, 2
        s_and_b32 s83, s81, 3
        s_add_u32 s{S_MT}, s82, s83
        s_lshr_b32 s82, s80, 1
        s_lshl_b32 s82, s82, 3
        s_lshr_b32 s83, s81, 2
        s_add_u32 s{S_NT}, s82, s83
        """)
    else:
        a(f"""
        s_lshr_b32 s81, s2, 3
        s_and_b32 s{S_MT}, s81, 7
        s_and_b32 s83, s81, 24
        s_add_u32 s{S_NT}, s80, s83
        """)
    a(f"""
    s_cmp_ge_u32 s{S_NT}, 28
    s_cselect_b32 s{S_ISQ}, 1, 0
    s_movk_i32 s84, 7168
    s_cselect_b32 s84, 2048, s84
    s_lshl_b32 s{S_WSTEP}, s84, 6
    s_lshl_b32 s85, s{S_NT}, 8
    s_sub_u32 s80, s{S_NT}, 28
    s_lshl_b32 s80, s80, 9
    s_cmp_ge_u32 s{S_NT}, 28
    s_cselect_b32 s85, s80, s85
    s_cselect_b32 s{S_OU}, 256, 0
    s_mov_b32 s{S_OG}, 0
    v_lshrrev_b32 v21, 3, {L}
    s_lshl_b32 s81, s{S_MT}, 8
    s_lshl_b32 s82, s{S_W}, 6
    s_add_u32 s81, s81, s82
    v_add_u32 v21, s81, v21
    v_lshlrev_b32 v21, 11, v21
    v_and_b32 v22, 7, {L}
    v_lshrrev_b32 v23, 4, {L}
    v_xor_b32 v22, v22, v23
    v_lshlrev_b32 v22, 4, v22
    v_xor_b32 v24, 64, v22
    """)
    for j in range(4):
        src = "v22" if j % 2 == 0 else "v24"
        a(f"v_add_u32 v{V_DX+j}, v21, {src}")
        if j: a(f"v_add_u32 v{V_DX+j}, {j*8*2048 - j*1024}, v{V_DX+j}")
    a(f"""
    s_mov_b32 s{S_OX}, 0
    s_mov_b32 s{S_OX2}, 65536
    s_mov_b32 s{S_OK}, 0
    s_lshl_b32 s81, s{S_W}, 4
    v_add_u32 v21, s81, v23
    v_mul_lo_u32 v21, v21, s84
    v_add_u32 v21, s85, v21
    v_bfe_u32 v22, {L}, 1, 3
    v_xor_b32 v22, v22, v23
    v_lshlrev_b32 v22, 5, v22
    v_and_b32 v24, 1, {L}
    v_lshl_add_u32 v22, v24, 4, v22
    v_xor_b32 v24, 128, v22
    s_lshl_b32 s82, s84, 2
    s_sub_u32 s82, s82, 1024
    v_add_u32 v{V_DW}, v21, v22
    v_add_u32 v{V_DW+1}, s82, v{V_DW}
    s_lshl_b32 s83, s82, 1
    v_add_u32 v{V_DW+2}, v21, v24
    v_add_u32 v{V_DW+2}, s83, v{V_DW+2}
    v_add_u32 v{V_DW+3}, s82, v{V_DW+2}
    s_lshl_b32 s{S_M0X}, s{S_W}, 13
    s_lshl_b32 s{S_M0W}, s{S_W}, 12
    s_add_u32 s{S_M0W}, s{S_M0W}, {LDS_W}
    s_lshl_b32 s{S_M0K}, s{S_W}, 10
    s_add_u32 s{S_M0T}, s{S_M0K}, {LDS_T}
    s_add_u32 s{S_M0K}, s{S_M0K}, {LDS_KV}
    v_lshrrev_b32 v21, 1, {L}
    v_lshlrev_b32 v21, 6, v21
    v_and_b32 v22, 1, {L}
    v_lshl_add_u32 v21, v22, 4, v21
    s_and_b32 s81, s{S_NT}, 1
    s_lshl_b32 s81, s81, 5
    s_lshr_b32 s82, s{S_W}, 1
    s_lshl_b32 s82, s82, 11
    s_add_u32 s81, s81, s82
    v_add_u32 v{V_DK}, s81, v21
    s_waitcnt lgkmcnt(0)
    """)
    st.stamp()
    srd(a, S_X, 56, 2048*1024*2)
    a(f"""
    s_cmp_ge_u32 s{S_NT}, 28
    s_cselect_b32 s{S_G}, s58, s64
    s_cselect_b32 s{S_G+1}, s59, s65
    s_cselect_b32 s{S_U}, s58, s66
    s_cselect_b32 s{S_U+1}, s59, s67
    s_mov_b32 s{S_G+2}, {1024*3584*2:#x}
    s_cselect_b32 s{S_G+2}, {1024*1024*2:#x}, s{S_G+2}
    s_mov_b32 s{S_U+2}, s{S_G+2}
    s_and_b32 s{S_G+1}, s{S_G+1}, 0xffff
    s_and_b32 s{S_U+1}, s{S_U+1}, 0xffff
    s_mov_b32 s{S_G+3}, 0x00020000
    s_mov_b32 s{S_U+3}, 0x00020000
    s_and_b32 s81, s{S_NT}, 2
    s_cmp_eq_u32 s81, 0
    s_cselect_b32 s{S_KV}, s60, s62
    s_cselect_b32 s{S_KV+1}, s61, s63
    s_and_b32 s{S_KV+1}, s{S_KV+1}, 0xffff
    s_mov_b32 s{S_KV+2}, 65536
    s_mov_b32 s{S_KV+3}, 0x00020000
    """)
    if touch:
        a(f"""
        v_and_b32 v1, 31, {L}
        s_and_b32 s82, s{S_NT}, {7 if xmap == 48 else 24}
        s_lshl_b32 s82, s82, {5 if xmap == 48 else 3}
        s_lshl_b32 s83, s{S_MT}, 8
        s_add_u32 s82, s82, s83
        v_add_u32 v25, s82, {'v1' if xmap == 48 else L}
        v_lshlrev_b32 v25, 11, v25
        s_and_b32 s82, s{S_MT}, {3 if xmap == 48 else 7}
        s_lshl_b32 s82, s82, {4 if xmap == 48 else 3}
        v_bfe_u32 v24, v1, 1, {4 if xmap == 48 else 3}
        v_add_u32 v24, s82, v24
        v_mul_lo_u32 v24, v24, s84
        v_and_b32 v19, 1, v1
        v_lshl_add_u32 v24, v19, 7, v24
        v_add_u32 v24, s85, v24
        v_lshlrev_b32 v1, 7, v1
        s_cmp_eq_u32 s{S_W}, 0
        s_cselect_b64 vcc, -1, 0
        s_cselect_b32 s{S_TSRD}, s{S_X}, s{S_G}
        s_cselect_b32 s{S_TSRD+1}, s{S_X+1}, s{S_G+1}
        s_cselect_b32 s{S_TSRD+2}, s{S_X+2}, s{S_G+2}
        s_cselect_b32 s{S_TSTEP}, 128, s{S_WSTEP}
        v_cndmask_b32 v{V_T}, v24, v25, vcc
        s_mov_b32 s83, 0
        s_cmp_eq_u32 s{S_W}, 2
        s_cselect_b32 s{S_TSRD}, s{S_U}, s{S_TSRD}
        s_cselect_b32 s{S_TSRD+1}, s{S_U+1}, s{S_TSRD+1}
        s_cselect_b32 s83, s{S_ISQ}, s83
        s_lshl_b32 s83, s83, 8
        s_cmp_eq_u32 s{S_W}, 3
        s_cselect_b64 vcc, -1, 0
        s_cselect_b32 s{S_TSRD}, s{S_KV}, s{S_TSRD}
        s_cselect_b32 s{S_TSRD+1}, s{S_KV+1}, s{S_TSRD+1}
        s_cselect_b32 s{S_TSRD+2}, s{S_KV+2}, s{S_TSRD+2}
        s_cselect_b32 s{S_TSTEP}, 4096, s{S_TSTEP}
        v_cndmask_b32 v{V_T}, v{V_T}, v1, vcc
        s_mov_b32 s{S_TSRD+3}, 0x00020000
        s_mul_i32 s{S_TOFF}, s{S_TSTEP}, {tfirst}
        s_add_u32 s{S_TOFF}, s{S_TOFF}, s83
        """)
    pro = Trace()
    def issue_now(s, lo, hi):
        g, adv = dma_group(s)
        for k in range(lo, hi):
            pre, it = g[k]
            if pre: pro.ins(pre); pro.ins("s_nop 0")
            pro.items.append(it)
            for x in adv.get(k, []): pro.ins(x)
    tfl = " nt" if ntw == "all" else ""
    touch_ins = lambda: I(f"buffer_load_dword v{V_TD}, v{V_T}, s[{S_TSRD}:{S_TSRD+3}], s{S_TOFF} offen{tfl}", vm=("touch", 0))
    touch_adv = f"s_add_u32 s{S_TOFF}, s{S_TOFF}, s{S_TSTEP}"
    for _ in range(tpre):
        pro.items.append(touch_ins()); pro.ins(touch_adv)
    issue_now(0, 0, 17)
    p = Asm()
    srd(p, S_WS, 86, WS_SIZE)
    srd(p, S_GW, 70, 2048)
    srd(p, S_WD, 68, 3584*1024*2)
    srd(p, S_WO, 88, 1024*1024*2)
    p(f"""
    v_lshlrev_b32 v{V_L16}, 4, {L}
    v_and_b32 v21, 15, {L}
    s_lshr_b32 s81, s{S_W}, 1
    s_lshl_b32 s83, s81, 14
    v_lshlrev_b32 v22, 7, v21
    v_lshrrev_b32 v24, 1, v21
    v_xor_b32 v24, v24, v23
    v_lshl_add_u32 v22, v24, 4, v22
    v_add_u32 v{V_RX[0]}, s83, v22
    v_xor_b32 v{V_RX[1]}, 64, v{V_RX[0]}
    s_lshr_b32 s83, s{S_NT}, 2
    s_lshl_b32 s83, s83, 12
    s_and_b32 s80, s{S_W}, 1
    s_lshl_b32 s82, s80, 11
    s_add_u32 s83, s83, s82
    s_lshl_b32 s82, s81, 6
    v_xor_b32 v22, s82, v22
    v_add_u32 v{V_RKX}, s83, v22
    v_bfe_u32 v21, {L}, 2, 2
    v_lshl_add_u32 v22, v23, 3, v21
    v_and_b32 v24, 3, {L}
    v_lshlrev_b32 v24, 3, v24
    v_lshl_add_u32 v{V_RKW}, v22, 5, v24
    v_add_u32 v{V_RKW}, s{S_M0K}, v{V_RKW}
    v_lshl_add_u32 v22, v22, 8, v24
    v_add_u32 v22, {LDS_W}, v22
    v_and_b32 v25, 1, v23
    v_lshl_or_b32 v25, v25, 2, v21
    s_lshl_b32 s82, s80, 2
    """)
    for j in range(4):
        p(f"s_add_u32 s83, s82, {j}")
        p("v_xor_b32 v1, s83, v25")
        p(f"v_lshl_add_u32 v{V_RW+j}, v1, 5, v22")
    p(f"""
    v_lshrrev_b32 v1, 3, {L}
    v_lshlrev_b32 v1, 11, v1
    v_bfe_u32 v25, {L}, 1, 2
    v_xor_b32 v25, v25, v23
    v_lshl_add_u32 v1, v25, 5, v1
    v_and_b32 v25, 1, {L}
    v_lshl_add_u32 v{V_DT}, v25, 4, v1
    v_lshl_add_u32 v1, v23, 2, v21
    v_bfe_u32 v25, v1, 1, 2
    v_xor_b32 v25, s{S_W}, v25
    v_lshlrev_b32 v1, 7, v1
    v_lshl_add_u32 v1, v25, 5, v1
    v_add_u32 v1, v1, v24
    v_add_u32 v{V_RT}, {LDS_T}, v1
    s_lshr_b32 s82, s2, 4
    s_and_b32 s83, s2, 15
    s_mul_i32 s{S_TSRC}, s82, {7*65536}
    s_lshl_b32 s90, s83, 7
    s_add_u32 s{S_TSRC}, s{S_TSRC}, s90
    s_lshl_b32 s{S_TSRC2}, s82, 17
    s_add_u32 s{S_TSRC2}, s{S_TSRC2}, s90
    s_lshl_b32 s90, s{S_W}, 14
    s_add_u32 s{S_TSRC}, s{S_TSRC}, s90
    s_and_b32 s90, s{S_W}, 1
    s_lshl_b32 s90, s90, 15
    s_add_u32 s{S_TSRC2}, s{S_TSRC2}, s90
    s_lshl_b32 s90, s81, 14
    s_add_u32 s{S_TSRC2}, s{S_TSRC2}, s90
    s_lshr_b32 s90, s83, 1
    s_mul_i32 s90, s90, {144*8192}
    s_and_b32 s83, s83, 1
    s_lshl_b32 s83, s83, 12
    s_add_u32 s90, s90, s83
    s_lshl_b32 s83, s{S_W}, 10
    s_add_u32 s90, s90, s83
    s_add_u32 s90, s90, {WS_WT:#x}
    s_mul_i32 s{S_TDST}, s82, {7*8192}
    s_add_u32 s{S_TDST}, s{S_TDST}, s90
    s_lshl_b32 s{S_TDST2}, s82, 14
    s_add_u32 s{S_TDST2}, s{S_TDST2}, s90
    s_add_u32 s{S_TDST2}, s{S_TDST2}, {112*8192}
    """)
    p(f"""
    s_lshl_b32 s82, s2, 3
    s_lshl_b32 s83, s{S_W}, 1
    s_add_u32 s82, s82, s83
    s_lshl_b32 s7, s82, 11
    v_lshrrev_b32 v1, 5, {L}
    v_add_u32 v{V_GROW}, s82, v1
    v_lshlrev_b32 v{V_GROW}, 3, v{V_GROW}
    v_add_u32 v{V_GROW}, {WS_G:#x}, v{V_GROW}
    """)
    for l in p.lines: pro.ins(l.strip())
    pro.ins(f"v_lshlrev_b32 v1, 7, {L}")
    pro.ins(f"buffer_load_dword v{V_TD}, v1, s[{S_GW}:{S_GW+3}], 0 offen")
    issue_now(1, 0, p1)
    for _ in range(t0):
        pro.items.append(touch_ins()); pro.ins(touch_adv)
    pro2 = Trace()
    pro2.wait(vm=[("st", 0)])
    pro2.ins("s_barrier")
    pro2.items.extend(reads(0, 0))

    def spread(n, lo, hi):
        return [lo + round(k*(hi - lo)/max(n - 1, 1)) for k in range(n)]
    gfast, gslow = g_ops()
    GSPLIT = 76
    segs = []
    for s in range(NST - 1):
        last = False
        tr = Trace()
        gaps = [[] for _ in range(64)]
        def place(item, lo, gaps=None):
            G = lo
            while len(gaps[G]) >= 1: G += 1
            gaps[G].append(item); return G
        rl = reads(s, 1) + [I(f"ds_read_b128 {ar(KVX,4)}, v{V_RKX} offset:{(s%2)*32768}", lg=("kvf", s)),
                            I(f"ds_read_b64_tr_b16 {ar(KVW,2)}, v{V_RKW} offset:{(s%2)*4096}", lg=("kvf", s)),
                            I(f"ds_read_b64_tr_b16 {ar(KVW+2,2)}, v{V_RKW} offset:{(s%2)*4096 + 128}", lg=("kvf", s))]
        for k, it in enumerate(rl): gaps[2*k].append(it)
        G = 1
        if s + 1 < NST:
            g, adv = dma_group(s + 1)
            lo = p1 if s == 0 else nhead
            sp = 4 if (17 - lo) <= 13 else 3
            G = 1
            for k in range(lo, 17):
                pre, it = g[k]
                if pre: gaps[G - 1].append(I(pre))
                gaps[G].append(it)
                for x in adv.get(k, []): gaps[G + 1].append(I(x))
                G += sp
            G -= 2
        if touch and s + touch + 1 < NST:
            gaps[G].append(touch_ins()); gaps[G + 1].append(I(touch_adv)); G += 2
        q = s - tq0
        if 0 <= q < 9:
            srdn, so = (S_WD, S_TSRC) if q < 7 else (S_WO, S_TSRC2)
            gaps[G - 1].append(I(f"s_add_u32 m0, s{S_M0T}, {(q%3)*4096}"))
            gaps[G].append(I(f"buffer_load_dwordx4 v{V_DT}, s[{srdn}:{srdn+3}], s{so} offen{' nt' if ntt else ''} lds", vm=("t", q)))
            gaps[G + 1].append(I(f"s_add_u32 s{so}, s{so}, 0x10000")); G += 2
        q = s - tq0 - 2
        if 0 <= q < 9:
            so = S_TDST if q < 7 else S_TDST2
            gaps[G].append(I(f"buffer_store_dwordx4 {ar(A_T,4)}, v{V_L16}, s[{S_WS}:{S_WS+3}], s{so} offen", vm=("ts", q)))
            gaps[G + 1].append(I(f"s_add_u32 s{so}, s{so}, 8192")); G += 2
        if ttouch < 0 and s == -ttouch - 1:
            gaps[G - 1].append(I(f"v_min_u32 v1, 6, {L}"))
            gaps[G].append(I("v_lshlrev_b32 v1, 16, v1")); G += 1
            gaps[G].append(I(f"buffer_load_dword v{V_TD}, v1, s[{S_WD}:{S_WD+3}], s{S_TSRC} offen")); G += 1
            gaps[G].append(I("v_and_b32 v1, 0x1ffff, v1")); G += 1
            gaps[G].append(I(f"buffer_load_dword v{V_TD}, v1, s[{S_WO}:{S_WO+3}], s{S_TSRC2} offen")); G += 2
        if ttouch > 0 and s == ttouch:
            gaps[G - 1].append(I(f"v_min_u32 v1, 55, {L}"))
            gaps[G].append(I("v_lshrrev_b32 v21, 3, v1")); gaps[G].append(I("v_and_b32 v1, 7, v1")); G += 1
            gaps[G].append(I("v_lshlrev_b32 v21, 16, v21")); gaps[G].append(I("v_lshl_add_u32 v1, v1, 11, v21")); G += 1
            gaps[G].append(I(f"buffer_load_dword v{V_TD}, v1, s[{S_WD}:{S_WD+3}], s{S_TSRC} offen")); G += 1
            gaps[G].append(I("v_and_b32 v1, 0x1ffff, v1")); G += 1
            gaps[G].append(I(f"buffer_load_dword v{V_TD}, v1, s[{S_WO}:{S_WO+3}], s{S_TSRC2} offen")); G += 2
        if s == gs:
            for q in range(4):
                gaps[G].append(I(f"buffer_load_dwordx4 {ar(A_GX+4*q,4)}, v{V_L16}, s[{S_X}:{S_X+3}], s7 offen offset:{1024*q}", vm=("g", 0))); G += 2
            for q in range(2):
                gaps[G].append(I(f"buffer_load_dwordx4 {ar(A_GW+4*q,4)}, v{V_L16}, s[{S_GW}:{S_GW+3}], 0 offen offset:{1024*q}", vm=("g", 0))); G += 2
        tr.wait(lg=[("fr", s, 0)] + ([("tf", s - tq0 - 2)] if 0 <= s - tq0 - 2 < 9 else []))
        vq = []
        if s == gs + 2:
            vq = list(gfast[GSPLIT:])
        k = 0
        for j in range(8):
            for i in range(8):
                tr.ins(mfma(0, j, i, first=(s == 0)))
                tr.items.extend(gaps[k])
                for _ in range(vcap(gaps[k])):
                    if vq: tr.ins(vq.pop(0))
                k += 1
        grest = vq
        need = [("st", s + 1)] if s + 1 < NST else []
        if 0 <= s - tq0 - 1 < 9: need.append(("t", s - tq0 - 1))
        if s == gs + 1: need.append(("g", 0))
        tr.wait(vm=need, lg=[("fr", s, 1), ("kvf", s)])
        tr.ins("s_barrier")
        segs.append(tr)
        if last: break
        tr = Trace()
        gaps = [[] for _ in range(65)]
        for k, it in enumerate(reads(s + 1, 0)): gaps[2*k + 1].append(it)
        q = s - tq0 - 1
        if 0 <= q < 9:
            for h in range(2):
                gaps[49 + 2*h].append(I(f"ds_read_b64_tr_b16 {ar(A_T+2*h,2)}, v{V_RT} offset:{(q%3)*4096 + h*2048}", lg=("tf", q)))
        if s + 2 < NST:
            g, adv = dma_group(s + 2)
            hg = [2*round(k*62/(2*nhead)) for k in range(nhead)]
            pre0 = []
            for k in range(nhead):
                pre, it = g[k]
                if pre:
                    (gaps[hg[k] - 1] if hg[k] else pre0).append(I(pre))
                gaps[hg[k]].append(it)
                for x in adv.get(k, []): gaps[hg[k] + 1].append(I(x))
            tr.items.extend(pre0)
        vq = []; slow = []; slow_from = None
        if s == gs + 1: vq = list(gfast[:GSPLIT])
        if s == gs + 2: vq = grest; slow = list(gslow)
        ml = [mfma(1, j, i) for j in range(8) for i in range(8)]
        ml.insert(40, f"v_mfma_f32_16x16x32_bf16 {ar(KVA,4)}, {ar(KVX,4)}, {ar(KVW,4)}, {'0' if s == 0 else ar(KVA,4)}")
        for k, m in enumerate(ml):
            tr.ins(m)
            tr.items.extend(gaps[k])
            for _ in range(vcap(gaps[k])):
                if vq: tr.ins(vq.pop(0))
            if slow and not vq:
                if slow_from is None: slow_from = k + 2
                if k >= slow_from and (k - slow_from) % 2 == 0: tr.ins(slow.pop(0))
            if s == gs + 2 and k == 63:
                tr.raw(f"""
                s_mov_b32 exec_lo, 1
                s_mov_b32 exec_hi, 1
                buffer_store_dwordx2 v[24:25], v{V_GROW}, s[{S_WS}:{S_WS+3}], 0 offen
                s_mov_b64 exec, -1
                """)
        assert not vq and not slow
        segs.append(tr)

    def last_step(isq):
        tr = Trace()
        s = NST - 1
        su = Asm()
        if not isq:
            su(f"""
            s_lshr_b32 s81, s{S_W}, 1
            s_and_b32 s84, s{S_W}, 1
            s_lshl_b32 s82, s{S_MT}, 1
            s_add_u32 s82, s82, s81
            s_mul_i32 s82, s82, 112
            s_lshl_b32 s83, s{S_NT}, 2
            s_add_u32 s82, s82, s83
            s_lshl_b32 s83, s84, 1
            s_add_u32 s82, s82, s83
            s_lshl_b32 s82, s82, 13
            s_add_u32 s83, s82, 8192
            v_add_u32 v23, 4096, v{V_L16}
            v_add_u32 v21, s{S_M0K}, v{V_L16}
            """)
        else:
            su(f"""
            s_lshr_b32 s81, s{S_W}, 1
            s_and_b32 s84, s{S_W}, 1
            s_sub_u32 s82, s{S_NT}, 28
            s_lshl_b32 s82, s82, 3
            s_lshl_b32 s83, s84, 1
            s_add_u32 s82, s82, s83
            s_lshl_b32 s82, s82, 6
            s_lshl_b32 s83, s{S_MT}, 3
            s_add_u32 s82, s82, s83
            s_lshl_b32 s83, s81, 2
            s_add_u32 s82, s82, s83
            s_lshl_b32 s82, s82, 11
            s_add_u32 s82, s82, {WS_Q:#x}
            s_add_u32 s83, s82, 0x20000
            s_add_u32 s84, s82, 0x80000
            s_add_u32 s85, s82, 0xa0000
            v_and_b32 v22, 15, {L}
            v_lshlrev_b32 v22, 4, v22
            v_bfe_u32 v24, {L}, 4, 1
            v_lshl_add_u32 v22, v24, 9, v22
            v_lshrrev_b32 v24, 5, {L}
            v_lshl_add_u32 v22, v24, 10, v22
            v_add_u32 v23, 4096, v22
            v_add_u32 v21, s{S_M0K}, v{V_L16}
            """)
        setup = [l.strip() for l in su.lines]
        pieces = []
        if not isq:
            for t in range(2):
                for i in range(8):
                    pieces.append(([2*t, 4 + 2*t, 2*t + 1, 5 + 2*t], t, i, 0))
        else:
            for part in range(2):
                for t in range(2):
                    for i in range(8):
                        pieces.append(([4*part + 2*t, 4*part + 2*t + 1], t, i, part))
        def piece_ops(pc, pk):
            js, t, i, part = pc
            o = []
            tmp = 12 + 4*(i % 2)
            def reg(j):
                p_, b = accn(j, i)
                if p_ == "v": return b
                for r in range(4): o.append(f"v_accvgpr_read_b32 v{tmp+r}, a{b+r}")
                return tmp
            if not isq:
                g0, u0, g1, u1 = reg(js[0]), reg(js[1]), reg(js[2]), reg(js[3])
                for g_, u_ in ((g0, u0), (g1, u1)):
                    for r in range(4): o.append(f"v_max_f32 v{g_+r}, 0, v{g_+r}")
                    if pk:
                        o.append(f"v_pk_mul_f32 {vr(g_,2)}, {vr(g_,2)}, {vr(u_,2)}")
                        o.append(f"v_pk_mul_f32 {vr(g_+2,2)}, {vr(g_+2,2)}, {vr(u_+2,2)}")
                    else:
                        for r in range(4): o.append(f"v_mul_f32 v{g_+r}, v{g_+r}, v{u_+r}")
                so = "s82" if t == 0 else "s83"
                va = f"v{V_L16}" if i < 4 else "v23"
                off = (i % 4)*1024
            else:
                g0, g1 = reg(js[0]), reg(js[1])
                so = f"s{82 + 2*part + t}"
                va = "v22" if i < 4 else "v23"
                off = ((i//2) % 2)*2048 + (i % 2)*256
            o += [f"v_cvt_pk_bf16_f32 v{g0}, v{g0}, v{g0+1}", f"v_cvt_pk_bf16_f32 v{g0+1}, v{g0+2}, v{g0+3}",
                  f"v_cvt_pk_bf16_f32 v{g0+2}, v{g1}, v{g1+1}", f"v_cvt_pk_bf16_f32 v{g0+3}, v{g1+2}, v{g1+3}",
                  f"buffer_store_dwordx4 {vr(g0,4)}, {va}, s[{S_WS}:{S_WS+3}], {so} offen offset:{off}"]
            return o
        half = len(pieces) // 2
        jsets = [sorted(set(j for pc in pieces[:half] for j in pc[0])), sorted(set(j for pc in pieces[half:] for j in pc[0]))]
        rl = [xread(s, 1, i) for i in range(8)]
        for j in jsets[0]: rl += [wread(s, 1, j, 0), wread(s, 1, j, 1)]
        for x in rl: x["lg"] = ("frA", 0)
        for j in jsets[1]: rl += [wread(s, 1, j, 0), wread(s, 1, j, 1)]
        rl += [I(f"ds_read_b128 {ar(KVX,4)}, v{V_RKX} offset:{(s%2)*32768}", lg=("kvf", s)),
               I(f"ds_read_b64_tr_b16 {ar(KVW,2)}, v{V_RKW} offset:{(s%2)*4096}", lg=("kvf", s)),
               I(f"ds_read_b64_tr_b16 {ar(KVW+2,2)}, v{V_RKW} offset:{(s%2)*4096 + 128}", lg=("kvf", s))]
        q = s - tq0 - 2
        tr.wait(lg=[("fr", s, 0)] + ([("tf", q)] if 0 <= q < 9 else []))
        if 0 <= q < 9:
            so = S_TDST if q < 7 else S_TDST2
            rl.append(I(f"buffer_store_dwordx4 {ar(A_T,4)}, v{V_L16}, s[{S_WS}:{S_WS+3}], s{so} offen", vm=("ts", q)))
        for k, (j, i) in enumerate([(j, i) for j in jsets[0] for i in range(8)]):
            tr.ins(mfma(0, j, i))
            if rl: tr.items.append(rl.pop(0))
            if setup: tr.ins(setup.pop(0))
        assert not rl
        for x in setup: tr.ins(x)
        tr.wait(lg=[("frA", 0)])
        ml = []
        for pi, pc in enumerate(pieces):
            if pi == half:
                ml.append((W(lg=[("fr", s, 1), ("kvf", s)]), None))
                ml.append((f"v_mfma_f32_16x16x32_bf16 {ar(KVA,4)}, {ar(KVX,4)}, {ar(KVW,4)}, {ar(KVA,4)}", None))
                ml += [(mfma(0, j, i), None) for j in jsets[1] for i in range(8)]
                ml.append((I(f"ds_write_b128 v21, {ar(KVA,4)}"), None))
            for j in pc[0]: ml.append((mfma(1, j, pc[2]), pi))
        done_at = {}
        cnt = 0
        vq = []
        nextp = 0
        for k, (m, pi) in enumerate(ml):
            if isinstance(m, dict):
                tr.items.append(m); continue
            tr.ins(m); cnt += 1
            if pi is not None and (k + 1 == len(ml) or ml[k + 1][1] != pi): done_at[pi] = cnt
            budget = 2
            while budget > 0:
                if not vq and nextp in done_at and cnt - done_at[nextp] >= 9:
                    vq = piece_ops(pieces[nextp], False); nextp += 1
                if not vq: break
                c_ = 2 if vq[0].startswith("buffer_") else 1
                if c_ > budget: break
                tr.ins(vq.pop(0)); cnt += 1; budget -= c_
        for x in vq: tr.ins(x); cnt += 1
        while nextp < len(pieces):
            if cnt - done_at[nextp] < 9: tr.ins("s_nop 7"); cnt += 8
            for x in piece_ops(pieces[nextp], True): tr.ins(x); cnt += 1
            nextp += 1
        return tr
    lf, lq = last_step(False), last_step(True)
    resolve([pro, pro2] + segs + [lf])
    resolve([pro, pro2] + segs + [lq])
    emit_trace(a, [pro])
    st.stamp()
    emit_trace(a, [pro2])
    st.stamp()
    for k, tr in enumerate(segs):
        emit_trace(a, [tr])
        if 'stg' in exp and k % 2 == 0: st.stamp()
    st.stamp()
    a(f"s_cmp_lg_u32 s{S_ISQ}, 0")
    a("s_cbranch_scc1 K1_EPI_Q")
    emit_trace(a, [lf])
    a("s_branch K1_EPI_KV")
    a.label("K1_EPI_Q")
    emit_trace(a, [lq])
    a.label("K1_EPI_KV")
    a("s_waitcnt lgkmcnt(0)")
    a("s_barrier")
    if dbg:
        st.stamp()
        a("s_waitcnt vmcnt(0)")
        st.stamp()
        st.dump(0, S_W, 86)
    c = struct.unpack("<I", struct.pack("<f", math.log2(math.e) / math.sqrt(32.0)))[0]
    a(f"""
    s_cmp_ge_u32 s{S_W}, 2
    s_cbranch_scc1 K1_END
    ds_read_b128 v[4:7], v21 offset:2048
    """)
    for r in range(4): a(f"v_accvgpr_read_b32 v{8+r}, a{KVA+r}")
    a(f"""
    s_lshl_b32 s82, s{S_MT}, 3
    s_lshr_b32 s83, s{S_NT}, 2
    s_add_u32 s82, s82, s83
    s_lshl_b32 s82, s82, 12
    s_add_u32 s82, s82, {WS_KV:#x}
    s_and_b32 s83, s{S_NT}, 1
    s_and_b32 s85, s{S_NT}, 2
    s_cmp_eq_u32 s85, 0
    s_cselect_b32 s84, {c:#x}, 1.0
    s_waitcnt lgkmcnt(0)
    """)
    for r in range(4):
        a(f"v_add_f32 v{4+r}, v{4+r}, v{8+r}")
    for r in range(4):
        a(f"v_mul_f32 v{4+r}, s84, v{4+r}")
    a(f"""
    v_cvt_pk_bf16_f32 v4, v4, v5
    v_cvt_pk_bf16_f32 v5, v6, v7
    s_cbranch_scc1 K1_EPI_K
    s_lshl_b32 s85, s{S_W}, 10
    s_add_u32 s82, s82, s85
    s_lshl_b32 s83, s83, 8
    s_add_u32 s82, s82, s83
    v_and_b32 v8, 15, {L}
    v_lshlrev_b32 v8, 4, v8
    v_bfe_u32 v9, {L}, 4, 1
    v_lshl_add_u32 v8, v9, 9, v8
    v_lshrrev_b32 v9, 5, {L}
    v_lshl_add_u32 v8, v9, 3, v8
    buffer_store_dwordx2 v[4:5], v8, s[{S_WS}:{S_WS+3}], s82 offen offset:2048
    s_endpgm
    K1_EPI_K:
    s_lshl_b32 s85, s{S_W}, 8
    s_add_u32 s82, s82, s85
    s_lshl_b32 s83, s83, 3
    s_add_u32 s82, s82, s83
    v_bfe_u32 v8, {L}, 3, 1
    v_lshlrev_b32 v8, 10, v8
    v_bfe_u32 v9, {L}, 2, 1
    v_lshl_add_u32 v8, v9, 9, v8
    v_lshrrev_b32 v9, 4, {L}
    v_lshl_add_u32 v8, v9, 6, v8
    v_and_b32 v9, 3, {L}
    v_lshl_add_u32 v8, v9, 1, v8
    buffer_store_short v4, v8, s[{S_WS}:{S_WS+3}], s82 offen
    buffer_store_short_d16_hi v4, v8, s[{S_WS}:{S_WS+3}], s82 offen offset:16
    buffer_store_short v5, v8, s[{S_WS}:{S_WS+3}], s82 offen offset:32
    buffer_store_short_d16_hi v5, v8, s[{S_WS}:{S_WS+3}], s82 offen offset:48
    K1_END:
    s_endpgm
    """)
    return a.text()
```

```python
from common import *
import math, struct

K2 = "gm_attn_down_kernel"
LDS_SP = 65536
K2_LDS = 163840

V_L16, V_L16B, V_KVR = 1, 2, 3
V_W = 4
V_SP, V_KP = 8, 12
V_LANE, V_G, V_OMG = 16, 17, 18
SB = [32, 48]; PB = [64, 72]
ACC = 128
A_O, A_L, A_SEL, A_Q, A_K, A_V = 0, 32, 40, 44, 60, 76
A_WR, RW = 92, 20
A_HR, RH = 172, 3
A_WX = 220
S_OUT, S_DBG, S_WS = 20, 24, 8
S_HB, S_WB, S_KVB, S_XB = 12, 14, 16, 18
S_W, S_MT, S_NT, S_M0KV, S_M0SP = 28, 29, 30, 35, 34
NDOWN, NWO = 28, 8
NSLOT = 128

I = lambda text, vm=None, lg=None: dict(text=text, vm=vm, lg=lg)
W = lambda vm=(), lg=(): dict(text=None, needvm=list(vm), needlg=list(lg))
def adv64(s, n): return [I(f"s_add_u32 s{s}, s{s}, {n:#x}\ns_addc_u32 s{s+1}, s{s+1}, 0")]

def accr(J, i): return vr(ACC + (J*4 + i)*4, 4)
V_WX = 88
def wreg(sig, J):
    if sig == NDOWN + 7: return ar(A_WX + 4*J, 4)
    if sig == NDOWN + 6: return vr(V_WX + 4*J, 4)
    return ar(A_WR + 4*((8*sig + J) % RW), 4)
OREGS = [A_Q + 4*k for k in range(12)] + [A_O + 4*k for k in range(8)] + [A_HR + 4*k for k in range(4*RH)]
def hreg(sig, i):
    if sig >= NDOWN: return ar(OREGS[4*(sig - NDOWN) + i], 4)
    return ar(A_HR + 16*(sig % RH) + 4*i, 4)
def gemm_mfma(sig, J, i, first):
    return f"v_mfma_f32_16x16x32_bf16 {accr(J,i)}, {wreg(sig,J)}, {hreg(sig,i)}, {'0' if first else accr(J,i)}"
def h_load(sig, i):
    fl = " sc1" if sig >= NDOWN else ""
    return I(f"global_load_dwordx4 {hreg(sig,i)}, v{V_L16}, s[{S_HB}:{S_HB+1}] offset:{i*1024}{fl}", vm=("h", sig, i))
def wsrc(sig):
    if sig < NDOWN + 2: return "ring"
    if sig < NDOWN + 5: return "sp"
    if sig < NDOWN + 6: return "kv"
    return "x"
def w_load(sig, J):
    src = wsrc(sig)
    if src == "ring":
        return I(f"global_load_dwordx4 {wreg(sig,J)}, v{V_W + J//2}, s[{S_WB}:{S_WB+1}] offset:{(J%2)*1024}", vm=("w", sig, J))
    if src == "x":
        return I(f"global_load_dwordx4 {wreg(sig,J)}, v{V_W + J//2}, s[{S_XB}:{S_XB+1}] offset:{(J%2)*1024}", vm=("w", sig, J))
    if src == "sp":
        return I(f"ds_read_b128 {wreg(sig,J)}, v{V_SP + J//2} offset:{(sig - NDOWN - 2)*8192 + (J%2)*1024}", lg=("w", sig, J))
    return I(f"ds_read_b128 {wreg(sig,J)}, v{V_KP + J//2} offset:{(sig - NDOWN - 5)*8192 + (J%2)*1024}", lg=("w", sig, J))
def w_need(sig, J):
    return W(vm=[("w", sig, J)]) if wsrc(sig) in ("ring", "x") else W(lg=[("w", sig, J)])
def w_dma(sig, J):
    return I(f"global_load_lds_dwordx4 v{V_L16 if J < 4 else V_L16B}, s[{S_XB}:{S_XB+1}] offset:{(J%4)*1024}", vm=("wd", sig))
def w_dma_m0(sig, J):
    if wsrc(sig) == "sp": return I(f"s_add_u32 m0, s{S_M0SP}, {(sig - NDOWN - 2)*8192 + (J//4)*4096}")
    return I(f"s_add_u32 m0, s{S_M0KV}, {(J//4)*4096}")
def x_base(sig):
    return I(f"s_add_u32 s{S_XB}, s38, {(sig - NDOWN)*8192}\ns_addc_u32 s{S_XB+1}, s39, 0")
def qk(n, half):
    T = n // 2; Sx = SB[n % 2]
    c = "0" if half == 0 else vr(Sx, 16)
    return f"v_mfma_f32_32x32x16_bf16 {vr(Sx,16)}, {ar(A_K + 8*(T%2) + 4*half,4)}, {ar(A_Q + 8*(n%2) + 4*half,4)}, {c}"
def pv(n, half):
    T = n // 2; O = A_O + 16*(n % 2)
    c = "0" if (n < 2 and half == 0) else ar(O, 16)
    return f"v_mfma_f32_32x32x16_bf16 {ar(O,16)}, {ar(A_V + 8*(T%2) + 4*half,4)}, {vr(PB[n%2] + 4*half,4)}, {c}"
def summ(n, half):
    Lr = A_L + 4*(n % 2)
    c = "0" if (n < 2 and half == 0) else ar(Lr, 4)
    return f"v_mfma_f32_16x16x32_bf16 {ar(Lr,4)}, {ar(A_SEL,4)}, {vr(PB[n%2] + 4*half,4)}, {c}"
def kv_off(T): return ((T // 8) % 2)*32768 + (T % 8)*4096
def k_read(T, half):
    return I(f"ds_read_b128 {ar(A_K + 8*(T%2) + 4*half,4)}, v{V_KVR} offset:{kv_off(T) + half*1024}", lg=("k", T))
def v_read(T, half):
    return I(f"ds_read_b128 {ar(A_V + 8*(T%2) + 4*half,4)}, v{V_KVR} offset:{kv_off(T) + 2048 + half*1024}", lg=("v", T))
def kv_dma(stage, part, j):
    v = V_L16 if part == 0 else V_L16B
    return I(f"global_load_lds_dwordx4 v{v}, s[{S_KVB}:{S_KVB+1}] offset:{j*1024}", vm=("kv", stage))

def xcost(x):
    t = x["text"] or "s_"
    if t.startswith("ds_"): return 4
    if t.startswith("global_"): return 5
    if t.startswith("buffer_"): return 8
    if t.startswith("v_"): return 4
    if "\n" in t: return 4
    return 0

def main_loop(NIN, g0, early=()):
    NG = 32*NIN
    seq = []
    mu = 0
    for n in range(NSLOT):
        att = []
        if n + 1 < NSLOT: att += [(qk(n+1, 0), 32), (qk(n+1, 1), 32)]
        if n >= 1: att += [(pv(n-1, 0), 32), (summ(n-1, 0), 16), (pv(n-1, 1), 32), (summ(n-1, 1), 16)]
        hi = 0 if n < g0 else round(NG*(n + 1 - g0)/(NSLOT - g0))
        cnt = hi - mu
        for k, (t, p_) in enumerate(att):
            seq.append(dict(text=t, pipe=p_, slot=n, mu=None, k=k))
            want = round(cnt*(k + 1)/len(att))
            have = round(cnt*k/len(att))
            for _ in range(want - have):
                sig, J, i = mu // 32, (mu % 32) // 4, mu % 4
                seq.append(dict(text=gemm_mfma(sig, J, i, sig == 0), pipe=16, slot=n, mu=mu, k=None)); mu += 1
    assert mu == NG
    N = len(seq)
    gaps = [[] for _ in range(N)]
    pos_mu = {s["mu"]: g for g, s in enumerate(seq) if s["mu"] is not None}
    slot_start = {}
    for g, s in enumerate(seq): slot_start.setdefault(s["slot"], g)
    slot_start[NSLOT] = N
    busy = lambda G: any(xcost(x) or (x["text"] is None) for x in gaps[G]) or len(gaps[G]) >= 1
    def place(item, lo, hi=None):
        G = lo
        while G < N and gaps[G]: G += 1
        if hi is not None and G > hi:
            lo = min(lo, hi)
            G = min(range(lo, hi + 1), key=lambda g: (sum(xcost(x) + 1 for x in gaps[g]), g))
        assert G < N, (item, lo, hi, G)
        gaps[G].append(item); return G
    def place_cluster(items, lo, hi):
        cands = [g for g in range(lo, min(hi, N - 1) + 1) if not gaps[g]]
        big = [g for g in cands if seq[g]["pipe"] == 32]
        if big: G = big[0]
        elif cands: G = cands[0]
        else: G = min(range(lo, min(hi, N - 1) + 1), key=lambda g: (sum(xcost(x) + 1 for x in gaps[g]), g))
        gaps[G].extend(items); return G
    for m in range(NG):
        sig, J, i = m // 32, (m % 32) // 4, m % 4
        if i == 0:
            w = w_need(sig, J)
            if J == 0: w["needvm"] += [("h", sig, q) for q in range(4)]
            gaps[pos_mu[m] - 1].append(w)
    for n in range(0, NSLOT - 2, 2):
        gaps[slot_start[n + 1] - 1].append(W(lg=[("k", n // 2 + 1)]))
    gaps[slot_start[NSLOT - 1] - 1].append(W(lg=[("v", NSLOT // 2 - 1)]))
    for it in range(7):
        G = slot_start[16*it + 14]
        gaps[G] = [W(vm=[("kv", it + 1)], lg=[("v", 8*it + 7)]), I("s_barrier")] + gaps[G]
    for n in range(NSLOT):
        T = n // 2 + 1
        if T >= NSLOT // 2: continue
        lo = slot_start[n] + (1 if n % 16 == 14 else 0) + 1
        G = place(k_read(T, 0) if n % 2 == 0 else v_read(T, 0), lo, slot_start[n + 1] - 2)
        place(k_read(T, 1) if n % 2 == 0 else v_read(T, 1), G + 2, slot_start[n + 1] - 2)
    lastw = lasth = -1
    G = -1
    for k in range(0, len(early), 4):
        G = place_cluster(early[k:k+4], G + 1, G + 6)
    for m in range(15, NG, 16):
        sig, J = m // 32, (m % 32) // 4
        G = pos_mu[m]
        items = []
        for q in range(J - 3, J + 1):
            phi = 8*sig + q + RW
            items.append((phi // 8, phi % 8))
        s2, J2 = items[0]
        if J2 == 0:
            x = adv64(S_WB, 8192)[0]
            if s2 == NDOWN: x = I(f"s_mov_b64 s[{S_WB}:{S_WB+1}], s[38:39]")
            assert lastw + 1 <= G - 1
            place(x, max(lastw + 1, G - 8), G - 1)
        lastw = place_cluster([w_load(a_, b_) for a_, b_ in items], G, G + 6)
        if J == 7 and sig + RH < NDOWN:
            G = place(adv64(S_HB, 8192)[0], pos_mu[m] - 6, pos_mu[m])
            place_cluster([h_load(sig + RH, i) for i in range(4)], min(lastw + 6, N - 1), lastw + 14)
    for it in range(7):
        for part in range(2):
            s0 = 16*it + (6 if it == 0 else 1) + 3*part
            G = place_cluster([kv_dma(it + 1, part, j) for j in range(4)], slot_start[s0] + 3, slot_start[s0 + 1] + 3)
            place(I(f"s_add_u32 m0, s{S_M0KV}, {((it+1)%2)*32768 + part*4096}"), G - 3, G - 1)
        place(adv64(S_KVB, 32768)[0], G + 1)
    jobs = [(sig, J0) for sig in (NDOWN + 2, NDOWN + 3, NDOWN + 4, NDOWN + 6, NDOWN + 7) for J0 in (0, 4)]
    where = [16*it + sl for it in range(1, 6) for sl in (9, 12)]
    jobs += [(NDOWN + 5, 0), (NDOWN + 5, 4)]; where += [16*7 + 1, 16*7 + 4]
    for (sig, J0), sl in zip(jobs, where):
        dma = wsrc(sig) != "x"
        G = place_cluster([(w_dma if dma else w_load)(sig, J) for J in range(J0, J0 + 4)], slot_start[sl] + 4, slot_start[sl + 1] + 4)
        if dma: place(w_dma_m0(sig, J0), G - 3, G - 1)
        if J0 == 0: place(x_base(sig), G - 4, G - 1)
    V = []
    for n in range(NSLOT):
        Sx, Px = SB[n % 2], PB[n % 2]
        for r in range(0, 16, 2):
            V += [(8, f"v_exp_f32 v{Sx+r}, v{Sx+r}", n, "e"), (8, f"v_exp_f32 v{Sx+r+1}, v{Sx+r+1}", n, "e")]
            if r >= 2: V.append((4, f"v_cvt_pk_bf16_f32 v{Px+r//2-1}, v{Sx+r-2}, v{Sx+r-1}", n, r//2 - 1))
        V.append((4, f"v_cvt_pk_bf16_f32 v{Px+7}, v{Sx+14}, v{Sx+15}", n, 7))
    vidx = {(n, k): i for i, (_, _, n, k) in enumerate(V) if k != "e"}
    for g, sq in enumerate(seq):
        n, k = sq["slot"], sq["k"]
        dep = -1
        if k is not None:
            kk = k if n + 1 < NSLOT else k + 2
            if kk == 0 and n >= 1: dep = vidx[(n - 1, 7)]
            if kk in (2, 3): dep = vidx[(n - 1, 3)]
            if kk in (4, 5): dep = vidx[(n - 1, 7)]
            sq["kk"] = kk
        sq["dep"] = dep
    pos_att = {(sq["slot"], sq["kk"]): g for g, sq in enumerate(seq) if sq["k"] is not None}
    tr = Trace()
    t = valu = pipe = 0
    ig = iv = 0
    cnt = 0
    emitted_at = {}
    vem_at = {}
    while ig < N or iv < len(V):
        m_ok = ig < N and seq[ig]["dep"] < iv and (seq[ig]["dep"] < 0 or cnt - vem_at[seq[ig]["dep"]] >= 2)
        v_ok = False
        if iv < len(V):
            c, txt_, n, k = V[iv]
            v_ok = True
            if n >= 1 and k == "e":
                g = pos_att[(n - 1, 1)]
                v_ok = g in emitted_at and cnt - emitted_at[g][0] >= 12 and max(t, valu) >= emitted_at[g][1] + 56
            if k != "e" and n >= 2:
                g = pos_att[(n - 1, 3 if k < 4 else 5)]
                v_ok = g in emitted_at
        now = max(t, valu)
        if m_ok and (pipe <= now or not v_ok):
            s_ = max(now, pipe); t = s_ + 4; valu = s_ + 8; pipe = s_ + seq[ig]["pipe"]
            tr.ins(seq[ig]["text"]); cnt += 1; emitted_at[ig] = (cnt, s_)
            prev = ""
            for x in gaps[ig]:
                tr.items.append(x); cnt += 1
                tx = x["text"] or "s_"
                if tx.startswith("ds_"): t += 4 if prev.startswith("ds_") else 8
                elif tx.startswith("global_"): t += 4 if prev.startswith("global_") else 14
                elif tx.startswith("buffer_"): t += 12
                else: t += 4*(1 + tx.count("\n"))
                prev = tx
            ig += 1
        elif v_ok:
            t = valu = now + c
            tr.ins(txt_); cnt += 1; vem_at[iv] = cnt; iv += 1
        else:
            tr.ins("s_nop 0"); cnt += 1; t += 4
    txt = [x["text"] for x in tr.items if x["text"]]
    for k in range(1, len(txt)):
        if txt[k].startswith("v_cvt") and txt[k-1].startswith("v_exp"):
            d = txt[k-1].split()[1].rstrip(",")
            assert d + "," not in txt[k] + "," or txt[k].split()[1].rstrip(",") == d, (txt[k-1], txt[k])
    return tr

def gemm_step(sig, extra=()):
    gaps = [[] for _ in range(32)]
    pre = []
    w = w_need(sig, 0); w["needvm"] += [("h", sig, 0)]
    pre.append(w)
    for i in range(1, 4): gaps[i - 1].append(W(vm=[("h", sig, i)]))
    for J in range(8):
        if J % 4 == 3:
            for q in range(J - 3, J + 1):
                phi = 8*sig + q + RW
                s2, J2 = phi // 8, phi % 8
                if s2 >= NDOWN + 6: continue
                if wsrc(s2) == "ring" and J2 == 0:
                    x = adv64(S_WB, 8192)[0]
                    if s2 == NDOWN: x = I(f"s_mov_b64 s[{S_WB}:{S_WB+1}], s[38:39]")
                    gaps[4*J + 1].append(x)
                if wsrc(s2) in ("sp", "kv"):
                    if J2 == 0: gaps[4*J + 2].append(W(vm=[("wd", s2)]))
                    gaps[4*J + 3].append(w_load(s2, J2))
                else:
                    gaps[4*J + 3].append(w_load(s2, J2))
        if J < 7: gaps[4*J + 3].insert(0, w_need(sig, J + 1))
    if sig + RH < NDOWN:
        gaps[29].append(adv64(S_HB, 8192)[0])
        gaps[31].extend(h_load(sig + RH, i) for i in range(4))
    for k, grp in enumerate(extra):
        gaps[[5, 21][k]].extend(grp)
    tr = Trace()
    tr.items.extend(pre)
    for mu in range(32):
        tr.ins(gemm_mfma(sig, mu // 4, mu % 4, False))
        tr.items.extend(gaps[mu])
    return tr

def gen_k2(dbg=False, NIN=25, g0=4, exp='', opre=2, npre=8, nb=(1, 1), flag='atomic', xmap=48, poll1=False):
    a = Asm()
    L = f"v{V_LANE}"
    a("s_cmp_ge_u32 s2, 256")
    a("s_cbranch_scc1 K2_END")
    st = Stamps(a, dbg)
    st.stamp()
    a("s_load_dwordx4 s[60:63], s[0:1], 80")
    a("s_load_dwordx2 s[64:65], s[0:1], 96")
    code_prefetch(a, "K2", 72, 30, 2)
    a(f"""
    v_and_b32 {L}, 63, v0
    v_lshrrev_b32 v1, 6, v0
    s_and_b32 s76, s2, 7
    v_readfirstlane_b32 s{S_W}, v1
    s_lshr_b32 s77, s2, 3
    """)
    if xmap == 84:
        a(f"""
        s_lshr_b32 s78, s76, 1
        s_lshl_b32 s78, s78, 3
        s_lshr_b32 s79, s77, 2
        s_add_u32 s{S_MT}, s78, s79
        s_and_b32 s78, s76, 1
        s_lshl_b32 s78, s78, 2
        s_and_b32 s79, s77, 3
        s_add_u32 s{S_NT}, s78, s79
        """)
    else:
        a(f"""
        s_lshl_b32 s78, s76, 2
        s_lshr_b32 s79, s77, 3
        s_add_u32 s{S_MT}, s78, s79
        s_and_b32 s{S_NT}, s77, 7
        """)
    a(f"""
    v_lshlrev_b32 v{V_L16}, 4, {L}
    v_add_u32 v{V_L16B}, 4096, v{V_L16}
    v_mov_b32 v{V_KVR}, v{V_L16}
    s_lshl_b32 s{S_M0KV}, s{S_W}, 13
    s_add_u32 s40, s{S_M0KV}, {WS_KV:#x}
    """)
    a(f"""
    s_lshl_b32 s78, s{S_NT}, 2
    s_and_b32 s79, s{S_W}, 2
    s_add_u32 s41, s78, s79
    s_lshl_b32 s78, s41, 6
    s_lshl_b32 s79, s{S_MT}, 1
    s_add_u32 s78, s78, s79
    s_and_b32 s42, s{S_W}, 1
    s_add_u32 s78, s78, s42
    s_lshl_b32 s78, s78, 11
    s_add_u32 s43, s78, {WS_Q:#x}
    """)
    a(f"""
    s_lshr_b32 s78, s{S_MT}, 1
    s_mul_i32 s78, s78, 112
    s_mul_i32 s79, s{S_W}, 28
    s_add_u32 s78, s78, s79
    s_lshl_b32 s78, s78, 13
    s_and_b32 s44, s{S_MT}, 1
    s_lshl_b32 s44, s44, 12
    s_add_u32 s45, s78, s44
    s_mul_i32 s78, s{S_NT}, 144
    s_add_u32 s79, s79, s78
    s_lshl_b32 s79, s79, 13
    s_add_u32 s46, s79, {WS_WT:#x}
    s_lshl_b32 s79, s{S_W}, 3
    s_add_u32 s78, s78, s79
    s_lshl_b32 s78, s78, 13
    s_add_u32 s47, s78, {WS_WT + 112*8192:#x}
    """)
    for p in range(4):
        a(f"s_add_u32 s78, s{S_W}, {p}")
        a("s_and_b32 s78, s78, 3")
        a("s_lshl_b32 s78, s78, 11")
        a(f"v_add_u32 v{V_W+p}, s78, v{V_L16}")
    a(f"""
    s_waitcnt lgkmcnt(0)
    s_add_u32 s{S_KVB}, s64, s40
    s_addc_u32 s{S_KVB+1}, s65, 0
    s_add_u32 s48, s64, s43
    s_addc_u32 s49, s65, 0
    s_add_u32 s50, s48, 0x20000
    s_addc_u32 s51, s49, 0
    s_mov_b32 m0, s{S_M0KV}
    """)
    st.stamp()
    pro = Trace()
    for j in range(4): pro.items.append(kv_dma(0, 0, j))
    for hh in range(2):
        for s in range(2):
            pro.ins(f"global_load_dwordx4 {ar(A_Q + 8*hh + 4*s,4)}, v{V_L16}, s[{48+2*hh}:{49+2*hh}] offset:{s*1024}", vm=("q", 0))
    pro.ins(f"s_add_u32 m0, s{S_M0KV}, 4096")
    pro.raw(f"""
    s_add_u32 s{S_HB}, s64, s45
    s_addc_u32 s{S_HB+1}, s65, 0
    """)
    for j in range(4): pro.items.append(kv_dma(0, 1, j))
    pro.raw(f"""
    s_add_u32 s{S_WB}, s64, s46
    s_addc_u32 s{S_WB+1}, s65, 0
    s_add_u32 s38, s64, s47
    s_addc_u32 s39, s65, 0
    s_add_u32 s{S_XB}, s38, {2*8192}
    s_addc_u32 s{S_XB+1}, s39, 0
    """)
    pro.items.extend(adv64(S_KVB, 32768))
    p = Asm()
    p(f"""
    v_bfe_u32 v26, {L}, 4, 1
    v_bfe_u32 v27, {L}, 2, 1
    v_cmp_eq_u32 vcc, v26, v27
    v_mov_b32 v26, 0x3f803f80
    s_mul_i32 s{S_M0SP}, s{S_W}, 24576
    v_cndmask_b32 v26, 0, v26, vcc
    s_add_u32 s{S_M0SP}, s{S_M0SP}, {LDS_SP}
    """)
    for r in range(4): p(f"v_accvgpr_write_b32 a{A_SEL+r}, v26")
    for q in range(4):
        p(f"v_add_u32 v{V_SP+q}, s{S_M0SP}, v{V_W+q}")
        p(f"v_add_u32 v{V_KP+q}, s{S_M0KV}, v{V_W+q}")
    srd(p, S_WS, 64, WS_SIZE)
    srd(p, S_OUT, 60, 2048*1024*2)
    srd(p, S_DBG, 62, 256)
    for l in p.lines: pro.ins(l.strip())
    def rebase(x, frm, to):
        x["text"] = x["text"].replace(f"s[{frm}:{frm+1}]", f"s[{to}:{to+1}]"); return x
    pro.raw(f"""
    s_mov_b64 s[80:81], s[{S_HB}:{S_HB+1}]
    s_add_u32 s82, s{S_HB}, 0x2000
    s_addc_u32 s83, s{S_HB+1}, 0
    s_add_u32 s{S_HB}, s{S_HB}, 0x4000
    s_addc_u32 s{S_HB+1}, s{S_HB+1}, 0
    s_mov_b64 s[84:85], s[{S_HB}:{S_HB+1}]
    s_mov_b64 s[86:87], s[{S_WB}:{S_WB+1}]
    s_add_u32 s{S_WB}, s{S_WB}, 0x2000
    s_addc_u32 s{S_WB+1}, s{S_WB+1}, 0
    s_mov_b64 s[88:89], s[{S_WB}:{S_WB+1}]
    s_add_u32 s{S_WB}, s{S_WB}, 0x2000
    s_addc_u32 s{S_WB+1}, s{S_WB+1}, 0
    s_mov_b64 s[66:67], s[{S_WB}:{S_WB+1}]
    """)
    rest = [rebase(h_load(0, i), S_HB, 80) for i in range(4)] + [rebase(w_load(0, J), S_WB, 86) for J in range(8)]
    pro.items.extend(rest[:npre]); rest = rest[npre:]
    rest += [rebase(h_load(1, i), S_HB, 82) for i in range(4)]
    rest += [rebase(w_load(1, J), S_WB, 88) for J in range(8)]
    rest += [rebase(h_load(2, i), S_HB, 84) for i in range(4)]
    rest += [rebase(w_load(2, J), S_WB, 66) for J in range(4)]
    pro.raw(f"""
    s_lshl_b32 s78, s{S_MT}, 9
    s_add_u32 s78, s78, {WS_G:#x}
    s_lshl_b32 s79, s42, 8
    s_add_u32 s79, s79, s78
    v_and_b32 v26, 31, {L}
    v_lshlrev_b32 v26, 3, v26
    v_and_b32 v27, 15, {L}
    v_lshlrev_b32 v27, 3, v27
    """)
    rest += [I(f"buffer_load_dword v{V_G}, v26, s[{S_WS}:{S_WS+3}], s79 offen", vm=("g", 0))]
    rest += [I(f"buffer_load_dword v{V_OMG+i}, v27, s[{S_WS}:{S_WS+3}], s78 offen offset:{4 + i*128}", vm=("g", 0)) for i in range(4)]
    pro2 = Trace()
    pro2.wait(vm=[("kv", 0), ("q", 0)])
    pro2.ins("s_barrier")
    for half in range(2): pro2.items.append(k_read(0, half))
    for half in range(2): pro2.items.append(v_read(0, half))
    pro2.wait(lg=[("k", 0)])
    pro2.ins(qk(0, 0)); pro2.ins(qk(0, 1))
    pro2.ins("s_nop 7"); pro2.ins("s_nop 3")
    body = main_loop(NIN, g0, rest)

    t1 = Trace()
    n = NSLOT - 1
    t1.ins("s_nop 1")
    t1.ins(pv(n, 0)); t1.ins(summ(n, 0)); t1.ins(pv(n, 1)); t1.ins(summ(n, 1))
    t1.raw(f"""
    v_bfe_u32 v26, {L}, 4, 1
    v_lshlrev_b32 v26, 10, v26
    v_and_b32 v27, 15, {L}
    v_lshl_add_u32 v26, v27, 4, v26
    v_lshrrev_b32 v27, 5, {L}
    v_lshl_add_u32 v26, v27, 8, v26
    s_lshr_b32 s78, s{S_MT}, 1
    s_lshl_b32 s78, s78, 18
    s_add_u32 s52, s78, s44
    s_add_u32 s52, s52, {WS_O:#x}
    s_lshl_b32 s78, s41, 13
    s_add_u32 s54, s52, s78
    s_lshl_b32 s78, s42, 11
    s_add_u32 s54, s54, s78
    s_add_u32 s55, s54, 8192
    s_nop 1
    """)
    t1.wait(vm=[("g", 0)])
    t1.raw(f"""
    v_accvgpr_read_b32 v80, a{A_L}
    v_accvgpr_read_b32 v81, a{A_L+4}
    v_mov_b32 v82, 0
    """)
    for r in range(32): t1.ins(f"v_accvgpr_read_b32 v{32+r}, a{A_O+r}")
    for r in range(0, 32, 2): t1.ins(f"v_pk_fma_f32 v[82:83], {vr(32+r,2)}, 0, v[82:83]" if r else f"v_pk_mul_f32 v[82:83], {vr(32,2)}, 0")
    t1.raw(f"""
    v_add_f32 v82, v82, v83
    v_min_f32 v83, v80, v81
    v_max_f32 v84, v80, v81
    v_add_f32 v83, v83, v82
    v_add_f32 v84, v84, v82
    v_add_f32 v85, v80, v81
    s_mov_b32 s78, 0x1f800000
    s_mov_b32 s79, 0x5f800000
    v_cmp_nle_f32 s[82:83], s78, v83
    v_cmp_nge_f32 s[84:85], s79, v84
    v_cmp_u_f32 vcc, v85, v85
    s_nop 3
    s_or_b64 s[82:83], s[82:83], s[84:85]
    s_or_b64 vcc, vcc, s[82:83]
    s_cbranch_vccnz K2_FALLBACK
    K2_NORM:
    v_rcp_f32 v80, v80
    v_rcp_f32 v82, v81
    s_nop 0
    v_mul_f32 v80, v80, v{V_G}
    v_mul_f32 v82, v82, v{V_G}
    """)
    for hh in range(2):
        for r in range(0, 16, 2):
            b = 32 + 16*hh + r
            t1.ins(f"v_pk_mul_f32 {vr(b,2)}, {vr(b,2)}, {vr(80+2*hh,2)} op_sel_hi:[1,0]")
        for pc in range(2):
            b = 32 + 16*hh + 8*pc
            for q in range(4):
                t1.ins(f"v_cvt_pk_bf16_f32 v{64+8*hh+4*pc+q}, v{b+2*q}, v{b+2*q+1}")
            t1.ins(f"buffer_store_dwordx4 {vr(64+8*hh+4*pc,4)}, v26, s[{S_WS}:{S_WS+3}], s{54+hh} offen offset:{pc*512} sc1", vm=("ost", 0))
    nA, nB = nb
    stepsA = [gemm_step(s) for s in range(NIN, NIN + nA)]
    stepsB = [gemm_step(s) for s in range(NIN + nA, NIN + nA + nB)]
    sig = Trace()
    sig.raw(f"""
    s_lshl_b32 s53, s{S_MT}, 3
    v_mov_b32 v26, 0
    v_mov_b32 v27, 1
    s_lshl_b32 s78, s{S_W}, 16
    s_add_u32 s78, s78, s52
    s_add_u32 s56, s64, s78
    s_addc_u32 s57, s65, 0
    """)
    sig.wait(vm=[("ost", 0)])
    sig.ins("s_barrier")
    if flag == "atomic":
        sig.raw(f"""
        s_cmp_lg_u32 s{S_W}, 0
        s_cbranch_scc1 K2_NOSIG
        s_mov_b64 exec, 1
        buffer_atomic_add v27, v26, s[{S_DBG}:{S_DBG+3}], s53 offen sc1
        s_mov_b64 exec, -1
        K2_NOSIG:
        """)
    else:
        sig.raw(f"""
        s_cmp_lg_u32 s{S_W}, 0
        s_cbranch_scc1 K2_NOSIG
        s_add_u32 s78, s53, s{S_NT}
        s_mov_b64 exec, 1
        buffer_store_byte v27, v26, s[{S_DBG}:{S_DBG+3}], s78 offen sc0 sc1
        s_mov_b64 exec, -1
        K2_NOSIG:
        """)
    t3 = Trace()
    chk = ("v_readfirstlane_b32 s82, v28\ns_cmp_lt_u32 s82, 8\ns_cbranch_scc0 K2_POLLED" if flag == "atomic" else
           "v_and_b32 v28, v28, v29\ns_nop 0\nv_readfirstlane_b32 s82, v28\ns_cmp_eq_u32 s82, 0x01010101\ns_cbranch_scc1 K2_POLLED")
    if poll1:
        t3.raw(f"s_cmp_lg_u32 s{S_W}, 0\ns_cbranch_scc1 K2_POLLED")
    t3.raw(f"""
    s_mov_b32 s79, 0x40000
    K2_POLL:
    buffer_load_dwordx2 v[28:29], v26, s[{S_DBG}:{S_DBG+3}], s53 offen sc1
    s_waitcnt vmcnt(0)
    {chk}
    s_sub_u32 s79, s79, 1
    s_cmp_eq_u32 s79, 0
    s_cbranch_scc1 K2_POLLED
    s_sleep 1
    s_branch K2_POLL
    K2_POLLED:
    """)
    if poll1: t3.ins("s_barrier")
    ol = []
    for s in range(NDOWN, NDOWN + NWO):
        grp = [rebase(h_load(s, i), S_HB, 56) for i in range(4)] + (adv64(56, 8192) if s < NDOWN + NWO - 1 else [])
        ol.append(grp)
    t4 = Trace()
    for grp in ol[:opre]: t4.items.extend(grp)
    k = opre
    stepsC = []
    for s in range(NIN + nA + nB, NDOWN):
        ex = []
        while len(ex) < 2 and k < 5: ex.append(ol[k]); k += 1
        stepsC.append(gemm_step(s, ex))
    scale = []
    for J in range(8):
        for i in range(4):
            b = ACC + (J*4 + i)*4
            for r in (0, 2):
                om = V_OMG + i
                if om % 2 == 0: scale.append(f"v_pk_mul_f32 {vr(b+r,2)}, {vr(b+r,2)}, {vr(om,2)} op_sel_hi:[1,0]")
                else: scale.append(f"v_pk_mul_f32 {vr(b+r,2)}, {vr(b+r,2)}, {vr(om-1,2)} op_sel:[0,1] op_sel_hi:[1,1]")
    sc = Trace()
    for q, x in enumerate(scale):
        if q == 0: sc.ins("s_nop 7")
        if q in (8, 40) and k < NWO: sc.items.extend(ol[k]); k += 1
        sc.ins(x)
    sc.ins("s_nop 1")
    wos = []
    for s in range(NDOWN, NDOWN + 4):
        ex = []
        while len(ex) < 2 and k < NWO: ex.append(ol[k]); k += 1
        wos.append(gemm_step(s, ex))
    ph = Trace()
    su = Asm()
    for pp in range(1, 4):
        su(f"s_add_u32 s78, s{S_W}, {pp}")
        su("s_and_b32 s78, s78, 3")
        su("s_mul_i32 s78, s78, 24576")
        su(f"s_add_u32 s78, s78, {(pp-1)*8192}")
        su(f"v_add_u32 v{26+pp}, s78, v{V_L16}")
    su(f"""
    s_mul_i32 s78, s{S_W}, 24576
    v_add_u32 v26, s78, v{V_L16}
    s_lshl_b32 s78, s{S_MT}, 17
    s_lshl_b32 s79, s{S_NT}, 8
    s_add_u32 s78, s78, s79
    s_lshl_b32 s79, s{S_W}, 6
    s_add_u32 s78, s78, s79
    s_add_u32 s79, s78, 0x8000
    s_add_u32 s80, s78, 0x10000
    s_add_u32 s81, s78, 0x18000
    v_and_b32 v30, 15, {L}
    v_lshlrev_b32 v30, 11, v30
    v_bfe_u32 v25, {L}, 4, 1
    v_lshl_add_u32 v30, v25, 5, v30
    v_lshrrev_b32 v25, 5, {L}
    v_lshl_add_u32 v30, v25, 4, v30
    """)
    su = [l.strip() for l in su.lines]
    S2 = list(range(NDOWN + 4, NDOWN + 8))
    ph.wait(vm=[("w", s, J) for s in S2[2:] for J in range(8)], lg=[("w", s, J) for s in S2[:2] for J in range(8)])
    ph.ins("s_barrier")
    for idx, pp in enumerate((1, 2, 3, 0)):
        fill = [[] for _ in range(32)]
        if idx == 0:
            for q, x in enumerate(su): fill[q].append(I(x))
        else:
            prev = (1, 2, 3)[idx - 1]
            for t in range(8):
                fill[4 + 3*t].append(I(f"ds_write_b128 v{26+prev}, {vr(ACC + (prev*8 + t)*4, 4)} offset:{t*1024}", lg=("rw", prev)))
        if idx == 3:
            rd = [I(f"ds_read_b128 {vr(ACC + 32 + (s_*8 + t)*4, 4)}, v26 offset:{s_*8192 + t*1024}", lg=("rr", s_)) for s_ in range(2) for t in range(8)]
            free = [g for g in range(32) if not fill[g]]
            for x, g in zip(rd, free): fill[g].append(x)
            ph.wait(lg=[("rw", 2)])
            ph.ins("s_barrier")
        mu = 0
        for s in S2:
            if idx == 0: ph.wait(vm=[("h", s, i) for i in range(4)])
            for J in (2*pp, 2*pp + 1):
                for i in range(4):
                    ph.ins(gemm_mfma(s, J, i, False)); ph.items.extend(fill[mu]); mu += 1
    ph.wait(lg=[("rw", 3), ("rr", 1)])
    ph.ins("s_barrier")
    for t in range(8): ph.ins(f"ds_read_b128 {vr(48 + t*4, 4)}, v26 offset:{2*8192 + t*1024}", lg=("rr", 2))
    for s_ in range(3):
        if s_ == 2: ph.wait(lg=[("rr", 2)])
        for r in range(0, 32, 2):
            ph.ins(f"v_pk_add_f32 {vr(ACC+r,2)}, {vr(ACC+r,2)}, {vr((ACC + 32 + s_*32 if s_ < 2 else 48) + r,2)}")
    for i in range(4):
        b0, b1 = ACC + i*4, ACC + (4 + i)*4
        d = 32 + i*4
        ph.raw(f"""
        v_cvt_pk_bf16_f32 v{d}, v{b0}, v{b0+1}
        v_cvt_pk_bf16_f32 v{d+1}, v{b0+2}, v{b0+3}
        v_cvt_pk_bf16_f32 v{d+2}, v{b1}, v{b1+1}
        v_cvt_pk_bf16_f32 v{d+3}, v{b1+2}, v{b1+3}
        s_nop 1
        v_permlane16_swap_b32 v{d}, v{d+2}
        v_permlane16_swap_b32 v{d+1}, v{d+3}
        buffer_store_dwordx4 {vr(d,4)}, v30, s[{S_OUT}:{S_OUT+3}], s{78+i} offen
        """)
    for x in sig.items + (t3.items if poll1 else []):
        if x["text"] and (f"s[{S_DBG}:{S_DBG+3}]" in x["text"] or x["text"] == "s_waitcnt vmcnt(0)"):
            x["hide"] = x["text"]; x["text"] = "; " + x["text"]
    resolve([pro, pro2, body, t1] + stepsA + [sig] + stepsB + [t3, t4] + stepsC + [sc] + wos + [ph])
    for x in sig.items + t3.items:
        if "hide" in x: x["text"] = x["hide"]
    emit_trace(a, [pro]); st.stamp()
    emit_trace(a, [pro2]); st.stamp()
    b = Asm()
    emit_trace(b, [body])
    def keep(l):
        t = l.strip()
        if 'nogl' in exp and t.startswith("global_load_dwordx4"): return False
        if 'nodma' in exp and t.startswith("global_load_lds"): return False
        if 'novmw' in exp and t.startswith("s_waitcnt vmcnt"): return False
        if 'nolgw' in exp and t.startswith("s_waitcnt lgkm"): return False
        if 'nokv' in exp and t.startswith("ds_read_b128"): return False
        if 'nobar' in exp and t.startswith("s_barrier"): return False
        return True
    for l in b.lines:
        if keep(l): a.lines.append(l)
        if 'its' in exp and l.strip() == "s_barrier": st.stamp()
    st.stamp()
    emit_trace(a, [t1]); st.stamp()
    for seg in stepsA + [sig]: emit_trace(a, [seg])
    st.stamp()
    for seg in stepsB: emit_trace(a, [seg])
    st.stamp()
    emit_trace(a, [t3]); st.stamp()
    for seg in [t4] + stepsC + [sc]: emit_trace(a, [seg])
    st.stamp()
    for seg in wos: emit_trace(a, [seg])
    st.stamp()
    b = Asm(); emit_trace(b, [ph])
    for l in b.lines:
        a.lines.append(l)
        if 'ph' in exp and (l.strip() == "s_barrier" or "v30, s[20:23], s81" in l): st.stamp()
    if dbg:
        a("s_waitcnt vmcnt(0)")
        st.stamp()
        st.dump(1, S_W, 64)
    a("s_endpgm")
    a.label("K2_FALLBACK")
    a(f"""
    s_waitcnt vmcnt(0) lgkmcnt(0)
    v_mov_b32 v82, 0xff7fffff
    v_mov_b32 v83, 0xff7fffff
    v_mov_b32 v80, 0
    v_mov_b32 v81, 0
    s_mov_b32 s78, {WS_KV:#x}
    """)
    for r in range(32): a(f"v_mov_b32 v{32+r}, 0")
    a.label("K2_FB_LOOP")
    for q in range(4):
        a(f"buffer_load_dwordx4 {ar(A_K+4*q,4)}, v{V_L16}, s[{S_WS}:{S_WS+3}], s78 offen offset:{q*1024}")
    a("s_waitcnt vmcnt(0)")
    for hh in range(2):
        O = 32 + 16*hh; m = 82 + hh; l = 80 + hh
        a(f"v_mfma_f32_32x32x16_bf16 v[64:79], {ar(A_K,4)}, {ar(A_Q+8*hh,4)}, 0")
        a(f"v_mfma_f32_32x32x16_bf16 v[64:79], {ar(A_K+4,4)}, {ar(A_Q+8*hh+4,4)}, v[64:79]")
        a("s_nop 15")
        a("v_max_f32 v84, v64, v65")
        for r in range(2, 16, 2): a(f"v_max3_f32 v84, v{64+r}, v{65+r}, v84")
        a(f"""
        v_mov_b32 v85, v84
        s_nop 1
        v_permlane32_swap_b32 v84, v85
        s_nop 1
        v_max3_f32 v84, v84, v85, v{m}
        v_sub_f32 v85, v{m}, v84
        v_exp_f32 v85, v85
        v_mov_b32 v{m}, v84
        v_mul_f32 v{l}, v{l}, v85
        """)
        for r in range(16):
            a(f"v_sub_f32 v{64+r}, v{64+r}, v84")
            a(f"v_exp_f32 v{64+r}, v{64+r}")
            a(f"v_mul_f32 v{O+r}, v{O+r}, v85")
        for r in range(8):
            a(f"v_cvt_pk_bf16_f32 v{64+r}, v{64+2*r}, v{65+2*r}")
        for r in range(8):
            a(f"v_lshlrev_b32 v86, 16, v{64+r}")
            a(f"v_and_b32 v87, 0xffff0000, v{64+r}")
            a(f"v_add_f32 v{l}, v{l}, v86")
            a(f"v_add_f32 v{l}, v{l}, v87")
        a(f"v_mfma_f32_32x32x16_bf16 {vr(O,16)}, {ar(A_K+8,4)}, v[64:67], {vr(O,16)}")
        a(f"v_mfma_f32_32x32x16_bf16 {vr(O,16)}, {ar(A_K+12,4)}, v[68:71], {vr(O,16)}")
        a("s_nop 15")
    a(f"""
    s_add_u32 s78, s78, 4096
    s_cmp_lt_u32 s78, {WS_KV + 64*4096:#x}
    s_cbranch_scc1 K2_FB_LOOP
    v_mov_b32 v84, v80
    v_mov_b32 v85, v81
    s_nop 1
    v_permlane32_swap_b32 v80, v84
    v_permlane32_swap_b32 v81, v85
    s_nop 1
    v_add_f32 v80, v80, v84
    v_add_f32 v81, v81, v85
    s_branch K2_NORM
    K2_END:
    s_endpgm
    """)
    return a.text()
```

```python
from common import *
import math, struct

K1 = "gm_gemm1_kernel"
LDS_X = 0
LDS_W = 65536
LDS_KV = 131072
LDS_T = 139264
K1_LDS = LDS_T + 3*4096
NST = 16

def accn(j, i):
    return ("v", 32 + (j*8 + i)*4) if j < 7 else ("a", 128 + i*4)
def acc(j, i):
    p, b = accn(j, i); return vr(b, 4, p)
XF = [0, 64]; WF = [32, 96]
KVX, KVW, KVA = 160, 164, 168
A_GX, A_GW = 172, 188
A_T = 204

V_DX, V_DW = 2, 6
V_RX = [10, 11]
V_RW = 12
V_RKX, V_RKW, V_T, V_TD, V_LANE = 16, 17, 18, 19, 20
V_DK, V_DT, V_RT, V_L16 = 30, 29, 28, 27
V_GROW = 26
S_X, S_G, S_U, S_KV, S_WS, S_GW, S_TSRD, S_WD, S_WO = 8, 12, 16, 20, 24, 28, 32, 52, 76
S_W, S_MT, S_NT, S_OK = 36, 37, 38, 39
S_OX, S_OX2, S_OG, S_OU, S_WSTEP = 40, 41, 42, 43, 44
S_M0X, S_M0W, S_M0K, S_M0T = 45, 46, 47, 51
S_TOFF, S_TSTEP, S_ISQ = 48, 49, 50
S_TSRC, S_TDST, S_TSRC2, S_TDST2 = 3, 4, 5, 6

I = lambda text, vm=None, lg=None: dict(text=text, vm=vm, lg=lg)
W = lambda vm=(), lg=(): dict(text=None, needvm=list(vm), needlg=list(lg))

NTW = False
def dma_group(s):
    b = s % 2
    g = []
    for half in range(2):
        so = S_OX if half == 0 else S_OX2
        for j in range(4):
            pre = f"s_add_u32 m0, s{S_M0X}, {b*32768 + half*4096}" if j == 0 else None
            g.append((pre, I(f"buffer_load_dwordx4 v{V_DX+j}, s[{S_X}:{S_X+3}], s{so} offen offset:{j*1024} lds", vm=("st", s))))
    for part in range(2):
        srdn, so2 = (S_G, S_OG) if part == 0 else (S_U, S_OU)
        for j in range(4):
            pre = f"s_add_u32 m0, s{S_M0W}, {b*32768 + part*16384}" if j == 0 else None
            g.append((pre, I(f"buffer_load_dwordx4 v{V_DW+j}, s[{srdn}:{srdn+3}], s{so2} offen offset:{j*1024}{' nt' if NTW else ''} lds", vm=("st", s))))
    g.append((f"s_add_u32 m0, s{S_M0K}, {b*4096}", I(f"buffer_load_dwordx4 v{V_DK}, s[{S_KV}:{S_KV+3}], s{S_OK} offen lds", vm=("st", s))))
    adv = {7: [f"s_add_u32 s{S_OX}, s{S_OX}, 128", f"s_add_u32 s{S_OX2}, s{S_OX2}, 128"],
           11: [f"s_add_u32 s{S_OG}, s{S_OG}, s{S_WSTEP}"], 15: [f"s_add_u32 s{S_OU}, s{S_OU}, s{S_WSTEP}"],
           16: [f"s_add_u32 s{S_OK}, s{S_OK}, 4096"]}
    return g, adv
def xread(s, kk, i):
    setb = kk
    return I(f"ds_read_b128 {ar(XF[setb]+4*i,4)}, v{V_RX[kk]} offset:{(s%2)*32768 + i*2048}", lg=("fr", s, kk))
def wread(s, kk, j, h):
    off = (s % 2)*32768 + h*1024 + kk*8192 + (16384 if j >= 4 else 0)
    return I(f"ds_read_b64_tr_b16 {ar(WF[kk]+4*j+2*h,2)}, v{V_RW + (j&3)} offset:{off}", lg=("fr", s, kk))
def reads(s, kk):
    r = [wread(s, kk, 0, 0), wread(s, kk, 0, 1)] + [xread(s, kk, i) for i in range(8)]
    for j in range(1, 8): r += [wread(s, kk, j, 0), wread(s, kk, j, 1)]
    return r
def mfma(kk, j, i, first=False):
    c = "0" if first else acc(j, i)
    return f"v_mfma_f32_16x16x32_bf16 {acc(j,i)}, {ar(WF[kk]+4*j,4)}, {ar(XF[kk]+4*i,4)}, {c}"

def vcap(items):
    c = 2
    for x in items:
        t = x["text"] or "s_"
        if t.startswith("ds_"): c -= 1
        elif t.startswith("buffer_"): c -= 2
    return max(c, 0)

def g_ops():
    o = ["v_mov_b32 v25, 0", "v_mov_b32 v24, 0"]
    for q in range(8):
        o += [f"v_accvgpr_read_b32 v22, a{A_GW+q}", "v_lshlrev_b32 v1, 16, v22", "v_and_b32 v22, 0xffff0000, v22"]
        for row, accv_ in ((0, 25), (1, 24)):
            o += [f"v_accvgpr_read_b32 v21, a{A_GX+8*row+q}", "v_lshlrev_b32 v23, 16, v21", "v_and_b32 v21, 0xffff0000, v21",
                  "v_mul_f32 v23, v23, v1", "v_mul_f32 v21, v21, v22", "v_cvt_pk_bf16_f32 v21, v23, v21",
                  "v_lshlrev_b32 v23, 16, v21", "v_and_b32 v21, 0xffff0000, v21",
                  f"v_add_f32 v{accv_}, v{accv_}, v23", f"v_add_f32 v{accv_}, v{accv_}, v21"]
    slow = ["v_permlane32_swap_b32 v25, v24", "v_add_f32 v25, v25, v24"]
    for sh in (8, 4, 2, 1):
        slow.append(f"v_add_f32_dpp v25, v25, v25 row_ror:{sh} row_mask:0xf bank_mask:0xf")
    slow += ["v_mov_b32 v24, v25", "v_permlane16_swap_b32 v25, v24", "v_add_f32 v25, v25, v24",
             "v_cvt_pk_bf16_f32 v25, v25, v25", "v_lshlrev_b32 v25, 16, v25", "v_mul_f32 v25, 0xbfb8aa3b, v25",
             "v_exp_f32 v25, v25", "v_add_f32 v25, 1.0, v25", "v_rcp_f32 v25, v25",
             "v_cvt_pk_bf16_f32 v25, v25, v25", "v_lshlrev_b32 v24, 16, v25", "v_sub_f32 v25, 1.0, v24",
             "v_cvt_pk_bf16_f32 v25, v25, v25", "v_lshlrev_b32 v25, 16, v25"]
    return o, slow

def gen_k1(touch=2, dbg=False, nhead=13, p1=13, exp='', k2pref=True, t0=0, gs=12, tpre=0, tq0=5, ttouch=0, xmap=84, ntw=True, ntt=True):
    global NTW
    NTW = ntw in (True, 'all')
    tfirst = touch + 1 - t0 - tpre
    assert tfirst >= 0
    a = Asm()
    L = f"v{V_LANE}"
    a("s_cmp_ge_u32 s2, 256")
    a("s_cbranch_scc1 K1_END")
    st = Stamps(a, dbg)
    st.stamp()
    a("s_load_dwordx8 s[56:63], s[0:1], 0")
    a("s_load_dwordx8 s[64:71], s[0:1], 48")
    a("s_load_dwordx2 s[88:89], s[0:1], 32")
    a("s_load_dwordx2 s[86:87], s[0:1], 96")
    code_prefetch(a, "K1", 72, V_TD, 3 if k2pref else 2, end="K2_END" if k2pref else None)
    a(f"""
    v_and_b32 {L}, 63, v0
    v_lshrrev_b32 v1, 6, v0
    s_and_b32 s80, s2, 7
    v_readfirstlane_b32 s{S_W}, v1
    """)
    if xmap == 48:
        a(f"""
        s_lshr_b32 s81, s2, 3
        s_and_b32 s82, s80, 1
        s_lshl_b32 s82, s82, 2
        s_and_b32 s83, s81, 3
        s_add_u32 s{S_MT}, s82, s83
        s_lshr_b32 s82, s80, 1
        s_lshl_b32 s82, s82, 3
        s_lshr_b32 s83, s81, 2
        s_add_u32 s{S_NT}, s82, s83
        """)
    else:
        a(f"""
        s_lshr_b32 s81, s2, 3
        s_and_b32 s{S_MT}, s81, 7
        s_and_b32 s83, s81, 24
        s_add_u32 s{S_NT}, s80, s83
        """)
    a(f"""
    s_cmp_ge_u32 s{S_NT}, 28
    s_cselect_b32 s{S_ISQ}, 1, 0
    s_movk_i32 s84, 7168
    s_cselect_b32 s84, 2048, s84
    s_lshl_b32 s{S_WSTEP}, s84, 6
    s_lshl_b32 s85, s{S_NT}, 8
    s_sub_u32 s80, s{S_NT}, 28
    s_lshl_b32 s80, s80, 9
    s_cmp_ge_u32 s{S_NT}, 28
    s_cselect_b32 s85, s80, s85
    s_cselect_b32 s{S_OU}, 256, 0
    s_mov_b32 s{S_OG}, 0
    v_lshrrev_b32 v21, 3, {L}
    s_lshl_b32 s81, s{S_MT}, 8
    s_lshl_b32 s82, s{S_W}, 6
    s_add_u32 s81, s81, s82
    v_add_u32 v21, s81, v21
    v_lshlrev_b32 v21, 11, v21
    v_and_b32 v22, 7, {L}
    v_lshrrev_b32 v23, 4, {L}
    v_xor_b32 v22, v22, v23
    v_lshlrev_b32 v22, 4, v22
    v_xor_b32 v24, 64, v22
    """)
    for j in range(4):
        src = "v22" if j % 2 == 0 else "v24"
        a(f"v_add_u32 v{V_DX+j}, v21, {src}")
        if j: a(f"v_add_u32 v{V_DX+j}, {j*8*2048 - j*1024}, v{V_DX+j}")
    a(f"""
    s_mov_b32 s{S_OX}, 0
    s_mov_b32 s{S_OX2}, 65536
    s_mov_b32 s{S_OK}, 0
    s_lshl_b32 s81, s{S_W}, 4
    v_add_u32 v21, s81, v23
    v_mul_lo_u32 v21, v21, s84
    v_add_u32 v21, s85, v21
    v_bfe_u32 v22, {L}, 1, 3
    v_xor_b32 v22, v22, v23
    v_lshlrev_b32 v22, 5, v22
    v_and_b32 v24, 1, {L}
    v_lshl_add_u32 v22, v24, 4, v22
    v_xor_b32 v24, 128, v22
    s_lshl_b32 s82, s84, 2
    s_sub_u32 s82, s82, 1024
    v_add_u32 v{V_DW}, v21, v22
    v_add_u32 v{V_DW+1}, s82, v{V_DW}
    s_lshl_b32 s83, s82, 1
    v_add_u32 v{V_DW+2}, v21, v24
    v_add_u32 v{V_DW+2}, s83, v{V_DW+2}
    v_add_u32 v{V_DW+3}, s82, v{V_DW+2}
    s_lshl_b32 s{S_M0X}, s{S_W}, 13
    s_lshl_b32 s{S_M0W}, s{S_W}, 12
    s_add_u32 s{S_M0W}, s{S_M0W}, {LDS_W}
    s_lshl_b32 s{S_M0K}, s{S_W}, 10
    s_add_u32 s{S_M0T}, s{S_M0K}, {LDS_T}
    s_add_u32 s{S_M0K}, s{S_M0K}, {LDS_KV}
    v_lshrrev_b32 v21, 1, {L}
    v_lshlrev_b32 v21, 6, v21
    v_and_b32 v22, 1, {L}
    v_lshl_add_u32 v21, v22, 4, v21
    s_and_b32 s81, s{S_NT}, 1
    s_lshl_b32 s81, s81, 5
    s_lshr_b32 s82, s{S_W}, 1
    s_lshl_b32 s82, s82, 11
    s_add_u32 s81, s81, s82
    v_add_u32 v{V_DK}, s81, v21
    s_waitcnt lgkmcnt(0)
    """)
    st.stamp()
    srd(a, S_X, 56, 2048*1024*2)
    a(f"""
    s_cmp_ge_u32 s{S_NT}, 28
    s_cselect_b32 s{S_G}, s58, s64
    s_cselect_b32 s{S_G+1}, s59, s65
    s_cselect_b32 s{S_U}, s58, s66
    s_cselect_b32 s{S_U+1}, s59, s67
    s_mov_b32 s{S_G+2}, {1024*3584*2:#x}
    s_cselect_b32 s{S_G+2}, {1024*1024*2:#x}, s{S_G+2}
    s_mov_b32 s{S_U+2}, s{S_G+2}
    s_and_b32 s{S_G+1}, s{S_G+1}, 0xffff
    s_and_b32 s{S_U+1}, s{S_U+1}, 0xffff
    s_mov_b32 s{S_G+3}, 0x00020000
    s_mov_b32 s{S_U+3}, 0x00020000
    s_and_b32 s81, s{S_NT}, 2
    s_cmp_eq_u32 s81, 0
    s_cselect_b32 s{S_KV}, s60, s62
    s_cselect_b32 s{S_KV+1}, s61, s63
    s_and_b32 s{S_KV+1}, s{S_KV+1}, 0xffff
    s_mov_b32 s{S_KV+2}, 65536
    s_mov_b32 s{S_KV+3}, 0x00020000
    """)
    if touch:
        a(f"""
        v_and_b32 v1, 31, {L}
        s_and_b32 s82, s{S_NT}, {7 if xmap == 48 else 24}
        s_lshl_b32 s82, s82, {5 if xmap == 48 else 3}
        s_lshl_b32 s83, s{S_MT}, 8
        s_add_u32 s82, s82, s83
        v_add_u32 v25, s82, {'v1' if xmap == 48 else L}
        v_lshlrev_b32 v25, 11, v25
        s_and_b32 s82, s{S_MT}, {3 if xmap == 48 else 7}
        s_lshl_b32 s82, s82, {4 if xmap == 48 else 3}
        v_bfe_u32 v24, v1, 1, {4 if xmap == 48 else 3}
        v_add_u32 v24, s82, v24
        v_mul_lo_u32 v24, v24, s84
        v_and_b32 v19, 1, v1
        v_lshl_add_u32 v24, v19, 7, v24
        v_add_u32 v24, s85, v24
        v_lshlrev_b32 v1, 7, v1
        s_cmp_eq_u32 s{S_W}, 0
        s_cselect_b64 vcc, -1, 0
        s_cselect_b32 s{S_TSRD}, s{S_X}, s{S_G}
        s_cselect_b32 s{S_TSRD+1}, s{S_X+1}, s{S_G+1}
        s_cselect_b32 s{S_TSRD+2}, s{S_X+2}, s{S_G+2}
        s_cselect_b32 s{S_TSTEP}, 128, s{S_WSTEP}
        v_cndmask_b32 v{V_T}, v24, v25, vcc
        s_mov_b32 s83, 0
        s_cmp_eq_u32 s{S_W}, 2
        s_cselect_b32 s{S_TSRD}, s{S_U}, s{S_TSRD}
        s_cselect_b32 s{S_TSRD+1}, s{S_U+1}, s{S_TSRD+1}
        s_cselect_b32 s83, s{S_ISQ}, s83
        s_lshl_b32 s83, s83, 8
        s_cmp_eq_u32 s{S_W}, 3
        s_cselect_b64 vcc, -1, 0
        s_cselect_b32 s{S_TSRD}, s{S_KV}, s{S_TSRD}
        s_cselect_b32 s{S_TSRD+1}, s{S_KV+1}, s{S_TSRD+1}
        s_cselect_b32 s{S_TSRD+2}, s{S_KV+2}, s{S_TSRD+2}
        s_cselect_b32 s{S_TSTEP}, 4096, s{S_TSTEP}
        v_cndmask_b32 v{V_T}, v{V_T}, v1, vcc
        s_mov_b32 s{S_TSRD+3}, 0x00020000
        s_mul_i32 s{S_TOFF}, s{S_TSTEP}, {tfirst}
        s_add_u32 s{S_TOFF}, s{S_TOFF}, s83
        """)
    pro = Trace()
    def issue_now(s, lo, hi):
        g, adv = dma_group(s)
        for k in range(lo, hi):
            pre, it = g[k]
            if pre: pro.ins(pre); pro.ins("s_nop 0")
            pro.items.append(it)
            for x in adv.get(k, []): pro.ins(x)
    tfl = " nt" if ntw == "all" else ""
    touch_ins = lambda: I(f"buffer_load_dword v{V_TD}, v{V_T}, s[{S_TSRD}:{S_TSRD+3}], s{S_TOFF} offen{tfl}", vm=("touch", 0))
    touch_adv = f"s_add_u32 s{S_TOFF}, s{S_TOFF}, s{S_TSTEP}"
    for _ in range(tpre):
        pro.items.append(touch_ins()); pro.ins(touch_adv)
    issue_now(0, 0, 17)
    p = Asm()
    srd(p, S_WS, 86, WS_SIZE)
    srd(p, S_GW, 70, 2048)
    srd(p, S_WD, 68, 3584*1024*2)
    srd(p, S_WO, 88, 1024*1024*2)
    p(f"""
    v_lshlrev_b32 v{V_L16}, 4, {L}
    v_and_b32 v21, 15, {L}
    s_lshr_b32 s81, s{S_W}, 1
    s_lshl_b32 s83, s81, 14
    v_lshlrev_b32 v22, 7, v21
    v_lshrrev_b32 v24, 1, v21
    v_xor_b32 v24, v24, v23
    v_lshl_add_u32 v22, v24, 4, v22
    v_add_u32 v{V_RX[0]}, s83, v22
    v_xor_b32 v{V_RX[1]}, 64, v{V_RX[0]}
    s_lshr_b32 s83, s{S_NT}, 2
    s_lshl_b32 s83, s83, 12
    s_and_b32 s80, s{S_W}, 1
    s_lshl_b32 s82, s80, 11
    s_add_u32 s83, s83, s82
    s_lshl_b32 s82, s81, 6
    v_xor_b32 v22, s82, v22
    v_add_u32 v{V_RKX}, s83, v22
    v_bfe_u32 v21, {L}, 2, 2
    v_lshl_add_u32 v22, v23, 3, v21
    v_and_b32 v24, 3, {L}
    v_lshlrev_b32 v24, 3, v24
    v_lshl_add_u32 v{V_RKW}, v22, 5, v24
    v_add_u32 v{V_RKW}, s{S_M0K}, v{V_RKW}
    v_lshl_add_u32 v22, v22, 8, v24
    v_add_u32 v22, {LDS_W}, v22
    v_and_b32 v25, 1, v23
    v_lshl_or_b32 v25, v25, 2, v21
    s_lshl_b32 s82, s80, 2
    """)
    for j in range(4):
        p(f"s_add_u32 s83, s82, {j}")
        p("v_xor_b32 v1, s83, v25")
        p(f"v_lshl_add_u32 v{V_RW+j}, v1, 5, v22")
    p(f"""
    v_lshrrev_b32 v1, 3, {L}
    v_lshlrev_b32 v1, 11, v1
    v_bfe_u32 v25, {L}, 1, 2
    v_xor_b32 v25, v25, v23
    v_lshl_add_u32 v1, v25, 5, v1
    v_and_b32 v25, 1, {L}
    v_lshl_add_u32 v{V_DT}, v25, 4, v1
    v_lshl_add_u32 v1, v23, 2, v21
    v_bfe_u32 v25, v1, 1, 2
    v_xor_b32 v25, s{S_W}, v25
    v_lshlrev_b32 v1, 7, v1
    v_lshl_add_u32 v1, v25, 5, v1
    v_add_u32 v1, v1, v24
    v_add_u32 v{V_RT}, {LDS_T}, v1
    s_lshr_b32 s82, s2, 4
    s_and_b32 s83, s2, 15
    s_mul_i32 s{S_TSRC}, s82, {7*65536}
    s_lshl_b32 s90, s83, 7
    s_add_u32 s{S_TSRC}, s{S_TSRC}, s90
    s_lshl_b32 s{S_TSRC2}, s82, 17
    s_add_u32 s{S_TSRC2}, s{S_TSRC2}, s90
    s_lshl_b32 s90, s{S_W}, 14
    s_add_u32 s{S_TSRC}, s{S_TSRC}, s90
    s_and_b32 s90, s{S_W}, 1
    s_lshl_b32 s90, s90, 15
    s_add_u32 s{S_TSRC2}, s{S_TSRC2}, s90
    s_lshl_b32 s90, s81, 14
    s_add_u32 s{S_TSRC2}, s{S_TSRC2}, s90
    s_lshr_b32 s90, s83, 1
    s_mul_i32 s90, s90, {144*8192}
    s_and_b32 s83, s83, 1
    s_lshl_b32 s83, s83, 12
    s_add_u32 s90, s90, s83
    s_lshl_b32 s83, s{S_W}, 10
    s_add_u32 s90, s90, s83
    s_add_u32 s90, s90, {WS_WT:#x}
    s_mul_i32 s{S_TDST}, s82, {7*8192}
    s_add_u32 s{S_TDST}, s{S_TDST}, s90
    s_lshl_b32 s{S_TDST2}, s82, 14
    s_add_u32 s{S_TDST2}, s{S_TDST2}, s90
    s_add_u32 s{S_TDST2}, s{S_TDST2}, {112*8192}
    """)
    p(f"""
    s_lshl_b32 s82, s2, 3
    s_lshl_b32 s83, s{S_W}, 1
    s_add_u32 s82, s82, s83
    s_lshl_b32 s7, s82, 11
    v_lshrrev_b32 v1, 5, {L}
    v_add_u32 v{V_GROW}, s82, v1
    v_lshlrev_b32 v{V_GROW}, 3, v{V_GROW}
    v_add_u32 v{V_GROW}, {WS_G:#x}, v{V_GROW}
    """)
    for l in p.lines: pro.ins(l.strip())
    pro.ins(f"v_lshlrev_b32 v1, 7, {L}")
    pro.ins(f"buffer_load_dword v{V_TD}, v1, s[{S_GW}:{S_GW+3}], 0 offen")
    issue_now(1, 0, p1)
    for _ in range(t0):
        pro.items.append(touch_ins()); pro.ins(touch_adv)
    pro2 = Trace()
    pro2.wait(vm=[("st", 0)])
    pro2.ins("s_barrier")
    pro2.items.extend(reads(0, 0))

    def spread(n, lo, hi):
        return [lo + round(k*(hi - lo)/max(n - 1, 1)) for k in range(n)]
    gfast, gslow = g_ops()
    GSPLIT = 76
    segs = []
    for s in range(NST - 1):
        last = False
        tr = Trace()
        gaps = [[] for _ in range(64)]
        def place(item, lo, gaps=None):
            G = lo
            while len(gaps[G]) >= 1: G += 1
            gaps[G].append(item); return G
        rl = reads(s, 1) + [I(f"ds_read_b128 {ar(KVX,4)}, v{V_RKX} offset:{(s%2)*32768}", lg=("kvf", s)),
                            I(f"ds_read_b64_tr_b16 {ar(KVW,2)}, v{V_RKW} offset:{(s%2)*4096}", lg=("kvf", s)),
                            I(f"ds_read_b64_tr_b16 {ar(KVW+2,2)}, v{V_RKW} offset:{(s%2)*4096 + 128}", lg=("kvf", s))]
        for k, it in enumerate(rl): gaps[2*k].append(it)
        G = 1
        if s + 1 < NST:
            g, adv = dma_group(s + 1)
            lo = p1 if s == 0 else nhead
            sp = 4 if (17 - lo) <= 13 else 3
            G = 1
            for k in range(lo, 17):
                pre, it = g[k]
                if pre: gaps[G - 1].append(I(pre))
                gaps[G].append(it)
                for x in adv.get(k, []): gaps[G + 1].append(I(x))
                G += sp
            G -= 2
        if touch and s + touch + 1 < NST:
            gaps[G].append(touch_ins()); gaps[G + 1].append(I(touch_adv)); G += 2
        q = s - tq0
        if 0 <= q < 9:
            srdn, so = (S_WD, S_TSRC) if q < 7 else (S_WO, S_TSRC2)
            gaps[G - 1].append(I(f"s_add_u32 m0, s{S_M0T}, {(q%3)*4096}"))
            gaps[G].append(I(f"buffer_load_dwordx4 v{V_DT}, s[{srdn}:{srdn+3}], s{so} offen{' nt' if ntt else ''} lds", vm=("t", q)))
            gaps[G + 1].append(I(f"s_add_u32 s{so}, s{so}, 0x10000")); G += 2
        q = s - tq0 - 2
        if 0 <= q < 9:
            so = S_TDST if q < 7 else S_TDST2
            gaps[G].append(I(f"buffer_store_dwordx4 {ar(A_T,4)}, v{V_L16}, s[{S_WS}:{S_WS+3}], s{so} offen", vm=("ts", q)))
            gaps[G + 1].append(I(f"s_add_u32 s{so}, s{so}, 8192")); G += 2
        if ttouch < 0 and s == -ttouch - 1:
            gaps[G - 1].append(I(f"v_min_u32 v1, 6, {L}"))
            gaps[G].append(I("v_lshlrev_b32 v1, 16, v1")); G += 1
            gaps[G].append(I(f"buffer_load_dword v{V_TD}, v1, s[{S_WD}:{S_WD+3}], s{S_TSRC} offen")); G += 1
            gaps[G].append(I("v_and_b32 v1, 0x1ffff, v1")); G += 1
            gaps[G].append(I(f"buffer_load_dword v{V_TD}, v1, s[{S_WO}:{S_WO+3}], s{S_TSRC2} offen")); G += 2
        if ttouch > 0 and s == ttouch:
            gaps[G - 1].append(I(f"v_min_u32 v1, 55, {L}"))
            gaps[G].append(I("v_lshrrev_b32 v21, 3, v1")); gaps[G].append(I("v_and_b32 v1, 7, v1")); G += 1
            gaps[G].append(I("v_lshlrev_b32 v21, 16, v21")); gaps[G].append(I("v_lshl_add_u32 v1, v1, 11, v21")); G += 1
            gaps[G].append(I(f"buffer_load_dword v{V_TD}, v1, s[{S_WD}:{S_WD+3}], s{S_TSRC} offen")); G += 1
            gaps[G].append(I("v_and_b32 v1, 0x1ffff, v1")); G += 1
            gaps[G].append(I(f"buffer_load_dword v{V_TD}, v1, s[{S_WO}:{S_WO+3}], s{S_TSRC2} offen")); G += 2
        if s == gs:
            for q in range(4):
                gaps[G].append(I(f"buffer_load_dwordx4 {ar(A_GX+4*q,4)}, v{V_L16}, s[{S_X}:{S_X+3}], s7 offen offset:{1024*q}", vm=("g", 0))); G += 2
            for q in range(2):
                gaps[G].append(I(f"buffer_load_dwordx4 {ar(A_GW+4*q,4)}, v{V_L16}, s[{S_GW}:{S_GW+3}], 0 offen offset:{1024*q}", vm=("g", 0))); G += 2
        tr.wait(lg=[("fr", s, 0)] + ([("tf", s - tq0 - 2)] if 0 <= s - tq0 - 2 < 9 else []))
        vq = []
        if s == gs + 2:
            vq = list(gfast[GSPLIT:])
        k = 0
        for j in range(8):
            for i in range(8):
                tr.ins(mfma(0, j, i, first=(s == 0)))
                tr.items.extend(gaps[k])
                for _ in range(vcap(gaps[k])):
                    if vq: tr.ins(vq.pop(0))
                k += 1
        grest = vq
        need = [("st", s + 1)] if s + 1 < NST else []
        if 0 <= s - tq0 - 1 < 9: need.append(("t", s - tq0 - 1))
        if s == gs + 1: need.append(("g", 0))
        tr.wait(vm=need, lg=[("fr", s, 1), ("kvf", s)])
        tr.ins("s_barrier")
        segs.append(tr)
        if last: break
        tr = Trace()
        gaps = [[] for _ in range(65)]
        for k, it in enumerate(reads(s + 1, 0)): gaps[2*k + 1].append(it)
        q = s - tq0 - 1
        if 0 <= q < 9:
            for h in range(2):
                gaps[49 + 2*h].append(I(f"ds_read_b64_tr_b16 {ar(A_T+2*h,2)}, v{V_RT} offset:{(q%3)*4096 + h*2048}", lg=("tf", q)))
        if s + 2 < NST:
            g, adv = dma_group(s + 2)
            hg = [2*round(k*62/(2*nhead)) for k in range(nhead)]
            pre0 = []
            for k in range(nhead):
                pre, it = g[k]
                if pre:
                    (gaps[hg[k] - 1] if hg[k] else pre0).append(I(pre))
                gaps[hg[k]].append(it)
                for x in adv.get(k, []): gaps[hg[k] + 1].append(I(x))
            tr.items.extend(pre0)
        vq = []; slow = []; slow_from = None
        if s == gs + 1: vq = list(gfast[:GSPLIT])
        if s == gs + 2: vq = grest; slow = list(gslow)
        ml = [mfma(1, j, i) for j in range(8) for i in range(8)]
        ml.insert(40, f"v_mfma_f32_16x16x32_bf16 {ar(KVA,4)}, {ar(KVX,4)}, {ar(KVW,4)}, {'0' if s == 0 else ar(KVA,4)}")
        for k, m in enumerate(ml):
            tr.ins(m)
            tr.items.extend(gaps[k])
            for _ in range(vcap(gaps[k])):
                if vq: tr.ins(vq.pop(0))
            if slow and not vq:
                if slow_from is None: slow_from = k + 2
                if k >= slow_from and (k - slow_from) % 2 == 0: tr.ins(slow.pop(0))
            if s == gs + 2 and k == 60:
                tr.raw(f"""
                v_mov_b32 v1, 0
                s_lshl_b32 s7, s2, 7
                s_add_u32 s7, s7, {WS_FLAG:#x}
                """)
            if s == gs + 2 and k == 63:
                tr.raw(f"""
                s_mov_b32 exec_lo, 1
                s_mov_b32 exec_hi, 1
                buffer_store_dwordx2 v[24:25], v{V_GROW}, s[{S_WS}:{S_WS+3}], 0 offen
                buffer_store_dword v1, v1, s[{S_WS}:{S_WS+3}], s7 offen
                s_mov_b64 exec, -1
                """)
        assert not vq and not slow
        segs.append(tr)

    def last_step(isq):
        tr = Trace()
        s = NST - 1
        su = Asm()
        if not isq:
            su(f"""
            s_lshr_b32 s81, s{S_W}, 1
            s_and_b32 s84, s{S_W}, 1
            s_lshl_b32 s82, s{S_MT}, 1
            s_add_u32 s82, s82, s81
            s_mul_i32 s82, s82, 112
            s_lshl_b32 s83, s{S_NT}, 2
            s_add_u32 s82, s82, s83
            s_lshl_b32 s83, s84, 1
            s_add_u32 s82, s82, s83
            s_lshl_b32 s82, s82, 13
            s_add_u32 s83, s82, 8192
            v_add_u32 v23, 4096, v{V_L16}
            v_add_u32 v21, s{S_M0K}, v{V_L16}
            """)
        else:
            su(f"""
            s_lshr_b32 s81, s{S_W}, 1
            s_and_b32 s84, s{S_W}, 1
            s_sub_u32 s82, s{S_NT}, 28
            s_lshl_b32 s82, s82, 3
            s_lshl_b32 s83, s84, 1
            s_add_u32 s82, s82, s83
            s_lshl_b32 s82, s82, 6
            s_lshl_b32 s83, s{S_MT}, 3
            s_add_u32 s82, s82, s83
            s_lshl_b32 s83, s81, 2
            s_add_u32 s82, s82, s83
            s_lshl_b32 s82, s82, 11
            s_add_u32 s82, s82, {WS_Q:#x}
            s_add_u32 s83, s82, 0x20000
            s_add_u32 s84, s82, 0x80000
            s_add_u32 s85, s82, 0xa0000
            v_and_b32 v22, 15, {L}
            v_lshlrev_b32 v22, 4, v22
            v_bfe_u32 v24, {L}, 4, 1
            v_lshl_add_u32 v22, v24, 9, v22
            v_lshrrev_b32 v24, 5, {L}
            v_lshl_add_u32 v22, v24, 10, v22
            v_add_u32 v23, 4096, v22
            v_add_u32 v21, s{S_M0K}, v{V_L16}
            """)
        setup = [l.strip() for l in su.lines]
        pieces = []
        if not isq:
            for t in range(2):
                for i in range(8):
                    pieces.append(([2*t, 4 + 2*t, 2*t + 1, 5 + 2*t], t, i, 0))
        else:
            for part in range(2):
                for t in range(2):
                    for i in range(8):
                        pieces.append(([4*part + 2*t, 4*part + 2*t + 1], t, i, part))
        def piece_ops(pc, pk):
            js, t, i, part = pc
            o = []
            tmp = 12 + 4*(i % 2)
            def reg(j):
                p_, b = accn(j, i)
                if p_ == "v": return b
                for r in range(4): o.append(f"v_accvgpr_read_b32 v{tmp+r}, a{b+r}")
                return tmp
            if not isq:
                g0, u0, g1, u1 = reg(js[0]), reg(js[1]), reg(js[2]), reg(js[3])
                for g_, u_ in ((g0, u0), (g1, u1)):
                    for r in range(4): o.append(f"v_max_f32 v{g_+r}, 0, v{g_+r}")
                    if pk:
                        o.append(f"v_pk_mul_f32 {vr(g_,2)}, {vr(g_,2)}, {vr(u_,2)}")
                        o.append(f"v_pk_mul_f32 {vr(g_+2,2)}, {vr(g_+2,2)}, {vr(u_+2,2)}")
                    else:
                        for r in range(4): o.append(f"v_mul_f32 v{g_+r}, v{g_+r}, v{u_+r}")
                so = "s82" if t == 0 else "s83"
                va = f"v{V_L16}" if i < 4 else "v23"
                off = (i % 4)*1024
            else:
                g0, g1 = reg(js[0]), reg(js[1])
                so = f"s{82 + 2*part + t}"
                va = "v22" if i < 4 else "v23"
                off = ((i//2) % 2)*2048 + (i % 2)*256
            o += [f"v_cvt_pk_bf16_f32 v{g0}, v{g0}, v{g0+1}", f"v_cvt_pk_bf16_f32 v{g0+1}, v{g0+2}, v{g0+3}",
                  f"v_cvt_pk_bf16_f32 v{g0+2}, v{g1}, v{g1+1}", f"v_cvt_pk_bf16_f32 v{g0+3}, v{g1+2}, v{g1+3}",
                  f"buffer_store_dwordx4 {vr(g0,4)}, {va}, s[{S_WS}:{S_WS+3}], {so} offen offset:{off}"]
            return o
        half = len(pieces) // 2
        jsets = [sorted(set(j for pc in pieces[:half] for j in pc[0])), sorted(set(j for pc in pieces[half:] for j in pc[0]))]
        rl = [xread(s, 1, i) for i in range(8)]
        for j in jsets[0]: rl += [wread(s, 1, j, 0), wread(s, 1, j, 1)]
        for x in rl: x["lg"] = ("frA", 0)
        for j in jsets[1]: rl += [wread(s, 1, j, 0), wread(s, 1, j, 1)]
        rl += [I(f"ds_read_b128 {ar(KVX,4)}, v{V_RKX} offset:{(s%2)*32768}", lg=("kvf", s)),
               I(f"ds_read_b64_tr_b16 {ar(KVW,2)}, v{V_RKW} offset:{(s%2)*4096}", lg=("kvf", s)),
               I(f"ds_read_b64_tr_b16 {ar(KVW+2,2)}, v{V_RKW} offset:{(s%2)*4096 + 128}", lg=("kvf", s))]
        q = s - tq0 - 2
        tr.wait(lg=[("fr", s, 0)] + ([("tf", q)] if 0 <= q < 9 else []))
        if 0 <= q < 9:
            so = S_TDST if q < 7 else S_TDST2
            rl.append(I(f"buffer_store_dwordx4 {ar(A_T,4)}, v{V_L16}, s[{S_WS}:{S_WS+3}], s{so} offen", vm=("ts", q)))
        for k, (j, i) in enumerate([(j, i) for j in jsets[0] for i in range(8)]):
            tr.ins(mfma(0, j, i))
            if rl: tr.items.append(rl.pop(0))
            if setup: tr.ins(setup.pop(0))
        assert not rl
        for x in setup: tr.ins(x)
        tr.wait(lg=[("frA", 0)])
        ml = []
        for pi, pc in enumerate(pieces):
            if pi == half:
                ml.append((W(lg=[("fr", s, 1), ("kvf", s)]), None))
                ml.append((f"v_mfma_f32_16x16x32_bf16 {ar(KVA,4)}, {ar(KVX,4)}, {ar(KVW,4)}, {ar(KVA,4)}", None))
                ml += [(mfma(0, j, i), None) for j in jsets[1] for i in range(8)]
                ml.append((I(f"ds_write_b128 v21, {ar(KVA,4)}"), None))
            for j in pc[0]: ml.append((mfma(1, j, pc[2]), pi))
        done_at = {}
        cnt = 0
        vq = []
        nextp = 0
        for k, (m, pi) in enumerate(ml):
            if isinstance(m, dict):
                tr.items.append(m); continue
            tr.ins(m); cnt += 1
            if pi is not None and (k + 1 == len(ml) or ml[k + 1][1] != pi): done_at[pi] = cnt
            budget = 2
            while budget > 0:
                if not vq and nextp in done_at and cnt - done_at[nextp] >= 9:
                    vq = piece_ops(pieces[nextp], False); nextp += 1
                if not vq: break
                c_ = 2 if vq[0].startswith("buffer_") else 1
                if c_ > budget: break
                tr.ins(vq.pop(0)); cnt += 1; budget -= c_
        for x in vq: tr.ins(x); cnt += 1
        while nextp < len(pieces):
            if cnt - done_at[nextp] < 9: tr.ins("s_nop 7"); cnt += 8
            for x in piece_ops(pieces[nextp], True): tr.ins(x); cnt += 1
            nextp += 1
        return tr
    lf, lq = last_step(False), last_step(True)
    resolve([pro, pro2] + segs + [lf])
    resolve([pro, pro2] + segs + [lq])
    emit_trace(a, [pro])
    st.stamp()
    emit_trace(a, [pro2])
    st.stamp()
    for k, tr in enumerate(segs):
        emit_trace(a, [tr])
        if 'stg' in exp and k % 2 == 0: st.stamp()
    st.stamp()
    a(f"s_cmp_lg_u32 s{S_ISQ}, 0")
    a("s_cbranch_scc1 K1_EPI_Q")
    emit_trace(a, [lf])
    a("s_branch K1_EPI_KV")
    a.label("K1_EPI_Q")
    emit_trace(a, [lq])
    a.label("K1_EPI_KV")
    a("s_waitcnt lgkmcnt(0)")
    a("s_barrier")
    if dbg:
        st.stamp()
        a("s_waitcnt vmcnt(0)")
        st.stamp()
        st.dump(0, S_W, 86)
    c = struct.unpack("<I", struct.pack("<f", math.log2(math.e) / math.sqrt(32.0)))[0]
    a(f"""
    s_cmp_ge_u32 s{S_W}, 2
    s_cbranch_scc1 K1_END
    ds_read_b128 v[4:7], v21 offset:2048
    """)
    for r in range(4): a(f"v_accvgpr_read_b32 v{8+r}, a{KVA+r}")
    a(f"""
    s_lshl_b32 s82, s{S_MT}, 3
    s_lshr_b32 s83, s{S_NT}, 2
    s_add_u32 s82, s82, s83
    s_lshl_b32 s82, s82, 12
    s_add_u32 s82, s82, {WS_KV:#x}
    s_and_b32 s83, s{S_NT}, 1
    s_and_b32 s85, s{S_NT}, 2
    s_cmp_eq_u32 s85, 0
    s_cselect_b32 s84, {c:#x}, 1.0
    s_waitcnt lgkmcnt(0)
    """)
    for r in range(4):
        a(f"v_add_f32 v{4+r}, v{4+r}, v{8+r}")
    for r in range(4):
        a(f"v_mul_f32 v{4+r}, s84, v{4+r}")
    a(f"""
    v_cvt_pk_bf16_f32 v4, v4, v5
    v_cvt_pk_bf16_f32 v5, v6, v7
    s_cbranch_scc1 K1_EPI_K
    s_lshl_b32 s85, s{S_W}, 10
    s_add_u32 s82, s82, s85
    s_lshl_b32 s83, s83, 8
    s_add_u32 s82, s82, s83
    v_and_b32 v8, 15, {L}
    v_lshlrev_b32 v8, 4, v8
    v_bfe_u32 v9, {L}, 4, 1
    v_lshl_add_u32 v8, v9, 9, v8
    v_lshrrev_b32 v9, 5, {L}
    v_lshl_add_u32 v8, v9, 3, v8
    buffer_store_dwordx2 v[4:5], v8, s[{S_WS}:{S_WS+3}], s82 offen offset:2048
    s_endpgm
    K1_EPI_K:
    s_lshl_b32 s85, s{S_W}, 8
    s_add_u32 s82, s82, s85
    s_lshl_b32 s83, s83, 3
    s_add_u32 s82, s82, s83
    v_bfe_u32 v8, {L}, 3, 1
    v_lshlrev_b32 v8, 10, v8
    v_bfe_u32 v9, {L}, 2, 1
    v_lshl_add_u32 v8, v9, 9, v8
    v_lshrrev_b32 v9, 4, {L}
    v_lshl_add_u32 v8, v9, 6, v8
    v_and_b32 v9, 3, {L}
    v_lshl_add_u32 v8, v9, 1, v8
    buffer_store_short v4, v8, s[{S_WS}:{S_WS+3}], s82 offen
    buffer_store_short_d16_hi v4, v8, s[{S_WS}:{S_WS+3}], s82 offen offset:16
    buffer_store_short v5, v8, s[{S_WS}:{S_WS+3}], s82 offen offset:32
    buffer_store_short_d16_hi v5, v8, s[{S_WS}:{S_WS+3}], s82 offen offset:48
    K1_END:
    s_endpgm
    """)
    return a.text()
```

```python
from common import *
import p2
from p2 import I, W, adv64
import math, struct

KM = NAME + "_kernel"
LDS_X = 0; LDS_W = 65536
LDS_R = 131072
LDS_QS = LDS_R; LDS_KW = LDS_R + 4096; LDS_T = LDS_R + 16384
KM_LDS = 163840
NST = 16
OOB = 0x7f000000

def accn(j, i): return ("v", 32 + (j*8 + i)*4) if j < 7 else ("a", 128 + i*4)
def acc(j, i):
    p, b = accn(j, i); return vr(b, 4, p)
XF = [0, 64]; WF = [32, 96]
KVW, KVA, A_GX, A_GW, A_T, A_KX, A_DUM = 160, 168, 172, 188, 204, 208, 255
V_DQ, V_DX, V_DW = 0, 2, 6
V_RX = [10, 11]
V_RW, V_R3, V_R7, V_RKW, V_T, V_KX, V_LANE = 12, 15, 16, 17, 18, 19, 20
V_GROW, V_L16, V_RT, V_DT, V_DK = 26, 27, 28, 29, 30
S_WQ, S_X, S_G, S_U, S_KV, S_WS, S_GW, S_TSRD, S_WD, S_WO, S_DBG = 4, 8, 12, 16, 20, 24, 28, 32, 52, 76, 72
S_W, S_MT, S_NT, S_OK = 36, 37, 38, 39
S_OX, S_OX2, S_OG, S_OQ, S_TSRCS = 40, 41, 42, 43, 44
S_M0X, S_M0W, S_M0K, S_M0T, S_M0Q = 45, 46, 47, 51, 56
S_TOFF, S_TSTEP, S_TOG = 48, 49, 50
S_TSRC, S_TDST, S_TSRC2, S_TDST2, S_GROW = 3, 94, 95, 100, 101
S_EF = 88
S_TAG = 89
A_TAG = 254
S_FLG = 57

KVD = 1
def dma_group(s, ntw):
    b = s % 2
    g = []
    nt = " nt" if ntw else ""
    for half in range(2):
        so = S_OX if half == 0 else S_OX2
        for j in range(4):
            pre = f"s_add_u32 m0, s{S_M0X}, {b*32768 + half*4096}" if j == 0 else None
            g.append((pre, I(f"buffer_load_dwordx4 v{V_DX+j}, s[{S_X}:{S_X+3}], s{so} offen offset:{j*1024} lds", vm=("st", s))))
    for part in range(2):
        srdn = S_G if part == 0 else S_U
        for j in range(4):
            pre = f"s_add_u32 m0, s{S_M0W}, {b*32768 + part*16384}" if j == 0 else None
            g.append((pre, I(f"buffer_load_dwordx4 v{V_DW+j}, s[{srdn}:{srdn+3}], s{S_OG} offen offset:{j*1024}{nt} lds", vm=("st", s))))
    g.append((f"s_add_u32 m0, s{S_M0Q}, {b*2048}", I(f"buffer_load_dwordx4 v{V_DQ}, s[{S_WQ}:{S_WQ+3}], s{S_OQ} offen{nt} lds", vm=("st", s))))
    adv = {7: [f"s_add_u32 s{S_OX}, s{S_OX}, 128", f"s_add_u32 s{S_OX2}, s{S_OX2}, 128"],
           15: [f"s_add_u32 s{S_OG}, s{S_OG}, {64*7168}"], 16: [f"s_add_u32 s{S_OQ}, s{S_OQ}, 0x20000"]}
    if 1 <= s - KVD <= 8:
        g.append((f"s_add_u32 m0, s{S_M0K}, {b*8192}", I(f"buffer_load_dwordx4 v{V_DK}, s[{S_KV}:{S_KV+3}], s{S_OK} offen lds", vm=("st", s))))
        adv[17] = [f"s_add_u32 s{S_OK}, s{S_OK}, 8192"]
    return g, adv
def xread(s, kk, i):
    return I(f"ds_read_b128 {ar(XF[kk]+4*i,4)}, v{V_RX[kk]} offset:{(s%2)*32768 + i*2048}", lg=("fr", s, kk))
def wread(s, kk, j, h):
    if j % 4 == 3:
        reg, off = (V_R3 if j == 3 else V_R7), h*1024 + kk*8192
    else:
        reg, off = V_RW + (j & 3), (s % 2)*32768 + h*1024 + kk*8192 + (16384 if j >= 4 else 0)
    return I(f"ds_read_b64_tr_b16 {ar(WF[kk]+4*j+2*h,2)}, v{reg} offset:{off}", lg=("fr", s, kk))
def reads(s, kk):
    r = [wread(s, kk, 0, 0), wread(s, kk, 0, 1)] + [xread(s, kk, i) for i in range(8)]
    for j in range(1, 8): r += [wread(s, kk, j, 0), wread(s, kk, j, 1)]
    return r
def mfma(kk, j, i, first=False):
    return f"v_mfma_f32_16x16x32_bf16 {acc(j,i)}, {ar(WF[kk]+4*j,4)}, {ar(XF[kk]+4*i,4)}, {'0' if first else acc(j,i)}"
def vcap(items):
    c = 2
    for x in items:
        t = x["text"] or "s_"
        if t.startswith("ds_"): c -= 1
        elif t.startswith(("buffer_", "global_")): c -= 2
        elif t.startswith("v_"): c -= 1
    return max(c, 0)
from k1 import g_ops as _g_ops
import k1 as _k1
_k1.A_GX, _k1.A_GW = A_GX, A_GW

def gen(dbg=False, touch=2, nhead=13, p1=13, npro0=8, gs=11, tq0=5, ntw=True, ntt=True, exp='',
        NIN=25, g0=22, hsig=5, hpoll=15, opre=2, nb=(1, 1)):
    esig = KVD + 11
    a = Asm()
    L = f"v{V_LANE}"
    a("s_cmp_ge_u32 s2, 256")
    a("s_cbranch_scc1 KM_END")
    st = Stamps(a, dbg)
    st.stamp()
    a("s_memrealtime s[72:73]")
    a("s_load_dwordx8 s[56:63], s[0:1], 0")
    a("s_load_dwordx8 s[64:71], s[0:1], 48")
    a("s_load_dwordx2 s[74:75], s[0:1], 32")
    a("s_load_dwordx4 s[96:99], s[0:1], 80")
    a("s_load_dwordx2 s[86:87], s[0:1], 96")
    code_prefetch(a, "KM", 32, "a255", 3)
    a(f"""
    v_and_b32 {L}, 63, v0
    v_lshrrev_b32 v1, 6, v0
    s_and_b32 s80, s2, 7
    v_readfirstlane_b32 s{S_W}, v1
    s_lshr_b32 s81, s2, 3
    s_and_b32 s{S_MT}, s81, 7
    s_lshr_b32 s83, s81, 3
    s_lshl_b32 s80, s80, 2
    s_add_u32 s{S_NT}, s80, s83
    s_mul_i32 s85, s{S_NT}, 224
    s_mov_b32 s{S_OG}, 0
    s_mov_b32 s{S_OQ}, 0
    v_lshrrev_b32 v21, 3, {L}
    s_lshl_b32 s81, s{S_MT}, 8
    s_lshl_b32 s82, s{S_W}, 6
    s_add_u32 s81, s81, s82
    v_add_u32 v21, s81, v21
    v_lshlrev_b32 v21, 11, v21
    v_and_b32 v22, 7, {L}
    v_lshrrev_b32 v23, 4, {L}
    v_xor_b32 v22, v22, v23
    v_lshlrev_b32 v22, 4, v22
    v_xor_b32 v24, 64, v22
    """)
    for j in range(4):
        a(f"v_add_u32 v{V_DX+j}, v21, {'v22' if j % 2 == 0 else 'v24'}")
        if j: a(f"v_add_u32 v{V_DX+j}, {j*8*2048 - j*1024}, v{V_DX+j}")
    a(f"""
    s_mov_b32 s{S_OX}, 0
    s_mov_b32 s{S_OX2}, 65536
    s_mov_b32 s{S_OK}, 0
    s_lshl_b32 s81, s{S_W}, 4
    s_movk_i32 s84, 7168
    v_add_u32 v21, s81, v23
    v_mul_lo_u32 v21, v21, s84
    v_add_u32 v21, s85, v21
    v_and_b32 v25, 1, {L}
    v_lshl_add_u32 v21, v25, 4, v21
    v_bfe_u32 v22, {L}, 1, 3
    v_xor_b32 v22, v22, v23
    v_xor_b32 v24, 4, v22
    v_min_u32 v22, 6, v22
    v_min_u32 v24, 6, v24
    v_lshl_add_u32 v{V_DW}, v22, 5, v21
    v_add_u32 v{V_DW+1}, {4*7168 - 1024}, v{V_DW}
    v_lshl_add_u32 v{V_DW+2}, v24, 5, v21
    v_add_u32 v{V_DW+2}, {2*(4*7168 - 1024)}, v{V_DW+2}
    v_add_u32 v{V_DW+3}, {4*7168 - 1024}, v{V_DW+2}
    s_lshl_b32 s{S_M0X}, s{S_W}, 13
    s_lshl_b32 s{S_M0W}, s{S_W}, 12
    s_add_u32 s{S_M0W}, s{S_M0W}, {LDS_W}
    s_lshl_b32 s{S_M0K}, s{S_W}, 10
    s_add_u32 s{S_M0T}, s{S_M0K}, {LDS_T}
    s_add_u32 s{S_M0K}, s{S_M0K}, {LDS_KW}
    s_lshr_b32 s81, s{S_W}, 1
    s_and_b32 s80, s{S_W}, 1
    """)
    a(f"""
    v_lshlrev_b32 v21, 3, v23
    v_bfe_u32 v22, {L}, 2, 2
    v_add_u32 v21, v21, v22
    s_lshl_b32 s82, s81, 5
    s_lshl_b32 s83, s80, 2
    s_add_u32 s82, s82, s83
    v_add_u32 v21, s82, v21
    v_lshlrev_b32 v21, 11, v21
    v_bfe_u32 v22, {L}, 1, 1
    v_bfe_u32 v24, {L}, 4, 1
    v_xor_b32 v22, v22, v24
    v_lshl_add_u32 v21, v22, 5, v21
    v_lshl_add_u32 v21, v25, 4, v21
    s_lshl_b32 s82, s{S_NT}, 6
    v_add_u32 v{V_DQ}, s82, v21
    s_lshl_b32 s90, s81, 13
    s_lshl_b32 s83, s80, 10
    s_add_u32 s90, s90, s83
    s_waitcnt lgkmcnt(0)
    """)
    st.n and None
    a(f"s_or_b32 s{S_TAG}, s72, 1")
    srd(a, S_X, 56, 2048*1024*2)
    srd(a, S_G, 64, 1024*3584*2)
    srd(a, S_U, 66, 1024*3584*2)
    srd(a, S_WQ, 58, 1024*1024*2)
    a(f"s_add_u32 s{S_M0Q}, s90, {LDS_QS}")
    st.stamp()
    pro = Trace()
    def dma_items(s, lo, hi):
        g, adv = dma_group(s, ntw)
        out = []
        for k in range(lo, min(hi, len(g))):
            pre, it = g[k]
            out.append(([I(pre), I("s_nop 0")] if pre else []) + [it] + [I(x) for x in adv.get(k, [])])
        return out
    p = Asm()
    p(f"""
    s_and_b32 s82, s{S_NT}, 2
    s_cmp_eq_u32 s82, 0
    s_cselect_b32 s{S_KV}, s60, s62
    s_cselect_b32 s{S_KV+1}, s61, s63
    s_and_b32 s{S_KV+1}, s{S_KV+1}, 0xffff
    s_mov_b32 s{S_KV+2}, 65536
    s_mov_b32 s{S_KV+3}, 0x00020000
    """)
    srd(p, S_WS, 86, WS_SIZE)
    srd(p, S_GW, 70, 2048)
    srd(p, S_WD, 68, 3584*1024*2)
    srd(p, S_WO, 74, 1024*1024*2)
    srd(p, S_DBG, 98, 256)
    p(f"""
    v_lshrrev_b32 v21, 1, {L}
    v_lshlrev_b32 v21, 6, v21
    v_lshl_add_u32 v21, v25, 4, v21
    s_and_b32 s82, s{S_NT}, 1
    s_lshl_b32 s82, s82, 5
    s_lshl_b32 s83, s{S_W}, 11
    s_add_u32 s82, s82, s83
    v_add_u32 v{V_DK}, s82, v21
    s_lshl_b32 s82, s{S_MT}, 8
    s_lshr_b32 s83, s{S_NT}, 2
    s_lshl_b32 s83, s83, 5
    s_add_u32 s82, s82, s83
    s_lshl_b32 s83, s80, 4
    s_add_u32 s82, s82, s83
    s_lshl_b32 s82, s82, 11
    s_lshl_b32 s83, s81, 7
    s_add_u32 s82, s82, s83
    v_and_b32 v21, 15, {L}
    v_lshlrev_b32 v22, 11, v21
    v_lshl_add_u32 v22, v23, 4, v22
    v_add_u32 v{V_KX}, s82, v22
    """)
    p(f"""
    v_lshlrev_b32 v{V_L16}, 4, {L}
    s_lshl_b32 s83, s81, 14
    v_lshlrev_b32 v22, 7, v21
    v_lshrrev_b32 v24, 1, v21
    v_xor_b32 v24, v24, v23
    v_lshl_add_u32 v22, v24, 4, v22
    v_add_u32 v{V_RX[0]}, s83, v22
    v_xor_b32 v{V_RX[1]}, 64, v{V_RX[0]}
    v_bfe_u32 v21, {L}, 2, 2
    v_lshl_add_u32 v22, v23, 3, v21
    v_and_b32 v24, 3, {L}
    v_lshlrev_b32 v24, 3, v24
    v_lshl_add_u32 v{V_RKW}, v22, 5, v24
    s_lshl_b32 s83, s81, 11
    s_add_u32 s83, s83, {LDS_KW}
    v_add_u32 v{V_RKW}, s83, v{V_RKW}
    v_lshl_add_u32 v22, v22, 8, v24
    v_add_u32 v22, {LDS_W}, v22
    v_and_b32 v25, 1, v23
    v_lshl_or_b32 v1, v25, 2, v21
    s_lshl_b32 s82, s80, 2
    """)
    for j in range(4):
        p(f"s_add_u32 s83, s82, {j}")
        p(f"v_xor_b32 v{V_T}, s83, v1")
        p(f"v_lshl_add_u32 v{V_RW+j}, v{V_T}, 5, v22")
    p(f"""
    v_add_u32 v{V_R7}, 16384, v{V_R3}
    v_lshl_add_u32 v22, v23, 2, v21
    v_lshl_add_u32 v22, v22, 6, v24
    v_lshl_add_u32 v22, v25, 5, v22
    v_add_u32 v22, {LDS_QS}, v22
    v_xor_b32 v1, 32, v22
    s_cmp_eq_u32 s80, 1
    s_cselect_b64 vcc, -1, 0
    s_movk_i32 s{S_TOG}, 2048
    s_cselect_b32 s{S_TOG}, s{S_TOG}, 0x8000
    v_cndmask_b32 v{V_R3}, v{V_R3}, v22, vcc
    v_cndmask_b32 v{V_R7}, v{V_R7}, v1, vcc
    """)
    p(f"""
    v_lshrrev_b32 v1, 3, {L}
    v_lshlrev_b32 v1, 11, v1
    v_bfe_u32 v25, {L}, 1, 2
    v_xor_b32 v25, v25, v23
    v_lshl_add_u32 v1, v25, 5, v1
    v_and_b32 v25, 1, {L}
    v_lshl_add_u32 v{V_DT}, v25, 4, v1
    v_lshl_add_u32 v1, v23, 2, v21
    v_bfe_u32 v25, v1, 1, 2
    v_xor_b32 v25, s{S_W}, v25
    v_lshlrev_b32 v1, 7, v1
    v_lshl_add_u32 v1, v25, 5, v1
    v_add_u32 v1, v1, v24
    v_add_u32 v{V_RT}, {LDS_T}, v1
    s_lshr_b32 s82, s2, 4
    s_and_b32 s83, s2, 15
    s_mul_i32 s{S_TSRC}, s82, {224*2048}
    s_lshl_b32 s90, s83, 7
    s_add_u32 s{S_TSRC}, s{S_TSRC}, s90
    s_lshl_b32 s{S_TSRC2}, s82, 17
    s_add_u32 s{S_TSRC2}, s{S_TSRC2}, s90
    s_mul_i32 s90, s80, {112*2048}
    s_add_u32 s{S_TSRCS}, s{S_TSRC}, s90
    s_lshl_b32 s90, s81, 13
    s_add_u32 s{S_TSRCS}, s{S_TSRCS}, s90
    s_add_u32 s{S_TSRCS}, s{S_TSRCS}, {96*2048}
    s_lshl_b32 s90, s{S_W}, 14
    s_add_u32 s{S_TSRC}, s{S_TSRC}, s90
    s_lshl_b32 s90, s80, 15
    s_add_u32 s{S_TSRC2}, s{S_TSRC2}, s90
    s_lshl_b32 s90, s81, 14
    s_add_u32 s{S_TSRC2}, s{S_TSRC2}, s90
    s_lshr_b32 s90, s83, 1
    s_mul_i32 s90, s90, {144*8192}
    s_and_b32 s83, s83, 1
    s_lshl_b32 s83, s83, 12
    s_add_u32 s90, s90, s83
    s_lshl_b32 s83, s{S_W}, 10
    s_add_u32 s90, s90, s83
    s_add_u32 s90, s90, {WS_WT:#x}
    s_mul_i32 s{S_TDST}, s82, {7*8192}
    s_add_u32 s{S_TDST}, s{S_TDST}, s90
    s_lshl_b32 s{S_TDST2}, s82, 14
    s_add_u32 s{S_TDST2}, s{S_TDST2}, s90
    s_add_u32 s{S_TDST2}, s{S_TDST2}, {112*8192}
    s_lshl_b32 s82, s2, 3
    s_lshl_b32 s83, s{S_W}, 1
    s_add_u32 s82, s82, s83
    s_lshl_b32 s{S_GROW}, s82, 11
    v_lshrrev_b32 v1, 5, {L}
    v_add_u32 v{V_GROW}, s82, v1
    v_lshlrev_b32 v{V_GROW}, 3, v{V_GROW}
    v_add_u32 v{V_GROW}, {WS_G:#x}, v{V_GROW}
    s_lshl_b32 s82, s{S_MT}, 2
    s_add_u32 s82, s82, s{S_W}
    s_lshl_b32 s82, s82, 5
    s_add_u32 s82, s82, s{S_NT}
    s_lshl_b32 s82, s82, 7
    s_add_u32 s{S_FLG}, s82, {WS_FLAG:#x}
    """)
    if touch:
        p(f"""
        s_and_b32 s82, s{S_NT}, 3
        s_lshl_b32 s82, s82, 6
        s_lshl_b32 s83, s{S_MT}, 8
        s_add_u32 s82, s82, s83
        v_add_u32 v25, s82, {L}
        v_lshlrev_b32 v25, 11, v25
        s_lshl_b32 s82, s{S_MT}, 3
        v_bfe_u32 v24, {L}, 2, 3
        v_add_u32 v24, s82, v24
        v_lshlrev_b32 v21, 11, v24
        v_mul_lo_u32 v24, v24, s84
        v_and_b32 v1, 3, {L}
        v_lshlrev_b32 v1, 7, v1
        v_min_u32 v1, 220, v1
        v_add3_u32 v24, v24, v1, s85
        s_lshl_b32 s82, s{S_NT}, 6
        v_add_u32 v21, s82, v21
        s_mov_b32 s{S_TSTEP}, {64*7168}
        s_cmp_eq_u32 s{S_W}, 0
        s_cselect_b64 vcc, -1, 0
        s_cselect_b32 s{S_TSRD}, s{S_X}, s{S_G}
        s_cselect_b32 s{S_TSRD+1}, s{S_X+1}, s{S_G+1}
        s_cselect_b32 s{S_TSRD+2}, s{S_X+2}, s{S_G+2}
        s_cselect_b32 s{S_TSTEP}, 128, s{S_TSTEP}
        v_cndmask_b32 v{V_T}, v24, v25, vcc
        s_cmp_eq_u32 s{S_W}, 2
        s_cselect_b32 s{S_TSRD}, s{S_U}, s{S_TSRD}
        s_cselect_b32 s{S_TSRD+1}, s{S_U+1}, s{S_TSRD+1}
        s_cmp_eq_u32 s{S_W}, 3
        s_cselect_b64 vcc, -1, 0
        s_cselect_b32 s{S_TSRD}, s{S_WQ}, s{S_TSRD}
        s_cselect_b32 s{S_TSRD+1}, s{S_WQ+1}, s{S_TSRD+1}
        s_cselect_b32 s{S_TSRD+2}, s{S_WQ+2}, s{S_TSRD+2}
        s_cselect_b32 s{S_TSTEP}, 0x20000, s{S_TSTEP}
        v_cndmask_b32 v{V_T}, v{V_T}, v21, vcc
        s_mov_b32 s{S_TSRD+3}, 0x00020000
        s_mul_i32 s{S_TOFF}, s{S_TSTEP}, {touch + 1}
        """)
    groups = []
    for l in [l.strip() for l in p.lines]:
        if groups and l.startswith(("s_cselect", "s_addc", "v_cndmask", "s_movk_i32 s50")): groups[-1].append(l)
        else: groups.append([l])
    dm = dma_items(0, 0, 17) + dma_items(1, 0, p1)
    for grp in dm[:npro0]: pro.items.extend(grp)
    dm = dm[npro0:]
    per = len(groups) / len(dm)
    gi = 0
    for k, grp in enumerate(dm):
        while gi < len(groups) and gi < (k + 1)*per:
            for l in groups[gi]: pro.ins(l)
            gi += 1
        pro.items.extend(grp)
    pro.raw(f"""
    v_and_b32 v1, 31, {L}
    v_lshlrev_b32 v1, 7, v1
    s_lshr_b32 s82, s2, 3
    s_and_b32 s82, s82, 15
    s_lshl_b32 s82, s82, 12
    """)
    one_time = [I(f"buffer_load_dword a{A_DUM}, v1, s[{S_KV}:{S_KV+3}], s82 offen"), I(f"buffer_load_dword a{A_DUM}, v1, s[{S_GW}:{S_GW+3}], 0 offen")]
    touch_ins = lambda: I(f"buffer_load_dword a{A_DUM}, v{V_T}, s[{S_TSRD}:{S_TSRD+3}], s{S_TOFF} offen", vm=("touch", 0))
    touch_adv = f"s_add_u32 s{S_TOFF}, s{S_TOFF}, s{S_TSTEP}"
    pro2 = Trace()
    pro2.wait(vm=[("st", 0)])
    pro2.ins("s_barrier")
    pro2.items.extend(reads(0, 0))

    gfast, gslow = _g_ops()
    GSPLIT = 70
    c_q = struct.unpack("<I", struct.pack("<f", math.log2(math.e) / math.sqrt(32.0)))[0]
    kvfin = [f"v_accvgpr_read_b32 v{21+r}, a{KVA+r}" for r in range(4)]
    for r in range(4): kvfin += [f"v_accvgpr_read_b32 v1, a{KVW+r}", f"v_add_f32 v{21+r}, v{21+r}, v1", f"v_mul_f32 v{21+r}, s84, v{21+r}"]
    kvfin += ["v_cvt_pk_bf16_f32 v22, v21, v22", "v_cvt_pk_bf16_f32 v23, v23, v24",
              f"v_and_b32 v1, 15, {L}", "v_lshlrev_b32 v1, 4, v1", f"v_bfe_u32 v21, {L}, 4, 1", "v_lshl_add_u32 v1, v21, 9, v1",
              f"v_lshrrev_b32 v21, 5, {L}", "v_lshl_add_u32 v1, v21, 3, v1",
              f"buffer_store_dwordx2 v[22:23], v1, s[{S_WS}:{S_WS+3}], s82 offen offset:2048 sc1",
              f"v_bfe_u32 v24, {L}, 3, 1", "v_lshlrev_b32 v24, 10, v24", f"v_bfe_u32 v21, {L}, 2, 1", "v_lshl_add_u32 v24, v21, 9, v24",
              f"v_lshrrev_b32 v21, 4, {L}", "v_lshl_add_u32 v24, v21, 6, v24", f"v_and_b32 v21, 3, {L}", "v_lshl_add_u32 v24, v21, 1, v24",
              f"buffer_store_short v22, v24, s[{S_WS}:{S_WS+3}], s83 offen sc1",
              f"buffer_store_short_d16_hi v22, v24, s[{S_WS}:{S_WS+3}], s83 offen offset:16 sc1",
              f"buffer_store_short v23, v24, s[{S_WS}:{S_WS+3}], s83 offen offset:32 sc1",
              f"buffer_store_short_d16_hi v23, v24, s[{S_WS}:{S_WS+3}], s83 offen offset:48 sc1"]
    kvsal = f"""s_lshl_b32 s82, s{S_MT}, 3
    s_lshr_b32 s83, s{S_NT}, 2
    s_add_u32 s82, s82, s83
    s_lshl_b32 s82, s82, 12
    s_add_u32 s82, s82, {WS_KV:#x}
    s_and_b32 s85, s{S_NT}, 1
    s_lshl_b32 s83, s85, 3
    s_add_u32 s83, s83, s82
    s_lshl_b32 s85, s85, 8
    s_add_u32 s82, s82, s85
    s_lshl_b32 s85, s{S_W}, 10
    s_add_u32 s82, s82, s85
    s_lshl_b32 s85, s{S_W}, 8
    s_add_u32 s83, s83, s85
    s_and_b32 s85, s{S_NT}, 2
    s_cmp_eq_u32 s85, 0
    s_cselect_b32 s84, {c_q:#x}, 1.0
    s_cselect_b32 s82, {OOB:#x}, s82
    s_cselect_b32 s83, s83, {OOB:#x}
    s_cmp_ge_u32 s{S_W}, 2
    s_cselect_b32 s82, {OOB:#x}, s82
    s_cselect_b32 s83, {OOB:#x}, s83""".split("\n")
    kvsal = [x.strip() for x in kvsal]
    kvsal = kvsal[:-7] + ["\n".join(kvsal[-7:-3]), "\n".join(kvsal[-3:])]
    segs = []
    grest = []
    def tstore(q):
        so = S_TDST if q < 7 else S_TDST2
        return [I(f"buffer_store_dwordx4 {ar(A_T,4)}, v{V_L16}, s[{S_WS}:{S_WS+3}], s{so} offen sc1", vm=("ts", q)), I(f"s_add_u32 s{so}, s{so}, 8192")]
    for s in range(NST - 1):
        tr = Trace()
        gaps = [[] for _ in range(66)]
        rl = reads(s, 1)
        u = s - KVD
        if 1 <= u <= 8:
            for e in range(2):
                for h in range(2):
                    rl.append(I(f"ds_read_b64_tr_b16 {ar(KVW+4*e+2*h,2)}, v{V_RKW} offset:{(s%2)*8192 + e*1024 + h*128}", lg=("kvf", s)))
        if u == 9:
            gaps[1].append(I(f"v_add_u32 v21, {LDS_KW + 8192*(s%2)}, v{V_L16}"))
            gaps[3].append(I(f"s_lshl_b32 s82, s{S_W}, 10")); gaps[5].append(I("v_add_u32 v22, s82, v21"))
            gaps[7].append(I("s_xor_b32 s82, s82, 2048")); gaps[9].append(I("v_add_u32 v21, s82, v21"))
            rl.append(I(f"ds_write_b128 v22, {ar(KVA,4)}", lg=("kvf", s)))
        for k, it in enumerate(rl): gaps[2*k].append(it)
        gaps[57].append(I(f"v_xor_b32 v{V_R3}, s{S_TOG}, v{V_R3}")); gaps[59].append(I(f"v_xor_b32 v{V_R7}, s{S_TOG}, v{V_R7}"))
        g, adv = dma_group(s + 1, ntw)
        lo = p1 if s == 0 else nhead
        G = 11 if u == 9 else 1
        for k in range(lo, len(g)):
            pre, it = g[k]
            if pre: gaps[G - 1].append(I(pre))
            gaps[G].append(it)
            for x in adv.get(k, []): gaps[G + 1].append(I(x))
            G += 4
        G -= 2
        if touch and s + touch + 1 < NST:
            gaps[G].append(touch_ins()); gaps[G + 1].append(I(touch_adv)); G += 2
        if 0 <= u <= 7:
            for e in range(2):
                gaps[G].append(I(f"buffer_load_dwordx4 {ar(A_KX + 8*(u%2) + 4*e,4)}, v{V_KX}, s[{S_X}:{S_X+3}], 0 offen offset:{u*256 + e*64}", vm=("kx", u))); G += 2
        q = s - tq0
        if 0 <= q < 9:
            fl = " nt" if ntt else ""
            gaps[G - 1].append(I(f"s_add_u32 m0, s{S_M0T}, {(q%3)*4096}"))
            if q == 6:
                gaps[G - 2].append(I(f"v_lshrrev_b32 v{V_KX}, 5, {L}")); gaps[G - 1].append(I(f"v_lshl_add_u32 v{V_KX}, v{V_KX}, 13, v{V_DT}"))
                gaps[G].append(I(f"buffer_load_dwordx4 v{V_KX}, s[{S_WD}:{S_WD+3}], s{S_TSRCS} offen{fl} lds", vm=("t", q)))
            else:
                srdn, so = (S_WD, S_TSRC) if q < 7 else (S_WO, S_TSRC2)
                gaps[G].append(I(f"buffer_load_dwordx4 v{V_DT}, s[{srdn}:{srdn+3}], s{so} offen{fl} lds", vm=("t", q)))
                gaps[G + 1].append(I(f"s_add_u32 s{so}, s{so}, {48*2048 if q == 2 else 0x10000}"))
            G += 2
        q = s - tq0 - 2
        if 0 <= q < 9:
            x, y = tstore(q); gaps[G].append(x); gaps[G + 1].append(y); G += 2
        if s == 0:
            for x in one_time: gaps[G].append(x); G += 2
        if s == 0:
            gaps[G - 1].append(I(f"v_mov_b32 v21, s{S_TAG}"))
            gaps[G].append(I(f"s_or_b32 s83, s2, s{S_W}\ns_cselect_b32 s83, {OOB:#x}, 0")); G += 2
            gaps[G].extend([I("s_mov_b64 exec, 1"), I(f"buffer_store_dword v21, off, s[{S_DBG}:{S_DBG+3}], s83 sc1"), I("s_mov_b64 exec, -1")]); G += 2
        if s == 6:
            gaps[G].append(I(f"buffer_load_dword a{A_TAG}, off, s[{S_DBG}:{S_DBG+3}], 0 sc1", vm=("zp", 0))); G += 2
        if s == esig + 1:
            gaps[G - 1].append(I(f"s_lshl_b32 s82, s2, 7")); gaps[G].append(I(f"s_add_u32 s82, s82, {WS_FLAG + 0x28000:#x}"))
            gaps[G + 1].append(I(f"s_cmp_eq_u32 s{S_W}, 0\ns_cselect_b32 s82, s82, {OOB:#x}")); G += 2
            gaps[G].extend([I("s_mov_b64 exec, 1"), I(f"buffer_store_dword a{A_TAG}, off, s[{S_WS}:{S_WS+3}], s82 sc1"), I("s_mov_b64 exec, -1")]); G += 2
        kvstart = G
        if s == gs:
            for q_ in range(4):
                gaps[G].append(I(f"buffer_load_dwordx4 {ar(A_GX+4*q_,4)}, v{V_L16}, s[{S_X}:{S_X+3}], s{S_GROW} offen offset:{1024*q_}", vm=("g", 0))); G += 2
            for q_ in range(2):
                gaps[G].append(I(f"buffer_load_dwordx4 {ar(A_GW+4*q_,4)}, v{V_L16}, s[{S_GW}:{S_GW+3}], 0 offen offset:{1024*q_}", vm=("g", 0))); G += 2
        assert G < 64, (s, G)
        tr.wait(lg=[("fr", s, 0)] + ([("tf", q)] if 0 <= q < 9 else []) + ([("kvp", 0)] if u == 10 else []))
        vq = []
        if s in (gs + 2, gs + 3): vq = gfast
        if u == 10: vq = list(kvfin)
        k = 0
        for j in range(8):
            for i in range(8):
                tr.ins(mfma(0, j, i, first=(s == 0)))
                tr.items.extend(gaps[k])
                cap = vcap(gaps[k])
                while vq and cap > 0 and not (u == 10 and k < kvstart - 8):
                    if vq[0].startswith("buffer_"):
                        if cap < 2: break
                        tr.ins(vq.pop(0), vm=("kvst", 0)); cap -= 2
                    else:
                        tr.ins(vq.pop(0)); cap -= 1
                k += 1
        if s != gs + 2: assert not vq
        need = [("st", s + 1)]
        if 0 <= s - tq0 - 1 < 9: need.append(("t", s - tq0 - 1))
        if s == gs + 1: need.append(("g", 0))
        if 1 <= u <= 8: need.append(("kx", u - 1))
        if s == 7: need.append(("zp", 0))
        if s == esig: need.append(("kvst", 0))
        tr.wait(vm=need, lg=[("fr", s, 1)] + ([("kvf", s)] if 1 <= u <= 9 else []))
        tr.ins("s_barrier")
        segs.append(tr)
        tr = Trace()
        gaps = [[] for _ in range(68)]
        for k, it in enumerate(reads(s + 1, 0)): gaps[2*k + 1].append(it)
        q = s - tq0 - 1
        if 0 <= q < 9:
            for h in range(2):
                gaps[49 + 2*h].append(I(f"ds_read_b64_tr_b16 {ar(A_T+2*h,2)}, v{V_RT} offset:{(q%3)*4096 + h*2048}", lg=("tf", q)))
        if u == 9:
            gaps[53].append(I(f"ds_read_b128 {ar(KVW,4)}, v21", lg=("kvp", 0)))
            for k, x in enumerate(kvsal): gaps[2*k + 3 if 2*k + 3 < 48 else 55].append(I(x.strip()))
        if s + 2 < NST:
            g, adv = dma_group(s + 2, ntw)
            hg = [2*round(k*62/(2*nhead)) for k in range(nhead)]
            for k in range(nhead):
                pre, it = g[k]
                if pre:
                    if hg[k]: gaps[hg[k] - 1].insert(0, I(pre))
                    else: tr.ins(pre)
                gaps[hg[k]].append(it)
                for x in adv.get(k, []): gaps[hg[k] + 2].append(I(x))
        if s == 7:
            gaps[54].append(I(f"v_accvgpr_read_b32 v1, a{A_TAG}"))
            gaps[56].append(I(f"v_cmp_eq_u32 vcc, 0, v1")); gaps[58].append(I("s_cbranch_vccnz KM_ZSPIN\nKM_ZBACK:"))
            gaps[60].append(I(f"v_accvgpr_write_b32 a{A_TAG}, v1")); gaps[62].append(I(f"v_readfirstlane_b32 s{S_TAG}, v1"))
        if s == 14:
            gaps[38].append(I(f"v_lshlrev_b32 v{V_T}, 7, {L}"))
            gaps[40].append(I(f"s_lshl_b32 s{S_EF}, s{S_W}, 13")); gaps[42].append(I(f"s_add_u32 s{S_EF}, s{S_EF}, {WS_FLAG + 0x28000:#x}"))
            gaps[48].append(I(f"buffer_load_dword v{V_KX}, v{V_T}, s[{S_WS}:{S_WS+3}], s{S_EF} offen sc1", vm=("ep", 0)))
        vq = []; slow = []; slow_from = None
        if s in (gs + 1, gs + 2): vq = gfast
        if s == gs + 3: slow = list(gslow)
        ml = [mfma(1, j, i) for j in range(8) for i in range(8)]
        if 1 <= u <= 8:
            for e in range(2):
                ml.insert(30 + 20*e, f"v_mfma_f32_16x16x32_bf16 {ar(KVA,4)}, {ar(A_KX + 8*((u-1)%2) + 4*e,4)}, {ar(KVW+4*e,4)}, {'0' if (u == 1 and e == 0) else ar(KVA,4)}")
        for k, m in enumerate(ml):
            tr.ins(m)
            tr.items.extend(gaps[k])
            for _ in range(vcap(gaps[k])):
                if vq: tr.ins(vq.pop(0))
            if slow and not vq:
                if slow_from is None: slow_from = k + 2
                if k >= slow_from and (k - slow_from) % 2 == 0: tr.ins(slow.pop(0))
        for k in range(len(ml), 68): assert not gaps[k], (s, k)
        assert not slow
        segs.append(tr)

    P = p2
    ec = Trace()
    ec.wait(vm=[("ep", 0)])
    ec.raw(f"""
    v_cmp_ne_u32 vcc, s{S_TAG}, v{V_KX}
    s_and_b32 s80, s2, 7
    s_lshr_b32 s81, s80, 1
    s_lshl_b32 s{P.S_MT}, s{S_MT}, 2
    s_cbranch_vccnz KM_ESPIN
    KM_EBACK:
    s_barrier
    s_add_u32 s{P.S_MT}, s{P.S_MT}, s81
    s_lshl_b32 s{P.S_M0KV}, s{S_W}, 13
    s_add_u32 s82, s{P.S_M0KV}, {WS_KV:#x}
    s_add_u32 s{P.S_KVB}, s86, s82
    s_addc_u32 s{P.S_KVB+1}, s87, 0
    v_add_u32 v{V_DT}, 4096, v{V_L16}
    """)
    su2 = f"""
    s_and_b32 s80, s80, 1
    s_lshl_b32 s80, s80, 2
    s_and_b32 s90, s{S_NT}, 3
    s_add_u32 s{P.S_NT}, s80, s90
    s_lshr_b32 s90, s{P.S_MT}, 1
    s_mul_i32 s90, s90, 112
    s_mul_i32 s91, s{S_W}, 28
    s_add_u32 s90, s90, s91
    s_lshl_b32 s90, s90, 13
    s_and_b32 s44, s{P.S_MT}, 1
    s_lshl_b32 s44, s44, 12
    s_add_u32 s90, s90, s44
    s_add_u32 s58, s86, s90\ns_addc_u32 s59, s87, 0
    s_add_u32 s60, s58, 0x2000\ns_addc_u32 s61, s59, 0
    s_add_u32 s62, s58, 0x4000\ns_addc_u32 s63, s59, 0
    s_mov_b64 s[{P.S_HB}:{P.S_HB+1}], s[62:63]
    s_mul_i32 s90, s{P.S_NT}, 144
    s_add_u32 s91, s91, s90
    s_lshl_b32 s91, s91, 13
    s_add_u32 s91, s91, {WS_WT:#x}
    s_add_u32 s64, s86, s91\ns_addc_u32 s65, s87, 0
    s_add_u32 s66, s64, 0x2000\ns_addc_u32 s67, s65, 0
    s_add_u32 s68, s64, 0x4000\ns_addc_u32 s69, s65, 0
    s_mov_b64 s[{P.S_WB}:{P.S_WB+1}], s[68:69]
    s_lshl_b32 s91, s{S_W}, 3
    s_add_u32 s90, s90, s91
    s_lshl_b32 s90, s90, 13
    s_add_u32 s90, s90, {WS_WT + 112*8192:#x}
    s_add_u32 s{P.S_WOB}, s86, s90\ns_addc_u32 s{P.S_WOB+1}, s87, 0
    s_mul_i32 s{P.S_M0SP}, s{S_W}, 24576
    s_add_u32 s{P.S_M0SP}, s{P.S_M0SP}, {P.LDS_SP}
    s_mov_b32 s{P.S_OUT}, s96
    s_and_b32 s{P.S_OUT+1}, s97, 0xffff
    s_mov_b32 s{P.S_OUT+2}, {2048*1024*2:#x}
    s_mov_b32 s{P.S_OUT+3}, 0x00020000
    s_mov_b32 s{P.S_OF}, s{S_FLG}
    s_lshl_b32 s90, s{P.S_MT}, 12
    s_add_u32 s{P.S_OP}, s90, {WS_FLAG:#x}
    s_sub_u32 s{P.S_HP}, s{S_EF}, 0x8000
    s_lshl_b32 s90, s2, 7
    s_add_u32 s90, s90, {WS_FLAG + 0x20000:#x}
    s_cmp_eq_u32 s{S_W}, 0\ns_cselect_b32 s{P.S_HF}, s90, {OOB:#x}
    """
    su2 = [x.strip() for x in su2.strip().split("\n    ")]

    def last_stage(wn):
        tr = Trace()
        s = NST - 1
        su = f"""
        s_lshr_b32 s81, s{S_W}, 1
        s_lshl_b32 s82, s{S_MT}, 1
        s_add_u32 s82, s82, s81
        s_mul_i32 s82, s82, 112
        s_lshr_b32 s83, s{S_NT}, 1
        s_mul_i32 s83, s83, 7
        s_add_u32 s82, s82, s83
        s_and_b32 s84, s{S_NT}, 1
        s_add_u32 s85, s82, 6
        s_lshl_b32 s85, s85, 13
        s_mul_i32 s83, s84, 3
        s_add_u32 s82, s82, s83
        s_add_u32 s82, s82, {2*wn}
        s_lshl_b32 s82, s82, 13
        s_add_u32 s83, s82, 8192
        """
        if wn:
            su += f"""
            s_lshl_b32 s84, s84, 9
            s_add_u32 s85, s85, s84
            v_and_b32 v21, 15, {L}
            v_lshlrev_b32 v21, 4, v21
            v_bfe_u32 v24, {L}, 4, 1
            v_lshl_add_u32 v22, v24, 9, v21
            v_lshl_add_u32 v21, v24, 10, v21
            v_lshrrev_b32 v24, 5, {L}
            v_lshl_add_u32 v22, v24, 10, v22
            v_lshl_add_u32 v21, v24, 8, v21
            s_lshl_b32 s81, s81, 13
            s_add_u32 s81, s81, {P.LDS_Q}
            v_add_u32 v22, s81, v22
            v_add_u32 v23, 4096, v21
            """
        setup = [l.strip() for l in su.strip().split("\n") if l.strip()] + su2
        ffn = lambda t, i: dict(kind="f", t=t, i=i, mf=[(2*t, i), (4 + 2*t, i), (2*t + 1, i), (5 + 2*t, i)])
        if wn == 0:
            halves = [[ffn(0, i) for i in range(8)], [ffn(1, i) for i in range(8)]]
        else:
            halves = [[dict(kind="q", i=i, mf=[(3, i), (7, i)]) for i in range(8)] +
                      [dict(kind="s", i=i, mf=[(2, i), (6, i), (2, i + 1), (6, i + 1)]) for i in range(0, 8, 2)],
                      [ffn(0, i) for i in range(8)]]
        pieces = halves[0] + halves[1]
        half = len(halves[0])
        jsets = [sorted(set(j for pc in hv for j, _ in pc["mf"])) for hv in halves]
        def piece_ops(pc, pk):
            o = []
            i = pc["i"]
            tmp = 12 + 4*(i % 2)
            def reg(j, i):
                p_, b = accn(j, i)
                if p_ == "v": return b
                for r in range(4): o.append(f"v_accvgpr_read_b32 v{tmp+r}, a{b+r}")
                return tmp
            r_ = [reg(j, i_) for j, i_ in pc["mf"]]
            if pc["kind"] == "q":
                g0_, g1_ = r_
            else:
                g0_, u0, g1_, u1 = r_
                for g_, u_ in ((g0_, u0), (g1_, u1)):
                    for r in range(4): o.append(f"v_max_f32 v{g_+r}, 0, v{g_+r}")
                    if pk:
                        o.append(f"v_pk_mul_f32 {vr(g_,2)}, {vr(g_,2)}, {vr(u_,2)}")
                        o.append(f"v_pk_mul_f32 {vr(g_+2,2)}, {vr(g_+2,2)}, {vr(u_+2,2)}")
                    else:
                        for r in range(4): o.append(f"v_mul_f32 v{g_+r}, v{g_+r}, v{u_+r}")
            o += [f"v_cvt_pk_bf16_f32 v{g0_}, v{g0_}, v{g0_+1}", f"v_cvt_pk_bf16_f32 v{g0_+1}, v{g0_+2}, v{g0_+3}",
                  f"v_cvt_pk_bf16_f32 v{g0_+2}, v{g1_}, v{g1_+1}", f"v_cvt_pk_bf16_f32 v{g0_+3}, v{g1_+2}, v{g1_+3}"]
            if pc["kind"] == "q":
                o.append(f"ds_write_b128 v22, {vr(g0_,4)} offset:{(i//2)*2048 + (i%2)*256}")
            elif pc["kind"] == "s":
                o += ["s_nop 1", f"v_permlane16_swap_b32 v{g0_}, v{g0_+2}", f"v_permlane16_swap_b32 v{g0_+1}, v{g0_+3}",
                      f"buffer_store_dwordx4 {vr(g0_,4)}, {'v21' if i < 4 else 'v23'}, s[{S_WS}:{S_WS+3}], s85 offen offset:{(i%4)*1024} sc1"]
            else:
                o.append(f"buffer_store_dwordx4 {vr(g0_,4)}, {'v%d' % (V_L16 if i < 4 else V_DT)}, s[{S_WS}:{S_WS+3}], {'s82' if pc['t'] == 0 else 's83'} offen offset:{(i%4)*1024} sc1")
            return o
        rl = [xread(s, 1, i) for i in range(8)]
        for j in jsets[0]: rl += [wread(s, 1, j, 0), wread(s, 1, j, 1)]
        for x in rl: x["lg"] = ("frA", 0)
        for j in jsets[1]: rl += [wread(s, 1, j, 0), wread(s, 1, j, 1)]
        kv0 = []
        for part in range(2):
            cl = [P.kv_dma(0, part, j) for j in range(4)]
            for x in cl: x["text"] = x["text"].replace(f"v{P.V_L16},", f"v{V_L16},").replace(f"v{P.V_L16B},", f"v{V_DT},")
            kv0.append(cl)
        q = s - tq0 - 2
        tr.wait(lg=[("fr", s, 0)] + ([("tf", q)] if 0 <= q < 9 else []))
        first = []
        if gs + 4 == s:
            first.append([I("s_mov_b32 exec_lo, 1\ns_mov_b32 exec_hi, 1"), I(f"buffer_store_dwordx2 v[24:25], v{V_GROW}, s[{S_WS}:{S_WS+3}], 0 offen sc1", vm=("hst", 0)), I("s_mov_b64 exec, -1")])
        if 0 <= q < 9: first.append([tstore(q)[0]])
        for k, (j, i) in enumerate([(j, i) for j in jsets[0] for i in range(8)]):
            tr.ins(mfma(0, j, i))
            if first:
                tr.items.extend(first.pop(0)); continue
            if k in (26, 29): tr.ins(f"s_add_u32 m0, s{P.S_M0KV}, {4096 if k == 29 else 0}")
            elif k in (27, 30): tr.items.extend(kv0.pop(0))
            elif rl: tr.items.append(rl.pop(0))
            for _ in range(2):
                if setup: tr.ins(setup.pop(0))
        assert not rl
        tr.items.extend(adv64(P.S_KVB, 32768))
        for x in setup: tr.ins(x)
        tr.wait(lg=[("frA", 0)])
        ml = []
        for pi, pc in enumerate(pieces):
            if pi == half:
                ml.append((W(lg=[("fr", s, 1)]), None))
                ml += [(mfma(0, j, i), None) for j in jsets[1] for i in range(8)]
            for j, i in pc["mf"]: ml.append((mfma(1, j, i), pi))
        done_at = {}; cnt = 0; vq = []; nextp = 0
        def put(x):
            tr.ins(x, vm=("hst", 0) if x.startswith("buffer_") else None, lg=("qw", 0) if x.startswith("ds_") else None)
        for k, (m, pi) in enumerate(ml):
            if isinstance(m, dict):
                tr.items.append(m); continue
            tr.ins(m); cnt += 1
            if pi is not None and (k + 1 == len(ml) or ml[k + 1][1] != pi): done_at[pi] = cnt
            budget = 2
            while budget > 0:
                if not vq and nextp in done_at and cnt - done_at[nextp] >= 9:
                    vq = piece_ops(pieces[nextp], False); nextp += 1
                if not vq: break
                c_ = 2 if vq[0].startswith(("buffer_", "ds_")) else 1
                if c_ > budget: break
                put(vq.pop(0)); cnt += 1; budget -= c_
        for x in vq: put(x); cnt += 1
        while nextp < len(pieces):
            if cnt - done_at[nextp] < 9: tr.ins("s_nop 7"); cnt += 8
            for x in piece_ops(pieces[nextp], True): put(x); cnt += 1
            nextp += 1
        return tr
    l0, l1 = last_stage(0), last_stage(1)

    L2 = f"v{P.V_LANE}"
    h2 = Trace()
    h2.raw(f"""
    v_mov_b32 {L2}, {L}
    v_mov_b32 v{P.V_L16}, v{V_L16}
    v_mov_b32 v{P.V_L16B}, v{V_DT}
    v_mov_b32 v{P.V_KVR}, v{V_L16}
    s_lshl_b32 s80, s{S_W}, 12
    s_add_u32 s80, s80, {P.LDS_Q}
    v_add_u32 v24, s80, v{V_L16}
    """)
    h2.wait(vm=[("kv", 0)])
    h2.raw("s_waitcnt lgkmcnt(0)\ns_barrier")
    for q in range(4): h2.ins(f"ds_read_b128 {ar(P.A_Q + 4*q,4)}, v24 offset:{q*1024}", lg=("q", 0))
    for half in range(2): h2.items.append(P.k_read(0, half))
    for half in range(2): h2.items.append(P.v_read(0, half))
    for pp in range(4):
        h2.raw(f"""
        s_add_u32 s80, s{S_W}, {pp}
        s_and_b32 s80, s80, 3
        s_lshl_b32 s80, s80, 11
        v_add_u32 v{P.V_W+pp}, s80, v{P.V_L16}
        """)
    h2.wait(lg=[("k", 0)])
    h2.ins(P.qk(0, 0)); h2.ins(P.qk(0, 1))
    for q in range(4):
        h2.ins(f"v_add_u32 v{P.V_SP+q}, s{P.S_M0SP}, v{P.V_W+q}")
        h2.ins(f"v_add_u32 v{P.V_KP+q}, s{P.S_M0KV}, v{P.V_W+q}")
    h2.raw(f"""
    v_bfe_u32 v26, {L2}, 4, 1
    v_bfe_u32 v27, {L2}, 2, 1
    v_cmp_eq_u32 vcc, v26, v27
    v_mov_b32 v26, 0x3f803f80
    s_lshl_b32 s78, s{P.S_MT}, 9
    s_add_u32 s78, s78, {WS_G:#x}
    v_cndmask_b32 v26, 0, v26, vcc
    """)
    for r in range(4): h2.ins(f"v_accvgpr_write_b32 a{P.A_SEL+r}, v26")
    h2.raw(f"""
    s_lshl_b32 s79, s{S_MT}, 11
    s_lshl_b32 s80, s{S_W}, 9
    s_add_u32 s79, s79, s80
    s_add_u32 s79, s79, {WS_G:#x}
    v_and_b32 v26, 31, {L2}
    v_lshlrev_b32 v26, 3, v26
    v_and_b32 v27, 15, {L2}
    v_lshlrev_b32 v27, 3, v27
    v_lshlrev_b32 v25, 7, {L2}
    v_mov_b32 v24, s{S_TAG}
    """)
    def rebase(x, frm, to):
        x["text"] = x["text"].replace(f"s[{frm}:{frm+1}]", f"s[{to}:{to+1}]"); return x
    wl = lambda sg, J0, b: [rebase(P.w_load(sg, J), P.S_WB, b) for J in range(J0, J0 + 4)]
    hl = lambda sg, b: [rebase(P.h_load(sg, i), P.S_HB, b) for i in range(4)]
    early = []
    timed = [(hsig, [W(vm=[("hst", 0), ("ts", 8)]), I("s_barrier"), I("s_mov_b64 exec, 1"), I(f"buffer_store_dword v24, off, s[{S_WS}:{S_WS+3}], s{P.S_HF} sc1"), I("s_mov_b64 exec, -1")]),
             (hpoll, [I(f"buffer_load_dword v28, v25, s[{S_WS}:{S_WS+3}], s{P.S_HP} offen sc1", vm=("hp", 0))]),
             (hpoll + 2, [W(vm=[("hp", 0)]), I(f"v_cmp_ne_u32 vcc, s{S_TAG}, v28"), I("s_nop 0"), I("s_cbranch_vccnz KM_HSPIN"), I("KM_HBACK:"), I("s_barrier")] + hl(0, 58)),
             (hpoll + 2, wl(0, 0, 64)), (hpoll + 3, wl(0, 4, 64)), (hpoll + 3, hl(1, 60)), (hpoll + 4, wl(1, 0, 66)), (hpoll + 4, wl(1, 4, 66)),
             (hpoll + 5, wl(2, 0, 68)), (hpoll + 5, hl(2, 62)),
             (hpoll + 12, [I(f"buffer_load_dword v{P.V_G+hh}, v26, s[{S_WS}:{S_WS+3}], s79 offen offset:{hh*256} sc1", vm=("g2", 0)) for hh in range(2)]),
             (hpoll + 14, [I(f"buffer_load_dword v{P.V_OMG+i}, v27, s[{S_WS}:{S_WS+3}], s78 offen offset:{4 + i*128} sc1", vm=("g2", 0)) for i in range(4)])]
    body = P.main_loop(NIN, g0, early, timed)
    NDOWN, NWO, ACC = P.NDOWN, P.NWO, P.ACC
    t1 = Trace()
    n = P.NSLOT - 1
    t1.ins("s_nop 1")
    t1.ins(P.pv(n, 0)); t1.ins(P.summ(n, 0)); t1.ins(P.pv(n, 1)); t1.ins(P.summ(n, 1))
    t1.raw(f"""
    v_bfe_u32 v26, {L2}, 4, 1
    v_lshlrev_b32 v26, 10, v26
    v_and_b32 v27, 15, {L2}
    v_lshl_add_u32 v26, v27, 4, v26
    v_lshrrev_b32 v27, 5, {L2}
    v_lshl_add_u32 v26, v27, 8, v26
    s_lshl_b32 s78, s{S_MT}, 1
    s_lshr_b32 s79, s{S_W}, 1
    s_add_u32 s78, s78, s79
    s_lshl_b32 s78, s78, 5
    s_add_u32 s78, s78, s{S_NT}
    s_lshl_b32 s78, s78, 13
    s_and_b32 s79, s{S_W}, 1
    s_lshl_b32 s79, s79, 12
    s_add_u32 s78, s78, s79
    s_add_u32 s54, s78, {WS_O:#x}
    """)
    t1.wait(vm=[("g2", 0)])
    t1.raw(f"""
    v_accvgpr_read_b32 v80, a{P.A_L}
    v_accvgpr_read_b32 v81, a{P.A_L+4}
    """)
    for r in range(32): t1.ins(f"v_accvgpr_read_b32 v{32+r}, a{P.A_O+r}")
    for r in range(0, 32, 2): t1.ins(f"v_pk_fma_f32 v[82:83], {vr(32+r,2)}, 0, v[82:83]" if r else f"v_pk_mul_f32 v[82:83], {vr(32,2)}, 0")
    t1.raw(f"""
    v_add_f32 v82, v82, v83
    v_min_f32 v83, v80, v81
    v_max_f32 v84, v80, v81
    v_add_f32 v83, v83, v82
    v_add_f32 v84, v84, v82
    v_add_f32 v85, v80, v81
    s_mov_b32 s78, 0x1f800000
    s_mov_b32 s79, 0x5f800000
    v_cmp_nle_f32 s[82:83], s78, v83
    v_cmp_nge_f32 s[84:85], s79, v84
    v_cmp_u_f32 vcc, v85, v85
    s_nop 3
    s_or_b64 s[82:83], s[82:83], s[84:85]
    s_or_b64 vcc, vcc, s[82:83]
    s_cbranch_vccnz KM_FALLBACK
    KM_NORM:
    v_rcp_f32 v80, v80
    v_rcp_f32 v82, v81
    s_nop 0
    v_mul_f32 v80, v80, v{P.V_G}
    v_mul_f32 v82, v82, v{P.V_G+1}
    """)
    for hh in range(2):
        for r in range(0, 16, 2):
            b = 32 + 16*hh + r
            t1.ins(f"v_pk_mul_f32 {vr(b,2)}, {vr(b,2)}, {vr(80+2*hh,2)} op_sel_hi:[1,0]")
        for pc in range(2):
            b = 32 + 16*hh + 8*pc
            for q in range(4):
                t1.ins(f"v_cvt_pk_bf16_f32 v{64+8*hh+4*pc+q}, v{b+2*q}, v{b+2*q+1}")
            t1.ins(f"buffer_store_dwordx4 {vr(64+8*hh+4*pc,4)}, v26, s[{S_WS}:{S_WS+3}], s54 offen offset:{hh*2048 + pc*512} sc1", vm=("ost", 0))
    nA, nB = nb
    stepsA = [P.gemm_step(s) for s in range(NIN, NIN + nA)]
    stepsB = [P.gemm_step(s) for s in range(NIN + nA, NIN + nA + nB)]
    sig = Trace()
    sig.raw(f"""
    v_and_b32 v25, 31, {L2}
    v_lshlrev_b32 v25, 7, v25
    s_lshr_b32 s78, s{P.S_MT}, 1
    s_lshl_b32 s78, s78, 18
    s_add_u32 s78, s78, s44
    s_lshl_b32 s79, s{S_W}, 16
    s_add_u32 s78, s78, s79
    s_add_u32 s78, s78, {WS_O:#x}
    s_add_u32 s56, s86, s78
    s_addc_u32 s57, s87, 0
    """)
    sig.wait(vm=[("ost", 0)])
    sig.raw(f"""
    s_mov_b64 exec, 1
    buffer_store_dword v24, off, s[{S_WS}:{S_WS+3}], s{P.S_OF} sc1
    s_mov_b64 exec, -1
    """)
    t3 = Trace()
    t3.raw(f"""
    s_mov_b32 s79, 0x40000
    KM_POLL:
    buffer_load_dword v28, v25, s[{S_WS}:{S_WS+3}], s{P.S_OP} offen sc1
    s_waitcnt vmcnt(0)
    v_cmp_ne_u32 vcc, s{S_TAG}, v28
    s_sub_u32 s79, s79, 1
    s_cbranch_vccz KM_POLLED
    s_cmp_eq_u32 s79, 0
    s_cbranch_scc1 KM_POLLED
    s_sleep 1
    s_branch KM_POLL
    KM_POLLED:
    """)
    ol = []
    for s in range(NDOWN, NDOWN + NWO):
        ol.append([rebase(P.h_load(s, i), P.S_HB, 56) for i in range(4)] + (adv64(56, 8192) if s < NDOWN + NWO - 1 else []))
    t4 = Trace()
    for grp in ol[:opre]: t4.items.extend(grp)
    k = opre
    stepsC = []
    for s in range(NIN + nA + nB, NDOWN):
        ex = []
        while len(ex) < 2 and k < 5: ex.append(ol[k]); k += 1
        stepsC.append(P.gemm_step(s, ex))
    scale = []
    for J in range(8):
        for i in range(4):
            b = ACC + (J*4 + i)*4
            for r in (0, 2):
                om = P.V_OMG + i
                if om % 2 == 0: scale.append(f"v_pk_mul_f32 {vr(b+r,2)}, {vr(b+r,2)}, {vr(om,2)} op_sel_hi:[1,0]")
                else: scale.append(f"v_pk_mul_f32 {vr(b+r,2)}, {vr(b+r,2)}, {vr(om-1,2)} op_sel:[0,1] op_sel_hi:[1,1]")
    sc = Trace()
    for q, x in enumerate(scale):
        if q == 0: sc.ins("s_nop 7")
        if q in (8, 40) and k < NWO: sc.items.extend(ol[k]); k += 1
        sc.ins(x)
    sc.ins("s_nop 1")
    wos = []
    for s in range(NDOWN, NDOWN + 4):
        ex = []
        while len(ex) < 2 and k < NWO: ex.append(ol[k]); k += 1
        wos.append(P.gemm_step(s, ex))
    ph = Trace()
    su = Asm()
    for pp in range(1, 4):
        su(f"s_add_u32 s78, s{S_W}, {pp}\ns_and_b32 s78, s78, 3\ns_mul_i32 s78, s78, 24576\ns_add_u32 s78, s78, {(pp-1)*8192}\nv_add_u32 v{26+pp}, s78, v{P.V_L16}")
    su(f"""
    s_mul_i32 s78, s{S_W}, 24576
    v_add_u32 v26, s78, v{P.V_L16}
    s_lshl_b32 s78, s{P.S_MT}, 17
    s_lshl_b32 s79, s{P.S_NT}, 8
    s_add_u32 s78, s78, s79
    s_lshl_b32 s79, s{S_W}, 6
    s_add_u32 s78, s78, s79
    s_add_u32 s79, s78, 0x8000
    s_add_u32 s80, s78, 0x10000
    s_add_u32 s81, s78, 0x18000
    v_and_b32 v30, 15, {L2}
    v_lshlrev_b32 v30, 11, v30
    v_bfe_u32 v25, {L2}, 4, 1
    v_lshl_add_u32 v30, v25, 5, v30
    v_lshrrev_b32 v25, 5, {L2}
    v_lshl_add_u32 v30, v25, 4, v30
    """)
    su = [l.strip() for l in su.lines]
    S2 = list(range(NDOWN + 4, NDOWN + 8))
    ph.wait(vm=[("w", s, J) for s in S2[2:] for J in range(8)], lg=[("w", s, J) for s in S2[:2] for J in range(8)])
    ph.ins("s_barrier")
    for idx, pp in enumerate((1, 2, 3, 0)):
        fill = [[] for _ in range(32)]
        if idx == 0:
            for q, x in enumerate(su): fill[q].append(I(x))
        else:
            prev = (1, 2, 3)[idx - 1]
            for t in range(8):
                fill[4 + 3*t].append(I(f"ds_write_b128 v{26+prev}, {vr(ACC + (prev*8 + t)*4, 4)} offset:{t*1024}", lg=("rw", prev)))
        if idx == 3:
            rd = [I(f"ds_read_b128 {vr(ACC + 32 + (s_*8 + t)*4, 4)}, v26 offset:{s_*8192 + t*1024}", lg=("rr", s_)) for s_ in range(2) for t in range(8)]
            free = [g for g in range(32) if not fill[g]]
            for x, g in zip(rd, free): fill[g].append(x)
            ph.wait(lg=[("rw", 2)])
            ph.ins("s_barrier")
        mu = 0
        for s in S2:
            if idx == 0: ph.wait(vm=[("h", s, i) for i in range(4)])
            for J in (2*pp, 2*pp + 1):
                for i in range(4):
                    ph.ins(P.gemm_mfma(s, J, i, False)); ph.items.extend(fill[mu]); mu += 1
    ph.wait(lg=[("rw", 3), ("rr", 1)])
    ph.ins("s_barrier")
    for t in range(8): ph.ins(f"ds_read_b128 {vr(48 + t*4, 4)}, v26 offset:{2*8192 + t*1024}", lg=("rr", 2))
    for s_ in range(3):
        if s_ == 2: ph.wait(lg=[("rr", 2)])
        for r in range(0, 32, 2):
            ph.ins(f"v_pk_add_f32 {vr(ACC+r,2)}, {vr(ACC+r,2)}, {vr((ACC + 32 + s_*32 if s_ < 2 else 48) + r,2)}")
    for i in range(4):
        b0, b1 = ACC + i*4, ACC + (4 + i)*4
        d = 32 + i*4
        ph.raw(f"""
        v_cvt_pk_bf16_f32 v{d}, v{b0}, v{b0+1}
        v_cvt_pk_bf16_f32 v{d+1}, v{b0+2}, v{b0+3}
        v_cvt_pk_bf16_f32 v{d+2}, v{b1}, v{b1+1}
        v_cvt_pk_bf16_f32 v{d+3}, v{b1+2}, v{b1+3}
        s_nop 1
        v_permlane16_swap_b32 v{d}, v{d+2}
        v_permlane16_swap_b32 v{d+1}, v{d+3}
        buffer_store_dwordx4 {vr(d,4)}, v30, s[{P.S_OUT}:{P.S_OUT+3}], s{78+i} offen nt
        """)
    head = [pro, pro2] + segs + [ec]
    rest = [h2, body, t1] + stepsA + [sig] + stepsB + [t3, t4] + stepsC + [sc] + wos + [ph]
    import copy
    resolve(head + [l0] + rest)
    saved = [[(x.get("wvm"), x.get("wlg")) for x in seg.items] for seg in rest]
    resolve(head + [l1] + rest)
    for seg, sv in zip(rest, saved):
        for x, (v, l) in zip(seg.items, sv):
            if x["text"] is None:
                mn = lambda p, q: q if p is None else p if q is None else min(p, q)
                x["wvm"], x["wlg"] = mn(x["wvm"], v), mn(x["wlg"], l)
    emit_trace(a, [pro]); st.stamp()
    emit_trace(a, [pro2]); st.stamp()
    for k, tr in enumerate(segs):
        emit_trace(a, [tr])
        if 'stg' in exp and k % 2 == 0: st.stamp()
    st.stamp()
    emit_trace(a, [ec])
    a(f"s_bitcmp1_b32 s{S_W}, 0")
    a("s_cbranch_scc1 KM_LAST1")
    emit_trace(a, [l0])
    a("s_branch KM_P2")
    a.label("KM_LAST1")
    emit_trace(a, [l1])
    a.label("KM_P2")
    st.stamp()
    emit_trace(a, [h2]); st.stamp()
    b = Asm(); emit_trace(b, [body])
    for l in b.lines:
        a.lines.append(l)
        if 'its' in exp and l.strip() in ("s_barrier", "KM_HBACK:"): st.stamp()
    st.stamp()
    emit_trace(a, [t1]); st.stamp()
    for seg in stepsA + [sig]: emit_trace(a, [seg])
    st.stamp()
    for seg in stepsB: emit_trace(a, [seg])
    st.stamp()
    emit_trace(a, [t3]); st.stamp()
    for seg in [t4] + stepsC + [sc]: emit_trace(a, [seg])
    st.stamp()
    for seg in wos: emit_trace(a, [seg])
    st.stamp()
    emit_trace(a, [ph])
    if dbg:
        a("s_waitcnt vmcnt(0)")
        st.stamp()
        st.dump(0, S_W, 86)
    a("s_endpgm")
    for nm, ld, val in (("Z", f"buffer_load_dword v1, off, s[{S_DBG}:{S_DBG+3}], 0 sc1", f"eq_u32 vcc, 0, v1"),
                        ("E", f"buffer_load_dword v{V_KX}, v{V_T}, s[{S_WS}:{S_WS+3}], s{S_EF} offen sc1", f"ne_u32 vcc, s{S_TAG}, v{V_KX}"),
                        ("H", f"buffer_load_dword v28, v25, s[{S_WS}:{S_WS+3}], s{P.S_HP} offen sc1", f"ne_u32 vcc, s{S_TAG}, v28")):
        a(f"""
        KM_{nm}SPIN:
        s_mov_b32 s91, 0x40000
        KM_{nm}SPIN1:
        {ld}
        s_waitcnt vmcnt(0)
        v_cmp_{val}
        s_sub_u32 s91, s91, 1
        s_cbranch_vccz KM_{nm}BACK
        s_cmp_eq_u32 s91, 0
        s_cbranch_scc1 KM_{nm}BACK
        s_sleep 1
        s_branch KM_{nm}SPIN1
        """)
    A_K, A_Q = P.A_K, P.A_Q
    a.label("KM_FALLBACK")
    a(f"""
    s_waitcnt vmcnt(0) lgkmcnt(0)
    v_mov_b32 v82, 0xff7fffff
    v_mov_b32 v83, 0xff7fffff
    v_mov_b32 v80, 0
    v_mov_b32 v81, 0
    s_mov_b32 s78, {WS_KV:#x}
    """)
    for r in range(32): a(f"v_mov_b32 v{32+r}, 0")
    a.label("KM_FB_LOOP")
    for q in range(4):
        a(f"buffer_load_dwordx4 {ar(A_K+4*q,4)}, v{P.V_L16}, s[{S_WS}:{S_WS+3}], s78 offen offset:{q*1024} sc1")
    a("s_waitcnt vmcnt(0)")
    for hh in range(2):
        O = 32 + 16*hh; m = 82 + hh; l = 80 + hh
        a(f"v_mfma_f32_32x32x16_bf16 v[64:79], {ar(A_K,4)}, {ar(A_Q+8*hh,4)}, 0")
        a(f"v_mfma_f32_32x32x16_bf16 v[64:79], {ar(A_K+4,4)}, {ar(A_Q+8*hh+4,4)}, v[64:79]")
        a("s_nop 15")
        a("v_max_f32 v84, v64, v65")
        for r in range(2, 16, 2): a(f"v_max3_f32 v84, v{64+r}, v{65+r}, v84")
        a(f"""
        v_mov_b32 v85, v84
        s_nop 1
        v_permlane32_swap_b32 v84, v85
        s_nop 1
        v_max3_f32 v84, v84, v85, v{m}
        v_sub_f32 v85, v{m}, v84
        v_exp_f32 v85, v85
        v_mov_b32 v{m}, v84
        v_mul_f32 v{l}, v{l}, v85
        """)
        for r in range(16):
            a(f"v_sub_f32 v{64+r}, v{64+r}, v84")
            a(f"v_exp_f32 v{64+r}, v{64+r}")
            a(f"v_mul_f32 v{O+r}, v{O+r}, v85")
        for r in range(8): a(f"v_cvt_pk_bf16_f32 v{64+r}, v{64+2*r}, v{65+2*r}")
        for r in range(8):
            a(f"v_lshlrev_b32 v86, 16, v{64+r}\nv_and_b32 v87, 0xffff0000, v{64+r}\nv_add_f32 v{l}, v{l}, v86\nv_add_f32 v{l}, v{l}, v87")
        a(f"v_mfma_f32_32x32x16_bf16 {vr(O,16)}, {ar(A_K+8,4)}, v[64:67], {vr(O,16)}")
        a(f"v_mfma_f32_32x32x16_bf16 {vr(O,16)}, {ar(A_K+12,4)}, v[68:71], {vr(O,16)}")
        a("s_nop 15")
    a(f"""
    s_add_u32 s78, s78, 4096
    s_cmp_lt_u32 s78, {WS_KV + 64*4096:#x}
    s_cbranch_scc1 KM_FB_LOOP
    v_mov_b32 v84, v80
    v_mov_b32 v85, v81
    s_nop 1
    v_permlane32_swap_b32 v80, v84
    v_permlane32_swap_b32 v81, v85
    s_nop 1
    v_add_f32 v80, v80, v84
    v_add_f32 v81, v81, v85
    s_branch KM_NORM
    KM_END:
    s_endpgm
    """)
    return a.text()
```

```python
from common import *
import math, struct

LDS_SP = 65536
K2_LDS = 163840

V_L16, V_L16B, V_KVR = 1, 2, 3
V_W = 4
V_SP, V_KP = 8, 12
V_LANE, V_OMG, V_G = 16, 18, 22
SB = [32, 48]; PB = [64, 72]
ACC = 128
A_O, A_L, A_SEL, A_Q, A_K, A_V = 0, 32, 40, 44, 60, 76
A_WR, RW = 92, 20
A_HR, RH = 172, 3
A_WX = 220
S_OUT, S_WS = 20, 24
S_HB, S_WB, S_KVB, S_XB = 12, 14, 16, 18
S_W, S_MT, S_NT, S_M0KV, S_M0SP = 36, 28, 29, 30, 31
S_WOB = 32
S_HF, S_HP, S_OF, S_OP = 8, 9, 10, 11
LDS_Q = 65536
NDOWN, NWO = 28, 8
NSLOT = 128

I = lambda text, vm=None, lg=None: dict(text=text, vm=vm, lg=lg)
W = lambda vm=(), lg=(): dict(text=None, needvm=list(vm), needlg=list(lg))
def adv64(s, n): return [I(f"s_add_u32 s{s}, s{s}, {n:#x}\ns_addc_u32 s{s+1}, s{s+1}, 0")]

def accr(J, i): return vr(ACC + (J*4 + i)*4, 4)
V_WX = 88
def wreg(sig, J):
    if sig == NDOWN + 7: return ar(A_WX + 4*J, 4)
    if sig == NDOWN + 6: return vr(V_WX + 4*J, 4)
    return ar(A_WR + 4*((8*sig + J) % RW), 4)
OREGS = [A_Q + 4*k for k in range(12)] + [A_O + 4*k for k in range(8)] + [A_HR + 4*k for k in range(4*RH)]
def hreg(sig, i):
    if sig >= NDOWN: return ar(OREGS[4*(sig - NDOWN) + i], 4)
    return ar(A_HR + 16*(sig % RH) + 4*i, 4)
def gemm_mfma(sig, J, i, first):
    return f"v_mfma_f32_16x16x32_bf16 {accr(J,i)}, {wreg(sig,J)}, {hreg(sig,i)}, {'0' if first else accr(J,i)}"
def h_load(sig, i):
    fl = " sc1"
    return I(f"global_load_dwordx4 {hreg(sig,i)}, v{V_L16}, s[{S_HB}:{S_HB+1}] offset:{i*1024}{fl}", vm=("h", sig, i))
def wsrc(sig):
    if sig < NDOWN + 2: return "ring"
    if sig < NDOWN + 5: return "sp"
    if sig < NDOWN + 6: return "kv"
    return "x"
def w_load(sig, J):
    src = wsrc(sig)
    if src == "ring":
        return I(f"global_load_dwordx4 {wreg(sig,J)}, v{V_W + J//2}, s[{S_WB}:{S_WB+1}] offset:{(J%2)*1024} sc1", vm=("w", sig, J))
    if src == "x":
        return I(f"global_load_dwordx4 {wreg(sig,J)}, v{V_W + J//2}, s[{S_XB}:{S_XB+1}] offset:{(J%2)*1024} sc1", vm=("w", sig, J))
    if src == "sp":
        return I(f"ds_read_b128 {wreg(sig,J)}, v{V_SP + J//2} offset:{(sig - NDOWN - 2)*8192 + (J%2)*1024}", lg=("w", sig, J))
    return I(f"ds_read_b128 {wreg(sig,J)}, v{V_KP + J//2} offset:{(sig - NDOWN - 5)*8192 + (J%2)*1024}", lg=("w", sig, J))
def w_need(sig, J):
    return W(vm=[("w", sig, J)]) if wsrc(sig) in ("ring", "x") else W(lg=[("w", sig, J)])
def w_dma(sig, J):
    return I(f"global_load_lds_dwordx4 v{V_L16 if J < 4 else V_L16B}, s[{S_XB}:{S_XB+1}] offset:{(J%4)*1024} sc1", vm=("wd", sig))
def w_dma_m0(sig, J):
    if wsrc(sig) == "sp": return I(f"s_add_u32 m0, s{S_M0SP}, {(sig - NDOWN - 2)*8192 + (J//4)*4096}")
    return I(f"s_add_u32 m0, s{S_M0KV}, {(J//4)*4096}")
def x_base(sig):
    return I(f"s_add_u32 s{S_XB}, s{S_WOB}, {(sig - NDOWN)*8192}\ns_addc_u32 s{S_XB+1}, s{S_WOB+1}, 0")
def qk(n, half):
    T = n // 2; Sx = SB[n % 2]
    c = "0" if half == 0 else vr(Sx, 16)
    return f"v_mfma_f32_32x32x16_bf16 {vr(Sx,16)}, {ar(A_K + 8*(T%2) + 4*half,4)}, {ar(A_Q + 8*(n%2) + 4*half,4)}, {c}"
def pv(n, half):
    T = n // 2; O = A_O + 16*(n % 2)
    c = "0" if (n < 2 and half == 0) else ar(O, 16)
    return f"v_mfma_f32_32x32x16_bf16 {ar(O,16)}, {ar(A_V + 8*(T%2) + 4*half,4)}, {vr(PB[n%2] + 4*half,4)}, {c}"
def summ(n, half):
    Lr = A_L + 4*(n % 2)
    c = "0" if (n < 2 and half == 0) else ar(Lr, 4)
    return f"v_mfma_f32_16x16x32_bf16 {ar(Lr,4)}, {ar(A_SEL,4)}, {vr(PB[n%2] + 4*half,4)}, {c}"
def kv_off(T): return ((T // 8) % 2)*32768 + (T % 8)*4096
def k_read(T, half):
    return I(f"ds_read_b128 {ar(A_K + 8*(T%2) + 4*half,4)}, v{V_KVR} offset:{kv_off(T) + half*1024}", lg=("k", T))
def v_read(T, half):
    return I(f"ds_read_b128 {ar(A_V + 8*(T%2) + 4*half,4)}, v{V_KVR} offset:{kv_off(T) + 2048 + half*1024}", lg=("v", T))
def kv_dma(stage, part, j):
    v = V_L16 if part == 0 else V_L16B
    return I(f"global_load_lds_dwordx4 v{v}, s[{S_KVB}:{S_KVB+1}] offset:{j*1024} sc1", vm=("kv", stage))

def xcost(x):
    t = x["text"] or "s_"
    if t.startswith("ds_"): return 4
    if t.startswith("global_"): return 5
    if t.startswith("buffer_"): return 8
    if t.startswith("v_"): return 4
    if "\n" in t: return 4
    return 0

def main_loop(NIN, g0, early=(), timed=()):
    NG = 32*NIN
    seq = []
    mu = 0
    for n in range(NSLOT):
        att = []
        if n + 1 < NSLOT: att += [(qk(n+1, 0), 32), (qk(n+1, 1), 32)]
        if n >= 1: att += [(pv(n-1, 0), 32), (summ(n-1, 0), 16), (pv(n-1, 1), 32), (summ(n-1, 1), 16)]
        hi = 0 if n < g0 else round(NG*(n + 1 - g0)/(NSLOT - g0))
        cnt = hi - mu
        for k, (t, p_) in enumerate(att):
            seq.append(dict(text=t, pipe=p_, slot=n, mu=None, k=k))
            want = round(cnt*(k + 1)/len(att))
            have = round(cnt*k/len(att))
            for _ in range(want - have):
                sig, J, i = mu // 32, (mu % 32) // 4, mu % 4
                seq.append(dict(text=gemm_mfma(sig, J, i, sig == 0), pipe=16, slot=n, mu=mu, k=None)); mu += 1
    assert mu == NG
    N = len(seq)
    gaps = [[] for _ in range(N)]
    pos_mu = {s["mu"]: g for g, s in enumerate(seq) if s["mu"] is not None}
    slot_start = {}
    for g, s in enumerate(seq): slot_start.setdefault(s["slot"], g)
    slot_start[NSLOT] = N
    busy = lambda G: any(xcost(x) or (x["text"] is None) for x in gaps[G]) or len(gaps[G]) >= 1
    def place(item, lo, hi=None):
        G = lo
        while G < N and gaps[G]: G += 1
        if hi is not None and G > hi:
            lo = min(lo, hi)
            G = min(range(lo, hi + 1), key=lambda g: (sum(xcost(x) + 1 for x in gaps[g]), g))
        assert G < N, (item, lo, hi, G)
        gaps[G].append(item); return G
    def place_cluster(items, lo, hi):
        cands = [g for g in range(lo, min(hi, N - 1) + 1) if not gaps[g]]
        big = [g for g in cands if seq[g]["pipe"] == 32]
        if big: G = big[0]
        elif cands: G = cands[0]
        else: G = min(range(lo, min(hi, N - 1) + 1), key=lambda g: (sum(xcost(x) + 1 for x in gaps[g]), g))
        gaps[G].extend(items); return G
    for m in range(NG):
        sig, J, i = m // 32, (m % 32) // 4, m % 4
        if i == 0:
            w = w_need(sig, J)
            if J == 0: w["needvm"] += [("h", sig, q) for q in range(4)]
            gaps[pos_mu[m] - 1].append(w)
    for n in range(0, NSLOT - 2, 2):
        gaps[slot_start[n + 1] - 1].append(W(lg=[("k", n // 2 + 1)]))
    gaps[slot_start[NSLOT - 1] - 1].append(W(lg=[("v", NSLOT // 2 - 1)]))
    for it in range(7):
        G = slot_start[16*it + 14]
        gaps[G] = [W(vm=[("kv", it + 1)], lg=[("v", 8*it + 7)]), I("s_barrier")] + gaps[G]
    for n in range(NSLOT):
        T = n // 2 + 1
        if T >= NSLOT // 2: continue
        lo = slot_start[n] + (1 if n % 16 == 14 else 0) + 1
        G = place(k_read(T, 0) if n % 2 == 0 else v_read(T, 0), lo, slot_start[n + 1] - 2)
        place(k_read(T, 1) if n % 2 == 0 else v_read(T, 1), G + 2, slot_start[n + 1] - 2)
    lastw = lasth = -1
    G = -1
    for k in range(0, len(early), 4):
        G = place_cluster(early[k:k+4], G + 1, G + 6)
    G = 0
    for sl, items in timed:
        G = place_cluster(items, max(slot_start[sl] + 1, G + 1), max(slot_start[sl + 1] - 2, G + 2))
    for m in range(15, NG, 16):
        sig, J = m // 32, (m % 32) // 4
        G = pos_mu[m]
        items = []
        for q in range(J - 3, J + 1):
            phi = 8*sig + q + RW
            items.append((phi // 8, phi % 8))
        s2, J2 = items[0]
        if J2 == 0:
            x = adv64(S_WB, 8192)[0]
            if s2 == NDOWN: x = I(f"s_mov_b64 s[{S_WB}:{S_WB+1}], s[{S_WOB}:{S_WOB+1}]")
            assert lastw + 1 <= G - 1
            place(x, max(lastw + 1, G - 8), G - 1)
        lastw = place_cluster([w_load(a_, b_) for a_, b_ in items], G, G + 6)
        if J == 7 and sig + RH < NDOWN:
            G = place(adv64(S_HB, 8192)[0], pos_mu[m] - 6, pos_mu[m])
            place_cluster([h_load(sig + RH, i) for i in range(4)], min(lastw + 6, N - 1), lastw + 14)
    for it in range(7):
        for part in range(2):
            s0 = 16*it + (7 if it == 0 else 8 if it == 1 else 1) + (2 if it == 1 else 3)*part
            G = place_cluster([kv_dma(it + 1, part, j) for j in range(4)], slot_start[s0] + 3, slot_start[s0 + 1] + 3)
            place(I(f"s_add_u32 m0, s{S_M0KV}, {((it+1)%2)*32768 + part*4096}"), G - 3, G - 1)
        place(adv64(S_KVB, 32768)[0], G + 1)
    jobs = [(sig, J0) for sig in (NDOWN + 2, NDOWN + 3, NDOWN + 4, NDOWN + 6, NDOWN + 7) for J0 in (0, 4)]
    where = [16*it + sl for it in range(2, 7) for sl in (9, 12)]
    jobs += [(NDOWN + 5, 0), (NDOWN + 5, 4)]; where += [16*7 + 1, 16*7 + 4]
    for (sig, J0), sl in zip(jobs, where):
        dma = wsrc(sig) != "x"
        G = place_cluster([(w_dma if dma else w_load)(sig, J) for J in range(J0, J0 + 4)], slot_start[sl] + 4, slot_start[sl + 1] + 4)
        if dma: place(w_dma_m0(sig, J0), G - 3, G - 1)
        if J0 == 0: place(x_base(sig), G - 4, G - 1)
    V = []
    for n in range(NSLOT):
        Sx, Px = SB[n % 2], PB[n % 2]
        for r in range(0, 16, 2):
            V += [(8, f"v_exp_f32 v{Sx+r}, v{Sx+r}", n, "e"), (8, f"v_exp_f32 v{Sx+r+1}, v{Sx+r+1}", n, "e")]
            if r >= 2: V.append((4, f"v_cvt_pk_bf16_f32 v{Px+r//2-1}, v{Sx+r-2}, v{Sx+r-1}", n, r//2 - 1))
        V.append((4, f"v_cvt_pk_bf16_f32 v{Px+7}, v{Sx+14}, v{Sx+15}", n, 7))
    vidx = {(n, k): i for i, (_, _, n, k) in enumerate(V) if k != "e"}
    for g, sq in enumerate(seq):
        n, k = sq["slot"], sq["k"]
        dep = -1
        if k is not None:
            kk = k if n + 1 < NSLOT else k + 2
            if kk == 0 and n >= 1: dep = vidx[(n - 1, 7)]
            if kk in (2, 3): dep = vidx[(n - 1, 3)]
            if kk in (4, 5): dep = vidx[(n - 1, 7)]
            sq["kk"] = kk
        sq["dep"] = dep
    pos_att = {(sq["slot"], sq["kk"]): g for g, sq in enumerate(seq) if sq["k"] is not None}
    tr = Trace()
    t = valu = pipe = 0
    ig = iv = 0
    cnt = 0
    emitted_at = {}
    vem_at = {}
    while ig < N or iv < len(V):
        m_ok = ig < N and seq[ig]["dep"] < iv and (seq[ig]["dep"] < 0 or cnt - vem_at[seq[ig]["dep"]] >= 2)
        v_ok = False
        if iv < len(V):
            c, txt_, n, k = V[iv]
            v_ok = True
            if n >= 1 and k == "e":
                g = pos_att[(n - 1, 1)]
                v_ok = g in emitted_at and cnt - emitted_at[g][0] >= 12 and max(t, valu) >= emitted_at[g][1] + 56
            if k != "e" and n >= 2:
                g = pos_att[(n - 1, 3 if k < 4 else 5)]
                v_ok = g in emitted_at
        now = max(t, valu)
        if m_ok and (pipe <= now or not v_ok):
            s_ = max(now, pipe); t = s_ + 4; valu = s_ + 8; pipe = s_ + seq[ig]["pipe"]
            tr.ins(seq[ig]["text"]); cnt += 1; emitted_at[ig] = (cnt, s_)
            prev = ""
            for x in gaps[ig]:
                tr.items.append(x); cnt += 1
                tx = x["text"] or "s_"
                if tx.startswith("ds_"): t += 4 if prev.startswith("ds_") else 8
                elif tx.startswith("global_"): t += 4 if prev.startswith("global_") else 14
                elif tx.startswith("buffer_"): t += 12
                else: t += 4*(1 + tx.count("\n"))
                prev = tx
            ig += 1
        elif v_ok:
            t = valu = now + c
            tr.ins(txt_); cnt += 1; vem_at[iv] = cnt; iv += 1
        else:
            tr.ins("s_nop 0"); cnt += 1; t += 4
    txt = [x["text"] for x in tr.items if x["text"]]
    for k in range(1, len(txt)):
        if txt[k].startswith("v_cvt") and txt[k-1].startswith("v_exp"):
            d = txt[k-1].split()[1].rstrip(",")
            assert d + "," not in txt[k] + "," or txt[k].split()[1].rstrip(",") == d, (txt[k-1], txt[k])
    return tr

def gemm_step(sig, extra=()):
    gaps = [[] for _ in range(32)]
    pre = []
    w = w_need(sig, 0); w["needvm"] += [("h", sig, 0)]
    pre.append(w)
    for i in range(1, 4): gaps[i - 1].append(W(vm=[("h", sig, i)]))
    for J in range(8):
        if J % 4 == 3:
            for q in range(J - 3, J + 1):
                phi = 8*sig + q + RW
                s2, J2 = phi // 8, phi % 8
                if s2 >= NDOWN + 6: continue
                if wsrc(s2) == "ring" and J2 == 0:
                    x = adv64(S_WB, 8192)[0]
                    if s2 == NDOWN: x = I(f"s_mov_b64 s[{S_WB}:{S_WB+1}], s[{S_WOB}:{S_WOB+1}]")
                    gaps[4*J + 1].append(x)
                if wsrc(s2) in ("sp", "kv"):
                    if J2 == 0: gaps[4*J + 2].append(W(vm=[("wd", s2)]))
                    gaps[4*J + 3].append(w_load(s2, J2))
                else:
                    gaps[4*J + 3].append(w_load(s2, J2))
        if J < 7: gaps[4*J + 3].insert(0, w_need(sig, J + 1))
    if sig + RH < NDOWN:
        gaps[29].append(adv64(S_HB, 8192)[0])
        gaps[31].extend(h_load(sig + RH, i) for i in range(4))
    for k, grp in enumerate(extra):
        gaps[[5, 21][k]].extend(grp)
    tr = Trace()
    tr.items.extend(pre)
    for mu in range(32):
        tr.ins(gemm_mfma(sig, mu // 4, mu % 4, False))
        tr.items.extend(gaps[mu])
    return tr
```

```python
from common import *
import p2
from p2 import I, W, adv64
import math, struct

KM = NAME + "_kernel"
LDS_X = 0; LDS_W = 65536
LDS_R = 131072
LDS_QS = LDS_R; LDS_KW = LDS_R + 4096; LDS_T = LDS_R + 16384
KM_LDS = 163840
NST = 16
OOB = 0x7f000000

def accn(j, i): return ("v", 32 + (j*8 + i)*4) if j < 7 else ("a", 128 + i*4)
def acc(j, i):
    p, b = accn(j, i); return vr(b, 4, p)
XF = [0, 64]; WF = [32, 96]
KVW, KVA, A_GX, A_GW, A_T, A_KX, A_DUM = 160, 168, 172, 188, 204, 208, 255
V_DQ, V_DX, V_DW = 0, 2, 6
V_RX = [10, 11]
V_RW, V_R3, V_R7, V_RKW, V_T, V_KX, V_LANE = 12, 15, 16, 17, 18, 19, 20
V_GROW, V_L16, V_RT, V_DT, V_DK = 26, 27, 28, 29, 30
S_WQ, S_X, S_G, S_U, S_KV, S_WS, S_GW, S_TSRD, S_WD, S_WO, S_DBG = 4, 8, 12, 16, 20, 24, 28, 32, 52, 76, 72
S_W, S_MT, S_NT, S_OK = 36, 37, 38, 39
S_OX, S_OX2, S_OG, S_OQ, S_TSRCS = 40, 41, 42, 43, 44
S_M0X, S_M0W, S_M0K, S_M0T, S_M0Q = 45, 46, 47, 51, 56
S_TOFF, S_TSTEP, S_TOG = 48, 49, 50
S_TSRC, S_TDST, S_TSRC2, S_TDST2, S_GROW = 3, 94, 95, 100, 101
S_EF = 88
S_TAG = 89
A_TAG = 254
S_FLG = 57

KVD = 1
def dma_group(s, ntw):
    b = s % 2
    g = []
    nt = " nt" if ntw else ""
    for half in range(2):
        so = S_OX if half == 0 else S_OX2
        for j in range(4):
            pre = f"s_add_u32 m0, s{S_M0X}, {b*32768 + half*4096}" if j == 0 else None
            g.append((pre, I(f"buffer_load_dwordx4 v{V_DX+j}, s[{S_X}:{S_X+3}], s{so} offen offset:{j*1024} lds", vm=("st", s))))
    for part in range(2):
        srdn = S_G if part == 0 else S_U
        for j in range(4):
            pre = f"s_add_u32 m0, s{S_M0W}, {b*32768 + part*16384}" if j == 0 else None
            g.append((pre, I(f"buffer_load_dwordx4 v{V_DW+j}, s[{srdn}:{srdn+3}], s{S_OG} offen offset:{j*1024}{nt} lds", vm=("st", s))))
    g.append((f"s_add_u32 m0, s{S_M0Q}, {b*2048}", I(f"buffer_load_dwordx4 v{V_DQ}, s[{S_WQ}:{S_WQ+3}], s{S_OQ} offen{nt} lds", vm=("st", s))))
    adv = {7: [f"s_add_u32 s{S_OX}, s{S_OX}, 128", f"s_add_u32 s{S_OX2}, s{S_OX2}, 128"],
           15: [f"s_add_u32 s{S_OG}, s{S_OG}, {64*7168}"], 16: [f"s_add_u32 s{S_OQ}, s{S_OQ}, 0x20000"]}
    if 1 <= s - KVD <= 8:
        g.append((f"s_add_u32 m0, s{S_M0K}, {b*8192}", I(f"buffer_load_dwordx4 v{V_DK}, s[{S_KV}:{S_KV+3}], s{S_OK} offen lds", vm=("st", s))))
        adv[17] = [f"s_add_u32 s{S_OK}, s{S_OK}, 8192"]
    return g, adv
def xread(s, kk, i):
    return I(f"ds_read_b128 {ar(XF[kk]+4*i,4)}, v{V_RX[kk]} offset:{(s%2)*32768 + i*2048}", lg=("fr", s, kk))
def wread(s, kk, j, h):
    if j % 4 == 3:
        reg, off = (V_R3 if j == 3 else V_R7), h*1024 + kk*8192
    else:
        reg, off = V_RW + (j & 3), (s % 2)*32768 + h*1024 + kk*8192 + (16384 if j >= 4 else 0)
    return I(f"ds_read_b64_tr_b16 {ar(WF[kk]+4*j+2*h,2)}, v{reg} offset:{off}", lg=("fr", s, kk))
def reads(s, kk):
    r = [wread(s, kk, 0, 0), wread(s, kk, 0, 1)] + [xread(s, kk, i) for i in range(8)]
    for j in range(1, 8): r += [wread(s, kk, j, 0), wread(s, kk, j, 1)]
    return r
def mfma(kk, j, i, first=False):
    return f"v_mfma_f32_16x16x32_bf16 {acc(j,i)}, {ar(WF[kk]+4*j,4)}, {ar(XF[kk]+4*i,4)}, {'0' if first else acc(j,i)}"
def vcap(items):
    c = 2
    for x in items:
        t = x["text"] or "s_"
        if t.startswith("ds_"): c -= 1
        elif t.startswith(("buffer_", "global_")): c -= 2
        elif t.startswith("v_"): c -= 1
    return max(c, 0)
from k1 import g_ops as _g_ops
import k1 as _k1
_k1.A_GX, _k1.A_GW = A_GX, A_GW

def gen(dbg=False, pads=14, touch=2, nhead=13, p1=13, npro0=8, gs=11, tq0=5, ntw=False, ntt=False, exp='',
        NIN=25, g0=22, hsig=7, hpoll=15, opre=2, nb=(1, 1)):
    esig = KVD + 11
    a = Asm()
    L = f"v{V_LANE}"
    a("s_cmp_ge_u32 s2, 256")
    a("s_cbranch_scc1 KM_END")
    st = Stamps(a, dbg)
    st.stamp()
    a("s_memrealtime s[72:73]")
    a("s_load_dwordx8 s[56:63], s[0:1], 0")
    a("s_load_dwordx8 s[64:71], s[0:1], 48")
    a("s_load_dwordx2 s[74:75], s[0:1], 32")
    a("s_load_dwordx4 s[96:99], s[0:1], 80")
    a("s_load_dwordx2 s[86:87], s[0:1], 96")
    code_prefetch(a, "KM", 32, "a255", 3)
    a(f"""
    v_and_b32 {L}, 63, v0
    v_lshrrev_b32 v1, 6, v0
    s_and_b32 s80, s2, 7
    v_readfirstlane_b32 s{S_W}, v1
    s_lshr_b32 s81, s2, 3
    s_and_b32 s{S_MT}, s81, 7
    s_lshr_b32 s83, s81, 3
    s_lshl_b32 s80, s80, 2
    s_add_u32 s{S_NT}, s80, s83
    s_mul_i32 s85, s{S_NT}, 224
    s_mov_b32 s{S_OG}, 0
    s_mov_b32 s{S_OQ}, 0
    v_lshrrev_b32 v21, 3, {L}
    s_lshl_b32 s81, s{S_MT}, 8
    s_lshl_b32 s82, s{S_W}, 6
    s_add_u32 s81, s81, s82
    v_add_u32 v21, s81, v21
    v_lshlrev_b32 v21, 11, v21
    v_and_b32 v22, 7, {L}
    v_lshrrev_b32 v23, 4, {L}
    v_xor_b32 v22, v22, v23
    v_lshlrev_b32 v22, 4, v22
    v_xor_b32 v24, 64, v22
    """)
    for j in range(4):
        a(f"v_add_u32 v{V_DX+j}, v21, {'v22' if j % 2 == 0 else 'v24'}")
        if j: a(f"v_add_u32 v{V_DX+j}, {j*8*2048 - j*1024}, v{V_DX+j}")
    a(f"""
    s_mov_b32 s{S_OX}, 0
    s_mov_b32 s{S_OX2}, 65536
    s_mov_b32 s{S_OK}, 0
    s_lshl_b32 s81, s{S_W}, 4
    s_movk_i32 s84, 7168
    v_add_u32 v21, s81, v23
    v_mul_lo_u32 v21, v21, s84
    v_add_u32 v21, s85, v21
    v_and_b32 v25, 1, {L}
    v_lshl_add_u32 v21, v25, 4, v21
    v_bfe_u32 v22, {L}, 1, 3
    v_xor_b32 v22, v22, v23
    v_xor_b32 v24, 4, v22
    v_min_u32 v22, 6, v22
    v_min_u32 v24, 6, v24
    v_lshl_add_u32 v{V_DW}, v22, 5, v21
    v_add_u32 v{V_DW+1}, {4*7168 - 1024}, v{V_DW}
    v_lshl_add_u32 v{V_DW+2}, v24, 5, v21
    v_add_u32 v{V_DW+2}, {2*(4*7168 - 1024)}, v{V_DW+2}
    v_add_u32 v{V_DW+3}, {4*7168 - 1024}, v{V_DW+2}
    s_lshl_b32 s{S_M0X}, s{S_W}, 13
    s_lshl_b32 s{S_M0W}, s{S_W}, 12
    s_add_u32 s{S_M0W}, s{S_M0W}, {LDS_W}
    s_lshl_b32 s{S_M0K}, s{S_W}, 10
    s_add_u32 s{S_M0T}, s{S_M0K}, {LDS_T}
    s_add_u32 s{S_M0K}, s{S_M0K}, {LDS_KW}
    s_lshr_b32 s81, s{S_W}, 1
    s_and_b32 s80, s{S_W}, 1
    """)
    a(f"""
    v_lshlrev_b32 v21, 3, v23
    v_bfe_u32 v22, {L}, 2, 2
    v_add_u32 v21, v21, v22
    s_lshl_b32 s82, s81, 5
    s_lshl_b32 s83, s80, 2
    s_add_u32 s82, s82, s83
    v_add_u32 v21, s82, v21
    v_lshlrev_b32 v21, 11, v21
    v_bfe_u32 v22, {L}, 1, 1
    v_bfe_u32 v24, {L}, 4, 1
    v_xor_b32 v22, v22, v24
    v_lshl_add_u32 v21, v22, 5, v21
    v_lshl_add_u32 v21, v25, 4, v21
    s_lshl_b32 s82, s{S_NT}, 6
    v_add_u32 v{V_DQ}, s82, v21
    s_lshl_b32 s90, s81, 13
    s_lshl_b32 s83, s80, 10
    s_add_u32 s90, s90, s83
    s_waitcnt lgkmcnt(0)
    """)
    st.n and None
    a(f"s_or_b32 s{S_TAG}, s72, 1")
    srd(a, S_X, 56, 2048*1024*2)
    srd(a, S_G, 64, 1024*3584*2)
    srd(a, S_U, 66, 1024*3584*2)
    srd(a, S_WQ, 58, 1024*1024*2)
    a(f"s_add_u32 s{S_M0Q}, s90, {LDS_QS}")
    st.stamp()
    pro = Trace()
    def dma_items(s, lo, hi):
        g, adv = dma_group(s, ntw)
        out = []
        for k in range(lo, min(hi, len(g))):
            pre, it = g[k]
            out.append(([I(pre), I("s_nop 0")] if pre else []) + [it] + [I(x) for x in adv.get(k, [])])
        return out
    p = Asm()
    p(f"""
    s_and_b32 s82, s{S_NT}, 2
    s_cmp_eq_u32 s82, 0
    s_cselect_b32 s{S_KV}, s60, s62
    s_cselect_b32 s{S_KV+1}, s61, s63
    s_and_b32 s{S_KV+1}, s{S_KV+1}, 0xffff
    s_mov_b32 s{S_KV+2}, 65536
    s_mov_b32 s{S_KV+3}, 0x00020000
    """)
    srd(p, S_WS, 86, WS_SIZE)
    srd(p, S_GW, 70, 2048)
    srd(p, S_WD, 68, 3584*1024*2)
    srd(p, S_WO, 74, 1024*1024*2)
    srd(p, S_DBG, 98, 256)
    p(f"""
    v_lshrrev_b32 v21, 1, {L}
    v_lshlrev_b32 v21, 6, v21
    v_lshl_add_u32 v21, v25, 4, v21
    s_and_b32 s82, s{S_NT}, 1
    s_lshl_b32 s82, s82, 5
    s_lshl_b32 s83, s{S_W}, 11
    s_add_u32 s82, s82, s83
    v_add_u32 v{V_DK}, s82, v21
    s_lshl_b32 s82, s{S_MT}, 8
    s_lshr_b32 s83, s{S_NT}, 2
    s_lshl_b32 s83, s83, 5
    s_add_u32 s82, s82, s83
    s_lshl_b32 s83, s80, 4
    s_add_u32 s82, s82, s83
    s_lshl_b32 s82, s82, 11
    s_lshl_b32 s83, s81, 7
    s_add_u32 s82, s82, s83
    v_and_b32 v21, 15, {L}
    v_lshlrev_b32 v22, 11, v21
    v_lshl_add_u32 v22, v23, 4, v22
    v_add_u32 v{V_KX}, s82, v22
    """)
    p(f"""
    v_lshlrev_b32 v{V_L16}, 4, {L}
    s_lshl_b32 s83, s81, 14
    v_lshlrev_b32 v22, 7, v21
    v_lshrrev_b32 v24, 1, v21
    v_xor_b32 v24, v24, v23
    v_lshl_add_u32 v22, v24, 4, v22
    v_add_u32 v{V_RX[0]}, s83, v22
    v_xor_b32 v{V_RX[1]}, 64, v{V_RX[0]}
    v_bfe_u32 v21, {L}, 2, 2
    v_lshl_add_u32 v22, v23, 3, v21
    v_and_b32 v24, 3, {L}
    v_lshlrev_b32 v24, 3, v24
    v_lshl_add_u32 v{V_RKW}, v22, 5, v24
    s_lshl_b32 s83, s81, 11
    s_add_u32 s83, s83, {LDS_KW}
    v_add_u32 v{V_RKW}, s83, v{V_RKW}
    v_lshl_add_u32 v22, v22, 8, v24
    v_add_u32 v22, {LDS_W}, v22
    v_and_b32 v25, 1, v23
    v_lshl_or_b32 v1, v25, 2, v21
    s_lshl_b32 s82, s80, 2
    """)
    for j in range(4):
        p(f"s_add_u32 s83, s82, {j}")
        p(f"v_xor_b32 v{V_T}, s83, v1")
        p(f"v_lshl_add_u32 v{V_RW+j}, v{V_T}, 5, v22")
    p(f"""
    v_add_u32 v{V_R7}, 16384, v{V_R3}
    v_lshl_add_u32 v22, v23, 2, v21
    v_lshl_add_u32 v22, v22, 6, v24
    v_lshl_add_u32 v22, v25, 5, v22
    v_add_u32 v22, {LDS_QS}, v22
    v_xor_b32 v1, 32, v22
    s_cmp_eq_u32 s80, 1
    s_cselect_b64 vcc, -1, 0
    s_movk_i32 s{S_TOG}, 2048
    s_cselect_b32 s{S_TOG}, s{S_TOG}, 0x8000
    v_cndmask_b32 v{V_R3}, v{V_R3}, v22, vcc
    v_cndmask_b32 v{V_R7}, v{V_R7}, v1, vcc
    """)
    p(f"""
    v_lshrrev_b32 v1, 3, {L}
    v_lshlrev_b32 v1, 11, v1
    v_bfe_u32 v25, {L}, 1, 2
    v_xor_b32 v25, v25, v23
    v_lshl_add_u32 v1, v25, 5, v1
    v_and_b32 v25, 1, {L}
    v_lshl_add_u32 v{V_DT}, v25, 4, v1
    v_lshl_add_u32 v1, v23, 2, v21
    v_bfe_u32 v25, v1, 1, 2
    v_xor_b32 v25, s{S_W}, v25
    v_lshlrev_b32 v1, 7, v1
    v_lshl_add_u32 v1, v25, 5, v1
    v_add_u32 v1, v1, v24
    v_add_u32 v{V_RT}, {LDS_T}, v1
    s_lshr_b32 s82, s2, 4
    s_and_b32 s83, s2, 15
    s_mul_i32 s{S_TSRC}, s82, {224*2048}
    s_lshl_b32 s90, s83, 7
    s_add_u32 s{S_TSRC}, s{S_TSRC}, s90
    s_lshl_b32 s{S_TSRC2}, s82, 17
    s_add_u32 s{S_TSRC2}, s{S_TSRC2}, s90
    s_mul_i32 s90, s80, {112*2048}
    s_add_u32 s{S_TSRCS}, s{S_TSRC}, s90
    s_lshl_b32 s90, s81, 13
    s_add_u32 s{S_TSRCS}, s{S_TSRCS}, s90
    s_add_u32 s{S_TSRCS}, s{S_TSRCS}, {96*2048}
    s_lshl_b32 s90, s{S_W}, 14
    s_add_u32 s{S_TSRC}, s{S_TSRC}, s90
    s_lshl_b32 s90, s80, 15
    s_add_u32 s{S_TSRC2}, s{S_TSRC2}, s90
    s_lshl_b32 s90, s81, 14
    s_add_u32 s{S_TSRC2}, s{S_TSRC2}, s90
    s_lshr_b32 s90, s83, 1
    s_mul_i32 s90, s90, {144*8192}
    s_and_b32 s83, s83, 1
    s_lshl_b32 s83, s83, 12
    s_add_u32 s90, s90, s83
    s_lshl_b32 s83, s{S_W}, 10
    s_add_u32 s90, s90, s83
    s_add_u32 s90, s90, {WS_WT:#x}
    s_mul_i32 s{S_TDST}, s82, {7*8192}
    s_add_u32 s{S_TDST}, s{S_TDST}, s90
    s_lshl_b32 s{S_TDST2}, s82, 14
    s_add_u32 s{S_TDST2}, s{S_TDST2}, s90
    s_add_u32 s{S_TDST2}, s{S_TDST2}, {112*8192}
    s_lshl_b32 s82, s2, 3
    s_lshl_b32 s83, s{S_W}, 1
    s_add_u32 s82, s82, s83
    s_lshl_b32 s{S_GROW}, s82, 11
    v_lshrrev_b32 v1, 5, {L}
    v_add_u32 v{V_GROW}, s82, v1
    v_lshlrev_b32 v{V_GROW}, 3, v{V_GROW}
    v_add_u32 v{V_GROW}, {WS_G:#x}, v{V_GROW}
    s_lshl_b32 s82, s{S_MT}, 2
    s_add_u32 s82, s82, s{S_W}
    s_lshl_b32 s82, s82, 5
    s_add_u32 s82, s82, s{S_NT}
    s_lshl_b32 s82, s82, 7
    s_add_u32 s{S_FLG}, s82, {WS_FLAG:#x}
    """)
    if touch:
        p(f"""
        s_and_b32 s82, s{S_NT}, 3
        s_lshl_b32 s82, s82, 6
        s_lshl_b32 s83, s{S_MT}, 8
        s_add_u32 s82, s82, s83
        v_add_u32 v25, s82, {L}
        v_lshlrev_b32 v25, 11, v25
        s_lshl_b32 s82, s{S_MT}, 3
        v_bfe_u32 v24, {L}, 2, 3
        v_add_u32 v24, s82, v24
        v_lshlrev_b32 v21, 11, v24
        v_mul_lo_u32 v24, v24, s84
        v_and_b32 v1, 3, {L}
        v_lshlrev_b32 v1, 7, v1
        v_min_u32 v1, 220, v1
        v_add3_u32 v24, v24, v1, s85
        s_lshl_b32 s82, s{S_NT}, 6
        v_add_u32 v21, s82, v21
        s_mov_b32 s{S_TSTEP}, {64*7168}
        s_cmp_eq_u32 s{S_W}, 0
        s_cselect_b64 vcc, -1, 0
        s_cselect_b32 s{S_TSRD}, s{S_X}, s{S_G}
        s_cselect_b32 s{S_TSRD+1}, s{S_X+1}, s{S_G+1}
        s_cselect_b32 s{S_TSRD+2}, s{S_X+2}, s{S_G+2}
        s_cselect_b32 s{S_TSTEP}, 128, s{S_TSTEP}
        v_cndmask_b32 v{V_T}, v24, v25, vcc
        s_cmp_eq_u32 s{S_W}, 2
        s_cselect_b32 s{S_TSRD}, s{S_U}, s{S_TSRD}
        s_cselect_b32 s{S_TSRD+1}, s{S_U+1}, s{S_TSRD+1}
        s_cmp_eq_u32 s{S_W}, 3
        s_cselect_b64 vcc, -1, 0
        s_cselect_b32 s{S_TSRD}, s{S_WQ}, s{S_TSRD}
        s_cselect_b32 s{S_TSRD+1}, s{S_WQ+1}, s{S_TSRD+1}
        s_cselect_b32 s{S_TSRD+2}, s{S_WQ+2}, s{S_TSRD+2}
        s_cselect_b32 s{S_TSTEP}, 0x20000, s{S_TSTEP}
        v_cndmask_b32 v{V_T}, v{V_T}, v21, vcc
        s_mov_b32 s{S_TSRD+3}, 0x00020000
        s_mul_i32 s{S_TOFF}, s{S_TSTEP}, {touch + 1}
        """)
    groups = []
    for l in [l.strip() for l in p.lines]:
        if groups and l.startswith(("s_cselect", "s_addc", "v_cndmask", "s_movk_i32 s50")): groups[-1].append(l)
        else: groups.append([l])
    dm = dma_items(0, 0, 17) + dma_items(1, 0, p1)
    for grp in dm[:npro0]: pro.items.extend(grp)
    dm = dm[npro0:]
    per = len(groups) / len(dm)
    gi = 0
    for k, grp in enumerate(dm):
        while gi < len(groups) and gi < (k + 1)*per:
            for l in groups[gi]: pro.ins(l)
            gi += 1
        pro.items.extend(grp)
    pro.raw(f"""
    v_and_b32 v1, 31, {L}
    v_lshlrev_b32 v1, 7, v1
    s_lshr_b32 s82, s2, 3
    s_and_b32 s82, s82, 15
    s_lshl_b32 s82, s82, 12
    """)
    one_time = [I(f"buffer_load_dword a{A_DUM}, v1, s[{S_KV}:{S_KV+3}], s82 offen"), I(f"buffer_load_dword a{A_DUM}, v1, s[{S_GW}:{S_GW+3}], 0 offen")]
    touch_ins = lambda: I(f"buffer_load_dword a{A_DUM}, v{V_T}, s[{S_TSRD}:{S_TSRD+3}], s{S_TOFF} offen", vm=("touch", 0))
    touch_adv = f"s_add_u32 s{S_TOFF}, s{S_TOFF}, s{S_TSTEP}"
    pro2 = Trace()
    pro2.wait(vm=[("st", 0)])
    pro2.ins("s_barrier")
    pro2.items.extend(reads(0, 0))

    gfast, gslow = _g_ops()
    GSPLIT = 70
    c_q = struct.unpack("<I", struct.pack("<f", math.log2(math.e) / math.sqrt(32.0)))[0]
    kvfin = [f"v_accvgpr_read_b32 v{21+r}, a{KVA+r}" for r in range(4)]
    for r in range(4): kvfin += [f"v_accvgpr_read_b32 v1, a{KVW+r}", f"v_add_f32 v{21+r}, v{21+r}, v1", f"v_mul_f32 v{21+r}, s84, v{21+r}"]
    kvfin += ["v_cvt_pk_bf16_f32 v22, v21, v22", "v_cvt_pk_bf16_f32 v23, v23, v24",
              f"v_and_b32 v1, 15, {L}", "v_lshlrev_b32 v1, 4, v1", f"v_bfe_u32 v21, {L}, 4, 1", "v_lshl_add_u32 v1, v21, 9, v1",
              f"v_lshrrev_b32 v21, 5, {L}", "v_lshl_add_u32 v1, v21, 3, v1",
              f"buffer_store_dwordx2 v[22:23], v1, s[{S_WS}:{S_WS+3}], s82 offen offset:2048 sc1",
              f"v_bfe_u32 v24, {L}, 3, 1", "v_lshlrev_b32 v24, 10, v24", f"v_bfe_u32 v21, {L}, 2, 1", "v_lshl_add_u32 v24, v21, 9, v24",
              f"v_lshrrev_b32 v21, 4, {L}", "v_lshl_add_u32 v24, v21, 6, v24", f"v_and_b32 v21, 3, {L}", "v_lshl_add_u32 v24, v21, 1, v24",
              f"buffer_store_short v22, v24, s[{S_WS}:{S_WS+3}], s83 offen sc1",
              f"buffer_store_short_d16_hi v22, v24, s[{S_WS}:{S_WS+3}], s83 offen offset:16 sc1",
              f"buffer_store_short v23, v24, s[{S_WS}:{S_WS+3}], s83 offen offset:32 sc1",
              f"buffer_store_short_d16_hi v23, v24, s[{S_WS}:{S_WS+3}], s83 offen offset:48 sc1"]
    kvsal = f"""s_lshl_b32 s82, s{S_MT}, 3
    s_lshr_b32 s83, s{S_NT}, 2
    s_add_u32 s82, s82, s83
    s_lshl_b32 s82, s82, 12
    s_add_u32 s82, s82, {WS_KV:#x}
    s_and_b32 s85, s{S_NT}, 1
    s_lshl_b32 s83, s85, 3
    s_add_u32 s83, s83, s82
    s_lshl_b32 s85, s85, 8
    s_add_u32 s82, s82, s85
    s_lshl_b32 s85, s{S_W}, 10
    s_add_u32 s82, s82, s85
    s_lshl_b32 s85, s{S_W}, 8
    s_add_u32 s83, s83, s85
    s_and_b32 s85, s{S_NT}, 2
    s_cmp_eq_u32 s85, 0
    s_cselect_b32 s84, {c_q:#x}, 1.0
    s_cselect_b32 s82, {OOB:#x}, s82
    s_cselect_b32 s83, s83, {OOB:#x}
    s_cmp_ge_u32 s{S_W}, 2
    s_cselect_b32 s82, {OOB:#x}, s82
    s_cselect_b32 s83, {OOB:#x}, s83""".split("\n")
    kvsal = [x.strip() for x in kvsal]
    kvsal = kvsal[:-7] + ["\n".join(kvsal[-7:-3]), "\n".join(kvsal[-3:])]
    segs = []
    grest = []
    def tstore(q):
        so = S_TDST if q < 7 else S_TDST2
        return [I(f"buffer_store_dwordx4 {ar(A_T,4)}, v{V_L16}, s[{S_WS}:{S_WS+3}], s{so} offen sc1", vm=("ts", q)), I(f"s_add_u32 s{so}, s{so}, 8192")]
    for s in range(NST - 1):
        tr = Trace()
        gaps = [[] for _ in range(66)]
        rl = reads(s, 1)
        u = s - KVD
        if 1 <= u <= 8:
            for e in range(2):
                for h in range(2):
                    rl.append(I(f"ds_read_b64_tr_b16 {ar(KVW+4*e+2*h,2)}, v{V_RKW} offset:{(s%2)*8192 + e*1024 + h*128}", lg=("kvf", s)))
        if u == 9:
            gaps[1].append(I(f"v_add_u32 v21, {LDS_KW + 8192*(s%2)}, v{V_L16}"))
            gaps[3].append(I(f"s_lshl_b32 s82, s{S_W}, 10")); gaps[5].append(I("v_add_u32 v22, s82, v21"))
            gaps[7].append(I("s_xor_b32 s82, s82, 2048")); gaps[9].append(I("v_add_u32 v21, s82, v21"))
            rl.append(I(f"ds_write_b128 v22, {ar(KVA,4)}", lg=("kvf", s)))
        for k, it in enumerate(rl): gaps[2*k].append(it)
        gaps[57].append(I(f"v_xor_b32 v{V_R3}, s{S_TOG}, v{V_R3}")); gaps[59].append(I(f"v_xor_b32 v{V_R7}, s{S_TOG}, v{V_R7}"))
        g, adv = dma_group(s + 1, ntw)
        lo = p1 if s == 0 else nhead
        G = 11 if u == 9 else 1
        for k in range(lo, len(g)):
            pre, it = g[k]
            if pre: gaps[G - 1].append(I(pre))
            gaps[G].append(it)
            for x in adv.get(k, []): gaps[G + 1].append(I(x))
            G += 4
        G -= 2
        if touch and s + touch + 1 < NST:
            gaps[G].append(touch_ins()); gaps[G + 1].append(I(touch_adv)); G += 2
        if 0 <= u <= 7:
            for e in range(2):
                gaps[G].append(I(f"buffer_load_dwordx4 {ar(A_KX + 8*(u%2) + 4*e,4)}, v{V_KX}, s[{S_X}:{S_X+3}], 0 offen offset:{u*256 + e*64}", vm=("kx", u))); G += 2
        q = s - tq0
        if 0 <= q < 9:
            fl = " nt" if ntt else ""
            gaps[G - 1].append(I(f"s_add_u32 m0, s{S_M0T}, {(q%3)*4096}"))
            if q == 6:
                gaps[G - 2].append(I(f"v_lshrrev_b32 v{V_KX}, 5, {L}")); gaps[G - 1].append(I(f"v_lshl_add_u32 v{V_KX}, v{V_KX}, 13, v{V_DT}"))
                gaps[G].append(I(f"buffer_load_dwordx4 v{V_KX}, s[{S_WD}:{S_WD+3}], s{S_TSRCS} offen{fl} lds", vm=("t", q)))
            else:
                srdn, so = (S_WD, S_TSRC) if q < 7 else (S_WO, S_TSRC2)
                gaps[G].append(I(f"buffer_load_dwordx4 v{V_DT}, s[{srdn}:{srdn+3}], s{so} offen{fl} lds", vm=("t", q)))
                gaps[G + 1].append(I(f"s_add_u32 s{so}, s{so}, {48*2048 if q == 2 else 0x10000}"))
            G += 2
        q = s - tq0 - 2
        if 0 <= q < 9:
            x, y = tstore(q); gaps[G].append(x); gaps[G + 1].append(y); G += 2
        if s == 0:
            for x in one_time: gaps[G].append(x); G += 2
        if s == 0:
            gaps[G - 1].append(I(f"v_mov_b32 v21, s{S_TAG}"))
            gaps[G].append(I(f"s_or_b32 s83, s2, s{S_W}\ns_cselect_b32 s83, {OOB:#x}, 0")); G += 2
            gaps[G].extend([I("s_mov_b64 exec, 1"), I(f"buffer_store_dword v21, off, s[{S_DBG}:{S_DBG+3}], s83 sc1"), I("s_mov_b64 exec, -1")]); G += 2
        if s == 6:
            gaps[G].append(I(f"buffer_load_dword a{A_TAG}, off, s[{S_DBG}:{S_DBG+3}], 0 sc1", vm=("zp", 0))); G += 2
        if s == esig + 1:
            gaps[G - 1].append(I(f"s_lshl_b32 s82, s2, 7")); gaps[G].append(I(f"s_add_u32 s82, s82, {WS_FLAG + 0x28000:#x}"))
            gaps[G + 1].append(I(f"s_cmp_eq_u32 s{S_W}, 0\ns_cselect_b32 s82, s82, {OOB:#x}")); G += 2
            gaps[G].extend([I("s_mov_b64 exec, 1"), I(f"buffer_store_dword a{A_TAG}, off, s[{S_WS}:{S_WS+3}], s82 sc1"), I("s_mov_b64 exec, -1")]); G += 2
        kvstart = G
        if s == gs:
            for q_ in range(4):
                gaps[G].append(I(f"buffer_load_dwordx4 {ar(A_GX+4*q_,4)}, v{V_L16}, s[{S_X}:{S_X+3}], s{S_GROW} offen offset:{1024*q_}", vm=("g", 0))); G += 2
            for q_ in range(2):
                gaps[G].append(I(f"buffer_load_dwordx4 {ar(A_GW+4*q_,4)}, v{V_L16}, s[{S_GW}:{S_GW+3}], 0 offen offset:{1024*q_}", vm=("g", 0))); G += 2
        assert G < 64, (s, G)
        tr.wait(lg=[("fr", s, 0)] + ([("tf", q)] if 0 <= q < 9 else []) + ([("kvp", 0)] if u == 10 else []))
        vq = []
        if s in (gs + 2, gs + 3): vq = gfast
        if u == 10: vq = list(kvfin)
        k = 0
        for j in range(8):
            for i in range(8):
                tr.ins(mfma(0, j, i, first=(s == 0)))
                tr.items.extend(gaps[k])
                cap = vcap(gaps[k])
                while vq and cap > 0 and not (u == 10 and k < kvstart - 8):
                    if vq[0].startswith("buffer_"):
                        if cap < 2: break
                        tr.ins(vq.pop(0), vm=("kvst", 0)); cap -= 2
                    else:
                        tr.ins(vq.pop(0)); cap -= 1
                k += 1
        if s != gs + 2: assert not vq
        need = [("st", s + 1)]
        if 0 <= s - tq0 - 1 < 9: need.append(("t", s - tq0 - 1))
        if s == gs + 1: need.append(("g", 0))
        if 1 <= u <= 8: need.append(("kx", u - 1))
        if s == 7: need.append(("zp", 0))
        if s == esig: need.append(("kvst", 0))
        if pads and s == 1: tr.ins("@CHAIN1")
        tr.wait(vm=need, lg=[("fr", s, 1)] + ([("kvf", s)] if 1 <= u <= 9 else []))
        tr.ins("s_barrier")
        segs.append(tr)
        tr = Trace()
        gaps = [[] for _ in range(68)]
        for k, it in enumerate(reads(s + 1, 0)): gaps[2*k + 1].append(it)
        q = s - tq0 - 1
        if 0 <= q < 9:
            for h in range(2):
                gaps[49 + 2*h].append(I(f"ds_read_b64_tr_b16 {ar(A_T+2*h,2)}, v{V_RT} offset:{(q%3)*4096 + h*2048}", lg=("tf", q)))
        if u == 9:
            gaps[53].append(I(f"ds_read_b128 {ar(KVW,4)}, v21", lg=("kvp", 0)))
            for k, x in enumerate(kvsal): gaps[2*k + 3 if 2*k + 3 < 48 else 55].append(I(x.strip()))
        if s + 2 < NST:
            g, adv = dma_group(s + 2, ntw)
            hg = [2*round(k*62/(2*nhead)) for k in range(nhead)]
            for k in range(nhead):
                pre, it = g[k]
                if pre:
                    if hg[k]: gaps[hg[k] - 1].insert(0, I(pre))
                    else: tr.ins(pre)
                gaps[hg[k]].append(it)
                for x in adv.get(k, []): gaps[hg[k] + 2].append(I(x))
        if s == 7:
            gaps[54].append(I(f"v_accvgpr_read_b32 v1, a{A_TAG}"))
            gaps[56].append(I(f"v_cmp_eq_u32 vcc, 0, v1")); gaps[58].append(I("s_cbranch_vccnz KM_ZSPIN\nKM_ZBACK:"))
            gaps[60].append(I(f"v_accvgpr_write_b32 a{A_TAG}, v1")); gaps[62].append(I(f"v_readfirstlane_b32 s{S_TAG}, v1"))
        if s == 14:
            gaps[38].append(I(f"v_lshlrev_b32 v{V_T}, 7, {L}"))
            gaps[40].append(I(f"s_lshl_b32 s{S_EF}, s{S_W}, 13")); gaps[42].append(I(f"s_add_u32 s{S_EF}, s{S_EF}, {WS_FLAG + 0x28000:#x}"))
            gaps[48].append(I(f"buffer_load_dword v{V_KX}, v{V_T}, s[{S_WS}:{S_WS+3}], s{S_EF} offen sc1", vm=("ep", 0)))
            if pads:
                gaps[50].append(I("s_getpc_b64 s[32:33]\nKM_PC2:\ns_add_u32 s32, s32, KM_NORM-0x4000-KM_PC2\ns_addc_u32 s33, s33, 0"))
                gaps[52].append(I("s_and_b32 s33, s33, 0xffff")); gaps[53].append(I("s_mov_b32 s34, KM_END-KM_NORM+0x4000"))
                gaps[54].append(I("s_mov_b32 s35, 0x00020000")); gaps[55].append(I(f"s_lshl_b32 s82, s{S_W}, 13"))
                gaps[56].append(I(f"buffer_load_dword a{A_DUM}, v{V_T}, s[32:35], s82 offen"))
        vq = []; slow = []; slow_from = None
        if s in (gs + 1, gs + 2): vq = gfast
        if s == gs + 3: slow = list(gslow)
        ml = [mfma(1, j, i) for j in range(8) for i in range(8)]
        if 1 <= u <= 8:
            for e in range(2):
                ml.insert(30 + 20*e, f"v_mfma_f32_16x16x32_bf16 {ar(KVA,4)}, {ar(A_KX + 8*((u-1)%2) + 4*e,4)}, {ar(KVW+4*e,4)}, {'0' if (u == 1 and e == 0) else ar(KVA,4)}")
        for k, m in enumerate(ml):
            tr.ins(m)
            tr.items.extend(gaps[k])
            for _ in range(vcap(gaps[k])):
                if vq: tr.ins(vq.pop(0))
            if slow and not vq:
                if slow_from is None: slow_from = k + 2
                if k >= slow_from and (k - slow_from) % 2 == 0: tr.ins(slow.pop(0))
        for k in range(len(ml), 68): assert not gaps[k], (s, k)
        assert not slow
        segs.append(tr)

    P = p2
    ec = Trace()
    ec.wait(vm=[("ep", 0)])
    ec.raw(f"""
    v_cmp_ne_u32 vcc, s{S_TAG}, v{V_KX}
    s_and_b32 s80, s2, 7
    s_lshr_b32 s81, s80, 1
    s_lshl_b32 s{P.S_MT}, s{S_MT}, 2
    s_cbranch_vccnz KM_ESPIN
    KM_EBACK:
    s_barrier
    s_add_u32 s{P.S_MT}, s{P.S_MT}, s81
    s_lshl_b32 s{P.S_M0KV}, s{S_W}, 13
    s_add_u32 s82, s{P.S_M0KV}, {WS_KV:#x}
    s_add_u32 s{P.S_KVB}, s86, s82
    s_addc_u32 s{P.S_KVB+1}, s87, 0
    v_add_u32 v{V_DT}, 4096, v{V_L16}
    """)
    su2 = f"""
    s_and_b32 s80, s80, 1
    s_lshl_b32 s80, s80, 2
    s_and_b32 s90, s{S_NT}, 3
    s_add_u32 s{P.S_NT}, s80, s90
    s_lshr_b32 s90, s{P.S_MT}, 1
    s_mul_i32 s90, s90, 112
    s_mul_i32 s91, s{S_W}, 28
    s_add_u32 s90, s90, s91
    s_lshl_b32 s90, s90, 13
    s_and_b32 s44, s{P.S_MT}, 1
    s_lshl_b32 s44, s44, 12
    s_add_u32 s90, s90, s44
    s_add_u32 s58, s86, s90\ns_addc_u32 s59, s87, 0
    s_add_u32 s60, s58, 0x2000\ns_addc_u32 s61, s59, 0
    s_add_u32 s62, s58, 0x4000\ns_addc_u32 s63, s59, 0
    s_mov_b64 s[{P.S_HB}:{P.S_HB+1}], s[62:63]
    s_mul_i32 s90, s{P.S_NT}, 144
    s_add_u32 s91, s91, s90
    s_lshl_b32 s91, s91, 13
    s_add_u32 s91, s91, {WS_WT:#x}
    s_add_u32 s64, s86, s91\ns_addc_u32 s65, s87, 0
    s_add_u32 s66, s64, 0x2000\ns_addc_u32 s67, s65, 0
    s_add_u32 s68, s64, 0x4000\ns_addc_u32 s69, s65, 0
    s_mov_b64 s[{P.S_WB}:{P.S_WB+1}], s[68:69]
    s_lshl_b32 s91, s{S_W}, 3
    s_add_u32 s90, s90, s91
    s_lshl_b32 s90, s90, 13
    s_add_u32 s90, s90, {WS_WT + 112*8192:#x}
    s_add_u32 s{P.S_WOB}, s86, s90\ns_addc_u32 s{P.S_WOB+1}, s87, 0
    s_mul_i32 s{P.S_M0SP}, s{S_W}, 24576
    s_add_u32 s{P.S_M0SP}, s{P.S_M0SP}, {P.LDS_SP}
    s_mov_b32 s{P.S_OUT}, s96
    s_and_b32 s{P.S_OUT+1}, s97, 0xffff
    s_mov_b32 s{P.S_OUT+2}, {2048*1024*2:#x}
    s_mov_b32 s{P.S_OUT+3}, 0x00020000
    s_mov_b32 s{P.S_OF}, s{S_FLG}
    s_lshl_b32 s90, s{P.S_MT}, 12
    s_add_u32 s{P.S_OP}, s90, {WS_FLAG:#x}
    s_sub_u32 s{P.S_HP}, s{S_EF}, 0x8000
    s_lshl_b32 s90, s2, 7
    s_add_u32 s90, s90, {WS_FLAG + 0x20000:#x}
    s_cmp_eq_u32 s{S_W}, 0\ns_cselect_b32 s{P.S_HF}, s90, {OOB:#x}
    """
    su2 = [x.strip() for x in su2.strip().split("\n    ")]

    def last_stage(wn):
        tr = Trace()
        s = NST - 1
        su = f"""
        s_lshr_b32 s81, s{S_W}, 1
        s_lshl_b32 s82, s{S_MT}, 1
        s_add_u32 s82, s82, s81
        s_mul_i32 s82, s82, 112
        s_lshr_b32 s83, s{S_NT}, 1
        s_mul_i32 s83, s83, 7
        s_add_u32 s82, s82, s83
        s_and_b32 s84, s{S_NT}, 1
        s_add_u32 s85, s82, 6
        s_lshl_b32 s85, s85, 13
        s_mul_i32 s83, s84, 3
        s_add_u32 s82, s82, s83
        s_add_u32 s82, s82, {2*wn}
        s_lshl_b32 s82, s82, 13
        s_add_u32 s83, s82, 8192
        """
        if wn:
            su += f"""
            s_lshl_b32 s84, s84, 9
            s_add_u32 s85, s85, s84
            v_and_b32 v21, 15, {L}
            v_lshlrev_b32 v21, 4, v21
            v_bfe_u32 v24, {L}, 4, 1
            v_lshl_add_u32 v22, v24, 9, v21
            v_lshl_add_u32 v21, v24, 10, v21
            v_lshrrev_b32 v24, 5, {L}
            v_lshl_add_u32 v22, v24, 10, v22
            v_lshl_add_u32 v21, v24, 8, v21
            s_lshl_b32 s81, s81, 13
            s_add_u32 s81, s81, {P.LDS_Q}
            v_add_u32 v22, s81, v22
            v_add_u32 v23, 4096, v21
            """
        setup = [l.strip() for l in su.strip().split("\n") if l.strip()] + su2
        ffn = lambda t, i: dict(kind="f", t=t, i=i, mf=[(2*t, i), (4 + 2*t, i), (2*t + 1, i), (5 + 2*t, i)])
        if wn == 0:
            halves = [[ffn(0, i) for i in range(8)], [ffn(1, i) for i in range(8)]]
        else:
            halves = [[dict(kind="q", i=i, mf=[(3, i), (7, i)]) for i in range(8)] +
                      [dict(kind="s", i=i, mf=[(2, i), (6, i), (2, i + 1), (6, i + 1)]) for i in range(0, 8, 2)],
                      [ffn(0, i) for i in range(8)]]
        pieces = halves[0] + halves[1]
        half = len(halves[0])
        jsets = [sorted(set(j for pc in hv for j, _ in pc["mf"])) for hv in halves]
        def piece_ops(pc, pk):
            o = []
            i = pc["i"]
            tmp = 12 + 4*(i % 2)
            def reg(j, i):
                p_, b = accn(j, i)
                if p_ == "v": return b
                for r in range(4): o.append(f"v_accvgpr_read_b32 v{tmp+r}, a{b+r}")
                return tmp
            r_ = [reg(j, i_) for j, i_ in pc["mf"]]
            if pc["kind"] == "q":
                g0_, g1_ = r_
            else:
                g0_, u0, g1_, u1 = r_
                for g_, u_ in ((g0_, u0), (g1_, u1)):
                    for r in range(4): o.append(f"v_max_f32 v{g_+r}, 0, v{g_+r}")
                    if pk:
                        o.append(f"v_pk_mul_f32 {vr(g_,2)}, {vr(g_,2)}, {vr(u_,2)}")
                        o.append(f"v_pk_mul_f32 {vr(g_+2,2)}, {vr(g_+2,2)}, {vr(u_+2,2)}")
                    else:
                        for r in range(4): o.append(f"v_mul_f32 v{g_+r}, v{g_+r}, v{u_+r}")
            o += [f"v_cvt_pk_bf16_f32 v{g0_}, v{g0_}, v{g0_+1}", f"v_cvt_pk_bf16_f32 v{g0_+1}, v{g0_+2}, v{g0_+3}",
                  f"v_cvt_pk_bf16_f32 v{g0_+2}, v{g1_}, v{g1_+1}", f"v_cvt_pk_bf16_f32 v{g0_+3}, v{g1_+2}, v{g1_+3}"]
            if pc["kind"] == "q":
                o.append(f"ds_write_b128 v22, {vr(g0_,4)} offset:{(i//2)*2048 + (i%2)*256}")
            elif pc["kind"] == "s":
                o += ["s_nop 1", f"v_permlane16_swap_b32 v{g0_}, v{g0_+2}", f"v_permlane16_swap_b32 v{g0_+1}, v{g0_+3}",
                      f"buffer_store_dwordx4 {vr(g0_,4)}, {'v21' if i < 4 else 'v23'}, s[{S_WS}:{S_WS+3}], s85 offen offset:{(i%4)*1024} sc1"]
            else:
                o.append(f"buffer_store_dwordx4 {vr(g0_,4)}, {'v%d' % (V_L16 if i < 4 else V_DT)}, s[{S_WS}:{S_WS+3}], {'s82' if pc['t'] == 0 else 's83'} offen offset:{(i%4)*1024} sc1")
            return o
        rl = [xread(s, 1, i) for i in range(8)]
        for j in jsets[0]: rl += [wread(s, 1, j, 0), wread(s, 1, j, 1)]
        for x in rl: x["lg"] = ("frA", 0)
        for j in jsets[1]: rl += [wread(s, 1, j, 0), wread(s, 1, j, 1)]
        kv0 = []
        for part in range(2):
            cl = [P.kv_dma(0, part, j) for j in range(4)]
            for x in cl: x["text"] = x["text"].replace(f"v{P.V_L16},", f"v{V_L16},").replace(f"v{P.V_L16B},", f"v{V_DT},")
            kv0.append(cl)
        q = s - tq0 - 2
        tr.wait(lg=[("fr", s, 0)] + ([("tf", q)] if 0 <= q < 9 else []))
        first = []
        if gs + 4 == s:
            first.append([I("s_mov_b32 exec_lo, 1\ns_mov_b32 exec_hi, 1"), I(f"buffer_store_dwordx2 v[24:25], v{V_GROW}, s[{S_WS}:{S_WS+3}], 0 offen sc1", vm=("hst", 0)), I("s_mov_b64 exec, -1")])
        if 0 <= q < 9: first.append([tstore(q)[0]])
        for k, (j, i) in enumerate([(j, i) for j in jsets[0] for i in range(8)]):
            tr.ins(mfma(0, j, i))
            if first:
                tr.items.extend(first.pop(0)); continue
            if k in (26, 29): tr.ins(f"s_add_u32 m0, s{P.S_M0KV}, {4096 if k == 29 else 0}")
            elif k in (27, 30): tr.items.extend(kv0.pop(0))
            elif rl: tr.items.append(rl.pop(0))
            for _ in range(2):
                if setup: tr.ins(setup.pop(0))
        assert not rl
        tr.items.extend(adv64(P.S_KVB, 32768))
        for x in setup: tr.ins(x)
        tr.wait(lg=[("frA", 0)])
        ml = []
        for pi, pc in enumerate(pieces):
            if pi == half:
                ml.append((W(lg=[("fr", s, 1)]), None))
                ml += [(mfma(0, j, i), None) for j in jsets[1] for i in range(8)]
            for j, i in pc["mf"]: ml.append((mfma(1, j, i), pi))
        done_at = {}; cnt = 0; vq = []; nextp = 0
        def put(x):
            tr.ins(x, vm=("hst", 0) if x.startswith("buffer_") else None, lg=("qw", 0) if x.startswith("ds_") else None)
        for k, (m, pi) in enumerate(ml):
            if isinstance(m, dict):
                tr.items.append(m); continue
            tr.ins(m); cnt += 1
            if pi is not None and (k + 1 == len(ml) or ml[k + 1][1] != pi): done_at[pi] = cnt
            budget = 2
            while budget > 0:
                if not vq and nextp in done_at and cnt - done_at[nextp] >= 9:
                    vq = piece_ops(pieces[nextp], False); nextp += 1
                if not vq: break
                c_ = 2 if vq[0].startswith(("buffer_", "ds_")) else 1
                if c_ > budget: break
                put(vq.pop(0)); cnt += 1; budget -= c_
        for x in vq: put(x); cnt += 1
        while nextp < len(pieces):
            if cnt - done_at[nextp] < 9: tr.ins("s_nop 7"); cnt += 8
            for x in piece_ops(pieces[nextp], True): put(x); cnt += 1
            nextp += 1
        return tr
    l0, l1 = last_stage(0), last_stage(1)

    L2 = f"v{P.V_LANE}"
    h2 = Trace()
    h2.raw(f"""
    v_mov_b32 {L2}, {L}
    v_mov_b32 v{P.V_L16}, v{V_L16}
    v_mov_b32 v{P.V_L16B}, v{V_DT}
    v_mov_b32 v{P.V_KVR}, v{V_L16}
    s_lshl_b32 s80, s{S_W}, 12
    s_add_u32 s80, s80, {P.LDS_Q}
    v_add_u32 v24, s80, v{V_L16}
    """)
    h2.wait(vm=[("kv", 0)])
    h2.raw("s_waitcnt lgkmcnt(0)\ns_barrier")
    for q in range(4): h2.ins(f"ds_read_b128 {ar(P.A_Q + 4*q,4)}, v24 offset:{q*1024}", lg=("q", 0))
    for half in range(2): h2.items.append(P.k_read(0, half))
    for half in range(2): h2.items.append(P.v_read(0, half))
    for pp in range(4):
        h2.raw(f"""
        s_add_u32 s80, s{S_W}, {pp}
        s_and_b32 s80, s80, 3
        s_lshl_b32 s80, s80, 11
        v_add_u32 v{P.V_W+pp}, s80, v{P.V_L16}
        """)
    h2.wait(lg=[("k", 0)])
    h2.ins(P.qk(0, 0)); h2.ins(P.qk(0, 1))
    for q in range(4):
        h2.ins(f"v_add_u32 v{P.V_SP+q}, s{P.S_M0SP}, v{P.V_W+q}")
        h2.ins(f"v_add_u32 v{P.V_KP+q}, s{P.S_M0KV}, v{P.V_W+q}")
    h2.raw(f"""
    v_bfe_u32 v26, {L2}, 4, 1
    v_bfe_u32 v27, {L2}, 2, 1
    v_cmp_eq_u32 vcc, v26, v27
    v_mov_b32 v26, 0x3f803f80
    s_lshl_b32 s78, s{P.S_MT}, 9
    s_add_u32 s78, s78, {WS_G:#x}
    v_cndmask_b32 v26, 0, v26, vcc
    """)
    for r in range(4): h2.ins(f"v_accvgpr_write_b32 a{P.A_SEL+r}, v26")
    h2.raw(f"""
    s_lshl_b32 s79, s{S_MT}, 11
    s_lshl_b32 s80, s{S_W}, 9
    s_add_u32 s79, s79, s80
    s_add_u32 s79, s79, {WS_G:#x}
    v_and_b32 v26, 31, {L2}
    v_lshlrev_b32 v26, 3, v26
    v_and_b32 v27, 15, {L2}
    v_lshlrev_b32 v27, 3, v27
    v_lshlrev_b32 v25, 7, {L2}
    v_mov_b32 v24, s{S_TAG}
    """)
    def rebase(x, frm, to):
        x["text"] = x["text"].replace(f"s[{frm}:{frm+1}]", f"s[{to}:{to+1}]"); return x
    wl = lambda sg, J0, b: [rebase(P.w_load(sg, J), P.S_WB, b) for J in range(J0, J0 + 4)]
    hl = lambda sg, b: [rebase(P.h_load(sg, i), P.S_HB, b) for i in range(4)]
    early = []
    timed = [(hsig, [W(vm=[("hst", 0), ("ts", 8)]), I("s_barrier"), I("s_mov_b64 exec, 1"), I(f"buffer_store_dword v24, off, s[{S_WS}:{S_WS+3}], s{P.S_HF} sc1"), I("s_mov_b64 exec, -1")]),
             (hpoll, [I(f"buffer_load_dword v28, v25, s[{S_WS}:{S_WS+3}], s{P.S_HP} offen sc1", vm=("hp", 0))]),
             (hpoll + 2, [W(vm=[("hp", 0)]), I(f"v_cmp_ne_u32 vcc, s{S_TAG}, v28"), I("s_nop 0"), I("s_cbranch_vccnz KM_HSPIN"), I("KM_HBACK:"), I("s_barrier")] + hl(0, 58)),
             (hpoll + 2, wl(0, 0, 64)), (hpoll + 3, wl(0, 4, 64)), (hpoll + 3, hl(1, 60)), (hpoll + 4, wl(1, 0, 66)), (hpoll + 4, wl(1, 4, 66)),
             (hpoll + 5, wl(2, 0, 68)), (hpoll + 5, hl(2, 62)),
             (hpoll + 12, [I(f"buffer_load_dword v{P.V_G+hh}, v26, s[{S_WS}:{S_WS+3}], s79 offen offset:{hh*256} sc1", vm=("g2", 0)) for hh in range(2)]),
             (hpoll + 14, [I(f"buffer_load_dword v{P.V_OMG+i}, v27, s[{S_WS}:{S_WS+3}], s78 offen offset:{4 + i*128} sc1", vm=("g2", 0)) for i in range(4)])]
    body = P.main_loop(NIN, g0, early, timed)
    NDOWN, NWO, ACC = P.NDOWN, P.NWO, P.ACC
    t1 = Trace()
    n = P.NSLOT - 1
    t1.ins("s_nop 1")
    t1.ins(P.pv(n, 0)); t1.ins(P.summ(n, 0)); t1.ins(P.pv(n, 1)); t1.ins(P.summ(n, 1))
    t1.raw(f"""
    v_bfe_u32 v26, {L2}, 4, 1
    v_lshlrev_b32 v26, 10, v26
    v_and_b32 v27, 15, {L2}
    v_lshl_add_u32 v26, v27, 4, v26
    v_lshrrev_b32 v27, 5, {L2}
    v_lshl_add_u32 v26, v27, 8, v26
    s_lshl_b32 s78, s{S_MT}, 1
    s_lshr_b32 s79, s{S_W}, 1
    s_add_u32 s78, s78, s79
    s_lshl_b32 s78, s78, 5
    s_add_u32 s78, s78, s{S_NT}
    s_lshl_b32 s78, s78, 13
    s_and_b32 s79, s{S_W}, 1
    s_lshl_b32 s79, s79, 12
    s_add_u32 s78, s78, s79
    s_add_u32 s54, s78, {WS_O:#x}
    """)
    t1.wait(vm=[("g2", 0)])
    t1.raw(f"""
    v_accvgpr_read_b32 v80, a{P.A_L}
    v_accvgpr_read_b32 v81, a{P.A_L+4}
    """)
    for r in range(32): t1.ins(f"v_accvgpr_read_b32 v{32+r}, a{P.A_O+r}")
    for r in range(0, 32, 2): t1.ins(f"v_pk_fma_f32 v[82:83], {vr(32+r,2)}, 0, v[82:83]" if r else f"v_pk_mul_f32 v[82:83], {vr(32,2)}, 0")
    t1.raw(f"""
    v_add_f32 v82, v82, v83
    v_min_f32 v83, v80, v81
    v_max_f32 v84, v80, v81
    v_add_f32 v83, v83, v82
    v_add_f32 v84, v84, v82
    v_add_f32 v85, v80, v81
    s_mov_b32 s78, 0x1f800000
    s_mov_b32 s79, 0x5f800000
    v_cmp_nle_f32 s[82:83], s78, v83
    v_cmp_nge_f32 s[84:85], s79, v84
    v_cmp_u_f32 vcc, v85, v85
    s_nop 3
    s_or_b64 s[82:83], s[82:83], s[84:85]
    s_or_b64 vcc, vcc, s[82:83]
    s_cbranch_vccnz KM_FALLBACK
    KM_NORM:
    v_rcp_f32 v80, v80
    v_rcp_f32 v82, v81
    s_nop 0
    v_mul_f32 v80, v80, v{P.V_G}
    v_mul_f32 v82, v82, v{P.V_G+1}
    """)
    for hh in range(2):
        for r in range(0, 16, 2):
            b = 32 + 16*hh + r
            t1.ins(f"v_pk_mul_f32 {vr(b,2)}, {vr(b,2)}, {vr(80+2*hh,2)} op_sel_hi:[1,0]")
        for pc in range(2):
            b = 32 + 16*hh + 8*pc
            for q in range(4):
                t1.ins(f"v_cvt_pk_bf16_f32 v{64+8*hh+4*pc+q}, v{b+2*q}, v{b+2*q+1}")
            t1.ins(f"buffer_store_dwordx4 {vr(64+8*hh+4*pc,4)}, v26, s[{S_WS}:{S_WS+3}], s54 offen offset:{hh*2048 + pc*512} sc1", vm=("ost", 0))
    nA, nB = nb
    stepsA = [P.gemm_step(s) for s in range(NIN, NIN + nA)]
    stepsB = [P.gemm_step(s) for s in range(NIN + nA, NIN + nA + nB)]
    sig = Trace()
    sig.raw(f"""
    v_and_b32 v25, 31, {L2}
    v_lshlrev_b32 v25, 7, v25
    s_lshr_b32 s78, s{P.S_MT}, 1
    s_lshl_b32 s78, s78, 18
    s_add_u32 s78, s78, s44
    s_lshl_b32 s79, s{S_W}, 16
    s_add_u32 s78, s78, s79
    s_add_u32 s78, s78, {WS_O:#x}
    s_add_u32 s56, s86, s78
    s_addc_u32 s57, s87, 0
    """)
    sig.wait(vm=[("ost", 0)])
    sig.raw(f"""
    s_mov_b64 exec, 1
    buffer_store_dword v24, off, s[{S_WS}:{S_WS+3}], s{P.S_OF} sc1
    s_mov_b64 exec, -1
    """)
    t3 = Trace()
    t3.raw(f"""
    s_mov_b32 s79, 0x40000
    KM_POLL:
    buffer_load_dword v28, v25, s[{S_WS}:{S_WS+3}], s{P.S_OP} offen sc1
    s_waitcnt vmcnt(0)
    v_cmp_ne_u32 vcc, s{S_TAG}, v28
    s_sub_u32 s79, s79, 1
    s_cbranch_vccz KM_POLLED
    s_cmp_eq_u32 s79, 0
    s_cbranch_scc1 KM_POLLED
    s_sleep 1
    s_branch KM_POLL
    KM_POLLED:
    """)
    ol = []
    for s in range(NDOWN, NDOWN + NWO):
        ol.append([rebase(P.h_load(s, i), P.S_HB, 56) for i in range(4)] + (adv64(56, 8192) if s < NDOWN + NWO - 1 else []))
    t4 = Trace()
    for grp in ol[:opre]: t4.items.extend(grp)
    k = opre
    stepsC = []
    for s in range(NIN + nA + nB, NDOWN):
        ex = []
        while len(ex) < 2 and k < 5: ex.append(ol[k]); k += 1
        stepsC.append(P.gemm_step(s, ex))
    scale = []
    for J in range(8):
        for i in range(4):
            b = ACC + (J*4 + i)*4
            for r in (0, 2):
                om = P.V_OMG + i
                if om % 2 == 0: scale.append(f"v_pk_mul_f32 {vr(b+r,2)}, {vr(b+r,2)}, {vr(om,2)} op_sel_hi:[1,0]")
                else: scale.append(f"v_pk_mul_f32 {vr(b+r,2)}, {vr(b+r,2)}, {vr(om-1,2)} op_sel:[0,1] op_sel_hi:[1,1]")
    sc = Trace()
    for q, x in enumerate(scale):
        if q == 0: sc.ins("s_nop 7")
        if q in (8, 40) and k < NWO: sc.items.extend(ol[k]); k += 1
        sc.ins(x)
    sc.ins("s_nop 1")
    wos = []
    for s in range(NDOWN, NDOWN + 4):
        ex = []
        while len(ex) < 2 and k < NWO: ex.append(ol[k]); k += 1
        wos.append(P.gemm_step(s, ex))
    ph = Trace()
    su = Asm()
    for pp in range(1, 4):
        su(f"s_add_u32 s78, s{S_W}, {pp}\ns_and_b32 s78, s78, 3\ns_mul_i32 s78, s78, 24576\ns_add_u32 s78, s78, {(pp-1)*8192}\nv_add_u32 v{26+pp}, s78, v{P.V_L16}")
    su(f"""
    s_mul_i32 s78, s{S_W}, 24576
    v_add_u32 v26, s78, v{P.V_L16}
    s_lshl_b32 s78, s{P.S_MT}, 17
    s_lshl_b32 s79, s{P.S_NT}, 8
    s_add_u32 s78, s78, s79
    s_lshl_b32 s79, s{S_W}, 6
    s_add_u32 s78, s78, s79
    s_add_u32 s79, s78, 0x8000
    s_add_u32 s80, s78, 0x10000
    s_add_u32 s81, s78, 0x18000
    v_and_b32 v30, 15, {L2}
    v_lshlrev_b32 v30, 11, v30
    v_bfe_u32 v25, {L2}, 4, 1
    v_lshl_add_u32 v30, v25, 5, v30
    v_lshrrev_b32 v25, 5, {L2}
    v_lshl_add_u32 v30, v25, 4, v30
    """)
    su = [l.strip() for l in su.lines]
    S2 = list(range(NDOWN + 4, NDOWN + 8))
    ph.wait(vm=[("w", s, J) for s in S2[2:] for J in range(8)], lg=[("w", s, J) for s in S2[:2] for J in range(8)])
    ph.ins("s_barrier")
    for idx, pp in enumerate((1, 2, 3, 0)):
        fill = [[] for _ in range(32)]
        if idx == 0:
            for q, x in enumerate(su): fill[q].append(I(x))
        else:
            prev = (1, 2, 3)[idx - 1]
            for t in range(8):
                fill[4 + 3*t].append(I(f"ds_write_b128 v{26+prev}, {vr(ACC + (prev*8 + t)*4, 4)} offset:{t*1024}", lg=("rw", prev)))
        if idx == 3:
            rd = [I(f"ds_read_b128 {vr(ACC + 32 + (s_*8 + t)*4, 4)}, v26 offset:{s_*8192 + t*1024}", lg=("rr", s_)) for s_ in range(2) for t in range(8)]
            free = [g for g in range(32) if not fill[g]]
            for x, g in zip(rd, free): fill[g].append(x)
            ph.wait(lg=[("rw", 2)])
            ph.ins("s_barrier")
        mu = 0
        for s in S2:
            if idx == 0: ph.wait(vm=[("h", s, i) for i in range(4)])
            for J in (2*pp, 2*pp + 1):
                for i in range(4):
                    ph.ins(P.gemm_mfma(s, J, i, False)); ph.items.extend(fill[mu]); mu += 1
    ph.wait(lg=[("rw", 3), ("rr", 1)])
    ph.ins("s_barrier")
    for t in range(8): ph.ins(f"ds_read_b128 {vr(48 + t*4, 4)}, v26 offset:{2*8192 + t*1024}", lg=("rr", 2))
    for s_ in range(3):
        if s_ == 2: ph.wait(lg=[("rr", 2)])
        for r in range(0, 32, 2):
            ph.ins(f"v_pk_add_f32 {vr(ACC+r,2)}, {vr(ACC+r,2)}, {vr((ACC + 32 + s_*32 if s_ < 2 else 48) + r,2)}")
    for i in range(4):
        b0, b1 = ACC + i*4, ACC + (4 + i)*4
        d = 32 + i*4
        ph.raw(f"""
        v_cvt_pk_bf16_f32 v{d}, v{b0}, v{b0+1}
        v_cvt_pk_bf16_f32 v{d+1}, v{b0+2}, v{b0+3}
        v_cvt_pk_bf16_f32 v{d+2}, v{b1}, v{b1+1}
        v_cvt_pk_bf16_f32 v{d+3}, v{b1+2}, v{b1+3}
        s_nop 1
        v_permlane16_swap_b32 v{d}, v{d+2}
        v_permlane16_swap_b32 v{d+1}, v{d+3}
        buffer_store_dwordx4 {vr(d,4)}, v30, s[{P.S_OUT}:{P.S_OUT+3}], s{78+i} offen nt
        """)
    head = [pro, pro2] + segs + [ec]
    rest = [h2, body, t1] + stepsA + [sig] + stepsB + [t3, t4] + stepsC + [sc] + wos + [ph]
    import copy
    resolve(head + [l0] + rest)
    saved = [[(x.get("wvm"), x.get("wlg")) for x in seg.items] for seg in rest]
    resolve(head + [l1] + rest)
    for seg, sv in zip(rest, saved):
        for x, (v, l) in zip(seg.items, sv):
            if x["text"] is None:
                mn = lambda p, q: q if p is None else p if q is None else min(p, q)
                x["wvm"], x["wlg"] = mn(x["wvm"], v), mn(x["wlg"], l)
    emit_trace(a, [pro]); st.stamp()
    if pads:
        a("s_branch KM_BODY")
        a.lines.append(".p2align 12")
        a.label("KM_BODY")
    emit_trace(a, [pro2]); st.stamp()
    for k, tr in enumerate(segs):
        emit_trace(a, [tr])
        if 'stg' in exp and k % 2 == 0: st.stamp()
    st.stamp()
    emit_trace(a, [ec])
    a(f"s_bitcmp1_b32 s{S_W}, 0")
    a("s_cbranch_scc1 KM_LAST1")
    emit_trace(a, [l0])
    a("s_branch KM_P2")
    a.label("KM_LAST1")
    emit_trace(a, [l1])
    a.label("KM_P2")
    st.stamp()
    if pads: a.lines.append("@CHAIN2")
    emit_trace(a, [h2]); st.stamp()
    b = Asm(); emit_trace(b, [body])
    for l in b.lines:
        a.lines.append(l)
        if 'its' in exp and l.strip() in ("s_barrier", "KM_HBACK:"): st.stamp()
    st.stamp()
    emit_trace(a, [t1]); st.stamp()
    for seg in stepsA + [sig]: emit_trace(a, [seg])
    st.stamp()
    for seg in stepsB: emit_trace(a, [seg])
    st.stamp()
    emit_trace(a, [t3]); st.stamp()
    for seg in [t4] + stepsC + [sc]: emit_trace(a, [seg])
    st.stamp()
    for seg in wos: emit_trace(a, [seg])
    st.stamp()
    emit_trace(a, [ph])
    if dbg:
        a("s_waitcnt vmcnt(0)")
        st.stamp()
        st.dump(0, S_W, 86)
    a("s_endpgm")
    for nm, ld, val in (("Z", f"buffer_load_dword v1, off, s[{S_DBG}:{S_DBG+3}], 0 sc1", f"eq_u32 vcc, 0, v1"),
                        ("E", f"buffer_load_dword v{V_KX}, v{V_T}, s[{S_WS}:{S_WS+3}], s{S_EF} offen sc1", f"ne_u32 vcc, s{S_TAG}, v{V_KX}"),
                        ("H", f"buffer_load_dword v28, v25, s[{S_WS}:{S_WS+3}], s{P.S_HP} offen sc1", f"ne_u32 vcc, s{S_TAG}, v28")):
        a(f"""
        KM_{nm}SPIN:
        s_mov_b32 s91, 0x40000
        KM_{nm}SPIN1:
        {ld}
        s_waitcnt vmcnt(0)
        v_cmp_{val}
        s_sub_u32 s91, s91, 1
        s_cbranch_vccz KM_{nm}BACK
        s_cmp_eq_u32 s91, 0
        s_cbranch_scc1 KM_{nm}BACK
        s_sleep 1
        s_branch KM_{nm}SPIN1
        """)
    A_K, A_Q = P.A_K, P.A_Q
    a.label("KM_FALLBACK")
    a(f"""
    s_waitcnt vmcnt(0) lgkmcnt(0)
    v_mov_b32 v82, 0xff7fffff
    v_mov_b32 v83, 0xff7fffff
    v_mov_b32 v80, 0
    v_mov_b32 v81, 0
    s_mov_b32 s78, {WS_KV:#x}
    """)
    for r in range(32): a(f"v_mov_b32 v{32+r}, 0")
    a.label("KM_FB_LOOP")
    for q in range(4):
        a(f"buffer_load_dwordx4 {ar(A_K+4*q,4)}, v{P.V_L16}, s[{S_WS}:{S_WS+3}], s78 offen offset:{q*1024} sc1")
    a("s_waitcnt vmcnt(0)")
    for hh in range(2):
        O = 32 + 16*hh; m = 82 + hh; l = 80 + hh
        a(f"v_mfma_f32_32x32x16_bf16 v[64:79], {ar(A_K,4)}, {ar(A_Q+8*hh,4)}, 0")
        a(f"v_mfma_f32_32x32x16_bf16 v[64:79], {ar(A_K+4,4)}, {ar(A_Q+8*hh+4,4)}, v[64:79]")
        a("s_nop 15")
        a("v_max_f32 v84, v64, v65")
        for r in range(2, 16, 2): a(f"v_max3_f32 v84, v{64+r}, v{65+r}, v84")
        a(f"""
        v_mov_b32 v85, v84
        s_nop 1
        v_permlane32_swap_b32 v84, v85
        s_nop 1
        v_max3_f32 v84, v84, v85, v{m}
        v_sub_f32 v85, v{m}, v84
        v_exp_f32 v85, v85
        v_mov_b32 v{m}, v84
        v_mul_f32 v{l}, v{l}, v85
        """)
        for r in range(16):
            a(f"v_sub_f32 v{64+r}, v{64+r}, v84")
            a(f"v_exp_f32 v{64+r}, v{64+r}")
            a(f"v_mul_f32 v{O+r}, v{O+r}, v85")
        for r in range(8): a(f"v_cvt_pk_bf16_f32 v{64+r}, v{64+2*r}, v{65+2*r}")
        for r in range(8):
            a(f"v_lshlrev_b32 v86, 16, v{64+r}\nv_and_b32 v87, 0xffff0000, v{64+r}\nv_add_f32 v{l}, v{l}, v86\nv_add_f32 v{l}, v{l}, v87")
        a(f"v_mfma_f32_32x32x16_bf16 {vr(O,16)}, {ar(A_K+8,4)}, v[64:67], {vr(O,16)}")
        a(f"v_mfma_f32_32x32x16_bf16 {vr(O,16)}, {ar(A_K+12,4)}, v[68:71], {vr(O,16)}")
        a("s_nop 15")
    a(f"""
    s_add_u32 s78, s78, 4096
    s_cmp_lt_u32 s78, {WS_KV + 64*4096:#x}
    s_cbranch_scc1 KM_FB_LOOP
    v_mov_b32 v84, v80
    v_mov_b32 v85, v81
    s_nop 1
    v_permlane32_swap_b32 v80, v84
    v_permlane32_swap_b32 v81, v85
    s_nop 1
    v_add_f32 v80, v80, v84
    v_add_f32 v81, v81, v85
    s_branch KM_NORM
    KM_END:
    s_endpgm
    """)
    return a.text()
```

```python
from common import *
import p2
from p2 import I, W, adv64
import math, struct

KM = NAME + "_kernel"
LDS_X = 0; LDS_W = 65536
LDS_R = 131072
LDS_QS = LDS_R; LDS_KW = LDS_R + 4096; LDS_T = LDS_R + 16384
KM_LDS = 163840
NST = 16
OOB = 0x7f000000

def accn(j, i): return ("v", 32 + (j*8 + i)*4) if j < 7 else ("a", 128 + i*4)
def acc(j, i):
    p, b = accn(j, i); return vr(b, 4, p)
XF = [0, 64]; WF = [32, 96]
KVW, KVA, A_GX, A_GW, A_T, A_KX, A_DUM = 160, 168, 172, 188, 204, 208, 255
V_DQ, V_DX, V_DW = 0, 2, 6
V_RX = [10, 11]
V_RW, V_R3, V_R7, V_RKW, V_T, V_KX, V_LANE = 12, 15, 16, 17, 18, 19, 20
V_GROW, V_L16, V_RT, V_DT, V_DK = 26, 27, 28, 29, 30
S_WQ, S_X, S_G, S_U, S_KV, S_WS, S_GW, S_TSRD, S_WD, S_WO, S_DBG = 4, 8, 12, 16, 20, 24, 28, 32, 52, 76, 72
S_W, S_MT, S_NT, S_OK = 36, 37, 38, 39
S_OX, S_OX2, S_OG, S_OQ, S_TSRCS = 40, 41, 42, 43, 44
S_M0X, S_M0W, S_M0K, S_M0T, S_M0Q = 45, 46, 47, 51, 56
S_TOFF, S_TSTEP, S_TOG = 48, 49, 50
S_TSRC, S_TDST, S_TSRC2, S_TDST2, S_GROW = 3, 94, 95, 100, 101
S_EF = 88
S_TAG = 89
A_TAG = 254
S_FLG = 57

KVD = 1
def dma_group(s, ntw):
    b = s % 2
    g = []
    nt = " nt" if ntw else ""
    for half in range(2):
        so = S_OX if half == 0 else S_OX2
        for j in range(4):
            pre = f"s_add_u32 m0, s{S_M0X}, {b*32768 + half*4096}" if j == 0 else None
            g.append((pre, I(f"buffer_load_dwordx4 v{V_DX+j}, s[{S_X}:{S_X+3}], s{so} offen offset:{j*1024} lds", vm=("st", s))))
    for part in range(2):
        srdn = S_G if part == 0 else S_U
        for j in range(4):
            pre = f"s_add_u32 m0, s{S_M0W}, {b*32768 + part*16384}" if j == 0 else None
            g.append((pre, I(f"buffer_load_dwordx4 v{V_DW+j}, s[{srdn}:{srdn+3}], s{S_OG} offen offset:{j*1024}{nt} lds", vm=("st", s))))
    g.append((f"s_add_u32 m0, s{S_M0Q}, {b*2048}", I(f"buffer_load_dwordx4 v{V_DQ}, s[{S_WQ}:{S_WQ+3}], s{S_OQ} offen{nt} lds", vm=("st", s))))
    adv = {7: [f"s_add_u32 s{S_OX}, s{S_OX}, 128", f"s_add_u32 s{S_OX2}, s{S_OX2}, 128"],
           15: [f"s_add_u32 s{S_OG}, s{S_OG}, {64*7168}"], 16: [f"s_add_u32 s{S_OQ}, s{S_OQ}, 0x20000"]}
    if 1 <= s - KVD <= 8:
        g.append((f"s_add_u32 m0, s{S_M0K}, {b*8192}", I(f"buffer_load_dwordx4 v{V_DK}, s[{S_KV}:{S_KV+3}], s{S_OK} offen lds", vm=("st", s))))
        adv[17] = [f"s_add_u32 s{S_OK}, s{S_OK}, 8192"]
    return g, adv
def xread(s, kk, i):
    return I(f"ds_read_b128 {ar(XF[kk]+4*i,4)}, v{V_RX[kk]} offset:{(s%2)*32768 + i*2048}", lg=("fr", s, kk))
def wread(s, kk, j, h):
    if j % 4 == 3:
        reg, off = (V_R3 if j == 3 else V_R7), h*1024 + kk*8192
    else:
        reg, off = V_RW + (j & 3), (s % 2)*32768 + h*1024 + kk*8192 + (16384 if j >= 4 else 0)
    return I(f"ds_read_b64_tr_b16 {ar(WF[kk]+4*j+2*h,2)}, v{reg} offset:{off}", lg=("fr", s, kk))
def reads(s, kk):
    r = [wread(s, kk, 0, 0), wread(s, kk, 0, 1)] + [xread(s, kk, i) for i in range(8)]
    for j in range(1, 8): r += [wread(s, kk, j, 0), wread(s, kk, j, 1)]
    return r
def mfma(kk, j, i, first=False):
    return f"v_mfma_f32_16x16x32_bf16 {acc(j,i)}, {ar(WF[kk]+4*j,4)}, {ar(XF[kk]+4*i,4)}, {'0' if first else acc(j,i)}"
def vcap(items):
    c = 2
    for x in items:
        t = x["text"] or "s_"
        if t.startswith("ds_"): c -= 1
        elif t.startswith(("buffer_", "global_")): c -= 2
        elif t.startswith("v_"): c -= 1
    return max(c, 0)
from k1 import g_ops as _g_ops
import k1 as _k1
_k1.A_GX, _k1.A_GW = A_GX, A_GW

def gen(dbg=False, pads=14, epos=10, chain_at=1, ot=1, touch=1, nhead=13, p1=13, npro0=8, gs=11, tq0=5, ntw=False, ntt=False, exp='',
        NIN=25, g0=22, hsig=7, hpoll=15, opre=1, nb=(1, 2)):
    esig = KVD + 11
    p2.configure(NIN)
    a = Asm()
    L = f"v{V_LANE}"
    a("s_cmp_ge_u32 s2, 256")
    a("s_cbranch_scc1 KM_END")
    st = Stamps(a, dbg)
    st.stamp()
    a("s_memrealtime s[72:73]")
    a("s_load_dwordx8 s[56:63], s[0:1], 0")
    a("s_load_dwordx8 s[64:71], s[0:1], 48")
    a("s_load_dwordx2 s[74:75], s[0:1], 32")
    a("s_load_dwordx4 s[96:99], s[0:1], 80")
    a("s_load_dwordx2 s[86:87], s[0:1], 96")
    code_prefetch(a, "KM", 32, "a255", 3)
    a(f"""
    v_and_b32 {L}, 63, v0
    v_lshrrev_b32 v1, 6, v0
    s_and_b32 s80, s2, 7
    v_readfirstlane_b32 s{S_W}, v1
    s_lshr_b32 s81, s2, 3
    s_and_b32 s{S_MT}, s81, 7
    s_lshr_b32 s83, s81, 3
    s_lshl_b32 s80, s80, 2
    s_add_u32 s{S_NT}, s80, s83
    s_mul_i32 s85, s{S_NT}, 224
    s_mov_b32 s{S_OG}, 0
    s_mov_b32 s{S_OQ}, 0
    v_lshrrev_b32 v21, 3, {L}
    s_lshl_b32 s81, s{S_MT}, 8
    s_lshl_b32 s82, s{S_W}, 6
    s_add_u32 s81, s81, s82
    v_add_u32 v21, s81, v21
    v_lshlrev_b32 v21, 11, v21
    v_and_b32 v22, 7, {L}
    v_lshrrev_b32 v23, 4, {L}
    v_xor_b32 v22, v22, v23
    v_lshlrev_b32 v22, 4, v22
    v_xor_b32 v24, 64, v22
    """)
    for j in range(4):
        a(f"v_add_u32 v{V_DX+j}, v21, {'v22' if j % 2 == 0 else 'v24'}")
        if j: a(f"v_add_u32 v{V_DX+j}, {j*8*2048 - j*1024}, v{V_DX+j}")
    a(f"""
    s_mov_b32 s{S_OX}, 0
    s_mov_b32 s{S_OX2}, 65536
    s_mov_b32 s{S_OK}, 0
    s_lshl_b32 s81, s{S_W}, 4
    s_movk_i32 s84, 7168
    v_add_u32 v21, s81, v23
    v_mul_lo_u32 v21, v21, s84
    v_add_u32 v21, s85, v21
    v_and_b32 v25, 1, {L}
    v_lshl_add_u32 v21, v25, 4, v21
    v_bfe_u32 v22, {L}, 1, 3
    v_xor_b32 v22, v22, v23
    v_xor_b32 v24, 4, v22
    v_min_u32 v22, 6, v22
    v_min_u32 v24, 6, v24
    v_lshl_add_u32 v{V_DW}, v22, 5, v21
    v_add_u32 v{V_DW+1}, {4*7168 - 1024}, v{V_DW}
    v_lshl_add_u32 v{V_DW+2}, v24, 5, v21
    v_add_u32 v{V_DW+2}, {2*(4*7168 - 1024)}, v{V_DW+2}
    v_add_u32 v{V_DW+3}, {4*7168 - 1024}, v{V_DW+2}
    s_lshl_b32 s{S_M0X}, s{S_W}, 13
    s_lshl_b32 s{S_M0W}, s{S_W}, 12
    s_add_u32 s{S_M0W}, s{S_M0W}, {LDS_W}
    s_lshl_b32 s{S_M0K}, s{S_W}, 10
    s_add_u32 s{S_M0T}, s{S_M0K}, {LDS_T}
    s_add_u32 s{S_M0K}, s{S_M0K}, {LDS_KW}
    s_lshr_b32 s81, s{S_W}, 1
    s_and_b32 s80, s{S_W}, 1
    """)
    a(f"""
    v_lshlrev_b32 v21, 3, v23
    v_bfe_u32 v22, {L}, 2, 2
    v_add_u32 v21, v21, v22
    s_lshl_b32 s82, s81, 5
    s_lshl_b32 s83, s80, 2
    s_add_u32 s82, s82, s83
    v_add_u32 v21, s82, v21
    v_lshlrev_b32 v21, 11, v21
    v_bfe_u32 v22, {L}, 1, 1
    v_bfe_u32 v24, {L}, 4, 1
    v_xor_b32 v22, v22, v24
    v_lshl_add_u32 v21, v22, 5, v21
    v_lshl_add_u32 v21, v25, 4, v21
    s_lshl_b32 s82, s{S_NT}, 6
    v_add_u32 v{V_DQ}, s82, v21
    s_lshl_b32 s90, s81, 13
    s_lshl_b32 s83, s80, 10
    s_add_u32 s90, s90, s83
    s_waitcnt lgkmcnt(0)
    """)
    st.n and None
    a(f"s_or_b32 s{S_TAG}, s72, 1")
    srd(a, S_X, 56, 2048*1024*2)
    srd(a, S_G, 64, 1024*3584*2)
    srd(a, S_U, 66, 1024*3584*2)
    srd(a, S_WQ, 58, 1024*1024*2)
    a(f"s_add_u32 s{S_M0Q}, s90, {LDS_QS}")
    st.stamp()
    pro = Trace()
    def dma_items(s, lo, hi):
        g, adv = dma_group(s, ntw)
        out = []
        for k in range(lo, min(hi, len(g))):
            pre, it = g[k]
            out.append(([I(pre), I("s_nop 0")] if pre else []) + [it] + [I(x) for x in adv.get(k, [])])
        return out
    pc = Asm()
    pc(f"""
    v_lshlrev_b32 v{V_L16}, 4, {L}
    v_and_b32 v21, 15, {L}
    s_lshl_b32 s83, s81, 14
    v_lshlrev_b32 v22, 7, v21
    v_lshrrev_b32 v24, 1, v21
    v_xor_b32 v24, v24, v23
    v_lshl_add_u32 v22, v24, 4, v22
    v_add_u32 v{V_RX[0]}, s83, v22
    v_xor_b32 v{V_RX[1]}, 64, v{V_RX[0]}
    v_bfe_u32 v21, {L}, 2, 2
    v_lshl_add_u32 v22, v23, 3, v21
    v_and_b32 v24, 3, {L}
    v_lshlrev_b32 v24, 3, v24
    v_lshl_add_u32 v{V_RKW}, v22, 5, v24
    s_lshl_b32 s83, s81, 11
    s_add_u32 s83, s83, {LDS_KW}
    v_add_u32 v{V_RKW}, s83, v{V_RKW}
    v_lshl_add_u32 v22, v22, 8, v24
    v_add_u32 v22, {LDS_W}, v22
    v_and_b32 v25, 1, v23
    v_lshl_or_b32 v1, v25, 2, v21
    s_lshl_b32 s82, s80, 2
    """)
    for j in range(4):
        pc(f"s_add_u32 s83, s82, {j}")
        pc(f"v_xor_b32 v{V_T}, s83, v1")
        pc(f"v_lshl_add_u32 v{V_RW+j}, v{V_T}, 5, v22")
    pc(f"""
    v_add_u32 v{V_R7}, 16384, v{V_R3}
    v_lshl_add_u32 v22, v23, 2, v21
    v_lshl_add_u32 v22, v22, 6, v24
    v_lshl_add_u32 v22, v25, 5, v22
    v_add_u32 v22, {LDS_QS}, v22
    v_xor_b32 v1, 32, v22
    s_cmp_eq_u32 s80, 1
    s_cselect_b64 vcc, -1, 0
    s_movk_i32 s{S_TOG}, 2048
    s_cselect_b32 s{S_TOG}, s{S_TOG}, 0x8000
    v_cndmask_b32 v{V_R3}, v{V_R3}, v22, vcc
    v_cndmask_b32 v{V_R7}, v{V_R7}, v1, vcc
    """)
    p = Asm()
    p(f"""
    v_lshrrev_b32 v1, 3, {L}
    v_lshlrev_b32 v1, 11, v1
    v_bfe_u32 v25, {L}, 1, 2
    v_xor_b32 v25, v25, v23
    v_lshl_add_u32 v1, v25, 5, v1
    v_and_b32 v25, 1, {L}
    v_lshl_add_u32 v{V_DT}, v25, 4, v1
    v_lshl_add_u32 v1, v23, 2, v21
    v_bfe_u32 v25, v1, 1, 2
    v_xor_b32 v25, s{S_W}, v25
    v_lshlrev_b32 v1, 7, v1
    v_lshl_add_u32 v1, v25, 5, v1
    v_add_u32 v1, v1, v24
    v_add_u32 v{V_RT}, {LDS_T}, v1
    s_lshr_b32 s82, s2, 4
    s_and_b32 s83, s2, 15
    s_mul_i32 s{S_TSRC}, s82, {224*2048}
    s_lshl_b32 s90, s83, 7
    s_add_u32 s{S_TSRC}, s{S_TSRC}, s90
    s_lshl_b32 s{S_TSRC2}, s82, 17
    s_add_u32 s{S_TSRC2}, s{S_TSRC2}, s90
    s_mul_i32 s90, s80, {112*2048}
    s_add_u32 s{S_TSRCS}, s{S_TSRC}, s90
    s_lshl_b32 s90, s81, 13
    s_add_u32 s{S_TSRCS}, s{S_TSRCS}, s90
    s_add_u32 s{S_TSRCS}, s{S_TSRCS}, {96*2048}
    s_lshl_b32 s90, s{S_W}, 14
    s_add_u32 s{S_TSRC}, s{S_TSRC}, s90
    s_lshl_b32 s90, s80, 15
    s_add_u32 s{S_TSRC2}, s{S_TSRC2}, s90
    s_lshl_b32 s90, s81, 14
    s_add_u32 s{S_TSRC2}, s{S_TSRC2}, s90
    s_lshr_b32 s90, s83, 1
    s_mul_i32 s90, s90, {144*8192}
    s_and_b32 s83, s83, 1
    s_lshl_b32 s83, s83, 12
    s_add_u32 s90, s90, s83
    s_lshl_b32 s83, s{S_W}, 10
    s_add_u32 s90, s90, s83
    s_add_u32 s90, s90, {WS_WT:#x}
    s_mul_i32 s{S_TDST}, s82, {7*8192}
    s_add_u32 s{S_TDST}, s{S_TDST}, s90
    s_lshl_b32 s{S_TDST2}, s82, 14
    s_add_u32 s{S_TDST2}, s{S_TDST2}, s90
    s_add_u32 s{S_TDST2}, s{S_TDST2}, {112*8192}
    s_lshl_b32 s82, s2, 3
    s_lshl_b32 s83, s{S_W}, 1
    s_add_u32 s82, s82, s83
    s_lshl_b32 s{S_GROW}, s82, 11
    v_lshrrev_b32 v1, 5, {L}
    v_add_u32 v{V_GROW}, s82, v1
    v_lshlrev_b32 v{V_GROW}, 3, v{V_GROW}
    v_add_u32 v{V_GROW}, {WS_G:#x}, v{V_GROW}
    s_lshl_b32 s82, s{S_MT}, 2
    s_add_u32 s82, s82, s{S_W}
    s_lshl_b32 s82, s82, 5
    s_add_u32 s82, s82, s{S_NT}
    s_lshl_b32 s82, s82, 7
    s_add_u32 s{S_FLG}, s82, {WS_FLAG:#x}
    """)
    p(f"""
    s_and_b32 s82, s{S_NT}, 2
    s_cmp_eq_u32 s82, 0
    s_cselect_b32 s{S_KV}, s60, s62
    s_cselect_b32 s{S_KV+1}, s61, s63
    s_and_b32 s{S_KV+1}, s{S_KV+1}, 0xffff
    s_mov_b32 s{S_KV+2}, 65536
    s_mov_b32 s{S_KV+3}, 0x00020000
    """)
    srd(p, S_WS, 86, WS_SIZE)
    srd(p, S_GW, 70, 2048)
    srd(p, S_WD, 68, 3584*1024*2)
    srd(p, S_WO, 74, 1024*1024*2)
    srd(p, S_DBG, 98, 256)
    p(f"""
    v_lshrrev_b32 v21, 1, {L}
    v_lshlrev_b32 v21, 6, v21
    v_and_b32 v22, 1, {L}
    v_lshl_add_u32 v21, v22, 4, v21
    s_and_b32 s82, s{S_NT}, 1
    s_lshl_b32 s82, s82, 5
    s_lshl_b32 s83, s{S_W}, 11
    s_add_u32 s82, s82, s83
    v_add_u32 v{V_DK}, s82, v21
    s_lshl_b32 s82, s{S_MT}, 8
    s_lshr_b32 s83, s{S_NT}, 2
    s_lshl_b32 s83, s83, 5
    s_add_u32 s82, s82, s83
    s_lshl_b32 s83, s80, 4
    s_add_u32 s82, s82, s83
    s_lshl_b32 s82, s82, 11
    s_lshl_b32 s83, s81, 7
    s_add_u32 s82, s82, s83
    v_and_b32 v21, 15, {L}
    v_lshlrev_b32 v22, 11, v21
    v_lshl_add_u32 v22, v23, 4, v22
    v_add_u32 v{V_KX}, s82, v22
    """)
    if touch:
        p(f"""
        s_and_b32 s82, s{S_NT}, 3
        s_lshl_b32 s82, s82, 6
        s_lshl_b32 s83, s{S_MT}, 8
        s_add_u32 s82, s82, s83
        v_add_u32 v25, s82, {L}
        v_lshlrev_b32 v25, 11, v25
        s_lshl_b32 s82, s{S_MT}, 3
        v_bfe_u32 v24, {L}, 2, 3
        v_add_u32 v24, s82, v24
        v_lshlrev_b32 v21, 11, v24
        v_mul_lo_u32 v24, v24, s84
        v_and_b32 v1, 3, {L}
        v_lshlrev_b32 v1, 7, v1
        v_min_u32 v1, 220, v1
        v_add3_u32 v24, v24, v1, s85
        s_lshl_b32 s82, s{S_NT}, 6
        v_add_u32 v21, s82, v21
        s_mov_b32 s{S_TSTEP}, {64*7168}
        s_cmp_eq_u32 s{S_W}, 0
        s_cselect_b64 vcc, -1, 0
        s_cselect_b32 s{S_TSRD}, s{S_X}, s{S_G}
        s_cselect_b32 s{S_TSRD+1}, s{S_X+1}, s{S_G+1}
        s_cselect_b32 s{S_TSRD+2}, s{S_X+2}, s{S_G+2}
        s_cselect_b32 s{S_TSTEP}, 128, s{S_TSTEP}
        v_cndmask_b32 v{V_T}, v24, v25, vcc
        s_cmp_eq_u32 s{S_W}, 2
        s_cselect_b32 s{S_TSRD}, s{S_U}, s{S_TSRD}
        s_cselect_b32 s{S_TSRD+1}, s{S_U+1}, s{S_TSRD+1}
        s_cmp_eq_u32 s{S_W}, 3
        s_cselect_b64 vcc, -1, 0
        s_cselect_b32 s{S_TSRD}, s{S_WQ}, s{S_TSRD}
        s_cselect_b32 s{S_TSRD+1}, s{S_WQ+1}, s{S_TSRD+1}
        s_cselect_b32 s{S_TSRD+2}, s{S_WQ+2}, s{S_TSRD+2}
        s_cselect_b32 s{S_TSTEP}, 0x20000, s{S_TSTEP}
        v_cndmask_b32 v{V_T}, v{V_T}, v21, vcc
        s_mov_b32 s{S_TSRD+3}, 0x00020000
        s_mul_i32 s{S_TOFF}, s{S_TSTEP}, {touch + 1 if touch >= 2 else touch + 2}
        """)
    late = []
    for l in [l.strip() for l in p.lines]:
        if late and l.startswith(("s_cselect", "s_addc", "v_cndmask", "s_movk_i32 s50")): late[-1].append(l)
        else: late.append([l])
    late += [[f"v_and_b32 v1, 31, {L}"], ["v_lshlrev_b32 v1, 7, v1"], ["s_lshr_b32 s82, s2, 3"], ["s_and_b32 s82, s82, 15"], ["s_lshl_b32 s82, s82, 12"]]
    for grp in dma_items(0, 0, 17): pro.items.extend(grp)
    for l in pc.lines: pro.ins(l.strip())
    for grp in dma_items(1, 0, p1): pro.items.extend(grp)
    one_time = [I(f"buffer_load_dword a{A_DUM}, v1, s[{S_KV}:{S_KV+3}], s82 offen"), I(f"buffer_load_dword a{A_DUM}, v1, s[{S_GW}:{S_GW+3}], 0 offen")]
    touch_ins = lambda: I(f"buffer_load_dword a{A_DUM}, v{V_T}, s[{S_TSRD}:{S_TSRD+3}], s{S_TOFF} offen", vm=("touch", 0))
    touch_adv = f"s_add_u32 s{S_TOFF}, s{S_TOFF}, s{S_TSTEP}"
    pro2 = Trace()
    pro2.wait(vm=[("st", 0)])
    pro2.ins("s_barrier")
    pro2.items.extend(reads(0, 0))

    gfast, gslow = _g_ops()
    gslow += ["v_max_f32 v25, 0x2b800000, v25", "v_rcp_f32 v23, v25", "v_mul_f32 v24, v24, v23"]
    GSPLIT = 70
    c_q = struct.unpack("<I", struct.pack("<f", math.log2(math.e) / math.sqrt(32.0)))[0]
    kvfin = [f"v_accvgpr_read_b32 v{21+r}, a{KVA+r}" for r in range(4)]
    for r in range(4): kvfin += [f"v_accvgpr_read_b32 v1, a{KVW+r}", f"v_add_f32 v{21+r}, v{21+r}, v1", f"v_mul_f32 v{21+r}, s84, v{21+r}"]
    kvfin += ["v_cvt_pk_bf16_f32 v22, v21, v22", "v_cvt_pk_bf16_f32 v23, v23, v24",
              f"v_and_b32 v1, 15, {L}", "v_lshlrev_b32 v1, 4, v1", f"v_bfe_u32 v21, {L}, 4, 1", "v_lshl_add_u32 v1, v21, 9, v1",
              f"v_lshrrev_b32 v21, 5, {L}", "v_lshl_add_u32 v1, v21, 3, v1",
              f"buffer_store_dwordx2 v[22:23], v1, s[{S_WS}:{S_WS+3}], s82 offen offset:2048 sc1",
              f"v_bfe_u32 v24, {L}, 3, 1", "v_lshlrev_b32 v24, 10, v24", f"v_bfe_u32 v21, {L}, 2, 1", "v_lshl_add_u32 v24, v21, 9, v24",
              f"v_lshrrev_b32 v21, 4, {L}", "v_lshl_add_u32 v24, v21, 6, v24", f"v_and_b32 v21, 3, {L}", "v_lshl_add_u32 v24, v21, 1, v24",
              f"buffer_store_short v22, v24, s[{S_WS}:{S_WS+3}], s83 offen sc1",
              f"buffer_store_short_d16_hi v22, v24, s[{S_WS}:{S_WS+3}], s83 offen offset:16 sc1",
              f"buffer_store_short v23, v24, s[{S_WS}:{S_WS+3}], s83 offen offset:32 sc1",
              f"buffer_store_short_d16_hi v23, v24, s[{S_WS}:{S_WS+3}], s83 offen offset:48 sc1"]
    kvsal = f"""s_lshl_b32 s82, s{S_MT}, 3
    s_lshr_b32 s83, s{S_NT}, 2
    s_add_u32 s82, s82, s83
    s_lshl_b32 s82, s82, 12
    s_add_u32 s82, s82, {WS_KV:#x}
    s_and_b32 s85, s{S_NT}, 1
    s_lshl_b32 s83, s85, 3
    s_add_u32 s83, s83, s82
    s_lshl_b32 s85, s85, 8
    s_add_u32 s82, s82, s85
    s_lshl_b32 s85, s{S_W}, 10
    s_add_u32 s82, s82, s85
    s_lshl_b32 s85, s{S_W}, 8
    s_add_u32 s83, s83, s85
    s_and_b32 s85, s{S_NT}, 2
    s_cmp_eq_u32 s85, 0
    s_cselect_b32 s84, {c_q:#x}, 1.0
    s_cselect_b32 s82, {OOB:#x}, s82
    s_cselect_b32 s83, s83, {OOB:#x}
    s_cmp_ge_u32 s{S_W}, 2
    s_cselect_b32 s82, {OOB:#x}, s82
    s_cselect_b32 s83, {OOB:#x}, s83""".split("\n")
    kvsal = [x.strip() for x in kvsal]
    kvsal = kvsal[:-7] + ["\n".join(kvsal[-7:-3]), "\n".join(kvsal[-3:])]
    segs = []
    grest = []
    def tstore(q):
        so = S_TDST if q < 7 else S_TDST2
        return [I(f"buffer_store_dwordx4 {ar(A_T,4)}, v{V_L16}, s[{S_WS}:{S_WS+3}], s{so} offen sc1", vm=("ts", q)), I(f"s_add_u32 s{so}, s{so}, 8192")]
    for s in range(NST - 1):
        tr = Trace()
        gaps = [[] for _ in range(66)]
        rl = reads(s, 1)
        u = s - KVD
        if 1 <= u <= 8:
            for e in range(2):
                for h in range(2):
                    rl.append(I(f"ds_read_b64_tr_b16 {ar(KVW+4*e+2*h,2)}, v{V_RKW} offset:{(s%2)*8192 + e*1024 + h*128}", lg=("kvf", s)))
        if u == 9:
            gaps[1].append(I(f"v_add_u32 v21, {LDS_KW + 8192*(s%2)}, v{V_L16}"))
            gaps[3].append(I(f"s_lshl_b32 s82, s{S_W}, 10")); gaps[5].append(I("v_add_u32 v22, s82, v21"))
            gaps[7].append(I("s_xor_b32 s82, s82, 2048")); gaps[9].append(I("v_add_u32 v21, s82, v21"))
            rl.append(I(f"ds_write_b128 v22, {ar(KVA,4)}", lg=("kvf", s)))
        for k, it in enumerate(rl): gaps[2*k].append(it)
        gaps[57].append(I(f"v_xor_b32 v{V_R3}, s{S_TOG}, v{V_R3}")); gaps[59].append(I(f"v_xor_b32 v{V_R7}, s{S_TOG}, v{V_R7}"))
        g, adv = dma_group(s + 1, ntw)
        lo = p1 if s == 0 else nhead
        G = 11 if u == 9 else 1
        for k in range(lo, len(g)):
            pre, it = g[k]
            if pre: gaps[G - 1].append(I(pre))
            gaps[G].append(it)
            for x in adv.get(k, []): gaps[G + 1].append(I(x))
            G += 4
        G -= 2
        if touch and s >= 1 and s + touch + 1 < NST:
            for _ in range(2 if (s == 1 and touch >= 2) else 1):
                gaps[G].append(touch_ins()); gaps[G + 1].append(I(touch_adv)); G += 2
        if 0 <= u <= 7:
            for e in range(2):
                gaps[G].append(I(f"buffer_load_dwordx4 {ar(A_KX + 8*(u%2) + 4*e,4)}, v{V_KX}, s[{S_X}:{S_X+3}], 0 offen offset:{u*256 + e*64}", vm=("kx", u))); G += 2
        q = s - tq0
        if 0 <= q < 9:
            fl = " nt" if ntt else ""
            gaps[G - 1].append(I(f"s_add_u32 m0, s{S_M0T}, {(q%3)*4096}"))
            if q == 6:
                gaps[G - 2].append(I(f"v_lshrrev_b32 v{V_KX}, 5, {L}")); gaps[G - 1].append(I(f"v_lshl_add_u32 v{V_KX}, v{V_KX}, 13, v{V_DT}"))
                gaps[G].append(I(f"buffer_load_dwordx4 v{V_KX}, s[{S_WD}:{S_WD+3}], s{S_TSRCS} offen{fl} lds", vm=("t", q)))
            else:
                srdn, so = (S_WD, S_TSRC) if q < 7 else (S_WO, S_TSRC2)
                gaps[G].append(I(f"buffer_load_dwordx4 v{V_DT}, s[{srdn}:{srdn+3}], s{so} offen{fl} lds", vm=("t", q)))
                gaps[G + 1].append(I(f"s_add_u32 s{so}, s{so}, {48*2048 if q == 2 else 0x10000}"))
            G += 2
        q = s - tq0 - 2
        if 0 <= q < 9:
            x, y = tstore(q); gaps[G].append(x); gaps[G + 1].append(y); G += 2
        if s == ot:
            for x in one_time: gaps[G].append(x); G += 2
        if s == 2:
            gaps[G - 1].append(I(f"v_mov_b32 v21, s{S_TAG}"))
            gaps[G].append(I(f"s_or_b32 s83, s2, s{S_W}\ns_cselect_b32 s83, {OOB:#x}, 0")); G += 2
            gaps[G].extend([I("s_mov_b64 exec, 1"), I(f"buffer_store_dword v21, off, s[{S_DBG}:{S_DBG+3}], s83 sc1"), I("s_mov_b64 exec, -1")]); G += 2
        if s == 6:
            gaps[G].append(I(f"buffer_load_dword a{A_TAG}, off, s[{S_DBG}:{S_DBG+3}], 0 sc1", vm=("zp", 0))); G += 2
        if s == esig + 1:
            gaps[G - 2].append(I(f"s_lshl_b32 s82, s{S_MT}, 5")); gaps[G - 1].append(I(f"s_add_u32 s82, s82, s{S_NT}\ns_lshl_b32 s82, s82, 7")); gaps[G].append(I(f"s_add_u32 s82, s82, {WS_FLAG + 0x28000:#x}"))
            gaps[G + 1].append(I(f"s_cmp_eq_u32 s{S_W}, 0\ns_cselect_b32 s82, s82, {OOB:#x}")); G += 2
            gaps[G].extend([I("s_mov_b64 exec, 1"), I(f"buffer_store_dword a{A_TAG}, off, s[{S_WS}:{S_WS+3}], s82 sc1"), I("s_mov_b64 exec, -1")]); G += 2
        kvstart = G
        if s == gs:
            for q_ in range(4):
                gaps[G].append(I(f"buffer_load_dwordx4 {ar(A_GX+4*q_,4)}, v{V_L16}, s[{S_X}:{S_X+3}], s{S_GROW} offen offset:{1024*q_}", vm=("g", 0))); G += 2
            for q_ in range(2):
                gaps[G].append(I(f"buffer_load_dwordx4 {ar(A_GW+4*q_,4)}, v{V_L16}, s[{S_GW}:{S_GW+3}], 0 offen offset:{1024*q_}", vm=("g", 0))); G += 2
        assert G < 64, (s, G)
        tr.wait(lg=[("fr", s, 0)] + ([("tf", q)] if 0 <= q < 9 else []) + ([("kvp", 0)] if u == 10 else []))
        vq = []
        if s in (gs + 2, gs + 3): vq = gfast
        if u == 10: vq = list(kvfin)
        k = 0
        for j in range(8):
            for i in range(8):
                tr.ins(mfma(0, j, i, first=(s == 0)))
                tr.items.extend(gaps[k])
                cap = vcap(gaps[k])
                if s == 0:
                    for _ in range(2):
                        if late and cap > 0:
                            for l in late.pop(0): tr.ins(l)
                            cap -= 1
                while vq and cap > 0 and not (u == 10 and k < kvstart - 8):
                    if vq[0].startswith("buffer_"):
                        if cap < 2: break
                        tr.ins(vq.pop(0), vm=("kvst", 0)); cap -= 2
                    else:
                        tr.ins(vq.pop(0)); cap -= 1
                k += 1
        if s != gs + 2: assert not vq
        need = [("st", s + 1)]
        if 0 <= s - tq0 - 1 < 9: need.append(("t", s - tq0 - 1))
        if s == gs + 1: need.append(("g", 0))
        if 1 <= u <= 8: need.append(("kx", u - 1))
        if s == 7: need.append(("zp", 0))
        if s == esig: need.append(("kvst", 0))
        if pads and s == chain_at: tr.ins("@CHAIN1")
        tr.wait(vm=need, lg=[("fr", s, 1)] + ([("kvf", s)] if 1 <= u <= 9 else []))
        tr.ins("s_barrier")
        segs.append(tr)
        tr = Trace()
        gaps = [[] for _ in range(68)]
        for k, it in enumerate(reads(s + 1, 0)): gaps[2*k + 1].append(it)
        q = s - tq0 - 1
        if 0 <= q < 9:
            for h in range(2):
                gaps[49 + 2*h].append(I(f"ds_read_b64_tr_b16 {ar(A_T+2*h,2)}, v{V_RT} offset:{(q%3)*4096 + h*2048}", lg=("tf", q)))
        if u == 9:
            gaps[53].append(I(f"ds_read_b128 {ar(KVW,4)}, v21", lg=("kvp", 0)))
            for k, x in enumerate(kvsal): gaps[2*k + 3 if 2*k + 3 < 48 else 55].append(I(x.strip()))
        if s + 2 < NST:
            g, adv = dma_group(s + 2, ntw)
            hg = [2*round(k*62/(2*nhead)) for k in range(nhead)]
            for k in range(nhead):
                pre, it = g[k]
                if pre:
                    if hg[k]: gaps[hg[k] - 1].insert(0, I(pre))
                    else: tr.ins(pre)
                gaps[hg[k]].append(it)
                for x in adv.get(k, []): gaps[hg[k] + 2].append(I(x))
        if s == 7:
            gaps[54].append(I(f"v_accvgpr_read_b32 v1, a{A_TAG}"))
            gaps[56].append(I(f"v_cmp_eq_u32 vcc, 0, v1")); gaps[58].append(I("s_cbranch_vccnz KM_ZSPIN\nKM_ZBACK:"))
            gaps[60].append(I(f"v_accvgpr_write_b32 a{A_TAG}, v1")); gaps[62].append(I(f"v_readfirstlane_b32 s{S_TAG}, v1"))
        if s == 14:
            gaps[0].append(I(f"v_lshlrev_b32 v{V_T}, 7, {L}"))
            gaps[2].append(I(f"s_mov_b32 s{S_EF}, {WS_FLAG + 0x28000:#x}"))
            gaps[epos].append(I(f"buffer_load_dword v{V_KX}, v{V_T}, s[{S_WS}:{S_WS+3}], s{S_EF} offen sc1", vm=("ep", 0)))
            if pads:
                gaps[50].append(I("s_getpc_b64 s[32:33]\nKM_PC2:\ns_add_u32 s32, s32, KM_NORM-0x4000-KM_PC2\ns_addc_u32 s33, s33, 0"))
                gaps[52].append(I("s_and_b32 s33, s33, 0xffff")); gaps[53].append(I("s_mov_b32 s34, KM_END-KM_NORM+0x4000"))
                gaps[54].append(I("s_mov_b32 s35, 0x00020000")); gaps[55].append(I(f"s_lshl_b32 s82, s{S_W}, 13"))
                gaps[56].append(I(f"buffer_load_dword a{A_DUM}, v{V_T}, s[32:35], s82 offen"))
        vq = []; slow = []; slow_from = None
        if s in (gs + 1, gs + 2): vq = gfast
        if s == gs + 3: slow = list(gslow)
        ml = [mfma(1, j, i) for j in range(8) for i in range(8)]
        if 1 <= u <= 8:
            for e in range(2):
                ml.insert(30 + 20*e, f"v_mfma_f32_16x16x32_bf16 {ar(KVA,4)}, {ar(A_KX + 8*((u-1)%2) + 4*e,4)}, {ar(KVW+4*e,4)}, {'0' if (u == 1 and e == 0) else ar(KVA,4)}")
        for k, m in enumerate(ml):
            tr.ins(m)
            tr.items.extend(gaps[k])
            for _ in range(vcap(gaps[k])):
                if vq: tr.ins(vq.pop(0))
                elif s == 0 and late:
                    for l in late.pop(0): tr.ins(l)
            if slow and not vq:
                if slow_from is None: slow_from = k + 2
                if k >= slow_from and (k - slow_from) % 2 == 0: tr.ins(slow.pop(0))
        for k in range(len(ml), 68): assert not gaps[k], (s, k)
        assert not slow and not late
        segs.append(tr)

    P = p2
    ec = Trace()
    ec.wait(vm=[("ep", 0)])
    ec.raw(f"""
    v_cmp_ne_u32 vcc, s{S_TAG}, v{V_KX}
    s_and_b32 s80, s2, 7
    s_lshr_b32 s81, s80, 1
    s_lshl_b32 s{P.S_MT}, s{S_MT}, 2
    s_cbranch_vccnz KM_ESPIN
    KM_EBACK:
    s_add_u32 s{P.S_MT}, s{P.S_MT}, s81
    s_lshl_b32 s{P.S_M0KV}, s{S_W}, 13
    s_add_u32 s82, s{P.S_M0KV}, {WS_KV:#x}
    s_add_u32 s{P.S_KVB}, s86, s82
    s_addc_u32 s{P.S_KVB+1}, s87, 0
    v_add_u32 v{V_DT}, 4096, v{V_L16}
    """)
    su2 = f"""
    s_and_b32 s80, s80, 1
    s_lshl_b32 s80, s80, 2
    s_and_b32 s90, s{S_NT}, 3
    s_add_u32 s{P.S_NT}, s80, s90
    s_lshr_b32 s90, s{P.S_MT}, 1
    s_mul_i32 s90, s90, 112
    s_mul_i32 s91, s{S_W}, 28
    s_add_u32 s90, s90, s91
    s_lshl_b32 s90, s90, 13
    s_and_b32 s44, s{P.S_MT}, 1
    s_lshl_b32 s44, s44, 12
    s_add_u32 s90, s90, s44
    s_add_u32 s58, s86, s90\ns_addc_u32 s59, s87, 0
    s_add_u32 s60, s58, 0x2000\ns_addc_u32 s61, s59, 0
    s_add_u32 s62, s58, 0x4000\ns_addc_u32 s63, s59, 0
    s_mov_b64 s[{P.S_HB}:{P.S_HB+1}], s[62:63]
    s_mul_i32 s90, s{P.S_NT}, 144
    s_add_u32 s91, s91, s90
    s_lshl_b32 s91, s91, 13
    s_add_u32 s91, s91, {WS_WT:#x}
    s_add_u32 s64, s86, s91\ns_addc_u32 s65, s87, 0
    s_add_u32 s66, s64, 0x2000\ns_addc_u32 s67, s65, 0
    s_add_u32 s68, s64, 0x4000\ns_addc_u32 s69, s65, 0
    s_mov_b64 s[{P.S_WB}:{P.S_WB+1}], s[68:69]
    s_lshl_b32 s91, s{S_W}, 3
    s_add_u32 s90, s90, s91
    s_lshl_b32 s90, s90, 13
    s_add_u32 s90, s90, {WS_WT + 112*8192:#x}
    s_add_u32 s{P.S_WOB}, s86, s90\ns_addc_u32 s{P.S_WOB+1}, s87, 0
    s_mul_i32 s{P.S_M0SP}, s{S_W}, 24576
    s_add_u32 s{P.S_M0SP}, s{P.S_M0SP}, {P.LDS_SP}
    s_mov_b32 s{P.S_OUT}, s96
    s_and_b32 s{P.S_OUT+1}, s97, 0xffff
    s_mov_b32 s{P.S_OUT+2}, {2048*1024*2:#x}
    s_mov_b32 s{P.S_OUT+3}, 0x00020000
    s_mov_b32 s{P.S_OF}, s{S_FLG}
    s_lshl_b32 s90, s{P.S_MT}, 12
    s_add_u32 s{P.S_OP}, s90, {WS_FLAG:#x}
    s_lshl_b32 s90, s{S_W}, 13
    s_add_u32 s{P.S_HP}, s90, {WS_FLAG + 0x20000:#x}
    s_lshl_b32 s90, s2, 7
    s_add_u32 s90, s90, {WS_FLAG + 0x20000:#x}
    s_cmp_eq_u32 s{S_W}, 0\ns_cselect_b32 s{P.S_HF}, s90, {OOB:#x}
    """
    su2 = [x.strip() for x in su2.strip().split("\n    ")]

    def last_stage(wn):
        tr = Trace()
        s = NST - 1
        su = f"""
        s_lshr_b32 s81, s{S_W}, 1
        s_lshl_b32 s82, s{S_MT}, 1
        s_add_u32 s82, s82, s81
        s_mul_i32 s82, s82, 112
        s_lshr_b32 s83, s{S_NT}, 1
        s_mul_i32 s83, s83, 7
        s_add_u32 s82, s82, s83
        s_and_b32 s84, s{S_NT}, 1
        s_add_u32 s85, s82, 6
        s_lshl_b32 s85, s85, 13
        s_mul_i32 s83, s84, 3
        s_add_u32 s82, s82, s83
        s_add_u32 s82, s82, {2*wn}
        s_lshl_b32 s82, s82, 13
        s_add_u32 s83, s82, 8192
        """
        if wn:
            su += f"""
            s_lshl_b32 s84, s84, 9
            s_add_u32 s85, s85, s84
            v_and_b32 v21, 15, {L}
            v_lshlrev_b32 v21, 4, v21
            v_bfe_u32 v24, {L}, 4, 1
            v_lshl_add_u32 v22, v24, 9, v21
            v_lshl_add_u32 v21, v24, 10, v21
            v_lshrrev_b32 v24, 5, {L}
            v_lshl_add_u32 v22, v24, 10, v22
            v_lshl_add_u32 v21, v24, 8, v21
            s_lshl_b32 s81, s81, 13
            s_add_u32 s81, s81, {P.LDS_Q}
            v_add_u32 v22, s81, v22
            v_add_u32 v23, 4096, v21
            """
        setup = [l.strip() for l in su.strip().split("\n") if l.strip()] + su2
        ffn = lambda t, i: dict(kind="f", t=t, i=i, mf=[(2*t, i), (4 + 2*t, i), (2*t + 1, i), (5 + 2*t, i)])
        if wn == 0:
            halves = [[ffn(0, i) for i in range(8)], [ffn(1, i) for i in range(8)]]
        else:
            halves = [[dict(kind="q", i=i, mf=[(3, i), (7, i)]) for i in range(8)] +
                      [dict(kind="s", i=i, mf=[(2, i), (6, i), (2, i + 1), (6, i + 1)]) for i in range(0, 8, 2)],
                      [ffn(0, i) for i in range(8)]]
        pieces = halves[0] + halves[1]
        half = len(halves[0])
        jsets = [sorted(set(j for pc in hv for j, _ in pc["mf"])) for hv in halves]
        def piece_ops(pc, pk):
            o = []
            i = pc["i"]
            tmp = 12 + 4*(i % 2)
            def reg(j, i):
                p_, b = accn(j, i)
                if p_ == "v": return b
                for r in range(4): o.append(f"v_accvgpr_read_b32 v{tmp+r}, a{b+r}")
                return tmp
            r_ = [reg(j, i_) for j, i_ in pc["mf"]]
            if pc["kind"] == "q":
                g0_, g1_ = r_
            else:
                g0_, u0, g1_, u1 = r_
                for g_, u_ in ((g0_, u0), (g1_, u1)):
                    for r in range(4): o.append(f"v_max_f32 v{g_+r}, 0, v{g_+r}")
                    if pk:
                        o.append(f"v_pk_mul_f32 {vr(g_,2)}, {vr(g_,2)}, {vr(u_,2)}")
                        o.append(f"v_pk_mul_f32 {vr(g_+2,2)}, {vr(g_+2,2)}, {vr(u_+2,2)}")
                    else:
                        for r in range(4): o.append(f"v_mul_f32 v{g_+r}, v{g_+r}, v{u_+r}")
            o += [f"v_cvt_pk_bf16_f32 v{g0_}, v{g0_}, v{g0_+1}", f"v_cvt_pk_bf16_f32 v{g0_+1}, v{g0_+2}, v{g0_+3}",
                  f"v_cvt_pk_bf16_f32 v{g0_+2}, v{g1_}, v{g1_+1}", f"v_cvt_pk_bf16_f32 v{g0_+3}, v{g1_+2}, v{g1_+3}"]
            if pc["kind"] == "q":
                o.append(f"ds_write_b128 v22, {vr(g0_,4)} offset:{(i//2)*2048 + (i%2)*256}")
            elif pc["kind"] == "s":
                o += ["s_nop 1", f"v_permlane16_swap_b32 v{g0_}, v{g0_+2}", f"v_permlane16_swap_b32 v{g0_+1}, v{g0_+3}",
                      f"buffer_store_dwordx4 {vr(g0_,4)}, {'v21' if i < 4 else 'v23'}, s[{S_WS}:{S_WS+3}], s85 offen offset:{(i%4)*1024} sc1"]
            else:
                o.append(f"buffer_store_dwordx4 {vr(g0_,4)}, {'v%d' % (V_L16 if i < 4 else V_DT)}, s[{S_WS}:{S_WS+3}], {'s82' if pc['t'] == 0 else 's83'} offen offset:{(i%4)*1024} sc1")
            return o
        rl = [xread(s, 1, i) for i in range(8)]
        for j in jsets[0]: rl += [wread(s, 1, j, 0), wread(s, 1, j, 1)]
        for x in rl: x["lg"] = ("frA", 0)
        for j in jsets[1]: rl += [wread(s, 1, j, 0), wread(s, 1, j, 1)]
        kv0 = []
        for part in range(2):
            cl = [P.kv_dma(0, part, j) for j in range(4)]
            for x in cl: x["text"] = x["text"].replace(f"v{P.V_L16},", f"v{V_L16},").replace(f"v{P.V_L16B},", f"v{V_DT},")
            kv0.append(cl)
        q = s - tq0 - 2
        tr.wait(lg=[("fr", s, 0)] + ([("tf", q)] if 0 <= q < 9 else []))
        first = []
        if gs + 4 == s:
            first.append([I("s_mov_b32 exec_lo, 1\ns_mov_b32 exec_hi, 1"), I(f"buffer_store_dwordx2 v[24:25], v{V_GROW}, s[{S_WS}:{S_WS+3}], 0 offen sc1", vm=("hst", 0)), I("s_mov_b64 exec, -1")])
        if 0 <= q < 9: first.append([tstore(q)[0]])
        for k, (j, i) in enumerate([(j, i) for j in jsets[0] for i in range(8)]):
            tr.ins(mfma(0, j, i))
            if first:
                tr.items.extend(first.pop(0)); continue
            if k in (26, 29): tr.ins(f"s_add_u32 m0, s{P.S_M0KV}, {4096 if k == 29 else 0}")
            elif k in (27, 30): tr.items.extend(kv0.pop(0))
            elif rl: tr.items.append(rl.pop(0))
            for _ in range(2):
                if setup: tr.ins(setup.pop(0))
        assert not rl
        tr.items.extend(adv64(P.S_KVB, 32768))
        for x in setup: tr.ins(x)
        tr.wait(lg=[("frA", 0)])
        ml = []
        for pi, pc in enumerate(pieces):
            if pi == half:
                ml.append((W(lg=[("fr", s, 1)]), None))
                ml += [(mfma(0, j, i), None) for j in jsets[1] for i in range(8)]
            for j, i in pc["mf"]: ml.append((mfma(1, j, i), pi))
        done_at = {}; cnt = 0; vq = []; nextp = 0
        def put(x):
            tr.ins(x, vm=("hst", 0) if x.startswith("buffer_") else None, lg=("qw", 0) if x.startswith("ds_") else None)
        for k, (m, pi) in enumerate(ml):
            if isinstance(m, dict):
                tr.items.append(m); continue
            tr.ins(m); cnt += 1
            if pi is not None and (k + 1 == len(ml) or ml[k + 1][1] != pi): done_at[pi] = cnt
            budget = 2
            while budget > 0:
                if not vq and nextp in done_at and cnt - done_at[nextp] >= 9:
                    vq = piece_ops(pieces[nextp], False); nextp += 1
                if not vq: break
                c_ = 2 if vq[0].startswith(("buffer_", "ds_")) else 1
                if c_ > budget: break
                put(vq.pop(0)); cnt += 1; budget -= c_
        for x in vq: put(x); cnt += 1
        while nextp < len(pieces):
            if cnt - done_at[nextp] < 9: tr.ins("s_nop 7"); cnt += 8
            for x in piece_ops(pieces[nextp], True): put(x); cnt += 1
            nextp += 1
        return tr
    l0, l1 = last_stage(0), last_stage(1)

    L2 = f"v{P.V_LANE}"
    h2 = Trace()
    h2.raw(f"""
    v_mov_b32 {L2}, {L}
    v_mov_b32 v{P.V_L16}, v{V_L16}
    v_mov_b32 v{P.V_L16B}, v{V_DT}
    v_mov_b32 v{P.V_KVR}, v{V_L16}
    s_lshl_b32 s80, s{S_W}, 12
    s_add_u32 s80, s80, {P.LDS_Q}
    v_add_u32 v24, s80, v{V_L16}
    """)
    h2.wait(vm=[("kv", 0)])
    h2.raw("s_waitcnt lgkmcnt(0)\ns_barrier")
    for q in range(4): h2.ins(f"ds_read_b128 {ar(P.A_Q + 4*q,4)}, v24 offset:{q*1024}", lg=("q", 0))
    for half in range(2): h2.items.append(P.k_read(0, half))
    for half in range(2): h2.items.append(P.v_read(0, half))
    for pp in range(4):
        h2.raw(f"""
        s_add_u32 s80, s{S_W}, {pp}
        s_and_b32 s80, s80, 3
        s_lshl_b32 s80, s80, 11
        v_add_u32 v{P.V_W+pp}, s80, v{P.V_L16}
        """)
    h2.wait(lg=[("k", 0)])
    h2.ins(P.qk(0, 0)); h2.ins(P.qk(0, 1))
    h2.raw(f"""
    v_add_u32 v{P.V_SP}, s{P.S_M0SP}, v{P.V_L16}
    v_add_u32 v{P.V_KP}, s{P.S_M0KV}, v{P.V_L16}
    v_add_u32 v{P.V_WB}, 2048, v{P.V_W}
    v_add_u32 v{P.V_WB+1}, 2048, v{P.V_W+2}
    s_nop 3
    """)
    h2.raw(f"""
    v_bfe_u32 v26, {L2}, 4, 1
    v_bfe_u32 v27, {L2}, 2, 1
    v_cmp_eq_u32 vcc, v26, v27
    v_mov_b32 v26, 0x3f803f80
    s_lshl_b32 s78, s{P.S_MT}, 9
    s_add_u32 s78, s78, {WS_G:#x}
    v_cndmask_b32 v26, 0, v26, vcc
    """)
    for r in range(4): h2.ins(f"v_accvgpr_write_b32 a{P.A_SEL+r}, v26")
    h2.raw(f"""
    s_lshl_b32 s79, s{S_MT}, 11
    s_lshl_b32 s80, s{S_W}, 9
    s_add_u32 s79, s79, s80
    s_add_u32 s79, s79, {WS_G:#x}
    v_and_b32 v26, 31, {L2}
    v_lshlrev_b32 v26, 3, v26
    v_and_b32 v27, 15, {L2}
    v_lshlrev_b32 v27, 3, v27
    v_lshlrev_b32 v25, 7, {L2}
    v_mov_b32 v24, s{S_TAG}
    """)
    def rebase(x, frm, to):
        x["text"] = x["text"].replace(f"s[{frm}:{frm+1}]", f"s[{to}:{to+1}]"); return x
    wl = lambda sg, J0, b: [rebase(P.w_load(sg, J), P.S_WB, b) for J in range(J0, J0 + 4)]
    hl = lambda sg, b: [rebase(P.h_load(sg, i), P.S_HB, b) for i in range(4)]
    early = []
    timed = [(hsig, [W(vm=[("hst", 0), ("ts", 8)]), I("s_barrier"), I("s_mov_b64 exec, 1"), I(f"buffer_store_dword v24, off, s[{S_WS}:{S_WS+3}], s{P.S_HF} sc1"), I("s_mov_b64 exec, -1")]),
             (hpoll, [I(f"buffer_load_dword v28, v25, s[{S_WS}:{S_WS+3}], s{P.S_HP} offen sc1", vm=("hp", 0))]),
             (hpoll + 2, [W(vm=[("hp", 0)]), I(f"v_cmp_ne_u32 vcc, s{S_TAG}, v28"), I("s_nop 0"), I("s_cbranch_vccnz KM_HSPIN"), I("KM_HBACK:"), I("s_barrier")] + hl(0, 58)),
             (hpoll + 2, wl(0, 0, 64)), (hpoll + 3, wl(0, 4, 64)), (hpoll + 3, hl(1, 60)), (hpoll + 4, wl(1, 0, 66)), (hpoll + 4, wl(1, 4, 66)),
             (hpoll + 5, wl(2, 0, 68)), (hpoll + 5, hl(2, 62)),
             (hpoll + 12, [I(f"buffer_load_dword v{P.V_G+hh}, v26, s[{S_WS}:{S_WS+3}], s79 offen offset:{hh*256} sc1", vm=("g2", 0)) for hh in range(2)]),
             (hpoll + 14, [I(f"buffer_load_dword v{P.V_OMG+i}, v27, s[{S_WS}:{S_WS+3}], s78 offen offset:{4 + i*128} sc1", vm=("g2", 0)) for i in range(4)])]
    body = P.main_loop(NIN, g0, early, timed)
    NDOWN, NWO, ACC = P.NDOWN, P.NWO, P.ACC
    t1 = Trace()
    n = P.NSLOT - 1
    t1.ins("s_nop 1")
    t1.ins(P.pv(n, 0)); t1.ins(P.summ(n, 0)); t1.ins(P.pv(n, 1)); t1.ins(P.summ(n, 1))
    VO = P.V_O
    q_ = Trace()
    q_.raw(f"""
    v_bfe_u32 v26, {L2}, 4, 1
    s_lshl_b32 s78, s{S_MT}, 1
    v_lshlrev_b32 v26, 10, v26
    s_lshr_b32 s79, s{S_W}, 1
    v_and_b32 v27, 15, {L2}
    s_add_u32 s78, s78, s79
    v_lshl_add_u32 v26, v27, 4, v26
    s_lshl_b32 s78, s78, 5
    v_lshrrev_b32 v27, 5, {L2}
    s_add_u32 s78, s78, s{S_NT}
    v_lshl_add_u32 v26, v27, 8, v26
    s_lshl_b32 s78, s78, 13
    s_and_b32 s79, s{S_W}, 1
    s_lshl_b32 s79, s79, 12
    s_add_u32 s78, s78, s79
    s_add_u32 s54, s78, {WS_O:#x}
    s_mov_b32 s78, 0x1f800000
    s_mov_b32 s79, 0x5f800000
    s_mov_b32 s55, 0
    v_accvgpr_read_b32 v80, a{P.A_L}
    v_accvgpr_read_b32 v81, a{P.A_L+4}
    """)
    q_.wait(vm=[("g2", 0)])
    q_.raw(f"""
    v_min_f32 v83, v80, v81
    v_max_f32 v84, v80, v81
    v_add_f32 v85, v80, v81
    v_cmp_nle_f32 s[82:83], s78, v83
    v_cmp_nge_f32 s[84:85], s79, v84
    v_cmp_u_f32 vcc, v85, v85
    """)
    q_.ins("s_nop 1\ns_or_b64 s[82:83], s[82:83], s[84:85]\ns_or_b64 vcc, vcc, s[82:83]\ns_cbranch_vccnz KM_FALLBACK\nKM_NORM:\nv_rcp_f32 v80, v80")
    q_.raw(f"""
    v_rcp_f32 v82, v81
    v_mul_f32 v80, v80, v{P.V_G}
    v_mul_f32 v82, v82, v{P.V_G+1}
    """)
    for hh in range(2):
        for pc in range(2):
            b = VO + 16*hh + 8*pc
            for r in range(8): q_.ins(f"v_mul_f32 v{b+r}, v{b+r}, v{80+2*hh}")
            for q in range(4): q_.ins(f"v_cvt_pk_bf16_f32 v{64+8*hh+4*pc+q}, v{b+2*q}, v{b+2*q+1}")
            q_.ins(f"buffer_store_dwordx4 {vr(64+8*hh+4*pc,4)}, v26, s[{S_WS}:{S_WS+3}], s54 offen offset:{hh*2048 + pc*512} sc1", vm=("ost", 0))
    vq = q_.items
    nA, nB = nb
    stepsA = [P.gemm_step(s, vq=vq) for s in range(NIN, NIN + nA)]
    t2 = Trace()
    t2.items.extend(vq)
    t2.ins("s_nop 1")
    for q in range(4):
        t2.ins(f"v_mfma_f32_16x16x32_bf16 v[84:87], {ar(P.A_SEL,4)}, {vr(64+4*q,4)}, {'0' if q == 0 else 'v[84:87]'}")
    stepsA.append(t2)
    polli = lambda: I(f"buffer_load_dword v28, v25, s[{S_WS}:{S_WS+3}], s{P.S_OP} offen sc1", vm=("op", 0))
    stepsB = [P.gemm_step(s, late=[polli()] if s == NIN + nA + nB - 1 else []) for s in range(NIN + nA, NIN + nA + nB)]
    sig = Trace()
    sig.raw(f"""
    v_and_b32 v25, 31, {L2}
    v_lshlrev_b32 v25, 7, v25
    s_lshr_b32 s78, s{P.S_MT}, 1
    s_lshl_b32 s78, s78, 18
    s_add_u32 s78, s78, s44
    s_lshl_b32 s79, s{S_W}, 16
    s_add_u32 s78, s78, s79
    s_add_u32 s78, s78, {WS_O:#x}
    s_add_u32 s56, s86, s78
    s_addc_u32 s57, s87, 0
    """)
    sig.raw(f"""
    v_sub_f32 v84, v84, v84
    s_cmp_lg_u32 s55, 0
    v_cmp_u_f32 vcc, v84, v84
    s_cbranch_scc1 KM_CHECKED
    s_cbranch_vccnz KM_FALLBACK2
    KM_CHECKED:
    """)
    sig.wait(vm=[("ost", 0)])
    sig.raw(f"""
    s_mov_b64 exec, 1
    buffer_store_dword v24, off, s[{S_WS}:{S_WS+3}], s{P.S_OF} sc1
    s_mov_b64 exec, -1
    """)
    t3 = Trace()
    t3.wait(vm=[("op", 0)])
    t3.raw(f"""
    v_cmp_ne_u32 vcc, s{S_TAG}, v28
    s_nop 0
    s_cbranch_vccnz KM_OSPIN
    KM_OBACK:
    """)
    ol = []
    for s in range(NDOWN, NDOWN + NWO):
        ol.append([rebase(P.h_load(s, i), P.S_HB, 56) for i in range(4)] + (adv64(56, 8192) if s < NDOWN + NWO - 1 else []))
    t4 = Trace()
    for grp in ol[:opre]: t4.items.extend(grp)
    k = opre
    stepsC = []
    for s in range(NIN + nA + nB, NDOWN):
        ex = []
        while len(ex) < 2 and k < 5: ex.append(ol[k]); k += 1
        stepsC.append(P.gemm_step(s, ex))
    wos = []
    for s in range(NDOWN, NDOWN + 4):
        ex = []
        while len(ex) < 2 and k < NWO: ex.append(ol[k]); k += 1
        wos.append(P.gemm_step(s, ex))
    ph = Trace()
    su = Asm()
    for pp in range(1, 4):
        su(f"s_add_u32 s78, s{S_W}, {pp}\ns_and_b32 s78, s78, 3\ns_mul_i32 s78, s78, 24576\ns_add_u32 s78, s78, {(pp-1)*8192}\nv_add_u32 v{26+pp}, s78, v{P.V_L16}")
    su(f"""
    s_mul_i32 s78, s{S_W}, 24576
    v_add_u32 v26, s78, v{P.V_L16}
    s_lshl_b32 s78, s{P.S_MT}, 17
    s_lshl_b32 s79, s{P.S_NT}, 8
    s_add_u32 s78, s78, s79
    s_lshl_b32 s79, s{S_W}, 6
    s_add_u32 s78, s78, s79
    s_add_u32 s79, s78, 0x8000
    s_add_u32 s80, s78, 0x10000
    s_add_u32 s81, s78, 0x18000
    v_and_b32 v30, 15, {L2}
    v_lshlrev_b32 v30, 11, v30
    v_bfe_u32 v25, {L2}, 4, 1
    v_lshl_add_u32 v30, v25, 5, v30
    v_lshrrev_b32 v25, 5, {L2}
    v_lshl_add_u32 v30, v25, 4, v30
    """)
    su = [l.strip() for l in su.lines]
    S2 = list(range(NDOWN + 4, NDOWN + 8))
    ph.wait(vm=[("w", s, J) for s in S2[2:] for J in range(8)], lg=[("w", s, J) for s in S2[:2] for J in range(8)])
    ph.ins("s_barrier")
    for idx, pp in enumerate((1, 2, 3, 0)):
        fill = [[] for _ in range(32)]
        if idx == 0:
            for q, x in enumerate(su): fill[q].append(I(x))
        else:
            prev = (1, 2, 3)[idx - 1]
            for t in range(8):
                fill[4 + 3*t].append(I(f"ds_write_b128 v{26+prev}, {vr(ACC + (prev*8 + t)*4, 4)} offset:{t*1024}", lg=("rw", prev)))
        if idx == 3:
            rd = [I(f"ds_read_b128 {vr(ACC + 32 + (s_*8 + t)*4, 4)}, v26 offset:{s_*8192 + t*1024}", lg=("rr", s_)) for s_ in range(2) for t in range(8)]
            free = [g for g in range(32) if not fill[g]]
            for x, g in zip(rd, free): fill[g].append(x)
            ph.wait(lg=[("rw", 2)])
            ph.ins("s_barrier")
        mu = 0
        for s in S2:
            if idx == 0: ph.wait(vm=[("h", s, i) for i in range(4)])
            for J in (2*pp, 2*pp + 1):
                for i in range(4):
                    ph.ins(P.gemm_mfma(s, J, i, False)); ph.items.extend(fill[mu]); mu += 1
    ph.wait(lg=[("rw", 3), ("rr", 1)])
    ph.ins("s_barrier")
    for t in range(8): ph.ins(f"ds_read_b128 {vr(48 + t*4, 4)}, v26 offset:{2*8192 + t*1024}", lg=("rr", 2))
    for s_ in range(3):
        if s_ == 2: ph.wait(lg=[("rr", 2)])
        for r in range(0, 32, 2):
            ph.ins(f"v_pk_add_f32 {vr(ACC+r,2)}, {vr(ACC+r,2)}, {vr((ACC + 32 + s_*32 if s_ < 2 else 48) + r,2)}")
    for i in range(4):
        b0, b1 = ACC + i*4, ACC + (4 + i)*4
        d = 32 + i*4
        om = P.V_OMG + i
        for b in (b0, b0 + 2, b1, b1 + 2):
            ph.ins(f"v_pk_mul_f32 {vr(b,2)}, {vr(b,2)}, {vr(om,2)} op_sel_hi:[1,0]" if om % 2 == 0 else f"v_pk_mul_f32 {vr(b,2)}, {vr(b,2)}, {vr(om-1,2)} op_sel:[0,1] op_sel_hi:[1,1]")
        ph.raw(f"""
        v_cvt_pk_bf16_f32 v{d}, v{b0}, v{b0+1}
        v_cvt_pk_bf16_f32 v{d+1}, v{b0+2}, v{b0+3}
        v_cvt_pk_bf16_f32 v{d+2}, v{b1}, v{b1+1}
        v_cvt_pk_bf16_f32 v{d+3}, v{b1+2}, v{b1+3}
        s_nop 1
        v_permlane16_swap_b32 v{d}, v{d+2}
        v_permlane16_swap_b32 v{d+1}, v{d+3}
        buffer_store_dwordx4 {vr(d,4)}, v30, s[{P.S_OUT}:{P.S_OUT+3}], s{78+i} offen nt
        """)
    head = [pro, pro2] + segs + [ec]
    rest = [h2, body, t1] + stepsA + [sig] + stepsB + [t3, t4] + stepsC + wos + [ph]
    import copy
    resolve(head + [l0] + rest)
    saved = [[(x.get("wvm"), x.get("wlg")) for x in seg.items] for seg in rest]
    resolve(head + [l1] + rest)
    for seg, sv in zip(rest, saved):
        for x, (v, l) in zip(seg.items, sv):
            if x["text"] is None:
                mn = lambda p, q: q if p is None else p if q is None else min(p, q)
                x["wvm"], x["wlg"] = mn(x["wvm"], v), mn(x["wlg"], l)
    emit_trace(a, [pro]); st.stamp()
    if pads:
        a("s_branch KM_BODY")
        a.lines.append(".p2align 12")
        a.label("KM_BODY")
    emit_trace(a, [pro2]); st.stamp()
    for k, tr in enumerate(segs):
        emit_trace(a, [tr])
        if 'stg' in exp and k % 2 == 0: st.stamp()
    st.stamp()
    emit_trace(a, [ec])
    if 'ec' in exp: st.stamp()
    a(f"s_bitcmp1_b32 s{S_W}, 0")
    a("s_cbranch_scc1 KM_LAST1")
    emit_trace(a, [l0])
    a("s_branch KM_P2")
    a.label("KM_LAST1")
    emit_trace(a, [l1])
    a.label("KM_P2")
    st.stamp()
    if pads: a.lines.append("@CHAIN2")
    emit_trace(a, [h2]); st.stamp()
    b = Asm(); emit_trace(b, [body])
    for l in b.lines:
        a.lines.append(l)
        if 'its' in exp and l.strip() in ("s_barrier", "KM_HBACK:"): st.stamp()
    st.stamp()
    emit_trace(a, [t1]); st.stamp()
    for seg in stepsA + [sig]: emit_trace(a, [seg])
    st.stamp()
    for seg in stepsB: emit_trace(a, [seg])
    st.stamp()
    emit_trace(a, [t3]); st.stamp()
    for seg in [t4] + stepsC: emit_trace(a, [seg])
    st.stamp()
    for seg in wos: emit_trace(a, [seg])
    st.stamp()
    emit_trace(a, [ph])
    if dbg:
        a("s_waitcnt vmcnt(0)")
        st.stamp(force=True)
        st.dump(0, S_W, 86)
    a("s_endpgm")
    for nm, ld, val in (("Z", f"buffer_load_dword v1, off, s[{S_DBG}:{S_DBG+3}], 0 sc1", f"eq_u32 vcc, 0, v1"),
                        ("E", f"buffer_load_dword v{V_KX}, v{V_T}, s[{S_WS}:{S_WS+3}], s{S_EF} offen sc1", f"ne_u32 vcc, s{S_TAG}, v{V_KX}"),
                        ("H", f"buffer_load_dword v28, v25, s[{S_WS}:{S_WS+3}], s{P.S_HP} offen sc1", f"ne_u32 vcc, s{S_TAG}, v28"),
                        ("O", f"buffer_load_dword v28, v25, s[{S_WS}:{S_WS+3}], s{P.S_OP} offen sc1", f"ne_u32 vcc, s{S_TAG}, v28")):
        a(f"""
        KM_{nm}SPIN:
        s_mov_b32 s91, 0x40000
        KM_{nm}SPIN1:
        {ld}
        s_waitcnt vmcnt(0)
        v_cmp_{val}
        s_sub_u32 s91, s91, 1
        s_cbranch_vccz KM_{nm}BACK
        s_cmp_eq_u32 s91, 0
        s_cbranch_scc1 KM_{nm}BACK
        s_sleep 1
        s_branch KM_{nm}SPIN1
        """)
    A_K, A_Q = P.A_K, P.A_Q
    a.label("KM_FALLBACK2")
    a("s_mov_b32 s55, 2")
    a.label("KM_FALLBACK")
    a(f"""
    s_or_b32 s55, s55, 1
    s_waitcnt vmcnt(0) lgkmcnt(0)
    s_nop 15
    v_mov_b32 v82, 0xff7fffff
    v_mov_b32 v83, 0xff7fffff
    v_mov_b32 v80, 0
    v_mov_b32 v81, 0
    s_mov_b32 s78, {WS_KV:#x}
    """)
    for r in range(32): a(f"v_mov_b32 v{VO+r}, 0")
    a.label("KM_FB_LOOP")
    for q in range(4):
        a(f"buffer_load_dwordx4 {ar(A_K+4*q,4)}, v{P.V_L16}, s[{S_WS}:{S_WS+3}], s78 offen offset:{q*1024} sc1")
    a("s_waitcnt vmcnt(0)")
    for hh in range(2):
        O = VO + 16*hh; m = 82 + hh; l = 80 + hh
        a(f"v_mfma_f32_32x32x16_bf16 v[64:79], {ar(A_K,4)}, {ar(A_Q+8*hh,4)}, 0")
        a(f"v_mfma_f32_32x32x16_bf16 v[64:79], {ar(A_K+4,4)}, {ar(A_Q+8*hh+4,4)}, v[64:79]")
        a("s_nop 15")
        a("v_max_f32 v84, v64, v65")
        for r in range(2, 16, 2): a(f"v_max3_f32 v84, v{64+r}, v{65+r}, v84")
        a(f"""
        v_mov_b32 v85, v84
        s_nop 1
        v_permlane32_swap_b32 v84, v85
        s_nop 1
        v_max3_f32 v84, v84, v85, v{m}
        v_sub_f32 v85, v{m}, v84
        v_exp_f32 v85, v85
        v_mov_b32 v{m}, v84
        v_mul_f32 v{l}, v{l}, v85
        """)
        for r in range(16):
            a(f"v_sub_f32 v{64+r}, v{64+r}, v84")
            a(f"v_exp_f32 v{64+r}, v{64+r}")
            a(f"v_mul_f32 v{O+r}, v{O+r}, v85")
        for r in range(8): a(f"v_cvt_pk_bf16_f32 v{64+r}, v{64+2*r}, v{65+2*r}")
        for r in range(8):
            a(f"v_lshlrev_b32 v86, 16, v{64+r}\nv_and_b32 v87, 0xffff0000, v{64+r}\nv_add_f32 v{l}, v{l}, v86\nv_add_f32 v{l}, v{l}, v87")
        a(f"v_mfma_f32_32x32x16_bf16 {vr(O,16)}, {ar(A_K+8,4)}, v[64:67], {vr(O,16)}")
        a(f"v_mfma_f32_32x32x16_bf16 {vr(O,16)}, {ar(A_K+12,4)}, v[68:71], {vr(O,16)}")
        a("s_nop 15")
    a(f"""
    s_add_u32 s78, s78, 4096
    s_cmp_lt_u32 s78, {WS_KV + 64*4096:#x}
    s_cbranch_scc1 KM_FB_LOOP
    v_mov_b32 v84, v80
    v_mov_b32 v85, v81
    s_nop 1
    v_permlane32_swap_b32 v80, v84
    v_permlane32_swap_b32 v81, v85
    s_nop 1
    v_add_f32 v80, v80, v84
    v_add_f32 v81, v81, v85
    s_cmp_eq_u32 s55, 1
    s_cbranch_scc1 KM_NORM
    v_rcp_f32 v80, v80
    v_rcp_f32 v82, v81
    s_nop 0
    v_mul_f32 v80, v80, v{P.V_G}
    v_mul_f32 v82, v82, v{P.V_G+1}
    """)
    for hh in range(2):
        for pc in range(2):
            b = VO + 16*hh + 8*pc
            for r in range(8): a(f"v_mul_f32 v{b+r}, v{b+r}, v{80+2*hh}")
            for q in range(4): a(f"v_cvt_pk_bf16_f32 v{64+8*hh+4*pc+q}, v{b+2*q}, v{b+2*q+1}")
            a(f"buffer_store_dwordx4 {vr(64+8*hh+4*pc,4)}, v26, s[{S_WS}:{S_WS+3}], s54 offen offset:{hh*2048 + pc*512} sc1")
    a(f"""
    s_waitcnt vmcnt(0)
    s_branch KM_CHECKED
    KM_END:
    s_endpgm
    """)
    return a.text()
```

```python
from common import *
import math, struct

LDS_SP = 65536
K2_LDS = 163840

V_L16, V_L16B, V_KVR = 1, 2, 3
V_W = 4
V_SP, V_KP, V_WB = 8, 9, 10
V_LANE, V_OMG, V_G = 16, 18, 22
SB = [32, 48]; PB = [64, 72]
ACC = 128
A_O, A_L, A_SEL, A_Q, A_K, A_V = 0, 32, 40, 44, 60, 76
A_WR, RW = 92, 20
A_HR, RH = 172, 3
A_WX = 220
S_OUT, S_WS = 20, 24
S_HB, S_WB, S_KVB, S_XB = 12, 14, 16, 18
S_W, S_MT, S_NT, S_M0KV, S_M0SP = 36, 28, 29, 30, 31
S_WOB = 32
S_HF, S_HP, S_OF, S_OP = 8, 9, 10, 11
LDS_Q = 65536
NDOWN, NWO = 28, 8
NSLOT = 128

I = lambda text, vm=None, lg=None: dict(text=text, vm=vm, lg=lg)
W = lambda vm=(), lg=(): dict(text=None, needvm=list(vm), needlg=list(lg))
def adv64(s, n): return [I(f"s_add_u32 s{s}, s{s}, {n:#x}\ns_addc_u32 s{s+1}, s{s+1}, 0")]

def accr(J, i): return vr(ACC + (J*4 + i)*4, 4)
V_O = 96
def wreg(sig, J):
    if sig == NDOWN + 7: return ar(A_WX + 4*J, 4)
    if sig == NDOWN + 6: return ar(A_O + 4*J, 4)
    return ar(A_WR + 4*((8*sig + J) % RW), 4)
OREGS = [ar(A_Q + 4*k, 4) for k in range(12)] + [vr(V_O + 4*k, 4) for k in range(8)] + [ar(A_HR + 4*k, 4) for k in range(4*RH)]
def hreg(sig, i):
    if sig >= NDOWN: return OREGS[4*(sig - NDOWN) + i]
    return ar(A_HR + 16*(sig % RH) + 4*i, 4)
def gemm_mfma(sig, J, i, first):
    return f"v_mfma_f32_16x16x32_bf16 {accr(J,i)}, {wreg(sig,J)}, {hreg(sig,i)}, {'0' if first else accr(J,i)}"
def h_load(sig, i):
    fl = " sc1"
    return I(f"global_load_dwordx4 {hreg(sig,i)}, v{V_L16}, s[{S_HB}:{S_HB+1}] offset:{i*1024}{fl}", vm=("h", sig, i))
ETA0 = 55
S_WB0 = 64
def configure(NIN):
    global ETA0
    ETA0 = 2*NIN + RW // 4
def wsrc(sig, J):
    eta = 2*sig + J // 4
    if eta < ETA0: return "ring"
    if sig < NDOWN + 6: return "lds"
    return "x"
def slot_of(eta): return (eta - ETA0) % 8
def w_load(sig, J):
    src = wsrc(sig, J)
    if src == "ring":
        return I(f"global_load_dwordx4 {wreg(sig,J)}, v{V_W + J//2}, s[{S_WB}:{S_WB+1}] offset:{(J%2)*1024} sc1", vm=("w", sig, J))
    if src == "x":
        return I(f"global_load_dwordx4 {wreg(sig,J)}, v{V_W + J//2}, s[{S_XB}:{S_XB+1}] offset:{(J%2)*1024} sc1", vm=("w", sig, J))
    k = slot_of(2*sig + J // 4)
    reg, off = (V_SP, k*4096) if k < 6 else (V_KP, (k - 6)*4096)
    return I(f"ds_read_b128 {wreg(sig,J)}, v{reg} offset:{off + (J%4)*1024}", lg=("w", sig, J))
def w_need(sig, J):
    return W(lg=[("w", sig, J)]) if wsrc(sig, J) == "lds" else W(vm=[("w", sig, J)])
def x_base(sig, bias=0):
    b, o = (S_WB0, sig*8192) if sig < NDOWN else (S_WOB, (sig - NDOWN)*8192)
    o -= bias
    if o >= 0: return I(f"s_add_u32 s{S_XB}, s{b}, {o}\ns_addc_u32 s{S_XB+1}, s{b+1}, 0")
    return I(f"s_sub_u32 s{S_XB}, s{b}, {-o}\ns_subb_u32 s{S_XB+1}, s{b+1}, 0")
def fifo_fill(eta):
    sig, J0 = eta // 2, 4*(eta % 2)
    k = slot_of(eta)
    m0 = I(f"s_add_u32 m0, s{S_M0SP}, {k*4096}") if k < 6 else I(f"s_add_u32 m0, s{S_M0KV}, {(k-6)*4096}")
    d = []
    for J in range(J0, J0 + 4):
        p = J // 2
        reg = V_WB + p // 2 if p % 2 == 0 else V_W + p
        d.append(I(f"global_load_lds_dwordx4 v{reg}, s[{S_XB}:{S_XB+1}] offset:{(J%4)*1024} sc1", vm=("wd", eta)))
    return x_base(sig, 2048), m0, d
def qk(n, half):
    T = n // 2; Sx = SB[n % 2]
    c = "0" if half == 0 else vr(Sx, 16)
    return f"v_mfma_f32_32x32x16_bf16 {vr(Sx,16)}, {ar(A_K + 8*(T%2) + 4*half,4)}, {ar(A_Q + 8*(n%2) + 4*half,4)}, {c}"
def pv(n, half):
    T = n // 2; O = V_O + 16*(n % 2)
    c = "0" if (n < 2 and half == 0) else vr(O, 16)
    return f"v_mfma_f32_32x32x16_bf16 {vr(O,16)}, {ar(A_V + 8*(T%2) + 4*half,4)}, {vr(PB[n%2] + 4*half,4)}, {c}"
def summ(n, half):
    Lr = A_L + 4*(n % 2)
    c = "0" if (n < 2 and half == 0) else ar(Lr, 4)
    return f"v_mfma_f32_16x16x32_bf16 {ar(Lr,4)}, {ar(A_SEL,4)}, {vr(PB[n%2] + 4*half,4)}, {c}"
def kv_off(T): return ((T // 8) % 2)*32768 + (T % 8)*4096
def k_read(T, half):
    return I(f"ds_read_b128 {ar(A_K + 8*(T%2) + 4*half,4)}, v{V_KVR} offset:{kv_off(T) + half*1024}", lg=("k", T))
def v_read(T, half):
    return I(f"ds_read_b128 {ar(A_V + 8*(T%2) + 4*half,4)}, v{V_KVR} offset:{kv_off(T) + 2048 + half*1024}", lg=("v", T))
def kv_dma(stage, part, j):
    v = V_L16 if part == 0 else V_L16B
    return I(f"global_load_lds_dwordx4 v{v}, s[{S_KVB}:{S_KVB+1}] offset:{j*1024} sc1", vm=("kv", stage))

def xcost(x):
    t = x["text"] or "s_"
    if t.startswith("ds_"): return 4
    if t.startswith("global_"): return 5
    if t.startswith("buffer_"): return 8
    if t.startswith("v_"): return 4
    if "\n" in t: return 4
    return 0

def main_loop(NIN, g0, early=(), timed=()):
    NG = 32*NIN
    seq = []
    mu = 0
    for n in range(NSLOT):
        att = []
        if n + 1 < NSLOT: att += [(qk(n+1, 0), 32), (qk(n+1, 1), 32)]
        if n >= 1: att += [(pv(n-1, 0), 32), (summ(n-1, 0), 16), (pv(n-1, 1), 32), (summ(n-1, 1), 16)]
        hi = 0 if n < g0 else round(NG*(n + 1 - g0)/(NSLOT - g0))
        cnt = hi - mu
        for k, (t, p_) in enumerate(att):
            seq.append(dict(text=t, pipe=p_, slot=n, mu=None, k=k))
            want = round(cnt*(k + 1)/len(att))
            have = round(cnt*k/len(att))
            for _ in range(want - have):
                sig, J, i = mu // 32, (mu % 32) // 4, mu % 4
                seq.append(dict(text=gemm_mfma(sig, J, i, sig == 0), pipe=16, slot=n, mu=mu, k=None)); mu += 1
    assert mu == NG
    N = len(seq)
    gaps = [[] for _ in range(N)]
    pos_mu = {s["mu"]: g for g, s in enumerate(seq) if s["mu"] is not None}
    slot_start = {}
    for g, s in enumerate(seq): slot_start.setdefault(s["slot"], g)
    slot_start[NSLOT] = N
    busy = lambda G: any(xcost(x) or (x["text"] is None) for x in gaps[G]) or len(gaps[G]) >= 1
    def place(item, lo, hi=None):
        G = lo
        while G < N and gaps[G]: G += 1
        if hi is not None and G > hi:
            lo = min(lo, hi)
            G = min(range(lo, hi + 1), key=lambda g: (sum(xcost(x) + 1 for x in gaps[g]), g))
        assert G < N, (item, lo, hi, G)
        gaps[G].append(item); return G
    def place_cluster(items, lo, hi):
        cands = [g for g in range(lo, min(hi, N - 1) + 1) if not gaps[g]]
        big = [g for g in cands if seq[g]["pipe"] == 32]
        if big: G = big[0]
        elif cands: G = cands[0]
        else: G = min(range(lo, min(hi, N - 1) + 1), key=lambda g: (sum(xcost(x) + 1 for x in gaps[g]), g))
        gaps[G].extend(items); return G
    for m in range(NG):
        sig, J, i = m // 32, (m % 32) // 4, m % 4
        if i == 0:
            w = w_need(sig, J)
            if J == 0: w["needvm"] += [("h", sig, q) for q in range(4)]
            gaps[pos_mu[m] - 1].append(w)
    for n in range(0, NSLOT - 2, 2):
        gaps[slot_start[n + 1] - 1].append(W(lg=[("k", n // 2 + 1)]))
    gaps[slot_start[NSLOT - 1] - 1].append(W(lg=[("v", NSLOT // 2 - 1)]))
    for it in range(7):
        G = slot_start[16*it + 14]
        gaps[G] = [W(vm=[("kv", it + 1)], lg=[("v", 8*it + 7)]), I("s_barrier")] + gaps[G]
    for n in range(NSLOT):
        T = n // 2 + 1
        if T >= NSLOT // 2: continue
        lo = slot_start[n] + (1 if n % 16 == 14 else 0) + 1
        G = place(k_read(T, 0) if n % 2 == 0 else v_read(T, 0), lo, slot_start[n + 1] - 2)
        place(k_read(T, 1) if n % 2 == 0 else v_read(T, 1), G + 2, slot_start[n + 1] - 2)
    lastw = lasth = -1
    G = -1
    for k in range(0, len(early), 4):
        G = place_cluster(early[k:k+4], G + 1, G + 6)
    G = 0
    for sl, items in timed:
        G = place_cluster(items, max(slot_start[sl] + 1, G + 1), max(slot_start[sl + 1] - 2, G + 2))
    for m in range(15, NG, 16):
        sig, J = m // 32, (m % 32) // 4
        G = pos_mu[m]
        items = []
        for q in range(J - 3, J + 1):
            phi = 8*sig + q + RW
            items.append((phi // 8, phi % 8))
        s2, J2 = items[0]
        if J2 == 0:
            x = adv64(S_WB, 8192)[0]
            if s2 == NDOWN: x = I(f"s_mov_b64 s[{S_WB}:{S_WB+1}], s[{S_WOB}:{S_WOB+1}]")
            assert lastw + 1 <= G - 1
            place(x, max(lastw + 1, G - 8), G - 1)
        lastw = place_cluster([w_load(a_, b_) for a_, b_ in items], G, G + 6)
        if J == 7 and sig + RH < NDOWN:
            G = place(adv64(S_HB, 8192)[0], pos_mu[m] - 6, pos_mu[m])
            place_cluster([h_load(sig + RH, i) for i in range(4)], min(lastw + 6, N - 1), lastw + 14)
    for it in range(7):
        for part in range(2):
            s0 = 16*it + (7 if it == 0 else 8 if it == 1 else 1) + (2 if it == 1 else 3)*part
            G = place_cluster([kv_dma(it + 1, part, j) for j in range(4)], slot_start[s0] + 3, slot_start[s0 + 1] + 3)
            place(I(f"s_add_u32 m0, s{S_M0KV}, {((it+1)%2)*32768 + part*4096}"), G - 3, G - 1)
        place(adv64(S_KVB, 32768)[0], G + 1)
    where = [16*it + sl for it in range(2, 7) for sl in (9, 12)]
    jobs = [("f", ETA0 + k) for k in range(6)] + [("x", (sg, J0)) for sg in (NDOWN + 6, NDOWN + 7) for J0 in (0, 4)]
    jobs += [("f", ETA0 + 6), ("f", ETA0 + 7)]; where += [16*7 + 1, 16*7 + 4]
    for (kind, arg), sl in zip(jobs, where):
        if kind == "f":
            b_, m_, d_ = fifo_fill(arg)
            G = place_cluster(d_, slot_start[sl] + 4, slot_start[sl + 1] + 4)
            place(m_, G - 3, G - 1); place(b_, G - 4, G - 1)
        else:
            sg, J0 = arg
            G = place_cluster([w_load(sg, J) for J in range(J0, J0 + 4)], slot_start[sl] + 4, slot_start[sl + 1] + 4)
            place(x_base(sg), G - 4, G - 1)
    V = []
    for n in range(NSLOT):
        Sx, Px = SB[n % 2], PB[n % 2]
        for r in range(0, 16, 2):
            V += [(8, f"v_exp_f32 v{Sx+r}, v{Sx+r}", n, "e"), (8, f"v_exp_f32 v{Sx+r+1}, v{Sx+r+1}", n, "e")]
            if r >= 2: V.append((4, f"v_cvt_pk_bf16_f32 v{Px+r//2-1}, v{Sx+r-2}, v{Sx+r-1}", n, r//2 - 1))
        V.append((4, f"v_cvt_pk_bf16_f32 v{Px+7}, v{Sx+14}, v{Sx+15}", n, 7))
    vidx = {(n, k): i for i, (_, _, n, k) in enumerate(V) if k != "e"}
    for g, sq in enumerate(seq):
        n, k = sq["slot"], sq["k"]
        dep = -1
        if k is not None:
            kk = k if n + 1 < NSLOT else k + 2
            if kk == 0 and n >= 1: dep = vidx[(n - 1, 7)]
            if kk in (2, 3): dep = vidx[(n - 1, 3)]
            if kk in (4, 5): dep = vidx[(n - 1, 7)]
            sq["kk"] = kk
        sq["dep"] = dep
    pos_att = {(sq["slot"], sq["kk"]): g for g, sq in enumerate(seq) if sq["k"] is not None}
    tr = Trace()
    t = valu = pipe = 0
    ig = iv = 0
    cnt = 0
    emitted_at = {}
    vem_at = {}
    while ig < N or iv < len(V):
        m_ok = ig < N and seq[ig]["dep"] < iv and (seq[ig]["dep"] < 0 or cnt - vem_at[seq[ig]["dep"]] >= 2)
        v_ok = False
        if iv < len(V):
            c, txt_, n, k = V[iv]
            v_ok = True
            if n >= 1 and k == "e":
                g = pos_att[(n - 1, 1)]
                v_ok = g in emitted_at and cnt - emitted_at[g][0] >= 12 and max(t, valu) >= emitted_at[g][1] + 56
            if k != "e" and n >= 2:
                g = pos_att[(n - 1, 3 if k < 4 else 5)]
                v_ok = g in emitted_at
        now = max(t, valu)
        if m_ok and (pipe <= now or not v_ok):
            s_ = max(now, pipe); t = s_ + 4; valu = s_ + 8; pipe = s_ + seq[ig]["pipe"]
            tr.ins(seq[ig]["text"]); cnt += 1; emitted_at[ig] = (cnt, s_)
            prev = ""
            for x in gaps[ig]:
                tr.items.append(x); cnt += 1
                tx = x["text"] or "s_"
                if tx.startswith("ds_"): t += 4 if prev.startswith("ds_") else 8
                elif tx.startswith("global_"): t += 4 if prev.startswith("global_") else 14
                elif tx.startswith("buffer_"): t += 12
                else: t += 4*(1 + tx.count("\n"))
                prev = tx
            ig += 1
        elif v_ok:
            t = valu = now + c
            tr.ins(txt_); cnt += 1; vem_at[iv] = cnt; iv += 1
        else:
            tr.ins("s_nop 0"); cnt += 1; t += 4
    txt = [x["text"] for x in tr.items if x["text"]]
    for k in range(1, len(txt)):
        if txt[k].startswith("v_cvt") and txt[k-1].startswith("v_exp"):
            d = txt[k-1].split()[1].rstrip(",")
            assert d + "," not in txt[k] + "," or txt[k].split()[1].rstrip(",") == d, (txt[k-1], txt[k])
    return tr

def gemm_step(sig, extra=(), late=(), vq=None):
    gaps = [[] for _ in range(32)]
    pre = []
    w = w_need(sig, 0); w["needvm"] += [("h", sig, 0)]
    pre.append(w)
    for i in range(1, 4): gaps[i - 1].append(W(vm=[("h", sig, i)]))
    for J in range(8):
        if J % 4 == 3:
            phi = 8*sig + J - 3 + RW
            s2, J2 = phi // 8, phi % 8
            eta = phi // 4
            if s2 < NDOWN + 6:
                assert wsrc(s2, J2) == "lds"
                gaps[4*J + 2].append(W(vm=[("wd", eta)]))
                gaps[4*J + 3].extend(w_load(s2, q) for q in range(J2, J2 + 4))
            e2 = eta - 1 + 8
            if eta - 1 >= ETA0 and e2 < 2*(NDOWN + 6):
                b_, m_, d_ = fifo_fill(e2)
                pe = eta - 1
                gaps[4*J - 6].append(b_); gaps[4*J - 5].append(m_)
                gaps[4*J - 4].append(W(lg=[("w", pe // 2, 4*(pe % 2) + 3)])); gaps[4*J - 4].extend(d_)
        if J < 7: gaps[4*J + 3].insert(0, w_need(sig, J + 1))
    if sig + RH < NDOWN:
        gaps[29].append(adv64(S_HB, 8192)[0])
        gaps[31].extend(h_load(sig + RH, i) for i in range(4))
    for k, grp in enumerate(extra):
        gaps[[4, 20][k]].extend(grp)
    gaps[17].extend(late)
    tr = Trace()
    tr.items.extend(pre)
    for mu in range(32):
        tr.ins(gemm_mfma(sig, mu // 4, mu % 4, False))
        tr.items.extend(gaps[mu])
        n = 0
        while vq and n < 2:
            x = vq.pop(0); tr.items.append(x)
            if not (x["text"] or "s_").startswith("s_") or "\n" in (x["text"] or ""): n += 1
            elif vq and (vq[0]["text"] or "s_").startswith("s_"): n += 1
    return tr
```

```python
from common import *
import p2
from p2 import I, W, adv64
import math, struct

KM = NAME + "_kernel"
LDS_X = 0; LDS_W = 65536
LDS_R = 131072
LDS_QS = LDS_R; LDS_KW = LDS_R + 4096; LDS_T = LDS_R + 16384
KM_LDS = 163840
NST = 16
OOB = 0x7f000000

def accn(j, i): return ("v", 32 + (j*8 + i)*4) if j < 7 else ("a", 128 + i*4)
def acc(j, i):
    p, b = accn(j, i); return vr(b, 4, p)
XF = [0, 64]; WF = [32, 96]
KVW, KVA, A_GX, A_GW, A_T, A_KX, A_DUM = 160, 168, 172, 188, 204, 208, 255
V_DQ, V_DX, V_DW = 0, 2, 6
V_RX = [10, 11]
V_RW, V_R3, V_R7, V_RKW, V_T, V_KX, V_LANE = 12, 15, 16, 17, 18, 19, 20
V_GROW, V_L16, V_RT, V_DT, V_DK = 26, 27, 28, 29, 30
S_WQ, S_X, S_G, S_U, S_KV, S_WS, S_GW, S_TSRD, S_WD, S_WO, S_DBG = 4, 8, 12, 16, 20, 24, 28, 32, 52, 76, 72
S_W, S_MT, S_NT, S_OK = 36, 37, 38, 39
S_OX, S_OX2, S_OG, S_OQ, S_TSRCS = 40, 41, 42, 43, 44
S_M0X, S_M0W, S_M0K, S_M0T, S_M0Q = 45, 46, 47, 51, 56
S_TOFF, S_TSTEP, S_TOG = 48, 49, 50
S_TSRC, S_TDST, S_TSRC2, S_TDST2, S_GROW = 3, 94, 95, 100, 101
S_EF = 88
S_TAG = 89
A_TAG = 254
S_FLG = 57

KVD = 1
def dma_group(s, ntw):
    b = s % 2
    g = []
    nt = " nt" if ntw else ""
    for half in range(2):
        so = S_OX if half == 0 else S_OX2
        for j in range(4):
            pre = f"s_add_u32 m0, s{S_M0X}, {b*32768 + half*4096}" if j == 0 else None
            g.append((pre, I(f"buffer_load_dwordx4 v{V_DX+j}, s[{S_X}:{S_X+3}], s{so} offen offset:{j*1024} lds", vm=("st", s))))
    for part in range(2):
        srdn = S_G if part == 0 else S_U
        for j in range(4):
            pre = f"s_add_u32 m0, s{S_M0W}, {b*32768 + part*16384}" if j == 0 else None
            g.append((pre, I(f"buffer_load_dwordx4 v{V_DW+j}, s[{srdn}:{srdn+3}], s{S_OG} offen offset:{j*1024}{nt} lds", vm=("st", s))))
    g.append((f"s_add_u32 m0, s{S_M0Q}, {b*2048}", I(f"buffer_load_dwordx4 v{V_DQ}, s[{S_WQ}:{S_WQ+3}], s{S_OQ} offen{nt} lds", vm=("st", s))))
    adv = {7: [f"s_add_u32 s{S_OX}, s{S_OX}, 128", f"s_add_u32 s{S_OX2}, s{S_OX2}, 128"],
           15: [f"s_add_u32 s{S_OG}, s{S_OG}, {64*7168}"], 16: [f"s_add_u32 s{S_OQ}, s{S_OQ}, 0x20000"]}
    if 1 <= s - KVD <= 8:
        g.append((f"s_add_u32 m0, s{S_M0K}, {b*8192}", I(f"buffer_load_dwordx4 v{V_DK}, s[{S_KV}:{S_KV+3}], s{S_OK} offen lds", vm=("st", s))))
        adv[17] = [f"s_add_u32 s{S_OK}, s{S_OK}, 8192"]
    return g, adv
def xread(s, kk, i):
    return I(f"ds_read_b128 {ar(XF[kk]+4*i,4)}, v{V_RX[kk]} offset:{(s%2)*32768 + i*2048}", lg=("fr", s, kk))
def wread(s, kk, j, h):
    if j % 4 == 3:
        reg, off = (V_R3 if j == 3 else V_R7), h*1024 + kk*8192
    else:
        reg, off = V_RW + (j & 3), (s % 2)*32768 + h*1024 + kk*8192 + (16384 if j >= 4 else 0)
    return I(f"ds_read_b64_tr_b16 {ar(WF[kk]+4*j+2*h,2)}, v{reg} offset:{off}", lg=("fr", s, kk))
def reads(s, kk):
    r = [wread(s, kk, 0, 0), wread(s, kk, 0, 1)] + [xread(s, kk, i) for i in range(8)]
    for j in range(1, 8): r += [wread(s, kk, j, 0), wread(s, kk, j, 1)]
    return r
def mfma(kk, j, i, first=False):
    return f"v_mfma_f32_16x16x32_bf16 {acc(j,i)}, {ar(WF[kk]+4*j,4)}, {ar(XF[kk]+4*i,4)}, {'0' if first else acc(j,i)}"
def vcap(items):
    c = 2
    for x in items:
        t = x["text"] or "s_"
        if t.startswith("ds_"): c -= 1
        elif t.startswith(("buffer_", "global_")): c -= 2
        elif t.startswith("v_"): c -= 1
    return max(c, 0)
from k1 import g_ops as _g_ops
import k1 as _k1
_k1.A_GX, _k1.A_GW = A_GX, A_GW

def gen(dbg=False, hdbg=None, pads=0, epos=10, chain_at=1, ot=1, touch=1, nhead=13, p1=13, npro0=8, gs=11, tq0=5, ntw=False, ntt=False, exp='',
        NIN=25, g0=22, hsig=7, hpoll=15, opre=1, nb=(1, 2)):
    esig = KVD + 11
    p2.configure(NIN)
    a = Asm()
    L = f"v{V_LANE}"
    a("s_cmp_ge_u32 s2, 256")
    a("s_cbranch_scc1 KM_END")
    st = Stamps(a, dbg)
    st.stamp()
    a("s_memrealtime s[72:73]")
    a("s_load_dwordx8 s[56:63], s[0:1], 0")
    a("s_load_dwordx8 s[64:71], s[0:1], 48")
    a("s_load_dwordx2 s[74:75], s[0:1], 32")
    a("s_load_dwordx4 s[96:99], s[0:1], 80")
    a("s_load_dwordx2 s[86:87], s[0:1], 96")
    code_prefetch(a, "KM", 32, "a255", 3)
    a(f"""
    v_and_b32 {L}, 63, v0
    v_lshrrev_b32 v1, 6, v0
    s_and_b32 s80, s2, 7
    v_readfirstlane_b32 s{S_W}, v1
    s_lshr_b32 s81, s2, 3
    s_and_b32 s{S_MT}, s81, 7
    s_lshr_b32 s83, s81, 3
    s_lshl_b32 s80, s80, 2
    s_add_u32 s{S_NT}, s80, s83
    s_mul_i32 s85, s{S_NT}, 224
    s_mov_b32 s{S_OG}, 0
    s_mov_b32 s{S_OQ}, 0
    v_lshrrev_b32 v21, 3, {L}
    s_lshl_b32 s81, s{S_MT}, 8
    s_lshl_b32 s82, s{S_W}, 6
    s_add_u32 s81, s81, s82
    v_add_u32 v21, s81, v21
    v_lshlrev_b32 v21, 11, v21
    v_and_b32 v22, 7, {L}
    v_lshrrev_b32 v23, 4, {L}
    v_xor_b32 v22, v22, v23
    v_lshlrev_b32 v22, 4, v22
    v_xor_b32 v24, 64, v22
    """)
    for j in range(4):
        a(f"v_add_u32 v{V_DX+j}, v21, {'v22' if j % 2 == 0 else 'v24'}")
        if j: a(f"v_add_u32 v{V_DX+j}, {j*8*2048 - j*1024}, v{V_DX+j}")
    a(f"""
    s_mov_b32 s{S_OX}, 0
    s_mov_b32 s{S_OX2}, 65536
    s_mov_b32 s{S_OK}, 0
    s_lshl_b32 s81, s{S_W}, 4
    s_movk_i32 s84, 7168
    v_add_u32 v21, s81, v23
    v_mul_lo_u32 v21, v21, s84
    v_add_u32 v21, s85, v21
    v_and_b32 v25, 1, {L}
    v_lshl_add_u32 v21, v25, 4, v21
    v_bfe_u32 v22, {L}, 1, 3
    v_xor_b32 v22, v22, v23
    v_xor_b32 v24, 4, v22
    v_min_u32 v22, 6, v22
    v_min_u32 v24, 6, v24
    v_lshl_add_u32 v{V_DW}, v22, 5, v21
    v_add_u32 v{V_DW+1}, {4*7168 - 1024}, v{V_DW}
    v_lshl_add_u32 v{V_DW+2}, v24, 5, v21
    v_add_u32 v{V_DW+2}, {2*(4*7168 - 1024)}, v{V_DW+2}
    v_add_u32 v{V_DW+3}, {4*7168 - 1024}, v{V_DW+2}
    s_lshl_b32 s{S_M0X}, s{S_W}, 13
    s_lshl_b32 s{S_M0W}, s{S_W}, 12
    s_add_u32 s{S_M0W}, s{S_M0W}, {LDS_W}
    s_lshl_b32 s{S_M0K}, s{S_W}, 10
    s_add_u32 s{S_M0T}, s{S_M0K}, {LDS_T}
    s_add_u32 s{S_M0K}, s{S_M0K}, {LDS_KW}
    s_lshr_b32 s81, s{S_W}, 1
    s_and_b32 s80, s{S_W}, 1
    """)
    a(f"""
    v_lshlrev_b32 v21, 3, v23
    v_bfe_u32 v22, {L}, 2, 2
    v_add_u32 v21, v21, v22
    s_lshl_b32 s82, s81, 5
    s_lshl_b32 s83, s80, 2
    s_add_u32 s82, s82, s83
    v_add_u32 v21, s82, v21
    v_lshlrev_b32 v21, 11, v21
    v_bfe_u32 v22, {L}, 1, 1
    v_bfe_u32 v24, {L}, 4, 1
    v_xor_b32 v22, v22, v24
    v_lshl_add_u32 v21, v22, 5, v21
    v_lshl_add_u32 v21, v25, 4, v21
    s_lshl_b32 s82, s{S_NT}, 6
    v_add_u32 v{V_DQ}, s82, v21
    s_lshl_b32 s90, s81, 13
    s_lshl_b32 s83, s80, 10
    s_add_u32 s90, s90, s83
    s_waitcnt lgkmcnt(0)
    """)
    st.n and None
    a(f"s_or_b32 s{S_TAG}, s72, 1")
    srd(a, S_X, 56, 2048*1024*2)
    srd(a, S_G, 64, 1024*3584*2)
    srd(a, S_U, 66, 1024*3584*2)
    srd(a, S_WQ, 58, 1024*1024*2)
    a(f"s_add_u32 s{S_M0Q}, s90, {LDS_QS}")
    st.stamp()
    pro = Trace()
    def dma_items(s, lo, hi):
        g, adv = dma_group(s, ntw)
        out = []
        for k in range(lo, min(hi, len(g))):
            pre, it = g[k]
            out.append(([I(pre), I("s_nop 0")] if pre else []) + [it] + [I(x) for x in adv.get(k, [])])
        return out
    pc = Asm()
    pc(f"""
    v_lshlrev_b32 v{V_L16}, 4, {L}
    v_and_b32 v21, 15, {L}
    s_lshl_b32 s83, s81, 14
    v_lshlrev_b32 v22, 7, v21
    v_lshrrev_b32 v24, 1, v21
    v_xor_b32 v24, v24, v23
    v_lshl_add_u32 v22, v24, 4, v22
    v_add_u32 v{V_RX[0]}, s83, v22
    v_xor_b32 v{V_RX[1]}, 64, v{V_RX[0]}
    v_bfe_u32 v21, {L}, 2, 2
    v_lshl_add_u32 v22, v23, 3, v21
    v_and_b32 v24, 3, {L}
    v_lshlrev_b32 v24, 3, v24
    v_lshl_add_u32 v{V_RKW}, v22, 5, v24
    s_lshl_b32 s83, s81, 11
    s_add_u32 s83, s83, {LDS_KW}
    v_add_u32 v{V_RKW}, s83, v{V_RKW}
    v_lshl_add_u32 v22, v22, 8, v24
    v_add_u32 v22, {LDS_W}, v22
    v_and_b32 v25, 1, v23
    v_lshl_or_b32 v1, v25, 2, v21
    s_lshl_b32 s82, s80, 2
    """)
    for j in range(4):
        pc(f"s_add_u32 s83, s82, {j}")
        pc(f"v_xor_b32 v{V_T}, s83, v1")
        pc(f"v_lshl_add_u32 v{V_RW+j}, v{V_T}, 5, v22")
    pc(f"""
    v_add_u32 v{V_R7}, 16384, v{V_R3}
    v_lshl_add_u32 v22, v23, 2, v21
    v_lshl_add_u32 v22, v22, 6, v24
    v_lshl_add_u32 v22, v25, 5, v22
    v_add_u32 v22, {LDS_QS}, v22
    v_xor_b32 v1, 32, v22
    s_cmp_eq_u32 s80, 1
    s_cselect_b64 vcc, -1, 0
    s_movk_i32 s{S_TOG}, 2048
    s_cselect_b32 s{S_TOG}, s{S_TOG}, 0x8000
    v_cndmask_b32 v{V_R3}, v{V_R3}, v22, vcc
    v_cndmask_b32 v{V_R7}, v{V_R7}, v1, vcc
    """)
    p = Asm()
    p(f"""
    v_lshrrev_b32 v1, 3, {L}
    v_lshlrev_b32 v1, 11, v1
    v_bfe_u32 v25, {L}, 1, 2
    v_xor_b32 v25, v25, v23
    v_lshl_add_u32 v1, v25, 5, v1
    v_and_b32 v25, 1, {L}
    v_lshl_add_u32 v{V_DT}, v25, 4, v1
    v_lshl_add_u32 v1, v23, 2, v21
    v_bfe_u32 v25, v1, 1, 2
    v_xor_b32 v25, s{S_W}, v25
    v_lshlrev_b32 v1, 7, v1
    v_lshl_add_u32 v1, v25, 5, v1
    v_add_u32 v1, v1, v24
    v_add_u32 v{V_RT}, {LDS_T}, v1
    s_lshr_b32 s82, s2, 4
    s_and_b32 s83, s2, 15
    s_mul_i32 s{S_TSRC}, s82, {224*2048}
    s_lshl_b32 s90, s83, 7
    s_add_u32 s{S_TSRC}, s{S_TSRC}, s90
    s_lshl_b32 s{S_TSRC2}, s82, 17
    s_add_u32 s{S_TSRC2}, s{S_TSRC2}, s90
    s_mul_i32 s90, s80, {112*2048}
    s_add_u32 s{S_TSRCS}, s{S_TSRC}, s90
    s_lshl_b32 s90, s81, 13
    s_add_u32 s{S_TSRCS}, s{S_TSRCS}, s90
    s_add_u32 s{S_TSRCS}, s{S_TSRCS}, {96*2048}
    s_lshl_b32 s90, s{S_W}, 14
    s_add_u32 s{S_TSRC}, s{S_TSRC}, s90
    s_lshl_b32 s90, s80, 15
    s_add_u32 s{S_TSRC2}, s{S_TSRC2}, s90
    s_lshl_b32 s90, s81, 14
    s_add_u32 s{S_TSRC2}, s{S_TSRC2}, s90
    s_lshr_b32 s90, s83, 1
    s_mul_i32 s90, s90, {144*8192}
    s_and_b32 s83, s83, 1
    s_lshl_b32 s83, s83, 12
    s_add_u32 s90, s90, s83
    s_lshl_b32 s83, s{S_W}, 10
    s_add_u32 s90, s90, s83
    s_add_u32 s90, s90, {WS_WT:#x}
    s_mul_i32 s{S_TDST}, s82, {7*8192}
    s_add_u32 s{S_TDST}, s{S_TDST}, s90
    s_lshl_b32 s{S_TDST2}, s82, 14
    s_add_u32 s{S_TDST2}, s{S_TDST2}, s90
    s_add_u32 s{S_TDST2}, s{S_TDST2}, {112*8192}
    s_lshl_b32 s82, s2, 3
    s_lshl_b32 s83, s{S_W}, 1
    s_add_u32 s82, s82, s83
    s_lshl_b32 s{S_GROW}, s82, 11
    v_lshrrev_b32 v1, 5, {L}
    v_add_u32 v{V_GROW}, s82, v1
    v_lshlrev_b32 v{V_GROW}, 3, v{V_GROW}
    v_add_u32 v{V_GROW}, {WS_G:#x}, v{V_GROW}
    s_lshl_b32 s82, s{S_MT}, 2
    s_add_u32 s82, s82, s{S_W}
    s_lshl_b32 s82, s82, 5
    s_add_u32 s82, s82, s{S_NT}
    s_lshl_b32 s82, s82, 7
    s_add_u32 s{S_FLG}, s82, {WS_FLAG:#x}
    """)
    p(f"""
    s_and_b32 s82, s{S_NT}, 2
    s_cmp_eq_u32 s82, 0
    s_cselect_b32 s{S_KV}, s60, s62
    s_cselect_b32 s{S_KV+1}, s61, s63
    s_and_b32 s{S_KV+1}, s{S_KV+1}, 0xffff
    s_mov_b32 s{S_KV+2}, 65536
    s_mov_b32 s{S_KV+3}, 0x00020000
    """)
    srd(p, S_WS, 86, WS_SIZE)
    srd(p, S_GW, 70, 2048)
    srd(p, S_WD, 68, 3584*1024*2)
    srd(p, S_WO, 74, 1024*1024*2)
    srd(p, S_DBG, 98, 256)
    p(f"""
    v_lshrrev_b32 v21, 1, {L}
    v_lshlrev_b32 v21, 6, v21
    v_and_b32 v22, 1, {L}
    v_lshl_add_u32 v21, v22, 4, v21
    s_and_b32 s82, s{S_NT}, 1
    s_lshl_b32 s82, s82, 5
    s_lshl_b32 s83, s{S_W}, 11
    s_add_u32 s82, s82, s83
    v_add_u32 v{V_DK}, s82, v21
    s_lshl_b32 s82, s{S_MT}, 8
    s_lshr_b32 s83, s{S_NT}, 2
    s_lshl_b32 s83, s83, 5
    s_add_u32 s82, s82, s83
    s_lshl_b32 s83, s80, 4
    s_add_u32 s82, s82, s83
    s_lshl_b32 s82, s82, 11
    s_lshl_b32 s83, s81, 7
    s_add_u32 s82, s82, s83
    v_and_b32 v21, 15, {L}
    v_lshlrev_b32 v22, 11, v21
    v_lshl_add_u32 v22, v23, 4, v22
    v_add_u32 v{V_KX}, s82, v22
    """)
    if touch:
        p(f"""
        s_and_b32 s82, s{S_NT}, 3
        s_lshl_b32 s82, s82, 6
        s_lshl_b32 s83, s{S_MT}, 8
        s_add_u32 s82, s82, s83
        v_add_u32 v25, s82, {L}
        v_lshlrev_b32 v25, 11, v25
        s_lshl_b32 s82, s{S_MT}, 3
        v_bfe_u32 v24, {L}, 2, 3
        v_add_u32 v24, s82, v24
        v_lshlrev_b32 v21, 11, v24
        v_mul_lo_u32 v24, v24, s84
        v_and_b32 v1, 3, {L}
        v_lshlrev_b32 v1, 7, v1
        v_min_u32 v1, 220, v1
        v_add3_u32 v24, v24, v1, s85
        s_lshl_b32 s82, s{S_NT}, 6
        v_add_u32 v21, s82, v21
        s_mov_b32 s{S_TSTEP}, {64*7168}
        s_cmp_eq_u32 s{S_W}, 0
        s_cselect_b64 vcc, -1, 0
        s_cselect_b32 s{S_TSRD}, s{S_X}, s{S_G}
        s_cselect_b32 s{S_TSRD+1}, s{S_X+1}, s{S_G+1}
        s_cselect_b32 s{S_TSRD+2}, s{S_X+2}, s{S_G+2}
        s_cselect_b32 s{S_TSTEP}, 128, s{S_TSTEP}
        v_cndmask_b32 v{V_T}, v24, v25, vcc
        s_cmp_eq_u32 s{S_W}, 2
        s_cselect_b32 s{S_TSRD}, s{S_U}, s{S_TSRD}
        s_cselect_b32 s{S_TSRD+1}, s{S_U+1}, s{S_TSRD+1}
        s_cmp_eq_u32 s{S_W}, 3
        s_cselect_b64 vcc, -1, 0
        s_cselect_b32 s{S_TSRD}, s{S_WQ}, s{S_TSRD}
        s_cselect_b32 s{S_TSRD+1}, s{S_WQ+1}, s{S_TSRD+1}
        s_cselect_b32 s{S_TSRD+2}, s{S_WQ+2}, s{S_TSRD+2}
        s_cselect_b32 s{S_TSTEP}, 0x20000, s{S_TSTEP}
        v_cndmask_b32 v{V_T}, v{V_T}, v21, vcc
        s_mov_b32 s{S_TSRD+3}, 0x00020000
        s_mul_i32 s{S_TOFF}, s{S_TSTEP}, {touch + 1 if touch >= 2 else touch + 2}
        """)
    late = []
    for l in [l.strip() for l in p.lines]:
        if late and l.startswith(("s_cselect", "s_addc", "v_cndmask", "s_movk_i32 s50")): late[-1].append(l)
        else: late.append([l])
    late += [[f"v_and_b32 v1, 31, {L}"], ["v_lshlrev_b32 v1, 7, v1"], ["s_lshr_b32 s82, s2, 3"], ["s_and_b32 s82, s82, 15"], ["s_lshl_b32 s82, s82, 12"]]
    for grp in dma_items(0, 0, 17): pro.items.extend(grp)
    for l in pc.lines: pro.ins(l.strip())
    for grp in dma_items(1, 0, p1): pro.items.extend(grp)
    one_time = [I(f"buffer_load_dword a{A_DUM}, v1, s[{S_KV}:{S_KV+3}], s82 offen"), I(f"buffer_load_dword a{A_DUM}, v1, s[{S_GW}:{S_GW+3}], 0 offen")]
    touch_ins = lambda: I(f"buffer_load_dword a{A_DUM}, v{V_T}, s[{S_TSRD}:{S_TSRD+3}], s{S_TOFF} offen", vm=("touch", 0))
    touch_adv = f"s_add_u32 s{S_TOFF}, s{S_TOFF}, s{S_TSTEP}"
    pro2 = Trace()
    pro2.wait(vm=[("st", 0)])
    pro2.ins("s_barrier")
    pro2.items.extend(reads(0, 0))

    gfast, gslow = _g_ops()
    gslow += ["v_max_f32 v25, 0x2b800000, v25", "v_rcp_f32 v23, v25", "v_mul_f32 v24, v24, v23"]
    GSPLIT = 70
    c_q = struct.unpack("<I", struct.pack("<f", math.log2(math.e) / math.sqrt(32.0)))[0]
    kvfin = [f"v_accvgpr_read_b32 v{21+r}, a{KVA+r}" for r in range(4)]
    for r in range(4): kvfin += [f"v_accvgpr_read_b32 v1, a{KVW+r}", f"v_add_f32 v{21+r}, v{21+r}, v1", f"v_mul_f32 v{21+r}, s84, v{21+r}"]
    kvfin += ["v_cvt_pk_bf16_f32 v22, v21, v22", "v_cvt_pk_bf16_f32 v23, v23, v24",
              f"v_and_b32 v1, 15, {L}", "v_lshlrev_b32 v1, 4, v1", f"v_bfe_u32 v21, {L}, 4, 1", "v_lshl_add_u32 v1, v21, 9, v1",
              f"v_lshrrev_b32 v21, 5, {L}", "v_lshl_add_u32 v1, v21, 3, v1",
              f"buffer_store_dwordx2 v[22:23], v1, s[{S_WS}:{S_WS+3}], s82 offen offset:2048 sc1",
              f"v_bfe_u32 v24, {L}, 3, 1", "v_lshlrev_b32 v24, 10, v24", f"v_bfe_u32 v21, {L}, 2, 1", "v_lshl_add_u32 v24, v21, 9, v24",
              f"v_lshrrev_b32 v21, 4, {L}", "v_lshl_add_u32 v24, v21, 6, v24", f"v_and_b32 v21, 3, {L}", "v_lshl_add_u32 v24, v21, 1, v24",
              f"buffer_store_short v22, v24, s[{S_WS}:{S_WS+3}], s83 offen sc1",
              f"buffer_store_short_d16_hi v22, v24, s[{S_WS}:{S_WS+3}], s83 offen offset:16 sc1",
              f"buffer_store_short v23, v24, s[{S_WS}:{S_WS+3}], s83 offen offset:32 sc1",
              f"buffer_store_short_d16_hi v23, v24, s[{S_WS}:{S_WS+3}], s83 offen offset:48 sc1"]
    kvsal = f"""s_lshl_b32 s82, s{S_MT}, 3
    s_lshr_b32 s83, s{S_NT}, 2
    s_add_u32 s82, s82, s83
    s_lshl_b32 s82, s82, 12
    s_add_u32 s82, s82, {WS_KV:#x}
    s_and_b32 s85, s{S_NT}, 1
    s_lshl_b32 s83, s85, 3
    s_add_u32 s83, s83, s82
    s_lshl_b32 s85, s85, 8
    s_add_u32 s82, s82, s85
    s_lshl_b32 s85, s{S_W}, 10
    s_add_u32 s82, s82, s85
    s_lshl_b32 s85, s{S_W}, 8
    s_add_u32 s83, s83, s85
    s_and_b32 s85, s{S_NT}, 2
    s_cmp_eq_u32 s85, 0
    s_cselect_b32 s84, {c_q:#x}, 1.0
    s_cselect_b32 s82, {OOB:#x}, s82
    s_cselect_b32 s83, s83, {OOB:#x}
    s_cmp_ge_u32 s{S_W}, 2
    s_cselect_b32 s82, {OOB:#x}, s82
    s_cselect_b32 s83, {OOB:#x}, s83""".split("\n")
    kvsal = [x.strip() for x in kvsal]
    kvsal = kvsal[:-7] + ["\n".join(kvsal[-7:-3]), "\n".join(kvsal[-3:])]
    segs = []
    grest = []
    def tstore(q):
        so = S_TDST if q < 7 else S_TDST2
        return [I(f"buffer_store_dwordx4 {ar(A_T,4)}, v{V_L16}, s[{S_WS}:{S_WS+3}], s{so} offen sc1", vm=("ts", q)), I(f"s_add_u32 s{so}, s{so}, 8192")]
    for s in range(NST - 1):
        tr = Trace()
        gaps = [[] for _ in range(66)]
        rl = reads(s, 1)
        u = s - KVD
        if 1 <= u <= 8:
            for e in range(2):
                for h in range(2):
                    rl.append(I(f"ds_read_b64_tr_b16 {ar(KVW+4*e+2*h,2)}, v{V_RKW} offset:{(s%2)*8192 + e*1024 + h*128}", lg=("kvf", s)))
        if u == 9:
            gaps[1].append(I(f"v_add_u32 v21, {LDS_KW + 8192*(s%2)}, v{V_L16}"))
            gaps[3].append(I(f"s_lshl_b32 s82, s{S_W}, 10")); gaps[5].append(I("v_add_u32 v22, s82, v21"))
            gaps[7].append(I("s_xor_b32 s82, s82, 2048")); gaps[9].append(I("v_add_u32 v21, s82, v21"))
            rl.append(I(f"ds_write_b128 v22, {ar(KVA,4)}", lg=("kvf", s)))
        for k, it in enumerate(rl): gaps[2*k].append(it)
        gaps[57].append(I(f"v_xor_b32 v{V_R3}, s{S_TOG}, v{V_R3}")); gaps[59].append(I(f"v_xor_b32 v{V_R7}, s{S_TOG}, v{V_R7}"))
        g, adv = dma_group(s + 1, ntw)
        lo = p1 if s == 0 else nhead
        G = 11 if u == 9 else 1
        for k in range(lo, len(g)):
            pre, it = g[k]
            if pre: gaps[G - 1].append(I(pre))
            gaps[G].append(it)
            for x in adv.get(k, []): gaps[G + 1].append(I(x))
            G += 4
        G -= 2
        if touch and s >= 1 and s + touch + 1 < NST:
            for _ in range(2 if (s == 1 and touch >= 2) else 1):
                gaps[G].append(touch_ins()); gaps[G + 1].append(I(touch_adv)); G += 2
        if 0 <= u <= 7:
            for e in range(2):
                gaps[G].append(I(f"buffer_load_dwordx4 {ar(A_KX + 8*(u%2) + 4*e,4)}, v{V_KX}, s[{S_X}:{S_X+3}], 0 offen offset:{u*256 + e*64}", vm=("kx", u))); G += 2
        q = s - tq0
        if 0 <= q < 9:
            fl = " nt" if ntt else ""
            gaps[G - 1].append(I(f"s_add_u32 m0, s{S_M0T}, {(q%3)*4096}"))
            if q == 6:
                gaps[G - 2].append(I(f"v_lshrrev_b32 v{V_KX}, 5, {L}")); gaps[G - 1].append(I(f"v_lshl_add_u32 v{V_KX}, v{V_KX}, 13, v{V_DT}"))
                gaps[G].append(I(f"buffer_load_dwordx4 v{V_KX}, s[{S_WD}:{S_WD+3}], s{S_TSRCS} offen{fl} lds", vm=("t", q)))
            else:
                srdn, so = (S_WD, S_TSRC) if q < 7 else (S_WO, S_TSRC2)
                gaps[G].append(I(f"buffer_load_dwordx4 v{V_DT}, s[{srdn}:{srdn+3}], s{so} offen{fl} lds", vm=("t", q)))
                gaps[G + 1].append(I(f"s_add_u32 s{so}, s{so}, {48*2048 if q == 2 else 0x10000}"))
            G += 2
        q = s - tq0 - 2
        if 0 <= q < 9:
            x, y = tstore(q); gaps[G].append(x); gaps[G + 1].append(y); G += 2
        if s == ot:
            for x in one_time: gaps[G].append(x); G += 2
        if s == 2:
            gaps[G - 1].append(I(f"v_mov_b32 v21, s{S_TAG}"))
            gaps[G].append(I(f"s_or_b32 s83, s2, s{S_W}\ns_cselect_b32 s83, {OOB:#x}, 0")); G += 2
            gaps[G].extend([I("s_mov_b64 exec, 1"), I(f"buffer_store_dword v21, off, s[{S_DBG}:{S_DBG+3}], s83 sc1"), I("s_mov_b64 exec, -1")]); G += 2
        if s == 6:
            gaps[G].append(I(f"buffer_load_dword a{A_TAG}, off, s[{S_DBG}:{S_DBG+3}], 0 sc1", vm=("zp", 0))); G += 2
        if s == esig + 1:
            gaps[G - 2].append(I(f"s_lshl_b32 s82, s{S_MT}, 5")); gaps[G - 1].append(I(f"s_add_u32 s82, s82, s{S_NT}\ns_lshl_b32 s82, s82, 7")); gaps[G].append(I(f"s_add_u32 s82, s82, {WS_FLAG + 0x28000:#x}"))
            gaps[G + 1].append(I(f"s_cmp_eq_u32 s{S_W}, 0\ns_cselect_b32 s82, s82, {OOB:#x}")); G += 2
            gaps[G].extend([I("s_mov_b64 exec, 1"), I(f"buffer_store_dword a{A_TAG}, off, s[{S_WS}:{S_WS+3}], s82 sc1"), I("s_mov_b64 exec, -1")]); G += 2
        kvstart = G
        if s == gs:
            for q_ in range(4):
                gaps[G].append(I(f"buffer_load_dwordx4 {ar(A_GX+4*q_,4)}, v{V_L16}, s[{S_X}:{S_X+3}], s{S_GROW} offen offset:{1024*q_}", vm=("g", 0))); G += 2
            for q_ in range(2):
                gaps[G].append(I(f"buffer_load_dwordx4 {ar(A_GW+4*q_,4)}, v{V_L16}, s[{S_GW}:{S_GW+3}], 0 offen offset:{1024*q_}", vm=("g", 0))); G += 2
        assert G < 64, (s, G)
        tr.wait(lg=[("fr", s, 0)] + ([("tf", q)] if 0 <= q < 9 else []) + ([("kvp", 0)] if u == 10 else []))
        vq = []
        if s in (gs + 2, gs + 3): vq = gfast
        if u == 10: vq = list(kvfin)
        k = 0
        for j in range(8):
            for i in range(8):
                tr.ins(mfma(0, j, i, first=(s == 0)))
                tr.items.extend(gaps[k])
                cap = vcap(gaps[k])
                if s == 0:
                    for _ in range(2):
                        if late and cap > 0:
                            for l in late.pop(0): tr.ins(l)
                            cap -= 1
                while vq and cap > 0 and not (u == 10 and k < kvstart - 8):
                    if vq[0].startswith("buffer_"):
                        if cap < 2: break
                        tr.ins(vq.pop(0), vm=("kvst", 0)); cap -= 2
                    else:
                        tr.ins(vq.pop(0)); cap -= 1
                k += 1
        if s != gs + 2: assert not vq
        need = [("st", s + 1)]
        if 0 <= s - tq0 - 1 < 9: need.append(("t", s - tq0 - 1))
        if s == gs + 1: need.append(("g", 0))
        if 1 <= u <= 8: need.append(("kx", u - 1))
        if s == 7: need.append(("zp", 0))
        if s == esig: need.append(("kvst", 0))
        if pads and s == chain_at: tr.ins("@CHAIN1")
        tr.wait(vm=need, lg=[("fr", s, 1)] + ([("kvf", s)] if 1 <= u <= 9 else []))
        tr.ins("s_barrier")
        segs.append(tr)
        tr = Trace()
        gaps = [[] for _ in range(68)]
        for k, it in enumerate(reads(s + 1, 0)): gaps[2*k + 1].append(it)
        q = s - tq0 - 1
        if 0 <= q < 9:
            for h in range(2):
                gaps[49 + 2*h].append(I(f"ds_read_b64_tr_b16 {ar(A_T+2*h,2)}, v{V_RT} offset:{(q%3)*4096 + h*2048}", lg=("tf", q)))
        if u == 9:
            gaps[53].append(I(f"ds_read_b128 {ar(KVW,4)}, v21", lg=("kvp", 0)))
            for k, x in enumerate(kvsal): gaps[2*k + 3 if 2*k + 3 < 48 else 55].append(I(x.strip()))
        if s + 2 < NST:
            g, adv = dma_group(s + 2, ntw)
            hg = [2*round(k*62/(2*nhead)) for k in range(nhead)]
            for k in range(nhead):
                pre, it = g[k]
                if pre:
                    if hg[k]: gaps[hg[k] - 1].insert(0, I(pre))
                    else: tr.ins(pre)
                gaps[hg[k]].append(it)
                for x in adv.get(k, []): gaps[hg[k] + 2].append(I(x))
        if s == 7:
            gaps[54].append(I(f"v_accvgpr_read_b32 v1, a{A_TAG}"))
            gaps[56].append(I(f"v_cmp_eq_u32 vcc, 0, v1")); gaps[58].append(I("s_cbranch_vccnz KM_ZSPIN\nKM_ZBACK:"))
            gaps[60].append(I(f"v_accvgpr_write_b32 a{A_TAG}, v1")); gaps[62].append(I(f"v_readfirstlane_b32 s{S_TAG}, v1"))
        if s == 14:
            gaps[0].append(I(f"v_lshlrev_b32 v{V_T}, 7, {L}"))
            gaps[2].append(I(f"s_mov_b32 s{S_EF}, {WS_FLAG + 0x28000:#x}"))
            gaps[epos].append(I(f"buffer_load_dword v{V_KX}, v{V_T}, s[{S_WS}:{S_WS+3}], s{S_EF} offen sc1", vm=("ep", 0)))
            if pads:
                gaps[50].append(I("s_getpc_b64 s[32:33]\nKM_PC2:\ns_add_u32 s32, s32, KM_NORM-0x4000-KM_PC2\ns_addc_u32 s33, s33, 0"))
                gaps[52].append(I("s_and_b32 s33, s33, 0xffff")); gaps[53].append(I("s_mov_b32 s34, KM_END-KM_NORM+0x4000"))
                gaps[54].append(I("s_mov_b32 s35, 0x00020000")); gaps[55].append(I(f"s_lshl_b32 s82, s{S_W}, 13"))
                gaps[56].append(I(f"buffer_load_dword a{A_DUM}, v{V_T}, s[32:35], s82 offen"))
        vq = []; slow = []; slow_from = None
        if s in (gs + 1, gs + 2): vq = gfast
        if s == gs + 3: slow = list(gslow)
        ml = [mfma(1, j, i) for j in range(8) for i in range(8)]
        if 1 <= u <= 8:
            for e in range(2):
                ml.insert(30 + 20*e, f"v_mfma_f32_16x16x32_bf16 {ar(KVA,4)}, {ar(A_KX + 8*((u-1)%2) + 4*e,4)}, {ar(KVW+4*e,4)}, {'0' if (u == 1 and e == 0) else ar(KVA,4)}")
        for k, m in enumerate(ml):
            tr.ins(m)
            tr.items.extend(gaps[k])
            for _ in range(vcap(gaps[k])):
                if vq: tr.ins(vq.pop(0))
                elif s == 0 and late:
                    for l in late.pop(0): tr.ins(l)
            if slow and not vq:
                if slow_from is None: slow_from = k + 2
                if k >= slow_from and (k - slow_from) % 2 == 0: tr.ins(slow.pop(0))
        for k in range(len(ml), 68): assert not gaps[k], (s, k)
        assert not slow and not late
        segs.append(tr)

    P = p2
    ec = Trace()
    ec.wait(vm=[("ep", 0)])
    ec.raw(f"""
    v_cmp_ne_u32 vcc, s{S_TAG}, v{V_KX}
    s_and_b32 s80, s2, 7
    s_lshr_b32 s81, s80, 1
    s_lshl_b32 s{P.S_MT}, s{S_MT}, 2
    s_cbranch_vccnz KM_ESPIN
    KM_EBACK:
    s_add_u32 s{P.S_MT}, s{P.S_MT}, s81
    s_lshl_b32 s{P.S_M0KV}, s{S_W}, 13
    s_add_u32 s82, s{P.S_M0KV}, {WS_KV:#x}
    s_add_u32 s{P.S_KVB}, s86, s82
    s_addc_u32 s{P.S_KVB+1}, s87, 0
    v_add_u32 v{V_DT}, 4096, v{V_L16}
    """)
    su2 = f"""
    s_and_b32 s80, s80, 1
    s_lshl_b32 s80, s80, 2
    s_and_b32 s90, s{S_NT}, 3
    s_add_u32 s{P.S_NT}, s80, s90
    s_lshr_b32 s90, s{P.S_MT}, 1
    s_mul_i32 s90, s90, 112
    s_mul_i32 s91, s{S_W}, 28
    s_add_u32 s90, s90, s91
    s_lshl_b32 s90, s90, 13
    s_and_b32 s44, s{P.S_MT}, 1
    s_lshl_b32 s44, s44, 12
    s_add_u32 s90, s90, s44
    s_add_u32 s58, s86, s90\ns_addc_u32 s59, s87, 0
    s_add_u32 s60, s58, 0x2000\ns_addc_u32 s61, s59, 0
    s_add_u32 s62, s58, 0x4000\ns_addc_u32 s63, s59, 0
    s_mov_b64 s[{P.S_HB}:{P.S_HB+1}], s[62:63]
    s_mul_i32 s90, s{P.S_NT}, 144
    s_add_u32 s91, s91, s90
    s_lshl_b32 s91, s91, 13
    s_add_u32 s91, s91, {WS_WT:#x}
    s_add_u32 s64, s86, s91\ns_addc_u32 s65, s87, 0
    s_add_u32 s66, s64, 0x2000\ns_addc_u32 s67, s65, 0
    s_add_u32 s68, s64, 0x4000\ns_addc_u32 s69, s65, 0
    s_mov_b64 s[{P.S_WB}:{P.S_WB+1}], s[68:69]
    s_lshl_b32 s91, s{S_W}, 3
    s_add_u32 s90, s90, s91
    s_lshl_b32 s90, s90, 13
    s_add_u32 s90, s90, {WS_WT + 112*8192:#x}
    s_add_u32 s{P.S_WOB}, s86, s90\ns_addc_u32 s{P.S_WOB+1}, s87, 0
    s_mul_i32 s{P.S_M0SP}, s{S_W}, 24576
    s_add_u32 s{P.S_M0SP}, s{P.S_M0SP}, {P.LDS_SP}
    s_mov_b32 s{P.S_OUT}, s96
    s_and_b32 s{P.S_OUT+1}, s97, 0xffff
    s_mov_b32 s{P.S_OUT+2}, {2048*1024*2:#x}
    s_mov_b32 s{P.S_OUT+3}, 0x00020000
    s_mov_b32 s{P.S_OF}, s{S_FLG}
    s_lshl_b32 s90, s{P.S_MT}, 12
    s_add_u32 s{P.S_OP}, s90, {WS_FLAG:#x}
    s_lshl_b32 s90, s{S_W}, 13
    s_add_u32 s{P.S_HP}, s90, {WS_FLAG + 0x20000:#x}
    s_lshl_b32 s90, s2, 7
    s_add_u32 s90, s90, {WS_FLAG + 0x20000:#x}
    s_cmp_eq_u32 s{S_W}, 0\ns_cselect_b32 s{P.S_HF}, s90, {OOB:#x}
    """
    su2 = [x.strip() for x in su2.strip().split("\n    ")]

    def last_stage(wn):
        tr = Trace()
        s = NST - 1
        su = f"""
        s_lshr_b32 s81, s{S_W}, 1
        s_lshl_b32 s82, s{S_MT}, 1
        s_add_u32 s82, s82, s81
        s_mul_i32 s82, s82, 112
        s_lshr_b32 s83, s{S_NT}, 1
        s_mul_i32 s83, s83, 7
        s_add_u32 s82, s82, s83
        s_and_b32 s84, s{S_NT}, 1
        s_add_u32 s85, s82, 6
        s_lshl_b32 s85, s85, 13
        s_mul_i32 s83, s84, 3
        s_add_u32 s82, s82, s83
        s_add_u32 s82, s82, {2*wn}
        s_lshl_b32 s82, s82, 13
        s_add_u32 s83, s82, 8192
        """
        if wn:
            su += f"""
            s_lshl_b32 s84, s84, 9
            s_add_u32 s85, s85, s84
            v_and_b32 v21, 15, {L}
            v_lshlrev_b32 v21, 4, v21
            v_bfe_u32 v24, {L}, 4, 1
            v_lshl_add_u32 v22, v24, 9, v21
            v_lshl_add_u32 v21, v24, 10, v21
            v_lshrrev_b32 v24, 5, {L}
            v_lshl_add_u32 v22, v24, 10, v22
            v_lshl_add_u32 v21, v24, 8, v21
            s_lshl_b32 s81, s81, 13
            s_add_u32 s81, s81, {P.LDS_Q}
            v_add_u32 v22, s81, v22
            v_add_u32 v23, 4096, v21
            """
        setup = [l.strip() for l in su.strip().split("\n") if l.strip()] + su2
        ffn = lambda t, i: dict(kind="f", t=t, i=i, mf=[(2*t, i), (4 + 2*t, i), (2*t + 1, i), (5 + 2*t, i)])
        if wn == 0:
            halves = [[ffn(0, i) for i in range(8)], [ffn(1, i) for i in range(8)]]
        else:
            halves = [[dict(kind="q", i=i, mf=[(3, i), (7, i)]) for i in range(8)] +
                      [dict(kind="s", i=i, mf=[(2, i), (6, i), (2, i + 1), (6, i + 1)]) for i in range(0, 8, 2)],
                      [ffn(0, i) for i in range(8)]]
        pieces = halves[0] + halves[1]
        half = len(halves[0])
        jsets = [sorted(set(j for pc in hv for j, _ in pc["mf"])) for hv in halves]
        def piece_ops(pc, pk):
            o = []
            i = pc["i"]
            tmp = 12 + 4*(i % 2)
            def reg(j, i):
                p_, b = accn(j, i)
                if p_ == "v": return b
                for r in range(4): o.append(f"v_accvgpr_read_b32 v{tmp+r}, a{b+r}")
                return tmp
            r_ = [reg(j, i_) for j, i_ in pc["mf"]]
            if pc["kind"] == "q":
                g0_, g1_ = r_
            else:
                g0_, u0, g1_, u1 = r_
                for g_, u_ in ((g0_, u0), (g1_, u1)):
                    for r in range(4): o.append(f"v_max_f32 v{g_+r}, 0, v{g_+r}")
                    if pk:
                        o.append(f"v_pk_mul_f32 {vr(g_,2)}, {vr(g_,2)}, {vr(u_,2)}")
                        o.append(f"v_pk_mul_f32 {vr(g_+2,2)}, {vr(g_+2,2)}, {vr(u_+2,2)}")
                    else:
                        for r in range(4): o.append(f"v_mul_f32 v{g_+r}, v{g_+r}, v{u_+r}")
            o += [f"v_cvt_pk_bf16_f32 v{g0_}, v{g0_}, v{g0_+1}", f"v_cvt_pk_bf16_f32 v{g0_+1}, v{g0_+2}, v{g0_+3}",
                  f"v_cvt_pk_bf16_f32 v{g0_+2}, v{g1_}, v{g1_+1}", f"v_cvt_pk_bf16_f32 v{g0_+3}, v{g1_+2}, v{g1_+3}"]
            if pc["kind"] == "q":
                o.append(f"ds_write_b128 v22, {vr(g0_,4)} offset:{(i//2)*2048 + (i%2)*256}")
            elif pc["kind"] == "s":
                o += ["s_nop 1", f"v_permlane16_swap_b32 v{g0_}, v{g0_+2}", f"v_permlane16_swap_b32 v{g0_+1}, v{g0_+3}",
                      f"buffer_store_dwordx4 {vr(g0_,4)}, {'v21' if i < 4 else 'v23'}, s[{S_WS}:{S_WS+3}], s85 offen offset:{(i%4)*1024} sc1"]
            else:
                o.append(f"buffer_store_dwordx4 {vr(g0_,4)}, {'v%d' % (V_L16 if i < 4 else V_DT)}, s[{S_WS}:{S_WS+3}], {'s82' if pc['t'] == 0 else 's83'} offen offset:{(i%4)*1024} sc1")
            return o
        rl = [xread(s, 1, i) for i in range(8)]
        for j in jsets[0]: rl += [wread(s, 1, j, 0), wread(s, 1, j, 1)]
        for x in rl: x["lg"] = ("frA", 0)
        for j in jsets[1]: rl += [wread(s, 1, j, 0), wread(s, 1, j, 1)]
        kv0 = []
        for part in range(2):
            cl = [P.kv_dma(0, part, j) for j in range(4)]
            for x in cl: x["text"] = x["text"].replace(f"v{P.V_L16},", f"v{V_L16},").replace(f"v{P.V_L16B},", f"v{V_DT},")
            kv0.append(cl)
        q = s - tq0 - 2
        tr.wait(lg=[("fr", s, 0)] + ([("tf", q)] if 0 <= q < 9 else []))
        first = []
        if gs + 4 == s:
            first.append([I("s_mov_b32 exec_lo, 1\ns_mov_b32 exec_hi, 1"), I(f"buffer_store_dwordx2 v[24:25], v{V_GROW}, s[{S_WS}:{S_WS+3}], 0 offen sc1", vm=("hst", 0)), I("s_mov_b64 exec, -1")])
        if 0 <= q < 9: first.append([tstore(q)[0]])
        for k, (j, i) in enumerate([(j, i) for j in jsets[0] for i in range(8)]):
            tr.ins(mfma(0, j, i))
            if first:
                tr.items.extend(first.pop(0)); continue
            if k in (26, 29): tr.ins(f"s_add_u32 m0, s{P.S_M0KV}, {4096 if k == 29 else 0}")
            elif k in (27, 30): tr.items.extend(kv0.pop(0))
            elif rl: tr.items.append(rl.pop(0))
            for _ in range(2):
                if setup: tr.ins(setup.pop(0))
        assert not rl
        tr.items.extend(adv64(P.S_KVB, 32768))
        for x in setup: tr.ins(x)
        tr.wait(lg=[("frA", 0)])
        ml = []
        for pi, pc in enumerate(pieces):
            if pi == half:
                ml.append((W(lg=[("fr", s, 1)]), None))
                ml += [(mfma(0, j, i), None) for j in jsets[1] for i in range(8)]
            for j, i in pc["mf"]: ml.append((mfma(1, j, i), pi))
        done_at = {}; cnt = 0; vq = []; nextp = 0
        def put(x):
            tr.ins(x, vm=("hst", 0) if x.startswith("buffer_") else None, lg=("qw", 0) if x.startswith("ds_") else None)
        for k, (m, pi) in enumerate(ml):
            if isinstance(m, dict):
                tr.items.append(m); continue
            tr.ins(m); cnt += 1
            if pi is not None and (k + 1 == len(ml) or ml[k + 1][1] != pi): done_at[pi] = cnt
            budget = 2
            while budget > 0:
                if not vq and nextp in done_at and cnt - done_at[nextp] >= 9:
                    vq = piece_ops(pieces[nextp], False); nextp += 1
                if not vq: break
                c_ = 2 if vq[0].startswith(("buffer_", "ds_")) else 1
                if c_ > budget: break
                put(vq.pop(0)); cnt += 1; budget -= c_
        for x in vq: put(x); cnt += 1
        while nextp < len(pieces):
            if cnt - done_at[nextp] < 9: tr.ins("s_nop 7"); cnt += 8
            for x in piece_ops(pieces[nextp], True): put(x); cnt += 1
            nextp += 1
        return tr
    l0, l1 = last_stage(0), last_stage(1)

    L2 = f"v{P.V_LANE}"
    h2 = Trace()
    h2.raw(f"""
    v_mov_b32 {L2}, {L}
    v_mov_b32 v{P.V_L16}, v{V_L16}
    v_mov_b32 v{P.V_L16B}, v{V_DT}
    v_mov_b32 v{P.V_KVR}, v{V_L16}
    s_lshl_b32 s80, s{S_W}, 12
    s_add_u32 s80, s80, {P.LDS_Q}
    v_add_u32 v24, s80, v{V_L16}
    """)
    h2.wait(vm=[("kv", 0)])
    h2.raw("s_waitcnt lgkmcnt(0)\ns_barrier")
    for q in range(4): h2.ins(f"ds_read_b128 {ar(P.A_Q + 4*q,4)}, v24 offset:{q*1024}", lg=("q", 0))
    for half in range(2): h2.items.append(P.k_read(0, half))
    for half in range(2): h2.items.append(P.v_read(0, half))
    for pp in range(4):
        h2.raw(f"""
        s_add_u32 s80, s{S_W}, {pp}
        s_and_b32 s80, s80, 3
        s_lshl_b32 s80, s80, 11
        v_add_u32 v{P.V_W+pp}, s80, v{P.V_L16}
        """)
    h2.wait(lg=[("k", 0)])
    h2.ins(P.qk(0, 0)); h2.ins(P.qk(0, 1))
    h2.raw(f"""
    v_add_u32 v{P.V_SP}, s{P.S_M0SP}, v{P.V_L16}
    v_add_u32 v{P.V_KP}, s{P.S_M0KV}, v{P.V_L16}
    v_add_u32 v{P.V_WB}, 2048, v{P.V_W}
    v_add_u32 v{P.V_WB+1}, 2048, v{P.V_W+2}
    s_nop 3
    """)
    h2.raw(f"""
    v_bfe_u32 v26, {L2}, 4, 1
    v_bfe_u32 v27, {L2}, 2, 1
    v_cmp_eq_u32 vcc, v26, v27
    v_mov_b32 v26, 0x3f803f80
    s_lshl_b32 s78, s{P.S_MT}, 9
    s_add_u32 s78, s78, {WS_G:#x}
    v_cndmask_b32 v26, 0, v26, vcc
    """)
    for r in range(4): h2.ins(f"v_accvgpr_write_b32 a{P.A_SEL+r}, v26")
    h2.raw(f"""
    s_lshl_b32 s79, s{S_MT}, 11
    s_lshl_b32 s80, s{S_W}, 9
    s_add_u32 s79, s79, s80
    s_add_u32 s79, s79, {WS_G:#x}
    v_and_b32 v26, 31, {L2}
    v_lshlrev_b32 v26, 3, v26
    v_and_b32 v27, 15, {L2}
    v_lshlrev_b32 v27, 3, v27
    v_lshlrev_b32 v25, 7, {L2}
    v_mov_b32 v24, s{S_TAG}
    """)
    def rebase(x, frm, to):
        x["text"] = x["text"].replace(f"s[{frm}:{frm+1}]", f"s[{to}:{to+1}]"); return x
    wl = lambda sg, J0, b: [rebase(P.w_load(sg, J), P.S_WB, b) for J in range(J0, J0 + 4)]
    hl = lambda sg, b: [rebase(P.h_load(sg, i), P.S_HB, b) for i in range(4)]
    early = []
    timed = [(hsig, [W(vm=[("hst", 0), ("ts", 8)]), I("s_barrier"), I("s_mov_b64 exec, 1"), I(f"buffer_store_dword v24, off, s[{S_WS}:{S_WS+3}], s{P.S_HF} sc1"), I("s_mov_b64 exec, -1")]),
             (hpoll, [I(f"buffer_load_dword v28, v25, s[{S_WS}:{S_WS+3}], s{P.S_HP} offen sc1", vm=("hp", 0))]),
             (hpoll + 2, [W(vm=[("hp", 0)]), I(f"v_cmp_ne_u32 vcc, s{S_TAG}, v28"), I("s_nop 0"), I("s_cbranch_vccnz KM_HSPIN"), I("KM_HBACK:"), I("s_barrier")] + hl(0, 58)),
             (hpoll + 2, wl(0, 0, 64)), (hpoll + 3, wl(0, 4, 64)), (hpoll + 3, hl(1, 60)), (hpoll + 4, wl(1, 0, 66)), (hpoll + 4, wl(1, 4, 66)),
             (hpoll + 5, wl(2, 0, 68)), (hpoll + 5, hl(2, 62)),
             (hpoll + 12, [I(f"buffer_load_dword v{P.V_G+hh}, v26, s[{S_WS}:{S_WS+3}], s79 offen offset:{hh*256} sc1", vm=("g2", 0)) for hh in range(2)]),
             (hpoll + 14, [I(f"buffer_load_dword v{P.V_OMG+i}, v27, s[{S_WS}:{S_WS+3}], s78 offen offset:{4 + i*128} sc1", vm=("g2", 0)) for i in range(4)])]
    body = P.main_loop(NIN, g0, early, timed)
    NDOWN, NWO, ACC = P.NDOWN, P.NWO, P.ACC
    t1 = Trace()
    n = P.NSLOT - 1
    t1.ins("s_nop 1")
    t1.ins(P.pv(n, 0)); t1.ins(P.summ(n, 0)); t1.ins(P.pv(n, 1)); t1.ins(P.summ(n, 1))
    VO = P.V_O
    q_ = Trace()
    q_.raw(f"""
    v_bfe_u32 v26, {L2}, 4, 1
    s_lshl_b32 s78, s{S_MT}, 1
    v_lshlrev_b32 v26, 10, v26
    s_lshr_b32 s79, s{S_W}, 1
    v_and_b32 v27, 15, {L2}
    s_add_u32 s78, s78, s79
    v_lshl_add_u32 v26, v27, 4, v26
    s_lshl_b32 s78, s78, 5
    v_lshrrev_b32 v27, 5, {L2}
    s_add_u32 s78, s78, s{S_NT}
    v_lshl_add_u32 v26, v27, 8, v26
    s_lshl_b32 s78, s78, 13
    s_and_b32 s79, s{S_W}, 1
    s_lshl_b32 s79, s79, 12
    s_add_u32 s78, s78, s79
    s_add_u32 s54, s78, {WS_O:#x}
    s_mov_b32 s78, 0x1f800000
    s_mov_b32 s79, 0x5f800000
    s_mov_b32 s55, 0
    v_accvgpr_read_b32 v80, a{P.A_L}
    v_accvgpr_read_b32 v81, a{P.A_L+4}
    """)
    q_.wait(vm=[("g2", 0)])
    q_.raw(f"""
    v_min_f32 v83, v80, v81
    v_max_f32 v84, v80, v81
    v_add_f32 v85, v80, v81
    v_cmp_nle_f32 s[82:83], s78, v83
    v_cmp_nge_f32 s[84:85], s79, v84
    v_cmp_u_f32 vcc, v85, v85
    """)
    q_.ins("s_nop 1\ns_or_b64 s[82:83], s[82:83], s[84:85]\ns_or_b64 vcc, vcc, s[82:83]\ns_cbranch_vccnz KM_FALLBACK\nKM_NORM:\nv_rcp_f32 v80, v80")
    q_.raw(f"""
    v_rcp_f32 v82, v81
    v_mul_f32 v80, v80, v{P.V_G}
    v_mul_f32 v82, v82, v{P.V_G+1}
    """)
    for hh in range(2):
        for pc in range(2):
            b = VO + 16*hh + 8*pc
            for r in range(8): q_.ins(f"v_mul_f32 v{b+r}, v{b+r}, v{80+2*hh}")
            for q in range(4): q_.ins(f"v_cvt_pk_bf16_f32 v{64+8*hh+4*pc+q}, v{b+2*q}, v{b+2*q+1}")
            q_.ins(f"buffer_store_dwordx4 {vr(64+8*hh+4*pc,4)}, v26, s[{S_WS}:{S_WS+3}], s54 offen offset:{hh*2048 + pc*512} sc1", vm=("ost", 0))
    vq = q_.items
    nA, nB = nb
    stepsA = [P.gemm_step(s, vq=vq) for s in range(NIN, NIN + nA)]
    t2 = Trace()
    t2.items.extend(vq)
    t2.ins("s_nop 1")
    for q in range(4):
        t2.ins(f"v_mfma_f32_16x16x32_bf16 v[84:87], {ar(P.A_SEL,4)}, {vr(64+4*q,4)}, {'0' if q == 0 else 'v[84:87]'}")
    stepsA.append(t2)
    polli = lambda: I(f"buffer_load_dword v28, v25, s[{S_WS}:{S_WS+3}], s{P.S_OP} offen sc1", vm=("op", 0))
    stepsB = [P.gemm_step(s, late=[polli()] if s == NIN + nA + nB - 1 else []) for s in range(NIN + nA, NIN + nA + nB)]
    sig = Trace()
    sig.raw(f"""
    v_and_b32 v25, 31, {L2}
    v_lshlrev_b32 v25, 7, v25
    s_lshr_b32 s78, s{P.S_MT}, 1
    s_lshl_b32 s78, s78, 18
    s_add_u32 s78, s78, s44
    s_lshl_b32 s79, s{S_W}, 16
    s_add_u32 s78, s78, s79
    s_add_u32 s78, s78, {WS_O:#x}
    s_add_u32 s56, s86, s78
    s_addc_u32 s57, s87, 0
    """)
    sig.raw(f"""
    v_sub_f32 v84, v84, v84
    s_cmp_lg_u32 s55, 0
    v_cmp_u_f32 vcc, v84, v84
    s_cbranch_scc1 KM_CHECKED
    s_cbranch_vccnz KM_FALLBACK2
    KM_CHECKED:
    """)
    sig.wait(vm=[("ost", 0)])
    sig.raw(f"""
    s_mov_b64 exec, 1
    buffer_store_dword v24, off, s[{S_WS}:{S_WS+3}], s{P.S_OF} sc1
    s_mov_b64 exec, -1
    """)
    t3 = Trace()
    t3.wait(vm=[("op", 0)])
    t3.raw(f"""
    v_cmp_ne_u32 vcc, s{S_TAG}, v28
    s_nop 0
    s_cbranch_vccnz KM_OSPIN
    KM_OBACK:
    """)
    ol = []
    for s in range(NDOWN, NDOWN + NWO):
        ol.append([rebase(P.h_load(s, i), P.S_HB, 56) for i in range(4)] + (adv64(56, 8192) if s < NDOWN + NWO - 1 else []))
    t4 = Trace()
    for grp in ol[:opre]: t4.items.extend(grp)
    k = opre
    stepsC = []
    for s in range(NIN + nA + nB, NDOWN):
        ex = []
        while len(ex) < 2 and k < 5: ex.append(ol[k]); k += 1
        stepsC.append(P.gemm_step(s, ex))
    wos = []
    for s in range(NDOWN, NDOWN + 4):
        ex = []
        while len(ex) < 2 and k < NWO: ex.append(ol[k]); k += 1
        wos.append(P.gemm_step(s, ex))
    ph = Trace()
    su = Asm()
    for pp in range(1, 4):
        su(f"s_add_u32 s78, s{S_W}, {pp}\ns_and_b32 s78, s78, 3\ns_mul_i32 s78, s78, 24576\ns_add_u32 s78, s78, {(pp-1)*8192}\nv_add_u32 v{26+pp}, s78, v{P.V_L16}")
    su(f"""
    s_mul_i32 s78, s{S_W}, 24576
    v_add_u32 v26, s78, v{P.V_L16}
    s_lshl_b32 s78, s{P.S_MT}, 17
    s_lshl_b32 s79, s{P.S_NT}, 8
    s_add_u32 s78, s78, s79
    s_lshl_b32 s79, s{S_W}, 6
    s_add_u32 s78, s78, s79
    s_add_u32 s79, s78, 0x8000
    s_add_u32 s80, s78, 0x10000
    s_add_u32 s81, s78, 0x18000
    v_and_b32 v30, 15, {L2}
    v_lshlrev_b32 v30, 11, v30
    v_bfe_u32 v25, {L2}, 4, 1
    v_lshl_add_u32 v30, v25, 5, v30
    v_lshrrev_b32 v25, 5, {L2}
    v_lshl_add_u32 v30, v25, 4, v30
    """)
    su = [l.strip() for l in su.lines]
    S2 = list(range(NDOWN + 4, NDOWN + 8))
    ph.wait(vm=[("w", s, J) for s in S2[2:] for J in range(8)], lg=[("w", s, J) for s in S2[:2] for J in range(8)])
    ph.ins("s_barrier")
    for idx, pp in enumerate((1, 2, 3, 0)):
        fill = [[] for _ in range(32)]
        if idx == 0:
            for q, x in enumerate(su): fill[q].append(I(x))
        else:
            prev = (1, 2, 3)[idx - 1]
            for t in range(8):
                fill[4 + 3*t].append(I(f"ds_write_b128 v{26+prev}, {vr(ACC + (prev*8 + t)*4, 4)} offset:{t*1024}", lg=("rw", prev)))
        if idx == 3:
            rd = [I(f"ds_read_b128 {vr(ACC + 32 + (s_*8 + t)*4, 4)}, v26 offset:{s_*8192 + t*1024}", lg=("rr", s_)) for s_ in range(2) for t in range(8)]
            free = [g for g in range(32) if not fill[g]]
            for x, g in zip(rd, free): fill[g].append(x)
            ph.wait(lg=[("rw", 2)])
            ph.ins("s_barrier")
        mu = 0
        for s in S2:
            if idx == 0: ph.wait(vm=[("h", s, i) for i in range(4)])
            for J in (2*pp, 2*pp + 1):
                for i in range(4):
                    ph.ins(P.gemm_mfma(s, J, i, False)); ph.items.extend(fill[mu]); mu += 1
    ph.wait(lg=[("rw", 3), ("rr", 1)])
    ph.ins("s_barrier")
    for t in range(8): ph.ins(f"ds_read_b128 {vr(48 + t*4, 4)}, v26 offset:{2*8192 + t*1024}", lg=("rr", 2))
    for s_ in range(3):
        if s_ == 2: ph.wait(lg=[("rr", 2)])
        for r in range(0, 32, 2):
            ph.ins(f"v_pk_add_f32 {vr(ACC+r,2)}, {vr(ACC+r,2)}, {vr((ACC + 32 + s_*32 if s_ < 2 else 48) + r,2)}")
    for i in range(4):
        b0, b1 = ACC + i*4, ACC + (4 + i)*4
        d = 32 + i*4
        om = P.V_OMG + i
        for b in (b0, b0 + 2, b1, b1 + 2):
            ph.ins(f"v_pk_mul_f32 {vr(b,2)}, {vr(b,2)}, {vr(om,2)} op_sel_hi:[1,0]" if om % 2 == 0 else f"v_pk_mul_f32 {vr(b,2)}, {vr(b,2)}, {vr(om-1,2)} op_sel:[0,1] op_sel_hi:[1,1]")
        ph.raw(f"""
        v_cvt_pk_bf16_f32 v{d}, v{b0}, v{b0+1}
        v_cvt_pk_bf16_f32 v{d+1}, v{b0+2}, v{b0+3}
        v_cvt_pk_bf16_f32 v{d+2}, v{b1}, v{b1+1}
        v_cvt_pk_bf16_f32 v{d+3}, v{b1+2}, v{b1+3}
        s_nop 1
        v_permlane16_swap_b32 v{d}, v{d+2}
        v_permlane16_swap_b32 v{d+1}, v{d+3}
        buffer_store_dwordx4 {vr(d,4)}, v30, s[{P.S_OUT}:{P.S_OUT+3}], s{78+i} offen sc1 nt
        """)
    head = [pro, pro2] + segs + [ec]
    rest = [h2, body, t1] + stepsA + [sig] + stepsB + [t3, t4] + stepsC + wos + [ph]
    import copy
    resolve(head + [l0] + rest)
    saved = [[(x.get("wvm"), x.get("wlg")) for x in seg.items] for seg in rest]
    resolve(head + [l1] + rest)
    for seg, sv in zip(rest, saved):
        for x, (v, l) in zip(seg.items, sv):
            if x["text"] is None:
                mn = lambda p, q: q if p is None else p if q is None else min(p, q)
                x["wvm"], x["wlg"] = mn(x["wvm"], v), mn(x["wlg"], l)
    emit_trace(a, [pro]); st.stamp()
    if pads:
        a("s_branch KM_BODY")
        a.lines.append(".p2align 12")
        a.label("KM_BODY")
    emit_trace(a, [pro2]); st.stamp()
    for k, tr in enumerate(segs):
        emit_trace(a, [tr])
        if 'stg' in exp and k % 2 == 0: st.stamp()
    st.stamp()
    emit_trace(a, [ec])
    if 'ec' in exp: st.stamp()
    a(f"s_bitcmp1_b32 s{S_W}, 0")
    a("s_cbranch_scc1 KM_LAST1")
    emit_trace(a, [l0])
    a("s_branch KM_P2")
    a.label("KM_LAST1")
    emit_trace(a, [l1])
    a.label("KM_P2")
    st.stamp()
    if pads: a.lines.append("@CHAIN2")
    emit_trace(a, [h2]); st.stamp()
    b = Asm(); emit_trace(b, [body])
    for l in b.lines:
        a.lines.append(l)
        if 'its' in exp and l.strip() in ("s_barrier", "KM_HBACK:"): st.stamp()
    st.stamp()
    emit_trace(a, [t1]); st.stamp()
    for seg in stepsA + [sig]: emit_trace(a, [seg])
    st.stamp()
    for seg in stepsB: emit_trace(a, [seg])
    st.stamp()
    emit_trace(a, [t3]); st.stamp()
    for seg in [t4] + stepsC: emit_trace(a, [seg])
    st.stamp()
    for seg in wos: emit_trace(a, [seg])
    st.stamp()
    emit_trace(a, [ph])
    if dbg:
        a("s_waitcnt vmcnt(0)")
        st.stamp(force=True)
        st.dump(0, S_W, 86)
        if hdbg is not None:
            a(f"""
            s_lshl_b32 s90, s2, 2
            s_add_u32 s90, s90, s{S_W}
            s_cmp_eq_u32 s90, {4*hdbg}
            s_cbranch_scc0 KM_END
            v_readlane_b32 s90, v31, 32
            v_mbcnt_lo_u32_b32 v0, -1, 0
            v_mbcnt_hi_u32_b32 v0, -1, v0
            v_subrev_u32 v31, s90, v31
            v_subrev_u32 v0, 32, v0
            v_lshlrev_b32 v0, 2, v0
            s_mov_b32 exec_lo, 0
            s_mov_b32 exec_hi, 0xfffe
            buffer_store_dword v31, v0, s[{S_DBG}:{S_DBG+3}], 0 offen
            """)
    a("s_endpgm")
    for nm, ld, val in (("Z", f"buffer_load_dword v1, off, s[{S_DBG}:{S_DBG+3}], 0 sc1", f"eq_u32 vcc, 0, v1"),
                        ("E", f"buffer_load_dword v{V_KX}, v{V_T}, s[{S_WS}:{S_WS+3}], s{S_EF} offen sc1", f"ne_u32 vcc, s{S_TAG}, v{V_KX}"),
                        ("H", f"buffer_load_dword v28, v25, s[{S_WS}:{S_WS+3}], s{P.S_HP} offen sc1", f"ne_u32 vcc, s{S_TAG}, v28"),
                        ("O", f"buffer_load_dword v28, v25, s[{S_WS}:{S_WS+3}], s{P.S_OP} offen sc1", f"ne_u32 vcc, s{S_TAG}, v28")):
        a(f"""
        KM_{nm}SPIN:
        s_mov_b32 s91, 0x40000
        KM_{nm}SPIN1:
        {ld}
        s_waitcnt vmcnt(0)
        v_cmp_{val}
        s_sub_u32 s91, s91, 1
        s_cbranch_vccz KM_{nm}BACK
        s_cmp_eq_u32 s91, 0
        s_cbranch_scc1 KM_{nm}BACK
        s_sleep 1
        s_branch KM_{nm}SPIN1
        """)
    A_K, A_Q = P.A_K, P.A_Q
    a.label("KM_FALLBACK2")
    a("s_mov_b32 s55, 2")
    a.label("KM_FALLBACK")
    a(f"""
    s_or_b32 s55, s55, 1
    s_waitcnt vmcnt(0) lgkmcnt(0)
    s_nop 15
    v_mov_b32 v82, 0xff7fffff
    v_mov_b32 v83, 0xff7fffff
    v_mov_b32 v80, 0
    v_mov_b32 v81, 0
    s_mov_b32 s78, {WS_KV:#x}
    """)
    for r in range(32): a(f"v_mov_b32 v{VO+r}, 0")
    a.label("KM_FB_LOOP")
    for q in range(4):
        a(f"buffer_load_dwordx4 {ar(A_K+4*q,4)}, v{P.V_L16}, s[{S_WS}:{S_WS+3}], s78 offen offset:{q*1024} sc1")
    a("s_waitcnt vmcnt(0)")
    for hh in range(2):
        O = VO + 16*hh; m = 82 + hh; l = 80 + hh
        a(f"v_mfma_f32_32x32x16_bf16 v[64:79], {ar(A_K,4)}, {ar(A_Q+8*hh,4)}, 0")
        a(f"v_mfma_f32_32x32x16_bf16 v[64:79], {ar(A_K+4,4)}, {ar(A_Q+8*hh+4,4)}, v[64:79]")
        a("s_nop 15")
        a("v_max_f32 v84, v64, v65")
        for r in range(2, 16, 2): a(f"v_max3_f32 v84, v{64+r}, v{65+r}, v84")
        a(f"""
        v_mov_b32 v85, v84
        s_nop 1
        v_permlane32_swap_b32 v84, v85
        s_nop 1
        v_max3_f32 v84, v84, v85, v{m}
        v_sub_f32 v85, v{m}, v84
        v_exp_f32 v85, v85
        v_mov_b32 v{m}, v84
        v_mul_f32 v{l}, v{l}, v85
        """)
        for r in range(16):
            a(f"v_sub_f32 v{64+r}, v{64+r}, v84")
            a(f"v_exp_f32 v{64+r}, v{64+r}")
            a(f"v_mul_f32 v{O+r}, v{O+r}, v85")
        for r in range(8): a(f"v_cvt_pk_bf16_f32 v{64+r}, v{64+2*r}, v{65+2*r}")
        for r in range(8):
            a(f"v_lshlrev_b32 v86, 16, v{64+r}\nv_and_b32 v87, 0xffff0000, v{64+r}\nv_add_f32 v{l}, v{l}, v86\nv_add_f32 v{l}, v{l}, v87")
        a(f"v_mfma_f32_32x32x16_bf16 {vr(O,16)}, {ar(A_K+8,4)}, v[64:67], {vr(O,16)}")
        a(f"v_mfma_f32_32x32x16_bf16 {vr(O,16)}, {ar(A_K+12,4)}, v[68:71], {vr(O,16)}")
        a("s_nop 15")
    a(f"""
    s_add_u32 s78, s78, 4096
    s_cmp_lt_u32 s78, {WS_KV + 64*4096:#x}
    s_cbranch_scc1 KM_FB_LOOP
    v_mov_b32 v84, v80
    v_mov_b32 v85, v81
    s_nop 1
    v_permlane32_swap_b32 v80, v84
    v_permlane32_swap_b32 v81, v85
    s_nop 1
    v_add_f32 v80, v80, v84
    v_add_f32 v81, v81, v85
    s_cmp_eq_u32 s55, 1
    s_cbranch_scc1 KM_NORM
    v_rcp_f32 v80, v80
    v_rcp_f32 v82, v81
    s_nop 0
    v_mul_f32 v80, v80, v{P.V_G}
    v_mul_f32 v82, v82, v{P.V_G+1}
    """)
    for hh in range(2):
        for pc in range(2):
            b = VO + 16*hh + 8*pc
            for r in range(8): a(f"v_mul_f32 v{b+r}, v{b+r}, v{80+2*hh}")
            for q in range(4): a(f"v_cvt_pk_bf16_f32 v{64+8*hh+4*pc+q}, v{b+2*q}, v{b+2*q+1}")
            a(f"buffer_store_dwordx4 {vr(64+8*hh+4*pc,4)}, v26, s[{S_WS}:{S_WS+3}], s54 offen offset:{hh*2048 + pc*512} sc1")
    a(f"""
    s_waitcnt vmcnt(0)
    s_branch KM_CHECKED
    KM_END:
    s_endpgm
    """)
    return a.text()
```

```python
from common import *
import p2
from p2 import I, W, adv64
import math, struct

KM = NAME + "_kernel"
LDS_X = 0; LDS_W = 65536
LDS_R = 131072
LDS_QS = LDS_R; LDS_KW = LDS_R + 4096; LDS_T = LDS_R + 16384
KM_LDS = 163840
NST = 16
OOB = 0x7f000000

def accn(j, i): return ("v", 32 + (j*8 + i)*4) if j < 7 else ("a", 128 + i*4)
def acc(j, i):
    p, b = accn(j, i); return vr(b, 4, p)
XF = [0, 64]; WF = [32, 96]
KVW, KVA, A_GX, A_GW, A_T, A_KX, A_DUM = 160, 168, 172, 188, 204, 208, 255
TREG = [196, 200, 204, 224, 228, 232, 236, 240, 244]
V_DQ, V_DX, V_DW = 0, 2, 6
V_RX = [10, 11]
V_RW, V_R3, V_R7, V_RKW, V_T, V_KX, V_LANE = 12, 15, 16, 17, 18, 19, 20
V_GROW, V_L16, V_RT, V_DT, V_DK = 26, 27, 28, 29, 30
S_WQ, S_X, S_G, S_U, S_KV, S_WS, S_GW, S_TSRD, S_WD, S_WO, S_DBG = 4, 8, 12, 16, 20, 24, 28, 32, 52, 76, 72
S_W, S_MT, S_NT, S_OK = 36, 37, 38, 39
S_OX, S_OX2, S_OG, S_OQ, S_TSRCS = 40, 41, 42, 43, 44
S_M0X, S_M0W, S_M0K, S_M0T, S_M0Q = 45, 46, 47, 51, 56
S_TOFF, S_TSTEP, S_TOG = 48, 49, 50
S_TSRC, S_TDST, S_TSRC2, S_TDST2, S_GROW = 3, 94, 95, 100, 101
S_EF = 88
S_TAG = 89
A_TAG = 254
S_FLG = 57

KVD = 1
def dma_group(s, ntw):
    b = s % 2
    g = []
    nt = " nt" if ntw else ""
    for half in range(2):
        so = S_OX if half == 0 else S_OX2
        for j in range(4):
            pre = f"s_add_u32 m0, s{S_M0X}, {b*32768 + half*4096}" if j == 0 else None
            g.append((pre, I(f"buffer_load_dwordx4 v{V_DX+j}, s[{S_X}:{S_X+3}], s{so} offen offset:{j*1024} lds", vm=("st", s))))
    for part in range(2):
        srdn = S_G if part == 0 else S_U
        for j in range(4):
            pre = f"s_add_u32 m0, s{S_M0W}, {b*32768 + part*16384}" if j == 0 else None
            g.append((pre, I(f"buffer_load_dwordx4 v{V_DW+j}, s[{srdn}:{srdn+3}], s{S_OG} offen offset:{j*1024}{nt} lds", vm=("st", s))))
    g.append((f"s_add_u32 m0, s{S_M0Q}, {b*2048}", I(f"buffer_load_dwordx4 v{V_DQ}, s[{S_WQ}:{S_WQ+3}], s{S_OQ} offen{nt} lds", vm=("st", s))))
    adv = {7: [f"s_add_u32 s{S_OX}, s{S_OX}, 128", f"s_add_u32 s{S_OX2}, s{S_OX2}, 128"],
           15: [f"s_add_u32 s{S_OG}, s{S_OG}, {64*7168}"], 16: [f"s_add_u32 s{S_OQ}, s{S_OQ}, 0x20000"]}
    if 1 <= s - KVD <= 8:
        g.append((f"s_add_u32 m0, s{S_M0K}, {b*8192}", I(f"buffer_load_dwordx4 v{V_DK}, s[{S_KV}:{S_KV+3}], s{S_OK} offen lds", vm=("st", s))))
        adv[17] = [f"s_add_u32 s{S_OK}, s{S_OK}, 8192"]
    return g, adv
def xread(s, kk, i):
    return I(f"ds_read_b128 {ar(XF[kk]+4*i,4)}, v{V_RX[kk]} offset:{(s%2)*32768 + i*2048}", lg=("fr", s, kk))
def wread(s, kk, j, h):
    if j % 4 == 3:
        reg, off = (V_R3 if j == 3 else V_R7), h*1024 + kk*8192
    else:
        reg, off = V_RW + (j & 3), (s % 2)*32768 + h*1024 + kk*8192 + (16384 if j >= 4 else 0)
    return I(f"ds_read_b64_tr_b16 {ar(WF[kk]+4*j+2*h,2)}, v{reg} offset:{off}", lg=("fr", s, kk))
def reads(s, kk):
    r = [wread(s, kk, 0, 0), wread(s, kk, 0, 1)] + [xread(s, kk, i) for i in range(8)]
    for j in range(1, 8): r += [wread(s, kk, j, 0), wread(s, kk, j, 1)]
    return r
def mfma(kk, j, i, first=False):
    return f"v_mfma_f32_16x16x32_bf16 {acc(j,i)}, {ar(WF[kk]+4*j,4)}, {ar(XF[kk]+4*i,4)}, {'0' if first else acc(j,i)}"
def vcap(items):
    c = 2
    for x in items:
        t = x["text"] or "s_"
        if t.startswith("ds_"): c -= 1
        elif t.startswith(("buffer_", "global_")): c -= 2
        elif t.startswith("v_"): c -= 1
    return max(c, 0)
from k1 import g_ops as _g_ops
import k1 as _k1
_k1.A_GX, _k1.A_GW = A_GX, A_GW

def gen(dbg=False, hdbg=None, tdefer=False, tpro=0, tpos=0, gl=3, pads=0, epos=10, chain_at=1, ot=99, touch=1, nhead=13, p1=13, npro0=8, gs=11, tq0=5, ntw=False, ntt=True, exp='',
        NIN=25, g0=22, hsig=7, hpoll=15, opre=1, nb=(1, 2)):
    esig = KVD + 11
    p2.configure(NIN)
    a = Asm()
    L = f"v{V_LANE}"
    a("s_cmp_ge_u32 s2, 256")
    a("s_cbranch_scc1 KM_END")
    st = Stamps(a, dbg)
    st.stamp()
    a("s_memrealtime s[72:73]")
    a("s_load_dwordx8 s[56:63], s[0:1], 0")
    a("s_load_dwordx8 s[64:71], s[0:1], 48")
    a("s_load_dwordx2 s[74:75], s[0:1], 32")
    a("s_load_dwordx4 s[96:99], s[0:1], 80")
    a("s_load_dwordx2 s[86:87], s[0:1], 96")
    code_prefetch(a, "KM", 32, "a255", 3)
    a(f"""
    v_and_b32 {L}, 63, v0
    v_lshrrev_b32 v1, 6, v0
    s_and_b32 s80, s2, 7
    v_readfirstlane_b32 s{S_W}, v1
    s_lshr_b32 s81, s2, 3
    s_and_b32 s{S_MT}, s81, 7
    s_lshr_b32 s83, s81, 3
    s_lshl_b32 s80, s80, 2
    s_add_u32 s{S_NT}, s80, s83
    s_mul_i32 s85, s{S_NT}, 224
    s_mov_b32 s{S_OG}, 0
    s_mov_b32 s{S_OQ}, 0
    v_lshrrev_b32 v21, 3, {L}
    s_lshl_b32 s81, s{S_MT}, 8
    s_lshl_b32 s82, s{S_W}, 6
    s_add_u32 s81, s81, s82
    v_add_u32 v21, s81, v21
    v_lshlrev_b32 v21, 11, v21
    v_and_b32 v22, 7, {L}
    v_lshrrev_b32 v23, 4, {L}
    v_xor_b32 v22, v22, v23
    v_lshlrev_b32 v22, 4, v22
    v_xor_b32 v24, 64, v22
    """)
    for j in range(4):
        a(f"v_add_u32 v{V_DX+j}, v21, {'v22' if j % 2 == 0 else 'v24'}")
        if j: a(f"v_add_u32 v{V_DX+j}, {j*8*2048 - j*1024}, v{V_DX+j}")
    a(f"""
    s_mov_b32 s{S_OX}, 0
    s_mov_b32 s{S_OX2}, 65536
    s_mov_b32 s{S_OK}, 0
    s_lshl_b32 s81, s{S_W}, 4
    s_movk_i32 s84, 7168
    v_add_u32 v21, s81, v23
    v_mul_lo_u32 v21, v21, s84
    v_add_u32 v21, s85, v21
    v_and_b32 v25, 1, {L}
    v_lshl_add_u32 v21, v25, 4, v21
    v_bfe_u32 v22, {L}, 1, 3
    v_xor_b32 v22, v22, v23
    v_xor_b32 v24, 4, v22
    v_min_u32 v22, 6, v22
    v_min_u32 v24, 6, v24
    v_lshl_add_u32 v{V_DW}, v22, 5, v21
    v_add_u32 v{V_DW+1}, {4*7168 - 1024}, v{V_DW}
    v_lshl_add_u32 v{V_DW+2}, v24, 5, v21
    v_add_u32 v{V_DW+2}, {2*(4*7168 - 1024)}, v{V_DW+2}
    v_add_u32 v{V_DW+3}, {4*7168 - 1024}, v{V_DW+2}
    s_lshl_b32 s{S_M0X}, s{S_W}, 13
    s_lshl_b32 s{S_M0W}, s{S_W}, 12
    s_add_u32 s{S_M0W}, s{S_M0W}, {LDS_W}
    s_lshl_b32 s{S_M0K}, s{S_W}, 10
    s_add_u32 s{S_M0T}, s{S_M0K}, {LDS_T}
    s_add_u32 s{S_M0K}, s{S_M0K}, {LDS_KW}
    s_lshr_b32 s81, s{S_W}, 1
    s_and_b32 s80, s{S_W}, 1
    """)
    a(f"""
    v_lshlrev_b32 v21, 3, v23
    v_bfe_u32 v22, {L}, 2, 2
    v_add_u32 v21, v21, v22
    s_lshl_b32 s82, s81, 5
    s_lshl_b32 s83, s80, 2
    s_add_u32 s82, s82, s83
    v_add_u32 v21, s82, v21
    v_lshlrev_b32 v21, 11, v21
    v_bfe_u32 v22, {L}, 1, 1
    v_bfe_u32 v24, {L}, 4, 1
    v_xor_b32 v22, v22, v24
    v_lshl_add_u32 v21, v22, 5, v21
    v_lshl_add_u32 v21, v25, 4, v21
    s_lshl_b32 s82, s{S_NT}, 6
    v_add_u32 v{V_DQ}, s82, v21
    s_lshl_b32 s90, s81, 13
    s_lshl_b32 s83, s80, 10
    s_add_u32 s90, s90, s83
    s_waitcnt lgkmcnt(0)
    """)
    st.n and None
    a(f"s_or_b32 s{S_TAG}, s72, 1")
    srd(a, S_X, 56, 2048*1024*2)
    srd(a, S_G, 64, 1024*3584*2)
    srd(a, S_U, 66, 1024*3584*2)
    srd(a, S_WQ, 58, 1024*1024*2)
    a(f"s_add_u32 s{S_M0Q}, s90, {LDS_QS}")
    st.stamp()
    pro = Trace()
    def dma_items(s, lo, hi):
        g, adv = dma_group(s, ntw)
        out = []
        for k in range(lo, min(hi, len(g))):
            pre, it = g[k]
            out.append(([I(pre), I("s_nop 0")] if pre else []) + [it] + [I(x) for x in adv.get(k, [])])
        return out
    pc = Asm()
    pc(f"""
    v_lshlrev_b32 v{V_L16}, 4, {L}
    v_and_b32 v21, 15, {L}
    s_lshl_b32 s83, s81, 14
    v_lshlrev_b32 v22, 7, v21
    v_lshrrev_b32 v24, 1, v21
    v_xor_b32 v24, v24, v23
    v_lshl_add_u32 v22, v24, 4, v22
    v_add_u32 v{V_RX[0]}, s83, v22
    v_xor_b32 v{V_RX[1]}, 64, v{V_RX[0]}
    v_bfe_u32 v21, {L}, 2, 2
    v_lshl_add_u32 v22, v23, 3, v21
    v_and_b32 v24, 3, {L}
    v_lshlrev_b32 v24, 3, v24
    v_lshl_add_u32 v{V_RKW}, v22, 5, v24
    s_lshl_b32 s83, s81, 11
    s_add_u32 s83, s83, {LDS_KW}
    v_add_u32 v{V_RKW}, s83, v{V_RKW}
    v_lshl_add_u32 v22, v22, 8, v24
    v_add_u32 v22, {LDS_W}, v22
    v_and_b32 v25, 1, v23
    v_lshl_or_b32 v1, v25, 2, v21
    s_lshl_b32 s82, s80, 2
    """)
    for j in range(4):
        pc(f"s_add_u32 s83, s82, {j}")
        pc(f"v_xor_b32 v{V_T}, s83, v1")
        pc(f"v_lshl_add_u32 v{V_RW+j}, v{V_T}, 5, v22")
    pc(f"""
    v_add_u32 v{V_R7}, 16384, v{V_R3}
    v_lshl_add_u32 v22, v23, 2, v21
    v_lshl_add_u32 v22, v22, 6, v24
    v_lshl_add_u32 v22, v25, 5, v22
    v_add_u32 v22, {LDS_QS}, v22
    v_xor_b32 v1, 32, v22
    s_cmp_eq_u32 s80, 1
    s_cselect_b64 vcc, -1, 0
    s_movk_i32 s{S_TOG}, 2048
    s_cselect_b32 s{S_TOG}, s{S_TOG}, 0x8000
    v_cndmask_b32 v{V_R3}, v{V_R3}, v22, vcc
    v_cndmask_b32 v{V_R7}, v{V_R7}, v1, vcc
    """)
    p = Asm()
    p(f"""
    v_lshrrev_b32 v1, 3, {L}
    v_lshlrev_b32 v1, 11, v1
    v_bfe_u32 v25, {L}, 1, 2
    v_xor_b32 v25, v25, v23
    v_lshl_add_u32 v1, v25, 5, v1
    v_and_b32 v25, 1, {L}
    v_lshl_add_u32 v{V_DT}, v25, 4, v1
    v_lshl_add_u32 v1, v23, 2, v21
    v_bfe_u32 v25, v1, 1, 2
    v_xor_b32 v25, s{S_W}, v25
    v_lshlrev_b32 v1, 7, v1
    v_lshl_add_u32 v1, v25, 5, v1
    v_add_u32 v1, v1, v24
    v_add_u32 v{V_RT}, {LDS_T}, v1
    s_lshr_b32 s82, s2, 4
    s_and_b32 s83, s2, 15
    s_mul_i32 s{S_TSRC}, s82, {224*2048}
    s_lshl_b32 s90, s83, 7
    s_add_u32 s{S_TSRC}, s{S_TSRC}, s90
    s_lshl_b32 s{S_TSRC2}, s82, 17
    s_add_u32 s{S_TSRC2}, s{S_TSRC2}, s90
    s_mul_i32 s90, s80, {112*2048}
    s_add_u32 s{S_TSRCS}, s{S_TSRC}, s90
    s_lshl_b32 s90, s81, 13
    s_add_u32 s{S_TSRCS}, s{S_TSRCS}, s90
    s_add_u32 s{S_TSRCS}, s{S_TSRCS}, {96*2048}
    s_lshl_b32 s90, s{S_W}, 14
    s_add_u32 s{S_TSRC}, s{S_TSRC}, s90
    s_lshl_b32 s90, s80, 15
    s_add_u32 s{S_TSRC2}, s{S_TSRC2}, s90
    s_lshl_b32 s90, s81, 14
    s_add_u32 s{S_TSRC2}, s{S_TSRC2}, s90
    s_lshr_b32 s90, s83, 1
    s_mul_i32 s90, s90, {144*8192}
    s_and_b32 s83, s83, 1
    s_lshl_b32 s83, s83, 12
    s_add_u32 s90, s90, s83
    s_lshl_b32 s83, s{S_W}, 10
    s_add_u32 s90, s90, s83
    s_add_u32 s90, s90, {WS_WT:#x}
    s_mul_i32 s{S_TDST}, s82, {7*8192}
    s_add_u32 s{S_TDST}, s{S_TDST}, s90
    s_lshl_b32 s{S_TDST2}, s82, 14
    s_add_u32 s{S_TDST2}, s{S_TDST2}, s90
    s_add_u32 s{S_TDST2}, s{S_TDST2}, {112*8192}
    s_lshl_b32 s82, s2, 3
    s_lshl_b32 s83, s{S_W}, 1
    s_add_u32 s82, s82, s83
    s_lshl_b32 s{S_GROW}, s82, 11
    v_lshrrev_b32 v1, 5, {L}
    v_add_u32 v{V_GROW}, s82, v1
    v_lshlrev_b32 v{V_GROW}, 3, v{V_GROW}
    v_add_u32 v{V_GROW}, {WS_G:#x}, v{V_GROW}
    s_lshl_b32 s82, s{S_MT}, 2
    s_add_u32 s82, s82, s{S_W}
    s_lshl_b32 s82, s82, 5
    s_add_u32 s82, s82, s{S_NT}
    s_lshl_b32 s82, s82, 7
    s_add_u32 s{S_FLG}, s82, {WS_FLAG:#x}
    """)
    p(f"""
    s_and_b32 s82, s{S_NT}, 2
    s_cmp_eq_u32 s82, 0
    s_cselect_b32 s{S_KV}, s60, s62
    s_cselect_b32 s{S_KV+1}, s61, s63
    s_and_b32 s{S_KV+1}, s{S_KV+1}, 0xffff
    s_mov_b32 s{S_KV+2}, 65536
    s_mov_b32 s{S_KV+3}, 0x00020000
    """)
    srd(p, S_WS, 86, WS_SIZE)
    srd(p, S_GW, 70, 2048)
    srd(p, S_WD, 68, 3584*1024*2)
    srd(p, S_WO, 74, 1024*1024*2)
    srd(p, S_DBG, 98, 256)
    p(f"""
    v_lshrrev_b32 v21, 1, {L}
    v_lshlrev_b32 v21, 6, v21
    v_and_b32 v22, 1, {L}
    v_lshl_add_u32 v21, v22, 4, v21
    s_and_b32 s82, s{S_NT}, 1
    s_lshl_b32 s82, s82, 5
    s_lshl_b32 s83, s{S_W}, 11
    s_add_u32 s82, s82, s83
    v_add_u32 v{V_DK}, s82, v21
    s_lshl_b32 s82, s{S_MT}, 8
    s_lshr_b32 s83, s{S_NT}, 2
    s_lshl_b32 s83, s83, 5
    s_add_u32 s82, s82, s83
    s_lshl_b32 s83, s80, 4
    s_add_u32 s82, s82, s83
    s_lshl_b32 s82, s82, 11
    s_lshl_b32 s83, s81, 7
    s_add_u32 s82, s82, s83
    v_and_b32 v21, 15, {L}
    v_lshlrev_b32 v22, 11, v21
    v_lshl_add_u32 v22, v23, 4, v22
    v_add_u32 v{V_KX}, s82, v22
    """)
    pt = Asm()
    if touch:
        (pt if tpro else p)(f"""
        s_and_b32 s82, s{S_NT}, 3
        s_lshl_b32 s82, s82, 6
        s_lshl_b32 s83, s{S_MT}, 8
        s_add_u32 s82, s82, s83
        v_add_u32 v25, s82, {L}
        v_lshlrev_b32 v25, 11, v25
        s_lshl_b32 s82, s{S_MT}, 3
        v_bfe_u32 v24, {L}, 2, 3
        v_add_u32 v24, s82, v24
        v_lshlrev_b32 v21, 11, v24
        v_mul_lo_u32 v24, v24, s84
        v_and_b32 v1, 3, {L}
        v_lshlrev_b32 v1, 7, v1
        v_min_u32 v1, 220, v1
        v_add3_u32 v24, v24, v1, s85
        s_lshl_b32 s82, s{S_NT}, 6
        v_add_u32 v21, s82, v21
        s_mov_b32 s{S_TSTEP}, {64*7168}
        s_cmp_eq_u32 s{S_W}, 0
        s_cselect_b64 vcc, -1, 0
        s_cselect_b32 s{S_TSRD}, s{S_X}, s{S_G}
        s_cselect_b32 s{S_TSRD+1}, s{S_X+1}, s{S_G+1}
        s_cselect_b32 s{S_TSRD+2}, s{S_X+2}, s{S_G+2}
        s_cselect_b32 s{S_TSTEP}, 128, s{S_TSTEP}
        v_cndmask_b32 v{V_T}, v24, v25, vcc
        s_cmp_eq_u32 s{S_W}, 2
        s_cselect_b32 s{S_TSRD}, s{S_U}, s{S_TSRD}
        s_cselect_b32 s{S_TSRD+1}, s{S_U+1}, s{S_TSRD+1}
        s_cmp_eq_u32 s{S_W}, 3
        s_cselect_b64 vcc, -1, 0
        s_cselect_b32 s{S_TSRD}, s{S_WQ}, s{S_TSRD}
        s_cselect_b32 s{S_TSRD+1}, s{S_WQ+1}, s{S_TSRD+1}
        s_cselect_b32 s{S_TSRD+2}, s{S_WQ+2}, s{S_TSRD+2}
        s_cselect_b32 s{S_TSTEP}, 0x20000, s{S_TSTEP}
        v_cndmask_b32 v{V_T}, v{V_T}, v21, vcc
        s_mov_b32 s{S_TSRD+3}, 0x00020000
        s_mul_i32 s{S_TOFF}, s{S_TSTEP}, {2 if tpro else (touch + 1 if touch >= 2 else touch + 2)}
        """)
    late = []
    for l in [l.strip() for l in p.lines]:
        if late and l.startswith(("s_cselect", "s_addc", "v_cndmask", "s_movk_i32 s50")): late[-1].append(l)
        else: late.append([l])
    late += [[f"v_and_b32 v1, 31, {L}"], ["v_lshlrev_b32 v1, 7, v1"], ["s_lshr_b32 s82, s2, 3"], ["s_and_b32 s82, s82, 15"], ["s_lshl_b32 s82, s82, 12"]]
    for grp in dma_items(0, 0, 17): pro.items.extend(grp)
    for l in pt.lines: pro.ins(l.strip())
    tch = lambda: [I(f"buffer_load_dword a{A_DUM}, v{V_T}, s[{S_TSRD}:{S_TSRD+3}], s{S_TOFF} offen", vm=("touch", 0)), I(f"s_add_u32 s{S_TOFF}, s{S_TOFF}, s{S_TSTEP}")]
    if tpos == 0:
        for _ in range(tpro): pro.items.extend(tch())
    for l in pc.lines: pro.ins(l.strip().replace(f"v{V_T},", "v22x,").replace("v22x", "v19"))
    for grp in dma_items(1, 0, p1): pro.items.extend(grp)
    if tpos == 1:
        for _ in range(tpro): pro.items.extend(tch())
    one_time = [I(f"buffer_load_dword a{A_DUM}, v1, s[{S_KV}:{S_KV+3}], s82 offen"), I(f"buffer_load_dword a{A_DUM}, v1, s[{S_GW}:{S_GW+3}], 0 offen")]
    touch_ins = lambda: I(f"buffer_load_dword a{A_DUM}, v{V_T}, s[{S_TSRD}:{S_TSRD+3}], s{S_TOFF} offen", vm=("touch", 0))
    touch_adv = f"s_add_u32 s{S_TOFF}, s{S_TOFF}, s{S_TSTEP}"
    pro2 = Trace()
    pro2.wait(vm=[("st", 0)])
    pro2.ins("s_barrier")
    pro2.items.extend(reads(0, 0))

    gfast, gslow = _g_ops()
    gslow += ["v_max_f32 v25, 0x2b800000, v25", "v_rcp_f32 v23, v25", "v_mul_f32 v24, v24, v23"]
    GSPLIT = 70
    c_q = struct.unpack("<I", struct.pack("<f", math.log2(math.e) / math.sqrt(32.0)))[0]
    kvfin = [f"v_accvgpr_read_b32 v{21+r}, a{KVA+r}" for r in range(4)]
    for r in range(4): kvfin += [f"v_accvgpr_read_b32 v1, a{KVW+r}", f"v_add_f32 v{21+r}, v{21+r}, v1", f"v_mul_f32 v{21+r}, s84, v{21+r}"]
    kvfin += ["v_cvt_pk_bf16_f32 v22, v21, v22", "v_cvt_pk_bf16_f32 v23, v23, v24",
              f"v_and_b32 v1, 15, {L}", "v_lshlrev_b32 v1, 4, v1", f"v_bfe_u32 v21, {L}, 4, 1", "v_lshl_add_u32 v1, v21, 9, v1",
              f"v_lshrrev_b32 v21, 5, {L}", "v_lshl_add_u32 v1, v21, 3, v1",
              f"buffer_store_dwordx2 v[22:23], v1, s[{S_WS}:{S_WS+3}], s82 offen offset:2048 sc1",
              f"v_bfe_u32 v24, {L}, 3, 1", "v_lshlrev_b32 v24, 10, v24", f"v_bfe_u32 v21, {L}, 2, 1", "v_lshl_add_u32 v24, v21, 9, v24",
              f"v_lshrrev_b32 v21, 4, {L}", "v_lshl_add_u32 v24, v21, 6, v24", f"v_and_b32 v21, 3, {L}", "v_lshl_add_u32 v24, v21, 1, v24",
              f"buffer_store_short v22, v24, s[{S_WS}:{S_WS+3}], s83 offen sc1",
              f"buffer_store_short_d16_hi v22, v24, s[{S_WS}:{S_WS+3}], s83 offen offset:16 sc1",
              f"buffer_store_short v23, v24, s[{S_WS}:{S_WS+3}], s83 offen offset:32 sc1",
              f"buffer_store_short_d16_hi v23, v24, s[{S_WS}:{S_WS+3}], s83 offen offset:48 sc1"]
    kvsal = f"""s_lshl_b32 s82, s{S_MT}, 3
    s_lshr_b32 s83, s{S_NT}, 2
    s_add_u32 s82, s82, s83
    s_lshl_b32 s82, s82, 12
    s_add_u32 s82, s82, {WS_KV:#x}
    s_and_b32 s85, s{S_NT}, 1
    s_lshl_b32 s83, s85, 3
    s_add_u32 s83, s83, s82
    s_lshl_b32 s85, s85, 8
    s_add_u32 s82, s82, s85
    s_lshl_b32 s85, s{S_W}, 10
    s_add_u32 s82, s82, s85
    s_lshl_b32 s85, s{S_W}, 8
    s_add_u32 s83, s83, s85
    s_and_b32 s85, s{S_NT}, 2
    s_cmp_eq_u32 s85, 0
    s_cselect_b32 s84, {c_q:#x}, 1.0
    s_cselect_b32 s82, {OOB:#x}, s82
    s_cselect_b32 s83, s83, {OOB:#x}
    s_cmp_ge_u32 s{S_W}, 2
    s_cselect_b32 s82, {OOB:#x}, s82
    s_cselect_b32 s83, {OOB:#x}, s83""".split("\n")
    kvsal = [x.strip() for x in kvsal]
    kvsal = kvsal[:-7] + ["\n".join(kvsal[-7:-3]), "\n".join(kvsal[-3:])]
    segs = []
    grest = []
    def tstore(q):
        so = S_TDST if q < 7 else S_TDST2
        return [I(f"buffer_store_dwordx4 {ar(TREG[q] if tdefer else A_T,4)}, v{p2.V_L16 if tdefer else V_L16}, s[{S_WS}:{S_WS+3}], s{so} offen sc1", vm=("ts", q)), I(f"s_add_u32 s{so}, s{so}, 8192")]
    for s in range(NST - 1):
        tr = Trace()
        gaps = [[] for _ in range(66)]
        rl = reads(s, 1)
        u = s - KVD
        if 1 <= u <= 8:
            for e in range(2):
                for h in range(2):
                    rl.append(I(f"ds_read_b64_tr_b16 {ar(KVW+4*e+2*h,2)}, v{V_RKW} offset:{(s%2)*8192 + e*1024 + h*128}", lg=("kvf", s)))
        if u == 9:
            gaps[1].append(I(f"v_add_u32 v21, {LDS_KW + 8192*(s%2)}, v{V_L16}"))
            gaps[3].append(I(f"s_lshl_b32 s82, s{S_W}, 10")); gaps[5].append(I("v_add_u32 v22, s82, v21"))
            gaps[7].append(I("s_xor_b32 s82, s82, 2048")); gaps[9].append(I("v_add_u32 v21, s82, v21"))
            rl.append(I(f"ds_write_b128 v22, {ar(KVA,4)}", lg=("kvf", s)))
        for k, it in enumerate(rl): gaps[2*k].append(it)
        gaps[57].append(I(f"v_xor_b32 v{V_R3}, s{S_TOG}, v{V_R3}")); gaps[59].append(I(f"v_xor_b32 v{V_R7}, s{S_TOG}, v{V_R7}"))
        g, adv = dma_group(s + 1, ntw)
        lo = p1 if s == 0 else nhead
        G = 11 if u == 9 else 1
        for k in range(lo, len(g)):
            pre, it = g[k]
            if pre: gaps[G - 1].append(I(pre))
            gaps[G].append(it)
            for x in adv.get(k, []): gaps[G + 1].append(I(x))
            G += 4
        G -= 2
        if touch and (s >= 1 or tpro) and s + touch + 1 < NST and not (tpro and s + touch + 1 < 2 + tpro):
            for _ in range(2 if (s == 1 and touch >= 2 and not tpro) else 1):
                gaps[G].append(touch_ins()); gaps[G + 1].append(I(touch_adv)); G += 2
        if 0 <= u <= 7:
            for e in range(2):
                gaps[G].append(I(f"buffer_load_dwordx4 {ar(A_KX + 8*(u%2) + 4*e,4)}, v{V_KX}, s[{S_X}:{S_X+3}], 0 offen offset:{u*256 + e*64}", vm=("kx", u))); G += 2
        q = s - tq0
        if 0 <= q < 9:
            fl = " nt" if ntt else ""
            gaps[G - 1].append(I(f"s_add_u32 m0, s{S_M0T}, {(q%3)*4096}"))
            if q == 6:
                gaps[G - 2].append(I(f"v_lshrrev_b32 v{V_KX}, 5, {L}")); gaps[G - 1].append(I(f"v_lshl_add_u32 v{V_KX}, v{V_KX}, 13, v{V_DT}"))
                gaps[G].append(I(f"buffer_load_dwordx4 v{V_KX}, s[{S_WD}:{S_WD+3}], s{S_TSRCS} offen{fl} lds", vm=("t", q)))
            else:
                srdn, so = (S_WD, S_TSRC) if q < 7 else (S_WO, S_TSRC2)
                gaps[G].append(I(f"buffer_load_dwordx4 v{V_DT}, s[{srdn}:{srdn+3}], s{so} offen{fl} lds", vm=("t", q)))
                gaps[G + 1].append(I(f"s_add_u32 s{so}, s{so}, {48*2048 if q == 2 else 0x10000}"))
            G += 2
        q = s - tq0 - 2
        if 0 <= q < 9 and not tdefer:
            x, y = tstore(q); gaps[G].append(x); gaps[G + 1].append(y); G += 2
        if s == ot:
            for x in one_time: gaps[G].append(x); G += 2
        if s == 2:
            gaps[G - 1].append(I(f"v_mov_b32 v21, s{S_TAG}"))
            gaps[G].append(I(f"s_or_b32 s83, s2, s{S_W}\ns_cselect_b32 s83, {OOB:#x}, 0")); G += 2
            gaps[G].extend([I("s_mov_b64 exec, 1"), I(f"buffer_store_dword v21, off, s[{S_DBG}:{S_DBG+3}], s83 sc1"), I("s_mov_b64 exec, -1")]); G += 2
        if s == 6:
            gaps[G].append(I(f"buffer_load_dword a{A_TAG}, off, s[{S_DBG}:{S_DBG+3}], 0 sc1", vm=("zp", 0))); G += 2
        if s == esig + 1:
            gaps[G - 2].append(I(f"s_lshl_b32 s82, s{S_MT}, 5")); gaps[G - 1].append(I(f"s_add_u32 s82, s82, s{S_NT}\ns_lshl_b32 s82, s82, 7")); gaps[G].append(I(f"s_add_u32 s82, s82, {WS_FLAG + 0x28000:#x}"))
            gaps[G + 1].append(I(f"s_cmp_eq_u32 s{S_W}, 0\ns_cselect_b32 s82, s82, {OOB:#x}")); G += 2
            gaps[G].extend([I("s_mov_b64 exec, 1"), I(f"buffer_store_dword a{A_TAG}, off, s[{S_WS}:{S_WS+3}], s82 sc1"), I("s_mov_b64 exec, -1")]); G += 2
        kvstart = G
        if s == gl:
            for q_ in range(4):
                gaps[G].append(I(f"buffer_load_dwordx4 {ar(A_GX+4*q_,4)}, v{V_L16}, s[{S_X}:{S_X+3}], s{S_GROW} offen offset:{1024*q_}", vm=("g", 0))); G += 2
            for q_ in range(2):
                gaps[G].append(I(f"buffer_load_dwordx4 {ar(A_GW+4*q_,4)}, v{V_L16}, s[{S_GW}:{S_GW+3}], 0 offen offset:{1024*q_}", vm=("g", 0))); G += 2
        assert G < 64, (s, G)
        tr.wait(lg=[("fr", s, 0)] + ([("tf", q)] if 0 <= q < 9 else []) + ([("kvp", 0)] if u == 10 else []))
        vq = []
        if s in (gs + 2, gs + 3): vq = gfast
        if u == 10: vq = list(kvfin)
        k = 0
        for j in range(8):
            for i in range(8):
                tr.ins(mfma(0, j, i, first=(s == 0)))
                tr.items.extend(gaps[k])
                cap = vcap(gaps[k])
                if s == 0:
                    for _ in range(2):
                        if late and cap > 0:
                            for l in late.pop(0): tr.ins(l)
                            cap -= 1
                while vq and cap > 0 and not (u == 10 and k < kvstart - 8):
                    if vq[0].startswith("buffer_"):
                        if cap < 2: break
                        tr.ins(vq.pop(0), vm=("kvst", 0)); cap -= 2
                    else:
                        tr.ins(vq.pop(0)); cap -= 1
                k += 1
        if s != gs + 2: assert not vq
        need = [("st", s + 1)]
        if 0 <= s - tq0 - 1 < 9: need.append(("t", s - tq0 - 1))
        if s == gs + 1: need.append(("g", 0))
        if 1 <= u <= 8: need.append(("kx", u - 1))
        if s == 7: need.append(("zp", 0))
        if s == esig: need.append(("kvst", 0))
        if pads and s == chain_at: tr.ins("@CHAIN1")
        tr.wait(vm=need, lg=[("fr", s, 1)] + ([("kvf", s)] if 1 <= u <= 9 else []))
        tr.ins("s_barrier")
        segs.append(tr)
        tr = Trace()
        gaps = [[] for _ in range(68)]
        for k, it in enumerate(reads(s + 1, 0)): gaps[2*k + 1].append(it)
        q = s - tq0 - 1
        if 0 <= q < 9:
            for h in range(2):
                gaps[49 + 2*h].append(I(f"ds_read_b64_tr_b16 {ar((TREG[q] if tdefer else A_T)+2*h,2)}, v{V_RT} offset:{(q%3)*4096 + h*2048}", lg=("tf", q)))
        if u == 9:
            gaps[53].append(I(f"ds_read_b128 {ar(KVW,4)}, v21", lg=("kvp", 0)))
            for k, x in enumerate(kvsal): gaps[2*k + 3 if 2*k + 3 < 48 else 55].append(I(x.strip()))
        if s + 2 < NST:
            g, adv = dma_group(s + 2, ntw)
            hg = [2*round(k*62/(2*nhead)) for k in range(nhead)]
            for k in range(nhead):
                pre, it = g[k]
                if pre:
                    if hg[k]: gaps[hg[k] - 1].insert(0, I(pre))
                    else: tr.ins(pre)
                gaps[hg[k]].append(it)
                for x in adv.get(k, []): gaps[hg[k] + 2].append(I(x))
        if s == 7:
            gaps[54].append(I(f"v_accvgpr_read_b32 v1, a{A_TAG}"))
            gaps[56].append(I(f"v_cmp_eq_u32 vcc, 0, v1")); gaps[58].append(I("s_cbranch_vccnz KM_ZSPIN\nKM_ZBACK:"))
            gaps[60].append(I(f"v_accvgpr_write_b32 a{A_TAG}, v1")); gaps[62].append(I(f"v_readfirstlane_b32 s{S_TAG}, v1"))
        if s == 14:
            gaps[0].append(I(f"v_lshlrev_b32 v{V_T}, 7, {L}"))
            gaps[2].append(I(f"s_mov_b32 s{S_EF}, {WS_FLAG + 0x28000:#x}"))
            gaps[epos].append(I(f"buffer_load_dword v{V_KX}, v{V_T}, s[{S_WS}:{S_WS+3}], s{S_EF} offen sc1", vm=("ep", 0)))
            if pads:
                gaps[50].append(I("s_getpc_b64 s[32:33]\nKM_PC2:\ns_add_u32 s32, s32, KM_NORM-0x4000-KM_PC2\ns_addc_u32 s33, s33, 0"))
                gaps[52].append(I("s_and_b32 s33, s33, 0xffff")); gaps[53].append(I("s_mov_b32 s34, KM_END-KM_NORM+0x4000"))
                gaps[54].append(I("s_mov_b32 s35, 0x00020000")); gaps[55].append(I(f"s_lshl_b32 s82, s{S_W}, 13"))
                gaps[56].append(I(f"buffer_load_dword a{A_DUM}, v{V_T}, s[32:35], s82 offen"))
        vq = []; slow = []; slow_from = None
        if s in (gs + 1, gs + 2): vq = gfast
        if s == gs + 3: slow = list(gslow)
        ml = [mfma(1, j, i) for j in range(8) for i in range(8)]
        if 1 <= u <= 8:
            for e in range(2):
                ml.insert(30 + 20*e, f"v_mfma_f32_16x16x32_bf16 {ar(KVA,4)}, {ar(A_KX + 8*((u-1)%2) + 4*e,4)}, {ar(KVW+4*e,4)}, {'0' if (u == 1 and e == 0) else ar(KVA,4)}")
        for k, m in enumerate(ml):
            tr.ins(m)
            tr.items.extend(gaps[k])
            for _ in range(vcap(gaps[k])):
                if vq: tr.ins(vq.pop(0))
                elif s == 0 and late:
                    for l in late.pop(0): tr.ins(l)
            if slow and not vq:
                if slow_from is None: slow_from = k + 2
                if k >= slow_from and (k - slow_from) % 2 == 0: tr.ins(slow.pop(0))
        for k in range(len(ml), 68): assert not gaps[k], (s, k)
        assert not slow and not late
        segs.append(tr)

    P = p2
    ec = Trace()
    ec.wait(vm=[("ep", 0)])
    ec.raw(f"""
    v_cmp_ne_u32 vcc, s{S_TAG}, v{V_KX}
    s_and_b32 s80, s2, 7
    s_lshr_b32 s81, s80, 1
    s_lshl_b32 s{P.S_MT}, s{S_MT}, 2
    s_cbranch_vccnz KM_ESPIN
    KM_EBACK:
    s_add_u32 s{P.S_MT}, s{P.S_MT}, s81
    s_lshl_b32 s{P.S_M0KV}, s{S_W}, 13
    s_add_u32 s82, s{P.S_M0KV}, {WS_KV:#x}
    s_add_u32 s{P.S_KVB}, s86, s82
    s_addc_u32 s{P.S_KVB+1}, s87, 0
    v_add_u32 v{V_DT}, 4096, v{V_L16}
    """)
    su2 = f"""
    s_and_b32 s80, s80, 1
    s_lshl_b32 s80, s80, 2
    s_and_b32 s90, s{S_NT}, 3
    s_add_u32 s{P.S_NT}, s80, s90
    s_lshr_b32 s90, s{P.S_MT}, 1
    s_mul_i32 s90, s90, 112
    s_mul_i32 s91, s{S_W}, 28
    s_add_u32 s90, s90, s91
    s_lshl_b32 s90, s90, 13
    s_and_b32 s44, s{P.S_MT}, 1
    s_lshl_b32 s44, s44, 12
    s_add_u32 s90, s90, s44
    s_add_u32 s58, s86, s90\ns_addc_u32 s59, s87, 0
    s_add_u32 s60, s58, 0x2000\ns_addc_u32 s61, s59, 0
    s_add_u32 s62, s58, 0x4000\ns_addc_u32 s63, s59, 0
    s_mov_b64 s[{P.S_HB}:{P.S_HB+1}], s[62:63]
    s_mul_i32 s90, s{P.S_NT}, 144
    s_add_u32 s91, s91, s90
    s_lshl_b32 s91, s91, 13
    s_add_u32 s91, s91, {WS_WT:#x}
    s_add_u32 s64, s86, s91\ns_addc_u32 s65, s87, 0
    s_add_u32 s66, s64, 0x2000\ns_addc_u32 s67, s65, 0
    s_add_u32 s68, s64, 0x4000\ns_addc_u32 s69, s65, 0
    s_mov_b64 s[{P.S_WB}:{P.S_WB+1}], s[68:69]
    s_lshl_b32 s91, s{S_W}, 3
    s_add_u32 s90, s90, s91
    s_lshl_b32 s90, s90, 13
    s_add_u32 s90, s90, {WS_WT + 112*8192:#x}
    s_add_u32 s{P.S_WOB}, s86, s90\ns_addc_u32 s{P.S_WOB+1}, s87, 0
    s_mul_i32 s{P.S_M0SP}, s{S_W}, 24576
    s_add_u32 s{P.S_M0SP}, s{P.S_M0SP}, {P.LDS_SP}
    s_mov_b32 s{P.S_OUT}, s96
    s_and_b32 s{P.S_OUT+1}, s97, 0xffff
    s_mov_b32 s{P.S_OUT+2}, {2048*1024*2:#x}
    s_mov_b32 s{P.S_OUT+3}, 0x00020000
    s_mov_b32 s{P.S_OF}, s{S_FLG}
    s_lshl_b32 s90, s{P.S_MT}, 12
    s_add_u32 s{P.S_OP}, s90, {WS_FLAG:#x}
    s_lshl_b32 s90, s{S_W}, 13
    s_add_u32 s{P.S_HP}, s90, {WS_FLAG + 0x20000:#x}
    s_lshl_b32 s90, s2, 7
    s_add_u32 s90, s90, {WS_FLAG + 0x20000:#x}
    s_cmp_eq_u32 s{S_W}, 0\ns_cselect_b32 s{P.S_HF}, s90, {OOB:#x}
    """
    su2 = [x.strip() for x in su2.strip().split("\n    ")]

    def last_stage(wn):
        tr = Trace()
        s = NST - 1
        su = f"""
        s_lshr_b32 s81, s{S_W}, 1
        s_lshl_b32 s82, s{S_MT}, 1
        s_add_u32 s82, s82, s81
        s_mul_i32 s82, s82, 112
        s_lshr_b32 s83, s{S_NT}, 1
        s_mul_i32 s83, s83, 7
        s_add_u32 s82, s82, s83
        s_and_b32 s84, s{S_NT}, 1
        s_add_u32 s85, s82, 6
        s_lshl_b32 s85, s85, 13
        s_mul_i32 s83, s84, 3
        s_add_u32 s82, s82, s83
        s_add_u32 s82, s82, {2*wn}
        s_lshl_b32 s82, s82, 13
        s_add_u32 s83, s82, 8192
        """
        if wn:
            su += f"""
            s_lshl_b32 s84, s84, 9
            s_add_u32 s85, s85, s84
            v_and_b32 v21, 15, {L}
            v_lshlrev_b32 v21, 4, v21
            v_bfe_u32 v24, {L}, 4, 1
            v_lshl_add_u32 v22, v24, 9, v21
            v_lshl_add_u32 v21, v24, 10, v21
            v_lshrrev_b32 v24, 5, {L}
            v_lshl_add_u32 v22, v24, 10, v22
            v_lshl_add_u32 v21, v24, 8, v21
            s_lshl_b32 s81, s81, 13
            s_add_u32 s81, s81, {P.LDS_Q}
            v_add_u32 v22, s81, v22
            v_add_u32 v23, 4096, v21
            """
        setup = [l.strip() for l in su.strip().split("\n") if l.strip()] + su2
        ffn = lambda t, i: dict(kind="f", t=t, i=i, mf=[(2*t, i), (4 + 2*t, i), (2*t + 1, i), (5 + 2*t, i)])
        if wn == 0:
            halves = [[ffn(0, i) for i in range(8)], [ffn(1, i) for i in range(8)]]
        else:
            halves = [[dict(kind="q", i=i, mf=[(3, i), (7, i)]) for i in range(8)] +
                      [dict(kind="s", i=i, mf=[(2, i), (6, i), (2, i + 1), (6, i + 1)]) for i in range(0, 8, 2)],
                      [ffn(0, i) for i in range(8)]]
        pieces = halves[0] + halves[1]
        half = len(halves[0])
        jsets = [sorted(set(j for pc in hv for j, _ in pc["mf"])) for hv in halves]
        def piece_ops(pc, pk):
            o = []
            i = pc["i"]
            tmp = 12 + 4*(i % 2)
            def reg(j, i):
                p_, b = accn(j, i)
                if p_ == "v": return b
                for r in range(4): o.append(f"v_accvgpr_read_b32 v{tmp+r}, a{b+r}")
                return tmp
            r_ = [reg(j, i_) for j, i_ in pc["mf"]]
            if pc["kind"] == "q":
                g0_, g1_ = r_
            else:
                g0_, u0, g1_, u1 = r_
                for g_, u_ in ((g0_, u0), (g1_, u1)):
                    for r in range(4): o.append(f"v_max_f32 v{g_+r}, 0, v{g_+r}")
                    if pk:
                        o.append(f"v_pk_mul_f32 {vr(g_,2)}, {vr(g_,2)}, {vr(u_,2)}")
                        o.append(f"v_pk_mul_f32 {vr(g_+2,2)}, {vr(g_+2,2)}, {vr(u_+2,2)}")
                    else:
                        for r in range(4): o.append(f"v_mul_f32 v{g_+r}, v{g_+r}, v{u_+r}")
            o += [f"v_cvt_pk_bf16_f32 v{g0_}, v{g0_}, v{g0_+1}", f"v_cvt_pk_bf16_f32 v{g0_+1}, v{g0_+2}, v{g0_+3}",
                  f"v_cvt_pk_bf16_f32 v{g0_+2}, v{g1_}, v{g1_+1}", f"v_cvt_pk_bf16_f32 v{g0_+3}, v{g1_+2}, v{g1_+3}"]
            if pc["kind"] == "q":
                o.append(f"ds_write_b128 v22, {vr(g0_,4)} offset:{(i//2)*2048 + (i%2)*256}")
            elif pc["kind"] == "s":
                o += ["s_nop 1", f"v_permlane16_swap_b32 v{g0_}, v{g0_+2}", f"v_permlane16_swap_b32 v{g0_+1}, v{g0_+3}",
                      f"buffer_store_dwordx4 {vr(g0_,4)}, {'v21' if i < 4 else 'v23'}, s[{S_WS}:{S_WS+3}], s85 offen offset:{(i%4)*1024} sc1"]
            else:
                o.append(f"buffer_store_dwordx4 {vr(g0_,4)}, {'v%d' % (V_L16 if i < 4 else V_DT)}, s[{S_WS}:{S_WS+3}], {'s82' if pc['t'] == 0 else 's83'} offen offset:{(i%4)*1024} sc1")
            return o
        rl = [xread(s, 1, i) for i in range(8)]
        for j in jsets[0]: rl += [wread(s, 1, j, 0), wread(s, 1, j, 1)]
        for x in rl: x["lg"] = ("frA", 0)
        for j in jsets[1]: rl += [wread(s, 1, j, 0), wread(s, 1, j, 1)]
        kv0 = []
        for part in range(2):
            cl = [P.kv_dma(0, part, j) for j in range(4)]
            for x in cl: x["text"] = x["text"].replace(f"v{P.V_L16},", f"v{V_L16},").replace(f"v{P.V_L16B},", f"v{V_DT},")
            kv0.append(cl)
        q = s - tq0 - 2
        tr.wait(lg=[("fr", s, 0)] + ([("tf", q)] if 0 <= q < 9 else []))
        first = []
        if gs + 4 == s:
            first.append([I("s_mov_b32 exec_lo, 1\ns_mov_b32 exec_hi, 1"), I(f"buffer_store_dwordx2 v[24:25], v{V_GROW}, s[{S_WS}:{S_WS+3}], 0 offen sc1", vm=("hst", 0)), I("s_mov_b64 exec, -1")])
        if 0 <= q < 9 and not tdefer: first.append([tstore(q)[0]])
        for k, (j, i) in enumerate([(j, i) for j in jsets[0] for i in range(8)]):
            tr.ins(mfma(0, j, i))
            if first:
                tr.items.extend(first.pop(0)); continue
            if k in (26, 29): tr.ins(f"s_add_u32 m0, s{P.S_M0KV}, {4096 if k == 29 else 0}")
            elif k in (27, 30): tr.items.extend(kv0.pop(0))
            elif rl: tr.items.append(rl.pop(0))
            for _ in range(2):
                if setup: tr.ins(setup.pop(0))
        assert not rl
        tr.items.extend(adv64(P.S_KVB, 32768))
        for x in setup: tr.ins(x)
        tr.wait(lg=[("frA", 0)])
        ml = []
        for pi, pc in enumerate(pieces):
            if pi == half:
                ml.append((W(lg=[("fr", s, 1)]), None))
                ml += [(mfma(0, j, i), None) for j in jsets[1] for i in range(8)]
            for j, i in pc["mf"]: ml.append((mfma(1, j, i), pi))
        done_at = {}; cnt = 0; vq = []; nextp = 0
        def put(x):
            tr.ins(x, vm=("hst", 0) if x.startswith("buffer_") else None, lg=("qw", 0) if x.startswith("ds_") else None)
        for k, (m, pi) in enumerate(ml):
            if isinstance(m, dict):
                tr.items.append(m); continue
            tr.ins(m); cnt += 1
            if pi is not None and (k + 1 == len(ml) or ml[k + 1][1] != pi): done_at[pi] = cnt
            budget = 2
            while budget > 0:
                if not vq and nextp in done_at and cnt - done_at[nextp] >= 9:
                    vq = piece_ops(pieces[nextp], False); nextp += 1
                if not vq: break
                c_ = 2 if vq[0].startswith(("buffer_", "ds_")) else 1
                if c_ > budget: break
                put(vq.pop(0)); cnt += 1; budget -= c_
        for x in vq: put(x); cnt += 1
        while nextp < len(pieces):
            if cnt - done_at[nextp] < 9: tr.ins("s_nop 7"); cnt += 8
            for x in piece_ops(pieces[nextp], True): put(x); cnt += 1
            nextp += 1
        return tr
    l0, l1 = last_stage(0), last_stage(1)

    L2 = f"v{P.V_LANE}"
    h2 = Trace()
    h2.raw(f"""
    v_mov_b32 {L2}, {L}
    v_mov_b32 v{P.V_L16}, v{V_L16}
    v_mov_b32 v{P.V_L16B}, v{V_DT}
    v_mov_b32 v{P.V_KVR}, v{V_L16}
    s_lshl_b32 s80, s{S_W}, 12
    s_add_u32 s80, s80, {P.LDS_Q}
    v_add_u32 v24, s80, v{V_L16}
    """)
    h2.wait(vm=[("kv", 0)])
    h2.raw("s_waitcnt lgkmcnt(0)\ns_barrier")
    for q in range(4): h2.ins(f"ds_read_b128 {ar(P.A_Q + 4*q,4)}, v24 offset:{q*1024}", lg=("q", 0))
    for half in range(2): h2.items.append(P.k_read(0, half))
    for half in range(2): h2.items.append(P.v_read(0, half))
    for pp in range(4):
        h2.raw(f"""
        s_add_u32 s80, s{S_W}, {pp}
        s_and_b32 s80, s80, 3
        s_lshl_b32 s80, s80, 11
        v_add_u32 v{P.V_W+pp}, s80, v{P.V_L16}
        """)
    h2.wait(lg=[("k", 0)])
    h2.ins(P.qk(0, 0)); h2.ins(P.qk(0, 1))
    h2.raw(f"""
    v_add_u32 v{P.V_SP}, s{P.S_M0SP}, v{P.V_L16}
    v_add_u32 v{P.V_KP}, s{P.S_M0KV}, v{P.V_L16}
    v_add_u32 v{P.V_WB}, 2048, v{P.V_W}
    v_add_u32 v{P.V_WB+1}, 2048, v{P.V_W+2}
    s_nop 3
    """)
    h2.raw(f"""
    v_bfe_u32 v26, {L2}, 4, 1
    v_bfe_u32 v27, {L2}, 2, 1
    v_cmp_eq_u32 vcc, v26, v27
    v_mov_b32 v26, 0x3f803f80
    s_lshl_b32 s78, s{P.S_MT}, 9
    s_add_u32 s78, s78, {WS_G:#x}
    v_cndmask_b32 v26, 0, v26, vcc
    """)
    for r in range(4): h2.ins(f"v_accvgpr_write_b32 a{P.A_SEL+r}, v26")
    h2.raw(f"""
    s_lshl_b32 s79, s{S_MT}, 11
    s_lshl_b32 s80, s{S_W}, 9
    s_add_u32 s79, s79, s80
    s_add_u32 s79, s79, {WS_G:#x}
    v_and_b32 v26, 31, {L2}
    v_lshlrev_b32 v26, 3, v26
    v_and_b32 v27, 15, {L2}
    v_lshlrev_b32 v27, 3, v27
    v_lshlrev_b32 v25, 7, {L2}
    v_mov_b32 v24, s{S_TAG}
    """)
    def rebase(x, frm, to):
        x["text"] = x["text"].replace(f"s[{frm}:{frm+1}]", f"s[{to}:{to+1}]"); return x
    wl = lambda sg, J0, b: [rebase(P.w_load(sg, J), P.S_WB, b) for J in range(J0, J0 + 4)]
    hl = lambda sg, b: [rebase(P.h_load(sg, i), P.S_HB, b) for i in range(4)]
    early = []
    timed = [(1 + q // 3, tstore(q)) for q in range(9)] if tdefer else []
    timed += [(hsig, [W(vm=[("hst", 0), ("ts", 8)]), I("s_barrier"), I("s_mov_b64 exec, 1"), I(f"buffer_store_dword v24, off, s[{S_WS}:{S_WS+3}], s{P.S_HF} sc1"), I("s_mov_b64 exec, -1")]),
             (hpoll, [I(f"buffer_load_dword v28, v25, s[{S_WS}:{S_WS+3}], s{P.S_HP} offen sc1", vm=("hp", 0))]),
             (hpoll + 2, [W(vm=[("hp", 0)]), I(f"v_cmp_ne_u32 vcc, s{S_TAG}, v28"), I("s_nop 0"), I("s_cbranch_vccnz KM_HSPIN"), I("KM_HBACK:"), I("s_barrier")] + hl(0, 58)),
             (hpoll + 2, wl(0, 0, 64)), (hpoll + 3, wl(0, 4, 64)), (hpoll + 3, hl(1, 60)), (hpoll + 4, wl(1, 0, 66)), (hpoll + 4, wl(1, 4, 66)),
             (hpoll + 5, wl(2, 0, 68)), (hpoll + 5, hl(2, 62)),
             (hpoll + 12, [I(f"buffer_load_dword v{P.V_G+hh}, v26, s[{S_WS}:{S_WS+3}], s79 offen offset:{hh*256} sc1", vm=("g2", 0)) for hh in range(2)]),
             (hpoll + 14, [I(f"buffer_load_dword v{P.V_OMG+i}, v27, s[{S_WS}:{S_WS+3}], s78 offen offset:{4 + i*128} sc1", vm=("g2", 0)) for i in range(4)])]
    body = P.main_loop(NIN, g0, early, timed)
    NDOWN, NWO, ACC = P.NDOWN, P.NWO, P.ACC
    t1 = Trace()
    n = P.NSLOT - 1
    t1.ins("s_nop 1")
    t1.ins(P.pv(n, 0)); t1.ins(P.summ(n, 0)); t1.ins(P.pv(n, 1)); t1.ins(P.summ(n, 1))
    VO = P.V_O
    q_ = Trace()
    q_.raw(f"""
    v_bfe_u32 v26, {L2}, 4, 1
    s_lshl_b32 s78, s{S_MT}, 1
    v_lshlrev_b32 v26, 10, v26
    s_lshr_b32 s79, s{S_W}, 1
    v_and_b32 v27, 15, {L2}
    s_add_u32 s78, s78, s79
    v_lshl_add_u32 v26, v27, 4, v26
    s_lshl_b32 s78, s78, 5
    v_lshrrev_b32 v27, 5, {L2}
    s_add_u32 s78, s78, s{S_NT}
    v_lshl_add_u32 v26, v27, 8, v26
    s_lshl_b32 s78, s78, 13
    s_and_b32 s79, s{S_W}, 1
    s_lshl_b32 s79, s79, 12
    s_add_u32 s78, s78, s79
    s_add_u32 s54, s78, {WS_O:#x}
    s_mov_b32 s78, 0x1f800000
    s_mov_b32 s79, 0x5f800000
    s_mov_b32 s55, 0
    v_accvgpr_read_b32 v80, a{P.A_L}
    v_accvgpr_read_b32 v81, a{P.A_L+4}
    """)
    q_.wait(vm=[("g2", 0)])
    q_.raw(f"""
    v_min_f32 v83, v80, v81
    v_max_f32 v84, v80, v81
    v_add_f32 v85, v80, v81
    v_cmp_nle_f32 s[82:83], s78, v83
    v_cmp_nge_f32 s[84:85], s79, v84
    v_cmp_u_f32 vcc, v85, v85
    """)
    q_.ins("s_nop 1\ns_or_b64 s[82:83], s[82:83], s[84:85]\ns_or_b64 vcc, vcc, s[82:83]\ns_cbranch_vccnz KM_FALLBACK\nKM_NORM:\nv_rcp_f32 v80, v80")
    q_.raw(f"""
    v_rcp_f32 v82, v81
    v_mul_f32 v80, v80, v{P.V_G}
    v_mul_f32 v82, v82, v{P.V_G+1}
    """)
    for hh in range(2):
        for pc in range(2):
            b = VO + 16*hh + 8*pc
            for r in range(8): q_.ins(f"v_mul_f32 v{b+r}, v{b+r}, v{80+2*hh}")
            for q in range(4): q_.ins(f"v_cvt_pk_bf16_f32 v{64+8*hh+4*pc+q}, v{b+2*q}, v{b+2*q+1}")
            q_.ins(f"buffer_store_dwordx4 {vr(64+8*hh+4*pc,4)}, v26, s[{S_WS}:{S_WS+3}], s54 offen offset:{hh*2048 + pc*512} sc1", vm=("ost", 0))
    vq = q_.items
    nA, nB = nb
    stepsA = [P.gemm_step(s, vq=vq) for s in range(NIN, NIN + nA)]
    t2 = Trace()
    t2.items.extend(vq)
    t2.ins("s_nop 1")
    for q in range(4):
        t2.ins(f"v_mfma_f32_16x16x32_bf16 v[84:87], {ar(P.A_SEL,4)}, {vr(64+4*q,4)}, {'0' if q == 0 else 'v[84:87]'}")
    stepsA.append(t2)
    polli = lambda: I(f"buffer_load_dword v28, v25, s[{S_WS}:{S_WS+3}], s{P.S_OP} offen sc1", vm=("op", 0))
    stepsB = [P.gemm_step(s, late=[polli()] if s == NIN + nA + nB - 1 else []) for s in range(NIN + nA, NIN + nA + nB)]
    sig = Trace()
    sig.raw(f"""
    v_and_b32 v25, 31, {L2}
    v_lshlrev_b32 v25, 7, v25
    s_lshr_b32 s78, s{P.S_MT}, 1
    s_lshl_b32 s78, s78, 18
    s_add_u32 s78, s78, s44
    s_lshl_b32 s79, s{S_W}, 16
    s_add_u32 s78, s78, s79
    s_add_u32 s78, s78, {WS_O:#x}
    s_add_u32 s56, s86, s78
    s_addc_u32 s57, s87, 0
    """)
    sig.raw(f"""
    v_sub_f32 v84, v84, v84
    s_cmp_lg_u32 s55, 0
    v_cmp_u_f32 vcc, v84, v84
    s_cbranch_scc1 KM_CHECKED
    s_cbranch_vccnz KM_FALLBACK2
    KM_CHECKED:
    """)
    sig.wait(vm=[("ost", 0)])
    sig.raw(f"""
    s_mov_b64 exec, 1
    buffer_store_dword v24, off, s[{S_WS}:{S_WS+3}], s{P.S_OF} sc1
    s_mov_b64 exec, -1
    """)
    t3 = Trace()
    t3.wait(vm=[("op", 0)])
    t3.raw(f"""
    v_cmp_ne_u32 vcc, s{S_TAG}, v28
    s_nop 0
    s_cbranch_vccnz KM_OSPIN
    KM_OBACK:
    """)
    ol = []
    for s in range(NDOWN, NDOWN + NWO):
        ol.append([rebase(P.h_load(s, i), P.S_HB, 56) for i in range(4)] + (adv64(56, 8192) if s < NDOWN + NWO - 1 else []))
    t4 = Trace()
    for grp in ol[:opre]: t4.items.extend(grp)
    k = opre
    stepsC = []
    for s in range(NIN + nA + nB, NDOWN):
        ex = []
        while len(ex) < 2 and k < 5: ex.append(ol[k]); k += 1
        stepsC.append(P.gemm_step(s, ex))
    wos = []
    for s in range(NDOWN, NDOWN + 4):
        ex = []
        while len(ex) < 2 and k < NWO: ex.append(ol[k]); k += 1
        wos.append(P.gemm_step(s, ex))
    ph = Trace()
    su = Asm()
    for pp in range(1, 4):
        su(f"s_add_u32 s78, s{S_W}, {pp}\ns_and_b32 s78, s78, 3\ns_mul_i32 s78, s78, 24576\ns_add_u32 s78, s78, {(pp-1)*8192}\nv_add_u32 v{26+pp}, s78, v{P.V_L16}")
    su(f"""
    s_mul_i32 s78, s{S_W}, 24576
    v_add_u32 v26, s78, v{P.V_L16}
    s_lshl_b32 s78, s{P.S_MT}, 17
    s_lshl_b32 s79, s{P.S_NT}, 8
    s_add_u32 s78, s78, s79
    s_lshl_b32 s79, s{S_W}, 6
    s_add_u32 s78, s78, s79
    s_add_u32 s79, s78, 0x8000
    s_add_u32 s80, s78, 0x10000
    s_add_u32 s81, s78, 0x18000
    v_and_b32 v30, 15, {L2}
    v_lshlrev_b32 v30, 11, v30
    v_bfe_u32 v25, {L2}, 4, 1
    v_lshl_add_u32 v30, v25, 5, v30
    v_lshrrev_b32 v25, 5, {L2}
    v_lshl_add_u32 v30, v25, 4, v30
    """)
    su = [l.strip() for l in su.lines]
    S2 = list(range(NDOWN + 4, NDOWN + 8))
    ph.wait(vm=[("w", s, J) for s in S2[2:] for J in range(8)], lg=[("w", s, J) for s in S2[:2] for J in range(8)])
    ph.ins("s_barrier")
    for idx, pp in enumerate((1, 2, 3, 0)):
        fill = [[] for _ in range(32)]
        if idx == 0:
            for q, x in enumerate(su): fill[q].append(I(x))
        else:
            prev = (1, 2, 3)[idx - 1]
            for t in range(8):
                fill[4 + 3*t].append(I(f"ds_write_b128 v{26+prev}, {vr(ACC + (prev*8 + t)*4, 4)} offset:{t*1024}", lg=("rw", prev)))
        if idx == 3:
            rd = [I(f"ds_read_b128 {vr(ACC + 32 + (s_*8 + t)*4, 4)}, v26 offset:{s_*8192 + t*1024}", lg=("rr", s_)) for s_ in range(2) for t in range(8)]
            free = [g for g in range(32) if not fill[g]]
            for x, g in zip(rd, free): fill[g].append(x)
            ph.wait(lg=[("rw", 2)])
            ph.ins("s_barrier")
        mu = 0
        for s in S2:
            if idx == 0: ph.wait(vm=[("h", s, i) for i in range(4)])
            for J in (2*pp, 2*pp + 1):
                for i in range(4):
                    ph.ins(P.gemm_mfma(s, J, i, False)); ph.items.extend(fill[mu]); mu += 1
    ph.wait(lg=[("rw", 3), ("rr", 1)])
    ph.ins("s_barrier")
    for t in range(8): ph.ins(f"ds_read_b128 {vr(48 + t*4, 4)}, v26 offset:{2*8192 + t*1024}", lg=("rr", 2))
    for s_ in range(3):
        if s_ == 2: ph.wait(lg=[("rr", 2)])
        for r in range(0, 32, 2):
            ph.ins(f"v_pk_add_f32 {vr(ACC+r,2)}, {vr(ACC+r,2)}, {vr((ACC + 32 + s_*32 if s_ < 2 else 48) + r,2)}")
    for i in range(4):
        b0, b1 = ACC + i*4, ACC + (4 + i)*4
        d = 32 + i*4
        om = P.V_OMG + i
        for b in (b0, b0 + 2, b1, b1 + 2):
            ph.ins(f"v_pk_mul_f32 {vr(b,2)}, {vr(b,2)}, {vr(om,2)} op_sel_hi:[1,0]" if om % 2 == 0 else f"v_pk_mul_f32 {vr(b,2)}, {vr(b,2)}, {vr(om-1,2)} op_sel:[0,1] op_sel_hi:[1,1]")
        ph.raw(f"""
        v_cvt_pk_bf16_f32 v{d}, v{b0}, v{b0+1}
        v_cvt_pk_bf16_f32 v{d+1}, v{b0+2}, v{b0+3}
        v_cvt_pk_bf16_f32 v{d+2}, v{b1}, v{b1+1}
        v_cvt_pk_bf16_f32 v{d+3}, v{b1+2}, v{b1+3}
        s_nop 1
        v_permlane16_swap_b32 v{d}, v{d+2}
        v_permlane16_swap_b32 v{d+1}, v{d+3}
        buffer_store_dwordx4 {vr(d,4)}, v30, s[{P.S_OUT}:{P.S_OUT+3}], s{78+i} offen sc1 nt
        """)
    head = [pro, pro2] + segs + [ec]
    rest = [h2, body, t1] + stepsA + [sig] + stepsB + [t3, t4] + stepsC + wos + [ph]
    import copy
    resolve(head + [l0] + rest)
    saved = [[(x.get("wvm"), x.get("wlg")) for x in seg.items] for seg in rest]
    resolve(head + [l1] + rest)
    for seg, sv in zip(rest, saved):
        for x, (v, l) in zip(seg.items, sv):
            if x["text"] is None:
                mn = lambda p, q: q if p is None else p if q is None else min(p, q)
                x["wvm"], x["wlg"] = mn(x["wvm"], v), mn(x["wlg"], l)
    emit_trace(a, [pro]); st.stamp()
    if pads:
        a("s_branch KM_BODY")
        a.lines.append(".p2align 12")
        a.label("KM_BODY")
    emit_trace(a, [pro2]); st.stamp()
    for k, tr in enumerate(segs):
        emit_trace(a, [tr])
        if 'stg' in exp and k % 2 == 0: st.stamp()
    st.stamp()
    emit_trace(a, [ec])
    if 'ec' in exp: st.stamp()
    a(f"s_bitcmp1_b32 s{S_W}, 0")
    a("s_cbranch_scc1 KM_LAST1")
    emit_trace(a, [l0])
    a("s_branch KM_P2")
    a.label("KM_LAST1")
    emit_trace(a, [l1])
    a.label("KM_P2")
    st.stamp()
    if pads: a.lines.append("@CHAIN2")
    emit_trace(a, [h2]); st.stamp()
    b = Asm(); emit_trace(b, [body])
    for l in b.lines:
        a.lines.append(l)
        if 'its' in exp and l.strip() in ("s_barrier", "KM_HBACK:"): st.stamp()
    st.stamp()
    emit_trace(a, [t1]); st.stamp()
    for seg in stepsA + [sig]: emit_trace(a, [seg])
    st.stamp()
    for seg in stepsB: emit_trace(a, [seg])
    st.stamp()
    emit_trace(a, [t3]); st.stamp()
    for seg in [t4] + stepsC: emit_trace(a, [seg])
    st.stamp()
    for seg in wos: emit_trace(a, [seg])
    st.stamp()
    emit_trace(a, [ph])
    if dbg:
        a("s_waitcnt vmcnt(0)")
        st.stamp(force=True)
        st.dump(0, S_W, 86)
        if hdbg is not None:
            a(f"""
            s_lshl_b32 s90, s2, 2
            s_add_u32 s90, s90, s{S_W}
            s_cmp_eq_u32 s90, {4*hdbg}
            s_cbranch_scc0 KM_END
            v_readlane_b32 s90, v31, 32
            v_mbcnt_lo_u32_b32 v0, -1, 0
            v_mbcnt_hi_u32_b32 v0, -1, v0
            v_subrev_u32 v31, s90, v31
            v_subrev_u32 v0, 32, v0
            v_lshlrev_b32 v0, 2, v0
            s_mov_b32 exec_lo, 0
            s_mov_b32 exec_hi, 0xfffe
            buffer_store_dword v31, v0, s[{S_DBG}:{S_DBG+3}], 0 offen
            """)
    a("s_endpgm")
    for nm, ld, val in (("Z", f"buffer_load_dword v1, off, s[{S_DBG}:{S_DBG+3}], 0 sc1", f"eq_u32 vcc, 0, v1"),
                        ("E", f"buffer_load_dword v{V_KX}, v{V_T}, s[{S_WS}:{S_WS+3}], s{S_EF} offen sc1", f"ne_u32 vcc, s{S_TAG}, v{V_KX}"),
                        ("H", f"buffer_load_dword v28, v25, s[{S_WS}:{S_WS+3}], s{P.S_HP} offen sc1", f"ne_u32 vcc, s{S_TAG}, v28"),
                        ("O", f"buffer_load_dword v28, v25, s[{S_WS}:{S_WS+3}], s{P.S_OP} offen sc1", f"ne_u32 vcc, s{S_TAG}, v28")):
        a(f"""
        KM_{nm}SPIN:
        s_mov_b32 s91, 0x40000
        KM_{nm}SPIN1:
        {ld}
        s_waitcnt vmcnt(0)
        v_cmp_{val}
        s_sub_u32 s91, s91, 1
        s_cbranch_vccz KM_{nm}BACK
        s_cmp_eq_u32 s91, 0
        s_cbranch_scc1 KM_{nm}BACK
        s_sleep 1
        s_branch KM_{nm}SPIN1
        """)
    A_K, A_Q = P.A_K, P.A_Q
    a.label("KM_FALLBACK2")
    a("s_mov_b32 s55, 2")
    a.label("KM_FALLBACK")
    a(f"""
    s_or_b32 s55, s55, 1
    s_waitcnt vmcnt(0) lgkmcnt(0)
    s_nop 15
    v_mov_b32 v82, 0xff7fffff
    v_mov_b32 v83, 0xff7fffff
    v_mov_b32 v80, 0
    v_mov_b32 v81, 0
    s_mov_b32 s78, {WS_KV:#x}
    """)
    for r in range(32): a(f"v_mov_b32 v{VO+r}, 0")
    a.label("KM_FB_LOOP")
    for q in range(4):
        a(f"buffer_load_dwordx4 {ar(A_K+4*q,4)}, v{P.V_L16}, s[{S_WS}:{S_WS+3}], s78 offen offset:{q*1024} sc1")
    a("s_waitcnt vmcnt(0)")
    for hh in range(2):
        O = VO + 16*hh; m = 82 + hh; l = 80 + hh
        a(f"v_mfma_f32_32x32x16_bf16 v[64:79], {ar(A_K,4)}, {ar(A_Q+8*hh,4)}, 0")
        a(f"v_mfma_f32_32x32x16_bf16 v[64:79], {ar(A_K+4,4)}, {ar(A_Q+8*hh+4,4)}, v[64:79]")
        a("s_nop 15")
        a("v_max_f32 v84, v64, v65")
        for r in range(2, 16, 2): a(f"v_max3_f32 v84, v{64+r}, v{65+r}, v84")
        a(f"""
        v_mov_b32 v85, v84
        s_nop 1
        v_permlane32_swap_b32 v84, v85
        s_nop 1
        v_max3_f32 v84, v84, v85, v{m}
        v_sub_f32 v85, v{m}, v84
        v_exp_f32 v85, v85
        v_mov_b32 v{m}, v84
        v_mul_f32 v{l}, v{l}, v85
        """)
        for r in range(16):
            a(f"v_sub_f32 v{64+r}, v{64+r}, v84")
            a(f"v_exp_f32 v{64+r}, v{64+r}")
            a(f"v_mul_f32 v{O+r}, v{O+r}, v85")
        for r in range(8): a(f"v_cvt_pk_bf16_f32 v{64+r}, v{64+2*r}, v{65+2*r}")
        for r in range(8):
            a(f"v_lshlrev_b32 v86, 16, v{64+r}\nv_and_b32 v87, 0xffff0000, v{64+r}\nv_add_f32 v{l}, v{l}, v86\nv_add_f32 v{l}, v{l}, v87")
        a(f"v_mfma_f32_32x32x16_bf16 {vr(O,16)}, {ar(A_K+8,4)}, v[64:67], {vr(O,16)}")
        a(f"v_mfma_f32_32x32x16_bf16 {vr(O,16)}, {ar(A_K+12,4)}, v[68:71], {vr(O,16)}")
        a("s_nop 15")
    a(f"""
    s_add_u32 s78, s78, 4096
    s_cmp_lt_u32 s78, {WS_KV + 64*4096:#x}
    s_cbranch_scc1 KM_FB_LOOP
    v_mov_b32 v84, v80
    v_mov_b32 v85, v81
    s_nop 1
    v_permlane32_swap_b32 v80, v84
    v_permlane32_swap_b32 v81, v85
    s_nop 1
    v_add_f32 v80, v80, v84
    v_add_f32 v81, v81, v85
    s_cmp_eq_u32 s55, 1
    s_cbranch_scc1 KM_NORM
    v_rcp_f32 v80, v80
    v_rcp_f32 v82, v81
    s_nop 0
    v_mul_f32 v80, v80, v{P.V_G}
    v_mul_f32 v82, v82, v{P.V_G+1}
    """)
    for hh in range(2):
        for pc in range(2):
            b = VO + 16*hh + 8*pc
            for r in range(8): a(f"v_mul_f32 v{b+r}, v{b+r}, v{80+2*hh}")
            for q in range(4): a(f"v_cvt_pk_bf16_f32 v{64+8*hh+4*pc+q}, v{b+2*q}, v{b+2*q+1}")
            a(f"buffer_store_dwordx4 {vr(64+8*hh+4*pc,4)}, v26, s[{S_WS}:{S_WS+3}], s54 offen offset:{hh*2048 + pc*512} sc1")
    a(f"""
    s_waitcnt vmcnt(0)
    s_branch KM_CHECKED
    KM_END:
    s_endpgm
    """)
    return a.text()
```

```python
from common import *
import p2
from p2 import I, W, adv64
import math, struct

KM = NAME + "_kernel"
LDS_X = 0; LDS_W = 65536
LDS_R = 131072
LDS_QS = LDS_R; LDS_KW = LDS_R + 4096; LDS_T = LDS_R + 16384
KM_LDS = 163840
NST = 16
OOB = 0x7f000000

def accn(j, i): return ("v", 32 + (j*8 + i)*4) if j < 7 else ("a", 128 + i*4)
def acc(j, i):
    p, b = accn(j, i); return vr(b, 4, p)
XF = [0, 64]; WF = [32, 96]
KVW, KVA, A_GX, A_GW, A_T, A_KX, A_DUM = 160, 168, 172, 188, 204, 208, 255
TREG = [196, 200, 204, 224, 228, 232, 236, 240, 244]
V_DQ, V_DX, V_DW = 0, 2, 6
V_RX = [10, 11]
V_RW, V_R3, V_R7, V_RKW, V_T, V_KX, V_LANE = 12, 15, 16, 17, 18, 19, 20
V_GROW, V_L16, V_RT, V_DT, V_DK = 26, 27, 28, 29, 30
S_WQ, S_X, S_G, S_U, S_KV, S_WS, S_GW, S_TSRD, S_WD, S_WO, S_DBG = 4, 8, 12, 16, 20, 24, 28, 32, 52, 76, 72
S_W, S_MT, S_NT, S_OK = 36, 37, 38, 39
S_OX, S_OX2, S_OG, S_OQ, S_TSRCS = 40, 41, 42, 43, 44
S_M0X, S_M0W, S_M0K, S_M0T, S_M0Q = 45, 46, 47, 51, 56
S_TOFF, S_TSTEP, S_TOG = 48, 49, 50
S_TSRC, S_TDST, S_TSRC2, S_TDST2, S_GROW = 3, 94, 95, 100, 101
S_EF = 88
S_TAG = 89
A_TAG = 254
S_FLG = 57

KVD = 1
def dma_group(s, ntw):
    b = s % 2
    g = []
    nt = " nt" if ntw else ""
    for half in range(2):
        so = S_OX if half == 0 else S_OX2
        for j in range(4):
            pre = f"s_add_u32 m0, s{S_M0X}, {b*32768 + half*4096}" if j == 0 else None
            g.append((pre, I(f"buffer_load_dwordx4 v{V_DX+j}, s[{S_X}:{S_X+3}], s{so} offen offset:{j*1024} lds", vm=("st", s))))
    for part in range(2):
        srdn = S_G if part == 0 else S_U
        for j in range(4):
            pre = f"s_add_u32 m0, s{S_M0W}, {b*32768 + part*16384}" if j == 0 else None
            g.append((pre, I(f"buffer_load_dwordx4 v{V_DW+j}, s[{srdn}:{srdn+3}], s{S_OG} offen offset:{j*1024}{nt} lds", vm=("st", s))))
    g.append((f"s_add_u32 m0, s{S_M0Q}, {b*2048}", I(f"buffer_load_dwordx4 v{V_DQ}, s[{S_WQ}:{S_WQ+3}], s{S_OQ} offen{nt} lds", vm=("st", s))))
    adv = {7: [f"s_add_u32 s{S_OX}, s{S_OX}, 128", f"s_add_u32 s{S_OX2}, s{S_OX2}, 128"],
           15: [f"s_add_u32 s{S_OG}, s{S_OG}, {64*7168}"], 16: [f"s_add_u32 s{S_OQ}, s{S_OQ}, 0x20000"]}
    if 1 <= s - KVD <= 8:
        g.append((f"s_add_u32 m0, s{S_M0K}, {b*8192}", I(f"buffer_load_dwordx4 v{V_DK}, s[{S_KV}:{S_KV+3}], s{S_OK} offen lds", vm=("st", s))))
        adv[17] = [f"s_add_u32 s{S_OK}, s{S_OK}, 8192"]
    return g, adv
def xread(s, kk, i):
    return I(f"ds_read_b128 {ar(XF[kk]+4*i,4)}, v{V_RX[kk]} offset:{(s%2)*32768 + i*2048}", lg=("fr", s, kk))
def wread(s, kk, j, h):
    if j % 4 == 3:
        reg, off = (V_R3 if j == 3 else V_R7), h*1024 + kk*8192
    else:
        reg, off = V_RW + (j & 3), (s % 2)*32768 + h*1024 + kk*8192 + (16384 if j >= 4 else 0)
    return I(f"ds_read_b64_tr_b16 {ar(WF[kk]+4*j+2*h,2)}, v{reg} offset:{off}", lg=("fr", s, kk))
def reads(s, kk):
    r = [wread(s, kk, 0, 0), wread(s, kk, 0, 1)] + [xread(s, kk, i) for i in range(8)]
    for j in range(1, 8): r += [wread(s, kk, j, 0), wread(s, kk, j, 1)]
    return r
def mfma(kk, j, i, first=False):
    return f"v_mfma_f32_16x16x32_bf16 {acc(j,i)}, {ar(WF[kk]+4*j,4)}, {ar(XF[kk]+4*i,4)}, {'0' if first else acc(j,i)}"
def vcap(items):
    c = 2
    for x in items:
        t = x["text"] or "s_"
        if t.startswith("ds_"): c -= 1
        elif t.startswith(("buffer_", "global_")): c -= 2
        elif t.startswith("v_"): c -= 1
    return max(c, 0)
from k1 import g_ops as _g_ops
import k1 as _k1
_k1.A_GX, _k1.A_GW = A_GX, A_GW

def gen(dbg=False, hdbg=None, xhead=True, tdefer=False, tpro=0, tpos=0, gl=3, pads=0, epos=10, chain_at=1, ot=99, touch=1, nhead=13, p1=13, npro0=8, gs=11, tq0=5, ntw=False, ntt=True, exp='',
        g0=22, hsig=7, hpoll=15, opre=1, nb=(1, 2)):
    esig = KVD + 11
    NIN = p2.NIN
    a = Asm()
    L = f"v{V_LANE}"
    a("s_cmp_ge_u32 s2, 256")
    a("s_cbranch_scc1 KM_END")
    st = Stamps(a, dbg)
    st.stamp()
    a("s_memrealtime s[72:73]")
    a("s_load_dwordx8 s[56:63], s[0:1], 0")
    a("s_load_dwordx8 s[64:71], s[0:1], 48")
    a("s_load_dwordx2 s[74:75], s[0:1], 32")
    a("s_load_dwordx4 s[96:99], s[0:1], 80")
    a("s_load_dwordx2 s[86:87], s[0:1], 96")
    code_prefetch(a, "KM", 32, "a255", 3)
    a(f"""
    v_and_b32 {L}, 63, v0
    v_lshrrev_b32 v1, 6, v0
    s_and_b32 s80, s2, 7
    v_readfirstlane_b32 s{S_W}, v1
    s_lshr_b32 s81, s2, 3
    s_and_b32 s{S_MT}, s81, 7
    s_lshr_b32 s83, s81, 3
    s_lshl_b32 s80, s80, 2
    s_add_u32 s{S_NT}, s80, s83
    s_mul_i32 s85, s{S_NT}, 224
    s_mov_b32 s{S_OG}, 0
    s_mov_b32 s{S_OQ}, 0
    v_lshrrev_b32 v21, 3, {L}
    s_lshl_b32 s81, s{S_MT}, 8
    s_lshl_b32 s82, s{S_W}, 6
    s_add_u32 s81, s81, s82
    v_add_u32 v21, s81, v21
    v_lshlrev_b32 v21, 11, v21
    v_and_b32 v22, 7, {L}
    v_lshrrev_b32 v23, 4, {L}
    v_xor_b32 v22, v22, v23
    v_lshlrev_b32 v22, 4, v22
    v_xor_b32 v24, 64, v22
    """)
    for j in range(4):
        a(f"v_add_u32 v{V_DX+j}, v21, {'v22' if j % 2 == 0 else 'v24'}")
        if j: a(f"v_add_u32 v{V_DX+j}, {j*8*2048 - j*1024}, v{V_DX+j}")
    a(f"""
    s_mov_b32 s{S_OX}, 0
    s_mov_b32 s{S_OX2}, 65536
    s_mov_b32 s{S_OK}, 0
    s_lshl_b32 s81, s{S_W}, 4
    s_movk_i32 s84, 7168
    v_add_u32 v21, s81, v23
    v_mul_lo_u32 v21, v21, s84
    v_add_u32 v21, s85, v21
    v_and_b32 v25, 1, {L}
    v_lshl_add_u32 v21, v25, 4, v21
    v_bfe_u32 v22, {L}, 1, 3
    v_xor_b32 v22, v22, v23
    v_xor_b32 v24, 4, v22
    v_min_u32 v22, 6, v22
    v_min_u32 v24, 6, v24
    v_lshl_add_u32 v{V_DW}, v22, 5, v21
    v_add_u32 v{V_DW+1}, {4*7168 - 1024}, v{V_DW}
    v_lshl_add_u32 v{V_DW+2}, v24, 5, v21
    v_add_u32 v{V_DW+2}, {2*(4*7168 - 1024)}, v{V_DW+2}
    v_add_u32 v{V_DW+3}, {4*7168 - 1024}, v{V_DW+2}
    s_lshl_b32 s{S_M0X}, s{S_W}, 13
    s_lshl_b32 s{S_M0W}, s{S_W}, 12
    s_add_u32 s{S_M0W}, s{S_M0W}, {LDS_W}
    s_lshl_b32 s{S_M0K}, s{S_W}, 10
    s_add_u32 s{S_M0T}, s{S_M0K}, {LDS_T}
    s_add_u32 s{S_M0K}, s{S_M0K}, {LDS_KW}
    s_lshr_b32 s81, s{S_W}, 1
    s_and_b32 s80, s{S_W}, 1
    """)
    a(f"""
    v_lshlrev_b32 v21, 3, v23
    v_bfe_u32 v22, {L}, 2, 2
    v_add_u32 v21, v21, v22
    s_lshl_b32 s82, s81, 5
    s_lshl_b32 s83, s80, 2
    s_add_u32 s82, s82, s83
    v_add_u32 v21, s82, v21
    v_lshlrev_b32 v21, 11, v21
    v_bfe_u32 v22, {L}, 1, 1
    v_bfe_u32 v24, {L}, 4, 1
    v_xor_b32 v22, v22, v24
    v_lshl_add_u32 v21, v22, 5, v21
    v_lshl_add_u32 v21, v25, 4, v21
    s_lshl_b32 s82, s{S_NT}, 6
    v_add_u32 v{V_DQ}, s82, v21
    s_lshl_b32 s90, s81, 13
    s_lshl_b32 s83, s80, 10
    s_add_u32 s90, s90, s83
    s_waitcnt lgkmcnt(0)
    """)
    st.n and None
    a(f"s_or_b32 s{S_TAG}, s72, 1")
    srd(a, S_X, 56, 2048*1024*2)
    srd(a, S_G, 64, 1024*3584*2)
    srd(a, S_U, 66, 1024*3584*2)
    srd(a, S_WQ, 58, 1024*1024*2)
    a(f"s_add_u32 s{S_M0Q}, s90, {LDS_QS}")
    st.stamp()
    pro = Trace()
    def dma_items(s, lo, hi):
        g, adv = dma_group(s, ntw)
        out = []
        for k in range(lo, min(hi, len(g))):
            pre, it = g[k]
            out.append(([I(pre), I("s_nop 0")] if pre else []) + [it] + [I(x) for x in adv.get(k, [])])
        return out
    pc = Asm()
    pc(f"""
    v_lshlrev_b32 v{V_L16}, 4, {L}
    v_and_b32 v21, 15, {L}
    s_lshl_b32 s83, s81, 14
    v_lshlrev_b32 v22, 7, v21
    v_lshrrev_b32 v24, 1, v21
    v_xor_b32 v24, v24, v23
    v_lshl_add_u32 v22, v24, 4, v22
    v_add_u32 v{V_RX[0]}, s83, v22
    v_xor_b32 v{V_RX[1]}, 64, v{V_RX[0]}
    v_bfe_u32 v21, {L}, 2, 2
    v_lshl_add_u32 v22, v23, 3, v21
    v_and_b32 v24, 3, {L}
    v_lshlrev_b32 v24, 3, v24
    v_lshl_add_u32 v{V_RKW}, v22, 5, v24
    s_lshl_b32 s83, s81, 11
    s_add_u32 s83, s83, {LDS_KW}
    v_add_u32 v{V_RKW}, s83, v{V_RKW}
    v_lshl_add_u32 v22, v22, 8, v24
    v_add_u32 v22, {LDS_W}, v22
    v_and_b32 v25, 1, v23
    v_lshl_or_b32 v1, v25, 2, v21
    s_lshl_b32 s82, s80, 2
    """)
    for j in range(4):
        pc(f"s_add_u32 s83, s82, {j}")
        pc(f"v_xor_b32 v{V_T}, s83, v1")
        pc(f"v_lshl_add_u32 v{V_RW+j}, v{V_T}, 5, v22")
    pc(f"""
    v_add_u32 v{V_R7}, 16384, v{V_R3}
    v_lshl_add_u32 v22, v23, 2, v21
    v_lshl_add_u32 v22, v22, 6, v24
    v_lshl_add_u32 v22, v25, 5, v22
    v_add_u32 v22, {LDS_QS}, v22
    v_xor_b32 v1, 32, v22
    s_cmp_eq_u32 s80, 1
    s_cselect_b64 vcc, -1, 0
    s_movk_i32 s{S_TOG}, 2048
    s_cselect_b32 s{S_TOG}, s{S_TOG}, 0x8000
    v_cndmask_b32 v{V_R3}, v{V_R3}, v22, vcc
    v_cndmask_b32 v{V_R7}, v{V_R7}, v1, vcc
    """)
    p = Asm()
    p(f"""
    v_lshrrev_b32 v1, 3, {L}
    v_lshlrev_b32 v1, 11, v1
    v_bfe_u32 v25, {L}, 1, 2
    v_xor_b32 v25, v25, v23
    v_lshl_add_u32 v1, v25, 5, v1
    v_and_b32 v25, 1, {L}
    v_lshl_add_u32 v{V_DT}, v25, 4, v1
    v_lshl_add_u32 v1, v23, 2, v21
    v_bfe_u32 v25, v1, 1, 2
    v_xor_b32 v25, s{S_W}, v25
    v_lshlrev_b32 v1, 7, v1
    v_lshl_add_u32 v1, v25, 5, v1
    v_add_u32 v1, v1, v24
    v_add_u32 v{V_RT}, {LDS_T}, v1
    s_lshr_b32 s82, s2, 4
    s_and_b32 s83, s2, 15
    s_mul_i32 s{S_TSRC}, s82, {224*2048}
    s_lshl_b32 s90, s83, 7
    s_add_u32 s{S_TSRC}, s{S_TSRC}, s90
    s_lshl_b32 s{S_TSRC2}, s82, 17
    s_add_u32 s{S_TSRC2}, s{S_TSRC2}, s90
    s_mul_i32 s90, s80, {112*2048}
    s_add_u32 s{S_TSRCS}, s{S_TSRC}, s90
    s_lshl_b32 s90, s81, 13
    s_add_u32 s{S_TSRCS}, s{S_TSRCS}, s90
    s_add_u32 s{S_TSRCS}, s{S_TSRCS}, {96*2048}
    s_lshl_b32 s90, s{S_W}, 14
    s_add_u32 s{S_TSRC}, s{S_TSRC}, s90
    s_lshl_b32 s90, s80, 15
    s_add_u32 s{S_TSRC2}, s{S_TSRC2}, s90
    s_lshl_b32 s90, s81, 14
    s_add_u32 s{S_TSRC2}, s{S_TSRC2}, s90
    s_lshr_b32 s90, s83, 1
    s_mul_i32 s90, s90, {144*8192}
    s_and_b32 s83, s83, 1
    s_lshl_b32 s83, s83, 12
    s_add_u32 s90, s90, s83
    s_lshl_b32 s83, s{S_W}, 10
    s_add_u32 s90, s90, s83
    s_add_u32 s90, s90, {WS_WT:#x}
    s_mul_i32 s{S_TDST}, s82, {7*8192}
    s_add_u32 s{S_TDST}, s{S_TDST}, s90
    s_lshl_b32 s{S_TDST2}, s82, 14
    s_add_u32 s{S_TDST2}, s{S_TDST2}, s90
    s_add_u32 s{S_TDST2}, s{S_TDST2}, {112*8192}
    s_lshl_b32 s82, s2, 3
    s_lshl_b32 s83, s{S_W}, 1
    s_add_u32 s82, s82, s83
    s_lshl_b32 s{S_GROW}, s82, 11
    v_lshrrev_b32 v1, 5, {L}
    v_add_u32 v{V_GROW}, s82, v1
    v_lshlrev_b32 v{V_GROW}, 3, v{V_GROW}
    v_add_u32 v{V_GROW}, {WS_G:#x}, v{V_GROW}
    s_lshl_b32 s82, s{S_MT}, 2
    s_add_u32 s82, s82, s{S_W}
    s_lshl_b32 s82, s82, 5
    s_add_u32 s82, s82, s{S_NT}
    s_lshl_b32 s82, s82, 7
    s_add_u32 s{S_FLG}, s82, {WS_FLAG:#x}
    """)
    p(f"""
    s_and_b32 s82, s{S_NT}, 2
    s_cmp_eq_u32 s82, 0
    s_cselect_b32 s{S_KV}, s60, s62
    s_cselect_b32 s{S_KV+1}, s61, s63
    s_and_b32 s{S_KV+1}, s{S_KV+1}, 0xffff
    s_mov_b32 s{S_KV+2}, 65536
    s_mov_b32 s{S_KV+3}, 0x00020000
    """)
    srd(p, S_WS, 86, WS_SIZE)
    srd(p, S_GW, 70, 2048)
    srd(p, S_WD, 68, 3584*1024*2)
    srd(p, S_WO, 74, 1024*1024*2)
    srd(p, S_DBG, 98, 256)
    p(f"""
    v_lshrrev_b32 v21, 1, {L}
    v_lshlrev_b32 v21, 6, v21
    v_and_b32 v22, 1, {L}
    v_lshl_add_u32 v21, v22, 4, v21
    s_and_b32 s82, s{S_NT}, 1
    s_lshl_b32 s82, s82, 5
    s_lshl_b32 s83, s{S_W}, 11
    s_add_u32 s82, s82, s83
    v_add_u32 v{V_DK}, s82, v21
    s_lshl_b32 s82, s{S_MT}, 8
    s_lshr_b32 s83, s{S_NT}, 2
    s_lshl_b32 s83, s83, 5
    s_add_u32 s82, s82, s83
    s_lshl_b32 s83, s80, 4
    s_add_u32 s82, s82, s83
    s_lshl_b32 s82, s82, 11
    s_lshl_b32 s83, s81, 7
    s_add_u32 s82, s82, s83
    v_and_b32 v21, 15, {L}
    v_lshlrev_b32 v22, 11, v21
    v_lshl_add_u32 v22, v23, 4, v22
    v_add_u32 v{V_KX}, s82, v22
    """)
    pt = Asm()
    if touch:
        (pt if tpro else p)(f"""
        s_and_b32 s82, s{S_NT}, 3
        s_lshl_b32 s82, s82, 6
        s_lshl_b32 s83, s{S_MT}, 8
        s_add_u32 s82, s82, s83
        v_add_u32 v25, s82, {L}
        v_lshlrev_b32 v25, 11, v25
        s_lshl_b32 s82, s{S_MT}, 3
        v_bfe_u32 v24, {L}, 2, 3
        v_add_u32 v24, s82, v24
        v_lshlrev_b32 v21, 11, v24
        v_mul_lo_u32 v24, v24, s84
        v_and_b32 v1, 3, {L}
        v_lshlrev_b32 v1, 7, v1
        v_min_u32 v1, 220, v1
        v_add3_u32 v24, v24, v1, s85
        s_lshl_b32 s82, s{S_NT}, 6
        v_add_u32 v21, s82, v21
        s_mov_b32 s{S_TSTEP}, {64*7168}
        s_cmp_eq_u32 s{S_W}, 0
        s_cselect_b64 vcc, -1, 0
        s_cselect_b32 s{S_TSRD}, s{S_X}, s{S_G}
        s_cselect_b32 s{S_TSRD+1}, s{S_X+1}, s{S_G+1}
        s_cselect_b32 s{S_TSRD+2}, s{S_X+2}, s{S_G+2}
        s_cselect_b32 s{S_TSTEP}, 128, s{S_TSTEP}
        v_cndmask_b32 v{V_T}, v24, v25, vcc
        s_cmp_eq_u32 s{S_W}, 2
        s_cselect_b32 s{S_TSRD}, s{S_U}, s{S_TSRD}
        s_cselect_b32 s{S_TSRD+1}, s{S_U+1}, s{S_TSRD+1}
        s_cmp_eq_u32 s{S_W}, 3
        s_cselect_b64 vcc, -1, 0
        s_cselect_b32 s{S_TSRD}, s{S_WQ}, s{S_TSRD}
        s_cselect_b32 s{S_TSRD+1}, s{S_WQ+1}, s{S_TSRD+1}
        s_cselect_b32 s{S_TSRD+2}, s{S_WQ+2}, s{S_TSRD+2}
        s_cselect_b32 s{S_TSTEP}, 0x20000, s{S_TSTEP}
        v_cndmask_b32 v{V_T}, v{V_T}, v21, vcc
        s_mov_b32 s{S_TSRD+3}, 0x00020000
        s_mul_i32 s{S_TOFF}, s{S_TSTEP}, {2 if tpro else (touch + 1 if touch >= 2 else touch + 2)}
        """)
    late = []
    for l in [l.strip() for l in p.lines]:
        if late and l.startswith(("s_cselect", "s_addc", "v_cndmask", "s_movk_i32 s50")): late[-1].append(l)
        else: late.append([l])
    late += [[f"v_and_b32 v1, 31, {L}"], ["v_lshlrev_b32 v1, 7, v1"], ["s_lshr_b32 s82, s2, 3"], ["s_and_b32 s82, s82, 15"], ["s_lshl_b32 s82, s82, 12"]]
    for grp in dma_items(0, 0, 17): pro.items.extend(grp)
    for l in pt.lines: pro.ins(l.strip())
    tch = lambda: [I(f"buffer_load_dword a{A_DUM}, v{V_T}, s[{S_TSRD}:{S_TSRD+3}], s{S_TOFF} offen", vm=("touch", 0)), I(f"s_add_u32 s{S_TOFF}, s{S_TOFF}, s{S_TSTEP}")]
    if tpos == 0:
        for _ in range(tpro): pro.items.extend(tch())
    for l in pc.lines: pro.ins(l.strip().replace(f"v{V_T},", "v22x,").replace("v22x", "v19"))
    for grp in dma_items(1, 0, p1): pro.items.extend(grp)
    if tpos == 1:
        for _ in range(tpro): pro.items.extend(tch())
    one_time = [I(f"buffer_load_dword a{A_DUM}, v1, s[{S_KV}:{S_KV+3}], s82 offen"), I(f"buffer_load_dword a{A_DUM}, v1, s[{S_GW}:{S_GW+3}], 0 offen")]
    touch_ins = lambda: I(f"buffer_load_dword a{A_DUM}, v{V_T}, s[{S_TSRD}:{S_TSRD+3}], s{S_TOFF} offen", vm=("touch", 0))
    touch_adv = f"s_add_u32 s{S_TOFF}, s{S_TOFF}, s{S_TSTEP}"
    pro2 = Trace()
    pro2.wait(vm=[("st", 0)])
    pro2.ins("s_barrier")
    pro2.items.extend(reads(0, 0))

    gfast, gslow = _g_ops()
    gslow += ["v_max_f32 v25, 0x2b800000, v25", "v_rcp_f32 v23, v25", "v_mul_f32 v24, v24, v23"]
    GSPLIT = 70
    c_q = struct.unpack("<I", struct.pack("<f", math.log2(math.e) / math.sqrt(32.0)))[0]
    kvfin = [f"v_accvgpr_read_b32 v{21+r}, a{KVA+r}" for r in range(4)]
    for r in range(4): kvfin += [f"v_accvgpr_read_b32 v1, a{KVW+r}", f"v_add_f32 v{21+r}, v{21+r}, v1", f"v_mul_f32 v{21+r}, s84, v{21+r}"]
    kvfin += ["v_cvt_pk_bf16_f32 v22, v21, v22", "v_cvt_pk_bf16_f32 v23, v23, v24",
              f"v_and_b32 v1, 15, {L}", "v_lshlrev_b32 v1, 4, v1", f"v_bfe_u32 v21, {L}, 4, 1", "v_lshl_add_u32 v1, v21, 9, v1",
              f"v_lshrrev_b32 v21, 5, {L}", "v_lshl_add_u32 v1, v21, 3, v1",
              f"buffer_store_dwordx2 v[22:23], v1, s[{S_WS}:{S_WS+3}], s82 offen offset:2048 sc1",
              f"v_bfe_u32 v24, {L}, 3, 1", "v_lshlrev_b32 v24, 10, v24", f"v_bfe_u32 v21, {L}, 2, 1", "v_lshl_add_u32 v24, v21, 9, v24",
              f"v_lshrrev_b32 v21, 4, {L}", "v_lshl_add_u32 v24, v21, 6, v24", f"v_and_b32 v21, 3, {L}", "v_lshl_add_u32 v24, v21, 1, v24",
              f"buffer_store_short v22, v24, s[{S_WS}:{S_WS+3}], s83 offen sc1",
              f"buffer_store_short_d16_hi v22, v24, s[{S_WS}:{S_WS+3}], s83 offen offset:16 sc1",
              f"buffer_store_short v23, v24, s[{S_WS}:{S_WS+3}], s83 offen offset:32 sc1",
              f"buffer_store_short_d16_hi v23, v24, s[{S_WS}:{S_WS+3}], s83 offen offset:48 sc1"]
    kvsal = f"""s_lshl_b32 s82, s{S_MT}, 3
    s_lshr_b32 s83, s{S_NT}, 2
    s_add_u32 s82, s82, s83
    s_lshl_b32 s82, s82, 12
    s_add_u32 s82, s82, {WS_KV:#x}
    s_and_b32 s85, s{S_NT}, 1
    s_lshl_b32 s83, s85, 3
    s_add_u32 s83, s83, s82
    s_lshl_b32 s85, s85, 8
    s_add_u32 s82, s82, s85
    s_lshl_b32 s85, s{S_W}, 10
    s_add_u32 s82, s82, s85
    s_lshl_b32 s85, s{S_W}, 8
    s_add_u32 s83, s83, s85
    s_and_b32 s85, s{S_NT}, 2
    s_cmp_eq_u32 s85, 0
    s_cselect_b32 s84, {c_q:#x}, 1.0
    s_cselect_b32 s82, {OOB:#x}, s82
    s_cselect_b32 s83, s83, {OOB:#x}
    s_cmp_ge_u32 s{S_W}, 2
    s_cselect_b32 s82, {OOB:#x}, s82
    s_cselect_b32 s83, {OOB:#x}, s83""".split("\n")
    kvsal = [x.strip() for x in kvsal]
    kvsal = kvsal[:-7] + ["\n".join(kvsal[-7:-3]), "\n".join(kvsal[-3:])]
    segs = []
    grest = []
    def tstore(q):
        so = S_TDST if q < 7 else S_TDST2
        return [I(f"buffer_store_dwordx4 {ar(TREG[q] if tdefer else A_T,4)}, v{p2.V_L16 if tdefer else V_L16}, s[{S_WS}:{S_WS+3}], s{so} offen sc1", vm=("ts", q)), I(f"s_add_u32 s{so}, s{so}, 8192")]
    for s in range(NST - 1):
        tr = Trace()
        gaps = [[] for _ in range(66)]
        rl = reads(s, 1)
        u = s - KVD
        if 1 <= u <= 8:
            for e in range(2):
                for h in range(2):
                    rl.append(I(f"ds_read_b64_tr_b16 {ar(KVW+4*e+2*h,2)}, v{V_RKW} offset:{(s%2)*8192 + e*1024 + h*128}", lg=("kvf", s)))
        if u == 9:
            gaps[1].append(I(f"v_add_u32 v21, {LDS_KW + 8192*(s%2)}, v{V_L16}"))
            gaps[3].append(I(f"s_lshl_b32 s82, s{S_W}, 10")); gaps[5].append(I("v_add_u32 v22, s82, v21"))
            gaps[7].append(I("s_xor_b32 s82, s82, 2048")); gaps[9].append(I("v_add_u32 v21, s82, v21"))
            rl.append(I(f"ds_write_b128 v22, {ar(KVA,4)}", lg=("kvf", s)))
        for k, it in enumerate(rl): gaps[2*k].append(it)
        gaps[57].append(I(f"v_xor_b32 v{V_R3}, s{S_TOG}, v{V_R3}")); gaps[59].append(I(f"v_xor_b32 v{V_R7}, s{S_TOG}, v{V_R7}"))
        g, adv = dma_group(s + 1, ntw)
        lo = p1 if s == 0 else nhead
        G = 11 if u == 9 else 1
        for k in range(lo, len(g)):
            pre, it = g[k]
            if pre: gaps[G - 1].append(I(pre))
            gaps[G].append(it)
            for x in adv.get(k, []): gaps[G + 1].append(I(x))
            G += 4
        G -= 2
        if touch and (s >= 1 or tpro) and s + touch + 1 < NST and not (tpro and s + touch + 1 < 2 + tpro):
            for _ in range(2 if (s == 1 and touch >= 2 and not tpro) else 1):
                gaps[G].append(touch_ins()); gaps[G + 1].append(I(touch_adv)); G += 2
        if 0 <= u <= 7:
            for e in range(2):
                gaps[G].append(I(f"buffer_load_dwordx4 {ar(A_KX + 8*(u%2) + 4*e,4)}, v{V_KX}, s[{S_X}:{S_X+3}], 0 offen offset:{u*256 + e*64}", vm=("kx", u))); G += 2
        q = s - tq0
        if 0 <= q < 9:
            fl = " nt" if ntt else ""
            gaps[G - 1].append(I(f"s_add_u32 m0, s{S_M0T}, {(q%3)*4096}"))
            if q == 6:
                gaps[G - 2].append(I(f"v_lshrrev_b32 v{V_KX}, 5, {L}")); gaps[G - 1].append(I(f"v_lshl_add_u32 v{V_KX}, v{V_KX}, 13, v{V_DT}"))
                gaps[G].append(I(f"buffer_load_dwordx4 v{V_KX}, s[{S_WD}:{S_WD+3}], s{S_TSRCS} offen{fl} lds", vm=("t", q)))
            else:
                srdn, so = (S_WD, S_TSRC) if q < 7 else (S_WO, S_TSRC2)
                gaps[G].append(I(f"buffer_load_dwordx4 v{V_DT}, s[{srdn}:{srdn+3}], s{so} offen{fl} lds", vm=("t", q)))
                gaps[G + 1].append(I(f"s_add_u32 s{so}, s{so}, {48*2048 if q == 2 else 0x10000}"))
            G += 2
        q = s - tq0 - 2
        if 0 <= q < 9 and not tdefer:
            x, y = tstore(q); gaps[G].append(x); gaps[G + 1].append(y); G += 2
        if s == ot:
            for x in one_time: gaps[G].append(x); G += 2
        if s == 2:
            gaps[G - 1].append(I(f"v_mov_b32 v21, s{S_TAG}"))
            gaps[G].append(I(f"s_or_b32 s83, s2, s{S_W}\ns_cselect_b32 s83, {OOB:#x}, 0")); G += 2
            gaps[G].extend([I("s_mov_b64 exec, 1"), I(f"buffer_store_dword v21, off, s[{S_DBG}:{S_DBG+3}], s83 sc1"), I("s_mov_b64 exec, -1")]); G += 2
        if s == 6:
            gaps[G].append(I(f"buffer_load_dword a{A_TAG}, off, s[{S_DBG}:{S_DBG+3}], 0 sc1", vm=("zp", 0))); G += 2
        if s == esig + 1:
            gaps[G - 2].append(I(f"s_lshl_b32 s82, s{S_MT}, 5")); gaps[G - 1].append(I(f"s_add_u32 s82, s82, s{S_NT}\ns_lshl_b32 s82, s82, 7")); gaps[G].append(I(f"s_add_u32 s82, s82, {WS_FLAG + 0x28000:#x}"))
            gaps[G + 1].append(I(f"s_cmp_eq_u32 s{S_W}, 0\ns_cselect_b32 s82, s82, {OOB:#x}")); G += 2
            gaps[G].extend([I("s_mov_b64 exec, 1"), I(f"buffer_store_dword a{A_TAG}, off, s[{S_WS}:{S_WS+3}], s82 sc1"), I("s_mov_b64 exec, -1")]); G += 2
        kvstart = G
        if s == gl:
            for q_ in range(4):
                gaps[G].append(I(f"buffer_load_dwordx4 {ar(A_GX+4*q_,4)}, v{V_L16}, s[{S_X}:{S_X+3}], s{S_GROW} offen offset:{1024*q_}", vm=("g", 0))); G += 2
            for q_ in range(2):
                gaps[G].append(I(f"buffer_load_dwordx4 {ar(A_GW+4*q_,4)}, v{V_L16}, s[{S_GW}:{S_GW+3}], 0 offen offset:{1024*q_}", vm=("g", 0))); G += 2
        assert G < 64, (s, G)
        tr.wait(lg=[("fr", s, 0)] + ([("tf", q)] if 0 <= q < 9 else []) + ([("kvp", 0)] if u == 10 else []))
        vq = []
        if s in (gs + 2, gs + 3): vq = gfast
        if u == 10: vq = list(kvfin)
        k = 0
        for j in range(8):
            for i in range(8):
                tr.ins(mfma(0, j, i, first=(s == 0)))
                tr.items.extend(gaps[k])
                cap = vcap(gaps[k])
                if s == 0:
                    for _ in range(2):
                        if late and cap > 0:
                            for l in late.pop(0): tr.ins(l)
                            cap -= 1
                while vq and cap > 0 and not (u == 10 and k < kvstart - 8):
                    if vq[0].startswith("buffer_"):
                        if cap < 2: break
                        tr.ins(vq.pop(0), vm=("kvst", 0)); cap -= 2
                    else:
                        tr.ins(vq.pop(0)); cap -= 1
                k += 1
        if s != gs + 2: assert not vq
        need = [("st", s + 1)]
        if 0 <= s - tq0 - 1 < 9: need.append(("t", s - tq0 - 1))
        if s == gs + 1: need.append(("g", 0))
        if 1 <= u <= 8: need.append(("kx", u - 1))
        if s == 7: need.append(("zp", 0))
        if s == esig: need.append(("kvst", 0))
        if pads and s == chain_at: tr.ins("@CHAIN1")
        tr.wait(vm=need, lg=[("fr", s, 1)] + ([("kvf", s)] if 1 <= u <= 9 else []))
        tr.ins("s_barrier")
        segs.append(tr)
        tr = Trace()
        gaps = [[] for _ in range(68)]
        for k, it in enumerate(reads(s + 1, 0)): gaps[2*k + 1].append(it)
        q = s - tq0 - 1
        if 0 <= q < 9:
            for h in range(2):
                gaps[49 + 2*h].append(I(f"ds_read_b64_tr_b16 {ar((TREG[q] if tdefer else A_T)+2*h,2)}, v{V_RT} offset:{(q%3)*4096 + h*2048}", lg=("tf", q)))
        if u == 9:
            gaps[53].append(I(f"ds_read_b128 {ar(KVW,4)}, v21", lg=("kvp", 0)))
            for k, x in enumerate(kvsal): gaps[2*k + 3 if 2*k + 3 < 48 else 55].append(I(x.strip()))
        if s + 2 < NST:
            g, adv = dma_group(s + 2, ntw)
            hg = [2*round(k*62/(2*nhead)) for k in range(nhead)]
            for k in range(nhead):
                pre, it = g[k]
                if pre:
                    if hg[k]: gaps[hg[k] - 1].insert(0, I(pre))
                    else: tr.ins(pre)
                gaps[hg[k]].append(it)
                for x in adv.get(k, []): gaps[hg[k] + 2].append(I(x))
        if s == 7:
            gaps[54].append(I(f"v_accvgpr_read_b32 v1, a{A_TAG}"))
            gaps[56].append(I(f"v_cmp_eq_u32 vcc, 0, v1")); gaps[58].append(I("s_cbranch_vccnz KM_ZSPIN\nKM_ZBACK:"))
            gaps[60].append(I(f"v_accvgpr_write_b32 a{A_TAG}, v1")); gaps[62].append(I(f"v_readfirstlane_b32 s{S_TAG}, v1"))
        if s == 14:
            gaps[0].append(I(f"v_lshlrev_b32 v{V_T}, 7, {L}"))
            gaps[2].append(I(f"s_mov_b32 s{S_EF}, {WS_FLAG + 0x28000:#x}"))
            gaps[epos].append(I(f"buffer_load_dword v{V_KX}, v{V_T}, s[{S_WS}:{S_WS+3}], s{S_EF} offen sc1", vm=("ep", 0)))
            if pads:
                gaps[50].append(I("s_getpc_b64 s[32:33]\nKM_PC2:\ns_add_u32 s32, s32, KM_NORM-0x4000-KM_PC2\ns_addc_u32 s33, s33, 0"))
                gaps[52].append(I("s_and_b32 s33, s33, 0xffff")); gaps[53].append(I("s_mov_b32 s34, KM_END-KM_NORM+0x4000"))
                gaps[54].append(I("s_mov_b32 s35, 0x00020000")); gaps[55].append(I(f"s_lshl_b32 s82, s{S_W}, 13"))
                gaps[56].append(I(f"buffer_load_dword a{A_DUM}, v{V_T}, s[32:35], s82 offen"))
        vq = []; slow = []; slow_from = None
        if s in (gs + 1, gs + 2): vq = gfast
        if s == gs + 3: slow = list(gslow)
        ml = [mfma(1, j, i) for j in range(8) for i in range(8)]
        if 1 <= u <= 8:
            for e in range(2):
                ml.insert(30 + 20*e, f"v_mfma_f32_16x16x32_bf16 {ar(KVA,4)}, {ar(A_KX + 8*((u-1)%2) + 4*e,4)}, {ar(KVW+4*e,4)}, {'0' if (u == 1 and e == 0) else ar(KVA,4)}")
        for k, m in enumerate(ml):
            tr.ins(m)
            tr.items.extend(gaps[k])
            for _ in range(vcap(gaps[k])):
                if vq: tr.ins(vq.pop(0))
                elif s == 0 and late:
                    for l in late.pop(0): tr.ins(l)
            if slow and not vq:
                if slow_from is None: slow_from = k + 2
                if k >= slow_from and (k - slow_from) % 2 == 0: tr.ins(slow.pop(0))
        for k in range(len(ml), 68): assert not gaps[k], (s, k)
        assert not slow and not late
        segs.append(tr)

    P = p2
    ec = Trace()
    ec.wait(vm=[("ep", 0)])
    ec.raw(f"""
    v_cmp_ne_u32 vcc, s{S_TAG}, v{V_KX}
    s_and_b32 s80, s2, 7
    s_lshr_b32 s81, s80, 1
    s_lshl_b32 s{P.S_MT}, s{S_MT}, 2
    s_cbranch_vccnz KM_ESPIN
    KM_EBACK:
    s_add_u32 s{P.S_MT}, s{P.S_MT}, s81
    s_lshl_b32 s{P.S_M0KV}, s{S_W}, 13
    s_add_u32 s82, s{P.S_M0KV}, {WS_KV:#x}
    s_add_u32 s{P.S_KVB}, s86, s82
    s_addc_u32 s{P.S_KVB+1}, s87, 0
    v_add_u32 v{V_DT}, 4096, v{V_L16}
    """)
    su2 = f"""
    s_and_b32 s80, s80, 1
    s_lshl_b32 s80, s80, 2
    s_and_b32 s90, s{S_NT}, 3
    s_add_u32 s{P.S_NT}, s80, s90
    s_lshr_b32 s90, s{P.S_MT}, 1
    s_mul_i32 s90, s90, 112
    s_mul_i32 s91, s{S_W}, 28
    s_add_u32 s90, s90, s91
    s_lshl_b32 s90, s90, 13
    s_and_b32 s44, s{P.S_MT}, 1
    s_lshl_b32 s44, s44, 12
    s_add_u32 s90, s90, s44
    s_add_u32 s58, s86, s90\ns_addc_u32 s59, s87, 0
    s_add_u32 s60, s58, 0x2000\ns_addc_u32 s61, s59, 0
    s_add_u32 s62, s58, 0x4000\ns_addc_u32 s63, s59, 0
    s_add_u32 s70, s58, 0x6000\ns_addc_u32 s71, s59, 0
    s_mov_b64 s[{P.S_HB}:{P.S_HB+1}], s[70:71]
    s_mul_i32 s90, s{P.S_NT}, 144
    s_add_u32 s91, s91, s90
    s_lshl_b32 s91, s91, 13
    s_add_u32 s91, s91, {WS_WT:#x}
    s_add_u32 s64, s86, s91\ns_addc_u32 s65, s87, 0
    s_add_u32 s68, s64, 0x2000\ns_addc_u32 s69, s65, 0
    s_mov_b64 s[{P.S_WB}:{P.S_WB+1}], s[68:69]
    s_add_u32 s{P.S_XB}, s64, {P.SF0*8192}\ns_addc_u32 s{P.S_XB+1}, s65, 0
    s_lshl_b32 s91, s{S_W}, 3
    s_add_u32 s90, s90, s91
    s_lshl_b32 s90, s90, 13
    s_add_u32 s90, s90, {WS_WT + 112*8192:#x}
    s_add_u32 s{P.S_WOB}, s86, s90\ns_addc_u32 s{P.S_WOB+1}, s87, 0
    s_mul_i32 s{P.S_M0SP}, s{S_W}, 24576
    s_add_u32 s{P.S_M0SP}, s{P.S_M0SP}, {P.LDS_SP}
    s_mov_b32 s{P.S_SPM}, s{P.S_M0SP}
    s_add_u32 s{P.S_M0C}, s{P.S_M0KV}, 0x8000
    s_mov_b32 s{P.S_CNT}, 6
    s_add_u32 s66, s{P.S_WOB}, {(P.SF0 + 3 - P.NDOWN)*8192}\ns_addc_u32 s67, s{P.S_WOB+1}, 0
    s_mov_b32 s{P.S_OUT}, s96
    s_and_b32 s{P.S_OUT+1}, s97, 0xffff
    s_mov_b32 s{P.S_OUT+2}, {2048*1024*2:#x}
    s_mov_b32 s{P.S_OUT+3}, 0x00020000
    s_mov_b32 s{P.S_OF}, s{S_FLG}
    s_lshl_b32 s90, s{P.S_MT}, 12
    s_add_u32 s{P.S_OP}, s90, {WS_FLAG:#x}
    s_lshl_b32 s90, s{S_W}, 13
    s_add_u32 s{P.S_HP}, s90, {WS_FLAG + 0x20000:#x}
    s_lshl_b32 s90, s2, 7
    s_add_u32 s90, s90, {WS_FLAG + 0x20000:#x}
    s_cmp_eq_u32 s{S_W}, 0\ns_cselect_b32 s{P.S_HF}, s90, {OOB:#x}
    """
    su2 = [x.strip() for x in su2.strip().split("\n    ")]

    def last_stage(wn):
        tr = Trace()
        s = NST - 1
        su = f"""
        s_lshr_b32 s81, s{S_W}, 1
        s_lshl_b32 s82, s{S_MT}, 1
        s_add_u32 s82, s82, s81
        s_mul_i32 s82, s82, 112
        s_lshr_b32 s83, s{S_NT}, 1
        s_mul_i32 s83, s83, 7
        s_add_u32 s82, s82, s83
        s_and_b32 s84, s{S_NT}, 1
        s_add_u32 s85, s82, 6
        s_lshl_b32 s85, s85, 13
        s_mul_i32 s83, s84, 3
        s_add_u32 s82, s82, s83
        s_add_u32 s82, s82, {2*wn}
        s_lshl_b32 s82, s82, 13
        s_add_u32 s83, s82, 8192
        """
        if wn:
            su += f"""
            s_lshl_b32 s84, s84, 9
            s_add_u32 s85, s85, s84
            v_and_b32 v21, 15, {L}
            v_lshlrev_b32 v21, 4, v21
            v_bfe_u32 v24, {L}, 4, 1
            v_lshl_add_u32 v22, v24, 9, v21
            v_lshl_add_u32 v21, v24, 10, v21
            v_lshrrev_b32 v24, 5, {L}
            v_lshl_add_u32 v22, v24, 10, v22
            v_lshl_add_u32 v21, v24, 8, v21
            s_lshl_b32 s81, s81, 13
            s_add_u32 s81, s81, {P.LDS_Q}
            v_add_u32 v22, s81, v22
            v_add_u32 v23, 4096, v21
            """
        setup = [l.strip() for l in su.strip().split("\n") if l.strip()] + su2
        ffn = lambda t, i: dict(kind="f", t=t, i=i, mf=[(2*t, i), (4 + 2*t, i), (2*t + 1, i), (5 + 2*t, i)])
        if wn == 0:
            halves = [[ffn(0, i) for i in range(8)], [ffn(1, i) for i in range(8)]]
        else:
            halves = [[dict(kind="q", i=i, mf=[(3, i), (7, i)]) for i in range(8)] +
                      [dict(kind="s", i=i, mf=[(2, i), (6, i), (2, i + 1), (6, i + 1)]) for i in range(0, 8, 2)],
                      [ffn(0, i) for i in range(8)]]
        pieces = halves[0] + halves[1]
        half = len(halves[0])
        jsets = [sorted(set(j for pc in hv for j, _ in pc["mf"])) for hv in halves]
        def piece_ops(pc, pk):
            o = []
            i = pc["i"]
            tmp = 12 + 4*(i % 2)
            def reg(j, i):
                p_, b = accn(j, i)
                if p_ == "v": return b
                for r in range(4): o.append(f"v_accvgpr_read_b32 v{tmp+r}, a{b+r}")
                return tmp
            r_ = [reg(j, i_) for j, i_ in pc["mf"]]
            if pc["kind"] == "q":
                g0_, g1_ = r_
            else:
                g0_, u0, g1_, u1 = r_
                for g_, u_ in ((g0_, u0), (g1_, u1)):
                    for r in range(4): o.append(f"v_max_f32 v{g_+r}, 0, v{g_+r}")
                    if pk:
                        o.append(f"v_pk_mul_f32 {vr(g_,2)}, {vr(g_,2)}, {vr(u_,2)}")
                        o.append(f"v_pk_mul_f32 {vr(g_+2,2)}, {vr(g_+2,2)}, {vr(u_+2,2)}")
                    else:
                        for r in range(4): o.append(f"v_mul_f32 v{g_+r}, v{g_+r}, v{u_+r}")
            o += [f"v_cvt_pk_bf16_f32 v{g0_}, v{g0_}, v{g0_+1}", f"v_cvt_pk_bf16_f32 v{g0_+1}, v{g0_+2}, v{g0_+3}",
                  f"v_cvt_pk_bf16_f32 v{g0_+2}, v{g1_}, v{g1_+1}", f"v_cvt_pk_bf16_f32 v{g0_+3}, v{g1_+2}, v{g1_+3}"]
            if pc["kind"] == "q":
                o.append(f"ds_write_b128 v22, {vr(g0_,4)} offset:{(i//2)*2048 + (i%2)*256}")
            elif pc["kind"] == "s":
                o += ["s_nop 1", f"v_permlane16_swap_b32 v{g0_}, v{g0_+2}", f"v_permlane16_swap_b32 v{g0_+1}, v{g0_+3}",
                      f"buffer_store_dwordx4 {vr(g0_,4)}, {'v21' if i < 4 else 'v23'}, s[{S_WS}:{S_WS+3}], s85 offen offset:{(i%4)*1024} sc1"]
            else:
                o.append(f"buffer_store_dwordx4 {vr(g0_,4)}, {'v%d' % (V_L16 if i < 4 else V_DT)}, s[{S_WS}:{S_WS+3}], {'s82' if pc['t'] == 0 else 's83'} offen offset:{(i%4)*1024} sc1")
            return o
        rl = [xread(s, 1, i) for i in range(8)]
        for j in jsets[0]: rl += [wread(s, 1, j, 0), wread(s, 1, j, 1)]
        for x in rl: x["lg"] = ("frA", 0)
        for j in jsets[1]: rl += [wread(s, 1, j, 0), wread(s, 1, j, 1)]
        kv0 = []
        for part in range(2):
            cl = [P.kv_dma(0, part, j) for j in range(4)]
            for x in cl: x["text"] = x["text"].replace(f"v{P.V_L16},", f"v{V_L16},").replace(f"v{P.V_L16B},", f"v{V_DT},")
            kv0.append(cl)
        q = s - tq0 - 2
        tr.wait(lg=[("fr", s, 0)] + ([("tf", q)] if 0 <= q < 9 else []))
        first = []
        if gs + 4 == s:
            first.append([I("s_mov_b32 exec_lo, 1\ns_mov_b32 exec_hi, 1"), I(f"buffer_store_dwordx2 v[24:25], v{V_GROW}, s[{S_WS}:{S_WS+3}], 0 offen sc1", vm=("hst", 0)), I("s_mov_b64 exec, -1")])
        if 0 <= q < 9 and not tdefer: first.append([tstore(q)[0]])
        for k, (j, i) in enumerate([(j, i) for j in jsets[0] for i in range(8)]):
            tr.ins(mfma(0, j, i))
            if first:
                tr.items.extend(first.pop(0)); continue
            if k in (26, 29): tr.ins(f"s_add_u32 m0, s{P.S_M0KV}, {4096 if k == 29 else 0}")
            elif k in (27, 30): tr.items.extend(kv0.pop(0))
            elif rl: tr.items.append(rl.pop(0))
            for _ in range(2):
                if setup: tr.ins(setup.pop(0))
        assert not rl
        tr.items.extend(adv64(P.S_KVB, 32768))
        for x in setup: tr.ins(x)
        tr.wait(lg=[("frA", 0)])
        ml = []
        for pi, pc in enumerate(pieces):
            if pi == half:
                ml.append((W(lg=[("fr", s, 1)]), None))
                ml += [(mfma(0, j, i), None) for j in jsets[1] for i in range(8)]
            for j, i in pc["mf"]: ml.append((mfma(1, j, i), pi))
        done_at = {}; cnt = 0; vq = []; nextp = 0
        def put(x):
            tr.ins(x, vm=("hst", 0) if x.startswith("buffer_") else None, lg=("qw", 0) if x.startswith("ds_") else None)
        for k, (m, pi) in enumerate(ml):
            if isinstance(m, dict):
                tr.items.append(m); continue
            tr.ins(m); cnt += 1
            if pi is not None and (k + 1 == len(ml) or ml[k + 1][1] != pi): done_at[pi] = cnt
            budget = 2
            while budget > 0:
                if not vq and nextp in done_at and cnt - done_at[nextp] >= 9:
                    vq = piece_ops(pieces[nextp], False); nextp += 1
                if not vq: break
                c_ = 2 if vq[0].startswith(("buffer_", "ds_")) else 1
                if c_ > budget: break
                put(vq.pop(0)); cnt += 1; budget -= c_
        for x in vq: put(x); cnt += 1
        while nextp < len(pieces):
            if cnt - done_at[nextp] < 9: tr.ins("s_nop 7"); cnt += 8
            for x in piece_ops(pieces[nextp], True): put(x); cnt += 1
            nextp += 1
        return tr
    l0, l1 = last_stage(0), last_stage(1)

    L2 = f"v{P.V_LANE}"
    h2 = Trace()
    h2.raw(f"""
    v_mov_b32 {L2}, {L}
    v_mov_b32 v{P.V_L16}, v{V_L16}
    v_mov_b32 v{P.V_L16B}, v{V_DT}
    v_mov_b32 v{P.V_KVR}, v{V_L16}
    s_lshl_b32 s80, s{S_W}, 12
    s_add_u32 s80, s80, {P.LDS_Q}
    v_add_u32 v24, s80, v{V_L16}
    """)
    h2.wait(vm=[("kv", 0)])
    h2.raw("s_waitcnt lgkmcnt(0)\ns_barrier")
    for q in range(4): h2.ins(f"ds_read_b128 {ar(P.A_Q + 4*q,4)}, v24 offset:{q*1024}", lg=("q", 0))
    for half in range(2): h2.items.append(P.k_read(0, half))
    for half in range(2): h2.items.append(P.v_read(0, half))
    for pp in range(4):
        h2.raw(f"""
        s_add_u32 s80, s{S_W}, {pp}
        s_and_b32 s80, s80, 3
        s_lshl_b32 s80, s80, 11
        v_add_u32 v{P.V_W+pp}, s80, v{P.V_L16}
        """)
    h2.wait(lg=[("k", 0)])
    h2.ins(P.qk(0, 0)); h2.ins(P.qk(0, 1))
    for q in range(4):
        h2.ins(f"v_add_u32 v{P.V_SP+q}, s{P.S_M0SP}, v{P.V_W+q}")
        h2.ins(f"v_add_u32 v{P.V_KP+q}, s{P.S_M0KV}, v{P.V_W+q}")
    h2.raw(f"""
    v_bfe_u32 v26, {L2}, 4, 1
    v_bfe_u32 v27, {L2}, 2, 1
    v_cmp_eq_u32 vcc, v26, v27
    v_mov_b32 v26, 0x3f803f80
    s_lshl_b32 s78, s{P.S_MT}, 9
    s_add_u32 s78, s78, {WS_G:#x}
    v_cndmask_b32 v26, 0, v26, vcc
    """)
    for r in range(4): h2.ins(f"v_accvgpr_write_b32 a{P.A_SEL+r}, v26")
    h2.raw(f"""
    s_lshl_b32 s79, s{S_MT}, 11
    s_lshl_b32 s80, s{S_W}, 9
    s_add_u32 s79, s79, s80
    s_add_u32 s79, s79, {WS_G:#x}
    v_and_b32 v26, 31, {L2}
    v_lshlrev_b32 v26, 3, v26
    v_and_b32 v27, 15, {L2}
    v_lshlrev_b32 v27, 3, v27
    v_lshlrev_b32 v25, 7, {L2}
    v_mov_b32 v24, s{S_TAG}
    """)
    def rebase(x, frm, to):
        x["text"] = x["text"].replace(f"s[{frm}:{frm+1}]", f"s[{to}:{to+1}]"); return x
    wl = lambda sg, J0, b: [rebase(P.w_load(sg, J), P.S_WB, b) for J in range(J0, J0 + 4)]
    hl = lambda sg, b: [rebase(P.h_load(sg, i), P.S_HB, b) for i in range(4)]
    early = []
    timed = [(1 + q // 3, tstore(q)) for q in range(9)] if tdefer else []
    timed += [(hsig, [W(vm=[("hst", 0), ("ts", 8)]), I("s_barrier"), I("s_mov_b64 exec, 1"), I(f"buffer_store_dword v24, off, s[{S_WS}:{S_WS+3}], s{P.S_HF} sc1"), I("s_mov_b64 exec, -1")]),
             (hpoll, [I(f"buffer_load_dword v28, v25, s[{S_WS}:{S_WS+3}], s{P.S_HP} offen sc1", vm=("hp", 0))]),
             (hpoll + 2, [W(vm=[("hp", 0)]), I(f"v_cmp_ne_u32 vcc, s{S_TAG}, v28"), I("s_nop 0"), I("s_cbranch_vccnz KM_HSPIN"), I("KM_HBACK:"), I("s_barrier")] + hl(0, 58)),
             (hpoll + 2, wl(0, 0, 64)), (hpoll + 3, wl(0, 4, 64)), (hpoll + 4, wl(1, 0, 68)), (hpoll + 5, wl(1, 4, 68)),
             (hpoll + 6, hl(1, 60)), (hpoll + 7, hl(2, 62)), (hpoll + 8, hl(3, 70)),
             (hpoll + 12, [I(f"buffer_load_dword v{P.V_G+hh}, v26, s[{S_WS}:{S_WS+3}], s79 offen offset:{hh*256} sc1", vm=("g2", 0)) for hh in range(2)]),
             (hpoll + 13, [I(f"buffer_load_dword v{P.V_OMG+i}, v27, s[{S_WS}:{S_WS+3}], s78 offen offset:{4 + i*128} sc1", vm=("g2", 0)) for i in range(4)])]
    NDOWN = P.NDOWN
    xl = [([P.x_base(sg)] if J0 == 0 else []) + [P.w_load(sg, J) for J in range(J0, J0 + 4)] for sg in (NDOWN + 6, NDOWN + 7) for J0 in (0, 4)]
    def xfix(grps, s):
        for g_ in grps:
            for x in g_: x["text"] = x["text"].replace(f"s[{P.S_XB}:{P.S_XB+1}]", "s[52:53]").replace(f"s_add_u32 s{P.S_XB},", "s_add_u32 s52,").replace(f"s_addc_u32 s{P.S_XB+1},", "s_addc_u32 s53,")
        return grps
    xfix(xl, 0)
    if xhead:
        timed = timed[:-2] + [(hpoll + 9 + k, xl.pop(0)) for k in range(4)] + [(hpoll + 13, timed[-2][1]), (hpoll + 14, timed[-1][1])]
    headseg = P.segment(0, 32, 0, 32*P.NHEAD, g0, timed)
    bodies = [P.segment(16*it, 16*it + 16, 32*(P.NHEAD + 4*(it - 2)), 32*(P.NHEAD + 4*(it - 1)), 16*it, loop=True) for it in range(2, 8)]
    for b_ in bodies: b_.ins(f"s_cmp_lg_u32 s{P.S_CNT}, 0")
    NDOWN, NWO, ACC = P.NDOWN, P.NWO, P.ACC
    t1 = Trace()
    n = P.NSLOT - 1
    t1.wait(lg=[("v", 63)])
    t1.ins("s_nop 1")
    t1.ins(P.pv(n, 0)); t1.ins(P.summ(n, 0)); t1.ins(P.pv(n, 1)); t1.ins(P.summ(n, 1))
    VO = P.V_O
    q_ = Trace()
    q_.raw(f"""
    v_bfe_u32 v26, {L2}, 4, 1
    s_lshl_b32 s78, s{S_MT}, 1
    v_lshlrev_b32 v26, 10, v26
    s_lshr_b32 s79, s{S_W}, 1
    v_and_b32 v27, 15, {L2}
    s_add_u32 s78, s78, s79
    v_lshl_add_u32 v26, v27, 4, v26
    s_lshl_b32 s78, s78, 5
    v_lshrrev_b32 v27, 5, {L2}
    s_add_u32 s78, s78, s{S_NT}
    v_lshl_add_u32 v26, v27, 8, v26
    s_lshl_b32 s78, s78, 13
    s_and_b32 s79, s{S_W}, 1
    s_lshl_b32 s79, s79, 12
    s_add_u32 s78, s78, s79
    s_add_u32 s54, s78, {WS_O:#x}
    s_mov_b32 s78, 0x1f800000
    s_mov_b32 s79, 0x5f800000
    s_mov_b32 s55, 0
    v_accvgpr_read_b32 v80, a{P.A_L}
    v_accvgpr_read_b32 v81, a{P.A_L+4}
    """)
    q_.wait(vm=[("g2", 0)])
    q_.raw(f"""
    v_min_f32 v83, v80, v81
    v_max_f32 v84, v80, v81
    v_add_f32 v85, v80, v81
    v_cmp_nle_f32 s[82:83], s78, v83
    v_cmp_nge_f32 s[84:85], s79, v84
    v_cmp_u_f32 vcc, v85, v85
    """)
    q_.ins("s_nop 1\ns_or_b64 s[82:83], s[82:83], s[84:85]\ns_or_b64 vcc, vcc, s[82:83]\ns_cbranch_vccnz KM_FALLBACK\nKM_NORM:\nv_rcp_f32 v80, v80")
    q_.raw(f"""
    v_rcp_f32 v82, v81
    v_mul_f32 v80, v80, v{P.V_G}
    v_mul_f32 v82, v82, v{P.V_G+1}
    """)
    for hh in range(2):
        for pc in range(2):
            b = VO + 16*hh + 8*pc
            for r in range(8): q_.ins(f"v_mul_f32 v{b+r}, v{b+r}, v{80+2*hh}")
            for q in range(4): q_.ins(f"v_cvt_pk_bf16_f32 v{64+8*hh+4*pc+q}, v{b+2*q}, v{b+2*q+1}")
            q_.ins(f"buffer_store_dwordx4 {vr(64+8*hh+4*pc,4)}, v26, s[{S_WS}:{S_WS+3}], s54 offen offset:{hh*2048 + pc*512} sc1", vm=("ost", 0))
    vq = q_.items
    nA, nB = nb
    stepsA = [P.gemm_step(s, vq=vq) for s in range(NIN, NIN + nA)]
    t2 = Trace()
    t2.items.extend(vq)
    t2.ins("s_nop 1")
    for q in range(4):
        t2.ins(f"v_mfma_f32_16x16x32_bf16 v[84:87], {ar(P.A_SEL,4)}, {vr(64+4*q,4)}, {'0' if q == 0 else 'v[84:87]'}")
    stepsA.append(t2)
    polli = lambda: I(f"buffer_load_dword v28, v25, s[{S_WS}:{S_WS+3}], s{P.S_OP} offen sc1", vm=("op", 0))
    stepsB = [P.gemm_step(s, extra=[xl.pop(0), xl.pop(0)] if xl else [], late=[polli()] if s == NIN + nA + nB - 1 else []) for s in range(NIN + nA, NIN + nA + nB)]
    assert not xl
    sig = Trace()
    sig.raw(f"""
    v_and_b32 v25, 31, {L2}
    v_lshlrev_b32 v25, 7, v25
    s_lshr_b32 s78, s{P.S_MT}, 1
    s_lshl_b32 s78, s78, 18
    s_add_u32 s78, s78, s44
    s_lshl_b32 s79, s{S_W}, 16
    s_add_u32 s78, s78, s79
    s_add_u32 s78, s78, {WS_O:#x}
    s_add_u32 s56, s86, s78
    s_addc_u32 s57, s87, 0
    """)
    sig.raw(f"""
    v_sub_f32 v84, v84, v84
    s_cmp_lg_u32 s55, 0
    v_cmp_u_f32 vcc, v84, v84
    s_cbranch_scc1 KM_CHECKED
    s_cbranch_vccnz KM_FALLBACK2
    KM_CHECKED:
    """)
    sig.wait(vm=[("ost", 0)])
    sig.raw(f"""
    s_mov_b64 exec, 1
    buffer_store_dword v24, off, s[{S_WS}:{S_WS+3}], s{P.S_OF} sc1
    s_mov_b64 exec, -1
    """)
    t3 = Trace()
    t3.wait(vm=[("op", 0)])
    t3.raw(f"""
    v_cmp_ne_u32 vcc, s{S_TAG}, v28
    s_nop 0
    s_cbranch_vccnz KM_OSPIN
    KM_OBACK:
    """)
    ol = []
    for s in range(NDOWN, NDOWN + NWO):
        ol.append([rebase(P.h_load(s, i), P.S_HB, 56) for i in range(4)] + (adv64(56, 8192) if s < NDOWN + NWO - 1 else []))
    t4 = Trace()
    for grp in ol[:opre]: t4.items.extend(grp)
    k = opre
    stepsC = []
    for s in range(NIN + nA + nB, NDOWN):
        ex = []
        while len(ex) < 2 and k < 5: ex.append(ol[k]); k += 1
        stepsC.append(P.gemm_step(s, ex))
    wos = []
    for s in range(NDOWN, NDOWN + 4):
        ex = []
        while len(ex) < 2 and k < NWO: ex.append(ol[k]); k += 1
        wos.append(P.gemm_step(s, ex))
    ph = Trace()
    su = Asm()
    for pp in range(1, 4):
        su(f"s_add_u32 s78, s{S_W}, {pp}\ns_and_b32 s78, s78, 3\ns_mul_i32 s78, s78, 24576\ns_add_u32 s78, s78, {(pp-1)*8192}\nv_add_u32 v{26+pp}, s78, v{P.V_L16}")
    su(f"""
    s_mul_i32 s78, s{S_W}, 24576
    v_add_u32 v26, s78, v{P.V_L16}
    s_lshl_b32 s78, s{P.S_MT}, 17
    s_lshl_b32 s79, s{P.S_NT}, 8
    s_add_u32 s78, s78, s79
    s_lshl_b32 s79, s{S_W}, 6
    s_add_u32 s78, s78, s79
    s_add_u32 s79, s78, 0x8000
    s_add_u32 s80, s78, 0x10000
    s_add_u32 s81, s78, 0x18000
    v_and_b32 v30, 15, {L2}
    v_lshlrev_b32 v30, 11, v30
    v_bfe_u32 v25, {L2}, 4, 1
    v_lshl_add_u32 v30, v25, 5, v30
    v_lshrrev_b32 v25, 5, {L2}
    v_lshl_add_u32 v30, v25, 4, v30
    """)
    su = [l.strip() for l in su.lines]
    S2 = list(range(NDOWN + 4, NDOWN + 8))
    ph.wait(vm=[("w", s, J) for s in S2[2:] for J in range(8)], lg=[("w", s, J) for s in S2[:2] for J in range(8)])
    ph.ins("s_barrier")
    for idx, pp in enumerate((1, 2, 3, 0)):
        fill = [[] for _ in range(32)]
        if idx == 0:
            for q, x in enumerate(su): fill[q].append(I(x))
        else:
            prev = (1, 2, 3)[idx - 1]
            for t in range(8):
                fill[4 + 3*t].append(I(f"ds_write_b128 v{26+prev}, {vr(ACC + (prev*8 + t)*4, 4)} offset:{t*1024}", lg=("rw", prev)))
        if idx == 3:
            rd = [I(f"ds_read_b128 {vr(ACC + 32 + (s_*8 + t)*4, 4)}, v26 offset:{s_*8192 + t*1024}", lg=("rr", s_)) for s_ in range(2) for t in range(8)]
            free = [g for g in range(32) if not fill[g]]
            for x, g in zip(rd, free): fill[g].append(x)
            ph.wait(lg=[("rw", 2)])
            ph.ins("s_barrier")
        mu = 0
        for s in S2:
            if idx == 0: ph.wait(vm=[("h", s, i) for i in range(4)])
            for J in (2*pp, 2*pp + 1):
                for i in range(4):
                    ph.ins(P.gemm_mfma(s, J, i, False)); ph.items.extend(fill[mu]); mu += 1
    ph.wait(lg=[("rw", 3), ("rr", 1)])
    ph.ins("s_barrier")
    for t in range(8): ph.ins(f"ds_read_b128 {vr(48 + t*4, 4)}, v26 offset:{2*8192 + t*1024}", lg=("rr", 2))
    for s_ in range(3):
        if s_ == 2: ph.wait(lg=[("rr", 2)])
        for r in range(0, 32, 2):
            ph.ins(f"v_pk_add_f32 {vr(ACC+r,2)}, {vr(ACC+r,2)}, {vr((ACC + 32 + s_*32 if s_ < 2 else 48) + r,2)}")
    for i in range(4):
        b0, b1 = ACC + i*4, ACC + (4 + i)*4
        d = 32 + i*4
        om = P.V_OMG + i
        for b in (b0, b0 + 2, b1, b1 + 2):
            ph.ins(f"v_pk_mul_f32 {vr(b,2)}, {vr(b,2)}, {vr(om,2)} op_sel_hi:[1,0]" if om % 2 == 0 else f"v_pk_mul_f32 {vr(b,2)}, {vr(b,2)}, {vr(om-1,2)} op_sel:[0,1] op_sel_hi:[1,1]")
        ph.raw(f"""
        v_cvt_pk_bf16_f32 v{d}, v{b0}, v{b0+1}
        v_cvt_pk_bf16_f32 v{d+1}, v{b0+2}, v{b0+3}
        v_cvt_pk_bf16_f32 v{d+2}, v{b1}, v{b1+1}
        v_cvt_pk_bf16_f32 v{d+3}, v{b1+2}, v{b1+3}
        s_nop 1
        v_permlane16_swap_b32 v{d}, v{d+2}
        v_permlane16_swap_b32 v{d+1}, v{d+3}
        buffer_store_dwordx4 {vr(d,4)}, v30, s[{P.S_OUT}:{P.S_OUT+3}], s{78+i} offen sc1 nt
        """)
    head = [pro, pro2] + segs + [ec]
    rest = [h2, headseg] + bodies + [t1] + stepsA + [sig] + stepsB + [t3, t4] + stepsC + wos + [ph]
    import copy
    resolve(head + [l0] + rest)
    saved = [[(x.get("wvm"), x.get("wlg")) for x in seg.items] for seg in rest]
    resolve(head + [l1] + rest)
    for seg, sv in zip(rest, saved):
        for x, (v, l) in zip(seg.items, sv):
            if x["text"] is None:
                mn = lambda p, q: q if p is None else p if q is None else min(p, q)
                x["wvm"], x["wlg"] = mn(x["wvm"], v), mn(x["wlg"], l)
    emit_trace(a, [pro]); st.stamp()
    if pads:
        a("s_branch KM_BODY")
        a.lines.append(".p2align 12")
        a.label("KM_BODY")
    emit_trace(a, [pro2]); st.stamp()
    for k, tr in enumerate(segs):
        emit_trace(a, [tr])
        if 'stg' in exp and k % 2 == 0: st.stamp()
    st.stamp()
    emit_trace(a, [ec])
    if 'ec' in exp: st.stamp()
    a(f"s_bitcmp1_b32 s{S_W}, 0")
    a("s_cbranch_scc1 KM_LAST1")
    emit_trace(a, [l0])
    a("s_branch KM_P2")
    a.label("KM_LAST1")
    emit_trace(a, [l1])
    a.label("KM_P2")
    st.stamp()
    if pads: a.lines.append("@CHAIN2")
    emit_trace(a, [h2]); st.stamp()
    b = Asm(); emit_trace(b, [headseg])
    for l in b.lines:
        a.lines.append(l)
        if 'its' in exp and l.strip() in ("s_barrier", "KM_HBACK:"): st.stamp()
    st.stamp()
    a.lines.append(".p2align 6")
    a.label("KM_LOOP")
    emit_trace(a, bodies)
    a("s_cbranch_scc1 KM_LOOP")
    st.stamp()
    emit_trace(a, [t1]); st.stamp()
    for seg in stepsA + [sig]: emit_trace(a, [seg])
    st.stamp()
    for seg in stepsB: emit_trace(a, [seg])
    st.stamp()
    emit_trace(a, [t3]); st.stamp()
    for seg in [t4] + stepsC: emit_trace(a, [seg])
    st.stamp()
    for seg in wos: emit_trace(a, [seg])
    st.stamp()
    emit_trace(a, [ph])
    if dbg:
        a("s_waitcnt vmcnt(0)")
        st.stamp(force=True)
        st.dump(0, S_W, 86)
        if hdbg is not None:
            a(f"""
            s_lshl_b32 s90, s2, 2
            s_add_u32 s90, s90, s{S_W}
            s_cmp_eq_u32 s90, {4*hdbg}
            s_cbranch_scc0 KM_END
            v_readlane_b32 s90, v31, 32
            v_mbcnt_lo_u32_b32 v0, -1, 0
            v_mbcnt_hi_u32_b32 v0, -1, v0
            v_subrev_u32 v31, s90, v31
            v_subrev_u32 v0, 32, v0
            v_lshlrev_b32 v0, 2, v0
            s_mov_b32 exec_lo, 0
            s_mov_b32 exec_hi, 0xfffe
            buffer_store_dword v31, v0, s[{S_DBG}:{S_DBG+3}], 0 offen
            """)
    a("s_endpgm")
    for nm, ld, val in (("Z", f"buffer_load_dword v1, off, s[{S_DBG}:{S_DBG+3}], 0 sc1", f"eq_u32 vcc, 0, v1"),
                        ("E", f"buffer_load_dword v{V_KX}, v{V_T}, s[{S_WS}:{S_WS+3}], s{S_EF} offen sc1", f"ne_u32 vcc, s{S_TAG}, v{V_KX}"),
                        ("H", f"buffer_load_dword v28, v25, s[{S_WS}:{S_WS+3}], s{P.S_HP} offen sc1", f"ne_u32 vcc, s{S_TAG}, v28"),
                        ("O", f"buffer_load_dword v28, v25, s[{S_WS}:{S_WS+3}], s{P.S_OP} offen sc1", f"ne_u32 vcc, s{S_TAG}, v28")):
        a(f"""
        KM_{nm}SPIN:
        s_mov_b32 s91, 0x40000
        KM_{nm}SPIN1:
        {ld}
        s_waitcnt vmcnt(0)
        v_cmp_{val}
        s_sub_u32 s91, s91, 1
        s_cbranch_vccz KM_{nm}BACK
        s_cmp_eq_u32 s91, 0
        s_cbranch_scc1 KM_{nm}BACK
        s_sleep 1
        s_branch KM_{nm}SPIN1
        """)
    A_K, A_Q = P.A_K, P.A_Q
    a.label("KM_FALLBACK2")
    a("s_mov_b32 s55, 2")
    a.label("KM_FALLBACK")
    a(f"""
    s_or_b32 s55, s55, 1
    s_waitcnt vmcnt(0) lgkmcnt(0)
    s_nop 15
    v_mov_b32 v82, 0xff7fffff
    v_mov_b32 v83, 0xff7fffff
    v_mov_b32 v80, 0
    v_mov_b32 v81, 0
    s_mov_b32 s78, {WS_KV:#x}
    """)
    for r in range(32): a(f"v_mov_b32 v{VO+r}, 0")
    a.label("KM_FB_LOOP")
    for q in range(4):
        a(f"buffer_load_dwordx4 {ar(A_K+4*q,4)}, v{P.V_L16}, s[{S_WS}:{S_WS+3}], s78 offen offset:{q*1024} sc1")
    a("s_waitcnt vmcnt(0)")
    for hh in range(2):
        O = VO + 16*hh; m = 82 + hh; l = 80 + hh
        a(f"v_mfma_f32_32x32x16_bf16 v[64:79], {ar(A_K,4)}, {ar(A_Q+8*hh,4)}, 0")
        a(f"v_mfma_f32_32x32x16_bf16 v[64:79], {ar(A_K+4,4)}, {ar(A_Q+8*hh+4,4)}, v[64:79]")
        a("s_nop 15")
        a("v_max_f32 v84, v64, v65")
        for r in range(2, 16, 2): a(f"v_max3_f32 v84, v{64+r}, v{65+r}, v84")
        a(f"""
        v_mov_b32 v85, v84
        s_nop 1
        v_permlane32_swap_b32 v84, v85
        s_nop 1
        v_max3_f32 v84, v84, v85, v{m}
        v_sub_f32 v85, v{m}, v84
        v_exp_f32 v85, v85
        v_mov_b32 v{m}, v84
        v_mul_f32 v{l}, v{l}, v85
        """)
        for r in range(16):
            a(f"v_sub_f32 v{64+r}, v{64+r}, v84")
            a(f"v_exp_f32 v{64+r}, v{64+r}")
            a(f"v_mul_f32 v{O+r}, v{O+r}, v85")
        for r in range(8): a(f"v_cvt_pk_bf16_f32 v{64+r}, v{64+2*r}, v{65+2*r}")
        for r in range(8):
            a(f"v_lshlrev_b32 v86, 16, v{64+r}\nv_and_b32 v87, 0xffff0000, v{64+r}\nv_add_f32 v{l}, v{l}, v86\nv_add_f32 v{l}, v{l}, v87")
        a(f"v_mfma_f32_32x32x16_bf16 {vr(O,16)}, {ar(A_K+8,4)}, v[64:67], {vr(O,16)}")
        a(f"v_mfma_f32_32x32x16_bf16 {vr(O,16)}, {ar(A_K+12,4)}, v[68:71], {vr(O,16)}")
        a("s_nop 15")
    a(f"""
    s_add_u32 s78, s78, 4096
    s_cmp_lt_u32 s78, {WS_KV + 64*4096:#x}
    s_cbranch_scc1 KM_FB_LOOP
    v_mov_b32 v84, v80
    v_mov_b32 v85, v81
    s_nop 1
    v_permlane32_swap_b32 v80, v84
    v_permlane32_swap_b32 v81, v85
    s_nop 1
    v_add_f32 v80, v80, v84
    v_add_f32 v81, v81, v85
    s_cmp_eq_u32 s55, 1
    s_cbranch_scc1 KM_NORM
    v_rcp_f32 v80, v80
    v_rcp_f32 v82, v81
    s_nop 0
    v_mul_f32 v80, v80, v{P.V_G}
    v_mul_f32 v82, v82, v{P.V_G+1}
    """)
    for hh in range(2):
        for pc in range(2):
            b = VO + 16*hh + 8*pc
            for r in range(8): a(f"v_mul_f32 v{b+r}, v{b+r}, v{80+2*hh}")
            for q in range(4): a(f"v_cvt_pk_bf16_f32 v{64+8*hh+4*pc+q}, v{b+2*q}, v{b+2*q+1}")
            a(f"buffer_store_dwordx4 {vr(64+8*hh+4*pc,4)}, v26, s[{S_WS}:{S_WS+3}], s54 offen offset:{hh*2048 + pc*512} sc1")
    a(f"""
    s_waitcnt vmcnt(0)
    s_branch KM_CHECKED
    KM_END:
    s_endpgm
    """)
    return a.text()
```

```python
from common import *
import math, struct

LDS_SP = 65536
K2_LDS = 163840

V_L16, V_L16B, V_KVR = 1, 2, 3
V_W = 4
V_SP, V_KP = 8, 12
V_LANE, V_OMG, V_G = 16, 18, 22
SB = [32, 48]; PB = [64, 72]
ACC = 128
A_O, A_L, A_SEL, A_Q, A_K, A_V = 0, 32, 40, 44, 60, 76
A_WR, RW = 92, 16
A_HR, RH = 156, 4
A_WX = 220
S_OUT, S_WS = 20, 24
S_HB, S_WB, S_KVB, S_XB = 12, 14, 16, 18
S_W, S_MT, S_NT, S_M0KV, S_M0SP = 36, 28, 29, 30, 31
S_WOB = 32
S_HF, S_HP, S_OF, S_OP = 8, 9, 10, 11
LDS_Q = 65536
NDOWN, NWO = 28, 8
NSLOT = 128

I = lambda text, vm=None, lg=None: dict(text=text, vm=vm, lg=lg)
W = lambda vm=(), lg=(): dict(text=None, needvm=list(vm), needlg=list(lg))
def adv64(s, n): return [I(f"s_add_u32 s{s}, s{s}, {n:#x}\ns_addc_u32 s{s+1}, s{s+1}, 0")]

def accr(J, i): return vr(ACC + (J*4 + i)*4, 4)
V_O = 96
def wreg(sig, J):
    if sig == NDOWN + 7: return ar(A_WX + 4*J, 4)
    if sig == NDOWN + 6: return ar(A_O + 4*J, 4)
    return ar(A_WR + 4*((8*sig + J) % RW), 4)
OREGS = [ar(A_Q + 4*k, 4) for k in range(12)] + [vr(V_O + 4*k, 4) for k in range(8)] + [ar(A_HR + 4*k, 4) for k in range(4*RH)]
def hreg(sig, i, ring=False):
    if sig >= NDOWN and not ring: return OREGS[4*(sig - NDOWN) + i]
    return ar(A_HR + 16*(sig % RH) + 4*i, 4)
def gemm_mfma(sig, J, i, first):
    return f"v_mfma_f32_16x16x32_bf16 {accr(J,i)}, {wreg(sig,J)}, {hreg(sig,i)}, {'0' if first else accr(J,i)}"
def h_load(sig, i, ring=False):
    return I(f"global_load_dwordx4 {hreg(sig,i,ring)}, v{V_L16}, s[{S_HB}:{S_HB+1}] offset:{i*1024} sc1", vm=("hx" if ring and sig >= NDOWN else "h", sig, i))
NIN = 25
NHEAD = 1
SF0 = NIN + 2
S_WB0 = 64
S_M0C, S_SPM, S_CNT = 34, 35, 39
def wsrc(sig):
    if sig < SF0: return "ring"
    if sig < NDOWN + 6: return "lds"
    return "x"
def slot_of(sig): return (sig - SF0) % 4
def w_load(sig, J):
    src = wsrc(sig)
    if src == "ring":
        return I(f"global_load_dwordx4 {wreg(sig,J)}, v{V_W + J//2}, s[{S_WB}:{S_WB+1}] offset:{(J%2)*1024} sc1", vm=("w", sig, J))
    if src == "x":
        return I(f"global_load_dwordx4 {wreg(sig,J)}, v{V_W + J//2}, s[{S_XB}:{S_XB+1}] offset:{(J%2)*1024} sc1", vm=("w", sig, J))
    k = slot_of(sig)
    reg, off = (V_SP, k*8192) if k < 3 else (V_KP, 0)
    return I(f"ds_read_b128 {wreg(sig,J)}, v{reg + J//2} offset:{off + (J%2)*1024}", lg=("w", sig, J))
def w_need(sig, J):
    return W(lg=[("w", sig, J)]) if wsrc(sig) == "lds" else W(vm=[("w", sig, J)])
def x_base(sig):
    b, o = (S_WB0, sig*8192) if sig < NDOWN else (S_WOB, (sig - NDOWN)*8192)
    return I(f"s_add_u32 s{S_XB}, s{b}, {o}\ns_addc_u32 s{S_XB+1}, s{b+1}, 0")
def fifo_fill(sig, half):
    k = slot_of(sig)
    m0 = I(f"s_add_u32 m0, s{S_M0SP}, {k*8192 + half*4096}") if k < 3 else I(f"s_add_u32 m0, s{S_M0KV}, {half*4096}")
    return m0, [I(f"global_load_lds_dwordx4 v{V_L16B if half else V_L16}, s[{S_XB}:{S_XB+1}] offset:{j*1024} sc1", vm=("wd", sig)) for j in range(4)]
def qk(n, half):
    T = n // 2; Sx = SB[n % 2]
    c = "0" if half == 0 else vr(Sx, 16)
    return f"v_mfma_f32_32x32x16_bf16 {vr(Sx,16)}, {ar(A_K + 8*(T%2) + 4*half,4)}, {ar(A_Q + 8*(n%2) + 4*half,4)}, {c}"
def pv(n, half):
    T = n // 2; O = V_O + 16*(n % 2)
    c = "0" if (n < 2 and half == 0) else vr(O, 16)
    return f"v_mfma_f32_32x32x16_bf16 {vr(O,16)}, {ar(A_V + 8*(T%2) + 4*half,4)}, {vr(PB[n%2] + 4*half,4)}, {c}"
def summ(n, half):
    Lr = A_L + 4*(n % 2)
    c = "0" if (n < 2 and half == 0) else ar(Lr, 4)
    return f"v_mfma_f32_16x16x32_bf16 {ar(Lr,4)}, {ar(A_SEL,4)}, {vr(PB[n%2] + 4*half,4)}, {c}"
def kv_off(T): return (T % 8)*4096
def k_read(T, half):
    return I(f"ds_read_b128 {ar(A_K + 8*(T%2) + 4*half,4)}, v{V_KVR} offset:{kv_off(T) + half*1024}", lg=("k", T))
def v_read(T, half):
    return I(f"ds_read_b128 {ar(A_V + 8*(T%2) + 4*half,4)}, v{V_KVR} offset:{kv_off(T) + 2048 + half*1024}", lg=("v", T))
def kv_dma(stage, part, j):
    v = V_L16 if part == 0 else V_L16B
    return I(f"global_load_lds_dwordx4 v{v}, s[{S_KVB}:{S_KVB+1}] offset:{j*1024} sc1", vm=("kv", stage))

def xcost(x):
    t = x["text"] or "s_"
    if t.startswith("ds_"): return 4
    if t.startswith("global_"): return 5
    if t.startswith("buffer_"): return 8
    if t.startswith("v_"): return 4
    if "\n" in t: return 4
    return 0

def segment(lo, hi, mu0, mu1, g0, timed=(), loop=False):
    seq = []
    mu = mu0
    for n in range(lo, hi):
        att = [(qk(n+1, 0), 32), (qk(n+1, 1), 32)]
        if n >= 1: att += [(pv(n-1, 0), 32), (summ(n-1, 0), 16), (pv(n-1, 1), 32), (summ(n-1, 1), 16)]
        top = mu0 if n < g0 else mu0 + round((mu1 - mu0)*(n + 1 - g0)/(hi - g0))
        cnt = top - mu
        for k, (t, p_) in enumerate(att):
            seq.append(dict(text=t, pipe=p_, slot=n, mu=None, k=k))
            for _ in range(round(cnt*(k + 1)/len(att)) - round(cnt*k/len(att))):
                sig, J, i = mu // 32, (mu % 32) // 4, mu % 4
                seq.append(dict(text=gemm_mfma(sig, J, i, sig == 0), pipe=16, slot=n, mu=mu, k=None)); mu += 1
    assert mu == mu1
    N = len(seq)
    gaps = [[] for _ in range(N)]
    pos_mu = {s["mu"]: g for g, s in enumerate(seq) if s["mu"] is not None}
    slot_start = {}
    for g, s in enumerate(seq): slot_start.setdefault(s["slot"], g)
    slot_start[hi] = N
    def place(item, lo_, hi_=None):
        G = lo_
        while G < N and gaps[G]: G += 1
        if hi_ is not None and G > hi_:
            lo_ = min(lo_, hi_)
            G = min(range(lo_, hi_ + 1), key=lambda g: (sum(xcost(x) + 1 for x in gaps[g]), g))
        assert G < N, (item, lo_, hi_, G)
        gaps[G].append(item); return G
    def place_cluster(items, lo_, hi_):
        hi_ = min(hi_, N - 1); lo_ = min(lo_, hi_)
        cands = [g for g in range(lo_, hi_ + 1) if not gaps[g]]
        big = [g for g in cands if seq[g]["pipe"] == 32]
        G = big[0] if big else cands[0] if cands else min(range(lo_, hi_ + 1), key=lambda g: (sum(xcost(x) + 1 for x in gaps[g]), g))
        gaps[G].extend(items); return G
    for m in range(mu0, mu1, 4):
        sig, J = m // 32, (m % 32) // 4
        w = w_need(sig, J)
        if J == 0: w["needvm"] += [("h", sig, q) for q in range(4)]
        gaps[pos_mu[m] - 1].append(w)
    for n in range(lo, hi, 2):
        gaps[slot_start[n + 1] - 1].append(W(lg=[("k", n // 2 + 1)]))
    for it in range(lo // 16, hi // 16):
        G = slot_start[16*it + 14]
        gaps[G] = [W(vm=[("kv", it + 1)], lg=[("v", 8*it + 7)]), I("s_barrier"), I(f"v_xor_b32 v{V_KVR}, 0x8000, v{V_KVR}")] + gaps[G]
    for n in range(lo, hi):
        T = n // 2 + 1
        l_ = slot_start[n] + (1 if n % 16 == 14 else 0) + 1
        G = place(k_read(T, 0) if n % 2 == 0 else v_read(T, 0), l_, slot_start[n + 1] - 2)
        place(k_read(T, 1) if n % 2 == 0 else v_read(T, 1), G + 2, slot_start[n + 1] - 2)
    G = 0
    for sl, items in timed:
        G = place_cluster(items, max(slot_start[sl] + 1, G + 1), max(slot_start[sl + 1] - 2, G + 2))
    lastw = -1
    for m in range(mu0 + 15, mu1, 16):
        sig, J = m // 32, (m % 32) // 4
        G = pos_mu[m]
        last = m == mu1 - 1
        if J == 3: place(adv64(S_WB, 8192)[0], max(lastw + 1, G - 8), G - 1)
        lastw = place_cluster([w_load(sig + 2, q) for q in range(J - 3, J + 1)], G, G + (0 if last else 6))
        if J == 7:
            place(adv64(S_HB, 8192)[0], G - 6, G - 1)
            place_cluster([h_load(sig + RH, i, True) for i in range(4)], lastw + (0 if last else 6), lastw + 14)
    for it in range(lo // 16, hi // 16):
        for part in range(2):
            s0 = 16*it + (7 if it == 0 else 8 if it == 1 else 1) + (2 if it == 1 else 3)*part
            cl = [kv_dma(it + 1, part, j) for j in range(4)]
            if it == 7: cl[-1]["vm2"] = ("wd", SF0 + 3)
            G = place_cluster(cl, slot_start[s0] + 3, slot_start[s0 + 1] + 3)
            place(I(f"s_add_u32 m0, s{S_M0C}, {part*4096}"), G - 3, G - 1)
        G = place(adv64(S_KVB, 32768)[0], G + 1)
        G = place(I(f"s_xor_b32 s{S_M0C}, s{S_M0C}, 0x8000"), G + 1)
        if loop:
            idx = it - 2
            cl = [I(f"global_load_lds_dwordx4 v{V_L16}, s[{S_XB}:{S_XB+1}] offset:{j*1024} sc1", vm=("wd", SF0 + idx // 2)) for j in range(4)]
            G = place_cluster(cl, slot_start[16*it + 9] + 4, slot_start[16*it + 10] + 4)
            place(I(f"s_mov_b32 m0, s{S_SPM}"), G - 3, G - 1)
            G = place(adv64(S_XB, 4096)[0], G + 1)
            G = place(I(f"s_add_u32 s{S_SPM}, s{S_SPM}, 4096"), G + 1)
            G = place(I(f"s_sub_u32 s{S_CNT}, s{S_CNT}, 1"), G + 1)
            G = place(I(f"s_cmp_eq_u32 s{S_CNT}, {6 - 2*(NDOWN - SF0)}\ns_cselect_b32 s{S_XB}, s{S_WOB}, s{S_XB}\ns_cselect_b32 s{S_XB+1}, s{S_WOB+1}, s{S_XB+1}"), G + 1)
            G = place(I(f"s_cmp_eq_u32 s{S_CNT}, 1\ns_cselect_b32 s{S_KVB}, s66, s{S_KVB}\ns_cselect_b32 s{S_KVB+1}, s67, s{S_KVB+1}"), G + 1)
    V = []
    for n in range(lo, hi):
        Sx, Px = SB[n % 2], PB[n % 2]
        for r in range(0, 16, 2):
            V += [(8, f"v_exp_f32 v{Sx+r}, v{Sx+r}", n, "e"), (8, f"v_exp_f32 v{Sx+r+1}, v{Sx+r+1}", n, "e")]
            if r >= 2: V.append((4, f"v_cvt_pk_bf16_f32 v{Px+r//2-1}, v{Sx+r-2}, v{Sx+r-1}", n, r//2 - 1))
        V.append((4, f"v_cvt_pk_bf16_f32 v{Px+7}, v{Sx+14}, v{Sx+15}", n, 7))
    vidx = {(n, k): i for i, (_, _, n, k) in enumerate(V) if k != "e"}
    for sq in seq:
        n, k = sq["slot"], sq["k"]
        dep = -1
        if k is not None and n > lo:
            dep = vidx[(n - 1, 7)] if k in (0, 4, 5) else vidx[(n - 1, 3)] if k in (2, 3) else -1
        sq["dep"] = dep
    pos_att = {(sq["slot"], sq["k"]): g for g, sq in enumerate(seq) if sq["k"] is not None}
    tr = Trace()
    t = valu = pipe = 0
    ig = iv = cnt = 0
    emitted_at = {}; vem_at = {}
    while ig < N or iv < len(V):
        m_ok = ig < N and seq[ig]["dep"] < iv and (seq[ig]["dep"] < 0 or cnt - vem_at[seq[ig]["dep"]] >= 2) and cnt >= 2
        v_ok = False
        if iv < len(V):
            c, txt_, n, k = V[iv]
            v_ok = True
            if n > lo and k == "e":
                g = pos_att[(n - 1, 1)]
                v_ok = g in emitted_at and cnt - emitted_at[g][0] >= 12 and max(t, valu) >= emitted_at[g][1] + 56
            if k != "e" and n >= 2 and n > lo:
                v_ok = pos_att[(n - 1, 3 if k < 4 else 5)] in emitted_at
        now = max(t, valu)
        if m_ok and (pipe <= now or not v_ok):
            s_ = max(now, pipe); t = s_ + 4; valu = s_ + 8; pipe = s_ + seq[ig]["pipe"]
            tr.ins(seq[ig]["text"]); cnt += 1; emitted_at[ig] = (cnt, s_)
            prev = ""
            for x in gaps[ig]:
                tr.items.append(x); cnt += 1
                tx = x["text"] or "s_"
                if tx.startswith("ds_"): t += 4 if prev.startswith("ds_") else 8
                elif tx.startswith("global_"): t += 4 if prev.startswith("global_") else 14
                elif tx.startswith("buffer_"): t += 12
                else: t += 4*(1 + tx.count("\n"))
                prev = tx
            ig += 1
        elif v_ok:
            t = valu = now + c
            tr.ins(txt_); cnt += 1; vem_at[iv] = cnt; iv += 1
        else:
            tr.ins("s_nop 0"); cnt += 1; t += 4
    txt = [x["text"] for x in tr.items if x["text"]]
    for k in range(1, len(txt)):
        if txt[k].startswith("v_cvt") and txt[k-1].startswith("v_exp"):
            d = txt[k-1].split()[1].rstrip(",")
            assert d + "," not in txt[k] + ",", (txt[k-1], txt[k])
    return tr

def gemm_step(sig, extra=(), late=(), vq=None):
    gaps = [[] for _ in range(32)]
    pre = []
    w = w_need(sig, 0); w["needvm"] += [("h", sig, 0)]
    pre.append(w)
    for i in range(1, 4): gaps[i - 1].append(W(vm=[("h", sig, i)]))
    s2 = sig + 2
    for J in range(8):
        if J % 4 == 3 and s2 < NDOWN + 6:
            assert wsrc(s2) == "lds"
            if J == 3: gaps[4*J + 2].append(W(vm=[("wd", s2)]))
            gaps[4*J + 3].extend(w_load(s2, q) for q in range(J - 3, J + 1))
        if J < 7: gaps[4*J + 3].insert(0, w_need(sig, J + 1))
    s3 = sig + 1 + 4
    if sig + 1 >= SF0 and s3 < NDOWN + 6:
        gaps[5].append(x_base(s3))
        for half in range(2):
            m_, d_ = fifo_fill(s3, half)
            G = 9 + 16*half
            gaps[G - 1].append(m_)
            if half == 0: gaps[G].append(W(lg=[("w", sig + 1, 7)]))
            gaps[G].extend(d_)
    for k, grp in enumerate(extra):
        gaps[[4, 20][k]].extend(grp)
    gaps[17].extend(late)
    tr = Trace()
    tr.items.extend(pre)
    for mu in range(32):
        tr.ins(gemm_mfma(sig, mu // 4, mu % 4, False))
        tr.items.extend(gaps[mu])
        n = 0
        while vq and n < 2:
            x = vq.pop(0); tr.items.append(x)
            if not (x["text"] or "s_").startswith("s_") or "\n" in (x["text"] or ""): n += 1
            elif vq and (vq[0]["text"] or "s_").startswith("s_"): n += 1
    return tr
```

```python
import re, sys
def regs(tok):
    tok = tok.strip().rstrip(",")
    tok = tok.lstrip("-").replace("abs(", "").replace(")", "").replace("|", "")
    m = re.fullmatch(r"([vas])(\d+)", tok)
    if m: return {(m.group(1), int(m.group(2)))}
    m = re.fullmatch(r"([vas])\[(\d+):(\d+)\]", tok)
    if m: return {(m.group(1), i) for i in range(int(m.group(2)), int(m.group(3)) + 1)}
    if tok == "vcc": return {("s", 106), ("s", 107)}
    if tok in ("exec", "exec_lo", "exec_hi"): return {("x", 0)}
    if tok == "m0": return {("m", 0)}
    return set()
def parse(l):
    op, _, rest = l.partition(" ")
    ops = [x.strip() for x in re.split(r",\s*(?![^\[]*\])", rest) if x.strip()]
    ops = [o.split(" ")[0] for o in ops]
    R = [regs(o) for o in ops]
    d = dict(op=op, text=l, w=set(), r=set(), kind="other")
    if op.startswith("v_mfma"):
        d.update(kind="mfma", w=R[0], A=R[1] | R[2], C=R[3], r=R[1] | R[2] | R[3], passes=8 if "32x32" in op else 4)
    elif op.startswith("v_cmp"):
        d.update(kind="valu", w=R[0], r=set().union(*R[1:]))
    elif op.startswith(("v_permlane16_swap", "v_permlane32_swap")):
        d.update(kind="perm", w=R[0] | R[1], r=R[0] | R[1])
    elif op.startswith("v_"):
        r = set().union(*R[1:]) if len(R) > 1 else set()
        if op.startswith(("v_fmac", "v_dot2c", "v_writelane")): r |= R[0]
        if op.startswith("v_cndmask") and len(ops) == 4 and ops[3] == "vcc": pass
        d.update(kind="valu", w=R[0], r=r, trans=op.startswith(("v_exp", "v_rcp", "v_log", "v_rsq", "v_sqrt")), dpp="dpp" in op or "row_" in l,
                 rl=op.startswith(("v_readfirstlane", "v_readlane")))
    elif op.startswith("ds_read"): d.update(kind="ds", w=R[0], r=R[1])
    elif op.startswith("ds_write"): d.update(kind="ds", r=R[0] | R[1], data=R[1])
    elif op.startswith(("buffer_load", "global_load")):
        if "lds" in l.split() or "_lds_" in op: d.update(kind="vmem", r=set().union(*R) | {("m", 0)}, lds=True)
        else: d.update(kind="vmem", w=R[0], r=set().union(*R[1:]))
    elif op.startswith(("buffer_store", "buffer_atomic")):
        d.update(kind="vmem", r=set().union(*R), data=R[0], wide="x4" in op or "x3" in op)
    elif op.startswith("global_store"): d.update(kind="vmem", r=set().union(*R), data=R[1])
    elif op.startswith("s_"):
        d.update(kind="salu", w=R[0] if R and not op.startswith(("s_cmp", "s_cbranch", "s_waitcnt", "s_bitcmp")) else set(), r=set().union(*R[1:]) if len(R) > 1 else set())
    return d
def check(path):
    ins = []
    for l in open(path):
        t = l.split(";")[0].strip()
        if not t or t.endswith(":") or t.startswith("."): continue
        ins.append(parse(t))
    bad = 0
    for i, c in enumerate(ins):
        dist = 0
        for j in range(i - 1, max(i - 24, -1), -1):
            p = ins[j]
            if p["op"] in ("s_branch", "s_endpgm", "s_setpc_b64"): break
            need = 0; why = ""
            def hz(n, w_):
                nonlocal need, why
                if n > need: need, why = n, w_
            if p["kind"] == "mfma":
                n_rw = 12 if p["passes"] == 8 else 8
                if c["kind"] in ("valu", "perm") and (p["w"] & (c["r"] | c["w"])): hz(n_rw, "mfma D -> valu")
                if c["kind"] in ("ds", "vmem") and (p["w"] & (c["r"] | c["w"])): hz(n_rw, "mfma D -> mem")
                if c["kind"] == "mfma":
                    if p["w"] & c["A"]: hz(n_rw, "mfma D -> mfma A/B")
                    if p["w"] & c["C"] and not (p["w"] == c["C"] and p["passes"] == c["passes"]): hz(n_rw - 2, "mfma D -> overlapped C")
                if c["kind"] in ("valu", "perm") and (p["C"] & c["w"]): hz(7 if p["passes"] == 8 else 3, "mfma C WAR")
            if p["kind"] in ("valu", "perm"):
                vw = {x for x in p["w"] if x[0] in "va"}; sw = {x for x in p["w"] if x[0] == "s"}
                if c["kind"] == "mfma" and vw & c["r"]: hz(2, "valu -> mfma")
                if c["kind"] == "perm" and vw & c["r"]: hz(2, "valu -> permlane")
                if c.get("dpp") and vw & c["r"]: hz(2, "valu -> dpp")
                if c.get("rl") and vw & c["r"]: hz(1, "valu -> readlane")
                if p.get("trans") and c["kind"] in ("valu", "perm") and not c.get("trans") and vw & c["r"]: hz(1, "trans -> valu")
                if c["kind"] == "vmem" and sw & c["r"]: hz(5, "valu sgpr -> vmem")
                if c["kind"] == "valu" and sw & c["r"]: hz(2, "valu sgpr -> valu const")
                if c["kind"] == "valu" and c["op"].startswith("v_cndmask") and ("s", 106) in sw and "vcc" in c["text"]: hz(2, "vcc -> cndmask")
            if p["kind"] == "salu" and ("m", 0) in p["w"] and c.get("lds"): hz(1, "m0 -> lds dma")
            if p["kind"] == "vmem" and p.get("wide") and c["kind"] in ("valu", "perm") and p["data"] & c["w"]: hz(2, "store data WAR")
            if need > dist:
                print(f"HAZARD {why}: need {need} have {dist}\n    {p['text']}\n    {c['text']}"); bad += 1
            dist += (int(p["text"].split()[1]) + 1) if p["op"] == "s_nop" else 1
    print(path, "instructions", len(ins), "hazards", bad)
if __name__ == "__main__":
    for f in sys.argv[1:]: check(f)
```

```python
from common import *
import p2
from p2 import I, W, adv64
import math, struct

KM = NAME + "_kernel"
LDS_X = 0; LDS_W = 65536
LDS_R = 131072
LDS_QS = LDS_R; LDS_KW = LDS_R + 4096; LDS_T = LDS_R + 16384
KM_LDS = 163840
NST = 16
OOB = 0x7f000000

def accn(j, i): return ("v", 32 + (j*8 + i)*4) if j < 7 else ("a", 128 + i*4)
def acc(j, i):
    p, b = accn(j, i); return vr(b, 4, p)
XF = [0, 64]; WF = [32, 96]
KVW, KVA, A_GX, A_GW, A_T, A_KX, A_DUM = 160, 168, 172, 188, 204, 208, 255
TREG = [196, 200, 204, 224, 228, 232, 236, 240, 244]
V_DQ, V_DX, V_DW = 0, 2, 6
V_RX = [10, 11]
V_RW, V_R3, V_R7, V_RKW, V_T, V_KX, V_LANE = 12, 15, 16, 17, 18, 19, 20
V_GROW, V_L16, V_RT, V_DT, V_DK = 26, 27, 28, 29, 30
S_WQ, S_X, S_G, S_U, S_KV, S_WS, S_GW, S_TSRD, S_WD, S_WO, S_DBG = 4, 8, 12, 16, 20, 24, 28, 32, 52, 76, 72
S_W, S_MT, S_NT, S_OK = 36, 37, 38, 39
S_OX, S_OX2, S_OG, S_OQ, S_TSRCS = 40, 41, 42, 43, 44
S_M0X, S_M0W, S_M0K, S_M0T, S_M0Q = 45, 46, 47, 51, 56
S_TOFF, S_TSTEP, S_TOG = 48, 49, 50
S_TSRC, S_TDST, S_TSRC2, S_TDST2, S_GROW = 3, 94, 95, 100, 101
S_EF = 88
S_TAG = 89
A_TAG = 254
S_FLG = 57

KVD = 1
def dma_group(s, ntw):
    b = s % 2
    g = []
    nt = " nt" if ntw else ""
    for half in range(2):
        so = S_OX if half == 0 else S_OX2
        for j in range(4):
            pre = f"s_add_u32 m0, s{S_M0X}, {b*32768 + half*4096}" if j == 0 else None
            g.append((pre, I(f"buffer_load_dwordx4 v{V_DX+j}, s[{S_X}:{S_X+3}], s{so} offen offset:{j*1024} lds", vm=("st", s))))
    for part in range(2):
        srdn = S_G if part == 0 else S_U
        for j in range(4):
            pre = f"s_add_u32 m0, s{S_M0W}, {b*32768 + part*16384}" if j == 0 else None
            g.append((pre, I(f"buffer_load_dwordx4 v{V_DW+j}, s[{srdn}:{srdn+3}], s{S_OG} offen offset:{j*1024}{nt} lds", vm=("st", s))))
    g.append((f"s_add_u32 m0, s{S_M0Q}, {b*2048}", I(f"buffer_load_dwordx4 v{V_DQ}, s[{S_WQ}:{S_WQ+3}], s{S_OQ} offen{nt} lds", vm=("st", s))))
    adv = {7: [f"s_add_u32 s{S_OX}, s{S_OX}, 128", f"s_add_u32 s{S_OX2}, s{S_OX2}, 128"],
           15: [f"s_add_u32 s{S_OG}, s{S_OG}, {64*7168}"], 16: [f"s_add_u32 s{S_OQ}, s{S_OQ}, 0x20000"]}
    if 1 <= s - KVD <= 8:
        g.append((f"s_add_u32 m0, s{S_M0K}, {b*8192}", I(f"buffer_load_dwordx4 v{V_DK}, s[{S_KV}:{S_KV+3}], s{S_OK} offen lds", vm=("st", s))))
        adv[17] = [f"s_add_u32 s{S_OK}, s{S_OK}, 8192"]
    return g, adv
def xread(s, kk, i):
    return I(f"ds_read_b128 {ar(XF[kk]+4*i,4)}, v{V_RX[kk]} offset:{(s%2)*32768 + i*2048}", lg=("fr", s, kk))
def wread(s, kk, j, h):
    if j % 4 == 3:
        reg, off = (V_R3 if j == 3 else V_R7), h*1024 + kk*8192
    else:
        reg, off = V_RW + (j & 3), (s % 2)*32768 + h*1024 + kk*8192 + (16384 if j >= 4 else 0)
    return I(f"ds_read_b64_tr_b16 {ar(WF[kk]+4*j+2*h,2)}, v{reg} offset:{off}", lg=("fr", s, kk))
def reads(s, kk):
    r = [wread(s, kk, 0, 0), wread(s, kk, 0, 1)] + [xread(s, kk, i) for i in range(8)]
    for j in range(1, 8): r += [wread(s, kk, j, 0), wread(s, kk, j, 1)]
    return r
def mfma(kk, j, i, first=False):
    return f"v_mfma_f32_16x16x32_bf16 {acc(j,i)}, {ar(WF[kk]+4*j,4)}, {ar(XF[kk]+4*i,4)}, {'0' if first else acc(j,i)}"
def vcap(items):
    c = 2
    for x in items:
        t = x["text"] or "s_"
        if t.startswith("ds_"): c -= 1
        elif t.startswith(("buffer_", "global_")): c -= 2
        elif t.startswith("v_"): c -= 1
    return max(c, 0)
from k1 import g_ops as _g_ops
import k1 as _k1
_k1.A_GX, _k1.A_GW = A_GX, A_GW

def gen(dbg=False, hdbg=None, cl=1, gc=(10, 8), dc=8, slack=0, ph2new=True, tp2=False, tb=8, tlb=0, tlbpos=17, tdefer=False, tpro=0, tpos=0, gl=3, pads=0, epos=10, chain_at=1, ot=99, touch=1, nhead=13, p1=13, npro0=8, gs=11, tq0=5, ntw=False, ntt=True, exp='',
        NIN=25, g0=22, hsig=7, hpoll=15, opre=1, nb=(1, 2)):
    esig = KVD + 11
    if tp2:
        tq0 = 100; p2.KVS = {0: (4, 6), 1: (1, 3)}
    p2.configure(NIN)
    p2.CL = cl; p2.GC1, p2.GC2 = gc; p2.DC1 = dc; p2.SLACK = slack
    a = Asm()
    L = f"v{V_LANE}"
    a("s_cmp_ge_u32 s2, 256")
    a("s_cbranch_scc1 KM_END")
    st = Stamps(a, dbg)
    st.stamp()
    a("s_memrealtime s[72:73]")
    a("s_load_dwordx8 s[56:63], s[0:1], 0")
    a("s_load_dwordx8 s[64:71], s[0:1], 48")
    a("s_load_dwordx2 s[74:75], s[0:1], 32")
    a("s_load_dwordx4 s[96:99], s[0:1], 80")
    a("s_load_dwordx2 s[86:87], s[0:1], 96")
    code_prefetch(a, "KM", 32, "a255", 3)
    a(f"""
    v_and_b32 {L}, 63, v0
    v_lshrrev_b32 v1, 6, v0
    s_and_b32 s80, s2, 7
    v_readfirstlane_b32 s{S_W}, v1
    s_lshr_b32 s81, s2, 3
    s_and_b32 s{S_MT}, s81, 7
    s_lshr_b32 s83, s81, 3
    s_lshl_b32 s80, s80, 2
    s_add_u32 s{S_NT}, s80, s83
    s_mul_i32 s85, s{S_NT}, 224
    s_mov_b32 s{S_OG}, 0
    s_mov_b32 s{S_OQ}, 0
    v_lshrrev_b32 v21, 3, {L}
    s_lshl_b32 s81, s{S_MT}, 8
    s_lshl_b32 s82, s{S_W}, 6
    s_add_u32 s81, s81, s82
    v_add_u32 v21, s81, v21
    v_lshlrev_b32 v21, 11, v21
    v_and_b32 v22, 7, {L}
    v_lshrrev_b32 v23, 4, {L}
    v_xor_b32 v22, v22, v23
    v_lshlrev_b32 v22, 4, v22
    v_xor_b32 v24, 64, v22
    """)
    for j in range(4):
        a(f"v_add_u32 v{V_DX+j}, v21, {'v22' if j % 2 == 0 else 'v24'}")
        if j: a(f"v_add_u32 v{V_DX+j}, {j*8*2048 - j*1024}, v{V_DX+j}")
    a(f"""
    s_mov_b32 s{S_OX}, 0
    s_mov_b32 s{S_OX2}, 65536
    s_mov_b32 s{S_OK}, 0
    s_lshl_b32 s81, s{S_W}, 4
    s_movk_i32 s84, 7168
    v_add_u32 v21, s81, v23
    v_mul_lo_u32 v21, v21, s84
    v_add_u32 v21, s85, v21
    v_and_b32 v25, 1, {L}
    v_lshl_add_u32 v21, v25, 4, v21
    v_bfe_u32 v22, {L}, 1, 3
    v_xor_b32 v22, v22, v23
    v_xor_b32 v24, 4, v22
    v_min_u32 v22, 6, v22
    v_min_u32 v24, 6, v24
    v_lshl_add_u32 v{V_DW}, v22, 5, v21
    v_add_u32 v{V_DW+1}, {4*7168 - 1024}, v{V_DW}
    v_lshl_add_u32 v{V_DW+2}, v24, 5, v21
    v_add_u32 v{V_DW+2}, {2*(4*7168 - 1024)}, v{V_DW+2}
    v_add_u32 v{V_DW+3}, {4*7168 - 1024}, v{V_DW+2}
    s_lshl_b32 s{S_M0X}, s{S_W}, 13
    s_lshl_b32 s{S_M0W}, s{S_W}, 12
    s_add_u32 s{S_M0W}, s{S_M0W}, {LDS_W}
    s_lshl_b32 s{S_M0K}, s{S_W}, 10
    s_add_u32 s{S_M0T}, s{S_M0K}, {LDS_T}
    s_add_u32 s{S_M0K}, s{S_M0K}, {LDS_KW}
    s_lshr_b32 s81, s{S_W}, 1
    s_and_b32 s80, s{S_W}, 1
    """)
    a(f"""
    v_lshlrev_b32 v21, 3, v23
    v_bfe_u32 v22, {L}, 2, 2
    v_add_u32 v21, v21, v22
    s_lshl_b32 s82, s81, 5
    s_lshl_b32 s83, s80, 2
    s_add_u32 s82, s82, s83
    v_add_u32 v21, s82, v21
    v_lshlrev_b32 v21, 11, v21
    v_bfe_u32 v22, {L}, 1, 1
    v_bfe_u32 v24, {L}, 4, 1
    v_xor_b32 v22, v22, v24
    v_lshl_add_u32 v21, v22, 5, v21
    v_lshl_add_u32 v21, v25, 4, v21
    s_lshl_b32 s82, s{S_NT}, 6
    v_add_u32 v{V_DQ}, s82, v21
    s_lshl_b32 s90, s81, 13
    s_lshl_b32 s83, s80, 10
    s_add_u32 s90, s90, s83
    s_waitcnt lgkmcnt(0)
    """)
    st.n and None
    a(f"s_or_b32 s{S_TAG}, s72, 1")
    srd(a, S_X, 56, 2048*1024*2)
    srd(a, S_G, 64, 1024*3584*2)
    srd(a, S_U, 66, 1024*3584*2)
    srd(a, S_WQ, 58, 1024*1024*2)
    a(f"s_add_u32 s{S_M0Q}, s90, {LDS_QS}")
    st.stamp()
    pro = Trace()
    def dma_items(s, lo, hi):
        g, adv = dma_group(s, ntw)
        out = []
        for k in range(lo, min(hi, len(g))):
            pre, it = g[k]
            out.append(([I(pre), I("s_nop 0")] if pre else []) + [it] + [I(x) for x in adv.get(k, [])])
        return out
    pc = Asm()
    pc(f"""
    v_lshlrev_b32 v{V_L16}, 4, {L}
    v_and_b32 v21, 15, {L}
    s_lshl_b32 s83, s81, 14
    v_lshlrev_b32 v22, 7, v21
    v_lshrrev_b32 v24, 1, v21
    v_xor_b32 v24, v24, v23
    v_lshl_add_u32 v22, v24, 4, v22
    v_add_u32 v{V_RX[0]}, s83, v22
    v_xor_b32 v{V_RX[1]}, 64, v{V_RX[0]}
    v_bfe_u32 v21, {L}, 2, 2
    v_lshl_add_u32 v22, v23, 3, v21
    v_and_b32 v24, 3, {L}
    v_lshlrev_b32 v24, 3, v24
    v_lshl_add_u32 v{V_RKW}, v22, 5, v24
    s_lshl_b32 s83, s81, 11
    s_add_u32 s83, s83, {LDS_KW}
    v_add_u32 v{V_RKW}, s83, v{V_RKW}
    v_lshl_add_u32 v22, v22, 8, v24
    v_add_u32 v22, {LDS_W}, v22
    v_and_b32 v25, 1, v23
    v_lshl_or_b32 v1, v25, 2, v21
    s_lshl_b32 s82, s80, 2
    """)
    for j in range(4):
        pc(f"s_add_u32 s83, s82, {j}")
        pc(f"v_xor_b32 v{V_T}, s83, v1")
        pc(f"v_lshl_add_u32 v{V_RW+j}, v{V_T}, 5, v22")
    pc(f"""
    v_add_u32 v{V_R7}, 16384, v{V_R3}
    v_lshl_add_u32 v22, v23, 2, v21
    v_lshl_add_u32 v22, v22, 6, v24
    v_lshl_add_u32 v22, v25, 5, v22
    v_add_u32 v22, {LDS_QS}, v22
    v_xor_b32 v1, 32, v22
    s_cmp_eq_u32 s80, 1
    s_cselect_b64 vcc, -1, 0
    s_movk_i32 s{S_TOG}, 2048
    s_cselect_b32 s{S_TOG}, s{S_TOG}, 0x8000
    v_cndmask_b32 v{V_R3}, v{V_R3}, v22, vcc
    v_cndmask_b32 v{V_R7}, v{V_R7}, v1, vcc
    """)
    p = Asm()
    p(f"""
    v_lshrrev_b32 v1, 3, {L}
    v_lshlrev_b32 v1, 11, v1
    v_bfe_u32 v25, {L}, 1, 2
    v_xor_b32 v25, v25, v23
    v_lshl_add_u32 v1, v25, 5, v1
    v_and_b32 v25, 1, {L}
    v_lshl_add_u32 v{V_DT}, v25, 4, v1
    v_lshl_add_u32 v1, v23, 2, v21
    v_bfe_u32 v25, v1, 1, 2
    v_xor_b32 v25, s{S_W}, v25
    v_lshlrev_b32 v1, 7, v1
    v_lshl_add_u32 v1, v25, 5, v1
    v_add_u32 v1, v1, v24
    v_add_u32 v{V_RT}, {LDS_T}, v1
    s_lshr_b32 s82, s2, 4
    s_and_b32 s83, s2, 15
    s_mul_i32 s{S_TSRC}, s82, {224*2048}
    s_lshl_b32 s90, s83, 7
    s_add_u32 s{S_TSRC}, s{S_TSRC}, s90
    s_lshl_b32 s{S_TSRC2}, s82, 17
    s_add_u32 s{S_TSRC2}, s{S_TSRC2}, s90
    s_mul_i32 s90, s80, {112*2048}
    s_add_u32 s{S_TSRCS}, s{S_TSRC}, s90
    s_lshl_b32 s90, s81, 13
    s_add_u32 s{S_TSRCS}, s{S_TSRCS}, s90
    s_add_u32 s{S_TSRCS}, s{S_TSRCS}, {96*2048}
    s_lshl_b32 s90, s{S_W}, 14
    s_add_u32 s{S_TSRC}, s{S_TSRC}, s90
    s_lshl_b32 s90, s80, 15
    s_add_u32 s{S_TSRC2}, s{S_TSRC2}, s90
    s_lshl_b32 s90, s81, 14
    s_add_u32 s{S_TSRC2}, s{S_TSRC2}, s90
    s_lshr_b32 s90, s83, 1
    s_mul_i32 s90, s90, {144*8192}
    s_and_b32 s83, s83, 1
    s_lshl_b32 s83, s83, 12
    s_add_u32 s90, s90, s83
    s_lshl_b32 s83, s{S_W}, 10
    s_add_u32 s90, s90, s83
    s_add_u32 s90, s90, {WS_WT:#x}
    s_mul_i32 s{S_TDST}, s82, {7*8192}
    s_add_u32 s{S_TDST}, s{S_TDST}, s90
    s_lshl_b32 s{S_TDST2}, s82, 14
    s_add_u32 s{S_TDST2}, s{S_TDST2}, s90
    s_add_u32 s{S_TDST2}, s{S_TDST2}, {112*8192}
    s_lshl_b32 s82, s2, 3
    s_lshl_b32 s83, s{S_W}, 1
    s_add_u32 s82, s82, s83
    s_lshl_b32 s{S_GROW}, s82, 11
    v_lshrrev_b32 v1, 5, {L}
    v_add_u32 v{V_GROW}, s82, v1
    v_lshlrev_b32 v{V_GROW}, 3, v{V_GROW}
    v_add_u32 v{V_GROW}, {WS_G:#x}, v{V_GROW}
    s_lshl_b32 s82, s{S_MT}, 2
    s_add_u32 s82, s82, s{S_W}
    s_lshl_b32 s82, s82, 5
    s_add_u32 s82, s82, s{S_NT}
    s_lshl_b32 s82, s82, 7
    s_add_u32 s{S_FLG}, s82, {WS_FLAG:#x}
    """)
    ps = Asm() if tlb else p
    ps(f"""
    s_and_b32 s82, s{S_NT}, 2
    s_cmp_eq_u32 s82, 0
    s_cselect_b32 s{S_KV}, s60, s62
    s_cselect_b32 s{S_KV+1}, s61, s63
    s_and_b32 s{S_KV+1}, s{S_KV+1}, 0xffff
    s_mov_b32 s{S_KV+2}, 65536
    s_mov_b32 s{S_KV+3}, 0x00020000
    """)
    srd(ps, S_WS, 86, WS_SIZE)
    srd(ps, S_GW, 70, 2048)
    srd(ps, S_WD, 68, 3584*1024*2)
    srd(ps, S_WO, 74, 1024*1024*2)
    srd(ps, S_DBG, 98, 256)
    p(f"""
    v_lshrrev_b32 v21, 1, {L}
    v_lshlrev_b32 v21, 6, v21
    v_and_b32 v22, 1, {L}
    v_lshl_add_u32 v21, v22, 4, v21
    s_and_b32 s82, s{S_NT}, 1
    s_lshl_b32 s82, s82, 5
    s_lshl_b32 s83, s{S_W}, 11
    s_add_u32 s82, s82, s83
    v_add_u32 v{V_DK}, s82, v21
    s_lshl_b32 s82, s{S_MT}, 8
    s_lshr_b32 s83, s{S_NT}, 2
    s_lshl_b32 s83, s83, 5
    s_add_u32 s82, s82, s83
    s_lshl_b32 s83, s80, 4
    s_add_u32 s82, s82, s83
    s_lshl_b32 s82, s82, 11
    s_lshl_b32 s83, s81, 7
    s_add_u32 s82, s82, s83
    v_and_b32 v21, 15, {L}
    v_lshlrev_b32 v22, 11, v21
    v_lshl_add_u32 v22, v23, 4, v22
    v_add_u32 v{V_KX}, s82, v22
    """)
    pt = Asm()
    if touch:
        (pt if tpro else p)(f"""
        s_and_b32 s82, s{S_NT}, 3
        s_lshl_b32 s82, s82, 6
        s_lshl_b32 s83, s{S_MT}, 8
        s_add_u32 s82, s82, s83
        v_add_u32 v25, s82, {L}
        v_lshlrev_b32 v25, 11, v25
        s_lshl_b32 s82, s{S_MT}, 3
        v_bfe_u32 v24, {L}, 2, 3
        v_add_u32 v24, s82, v24
        v_lshlrev_b32 v21, 11, v24
        v_mul_lo_u32 v24, v24, s84
        v_and_b32 v1, 3, {L}
        v_lshlrev_b32 v1, 7, v1
        v_min_u32 v1, 220, v1
        v_add3_u32 v24, v24, v1, s85
        s_lshl_b32 s82, s{S_NT}, 6
        v_add_u32 v21, s82, v21
        s_mov_b32 s{S_TSTEP}, {64*7168}
        s_cmp_eq_u32 s{S_W}, 0
        s_cselect_b64 vcc, -1, 0
        s_cselect_b32 s{S_TSRD}, s{S_X}, s{S_G}
        s_cselect_b32 s{S_TSRD+1}, s{S_X+1}, s{S_G+1}
        s_cselect_b32 s{S_TSRD+2}, s{S_X+2}, s{S_G+2}
        s_cselect_b32 s{S_TSTEP}, 128, s{S_TSTEP}
        v_cndmask_b32 v{V_T}, v24, v25, vcc
        s_cmp_eq_u32 s{S_W}, 2
        s_cselect_b32 s{S_TSRD}, s{S_U}, s{S_TSRD}
        s_cselect_b32 s{S_TSRD+1}, s{S_U+1}, s{S_TSRD+1}
        s_cmp_eq_u32 s{S_W}, 3
        s_cselect_b64 vcc, -1, 0
        s_cselect_b32 s{S_TSRD}, s{S_WQ}, s{S_TSRD}
        s_cselect_b32 s{S_TSRD+1}, s{S_WQ+1}, s{S_TSRD+1}
        s_cselect_b32 s{S_TSRD+2}, s{S_WQ+2}, s{S_TSRD+2}
        s_cselect_b32 s{S_TSTEP}, 0x20000, s{S_TSTEP}
        v_cndmask_b32 v{V_T}, v{V_T}, v21, vcc
        s_mov_b32 s{S_TSRD+3}, 0x00020000
        s_mul_i32 s{S_TOFF}, s{S_TSTEP}, {2 if tpro else (touch + 1 if touch >= 2 else touch + 2)}
        """)
    late = []
    for l in [l.strip() for l in p.lines]:
        if late and l.startswith(("s_cselect", "s_addc", "v_cndmask", "s_movk_i32 s50")): late[-1].append(l)
        else: late.append([l])
    late += [[f"v_and_b32 v1, 31, {L}"], ["v_lshlrev_b32 v1, 7, v1"], ["s_lshr_b32 s82, s2, 3"], ["s_and_b32 s82, s82, 15"], ["s_lshl_b32 s82, s82, 12"]]
    d0 = dma_items(0, 0, 17)
    for grp in d0[:tlbpos]: pro.items.extend(grp)
    if tlb:
        for l in ps.lines: pro.ins(l.strip())
        pro.raw(f"""
        s_mov_b32 s80, s96
        s_and_b32 s81, s97, 0xffff
        s_mov_b32 s82, {2048*1024*2:#x}
        s_mov_b32 s83, 0x00020000
        v_lshlrev_b32 v1, {tlb}, {L}
        v_min_u32 v1, 0x7f000000, v1
        """)
        for sr_ in (S_G, S_U, S_WS, S_WD, S_WO, S_KV, S_GW, S_DBG, 80, S_X):
            pro.ins(f"buffer_load_dword a{A_DUM}, v1, s[{sr_}:{sr_+3}], 0 offen")
        pro.raw(f"s_lshr_b32 s81, s{S_W}, 1\ns_and_b32 s80, s{S_W}, 1")
    for grp in d0[tlbpos:]: pro.items.extend(grp)
    for l in pt.lines: pro.ins(l.strip())
    tch = lambda: [I(f"buffer_load_dword a{A_DUM}, v{V_T}, s[{S_TSRD}:{S_TSRD+3}], s{S_TOFF} offen", vm=("touch", 0)), I(f"s_add_u32 s{S_TOFF}, s{S_TOFF}, s{S_TSTEP}")]
    if tpos == 0:
        for _ in range(tpro): pro.items.extend(tch())
    for l in pc.lines: pro.ins(l.strip().replace(f"v{V_T},", "v22x,").replace("v22x", "v19"))
    for grp in dma_items(1, 0, p1): pro.items.extend(grp)
    if tpos == 1:
        for _ in range(tpro): pro.items.extend(tch())
    one_time = [I(f"buffer_load_dword a{A_DUM}, v1, s[{S_KV}:{S_KV+3}], s82 offen"), I(f"buffer_load_dword a{A_DUM}, v1, s[{S_GW}:{S_GW+3}], 0 offen")]
    touch_ins = lambda: I(f"buffer_load_dword a{A_DUM}, v{V_T}, s[{S_TSRD}:{S_TSRD+3}], s{S_TOFF} offen", vm=("touch", 0))
    touch_adv = f"s_add_u32 s{S_TOFF}, s{S_TOFF}, s{S_TSTEP}"
    pro2 = Trace()
    pro2.wait(vm=[("st", 0)])
    pro2.ins("s_barrier")
    pro2.items.extend(reads(0, 0))

    gfast, gslow = _g_ops()
    gslow += ["v_max_f32 v25, 0x2b800000, v25", "v_rcp_f32 v23, v25", "v_mul_f32 v24, v24, v23"]
    GSPLIT = 70
    c_q = struct.unpack("<I", struct.pack("<f", math.log2(math.e) / math.sqrt(32.0)))[0]
    kvfin = [f"v_accvgpr_read_b32 v{21+r}, a{KVA+r}" for r in range(4)]
    for r in range(4): kvfin += [f"v_accvgpr_read_b32 v1, a{KVW+r}", f"v_add_f32 v{21+r}, v{21+r}, v1", f"v_mul_f32 v{21+r}, s84, v{21+r}"]
    kvfin += ["v_cvt_pk_bf16_f32 v22, v21, v22", "v_cvt_pk_bf16_f32 v23, v23, v24",
              f"v_and_b32 v1, 15, {L}", "v_lshlrev_b32 v1, 4, v1", f"v_bfe_u32 v21, {L}, 4, 1", "v_lshl_add_u32 v1, v21, 9, v1",
              f"v_lshrrev_b32 v21, 5, {L}", "v_lshl_add_u32 v1, v21, 3, v1",
              f"buffer_store_dwordx2 v[22:23], v1, s[{S_WS}:{S_WS+3}], s82 offen offset:2048 sc1",
              f"v_bfe_u32 v24, {L}, 3, 1", "v_lshlrev_b32 v24, 10, v24", f"v_bfe_u32 v21, {L}, 2, 1", "v_lshl_add_u32 v24, v21, 9, v24",
              f"v_lshrrev_b32 v21, 4, {L}", "v_lshl_add_u32 v24, v21, 6, v24", f"v_and_b32 v21, 3, {L}", "v_lshl_add_u32 v24, v21, 1, v24",
              f"buffer_store_short v22, v24, s[{S_WS}:{S_WS+3}], s83 offen sc1",
              f"buffer_store_short_d16_hi v22, v24, s[{S_WS}:{S_WS+3}], s83 offen offset:16 sc1",
              f"buffer_store_short v23, v24, s[{S_WS}:{S_WS+3}], s83 offen offset:32 sc1",
              f"buffer_store_short_d16_hi v23, v24, s[{S_WS}:{S_WS+3}], s83 offen offset:48 sc1"]
    kvsal = f"""s_lshl_b32 s82, s{S_MT}, 3
    s_lshr_b32 s83, s{S_NT}, 2
    s_add_u32 s82, s82, s83
    s_lshl_b32 s82, s82, 12
    s_add_u32 s82, s82, {WS_KV:#x}
    s_and_b32 s85, s{S_NT}, 1
    s_lshl_b32 s83, s85, 3
    s_add_u32 s83, s83, s82
    s_lshl_b32 s85, s85, 8
    s_add_u32 s82, s82, s85
    s_lshl_b32 s85, s{S_W}, 10
    s_add_u32 s82, s82, s85
    s_lshl_b32 s85, s{S_W}, 8
    s_add_u32 s83, s83, s85
    s_and_b32 s85, s{S_NT}, 2
    s_cmp_eq_u32 s85, 0
    s_cselect_b32 s84, {c_q:#x}, 1.0
    s_cselect_b32 s82, {OOB:#x}, s82
    s_cselect_b32 s83, s83, {OOB:#x}
    s_cmp_ge_u32 s{S_W}, 2
    s_cselect_b32 s82, {OOB:#x}, s82
    s_cselect_b32 s83, {OOB:#x}, s83""".split("\n")
    kvsal = [x.strip() for x in kvsal]
    kvsal = kvsal[:-7] + ["\n".join(kvsal[-7:-3]), "\n".join(kvsal[-3:])]
    segs = []
    grest = []
    def tstore(q):
        so = S_TDST if q < 7 else S_TDST2
        return [I(f"buffer_store_dwordx4 {ar(TREG[q] if tdefer else A_T,4)}, v{p2.V_L16 if tdefer else V_L16}, s[{S_WS}:{S_WS+3}], s{so} offen sc1", vm=("ts", q)), I(f"s_add_u32 s{so}, s{so}, 8192")]
    for s in range(NST - 1):
        tr = Trace()
        gaps = [[] for _ in range(66)]
        rl = reads(s, 1)
        u = s - KVD
        if 1 <= u <= 8:
            for e in range(2):
                for h in range(2):
                    rl.append(I(f"ds_read_b64_tr_b16 {ar(KVW+4*e+2*h,2)}, v{V_RKW} offset:{(s%2)*8192 + e*1024 + h*128}", lg=("kvf", s)))
        if u == 9:
            gaps[1].append(I(f"v_add_u32 v21, {LDS_KW + 8192*(s%2)}, v{V_L16}"))
            gaps[3].append(I(f"s_lshl_b32 s82, s{S_W}, 10")); gaps[5].append(I("v_add_u32 v22, s82, v21"))
            gaps[7].append(I("s_xor_b32 s82, s82, 2048")); gaps[9].append(I("v_add_u32 v21, s82, v21"))
            rl.append(I(f"ds_write_b128 v22, {ar(KVA,4)}", lg=("kvf", s)))
        for k, it in enumerate(rl): gaps[2*k].append(it)
        gaps[57].append(I(f"v_xor_b32 v{V_R3}, s{S_TOG}, v{V_R3}")); gaps[59].append(I(f"v_xor_b32 v{V_R7}, s{S_TOG}, v{V_R7}"))
        g, adv = dma_group(s + 1, ntw)
        lo = p1 if s == 0 else nhead
        G = 11 if u == 9 else 1
        for k in range(lo, len(g)):
            pre, it = g[k]
            if pre: gaps[G - 1].append(I(pre))
            gaps[G].append(it)
            for x in adv.get(k, []): gaps[G + 1].append(I(x))
            G += 4
        G = max(G - 2, 3)
        if touch and (s >= 1 or tpro) and s + touch + 1 < NST and not (tpro and s + touch + 1 < 2 + tpro):
            for _ in range(2 if (s == 1 and touch >= 2 and not tpro) else 1):
                gaps[G].append(touch_ins()); gaps[G + 1].append(I(touch_adv)); G += 2
        if 0 <= u <= 7:
            for e in range(2):
                gaps[G].append(I(f"buffer_load_dwordx4 {ar(A_KX + 8*(u%2) + 4*e,4)}, v{V_KX}, s[{S_X}:{S_X+3}], 0 offen offset:{u*256 + e*64}", vm=("kx", u))); G += 2
        q = s - tq0
        if 0 <= q < 9:
            fl = " nt" if ntt else ""
            gaps[G - 1].append(I(f"s_add_u32 m0, s{S_M0T}, {(q%3)*4096}"))
            if q == 6:
                gaps[G - 2].append(I(f"v_lshrrev_b32 v{V_KX}, 5, {L}")); gaps[G - 1].append(I(f"v_lshl_add_u32 v{V_KX}, v{V_KX}, 13, v{V_DT}"))
                gaps[G].append(I(f"buffer_load_dwordx4 v{V_KX}, s[{S_WD}:{S_WD+3}], s{S_TSRCS} offen{fl} lds", vm=("t", q)))
            else:
                srdn, so = (S_WD, S_TSRC) if q < 7 else (S_WO, S_TSRC2)
                gaps[G].append(I(f"buffer_load_dwordx4 v{V_DT}, s[{srdn}:{srdn+3}], s{so} offen{fl} lds", vm=("t", q)))
                gaps[G + 1].append(I(f"s_add_u32 s{so}, s{so}, {48*2048 if q == 2 else 0x10000}"))
            G += 2
        q = s - tq0 - 2
        if 0 <= q < 9 and not tdefer:
            x, y = tstore(q); gaps[G].append(x); gaps[G + 1].append(y); G += 2
        if s == ot:
            for x in one_time: gaps[G].append(x); G += 2
        if s == 2:
            gaps[G - 1].append(I(f"v_mov_b32 v21, s{S_TAG}"))
            gaps[G].append(I(f"s_or_b32 s83, s2, s{S_W}\ns_cselect_b32 s83, {OOB:#x}, 0")); G += 2
            gaps[G].extend([I("s_mov_b64 exec, 1"), I(f"buffer_store_dword v21, off, s[{S_DBG}:{S_DBG+3}], s83 sc1"), I("s_mov_b64 exec, -1")]); G += 2
        if s == 6:
            gaps[G].append(I(f"buffer_load_dword a{A_TAG}, off, s[{S_DBG}:{S_DBG+3}], 0 sc1", vm=("zp", 0))); G += 2
        if s == esig + 1:
            gaps[G - 2].append(I(f"s_lshl_b32 s82, s{S_MT}, 5")); gaps[G - 1].append(I(f"s_add_u32 s82, s82, s{S_NT}\ns_lshl_b32 s82, s82, 7")); gaps[G].append(I(f"s_add_u32 s82, s82, {WS_FLAG + 0x28000:#x}"))
            gaps[G + 1].append(I(f"s_cmp_eq_u32 s{S_W}, 0\ns_cselect_b32 s82, s82, {OOB:#x}")); G += 2
            gaps[G].extend([I("s_mov_b64 exec, 1"), I(f"buffer_store_dword a{A_TAG}, off, s[{S_WS}:{S_WS+3}], s82 sc1"), I("s_mov_b64 exec, -1")]); G += 2
        kvstart = G
        if s == gl:
            for q_ in range(4):
                gaps[G].append(I(f"buffer_load_dwordx4 {ar(A_GX+4*q_,4)}, v{V_L16}, s[{S_X}:{S_X+3}], s{S_GROW} offen offset:{1024*q_}", vm=("g", 0))); G += 2
            for q_ in range(2):
                gaps[G].append(I(f"buffer_load_dwordx4 {ar(A_GW+4*q_,4)}, v{V_L16}, s[{S_GW}:{S_GW+3}], 0 offen offset:{1024*q_}", vm=("g", 0))); G += 2
        assert G < 64, (s, G)
        tr.wait(lg=[("fr", s, 0)] + ([("tf", q)] if 0 <= q < 9 else []) + ([("kvp", 0)] if u == 10 else []))
        vq = []
        if s in (gs + 2, gs + 3): vq = gfast
        if u == 10: vq = list(kvfin)
        k = 0
        for j in range(8):
            for i in range(8):
                tr.ins(mfma(0, j, i, first=(s == 0)))
                tr.items.extend(gaps[k])
                cap = vcap(gaps[k])
                if s == 0:
                    for _ in range(2):
                        if late and cap > 0:
                            for l in late.pop(0): tr.ins(l)
                            cap -= 1
                while vq and cap > 0 and not (u == 10 and k < kvstart - 8):
                    if vq[0].startswith("buffer_"):
                        if cap < 2: break
                        tr.ins(vq.pop(0), vm=("kvst", 0)); cap -= 2
                    else:
                        tr.ins(vq.pop(0)); cap -= 1
                k += 1
        if s != gs + 2: assert not vq
        need = [("st", s + 1)]
        if 0 <= s - tq0 - 1 < 9: need.append(("t", s - tq0 - 1))
        if s == gs + 1: need.append(("g", 0))
        if 1 <= u <= 8: need.append(("kx", u - 1))
        if s == 7: need.append(("zp", 0))
        if s == esig: need.append(("kvst", 0))
        if pads and s == chain_at: tr.ins("@CHAIN1")
        tr.wait(vm=need, lg=[("fr", s, 1)] + ([("kvf", s)] if 1 <= u <= 9 else []))
        tr.ins("s_barrier")
        segs.append(tr)
        tr = Trace()
        gaps = [[] for _ in range(68)]
        for k, it in enumerate(reads(s + 1, 0)): gaps[2*k + 1].append(it)
        q = s - tq0 - 1
        if 0 <= q < 9:
            for h in range(2):
                gaps[49 + 2*h].append(I(f"ds_read_b64_tr_b16 {ar((TREG[q] if tdefer else A_T)+2*h,2)}, v{V_RT} offset:{(q%3)*4096 + h*2048}", lg=("tf", q)))
        if u == 9:
            gaps[53].append(I(f"ds_read_b128 {ar(KVW,4)}, v21", lg=("kvp", 0)))
            for k, x in enumerate(kvsal): gaps[2*k + 3 if 2*k + 3 < 48 else 55].append(I(x.strip()))
        if s + 2 < NST:
            g, adv = dma_group(s + 2, ntw)
            hg = [2*round(k*62/(2*nhead)) for k in range(nhead)]
            for k in range(nhead):
                pre, it = g[k]
                if pre:
                    if hg[k]: gaps[hg[k] - 1].insert(0, I(pre))
                    else: tr.ins(pre)
                gaps[hg[k]].append(it)
                for x in adv.get(k, []): gaps[hg[k] + 2].append(I(x))
        if s == 7:
            gaps[54].append(I(f"v_accvgpr_read_b32 v1, a{A_TAG}"))
            gaps[56].append(I(f"v_cmp_eq_u32 vcc, 0, v1")); gaps[58].append(I("s_cbranch_vccnz KM_ZSPIN\nKM_ZBACK:"))
            gaps[60].append(I(f"v_accvgpr_write_b32 a{A_TAG}, v1")); gaps[62].append(I(f"v_readfirstlane_b32 s{S_TAG}, v1"))
        if s == 14:
            gaps[0].append(I(f"v_lshlrev_b32 v{V_T}, 7, {L}"))
            gaps[2].append(I(f"s_mov_b32 s{S_EF}, {WS_FLAG + 0x28000:#x}"))
            gaps[epos].append(I(f"buffer_load_dword v{V_KX}, v{V_T}, s[{S_WS}:{S_WS+3}], s{S_EF} offen sc1", vm=("ep", 0)))
            if pads:
                gaps[50].append(I("s_getpc_b64 s[32:33]\nKM_PC2:\ns_add_u32 s32, s32, KM_NORM-0x4000-KM_PC2\ns_addc_u32 s33, s33, 0"))
                gaps[52].append(I("s_and_b32 s33, s33, 0xffff")); gaps[53].append(I("s_mov_b32 s34, KM_END-KM_NORM+0x4000"))
                gaps[54].append(I("s_mov_b32 s35, 0x00020000")); gaps[55].append(I(f"s_lshl_b32 s82, s{S_W}, 13"))
                gaps[56].append(I(f"buffer_load_dword a{A_DUM}, v{V_T}, s[32:35], s82 offen"))
        vq = []; slow = []; slow_from = None
        if s in (gs + 1, gs + 2): vq = gfast
        if s == gs + 3: slow = list(gslow)
        ml = [mfma(1, j, i) for j in range(8) for i in range(8)]
        if 1 <= u <= 8:
            for e in range(2):
                ml.insert(30 + 20*e, f"v_mfma_f32_16x16x32_bf16 {ar(KVA,4)}, {ar(A_KX + 8*((u-1)%2) + 4*e,4)}, {ar(KVW+4*e,4)}, {'0' if (u == 1 and e == 0) else ar(KVA,4)}")
        for k, m in enumerate(ml):
            tr.ins(m)
            tr.items.extend(gaps[k])
            for _ in range(vcap(gaps[k])):
                if vq: tr.ins(vq.pop(0))
                elif s == 0 and late:
                    for l in late.pop(0): tr.ins(l)
            if slow and not vq:
                if slow_from is None: slow_from = k + 2
                if k >= slow_from and (k - slow_from) % 2 == 0: tr.ins(slow.pop(0))
        for k in range(len(ml), 68): assert not gaps[k], (s, k)
        assert not slow and not late
        segs.append(tr)

    P = p2
    ec = Trace()
    ec.wait(vm=[("ep", 0)])
    ec.raw(f"""
    v_cmp_ne_u32 vcc, s{S_TAG}, v{V_KX}
    s_and_b32 s80, s2, 7
    s_lshr_b32 s81, s80, 1
    s_lshl_b32 s{P.S_MT}, s{S_MT}, 2
    s_cbranch_vccnz KM_ESPIN
    KM_EBACK:
    s_add_u32 s{P.S_MT}, s{P.S_MT}, s81
    s_lshl_b32 s{P.S_M0KV}, s{S_W}, 13
    s_add_u32 s82, s{P.S_M0KV}, {WS_KV:#x}
    s_add_u32 s{P.S_KVB}, s86, s82
    s_addc_u32 s{P.S_KVB+1}, s87, 0
    v_add_u32 v{V_DK}, 4096, v{V_L16}
    """)
    su2 = f"""
    s_and_b32 s80, s80, 1
    s_lshl_b32 s80, s80, 2
    s_and_b32 s90, s{S_NT}, 3
    s_add_u32 s{P.S_NT}, s80, s90
    s_lshr_b32 s90, s{P.S_MT}, 1
    s_mul_i32 s90, s90, 112
    s_mul_i32 s91, s{S_W}, 28
    s_add_u32 s90, s90, s91
    s_lshl_b32 s90, s90, 13
    s_and_b32 s42, s{P.S_MT}, 1
    s_lshl_b32 s42, s42, 12
    s_add_u32 s90, s90, s42
    s_add_u32 s58, s86, s90\ns_addc_u32 s59, s87, 0
    s_add_u32 s60, s58, 0x2000\ns_addc_u32 s61, s59, 0
    s_add_u32 s62, s58, 0x4000\ns_addc_u32 s63, s59, 0
    s_mov_b64 s[{P.S_HB}:{P.S_HB+1}], s[62:63]
    s_mul_i32 s90, s{P.S_NT}, 144
    s_add_u32 s91, s91, s90
    s_lshl_b32 s91, s91, 13
    s_add_u32 s91, s91, {WS_WT:#x}
    s_add_u32 s64, s86, s91\ns_addc_u32 s65, s87, 0
    s_add_u32 s66, s64, 0x2000\ns_addc_u32 s67, s65, 0
    s_add_u32 s68, s64, 0x4000\ns_addc_u32 s69, s65, 0
    s_mov_b64 s[{P.S_WB}:{P.S_WB+1}], s[68:69]
    s_lshl_b32 s91, s{S_W}, 3
    s_add_u32 s90, s90, s91
    s_lshl_b32 s90, s90, 13
    s_add_u32 s90, s90, {WS_WT + 112*8192:#x}
    s_add_u32 s{P.S_WOB}, s86, s90\ns_addc_u32 s{P.S_WOB+1}, s87, 0
    s_mul_i32 s{P.S_M0SP}, s{S_W}, 24576
    s_add_u32 s{P.S_M0SP}, s{P.S_M0SP}, {P.LDS_SP}
    s_mov_b32 s{P.S_OUT}, s96
    s_and_b32 s{P.S_OUT+1}, s97, 0xffff
    s_mov_b32 s{P.S_OUT+2}, {2048*1024*2:#x}
    s_mov_b32 s{P.S_OUT+3}, 0x00020000
    s_mov_b32 s{P.S_OF}, s{S_FLG}
    s_lshl_b32 s90, s{P.S_MT}, 12
    s_add_u32 s{P.S_OP}, s90, {WS_FLAG:#x}
    s_lshl_b32 s90, s{S_W}, 13
    s_add_u32 s{P.S_HP}, s90, {WS_FLAG + 0x20000:#x}
    s_lshl_b32 s90, s2, 7
    s_add_u32 s90, s90, {WS_FLAG + 0x20000:#x}
    s_cmp_eq_u32 s{S_W}, 0\ns_cselect_b32 s{P.S_HF}, s90, {OOB:#x}
    """
    su2 = [x.strip() for x in su2.strip().split("\n    ")]

    def last_stage(wn):
        tr = Trace()
        s = NST - 1
        su = f"""
        s_lshr_b32 s81, s{S_W}, 1
        s_lshl_b32 s82, s{S_MT}, 1
        s_add_u32 s82, s82, s81
        s_mul_i32 s82, s82, 112
        s_lshr_b32 s83, s{S_NT}, 1
        s_mul_i32 s83, s83, 7
        s_add_u32 s82, s82, s83
        s_and_b32 s84, s{S_NT}, 1
        s_add_u32 s85, s82, 6
        s_lshl_b32 s85, s85, 13
        s_mul_i32 s83, s84, 3
        s_add_u32 s82, s82, s83
        s_add_u32 s82, s82, {2*wn}
        s_lshl_b32 s82, s82, 13
        s_add_u32 s83, s82, 8192
        """
        if wn:
            su += f"""
            s_lshl_b32 s84, s84, 9
            s_add_u32 s85, s85, s84
            v_and_b32 v21, 15, {L}
            v_lshlrev_b32 v21, 4, v21
            v_bfe_u32 v24, {L}, 4, 1
            v_lshl_add_u32 v22, v24, 9, v21
            v_lshl_add_u32 v21, v24, 10, v21
            v_lshrrev_b32 v24, 5, {L}
            v_lshl_add_u32 v22, v24, 10, v22
            v_lshl_add_u32 v21, v24, 8, v21
            s_lshl_b32 s81, s81, 13
            s_add_u32 s81, s81, {P.LDS_Q}
            v_add_u32 v22, s81, v22
            v_add_u32 v23, 4096, v21
            """
        setup = [l.strip() for l in su.strip().split("\n") if l.strip()] + su2
        ffn = lambda t, i: dict(kind="f", t=t, i=i, mf=[(2*t, i), (4 + 2*t, i), (2*t + 1, i), (5 + 2*t, i)])
        if wn == 0:
            halves = [[ffn(0, i) for i in range(8)], [ffn(1, i) for i in range(8)]]
        else:
            halves = [[dict(kind="q", i=i, mf=[(3, i), (7, i)]) for i in range(8)] +
                      [dict(kind="s", i=i, mf=[(2, i), (6, i), (2, i + 1), (6, i + 1)]) for i in range(0, 8, 2)],
                      [ffn(0, i) for i in range(8)]]
        pieces = halves[0] + halves[1]
        half = len(halves[0])
        jsets = [sorted(set(j for pc in hv for j, _ in pc["mf"])) for hv in halves]
        def piece_ops(pc, pk):
            o = []
            i = pc["i"]
            tmp = 12 + 4*(i % 2)
            def reg(j, i):
                p_, b = accn(j, i)
                if p_ == "v": return b
                for r in range(4): o.append(f"v_accvgpr_read_b32 v{tmp+r}, a{b+r}")
                return tmp
            r_ = [reg(j, i_) for j, i_ in pc["mf"]]
            if pc["kind"] == "q":
                g0_, g1_ = r_
            else:
                g0_, u0, g1_, u1 = r_
                for g_, u_ in ((g0_, u0), (g1_, u1)):
                    for r in range(4): o.append(f"v_max_f32 v{g_+r}, 0, v{g_+r}")
                    if pk:
                        o.append(f"v_pk_mul_f32 {vr(g_,2)}, {vr(g_,2)}, {vr(u_,2)}")
                        o.append(f"v_pk_mul_f32 {vr(g_+2,2)}, {vr(g_+2,2)}, {vr(u_+2,2)}")
                    else:
                        for r in range(4): o.append(f"v_mul_f32 v{g_+r}, v{g_+r}, v{u_+r}")
            o += [f"v_cvt_pk_bf16_f32 v{g0_}, v{g0_}, v{g0_+1}", f"v_cvt_pk_bf16_f32 v{g0_+1}, v{g0_+2}, v{g0_+3}",
                  f"v_cvt_pk_bf16_f32 v{g0_+2}, v{g1_}, v{g1_+1}", f"v_cvt_pk_bf16_f32 v{g0_+3}, v{g1_+2}, v{g1_+3}"]
            if pc["kind"] == "q":
                o.append(f"ds_write_b128 v22, {vr(g0_,4)} offset:{(i//2)*2048 + (i%2)*256}")
            elif pc["kind"] == "s":
                o += ["s_nop 1", f"v_permlane16_swap_b32 v{g0_}, v{g0_+2}", f"v_permlane16_swap_b32 v{g0_+1}, v{g0_+3}",
                      f"buffer_store_dwordx4 {vr(g0_,4)}, {'v21' if i < 4 else 'v23'}, s[{S_WS}:{S_WS+3}], s85 offen offset:{(i%4)*1024} sc1"]
            else:
                o.append(f"buffer_store_dwordx4 {vr(g0_,4)}, {'v%d' % (V_L16 if i < 4 else V_DK)}, s[{S_WS}:{S_WS+3}], {'s82' if pc['t'] == 0 else 's83'} offen offset:{(i%4)*1024} sc1")
            return o
        rl = [xread(s, 1, i) for i in range(8)]
        for j in jsets[0]: rl += [wread(s, 1, j, 0), wread(s, 1, j, 1)]
        for x in rl: x["lg"] = ("frA", 0)
        for j in jsets[1]: rl += [wread(s, 1, j, 0), wread(s, 1, j, 1)]
        kv0 = []
        for part in range(2):
            cl = [P.kv_dma(0, part, j) for j in range(4)]
            for x in cl: x["text"] = x["text"].replace(f"v{P.V_L16},", f"v{V_L16},").replace(f"v{P.V_L16B},", f"v{V_DK},")
            kv0.append(cl)
        q = s - tq0 - 2
        tr.wait(lg=[("fr", s, 0)] + ([("tf", q)] if 0 <= q < 9 else []))
        first = []
        if gs + 4 == s:
            first.append([I("s_mov_b32 exec_lo, 1\ns_mov_b32 exec_hi, 1"), I(f"buffer_store_dwordx2 v[24:25], v{V_GROW}, s[{S_WS}:{S_WS+3}], 0 offen sc1", vm=("hst", 0)), I("s_mov_b64 exec, -1")])
        if 0 <= q < 9 and not tdefer: first.append([tstore(q)[0]])
        for k, (j, i) in enumerate([(j, i) for j in jsets[0] for i in range(8)]):
            tr.ins(mfma(0, j, i))
            if first:
                tr.items.extend(first.pop(0)); continue
            if k in (26, 29): tr.ins(f"s_add_u32 m0, s{P.S_M0KV}, {4096 if k == 29 else 0}")
            elif k in (27, 30): tr.items.extend(kv0.pop(0))
            elif rl: tr.items.append(rl.pop(0))
            for _ in range(2):
                if setup: tr.ins(setup.pop(0))
        assert not rl
        tr.items.extend(adv64(P.S_KVB, 32768))
        for x in setup: tr.ins(x)
        tr.wait(lg=[("frA", 0)])
        ml = []
        for pi, pc in enumerate(pieces):
            if pi == half:
                ml.append((W(lg=[("fr", s, 1)]), None))
                ml += [(mfma(0, j, i), None) for j in jsets[1] for i in range(8)]
            for j, i in pc["mf"]: ml.append((mfma(1, j, i), pi))
        done_at = {}; cnt = 0; vq = []; nextp = 0
        def put(x):
            tr.ins(x, vm=("hst", 0) if x.startswith("buffer_") else None, lg=("qw", 0) if x.startswith("ds_") else None)
        for k, (m, pi) in enumerate(ml):
            if isinstance(m, dict):
                tr.items.append(m); continue
            tr.ins(m); cnt += 1
            if pi is not None and (k + 1 == len(ml) or ml[k + 1][1] != pi): done_at[pi] = cnt
            budget = 2
            while budget > 0:
                if not vq and nextp in done_at and cnt - done_at[nextp] >= 9:
                    vq = piece_ops(pieces[nextp], False); nextp += 1
                if not vq: break
                c_ = 2 if vq[0].startswith(("buffer_", "ds_")) else 1
                if c_ > budget: break
                put(vq.pop(0)); cnt += 1; budget -= c_
        for x in vq: put(x); cnt += 1
        while nextp < len(pieces):
            if cnt - done_at[nextp] < 9: tr.ins("s_nop 7"); cnt += 8
            for x in piece_ops(pieces[nextp], True): put(x); cnt += 1
            nextp += 1
        return tr
    l0, l1 = last_stage(0), last_stage(1)

    L2 = f"v{P.V_LANE}"
    h2 = Trace()
    h2.raw(f"""
    v_mov_b32 {L2}, {L}
    v_mov_b32 v{P.V_L16}, v{V_L16}
    v_mov_b32 v{P.V_L16B}, v{V_DK}
    v_mov_b32 v{P.V_KVR}, v{V_L16}
    s_lshl_b32 s80, s{S_W}, 12
    s_add_u32 s80, s80, {P.LDS_Q}
    v_add_u32 v24, s80, v{V_L16}
    """)
    h2.wait(vm=[("kv", 0)])
    h2.raw("s_waitcnt lgkmcnt(0)\ns_barrier")
    for q in range(4): h2.ins(f"ds_read_b128 {ar(P.A_Q + 4*q,4)}, v24 offset:{q*1024}", lg=("q", 0))
    for half in range(2): h2.items.append(P.k_read(0, half))
    for half in range(2): h2.items.append(P.v_read(0, half))
    for pp in range(4):
        h2.raw(f"""
        s_add_u32 s80, s{S_W}, {pp}
        s_and_b32 s80, s80, 3
        s_lshl_b32 s80, s80, 11
        v_add_u32 v{P.V_W+pp}, s80, v{P.V_L16}
        """)
    h2.wait(lg=[("k", 0)])
    h2.ins(P.qk(0, 0)); h2.ins(P.qk(0, 1))
    h2.raw(f"""
    v_add_u32 v{P.V_SP}, s{P.S_M0SP}, v{P.V_L16}
    v_add_u32 v{P.V_KP}, s{P.S_M0KV}, v{P.V_L16}
    v_add_u32 v{P.V_WB}, 2048, v{P.V_W}
    v_add_u32 v{P.V_WB+1}, 2048, v{P.V_W+2}
    s_nop 3
    """)
    h2.raw(f"""
    v_bfe_u32 v26, {L2}, 4, 1
    v_bfe_u32 v27, {L2}, 2, 1
    v_cmp_eq_u32 vcc, v26, v27
    v_mov_b32 v26, 0x3f803f80
    s_lshl_b32 s40, s{P.S_MT}, 9
    s_add_u32 s40, s40, {WS_G:#x}
    v_cndmask_b32 v26, 0, v26, vcc
    """)
    for r in range(4): h2.ins(f"v_accvgpr_write_b32 a{P.A_SEL+r}, v26")
    h2.raw(f"""
    s_lshl_b32 s41, s{S_MT}, 11
    s_lshl_b32 s80, s{S_W}, 9
    s_add_u32 s41, s41, s80
    s_add_u32 s41, s41, {WS_G:#x}
    v_and_b32 v26, 31, {L2}
    v_lshlrev_b32 v26, 3, v26
    v_and_b32 v27, 15, {L2}
    v_lshlrev_b32 v27, 3, v27
    v_lshlrev_b32 v25, 7, {L2}
    v_mov_b32 v24, s{S_TAG}
    """)
    def rebase(x, frm, to):
        x["text"] = x["text"].replace(f"s[{frm}:{frm+1}]", f"s[{to}:{to+1}]"); return x
    wl = lambda sg, J0, b: [rebase(P.w_load(sg, J), P.S_WB, b) for J in range(J0, J0 + 4)]
    hl = lambda sg, b: [rebase(P.h_load(sg, i), P.S_HB, b) for i in range(4)]
    early = []
    timed = [(1 + q // 3, tstore(q)) for q in range(9)] if tdefer else []
    if tp2:
        LT2 = 81920
        h2.raw(f"""
        v_lshrrev_b32 v17, 5, {L2}
        v_lshl_add_u32 v17, v17, 13, v{V_DT}
        v_add_u32 v{V_RT}, {LT2 - LDS_T}, v{V_RT}
        s_add_u32 s{S_M0T}, s{S_M0T}, {LT2 - LDS_T}
        """)
        fl = " nt" if ntt else ""
        for q in range(9):
            it_ = [I(f"s_add_u32 m0, s{S_M0T}, {q*4096}"), I("s_nop 0")]
            if q == 6: it_.append(I(f"buffer_load_dwordx4 v17, s[{S_WD}:{S_WD+3}], s{S_TSRCS} offen{fl} lds", vm=("t", q)))
            else:
                srdn, so = (S_WD, S_TSRC) if q < 7 else (S_WO, S_TSRC2)
                it_ += [I(f"buffer_load_dwordx4 v{V_DT}, s[{srdn}:{srdn+3}], s{so} offen{fl} lds", vm=("t", q)), I(f"s_add_u32 s{so}, s{so}, {48*2048 if q == 2 else 0x10000}")]
            timed.append((1 + q // 3, it_))
        timed.append((tb, [W(vm=[("t", 8)]), I("s_barrier")]))
        for q in range(9):
            timed.append((tb + q // 3, [I(f"ds_read_b64_tr_b16 {ar(P.A_WR + 4*q + 2*h,2)}, v{V_RT} offset:{q*4096 + h*2048}", lg=("tf", q)) for h in range(2)]))
        for q in range(9):
            so = S_TDST if q < 7 else S_TDST2
            timed.append((tb + 3 + q // 3, [W(lg=[("tf", q)]), I(f"buffer_store_dwordx4 {ar(P.A_WR + 4*q,4)}, v{P.V_L16}, s[{S_WS}:{S_WS+3}], s{so} offen sc1", vm=("ts", q)), I(f"s_add_u32 s{so}, s{so}, 8192")]))
    timed += [(hsig, [W(vm=[("hst", 0), ("ts", 8)]), I("s_barrier"), I("s_mov_b64 exec, 1"), I(f"buffer_store_dword v24, off, s[{S_WS}:{S_WS+3}], s{P.S_HF} sc1"), I("s_mov_b64 exec, -1")]),
             (hpoll, [I(f"buffer_load_dword v28, v25, s[{S_WS}:{S_WS+3}], s{P.S_HP} offen sc1", vm=("hp", 0))]),
             (hpoll + 2, [W(vm=[("hp", 0)]), I(f"v_cmp_ne_u32 vcc, s{S_TAG}, v28"), I("s_nop 0"), I("s_cbranch_vccnz KM_HSPIN"), I("KM_HBACK:"), I("s_barrier")] + hl(0, 58)),
             (hpoll + 2, wl(0, 0, 64)), (hpoll + 3, wl(0, 4, 64)), (hpoll + 3, hl(1, 60)), (hpoll + 4, wl(1, 0, 66)), (hpoll + 4, wl(1, 4, 66)),
             (hpoll + 5, wl(2, 0, 68)), (hpoll + 5, hl(2, 62)),
             (hpoll + 12, [I(f"buffer_load_dword v{P.V_G+hh}, v26, s[{S_WS}:{S_WS+3}], s41 offen offset:{hh*256} sc1", vm=("g2", 0)) for hh in range(2)]),
             (hpoll + 14, [I(f"buffer_load_dword v{P.V_OMG+i}, v27, s[{S_WS}:{S_WS+3}], s40 offen offset:{4 + i*128} sc1", vm=("g2", 0)) for i in range(4)])]
    body = P.main_loop(NIN, g0, early, timed)
    NDOWN, NWO, ACC = P.NDOWN, P.NWO, P.ACC
    t1 = Trace()
    n = P.NSLOT - 1
    t1.ins("s_nop 1")
    t1.ins(P.pv(n, 0)); t1.ins(P.summ(n, 0)); t1.ins(P.pv(n, 1)); t1.ins(P.summ(n, 1))
    VO = P.V_O
    q_ = Trace()
    q_.raw(f"""
    v_bfe_u32 v26, {L2}, 4, 1
    s_lshl_b32 s78, s{S_MT}, 1
    v_lshlrev_b32 v26, 10, v26
    s_lshr_b32 s79, s{S_W}, 1
    v_and_b32 v27, 15, {L2}
    s_add_u32 s78, s78, s79
    v_lshl_add_u32 v26, v27, 4, v26
    s_lshl_b32 s78, s78, 5
    v_lshrrev_b32 v27, 5, {L2}
    s_add_u32 s78, s78, s{S_NT}
    v_lshl_add_u32 v26, v27, 8, v26
    s_lshl_b32 s78, s78, 13
    s_and_b32 s79, s{S_W}, 1
    s_lshl_b32 s79, s79, 12
    s_add_u32 s78, s78, s79
    s_add_u32 s54, s78, {WS_O:#x}
    s_mov_b32 s78, 0x1f800000
    s_mov_b32 s79, 0x5f800000
    s_mov_b32 s55, 0
    v_accvgpr_read_b32 v80, a{P.A_L}
    v_accvgpr_read_b32 v81, a{P.A_L+4}
    """)
    q_.wait(vm=[("g2", 0)])
    q_.raw(f"""
    v_min_f32 v83, v80, v81
    v_max_f32 v84, v80, v81
    v_add_f32 v85, v80, v81
    v_cmp_nle_f32 s[82:83], s78, v83
    v_cmp_nge_f32 s[84:85], s79, v84
    v_cmp_u_f32 vcc, v85, v85
    """)
    q_.ins("s_nop 1\ns_or_b64 s[82:83], s[82:83], s[84:85]\ns_or_b64 vcc, vcc, s[82:83]\ns_cbranch_vccnz KM_FALLBACK\nKM_NORM:\nv_rcp_f32 v80, v80")
    q_.raw(f"""
    v_rcp_f32 v82, v81
    v_mul_f32 v80, v80, v{P.V_G}
    v_mul_f32 v82, v82, v{P.V_G+1}
    """)
    for hh in range(2):
        for pc in range(2):
            b = VO + 16*hh + 8*pc
            for r in range(8): q_.ins(f"v_mul_f32 v{b+r}, v{b+r}, v{80+2*hh}")
            for q in range(4): q_.ins(f"v_cvt_pk_bf16_f32 v{64+8*hh+4*pc+q}, v{b+2*q}, v{b+2*q+1}")
            q_.ins(f"buffer_store_dwordx4 {vr(64+8*hh+4*pc,4)}, v26, s[{S_WS}:{S_WS+3}], s54 offen offset:{hh*2048 + pc*512} sc1", vm=("ost", 0))
    vq = q_.items
    nA, nB = nb
    stepsA = [P.gemm_step(s, vq=vq) for s in range(NIN, NIN + nA)]
    t2 = Trace()
    t2.items.extend(vq)
    t2.ins("s_nop 1")
    for q in range(4):
        t2.ins(f"v_mfma_f32_16x16x32_bf16 v[84:87], {ar(P.A_SEL,4)}, {vr(64+4*q,4)}, {'0' if q == 0 else 'v[84:87]'}")
    stepsA.append(t2)
    polli = lambda: I(f"buffer_load_dword v28, v25, s[{S_WS}:{S_WS+3}], s{P.S_OP} offen sc1", vm=("op", 0))
    stepsB = [P.gemm_step(s, late=[polli()] if s == NIN + nA + nB - 1 else []) for s in range(NIN + nA, NIN + nA + nB)]
    sig = Trace()
    sig.raw(f"""
    v_and_b32 v25, 31, {L2}
    v_lshlrev_b32 v25, 7, v25
    s_lshr_b32 s78, s{P.S_MT}, 1
    s_lshl_b32 s78, s78, 18
    s_add_u32 s78, s78, s42
    s_lshl_b32 s79, s{S_W}, 16
    s_add_u32 s78, s78, s79
    s_add_u32 s78, s78, {WS_O:#x}
    s_add_u32 s56, s86, s78
    s_addc_u32 s57, s87, 0
    """)
    sig.raw(f"""
    v_sub_f32 v84, v84, v84
    s_cmp_lg_u32 s55, 0
    v_cmp_u_f32 vcc, v84, v84
    s_cbranch_scc1 KM_CHECKED
    s_cbranch_vccnz KM_FALLBACK2
    KM_CHECKED:
    """)
    sig.wait(vm=[("ost", 0)])
    sig.raw(f"""
    s_mov_b64 exec, 1
    buffer_store_dword v24, off, s[{S_WS}:{S_WS+3}], s{P.S_OF} sc1
    s_mov_b64 exec, -1
    """)
    t3 = Trace()
    t3.wait(vm=[("op", 0)])
    t3.raw(f"""
    v_cmp_ne_u32 vcc, s{S_TAG}, v28
    s_nop 0
    s_cbranch_vccnz KM_OSPIN
    KM_OBACK:
    """)
    ol = []
    for s in range(NDOWN, NDOWN + NWO):
        ol.append([rebase(P.h_load(s, i), P.S_HB, 56) for i in range(4)] + (adv64(56, 8192) if s < NDOWN + NWO - 1 else []))
    t4 = Trace()
    for grp in ol[:opre]: t4.items.extend(grp)
    k = opre
    stepsC = []
    for s in range(NIN + nA + nB, NDOWN):
        ex = []
        while len(ex) < 2 and k < 5: ex.append(ol[k]); k += 1
        stepsC.append(P.gemm_step(s, ex))
    wos = []
    for s in range(NDOWN, NDOWN + 4):
        ex = []
        while len(ex) < 2 and k < NWO: ex.append(ol[k]); k += 1
        wos.append(P.gemm_step(s, ex))
    ph = Trace()
    su = Asm()
    for pp in range(1, 4):
        su(f"s_add_u32 s78, s{S_W}, {pp}\ns_and_b32 s78, s78, 3\ns_mul_i32 s78, s78, 24576\ns_add_u32 s78, s78, {(pp-1)*8192}\nv_add_u32 v{26+pp}, s78, v{P.V_L16}")
    su(f"""
    s_mul_i32 s78, s{S_W}, 24576
    v_add_u32 v26, s78, v{P.V_L16}
    s_lshl_b32 s78, s{P.S_MT}, 17
    s_lshl_b32 s79, s{P.S_NT}, 8
    s_add_u32 s78, s78, s79
    s_lshl_b32 s79, s{S_W}, 6
    s_add_u32 s78, s78, s79
    s_add_u32 s79, s78, 0x8000
    s_add_u32 s80, s78, 0x10000
    s_add_u32 s81, s78, 0x18000
    v_and_b32 v30, 15, {L2}
    v_lshlrev_b32 v30, 11, v30
    v_bfe_u32 v25, {L2}, 4, 1
    v_lshl_add_u32 v30, v25, 5, v30
    v_lshrrev_b32 v25, 5, {L2}
    v_lshl_add_u32 v30, v25, 4, v30
    """)
    su = [l.strip() for l in su.lines]
    S2 = list(range(NDOWN + 4, NDOWN + 8))
    ph.wait(vm=[("w", s, J) for s in S2[2:] for J in range(8)], lg=[("w", s, J) for s in S2[:2] for J in range(8)])
    ph.ins("s_barrier")
    R0, R1, R2 = ACC + 32, ACC + 64, 32
    for idx, pp in enumerate((1, 2, 3, 0)):
        fill = [[] for _ in range(32)]
        if idx == 0:
            for q, x in enumerate(su): fill[q].append(I(x))
        else:
            prev = (1, 2, 3)[idx - 1]
            for t in range(8):
                fill[(4 + 3*t) if idx < 3 or not ph2new else (1 + t + (3 if t >= 4 else 0))].append(I(f"ds_write_b128 v{26+prev}, {vr(ACC + (prev*8 + t)*4, 4)} offset:{t*1024}", lg=("rw", prev)))
        if idx == 3:
            rd = [I(f"ds_read_b128 {vr((R0, R1, R2)[s_] + t*4, 4)}, v26 offset:{s_*8192 + t*1024}", lg=("rr", s_)) for s_ in range(3) for t in range(8)]
            if ph2new:
                for k_, x in enumerate(rd[:16]): fill[12 + k_ // 2].append(x)
                fill[21] += [W(lg=[("rw", 3)]), I("s_barrier")]
                for k_, x in enumerate(rd[16:]): fill[22 + k_ // 2].append(x)
                fill[26].append(W(lg=[("rr", 1)]))
                for k_ in range(10): fill[26 + k_ // 2].append(I(f"v_add_f32 v{R0+k_}, v{R0+k_}, v{R1+k_}"))
            else:
                free = [g for g in range(32) if not fill[g]]
                for x, g in zip(rd[:16], free): fill[g].append(x)
            ph.wait(lg=[("rw", 2)])
            ph.ins("s_barrier")
        mu = 0
        for s in S2:
            if idx == 0: ph.wait(vm=[("h", s, i) for i in range(4)])
            for J in (2*pp, 2*pp + 1):
                for i in range(4):
                    ph.ins(P.gemm_mfma(s, J, i, False)); ph.items.extend(fill[mu]); mu += 1
    if ph2new:
        for r in range(10, 32, 2): ph.ins(f"v_pk_add_f32 {vr(R0+r,2)}, {vr(R0+r,2)}, {vr(R1+r,2)}")
        ph.wait(lg=[("rr", 2)])
        for r in range(0, 32, 2): ph.ins(f"v_pk_add_f32 {vr(R0+r,2)}, {vr(R0+r,2)}, {vr(R2+r,2)}")
    else:
        ph.wait(lg=[("rw", 3), ("rr", 1)])
        ph.ins("s_barrier")
        ph.items.extend(rd[16:])
        for r in range(0, 32, 2): ph.ins(f"v_pk_add_f32 {vr(R0+r,2)}, {vr(R0+r,2)}, {vr(R1+r,2)}")
        ph.wait(lg=[("rr", 2)])
        for r in range(0, 32, 2): ph.ins(f"v_pk_add_f32 {vr(R0+r,2)}, {vr(R0+r,2)}, {vr(R2+r,2)}")
    for i in range(4):
        b0, b1 = ACC + i*4, ACC + (4 + i)*4
        d = 64 + i*4
        om = P.V_OMG + i
        for b in (b0, b0 + 2, b1, b1 + 2):
            ph.ins(f"v_pk_add_f32 {vr(b,2)}, {vr(b,2)}, {vr(b + 32,2)}")
        for b in (b0, b0 + 2, b1, b1 + 2):
            ph.ins(f"v_pk_mul_f32 {vr(b,2)}, {vr(b,2)}, {vr(om,2)} op_sel_hi:[1,0]" if om % 2 == 0 else f"v_pk_mul_f32 {vr(b,2)}, {vr(b,2)}, {vr(om-1,2)} op_sel:[0,1] op_sel_hi:[1,1]")
        ph.raw(f"""
        v_cvt_pk_bf16_f32 v{d}, v{b0}, v{b0+1}
        v_cvt_pk_bf16_f32 v{d+1}, v{b0+2}, v{b0+3}
        v_cvt_pk_bf16_f32 v{d+2}, v{b1}, v{b1+1}
        v_cvt_pk_bf16_f32 v{d+3}, v{b1+2}, v{b1+3}
        s_nop 1
        v_permlane16_swap_b32 v{d}, v{d+2}
        v_permlane16_swap_b32 v{d+1}, v{d+3}
        buffer_store_dwordx4 {vr(d,4)}, v30, s[{P.S_OUT}:{P.S_OUT+3}], s{78+i} offen sc1 nt
        """)
    head = [pro, pro2] + segs + [ec]
    rest = [h2, body, t1] + stepsA + [sig] + stepsB + [t3, t4] + stepsC + wos + [ph]
    import copy
    resolve(head + [l0] + rest)
    saved = [[(x.get("wvm"), x.get("wlg")) for x in seg.items] for seg in rest]
    resolve(head + [l1] + rest)
    for seg, sv in zip(rest, saved):
        for x, (v, l) in zip(seg.items, sv):
            if x["text"] is None:
                mn = lambda p, q: q if p is None else p if q is None else min(p, q)
                x["wvm"], x["wlg"] = mn(x["wvm"], v), mn(x["wlg"], l)
    emit_trace(a, [pro]); st.stamp()
    if pads:
        a("s_branch KM_BODY")
        a.lines.append(".p2align 12")
        a.label("KM_BODY")
    emit_trace(a, [pro2]); st.stamp()
    for k, tr in enumerate(segs):
        emit_trace(a, [tr])
        if 'stg' in exp and k % 2 == 0: st.stamp()
    st.stamp()
    emit_trace(a, [ec])
    if 'ec' in exp: st.stamp()
    a(f"s_bitcmp1_b32 s{S_W}, 0")
    a("s_cbranch_scc1 KM_LAST1")
    emit_trace(a, [l0])
    a("s_branch KM_P2")
    a.label("KM_LAST1")
    emit_trace(a, [l1])
    a.label("KM_P2")
    st.stamp()
    if pads: a.lines.append("@CHAIN2")
    emit_trace(a, [h2]); st.stamp()
    b = Asm(); emit_trace(b, [body])
    for l in b.lines:
        a.lines.append(l)
        if 'its' in exp and l.strip() in ("s_barrier", "KM_HBACK:"): st.stamp()
    st.stamp()
    emit_trace(a, [t1]); st.stamp()
    for seg in stepsA + [sig]: emit_trace(a, [seg])
    st.stamp()
    for seg in stepsB: emit_trace(a, [seg])
    st.stamp()
    emit_trace(a, [t3]); st.stamp()
    for seg in [t4] + stepsC: emit_trace(a, [seg])
    st.stamp()
    for seg in wos: emit_trace(a, [seg])
    st.stamp()
    b = Asm(); emit_trace(b, [ph])
    nm = 0
    for l in b.lines:
        a.lines.append(l)
        if l.strip().startswith("v_mfma"): nm += 1
        if 'ph' in exp and ((l.strip().startswith("v_mfma") and nm % 32 == 0) or (l.strip() == "s_barrier" and nm == 0) or "s81 offen" in l): st.stamp()
    if dbg:
        a("s_waitcnt vmcnt(0)")
        st.stamp(force=True)
        st.dump(0, S_W, 86)
        if hdbg is not None:
            a(f"""
            s_lshl_b32 s90, s2, 2
            s_add_u32 s90, s90, s{S_W}
            s_cmp_eq_u32 s90, {4*hdbg}
            s_cbranch_scc0 KM_END
            v_readlane_b32 s90, v31, 32
            v_mbcnt_lo_u32_b32 v0, -1, 0
            v_mbcnt_hi_u32_b32 v0, -1, v0
            v_subrev_u32 v31, s90, v31
            v_subrev_u32 v0, 32, v0
            v_lshlrev_b32 v0, 2, v0
            s_mov_b32 exec_lo, 0
            s_mov_b32 exec_hi, 0xfffe
            buffer_store_dword v31, v0, s[{S_DBG}:{S_DBG+3}], 0 offen
            """)
    a("s_endpgm")
    for nm, ld, val in (("Z", f"buffer_load_dword v1, off, s[{S_DBG}:{S_DBG+3}], 0 sc1", f"eq_u32 vcc, 0, v1"),
                        ("E", f"buffer_load_dword v{V_KX}, v{V_T}, s[{S_WS}:{S_WS+3}], s{S_EF} offen sc1", f"ne_u32 vcc, s{S_TAG}, v{V_KX}"),
                        ("H", f"buffer_load_dword v28, v25, s[{S_WS}:{S_WS+3}], s{P.S_HP} offen sc1", f"ne_u32 vcc, s{S_TAG}, v28"),
                        ("O", f"buffer_load_dword v28, v25, s[{S_WS}:{S_WS+3}], s{P.S_OP} offen sc1", f"ne_u32 vcc, s{S_TAG}, v28")):
        a(f"""
        KM_{nm}SPIN:
        s_mov_b32 s91, 0x40000
        KM_{nm}SPIN1:
        {ld}
        s_waitcnt vmcnt(0)
        v_cmp_{val}
        s_sub_u32 s91, s91, 1
        s_cbranch_vccz KM_{nm}BACK
        s_cmp_eq_u32 s91, 0
        s_cbranch_scc1 KM_{nm}BACK
        s_sleep 1
        s_branch KM_{nm}SPIN1
        """)
    A_K, A_Q = P.A_K, P.A_Q
    a.label("KM_FALLBACK2")
    a("s_mov_b32 s55, 2")
    a.label("KM_FALLBACK")
    a(f"""
    s_or_b32 s55, s55, 1
    s_waitcnt vmcnt(0) lgkmcnt(0)
    s_nop 15
    v_mov_b32 v82, 0xff7fffff
    v_mov_b32 v83, 0xff7fffff
    v_mov_b32 v80, 0
    v_mov_b32 v81, 0
    s_mov_b32 s78, {WS_KV:#x}
    """)
    for r in range(32): a(f"v_mov_b32 v{VO+r}, 0")
    a.label("KM_FB_LOOP")
    for q in range(4):
        a(f"buffer_load_dwordx4 {ar(A_K+4*q,4)}, v{P.V_L16}, s[{S_WS}:{S_WS+3}], s78 offen offset:{q*1024} sc1")
    a("s_waitcnt vmcnt(0)")
    for hh in range(2):
        O = VO + 16*hh; m = 82 + hh; l = 80 + hh
        a(f"v_mfma_f32_32x32x16_bf16 v[64:79], {ar(A_K,4)}, {ar(A_Q+8*hh,4)}, 0")
        a(f"v_mfma_f32_32x32x16_bf16 v[64:79], {ar(A_K+4,4)}, {ar(A_Q+8*hh+4,4)}, v[64:79]")
        a("s_nop 15")
        a("v_max_f32 v84, v64, v65")
        for r in range(2, 16, 2): a(f"v_max3_f32 v84, v{64+r}, v{65+r}, v84")
        a(f"""
        v_mov_b32 v85, v84
        s_nop 1
        v_permlane32_swap_b32 v84, v85
        s_nop 1
        v_max3_f32 v84, v84, v85, v{m}
        v_sub_f32 v85, v{m}, v84
        v_exp_f32 v85, v85
        v_mov_b32 v{m}, v84
        v_mul_f32 v{l}, v{l}, v85
        """)
        for r in range(16):
            a(f"v_sub_f32 v{64+r}, v{64+r}, v84")
            a(f"v_exp_f32 v{64+r}, v{64+r}")
            a(f"v_mul_f32 v{O+r}, v{O+r}, v85")
        for r in range(8): a(f"v_cvt_pk_bf16_f32 v{64+r}, v{64+2*r}, v{65+2*r}")
        for r in range(8):
            a(f"v_lshlrev_b32 v86, 16, v{64+r}\nv_and_b32 v87, 0xffff0000, v{64+r}\nv_add_f32 v{l}, v{l}, v86\nv_add_f32 v{l}, v{l}, v87")
        a(f"v_mfma_f32_32x32x16_bf16 {vr(O,16)}, {ar(A_K+8,4)}, v[64:67], {vr(O,16)}")
        a(f"v_mfma_f32_32x32x16_bf16 {vr(O,16)}, {ar(A_K+12,4)}, v[68:71], {vr(O,16)}")
        a("s_nop 15")
    a(f"""
    s_add_u32 s78, s78, 4096
    s_cmp_lt_u32 s78, {WS_KV + 64*4096:#x}
    s_cbranch_scc1 KM_FB_LOOP
    v_mov_b32 v84, v80
    v_mov_b32 v85, v81
    s_nop 1
    v_permlane32_swap_b32 v80, v84
    v_permlane32_swap_b32 v81, v85
    s_nop 1
    v_add_f32 v80, v80, v84
    v_add_f32 v81, v81, v85
    s_cmp_eq_u32 s55, 1
    s_cbranch_scc1 KM_NORM
    v_rcp_f32 v80, v80
    v_rcp_f32 v82, v81
    s_nop 0
    v_mul_f32 v80, v80, v{P.V_G}
    v_mul_f32 v82, v82, v{P.V_G+1}
    """)
    for hh in range(2):
        for pc in range(2):
            b = VO + 16*hh + 8*pc
            for r in range(8): a(f"v_mul_f32 v{b+r}, v{b+r}, v{80+2*hh}")
            for q in range(4): a(f"v_cvt_pk_bf16_f32 v{64+8*hh+4*pc+q}, v{b+2*q}, v{b+2*q+1}")
            a(f"buffer_store_dwordx4 {vr(64+8*hh+4*pc,4)}, v26, s[{S_WS}:{S_WS+3}], s54 offen offset:{hh*2048 + pc*512} sc1")
    a(f"""
    s_waitcnt vmcnt(0)
    s_branch KM_CHECKED
    KM_END:
    s_endpgm
    """)
    return a.text()
```

```python
from common import *
import math, struct

LDS_SP = 65536
K2_LDS = 163840

V_L16, V_L16B, V_KVR = 1, 2, 3
V_W = 4
V_SP, V_KP, V_WB = 8, 9, 10
V_LANE, V_OMG, V_G = 16, 18, 22
SB = [32, 48]; PB = [64, 72]
ACC = 128
A_O, A_L, A_SEL, A_Q, A_K, A_V = 0, 32, 40, 44, 60, 76
A_WR, RW = 92, 20
A_HR, RH = 172, 3
A_WX = 220
S_OUT, S_WS = 20, 24
S_HB, S_WB, S_KVB, S_XB = 12, 14, 16, 18
S_W, S_MT, S_NT, S_M0KV, S_M0SP = 36, 28, 29, 30, 31
S_WOB = 32
S_HF, S_HP, S_OF, S_OP = 8, 9, 10, 11
LDS_Q = 65536
NDOWN, NWO = 28, 8
NSLOT = 128

I = lambda text, vm=None, lg=None: dict(text=text, vm=vm, lg=lg)
W = lambda vm=(), lg=(): dict(text=None, needvm=list(vm), needlg=list(lg))
def adv64(s, n): return [I(f"s_add_u32 s{s}, s{s}, {n:#x}\ns_addc_u32 s{s+1}, s{s+1}, 0")]

def accr(J, i): return vr(ACC + (J*4 + i)*4, 4)
V_O = 96
def wreg(sig, J):
    if sig == NDOWN + 7: return ar(A_WX + 4*J, 4)
    if sig == NDOWN + 6: return ar(A_O + 4*J, 4)
    return ar(A_WR + 4*((8*sig + J) % RW), 4)
OREGS = [ar(A_Q + 4*k, 4) for k in range(12)] + [vr(V_O + 4*k, 4) for k in range(8)] + [ar(A_HR + 4*k, 4) for k in range(4*RH)]
def hreg(sig, i):
    if sig >= NDOWN: return OREGS[4*(sig - NDOWN) + i]
    return ar(A_HR + 16*(sig % RH) + 4*i, 4)
def gemm_mfma(sig, J, i, first):
    return f"v_mfma_f32_16x16x32_bf16 {accr(J,i)}, {wreg(sig,J)}, {hreg(sig,i)}, {'0' if first else accr(J,i)}"
def h_load(sig, i):
    fl = " sc1"
    return I(f"global_load_dwordx4 {hreg(sig,i)}, v{V_L16}, s[{S_HB}:{S_HB+1}] offset:{i*1024}{fl}", vm=("h", sig, i))
ETA0 = 55
S_WB0 = 64
def configure(NIN):
    global ETA0
    ETA0 = 2*NIN + RW // 4
def wsrc(sig, J):
    eta = 2*sig + J // 4
    if eta < ETA0: return "ring"
    if sig < NDOWN + 6: return "lds"
    return "x"
def slot_of(eta): return (eta - ETA0) % 8
def w_load(sig, J):
    src = wsrc(sig, J)
    if src == "ring":
        return I(f"global_load_dwordx4 {wreg(sig,J)}, v{V_W + J//2}, s[{S_WB}:{S_WB+1}] offset:{(J%2)*1024} sc1", vm=("w", sig, J))
    if src == "x":
        return I(f"global_load_dwordx4 {wreg(sig,J)}, v{V_W + J//2}, s[{S_XB}:{S_XB+1}] offset:{(J%2)*1024} sc1", vm=("w", sig, J))
    k = slot_of(2*sig + J // 4)
    reg, off = (V_SP, k*4096) if k < 6 else (V_KP, (k - 6)*4096)
    return I(f"ds_read_b128 {wreg(sig,J)}, v{reg} offset:{off + (J%4)*1024}", lg=("w", sig, J))
def w_need(sig, J):
    return W(lg=[("w", sig, J)]) if wsrc(sig, J) == "lds" else W(vm=[("w", sig, J)])
def x_base(sig, bias=0):
    b, o = (S_WB0, sig*8192) if sig < NDOWN else (S_WOB, (sig - NDOWN)*8192)
    o -= bias
    if o >= 0: return I(f"s_add_u32 s{S_XB}, s{b}, {o}\ns_addc_u32 s{S_XB+1}, s{b+1}, 0")
    return I(f"s_sub_u32 s{S_XB}, s{b}, {-o}\ns_subb_u32 s{S_XB+1}, s{b+1}, 0")
def fifo_fill(eta):
    sig, J0 = eta // 2, 4*(eta % 2)
    k = slot_of(eta)
    m0 = I(f"s_add_u32 m0, s{S_M0SP}, {k*4096}") if k < 6 else I(f"s_add_u32 m0, s{S_M0KV}, {(k-6)*4096}")
    d = []
    for J in range(J0, J0 + 4):
        p = J // 2
        reg = V_WB + p // 2 if p % 2 == 0 else V_W + p
        d.append(I(f"global_load_lds_dwordx4 v{reg}, s[{S_XB}:{S_XB+1}] offset:{(J%4)*1024} sc1", vm=("wd", eta)))
    return x_base(sig, 2048), m0, d
def qk(n, half):
    T = n // 2; Sx = SB[n % 2]
    c = "0" if half == 0 else vr(Sx, 16)
    return f"v_mfma_f32_32x32x16_bf16 {vr(Sx,16)}, {ar(A_K + 8*(T%2) + 4*half,4)}, {ar(A_Q + 8*(n%2) + 4*half,4)}, {c}"
def pv(n, half):
    T = n // 2; O = V_O + 16*(n % 2)
    c = "0" if (n < 2 and half == 0) else vr(O, 16)
    return f"v_mfma_f32_32x32x16_bf16 {vr(O,16)}, {ar(A_V + 8*(T%2) + 4*half,4)}, {vr(PB[n%2] + 4*half,4)}, {c}"
def summ(n, half):
    Lr = A_L + 4*(n % 2)
    c = "0" if (n < 2 and half == 0) else ar(Lr, 4)
    return f"v_mfma_f32_16x16x32_bf16 {ar(Lr,4)}, {ar(A_SEL,4)}, {vr(PB[n%2] + 4*half,4)}, {c}"
def kv_off(T): return ((T // 8) % 2)*32768 + (T % 8)*4096
def k_read(T, half):
    return I(f"ds_read_b128 {ar(A_K + 8*(T%2) + 4*half,4)}, v{V_KVR} offset:{kv_off(T) + half*1024}", lg=("k", T))
def v_read(T, half):
    return I(f"ds_read_b128 {ar(A_V + 8*(T%2) + 4*half,4)}, v{V_KVR} offset:{kv_off(T) + 2048 + half*1024}", lg=("v", T))
def kv_dma(stage, part, j):
    v = V_L16 if part == 0 else V_L16B
    return I(f"global_load_lds_dwordx4 v{v}, s[{S_KVB}:{S_KVB+1}] offset:{j*1024} sc1", vm=("kv", stage))

def xcost(x):
    t = x["text"] or "s_"
    if t.startswith("ds_"): return 4
    if t.startswith("global_"): return 5
    if t.startswith("buffer_"): return 8
    if t.startswith("v_"): return 4
    if "\n" in t: return 4
    return 0

KVS = {0: (7, 10), 1: (8, 10)}
def main_loop(NIN, g0, early=(), timed=()):
    NG = 32*NIN
    seq = []
    mu = 0
    for n in range(NSLOT):
        att = []
        if n + 1 < NSLOT: att += [(qk(n+1, 0), 32), (qk(n+1, 1), 32)]
        if n >= 1: att += [(pv(n-1, 0), 32), (summ(n-1, 0), 16), (pv(n-1, 1), 32), (summ(n-1, 1), 16)]
        hi = 0 if n < g0 else round(NG*(n + 1 - g0)/(NSLOT - g0))
        cnt = hi - mu
        for k, (t, p_) in enumerate(att):
            seq.append(dict(text=t, pipe=p_, slot=n, mu=None, k=k))
            want = round(cnt*(k + 1)/len(att))
            have = round(cnt*k/len(att))
            for _ in range(want - have):
                sig, J, i = mu // 32, (mu % 32) // 4, mu % 4
                seq.append(dict(text=gemm_mfma(sig, J, i, sig == 0), pipe=16, slot=n, mu=mu, k=None)); mu += 1
    assert mu == NG
    N = len(seq)
    gaps = [[] for _ in range(N)]
    pos_mu = {s["mu"]: g for g, s in enumerate(seq) if s["mu"] is not None}
    slot_start = {}
    for g, s in enumerate(seq): slot_start.setdefault(s["slot"], g)
    slot_start[NSLOT] = N
    busy = lambda G: any(xcost(x) or (x["text"] is None) for x in gaps[G]) or len(gaps[G]) >= 1
    def place(item, lo, hi=None):
        G = lo
        while G < N and gaps[G]: G += 1
        if hi is not None and G > hi:
            lo = min(lo, hi)
            G = min(range(lo, hi + 1), key=lambda g: (sum(xcost(x) + 1 for x in gaps[g]), g))
        assert G < N, (item, lo, hi, G)
        gaps[G].append(item); return G
    def place_cluster(items, lo, hi):
        cands = [g for g in range(lo, min(hi, N - 1) + 1) if not gaps[g]]
        big = [g for g in cands if seq[g]["pipe"] == 32]
        if big: G = big[0]
        elif cands: G = cands[0]
        else: G = min(range(lo, min(hi, N - 1) + 1), key=lambda g: (sum(xcost(x) + 1 for x in gaps[g]), g))
        gaps[G].extend(items); return G
    for m in range(NG):
        sig, J, i = m // 32, (m % 32) // 4, m % 4
        if i == 0:
            w = w_need(sig, J)
            if J == 0: w["needvm"] += [("h", sig, q) for q in range(4)]
            gaps[pos_mu[m] - 1].append(w)
    for n in range(0, NSLOT - 2, 2):
        gaps[slot_start[n + 1] - 1].append(W(lg=[("k", n // 2 + 1)]))
    gaps[slot_start[NSLOT - 1] - 1].append(W(lg=[("v", NSLOT // 2 - 1)]))
    for it in range(7):
        G = slot_start[16*it + 14]
        gaps[G] = [W(vm=[("kv", it + 1)], lg=[("v", 8*it + 7)]), I("s_barrier")] + gaps[G]
    for n in range(NSLOT):
        T = n // 2 + 1
        if T >= NSLOT // 2: continue
        lo = slot_start[n] + (1 if n % 16 == 14 else 0) + 1
        G = place(k_read(T, 0) if n % 2 == 0 else v_read(T, 0), lo, slot_start[n + 1] - 2)
        place(k_read(T, 1) if n % 2 == 0 else v_read(T, 1), G + 2, slot_start[n + 1] - 2)
    lastw = lasth = -1
    G = -1
    for k in range(0, len(early), 4):
        G = place_cluster(early[k:k+4], G + 1, G + 6)
    G = 0
    for sl, items in timed:
        G = place_cluster(items, max(slot_start[sl] + 1, G + 1), max(slot_start[sl + 1] - 2, G + 2))
    for m in range(15, NG, 16):
        sig, J = m // 32, (m % 32) // 4
        G = pos_mu[m]
        items = []
        for q in range(J - 3, J + 1):
            phi = 8*sig + q + RW
            items.append((phi // 8, phi % 8))
        s2, J2 = items[0]
        if J2 == 0:
            x = adv64(S_WB, 8192)[0]
            if s2 == NDOWN: x = I(f"s_mov_b64 s[{S_WB}:{S_WB+1}], s[{S_WOB}:{S_WOB+1}]")
            assert lastw + 1 <= G - 1
            place(x, max(lastw + 1, G - 8), G - 1)
        lastw = place_cluster([w_load(a_, b_) for a_, b_ in items], G, G + 6)
        if J == 7 and sig + RH < NDOWN:
            G = place(adv64(S_HB, 8192)[0], pos_mu[m] - 6, pos_mu[m])
            place_cluster([h_load(sig + RH, i) for i in range(4)], min(lastw + 6, N - 1), lastw + 14)
    for it in range(7):
        for part in range(2):
            s0 = 16*it + KVS.get(it, (1, 4))[part]
            G = place_cluster([kv_dma(it + 1, part, j) for j in range(4)], slot_start[s0] + 3, slot_start[s0 + 1] + 3)
            place(I(f"s_add_u32 m0, s{S_M0KV}, {((it+1)%2)*32768 + part*4096}"), G - 3, G - 1)
        place(adv64(S_KVB, 32768)[0], G + 1)
    where = [16*it + sl for it in range(2, 7) for sl in (9, 12)]
    jobs = [("f", ETA0 + k) for k in range(6)] + [("x", (sg, J0)) for sg in (NDOWN + 6, NDOWN + 7) for J0 in (0, 4)]
    jobs += [("f", ETA0 + 6), ("f", ETA0 + 7)]; where += [16*7 + 1, 16*7 + 4]
    for (kind, arg), sl in zip(jobs, where):
        if kind == "f":
            b_, m_, d_ = fifo_fill(arg)
            G = place_cluster(d_, slot_start[sl] + 4, slot_start[sl + 1] + 4)
            place(m_, G - 3, G - 1); place(b_, G - 4, G - 1)
        else:
            sg, J0 = arg
            G = place_cluster([w_load(sg, J) for J in range(J0, J0 + 4)], slot_start[sl] + 4, slot_start[sl + 1] + 4)
            place(x_base(sg), G - 4, G - 1)
    V = []
    for n in range(NSLOT):
        Sx, Px = SB[n % 2], PB[n % 2]
        for r in range(0, 16, 2):
            V += [(8, f"v_exp_f32 v{Sx+r}, v{Sx+r}", n, "e"), (8, f"v_exp_f32 v{Sx+r+1}, v{Sx+r+1}", n, "e")]
            if r >= 2: V.append((4, f"v_cvt_pk_bf16_f32 v{Px+r//2-1}, v{Sx+r-2}, v{Sx+r-1}", n, r//2 - 1))
        V.append((4, f"v_cvt_pk_bf16_f32 v{Px+7}, v{Sx+14}, v{Sx+15}", n, 7))
    vidx = {(n, k): i for i, (_, _, n, k) in enumerate(V) if k != "e"}
    for g, sq in enumerate(seq):
        n, k = sq["slot"], sq["k"]
        dep = -1
        if k is not None:
            kk = k if n + 1 < NSLOT else k + 2
            if kk == 0 and n >= 1: dep = vidx[(n - 1, 7)]
            if kk in (2, 3): dep = vidx[(n - 1, 3)]
            if kk in (4, 5): dep = vidx[(n - 1, 7)]
            sq["kk"] = kk
        sq["dep"] = dep
    pos_att = {(sq["slot"], sq["kk"]): g for g, sq in enumerate(seq) if sq["k"] is not None}
    tr = Trace()
    t = valu = pipe = 0
    ig = iv = 0
    cnt = 0
    emitted_at = {}
    vem_at = {}
    while ig < N or iv < len(V):
        m_ok = ig < N and seq[ig]["dep"] < iv and (seq[ig]["dep"] < 0 or cnt - vem_at[seq[ig]["dep"]] >= 2)
        v_ok = False
        if iv < len(V):
            c, txt_, n, k = V[iv]
            v_ok = True
            if n >= 1 and k == "e":
                g = pos_att[(n - 1, 1)]
                v_ok = g in emitted_at and cnt - emitted_at[g][0] >= 12 and max(t, valu) >= emitted_at[g][1] + 56
            if k != "e" and n >= 2:
                g = pos_att[(n - 1, 3 if k < 4 else 5)]
                v_ok = g in emitted_at
        now = max(t, valu)
        if m_ok and (pipe <= now or not v_ok):
            s_ = max(now, pipe); t = s_ + 4; valu = s_ + 8; pipe = s_ + seq[ig]["pipe"]
            tr.ins(seq[ig]["text"]); cnt += 1; emitted_at[ig] = (cnt, s_)
            prev = ""
            for x in gaps[ig]:
                tr.items.append(x); cnt += 1 if x["text"] and not x["text"].endswith(":") else 0
                tx = x["text"] or "s_"
                if tx.startswith("ds_"): t += 4 if prev.startswith("ds_") else 8
                elif tx.startswith("global_"): t += 4 if prev.startswith("global_") else 14
                elif tx.startswith("buffer_"): t += 12
                else: t += 4*(1 + tx.count("\n"))
                prev = tx
            ig += 1
        elif v_ok:
            t = valu = now + c
            tr.ins(txt_); cnt += 1; vem_at[iv] = cnt; iv += 1
        else:
            tr.ins("s_nop 0"); cnt += 1; t += 4
    txt = [x["text"] for x in tr.items if x["text"]]
    for k in range(1, len(txt)):
        if txt[k].startswith("v_cvt") and txt[k-1].startswith("v_exp"):
            d = txt[k-1].split()[1].rstrip(",")
            assert d + "," not in txt[k] + "," or txt[k].split()[1].rstrip(",") == d, (txt[k-1], txt[k])
    return tr

def gemm_step(sig, extra=(), late=(), vq=None):
    gaps = [[] for _ in range(32)]
    pre = []
    w = w_need(sig, 0); w["needvm"] += [("h", sig, 0)]
    pre.append(w)
    for i in range(1, 4): gaps[i - 1].append(W(vm=[("h", sig, i)]))
    for J in range(8):
        if J % 4 == 3:
            phi = 8*sig + J - 3 + RW
            s2, J2 = phi // 8, phi % 8
            eta = phi // 4
            if s2 < NDOWN + 6:
                assert wsrc(s2, J2) == "lds"
                gaps[4*J + 2].append(W(vm=[("wd", eta)]))
                gaps[4*J + 3].extend(w_load(s2, q) for q in range(J2, J2 + 4))
            e2 = eta - 1 + 8
            if eta - 1 >= ETA0 and e2 < 2*(NDOWN + 6):
                b_, m_, d_ = fifo_fill(e2)
                pe = eta - 1
                gaps[4*J - 6].append(b_); gaps[4*J - 5].append(m_)
                gaps[4*J - 4].append(W(lg=[("w", pe // 2, 4*(pe % 2) + 3)])); gaps[4*J - 4].extend(d_)
        if J < 7: gaps[4*J + 3].insert(0, w_need(sig, J + 1))
    if sig + RH < NDOWN:
        gaps[29].append(adv64(S_HB, 8192)[0])
        gaps[31].extend(h_load(sig + RH, i) for i in range(4))
    for k, grp in enumerate(extra):
        gaps[[4, 20][k]].extend(grp)
    gaps[17].extend(late)
    tr = Trace()
    tr.items.extend(pre)
    for mu in range(32):
        tr.ins(gemm_mfma(sig, mu // 4, mu % 4, False))
        tr.items.extend(gaps[mu])
        n = 0
        while vq and n < 2:
            x = vq.pop(0); tr.items.append(x)
            if not (x["text"] or "s_").startswith("s_") or "\n" in (x["text"] or ""): n += 1
            elif vq and (vq[0]["text"] or "s_").startswith("s_"): n += 1
    return tr
```

```python
from common import *
import math, struct

LDS_SP = 65536
K2_LDS = 163840

V_L16, V_L16B, V_KVR = 1, 2, 3
V_W = 4
V_SP, V_KP, V_WB = 8, 9, 10
V_LANE, V_OMG, V_G = 16, 18, 22
SB = [32, 48]; PB = [64, 72]
ACC = 128
A_O, A_L, A_SEL, A_Q, A_K, A_V = 0, 32, 40, 44, 60, 76
A_WR, RW = 92, 20
A_HR, RH = 172, 3
A_WX = 220
S_OUT, S_WS = 20, 24
S_HB, S_WB, S_KVB, S_XB = 12, 14, 16, 18
S_W, S_MT, S_NT, S_M0KV, S_M0SP = 36, 28, 29, 30, 31
S_WOB = 32
S_HF, S_HP, S_OF, S_OP = 8, 9, 10, 11
LDS_Q = 65536
NDOWN, NWO = 28, 8
NSLOT = 128

I = lambda text, vm=None, lg=None: dict(text=text, vm=vm, lg=lg)
W = lambda vm=(), lg=(): dict(text=None, needvm=list(vm), needlg=list(lg))
def adv64(s, n): return [I(f"s_add_u32 s{s}, s{s}, {n:#x}\ns_addc_u32 s{s+1}, s{s+1}, 0")]

def accr(J, i): return vr(ACC + (J*4 + i)*4, 4)
V_O = 96
def wreg(sig, J):
    if sig == NDOWN + 7: return ar(A_WX + 4*J, 4)
    if sig == NDOWN + 6: return ar(A_O + 4*J, 4)
    return ar(A_WR + 4*((8*sig + J) % RW), 4)
OREGS = [ar(A_Q + 4*k, 4) for k in range(12)] + [vr(V_O + 4*k, 4) for k in range(8)] + [ar(A_HR + 4*k, 4) for k in range(4*RH)]
def hreg(sig, i):
    if sig >= NDOWN: return OREGS[4*(sig - NDOWN) + i]
    return ar(A_HR + 16*(sig % RH) + 4*i, 4)
def gemm_mfma(sig, J, i, first):
    return f"v_mfma_f32_16x16x32_bf16 {accr(J,i)}, {wreg(sig,J)}, {hreg(sig,i)}, {'0' if first else accr(J,i)}"
def h_load(sig, i):
    fl = " sc1"
    return I(f"global_load_dwordx4 {hreg(sig,i)}, v{V_L16}, s[{S_HB}:{S_HB+1}] offset:{i*1024}{fl}", vm=("h", sig, i))
ETA0 = 55
S_WB0 = 64
def configure(NIN):
    global ETA0
    ETA0 = 2*NIN + RW // 4
def wsrc(sig, J):
    eta = 2*sig + J // 4
    if eta < ETA0: return "ring"
    if sig < NDOWN + 6: return "lds"
    return "x"
def slot_of(eta): return (eta - ETA0) % 8
def w_load(sig, J):
    src = wsrc(sig, J)
    if src == "ring":
        return I(f"global_load_dwordx4 {wreg(sig,J)}, v{V_W + J//2}, s[{S_WB}:{S_WB+1}] offset:{(J%2)*1024} sc1", vm=("w", sig, J))
    if src == "x":
        return I(f"global_load_dwordx4 {wreg(sig,J)}, v{V_W + J//2}, s[{S_XB}:{S_XB+1}] offset:{(J%2)*1024} sc1", vm=("w", sig, J))
    k = slot_of(2*sig + J // 4)
    reg, off = (V_SP, k*4096) if k < 6 else (V_KP, (k - 6)*4096)
    return I(f"ds_read_b128 {wreg(sig,J)}, v{reg} offset:{off + (J%4)*1024}", lg=("w", sig, J))
def w_need(sig, J):
    return W(lg=[("w", sig, J)]) if wsrc(sig, J) == "lds" else W(vm=[("w", sig, J)])
def x_base(sig, bias=0):
    b, o = (S_WB0, sig*8192) if sig < NDOWN else (S_WOB, (sig - NDOWN)*8192)
    o -= bias
    if o >= 0: return I(f"s_add_u32 s{S_XB}, s{b}, {o}\ns_addc_u32 s{S_XB+1}, s{b+1}, 0")
    return I(f"s_sub_u32 s{S_XB}, s{b}, {-o}\ns_subb_u32 s{S_XB+1}, s{b+1}, 0")
def fifo_fill(eta):
    sig, J0 = eta // 2, 4*(eta % 2)
    k = slot_of(eta)
    m0 = I(f"s_add_u32 m0, s{S_M0SP}, {k*4096}") if k < 6 else I(f"s_add_u32 m0, s{S_M0KV}, {(k-6)*4096}")
    d = []
    for J in range(J0, J0 + 4):
        p = J // 2
        reg = V_WB + p // 2 if p % 2 == 0 else V_W + p
        d.append(I(f"global_load_lds_dwordx4 v{reg}, s[{S_XB}:{S_XB+1}] offset:{(J%4)*1024} sc1", vm=("wd", eta)))
    return x_base(sig, 2048), m0, d
def qk(n, half):
    T = n // 2; Sx = SB[n % 2]
    c = "0" if half == 0 else vr(Sx, 16)
    return f"v_mfma_f32_32x32x16_bf16 {vr(Sx,16)}, {ar(A_K + 8*(T%2) + 4*half,4)}, {ar(A_Q + 8*(n%2) + 4*half,4)}, {c}"
def pv(n, half):
    T = n // 2; O = V_O + 16*(n % 2)
    c = "0" if (n < 2 and half == 0) else vr(O, 16)
    return f"v_mfma_f32_32x32x16_bf16 {vr(O,16)}, {ar(A_V + 8*(T%2) + 4*half,4)}, {vr(PB[n%2] + 4*half,4)}, {c}"
def summ(n, half):
    Lr = A_L + 4*(n % 2)
    c = "0" if (n < 2 and half == 0) else ar(Lr, 4)
    return f"v_mfma_f32_16x16x32_bf16 {ar(Lr,4)}, {ar(A_SEL,4)}, {vr(PB[n%2] + 4*half,4)}, {c}"
def kv_off(T): return ((T // 8) % 2)*32768 + (T % 8)*4096
def k_read(T, half):
    return I(f"ds_read_b128 {ar(A_K + 8*(T%2) + 4*half,4)}, v{V_KVR} offset:{kv_off(T) + half*1024}", lg=("k", T))
def v_read(T, half):
    return I(f"ds_read_b128 {ar(A_V + 8*(T%2) + 4*half,4)}, v{V_KVR} offset:{kv_off(T) + 2048 + half*1024}", lg=("v", T))
def kv_dma(stage, part, j):
    v = V_L16 if part == 0 else V_L16B
    return I(f"global_load_lds_dwordx4 v{v}, s[{S_KVB}:{S_KVB+1}] offset:{j*1024} sc1", vm=("kv", stage))

def xcost(x):
    t = x["text"] or "s_"
    if t.startswith("ds_"): return 4
    if t.startswith("global_"): return 5
    if t.startswith("buffer_"): return 8
    if t.startswith("v_"): return 4
    if "\n" in t: return 4
    return 0

CL = 4
GC1, GC2 = 14, 4
DC1 = 8
SLACK = 0
KVS = {0: (7, 10), 1: (8, 10)}
def main_loop(NIN, g0, early=(), timed=()):
    NG = 32*NIN
    seq = []
    mu = 0
    for n in range(NSLOT):
        att = []
        if n + 1 < NSLOT: att += [(qk(n+1, 0), 32), (qk(n+1, 1), 32)]
        if n >= 1: att += [(pv(n-1, 0), 32), (summ(n-1, 0), 16), (pv(n-1, 1), 32), (summ(n-1, 1), 16)]
        hi = 0 if n < g0 else round(NG*(n + 1 - g0)/(NSLOT - g0))
        cnt = hi - mu
        for k, (t, p_) in enumerate(att):
            seq.append(dict(text=t, pipe=p_, slot=n, mu=None, k=k))
            want = round(cnt*(k + 1)/len(att))
            have = round(cnt*k/len(att))
            for _ in range(want - have):
                sig, J, i = mu // 32, (mu % 32) // 4, mu % 4
                seq.append(dict(text=gemm_mfma(sig, J, i, sig == 0), pipe=16, slot=n, mu=mu, k=None)); mu += 1
    assert mu == NG
    N = len(seq)
    gaps = [[] for _ in range(N)]
    pos_mu = {s["mu"]: g for g, s in enumerate(seq) if s["mu"] is not None}
    slot_start = {}
    for g, s in enumerate(seq): slot_start.setdefault(s["slot"], g)
    slot_start[NSLOT] = N
    busy = lambda G: any(xcost(x) or (x["text"] is None) for x in gaps[G]) or len(gaps[G]) >= 1
    def place(item, lo, hi=None):
        G = lo
        while G < N and gaps[G]: G += 1
        if hi is not None and G > hi:
            lo = min(lo, hi)
            G = min(range(lo, hi + 1), key=lambda g: (sum(xcost(x) + 1 for x in gaps[g]), g))
        assert G < N, (item, lo, hi, G)
        gaps[G].append(item); return G
    def place_cluster(items, lo, hi):
        cands = [g for g in range(lo, min(hi, N - 1) + 1) if not gaps[g]]
        big = [g for g in cands if seq[g]["pipe"] == 32]
        if big: G = big[0]
        elif cands: G = cands[0]
        else: G = min(range(lo, min(hi, N - 1) + 1), key=lambda g: (sum(xcost(x) + 1 for x in gaps[g]), g))
        gaps[G].extend(items); return G
    for m in range(NG):
        sig, J, i = m // 32, (m % 32) // 4, m % 4
        if i == 0:
            w = w_need(sig, J)
            if J == 0: w["needvm"] += [("h", sig, q) for q in range(4)]
            gaps[pos_mu[m] - 1].append(w)
    for n in range(0, NSLOT - 2, 2):
        gaps[slot_start[n + 1] - 1].append(W(lg=[("k", n // 2 + 1)]))
    gaps[slot_start[NSLOT - 1] - 1].append(W(lg=[("v", NSLOT // 2 - 1)]))
    for it in range(7):
        G = slot_start[16*it + 14]
        gaps[G] = [W(vm=[("kv", it + 1)], lg=[("v", 8*it + 7)]), I("s_barrier")] + gaps[G]
    for n in range(NSLOT):
        T = n // 2 + 1
        if T >= NSLOT // 2: continue
        lo = slot_start[n] + (1 if n % 16 == 14 else 0) + 1
        G = place(k_read(T, 0) if n % 2 == 0 else v_read(T, 0), lo, slot_start[n + 1] - 2)
        place(k_read(T, 1) if n % 2 == 0 else v_read(T, 1), G + 2, slot_start[n + 1] - 2)
    lastw = lasth = -1
    G = -1
    for k in range(0, len(early), 4):
        G = place_cluster(early[k:k+4], G + 1, G + 6)
    G = 0
    for sl, items in timed:
        G = place_cluster(items, max(slot_start[sl] + 1, G + 1), max(slot_start[sl + 1] - 2, G + 2))
    def place_split(items, lo, hi, step):
        G0 = None; G = lo
        for k in range(0, len(items), CL):
            G = place_cluster(items[k:k+CL], min(G, N - 1), min(hi + (k // CL)*step, N - 1))
            if G0 is None: G0 = G
            last = G; G += step
        return G0, last
    for m in range(4*CL - 1, NG, 4*CL):
        sig, J = m // 32, (m % 32) // 4
        G = pos_mu[m]
        items = []
        for q in range(J - CL + 1, J + 1):
            phi = 8*sig + q + RW
            items.append((phi // 8, phi % 8))
        s2, J2 = items[0]
        if J2 == 0:
            x = adv64(S_WB, 8192)[0]
            if s2 == NDOWN: x = I(f"s_mov_b64 s[{S_WB}:{S_WB+1}], s[{S_WOB}:{S_WOB+1}]")
            assert lastw + 1 <= G - 1
            place(x, max(lastw + 1, G - 8), G - 1)
        lastw = place_cluster([w_load(a_, b_) for a_, b_ in items], G, G + (6 if CL == 4 else 3))
    for sig in range(NIN):
        if sig + RH < NDOWN:
            Gm = pos_mu[32*sig + 31]
            place(adv64(S_HB, 8192)[0], Gm - 6, Gm)
            place_split([h_load(sig + RH, i) for i in range(4)], Gm + (8 if CL == 4 else 3 + CL), Gm + 16, 4*CL + 3)
    for it in range(7):
        for part in range(2):
            s0 = 16*it + KVS.get(it, (1, 4))[part]
            G0, G = place_split([kv_dma(it + 1, part, j) for j in range(4)], slot_start[s0] + 3, slot_start[s0] + (9 if s0 >= g0 else 5), 2*CL + 3 if s0 >= g0 else 2)
            assert G < slot_start[s0 + 2]
            place(I(f"s_add_u32 m0, s{S_M0KV}, {((it+1)%2)*32768 + part*4096}"), G0 - 3, G0 - 1)
        place(adv64(S_KVB, 32768)[0], G + 1)
    where = [16*it + sl for it in range(2, 7) for sl in (9, 12)]
    jobs = [("f", ETA0 + k) for k in range(6)] + [("x", (sg, J0)) for sg in (NDOWN + 6, NDOWN + 7) for J0 in (0, 4)]
    jobs += [("f", ETA0 + 6), ("f", ETA0 + 7)]; where += [16*7 + 1, 16*7 + 4]
    for (kind, arg), sl in zip(jobs, where):
        if kind == "f":
            b_, m_, d_ = fifo_fill(arg)
            G, G1 = place_split(d_, slot_start[sl] + 4, slot_start[sl] + 10, 2*CL + 3)
            assert G1 < slot_start[sl + 2]
            place(m_, G - 3, G - 1); place(b_, G - 4, G - 1)
        else:
            sg, J0 = arg
            G, G1 = place_split([w_load(sg, J) for J in range(J0, J0 + 4)], slot_start[sl] + 4, slot_start[sl] + 10, 2*CL + 3)
            assert G1 < slot_start[sl + 2]
            place(x_base(sg), G - 4, G - 1)
    V = []
    for n in range(NSLOT):
        Sx, Px = SB[n % 2], PB[n % 2]
        for r in range(0, 16, 2):
            V += [(8, f"v_exp_f32 v{Sx+r}, v{Sx+r}", n, "e"), (8, f"v_exp_f32 v{Sx+r+1}, v{Sx+r+1}", n, "e")]
            if r >= 2: V.append((4, f"v_cvt_pk_bf16_f32 v{Px+r//2-1}, v{Sx+r-2}, v{Sx+r-1}", n, r//2 - 1))
        V.append((4, f"v_cvt_pk_bf16_f32 v{Px+7}, v{Sx+14}, v{Sx+15}", n, 7))
    vidx = {(n, k): i for i, (_, _, n, k) in enumerate(V) if k != "e"}
    for g, sq in enumerate(seq):
        n, k = sq["slot"], sq["k"]
        dep = -1
        if k is not None:
            kk = k if n + 1 < NSLOT else k + 2
            if kk == 0 and n >= 1: dep = vidx[(n - 1, 7)]
            if kk in (2, 3): dep = vidx[(n - 1, 3)]
            if kk in (4, 5): dep = vidx[(n - 1, 7)]
            sq["kk"] = kk
        sq["dep"] = dep
    pos_att = {(sq["slot"], sq["kk"]): g for g, sq in enumerate(seq) if sq["k"] is not None}
    tr = Trace()
    t = valu = pipe = 0
    ig = iv = 0
    cnt = 0
    emitted_at = {}
    vem_at = {}
    while ig < N or iv < len(V):
        m_ok = ig < N and seq[ig]["dep"] < iv and (seq[ig]["dep"] < 0 or cnt - vem_at[seq[ig]["dep"]] >= 2)
        v_ok = False
        if iv < len(V):
            c, txt_, n, k = V[iv]
            v_ok = True
            if n >= 1 and k == "e":
                g = pos_att[(n - 1, 1)]
                v_ok = g in emitted_at and cnt - emitted_at[g][0] >= 12 and max(t, valu) >= emitted_at[g][1] + 56
            if k != "e" and n >= 2:
                g = pos_att[(n - 1, 3 if k < 4 else 5)]
                v_ok = g in emitted_at
        now = max(t, valu)
        if m_ok and (pipe + SLACK <= now or not v_ok):
            s_ = max(now, pipe); t = s_ + 4; valu = s_ + 8; pipe = s_ + seq[ig]["pipe"]
            tr.ins(seq[ig]["text"]); cnt += 1; emitted_at[ig] = (cnt, s_)
            prev = ""
            for x in gaps[ig]:
                tr.items.append(x); cnt += 1 if x["text"] and not x["text"].endswith(":") else 0
                tx = x["text"] or "s_"
                if tx.startswith("ds_"): t += 4 if prev.startswith("ds_") else DC1
                elif tx.startswith("global_"): t += GC2 if prev.startswith("global_") else GC1
                elif tx.startswith("buffer_"): t += 12
                else: t += 4*(1 + tx.count("\n"))
                prev = tx
            ig += 1
        elif v_ok:
            t = valu = now + c
            tr.ins(txt_); cnt += 1; vem_at[iv] = cnt; iv += 1
        else:
            tr.ins("s_nop 0"); cnt += 1; t += 4
    txt = [x["text"] for x in tr.items if x["text"]]
    for k in range(1, len(txt)):
        if txt[k].startswith("v_cvt") and txt[k-1].startswith("v_exp"):
            d = txt[k-1].split()[1].rstrip(",")
            assert d + "," not in txt[k] + "," or txt[k].split()[1].rstrip(",") == d, (txt[k-1], txt[k])
    return tr

def gemm_step(sig, extra=(), late=(), vq=None):
    gaps = [[] for _ in range(32)]
    pre = []
    w = w_need(sig, 0); w["needvm"] += [("h", sig, 0)]
    pre.append(w)
    for i in range(1, 4): gaps[i - 1].append(W(vm=[("h", sig, i)]))
    for J in range(8):
        if J % 4 == 3:
            phi = 8*sig + J - 3 + RW
            s2, J2 = phi // 8, phi % 8
            eta = phi // 4
            if s2 < NDOWN + 6:
                assert wsrc(s2, J2) == "lds"
                gaps[4*J + 2].append(W(vm=[("wd", eta)]))
                gaps[4*J + 3].extend(w_load(s2, q) for q in range(J2, J2 + 4))
            e2 = eta - 1 + 8
            if eta - 1 >= ETA0 and e2 < 2*(NDOWN + 6):
                b_, m_, d_ = fifo_fill(e2)
                pe = eta - 1
                gaps[4*J - 6].append(b_); gaps[4*J - 5].append(m_)
                gaps[4*J - 4].append(W(lg=[("w", pe // 2, 4*(pe % 2) + 3)])); gaps[4*J - 4].extend(d_)
        if J < 7: gaps[4*J + 3].insert(0, w_need(sig, J + 1))
    if sig + RH < NDOWN:
        gaps[29].append(adv64(S_HB, 8192)[0])
        gaps[31].extend(h_load(sig + RH, i) for i in range(4))
    for k, grp in enumerate(extra):
        gaps[[4, 20][k]].extend(grp)
    gaps[17].extend(late)
    tr = Trace()
    tr.items.extend(pre)
    for mu in range(32):
        tr.ins(gemm_mfma(sig, mu // 4, mu % 4, False))
        tr.items.extend(gaps[mu])
        n = 0
        while vq and n < 2:
            x = vq.pop(0); tr.items.append(x)
            if not (x["text"] or "s_").startswith("s_") or "\n" in (x["text"] or ""): n += 1
            elif vq and (vq[0]["text"] or "s_").startswith("s_"): n += 1
    return tr
```

```python
from common import *
import p2
from p2 import I, W, adv64
import math, struct

KM = NAME + "_kernel"
LDS_X = 0; LDS_W = 65536
LDS_R = 131072
LDS_QS = LDS_R; LDS_KW = LDS_R + 4096; LDS_T = LDS_R + 16384
KM_LDS = 163840
NST = 16
OOB = 0x7f000000

def accn(j, i): return ("v", 32 + (j*8 + i)*4) if j < 7 else ("a", 128 + i*4)
def acc(j, i):
    p, b = accn(j, i); return vr(b, 4, p)
XF = [0, 64]; WF = [32, 96]
KVW, KVA, A_GX, A_GW, A_T, A_KX, A_DUM = 160, 168, 172, 188, 204, 208, 255
TREG = [196, 200, 204, 224, 228, 232, 236, 240, 244]
V_DQ, V_DX, V_DW = 0, 2, 6
V_RX = [10, 11]
V_RW, V_R3, V_R7, V_RKW, V_T, V_KX, V_LANE = 12, 15, 16, 17, 18, 19, 20
V_GROW, V_L16, V_RT, V_DT, V_DK = 26, 27, 28, 29, 30
S_WQ, S_X, S_G, S_U, S_KV, S_WS, S_GW, S_TSRD, S_WD, S_WO, S_DBG = 4, 8, 12, 16, 20, 24, 28, 32, 52, 76, 72
S_W, S_MT, S_NT, S_OK = 36, 37, 38, 39
S_OX, S_OX2, S_OG, S_OQ, S_TSRCS = 40, 41, 42, 43, 44
S_M0X, S_M0W, S_M0K, S_M0T, S_M0Q = 45, 46, 47, 51, 56
S_TOFF, S_TSTEP, S_TOG = 48, 49, 50
S_TSRC, S_TDST, S_TSRC2, S_TDST2, S_GROW = 3, 94, 95, 100, 101
S_EF = 88
S_LMASK, S_T2D = 58, 59
S_TAG = 89
A_TAG = 254
S_FLG = 57

KVD = 1
def dma_group(s, ntw):
    b = s % 2
    g = []
    nt = " nt" if ntw else ""
    for half in range(2):
        so = S_OX if half == 0 else S_OX2
        for j in range(4):
            pre = f"s_add_u32 m0, s{S_M0X}, {b*32768 + half*4096}" if j == 0 else None
            g.append((pre, I(f"buffer_load_dwordx4 v{V_DX+j}, s[{S_X}:{S_X+3}], s{so} offen offset:{j*1024} lds", vm=("st", s))))
    for part in range(2):
        srdn = S_G if part == 0 else S_U
        for j in range(4):
            pre = f"s_add_u32 m0, s{S_M0W}, {b*32768 + part*16384}" if j == 0 else None
            g.append((pre, I(f"buffer_load_dwordx4 v{V_DW+j}, s[{srdn}:{srdn+3}], s{S_OG} offen offset:{j*1024}{nt} lds", vm=("st", s))))
    g.append((f"s_add_u32 m0, s{S_M0Q}, {b*2048}", I(f"buffer_load_dwordx4 v{V_DQ}, s[{S_WQ}:{S_WQ+3}], s{S_OQ} offen{nt} lds", vm=("st", s))))
    adv = {7: [f"s_add_u32 s{S_OX}, s{S_OX}, 128", f"s_add_u32 s{S_OX2}, s{S_OX2}, 128"],
           15: [f"s_add_u32 s{S_OG}, s{S_OG}, {64*7168}"], 16: [f"s_add_u32 s{S_OQ}, s{S_OQ}, 0x20000"]}
    if 1 <= s - KVD <= 8:
        g.append((f"s_add_u32 m0, s{S_M0K}, {b*8192}", I(f"buffer_load_dwordx4 v{V_DK}, s[{S_KV}:{S_KV+3}], s{S_OK} offen lds", vm=("st", s))))
        adv[17] = [f"s_add_u32 s{S_OK}, s{S_OK}, 8192"]
    return g, adv
def xread(s, kk, i):
    return I(f"ds_read_b128 {ar(XF[kk]+4*i,4)}, v{V_RX[kk]} offset:{(s%2)*32768 + i*2048}", lg=("fr", s, kk))
def wread(s, kk, j, h):
    if j % 4 == 3:
        reg, off = (V_R3 if j == 3 else V_R7), h*1024 + kk*8192
    else:
        reg, off = V_RW + (j & 3), (s % 2)*32768 + h*1024 + kk*8192 + (16384 if j >= 4 else 0)
    return I(f"ds_read_b64_tr_b16 {ar(WF[kk]+4*j+2*h,2)}, v{reg} offset:{off}", lg=("fr", s, kk))
def reads(s, kk):
    r = [wread(s, kk, 0, 0), wread(s, kk, 0, 1)] + [xread(s, kk, i) for i in range(8)]
    for j in range(1, 8): r += [wread(s, kk, j, 0), wread(s, kk, j, 1)]
    return r
def mfma(kk, j, i, first=False):
    return f"v_mfma_f32_16x16x32_bf16 {acc(j,i)}, {ar(WF[kk]+4*j,4)}, {ar(XF[kk]+4*i,4)}, {'0' if first else acc(j,i)}"
def vcap(items):
    c = 2
    for x in items:
        t = x["text"] or "s_"
        if t.startswith("ds_"): c -= 1
        elif t.startswith(("buffer_", "global_")): c -= 2
        elif t.startswith("v_"): c -= 1
    return max(c, 0)
from k1 import g_ops as _g_ops
import k1 as _k1
_k1.A_GX, _k1.A_GW = A_GX, A_GW

def gen(dbg=False, hdbg=None, lead=True, lphase=0, xmask=0xffffff, tt0=0, wv0=1, cl=1, gc=(10, 8), dc=8, slack=0, ph2new=True, tp2=False, tb=8, tlb=0, tlbpos=17, tdefer=False, tpro=0, tpos=0, gl=3, pads=0, epos=10, chain_at=1, ot=99, touch=1, nhead=13, p1=13, npro0=8, gs=11, tq0=5, ntw=False, ntt=True, exp='',
        NIN=25, g0=22, hsig=7, hpoll=15, opre=1, nb=(1, 2)):
    esig = KVD + 11
    if tp2:
        tq0 = 100; p2.KVS = {0: (4, 6), 1: (1, 3)}
    p2.configure(NIN)
    p2.CL = cl; p2.GC1, p2.GC2 = gc; p2.DC1 = dc; p2.SLACK = slack
    a = Asm()
    L = f"v{V_LANE}"
    a("s_cmp_ge_u32 s2, 256")
    a("s_cbranch_scc1 KM_END")
    st = Stamps(a, dbg)
    st.stamp()
    a("s_memrealtime s[72:73]")
    a("s_load_dwordx8 s[56:63], s[0:1], 0")
    a("s_load_dwordx8 s[64:71], s[0:1], 48")
    a("s_load_dwordx2 s[74:75], s[0:1], 32")
    a("s_load_dwordx4 s[96:99], s[0:1], 80")
    a("s_load_dwordx2 s[86:87], s[0:1], 96")
    code_prefetch(a, "KM", 32, "a255", 3)
    a(f"""
    v_and_b32 {L}, 63, v0
    v_lshrrev_b32 v1, 6, v0
    s_and_b32 s80, s2, 7
    v_readfirstlane_b32 s{S_W}, v1
    s_lshr_b32 s81, s2, 3
    s_and_b32 s{S_MT}, s81, 7
    s_lshr_b32 s83, s81, 3
    s_lshl_b32 s80, s80, 2
    s_add_u32 s{S_NT}, s80, s83
    s_mul_i32 s85, s{S_NT}, 224
    s_mov_b32 s{S_OG}, 0
    s_mov_b32 s{S_OQ}, 0
    v_lshrrev_b32 v21, 3, {L}
    s_lshl_b32 s81, s{S_MT}, 8
    s_lshl_b32 s82, s{S_W}, 6
    s_add_u32 s81, s81, s82
    v_add_u32 v21, s81, v21
    v_lshlrev_b32 v21, 11, v21
    v_and_b32 v22, 7, {L}
    v_lshrrev_b32 v23, 4, {L}
    v_xor_b32 v22, v22, v23
    v_lshlrev_b32 v22, 4, v22
    v_xor_b32 v24, 64, v22
    """)
    for j in range(4):
        a(f"v_add_u32 v{V_DX+j}, v21, {'v22' if j % 2 == 0 else 'v24'}")
        if j: a(f"v_add_u32 v{V_DX+j}, {j*8*2048 - j*1024}, v{V_DX+j}")
    a(f"""
    s_mov_b32 s{S_OX}, 0
    s_mov_b32 s{S_OX2}, 65536
    s_mov_b32 s{S_OK}, 0
    s_lshl_b32 s81, s{S_W}, 4
    s_movk_i32 s84, 7168
    v_add_u32 v21, s81, v23
    v_mul_lo_u32 v21, v21, s84
    v_add_u32 v21, s85, v21
    v_and_b32 v25, 1, {L}
    v_lshl_add_u32 v21, v25, 4, v21
    v_bfe_u32 v22, {L}, 1, 3
    v_xor_b32 v22, v22, v23
    v_xor_b32 v24, 4, v22
    v_min_u32 v22, 6, v22
    v_min_u32 v24, 6, v24
    v_lshl_add_u32 v{V_DW}, v22, 5, v21
    v_add_u32 v{V_DW+1}, {4*7168 - 1024}, v{V_DW}
    v_lshl_add_u32 v{V_DW+2}, v24, 5, v21
    v_add_u32 v{V_DW+2}, {2*(4*7168 - 1024)}, v{V_DW+2}
    v_add_u32 v{V_DW+3}, {4*7168 - 1024}, v{V_DW+2}
    s_lshl_b32 s{S_M0X}, s{S_W}, 13
    s_lshl_b32 s{S_M0W}, s{S_W}, 12
    s_add_u32 s{S_M0W}, s{S_M0W}, {LDS_W}
    s_lshl_b32 s{S_M0K}, s{S_W}, 10
    s_add_u32 s{S_M0T}, s{S_M0K}, {LDS_T}
    s_add_u32 s{S_M0K}, s{S_M0K}, {LDS_KW}
    s_lshr_b32 s81, s{S_W}, 1
    s_and_b32 s80, s{S_W}, 1
    """)
    a(f"""
    v_lshlrev_b32 v21, 3, v23
    v_bfe_u32 v22, {L}, 2, 2
    v_add_u32 v21, v21, v22
    s_lshl_b32 s82, s81, 5
    s_lshl_b32 s83, s80, 2
    s_add_u32 s82, s82, s83
    v_add_u32 v21, s82, v21
    v_lshlrev_b32 v21, 11, v21
    v_bfe_u32 v22, {L}, 1, 1
    v_bfe_u32 v24, {L}, 4, 1
    v_xor_b32 v22, v22, v24
    v_lshl_add_u32 v21, v22, 5, v21
    v_lshl_add_u32 v21, v25, 4, v21
    s_lshl_b32 s82, s{S_NT}, 6
    v_add_u32 v{V_DQ}, s82, v21
    s_lshl_b32 s90, s81, 13
    s_lshl_b32 s83, s80, 10
    s_add_u32 s90, s90, s83
    s_waitcnt lgkmcnt(0)
    """)
    st.n and None
    a(f"s_or_b32 s{S_TAG}, s72, 1")
    srd(a, S_X, 56, 2048*1024*2)
    srd(a, S_G, 64, 1024*3584*2)
    srd(a, S_U, 66, 1024*3584*2)
    srd(a, S_WQ, 58, 1024*1024*2)
    a(f"s_add_u32 s{S_M0Q}, s90, {LDS_QS}")
    st.stamp()
    pro = Trace()
    def dma_items(s, lo, hi):
        g, adv = dma_group(s, ntw)
        out = []
        for k in range(lo, min(hi, len(g))):
            pre, it = g[k]
            out.append(([I(pre), I("s_nop 0")] if pre else []) + [it] + [I(x) for x in adv.get(k, [])])
        return out
    pc = Asm()
    pc(f"""
    v_lshlrev_b32 v{V_L16}, 4, {L}
    v_and_b32 v21, 15, {L}
    s_lshl_b32 s83, s81, 14
    v_lshlrev_b32 v22, 7, v21
    v_lshrrev_b32 v24, 1, v21
    v_xor_b32 v24, v24, v23
    v_lshl_add_u32 v22, v24, 4, v22
    v_add_u32 v{V_RX[0]}, s83, v22
    v_xor_b32 v{V_RX[1]}, 64, v{V_RX[0]}
    v_bfe_u32 v21, {L}, 2, 2
    v_lshl_add_u32 v22, v23, 3, v21
    v_and_b32 v24, 3, {L}
    v_lshlrev_b32 v24, 3, v24
    v_lshl_add_u32 v{V_RKW}, v22, 5, v24
    s_lshl_b32 s83, s81, 11
    s_add_u32 s83, s83, {LDS_KW}
    v_add_u32 v{V_RKW}, s83, v{V_RKW}
    v_lshl_add_u32 v22, v22, 8, v24
    v_add_u32 v22, {LDS_W}, v22
    v_and_b32 v25, 1, v23
    v_lshl_or_b32 v1, v25, 2, v21
    s_lshl_b32 s82, s80, 2
    """)
    for j in range(4):
        pc(f"s_add_u32 s83, s82, {j}")
        pc(f"v_xor_b32 v{V_T}, s83, v1")
        pc(f"v_lshl_add_u32 v{V_RW+j}, v{V_T}, 5, v22")
    pc(f"""
    v_add_u32 v{V_R7}, 16384, v{V_R3}
    v_lshl_add_u32 v22, v23, 2, v21
    v_lshl_add_u32 v22, v22, 6, v24
    v_lshl_add_u32 v22, v25, 5, v22
    v_add_u32 v22, {LDS_QS}, v22
    v_xor_b32 v1, 32, v22
    s_cmp_eq_u32 s80, 1
    s_cselect_b64 vcc, -1, 0
    s_movk_i32 s{S_TOG}, 2048
    s_cselect_b32 s{S_TOG}, s{S_TOG}, 0x8000
    v_cndmask_b32 v{V_R3}, v{V_R3}, v22, vcc
    v_cndmask_b32 v{V_R7}, v{V_R7}, v1, vcc
    """)
    p = Asm()
    p(f"""
    v_lshrrev_b32 v1, 3, {L}
    v_lshlrev_b32 v1, 11, v1
    v_bfe_u32 v25, {L}, 1, 2
    v_xor_b32 v25, v25, v23
    v_lshl_add_u32 v1, v25, 5, v1
    v_and_b32 v25, 1, {L}
    v_lshl_add_u32 v{V_DT}, v25, 4, v1
    v_lshl_add_u32 v1, v23, 2, v21
    v_bfe_u32 v25, v1, 1, 2
    v_xor_b32 v25, s{S_W}, v25
    v_lshlrev_b32 v1, 7, v1
    v_lshl_add_u32 v1, v25, 5, v1
    v_add_u32 v1, v1, v24
    v_add_u32 v{V_RT}, {LDS_T}, v1
    s_lshr_b32 s82, s2, 4
    s_and_b32 s83, s2, 15
    s_mul_i32 s{S_TSRC}, s82, {224*2048}
    s_lshl_b32 s90, s83, 7
    s_add_u32 s{S_TSRC}, s{S_TSRC}, s90
    s_lshl_b32 s{S_TSRC2}, s82, 17
    s_add_u32 s{S_TSRC2}, s{S_TSRC2}, s90
    s_mul_i32 s90, s80, {112*2048}
    s_add_u32 s{S_TSRCS}, s{S_TSRC}, s90
    s_lshl_b32 s90, s81, 13
    s_add_u32 s{S_TSRCS}, s{S_TSRCS}, s90
    s_add_u32 s{S_TSRCS}, s{S_TSRCS}, {96*2048}
    s_lshl_b32 s90, s{S_W}, 14
    s_add_u32 s{S_TSRC}, s{S_TSRC}, s90
    s_lshl_b32 s90, s80, 15
    s_add_u32 s{S_TSRC2}, s{S_TSRC2}, s90
    s_lshl_b32 s90, s81, 14
    s_add_u32 s{S_TSRC2}, s{S_TSRC2}, s90
    s_lshr_b32 s90, s83, 1
    s_mul_i32 s90, s90, {144*8192}
    s_and_b32 s83, s83, 1
    s_lshl_b32 s83, s83, 12
    s_add_u32 s90, s90, s83
    s_lshl_b32 s83, s{S_W}, 10
    s_add_u32 s90, s90, s83
    s_add_u32 s90, s90, {WS_WT:#x}
    s_mul_i32 s{S_TDST}, s82, {7*8192}
    s_add_u32 s{S_TDST}, s{S_TDST}, s90
    s_lshl_b32 s{S_TDST2}, s82, 14
    s_add_u32 s{S_TDST2}, s{S_TDST2}, s90
    s_add_u32 s{S_TDST2}, s{S_TDST2}, {112*8192}
    s_lshl_b32 s82, s2, 3
    s_lshl_b32 s83, s{S_W}, 1
    s_add_u32 s82, s82, s83
    s_lshl_b32 s{S_GROW}, s82, 11
    v_lshrrev_b32 v1, 5, {L}
    v_add_u32 v{V_GROW}, s82, v1
    v_lshlrev_b32 v{V_GROW}, 3, v{V_GROW}
    v_add_u32 v{V_GROW}, {WS_G:#x}, v{V_GROW}
    s_lshl_b32 s82, s{S_MT}, 2
    s_add_u32 s82, s82, s{S_W}
    s_lshl_b32 s82, s82, 5
    s_add_u32 s82, s82, s{S_NT}
    s_lshl_b32 s82, s82, 7
    s_add_u32 s{S_FLG}, s82, {WS_FLAG:#x}
    """)
    ps = Asm() if tlb else p
    ps(f"""
    s_and_b32 s82, s{S_NT}, 2
    s_cmp_eq_u32 s82, 0
    s_cselect_b32 s{S_KV}, s60, s62
    s_cselect_b32 s{S_KV+1}, s61, s63
    s_and_b32 s{S_KV+1}, s{S_KV+1}, 0xffff
    s_mov_b32 s{S_KV+2}, 65536
    s_mov_b32 s{S_KV+3}, 0x00020000
    """)
    srd(ps, S_WS, 86, WS_SIZE)
    srd(ps, S_GW, 70, 2048)
    srd(ps, S_WD, 68, 3584*1024*2)
    srd(ps, S_WO, 74, 1024*1024*2)
    srd(ps, S_DBG, 98, 256)
    p(f"""
    v_lshrrev_b32 v21, 1, {L}
    v_lshlrev_b32 v21, 6, v21
    v_and_b32 v22, 1, {L}
    v_lshl_add_u32 v21, v22, 4, v21
    s_and_b32 s82, s{S_NT}, 1
    s_lshl_b32 s82, s82, 5
    s_lshl_b32 s83, s{S_W}, 11
    s_add_u32 s82, s82, s83
    v_add_u32 v{V_DK}, s82, v21
    s_lshl_b32 s82, s{S_MT}, 8
    s_lshr_b32 s83, s{S_NT}, 2
    s_lshl_b32 s83, s83, 5
    s_add_u32 s82, s82, s83
    s_lshl_b32 s83, s80, 4
    s_add_u32 s82, s82, s83
    s_lshl_b32 s82, s82, 11
    s_lshl_b32 s83, s81, 7
    s_add_u32 s82, s82, s83
    v_and_b32 v21, 15, {L}
    v_lshlrev_b32 v22, 11, v21
    v_lshl_add_u32 v22, v23, 4, v22
    v_add_u32 v{V_KX}, s82, v22
    """)
    pt = Asm()
    plain_addr = f"""s_lshl_b32 s82, s{S_MT}, 3
        v_bfe_u32 v24, {L}, 2, 3
        v_add_u32 v24, s82, v24
        v_lshlrev_b32 v21, 11, v24
        v_mul_lo_u32 v24, v24, s84
        v_and_b32 v1, 3, {L}
        v_lshlrev_b32 v1, 7, v1
        v_min_u32 v1, 220, v1
        v_add3_u32 v24, v24, v1, s85
        s_lshl_b32 s82, s{S_NT}, 6
        v_add_u32 v21, s82, v21"""
    lead_addr = f"""s_mov_b32 s{S_TSTEP}, {OOB:#x}
        s_and_b32 s82, s{S_NT}, 3
        s_lshl_b32 s82, s82, 4
        v_lshrrev_b32 v24, 3, {L}
        v_add_u32 v24, s82, v24
        v_mul_lo_u32 v24, v24, s84
        v_and_b32 v1, 7, {L}
        v_min_u32 v1, 6, v1
        v_lshl_add_u32 v24, v1, 7, v24
        s_lshr_b32 s83, s{S_NT}, 2
        s_mul_i32 s90, s83, 896
        v_add_u32 v24, s90, v24
        v_bfe_u32 v21, {L}, 1, 4
        v_add_u32 v21, s82, v21
        v_lshlrev_b32 v21, 11, v21
        v_and_b32 v1, 1, {L}
        v_lshl_add_u32 v21, v1, 7, v21
        s_lshl_b32 s83, s83, 8
        v_add_u32 v21, s83, v21
        s_lshl_b32 s{S_LMASK}, 0x10101, s{S_MT}
        s_cmp_eq_u32 s{S_W}, 0
        s_cselect_b32 s{S_LMASK}, {xmask:#x}, s{S_LMASK}
        s_add_u32 s82, s{S_W}, 1
        s_and_b32 s82, s82, 2
        s_cselect_b32 s{S_T2D}, {8*7168}, s{S_TSTEP}"""
    if touch:
        (pt if tpro else p)(f"""
        s_and_b32 s82, s{S_NT}, 3
        s_lshl_b32 s82, s82, 6
        s_lshl_b32 s83, s{S_MT}, 8
        s_add_u32 s82, s82, s83
        v_add_u32 v25, s82, {L}
        v_lshlrev_b32 v25, 11, v25
        {lead_addr if lead else plain_addr}
        s_mov_b32 s{S_TSTEP}, {64*7168}
        s_cmp_eq_u32 s{S_W}, 0
        s_cselect_b64 vcc, -1, 0
        s_cselect_b32 s{S_TSRD}, s{S_X}, s{S_G}
        s_cselect_b32 s{S_TSRD+1}, s{S_X+1}, s{S_G+1}
        s_cselect_b32 s{S_TSRD+2}, s{S_X+2}, s{S_G+2}
        s_cselect_b32 s{S_TSTEP}, 128, s{S_TSTEP}
        v_cndmask_b32 v{V_T}, v24, v25, vcc
        s_cmp_eq_u32 s{S_W}, 2
        s_cselect_b32 s{S_TSRD}, s{S_U}, s{S_TSRD}
        s_cselect_b32 s{S_TSRD+1}, s{S_U+1}, s{S_TSRD+1}
        s_cmp_eq_u32 s{S_W}, 3
        s_cselect_b64 vcc, -1, 0
        s_cselect_b32 s{S_TSRD}, s{S_WQ}, s{S_TSRD}
        s_cselect_b32 s{S_TSRD+1}, s{S_WQ+1}, s{S_TSRD+1}
        s_cselect_b32 s{S_TSRD+2}, s{S_WQ+2}, s{S_TSRD+2}
        s_cselect_b32 s{S_TSTEP}, 0x20000, s{S_TSTEP}
        v_cndmask_b32 v{V_T}, v{V_T}, v21, vcc
        s_mov_b32 s{S_TSRD+3}, 0x00020000
        s_mul_i32 s{S_TOFF}, s{S_TSTEP}, {3 if lead else 2 if tpro else (touch + 1 if touch >= 2 else touch + 2)}
        """)
    late = []
    for l in [l.strip() for l in p.lines]:
        if late and l.startswith(("s_cselect", "s_addc", "v_cndmask", "s_movk_i32 s50")): late[-1].append(l)
        else: late.append([l])
    late += [[f"v_and_b32 v1, 31, {L}"], ["v_lshlrev_b32 v1, 7, v1"], ["s_lshr_b32 s82, s2, 3"], ["s_and_b32 s82, s82, 15"], ["s_lshl_b32 s82, s82, 12"]]
    d0 = dma_items(0, 0, 17)
    for grp in d0[:tlbpos]: pro.items.extend(grp)
    if tlb:
        for l in ps.lines: pro.ins(l.strip())
        pro.raw(f"""
        s_mov_b32 s80, s96
        s_and_b32 s81, s97, 0xffff
        s_mov_b32 s82, {2048*1024*2:#x}
        s_mov_b32 s83, 0x00020000
        v_lshlrev_b32 v1, {tlb}, {L}
        v_min_u32 v1, 0x7f000000, v1
        """)
        for sr_ in (S_G, S_U, S_WS, S_WD, S_WO, S_KV, S_GW, S_DBG, 80, S_X):
            pro.ins(f"buffer_load_dword a{A_DUM}, v1, s[{sr_}:{sr_+3}], 0 offen")
        pro.raw(f"s_lshr_b32 s81, s{S_W}, 1\ns_and_b32 s80, s{S_W}, 1")
    for grp in d0[tlbpos:]: pro.items.extend(grp)
    for l in pt.lines: pro.ins(l.strip())
    tch = lambda: [I(f"buffer_load_dword a{A_DUM}, v{V_T}, s[{S_TSRD}:{S_TSRD+3}], s{S_TOFF} offen", vm=("touch", 0)), I(f"s_add_u32 s{S_TOFF}, s{S_TOFF}, s{S_TSTEP}")]
    if tpos == 0:
        for _ in range(tpro): pro.items.extend(tch())
    for l in pc.lines: pro.ins(l.strip().replace(f"v{V_T},", "v22x,").replace("v22x", "v19"))
    for grp in dma_items(1, 0, p1): pro.items.extend(grp)
    if tpos == 1:
        for _ in range(tpro): pro.items.extend(tch())
    one_time = [I(f"buffer_load_dword a{A_DUM}, v1, s[{S_KV}:{S_KV+3}], s82 offen"), I(f"buffer_load_dword a{A_DUM}, v1, s[{S_GW}:{S_GW+3}], 0 offen")]
    touch_ins = lambda: I(f"buffer_load_dword a{A_DUM}, v{V_T}, s[{S_TSRD}:{S_TSRD+3}], s{S_TOFF} offen", vm=("touch", 0))
    touch_adv = f"s_add_u32 s{S_TOFF}, s{S_TOFF}, s{S_TSTEP}"
    pro2 = Trace()
    pro2.wait(vm=[("st", 0)])
    pro2.ins("s_barrier")
    pro2.items.extend(reads(0, 0))

    gfast, gslow = _g_ops()
    gslow += ["v_max_f32 v25, 0x2b800000, v25", "v_rcp_f32 v23, v25", "v_mul_f32 v24, v24, v23"]
    GSPLIT = 70
    c_q = struct.unpack("<I", struct.pack("<f", math.log2(math.e) / math.sqrt(32.0)))[0]
    kvfin = [f"v_accvgpr_read_b32 v{21+r}, a{KVA+r}" for r in range(4)]
    for r in range(4): kvfin += [f"v_accvgpr_read_b32 v1, a{KVW+r}", f"v_add_f32 v{21+r}, v{21+r}, v1", f"v_mul_f32 v{21+r}, s84, v{21+r}"]
    kvfin += ["v_cvt_pk_bf16_f32 v22, v21, v22", "v_cvt_pk_bf16_f32 v23, v23, v24",
              f"v_and_b32 v1, 15, {L}", "v_lshlrev_b32 v1, 4, v1", f"v_bfe_u32 v21, {L}, 4, 1", "v_lshl_add_u32 v1, v21, 9, v1",
              f"v_lshrrev_b32 v21, 5, {L}", "v_lshl_add_u32 v1, v21, 3, v1",
              f"buffer_store_dwordx2 v[22:23], v1, s[{S_WS}:{S_WS+3}], s82 offen offset:2048 sc1",
              f"v_bfe_u32 v24, {L}, 3, 1", "v_lshlrev_b32 v24, 10, v24", f"v_bfe_u32 v21, {L}, 2, 1", "v_lshl_add_u32 v24, v21, 9, v24",
              f"v_lshrrev_b32 v21, 4, {L}", "v_lshl_add_u32 v24, v21, 6, v24", f"v_and_b32 v21, 3, {L}", "v_lshl_add_u32 v24, v21, 1, v24",
              f"buffer_store_short v22, v24, s[{S_WS}:{S_WS+3}], s83 offen sc1",
              f"buffer_store_short_d16_hi v22, v24, s[{S_WS}:{S_WS+3}], s83 offen offset:16 sc1",
              f"buffer_store_short v23, v24, s[{S_WS}:{S_WS+3}], s83 offen offset:32 sc1",
              f"buffer_store_short_d16_hi v23, v24, s[{S_WS}:{S_WS+3}], s83 offen offset:48 sc1"]
    kvsal = f"""s_lshl_b32 s82, s{S_MT}, 3
    s_lshr_b32 s83, s{S_NT}, 2
    s_add_u32 s82, s82, s83
    s_lshl_b32 s82, s82, 12
    s_add_u32 s82, s82, {WS_KV:#x}
    s_and_b32 s85, s{S_NT}, 1
    s_lshl_b32 s83, s85, 3
    s_add_u32 s83, s83, s82
    s_lshl_b32 s85, s85, 8
    s_add_u32 s82, s82, s85
    s_lshl_b32 s85, s{S_W}, 10
    s_add_u32 s82, s82, s85
    s_lshl_b32 s85, s{S_W}, 8
    s_add_u32 s83, s83, s85
    s_and_b32 s85, s{S_NT}, 2
    s_cmp_eq_u32 s85, 0
    s_cselect_b32 s84, {c_q:#x}, 1.0
    s_cselect_b32 s82, {OOB:#x}, s82
    s_cselect_b32 s83, s83, {OOB:#x}
    s_cmp_ge_u32 s{S_W}, 2
    s_cselect_b32 s82, {OOB:#x}, s82
    s_cselect_b32 s83, {OOB:#x}, s83""".split("\n")
    kvsal = [x.strip() for x in kvsal]
    kvsal = kvsal[:-7] + ["\n".join(kvsal[-7:-3]), "\n".join(kvsal[-3:])]
    segs = []
    grest = []
    def tstore(q):
        so = S_TDST if q < 7 else S_TDST2
        return [I(f"buffer_store_dwordx4 {ar(TREG[q] if tdefer else A_T,4)}, v{p2.V_L16 if tdefer else V_L16}, s[{S_WS}:{S_WS+3}], s{so} offen sc1", vm=("ts", q)), I(f"s_add_u32 s{so}, s{so}, 8192")]
    for s in range(NST - 1):
        tr = Trace()
        gaps = [[] for _ in range(66)]
        rl = reads(s, 1)
        u = s - KVD
        if 1 <= u <= 8:
            for e in range(2):
                for h in range(2):
                    rl.append(I(f"ds_read_b64_tr_b16 {ar(KVW+4*e+2*h,2)}, v{V_RKW} offset:{(s%2)*8192 + e*1024 + h*128}", lg=("kvf", s)))
        if u == 9:
            gaps[1].append(I(f"v_add_u32 v21, {LDS_KW + 8192*(s%2)}, v{V_L16}"))
            gaps[3].append(I(f"s_lshl_b32 s82, s{S_W}, 10")); gaps[5].append(I("v_add_u32 v22, s82, v21"))
            gaps[7].append(I("s_xor_b32 s82, s82, 2048")); gaps[9].append(I("v_add_u32 v21, s82, v21"))
            rl.append(I(f"ds_write_b128 v22, {ar(KVA,4)}", lg=("kvf", s)))
        for k, it in enumerate(rl): gaps[2*k].append(it)
        gaps[57].append(I(f"v_xor_b32 v{V_R3}, s{S_TOG}, v{V_R3}")); gaps[59].append(I(f"v_xor_b32 v{V_R7}, s{S_TOG}, v{V_R7}"))
        g, adv = dma_group(s + 1, ntw)
        lo = p1 if s == 0 else nhead
        G = 11 if u == 9 else 1
        for k in range(lo, len(g)):
            pre, it = g[k]
            if pre: gaps[G - 1].append(I(pre))
            gaps[G].append(it)
            for x in adv.get(k, []): gaps[G + 1].append(I(x))
            G += 4
        G = max(G - 2, 3)
        if touch and (s >= 1 or tpro) and s + touch + 1 < NST and not (tpro and s + touch + 1 < 2 + tpro):
            if lead:
                for r_ in range(touch if s == 1 else 1):
                    gaps[G - 1].append(I(f"s_bitcmp1_b32 s{S_LMASK}, {s + r_ + lphase}\ns_cselect_b32 s60, s{S_TOFF}, {OOB:#x}"))
                    gaps[G].append(I(f"buffer_load_dword a{A_DUM}, v{V_T}, s[{S_TSRD}:{S_TSRD+3}], s60 offen"))
                    gaps[G + 1].append(I(f"s_add_u32 s60, s60, s{S_T2D}")); gaps[G + 1].append(I(touch_adv))
                    gaps[G + 2].append(I(f"buffer_load_dword a{A_DUM}, v{V_T}, s[{S_TSRD}:{S_TSRD+3}], s60 offen")); G += 4
            else:
              for _ in range(2 if (s == 1 and touch >= 2 and not tpro) else 1):
                gaps[G].append(touch_ins()); gaps[G + 1].append(I(touch_adv)); G += 2
        if tt0 and tt0 <= s < tt0 + 4:
            if s == tt0:
                pre_ = f"""v_lshrrev_b32 v21, 3, {L}
                v_min_u32 v21, 5, v21
                v_lshlrev_b32 v22, 16, v21
                v_cmp_lt_u32 vcc, 2, v21
                v_and_b32 v21, 7, {L}
                v_lshl_add_u32 v22, v21, 11, v22
                v_add_u32 v23, {16*2048}, v22
                v_cndmask_b32 v22, v22, v23, vcc
                v_bfe_u32 v23, {L}, 2, 1
                v_lshl_add_u32 v23, v23, 2, v21
                v_lshlrev_b32 v23, 11, v23
                v_and_b32 v24, 0x1ffff, v22
                s_lshr_b32 s61, s{S_MT}, 1""".split("\n")
                for k_, x in enumerate(pre_): gaps[2*k_ + 1].append(I(x.strip()))
                G = max(G, 28)
            gaps[G - 1].append(I(f"s_cmp_eq_u32 s61, {s - tt0}\ns_cselect_b32 s62, s{S_TSRC}, {OOB:#x}\ns_cselect_b32 s63, s{S_TSRCS}, {OOB:#x}\ns_cselect_b32 s60, s{S_TSRC2}, {OOB:#x}"))
            gaps[G].append(I(f"buffer_load_dword a{A_DUM}, v22, s[{S_WD}:{S_WD+3}], s62 offen")); G += 2
            gaps[G].append(I(f"buffer_load_dword a{A_DUM}, v23, s[{S_WD}:{S_WD+3}], s63 offen")); G += 2
            gaps[G].append(I(f"buffer_load_dword a{A_DUM}, v24, s[{S_WO}:{S_WO+3}], s60 offen")); G += 2
        if 0 <= u <= 7:
            for e in range(2):
                gaps[G].append(I(f"buffer_load_dwordx4 {ar(A_KX + 8*(u%2) + 4*e,4)}, v{V_KX}, s[{S_X}:{S_X+3}], 0 offen offset:{u*256 + e*64}", vm=("kx", u))); G += 2
        q = s - tq0
        if 0 <= q < 9:
            fl = " nt" if ntt else ""
            gaps[G - 1].append(I(f"s_add_u32 m0, s{S_M0T}, {(q%3)*4096}"))
            if q == 6:
                gaps[G - 2].append(I(f"v_lshrrev_b32 v{V_KX}, 5, {L}")); gaps[G - 1].append(I(f"v_lshl_add_u32 v{V_KX}, v{V_KX}, 13, v{V_DT}"))
                gaps[G].append(I(f"buffer_load_dwordx4 v{V_KX}, s[{S_WD}:{S_WD+3}], s{S_TSRCS} offen{fl} lds", vm=("t", q)))
            else:
                srdn, so = (S_WD, S_TSRC) if q < 7 else (S_WO, S_TSRC2)
                gaps[G].append(I(f"buffer_load_dwordx4 v{V_DT}, s[{srdn}:{srdn+3}], s{so} offen{fl} lds", vm=("t", q)))
                gaps[G + 1].append(I(f"s_add_u32 s{so}, s{so}, {48*2048 if q == 2 else 0x10000}"))
            G += 2
        q = s - tq0 - 2
        if 0 <= q < 9 and not tdefer:
            x, y = tstore(q); gaps[G].append(x); gaps[G + 1].append(y); G += 2
        if s == ot:
            for x in one_time: gaps[G].append(x); G += 2
        if s == 2:
            gaps[G - 1].append(I(f"v_mov_b32 v21, s{S_TAG}"))
            gaps[G].append(I(f"s_or_b32 s83, s2, s{S_W}\ns_cselect_b32 s83, {OOB:#x}, 0")); G += 2
            gaps[G].extend([I("s_mov_b64 exec, 1"), I(f"buffer_store_dword v21, off, s[{S_DBG}:{S_DBG+3}], s83 sc1"), I("s_mov_b64 exec, -1")]); G += 2
        if s == 6:
            gaps[G].append(I(f"buffer_load_dword a{A_TAG}, off, s[{S_DBG}:{S_DBG+3}], 0 sc1", vm=("zp", 0))); G += 2
        if s == esig + 1:
            gaps[G - 2].append(I(f"s_lshl_b32 s82, s{S_MT}, 5")); gaps[G - 1].append(I(f"s_add_u32 s82, s82, s{S_NT}\ns_lshl_b32 s82, s82, 7")); gaps[G].append(I(f"s_add_u32 s82, s82, {WS_FLAG + 0x28000:#x}"))
            gaps[G + 1].append(I(f"s_cmp_eq_u32 s{S_W}, 0\ns_cselect_b32 s82, s82, {OOB:#x}")); G += 2
            gaps[G].extend([I("s_mov_b64 exec, 1"), I(f"buffer_store_dword a{A_TAG}, off, s[{S_WS}:{S_WS+3}], s82 sc1"), I("s_mov_b64 exec, -1")]); G += 2
        kvstart = G
        if s == gl:
            for q_ in range(4):
                gaps[G].append(I(f"buffer_load_dwordx4 {ar(A_GX+4*q_,4)}, v{V_L16}, s[{S_X}:{S_X+3}], s{S_GROW} offen offset:{1024*q_}", vm=("g", 0))); G += 2
            for q_ in range(2):
                gaps[G].append(I(f"buffer_load_dwordx4 {ar(A_GW+4*q_,4)}, v{V_L16}, s[{S_GW}:{S_GW+3}], 0 offen offset:{1024*q_}", vm=("g", 0))); G += 2
        assert G < 64, (s, G)
        tr.wait(lg=[("fr", s, 0)] + ([("tf", q)] if 0 <= q < 9 else []) + ([("kvp", 0)] if u == 10 else []))
        vq = []
        if s in (gs + 2, gs + 3): vq = gfast
        if u == 10: vq = list(kvfin)
        k = 0
        for j in range(8):
            for i in range(8):
                tr.ins(mfma(0, j, i, first=(s == 0)))
                tr.items.extend(gaps[k])
                cap = vcap(gaps[k])
                if s == 0:
                    for _ in range(2):
                        if late and cap > 0:
                            for l in late.pop(0): tr.ins(l)
                            cap -= 1
                while vq and cap > 0 and not (u == 10 and k < kvstart - 8):
                    if vq[0].startswith("buffer_"):
                        if cap < 2: break
                        tr.ins(vq.pop(0), vm=("kvst", 0)); cap -= 2
                    else:
                        tr.ins(vq.pop(0)); cap -= 1
                k += 1
        if s != gs + 2: assert not vq
        need = [("st", s + 1)]
        if 0 <= s - tq0 - 1 < 9: need.append(("t", s - tq0 - 1))
        if s == gs + 1: need.append(("g", 0))
        if 1 <= u <= 8: need.append(("kx", u - 1))
        if s == 7: need.append(("zp", 0))
        if s == esig: need.append(("kvst", 0))
        if pads and s == chain_at: tr.ins("@CHAIN1")
        tr.wait(vm=need, lg=[("fr", s, 1)] + ([("kvf", s)] if 1 <= u <= 9 else []))
        tr.ins("s_barrier")
        segs.append(tr)
        tr = Trace()
        gaps = [[] for _ in range(68)]
        for k, it in enumerate(reads(s + 1, 0)): gaps[2*k + 1].append(it)
        q = s - tq0 - 1
        if 0 <= q < 9:
            for h in range(2):
                gaps[49 + 2*h].append(I(f"ds_read_b64_tr_b16 {ar((TREG[q] if tdefer else A_T)+2*h,2)}, v{V_RT} offset:{(q%3)*4096 + h*2048}", lg=("tf", q)))
        if u == 9:
            gaps[53].append(I(f"ds_read_b128 {ar(KVW,4)}, v21", lg=("kvp", 0)))
            for k, x in enumerate(kvsal): gaps[2*k + 3 if 2*k + 3 < 48 else 55].append(I(x.strip()))
        if s + 2 < NST:
            g, adv = dma_group(s + 2, ntw)
            hg = [2*round(k*62/(2*nhead)) for k in range(nhead)]
            for k in range(nhead):
                pre, it = g[k]
                if pre:
                    if hg[k]: gaps[hg[k] - 1].insert(0, I(pre))
                    else: tr.ins(pre)
                gaps[hg[k]].append(it)
                for x in adv.get(k, []): gaps[hg[k] + 2].append(I(x))
        if s == 7:
            gaps[54].append(I(f"v_accvgpr_read_b32 v1, a{A_TAG}"))
            gaps[56].append(I(f"v_cmp_eq_u32 vcc, 0, v1")); gaps[58].append(I("s_cbranch_vccnz KM_ZSPIN\nKM_ZBACK:"))
            gaps[60].append(I(f"v_accvgpr_write_b32 a{A_TAG}, v1")); gaps[62].append(I(f"v_readfirstlane_b32 s{S_TAG}, v1"))
        if s == 14:
            gaps[0].append(I(f"v_lshlrev_b32 v{V_T}, 7, {L}"))
            gaps[2].append(I(f"s_mov_b32 s{S_EF}, {WS_FLAG + 0x28000:#x}"))
            gaps[epos].append(I(f"buffer_load_dword v{V_KX}, v{V_T}, s[{S_WS}:{S_WS+3}], s{S_EF} offen sc1", vm=("ep", 0)))
            if pads:
                gaps[50].append(I("s_getpc_b64 s[32:33]\nKM_PC2:\ns_add_u32 s32, s32, KM_NORM-0x4000-KM_PC2\ns_addc_u32 s33, s33, 0"))
                gaps[52].append(I("s_and_b32 s33, s33, 0xffff")); gaps[53].append(I("s_mov_b32 s34, KM_END-KM_NORM+0x4000"))
                gaps[54].append(I("s_mov_b32 s35, 0x00020000")); gaps[55].append(I(f"s_lshl_b32 s82, s{S_W}, 13"))
                gaps[56].append(I(f"buffer_load_dword a{A_DUM}, v{V_T}, s[32:35], s82 offen"))
        vq = []; slow = []; slow_from = None
        if s in (gs + 1, gs + 2): vq = gfast
        if s == gs + 3: slow = list(gslow)
        ml = [mfma(1, j, i) for j in range(8) for i in range(8)]
        if 1 <= u <= 8:
            for e in range(2):
                ml.insert(30 + 20*e, f"v_mfma_f32_16x16x32_bf16 {ar(KVA,4)}, {ar(A_KX + 8*((u-1)%2) + 4*e,4)}, {ar(KVW+4*e,4)}, {'0' if (u == 1 and e == 0) else ar(KVA,4)}")
        for k, m in enumerate(ml):
            tr.ins(m)
            tr.items.extend(gaps[k])
            for _ in range(vcap(gaps[k])):
                if vq: tr.ins(vq.pop(0))
                elif s == 0 and late:
                    for l in late.pop(0): tr.ins(l)
            if slow and not vq:
                if slow_from is None: slow_from = k + 2
                if k >= slow_from and (k - slow_from) % 2 == 0: tr.ins(slow.pop(0))
        for k in range(len(ml), 68): assert not gaps[k], (s, k)
        assert not slow and not late
        segs.append(tr)

    P = p2
    ec = Trace()
    ec.wait(vm=[("ep", 0)])
    ec.raw(f"""
    v_cmp_ne_u32 vcc, s{S_TAG}, v{V_KX}
    s_and_b32 s80, s2, 7
    s_lshr_b32 s81, s80, 1
    s_lshl_b32 s{P.S_MT}, s{S_MT}, 2
    s_cbranch_vccnz KM_ESPIN
    KM_EBACK:
    s_add_u32 s{P.S_MT}, s{P.S_MT}, s81
    s_lshl_b32 s{P.S_M0KV}, s{S_W}, 13
    s_add_u32 s82, s{P.S_M0KV}, {WS_KV:#x}
    s_add_u32 s{P.S_KVB}, s86, s82
    s_addc_u32 s{P.S_KVB+1}, s87, 0
    v_add_u32 v{V_DK}, 4096, v{V_L16}
    """)
    su2 = f"""
    s_and_b32 s80, s80, 1
    s_lshl_b32 s80, s80, 2
    s_and_b32 s90, s{S_NT}, 3
    s_add_u32 s{P.S_NT}, s80, s90
    s_lshr_b32 s90, s{P.S_MT}, 1
    s_mul_i32 s90, s90, 112
    s_mul_i32 s91, s{S_W}, 28
    s_add_u32 s90, s90, s91
    s_lshl_b32 s90, s90, 13
    s_and_b32 s42, s{P.S_MT}, 1
    s_lshl_b32 s42, s42, 12
    s_add_u32 s90, s90, s42
    s_add_u32 s58, s86, s90\ns_addc_u32 s59, s87, 0
    s_add_u32 s60, s58, 0x2000\ns_addc_u32 s61, s59, 0
    s_add_u32 s62, s58, 0x4000\ns_addc_u32 s63, s59, 0
    s_mov_b64 s[{P.S_HB}:{P.S_HB+1}], s[62:63]
    s_mul_i32 s90, s{P.S_NT}, 144
    s_add_u32 s91, s91, s90
    s_lshl_b32 s91, s91, 13
    s_add_u32 s91, s91, {WS_WT:#x}
    s_add_u32 s64, s86, s91\ns_addc_u32 s65, s87, 0
    s_add_u32 s66, s64, 0x2000\ns_addc_u32 s67, s65, 0
    s_add_u32 s68, s64, 0x4000\ns_addc_u32 s69, s65, 0
    s_mov_b64 s[{P.S_WB}:{P.S_WB+1}], s[68:69]
    s_lshl_b32 s91, s{S_W}, 3
    s_add_u32 s90, s90, s91
    s_lshl_b32 s90, s90, 13
    s_add_u32 s90, s90, {WS_WT + 112*8192:#x}
    s_add_u32 s{P.S_WOB}, s86, s90\ns_addc_u32 s{P.S_WOB+1}, s87, 0
    s_mul_i32 s{P.S_M0SP}, s{S_W}, 24576
    s_add_u32 s{P.S_M0SP}, s{P.S_M0SP}, {P.LDS_SP}
    s_mov_b32 s{P.S_OUT}, s96
    s_and_b32 s{P.S_OUT+1}, s97, 0xffff
    s_mov_b32 s{P.S_OUT+2}, {2048*1024*2:#x}
    s_mov_b32 s{P.S_OUT+3}, 0x00020000
    s_mov_b32 s{P.S_OF}, s{S_FLG}
    s_lshl_b32 s90, s{P.S_MT}, 12
    s_add_u32 s{P.S_OP}, s90, {WS_FLAG:#x}
    s_lshl_b32 s90, s{S_W}, 13
    s_add_u32 s{P.S_HP}, s90, {WS_FLAG + 0x20000:#x}
    s_lshl_b32 s90, s2, 7
    s_add_u32 s90, s90, {WS_FLAG + 0x20000:#x}
    s_cmp_eq_u32 s{S_W}, 0\ns_cselect_b32 s{P.S_HF}, s90, {OOB:#x}
    """
    su2 = [x.strip() for x in su2.strip().split("\n    ")]

    def last_stage(wn):
        tr = Trace()
        s = NST - 1
        su = f"""
        s_lshr_b32 s81, s{S_W}, 1
        s_lshl_b32 s82, s{S_MT}, 1
        s_add_u32 s82, s82, s81
        s_mul_i32 s82, s82, 112
        s_lshr_b32 s83, s{S_NT}, 1
        s_mul_i32 s83, s83, 7
        s_add_u32 s82, s82, s83
        s_and_b32 s84, s{S_NT}, 1
        s_add_u32 s85, s82, 6
        s_lshl_b32 s85, s85, 13
        s_mul_i32 s83, s84, 3
        s_add_u32 s82, s82, s83
        s_add_u32 s82, s82, {2*wn}
        s_lshl_b32 s82, s82, 13
        s_add_u32 s83, s82, 8192
        """
        if wn:
            su += f"""
            s_lshl_b32 s84, s84, 9
            s_add_u32 s85, s85, s84
            v_and_b32 v21, 15, {L}
            v_lshlrev_b32 v21, 4, v21
            v_bfe_u32 v24, {L}, 4, 1
            v_lshl_add_u32 v22, v24, 9, v21
            v_lshl_add_u32 v21, v24, 10, v21
            v_lshrrev_b32 v24, 5, {L}
            v_lshl_add_u32 v22, v24, 10, v22
            v_lshl_add_u32 v21, v24, 8, v21
            s_lshl_b32 s81, s81, 13
            s_add_u32 s81, s81, {P.LDS_Q}
            v_add_u32 v22, s81, v22
            v_add_u32 v23, 4096, v21
            """
        setup = [l.strip() for l in su.strip().split("\n") if l.strip()] + su2
        ffn = lambda t, i: dict(kind="f", t=t, i=i, mf=[(2*t, i), (4 + 2*t, i), (2*t + 1, i), (5 + 2*t, i)])
        if wn == 0:
            halves = [[ffn(0, i) for i in range(8)], [ffn(1, i) for i in range(8)]]
        else:
            halves = [[dict(kind="q", i=i, mf=[(3, i), (7, i)]) for i in range(8)] +
                      [dict(kind="s", i=i, mf=[(2, i), (6, i), (2, i + 1), (6, i + 1)]) for i in range(0, 8, 2)],
                      [ffn(0, i) for i in range(8)]]
        pieces = halves[0] + halves[1]
        half = len(halves[0])
        jsets = [sorted(set(j for pc in hv for j, _ in pc["mf"])) for hv in halves]
        def piece_ops(pc, pk):
            o = []
            i = pc["i"]
            tmp = 12 + 4*(i % 2)
            def reg(j, i):
                p_, b = accn(j, i)
                if p_ == "v": return b
                for r in range(4): o.append(f"v_accvgpr_read_b32 v{tmp+r}, a{b+r}")
                return tmp
            r_ = [reg(j, i_) for j, i_ in pc["mf"]]
            if pc["kind"] == "q":
                g0_, g1_ = r_
            else:
                g0_, u0, g1_, u1 = r_
                for g_, u_ in ((g0_, u0), (g1_, u1)):
                    for r in range(4): o.append(f"v_max_f32 v{g_+r}, 0, v{g_+r}")
                    if pk:
                        o.append(f"v_pk_mul_f32 {vr(g_,2)}, {vr(g_,2)}, {vr(u_,2)}")
                        o.append(f"v_pk_mul_f32 {vr(g_+2,2)}, {vr(g_+2,2)}, {vr(u_+2,2)}")
                    else:
                        for r in range(4): o.append(f"v_mul_f32 v{g_+r}, v{g_+r}, v{u_+r}")
            o += [f"v_cvt_pk_bf16_f32 v{g0_}, v{g0_}, v{g0_+1}", f"v_cvt_pk_bf16_f32 v{g0_+1}, v{g0_+2}, v{g0_+3}",
                  f"v_cvt_pk_bf16_f32 v{g0_+2}, v{g1_}, v{g1_+1}", f"v_cvt_pk_bf16_f32 v{g0_+3}, v{g1_+2}, v{g1_+3}"]
            if pc["kind"] == "q":
                o.append(f"ds_write_b128 v22, {vr(g0_,4)} offset:{(i//2)*2048 + (i%2)*256}")
            elif pc["kind"] == "s":
                o += ["s_nop 1", f"v_permlane16_swap_b32 v{g0_}, v{g0_+2}", f"v_permlane16_swap_b32 v{g0_+1}, v{g0_+3}",
                      f"buffer_store_dwordx4 {vr(g0_,4)}, {'v21' if i < 4 else 'v23'}, s[{S_WS}:{S_WS+3}], s85 offen offset:{(i%4)*1024} sc1"]
            else:
                o.append(f"buffer_store_dwordx4 {vr(g0_,4)}, {'v%d' % (V_L16 if i < 4 else V_DK)}, s[{S_WS}:{S_WS+3}], {'s82' if pc['t'] == 0 else 's83'} offen offset:{(i%4)*1024} sc1")
            return o
        rl = [xread(s, 1, i) for i in range(8)]
        for j in jsets[0]: rl += [wread(s, 1, j, 0), wread(s, 1, j, 1)]
        for x in rl: x["lg"] = ("frA", 0)
        for j in jsets[1]: rl += [wread(s, 1, j, 0), wread(s, 1, j, 1)]
        kv0 = []
        for part in range(2):
            cl = [P.kv_dma(0, part, j) for j in range(4)]
            for x in cl: x["text"] = x["text"].replace(f"v{P.V_L16},", f"v{V_L16},").replace(f"v{P.V_L16B},", f"v{V_DK},")
            kv0.append(cl)
        q = s - tq0 - 2
        tr.wait(lg=[("fr", s, 0)] + ([("tf", q)] if 0 <= q < 9 else []))
        first = []
        if gs + 4 == s:
            first.append([I("s_mov_b32 exec_lo, 1\ns_mov_b32 exec_hi, 1"), I(f"buffer_store_dwordx2 v[24:25], v{V_GROW}, s[{S_WS}:{S_WS+3}], 0 offen sc1", vm=("hst", 0)), I("s_mov_b64 exec, -1")])
        if 0 <= q < 9 and not tdefer: first.append([tstore(q)[0]])
        for k, (j, i) in enumerate([(j, i) for j in jsets[0] for i in range(8)]):
            tr.ins(mfma(0, j, i))
            if first:
                tr.items.extend(first.pop(0)); continue
            if k in (26, 29): tr.ins(f"s_add_u32 m0, s{P.S_M0KV}, {4096 if k == 29 else 0}")
            elif k in (27, 30): tr.items.extend(kv0.pop(0))
            elif rl: tr.items.append(rl.pop(0))
            for _ in range(2):
                if setup: tr.ins(setup.pop(0))
        assert not rl
        tr.items.extend(adv64(P.S_KVB, 32768))
        for x in setup: tr.ins(x)
        tr.wait(lg=[("frA", 0)])
        ml = []
        for pi, pc in enumerate(pieces):
            if pi == half:
                ml.append((W(lg=[("fr", s, 1)]), None))
                ml += [(mfma(0, j, i), None) for j in jsets[1] for i in range(8)]
            for j, i in pc["mf"]: ml.append((mfma(1, j, i), pi))
        done_at = {}; cnt = 0; vq = []; nextp = 0
        def put(x):
            tr.ins(x, vm=("hst", 0) if x.startswith("buffer_") else None, lg=("qw", 0) if x.startswith("ds_") else None)
        for k, (m, pi) in enumerate(ml):
            if isinstance(m, dict):
                tr.items.append(m); continue
            tr.ins(m); cnt += 1
            if pi is not None and (k + 1 == len(ml) or ml[k + 1][1] != pi): done_at[pi] = cnt
            budget = 2
            while budget > 0:
                if not vq and nextp in done_at and cnt - done_at[nextp] >= 9:
                    vq = piece_ops(pieces[nextp], False); nextp += 1
                if not vq: break
                c_ = 2 if vq[0].startswith(("buffer_", "ds_")) else 1
                if c_ > budget: break
                put(vq.pop(0)); cnt += 1; budget -= c_
        for x in vq: put(x); cnt += 1
        while nextp < len(pieces):
            if cnt - done_at[nextp] < 9: tr.ins("s_nop 7"); cnt += 8
            for x in piece_ops(pieces[nextp], True): put(x); cnt += 1
            nextp += 1
        return tr
    l0, l1 = last_stage(0), last_stage(1)

    L2 = f"v{P.V_LANE}"
    h2 = Trace()
    h2.raw(f"""
    v_mov_b32 {L2}, {L}
    v_mov_b32 v{P.V_L16}, v{V_L16}
    v_mov_b32 v{P.V_L16B}, v{V_DK}
    v_mov_b32 v{P.V_KVR}, v{V_L16}
    s_lshl_b32 s80, s{S_W}, 12
    s_add_u32 s80, s80, {P.LDS_Q}
    v_add_u32 v24, s80, v{V_L16}
    """)
    h2.wait(vm=[("kv", 0)])
    h2.raw("s_waitcnt lgkmcnt(0)\ns_barrier")
    for q in range(4): h2.ins(f"ds_read_b128 {ar(P.A_Q + 4*q,4)}, v24 offset:{q*1024}", lg=("q", 0))
    for half in range(2): h2.items.append(P.k_read(0, half))
    for half in range(2): h2.items.append(P.v_read(0, half))
    for pp in range(4):
        h2.raw(f"""
        s_add_u32 s80, s{S_W}, {pp}
        s_and_b32 s80, s80, 3
        s_lshl_b32 s80, s80, 11
        v_add_u32 v{P.V_W+pp}, s80, v{P.V_L16}
        """)
    h2.wait(lg=[("k", 0)])
    h2.ins(P.qk(0, 0)); h2.ins(P.qk(0, 1))
    h2.raw(f"""
    v_add_u32 v{P.V_SP}, s{P.S_M0SP}, v{P.V_L16}
    v_add_u32 v{P.V_KP}, s{P.S_M0KV}, v{P.V_L16}
    v_add_u32 v{P.V_WB}, 2048, v{P.V_W}
    v_add_u32 v{P.V_WB+1}, 2048, v{P.V_W+2}
    s_nop 3
    """)
    h2.raw(f"""
    v_bfe_u32 v26, {L2}, 4, 1
    v_bfe_u32 v27, {L2}, 2, 1
    v_cmp_eq_u32 vcc, v26, v27
    v_mov_b32 v26, 0x3f803f80
    s_lshl_b32 s40, s{P.S_MT}, 9
    s_add_u32 s40, s40, {WS_G:#x}
    v_cndmask_b32 v26, 0, v26, vcc
    """)
    for r in range(4): h2.ins(f"v_accvgpr_write_b32 a{P.A_SEL+r}, v26")
    h2.raw(f"""
    s_lshl_b32 s41, s{S_MT}, 11
    s_lshl_b32 s80, s{S_W}, 9
    s_add_u32 s41, s41, s80
    s_add_u32 s41, s41, {WS_G:#x}
    v_and_b32 v26, 31, {L2}
    v_lshlrev_b32 v26, 3, v26
    v_and_b32 v27, 15, {L2}
    v_lshlrev_b32 v27, 3, v27
    v_lshlrev_b32 v25, 7, {L2}
    v_mov_b32 v24, s{S_TAG}
    """)
    def rebase(x, frm, to):
        x["text"] = x["text"].replace(f"s[{frm}:{frm+1}]", f"s[{to}:{to+1}]"); return x
    wl = lambda sg, J0, b: [rebase(P.w_load(sg, J), P.S_WB, b) for J in range(J0, J0 + 4)]
    hl = lambda sg, b: [rebase(P.h_load(sg, i), P.S_HB, b) for i in range(4)]
    early = []
    timed = [(1 + q // 3, tstore(q)) for q in range(9)] if tdefer else []
    if tp2:
        LT2 = 81920
        h2.raw(f"""
        v_lshrrev_b32 v17, 5, {L2}
        v_lshl_add_u32 v17, v17, 13, v{V_DT}
        v_add_u32 v{V_RT}, {LT2 - LDS_T}, v{V_RT}
        s_add_u32 s{S_M0T}, s{S_M0T}, {LT2 - LDS_T}
        """)
        fl = " nt" if ntt else ""
        for q in range(9):
            it_ = [I(f"s_add_u32 m0, s{S_M0T}, {q*4096}"), I("s_nop 0")]
            if q == 6: it_.append(I(f"buffer_load_dwordx4 v17, s[{S_WD}:{S_WD+3}], s{S_TSRCS} offen{fl} lds", vm=("t", q)))
            else:
                srdn, so = (S_WD, S_TSRC) if q < 7 else (S_WO, S_TSRC2)
                it_ += [I(f"buffer_load_dwordx4 v{V_DT}, s[{srdn}:{srdn+3}], s{so} offen{fl} lds", vm=("t", q)), I(f"s_add_u32 s{so}, s{so}, {48*2048 if q == 2 else 0x10000}")]
            timed.append((1 + q // 3, it_))
        timed.append((tb, [W(vm=[("t", 8)]), I("s_barrier")]))
        for q in range(9):
            timed.append((tb + q // 3, [I(f"ds_read_b64_tr_b16 {ar(P.A_WR + 4*q + 2*h,2)}, v{V_RT} offset:{q*4096 + h*2048}", lg=("tf", q)) for h in range(2)]))
        for q in range(9):
            so = S_TDST if q < 7 else S_TDST2
            timed.append((tb + 3 + q // 3, [W(lg=[("tf", q)]), I(f"buffer_store_dwordx4 {ar(P.A_WR + 4*q,4)}, v{P.V_L16}, s[{S_WS}:{S_WS+3}], s{so} offen sc1", vm=("ts", q)), I(f"s_add_u32 s{so}, s{so}, 8192")]))
    timed += [(hsig, [W(vm=[("hst", 0), ("ts", 8)]), I("s_barrier"), I("s_mov_b64 exec, 1"), I(f"buffer_store_dword v24, off, s[{S_WS}:{S_WS+3}], s{P.S_HF} sc1"), I("s_mov_b64 exec, -1")]),
             (hpoll, [I(f"buffer_load_dword v28, v25, s[{S_WS}:{S_WS+3}], s{P.S_HP} offen sc1", vm=("hp", 0))]),
             (hpoll + 2, [W(vm=[("hp", 0)]), I(f"v_cmp_ne_u32 vcc, s{S_TAG}, v28"), I("s_nop 0"), I("s_cbranch_vccnz KM_HSPIN"), I("KM_HBACK:"), I("s_barrier")] + hl(0, 58)),
             (hpoll + 2, wl(0, 0, 64)), (hpoll + 3, wl(0, 4, 64)), (hpoll + 3, hl(1, 60)), (hpoll + 4, wl(1, 0, 66)), (hpoll + 4, wl(1, 4, 66)),
             (hpoll + 5, wl(2, 0, 68)), (hpoll + 5, hl(2, 62)),
             (hpoll + 12, [I(f"buffer_load_dword v{P.V_G+hh}, v26, s[{S_WS}:{S_WS+3}], s41 offen offset:{hh*256} sc1", vm=("g2", 0)) for hh in range(2)]),
             (hpoll + 14, [I(f"buffer_load_dword v{P.V_OMG+i}, v27, s[{S_WS}:{S_WS+3}], s40 offen offset:{4 + i*128} sc1", vm=("g2", 0)) for i in range(4)])]
    body = P.main_loop(NIN, g0, early, timed)
    NDOWN, NWO, ACC = P.NDOWN, P.NWO, P.ACC
    t1 = Trace()
    n = P.NSLOT - 1
    t1.ins("s_nop 1")
    t1.ins(P.pv(n, 0)); t1.ins(P.summ(n, 0)); t1.ins(P.pv(n, 1)); t1.ins(P.summ(n, 1))
    VO = P.V_O
    q_ = Trace()
    q_.raw(f"""
    v_bfe_u32 v26, {L2}, 4, 1
    s_lshl_b32 s78, s{S_MT}, 1
    v_lshlrev_b32 v26, 10, v26
    s_lshr_b32 s79, s{S_W}, 1
    v_and_b32 v27, 15, {L2}
    s_add_u32 s78, s78, s79
    v_lshl_add_u32 v26, v27, 4, v26
    s_lshl_b32 s78, s78, 5
    v_lshrrev_b32 v27, 5, {L2}
    s_add_u32 s78, s78, s{S_NT}
    v_lshl_add_u32 v26, v27, 8, v26
    s_lshl_b32 s78, s78, 13
    s_and_b32 s79, s{S_W}, 1
    s_lshl_b32 s79, s79, 12
    s_add_u32 s78, s78, s79
    s_add_u32 s54, s78, {WS_O:#x}
    s_mov_b32 s78, 0x1f800000
    s_mov_b32 s79, 0x5f800000
    s_mov_b32 s55, 0
    v_accvgpr_read_b32 v80, a{P.A_L}
    v_accvgpr_read_b32 v81, a{P.A_L+4}
    """)
    q_.wait(vm=[("g2", 0)])
    q_.raw(f"""
    v_min_f32 v83, v80, v81
    v_max_f32 v84, v80, v81
    v_add_f32 v85, v80, v81
    v_cmp_nle_f32 s[82:83], s78, v83
    v_cmp_nge_f32 s[84:85], s79, v84
    v_cmp_u_f32 vcc, v85, v85
    """)
    q_.ins("s_nop 1\ns_or_b64 s[82:83], s[82:83], s[84:85]\ns_or_b64 vcc, vcc, s[82:83]\ns_cbranch_vccnz KM_FALLBACK\nKM_NORM:\nv_rcp_f32 v80, v80")
    q_.raw(f"""
    v_rcp_f32 v82, v81
    v_mul_f32 v80, v80, v{P.V_G}
    v_mul_f32 v82, v82, v{P.V_G+1}
    """)
    for hh in range(2):
        for pc in range(2):
            b = VO + 16*hh + 8*pc
            for r in range(8): q_.ins(f"v_mul_f32 v{b+r}, v{b+r}, v{80+2*hh}")
            for q in range(4): q_.ins(f"v_cvt_pk_bf16_f32 v{64+8*hh+4*pc+q}, v{b+2*q}, v{b+2*q+1}")
            q_.ins(f"buffer_store_dwordx4 {vr(64+8*hh+4*pc,4)}, v26, s[{S_WS}:{S_WS+3}], s54 offen offset:{hh*2048 + pc*512} sc1", vm=("ost", 0))
    vq = q_.items
    nA, nB = nb
    stepsA = [P.gemm_step(s, vq=vq) for s in range(NIN, NIN + nA)]
    t2 = Trace()
    t2.items.extend(vq)
    t2.ins("s_nop 1")
    for q in range(4):
        t2.ins(f"v_mfma_f32_16x16x32_bf16 v[84:87], {ar(P.A_SEL,4)}, {vr(64+4*q,4)}, {'0' if q == 0 else 'v[84:87]'}")
    stepsA.append(t2)
    polli = lambda: I(f"buffer_load_dword v28, v25, s[{S_WS}:{S_WS+3}], s{P.S_OP} offen sc1", vm=("op", 0))
    stepsB = [P.gemm_step(s, late=[polli()] if s == NIN + nA + nB - 1 else []) for s in range(NIN + nA, NIN + nA + nB)]
    sig = Trace()
    sig.raw(f"""
    v_and_b32 v25, 31, {L2}
    v_lshlrev_b32 v25, 7, v25
    s_lshr_b32 s78, s{P.S_MT}, 1
    s_lshl_b32 s78, s78, 18
    s_add_u32 s78, s78, s42
    s_lshl_b32 s79, s{S_W}, 16
    s_add_u32 s78, s78, s79
    s_add_u32 s78, s78, {WS_O:#x}
    s_add_u32 s56, s86, s78
    s_addc_u32 s57, s87, 0
    """)
    sig.raw(f"""
    v_sub_f32 v84, v84, v84
    s_cmp_lg_u32 s55, 0
    v_cmp_u_f32 vcc, v84, v84
    s_cbranch_scc1 KM_CHECKED
    s_cbranch_vccnz KM_FALLBACK2
    KM_CHECKED:
    """)
    sig.wait(vm=[("ost", 0)])
    sig.raw(f"""
    s_mov_b64 exec, 1
    buffer_store_dword v24, off, s[{S_WS}:{S_WS+3}], s{P.S_OF} sc1
    s_mov_b64 exec, -1
    """)
    t3 = Trace()
    t3.wait(vm=[("op", 0)])
    t3.raw(f"""
    v_cmp_ne_u32 vcc, s{S_TAG}, v28
    s_nop 0
    s_cbranch_vccnz KM_OSPIN
    KM_OBACK:
    """)
    ol = []
    for s in range(NDOWN, NDOWN + NWO):
        ol.append([rebase(P.h_load(s, i), P.S_HB, 56) for i in range(4)] + (adv64(56, 8192) if s < NDOWN + NWO - 1 else []))
    t4 = Trace()
    for grp in ol[:opre]: t4.items.extend(grp)
    k = opre
    stepsC = []
    for s in range(NIN + nA + nB, NDOWN):
        ex = []
        while len(ex) < 2 and k < 5: ex.append(ol[k]); k += 1
        stepsC.append(P.gemm_step(s, ex))
    wos = []
    for s in range(NDOWN, NDOWN + 4):
        ex = []
        while len(ex) < 2 and k < NWO: ex.append(ol[k]); k += 1
        wos.append(P.gemm_step(s, ex))
    ph = Trace()
    su = Asm()
    for pp in range(1, 4):
        su(f"s_add_u32 s78, s{S_W}, {pp}\ns_and_b32 s78, s78, 3\ns_mul_i32 s78, s78, 24576\ns_add_u32 s78, s78, {(pp-1)*8192}\nv_add_u32 v{26+pp}, s78, v{P.V_L16}")
    su(f"""
    s_mul_i32 s78, s{S_W}, 24576
    v_add_u32 v26, s78, v{P.V_L16}
    s_lshl_b32 s78, s{P.S_MT}, 17
    s_lshl_b32 s79, s{P.S_NT}, 8
    s_add_u32 s78, s78, s79
    s_lshl_b32 s79, s{S_W}, 6
    s_add_u32 s78, s78, s79
    s_add_u32 s79, s78, 0x8000
    s_add_u32 s80, s78, 0x10000
    s_add_u32 s81, s78, 0x18000
    v_and_b32 v30, 15, {L2}
    v_lshlrev_b32 v30, 11, v30
    v_bfe_u32 v25, {L2}, 4, 1
    v_lshl_add_u32 v30, v25, 5, v30
    v_lshrrev_b32 v25, 5, {L2}
    v_lshl_add_u32 v30, v25, 4, v30
    """)
    su = [l.strip() for l in su.lines]
    S2 = list(range(NDOWN + 4, NDOWN + 8))
    ph.wait(vm=[("w", s, J) for s in S2[2:] for J in range(8)], lg=[("w", s, J) for s in S2[:2] for J in range(8)])
    ph.ins("s_barrier")
    R0, R1, R2 = ACC + 32, ACC + 64, 32
    for idx, pp in enumerate((1, 2, 3, 0)):
        fill = [[] for _ in range(32)]
        if idx == 0:
            for q, x in enumerate(su): fill[q].append(I(x))
        else:
            prev = (1, 2, 3)[idx - 1]
            for t in range(8):
                fill[(4 + 3*t) if idx < 3 or not ph2new else (1 + t + (3 if t >= 4 else 0))].append(I(f"ds_write_b128 v{26+prev}, {vr(ACC + (prev*8 + t)*4, 4)} offset:{t*1024}", lg=("rw", prev)))
        if idx == 3:
            rd = [I(f"ds_read_b128 {vr((R0, R1, R2)[s_] + t*4, 4)}, v26 offset:{s_*8192 + t*1024}", lg=("rr", s_)) for s_ in range(3) for t in range(8)]
            if ph2new:
                for k_, x in enumerate(rd[:16]): fill[12 + k_ // 2].append(x)
                fill[21] += [W(lg=[("rw", 3)]), I("s_barrier")]
                for k_, x in enumerate(rd[16:]): fill[22 + k_ // 2].append(x)
                fill[26].append(W(lg=[("rr", 1)]))
                for k_ in range(10): fill[26 + k_ // 2].append(I(f"v_add_f32 v{R0+k_}, v{R0+k_}, v{R1+k_}"))
            else:
                free = [g for g in range(32) if not fill[g]]
                for x, g in zip(rd[:16], free): fill[g].append(x)
            ph.wait(lg=[("rw", 2)])
            ph.ins("s_barrier")
        mu = 0
        for s in S2:
            if idx == 0: ph.wait(vm=[("h", s, i) for i in range(4)])
            for J in (2*pp, 2*pp + 1):
                for i in range(4):
                    ph.ins(P.gemm_mfma(s, J, i, False)); ph.items.extend(fill[mu]); mu += 1
    if ph2new:
        for r in range(10, 32, 2): ph.ins(f"v_pk_add_f32 {vr(R0+r,2)}, {vr(R0+r,2)}, {vr(R1+r,2)}")
        ph.wait(lg=[("rr", 2)])
        for r in range(0, 32, 2): ph.ins(f"v_pk_add_f32 {vr(R0+r,2)}, {vr(R0+r,2)}, {vr(R2+r,2)}")
    else:
        ph.wait(lg=[("rw", 3), ("rr", 1)])
        ph.ins("s_barrier")
        ph.items.extend(rd[16:])
        for r in range(0, 32, 2): ph.ins(f"v_pk_add_f32 {vr(R0+r,2)}, {vr(R0+r,2)}, {vr(R1+r,2)}")
        ph.wait(lg=[("rr", 2)])
        for r in range(0, 32, 2): ph.ins(f"v_pk_add_f32 {vr(R0+r,2)}, {vr(R0+r,2)}, {vr(R2+r,2)}")
    for i in range(4):
        b0, b1 = ACC + i*4, ACC + (4 + i)*4
        d = 64 + i*4
        om = P.V_OMG + i
        for b in (b0, b0 + 2, b1, b1 + 2):
            ph.ins(f"v_pk_add_f32 {vr(b,2)}, {vr(b,2)}, {vr(b + 32,2)}")
        for b in (b0, b0 + 2, b1, b1 + 2):
            ph.ins(f"v_pk_mul_f32 {vr(b,2)}, {vr(b,2)}, {vr(om,2)} op_sel_hi:[1,0]" if om % 2 == 0 else f"v_pk_mul_f32 {vr(b,2)}, {vr(b,2)}, {vr(om-1,2)} op_sel:[0,1] op_sel_hi:[1,1]")
        ph.raw(f"""
        v_cvt_pk_bf16_f32 v{d}, v{b0}, v{b0+1}
        v_cvt_pk_bf16_f32 v{d+1}, v{b0+2}, v{b0+3}
        v_cvt_pk_bf16_f32 v{d+2}, v{b1}, v{b1+1}
        v_cvt_pk_bf16_f32 v{d+3}, v{b1+2}, v{b1+3}
        s_nop 1
        v_permlane16_swap_b32 v{d}, v{d+2}
        v_permlane16_swap_b32 v{d+1}, v{d+3}
        buffer_store_dwordx4 {vr(d,4)}, v30, s[{P.S_OUT}:{P.S_OUT+3}], s{78+i} offen sc1 nt
        """)
    head = [pro, pro2] + segs + [ec]
    rest = [h2, body, t1] + stepsA + [sig] + stepsB + [t3, t4] + stepsC + wos + [ph]
    import copy
    resolve(head + [l0] + rest)
    saved = [[(x.get("wvm"), x.get("wlg")) for x in seg.items] for seg in rest]
    resolve(head + [l1] + rest)
    for seg, sv in zip(rest, saved):
        for x, (v, l) in zip(seg.items, sv):
            if x["text"] is None:
                mn = lambda p, q: q if p is None else p if q is None else min(p, q)
                x["wvm"], x["wlg"] = mn(x["wvm"], v), mn(x["wlg"], l)
    emit_trace(a, [pro]); st.stamp()
    if pads:
        a("s_branch KM_BODY")
        a.lines.append(".p2align 12")
        a.label("KM_BODY")
    emit_trace(a, [pro2]); st.stamp()
    for k, tr in enumerate(segs):
        if 'wv' in exp and k % 2 == 0 and wv0 <= k // 2 < wv0 + 5:
            t_ = Trace(); t_.items = tr.items[:-2]; emit_trace(a, [t_]); st.stamp()
            t_.items = tr.items[-2:-1]; emit_trace(a, [t_]); st.stamp()
            t_.items = tr.items[-1:]; emit_trace(a, [t_]); st.stamp()
            continue
        emit_trace(a, [tr])
        if 'stg' in exp and k % 2 == 0: st.stamp()
    st.stamp()
    emit_trace(a, [ec])
    if 'ec' in exp: st.stamp()
    a(f"s_bitcmp1_b32 s{S_W}, 0")
    a("s_cbranch_scc1 KM_LAST1")
    emit_trace(a, [l0])
    a("s_branch KM_P2")
    a.label("KM_LAST1")
    emit_trace(a, [l1])
    a.label("KM_P2")
    st.stamp()
    if pads: a.lines.append("@CHAIN2")
    emit_trace(a, [h2]); st.stamp()
    b = Asm(); emit_trace(b, [body])
    for l in b.lines:
        a.lines.append(l)
        if 'its' in exp and l.strip() in ("s_barrier", "KM_HBACK:"): st.stamp()
    st.stamp()
    emit_trace(a, [t1]); st.stamp()
    for seg in stepsA + [sig]: emit_trace(a, [seg])
    st.stamp()
    for seg in stepsB: emit_trace(a, [seg])
    st.stamp()
    emit_trace(a, [t3]); st.stamp()
    for seg in [t4] + stepsC: emit_trace(a, [seg])
    st.stamp()
    for seg in wos: emit_trace(a, [seg])
    st.stamp()
    b = Asm(); emit_trace(b, [ph])
    nm = 0
    for l in b.lines:
        a.lines.append(l)
        if l.strip().startswith("v_mfma"): nm += 1
        if 'ph' in exp and ((l.strip().startswith("v_mfma") and nm % 32 == 0) or (l.strip() == "s_barrier" and nm == 0) or "s81 offen" in l): st.stamp()
    if dbg:
        a("s_waitcnt vmcnt(0)")
        st.stamp(force=True)
        st.dump(0, S_W, 86)
        if hdbg is not None:
            a(f"""
            s_lshl_b32 s90, s2, 2
            s_add_u32 s90, s90, s{S_W}
            s_cmp_eq_u32 s90, {4*hdbg}
            s_cbranch_scc0 KM_END
            v_readlane_b32 s90, v31, 32
            v_mbcnt_lo_u32_b32 v0, -1, 0
            v_mbcnt_hi_u32_b32 v0, -1, v0
            v_subrev_u32 v31, s90, v31
            v_subrev_u32 v0, 32, v0
            v_lshlrev_b32 v0, 2, v0
            s_mov_b32 exec_lo, 0
            s_mov_b32 exec_hi, 0xfffe
            buffer_store_dword v31, v0, s[{S_DBG}:{S_DBG+3}], 0 offen
            """)
    a("s_endpgm")
    for nm, ld, val in (("Z", f"buffer_load_dword v1, off, s[{S_DBG}:{S_DBG+3}], 0 sc1", f"eq_u32 vcc, 0, v1"),
                        ("E", f"buffer_load_dword v{V_KX}, v{V_T}, s[{S_WS}:{S_WS+3}], s{S_EF} offen sc1", f"ne_u32 vcc, s{S_TAG}, v{V_KX}"),
                        ("H", f"buffer_load_dword v28, v25, s[{S_WS}:{S_WS+3}], s{P.S_HP} offen sc1", f"ne_u32 vcc, s{S_TAG}, v28"),
                        ("O", f"buffer_load_dword v28, v25, s[{S_WS}:{S_WS+3}], s{P.S_OP} offen sc1", f"ne_u32 vcc, s{S_TAG}, v28")):
        a(f"""
        KM_{nm}SPIN:
        s_mov_b32 s91, 0x40000
        KM_{nm}SPIN1:
        {ld}
        s_waitcnt vmcnt(0)
        v_cmp_{val}
        s_sub_u32 s91, s91, 1
        s_cbranch_vccz KM_{nm}BACK
        s_cmp_eq_u32 s91, 0
        s_cbranch_scc1 KM_{nm}BACK
        s_sleep 1
        s_branch KM_{nm}SPIN1
        """)
    A_K, A_Q = P.A_K, P.A_Q
    a.label("KM_FALLBACK2")
    a("s_mov_b32 s55, 2")
    a.label("KM_FALLBACK")
    a(f"""
    s_or_b32 s55, s55, 1
    s_waitcnt vmcnt(0) lgkmcnt(0)
    s_nop 15
    v_mov_b32 v82, 0xff7fffff
    v_mov_b32 v83, 0xff7fffff
    v_mov_b32 v80, 0
    v_mov_b32 v81, 0
    s_mov_b32 s78, {WS_KV:#x}
    """)
    for r in range(32): a(f"v_mov_b32 v{VO+r}, 0")
    a.label("KM_FB_LOOP")
    for q in range(4):
        a(f"buffer_load_dwordx4 {ar(A_K+4*q,4)}, v{P.V_L16}, s[{S_WS}:{S_WS+3}], s78 offen offset:{q*1024} sc1")
    a("s_waitcnt vmcnt(0)")
    for hh in range(2):
        O = VO + 16*hh; m = 82 + hh; l = 80 + hh
        a(f"v_mfma_f32_32x32x16_bf16 v[64:79], {ar(A_K,4)}, {ar(A_Q+8*hh,4)}, 0")
        a(f"v_mfma_f32_32x32x16_bf16 v[64:79], {ar(A_K+4,4)}, {ar(A_Q+8*hh+4,4)}, v[64:79]")
        a("s_nop 15")
        a("v_max_f32 v84, v64, v65")
        for r in range(2, 16, 2): a(f"v_max3_f32 v84, v{64+r}, v{65+r}, v84")
        a(f"""
        v_mov_b32 v85, v84
        s_nop 1
        v_permlane32_swap_b32 v84, v85
        s_nop 1
        v_max3_f32 v84, v84, v85, v{m}
        v_sub_f32 v85, v{m}, v84
        v_exp_f32 v85, v85
        v_mov_b32 v{m}, v84
        v_mul_f32 v{l}, v{l}, v85
        """)
        for r in range(16):
            a(f"v_sub_f32 v{64+r}, v{64+r}, v84")
            a(f"v_exp_f32 v{64+r}, v{64+r}")
            a(f"v_mul_f32 v{O+r}, v{O+r}, v85")
        for r in range(8): a(f"v_cvt_pk_bf16_f32 v{64+r}, v{64+2*r}, v{65+2*r}")
        for r in range(8):
            a(f"v_lshlrev_b32 v86, 16, v{64+r}\nv_and_b32 v87, 0xffff0000, v{64+r}\nv_add_f32 v{l}, v{l}, v86\nv_add_f32 v{l}, v{l}, v87")
        a(f"v_mfma_f32_32x32x16_bf16 {vr(O,16)}, {ar(A_K+8,4)}, v[64:67], {vr(O,16)}")
        a(f"v_mfma_f32_32x32x16_bf16 {vr(O,16)}, {ar(A_K+12,4)}, v[68:71], {vr(O,16)}")
        a("s_nop 15")
    a(f"""
    s_add_u32 s78, s78, 4096
    s_cmp_lt_u32 s78, {WS_KV + 64*4096:#x}
    s_cbranch_scc1 KM_FB_LOOP
    v_mov_b32 v84, v80
    v_mov_b32 v85, v81
    s_nop 1
    v_permlane32_swap_b32 v80, v84
    v_permlane32_swap_b32 v81, v85
    s_nop 1
    v_add_f32 v80, v80, v84
    v_add_f32 v81, v81, v85
    s_cmp_eq_u32 s55, 1
    s_cbranch_scc1 KM_NORM
    v_rcp_f32 v80, v80
    v_rcp_f32 v82, v81
    s_nop 0
    v_mul_f32 v80, v80, v{P.V_G}
    v_mul_f32 v82, v82, v{P.V_G+1}
    """)
    for hh in range(2):
        for pc in range(2):
            b = VO + 16*hh + 8*pc
            for r in range(8): a(f"v_mul_f32 v{b+r}, v{b+r}, v{80+2*hh}")
            for q in range(4): a(f"v_cvt_pk_bf16_f32 v{64+8*hh+4*pc+q}, v{b+2*q}, v{b+2*q+1}")
            a(f"buffer_store_dwordx4 {vr(64+8*hh+4*pc,4)}, v26, s[{S_WS}:{S_WS+3}], s54 offen offset:{hh*2048 + pc*512} sc1")
    a(f"""
    s_waitcnt vmcnt(0)
    s_branch KM_CHECKED
    KM_END:
    s_endpgm
    """)
    return a.text()
```

```python
from common import *
import p2
from p2 import I, W, adv64
import math, struct

KM = NAME + "_kernel"
LDS_X = 0; LDS_W = 65536
LDS_R = 131072
LDS_QS = LDS_R; LDS_KW = LDS_R + 4096; LDS_T = LDS_R + 16384
KM_LDS = 163840
NST = 16
OOB = 0x7f000000

def accn(j, i): return ("v", 32 + (j*8 + i)*4) if j < 7 else ("a", 128 + i*4)
def acc(j, i):
    p, b = accn(j, i); return vr(b, 4, p)
XF = [0, 64]; WF = [32, 96]
KVW, KVA, A_GX, A_GW, A_T, A_KX, A_DUM = 160, 168, 172, 188, 204, 208, 255
TREG = [196, 200, 204, 224, 228, 232, 236, 240, 244]
V_DQ, V_DX, V_DW = 0, 2, 6
V_RX = [10, 11]
V_RW, V_R3, V_R7, V_RKW, V_T, V_KX, V_LANE = 12, 15, 16, 17, 18, 19, 20
V_GROW, V_L16, V_RT, V_DT, V_DK = 26, 27, 28, 29, 30
S_WQ, S_X, S_G, S_U, S_KV, S_WS, S_GW, S_TSRD, S_WD, S_WO, S_DBG = 4, 8, 12, 16, 20, 24, 28, 32, 52, 76, 72
S_W, S_MT, S_NT, S_OK = 36, 37, 38, 39
S_OX, S_OX2, S_OG, S_OQ, S_TSRCS = 40, 41, 42, 43, 44
S_M0X, S_M0W, S_M0K, S_M0T, S_M0Q = 45, 46, 47, 51, 56
S_TOFF, S_TSTEP, S_TOG = 48, 49, 50
S_TSRC, S_TDST, S_TSRC2, S_TDST2, S_GROW = 3, 94, 95, 100, 101
S_EF = 88
S_LMASK, S_T2D = 58, 59
S_TAG = 89
A_TAG = 254
S_FLG = 57

KVD = 1
def dma_group(s, ntw):
    b = s % 2
    g = []
    nt = " nt" if ntw else ""
    for half in range(2):
        so = S_OX if half == 0 else S_OX2
        for j in range(4):
            pre = f"s_add_u32 m0, s{S_M0X}, {b*32768 + half*4096}" if j == 0 else None
            g.append((pre, I(f"buffer_load_dwordx4 v{V_DX+j}, s[{S_X}:{S_X+3}], s{so} offen offset:{j*1024} lds", vm=("st", s))))
    for part in range(2):
        srdn = S_G if part == 0 else S_U
        for j in range(4):
            pre = f"s_add_u32 m0, s{S_M0W}, {b*32768 + part*16384}" if j == 0 else None
            g.append((pre, I(f"buffer_load_dwordx4 v{V_DW+j}, s[{srdn}:{srdn+3}], s{S_OG} offen offset:{j*1024}{nt} lds", vm=("st", s))))
    g.append((f"s_add_u32 m0, s{S_M0Q}, {b*2048}", I(f"buffer_load_dwordx4 v{V_DQ}, s[{S_WQ}:{S_WQ+3}], s{S_OQ} offen{nt} lds", vm=("st", s))))
    adv = {7: [f"s_add_u32 s{S_OX}, s{S_OX}, 128", f"s_add_u32 s{S_OX2}, s{S_OX2}, 128"],
           15: [f"s_add_u32 s{S_OG}, s{S_OG}, {64*7168}"], 16: [f"s_add_u32 s{S_OQ}, s{S_OQ}, 0x20000"]}
    if 1 <= s - KVD <= 8:
        g.append((f"s_add_u32 m0, s{S_M0K}, {b*8192}", I(f"buffer_load_dwordx4 v{V_DK}, s[{S_KV}:{S_KV+3}], s{S_OK} offen lds", vm=("st", s))))
        adv[17] = [f"s_add_u32 s{S_OK}, s{S_OK}, 8192"]
    return g, adv
def xread(s, kk, i):
    return I(f"ds_read_b128 {ar(XF[kk]+4*i,4)}, v{V_RX[kk]} offset:{(s%2)*32768 + i*2048}", lg=("fr", s, kk))
def wread(s, kk, j, h):
    if j % 4 == 3:
        reg, off = (V_R3 if j == 3 else V_R7), h*1024 + kk*8192
    else:
        reg, off = V_RW + (j & 3), (s % 2)*32768 + h*1024 + kk*8192 + (16384 if j >= 4 else 0)
    return I(f"ds_read_b64_tr_b16 {ar(WF[kk]+4*j+2*h,2)}, v{reg} offset:{off}", lg=("fr", s, kk))
def reads(s, kk):
    r = [wread(s, kk, 0, 0), wread(s, kk, 0, 1)] + [xread(s, kk, i) for i in range(8)]
    for j in range(1, 8): r += [wread(s, kk, j, 0), wread(s, kk, j, 1)]
    return r
def mfma(kk, j, i, first=False):
    return f"v_mfma_f32_16x16x32_bf16 {acc(j,i)}, {ar(WF[kk]+4*j,4)}, {ar(XF[kk]+4*i,4)}, {'0' if first else acc(j,i)}"
def vcap(items):
    c = 2
    for x in items:
        t = x["text"] or "s_"
        if t.startswith("ds_"): c -= 1
        elif t.startswith(("buffer_", "global_")): c -= 2
        elif t.startswith("v_"): c -= 1
    return max(c, 0)
from k1 import g_ops as _g_ops
import k1 as _k1
_k1.A_GX, _k1.A_GW = A_GX, A_GW

def gen(dbg=False, hdbg=None, lead=True, lphase=0, gsm=True, tsp0=4, hstart=0, xmask=0x1f, tt0=0, wv0=1, cl=1, gc=(10, 8), dc=8, slack=0, ph2new=True, tp2=False, tb=8, tlb=0, tlbpos=17, tdefer=False, tpro=0, tpos=0, gl=2, pads=0, epos=10, chain_at=1, ot=99, touch=1, nhead=13, p1=13, npro0=8, gs=11, tq0=5, ntw=False, ntt=True, exp='',
        NIN=25, g0=22, hsig=7, hpoll=15, opre=1, nb=(1, 2)):
    esig = KVD + 11
    if tp2:
        tq0 = 100; p2.KVS = {0: (4, 6), 1: (1, 3)}
    p2.configure(NIN)
    p2.CL = cl; p2.GC1, p2.GC2 = gc; p2.DC1 = dc; p2.SLACK = slack
    a = Asm()
    L = f"v{V_LANE}"
    a("s_cmp_ge_u32 s2, 256")
    a("s_cbranch_scc1 KM_END")
    st = Stamps(a, dbg)
    st.stamp()
    a("s_memrealtime s[72:73]")
    a("s_load_dwordx8 s[56:63], s[0:1], 0")
    a("s_load_dwordx8 s[64:71], s[0:1], 48")
    a("s_load_dwordx2 s[74:75], s[0:1], 32")
    a("s_load_dwordx4 s[96:99], s[0:1], 80")
    a("s_load_dwordx2 s[86:87], s[0:1], 96")
    code_prefetch(a, "KM", 32, "a255", 3)
    a(f"""
    v_and_b32 {L}, 63, v0
    v_lshrrev_b32 v1, 6, v0
    s_and_b32 s80, s2, 7
    v_readfirstlane_b32 s{S_W}, v1
    s_lshr_b32 s81, s2, 3
    s_and_b32 s{S_MT}, s81, 7
    s_lshr_b32 s83, s81, 3
    s_lshl_b32 s80, s80, 2
    s_add_u32 s{S_NT}, s80, s83
    s_mul_i32 s85, s{S_NT}, 224
    s_mov_b32 s{S_OG}, 0
    s_mov_b32 s{S_OQ}, 0
    v_lshrrev_b32 v21, 3, {L}
    s_lshl_b32 s81, s{S_MT}, 8
    s_lshl_b32 s82, s{S_W}, 6
    s_add_u32 s81, s81, s82
    v_add_u32 v21, s81, v21
    v_lshlrev_b32 v21, 11, v21
    v_and_b32 v22, 7, {L}
    v_lshrrev_b32 v23, 4, {L}
    v_xor_b32 v22, v22, v23
    v_lshlrev_b32 v22, 4, v22
    v_xor_b32 v24, 64, v22
    """)
    for j in range(4):
        a(f"v_add_u32 v{V_DX+j}, v21, {'v22' if j % 2 == 0 else 'v24'}")
        if j: a(f"v_add_u32 v{V_DX+j}, {j*8*2048 - j*1024}, v{V_DX+j}")
    a(f"""
    s_mov_b32 s{S_OX}, 0
    s_mov_b32 s{S_OX2}, 65536
    s_mov_b32 s{S_OK}, 0
    s_lshl_b32 s81, s{S_W}, 4
    s_movk_i32 s84, 7168
    v_add_u32 v21, s81, v23
    v_mul_lo_u32 v21, v21, s84
    v_add_u32 v21, s85, v21
    v_and_b32 v25, 1, {L}
    v_lshl_add_u32 v21, v25, 4, v21
    v_bfe_u32 v22, {L}, 1, 3
    v_xor_b32 v22, v22, v23
    v_xor_b32 v24, 4, v22
    v_min_u32 v22, 6, v22
    v_min_u32 v24, 6, v24
    v_lshl_add_u32 v{V_DW}, v22, 5, v21
    v_add_u32 v{V_DW+1}, {4*7168 - 1024}, v{V_DW}
    v_lshl_add_u32 v{V_DW+2}, v24, 5, v21
    v_add_u32 v{V_DW+2}, {2*(4*7168 - 1024)}, v{V_DW+2}
    v_add_u32 v{V_DW+3}, {4*7168 - 1024}, v{V_DW+2}
    s_lshl_b32 s{S_M0X}, s{S_W}, 13
    s_lshl_b32 s{S_M0W}, s{S_W}, 12
    s_add_u32 s{S_M0W}, s{S_M0W}, {LDS_W}
    s_lshl_b32 s{S_M0K}, s{S_W}, 10
    s_add_u32 s{S_M0T}, s{S_M0K}, {LDS_T}
    s_add_u32 s{S_M0K}, s{S_M0K}, {LDS_KW}
    s_lshr_b32 s81, s{S_W}, 1
    s_and_b32 s80, s{S_W}, 1
    """)
    a(f"""
    v_lshlrev_b32 v21, 3, v23
    v_bfe_u32 v22, {L}, 2, 2
    v_add_u32 v21, v21, v22
    s_lshl_b32 s82, s81, 5
    s_lshl_b32 s83, s80, 2
    s_add_u32 s82, s82, s83
    v_add_u32 v21, s82, v21
    v_lshlrev_b32 v21, 11, v21
    v_bfe_u32 v22, {L}, 1, 1
    v_bfe_u32 v24, {L}, 4, 1
    v_xor_b32 v22, v22, v24
    v_lshl_add_u32 v21, v22, 5, v21
    v_lshl_add_u32 v21, v25, 4, v21
    s_lshl_b32 s82, s{S_NT}, 6
    v_add_u32 v{V_DQ}, s82, v21
    s_lshl_b32 s90, s81, 13
    s_lshl_b32 s83, s80, 10
    s_add_u32 s90, s90, s83
    s_waitcnt lgkmcnt(0)
    """)
    st.n and None
    a(f"s_or_b32 s{S_TAG}, s72, 1")
    srd(a, S_X, 56, 2048*1024*2)
    srd(a, S_G, 64, 1024*3584*2)
    srd(a, S_U, 66, 1024*3584*2)
    srd(a, S_WQ, 58, 1024*1024*2)
    a(f"s_add_u32 s{S_M0Q}, s90, {LDS_QS}")
    st.stamp()
    pro = Trace()
    def dma_items(s, lo, hi):
        g, adv = dma_group(s, ntw)
        out = []
        for k in range(lo, min(hi, len(g))):
            pre, it = g[k]
            out.append(([I(pre), I("s_nop 0")] if pre else []) + [it] + [I(x) for x in adv.get(k, [])])
        return out
    pc = Asm()
    pc(f"""
    v_lshlrev_b32 v{V_L16}, 4, {L}
    v_and_b32 v21, 15, {L}
    s_lshl_b32 s83, s81, 14
    v_lshlrev_b32 v22, 7, v21
    v_lshrrev_b32 v24, 1, v21
    v_xor_b32 v24, v24, v23
    v_lshl_add_u32 v22, v24, 4, v22
    v_add_u32 v{V_RX[0]}, s83, v22
    v_xor_b32 v{V_RX[1]}, 64, v{V_RX[0]}
    v_bfe_u32 v21, {L}, 2, 2
    v_lshl_add_u32 v22, v23, 3, v21
    v_and_b32 v24, 3, {L}
    v_lshlrev_b32 v24, 3, v24
    v_lshl_add_u32 v{V_RKW}, v22, 5, v24
    s_lshl_b32 s83, s81, 11
    s_add_u32 s83, s83, {LDS_KW}
    v_add_u32 v{V_RKW}, s83, v{V_RKW}
    v_lshl_add_u32 v22, v22, 8, v24
    v_add_u32 v22, {LDS_W}, v22
    v_and_b32 v25, 1, v23
    v_lshl_or_b32 v1, v25, 2, v21
    s_lshl_b32 s82, s80, 2
    """)
    for j in range(4):
        pc(f"s_add_u32 s83, s82, {j}")
        pc(f"v_xor_b32 v{V_T}, s83, v1")
        pc(f"v_lshl_add_u32 v{V_RW+j}, v{V_T}, 5, v22")
    pc(f"""
    v_add_u32 v{V_R7}, 16384, v{V_R3}
    v_lshl_add_u32 v22, v23, 2, v21
    v_lshl_add_u32 v22, v22, 6, v24
    v_lshl_add_u32 v22, v25, 5, v22
    v_add_u32 v22, {LDS_QS}, v22
    v_xor_b32 v1, 32, v22
    s_cmp_eq_u32 s80, 1
    s_cselect_b64 vcc, -1, 0
    s_movk_i32 s{S_TOG}, 2048
    s_cselect_b32 s{S_TOG}, s{S_TOG}, 0x8000
    v_cndmask_b32 v{V_R3}, v{V_R3}, v22, vcc
    v_cndmask_b32 v{V_R7}, v{V_R7}, v1, vcc
    """)
    p = Asm()
    p(f"""
    v_lshrrev_b32 v1, 3, {L}
    v_lshlrev_b32 v1, 11, v1
    v_bfe_u32 v25, {L}, 1, 2
    v_xor_b32 v25, v25, v23
    v_lshl_add_u32 v1, v25, 5, v1
    v_and_b32 v25, 1, {L}
    v_lshl_add_u32 v{V_DT}, v25, 4, v1
    v_lshl_add_u32 v1, v23, 2, v21
    v_bfe_u32 v25, v1, 1, 2
    v_xor_b32 v25, s{S_W}, v25
    v_lshlrev_b32 v1, 7, v1
    v_lshl_add_u32 v1, v25, 5, v1
    v_add_u32 v1, v1, v24
    v_add_u32 v{V_RT}, {LDS_T}, v1
    s_lshr_b32 s82, s2, 4
    s_and_b32 s83, s2, 15
    s_mul_i32 s{S_TSRC}, s82, {224*2048}
    s_lshl_b32 s90, s83, 7
    s_add_u32 s{S_TSRC}, s{S_TSRC}, s90
    s_lshl_b32 s{S_TSRC2}, s82, 17
    s_add_u32 s{S_TSRC2}, s{S_TSRC2}, s90
    s_mul_i32 s90, s80, {112*2048}
    s_add_u32 s{S_TSRCS}, s{S_TSRC}, s90
    s_lshl_b32 s90, s81, 13
    s_add_u32 s{S_TSRCS}, s{S_TSRCS}, s90
    s_add_u32 s{S_TSRCS}, s{S_TSRCS}, {96*2048}
    s_lshl_b32 s90, s{S_W}, 14
    s_add_u32 s{S_TSRC}, s{S_TSRC}, s90
    s_lshl_b32 s90, s80, 15
    s_add_u32 s{S_TSRC2}, s{S_TSRC2}, s90
    s_lshl_b32 s90, s81, 14
    s_add_u32 s{S_TSRC2}, s{S_TSRC2}, s90
    s_lshr_b32 s90, s83, 1
    s_mul_i32 s90, s90, {144*8192}
    s_and_b32 s83, s83, 1
    s_lshl_b32 s83, s83, 12
    s_add_u32 s90, s90, s83
    s_lshl_b32 s83, s{S_W}, 10
    s_add_u32 s90, s90, s83
    s_add_u32 s90, s90, {WS_WT:#x}
    s_mul_i32 s{S_TDST}, s82, {7*8192}
    s_add_u32 s{S_TDST}, s{S_TDST}, s90
    s_lshl_b32 s{S_TDST2}, s82, 14
    s_add_u32 s{S_TDST2}, s{S_TDST2}, s90
    s_add_u32 s{S_TDST2}, s{S_TDST2}, {112*8192}
    s_lshl_b32 s82, s2, 3
    s_lshl_b32 s83, s{S_W}, 1
    s_add_u32 s82, s82, s83
    s_lshl_b32 s{S_GROW}, s82, 11
    v_lshrrev_b32 v1, 5, {L}
    v_add_u32 v{V_GROW}, s82, v1
    v_lshlrev_b32 v{V_GROW}, 3, v{V_GROW}
    v_add_u32 v{V_GROW}, {WS_G:#x}, v{V_GROW}
    s_lshl_b32 s82, s{S_MT}, 2
    s_add_u32 s82, s82, s{S_W}
    s_lshl_b32 s82, s82, 5
    s_add_u32 s82, s82, s{S_NT}
    s_lshl_b32 s82, s82, 7
    s_add_u32 s{S_FLG}, s82, {WS_FLAG:#x}
    """)
    ps = Asm() if tlb else p
    ps(f"""
    s_and_b32 s82, s{S_NT}, 2
    s_cmp_eq_u32 s82, 0
    s_cselect_b32 s{S_KV}, s60, s62
    s_cselect_b32 s{S_KV+1}, s61, s63
    s_and_b32 s{S_KV+1}, s{S_KV+1}, 0xffff
    s_mov_b32 s{S_KV+2}, 65536
    s_mov_b32 s{S_KV+3}, 0x00020000
    """)
    srd(ps, S_WS, 86, WS_SIZE)
    srd(ps, S_GW, 70, 2048)
    srd(ps, S_WD, 68, 3584*1024*2)
    srd(ps, S_WO, 74, 1024*1024*2)
    srd(ps, S_DBG, 98, 256)
    p(f"""
    v_lshrrev_b32 v21, 1, {L}
    v_lshlrev_b32 v21, 6, v21
    v_and_b32 v22, 1, {L}
    v_lshl_add_u32 v21, v22, 4, v21
    s_and_b32 s82, s{S_NT}, 1
    s_lshl_b32 s82, s82, 5
    s_lshl_b32 s83, s{S_W}, 11
    s_add_u32 s82, s82, s83
    v_add_u32 v{V_DK}, s82, v21
    s_lshl_b32 s82, s{S_MT}, 8
    s_lshr_b32 s83, s{S_NT}, 2
    s_lshl_b32 s83, s83, 5
    s_add_u32 s82, s82, s83
    s_lshl_b32 s83, s80, 4
    s_add_u32 s82, s82, s83
    s_lshl_b32 s82, s82, 11
    s_lshl_b32 s83, s81, 7
    s_add_u32 s82, s82, s83
    v_and_b32 v21, 15, {L}
    v_lshlrev_b32 v22, 11, v21
    v_lshl_add_u32 v22, v23, 4, v22
    v_add_u32 v{V_KX}, s82, v22
    """)
    pt = Asm()
    plain_addr = f"""s_lshl_b32 s82, s{S_MT}, 3
        v_bfe_u32 v24, {L}, 2, 3
        v_add_u32 v24, s82, v24
        v_lshlrev_b32 v21, 11, v24
        v_mul_lo_u32 v24, v24, s84
        v_and_b32 v1, 3, {L}
        v_lshlrev_b32 v1, 7, v1
        v_min_u32 v1, 220, v1
        v_add3_u32 v24, v24, v1, s85
        s_lshl_b32 s82, s{S_NT}, 6
        v_add_u32 v21, s82, v21"""
    lead_addr = f"""s_mov_b32 s{S_TSTEP}, {OOB:#x}
        s_and_b32 s82, s{S_NT}, 3
        s_lshl_b32 s82, s82, 4
        v_lshrrev_b32 v24, 3, {L}
        v_add_u32 v24, s82, v24
        v_mul_lo_u32 v24, v24, s84
        v_and_b32 v1, 7, {L}
        v_min_u32 v1, 6, v1
        v_lshl_add_u32 v24, v1, 7, v24
        s_lshr_b32 s83, s{S_NT}, 2
        s_mul_i32 s90, s83, 896
        v_add_u32 v24, s90, v24
        v_bfe_u32 v21, {L}, 1, 4
        v_add_u32 v21, s82, v21
        v_lshlrev_b32 v21, 11, v21
        v_and_b32 v1, 1, {L}
        v_lshl_add_u32 v21, v1, 7, v21
        s_lshl_b32 s83, s83, 8
        v_add_u32 v21, s83, v21
        s_lshl_b32 s{S_LMASK}, 0x10101, s{S_MT}
        s_cmp_eq_u32 s{S_W}, 0
        s_cselect_b32 s{S_LMASK}, {xmask:#x}, s{S_LMASK}
        s_add_u32 s82, s{S_W}, 1
        s_and_b32 s82, s82, 2
        s_cselect_b32 s{S_T2D}, {8*7168}, s{S_TSTEP}"""
    if touch:
        (pt if tpro else p)(f"""
        s_and_b32 s82, s{S_NT}, 3
        s_lshl_b32 s82, s82, 6
        s_lshl_b32 s83, s{S_MT}, 8
        s_add_u32 s82, s82, s83
        v_add_u32 v25, s82, {L}
        v_lshlrev_b32 v25, 11, v25
        {lead_addr if lead else plain_addr}
        s_mov_b32 s{S_TSTEP}, {64*7168}
        s_cmp_eq_u32 s{S_W}, 0
        s_cselect_b64 vcc, -1, 0
        s_cselect_b32 s{S_TSRD}, s{S_X}, s{S_G}
        s_cselect_b32 s{S_TSRD+1}, s{S_X+1}, s{S_G+1}
        s_cselect_b32 s{S_TSRD+2}, s{S_X+2}, s{S_G+2}
        s_cselect_b32 s{S_TSTEP}, 128, s{S_TSTEP}
        v_cndmask_b32 v{V_T}, v24, v25, vcc
        s_cmp_eq_u32 s{S_W}, 2
        s_cselect_b32 s{S_TSRD}, s{S_U}, s{S_TSRD}
        s_cselect_b32 s{S_TSRD+1}, s{S_U+1}, s{S_TSRD+1}
        s_cmp_eq_u32 s{S_W}, 3
        s_cselect_b64 vcc, -1, 0
        s_cselect_b32 s{S_TSRD}, s{S_WQ}, s{S_TSRD}
        s_cselect_b32 s{S_TSRD+1}, s{S_WQ+1}, s{S_TSRD+1}
        s_cselect_b32 s{S_TSRD+2}, s{S_WQ+2}, s{S_TSRD+2}
        s_cselect_b32 s{S_TSTEP}, 0x20000, s{S_TSTEP}
        v_cndmask_b32 v{V_T}, v{V_T}, v21, vcc
        s_mov_b32 s{S_TSRD+3}, 0x00020000
        s_mul_i32 s{S_TOFF}, s{S_TSTEP}, {3 if lead else 2 if tpro else (touch + 1 if touch >= 2 else touch + 2)}
        """)
    late = []
    for l in [l.strip() for l in p.lines]:
        if late and l.startswith(("s_cselect", "s_addc", "v_cndmask", "s_movk_i32 s50")): late[-1].append(l)
        else: late.append([l])
    late += [[f"v_and_b32 v1, 31, {L}"], ["v_lshlrev_b32 v1, 7, v1"], ["s_lshr_b32 s82, s2, 3"], ["s_and_b32 s82, s82, 15"], ["s_lshl_b32 s82, s82, 12"]]
    d0 = dma_items(0, 0, 17)
    for grp in d0[:tlbpos]: pro.items.extend(grp)
    if tlb:
        for l in ps.lines: pro.ins(l.strip())
        pro.raw(f"""
        s_mov_b32 s80, s96
        s_and_b32 s81, s97, 0xffff
        s_mov_b32 s82, {2048*1024*2:#x}
        s_mov_b32 s83, 0x00020000
        v_lshlrev_b32 v1, {tlb}, {L}
        v_min_u32 v1, 0x7f000000, v1
        """)
        for sr_ in (S_G, S_U, S_WS, S_WD, S_WO, S_KV, S_GW, S_DBG, 80, S_X):
            pro.ins(f"buffer_load_dword a{A_DUM}, v1, s[{sr_}:{sr_+3}], 0 offen")
        pro.raw(f"s_lshr_b32 s81, s{S_W}, 1\ns_and_b32 s80, s{S_W}, 1")
    for grp in d0[tlbpos:]: pro.items.extend(grp)
    for l in pt.lines: pro.ins(l.strip())
    tch = lambda: [I(f"buffer_load_dword a{A_DUM}, v{V_T}, s[{S_TSRD}:{S_TSRD+3}], s{S_TOFF} offen", vm=("touch", 0)), I(f"s_add_u32 s{S_TOFF}, s{S_TOFF}, s{S_TSTEP}")]
    if tpos == 0:
        for _ in range(tpro): pro.items.extend(tch())
    for l in pc.lines: pro.ins(l.strip().replace(f"v{V_T},", "v22x,").replace("v22x", "v19"))
    for grp in dma_items(1, 0, p1): pro.items.extend(grp)
    if tpos == 1:
        for _ in range(tpro): pro.items.extend(tch())
    one_time = [I(f"buffer_load_dword a{A_DUM}, v1, s[{S_KV}:{S_KV+3}], s82 offen"), I(f"buffer_load_dword a{A_DUM}, v1, s[{S_GW}:{S_GW+3}], 0 offen")]
    touch_ins = lambda: I(f"buffer_load_dword a{A_DUM}, v{V_T}, s[{S_TSRD}:{S_TSRD+3}], s{S_TOFF} offen", vm=("touch", 0))
    touch_adv = f"s_add_u32 s{S_TOFF}, s{S_TOFF}, s{S_TSTEP}"
    pro2 = Trace()
    pro2.wait(vm=[("st", 0)])
    pro2.ins("s_barrier")
    pro2.items.extend(reads(0, 0))

    gfast, gslow = _g_ops()
    gslow += ["v_max_f32 v25, 0x2b800000, v25", "v_rcp_f32 v23, v25", "v_mul_f32 v24, v24, v23"]
    GSPLIT = 70
    c_q = struct.unpack("<I", struct.pack("<f", math.log2(math.e) / math.sqrt(32.0)))[0]
    kvfin = [f"v_accvgpr_read_b32 v{21+r}, a{KVA+r}" for r in range(4)]
    for r in range(4): kvfin += [f"v_accvgpr_read_b32 v1, a{KVW+r}", f"v_add_f32 v{21+r}, v{21+r}, v1", f"v_mul_f32 v{21+r}, s84, v{21+r}"]
    kvfin += ["v_cvt_pk_bf16_f32 v22, v21, v22", "v_cvt_pk_bf16_f32 v23, v23, v24",
              f"v_and_b32 v1, 15, {L}", "v_lshlrev_b32 v1, 4, v1", f"v_bfe_u32 v21, {L}, 4, 1", "v_lshl_add_u32 v1, v21, 9, v1",
              f"v_lshrrev_b32 v21, 5, {L}", "v_lshl_add_u32 v1, v21, 3, v1",
              f"buffer_store_dwordx2 v[22:23], v1, s[{S_WS}:{S_WS+3}], s82 offen offset:2048 sc1",
              f"v_bfe_u32 v24, {L}, 3, 1", "v_lshlrev_b32 v24, 10, v24", f"v_bfe_u32 v21, {L}, 2, 1", "v_lshl_add_u32 v24, v21, 9, v24",
              f"v_lshrrev_b32 v21, 4, {L}", "v_lshl_add_u32 v24, v21, 6, v24", f"v_and_b32 v21, 3, {L}", "v_lshl_add_u32 v24, v21, 1, v24",
              f"buffer_store_short v22, v24, s[{S_WS}:{S_WS+3}], s83 offen sc1",
              f"buffer_store_short_d16_hi v22, v24, s[{S_WS}:{S_WS+3}], s83 offen offset:16 sc1",
              f"buffer_store_short v23, v24, s[{S_WS}:{S_WS+3}], s83 offen offset:32 sc1",
              f"buffer_store_short_d16_hi v23, v24, s[{S_WS}:{S_WS+3}], s83 offen offset:48 sc1"]
    kvsal = f"""s_lshl_b32 s82, s{S_MT}, 3
    s_lshr_b32 s83, s{S_NT}, 2
    s_add_u32 s82, s82, s83
    s_lshl_b32 s82, s82, 12
    s_add_u32 s82, s82, {WS_KV:#x}
    s_and_b32 s85, s{S_NT}, 1
    s_lshl_b32 s83, s85, 3
    s_add_u32 s83, s83, s82
    s_lshl_b32 s85, s85, 8
    s_add_u32 s82, s82, s85
    s_lshl_b32 s85, s{S_W}, 10
    s_add_u32 s82, s82, s85
    s_lshl_b32 s85, s{S_W}, 8
    s_add_u32 s83, s83, s85
    s_and_b32 s85, s{S_NT}, 2
    s_cmp_eq_u32 s85, 0
    s_cselect_b32 s84, {c_q:#x}, 1.0
    s_cselect_b32 s82, {OOB:#x}, s82
    s_cselect_b32 s83, s83, {OOB:#x}
    s_cmp_ge_u32 s{S_W}, 2
    s_cselect_b32 s82, {OOB:#x}, s82
    s_cselect_b32 s83, {OOB:#x}, s83""".split("\n")
    kvsal = [x.strip() for x in kvsal]
    kvsal = kvsal[:-7] + ["\n".join(kvsal[-7:-3]), "\n".join(kvsal[-3:])]
    segs = []
    grest = []
    def tstore(q):
        so = S_TDST if q < 7 else S_TDST2
        return [I(f"buffer_store_dwordx4 {ar(TREG[q] if tdefer else A_T,4)}, v{p2.V_L16 if tdefer else V_L16}, s[{S_WS}:{S_WS+3}], s{so} offen sc1", vm=("ts", q)), I(f"s_add_u32 s{so}, s{so}, 8192")]
    for s in range(NST - 1):
        tr = Trace()
        gaps = [[] for _ in range(66)]
        rl = reads(s, 1)
        u = s - KVD
        if 1 <= u <= 8:
            for e in range(2):
                for h in range(2):
                    rl.append(I(f"ds_read_b64_tr_b16 {ar(KVW+4*e+2*h,2)}, v{V_RKW} offset:{(s%2)*8192 + e*1024 + h*128}", lg=("kvf", s)))
        if u == 9:
            gaps[1].append(I(f"v_add_u32 v21, {LDS_KW + 8192*(s%2)}, v{V_L16}"))
            gaps[3].append(I(f"s_lshl_b32 s82, s{S_W}, 10")); gaps[5].append(I("v_add_u32 v22, s82, v21"))
            gaps[7].append(I("s_xor_b32 s82, s82, 2048")); gaps[9].append(I("v_add_u32 v21, s82, v21"))
            rl.append(I(f"ds_write_b128 v22, {ar(KVA,4)}", lg=("kvf", s)))
        for k, it in enumerate(rl): gaps[2*k].append(it)
        gaps[57].append(I(f"v_xor_b32 v{V_R3}, s{S_TOG}, v{V_R3}")); gaps[59].append(I(f"v_xor_b32 v{V_R7}, s{S_TOG}, v{V_R7}"))
        g, adv = dma_group(s + 1, ntw)
        lo = p1 if s == 0 else nhead
        G = 11 if u == 9 else 1
        for k in range(lo, len(g)):
            pre, it = g[k]
            if pre: gaps[G - 1].append(I(pre))
            gaps[G].append(it)
            for x in adv.get(k, []): gaps[G + 1].append(I(x))
            G += tsp0 if s else 4
        G = max(G - (tsp0 if s else 4) + 2, 3)
        if touch and (s >= 1 or tpro) and s + touch + 1 < NST and not (tpro and s + touch + 1 < 2 + tpro):
            if lead:
                for r_ in range(touch if s == 1 else 1):
                    gaps[G - 1].append(I(f"s_bitcmp1_b32 s{S_LMASK}, {s + r_ + lphase}\ns_cselect_b32 s60, s{S_TOFF}, {OOB:#x}"))
                    gaps[G].append(I(f"buffer_load_dword a{A_DUM}, v{V_T}, s[{S_TSRD}:{S_TSRD+3}], s60 offen"))
                    gaps[G + 1].append(I(f"s_add_u32 s60, s60, s{S_T2D}")); gaps[G + 1].append(I(touch_adv))
                    gaps[G + 2].append(I(f"buffer_load_dword a{A_DUM}, v{V_T}, s[{S_TSRD}:{S_TSRD+3}], s60 offen")); G += 4
            else:
              for _ in range(2 if (s == 1 and touch >= 2 and not tpro) else 1):
                gaps[G].append(touch_ins()); gaps[G + 1].append(I(touch_adv)); G += 2
        if tt0 and tt0 <= s < tt0 + 4:
            if s == tt0:
                pre_ = f"""v_lshrrev_b32 v21, 3, {L}
                v_min_u32 v21, 5, v21
                v_lshlrev_b32 v22, 16, v21
                v_cmp_lt_u32 vcc, 2, v21
                v_and_b32 v21, 7, {L}
                v_lshl_add_u32 v22, v21, 11, v22
                v_add_u32 v23, {16*2048}, v22
                v_cndmask_b32 v22, v22, v23, vcc
                v_bfe_u32 v23, {L}, 2, 1
                v_lshl_add_u32 v23, v23, 2, v21
                v_lshlrev_b32 v23, 11, v23
                v_and_b32 v24, 0x1ffff, v22
                s_lshr_b32 s61, s{S_MT}, 1""".split("\n")
                for k_, x in enumerate(pre_): gaps[2*k_ + 1].append(I(x.strip()))
                G = max(G, 28)
            gaps[G - 1].append(I(f"s_cmp_eq_u32 s61, {s - tt0}\ns_cselect_b32 s62, s{S_TSRC}, {OOB:#x}\ns_cselect_b32 s63, s{S_TSRCS}, {OOB:#x}\ns_cselect_b32 s60, s{S_TSRC2}, {OOB:#x}"))
            gaps[G].append(I(f"buffer_load_dword a{A_DUM}, v22, s[{S_WD}:{S_WD+3}], s62 offen")); G += 2
            gaps[G].append(I(f"buffer_load_dword a{A_DUM}, v23, s[{S_WD}:{S_WD+3}], s63 offen")); G += 2
            gaps[G].append(I(f"buffer_load_dword a{A_DUM}, v24, s[{S_WO}:{S_WO+3}], s60 offen")); G += 2
        if 0 <= u <= 7:
            for e in range(2):
                gaps[G].append(I(f"buffer_load_dwordx4 {ar(A_KX + 8*(u%2) + 4*e,4)}, v{V_KX}, s[{S_X}:{S_X+3}], 0 offen offset:{u*256 + e*64}", vm=("kx", u))); G += 2
        q = s - tq0
        if 0 <= q < 9:
            fl = " nt" if ntt else ""
            gaps[G - 1].append(I(f"s_add_u32 m0, s{S_M0T}, {(q%3)*4096}"))
            if q == 6:
                gaps[G - 2].append(I(f"v_lshrrev_b32 v{V_KX}, 5, {L}")); gaps[G - 1].append(I(f"v_lshl_add_u32 v{V_KX}, v{V_KX}, 13, v{V_DT}"))
                gaps[G].append(I(f"buffer_load_dwordx4 v{V_KX}, s[{S_WD}:{S_WD+3}], s{S_TSRCS} offen{fl} lds", vm=("t", q)))
            else:
                srdn, so = (S_WD, S_TSRC) if q < 7 else (S_WO, S_TSRC2)
                gaps[G].append(I(f"buffer_load_dwordx4 v{V_DT}, s[{srdn}:{srdn+3}], s{so} offen{fl} lds", vm=("t", q)))
                gaps[G + 1].append(I(f"s_add_u32 s{so}, s{so}, {48*2048 if q == 2 else 0x10000}"))
            G += 2
        q = s - tq0 - 2
        if 0 <= q < 9 and not tdefer:
            x, y = tstore(q); gaps[G].append(x); gaps[G + 1].append(y); G += 2
        if s == ot:
            for x in one_time: gaps[G].append(x); G += 2
        if s == 2:
            gaps[G - 1].append(I(f"v_mov_b32 v21, s{S_TAG}"))
            gaps[G].append(I(f"s_or_b32 s83, s2, s{S_W}\ns_cselect_b32 s83, {OOB:#x}, 0")); G += 2
            gaps[G].extend([I("s_mov_b64 exec, 1"), I(f"buffer_store_dword v21, off, s[{S_DBG}:{S_DBG+3}], s83 sc1"), I("s_mov_b64 exec, -1")]); G += 2
        if s == (11 if gsm else 6):
            gaps[G].append(I(f"buffer_load_dword a{A_TAG}, off, s[{S_DBG}:{S_DBG+3}], 0 sc1", vm=("zp", 0))); G += 2
        if s == esig + 1:
            gaps[G - 2].append(I(f"s_lshl_b32 s82, s{S_MT}, 5")); gaps[G - 1].append(I(f"s_add_u32 s82, s82, s{S_NT}\ns_lshl_b32 s82, s82, 7")); gaps[G].append(I(f"s_add_u32 s82, s82, {WS_FLAG + 0x28000:#x}"))
            gaps[G + 1].append(I(f"s_cmp_eq_u32 s{S_W}, 0\ns_cselect_b32 s82, s82, {OOB:#x}")); G += 2
            gaps[G].extend([I("s_mov_b64 exec, 1"), I(f"buffer_store_dword a{A_TAG}, off, s[{S_WS}:{S_WS+3}], s82 sc1"), I("s_mov_b64 exec, -1")]); G += 2
        if gsm and s == 10:
            gaps[G].extend([I("s_mov_b32 exec_lo, 1\ns_mov_b32 exec_hi, 1"), I(f"buffer_store_dwordx2 v[24:25], v{V_GROW}, s[{S_WS}:{S_WS+3}], 0 offen sc1"), I("s_mov_b64 exec, -1")]); G += 2
        kvstart = G
        if s == gl:
            for q_ in range(4):
                gaps[G].append(I(f"buffer_load_dwordx4 {ar(A_GX+4*q_,4)}, v{V_L16}, s[{S_X}:{S_X+3}], s{S_GROW} offen offset:{1024*q_}", vm=("g", 0))); G += 2
            for q_ in range(2):
                gaps[G].append(I(f"buffer_load_dwordx4 {ar(A_GW+4*q_,4)}, v{V_L16}, s[{S_GW}:{S_GW+3}], 0 offen offset:{1024*q_}", vm=("g", 0))); G += 2
        assert G < 64, (s, G)
        tr.wait(lg=[("fr", s, 0)] + ([("tf", q)] if 0 <= q < 9 else []) + ([("kvp", 0)] if u == 10 else []))
        vq = []
        if (gl + 2 <= s <= 9) if gsm else s in (gs + 2, gs + 3): vq = gfast
        if u == 10: vq = list(kvfin)
        k = 0
        for j in range(8):
            for i in range(8):
                tr.ins(mfma(0, j, i, first=(s == 0)))
                tr.items.extend(gaps[k])
                cap = vcap(gaps[k])
                if gsm and vq is gfast: cap = 0 if gaps[k] else 1
                if s == 0:
                    for _ in range(2):
                        if late and cap > 0:
                            for l in late.pop(0): tr.ins(l)
                            cap -= 1
                while vq and cap > 0 and not (u == 10 and k < kvstart - 8):
                    if vq[0].startswith("buffer_"):
                        if cap < 2: break
                        tr.ins(vq.pop(0), vm=("kvst", 0)); cap -= 2
                    else:
                        tr.ins(vq.pop(0)); cap -= 1
                k += 1
        if (s >= 9) if gsm else s != gs + 2: assert not vq
        need = [("st", s + 1)]
        if 0 <= s - tq0 - 1 < 9: need.append(("t", s - tq0 - 1))
        if s == (gl + 1 if gsm else gs + 1): need.append(("g", 0))
        if 1 <= u <= 8: need.append(("kx", u - 1))
        if s == (12 if gsm else 7): need.append(("zp", 0))
        if s == esig: need.append(("kvst", 0))
        if pads and s == chain_at: tr.ins("@CHAIN1")
        tr.wait(vm=need, lg=[("fr", s, 1)] + ([("kvf", s)] if 1 <= u <= 9 else []))
        tr.ins("s_barrier")
        segs.append(tr)
        tr = Trace()
        gaps = [[] for _ in range(68)]
        for k, it in enumerate(reads(s + 1, 0)): gaps[2*k + 1].append(it)
        q = s - tq0 - 1
        if 0 <= q < 9:
            for h in range(2):
                gaps[49 + 2*h].append(I(f"ds_read_b64_tr_b16 {ar((TREG[q] if tdefer else A_T)+2*h,2)}, v{V_RT} offset:{(q%3)*4096 + h*2048}", lg=("tf", q)))
        if u == 9:
            gaps[53].append(I(f"ds_read_b128 {ar(KVW,4)}, v21", lg=("kvp", 0)))
            for k, x in enumerate(kvsal): gaps[2*k + 3 if 2*k + 3 < 48 else 55].append(I(x.strip()))
        if s + 2 < NST:
            g, adv = dma_group(s + 2, ntw)
            hg = [hstart + 2*round(k*(62 - hstart)/(2*nhead)) for k in range(nhead)]
            for k in range(nhead):
                pre, it = g[k]
                if pre:
                    if hg[k]: gaps[hg[k] - 1].insert(0, I(pre))
                    else: tr.ins(pre)
                gaps[hg[k]].append(it)
                for x in adv.get(k, []): gaps[hg[k] + 2].append(I(x))
        if s == (12 if gsm else 7):
            gaps[54].append(I(f"v_accvgpr_read_b32 v1, a{A_TAG}"))
            gaps[56].append(I(f"v_cmp_eq_u32 vcc, 0, v1")); gaps[58].append(I("s_cbranch_vccnz KM_ZSPIN\nKM_ZBACK:"))
            gaps[60].append(I(f"v_accvgpr_write_b32 a{A_TAG}, v1")); gaps[62].append(I(f"v_readfirstlane_b32 s{S_TAG}, v1"))
        if s == 14:
            gaps[0].append(I(f"v_lshlrev_b32 v{V_T}, 7, {L}"))
            gaps[2].append(I(f"s_mov_b32 s{S_EF}, {WS_FLAG + 0x28000:#x}"))
            gaps[epos].append(I(f"buffer_load_dword v{V_KX}, v{V_T}, s[{S_WS}:{S_WS+3}], s{S_EF} offen sc1", vm=("ep", 0)))
            if pads:
                gaps[50].append(I("s_getpc_b64 s[32:33]\nKM_PC2:\ns_add_u32 s32, s32, KM_NORM-0x4000-KM_PC2\ns_addc_u32 s33, s33, 0"))
                gaps[52].append(I("s_and_b32 s33, s33, 0xffff")); gaps[53].append(I("s_mov_b32 s34, KM_END-KM_NORM+0x4000"))
                gaps[54].append(I("s_mov_b32 s35, 0x00020000")); gaps[55].append(I(f"s_lshl_b32 s82, s{S_W}, 13"))
                gaps[56].append(I(f"buffer_load_dword a{A_DUM}, v{V_T}, s[32:35], s82 offen"))
        vq = []; slow = []; slow_from = None
        if (gl + 1 <= s <= 8) if gsm else s in (gs + 1, gs + 2): vq = gfast
        if s == (9 if gsm else gs + 3): slow = list(gslow)
        ml = [mfma(1, j, i) for j in range(8) for i in range(8)]
        if 1 <= u <= 8:
            for e in range(2):
                ml.insert(30 + 20*e, f"v_mfma_f32_16x16x32_bf16 {ar(KVA,4)}, {ar(A_KX + 8*((u-1)%2) + 4*e,4)}, {ar(KVW+4*e,4)}, {'0' if (u == 1 and e == 0) else ar(KVA,4)}")
        for k, m in enumerate(ml):
            tr.ins(m)
            tr.items.extend(gaps[k])
            for _ in range((0 if gaps[k] else 1) if (gsm and vq) else vcap(gaps[k])):
                if vq: tr.ins(vq.pop(0))
                elif s == 0 and late:
                    for l in late.pop(0): tr.ins(l)
            if slow and not vq:
                if slow_from is None: slow_from = k + 2
                if k >= slow_from and (k - slow_from) % 2 == 0: tr.ins(slow.pop(0))
        for k in range(len(ml), 68): assert not gaps[k], (s, k)
        assert not slow and not late
        segs.append(tr)

    P = p2
    ec = Trace()
    ec.wait(vm=[("ep", 0)])
    ec.raw(f"""
    v_cmp_ne_u32 vcc, s{S_TAG}, v{V_KX}
    s_and_b32 s80, s2, 7
    s_lshr_b32 s81, s80, 1
    s_lshl_b32 s{P.S_MT}, s{S_MT}, 2
    s_cbranch_vccnz KM_ESPIN
    KM_EBACK:
    s_add_u32 s{P.S_MT}, s{P.S_MT}, s81
    s_lshl_b32 s{P.S_M0KV}, s{S_W}, 13
    s_add_u32 s82, s{P.S_M0KV}, {WS_KV:#x}
    s_add_u32 s{P.S_KVB}, s86, s82
    s_addc_u32 s{P.S_KVB+1}, s87, 0
    v_add_u32 v{V_DK}, 4096, v{V_L16}
    """)
    su2 = f"""
    s_and_b32 s80, s80, 1
    s_lshl_b32 s80, s80, 2
    s_and_b32 s90, s{S_NT}, 3
    s_add_u32 s{P.S_NT}, s80, s90
    s_lshr_b32 s90, s{P.S_MT}, 1
    s_mul_i32 s90, s90, 112
    s_mul_i32 s91, s{S_W}, 28
    s_add_u32 s90, s90, s91
    s_lshl_b32 s90, s90, 13
    s_and_b32 s42, s{P.S_MT}, 1
    s_lshl_b32 s42, s42, 12
    s_add_u32 s90, s90, s42
    s_add_u32 s58, s86, s90\ns_addc_u32 s59, s87, 0
    s_add_u32 s60, s58, 0x2000\ns_addc_u32 s61, s59, 0
    s_add_u32 s62, s58, 0x4000\ns_addc_u32 s63, s59, 0
    s_mov_b64 s[{P.S_HB}:{P.S_HB+1}], s[62:63]
    s_mul_i32 s90, s{P.S_NT}, 144
    s_add_u32 s91, s91, s90
    s_lshl_b32 s91, s91, 13
    s_add_u32 s91, s91, {WS_WT:#x}
    s_add_u32 s64, s86, s91\ns_addc_u32 s65, s87, 0
    s_add_u32 s66, s64, 0x2000\ns_addc_u32 s67, s65, 0
    s_add_u32 s68, s64, 0x4000\ns_addc_u32 s69, s65, 0
    s_mov_b64 s[{P.S_WB}:{P.S_WB+1}], s[68:69]
    s_lshl_b32 s91, s{S_W}, 3
    s_add_u32 s90, s90, s91
    s_lshl_b32 s90, s90, 13
    s_add_u32 s90, s90, {WS_WT + 112*8192:#x}
    s_add_u32 s{P.S_WOB}, s86, s90\ns_addc_u32 s{P.S_WOB+1}, s87, 0
    s_mul_i32 s{P.S_M0SP}, s{S_W}, 24576
    s_add_u32 s{P.S_M0SP}, s{P.S_M0SP}, {P.LDS_SP}
    s_mov_b32 s{P.S_OUT}, s96
    s_and_b32 s{P.S_OUT+1}, s97, 0xffff
    s_mov_b32 s{P.S_OUT+2}, {2048*1024*2:#x}
    s_mov_b32 s{P.S_OUT+3}, 0x00020000
    s_mov_b32 s{P.S_OF}, s{S_FLG}
    s_lshl_b32 s90, s{P.S_MT}, 12
    s_add_u32 s{P.S_OP}, s90, {WS_FLAG:#x}
    s_lshl_b32 s90, s{S_W}, 13
    s_add_u32 s{P.S_HP}, s90, {WS_FLAG + 0x20000:#x}
    s_lshl_b32 s90, s2, 7
    s_add_u32 s90, s90, {WS_FLAG + 0x20000:#x}
    s_cmp_eq_u32 s{S_W}, 0\ns_cselect_b32 s{P.S_HF}, s90, {OOB:#x}
    """
    su2 = [x.strip() for x in su2.strip().split("\n    ")]

    def last_stage(wn):
        tr = Trace()
        s = NST - 1
        su = f"""
        s_lshr_b32 s81, s{S_W}, 1
        s_lshl_b32 s82, s{S_MT}, 1
        s_add_u32 s82, s82, s81
        s_mul_i32 s82, s82, 112
        s_lshr_b32 s83, s{S_NT}, 1
        s_mul_i32 s83, s83, 7
        s_add_u32 s82, s82, s83
        s_and_b32 s84, s{S_NT}, 1
        s_add_u32 s85, s82, 6
        s_lshl_b32 s85, s85, 13
        s_mul_i32 s83, s84, 3
        s_add_u32 s82, s82, s83
        s_add_u32 s82, s82, {2*wn}
        s_lshl_b32 s82, s82, 13
        s_add_u32 s83, s82, 8192
        """
        if wn:
            su += f"""
            s_lshl_b32 s84, s84, 9
            s_add_u32 s85, s85, s84
            v_and_b32 v21, 15, {L}
            v_lshlrev_b32 v21, 4, v21
            v_bfe_u32 v24, {L}, 4, 1
            v_lshl_add_u32 v22, v24, 9, v21
            v_lshl_add_u32 v21, v24, 10, v21
            v_lshrrev_b32 v24, 5, {L}
            v_lshl_add_u32 v22, v24, 10, v22
            v_lshl_add_u32 v21, v24, 8, v21
            s_lshl_b32 s81, s81, 13
            s_add_u32 s81, s81, {P.LDS_Q}
            v_add_u32 v22, s81, v22
            v_add_u32 v23, 4096, v21
            """
        setup = [l.strip() for l in su.strip().split("\n") if l.strip()] + su2
        ffn = lambda t, i: dict(kind="f", t=t, i=i, mf=[(2*t, i), (4 + 2*t, i), (2*t + 1, i), (5 + 2*t, i)])
        if wn == 0:
            halves = [[ffn(0, i) for i in range(8)], [ffn(1, i) for i in range(8)]]
        else:
            halves = [[dict(kind="q", i=i, mf=[(3, i), (7, i)]) for i in range(8)] +
                      [dict(kind="s", i=i, mf=[(2, i), (6, i), (2, i + 1), (6, i + 1)]) for i in range(0, 8, 2)],
                      [ffn(0, i) for i in range(8)]]
        pieces = halves[0] + halves[1]
        half = len(halves[0])
        jsets = [sorted(set(j for pc in hv for j, _ in pc["mf"])) for hv in halves]
        def piece_ops(pc, pk):
            o = []
            i = pc["i"]
            tmp = 12 + 4*(i % 2)
            def reg(j, i):
                p_, b = accn(j, i)
                if p_ == "v": return b
                for r in range(4): o.append(f"v_accvgpr_read_b32 v{tmp+r}, a{b+r}")
                return tmp
            r_ = [reg(j, i_) for j, i_ in pc["mf"]]
            if pc["kind"] == "q":
                g0_, g1_ = r_
            else:
                g0_, u0, g1_, u1 = r_
                for g_, u_ in ((g0_, u0), (g1_, u1)):
                    for r in range(4): o.append(f"v_max_f32 v{g_+r}, 0, v{g_+r}")
                    if pk:
                        o.append(f"v_pk_mul_f32 {vr(g_,2)}, {vr(g_,2)}, {vr(u_,2)}")
                        o.append(f"v_pk_mul_f32 {vr(g_+2,2)}, {vr(g_+2,2)}, {vr(u_+2,2)}")
                    else:
                        for r in range(4): o.append(f"v_mul_f32 v{g_+r}, v{g_+r}, v{u_+r}")
            o += [f"v_cvt_pk_bf16_f32 v{g0_}, v{g0_}, v{g0_+1}", f"v_cvt_pk_bf16_f32 v{g0_+1}, v{g0_+2}, v{g0_+3}",
                  f"v_cvt_pk_bf16_f32 v{g0_+2}, v{g1_}, v{g1_+1}", f"v_cvt_pk_bf16_f32 v{g0_+3}, v{g1_+2}, v{g1_+3}"]
            if pc["kind"] == "q":
                o.append(f"ds_write_b128 v22, {vr(g0_,4)} offset:{(i//2)*2048 + (i%2)*256}")
            elif pc["kind"] == "s":
                o += ["s_nop 1", f"v_permlane16_swap_b32 v{g0_}, v{g0_+2}", f"v_permlane16_swap_b32 v{g0_+1}, v{g0_+3}",
                      f"buffer_store_dwordx4 {vr(g0_,4)}, {'v21' if i < 4 else 'v23'}, s[{S_WS}:{S_WS+3}], s85 offen offset:{(i%4)*1024} sc1"]
            else:
                o.append(f"buffer_store_dwordx4 {vr(g0_,4)}, {'v%d' % (V_L16 if i < 4 else V_DK)}, s[{S_WS}:{S_WS+3}], {'s82' if pc['t'] == 0 else 's83'} offen offset:{(i%4)*1024} sc1")
            return o
        rl = [xread(s, 1, i) for i in range(8)]
        for j in jsets[0]: rl += [wread(s, 1, j, 0), wread(s, 1, j, 1)]
        for x in rl: x["lg"] = ("frA", 0)
        for j in jsets[1]: rl += [wread(s, 1, j, 0), wread(s, 1, j, 1)]
        kv0 = []
        for part in range(2):
            cl = [P.kv_dma(0, part, j) for j in range(4)]
            for x in cl: x["text"] = x["text"].replace(f"v{P.V_L16},", f"v{V_L16},").replace(f"v{P.V_L16B},", f"v{V_DK},")
            kv0.append(cl)
        q = s - tq0 - 2
        tr.wait(lg=[("fr", s, 0)] + ([("tf", q)] if 0 <= q < 9 else []))
        first = []
        if gs + 4 == s and not gsm:
            first.append([I("s_mov_b32 exec_lo, 1\ns_mov_b32 exec_hi, 1"), I(f"buffer_store_dwordx2 v[24:25], v{V_GROW}, s[{S_WS}:{S_WS+3}], 0 offen sc1", vm=("hst", 0)), I("s_mov_b64 exec, -1")])
        if 0 <= q < 9 and not tdefer: first.append([tstore(q)[0]])
        for k, (j, i) in enumerate([(j, i) for j in jsets[0] for i in range(8)]):
            tr.ins(mfma(0, j, i))
            if first:
                tr.items.extend(first.pop(0)); continue
            if k in (26, 29): tr.ins(f"s_add_u32 m0, s{P.S_M0KV}, {4096 if k == 29 else 0}")
            elif k in (27, 30): tr.items.extend(kv0.pop(0))
            elif rl: tr.items.append(rl.pop(0))
            for _ in range(2):
                if setup: tr.ins(setup.pop(0))
        assert not rl
        tr.items.extend(adv64(P.S_KVB, 32768))
        for x in setup: tr.ins(x)
        tr.wait(lg=[("frA", 0)])
        ml = []
        for pi, pc in enumerate(pieces):
            if pi == half:
                ml.append((W(lg=[("fr", s, 1)]), None))
                ml += [(mfma(0, j, i), None) for j in jsets[1] for i in range(8)]
            for j, i in pc["mf"]: ml.append((mfma(1, j, i), pi))
        done_at = {}; cnt = 0; vq = []; nextp = 0
        def put(x):
            tr.ins(x, vm=("hst", 0) if x.startswith("buffer_") else None, lg=("qw", 0) if x.startswith("ds_") else None)
        for k, (m, pi) in enumerate(ml):
            if isinstance(m, dict):
                tr.items.append(m); continue
            tr.ins(m); cnt += 1
            if pi is not None and (k + 1 == len(ml) or ml[k + 1][1] != pi): done_at[pi] = cnt
            budget = 2
            while budget > 0:
                if not vq and nextp in done_at and cnt - done_at[nextp] >= 9:
                    vq = piece_ops(pieces[nextp], False); nextp += 1
                if not vq: break
                c_ = 2 if vq[0].startswith(("buffer_", "ds_")) else 1
                if c_ > budget: break
                put(vq.pop(0)); cnt += 1; budget -= c_
        for x in vq: put(x); cnt += 1
        while nextp < len(pieces):
            if cnt - done_at[nextp] < 9: tr.ins("s_nop 7"); cnt += 8
            for x in piece_ops(pieces[nextp], True): put(x); cnt += 1
            nextp += 1
        return tr
    l0, l1 = last_stage(0), last_stage(1)

    L2 = f"v{P.V_LANE}"
    h2 = Trace()
    h2.raw(f"""
    v_mov_b32 {L2}, {L}
    v_mov_b32 v{P.V_L16}, v{V_L16}
    v_mov_b32 v{P.V_L16B}, v{V_DK}
    v_mov_b32 v{P.V_KVR}, v{V_L16}
    s_lshl_b32 s80, s{S_W}, 12
    s_add_u32 s80, s80, {P.LDS_Q}
    v_add_u32 v24, s80, v{V_L16}
    """)
    h2.wait(vm=[("kv", 0)])
    h2.raw("s_waitcnt lgkmcnt(0)\ns_barrier")
    for q in range(4): h2.ins(f"ds_read_b128 {ar(P.A_Q + 4*q,4)}, v24 offset:{q*1024}", lg=("q", 0))
    for half in range(2): h2.items.append(P.k_read(0, half))
    for half in range(2): h2.items.append(P.v_read(0, half))
    for pp in range(4):
        h2.raw(f"""
        s_add_u32 s80, s{S_W}, {pp}
        s_and_b32 s80, s80, 3
        s_lshl_b32 s80, s80, 11
        v_add_u32 v{P.V_W+pp}, s80, v{P.V_L16}
        """)
    h2.wait(lg=[("k", 0)])
    h2.ins(P.qk(0, 0)); h2.ins(P.qk(0, 1))
    h2.raw(f"""
    v_add_u32 v{P.V_SP}, s{P.S_M0SP}, v{P.V_L16}
    v_add_u32 v{P.V_KP}, s{P.S_M0KV}, v{P.V_L16}
    v_add_u32 v{P.V_WB}, 2048, v{P.V_W}
    v_add_u32 v{P.V_WB+1}, 2048, v{P.V_W+2}
    s_nop 3
    """)
    h2.raw(f"""
    v_bfe_u32 v26, {L2}, 4, 1
    v_bfe_u32 v27, {L2}, 2, 1
    v_cmp_eq_u32 vcc, v26, v27
    v_mov_b32 v26, 0x3f803f80
    s_lshl_b32 s40, s{P.S_MT}, 9
    s_add_u32 s40, s40, {WS_G:#x}
    v_cndmask_b32 v26, 0, v26, vcc
    """)
    for r in range(4): h2.ins(f"v_accvgpr_write_b32 a{P.A_SEL+r}, v26")
    h2.raw(f"""
    s_lshl_b32 s41, s{S_MT}, 11
    s_lshl_b32 s80, s{S_W}, 9
    s_add_u32 s41, s41, s80
    s_add_u32 s41, s41, {WS_G:#x}
    v_and_b32 v26, 31, {L2}
    v_lshlrev_b32 v26, 3, v26
    v_and_b32 v27, 15, {L2}
    v_lshlrev_b32 v27, 3, v27
    v_lshlrev_b32 v25, 7, {L2}
    v_mov_b32 v24, s{S_TAG}
    """)
    def rebase(x, frm, to):
        x["text"] = x["text"].replace(f"s[{frm}:{frm+1}]", f"s[{to}:{to+1}]"); return x
    wl = lambda sg, J0, b: [rebase(P.w_load(sg, J), P.S_WB, b) for J in range(J0, J0 + 4)]
    hl = lambda sg, b: [rebase(P.h_load(sg, i), P.S_HB, b) for i in range(4)]
    early = []
    timed = [(1 + q // 3, tstore(q)) for q in range(9)] if tdefer else []
    if tp2:
        LT2 = 81920
        h2.raw(f"""
        v_lshrrev_b32 v17, 5, {L2}
        v_lshl_add_u32 v17, v17, 13, v{V_DT}
        v_add_u32 v{V_RT}, {LT2 - LDS_T}, v{V_RT}
        s_add_u32 s{S_M0T}, s{S_M0T}, {LT2 - LDS_T}
        """)
        fl = " nt" if ntt else ""
        for q in range(9):
            it_ = [I(f"s_add_u32 m0, s{S_M0T}, {q*4096}"), I("s_nop 0")]
            if q == 6: it_.append(I(f"buffer_load_dwordx4 v17, s[{S_WD}:{S_WD+3}], s{S_TSRCS} offen{fl} lds", vm=("t", q)))
            else:
                srdn, so = (S_WD, S_TSRC) if q < 7 else (S_WO, S_TSRC2)
                it_ += [I(f"buffer_load_dwordx4 v{V_DT}, s[{srdn}:{srdn+3}], s{so} offen{fl} lds", vm=("t", q)), I(f"s_add_u32 s{so}, s{so}, {48*2048 if q == 2 else 0x10000}")]
            timed.append((1 + q // 3, it_))
        timed.append((tb, [W(vm=[("t", 8)]), I("s_barrier")]))
        for q in range(9):
            timed.append((tb + q // 3, [I(f"ds_read_b64_tr_b16 {ar(P.A_WR + 4*q + 2*h,2)}, v{V_RT} offset:{q*4096 + h*2048}", lg=("tf", q)) for h in range(2)]))
        for q in range(9):
            so = S_TDST if q < 7 else S_TDST2
            timed.append((tb + 3 + q // 3, [W(lg=[("tf", q)]), I(f"buffer_store_dwordx4 {ar(P.A_WR + 4*q,4)}, v{P.V_L16}, s[{S_WS}:{S_WS+3}], s{so} offen sc1", vm=("ts", q)), I(f"s_add_u32 s{so}, s{so}, 8192")]))
    timed += [(hsig, [W(vm=[("hst", 0), ("ts", 8)]), I("s_barrier"), I("s_mov_b64 exec, 1"), I(f"buffer_store_dword v24, off, s[{S_WS}:{S_WS+3}], s{P.S_HF} sc1"), I("s_mov_b64 exec, -1")]),
             (hpoll, [I(f"buffer_load_dword v28, v25, s[{S_WS}:{S_WS+3}], s{P.S_HP} offen sc1", vm=("hp", 0))]),
             (hpoll + 2, [W(vm=[("hp", 0)]), I(f"v_cmp_ne_u32 vcc, s{S_TAG}, v28"), I("s_nop 0"), I("s_cbranch_vccnz KM_HSPIN"), I("KM_HBACK:"), I("s_barrier")] + hl(0, 58)),
             (hpoll + 2, wl(0, 0, 64)), (hpoll + 3, wl(0, 4, 64)), (hpoll + 3, hl(1, 60)), (hpoll + 4, wl(1, 0, 66)), (hpoll + 4, wl(1, 4, 66)),
             (hpoll + 5, wl(2, 0, 68)), (hpoll + 5, hl(2, 62)),
             (hpoll + 12, [I(f"buffer_load_dword v{P.V_G+hh}, v26, s[{S_WS}:{S_WS+3}], s41 offen offset:{hh*256} sc1", vm=("g2", 0)) for hh in range(2)]),
             (hpoll + 14, [I(f"buffer_load_dword v{P.V_OMG+i}, v27, s[{S_WS}:{S_WS+3}], s40 offen offset:{4 + i*128} sc1", vm=("g2", 0)) for i in range(4)])]
    body = P.main_loop(NIN, g0, early, timed)
    NDOWN, NWO, ACC = P.NDOWN, P.NWO, P.ACC
    t1 = Trace()
    n = P.NSLOT - 1
    t1.ins("s_nop 1")
    t1.ins(P.pv(n, 0)); t1.ins(P.summ(n, 0)); t1.ins(P.pv(n, 1)); t1.ins(P.summ(n, 1))
    VO = P.V_O
    q_ = Trace()
    q_.raw(f"""
    v_bfe_u32 v26, {L2}, 4, 1
    s_lshl_b32 s78, s{S_MT}, 1
    v_lshlrev_b32 v26, 10, v26
    s_lshr_b32 s79, s{S_W}, 1
    v_and_b32 v27, 15, {L2}
    s_add_u32 s78, s78, s79
    v_lshl_add_u32 v26, v27, 4, v26
    s_lshl_b32 s78, s78, 5
    v_lshrrev_b32 v27, 5, {L2}
    s_add_u32 s78, s78, s{S_NT}
    v_lshl_add_u32 v26, v27, 8, v26
    s_lshl_b32 s78, s78, 13
    s_and_b32 s79, s{S_W}, 1
    s_lshl_b32 s79, s79, 12
    s_add_u32 s78, s78, s79
    s_add_u32 s54, s78, {WS_O:#x}
    s_mov_b32 s78, 0x1f800000
    s_mov_b32 s79, 0x5f800000
    s_mov_b32 s55, 0
    v_accvgpr_read_b32 v80, a{P.A_L}
    v_accvgpr_read_b32 v81, a{P.A_L+4}
    """)
    q_.wait(vm=[("g2", 0)])
    q_.raw(f"""
    v_min_f32 v83, v80, v81
    v_max_f32 v84, v80, v81
    v_add_f32 v85, v80, v81
    v_cmp_nle_f32 s[82:83], s78, v83
    v_cmp_nge_f32 s[84:85], s79, v84
    v_cmp_u_f32 vcc, v85, v85
    """)
    q_.ins("s_nop 1\ns_or_b64 s[82:83], s[82:83], s[84:85]\ns_or_b64 vcc, vcc, s[82:83]\ns_cbranch_vccnz KM_FALLBACK\nKM_NORM:\nv_rcp_f32 v80, v80")
    q_.raw(f"""
    v_rcp_f32 v82, v81
    v_mul_f32 v80, v80, v{P.V_G}
    v_mul_f32 v82, v82, v{P.V_G+1}
    """)
    for hh in range(2):
        for pc in range(2):
            b = VO + 16*hh + 8*pc
            for r in range(8): q_.ins(f"v_mul_f32 v{b+r}, v{b+r}, v{80+2*hh}")
            for q in range(4): q_.ins(f"v_cvt_pk_bf16_f32 v{64+8*hh+4*pc+q}, v{b+2*q}, v{b+2*q+1}")
            q_.ins(f"buffer_store_dwordx4 {vr(64+8*hh+4*pc,4)}, v26, s[{S_WS}:{S_WS+3}], s54 offen offset:{hh*2048 + pc*512} sc1", vm=("ost", 0))
    vq = q_.items
    nA, nB = nb
    stepsA = [P.gemm_step(s, vq=vq) for s in range(NIN, NIN + nA)]
    t2 = Trace()
    t2.items.extend(vq)
    t2.ins("s_nop 1")
    for q in range(4):
        t2.ins(f"v_mfma_f32_16x16x32_bf16 v[84:87], {ar(P.A_SEL,4)}, {vr(64+4*q,4)}, {'0' if q == 0 else 'v[84:87]'}")
    stepsA.append(t2)
    polli = lambda: I(f"buffer_load_dword v28, v25, s[{S_WS}:{S_WS+3}], s{P.S_OP} offen sc1", vm=("op", 0))
    stepsB = [P.gemm_step(s, late=[polli()] if s == NIN + nA + nB - 1 else []) for s in range(NIN + nA, NIN + nA + nB)]
    sig = Trace()
    sig.raw(f"""
    v_and_b32 v25, 31, {L2}
    v_lshlrev_b32 v25, 7, v25
    s_lshr_b32 s78, s{P.S_MT}, 1
    s_lshl_b32 s78, s78, 18
    s_add_u32 s78, s78, s42
    s_lshl_b32 s79, s{S_W}, 16
    s_add_u32 s78, s78, s79
    s_add_u32 s78, s78, {WS_O:#x}
    s_add_u32 s56, s86, s78
    s_addc_u32 s57, s87, 0
    """)
    sig.raw(f"""
    v_sub_f32 v84, v84, v84
    s_cmp_lg_u32 s55, 0
    v_cmp_u_f32 vcc, v84, v84
    s_cbranch_scc1 KM_CHECKED
    s_cbranch_vccnz KM_FALLBACK2
    KM_CHECKED:
    """)
    sig.wait(vm=[("ost", 0)])
    sig.raw(f"""
    s_mov_b64 exec, 1
    buffer_store_dword v24, off, s[{S_WS}:{S_WS+3}], s{P.S_OF} sc1
    s_mov_b64 exec, -1
    """)
    t3 = Trace()
    t3.wait(vm=[("op", 0)])
    t3.raw(f"""
    v_cmp_ne_u32 vcc, s{S_TAG}, v28
    s_nop 0
    s_cbranch_vccnz KM_OSPIN
    KM_OBACK:
    """)
    ol = []
    for s in range(NDOWN, NDOWN + NWO):
        ol.append([rebase(P.h_load(s, i), P.S_HB, 56) for i in range(4)] + (adv64(56, 8192) if s < NDOWN + NWO - 1 else []))
    t4 = Trace()
    for grp in ol[:opre]: t4.items.extend(grp)
    k = opre
    stepsC = []
    for s in range(NIN + nA + nB, NDOWN):
        ex = []
        while len(ex) < 2 and k < 5: ex.append(ol[k]); k += 1
        stepsC.append(P.gemm_step(s, ex))
    wos = []
    for s in range(NDOWN, NDOWN + 4):
        ex = []
        while len(ex) < 2 and k < NWO: ex.append(ol[k]); k += 1
        wos.append(P.gemm_step(s, ex))
    ph = Trace()
    su = Asm()
    for pp in range(1, 4):
        su(f"s_add_u32 s78, s{S_W}, {pp}\ns_and_b32 s78, s78, 3\ns_mul_i32 s78, s78, 24576\ns_add_u32 s78, s78, {(pp-1)*8192}\nv_add_u32 v{26+pp}, s78, v{P.V_L16}")
    su(f"""
    s_mul_i32 s78, s{S_W}, 24576
    v_add_u32 v26, s78, v{P.V_L16}
    s_lshl_b32 s78, s{P.S_MT}, 17
    s_lshl_b32 s79, s{P.S_NT}, 8
    s_add_u32 s78, s78, s79
    s_lshl_b32 s79, s{S_W}, 6
    s_add_u32 s78, s78, s79
    s_add_u32 s79, s78, 0x8000
    s_add_u32 s80, s78, 0x10000
    s_add_u32 s81, s78, 0x18000
    v_and_b32 v30, 15, {L2}
    v_lshlrev_b32 v30, 11, v30
    v_bfe_u32 v25, {L2}, 4, 1
    v_lshl_add_u32 v30, v25, 5, v30
    v_lshrrev_b32 v25, 5, {L2}
    v_lshl_add_u32 v30, v25, 4, v30
    """)
    su = [l.strip() for l in su.lines]
    S2 = list(range(NDOWN + 4, NDOWN + 8))
    ph.wait(vm=[("w", s, J) for s in S2[2:] for J in range(8)], lg=[("w", s, J) for s in S2[:2] for J in range(8)])
    ph.ins("s_barrier")
    R0, R1, R2 = ACC + 32, ACC + 64, 32
    for idx, pp in enumerate((1, 2, 3, 0)):
        fill = [[] for _ in range(32)]
        if idx == 0:
            for q, x in enumerate(su): fill[q].append(I(x))
        else:
            prev = (1, 2, 3)[idx - 1]
            for t in range(8):
                fill[(4 + 3*t) if idx < 3 or not ph2new else (1 + t + (3 if t >= 4 else 0))].append(I(f"ds_write_b128 v{26+prev}, {vr(ACC + (prev*8 + t)*4, 4)} offset:{t*1024}", lg=("rw", prev)))
        if idx == 3:
            rd = [I(f"ds_read_b128 {vr((R0, R1, R2)[s_] + t*4, 4)}, v26 offset:{s_*8192 + t*1024}", lg=("rr", s_)) for s_ in range(3) for t in range(8)]
            if ph2new:
                for k_, x in enumerate(rd[:16]): fill[12 + k_ // 2].append(x)
                fill[21] += [W(lg=[("rw", 3)]), I("s_barrier")]
                for k_, x in enumerate(rd[16:]): fill[22 + k_ // 2].append(x)
                fill[26].append(W(lg=[("rr", 1)]))
                for k_ in range(10): fill[26 + k_ // 2].append(I(f"v_add_f32 v{R0+k_}, v{R0+k_}, v{R1+k_}"))
            else:
                free = [g for g in range(32) if not fill[g]]
                for x, g in zip(rd[:16], free): fill[g].append(x)
            ph.wait(lg=[("rw", 2)])
            ph.ins("s_barrier")
        mu = 0
        for s in S2:
            if idx == 0: ph.wait(vm=[("h", s, i) for i in range(4)])
            for J in (2*pp, 2*pp + 1):
                for i in range(4):
                    ph.ins(P.gemm_mfma(s, J, i, False)); ph.items.extend(fill[mu]); mu += 1
    if ph2new:
        for r in range(10, 32, 2): ph.ins(f"v_pk_add_f32 {vr(R0+r,2)}, {vr(R0+r,2)}, {vr(R1+r,2)}")
        ph.wait(lg=[("rr", 2)])
        for r in range(0, 32, 2): ph.ins(f"v_pk_add_f32 {vr(R0+r,2)}, {vr(R0+r,2)}, {vr(R2+r,2)}")
    else:
        ph.wait(lg=[("rw", 3), ("rr", 1)])
        ph.ins("s_barrier")
        ph.items.extend(rd[16:])
        for r in range(0, 32, 2): ph.ins(f"v_pk_add_f32 {vr(R0+r,2)}, {vr(R0+r,2)}, {vr(R1+r,2)}")
        ph.wait(lg=[("rr", 2)])
        for r in range(0, 32, 2): ph.ins(f"v_pk_add_f32 {vr(R0+r,2)}, {vr(R0+r,2)}, {vr(R2+r,2)}")
    for i in range(4):
        b0, b1 = ACC + i*4, ACC + (4 + i)*4
        d = 64 + i*4
        om = P.V_OMG + i
        for b in (b0, b0 + 2, b1, b1 + 2):
            ph.ins(f"v_pk_add_f32 {vr(b,2)}, {vr(b,2)}, {vr(b + 32,2)}")
        for b in (b0, b0 + 2, b1, b1 + 2):
            ph.ins(f"v_pk_mul_f32 {vr(b,2)}, {vr(b,2)}, {vr(om,2)} op_sel_hi:[1,0]" if om % 2 == 0 else f"v_pk_mul_f32 {vr(b,2)}, {vr(b,2)}, {vr(om-1,2)} op_sel:[0,1] op_sel_hi:[1,1]")
        ph.raw(f"""
        v_cvt_pk_bf16_f32 v{d}, v{b0}, v{b0+1}
        v_cvt_pk_bf16_f32 v{d+1}, v{b0+2}, v{b0+3}
        v_cvt_pk_bf16_f32 v{d+2}, v{b1}, v{b1+1}
        v_cvt_pk_bf16_f32 v{d+3}, v{b1+2}, v{b1+3}
        s_nop 1
        v_permlane16_swap_b32 v{d}, v{d+2}
        v_permlane16_swap_b32 v{d+1}, v{d+3}
        buffer_store_dwordx4 {vr(d,4)}, v30, s[{P.S_OUT}:{P.S_OUT+3}], s{78+i} offen sc1 nt
        """)
    head = [pro, pro2] + segs + [ec]
    rest = [h2, body, t1] + stepsA + [sig] + stepsB + [t3, t4] + stepsC + wos + [ph]
    import copy
    resolve(head + [l0] + rest)
    saved = [[(x.get("wvm"), x.get("wlg")) for x in seg.items] for seg in rest]
    resolve(head + [l1] + rest)
    for seg, sv in zip(rest, saved):
        for x, (v, l) in zip(seg.items, sv):
            if x["text"] is None:
                mn = lambda p, q: q if p is None else p if q is None else min(p, q)
                x["wvm"], x["wlg"] = mn(x["wvm"], v), mn(x["wlg"], l)
    emit_trace(a, [pro]); st.stamp()
    if pads:
        a("s_branch KM_BODY")
        a.lines.append(".p2align 12")
        a.label("KM_BODY")
    emit_trace(a, [pro2]); st.stamp()
    for k, tr in enumerate(segs):
        if 'wv' in exp and k % 2 == 0 and wv0 <= k // 2 < wv0 + 5:
            t_ = Trace(); t_.items = tr.items[:-2]; emit_trace(a, [t_]); st.stamp()
            t_.items = tr.items[-2:-1]; emit_trace(a, [t_]); st.stamp()
            t_.items = tr.items[-1:]; emit_trace(a, [t_]); st.stamp()
            continue
        emit_trace(a, [tr])
        if 'stg' in exp and k % 2 == 0: st.stamp()
    st.stamp()
    emit_trace(a, [ec])
    if 'ec' in exp: st.stamp()
    a(f"s_bitcmp1_b32 s{S_W}, 0")
    a("s_cbranch_scc1 KM_LAST1")
    emit_trace(a, [l0])
    a("s_branch KM_P2")
    a.label("KM_LAST1")
    emit_trace(a, [l1])
    a.label("KM_P2")
    st.stamp()
    if pads: a.lines.append("@CHAIN2")
    emit_trace(a, [h2]); st.stamp()
    b = Asm(); emit_trace(b, [body])
    for l in b.lines:
        a.lines.append(l)
        if 'its' in exp and l.strip() in ("s_barrier", "KM_HBACK:"): st.stamp()
    st.stamp()
    emit_trace(a, [t1]); st.stamp()
    for seg in stepsA + [sig]: emit_trace(a, [seg])
    st.stamp()
    for seg in stepsB: emit_trace(a, [seg])
    st.stamp()
    emit_trace(a, [t3]); st.stamp()
    for seg in [t4] + stepsC: emit_trace(a, [seg])
    st.stamp()
    for seg in wos: emit_trace(a, [seg])
    st.stamp()
    b = Asm(); emit_trace(b, [ph])
    nm = 0
    for l in b.lines:
        a.lines.append(l)
        if l.strip().startswith("v_mfma"): nm += 1
        if 'ph' in exp and ((l.strip().startswith("v_mfma") and nm % 32 == 0) or (l.strip() == "s_barrier" and nm == 0) or "s81 offen" in l): st.stamp()
    if dbg:
        a("s_waitcnt vmcnt(0)")
        st.stamp(force=True)
        st.dump(0, S_W, 86)
        if hdbg is not None:
            a(f"""
            s_lshl_b32 s90, s2, 2
            s_add_u32 s90, s90, s{S_W}
            s_cmp_eq_u32 s90, {4*hdbg}
            s_cbranch_scc0 KM_END
            v_readlane_b32 s90, v31, 32
            v_mbcnt_lo_u32_b32 v0, -1, 0
            v_mbcnt_hi_u32_b32 v0, -1, v0
            v_subrev_u32 v31, s90, v31
            v_subrev_u32 v0, 32, v0
            v_lshlrev_b32 v0, 2, v0
            s_mov_b32 exec_lo, 0
            s_mov_b32 exec_hi, 0xfffe
            buffer_store_dword v31, v0, s[{S_DBG}:{S_DBG+3}], 0 offen
            """)
    a("s_endpgm")
    for nm, ld, val in (("Z", f"buffer_load_dword v1, off, s[{S_DBG}:{S_DBG+3}], 0 sc1", f"eq_u32 vcc, 0, v1"),
                        ("E", f"buffer_load_dword v{V_KX}, v{V_T}, s[{S_WS}:{S_WS+3}], s{S_EF} offen sc1", f"ne_u32 vcc, s{S_TAG}, v{V_KX}"),
                        ("H", f"buffer_load_dword v28, v25, s[{S_WS}:{S_WS+3}], s{P.S_HP} offen sc1", f"ne_u32 vcc, s{S_TAG}, v28"),
                        ("O", f"buffer_load_dword v28, v25, s[{S_WS}:{S_WS+3}], s{P.S_OP} offen sc1", f"ne_u32 vcc, s{S_TAG}, v28")):
        a(f"""
        KM_{nm}SPIN:
        s_mov_b32 s91, 0x40000
        KM_{nm}SPIN1:
        {ld}
        s_waitcnt vmcnt(0)
        v_cmp_{val}
        s_sub_u32 s91, s91, 1
        s_cbranch_vccz KM_{nm}BACK
        s_cmp_eq_u32 s91, 0
        s_cbranch_scc1 KM_{nm}BACK
        s_sleep 1
        s_branch KM_{nm}SPIN1
        """)
    A_K, A_Q = P.A_K, P.A_Q
    a.label("KM_FALLBACK2")
    a("s_mov_b32 s55, 2")
    a.label("KM_FALLBACK")
    a(f"""
    s_or_b32 s55, s55, 1
    s_waitcnt vmcnt(0) lgkmcnt(0)
    s_nop 15
    v_mov_b32 v82, 0xff7fffff
    v_mov_b32 v83, 0xff7fffff
    v_mov_b32 v80, 0
    v_mov_b32 v81, 0
    s_mov_b32 s78, {WS_KV:#x}
    """)
    for r in range(32): a(f"v_mov_b32 v{VO+r}, 0")
    a.label("KM_FB_LOOP")
    for q in range(4):
        a(f"buffer_load_dwordx4 {ar(A_K+4*q,4)}, v{P.V_L16}, s[{S_WS}:{S_WS+3}], s78 offen offset:{q*1024} sc1")
    a("s_waitcnt vmcnt(0)")
    for hh in range(2):
        O = VO + 16*hh; m = 82 + hh; l = 80 + hh
        a(f"v_mfma_f32_32x32x16_bf16 v[64:79], {ar(A_K,4)}, {ar(A_Q+8*hh,4)}, 0")
        a(f"v_mfma_f32_32x32x16_bf16 v[64:79], {ar(A_K+4,4)}, {ar(A_Q+8*hh+4,4)}, v[64:79]")
        a("s_nop 15")
        a("v_max_f32 v84, v64, v65")
        for r in range(2, 16, 2): a(f"v_max3_f32 v84, v{64+r}, v{65+r}, v84")
        a(f"""
        v_mov_b32 v85, v84
        s_nop 1
        v_permlane32_swap_b32 v84, v85
        s_nop 1
        v_max3_f32 v84, v84, v85, v{m}
        v_sub_f32 v85, v{m}, v84
        v_exp_f32 v85, v85
        v_mov_b32 v{m}, v84
        v_mul_f32 v{l}, v{l}, v85
        """)
        for r in range(16):
            a(f"v_sub_f32 v{64+r}, v{64+r}, v84")
            a(f"v_exp_f32 v{64+r}, v{64+r}")
            a(f"v_mul_f32 v{O+r}, v{O+r}, v85")
        for r in range(8): a(f"v_cvt_pk_bf16_f32 v{64+r}, v{64+2*r}, v{65+2*r}")
        for r in range(8):
            a(f"v_lshlrev_b32 v86, 16, v{64+r}\nv_and_b32 v87, 0xffff0000, v{64+r}\nv_add_f32 v{l}, v{l}, v86\nv_add_f32 v{l}, v{l}, v87")
        a(f"v_mfma_f32_32x32x16_bf16 {vr(O,16)}, {ar(A_K+8,4)}, v[64:67], {vr(O,16)}")
        a(f"v_mfma_f32_32x32x16_bf16 {vr(O,16)}, {ar(A_K+12,4)}, v[68:71], {vr(O,16)}")
        a("s_nop 15")
    a(f"""
    s_add_u32 s78, s78, 4096
    s_cmp_lt_u32 s78, {WS_KV + 64*4096:#x}
    s_cbranch_scc1 KM_FB_LOOP
    v_mov_b32 v84, v80
    v_mov_b32 v85, v81
    s_nop 1
    v_permlane32_swap_b32 v80, v84
    v_permlane32_swap_b32 v81, v85
    s_nop 1
    v_add_f32 v80, v80, v84
    v_add_f32 v81, v81, v85
    s_cmp_eq_u32 s55, 1
    s_cbranch_scc1 KM_NORM
    v_rcp_f32 v80, v80
    v_rcp_f32 v82, v81
    s_nop 0
    v_mul_f32 v80, v80, v{P.V_G}
    v_mul_f32 v82, v82, v{P.V_G+1}
    """)
    for hh in range(2):
        for pc in range(2):
            b = VO + 16*hh + 8*pc
            for r in range(8): a(f"v_mul_f32 v{b+r}, v{b+r}, v{80+2*hh}")
            for q in range(4): a(f"v_cvt_pk_bf16_f32 v{64+8*hh+4*pc+q}, v{b+2*q}, v{b+2*q+1}")
            a(f"buffer_store_dwordx4 {vr(64+8*hh+4*pc,4)}, v26, s[{S_WS}:{S_WS+3}], s54 offen offset:{hh*2048 + pc*512} sc1")
    a(f"""
    s_waitcnt vmcnt(0)
    s_branch KM_CHECKED
    KM_END:
    s_endpgm
    """)
    return a.text()
```

```python
from common import *
import p2
from p2 import I, W, adv64
import math, struct

KM = NAME + "_kernel"
LDS_X = 0; LDS_W = 65536
LDS_R = 131072
LDS_QS = LDS_R; LDS_KW = LDS_R + 4096; LDS_T = LDS_R + 16384
KM_LDS = 163840
NST = 16
OOB = 0x7f000000

def accn(j, i): return ("v", 32 + (j*8 + i)*4) if j < 7 else ("a", 128 + i*4)
def acc(j, i):
    p, b = accn(j, i); return vr(b, 4, p)
XF = [0, 64]; WF = [32, 96]
KVW, KVA, A_GX, A_GW, A_T, A_KX, A_DUM = 160, 168, 172, 188, 204, 208, 255
TREG = [196, 200, 204, 224, 228, 232, 236, 240, 244]
V_DQ, V_DX, V_DW = 0, 2, 6
V_RX = [10, 11]
V_RW, V_R3, V_R7, V_RKW, V_T, V_KX, V_LANE = 12, 15, 16, 17, 18, 19, 20
V_GROW, V_L16, V_RT, V_DT, V_DK = 26, 27, 28, 29, 30
S_WQ, S_X, S_G, S_U, S_KV, S_WS, S_GW, S_TSRD, S_WD, S_WO, S_DBG = 4, 8, 12, 16, 20, 24, 28, 32, 52, 76, 72
S_W, S_MT, S_NT, S_OK = 36, 37, 38, 39
S_OX, S_OX2, S_OG, S_OQ, S_TSRCS = 40, 41, 42, 43, 44
S_M0X, S_M0W, S_M0K, S_M0T, S_M0Q = 45, 46, 47, 51, 56
S_TOFF, S_TSTEP, S_TOG = 48, 49, 50
S_TSRC, S_TDST, S_TSRC2, S_TDST2, S_GROW = 3, 94, 95, 100, 101
S_EF = 88
S_LMASK, S_T2D = 58, 59
S_TAG = 89
A_TAG = 254
S_FLG = 57

KVD = 1
def dma_group(s, ntw):
    b = s % 2
    g = []
    nt = " nt" if ntw else ""
    for half in range(2):
        so = S_OX if half == 0 else S_OX2
        for j in range(4):
            pre = f"s_add_u32 m0, s{S_M0X}, {b*32768 + half*4096}" if j == 0 else None
            g.append((pre, I(f"buffer_load_dwordx4 v{V_DX+j}, s[{S_X}:{S_X+3}], s{so} offen offset:{j*1024} lds", vm=("st", s))))
    for part in range(2):
        srdn = S_G if part == 0 else S_U
        for j in range(4):
            pre = f"s_add_u32 m0, s{S_M0W}, {b*32768 + part*16384}" if j == 0 else None
            g.append((pre, I(f"buffer_load_dwordx4 v{V_DW+j}, s[{srdn}:{srdn+3}], s{S_OG} offen offset:{j*1024}{nt} lds", vm=("st", s))))
    g.append((f"s_add_u32 m0, s{S_M0Q}, {b*2048}", I(f"buffer_load_dwordx4 v{V_DQ}, s[{S_WQ}:{S_WQ+3}], s{S_OQ} offen{nt} lds", vm=("st", s))))
    adv = {7: [f"s_add_u32 s{S_OX}, s{S_OX}, 128", f"s_add_u32 s{S_OX2}, s{S_OX2}, 128"],
           15: [f"s_add_u32 s{S_OG}, s{S_OG}, {64*7168}"], 16: [f"s_add_u32 s{S_OQ}, s{S_OQ}, 0x20000"]}
    if 1 <= s - KVD <= 8:
        g.append((f"s_add_u32 m0, s{S_M0K}, {b*8192}", I(f"buffer_load_dwordx4 v{V_DK}, s[{S_KV}:{S_KV+3}], s{S_OK} offen lds", vm=("st", s))))
        adv[17] = [f"s_add_u32 s{S_OK}, s{S_OK}, 8192"]
    return g, adv
def xread(s, kk, i):
    return I(f"ds_read_b128 {ar(XF[kk]+4*i,4)}, v{V_RX[kk]} offset:{(s%2)*32768 + i*2048}", lg=("fr", s, kk))
def wread(s, kk, j, h):
    if j % 4 == 3:
        reg, off = (V_R3 if j == 3 else V_R7), h*1024 + kk*8192
    else:
        reg, off = V_RW + (j & 3), (s % 2)*32768 + h*1024 + kk*8192 + (16384 if j >= 4 else 0)
    return I(f"ds_read_b64_tr_b16 {ar(WF[kk]+4*j+2*h,2)}, v{reg} offset:{off}", lg=("fr", s, kk))
def reads(s, kk):
    r = [wread(s, kk, 0, 0), wread(s, kk, 0, 1)] + [xread(s, kk, i) for i in range(8)]
    for j in range(1, 8): r += [wread(s, kk, j, 0), wread(s, kk, j, 1)]
    return r
def mfma(kk, j, i, first=False):
    return f"v_mfma_f32_16x16x32_bf16 {acc(j,i)}, {ar(WF[kk]+4*j,4)}, {ar(XF[kk]+4*i,4)}, {'0' if first else acc(j,i)}"
def vcap(items):
    c = 2
    for x in items:
        t = x["text"] or "s_"
        if t.startswith("ds_"): c -= 1
        elif t.startswith(("buffer_", "global_")): c -= 2
        elif t.startswith("v_"): c -= 1
    return max(c, 0)
from k1 import g_ops as _g_ops
import k1 as _k1
_k1.A_GX, _k1.A_GW = A_GX, A_GW

def gen(dbg=False, hdbg=None, lead=True, lphase=0, xhead=True, al1=None, al2=None, gsm=True, tsp0=4, hstart=0, xmask=0x1f, tt0=0, wv0=1, cl=1, gc=(10, 8), dc=8, slack=0, ph2new=True, tp2=False, tb=8, tlb=0, tlbpos=17, tdefer=False, tpro=0, tpos=0, gl=2, pads=0, epos=10, chain_at=1, ot=99, touch=1, nhead=13, p1=13, npro0=8, gs=11, tq0=5, ntw=False, ntt=True, exp='',
        g0=22, hsig=7, hpoll=15, opre=1, nb=(1, 2)):
    esig = KVD + 11
    if tp2:
        tq0 = 100
    NIN = p2.NIN
    a = Asm()
    L = f"v{V_LANE}"
    a("s_cmp_ge_u32 s2, 256")
    a("s_cbranch_scc1 KM_END")
    st = Stamps(a, dbg)
    st.stamp()
    a("s_memrealtime s[72:73]")
    a("s_load_dwordx8 s[56:63], s[0:1], 0")
    a("s_load_dwordx8 s[64:71], s[0:1], 48")
    a("s_load_dwordx2 s[74:75], s[0:1], 32")
    a("s_load_dwordx4 s[96:99], s[0:1], 80")
    a("s_load_dwordx2 s[86:87], s[0:1], 96")
    code_prefetch(a, "KM", 32, "a255", 3)
    a(f"""
    v_and_b32 {L}, 63, v0
    v_lshrrev_b32 v1, 6, v0
    s_and_b32 s80, s2, 7
    v_readfirstlane_b32 s{S_W}, v1
    s_lshr_b32 s81, s2, 3
    s_and_b32 s{S_MT}, s81, 7
    s_lshr_b32 s83, s81, 3
    s_lshl_b32 s80, s80, 2
    s_add_u32 s{S_NT}, s80, s83
    s_mul_i32 s85, s{S_NT}, 224
    s_mov_b32 s{S_OG}, 0
    s_mov_b32 s{S_OQ}, 0
    v_lshrrev_b32 v21, 3, {L}
    s_lshl_b32 s81, s{S_MT}, 8
    s_lshl_b32 s82, s{S_W}, 6
    s_add_u32 s81, s81, s82
    v_add_u32 v21, s81, v21
    v_lshlrev_b32 v21, 11, v21
    v_and_b32 v22, 7, {L}
    v_lshrrev_b32 v23, 4, {L}
    v_xor_b32 v22, v22, v23
    v_lshlrev_b32 v22, 4, v22
    v_xor_b32 v24, 64, v22
    """)
    for j in range(4):
        a(f"v_add_u32 v{V_DX+j}, v21, {'v22' if j % 2 == 0 else 'v24'}")
        if j: a(f"v_add_u32 v{V_DX+j}, {j*8*2048 - j*1024}, v{V_DX+j}")
    a(f"""
    s_mov_b32 s{S_OX}, 0
    s_mov_b32 s{S_OX2}, 65536
    s_mov_b32 s{S_OK}, 0
    s_lshl_b32 s81, s{S_W}, 4
    s_movk_i32 s84, 7168
    v_add_u32 v21, s81, v23
    v_mul_lo_u32 v21, v21, s84
    v_add_u32 v21, s85, v21
    v_and_b32 v25, 1, {L}
    v_lshl_add_u32 v21, v25, 4, v21
    v_bfe_u32 v22, {L}, 1, 3
    v_xor_b32 v22, v22, v23
    v_xor_b32 v24, 4, v22
    v_min_u32 v22, 6, v22
    v_min_u32 v24, 6, v24
    v_lshl_add_u32 v{V_DW}, v22, 5, v21
    v_add_u32 v{V_DW+1}, {4*7168 - 1024}, v{V_DW}
    v_lshl_add_u32 v{V_DW+2}, v24, 5, v21
    v_add_u32 v{V_DW+2}, {2*(4*7168 - 1024)}, v{V_DW+2}
    v_add_u32 v{V_DW+3}, {4*7168 - 1024}, v{V_DW+2}
    s_lshl_b32 s{S_M0X}, s{S_W}, 13
    s_lshl_b32 s{S_M0W}, s{S_W}, 12
    s_add_u32 s{S_M0W}, s{S_M0W}, {LDS_W}
    s_lshl_b32 s{S_M0K}, s{S_W}, 10
    s_add_u32 s{S_M0T}, s{S_M0K}, {LDS_T}
    s_add_u32 s{S_M0K}, s{S_M0K}, {LDS_KW}
    s_lshr_b32 s81, s{S_W}, 1
    s_and_b32 s80, s{S_W}, 1
    """)
    a(f"""
    v_lshlrev_b32 v21, 3, v23
    v_bfe_u32 v22, {L}, 2, 2
    v_add_u32 v21, v21, v22
    s_lshl_b32 s82, s81, 5
    s_lshl_b32 s83, s80, 2
    s_add_u32 s82, s82, s83
    v_add_u32 v21, s82, v21
    v_lshlrev_b32 v21, 11, v21
    v_bfe_u32 v22, {L}, 1, 1
    v_bfe_u32 v24, {L}, 4, 1
    v_xor_b32 v22, v22, v24
    v_lshl_add_u32 v21, v22, 5, v21
    v_lshl_add_u32 v21, v25, 4, v21
    s_lshl_b32 s82, s{S_NT}, 6
    v_add_u32 v{V_DQ}, s82, v21
    s_lshl_b32 s90, s81, 13
    s_lshl_b32 s83, s80, 10
    s_add_u32 s90, s90, s83
    s_waitcnt lgkmcnt(0)
    """)
    st.n and None
    a(f"s_or_b32 s{S_TAG}, s72, 1")
    srd(a, S_X, 56, 2048*1024*2)
    srd(a, S_G, 64, 1024*3584*2)
    srd(a, S_U, 66, 1024*3584*2)
    srd(a, S_WQ, 58, 1024*1024*2)
    a(f"s_add_u32 s{S_M0Q}, s90, {LDS_QS}")
    st.stamp()
    pro = Trace()
    def dma_items(s, lo, hi):
        g, adv = dma_group(s, ntw)
        out = []
        for k in range(lo, min(hi, len(g))):
            pre, it = g[k]
            out.append(([I(pre), I("s_nop 0")] if pre else []) + [it] + [I(x) for x in adv.get(k, [])])
        return out
    pc = Asm()
    pc(f"""
    v_lshlrev_b32 v{V_L16}, 4, {L}
    v_and_b32 v21, 15, {L}
    s_lshl_b32 s83, s81, 14
    v_lshlrev_b32 v22, 7, v21
    v_lshrrev_b32 v24, 1, v21
    v_xor_b32 v24, v24, v23
    v_lshl_add_u32 v22, v24, 4, v22
    v_add_u32 v{V_RX[0]}, s83, v22
    v_xor_b32 v{V_RX[1]}, 64, v{V_RX[0]}
    v_bfe_u32 v21, {L}, 2, 2
    v_lshl_add_u32 v22, v23, 3, v21
    v_and_b32 v24, 3, {L}
    v_lshlrev_b32 v24, 3, v24
    v_lshl_add_u32 v{V_RKW}, v22, 5, v24
    s_lshl_b32 s83, s81, 11
    s_add_u32 s83, s83, {LDS_KW}
    v_add_u32 v{V_RKW}, s83, v{V_RKW}
    v_lshl_add_u32 v22, v22, 8, v24
    v_add_u32 v22, {LDS_W}, v22
    v_and_b32 v25, 1, v23
    v_lshl_or_b32 v1, v25, 2, v21
    s_lshl_b32 s82, s80, 2
    """)
    for j in range(4):
        pc(f"s_add_u32 s83, s82, {j}")
        pc(f"v_xor_b32 v{V_T}, s83, v1")
        pc(f"v_lshl_add_u32 v{V_RW+j}, v{V_T}, 5, v22")
    pc(f"""
    v_add_u32 v{V_R7}, 16384, v{V_R3}
    v_lshl_add_u32 v22, v23, 2, v21
    v_lshl_add_u32 v22, v22, 6, v24
    v_lshl_add_u32 v22, v25, 5, v22
    v_add_u32 v22, {LDS_QS}, v22
    v_xor_b32 v1, 32, v22
    s_cmp_eq_u32 s80, 1
    s_cselect_b64 vcc, -1, 0
    s_movk_i32 s{S_TOG}, 2048
    s_cselect_b32 s{S_TOG}, s{S_TOG}, 0x8000
    v_cndmask_b32 v{V_R3}, v{V_R3}, v22, vcc
    v_cndmask_b32 v{V_R7}, v{V_R7}, v1, vcc
    """)
    p = Asm()
    p(f"""
    v_lshrrev_b32 v1, 3, {L}
    v_lshlrev_b32 v1, 11, v1
    v_bfe_u32 v25, {L}, 1, 2
    v_xor_b32 v25, v25, v23
    v_lshl_add_u32 v1, v25, 5, v1
    v_and_b32 v25, 1, {L}
    v_lshl_add_u32 v{V_DT}, v25, 4, v1
    v_lshl_add_u32 v1, v23, 2, v21
    v_bfe_u32 v25, v1, 1, 2
    v_xor_b32 v25, s{S_W}, v25
    v_lshlrev_b32 v1, 7, v1
    v_lshl_add_u32 v1, v25, 5, v1
    v_add_u32 v1, v1, v24
    v_add_u32 v{V_RT}, {LDS_T}, v1
    s_lshr_b32 s82, s2, 4
    s_and_b32 s83, s2, 15
    s_mul_i32 s{S_TSRC}, s82, {224*2048}
    s_lshl_b32 s90, s83, 7
    s_add_u32 s{S_TSRC}, s{S_TSRC}, s90
    s_lshl_b32 s{S_TSRC2}, s82, 17
    s_add_u32 s{S_TSRC2}, s{S_TSRC2}, s90
    s_mul_i32 s90, s80, {112*2048}
    s_add_u32 s{S_TSRCS}, s{S_TSRC}, s90
    s_lshl_b32 s90, s81, 13
    s_add_u32 s{S_TSRCS}, s{S_TSRCS}, s90
    s_add_u32 s{S_TSRCS}, s{S_TSRCS}, {96*2048}
    s_lshl_b32 s90, s{S_W}, 14
    s_add_u32 s{S_TSRC}, s{S_TSRC}, s90
    s_lshl_b32 s90, s80, 15
    s_add_u32 s{S_TSRC2}, s{S_TSRC2}, s90
    s_lshl_b32 s90, s81, 14
    s_add_u32 s{S_TSRC2}, s{S_TSRC2}, s90
    s_lshr_b32 s90, s83, 1
    s_mul_i32 s90, s90, {144*8192}
    s_and_b32 s83, s83, 1
    s_lshl_b32 s83, s83, 12
    s_add_u32 s90, s90, s83
    s_lshl_b32 s83, s{S_W}, 10
    s_add_u32 s90, s90, s83
    s_add_u32 s90, s90, {WS_WT:#x}
    s_mul_i32 s{S_TDST}, s82, {7*8192}
    s_add_u32 s{S_TDST}, s{S_TDST}, s90
    s_lshl_b32 s{S_TDST2}, s82, 14
    s_add_u32 s{S_TDST2}, s{S_TDST2}, s90
    s_add_u32 s{S_TDST2}, s{S_TDST2}, {112*8192}
    s_lshl_b32 s82, s2, 3
    s_lshl_b32 s83, s{S_W}, 1
    s_add_u32 s82, s82, s83
    s_lshl_b32 s{S_GROW}, s82, 11
    v_lshrrev_b32 v1, 5, {L}
    v_add_u32 v{V_GROW}, s82, v1
    v_lshlrev_b32 v{V_GROW}, 3, v{V_GROW}
    v_add_u32 v{V_GROW}, {WS_G:#x}, v{V_GROW}
    s_lshl_b32 s82, s{S_MT}, 2
    s_add_u32 s82, s82, s{S_W}
    s_lshl_b32 s82, s82, 5
    s_add_u32 s82, s82, s{S_NT}
    s_lshl_b32 s82, s82, 7
    s_add_u32 s{S_FLG}, s82, {WS_FLAG:#x}
    """)
    ps = Asm() if tlb else p
    ps(f"""
    s_and_b32 s82, s{S_NT}, 2
    s_cmp_eq_u32 s82, 0
    s_cselect_b32 s{S_KV}, s60, s62
    s_cselect_b32 s{S_KV+1}, s61, s63
    s_and_b32 s{S_KV+1}, s{S_KV+1}, 0xffff
    s_mov_b32 s{S_KV+2}, 65536
    s_mov_b32 s{S_KV+3}, 0x00020000
    """)
    srd(ps, S_WS, 86, WS_SIZE)
    srd(ps, S_GW, 70, 2048)
    srd(ps, S_WD, 68, 3584*1024*2)
    srd(ps, S_WO, 74, 1024*1024*2)
    srd(ps, S_DBG, 98, 256)
    p(f"""
    v_lshrrev_b32 v21, 1, {L}
    v_lshlrev_b32 v21, 6, v21
    v_and_b32 v22, 1, {L}
    v_lshl_add_u32 v21, v22, 4, v21
    s_and_b32 s82, s{S_NT}, 1
    s_lshl_b32 s82, s82, 5
    s_lshl_b32 s83, s{S_W}, 11
    s_add_u32 s82, s82, s83
    v_add_u32 v{V_DK}, s82, v21
    s_lshl_b32 s82, s{S_MT}, 8
    s_lshr_b32 s83, s{S_NT}, 2
    s_lshl_b32 s83, s83, 5
    s_add_u32 s82, s82, s83
    s_lshl_b32 s83, s80, 4
    s_add_u32 s82, s82, s83
    s_lshl_b32 s82, s82, 11
    s_lshl_b32 s83, s81, 7
    s_add_u32 s82, s82, s83
    v_and_b32 v21, 15, {L}
    v_lshlrev_b32 v22, 11, v21
    v_lshl_add_u32 v22, v23, 4, v22
    v_add_u32 v{V_KX}, s82, v22
    """)
    pt = Asm()
    plain_addr = f"""s_lshl_b32 s82, s{S_MT}, 3
        v_bfe_u32 v24, {L}, 2, 3
        v_add_u32 v24, s82, v24
        v_lshlrev_b32 v21, 11, v24
        v_mul_lo_u32 v24, v24, s84
        v_and_b32 v1, 3, {L}
        v_lshlrev_b32 v1, 7, v1
        v_min_u32 v1, 220, v1
        v_add3_u32 v24, v24, v1, s85
        s_lshl_b32 s82, s{S_NT}, 6
        v_add_u32 v21, s82, v21"""
    lead_addr = f"""s_mov_b32 s{S_TSTEP}, {OOB:#x}
        s_and_b32 s82, s{S_NT}, 3
        s_lshl_b32 s82, s82, 4
        v_lshrrev_b32 v24, 3, {L}
        v_add_u32 v24, s82, v24
        v_mul_lo_u32 v24, v24, s84
        v_and_b32 v1, 7, {L}
        v_min_u32 v1, 6, v1
        v_lshl_add_u32 v24, v1, 7, v24
        s_lshr_b32 s83, s{S_NT}, 2
        s_mul_i32 s90, s83, 896
        v_add_u32 v24, s90, v24
        v_bfe_u32 v21, {L}, 1, 4
        v_add_u32 v21, s82, v21
        v_lshlrev_b32 v21, 11, v21
        v_and_b32 v1, 1, {L}
        v_lshl_add_u32 v21, v1, 7, v21
        s_lshl_b32 s83, s83, 8
        v_add_u32 v21, s83, v21
        s_lshl_b32 s{S_LMASK}, 0x10101, s{S_MT}
        s_cmp_eq_u32 s{S_W}, 0
        s_cselect_b32 s{S_LMASK}, {xmask:#x}, s{S_LMASK}
        s_add_u32 s82, s{S_W}, 1
        s_and_b32 s82, s82, 2
        s_cselect_b32 s{S_T2D}, {8*7168}, s{S_TSTEP}"""
    if touch:
        (pt if tpro else p)(f"""
        s_and_b32 s82, s{S_NT}, 3
        s_lshl_b32 s82, s82, 6
        s_lshl_b32 s83, s{S_MT}, 8
        s_add_u32 s82, s82, s83
        v_add_u32 v25, s82, {L}
        v_lshlrev_b32 v25, 11, v25
        {lead_addr if lead else plain_addr}
        s_mov_b32 s{S_TSTEP}, {64*7168}
        s_cmp_eq_u32 s{S_W}, 0
        s_cselect_b64 vcc, -1, 0
        s_cselect_b32 s{S_TSRD}, s{S_X}, s{S_G}
        s_cselect_b32 s{S_TSRD+1}, s{S_X+1}, s{S_G+1}
        s_cselect_b32 s{S_TSRD+2}, s{S_X+2}, s{S_G+2}
        s_cselect_b32 s{S_TSTEP}, 128, s{S_TSTEP}
        v_cndmask_b32 v{V_T}, v24, v25, vcc
        s_cmp_eq_u32 s{S_W}, 2
        s_cselect_b32 s{S_TSRD}, s{S_U}, s{S_TSRD}
        s_cselect_b32 s{S_TSRD+1}, s{S_U+1}, s{S_TSRD+1}
        s_cmp_eq_u32 s{S_W}, 3
        s_cselect_b64 vcc, -1, 0
        s_cselect_b32 s{S_TSRD}, s{S_WQ}, s{S_TSRD}
        s_cselect_b32 s{S_TSRD+1}, s{S_WQ+1}, s{S_TSRD+1}
        s_cselect_b32 s{S_TSRD+2}, s{S_WQ+2}, s{S_TSRD+2}
        s_cselect_b32 s{S_TSTEP}, 0x20000, s{S_TSTEP}
        v_cndmask_b32 v{V_T}, v{V_T}, v21, vcc
        s_mov_b32 s{S_TSRD+3}, 0x00020000
        s_mul_i32 s{S_TOFF}, s{S_TSTEP}, {3 if lead else 2 if tpro else (touch + 1 if touch >= 2 else touch + 2)}
        """)
    late = []
    for l in [l.strip() for l in p.lines]:
        if late and l.startswith(("s_cselect", "s_addc", "v_cndmask", "s_movk_i32 s50")): late[-1].append(l)
        else: late.append([l])
    late += [[f"v_and_b32 v1, 31, {L}"], ["v_lshlrev_b32 v1, 7, v1"], ["s_lshr_b32 s82, s2, 3"], ["s_and_b32 s82, s82, 15"], ["s_lshl_b32 s82, s82, 12"]]
    d0 = dma_items(0, 0, 17)
    for grp in d0[:tlbpos]: pro.items.extend(grp)
    if tlb:
        for l in ps.lines: pro.ins(l.strip())
        pro.raw(f"""
        s_mov_b32 s80, s96
        s_and_b32 s81, s97, 0xffff
        s_mov_b32 s82, {2048*1024*2:#x}
        s_mov_b32 s83, 0x00020000
        v_lshlrev_b32 v1, {tlb}, {L}
        v_min_u32 v1, 0x7f000000, v1
        """)
        for sr_ in (S_G, S_U, S_WS, S_WD, S_WO, S_KV, S_GW, S_DBG, 80, S_X):
            pro.ins(f"buffer_load_dword a{A_DUM}, v1, s[{sr_}:{sr_+3}], 0 offen")
        pro.raw(f"s_lshr_b32 s81, s{S_W}, 1\ns_and_b32 s80, s{S_W}, 1")
    for grp in d0[tlbpos:]: pro.items.extend(grp)
    for l in pt.lines: pro.ins(l.strip())
    tch = lambda: [I(f"buffer_load_dword a{A_DUM}, v{V_T}, s[{S_TSRD}:{S_TSRD+3}], s{S_TOFF} offen", vm=("touch", 0)), I(f"s_add_u32 s{S_TOFF}, s{S_TOFF}, s{S_TSTEP}")]
    if tpos == 0:
        for _ in range(tpro): pro.items.extend(tch())
    for l in pc.lines: pro.ins(l.strip().replace(f"v{V_T},", "v22x,").replace("v22x", "v19"))
    for grp in dma_items(1, 0, p1): pro.items.extend(grp)
    if tpos == 1:
        for _ in range(tpro): pro.items.extend(tch())
    one_time = [I(f"buffer_load_dword a{A_DUM}, v1, s[{S_KV}:{S_KV+3}], s82 offen"), I(f"buffer_load_dword a{A_DUM}, v1, s[{S_GW}:{S_GW+3}], 0 offen")]
    touch_ins = lambda: I(f"buffer_load_dword a{A_DUM}, v{V_T}, s[{S_TSRD}:{S_TSRD+3}], s{S_TOFF} offen", vm=("touch", 0))
    touch_adv = f"s_add_u32 s{S_TOFF}, s{S_TOFF}, s{S_TSTEP}"
    pro2 = Trace()
    pro2.wait(vm=[("st", 0)])
    pro2.ins("s_barrier")
    pro2.items.extend(reads(0, 0))

    gfast, gslow = _g_ops()
    gslow += ["v_max_f32 v25, 0x2b800000, v25", "v_rcp_f32 v23, v25", "v_mul_f32 v24, v24, v23"]
    GSPLIT = 70
    c_q = struct.unpack("<I", struct.pack("<f", math.log2(math.e) / math.sqrt(32.0)))[0]
    kvfin = [f"v_accvgpr_read_b32 v{21+r}, a{KVA+r}" for r in range(4)]
    for r in range(4): kvfin += [f"v_accvgpr_read_b32 v1, a{KVW+r}", f"v_add_f32 v{21+r}, v{21+r}, v1", f"v_mul_f32 v{21+r}, s84, v{21+r}"]
    kvfin += ["v_cvt_pk_bf16_f32 v22, v21, v22", "v_cvt_pk_bf16_f32 v23, v23, v24",
              f"v_and_b32 v1, 15, {L}", "v_lshlrev_b32 v1, 4, v1", f"v_bfe_u32 v21, {L}, 4, 1", "v_lshl_add_u32 v1, v21, 9, v1",
              f"v_lshrrev_b32 v21, 5, {L}", "v_lshl_add_u32 v1, v21, 3, v1",
              f"buffer_store_dwordx2 v[22:23], v1, s[{S_WS}:{S_WS+3}], s82 offen offset:2048 sc1",
              f"v_bfe_u32 v24, {L}, 3, 1", "v_lshlrev_b32 v24, 10, v24", f"v_bfe_u32 v21, {L}, 2, 1", "v_lshl_add_u32 v24, v21, 9, v24",
              f"v_lshrrev_b32 v21, 4, {L}", "v_lshl_add_u32 v24, v21, 6, v24", f"v_and_b32 v21, 3, {L}", "v_lshl_add_u32 v24, v21, 1, v24",
              f"buffer_store_short v22, v24, s[{S_WS}:{S_WS+3}], s83 offen sc1",
              f"buffer_store_short_d16_hi v22, v24, s[{S_WS}:{S_WS+3}], s83 offen offset:16 sc1",
              f"buffer_store_short v23, v24, s[{S_WS}:{S_WS+3}], s83 offen offset:32 sc1",
              f"buffer_store_short_d16_hi v23, v24, s[{S_WS}:{S_WS+3}], s83 offen offset:48 sc1"]
    kvsal = f"""s_lshl_b32 s82, s{S_MT}, 3
    s_lshr_b32 s83, s{S_NT}, 2
    s_add_u32 s82, s82, s83
    s_lshl_b32 s82, s82, 12
    s_add_u32 s82, s82, {WS_KV:#x}
    s_and_b32 s85, s{S_NT}, 1
    s_lshl_b32 s83, s85, 3
    s_add_u32 s83, s83, s82
    s_lshl_b32 s85, s85, 8
    s_add_u32 s82, s82, s85
    s_lshl_b32 s85, s{S_W}, 10
    s_add_u32 s82, s82, s85
    s_lshl_b32 s85, s{S_W}, 8
    s_add_u32 s83, s83, s85
    s_and_b32 s85, s{S_NT}, 2
    s_cmp_eq_u32 s85, 0
    s_cselect_b32 s84, {c_q:#x}, 1.0
    s_cselect_b32 s82, {OOB:#x}, s82
    s_cselect_b32 s83, s83, {OOB:#x}
    s_cmp_ge_u32 s{S_W}, 2
    s_cselect_b32 s82, {OOB:#x}, s82
    s_cselect_b32 s83, {OOB:#x}, s83""".split("\n")
    kvsal = [x.strip() for x in kvsal]
    kvsal = kvsal[:-7] + ["\n".join(kvsal[-7:-3]), "\n".join(kvsal[-3:])]
    segs = []
    grest = []
    def tstore(q):
        so = S_TDST if q < 7 else S_TDST2
        return [I(f"buffer_store_dwordx4 {ar(TREG[q] if tdefer else A_T,4)}, v{p2.V_L16 if tdefer else V_L16}, s[{S_WS}:{S_WS+3}], s{so} offen sc1", vm=("ts", q)), I(f"s_add_u32 s{so}, s{so}, 8192")]
    for s in range(NST - 1):
        tr = Trace()
        gaps = [[] for _ in range(66)]
        rl = reads(s, 1)
        u = s - KVD
        if 1 <= u <= 8:
            for e in range(2):
                for h in range(2):
                    rl.append(I(f"ds_read_b64_tr_b16 {ar(KVW+4*e+2*h,2)}, v{V_RKW} offset:{(s%2)*8192 + e*1024 + h*128}", lg=("kvf", s)))
        if u == 9:
            gaps[1].append(I(f"v_add_u32 v21, {LDS_KW + 8192*(s%2)}, v{V_L16}"))
            gaps[3].append(I(f"s_lshl_b32 s82, s{S_W}, 10")); gaps[5].append(I("v_add_u32 v22, s82, v21"))
            gaps[7].append(I("s_xor_b32 s82, s82, 2048")); gaps[9].append(I("v_add_u32 v21, s82, v21"))
            rl.append(I(f"ds_write_b128 v22, {ar(KVA,4)}", lg=("kvf", s)))
        for k, it in enumerate(rl): gaps[2*k].append(it)
        gaps[57].append(I(f"v_xor_b32 v{V_R3}, s{S_TOG}, v{V_R3}")); gaps[59].append(I(f"v_xor_b32 v{V_R7}, s{S_TOG}, v{V_R7}"))
        g, adv = dma_group(s + 1, ntw)
        lo = p1 if s == 0 else nhead
        G = 11 if u == 9 else 1
        for k in range(lo, len(g)):
            pre, it = g[k]
            if pre: gaps[G - 1].append(I(pre))
            gaps[G].append(it)
            for x in adv.get(k, []): gaps[G + 1].append(I(x))
            G += tsp0 if s else 4
        G = max(G - (tsp0 if s else 4) + 2, 3)
        if touch and (s >= 1 or tpro) and s + touch + 1 < NST and not (tpro and s + touch + 1 < 2 + tpro):
            if lead:
                for r_ in range(touch if s == 1 else 1):
                    gaps[G - 1].append(I(f"s_bitcmp1_b32 s{S_LMASK}, {s + r_ + lphase}\ns_cselect_b32 s60, s{S_TOFF}, {OOB:#x}"))
                    gaps[G].append(I(f"buffer_load_dword a{A_DUM}, v{V_T}, s[{S_TSRD}:{S_TSRD+3}], s60 offen"))
                    gaps[G + 1].append(I(f"s_add_u32 s60, s60, s{S_T2D}")); gaps[G + 1].append(I(touch_adv))
                    gaps[G + 2].append(I(f"buffer_load_dword a{A_DUM}, v{V_T}, s[{S_TSRD}:{S_TSRD+3}], s60 offen")); G += 4
            else:
              for _ in range(2 if (s == 1 and touch >= 2 and not tpro) else 1):
                gaps[G].append(touch_ins()); gaps[G + 1].append(I(touch_adv)); G += 2
        if tt0 and tt0 <= s < tt0 + 4:
            if s == tt0:
                pre_ = f"""v_lshrrev_b32 v21, 3, {L}
                v_min_u32 v21, 5, v21
                v_lshlrev_b32 v22, 16, v21
                v_cmp_lt_u32 vcc, 2, v21
                v_and_b32 v21, 7, {L}
                v_lshl_add_u32 v22, v21, 11, v22
                v_add_u32 v23, {16*2048}, v22
                v_cndmask_b32 v22, v22, v23, vcc
                v_bfe_u32 v23, {L}, 2, 1
                v_lshl_add_u32 v23, v23, 2, v21
                v_lshlrev_b32 v23, 11, v23
                v_and_b32 v24, 0x1ffff, v22
                s_lshr_b32 s61, s{S_MT}, 1""".split("\n")
                for k_, x in enumerate(pre_): gaps[2*k_ + 1].append(I(x.strip()))
                G = max(G, 28)
            gaps[G - 1].append(I(f"s_cmp_eq_u32 s61, {s - tt0}\ns_cselect_b32 s62, s{S_TSRC}, {OOB:#x}\ns_cselect_b32 s63, s{S_TSRCS}, {OOB:#x}\ns_cselect_b32 s60, s{S_TSRC2}, {OOB:#x}"))
            gaps[G].append(I(f"buffer_load_dword a{A_DUM}, v22, s[{S_WD}:{S_WD+3}], s62 offen")); G += 2
            gaps[G].append(I(f"buffer_load_dword a{A_DUM}, v23, s[{S_WD}:{S_WD+3}], s63 offen")); G += 2
            gaps[G].append(I(f"buffer_load_dword a{A_DUM}, v24, s[{S_WO}:{S_WO+3}], s60 offen")); G += 2
        if 0 <= u <= 7:
            for e in range(2):
                gaps[G].append(I(f"buffer_load_dwordx4 {ar(A_KX + 8*(u%2) + 4*e,4)}, v{V_KX}, s[{S_X}:{S_X+3}], 0 offen offset:{u*256 + e*64}", vm=("kx", u))); G += 2
        q = s - tq0
        if 0 <= q < 9:
            fl = " nt" if ntt else ""
            gaps[G - 1].append(I(f"s_add_u32 m0, s{S_M0T}, {(q%3)*4096}"))
            if q == 6:
                gaps[G - 2].append(I(f"v_lshrrev_b32 v{V_KX}, 5, {L}")); gaps[G - 1].append(I(f"v_lshl_add_u32 v{V_KX}, v{V_KX}, 13, v{V_DT}"))
                gaps[G].append(I(f"buffer_load_dwordx4 v{V_KX}, s[{S_WD}:{S_WD+3}], s{S_TSRCS} offen{fl} lds", vm=("t", q)))
            else:
                srdn, so = (S_WD, S_TSRC) if q < 7 else (S_WO, S_TSRC2)
                gaps[G].append(I(f"buffer_load_dwordx4 v{V_DT}, s[{srdn}:{srdn+3}], s{so} offen{fl} lds", vm=("t", q)))
                gaps[G + 1].append(I(f"s_add_u32 s{so}, s{so}, {48*2048 if q == 2 else 0x10000}"))
            G += 2
        q = s - tq0 - 2
        if 0 <= q < 9 and not tdefer:
            x, y = tstore(q); gaps[G].append(x); gaps[G + 1].append(y); G += 2
        if s == ot:
            for x in one_time: gaps[G].append(x); G += 2
        if s == 2:
            gaps[G - 1].append(I(f"v_mov_b32 v21, s{S_TAG}"))
            gaps[G].append(I(f"s_or_b32 s83, s2, s{S_W}\ns_cselect_b32 s83, {OOB:#x}, 0")); G += 2
            gaps[G].extend([I("s_mov_b64 exec, 1"), I(f"buffer_store_dword v21, off, s[{S_DBG}:{S_DBG+3}], s83 sc1"), I("s_mov_b64 exec, -1")]); G += 2
        if s == (11 if gsm else 6):
            gaps[G].append(I(f"buffer_load_dword a{A_TAG}, off, s[{S_DBG}:{S_DBG+3}], 0 sc1", vm=("zp", 0))); G += 2
        if s == esig + 1:
            gaps[G - 2].append(I(f"s_lshl_b32 s82, s{S_MT}, 5")); gaps[G - 1].append(I(f"s_add_u32 s82, s82, s{S_NT}\ns_lshl_b32 s82, s82, 7")); gaps[G].append(I(f"s_add_u32 s82, s82, {WS_FLAG + 0x28000:#x}"))
            gaps[G + 1].append(I(f"s_cmp_eq_u32 s{S_W}, 0\ns_cselect_b32 s82, s82, {OOB:#x}")); G += 2
            gaps[G].extend([I("s_mov_b64 exec, 1"), I(f"buffer_store_dword a{A_TAG}, off, s[{S_WS}:{S_WS+3}], s82 sc1"), I("s_mov_b64 exec, -1")]); G += 2
        if gsm and s == 10:
            gaps[G].extend([I("s_mov_b32 exec_lo, 1\ns_mov_b32 exec_hi, 1"), I(f"buffer_store_dwordx2 v[24:25], v{V_GROW}, s[{S_WS}:{S_WS+3}], 0 offen sc1"), I("s_mov_b64 exec, -1")]); G += 2
        kvstart = G
        if s == gl:
            for q_ in range(4):
                gaps[G].append(I(f"buffer_load_dwordx4 {ar(A_GX+4*q_,4)}, v{V_L16}, s[{S_X}:{S_X+3}], s{S_GROW} offen offset:{1024*q_}", vm=("g", 0))); G += 2
            for q_ in range(2):
                gaps[G].append(I(f"buffer_load_dwordx4 {ar(A_GW+4*q_,4)}, v{V_L16}, s[{S_GW}:{S_GW+3}], 0 offen offset:{1024*q_}", vm=("g", 0))); G += 2
        assert G < 64, (s, G)
        tr.wait(lg=[("fr", s, 0)] + ([("tf", q)] if 0 <= q < 9 else []) + ([("kvp", 0)] if u == 10 else []))
        vq = []
        if (gl + 2 <= s <= 9) if gsm else s in (gs + 2, gs + 3): vq = gfast
        if u == 10: vq = list(kvfin)
        k = 0
        for j in range(8):
            for i in range(8):
                tr.ins(mfma(0, j, i, first=(s == 0)))
                tr.items.extend(gaps[k])
                cap = vcap(gaps[k])
                if gsm and vq is gfast: cap = 0 if gaps[k] else 1
                if s == 0:
                    for _ in range(2):
                        if late and cap > 0:
                            for l in late.pop(0): tr.ins(l)
                            cap -= 1
                while vq and cap > 0 and not (u == 10 and k < kvstart - 8):
                    if vq[0].startswith("buffer_"):
                        if cap < 2: break
                        tr.ins(vq.pop(0), vm=("kvst", 0)); cap -= 2
                    else:
                        tr.ins(vq.pop(0)); cap -= 1
                k += 1
        if (s >= 9) if gsm else s != gs + 2: assert not vq
        need = [("st", s + 1)]
        if 0 <= s - tq0 - 1 < 9: need.append(("t", s - tq0 - 1))
        if s == (gl + 1 if gsm else gs + 1): need.append(("g", 0))
        if 1 <= u <= 8: need.append(("kx", u - 1))
        if s == (12 if gsm else 7): need.append(("zp", 0))
        if s == esig: need.append(("kvst", 0))
        if pads and s == chain_at: tr.ins("@CHAIN1")
        tr.wait(vm=need, lg=[("fr", s, 1)] + ([("kvf", s)] if 1 <= u <= 9 else []))
        tr.ins("s_barrier")
        segs.append(tr)
        tr = Trace()
        gaps = [[] for _ in range(68)]
        for k, it in enumerate(reads(s + 1, 0)): gaps[2*k + 1].append(it)
        q = s - tq0 - 1
        if 0 <= q < 9:
            for h in range(2):
                gaps[49 + 2*h].append(I(f"ds_read_b64_tr_b16 {ar((TREG[q] if tdefer else A_T)+2*h,2)}, v{V_RT} offset:{(q%3)*4096 + h*2048}", lg=("tf", q)))
        if u == 9:
            gaps[53].append(I(f"ds_read_b128 {ar(KVW,4)}, v21", lg=("kvp", 0)))
            for k, x in enumerate(kvsal): gaps[2*k + 3 if 2*k + 3 < 48 else 55].append(I(x.strip()))
        if s + 2 < NST:
            g, adv = dma_group(s + 2, ntw)
            hg = [hstart + 2*round(k*(62 - hstart)/(2*nhead)) for k in range(nhead)]
            for k in range(nhead):
                pre, it = g[k]
                if pre:
                    if hg[k]: gaps[hg[k] - 1].insert(0, I(pre))
                    else: tr.ins(pre)
                gaps[hg[k]].append(it)
                for x in adv.get(k, []): gaps[hg[k] + 2].append(I(x))
        if s == (12 if gsm else 7):
            gaps[54].append(I(f"v_accvgpr_read_b32 v1, a{A_TAG}"))
            gaps[56].append(I(f"v_cmp_eq_u32 vcc, 0, v1")); gaps[58].append(I("s_cbranch_vccnz KM_ZSPIN\nKM_ZBACK:"))
            gaps[60].append(I(f"v_accvgpr_write_b32 a{A_TAG}, v1")); gaps[62].append(I(f"v_readfirstlane_b32 s{S_TAG}, v1"))
        if s == 14:
            gaps[0].append(I(f"v_lshlrev_b32 v{V_T}, 7, {L}"))
            gaps[2].append(I(f"s_mov_b32 s{S_EF}, {WS_FLAG + 0x28000:#x}"))
            gaps[epos].append(I(f"buffer_load_dword v{V_KX}, v{V_T}, s[{S_WS}:{S_WS+3}], s{S_EF} offen sc1", vm=("ep", 0)))
            if pads:
                gaps[50].append(I("s_getpc_b64 s[32:33]\nKM_PC2:\ns_add_u32 s32, s32, KM_NORM-0x4000-KM_PC2\ns_addc_u32 s33, s33, 0"))
                gaps[52].append(I("s_and_b32 s33, s33, 0xffff")); gaps[53].append(I("s_mov_b32 s34, KM_END-KM_NORM+0x4000"))
                gaps[54].append(I("s_mov_b32 s35, 0x00020000")); gaps[55].append(I(f"s_lshl_b32 s82, s{S_W}, 13"))
                gaps[56].append(I(f"buffer_load_dword a{A_DUM}, v{V_T}, s[32:35], s82 offen"))
        vq = []; slow = []; slow_from = None
        if (gl + 1 <= s <= 8) if gsm else s in (gs + 1, gs + 2): vq = gfast
        if s == (9 if gsm else gs + 3): slow = list(gslow)
        ml = [mfma(1, j, i) for j in range(8) for i in range(8)]
        if 1 <= u <= 8:
            for e in range(2):
                ml.insert(30 + 20*e, f"v_mfma_f32_16x16x32_bf16 {ar(KVA,4)}, {ar(A_KX + 8*((u-1)%2) + 4*e,4)}, {ar(KVW+4*e,4)}, {'0' if (u == 1 and e == 0) else ar(KVA,4)}")
        for k, m in enumerate(ml):
            tr.ins(m)
            tr.items.extend(gaps[k])
            for _ in range((0 if gaps[k] else 1) if (gsm and vq) else vcap(gaps[k])):
                if vq: tr.ins(vq.pop(0))
                elif s == 0 and late:
                    for l in late.pop(0): tr.ins(l)
            if slow and not vq:
                if slow_from is None: slow_from = k + 2
                if k >= slow_from and (k - slow_from) % 2 == 0: tr.ins(slow.pop(0))
        for k in range(len(ml), 68): assert not gaps[k], (s, k)
        assert not slow and not late
        segs.append(tr)

    P = p2
    ec = Trace()
    ec.wait(vm=[("ep", 0)])
    ec.raw(f"""
    v_cmp_ne_u32 vcc, s{S_TAG}, v{V_KX}
    s_and_b32 s80, s2, 7
    s_lshr_b32 s81, s80, 1
    s_lshl_b32 s{P.S_MT}, s{S_MT}, 2
    s_cbranch_vccnz KM_ESPIN
    KM_EBACK:
    s_add_u32 s{P.S_MT}, s{P.S_MT}, s81
    s_lshl_b32 s{P.S_M0KV}, s{S_W}, 13
    s_add_u32 s82, s{P.S_M0KV}, {WS_KV:#x}
    s_add_u32 s{P.S_KVB}, s86, s82
    s_addc_u32 s{P.S_KVB+1}, s87, 0
    v_add_u32 v{V_DK}, 4096, v{V_L16}
    """)
    su2 = f"""
    s_and_b32 s80, s80, 1
    s_lshl_b32 s80, s80, 2
    s_and_b32 s90, s{S_NT}, 3
    s_add_u32 s{P.S_NT}, s80, s90
    s_lshr_b32 s90, s{P.S_MT}, 1
    s_mul_i32 s90, s90, 112
    s_mul_i32 s91, s{S_W}, 28
    s_add_u32 s90, s90, s91
    s_lshl_b32 s90, s90, 13
    s_and_b32 s42, s{P.S_MT}, 1
    s_lshl_b32 s42, s42, 12
    s_add_u32 s90, s90, s42
    s_add_u32 s58, s86, s90\ns_addc_u32 s59, s87, 0
    s_add_u32 s60, s58, 0x2000\ns_addc_u32 s61, s59, 0
    s_add_u32 s62, s58, 0x4000\ns_addc_u32 s63, s59, 0
    s_add_u32 s70, s58, 0x6000\ns_addc_u32 s71, s59, 0
    s_mov_b64 s[{P.S_HB}:{P.S_HB+1}], s[70:71]
    s_mul_i32 s90, s{P.S_NT}, 144
    s_add_u32 s91, s91, s90
    s_lshl_b32 s91, s91, 13
    s_add_u32 s91, s91, {WS_WT:#x}
    s_add_u32 s64, s86, s91\ns_addc_u32 s65, s87, 0
    s_add_u32 s68, s64, 0x2000\ns_addc_u32 s69, s65, 0
    s_mov_b64 s[{P.S_WB}:{P.S_WB+1}], s[68:69]
    s_add_u32 s{P.S_XB}, s64, {P.SF0*8192}\ns_addc_u32 s{P.S_XB+1}, s65, 0
    s_lshl_b32 s91, s{S_W}, 3
    s_add_u32 s90, s90, s91
    s_lshl_b32 s90, s90, 13
    s_add_u32 s90, s90, {WS_WT + 112*8192:#x}
    s_add_u32 s{P.S_WOB}, s86, s90\ns_addc_u32 s{P.S_WOB+1}, s87, 0
    s_mul_i32 s{P.S_M0SP}, s{S_W}, 24576
    s_add_u32 s{P.S_M0SP}, s{P.S_M0SP}, {P.LDS_SP}
    s_mov_b32 s{P.S_SPM}, s{P.S_M0SP}
    s_add_u32 s{P.S_M0C}, s{P.S_M0KV}, 0x8000
    s_mov_b32 s{P.S_CNT}, 6
    s_add_u32 s66, s{P.S_WOB}, {(P.SF0 + 3 - P.NDOWN)*8192}\ns_addc_u32 s67, s{P.S_WOB+1}, 0
    s_mov_b32 s{P.S_OUT}, s96
    s_and_b32 s{P.S_OUT+1}, s97, 0xffff
    s_mov_b32 s{P.S_OUT+2}, {2048*1024*2:#x}
    s_mov_b32 s{P.S_OUT+3}, 0x00020000
    s_mov_b32 s{P.S_OF}, s{S_FLG}
    s_lshl_b32 s90, s{P.S_MT}, 12
    s_add_u32 s{P.S_OP}, s90, {WS_FLAG:#x}
    s_lshl_b32 s90, s{S_W}, 13
    s_add_u32 s{P.S_HP}, s90, {WS_FLAG + 0x20000:#x}
    s_lshl_b32 s90, s2, 7
    s_add_u32 s90, s90, {WS_FLAG + 0x20000:#x}
    s_cmp_eq_u32 s{S_W}, 0\ns_cselect_b32 s{P.S_HF}, s90, {OOB:#x}
    """
    su2 = [x.strip() for x in su2.strip().split("\n    ")]

    def last_stage(wn):
        tr = Trace()
        s = NST - 1
        su = f"""
        s_lshr_b32 s81, s{S_W}, 1
        s_lshl_b32 s82, s{S_MT}, 1
        s_add_u32 s82, s82, s81
        s_mul_i32 s82, s82, 112
        s_lshr_b32 s83, s{S_NT}, 1
        s_mul_i32 s83, s83, 7
        s_add_u32 s82, s82, s83
        s_and_b32 s84, s{S_NT}, 1
        s_add_u32 s85, s82, 6
        s_lshl_b32 s85, s85, 13
        s_mul_i32 s83, s84, 3
        s_add_u32 s82, s82, s83
        s_add_u32 s82, s82, {2*wn}
        s_lshl_b32 s82, s82, 13
        s_add_u32 s83, s82, 8192
        """
        if wn:
            su += f"""
            s_lshl_b32 s84, s84, 9
            s_add_u32 s85, s85, s84
            v_and_b32 v21, 15, {L}
            v_lshlrev_b32 v21, 4, v21
            v_bfe_u32 v24, {L}, 4, 1
            v_lshl_add_u32 v22, v24, 9, v21
            v_lshl_add_u32 v21, v24, 10, v21
            v_lshrrev_b32 v24, 5, {L}
            v_lshl_add_u32 v22, v24, 10, v22
            v_lshl_add_u32 v21, v24, 8, v21
            s_lshl_b32 s81, s81, 13
            s_add_u32 s81, s81, {P.LDS_Q}
            v_add_u32 v22, s81, v22
            v_add_u32 v23, 4096, v21
            """
        setup = [l.strip() for l in su.strip().split("\n") if l.strip()] + su2
        ffn = lambda t, i: dict(kind="f", t=t, i=i, mf=[(2*t, i), (4 + 2*t, i), (2*t + 1, i), (5 + 2*t, i)])
        if wn == 0:
            halves = [[ffn(0, i) for i in range(8)], [ffn(1, i) for i in range(8)]]
        else:
            halves = [[dict(kind="q", i=i, mf=[(3, i), (7, i)]) for i in range(8)] +
                      [dict(kind="s", i=i, mf=[(2, i), (6, i), (2, i + 1), (6, i + 1)]) for i in range(0, 8, 2)],
                      [ffn(0, i) for i in range(8)]]
        pieces = halves[0] + halves[1]
        half = len(halves[0])
        jsets = [sorted(set(j for pc in hv for j, _ in pc["mf"])) for hv in halves]
        def piece_ops(pc, pk):
            o = []
            i = pc["i"]
            tmp = 12 + 4*(i % 2)
            def reg(j, i):
                p_, b = accn(j, i)
                if p_ == "v": return b
                for r in range(4): o.append(f"v_accvgpr_read_b32 v{tmp+r}, a{b+r}")
                return tmp
            r_ = [reg(j, i_) for j, i_ in pc["mf"]]
            if pc["kind"] == "q":
                g0_, g1_ = r_
            else:
                g0_, u0, g1_, u1 = r_
                for g_, u_ in ((g0_, u0), (g1_, u1)):
                    for r in range(4): o.append(f"v_max_f32 v{g_+r}, 0, v{g_+r}")
                    if pk:
                        o.append(f"v_pk_mul_f32 {vr(g_,2)}, {vr(g_,2)}, {vr(u_,2)}")
                        o.append(f"v_pk_mul_f32 {vr(g_+2,2)}, {vr(g_+2,2)}, {vr(u_+2,2)}")
                    else:
                        for r in range(4): o.append(f"v_mul_f32 v{g_+r}, v{g_+r}, v{u_+r}")
            o += [f"v_cvt_pk_bf16_f32 v{g0_}, v{g0_}, v{g0_+1}", f"v_cvt_pk_bf16_f32 v{g0_+1}, v{g0_+2}, v{g0_+3}",
                  f"v_cvt_pk_bf16_f32 v{g0_+2}, v{g1_}, v{g1_+1}", f"v_cvt_pk_bf16_f32 v{g0_+3}, v{g1_+2}, v{g1_+3}"]
            if pc["kind"] == "q":
                o.append(f"ds_write_b128 v22, {vr(g0_,4)} offset:{(i//2)*2048 + (i%2)*256}")
            elif pc["kind"] == "s":
                o += ["s_nop 1", f"v_permlane16_swap_b32 v{g0_}, v{g0_+2}", f"v_permlane16_swap_b32 v{g0_+1}, v{g0_+3}",
                      f"buffer_store_dwordx4 {vr(g0_,4)}, {'v21' if i < 4 else 'v23'}, s[{S_WS}:{S_WS+3}], s85 offen offset:{(i%4)*1024} sc1"]
            else:
                o.append(f"buffer_store_dwordx4 {vr(g0_,4)}, {'v%d' % (V_L16 if i < 4 else V_DK)}, s[{S_WS}:{S_WS+3}], {'s82' if pc['t'] == 0 else 's83'} offen offset:{(i%4)*1024} sc1")
            return o
        rl = [xread(s, 1, i) for i in range(8)]
        for j in jsets[0]: rl += [wread(s, 1, j, 0), wread(s, 1, j, 1)]
        for x in rl: x["lg"] = ("frA", 0)
        for j in jsets[1]: rl += [wread(s, 1, j, 0), wread(s, 1, j, 1)]
        kv0 = []
        for part in range(2):
            cl = [P.kv_dma(0, part, j) for j in range(4)]
            for x in cl: x["text"] = x["text"].replace(f"v{P.V_L16},", f"v{V_L16},").replace(f"v{P.V_L16B},", f"v{V_DK},")
            kv0.append(cl)
        q = s - tq0 - 2
        tr.wait(lg=[("fr", s, 0)] + ([("tf", q)] if 0 <= q < 9 else []))
        first = []
        if gs + 4 == s and not gsm:
            first.append([I("s_mov_b32 exec_lo, 1\ns_mov_b32 exec_hi, 1"), I(f"buffer_store_dwordx2 v[24:25], v{V_GROW}, s[{S_WS}:{S_WS+3}], 0 offen sc1", vm=("hst", 0)), I("s_mov_b64 exec, -1")])
        if 0 <= q < 9 and not tdefer: first.append([tstore(q)[0]])
        for k, (j, i) in enumerate([(j, i) for j in jsets[0] for i in range(8)]):
            tr.ins(mfma(0, j, i))
            if first:
                tr.items.extend(first.pop(0)); continue
            if k in (26, 29): tr.ins(f"s_add_u32 m0, s{P.S_M0KV}, {4096 if k == 29 else 0}")
            elif k in (27, 30): tr.items.extend(kv0.pop(0))
            elif rl: tr.items.append(rl.pop(0))
            for _ in range(2):
                if setup: tr.ins(setup.pop(0))
        assert not rl
        tr.items.extend(adv64(P.S_KVB, 32768))
        for x in setup: tr.ins(x)
        tr.wait(lg=[("frA", 0)])
        ml = []
        for pi, pc in enumerate(pieces):
            if pi == half:
                ml.append((W(lg=[("fr", s, 1)]), None))
                ml += [(mfma(0, j, i), None) for j in jsets[1] for i in range(8)]
            for j, i in pc["mf"]: ml.append((mfma(1, j, i), pi))
        done_at = {}; cnt = 0; vq = []; nextp = 0
        def put(x):
            tr.ins(x, vm=("hst", 0) if x.startswith("buffer_") else None, lg=("qw", 0) if x.startswith("ds_") else None)
        for k, (m, pi) in enumerate(ml):
            if isinstance(m, dict):
                tr.items.append(m); continue
            tr.ins(m); cnt += 1
            if pi is not None and (k + 1 == len(ml) or ml[k + 1][1] != pi): done_at[pi] = cnt
            budget = 2
            while budget > 0:
                if not vq and nextp in done_at and cnt - done_at[nextp] >= 9:
                    vq = piece_ops(pieces[nextp], False); nextp += 1
                if not vq: break
                c_ = 2 if vq[0].startswith(("buffer_", "ds_")) else 1
                if c_ > budget: break
                put(vq.pop(0)); cnt += 1; budget -= c_
        for x in vq: put(x); cnt += 1
        while nextp < len(pieces):
            if cnt - done_at[nextp] < 9: tr.ins("s_nop 7"); cnt += 8
            for x in piece_ops(pieces[nextp], True): put(x); cnt += 1
            nextp += 1
        return tr
    l0, l1 = last_stage(0), last_stage(1)

    L2 = f"v{P.V_LANE}"
    h2 = Trace()
    h2.raw(f"""
    v_mov_b32 {L2}, {L}
    v_mov_b32 v{P.V_L16}, v{V_L16}
    v_mov_b32 v{P.V_L16B}, v{V_DK}
    v_mov_b32 v{P.V_KVR}, v{V_L16}
    s_lshl_b32 s80, s{S_W}, 12
    s_add_u32 s80, s80, {P.LDS_Q}
    v_add_u32 v24, s80, v{V_L16}
    """)
    h2.wait(vm=[("kv", 0)])
    h2.raw("s_waitcnt lgkmcnt(0)\ns_barrier")
    for q in range(4): h2.ins(f"ds_read_b128 {ar(P.A_Q + 4*q,4)}, v24 offset:{q*1024}", lg=("q", 0))
    for half in range(2): h2.items.append(P.k_read(0, half))
    for half in range(2): h2.items.append(P.v_read(0, half))
    for pp in range(4):
        h2.raw(f"""
        s_add_u32 s80, s{S_W}, {pp}
        s_and_b32 s80, s80, 3
        s_lshl_b32 s80, s80, 11
        v_add_u32 v{P.V_W+pp}, s80, v{P.V_L16}
        """)
    h2.wait(lg=[("k", 0)])
    h2.ins(P.qk(0, 0)); h2.ins(P.qk(0, 1))
    for q in range(4):
        h2.ins(f"v_add_u32 v{P.V_SP+q}, s{P.S_M0SP}, v{P.V_W+q}")
        h2.ins(f"v_add_u32 v{P.V_KP+q}, s{P.S_M0KV}, v{P.V_W+q}")
    h2.raw(f"""
    v_bfe_u32 v26, {L2}, 4, 1
    v_bfe_u32 v27, {L2}, 2, 1
    v_cmp_eq_u32 vcc, v26, v27
    v_mov_b32 v26, 0x3f803f80
    s_lshl_b32 s40, s{P.S_MT}, 9
    s_add_u32 s40, s40, {WS_G:#x}
    v_cndmask_b32 v26, 0, v26, vcc
    """)
    for r in range(4): h2.ins(f"v_accvgpr_write_b32 a{P.A_SEL+r}, v26")
    h2.raw(f"""
    s_lshl_b32 s41, s{S_MT}, 11
    s_lshl_b32 s80, s{S_W}, 9
    s_add_u32 s41, s41, s80
    s_add_u32 s41, s41, {WS_G:#x}
    v_and_b32 v26, 31, {L2}
    v_lshlrev_b32 v26, 3, v26
    v_and_b32 v27, 15, {L2}
    v_lshlrev_b32 v27, 3, v27
    v_lshlrev_b32 v25, 7, {L2}
    v_mov_b32 v24, s{S_TAG}
    """)
    def rebase(x, frm, to):
        x["text"] = x["text"].replace(f"s[{frm}:{frm+1}]", f"s[{to}:{to+1}]"); return x
    wl = lambda sg, J0, b: [rebase(P.w_load(sg, J), P.S_WB, b) for J in range(J0, J0 + 4)]
    hl = lambda sg, b: [rebase(P.h_load(sg, i), P.S_HB, b) for i in range(4)]
    early = []
    timed = [(1 + q // 3, tstore(q)) for q in range(9)] if tdefer else []
    if tp2:
        LT2 = 81920
        h2.raw(f"""
        v_lshrrev_b32 v17, 5, {L2}
        v_lshl_add_u32 v17, v17, 13, v{V_DT}
        v_add_u32 v{V_RT}, {LT2 - LDS_T}, v{V_RT}
        s_add_u32 s{S_M0T}, s{S_M0T}, {LT2 - LDS_T}
        """)
        fl = " nt" if ntt else ""
        for q in range(9):
            it_ = [I(f"s_add_u32 m0, s{S_M0T}, {q*4096}"), I("s_nop 0")]
            if q == 6: it_.append(I(f"buffer_load_dwordx4 v17, s[{S_WD}:{S_WD+3}], s{S_TSRCS} offen{fl} lds", vm=("t", q)))
            else:
                srdn, so = (S_WD, S_TSRC) if q < 7 else (S_WO, S_TSRC2)
                it_ += [I(f"buffer_load_dwordx4 v{V_DT}, s[{srdn}:{srdn+3}], s{so} offen{fl} lds", vm=("t", q)), I(f"s_add_u32 s{so}, s{so}, {48*2048 if q == 2 else 0x10000}")]
            timed.append((1 + q // 3, it_))
        timed.append((tb, [W(vm=[("t", 8)]), I("s_barrier")]))
        for q in range(9):
            timed.append((tb + q // 3, [I(f"ds_read_b64_tr_b16 {ar(P.A_WR + 4*q + 2*h,2)}, v{V_RT} offset:{q*4096 + h*2048}", lg=("tf", q)) for h in range(2)]))
        for q in range(9):
            so = S_TDST if q < 7 else S_TDST2
            timed.append((tb + 3 + q // 3, [W(lg=[("tf", q)]), I(f"buffer_store_dwordx4 {ar(P.A_WR + 4*q,4)}, v{P.V_L16}, s[{S_WS}:{S_WS+3}], s{so} offen sc1", vm=("ts", q)), I(f"s_add_u32 s{so}, s{so}, 8192")]))
    timed += [(hsig, [W(vm=[("hst", 0), ("ts", 8)]), I("s_barrier"), I("s_mov_b64 exec, 1"), I(f"buffer_store_dword v24, off, s[{S_WS}:{S_WS+3}], s{P.S_HF} sc1"), I("s_mov_b64 exec, -1")]),
             (hpoll, [I(f"buffer_load_dword v28, v25, s[{S_WS}:{S_WS+3}], s{P.S_HP} offen sc1", vm=("hp", 0))]),
             (hpoll + 2, [W(vm=[("hp", 0)]), I(f"v_cmp_ne_u32 vcc, s{S_TAG}, v28"), I("s_nop 0"), I("s_cbranch_vccnz KM_HSPIN"), I("KM_HBACK:"), I("s_barrier")] + hl(0, 58)),
             (hpoll + 2, wl(0, 0, 64)), (hpoll + 3, wl(0, 4, 64)), (hpoll + 4, wl(1, 0, 68)), (hpoll + 5, wl(1, 4, 68)),
             (hpoll + 6, hl(1, 60)), (hpoll + 7, hl(2, 62)), (hpoll + 8, hl(3, 70)),
             (hpoll + 12, [I(f"buffer_load_dword v{P.V_G+hh}, v26, s[{S_WS}:{S_WS+3}], s41 offen offset:{hh*256} sc1", vm=("g2", 0)) for hh in range(2)]),
             (hpoll + 13, [I(f"buffer_load_dword v{P.V_OMG+i}, v27, s[{S_WS}:{S_WS+3}], s40 offen offset:{4 + i*128} sc1", vm=("g2", 0)) for i in range(4)])]
    NDOWN = P.NDOWN
    xl = [([P.x_base(sg)] if J0 == 0 else []) + [P.w_load(sg, J) for J in range(J0, J0 + 4)] for sg in (NDOWN + 6, NDOWN + 7) for J0 in (0, 4)]
    def xfix(grps, s):
        for g_ in grps:
            for x in g_: x["text"] = x["text"].replace(f"s[{P.S_XB}:{P.S_XB+1}]", "s[52:53]").replace(f"s_add_u32 s{P.S_XB},", "s_add_u32 s52,").replace(f"s_addc_u32 s{P.S_XB+1},", "s_addc_u32 s53,")
        return grps
    xfix(xl, 0)
    if xhead:
        timed = timed[:-2] + [(hpoll + 9 + k, xl.pop(0)) for k in range(4)] + [(hpoll + 13, timed[-2][1]), (hpoll + 14, timed[-1][1])]
    headseg = P.segment(0, 32, 0, 32*P.NHEAD, g0, timed)
    bodies = [P.segment(16*it, 16*it + 16, 32*(P.NHEAD + 4*(it - 2)), 32*(P.NHEAD + 4*(it - 1)), 16*it, loop=True) for it in range(2, 8)]
    for b_ in bodies: b_.ins(f"s_cmp_lg_u32 s{P.S_CNT}, 0")
    NDOWN, NWO, ACC = P.NDOWN, P.NWO, P.ACC
    t1 = Trace()
    n = P.NSLOT - 1
    t1.wait(lg=[("v", 63)])
    t1.ins("s_nop 1")
    t1.ins(P.pv(n, 0)); t1.ins(P.summ(n, 0)); t1.ins(P.pv(n, 1)); t1.ins(P.summ(n, 1))
    VO = P.V_O
    q_ = Trace()
    q_.raw(f"""
    v_bfe_u32 v26, {L2}, 4, 1
    s_lshl_b32 s78, s{S_MT}, 1
    v_lshlrev_b32 v26, 10, v26
    s_lshr_b32 s79, s{S_W}, 1
    v_and_b32 v27, 15, {L2}
    s_add_u32 s78, s78, s79
    v_lshl_add_u32 v26, v27, 4, v26
    s_lshl_b32 s78, s78, 5
    v_lshrrev_b32 v27, 5, {L2}
    s_add_u32 s78, s78, s{S_NT}
    v_lshl_add_u32 v26, v27, 8, v26
    s_lshl_b32 s78, s78, 13
    s_and_b32 s79, s{S_W}, 1
    s_lshl_b32 s79, s79, 12
    s_add_u32 s78, s78, s79
    s_add_u32 s54, s78, {WS_O:#x}
    s_mov_b32 s78, 0x1f800000
    s_mov_b32 s79, 0x5f800000
    s_mov_b32 s55, 0
    v_accvgpr_read_b32 v80, a{P.A_L}
    v_accvgpr_read_b32 v81, a{P.A_L+4}
    """)
    q_.wait(vm=[("g2", 0)])
    q_.raw(f"""
    v_min_f32 v83, v80, v81
    v_max_f32 v84, v80, v81
    v_add_f32 v85, v80, v81
    v_cmp_nle_f32 s[82:83], s78, v83
    v_cmp_nge_f32 s[84:85], s79, v84
    v_cmp_u_f32 vcc, v85, v85
    """)
    q_.ins("s_nop 1\ns_or_b64 s[82:83], s[82:83], s[84:85]\ns_or_b64 vcc, vcc, s[82:83]\ns_cbranch_vccnz KM_FALLBACK\nKM_NORM:\nv_rcp_f32 v80, v80")
    q_.raw(f"""
    v_rcp_f32 v82, v81
    v_mul_f32 v80, v80, v{P.V_G}
    v_mul_f32 v82, v82, v{P.V_G+1}
    """)
    for hh in range(2):
        for pc in range(2):
            b = VO + 16*hh + 8*pc
            for r in range(8): q_.ins(f"v_mul_f32 v{b+r}, v{b+r}, v{80+2*hh}")
            for q in range(4): q_.ins(f"v_cvt_pk_bf16_f32 v{64+8*hh+4*pc+q}, v{b+2*q}, v{b+2*q+1}")
            q_.ins(f"buffer_store_dwordx4 {vr(64+8*hh+4*pc,4)}, v26, s[{S_WS}:{S_WS+3}], s54 offen offset:{hh*2048 + pc*512} sc1", vm=("ost", 0))
    vq = q_.items
    nA, nB = nb
    stepsA = [P.gemm_step(s, vq=vq) for s in range(NIN, NIN + nA)]
    t2 = Trace()
    t2.items.extend(vq)
    t2.ins("s_nop 1")
    for q in range(4):
        t2.ins(f"v_mfma_f32_16x16x32_bf16 v[84:87], {ar(P.A_SEL,4)}, {vr(64+4*q,4)}, {'0' if q == 0 else 'v[84:87]'}")
    stepsA.append(t2)
    polli = lambda: I(f"buffer_load_dword v28, v25, s[{S_WS}:{S_WS+3}], s{P.S_OP} offen sc1", vm=("op", 0))
    stepsB = [P.gemm_step(s, extra=[xl.pop(0), xl.pop(0)] if xl else [], late=[polli()] if s == NIN + nA + nB - 1 else []) for s in range(NIN + nA, NIN + nA + nB)]
    assert not xl
    sig = Trace()
    sig.raw(f"""
    v_and_b32 v25, 31, {L2}
    v_lshlrev_b32 v25, 7, v25
    s_lshr_b32 s78, s{P.S_MT}, 1
    s_lshl_b32 s78, s78, 18
    s_add_u32 s78, s78, s42
    s_lshl_b32 s79, s{S_W}, 16
    s_add_u32 s78, s78, s79
    s_add_u32 s78, s78, {WS_O:#x}
    s_add_u32 s56, s86, s78
    s_addc_u32 s57, s87, 0
    """)
    sig.raw(f"""
    v_sub_f32 v84, v84, v84
    s_cmp_lg_u32 s55, 0
    v_cmp_u_f32 vcc, v84, v84
    s_cbranch_scc1 KM_CHECKED
    s_cbranch_vccnz KM_FALLBACK2
    KM_CHECKED:
    """)
    sig.wait(vm=[("ost", 0)])
    sig.raw(f"""
    s_mov_b64 exec, 1
    buffer_store_dword v24, off, s[{S_WS}:{S_WS+3}], s{P.S_OF} sc1
    s_mov_b64 exec, -1
    """)
    t3 = Trace()
    t3.wait(vm=[("op", 0)])
    t3.raw(f"""
    v_cmp_ne_u32 vcc, s{S_TAG}, v28
    s_nop 0
    s_cbranch_vccnz KM_OSPIN
    KM_OBACK:
    """)
    ol = []
    for s in range(NDOWN, NDOWN + NWO):
        ol.append([rebase(P.h_load(s, i), P.S_HB, 56) for i in range(4)] + (adv64(56, 8192) if s < NDOWN + NWO - 1 else []))
    t4 = Trace()
    for grp in ol[:opre]: t4.items.extend(grp)
    k = opre
    stepsC = []
    for s in range(NIN + nA + nB, NDOWN):
        ex = []
        while len(ex) < 2 and k < 5: ex.append(ol[k]); k += 1
        stepsC.append(P.gemm_step(s, ex))
    wos = []
    for s in range(NDOWN, NDOWN + 4):
        ex = []
        while len(ex) < 2 and k < NWO: ex.append(ol[k]); k += 1
        wos.append(P.gemm_step(s, ex))
    ph = Trace()
    su = Asm()
    for pp in range(1, 4):
        su(f"s_add_u32 s78, s{S_W}, {pp}\ns_and_b32 s78, s78, 3\ns_mul_i32 s78, s78, 24576\ns_add_u32 s78, s78, {(pp-1)*8192}\nv_add_u32 v{26+pp}, s78, v{P.V_L16}")
    su(f"""
    s_mul_i32 s78, s{S_W}, 24576
    v_add_u32 v26, s78, v{P.V_L16}
    s_lshl_b32 s78, s{P.S_MT}, 17
    s_lshl_b32 s79, s{P.S_NT}, 8
    s_add_u32 s78, s78, s79
    s_lshl_b32 s79, s{S_W}, 6
    s_add_u32 s78, s78, s79
    s_add_u32 s79, s78, 0x8000
    s_add_u32 s80, s78, 0x10000
    s_add_u32 s81, s78, 0x18000
    v_and_b32 v30, 15, {L2}
    v_lshlrev_b32 v30, 11, v30
    v_bfe_u32 v25, {L2}, 4, 1
    v_lshl_add_u32 v30, v25, 5, v30
    v_lshrrev_b32 v25, 5, {L2}
    v_lshl_add_u32 v30, v25, 4, v30
    """)
    su = [l.strip() for l in su.lines]
    S2 = list(range(NDOWN + 4, NDOWN + 8))
    ph.wait(vm=[("w", s, J) for s in S2[2:] for J in range(8)], lg=[("w", s, J) for s in S2[:2] for J in range(8)])
    ph.ins("s_barrier")
    R0, R1, R2 = ACC + 32, ACC + 64, 32
    for idx, pp in enumerate((1, 2, 3, 0)):
        fill = [[] for _ in range(32)]
        if idx == 0:
            for q, x in enumerate(su): fill[q].append(I(x))
        else:
            prev = (1, 2, 3)[idx - 1]
            for t in range(8):
                fill[(4 + 3*t) if idx < 3 or not ph2new else (1 + t + (3 if t >= 4 else 0))].append(I(f"ds_write_b128 v{26+prev}, {vr(ACC + (prev*8 + t)*4, 4)} offset:{t*1024}", lg=("rw", prev)))
        if idx == 3:
            rd = [I(f"ds_read_b128 {vr((R0, R1, R2)[s_] + t*4, 4)}, v26 offset:{s_*8192 + t*1024}", lg=("rr", s_)) for s_ in range(3) for t in range(8)]
            if ph2new:
                for k_, x in enumerate(rd[:16]): fill[12 + k_ // 2].append(x)
                fill[21] += [W(lg=[("rw", 3)]), I("s_barrier")]
                for k_, x in enumerate(rd[16:]): fill[22 + k_ // 2].append(x)
                fill[26].append(W(lg=[("rr", 1)]))
                for k_ in range(10): fill[26 + k_ // 2].append(I(f"v_add_f32 v{R0+k_}, v{R0+k_}, v{R1+k_}"))
            else:
                free = [g for g in range(32) if not fill[g]]
                for x, g in zip(rd[:16], free): fill[g].append(x)
            ph.wait(lg=[("rw", 2)])
            ph.ins("s_barrier")
        mu = 0
        for s in S2:
            if idx == 0: ph.wait(vm=[("h", s, i) for i in range(4)])
            for J in (2*pp, 2*pp + 1):
                for i in range(4):
                    ph.ins(P.gemm_mfma(s, J, i, False)); ph.items.extend(fill[mu]); mu += 1
    if ph2new:
        for r in range(10, 32, 2): ph.ins(f"v_pk_add_f32 {vr(R0+r,2)}, {vr(R0+r,2)}, {vr(R1+r,2)}")
        ph.wait(lg=[("rr", 2)])
        for r in range(0, 32, 2): ph.ins(f"v_pk_add_f32 {vr(R0+r,2)}, {vr(R0+r,2)}, {vr(R2+r,2)}")
    else:
        ph.wait(lg=[("rw", 3), ("rr", 1)])
        ph.ins("s_barrier")
        ph.items.extend(rd[16:])
        for r in range(0, 32, 2): ph.ins(f"v_pk_add_f32 {vr(R0+r,2)}, {vr(R0+r,2)}, {vr(R1+r,2)}")
        ph.wait(lg=[("rr", 2)])
        for r in range(0, 32, 2): ph.ins(f"v_pk_add_f32 {vr(R0+r,2)}, {vr(R0+r,2)}, {vr(R2+r,2)}")
    for i in range(4):
        b0, b1 = ACC + i*4, ACC + (4 + i)*4
        d = 64 + i*4
        om = P.V_OMG + i
        for b in (b0, b0 + 2, b1, b1 + 2):
            ph.ins(f"v_pk_add_f32 {vr(b,2)}, {vr(b,2)}, {vr(b + 32,2)}")
        for b in (b0, b0 + 2, b1, b1 + 2):
            ph.ins(f"v_pk_mul_f32 {vr(b,2)}, {vr(b,2)}, {vr(om,2)} op_sel_hi:[1,0]" if om % 2 == 0 else f"v_pk_mul_f32 {vr(b,2)}, {vr(b,2)}, {vr(om-1,2)} op_sel:[0,1] op_sel_hi:[1,1]")
        ph.raw(f"""
        v_cvt_pk_bf16_f32 v{d}, v{b0}, v{b0+1}
        v_cvt_pk_bf16_f32 v{d+1}, v{b0+2}, v{b0+3}
        v_cvt_pk_bf16_f32 v{d+2}, v{b1}, v{b1+1}
        v_cvt_pk_bf16_f32 v{d+3}, v{b1+2}, v{b1+3}
        s_nop 1
        v_permlane16_swap_b32 v{d}, v{d+2}
        v_permlane16_swap_b32 v{d+1}, v{d+3}
        buffer_store_dwordx4 {vr(d,4)}, v30, s[{P.S_OUT}:{P.S_OUT+3}], s{78+i} offen sc1 nt
        """)
    head = [pro, pro2] + segs + [ec]
    rest = [h2, headseg] + bodies + [t1] + stepsA + [sig] + stepsB + [t3, t4] + stepsC + wos + [ph]
    import copy
    resolve(head + [l0] + rest)
    saved = [[(x.get("wvm"), x.get("wlg")) for x in seg.items] for seg in rest]
    resolve(head + [l1] + rest)
    for seg, sv in zip(rest, saved):
        for x, (v, l) in zip(seg.items, sv):
            if x["text"] is None:
                mn = lambda p, q: q if p is None else p if q is None else min(p, q)
                x["wvm"], x["wlg"] = mn(x["wvm"], v), mn(x["wlg"], l)
    emit_trace(a, [pro]); st.stamp()
    if pads:
        a("s_branch KM_BODY")
        a.lines.append(".p2align 12")
        a.label("KM_BODY")
    if al1 is not None:
        a.lines.append(".p2align 6")
        for _ in range(al1): a("s_nop 0")
    emit_trace(a, [pro2]); st.stamp()
    for k, tr in enumerate(segs):
        if 'wv' in exp and k % 2 == 0 and wv0 <= k // 2 < wv0 + 5:
            t_ = Trace(); t_.items = tr.items[:-2]; emit_trace(a, [t_]); st.stamp()
            t_.items = tr.items[-2:-1]; emit_trace(a, [t_]); st.stamp()
            t_.items = tr.items[-1:]; emit_trace(a, [t_]); st.stamp()
            continue
        emit_trace(a, [tr])
        if 'stg' in exp and k % 2 == 0: st.stamp()
    st.stamp()
    emit_trace(a, [ec])
    if 'ec' in exp: st.stamp()
    a(f"s_bitcmp1_b32 s{S_W}, 0")
    a("s_cbranch_scc1 KM_LAST1")
    emit_trace(a, [l0])
    a("s_branch KM_P2")
    a.label("KM_LAST1")
    emit_trace(a, [l1])
    if al2 is not None:
        a.lines.append(".p2align 6")
        for _ in range(al2): a("s_nop 0")
    a.label("KM_P2")
    st.stamp()
    if pads: a.lines.append("@CHAIN2")
    emit_trace(a, [h2]); st.stamp()
    b = Asm(); emit_trace(b, [headseg])
    for l in b.lines:
        a.lines.append(l)
        if 'its' in exp and l.strip() in ("s_barrier", "KM_HBACK:"): st.stamp()
    st.stamp()
    a.lines.append(".p2align 6")
    a.label("KM_LOOP")
    emit_trace(a, bodies)
    a("s_cbranch_scc1 KM_LOOP")
    st.stamp()
    emit_trace(a, [t1]); st.stamp()
    for seg in stepsA + [sig]: emit_trace(a, [seg])
    st.stamp()
    for seg in stepsB: emit_trace(a, [seg])
    st.stamp()
    emit_trace(a, [t3]); st.stamp()
    for seg in [t4] + stepsC: emit_trace(a, [seg])
    st.stamp()
    for seg in wos: emit_trace(a, [seg])
    st.stamp()
    b = Asm(); emit_trace(b, [ph])
    nm = 0
    for l in b.lines:
        a.lines.append(l)
        if l.strip().startswith("v_mfma"): nm += 1
        if 'ph' in exp and ((l.strip().startswith("v_mfma") and nm % 32 == 0) or (l.strip() == "s_barrier" and nm == 0) or "s81 offen" in l): st.stamp()
    if dbg:
        a("s_waitcnt vmcnt(0)")
        st.stamp(force=True)
        st.dump(0, S_W, 86)
        if hdbg is not None:
            a(f"""
            s_lshl_b32 s90, s2, 2
            s_add_u32 s90, s90, s{S_W}
            s_cmp_eq_u32 s90, {4*hdbg}
            s_cbranch_scc0 KM_END
            v_readlane_b32 s90, v31, 32
            v_mbcnt_lo_u32_b32 v0, -1, 0
            v_mbcnt_hi_u32_b32 v0, -1, v0
            v_subrev_u32 v31, s90, v31
            v_subrev_u32 v0, 32, v0
            v_lshlrev_b32 v0, 2, v0
            s_mov_b32 exec_lo, 0
            s_mov_b32 exec_hi, 0xfffe
            buffer_store_dword v31, v0, s[{S_DBG}:{S_DBG+3}], 0 offen
            """)
    a("s_endpgm")
    for nm, ld, val in (("Z", f"buffer_load_dword v1, off, s[{S_DBG}:{S_DBG+3}], 0 sc1", f"eq_u32 vcc, 0, v1"),
                        ("E", f"buffer_load_dword v{V_KX}, v{V_T}, s[{S_WS}:{S_WS+3}], s{S_EF} offen sc1", f"ne_u32 vcc, s{S_TAG}, v{V_KX}"),
                        ("H", f"buffer_load_dword v28, v25, s[{S_WS}:{S_WS+3}], s{P.S_HP} offen sc1", f"ne_u32 vcc, s{S_TAG}, v28"),
                        ("O", f"buffer_load_dword v28, v25, s[{S_WS}:{S_WS+3}], s{P.S_OP} offen sc1", f"ne_u32 vcc, s{S_TAG}, v28")):
        a(f"""
        KM_{nm}SPIN:
        s_mov_b32 s91, 0x40000
        KM_{nm}SPIN1:
        {ld}
        s_waitcnt vmcnt(0)
        v_cmp_{val}
        s_sub_u32 s91, s91, 1
        s_cbranch_vccz KM_{nm}BACK
        s_cmp_eq_u32 s91, 0
        s_cbranch_scc1 KM_{nm}BACK
        s_sleep 1
        s_branch KM_{nm}SPIN1
        """)
    A_K, A_Q = P.A_K, P.A_Q
    a.label("KM_FALLBACK2")
    a("s_mov_b32 s55, 2")
    a.label("KM_FALLBACK")
    a(f"""
    s_or_b32 s55, s55, 1
    s_waitcnt vmcnt(0) lgkmcnt(0)
    s_nop 15
    v_mov_b32 v82, 0xff7fffff
    v_mov_b32 v83, 0xff7fffff
    v_mov_b32 v80, 0
    v_mov_b32 v81, 0
    s_mov_b32 s78, {WS_KV:#x}
    """)
    for r in range(32): a(f"v_mov_b32 v{VO+r}, 0")
    a.label("KM_FB_LOOP")
    for q in range(4):
        a(f"buffer_load_dwordx4 {ar(A_K+4*q,4)}, v{P.V_L16}, s[{S_WS}:{S_WS+3}], s78 offen offset:{q*1024} sc1")
    a("s_waitcnt vmcnt(0)")
    for hh in range(2):
        O = VO + 16*hh; m = 82 + hh; l = 80 + hh
        a(f"v_mfma_f32_32x32x16_bf16 v[64:79], {ar(A_K,4)}, {ar(A_Q+8*hh,4)}, 0")
        a(f"v_mfma_f32_32x32x16_bf16 v[64:79], {ar(A_K+4,4)}, {ar(A_Q+8*hh+4,4)}, v[64:79]")
        a("s_nop 15")
        a("v_max_f32 v84, v64, v65")
        for r in range(2, 16, 2): a(f"v_max3_f32 v84, v{64+r}, v{65+r}, v84")
        a(f"""
        v_mov_b32 v85, v84
        s_nop 1
        v_permlane32_swap_b32 v84, v85
        s_nop 1
        v_max3_f32 v84, v84, v85, v{m}
        v_sub_f32 v85, v{m}, v84
        v_exp_f32 v85, v85
        v_mov_b32 v{m}, v84
        v_mul_f32 v{l}, v{l}, v85
        """)
        for r in range(16):
            a(f"v_sub_f32 v{64+r}, v{64+r}, v84")
            a(f"v_exp_f32 v{64+r}, v{64+r}")
            a(f"v_mul_f32 v{O+r}, v{O+r}, v85")
        for r in range(8): a(f"v_cvt_pk_bf16_f32 v{64+r}, v{64+2*r}, v{65+2*r}")
        for r in range(8):
            a(f"v_lshlrev_b32 v86, 16, v{64+r}\nv_and_b32 v87, 0xffff0000, v{64+r}\nv_add_f32 v{l}, v{l}, v86\nv_add_f32 v{l}, v{l}, v87")
        a(f"v_mfma_f32_32x32x16_bf16 {vr(O,16)}, {ar(A_K+8,4)}, v[64:67], {vr(O,16)}")
        a(f"v_mfma_f32_32x32x16_bf16 {vr(O,16)}, {ar(A_K+12,4)}, v[68:71], {vr(O,16)}")
        a("s_nop 15")
    a(f"""
    s_add_u32 s78, s78, 4096
    s_cmp_lt_u32 s78, {WS_KV + 64*4096:#x}
    s_cbranch_scc1 KM_FB_LOOP
    v_mov_b32 v84, v80
    v_mov_b32 v85, v81
    s_nop 1
    v_permlane32_swap_b32 v80, v84
    v_permlane32_swap_b32 v81, v85
    s_nop 1
    v_add_f32 v80, v80, v84
    v_add_f32 v81, v81, v85
    s_cmp_eq_u32 s55, 1
    s_cbranch_scc1 KM_NORM
    v_rcp_f32 v80, v80
    v_rcp_f32 v82, v81
    s_nop 0
    v_mul_f32 v80, v80, v{P.V_G}
    v_mul_f32 v82, v82, v{P.V_G+1}
    """)
    for hh in range(2):
        for pc in range(2):
            b = VO + 16*hh + 8*pc
            for r in range(8): a(f"v_mul_f32 v{b+r}, v{b+r}, v{80+2*hh}")
            for q in range(4): a(f"v_cvt_pk_bf16_f32 v{64+8*hh+4*pc+q}, v{b+2*q}, v{b+2*q+1}")
            a(f"buffer_store_dwordx4 {vr(64+8*hh+4*pc,4)}, v26, s[{S_WS}:{S_WS+3}], s54 offen offset:{hh*2048 + pc*512} sc1")
    a(f"""
    s_waitcnt vmcnt(0)
    s_branch KM_CHECKED
    KM_END:
    s_endpgm
    """)
    return a.text()
```

```python
from common import *
import math, struct

LDS_SP = 65536
K2_LDS = 163840

V_L16, V_L16B, V_KVR = 1, 2, 3
V_W = 4
V_SP, V_KP = 8, 12
V_LANE, V_OMG, V_G = 16, 18, 22
SB = [32, 48]; PB = [64, 72]
ACC = 128
A_O, A_L, A_SEL, A_Q, A_K, A_V = 0, 32, 40, 44, 60, 76
A_WR, RW = 92, 16
A_HR, RH = 156, 4
A_WX = 220
S_OUT, S_WS = 20, 24
S_HB, S_WB, S_KVB, S_XB = 12, 14, 16, 18
S_W, S_MT, S_NT, S_M0KV, S_M0SP = 36, 28, 29, 30, 31
S_WOB = 32
S_HF, S_HP, S_OF, S_OP = 8, 9, 10, 11
LDS_Q = 65536
NDOWN, NWO = 28, 8
NSLOT = 128

I = lambda text, vm=None, lg=None: dict(text=text, vm=vm, lg=lg)
W = lambda vm=(), lg=(): dict(text=None, needvm=list(vm), needlg=list(lg))
def adv64(s, n): return [I(f"s_add_u32 s{s}, s{s}, {n:#x}\ns_addc_u32 s{s+1}, s{s+1}, 0")]

def accr(J, i): return vr(ACC + (J*4 + i)*4, 4)
V_O = 96
def wreg(sig, J):
    if sig == NDOWN + 7: return ar(A_WX + 4*J, 4)
    if sig == NDOWN + 6: return ar(A_O + 4*J, 4)
    return ar(A_WR + 4*((8*sig + J) % RW), 4)
OREGS = [ar(A_Q + 4*k, 4) for k in range(12)] + [vr(V_O + 4*k, 4) for k in range(8)] + [ar(A_HR + 4*k, 4) for k in range(4*RH)]
def hreg(sig, i, ring=False):
    if sig >= NDOWN and not ring: return OREGS[4*(sig - NDOWN) + i]
    return ar(A_HR + 16*(sig % RH) + 4*i, 4)
def gemm_mfma(sig, J, i, first):
    return f"v_mfma_f32_16x16x32_bf16 {accr(J,i)}, {wreg(sig,J)}, {hreg(sig,i)}, {'0' if first else accr(J,i)}"
def h_load(sig, i, ring=False):
    return I(f"global_load_dwordx4 {hreg(sig,i,ring)}, v{V_L16}, s[{S_HB}:{S_HB+1}] offset:{i*1024} sc1", vm=("hx" if ring and sig >= NDOWN else "h", sig, i))
NIN = 25
NHEAD = 1
SF0 = NIN + 2
S_WB0 = 64
S_M0C, S_SPM, S_CNT = 34, 35, 39
def wsrc(sig):
    if sig < SF0: return "ring"
    if sig < NDOWN + 6: return "lds"
    return "x"
def slot_of(sig): return (sig - SF0) % 4
def w_load(sig, J):
    src = wsrc(sig)
    if src == "ring":
        return I(f"global_load_dwordx4 {wreg(sig,J)}, v{V_W + J//2}, s[{S_WB}:{S_WB+1}] offset:{(J%2)*1024} sc1", vm=("w", sig, J))
    if src == "x":
        return I(f"global_load_dwordx4 {wreg(sig,J)}, v{V_W + J//2}, s[{S_XB}:{S_XB+1}] offset:{(J%2)*1024} sc1", vm=("w", sig, J))
    k = slot_of(sig)
    reg, off = (V_SP, k*8192) if k < 3 else (V_KP, 0)
    return I(f"ds_read_b128 {wreg(sig,J)}, v{reg + J//2} offset:{off + (J%2)*1024}", lg=("w", sig, J))
def w_need(sig, J):
    return W(lg=[("w", sig, J)]) if wsrc(sig) == "lds" else W(vm=[("w", sig, J)])
def x_base(sig):
    b, o = (S_WB0, sig*8192) if sig < NDOWN else (S_WOB, (sig - NDOWN)*8192)
    return I(f"s_add_u32 s{S_XB}, s{b}, {o}\ns_addc_u32 s{S_XB+1}, s{b+1}, 0")
def fifo_fill(sig, half):
    k = slot_of(sig)
    m0 = I(f"s_add_u32 m0, s{S_M0SP}, {k*8192 + half*4096}") if k < 3 else I(f"s_add_u32 m0, s{S_M0KV}, {half*4096}")
    return m0, [I(f"global_load_lds_dwordx4 v{V_L16B if half else V_L16}, s[{S_XB}:{S_XB+1}] offset:{j*1024} sc1", vm=("wd", sig)) for j in range(4)]
def qk(n, half):
    T = n // 2; Sx = SB[n % 2]
    c = "0" if half == 0 else vr(Sx, 16)
    return f"v_mfma_f32_32x32x16_bf16 {vr(Sx,16)}, {ar(A_K + 8*(T%2) + 4*half,4)}, {ar(A_Q + 8*(n%2) + 4*half,4)}, {c}"
def pv(n, half):
    T = n // 2; O = V_O + 16*(n % 2)
    c = "0" if (n < 2 and half == 0) else vr(O, 16)
    return f"v_mfma_f32_32x32x16_bf16 {vr(O,16)}, {ar(A_V + 8*(T%2) + 4*half,4)}, {vr(PB[n%2] + 4*half,4)}, {c}"
def summ(n, half):
    Lr = A_L + 4*(n % 2)
    c = "0" if (n < 2 and half == 0) else ar(Lr, 4)
    return f"v_mfma_f32_16x16x32_bf16 {ar(Lr,4)}, {ar(A_SEL,4)}, {vr(PB[n%2] + 4*half,4)}, {c}"
def kv_off(T): return (T % 8)*4096
def k_read(T, half):
    return I(f"ds_read_b128 {ar(A_K + 8*(T%2) + 4*half,4)}, v{V_KVR} offset:{kv_off(T) + half*1024}", lg=("k", T))
def v_read(T, half):
    return I(f"ds_read_b128 {ar(A_V + 8*(T%2) + 4*half,4)}, v{V_KVR} offset:{kv_off(T) + 2048 + half*1024}", lg=("v", T))
def kv_dma(stage, part, j):
    v = V_L16 if part == 0 else V_L16B
    return I(f"global_load_lds_dwordx4 v{v}, s[{S_KVB}:{S_KVB+1}] offset:{j*1024} sc1", vm=("kv", stage))

def xcost(x):
    t = x["text"] or "s_"
    if t.startswith("ds_"): return 4
    if t.startswith("global_"): return 5
    if t.startswith("buffer_"): return 8
    if t.startswith("v_"): return 4
    if "\n" in t: return 4
    return 0

def segment(lo, hi, mu0, mu1, g0, timed=(), loop=False):
    seq = []
    mu = mu0
    for n in range(lo, hi):
        att = [(qk(n+1, 0), 32), (qk(n+1, 1), 32)]
        if n >= 1: att += [(pv(n-1, 0), 32), (summ(n-1, 0), 16), (pv(n-1, 1), 32), (summ(n-1, 1), 16)]
        top = mu0 if n < g0 else mu0 + round((mu1 - mu0)*(n + 1 - g0)/(hi - g0))
        cnt = top - mu
        for k, (t, p_) in enumerate(att):
            seq.append(dict(text=t, pipe=p_, slot=n, mu=None, k=k))
            for _ in range(round(cnt*(k + 1)/len(att)) - round(cnt*k/len(att))):
                sig, J, i = mu // 32, (mu % 32) // 4, mu % 4
                seq.append(dict(text=gemm_mfma(sig, J, i, sig == 0), pipe=16, slot=n, mu=mu, k=None)); mu += 1
    assert mu == mu1
    N = len(seq)
    gaps = [[] for _ in range(N)]
    pos_mu = {s["mu"]: g for g, s in enumerate(seq) if s["mu"] is not None}
    slot_start = {}
    for g, s in enumerate(seq): slot_start.setdefault(s["slot"], g)
    slot_start[hi] = N
    def place(item, lo_, hi_=None):
        G = lo_
        while G < N and gaps[G]: G += 1
        if hi_ is not None and G > hi_:
            lo_ = min(lo_, hi_)
            G = min(range(lo_, hi_ + 1), key=lambda g: (sum(xcost(x) + 1 for x in gaps[g]), g))
        assert G < N, (item, lo_, hi_, G)
        gaps[G].append(item); return G
    def place_cluster(items, lo_, hi_):
        hi_ = min(hi_, N - 1); lo_ = min(lo_, hi_)
        cands = [g for g in range(lo_, hi_ + 1) if not gaps[g]]
        big = [g for g in cands if seq[g]["pipe"] == 32]
        G = big[0] if big else cands[0] if cands else min(range(lo_, hi_ + 1), key=lambda g: (sum(xcost(x) + 1 for x in gaps[g]), g))
        gaps[G].extend(items); return G
    for m in range(mu0, mu1, 4):
        sig, J = m // 32, (m % 32) // 4
        w = w_need(sig, J)
        if J == 0: w["needvm"] += [("h", sig, q) for q in range(4)]
        gaps[pos_mu[m] - 1].append(w)
    for n in range(lo, hi, 2):
        gaps[slot_start[n + 1] - 1].append(W(lg=[("k", n // 2 + 1)]))
    for it in range(lo // 16, hi // 16):
        G = slot_start[16*it + 14]
        gaps[G] = [W(vm=[("kv", it + 1)], lg=[("v", 8*it + 7)]), I("s_barrier"), I(f"v_xor_b32 v{V_KVR}, 0x8000, v{V_KVR}")] + gaps[G]
    for n in range(lo, hi):
        T = n // 2 + 1
        l_ = slot_start[n] + (1 if n % 16 == 14 else 0) + 1
        G = place(k_read(T, 0) if n % 2 == 0 else v_read(T, 0), l_, slot_start[n + 1] - 2)
        place(k_read(T, 1) if n % 2 == 0 else v_read(T, 1), G + 2, slot_start[n + 1] - 2)
    G = 0
    for sl, items in timed:
        G = place_cluster(items, max(slot_start[sl] + 1, G + 1), max(slot_start[sl + 1] - 2, G + 2))
    def place_split(items, lo_, hi_, step):
        G0 = None; G = lo_
        for k, x in enumerate(items):
            G = place_cluster([x], min(G, N - 1), min(hi_ + k*step, N - 1))
            if G0 is None: G0 = G
            last = G; G += step
        return G0, last
    lastw = -1
    for m in range(mu0 + 3, mu1, 4):
        sig, J = m // 32, (m % 32) // 4
        G = pos_mu[m]
        if J == 0: place(adv64(S_WB, 8192)[0], max(lastw + 1, G - 6), G - 1)
        lastw = place_cluster([w_load(sig + 2, J)], G, G + 3)
    for sig in range(mu0 // 32, mu1 // 32):
        if sig >= 1:
            G = pos_mu[32*sig]
            G = place(adv64(S_HB, 8192)[0], G, G + 2)
            place_split([h_load(sig - 1 + RH, i, True) for i in range(4)], G + 2, G + 8, 7)
    for it in range(lo // 16, hi // 16):
        for part in range(2):
            s0 = 16*it + (7 if it == 0 else 8 if it == 1 else 1) + (2 if it == 1 else 3)*part
            cl = [kv_dma(it + 1, part, j) for j in range(4)]
            if it == 7: cl[-1]["vm2"] = ("wd", SF0 + 3)
            G0, G = place_split(cl, slot_start[s0] + 3, slot_start[s0] + (9 if loop else 5), 5 if loop else 2)
            assert G < slot_start[s0 + 2]
            place(I(f"s_add_u32 m0, s{S_M0C}, {part*4096}"), G0 - 3, G0 - 1)
        G = place(adv64(S_KVB, 32768)[0], G + 1)
        G = place(I(f"s_xor_b32 s{S_M0C}, s{S_M0C}, 0x8000"), G + 1)
        if loop:
            idx = it - 2
            cl = [I(f"global_load_lds_dwordx4 v{V_L16}, s[{S_XB}:{S_XB+1}] offset:{j*1024} sc1", vm=("wd", SF0 + idx // 2)) for j in range(4)]
            G0, G = place_split(cl, slot_start[16*it + 9] + 4, slot_start[16*it + 9] + 10, 5)
            place(I(f"s_mov_b32 m0, s{S_SPM}"), G0 - 3, G0 - 1)
            G = place(adv64(S_XB, 4096)[0], G + 1)
            G = place(I(f"s_add_u32 s{S_SPM}, s{S_SPM}, 4096"), G + 1)
            G = place(I(f"s_sub_u32 s{S_CNT}, s{S_CNT}, 1"), G + 1)
            G = place(I(f"s_cmp_eq_u32 s{S_CNT}, {6 - 2*(NDOWN - SF0)}\ns_cselect_b32 s{S_XB}, s{S_WOB}, s{S_XB}\ns_cselect_b32 s{S_XB+1}, s{S_WOB+1}, s{S_XB+1}"), G + 1)
            G = place(I(f"s_cmp_eq_u32 s{S_CNT}, 1\ns_cselect_b32 s{S_KVB}, s66, s{S_KVB}\ns_cselect_b32 s{S_KVB+1}, s67, s{S_KVB+1}"), G + 1)
    V = []
    for n in range(lo, hi):
        Sx, Px = SB[n % 2], PB[n % 2]
        for r in range(0, 16, 2):
            V += [(8, f"v_exp_f32 v{Sx+r}, v{Sx+r}", n, "e"), (8, f"v_exp_f32 v{Sx+r+1}, v{Sx+r+1}", n, "e")]
            if r >= 2: V.append((4, f"v_cvt_pk_bf16_f32 v{Px+r//2-1}, v{Sx+r-2}, v{Sx+r-1}", n, r//2 - 1))
        V.append((4, f"v_cvt_pk_bf16_f32 v{Px+7}, v{Sx+14}, v{Sx+15}", n, 7))
    vidx = {(n, k): i for i, (_, _, n, k) in enumerate(V) if k != "e"}
    for sq in seq:
        n, k = sq["slot"], sq["k"]
        dep = -1
        if k is not None and n > lo:
            dep = vidx[(n - 1, 7)] if k in (0, 4, 5) else vidx[(n - 1, 3)] if k in (2, 3) else -1
        sq["dep"] = dep
    pos_att = {(sq["slot"], sq["k"]): g for g, sq in enumerate(seq) if sq["k"] is not None}
    tr = Trace()
    t = valu = pipe = 0
    ig = iv = cnt = 0
    emitted_at = {}; vem_at = {}
    while ig < N or iv < len(V):
        m_ok = ig < N and seq[ig]["dep"] < iv and (seq[ig]["dep"] < 0 or cnt - vem_at[seq[ig]["dep"]] >= 2) and cnt >= 2
        v_ok = False
        if iv < len(V):
            c, txt_, n, k = V[iv]
            v_ok = True
            if n > lo and k == "e":
                g = pos_att[(n - 1, 1)]
                v_ok = g in emitted_at and cnt - emitted_at[g][0] >= 12 and max(t, valu) >= emitted_at[g][1] + 56
            if k != "e" and n >= 2 and n > lo:
                v_ok = pos_att[(n - 1, 3 if k < 4 else 5)] in emitted_at
        now = max(t, valu)
        if m_ok and (pipe <= now or not v_ok):
            s_ = max(now, pipe); t = s_ + 4; valu = s_ + 8; pipe = s_ + seq[ig]["pipe"]
            tr.ins(seq[ig]["text"]); cnt += 1; emitted_at[ig] = (cnt, s_)
            prev = ""
            for x in gaps[ig]:
                tr.items.append(x); cnt += 1 if x["text"] and not x["text"].endswith(":") else 0
                tx = x["text"] or "s_"
                if tx.startswith("ds_"): t += 4 if prev.startswith("ds_") else 8
                elif tx.startswith("global_"): t += 8 if prev.startswith("global_") else 10
                elif tx.startswith("buffer_"): t += 12
                else: t += 4*(1 + tx.count("\n"))
                prev = tx
            ig += 1
        elif v_ok:
            t = valu = now + c
            tr.ins(txt_); cnt += 1; vem_at[iv] = cnt; iv += 1
        else:
            tr.ins("s_nop 0"); cnt += 1; t += 4
    txt = [x["text"] for x in tr.items if x["text"]]
    for k in range(1, len(txt)):
        if txt[k].startswith("v_cvt") and txt[k-1].startswith("v_exp"):
            d = txt[k-1].split()[1].rstrip(",")
            assert d + "," not in txt[k] + ",", (txt[k-1], txt[k])
    return tr

def gemm_step(sig, extra=(), late=(), vq=None):
    gaps = [[] for _ in range(32)]
    pre = []
    w = w_need(sig, 0); w["needvm"] += [("h", sig, 0)]
    pre.append(w)
    for i in range(1, 4): gaps[i - 1].append(W(vm=[("h", sig, i)]))
    s2 = sig + 2
    for J in range(8):
        if J % 4 == 3 and s2 < NDOWN + 6:
            assert wsrc(s2) == "lds"
            if J == 3: gaps[4*J + 2].append(W(vm=[("wd", s2)]))
            gaps[4*J + 3].extend(w_load(s2, q) for q in range(J - 3, J + 1))
        if J < 7: gaps[4*J + 3].insert(0, w_need(sig, J + 1))
    s3 = sig + 1 + 4
    if sig + 1 >= SF0 and s3 < NDOWN + 6:
        gaps[5].append(x_base(s3))
        for half in range(2):
            m_, d_ = fifo_fill(s3, half)
            G = 9 + 16*half
            gaps[G - 1].append(m_)
            if half == 0: gaps[G].append(W(lg=[("w", sig + 1, 7)]))
            gaps[G].extend(d_)
    for k, grp in enumerate(extra):
        gaps[[4, 20][k]].extend(grp)
    gaps[17].extend(late)
    tr = Trace()
    tr.items.extend(pre)
    for mu in range(32):
        tr.ins(gemm_mfma(sig, mu // 4, mu % 4, False))
        tr.items.extend(gaps[mu])
        n = 0
        while vq and n < 2:
            x = vq.pop(0); tr.items.append(x)
            if not (x["text"] or "s_").startswith("s_") or "\n" in (x["text"] or ""): n += 1
            elif vq and (vq[0]["text"] or "s_").startswith("s_"): n += 1
    return tr
```

```python
from common import *
import p2
from p2 import I, W, adv64
import math, struct

KM = NAME + "_kernel"
LDS_X = 0; LDS_W = 65536
LDS_R = 131072
LDS_QS = LDS_R; LDS_KW = LDS_R + 4096; LDS_T = LDS_R + 16384
KM_LDS = 163840
NST = 16
OOB = 0x7f000000

def accn(j, i): return ("v", 32 + (j*8 + i)*4) if j < 7 else ("a", 128 + i*4)
def acc(j, i):
    p, b = accn(j, i); return vr(b, 4, p)
XF = [0, 64]; WF = [32, 96]
KVW, KVA, A_GX, A_GW, A_T, A_KX, A_DUM = 160, 168, 172, 188, 204, 208, 255
TREG = [196, 200, 204, 224, 228, 232, 236, 240, 244]
V_DQ, V_DX, V_DW = 0, 2, 6
V_RX = [10, 11]
V_RW, V_R3, V_R7, V_RKW, V_T, V_KX, V_LANE = 12, 15, 16, 17, 18, 19, 20
V_GROW, V_L16, V_RT, V_DT, V_DK = 26, 27, 28, 29, 30
S_WQ, S_X, S_G, S_U, S_KV, S_WS, S_GW, S_TSRD, S_WD, S_WO, S_DBG = 4, 8, 12, 16, 20, 24, 28, 32, 52, 76, 72
S_W, S_MT, S_NT, S_OK = 36, 37, 38, 39
S_OX, S_OX2, S_OG, S_OQ, S_TSRCS = 40, 41, 42, 43, 44
S_M0X, S_M0W, S_M0K, S_M0T, S_M0Q = 45, 46, 47, 51, 56
S_TOFF, S_TSTEP, S_TOG = 48, 49, 50
S_TSRC, S_TDST, S_TSRC2, S_TDST2, S_GROW = 3, 94, 95, 100, 101
S_EF = 88
S_LMASK, S_T2D = 58, 59
S_TAG = 89
A_TAG = 254
S_FLG = 57

KVD = 1
def dma_group(s, ntw):
    b = s % 2
    g = []
    nt = " nt" if ntw else ""
    for half in range(2):
        so = S_OX if half == 0 else S_OX2
        for j in range(4):
            pre = f"s_add_u32 m0, s{S_M0X}, {b*32768 + half*4096}" if j == 0 else None
            g.append((pre, I(f"buffer_load_dwordx4 v{V_DX+j}, s[{S_X}:{S_X+3}], s{so} offen offset:{j*1024} lds", vm=("st", s))))
    for part in range(2):
        srdn = S_G if part == 0 else S_U
        for j in range(4):
            pre = f"s_add_u32 m0, s{S_M0W}, {b*32768 + part*16384}" if j == 0 else None
            g.append((pre, I(f"buffer_load_dwordx4 v{V_DW+j}, s[{srdn}:{srdn+3}], s{S_OG} offen offset:{j*1024}{nt} lds", vm=("st", s))))
    g.append((f"s_add_u32 m0, s{S_M0Q}, {b*2048}", I(f"buffer_load_dwordx4 v{V_DQ}, s[{S_WQ}:{S_WQ+3}], s{S_OQ} offen{nt} lds", vm=("st", s))))
    adv = {7: [f"s_add_u32 s{S_OX}, s{S_OX}, 128", f"s_add_u32 s{S_OX2}, s{S_OX2}, 128"],
           15: [f"s_add_u32 s{S_OG}, s{S_OG}, {64*7168}"], 16: [f"s_add_u32 s{S_OQ}, s{S_OQ}, 0x20000"]}
    if 1 <= s - KVD <= 8:
        g.append((f"s_add_u32 m0, s{S_M0K}, {b*8192}", I(f"buffer_load_dwordx4 v{V_DK}, s[{S_KV}:{S_KV+3}], s{S_OK} offen lds", vm=("st", s))))
        adv[17] = [f"s_add_u32 s{S_OK}, s{S_OK}, 8192"]
    return g, adv
def xread(s, kk, i):
    return I(f"ds_read_b128 {ar(XF[kk]+4*i,4)}, v{V_RX[kk]} offset:{(s%2)*32768 + i*2048}", lg=("fr", s, kk))
def wread(s, kk, j, h):
    if j % 4 == 3:
        reg, off = (V_R3 if j == 3 else V_R7), h*1024 + kk*8192
    else:
        reg, off = V_RW + (j & 3), (s % 2)*32768 + h*1024 + kk*8192 + (16384 if j >= 4 else 0)
    return I(f"ds_read_b64_tr_b16 {ar(WF[kk]+4*j+2*h,2)}, v{reg} offset:{off}", lg=("fr", s, kk))
def reads(s, kk):
    r = [wread(s, kk, 0, 0), wread(s, kk, 0, 1)] + [xread(s, kk, i) for i in range(8)]
    for j in range(1, 8): r += [wread(s, kk, j, 0), wread(s, kk, j, 1)]
    return r
def mfma(kk, j, i, first=False):
    return f"v_mfma_f32_16x16x32_bf16 {acc(j,i)}, {ar(WF[kk]+4*j,4)}, {ar(XF[kk]+4*i,4)}, {'0' if first else acc(j,i)}"
def vcap(items):
    c = 2
    for x in items:
        t = x["text"] or "s_"
        if t.startswith("ds_"): c -= 1
        elif t.startswith(("buffer_", "global_")): c -= 2
        elif t.startswith("v_"): c -= 1
    return max(c, 0)
from k1 import g_ops as _g_ops
import k1 as _k1
_k1.A_GX, _k1.A_GW = A_GX, A_GW

def gen(dbg=False, hdbg=None, lead=True, lphase=0, xhead=True, al1=None, al2=None, gsm=True, tsp0=4, hstart=0, xmask=0x1f, tt0=0, wv0=1, cl=1, gc=(10, 8), dc=8, slack=0, ph2new=True, tp2=False, tb=8, tlb=0, tlbpos=17, tdefer=False, tpro=0, tpos=0, gl=2, pads=0, epos=10, chain_at=1, ot=99, touch=1, nhead=13, p1=13, npro0=8, gs=11, tq0=5, ntw=False, ntt=True, exp='',
        g0=22, hsig=7, hpoll=15, opre=1, nb=(1, 2)):
    esig = KVD + 11
    if tp2:
        tq0 = 100
    NIN = p2.NIN
    a = Asm()
    L = f"v{V_LANE}"
    a("s_cmp_ge_u32 s2, 256")
    a("s_cbranch_scc1 KM_END")
    st = Stamps(a, dbg)
    st.stamp()
    a("s_memrealtime s[72:73]")
    a("s_load_dwordx8 s[56:63], s[0:1], 0")
    a("s_load_dwordx8 s[64:71], s[0:1], 48")
    a("s_load_dwordx2 s[74:75], s[0:1], 32")
    a("s_load_dwordx4 s[96:99], s[0:1], 80")
    a("s_load_dwordx2 s[86:87], s[0:1], 96")
    code_prefetch(a, "KM", 32, "a255", 3)
    a(f"""
    v_and_b32 {L}, 63, v0
    v_lshrrev_b32 v1, 6, v0
    s_and_b32 s80, s2, 7
    v_readfirstlane_b32 s{S_W}, v1
    s_lshr_b32 s81, s2, 3
    s_and_b32 s{S_MT}, s81, 7
    s_lshr_b32 s83, s81, 3
    s_lshl_b32 s80, s80, 2
    s_add_u32 s{S_NT}, s80, s83
    s_mul_i32 s85, s{S_NT}, 224
    s_mov_b32 s{S_OG}, 0
    s_mov_b32 s{S_OQ}, 0
    v_lshrrev_b32 v21, 3, {L}
    s_lshl_b32 s81, s{S_MT}, 8
    s_lshl_b32 s82, s{S_W}, 6
    s_add_u32 s81, s81, s82
    v_add_u32 v21, s81, v21
    v_lshlrev_b32 v21, 11, v21
    v_and_b32 v22, 7, {L}
    v_lshrrev_b32 v23, 4, {L}
    v_xor_b32 v22, v22, v23
    v_lshlrev_b32 v22, 4, v22
    v_xor_b32 v24, 64, v22
    """)
    for j in range(4):
        a(f"v_add_u32 v{V_DX+j}, v21, {'v22' if j % 2 == 0 else 'v24'}")
        if j: a(f"v_add_u32 v{V_DX+j}, {j*8*2048 - j*1024}, v{V_DX+j}")
    a(f"""
    s_mov_b32 s{S_OX}, 0
    s_mov_b32 s{S_OX2}, 65536
    s_mov_b32 s{S_OK}, 0
    s_lshl_b32 s81, s{S_W}, 4
    s_movk_i32 s84, 7168
    v_add_u32 v21, s81, v23
    v_mul_lo_u32 v21, v21, s84
    v_add_u32 v21, s85, v21
    v_and_b32 v25, 1, {L}
    v_lshl_add_u32 v21, v25, 4, v21
    v_bfe_u32 v22, {L}, 1, 3
    v_xor_b32 v22, v22, v23
    v_xor_b32 v24, 4, v22
    v_min_u32 v22, 6, v22
    v_min_u32 v24, 6, v24
    v_lshl_add_u32 v{V_DW}, v22, 5, v21
    v_add_u32 v{V_DW+1}, {4*7168 - 1024}, v{V_DW}
    v_lshl_add_u32 v{V_DW+2}, v24, 5, v21
    v_add_u32 v{V_DW+2}, {2*(4*7168 - 1024)}, v{V_DW+2}
    v_add_u32 v{V_DW+3}, {4*7168 - 1024}, v{V_DW+2}
    s_lshl_b32 s{S_M0X}, s{S_W}, 13
    s_lshl_b32 s{S_M0W}, s{S_W}, 12
    s_add_u32 s{S_M0W}, s{S_M0W}, {LDS_W}
    s_lshl_b32 s{S_M0K}, s{S_W}, 10
    s_add_u32 s{S_M0T}, s{S_M0K}, {LDS_T}
    s_add_u32 s{S_M0K}, s{S_M0K}, {LDS_KW}
    s_lshr_b32 s81, s{S_W}, 1
    s_and_b32 s80, s{S_W}, 1
    """)
    a(f"""
    v_lshlrev_b32 v21, 3, v23
    v_bfe_u32 v22, {L}, 2, 2
    v_add_u32 v21, v21, v22
    s_lshl_b32 s82, s81, 5
    s_lshl_b32 s83, s80, 2
    s_add_u32 s82, s82, s83
    v_add_u32 v21, s82, v21
    v_lshlrev_b32 v21, 11, v21
    v_bfe_u32 v22, {L}, 1, 1
    v_bfe_u32 v24, {L}, 4, 1
    v_xor_b32 v22, v22, v24
    v_lshl_add_u32 v21, v22, 5, v21
    v_lshl_add_u32 v21, v25, 4, v21
    s_lshl_b32 s82, s{S_NT}, 6
    v_add_u32 v{V_DQ}, s82, v21
    s_lshl_b32 s90, s81, 13
    s_lshl_b32 s83, s80, 10
    s_add_u32 s90, s90, s83
    s_waitcnt lgkmcnt(0)
    """)
    st.n and None
    a(f"s_or_b32 s{S_TAG}, s72, 1")
    srd(a, S_X, 56, 2048*1024*2)
    srd(a, S_G, 64, 1024*3584*2)
    srd(a, S_U, 66, 1024*3584*2)
    srd(a, S_WQ, 58, 1024*1024*2)
    a(f"s_add_u32 s{S_M0Q}, s90, {LDS_QS}")
    st.stamp()
    pro = Trace()
    def dma_items(s, lo, hi):
        g, adv = dma_group(s, ntw)
        out = []
        for k in range(lo, min(hi, len(g))):
            pre, it = g[k]
            out.append(([I(pre), I("s_nop 0")] if pre else []) + [it] + [I(x) for x in adv.get(k, [])])
        return out
    pc = Asm()
    pc(f"""
    v_lshlrev_b32 v{V_L16}, 4, {L}
    v_and_b32 v21, 15, {L}
    s_lshl_b32 s83, s81, 14
    v_lshlrev_b32 v22, 7, v21
    v_lshrrev_b32 v24, 1, v21
    v_xor_b32 v24, v24, v23
    v_lshl_add_u32 v22, v24, 4, v22
    v_add_u32 v{V_RX[0]}, s83, v22
    v_xor_b32 v{V_RX[1]}, 64, v{V_RX[0]}
    v_bfe_u32 v21, {L}, 2, 2
    v_lshl_add_u32 v22, v23, 3, v21
    v_and_b32 v24, 3, {L}
    v_lshlrev_b32 v24, 3, v24
    v_lshl_add_u32 v{V_RKW}, v22, 5, v24
    s_lshl_b32 s83, s81, 11
    s_add_u32 s83, s83, {LDS_KW}
    v_add_u32 v{V_RKW}, s83, v{V_RKW}
    v_lshl_add_u32 v22, v22, 8, v24
    v_add_u32 v22, {LDS_W}, v22
    v_and_b32 v25, 1, v23
    v_lshl_or_b32 v1, v25, 2, v21
    s_lshl_b32 s82, s80, 2
    """)
    for j in range(4):
        pc(f"s_add_u32 s83, s82, {j}")
        pc(f"v_xor_b32 v{V_T}, s83, v1")
        pc(f"v_lshl_add_u32 v{V_RW+j}, v{V_T}, 5, v22")
    pc(f"""
    v_add_u32 v{V_R7}, 16384, v{V_R3}
    v_lshl_add_u32 v22, v23, 2, v21
    v_lshl_add_u32 v22, v22, 6, v24
    v_lshl_add_u32 v22, v25, 5, v22
    v_add_u32 v22, {LDS_QS}, v22
    v_xor_b32 v1, 32, v22
    s_cmp_eq_u32 s80, 1
    s_cselect_b64 vcc, -1, 0
    s_movk_i32 s{S_TOG}, 2048
    s_cselect_b32 s{S_TOG}, s{S_TOG}, 0x8000
    v_cndmask_b32 v{V_R3}, v{V_R3}, v22, vcc
    v_cndmask_b32 v{V_R7}, v{V_R7}, v1, vcc
    """)
    p = Asm()
    p(f"""
    v_lshrrev_b32 v1, 3, {L}
    v_lshlrev_b32 v1, 11, v1
    v_bfe_u32 v25, {L}, 1, 2
    v_xor_b32 v25, v25, v23
    v_lshl_add_u32 v1, v25, 5, v1
    v_and_b32 v25, 1, {L}
    v_lshl_add_u32 v{V_DT}, v25, 4, v1
    v_lshl_add_u32 v1, v23, 2, v21
    v_bfe_u32 v25, v1, 1, 2
    v_xor_b32 v25, s{S_W}, v25
    v_lshlrev_b32 v1, 7, v1
    v_lshl_add_u32 v1, v25, 5, v1
    v_add_u32 v1, v1, v24
    v_add_u32 v{V_RT}, {LDS_T}, v1
    s_lshr_b32 s82, s2, 4
    s_and_b32 s83, s2, 15
    s_mul_i32 s{S_TSRC}, s82, {224*2048}
    s_lshl_b32 s90, s83, 7
    s_add_u32 s{S_TSRC}, s{S_TSRC}, s90
    s_lshl_b32 s{S_TSRC2}, s82, 17
    s_add_u32 s{S_TSRC2}, s{S_TSRC2}, s90
    s_mul_i32 s90, s80, {112*2048}
    s_add_u32 s{S_TSRCS}, s{S_TSRC}, s90
    s_lshl_b32 s90, s81, 13
    s_add_u32 s{S_TSRCS}, s{S_TSRCS}, s90
    s_add_u32 s{S_TSRCS}, s{S_TSRCS}, {96*2048}
    s_lshl_b32 s90, s{S_W}, 14
    s_add_u32 s{S_TSRC}, s{S_TSRC}, s90
    s_lshl_b32 s90, s80, 15
    s_add_u32 s{S_TSRC2}, s{S_TSRC2}, s90
    s_lshl_b32 s90, s81, 14
    s_add_u32 s{S_TSRC2}, s{S_TSRC2}, s90
    s_lshr_b32 s90, s83, 1
    s_mul_i32 s90, s90, {144*8192}
    s_and_b32 s83, s83, 1
    s_lshl_b32 s83, s83, 12
    s_add_u32 s90, s90, s83
    s_lshl_b32 s83, s{S_W}, 10
    s_add_u32 s90, s90, s83
    s_add_u32 s90, s90, {WS_WT:#x}
    s_mul_i32 s{S_TDST}, s82, {7*8192}
    s_add_u32 s{S_TDST}, s{S_TDST}, s90
    s_lshl_b32 s{S_TDST2}, s82, 14
    s_add_u32 s{S_TDST2}, s{S_TDST2}, s90
    s_add_u32 s{S_TDST2}, s{S_TDST2}, {112*8192}
    s_lshl_b32 s82, s2, 3
    s_lshl_b32 s83, s{S_W}, 1
    s_add_u32 s82, s82, s83
    s_lshl_b32 s{S_GROW}, s82, 11
    v_lshrrev_b32 v1, 5, {L}
    v_add_u32 v{V_GROW}, s82, v1
    v_lshlrev_b32 v{V_GROW}, 3, v{V_GROW}
    v_add_u32 v{V_GROW}, {WS_G:#x}, v{V_GROW}
    s_lshl_b32 s82, s{S_MT}, 2
    s_add_u32 s82, s82, s{S_W}
    s_lshl_b32 s82, s82, 5
    s_add_u32 s82, s82, s{S_NT}
    s_lshl_b32 s82, s82, 7
    s_add_u32 s{S_FLG}, s82, {WS_FLAG:#x}
    """)
    ps = Asm() if tlb else p
    ps(f"""
    s_and_b32 s82, s{S_NT}, 2
    s_cmp_eq_u32 s82, 0
    s_cselect_b32 s{S_KV}, s60, s62
    s_cselect_b32 s{S_KV+1}, s61, s63
    s_and_b32 s{S_KV+1}, s{S_KV+1}, 0xffff
    s_mov_b32 s{S_KV+2}, 65536
    s_mov_b32 s{S_KV+3}, 0x00020000
    """)
    srd(ps, S_WS, 86, WS_SIZE)
    srd(ps, S_GW, 70, 2048)
    srd(ps, S_WD, 68, 3584*1024*2)
    srd(ps, S_WO, 74, 1024*1024*2)
    srd(ps, S_DBG, 98, 256)
    p(f"""
    v_lshrrev_b32 v21, 1, {L}
    v_lshlrev_b32 v21, 6, v21
    v_and_b32 v22, 1, {L}
    v_lshl_add_u32 v21, v22, 4, v21
    s_and_b32 s82, s{S_NT}, 1
    s_lshl_b32 s82, s82, 5
    s_lshl_b32 s83, s{S_W}, 11
    s_add_u32 s82, s82, s83
    v_add_u32 v{V_DK}, s82, v21
    s_lshl_b32 s82, s{S_MT}, 8
    s_lshr_b32 s83, s{S_NT}, 2
    s_lshl_b32 s83, s83, 5
    s_add_u32 s82, s82, s83
    s_lshl_b32 s83, s80, 4
    s_add_u32 s82, s82, s83
    s_lshl_b32 s82, s82, 11
    s_lshl_b32 s83, s81, 7
    s_add_u32 s82, s82, s83
    v_and_b32 v21, 15, {L}
    v_lshlrev_b32 v22, 11, v21
    v_lshl_add_u32 v22, v23, 4, v22
    v_add_u32 v{V_KX}, s82, v22
    """)
    pt = Asm()
    plain_addr = f"""s_lshl_b32 s82, s{S_MT}, 3
        v_bfe_u32 v24, {L}, 2, 3
        v_add_u32 v24, s82, v24
        v_lshlrev_b32 v21, 11, v24
        v_mul_lo_u32 v24, v24, s84
        v_and_b32 v1, 3, {L}
        v_lshlrev_b32 v1, 7, v1
        v_min_u32 v1, 220, v1
        v_add3_u32 v24, v24, v1, s85
        s_lshl_b32 s82, s{S_NT}, 6
        v_add_u32 v21, s82, v21"""
    lead_addr = f"""s_mov_b32 s{S_TSTEP}, {OOB:#x}
        s_and_b32 s82, s{S_NT}, 3
        s_lshl_b32 s82, s82, 4
        v_lshrrev_b32 v24, 3, {L}
        v_add_u32 v24, s82, v24
        v_mul_lo_u32 v24, v24, s84
        v_and_b32 v1, 7, {L}
        v_min_u32 v1, 6, v1
        v_lshl_add_u32 v24, v1, 7, v24
        s_lshr_b32 s83, s{S_NT}, 2
        s_mul_i32 s90, s83, 896
        v_add_u32 v24, s90, v24
        v_bfe_u32 v21, {L}, 1, 4
        v_add_u32 v21, s82, v21
        v_lshlrev_b32 v21, 11, v21
        v_and_b32 v1, 1, {L}
        v_lshl_add_u32 v21, v1, 7, v21
        s_lshl_b32 s83, s83, 8
        v_add_u32 v21, s83, v21
        s_lshl_b32 s{S_LMASK}, 0x10101, s{S_MT}
        s_cmp_eq_u32 s{S_W}, 0
        s_cselect_b32 s{S_LMASK}, {xmask:#x}, s{S_LMASK}
        s_add_u32 s82, s{S_W}, 1
        s_and_b32 s82, s82, 2
        s_cselect_b32 s{S_T2D}, {8*7168}, s{S_TSTEP}"""
    if touch:
        (pt if tpro else p)(f"""
        s_and_b32 s82, s{S_NT}, 3
        s_lshl_b32 s82, s82, 6
        s_lshl_b32 s83, s{S_MT}, 8
        s_add_u32 s82, s82, s83
        v_add_u32 v25, s82, {L}
        v_lshlrev_b32 v25, 11, v25
        {lead_addr if lead else plain_addr}
        s_mov_b32 s{S_TSTEP}, {64*7168}
        s_cmp_eq_u32 s{S_W}, 0
        s_cselect_b64 vcc, -1, 0
        s_cselect_b32 s{S_TSRD}, s{S_X}, s{S_G}
        s_cselect_b32 s{S_TSRD+1}, s{S_X+1}, s{S_G+1}
        s_cselect_b32 s{S_TSRD+2}, s{S_X+2}, s{S_G+2}
        s_cselect_b32 s{S_TSTEP}, 128, s{S_TSTEP}
        v_cndmask_b32 v{V_T}, v24, v25, vcc
        s_cmp_eq_u32 s{S_W}, 2
        s_cselect_b32 s{S_TSRD}, s{S_U}, s{S_TSRD}
        s_cselect_b32 s{S_TSRD+1}, s{S_U+1}, s{S_TSRD+1}
        s_cmp_eq_u32 s{S_W}, 3
        s_cselect_b64 vcc, -1, 0
        s_cselect_b32 s{S_TSRD}, s{S_WQ}, s{S_TSRD}
        s_cselect_b32 s{S_TSRD+1}, s{S_WQ+1}, s{S_TSRD+1}
        s_cselect_b32 s{S_TSRD+2}, s{S_WQ+2}, s{S_TSRD+2}
        s_cselect_b32 s{S_TSTEP}, 0x20000, s{S_TSTEP}
        v_cndmask_b32 v{V_T}, v{V_T}, v21, vcc
        s_mov_b32 s{S_TSRD+3}, 0x00020000
        s_mul_i32 s{S_TOFF}, s{S_TSTEP}, {3 if lead else 2 if tpro else (touch + 1 if touch >= 2 else touch + 2)}
        """)
    late = []
    for l in [l.strip() for l in p.lines]:
        if late and l.startswith(("s_cselect", "s_addc", "v_cndmask", "s_movk_i32 s50")): late[-1].append(l)
        else: late.append([l])
    late += [[f"v_and_b32 v1, 31, {L}"], ["v_lshlrev_b32 v1, 7, v1"], ["s_lshr_b32 s82, s2, 3"], ["s_and_b32 s82, s82, 15"], ["s_lshl_b32 s82, s82, 12"]]
    d0 = dma_items(0, 0, 17)
    for grp in d0[:tlbpos]: pro.items.extend(grp)
    if tlb:
        for l in ps.lines: pro.ins(l.strip())
        pro.raw(f"""
        s_mov_b32 s80, s96
        s_and_b32 s81, s97, 0xffff
        s_mov_b32 s82, {2048*1024*2:#x}
        s_mov_b32 s83, 0x00020000
        v_lshlrev_b32 v1, {tlb}, {L}
        v_min_u32 v1, 0x7f000000, v1
        """)
        for sr_ in (S_G, S_U, S_WS, S_WD, S_WO, S_KV, S_GW, S_DBG, 80, S_X):
            pro.ins(f"buffer_load_dword a{A_DUM}, v1, s[{sr_}:{sr_+3}], 0 offen")
        pro.raw(f"s_lshr_b32 s81, s{S_W}, 1\ns_and_b32 s80, s{S_W}, 1")
    for grp in d0[tlbpos:]: pro.items.extend(grp)
    for l in pt.lines: pro.ins(l.strip())
    tch = lambda: [I(f"buffer_load_dword a{A_DUM}, v{V_T}, s[{S_TSRD}:{S_TSRD+3}], s{S_TOFF} offen", vm=("touch", 0)), I(f"s_add_u32 s{S_TOFF}, s{S_TOFF}, s{S_TSTEP}")]
    if tpos == 0:
        for _ in range(tpro): pro.items.extend(tch())
    for l in pc.lines: pro.ins(l.strip().replace(f"v{V_T},", "v22x,").replace("v22x", "v19"))
    for grp in dma_items(1, 0, p1): pro.items.extend(grp)
    if tpos == 1:
        for _ in range(tpro): pro.items.extend(tch())
    one_time = [I(f"buffer_load_dword a{A_DUM}, v1, s[{S_KV}:{S_KV+3}], s82 offen"), I(f"buffer_load_dword a{A_DUM}, v1, s[{S_GW}:{S_GW+3}], 0 offen")]
    touch_ins = lambda: I(f"buffer_load_dword a{A_DUM}, v{V_T}, s[{S_TSRD}:{S_TSRD+3}], s{S_TOFF} offen", vm=("touch", 0))
    touch_adv = f"s_add_u32 s{S_TOFF}, s{S_TOFF}, s{S_TSTEP}"
    pro2 = Trace()
    pro2.wait(vm=[("st", 0)])
    pro2.ins("s_barrier")
    pro2.items.extend(reads(0, 0))

    gfast, gslow = _g_ops()
    gslow += ["v_max_f32 v25, 0x2b800000, v25", "v_rcp_f32 v23, v25", "v_mul_f32 v24, v24, v23"]
    GSPLIT = 70
    c_q = struct.unpack("<I", struct.pack("<f", math.log2(math.e) / math.sqrt(32.0)))[0]
    kvfin = [f"v_accvgpr_read_b32 v{21+r}, a{KVA+r}" for r in range(4)]
    for r in range(4): kvfin += [f"v_accvgpr_read_b32 v1, a{KVW+r}", f"v_add_f32 v{21+r}, v{21+r}, v1", f"v_mul_f32 v{21+r}, s84, v{21+r}"]
    kvfin += ["v_cvt_pk_bf16_f32 v22, v21, v22", "v_cvt_pk_bf16_f32 v23, v23, v24",
              f"v_and_b32 v1, 15, {L}", "v_lshlrev_b32 v1, 4, v1", f"v_bfe_u32 v21, {L}, 4, 1", "v_lshl_add_u32 v1, v21, 9, v1",
              f"v_lshrrev_b32 v21, 5, {L}", "v_lshl_add_u32 v1, v21, 3, v1",
              f"buffer_store_dwordx2 v[22:23], v1, s[{S_WS}:{S_WS+3}], s82 offen offset:2048 sc1",
              f"v_bfe_u32 v24, {L}, 3, 1", "v_lshlrev_b32 v24, 10, v24", f"v_bfe_u32 v21, {L}, 2, 1", "v_lshl_add_u32 v24, v21, 9, v24",
              f"v_lshrrev_b32 v21, 4, {L}", "v_lshl_add_u32 v24, v21, 6, v24", f"v_and_b32 v21, 3, {L}", "v_lshl_add_u32 v24, v21, 1, v24",
              f"buffer_store_short v22, v24, s[{S_WS}:{S_WS+3}], s83 offen sc1",
              f"buffer_store_short_d16_hi v22, v24, s[{S_WS}:{S_WS+3}], s83 offen offset:16 sc1",
              f"buffer_store_short v23, v24, s[{S_WS}:{S_WS+3}], s83 offen offset:32 sc1",
              f"buffer_store_short_d16_hi v23, v24, s[{S_WS}:{S_WS+3}], s83 offen offset:48 sc1"]
    kvsal = f"""s_lshl_b32 s82, s{S_MT}, 3
    s_lshr_b32 s83, s{S_NT}, 2
    s_add_u32 s82, s82, s83
    s_lshl_b32 s82, s82, 12
    s_add_u32 s82, s82, {WS_KV:#x}
    s_and_b32 s85, s{S_NT}, 1
    s_lshl_b32 s83, s85, 3
    s_add_u32 s83, s83, s82
    s_lshl_b32 s85, s85, 8
    s_add_u32 s82, s82, s85
    s_lshl_b32 s85, s{S_W}, 10
    s_add_u32 s82, s82, s85
    s_lshl_b32 s85, s{S_W}, 8
    s_add_u32 s83, s83, s85
    s_and_b32 s85, s{S_NT}, 2
    s_cmp_eq_u32 s85, 0
    s_cselect_b32 s84, {c_q:#x}, 1.0
    s_cselect_b32 s82, {OOB:#x}, s82
    s_cselect_b32 s83, s83, {OOB:#x}
    s_cmp_ge_u32 s{S_W}, 2
    s_cselect_b32 s82, {OOB:#x}, s82
    s_cselect_b32 s83, {OOB:#x}, s83""".split("\n")
    kvsal = [x.strip() for x in kvsal]
    kvsal = kvsal[:-7] + ["\n".join(kvsal[-7:-3]), "\n".join(kvsal[-3:])]
    segs = []
    grest = []
    def tstore(q):
        so = S_TDST if q < 7 else S_TDST2
        return [I(f"buffer_store_dwordx4 {ar(TREG[q] if tdefer else A_T,4)}, v{p2.V_L16 if tdefer else V_L16}, s[{S_WS}:{S_WS+3}], s{so} offen sc1", vm=("ts", q)), I(f"s_add_u32 s{so}, s{so}, 8192")]
    for s in range(NST - 1):
        tr = Trace()
        gaps = [[] for _ in range(66)]
        rl = reads(s, 1)
        u = s - KVD
        if 1 <= u <= 8:
            for e in range(2):
                for h in range(2):
                    rl.append(I(f"ds_read_b64_tr_b16 {ar(KVW+4*e+2*h,2)}, v{V_RKW} offset:{(s%2)*8192 + e*1024 + h*128}", lg=("kvf", s)))
        if u == 9:
            gaps[1].append(I(f"v_add_u32 v21, {LDS_KW + 8192*(s%2)}, v{V_L16}"))
            gaps[3].append(I(f"s_lshl_b32 s82, s{S_W}, 10")); gaps[5].append(I("v_add_u32 v22, s82, v21"))
            gaps[7].append(I("s_xor_b32 s82, s82, 2048")); gaps[9].append(I("v_add_u32 v21, s82, v21"))
            rl.append(I(f"ds_write_b128 v22, {ar(KVA,4)}", lg=("kvf", s)))
        for k, it in enumerate(rl): gaps[2*k].append(it)
        gaps[57].append(I(f"v_xor_b32 v{V_R3}, s{S_TOG}, v{V_R3}")); gaps[59].append(I(f"v_xor_b32 v{V_R7}, s{S_TOG}, v{V_R7}"))
        g, adv = dma_group(s + 1, ntw)
        lo = p1 if s == 0 else nhead
        G = 11 if u == 9 else 1
        for k in range(lo, len(g)):
            pre, it = g[k]
            if pre: gaps[G - 1].append(I(pre))
            gaps[G].append(it)
            for x in adv.get(k, []): gaps[G + 1].append(I(x))
            G += tsp0 if s else 4
        G = max(G - (tsp0 if s else 4) + 2, 3)
        if touch and (s >= 1 or tpro) and s + touch + 1 < NST and not (tpro and s + touch + 1 < 2 + tpro):
            if lead:
                for r_ in range(touch if s == 1 else 1):
                    gaps[G - 1].append(I(f"s_bitcmp1_b32 s{S_LMASK}, {s + r_ + lphase}\ns_cselect_b32 s60, s{S_TOFF}, {OOB:#x}"))
                    gaps[G].append(I(f"buffer_load_dword a{A_DUM}, v{V_T}, s[{S_TSRD}:{S_TSRD+3}], s60 offen"))
                    gaps[G + 1].append(I(f"s_add_u32 s60, s60, s{S_T2D}")); gaps[G + 1].append(I(touch_adv))
                    gaps[G + 2].append(I(f"buffer_load_dword a{A_DUM}, v{V_T}, s[{S_TSRD}:{S_TSRD+3}], s60 offen")); G += 4
            else:
              for _ in range(2 if (s == 1 and touch >= 2 and not tpro) else 1):
                gaps[G].append(touch_ins()); gaps[G + 1].append(I(touch_adv)); G += 2
        if tt0 and tt0 <= s < tt0 + 4:
            if s == tt0:
                pre_ = f"""v_lshrrev_b32 v21, 3, {L}
                v_min_u32 v21, 5, v21
                v_lshlrev_b32 v22, 16, v21
                v_cmp_lt_u32 vcc, 2, v21
                v_and_b32 v21, 7, {L}
                v_lshl_add_u32 v22, v21, 11, v22
                v_add_u32 v23, {16*2048}, v22
                v_cndmask_b32 v22, v22, v23, vcc
                v_bfe_u32 v23, {L}, 2, 1
                v_lshl_add_u32 v23, v23, 2, v21
                v_lshlrev_b32 v23, 11, v23
                v_and_b32 v24, 0x1ffff, v22
                s_lshr_b32 s61, s{S_MT}, 1""".split("\n")
                for k_, x in enumerate(pre_): gaps[2*k_ + 1].append(I(x.strip()))
                G = max(G, 28)
            gaps[G - 1].append(I(f"s_cmp_eq_u32 s61, {s - tt0}\ns_cselect_b32 s62, s{S_TSRC}, {OOB:#x}\ns_cselect_b32 s63, s{S_TSRCS}, {OOB:#x}\ns_cselect_b32 s60, s{S_TSRC2}, {OOB:#x}"))
            gaps[G].append(I(f"buffer_load_dword a{A_DUM}, v22, s[{S_WD}:{S_WD+3}], s62 offen")); G += 2
            gaps[G].append(I(f"buffer_load_dword a{A_DUM}, v23, s[{S_WD}:{S_WD+3}], s63 offen")); G += 2
            gaps[G].append(I(f"buffer_load_dword a{A_DUM}, v24, s[{S_WO}:{S_WO+3}], s60 offen")); G += 2
        if 0 <= u <= 7:
            for e in range(2):
                gaps[G].append(I(f"buffer_load_dwordx4 {ar(A_KX + 8*(u%2) + 4*e,4)}, v{V_KX}, s[{S_X}:{S_X+3}], 0 offen offset:{u*256 + e*64}", vm=("kx", u))); G += 2
        q = s - tq0
        if 0 <= q < 9:
            fl = " nt" if ntt else ""
            gaps[G - 1].append(I(f"s_add_u32 m0, s{S_M0T}, {(q%3)*4096}"))
            if q == 6:
                gaps[G - 2].append(I(f"v_lshrrev_b32 v{V_KX}, 5, {L}")); gaps[G - 1].append(I(f"v_lshl_add_u32 v{V_KX}, v{V_KX}, 13, v{V_DT}"))
                gaps[G].append(I(f"buffer_load_dwordx4 v{V_KX}, s[{S_WD}:{S_WD+3}], s{S_TSRCS} offen{fl} lds", vm=("t", q)))
            else:
                srdn, so = (S_WD, S_TSRC) if q < 7 else (S_WO, S_TSRC2)
                gaps[G].append(I(f"buffer_load_dwordx4 v{V_DT}, s[{srdn}:{srdn+3}], s{so} offen{fl} lds", vm=("t", q)))
                gaps[G + 1].append(I(f"s_add_u32 s{so}, s{so}, {48*2048 if q == 2 else 0x10000}"))
            G += 2
        q = s - tq0 - 2
        if 0 <= q < 9 and not tdefer:
            x, y = tstore(q); gaps[G].append(x); gaps[G + 1].append(y); G += 2
        if s == ot:
            for x in one_time: gaps[G].append(x); G += 2
        if s == 2:
            gaps[G - 1].append(I(f"v_mov_b32 v21, s{S_TAG}"))
            gaps[G].append(I(f"s_or_b32 s83, s2, s{S_W}\ns_cselect_b32 s83, {OOB:#x}, 0")); G += 2
            gaps[G].extend([I("s_mov_b64 exec, 1"), I(f"buffer_store_dword v21, off, s[{S_DBG}:{S_DBG+3}], s83 sc1"), I("s_mov_b64 exec, -1")]); G += 2
        if s == (11 if gsm else 6):
            gaps[G].append(I(f"buffer_load_dword a{A_TAG}, off, s[{S_DBG}:{S_DBG+3}], 0 sc1", vm=("zp", 0))); G += 2
        if s == esig + 1:
            gaps[G - 2].append(I(f"s_lshl_b32 s82, s{S_MT}, 5")); gaps[G - 1].append(I(f"s_add_u32 s82, s82, s{S_NT}\ns_lshl_b32 s82, s82, 7")); gaps[G].append(I(f"s_add_u32 s82, s82, {WS_FLAG + 0x28000:#x}"))
            gaps[G + 1].append(I(f"s_cmp_eq_u32 s{S_W}, 0\ns_cselect_b32 s82, s82, {OOB:#x}")); G += 2
            gaps[G].extend([I("s_mov_b64 exec, 1"), I(f"buffer_store_dword a{A_TAG}, off, s[{S_WS}:{S_WS+3}], s82 sc1"), I("s_mov_b64 exec, -1")]); G += 2
        if gsm and s == 10:
            gaps[G].extend([I("s_mov_b32 exec_lo, 1\ns_mov_b32 exec_hi, 1"), I(f"buffer_store_dwordx2 v[24:25], v{V_GROW}, s[{S_WS}:{S_WS+3}], 0 offen sc1"), I("s_mov_b64 exec, -1")]); G += 2
        kvstart = G
        if s == gl:
            for q_ in range(4):
                gaps[G].append(I(f"buffer_load_dwordx4 {ar(A_GX+4*q_,4)}, v{V_L16}, s[{S_X}:{S_X+3}], s{S_GROW} offen offset:{1024*q_}", vm=("g", 0))); G += 2
            for q_ in range(2):
                gaps[G].append(I(f"buffer_load_dwordx4 {ar(A_GW+4*q_,4)}, v{V_L16}, s[{S_GW}:{S_GW+3}], 0 offen offset:{1024*q_}", vm=("g", 0))); G += 2
        assert G < 64, (s, G)
        tr.wait(lg=[("fr", s, 0)] + ([("tf", q)] if 0 <= q < 9 else []) + ([("kvp", 0)] if u == 10 else []))
        vq = []
        if (gl + 2 <= s <= 9) if gsm else s in (gs + 2, gs + 3): vq = gfast
        if u == 10: vq = list(kvfin)
        k = 0
        for j in range(8):
            for i in range(8):
                tr.ins(mfma(0, j, i, first=(s == 0)))
                tr.items.extend(gaps[k])
                cap = vcap(gaps[k])
                if gsm and vq is gfast: cap = 0 if gaps[k] else 1
                if s == 0:
                    for _ in range(2):
                        if late and cap > 0:
                            for l in late.pop(0): tr.ins(l)
                            cap -= 1
                while vq and cap > 0 and not (u == 10 and k < kvstart - 8):
                    if vq[0].startswith("buffer_"):
                        if cap < 2: break
                        tr.ins(vq.pop(0), vm=("kvst", 0)); cap -= 2
                    else:
                        tr.ins(vq.pop(0)); cap -= 1
                k += 1
        if (s >= 9) if gsm else s != gs + 2: assert not vq
        need = [("st", s + 1)]
        if 0 <= s - tq0 - 1 < 9: need.append(("t", s - tq0 - 1))
        if s == (gl + 1 if gsm else gs + 1): need.append(("g", 0))
        if 1 <= u <= 8: need.append(("kx", u - 1))
        if s == (12 if gsm else 7): need.append(("zp", 0))
        if s == esig: need.append(("kvst", 0))
        if pads and s == chain_at: tr.ins("@CHAIN1")
        tr.wait(vm=need, lg=[("fr", s, 1)] + ([("kvf", s)] if 1 <= u <= 9 else []))
        tr.ins("s_barrier")
        segs.append(tr)
        tr = Trace()
        gaps = [[] for _ in range(68)]
        for k, it in enumerate(reads(s + 1, 0)): gaps[2*k + 1].append(it)
        q = s - tq0 - 1
        if 0 <= q < 9:
            for h in range(2):
                gaps[49 + 2*h].append(I(f"ds_read_b64_tr_b16 {ar((TREG[q] if tdefer else A_T)+2*h,2)}, v{V_RT} offset:{(q%3)*4096 + h*2048}", lg=("tf", q)))
        if u == 9:
            gaps[53].append(I(f"ds_read_b128 {ar(KVW,4)}, v21", lg=("kvp", 0)))
            for k, x in enumerate(kvsal): gaps[2*k + 3 if 2*k + 3 < 48 else 55].append(I(x.strip()))
        if s + 2 < NST:
            g, adv = dma_group(s + 2, ntw)
            hg = [hstart + 2*round(k*(62 - hstart)/(2*nhead)) for k in range(nhead)]
            for k in range(nhead):
                pre, it = g[k]
                if pre:
                    if hg[k]: gaps[hg[k] - 1].insert(0, I(pre))
                    else: tr.ins(pre)
                gaps[hg[k]].append(it)
                for x in adv.get(k, []): gaps[hg[k] + 2].append(I(x))
        if s == (12 if gsm else 7):
            gaps[54].append(I(f"v_accvgpr_read_b32 v1, a{A_TAG}"))
            gaps[56].append(I(f"v_cmp_eq_u32 vcc, 0, v1")); gaps[58].append(I("s_cbranch_vccnz KM_ZSPIN\nKM_ZBACK:"))
            gaps[60].append(I(f"v_accvgpr_write_b32 a{A_TAG}, v1")); gaps[62].append(I(f"v_readfirstlane_b32 s{S_TAG}, v1"))
        if s == 14:
            gaps[0].append(I(f"v_lshlrev_b32 v{V_T}, 7, {L}"))
            gaps[2].append(I(f"s_mov_b32 s{S_EF}, {WS_FLAG + 0x28000:#x}"))
            gaps[epos].append(I(f"buffer_load_dword v{V_KX}, v{V_T}, s[{S_WS}:{S_WS+3}], s{S_EF} offen sc1", vm=("ep", 0)))
            if pads:
                gaps[50].append(I("s_getpc_b64 s[32:33]\nKM_PC2:\ns_add_u32 s32, s32, KM_NORM-0x4000-KM_PC2\ns_addc_u32 s33, s33, 0"))
                gaps[52].append(I("s_and_b32 s33, s33, 0xffff")); gaps[53].append(I("s_mov_b32 s34, KM_END-KM_NORM+0x4000"))
                gaps[54].append(I("s_mov_b32 s35, 0x00020000")); gaps[55].append(I(f"s_lshl_b32 s82, s{S_W}, 13"))
                gaps[56].append(I(f"buffer_load_dword a{A_DUM}, v{V_T}, s[32:35], s82 offen"))
        vq = []; slow = []; slow_from = None
        if (gl + 1 <= s <= 8) if gsm else s in (gs + 1, gs + 2): vq = gfast
        if s == (9 if gsm else gs + 3): slow = list(gslow)
        ml = [mfma(1, j, i) for j in range(8) for i in range(8)]
        if 1 <= u <= 8:
            for e in range(2):
                ml.insert(30 + 20*e, f"v_mfma_f32_16x16x32_bf16 {ar(KVA,4)}, {ar(A_KX + 8*((u-1)%2) + 4*e,4)}, {ar(KVW+4*e,4)}, {'0' if (u == 1 and e == 0) else ar(KVA,4)}")
        for k, m in enumerate(ml):
            tr.ins(m)
            tr.items.extend(gaps[k])
            for _ in range((0 if gaps[k] else 1) if (gsm and vq) else vcap(gaps[k])):
                if vq: tr.ins(vq.pop(0))
                elif s == 0 and late:
                    for l in late.pop(0): tr.ins(l)
            if slow and not vq:
                if slow_from is None: slow_from = k + 2
                if k >= slow_from and (k - slow_from) % 2 == 0: tr.ins(slow.pop(0))
        for k in range(len(ml), 68): assert not gaps[k], (s, k)
        assert not slow and not late
        segs.append(tr)

    P = p2
    ec = Trace()
    ec.wait(vm=[("ep", 0)])
    ec.raw(f"""
    v_cmp_ne_u32 vcc, s{S_TAG}, v{V_KX}
    s_and_b32 s80, s2, 7
    s_lshr_b32 s81, s80, 1
    s_lshl_b32 s{P.S_MT}, s{S_MT}, 2
    s_cbranch_vccnz KM_ESPIN
    KM_EBACK:
    s_add_u32 s{P.S_MT}, s{P.S_MT}, s81
    s_lshl_b32 s{P.S_M0KV}, s{S_W}, 13
    s_add_u32 s82, s{P.S_M0KV}, {WS_KV:#x}
    s_add_u32 s{P.S_KVB}, s86, s82
    s_addc_u32 s{P.S_KVB+1}, s87, 0
    v_add_u32 v{V_DK}, 4096, v{V_L16}
    """)
    su2 = f"""
    s_and_b32 s80, s80, 1
    s_lshl_b32 s80, s80, 2
    s_and_b32 s90, s{S_NT}, 3
    s_add_u32 s{P.S_NT}, s80, s90
    s_lshr_b32 s90, s{P.S_MT}, 1
    s_mul_i32 s90, s90, 112
    s_mul_i32 s91, s{S_W}, 28
    s_add_u32 s90, s90, s91
    s_lshl_b32 s90, s90, 13
    s_and_b32 s42, s{P.S_MT}, 1
    s_lshl_b32 s42, s42, 12
    s_add_u32 s90, s90, s42
    s_add_u32 s58, s86, s90\ns_addc_u32 s59, s87, 0
    s_add_u32 s60, s58, 0x2000\ns_addc_u32 s61, s59, 0
    s_add_u32 s62, s58, 0x4000\ns_addc_u32 s63, s59, 0
    s_add_u32 s70, s58, 0x6000\ns_addc_u32 s71, s59, 0
    s_mov_b64 s[{P.S_HB}:{P.S_HB+1}], s[70:71]
    s_mul_i32 s90, s{P.S_NT}, 144
    s_add_u32 s91, s91, s90
    s_lshl_b32 s91, s91, 13
    s_add_u32 s91, s91, {WS_WT:#x}
    s_add_u32 s64, s86, s91\ns_addc_u32 s65, s87, 0
    s_add_u32 s68, s64, 0x2000\ns_addc_u32 s69, s65, 0
    s_mov_b64 s[{P.S_WB}:{P.S_WB+1}], s[68:69]
    s_add_u32 s{P.S_XB}, s64, {P.SF0*8192}\ns_addc_u32 s{P.S_XB+1}, s65, 0
    s_lshl_b32 s91, s{S_W}, 3
    s_add_u32 s90, s90, s91
    s_lshl_b32 s90, s90, 13
    s_add_u32 s90, s90, {WS_WT + 112*8192:#x}
    s_add_u32 s{P.S_WOB}, s86, s90\ns_addc_u32 s{P.S_WOB+1}, s87, 0
    s_mul_i32 s{P.S_M0SP}, s{S_W}, 24576
    s_add_u32 s{P.S_M0SP}, s{P.S_M0SP}, {P.LDS_SP}
    s_mov_b32 s{P.S_SPM}, s{P.S_M0SP}
    s_add_u32 s{P.S_M0C}, s{P.S_M0KV}, 0x8000
    s_mov_b32 s{P.S_CNT}, 6
    s_add_u32 s66, s{P.S_WOB}, {(P.SF0 + 3 - P.NDOWN)*8192}\ns_addc_u32 s67, s{P.S_WOB+1}, 0
    s_mov_b32 s{P.S_OUT}, s96
    s_and_b32 s{P.S_OUT+1}, s97, 0xffff
    s_mov_b32 s{P.S_OUT+2}, {2048*1024*2:#x}
    s_mov_b32 s{P.S_OUT+3}, 0x00020000
    s_mov_b32 s{P.S_OF}, s{S_FLG}
    s_lshl_b32 s90, s{P.S_MT}, 12
    s_add_u32 s{P.S_OP}, s90, {WS_FLAG:#x}
    s_lshl_b32 s90, s{S_W}, 13
    s_add_u32 s{P.S_HP}, s90, {WS_FLAG + 0x20000:#x}
    s_lshl_b32 s90, s2, 7
    s_add_u32 s90, s90, {WS_FLAG + 0x20000:#x}
    s_cmp_eq_u32 s{S_W}, 0\ns_cselect_b32 s{P.S_HF}, s90, {OOB:#x}
    """
    su2 = [x.strip() for x in su2.strip().split("\n    ")]

    def last_stage(wn):
        tr = Trace()
        s = NST - 1
        su = f"""
        s_lshr_b32 s81, s{S_W}, 1
        s_lshl_b32 s82, s{S_MT}, 1
        s_add_u32 s82, s82, s81
        s_mul_i32 s82, s82, 112
        s_lshr_b32 s83, s{S_NT}, 1
        s_mul_i32 s83, s83, 7
        s_add_u32 s82, s82, s83
        s_and_b32 s84, s{S_NT}, 1
        s_add_u32 s85, s82, 6
        s_lshl_b32 s85, s85, 13
        s_mul_i32 s83, s84, 3
        s_add_u32 s82, s82, s83
        s_add_u32 s82, s82, {2*wn}
        s_lshl_b32 s82, s82, 13
        s_add_u32 s83, s82, 8192
        """
        if wn:
            su += f"""
            s_lshl_b32 s84, s84, 9
            s_add_u32 s85, s85, s84
            v_and_b32 v21, 15, {L}
            v_lshlrev_b32 v21, 4, v21
            v_bfe_u32 v24, {L}, 4, 1
            v_lshl_add_u32 v22, v24, 9, v21
            v_lshl_add_u32 v21, v24, 10, v21
            v_lshrrev_b32 v24, 5, {L}
            v_lshl_add_u32 v22, v24, 10, v22
            v_lshl_add_u32 v21, v24, 8, v21
            s_lshl_b32 s81, s81, 13
            s_add_u32 s81, s81, {P.LDS_Q}
            v_add_u32 v22, s81, v22
            v_add_u32 v23, 4096, v21
            """
        setup = [l.strip() for l in su.strip().split("\n") if l.strip()] + su2
        ffn = lambda t, i: dict(kind="f", t=t, i=i, mf=[(2*t, i), (4 + 2*t, i), (2*t + 1, i), (5 + 2*t, i)])
        if wn == 0:
            halves = [[ffn(0, i) for i in range(8)], [ffn(1, i) for i in range(8)]]
        else:
            halves = [[dict(kind="q", i=i, mf=[(3, i), (7, i)]) for i in range(8)] +
                      [dict(kind="s", i=i, mf=[(2, i), (6, i), (2, i + 1), (6, i + 1)]) for i in range(0, 8, 2)],
                      [ffn(0, i) for i in range(8)]]
        pieces = halves[0] + halves[1]
        half = len(halves[0])
        jsets = [sorted(set(j for pc in hv for j, _ in pc["mf"])) for hv in halves]
        def piece_ops(pc, pk):
            o = []
            i = pc["i"]
            tmp = 12 + 4*(i % 2)
            def reg(j, i):
                p_, b = accn(j, i)
                if p_ == "v": return b
                for r in range(4): o.append(f"v_accvgpr_read_b32 v{tmp+r}, a{b+r}")
                return tmp
            r_ = [reg(j, i_) for j, i_ in pc["mf"]]
            if pc["kind"] == "q":
                g0_, g1_ = r_
            else:
                g0_, u0, g1_, u1 = r_
                for g_, u_ in ((g0_, u0), (g1_, u1)):
                    for r in range(4): o.append(f"v_max_f32 v{g_+r}, 0, v{g_+r}")
                    if pk:
                        o.append(f"v_pk_mul_f32 {vr(g_,2)}, {vr(g_,2)}, {vr(u_,2)}")
                        o.append(f"v_pk_mul_f32 {vr(g_+2,2)}, {vr(g_+2,2)}, {vr(u_+2,2)}")
                    else:
                        for r in range(4): o.append(f"v_mul_f32 v{g_+r}, v{g_+r}, v{u_+r}")
            o += [f"v_cvt_pk_bf16_f32 v{g0_}, v{g0_}, v{g0_+1}", f"v_cvt_pk_bf16_f32 v{g0_+1}, v{g0_+2}, v{g0_+3}",
                  f"v_cvt_pk_bf16_f32 v{g0_+2}, v{g1_}, v{g1_+1}", f"v_cvt_pk_bf16_f32 v{g0_+3}, v{g1_+2}, v{g1_+3}"]
            if pc["kind"] == "q":
                o.append(f"ds_write_b128 v22, {vr(g0_,4)} offset:{(i//2)*2048 + (i%2)*256}")
            elif pc["kind"] == "s":
                o += ["s_nop 1", f"v_permlane16_swap_b32 v{g0_}, v{g0_+2}", f"v_permlane16_swap_b32 v{g0_+1}, v{g0_+3}",
                      f"buffer_store_dwordx4 {vr(g0_,4)}, {'v21' if i < 4 else 'v23'}, s[{S_WS}:{S_WS+3}], s85 offen offset:{(i%4)*1024} sc1"]
            else:
                o.append(f"buffer_store_dwordx4 {vr(g0_,4)}, {'v%d' % (V_L16 if i < 4 else V_DK)}, s[{S_WS}:{S_WS+3}], {'s82' if pc['t'] == 0 else 's83'} offen offset:{(i%4)*1024} sc1")
            return o
        rl = [xread(s, 1, i) for i in range(8)]
        for j in jsets[0]: rl += [wread(s, 1, j, 0), wread(s, 1, j, 1)]
        for x in rl: x["lg"] = ("frA", 0)
        for j in jsets[1]: rl += [wread(s, 1, j, 0), wread(s, 1, j, 1)]
        kv0 = []
        for part in range(2):
            cl = [P.kv_dma(0, part, j) for j in range(4)]
            for x in cl: x["text"] = x["text"].replace(f"v{P.V_L16},", f"v{V_L16},").replace(f"v{P.V_L16B},", f"v{V_DK},")
            kv0.append(cl)
        q = s - tq0 - 2
        tr.wait(lg=[("fr", s, 0)] + ([("tf", q)] if 0 <= q < 9 else []))
        first = []
        if gs + 4 == s and not gsm:
            first.append([I("s_mov_b32 exec_lo, 1\ns_mov_b32 exec_hi, 1"), I(f"buffer_store_dwordx2 v[24:25], v{V_GROW}, s[{S_WS}:{S_WS+3}], 0 offen sc1", vm=("hst", 0)), I("s_mov_b64 exec, -1")])
        if 0 <= q < 9 and not tdefer: first.append([tstore(q)[0]])
        for k, (j, i) in enumerate([(j, i) for j in jsets[0] for i in range(8)]):
            tr.ins(mfma(0, j, i))
            if first:
                tr.items.extend(first.pop(0)); continue
            if k in (26, 29): tr.ins(f"s_add_u32 m0, s{P.S_M0KV}, {4096 if k == 29 else 0}")
            elif k in (27, 30): tr.items.extend(kv0.pop(0))
            elif rl: tr.items.append(rl.pop(0))
            for _ in range(2):
                if setup: tr.ins(setup.pop(0))
        assert not rl
        tr.items.extend(adv64(P.S_KVB, 32768))
        for x in setup: tr.ins(x)
        tr.wait(lg=[("frA", 0)])
        ml = []
        for pi, pc in enumerate(pieces):
            if pi == half:
                ml.append((W(lg=[("fr", s, 1)]), None))
                ml += [(mfma(0, j, i), None) for j in jsets[1] for i in range(8)]
            for j, i in pc["mf"]: ml.append((mfma(1, j, i), pi))
        done_at = {}; cnt = 0; vq = []; nextp = 0
        def put(x):
            tr.ins(x, vm=("hst", 0) if x.startswith("buffer_") else None, lg=("qw", 0) if x.startswith("ds_") else None)
        for k, (m, pi) in enumerate(ml):
            if isinstance(m, dict):
                tr.items.append(m); continue
            tr.ins(m); cnt += 1
            if pi is not None and (k + 1 == len(ml) or ml[k + 1][1] != pi): done_at[pi] = cnt
            budget = 2
            while budget > 0:
                if not vq and nextp in done_at and cnt - done_at[nextp] >= 9:
                    vq = piece_ops(pieces[nextp], False); nextp += 1
                if not vq: break
                c_ = 2 if vq[0].startswith(("buffer_", "ds_")) else 1
                if c_ > budget: break
                put(vq.pop(0)); cnt += 1; budget -= c_
        for x in vq: put(x); cnt += 1
        while nextp < len(pieces):
            if cnt - done_at[nextp] < 9: tr.ins("s_nop 7"); cnt += 8
            for x in piece_ops(pieces[nextp], True): put(x); cnt += 1
            nextp += 1
        return tr
    l0, l1 = last_stage(0), last_stage(1)

    L2 = f"v{P.V_LANE}"
    h2 = Trace()
    h2.raw(f"""
    v_mov_b32 {L2}, {L}
    v_mov_b32 v{P.V_L16}, v{V_L16}
    v_mov_b32 v{P.V_L16B}, v{V_DK}
    v_mov_b32 v{P.V_KVR}, v{V_L16}
    s_lshl_b32 s80, s{S_W}, 12
    s_add_u32 s80, s80, {P.LDS_Q}
    v_add_u32 v24, s80, v{V_L16}
    """)
    h2.wait(vm=[("kv", 0)])
    h2.raw("s_waitcnt lgkmcnt(0)\ns_barrier")
    for q in range(4): h2.ins(f"ds_read_b128 {ar(P.A_Q + 4*q,4)}, v24 offset:{q*1024}", lg=("q", 0))
    for half in range(2): h2.items.append(P.k_read(0, half))
    for half in range(2): h2.items.append(P.v_read(0, half))
    for pp in range(4):
        h2.raw(f"""
        s_add_u32 s80, s{S_W}, {pp}
        s_and_b32 s80, s80, 3
        s_lshl_b32 s80, s80, 11
        v_add_u32 v{P.V_W+pp}, s80, v{P.V_L16}
        """)
    h2.wait(lg=[("k", 0)])
    h2.ins(P.qk(0, 0)); h2.ins(P.qk(0, 1))
    for q in range(4):
        h2.ins(f"v_add_u32 v{P.V_SP+q}, s{P.S_M0SP}, v{P.V_W+q}")
        h2.ins(f"v_add_u32 v{P.V_KP+q}, s{P.S_M0KV}, v{P.V_W+q}")
    h2.raw(f"""
    v_bfe_u32 v26, {L2}, 4, 1
    v_bfe_u32 v27, {L2}, 2, 1
    v_cmp_eq_u32 vcc, v26, v27
    v_mov_b32 v26, 0x3f803f80
    s_lshl_b32 s40, s{P.S_MT}, 9
    s_add_u32 s40, s40, {WS_G:#x}
    v_cndmask_b32 v26, 0, v26, vcc
    """)
    for r in range(4): h2.ins(f"v_accvgpr_write_b32 a{P.A_SEL+r}, v26")
    h2.raw(f"""
    s_lshl_b32 s41, s{S_MT}, 11
    s_lshl_b32 s80, s{S_W}, 9
    s_add_u32 s41, s41, s80
    s_add_u32 s41, s41, {WS_G:#x}
    v_and_b32 v26, 31, {L2}
    v_lshlrev_b32 v26, 3, v26
    v_and_b32 v27, 15, {L2}
    v_lshlrev_b32 v27, 3, v27
    v_lshlrev_b32 v25, 7, {L2}
    v_mov_b32 v24, s{S_TAG}
    """)
    def rebase(x, frm, to):
        x["text"] = x["text"].replace(f"s[{frm}:{frm+1}]", f"s[{to}:{to+1}]"); return x
    wl = lambda sg, J0, b: [rebase(P.w_load(sg, J), P.S_WB, b) for J in range(J0, J0 + 4)]
    hl = lambda sg, b: [rebase(P.h_load(sg, i), P.S_HB, b) for i in range(4)]
    early = []
    timed = [(1 + q // 3, tstore(q)) for q in range(9)] if tdefer else []
    if tp2:
        LT2 = 81920
        h2.raw(f"""
        v_lshrrev_b32 v17, 5, {L2}
        v_lshl_add_u32 v17, v17, 13, v{V_DT}
        v_add_u32 v{V_RT}, {LT2 - LDS_T}, v{V_RT}
        s_add_u32 s{S_M0T}, s{S_M0T}, {LT2 - LDS_T}
        """)
        fl = " nt" if ntt else ""
        for q in range(9):
            it_ = [I(f"s_add_u32 m0, s{S_M0T}, {q*4096}"), I("s_nop 0")]
            if q == 6: it_.append(I(f"buffer_load_dwordx4 v17, s[{S_WD}:{S_WD+3}], s{S_TSRCS} offen{fl} lds", vm=("t", q)))
            else:
                srdn, so = (S_WD, S_TSRC) if q < 7 else (S_WO, S_TSRC2)
                it_ += [I(f"buffer_load_dwordx4 v{V_DT}, s[{srdn}:{srdn+3}], s{so} offen{fl} lds", vm=("t", q)), I(f"s_add_u32 s{so}, s{so}, {48*2048 if q == 2 else 0x10000}")]
            timed.append((1 + q // 3, it_))
        timed.append((tb, [W(vm=[("t", 8)]), I("s_barrier")]))
        for q in range(9):
            timed.append((tb + q // 3, [I(f"ds_read_b64_tr_b16 {ar(P.A_WR + 4*q + 2*h,2)}, v{V_RT} offset:{q*4096 + h*2048}", lg=("tf", q)) for h in range(2)]))
        for q in range(9):
            so = S_TDST if q < 7 else S_TDST2
            timed.append((tb + 3 + q // 3, [W(lg=[("tf", q)]), I(f"buffer_store_dwordx4 {ar(P.A_WR + 4*q,4)}, v{P.V_L16}, s[{S_WS}:{S_WS+3}], s{so} offen sc1", vm=("ts", q)), I(f"s_add_u32 s{so}, s{so}, 8192")]))
    timed += [(hsig, [W(vm=[("hst", 0), ("ts", 8)]), I("s_barrier"), I("s_mov_b64 exec, 1"), I(f"buffer_store_dword v24, off, s[{S_WS}:{S_WS+3}], s{P.S_HF} sc1"), I("s_mov_b64 exec, -1")]),
             (hpoll, [I(f"buffer_load_dword v28, v25, s[{S_WS}:{S_WS+3}], s{P.S_HP} offen sc1", vm=("hp", 0))]),
             (hpoll + 2, [W(vm=[("hp", 0)]), I(f"v_cmp_ne_u32 vcc, s{S_TAG}, v28"), I("s_nop 0"), I("s_cbranch_vccnz KM_HSPIN"), I("KM_HBACK:"), I("s_barrier")] + hl(0, 58)),
             (hpoll + 2, wl(0, 0, 64)), (hpoll + 3, wl(0, 4, 64)), (hpoll + 4, wl(1, 0, 68)), (hpoll + 5, wl(1, 4, 68)),
             (hpoll + 6, hl(1, 60)), (hpoll + 7, hl(2, 62)), (hpoll + 8, hl(3, 70)),
             (hpoll + 12, [I(f"buffer_load_dword v{P.V_G+hh}, v26, s[{S_WS}:{S_WS+3}], s41 offen offset:{hh*256} sc1", vm=("g2", 0)) for hh in range(2)]),
             (hpoll + 13, [I(f"buffer_load_dword v{P.V_OMG+i}, v27, s[{S_WS}:{S_WS+3}], s40 offen offset:{4 + i*128} sc1", vm=("g2", 0)) for i in range(4)])]
    NDOWN = P.NDOWN
    xl = [([P.x_base(sg)] if J0 == 0 else []) + [P.w_load(sg, J) for J in range(J0, J0 + 4)] for sg in (NDOWN + 6, NDOWN + 7) for J0 in (0, 4)]
    def xfix(grps, s):
        for g_ in grps:
            for x in g_: x["text"] = x["text"].replace(f"s[{P.S_XB}:{P.S_XB+1}]", "s[52:53]").replace(f"s_add_u32 s{P.S_XB},", "s_add_u32 s52,").replace(f"s_addc_u32 s{P.S_XB+1},", "s_addc_u32 s53,")
        return grps
    xfix(xl, 0)
    if xhead:
        timed = timed[:-2] + [(hpoll + 9 + k, xl.pop(0)) for k in range(4)] + [(hpoll + 13, timed[-2][1]), (hpoll + 14, timed[-1][1])]
    headseg = P.segment(0, 32, 0, 32*P.NHEAD, g0, timed)
    bodies = [P.segment(16*it, 16*it + 16, 32*(P.NHEAD + 4*(it - 2)), 32*(P.NHEAD + 4*(it - 1)), 16*it, loop=True) for it in range(2, 8)]
    for b_ in bodies: b_.ins(f"s_cmp_lg_u32 s{P.S_CNT}, 0")
    NDOWN, NWO, ACC = P.NDOWN, P.NWO, P.ACC
    t1 = Trace()
    n = P.NSLOT - 1
    t1.wait(lg=[("v", 63)])
    t1.ins("s_nop 1")
    t1.ins(P.pv(n, 0)); t1.ins(P.summ(n, 0)); t1.ins(P.pv(n, 1)); t1.ins(P.summ(n, 1))
    VO = P.V_O
    q_ = Trace()
    q_.raw(f"""
    v_bfe_u32 v26, {L2}, 4, 1
    s_lshl_b32 s78, s{S_MT}, 1
    v_lshlrev_b32 v26, 10, v26
    s_lshr_b32 s79, s{S_W}, 1
    v_and_b32 v27, 15, {L2}
    s_add_u32 s78, s78, s79
    v_lshl_add_u32 v26, v27, 4, v26
    s_lshl_b32 s78, s78, 5
    v_lshrrev_b32 v27, 5, {L2}
    s_add_u32 s78, s78, s{S_NT}
    v_lshl_add_u32 v26, v27, 8, v26
    s_lshl_b32 s78, s78, 13
    s_and_b32 s79, s{S_W}, 1
    s_lshl_b32 s79, s79, 12
    s_add_u32 s78, s78, s79
    s_add_u32 s54, s78, {WS_O:#x}
    s_mov_b32 s78, 0x1f800000
    s_mov_b32 s79, 0x5f800000
    s_mov_b32 s55, 0
    v_accvgpr_read_b32 v80, a{P.A_L}
    v_accvgpr_read_b32 v81, a{P.A_L+4}
    """)
    q_.wait(vm=[("g2", 0)])
    q_.raw(f"""
    v_min_f32 v83, v80, v81
    v_max_f32 v84, v80, v81
    v_add_f32 v85, v80, v81
    v_cmp_nle_f32 s[82:83], s78, v83
    v_cmp_nge_f32 s[84:85], s79, v84
    v_cmp_u_f32 vcc, v85, v85
    """)
    q_.ins("s_nop 1\ns_or_b64 s[82:83], s[82:83], s[84:85]\ns_or_b64 vcc, vcc, s[82:83]\ns_cbranch_vccnz KM_FALLBACK\nKM_NORM:\nv_rcp_f32 v80, v80")
    q_.raw(f"""
    v_rcp_f32 v82, v81
    v_mul_f32 v80, v80, v{P.V_G}
    v_mul_f32 v82, v82, v{P.V_G+1}
    """)
    for hh in range(2):
        for pc in range(2):
            b = VO + 16*hh + 8*pc
            for r in range(8): q_.ins(f"v_mul_f32 v{b+r}, v{b+r}, v{80+2*hh}")
            for q in range(4): q_.ins(f"v_cvt_pk_bf16_f32 v{64+8*hh+4*pc+q}, v{b+2*q}, v{b+2*q+1}")
            q_.ins(f"buffer_store_dwordx4 {vr(64+8*hh+4*pc,4)}, v26, s[{S_WS}:{S_WS+3}], s54 offen offset:{hh*2048 + pc*512} sc1", vm=("ost", 0))
    vq = q_.items
    nA, nB = nb
    stepsA = [P.gemm_step(s, vq=vq) for s in range(NIN, NIN + nA)]
    t2 = Trace()
    t2.items.extend(vq)
    t2.ins("s_nop 1")
    for q in range(4):
        t2.ins(f"v_mfma_f32_16x16x32_bf16 v[84:87], {ar(P.A_SEL,4)}, {vr(64+4*q,4)}, {'0' if q == 0 else 'v[84:87]'}")
    stepsA.append(t2)
    polli = lambda: I(f"buffer_load_dword v28, v25, s[{S_WS}:{S_WS+3}], s{P.S_OP} offen sc1", vm=("op", 0))
    x33 = xfix([[P.x_base(NDOWN + 5)] + [P.w_load(NDOWN + 5, J) for J in range(4)], [P.w_load(NDOWN + 5, J) for J in range(4, 8)]], 0)
    stepsB = [P.gemm_step(s, extra=x33 if s == NIN + nA else [], late=[polli()] if s == NIN + nA + nB - 1 else []) for s in range(NIN + nA, NIN + nA + nB)]
    assert not xl
    sig = Trace()
    sig.raw(f"""
    v_and_b32 v25, 31, {L2}
    v_lshlrev_b32 v25, 7, v25
    s_lshr_b32 s78, s{P.S_MT}, 1
    s_lshl_b32 s78, s78, 18
    s_add_u32 s78, s78, s42
    s_lshl_b32 s79, s{S_W}, 16
    s_add_u32 s78, s78, s79
    s_add_u32 s78, s78, {WS_O:#x}
    s_add_u32 s56, s86, s78
    s_addc_u32 s57, s87, 0
    """)
    sig.raw(f"""
    v_sub_f32 v84, v84, v84
    s_cmp_lg_u32 s55, 0
    v_cmp_u_f32 vcc, v84, v84
    s_cbranch_scc1 KM_CHECKED
    s_cbranch_vccnz KM_FALLBACK2
    KM_CHECKED:
    """)
    sig.wait(vm=[("ost", 0)])
    sig.raw(f"""
    s_mov_b64 exec, 1
    buffer_store_dword v24, off, s[{S_WS}:{S_WS+3}], s{P.S_OF} sc1
    s_mov_b64 exec, -1
    """)
    t3 = Trace()
    t3.wait(vm=[("op", 0)])
    t3.raw(f"""
    v_cmp_ne_u32 vcc, s{S_TAG}, v28
    s_nop 0
    s_cbranch_vccnz KM_OSPIN
    KM_OBACK:
    """)
    ol = []
    for s in range(NDOWN, NDOWN + NWO):
        ol.append([rebase(P.h_load(s, i), P.S_HB, 56) for i in range(4)] + (adv64(56, 8192) if s < NDOWN + NWO - 1 else []))
    t4 = Trace()
    for grp in ol[:opre]: t4.items.extend(grp)
    k = opre
    stepsC = []
    for s in range(NIN + nA + nB, NDOWN):
        ex = []
        while len(ex) < 2 and k < 5: ex.append(ol[k]); k += 1
        stepsC.append(P.gemm_step(s, ex))
    wos = []
    for s in range(NDOWN, NDOWN + 4):
        ex = []
        while len(ex) < 2 and k < NWO: ex.append(ol[k]); k += 1
        wos.append(P.gemm_step(s, ex))
    ph = Trace()
    su = Asm()
    for pp in range(1, 4):
        su(f"s_add_u32 s78, s{S_W}, {pp}\ns_and_b32 s78, s78, 3\ns_mul_i32 s78, s78, 24576\ns_add_u32 s78, s78, {(pp-1)*8192}\nv_add_u32 v{26+pp}, s78, v{P.V_L16}")
    su(f"""
    s_mul_i32 s78, s{S_W}, 24576
    v_add_u32 v26, s78, v{P.V_L16}
    s_lshl_b32 s78, s{P.S_MT}, 17
    s_lshl_b32 s79, s{P.S_NT}, 8
    s_add_u32 s78, s78, s79
    s_lshl_b32 s79, s{S_W}, 6
    s_add_u32 s78, s78, s79
    s_add_u32 s79, s78, 0x8000
    s_add_u32 s80, s78, 0x10000
    s_add_u32 s81, s78, 0x18000
    v_and_b32 v30, 15, {L2}
    v_lshlrev_b32 v30, 11, v30
    v_bfe_u32 v25, {L2}, 4, 1
    v_lshl_add_u32 v30, v25, 5, v30
    v_lshrrev_b32 v25, 5, {L2}
    v_lshl_add_u32 v30, v25, 4, v30
    """)
    su = [l.strip() for l in su.lines]
    S2 = list(range(NDOWN + 4, NDOWN + 8))
    ph.wait(vm=[("w", s, J) for s in S2[1:] for J in range(8)], lg=[("w", s, J) for s in S2[:1] for J in range(8)])
    ph.ins("s_barrier")
    R0, R1, R2 = ACC + 32, ACC + 64, ACC + 96
    assert ph2new
    for idx, pp in enumerate((1, 2, 3, 0)):
        fill = [[] for _ in range(32)]
        if idx == 0:
            for q, x in enumerate(su): fill[q].append(I(x))
        else:
            prev = (1, 2, 3)[idx - 1]
            for t in range(8):
                fill[(4 + 3*t) if idx < 3 or not ph2new else (1 + t + (3 if t >= 4 else 0))].append(I(f"ds_write_b128 v{26+prev}, {vr(ACC + (prev*8 + t)*4, 4)} offset:{t*1024}", lg=("rw", prev)))
        if idx == 3:
            rd = [I(f"ds_read_b128 {vr((R0, R1, R2)[s_] + t*4, 4)}, v26 offset:{s_*8192 + t*1024}", lg=("rr", s_)) for s_ in range(3) for t in range(8)]
            if ph2new:
                for k_, x in enumerate(rd[:16]): fill[12 + k_ // 2].append(x)
                fill[21] += [W(lg=[("rw", 3)]), I("s_barrier")]
                for k_, x in enumerate(rd[16:]): fill[22 + k_ // 2].append(x)
                fill[26].append(W(lg=[("rr", 1)]))
                for k_ in range(10): fill[26 + k_ // 2].append(I(f"v_add_f32 v{R0+k_}, v{R0+k_}, v{R1+k_}"))
            else:
                free = [g for g in range(32) if not fill[g]]
                for x, g in zip(rd[:16], free): fill[g].append(x)
            ph.wait(lg=[("rw", 2)])
            ph.ins("s_barrier")
        mu = 0
        for s in S2:
            if idx == 0: ph.wait(vm=[("h", s, i) for i in range(4)])
            for J in (2*pp, 2*pp + 1):
                for i in range(4):
                    ph.ins(P.gemm_mfma(s, J, i, False)); ph.items.extend(fill[mu]); mu += 1
    if ph2new:
        for r in range(10, 32, 2): ph.ins(f"v_pk_add_f32 {vr(R0+r,2)}, {vr(R0+r,2)}, {vr(R1+r,2)}")
        ph.wait(lg=[("rr", 2)])
        for r in range(0, 32, 2): ph.ins(f"v_pk_add_f32 {vr(R0+r,2)}, {vr(R0+r,2)}, {vr(R2+r,2)}")
    else:
        ph.wait(lg=[("rw", 3), ("rr", 1)])
        ph.ins("s_barrier")
        ph.items.extend(rd[16:])
        for r in range(0, 32, 2): ph.ins(f"v_pk_add_f32 {vr(R0+r,2)}, {vr(R0+r,2)}, {vr(R1+r,2)}")
        ph.wait(lg=[("rr", 2)])
        for r in range(0, 32, 2): ph.ins(f"v_pk_add_f32 {vr(R0+r,2)}, {vr(R0+r,2)}, {vr(R2+r,2)}")
    for i in range(4):
        b0, b1 = ACC + i*4, ACC + (4 + i)*4
        d = 64 + i*4
        om = P.V_OMG + i
        for b in (b0, b0 + 2, b1, b1 + 2):
            ph.ins(f"v_pk_add_f32 {vr(b,2)}, {vr(b,2)}, {vr(b + 32,2)}")
        for b in (b0, b0 + 2, b1, b1 + 2):
            ph.ins(f"v_pk_mul_f32 {vr(b,2)}, {vr(b,2)}, {vr(om,2)} op_sel_hi:[1,0]" if om % 2 == 0 else f"v_pk_mul_f32 {vr(b,2)}, {vr(b,2)}, {vr(om-1,2)} op_sel:[0,1] op_sel_hi:[1,1]")
        ph.raw(f"""
        v_cvt_pk_bf16_f32 v{d}, v{b0}, v{b0+1}
        v_cvt_pk_bf16_f32 v{d+1}, v{b0+2}, v{b0+3}
        v_cvt_pk_bf16_f32 v{d+2}, v{b1}, v{b1+1}
        v_cvt_pk_bf16_f32 v{d+3}, v{b1+2}, v{b1+3}
        s_nop 1
        v_permlane16_swap_b32 v{d}, v{d+2}
        v_permlane16_swap_b32 v{d+1}, v{d+3}
        buffer_store_dwordx4 {vr(d,4)}, v30, s[{P.S_OUT}:{P.S_OUT+3}], s{78+i} offen sc1 nt
        """)
    head = [pro, pro2] + segs + [ec]
    rest = [h2, headseg] + bodies + [t1] + stepsA + [sig] + stepsB + [t3, t4] + stepsC + wos + [ph]
    import copy
    resolve(head + [l0] + rest)
    saved = [[(x.get("wvm"), x.get("wlg")) for x in seg.items] for seg in rest]
    resolve(head + [l1] + rest)
    for seg, sv in zip(rest, saved):
        for x, (v, l) in zip(seg.items, sv):
            if x["text"] is None:
                mn = lambda p, q: q if p is None else p if q is None else min(p, q)
                x["wvm"], x["wlg"] = mn(x["wvm"], v), mn(x["wlg"], l)
    emit_trace(a, [pro]); st.stamp()
    if pads:
        a("s_branch KM_BODY")
        a.lines.append(".p2align 12")
        a.label("KM_BODY")
    if al1 is not None:
        a.lines.append(".p2align 6")
        for _ in range(al1): a("s_nop 0")
    emit_trace(a, [pro2]); st.stamp()
    for k, tr in enumerate(segs):
        if 'wv' in exp and k % 2 == 0 and wv0 <= k // 2 < wv0 + 5:
            t_ = Trace(); t_.items = tr.items[:-2]; emit_trace(a, [t_]); st.stamp()
            t_.items = tr.items[-2:-1]; emit_trace(a, [t_]); st.stamp()
            t_.items = tr.items[-1:]; emit_trace(a, [t_]); st.stamp()
            continue
        emit_trace(a, [tr])
        if 'stg' in exp and k % 2 == 0: st.stamp()
    st.stamp()
    emit_trace(a, [ec])
    if 'ec' in exp: st.stamp()
    a(f"s_bitcmp1_b32 s{S_W}, 0")
    a("s_cbranch_scc1 KM_LAST1")
    emit_trace(a, [l0])
    a("s_branch KM_P2")
    a.label("KM_LAST1")
    emit_trace(a, [l1])
    if al2 is not None:
        a.lines.append(".p2align 6")
        for _ in range(al2): a("s_nop 0")
    a.label("KM_P2")
    st.stamp()
    if pads: a.lines.append("@CHAIN2")
    emit_trace(a, [h2]); st.stamp()
    b = Asm(); emit_trace(b, [headseg])
    for l in b.lines:
        a.lines.append(l)
        if 'its' in exp and l.strip() in ("s_barrier", "KM_HBACK:"): st.stamp()
    st.stamp()
    a.lines.append(".p2align 6")
    a.label("KM_LOOP")
    emit_trace(a, bodies)
    a("s_cbranch_scc1 KM_LOOP")
    st.stamp()
    emit_trace(a, [t1]); st.stamp()
    for seg in stepsA + [sig]: emit_trace(a, [seg])
    st.stamp()
    for seg in stepsB: emit_trace(a, [seg])
    st.stamp()
    emit_trace(a, [t3]); st.stamp()
    for seg in [t4] + stepsC: emit_trace(a, [seg])
    st.stamp()
    for seg in wos: emit_trace(a, [seg])
    st.stamp()
    b = Asm(); emit_trace(b, [ph])
    nm = 0
    for l in b.lines:
        a.lines.append(l)
        if l.strip().startswith("v_mfma"): nm += 1
        if 'ph' in exp and ((l.strip().startswith("v_mfma") and nm % 32 == 0) or (l.strip() == "s_barrier" and nm == 0) or "s81 offen" in l): st.stamp()
    if dbg:
        a("s_waitcnt vmcnt(0)")
        st.stamp(force=True)
        st.dump(0, S_W, 86)
        if hdbg is not None:
            a(f"""
            s_lshl_b32 s90, s2, 2
            s_add_u32 s90, s90, s{S_W}
            s_cmp_eq_u32 s90, {4*hdbg}
            s_cbranch_scc0 KM_END
            v_readlane_b32 s90, v31, 32
            v_mbcnt_lo_u32_b32 v0, -1, 0
            v_mbcnt_hi_u32_b32 v0, -1, v0
            v_subrev_u32 v31, s90, v31
            v_subrev_u32 v0, 32, v0
            v_lshlrev_b32 v0, 2, v0
            s_mov_b32 exec_lo, 0
            s_mov_b32 exec_hi, 0xfffe
            buffer_store_dword v31, v0, s[{S_DBG}:{S_DBG+3}], 0 offen
            """)
    a("s_endpgm")
    for nm, ld, val in (("Z", f"buffer_load_dword v1, off, s[{S_DBG}:{S_DBG+3}], 0 sc1", f"eq_u32 vcc, 0, v1"),
                        ("E", f"buffer_load_dword v{V_KX}, v{V_T}, s[{S_WS}:{S_WS+3}], s{S_EF} offen sc1", f"ne_u32 vcc, s{S_TAG}, v{V_KX}"),
                        ("H", f"buffer_load_dword v28, v25, s[{S_WS}:{S_WS+3}], s{P.S_HP} offen sc1", f"ne_u32 vcc, s{S_TAG}, v28"),
                        ("O", f"buffer_load_dword v28, v25, s[{S_WS}:{S_WS+3}], s{P.S_OP} offen sc1", f"ne_u32 vcc, s{S_TAG}, v28")):
        a(f"""
        KM_{nm}SPIN:
        s_mov_b32 s91, 0x40000
        KM_{nm}SPIN1:
        {ld}
        s_waitcnt vmcnt(0)
        v_cmp_{val}
        s_sub_u32 s91, s91, 1
        s_cbranch_vccz KM_{nm}BACK
        s_cmp_eq_u32 s91, 0
        s_cbranch_scc1 KM_{nm}BACK
        s_sleep 1
        s_branch KM_{nm}SPIN1
        """)
    A_K, A_Q = P.A_K, P.A_Q
    a.label("KM_FALLBACK2")
    a("s_mov_b32 s55, 2")
    a.label("KM_FALLBACK")
    a(f"""
    s_or_b32 s55, s55, 1
    s_waitcnt vmcnt(0) lgkmcnt(0)
    s_nop 15
    v_mov_b32 v82, 0xff7fffff
    v_mov_b32 v83, 0xff7fffff
    v_mov_b32 v80, 0
    v_mov_b32 v81, 0
    s_mov_b32 s78, {WS_KV:#x}
    """)
    for r in range(32): a(f"v_mov_b32 v{VO+r}, 0")
    a.label("KM_FB_LOOP")
    for q in range(4):
        a(f"buffer_load_dwordx4 {ar(A_K+4*q,4)}, v{P.V_L16}, s[{S_WS}:{S_WS+3}], s78 offen offset:{q*1024} sc1")
    a("s_waitcnt vmcnt(0)")
    for hh in range(2):
        O = VO + 16*hh; m = 82 + hh; l = 80 + hh
        a(f"v_mfma_f32_32x32x16_bf16 v[64:79], {ar(A_K,4)}, {ar(A_Q+8*hh,4)}, 0")
        a(f"v_mfma_f32_32x32x16_bf16 v[64:79], {ar(A_K+4,4)}, {ar(A_Q+8*hh+4,4)}, v[64:79]")
        a("s_nop 15")
        a("v_max_f32 v84, v64, v65")
        for r in range(2, 16, 2): a(f"v_max3_f32 v84, v{64+r}, v{65+r}, v84")
        a(f"""
        v_mov_b32 v85, v84
        s_nop 1
        v_permlane32_swap_b32 v84, v85
        s_nop 1
        v_max3_f32 v84, v84, v85, v{m}
        v_sub_f32 v85, v{m}, v84
        v_exp_f32 v85, v85
        v_mov_b32 v{m}, v84
        v_mul_f32 v{l}, v{l}, v85
        """)
        for r in range(16):
            a(f"v_sub_f32 v{64+r}, v{64+r}, v84")
            a(f"v_exp_f32 v{64+r}, v{64+r}")
            a(f"v_mul_f32 v{O+r}, v{O+r}, v85")
        for r in range(8): a(f"v_cvt_pk_bf16_f32 v{64+r}, v{64+2*r}, v{65+2*r}")
        for r in range(8):
            a(f"v_lshlrev_b32 v86, 16, v{64+r}\nv_and_b32 v87, 0xffff0000, v{64+r}\nv_add_f32 v{l}, v{l}, v86\nv_add_f32 v{l}, v{l}, v87")
        a(f"v_mfma_f32_32x32x16_bf16 {vr(O,16)}, {ar(A_K+8,4)}, v[64:67], {vr(O,16)}")
        a(f"v_mfma_f32_32x32x16_bf16 {vr(O,16)}, {ar(A_K+12,4)}, v[68:71], {vr(O,16)}")
        a("s_nop 15")
    a(f"""
    s_add_u32 s78, s78, 4096
    s_cmp_lt_u32 s78, {WS_KV + 64*4096:#x}
    s_cbranch_scc1 KM_FB_LOOP
    v_mov_b32 v84, v80
    v_mov_b32 v85, v81
    s_nop 1
    v_permlane32_swap_b32 v80, v84
    v_permlane32_swap_b32 v81, v85
    s_nop 1
    v_add_f32 v80, v80, v84
    v_add_f32 v81, v81, v85
    s_cmp_eq_u32 s55, 1
    s_cbranch_scc1 KM_NORM
    v_rcp_f32 v80, v80
    v_rcp_f32 v82, v81
    s_nop 0
    v_mul_f32 v80, v80, v{P.V_G}
    v_mul_f32 v82, v82, v{P.V_G+1}
    """)
    for hh in range(2):
        for pc in range(2):
            b = VO + 16*hh + 8*pc
            for r in range(8): a(f"v_mul_f32 v{b+r}, v{b+r}, v{80+2*hh}")
            for q in range(4): a(f"v_cvt_pk_bf16_f32 v{64+8*hh+4*pc+q}, v{b+2*q}, v{b+2*q+1}")
            a(f"buffer_store_dwordx4 {vr(64+8*hh+4*pc,4)}, v26, s[{S_WS}:{S_WS+3}], s54 offen offset:{hh*2048 + pc*512} sc1")
    a(f"""
    s_waitcnt vmcnt(0)
    s_branch KM_CHECKED
    KM_END:
    s_endpgm
    """)
    return a.text()
```

```python
from common import *
import math, struct

LDS_SP = 65536
K2_LDS = 163840

V_L16, V_L16B, V_KVR = 1, 2, 3
V_W = 4
V_SP, V_KP = 8, 12
V_LANE, V_OMG, V_G = 16, 18, 22
SB = [32, 48]; PB = [64, 72]
ACC = 128
A_O, A_L, A_SEL, A_Q, A_K, A_V = 0, 32, 40, 44, 60, 76
A_WR, RW = 92, 16
A_HR, RH = 156, 4
A_WX = 220
S_OUT, S_WS = 20, 24
S_HB, S_WB, S_KVB, S_XB = 12, 14, 16, 18
S_W, S_MT, S_NT, S_M0KV, S_M0SP = 36, 28, 29, 30, 31
S_WOB = 32
S_HF, S_HP, S_OF, S_OP = 8, 9, 10, 11
LDS_Q = 65536
NDOWN, NWO = 28, 8
NSLOT = 128

I = lambda text, vm=None, lg=None: dict(text=text, vm=vm, lg=lg)
W = lambda vm=(), lg=(): dict(text=None, needvm=list(vm), needlg=list(lg))
def adv64(s, n): return [I(f"s_add_u32 s{s}, s{s}, {n:#x}\ns_addc_u32 s{s+1}, s{s+1}, 0")]

def accr(J, i): return vr(ACC + (J*4 + i)*4, 4)
V_O = 96
def wreg(sig, J):
    if sig == NDOWN + 7: return ar(A_WX + 4*J, 4)
    if sig == NDOWN + 6: return ar(A_O + 4*J, 4)
    if sig == NDOWN + 5: return vr(32 + 4*J, 4)
    return ar(A_WR + 4*((8*sig + J) % RW), 4)
OREGS = [ar(A_Q + 4*k, 4) for k in range(12)] + [vr(V_O + 4*k, 4) for k in range(8)] + [ar(A_HR + 4*k, 4) for k in range(4*RH)]
def hreg(sig, i, ring=False):
    if sig >= NDOWN and not ring: return OREGS[4*(sig - NDOWN) + i]
    return ar(A_HR + 16*(sig % RH) + 4*i, 4)
def gemm_mfma(sig, J, i, first):
    return f"v_mfma_f32_16x16x32_bf16 {accr(J,i)}, {wreg(sig,J)}, {hreg(sig,i)}, {'0' if first else accr(J,i)}"
def h_load(sig, i, ring=False):
    return I(f"global_load_dwordx4 {hreg(sig,i,ring)}, v{V_L16}, s[{S_HB}:{S_HB+1}] offset:{i*1024} sc1", vm=("hx" if ring and sig >= NDOWN else "h", sig, i))
NIN = 25
NHEAD = 1
SF0 = NIN + 2
S_WB0 = 64
S_M0C, S_SPM, S_CNT = 34, 35, 39
def wsrc(sig):
    if sig < SF0: return "ring"
    if sig < NDOWN + 5: return "lds"
    return "x"
def slot_of(sig): return (sig - SF0) % 4
def w_load(sig, J):
    src = wsrc(sig)
    if src == "ring":
        return I(f"global_load_dwordx4 {wreg(sig,J)}, v{V_W + J//2}, s[{S_WB}:{S_WB+1}] offset:{(J%2)*1024} sc1", vm=("w", sig, J))
    if src == "x":
        return I(f"global_load_dwordx4 {wreg(sig,J)}, v{V_W + J//2}, s[{S_XB}:{S_XB+1}] offset:{(J%2)*1024} sc1", vm=("w", sig, J))
    k = slot_of(sig)
    reg, off = (V_SP, k*8192) if k < 3 else (V_KP, 0)
    return I(f"ds_read_b128 {wreg(sig,J)}, v{reg + J//2} offset:{off + (J%2)*1024}", lg=("w", sig, J))
def w_need(sig, J):
    return W(lg=[("w", sig, J)]) if wsrc(sig) == "lds" else W(vm=[("w", sig, J)])
def x_base(sig):
    b, o = (S_WB0, sig*8192) if sig < NDOWN else (S_WOB, (sig - NDOWN)*8192)
    return I(f"s_add_u32 s{S_XB}, s{b}, {o}\ns_addc_u32 s{S_XB+1}, s{b+1}, 0")
def fifo_fill(sig, half):
    k = slot_of(sig)
    m0 = I(f"s_add_u32 m0, s{S_M0SP}, {k*8192 + half*4096}") if k < 3 else I(f"s_add_u32 m0, s{S_M0KV}, {half*4096}")
    return m0, [I(f"global_load_lds_dwordx4 v{V_L16B if half else V_L16}, s[{S_XB}:{S_XB+1}] offset:{j*1024} sc1", vm=("wd", sig)) for j in range(4)]
def qk(n, half):
    T = n // 2; Sx = SB[n % 2]
    c = "0" if half == 0 else vr(Sx, 16)
    return f"v_mfma_f32_32x32x16_bf16 {vr(Sx,16)}, {ar(A_K + 8*(T%2) + 4*half,4)}, {ar(A_Q + 8*(n%2) + 4*half,4)}, {c}"
def pv(n, half):
    T = n // 2; O = V_O + 16*(n % 2)
    c = "0" if (n < 2 and half == 0) else vr(O, 16)
    return f"v_mfma_f32_32x32x16_bf16 {vr(O,16)}, {ar(A_V + 8*(T%2) + 4*half,4)}, {vr(PB[n%2] + 4*half,4)}, {c}"
def summ(n, half):
    Lr = A_L + 4*(n % 2)
    c = "0" if (n < 2 and half == 0) else ar(Lr, 4)
    return f"v_mfma_f32_16x16x32_bf16 {ar(Lr,4)}, {ar(A_SEL,4)}, {vr(PB[n%2] + 4*half,4)}, {c}"
def kv_off(T): return (T % 8)*4096
def k_read(T, half):
    return I(f"ds_read_b128 {ar(A_K + 8*(T%2) + 4*half,4)}, v{V_KVR} offset:{kv_off(T) + half*1024}", lg=("k", T))
def v_read(T, half):
    return I(f"ds_read_b128 {ar(A_V + 8*(T%2) + 4*half,4)}, v{V_KVR} offset:{kv_off(T) + 2048 + half*1024}", lg=("v", T))
def kv_dma(stage, part, j):
    v = V_L16 if part == 0 else V_L16B
    return I(f"global_load_lds_dwordx4 v{v}, s[{S_KVB}:{S_KVB+1}] offset:{j*1024} sc1", vm=("kv", stage))

def xcost(x):
    t = x["text"] or "s_"
    if t.startswith("ds_"): return 4
    if t.startswith("global_"): return 5
    if t.startswith("buffer_"): return 8
    if t.startswith("v_"): return 4
    if "\n" in t: return 4
    return 0

def segment(lo, hi, mu0, mu1, g0, timed=(), loop=False):
    seq = []
    mu = mu0
    for n in range(lo, hi):
        att = [(qk(n+1, 0), 32), (qk(n+1, 1), 32)]
        if n >= 1: att += [(pv(n-1, 0), 32), (summ(n-1, 0), 16), (pv(n-1, 1), 32), (summ(n-1, 1), 16)]
        top = mu0 if n < g0 else mu0 + round((mu1 - mu0)*(n + 1 - g0)/(hi - g0))
        cnt = top - mu
        for k, (t, p_) in enumerate(att):
            seq.append(dict(text=t, pipe=p_, slot=n, mu=None, k=k))
            for _ in range(round(cnt*(k + 1)/len(att)) - round(cnt*k/len(att))):
                sig, J, i = mu // 32, (mu % 32) // 4, mu % 4
                seq.append(dict(text=gemm_mfma(sig, J, i, sig == 0), pipe=16, slot=n, mu=mu, k=None)); mu += 1
    assert mu == mu1
    N = len(seq)
    gaps = [[] for _ in range(N)]
    pos_mu = {s["mu"]: g for g, s in enumerate(seq) if s["mu"] is not None}
    slot_start = {}
    for g, s in enumerate(seq): slot_start.setdefault(s["slot"], g)
    slot_start[hi] = N
    def place(item, lo_, hi_=None):
        G = lo_
        while G < N and gaps[G]: G += 1
        if hi_ is not None and G > hi_:
            lo_ = min(lo_, hi_)
            G = min(range(lo_, hi_ + 1), key=lambda g: (sum(xcost(x) + 1 for x in gaps[g]), g))
        assert G < N, (item, lo_, hi_, G)
        gaps[G].append(item); return G
    def place_cluster(items, lo_, hi_):
        hi_ = min(hi_, N - 1); lo_ = min(lo_, hi_)
        cands = [g for g in range(lo_, hi_ + 1) if not gaps[g]]
        big = [g for g in cands if seq[g]["pipe"] == 32]
        G = big[0] if big else cands[0] if cands else min(range(lo_, hi_ + 1), key=lambda g: (sum(xcost(x) + 1 for x in gaps[g]), g))
        gaps[G].extend(items); return G
    for m in range(mu0, mu1, 4):
        sig, J = m // 32, (m % 32) // 4
        w = w_need(sig, J)
        if J == 0: w["needvm"] += [("h", sig, q) for q in range(4)]
        gaps[pos_mu[m] - 1].append(w)
    for n in range(lo, hi, 2):
        gaps[slot_start[n + 1] - 1].append(W(lg=[("k", n // 2 + 1)]))
    for it in range(lo // 16, hi // 16):
        G = slot_start[16*it + 14]
        gaps[G] = [W(vm=[("kv", it + 1)], lg=[("v", 8*it + 7)]), I("s_barrier"), I(f"v_xor_b32 v{V_KVR}, 0x8000, v{V_KVR}")] + gaps[G]
    for n in range(lo, hi):
        T = n // 2 + 1
        l_ = slot_start[n] + (1 if n % 16 == 14 else 0) + 1
        G = place(k_read(T, 0) if n % 2 == 0 else v_read(T, 0), l_, slot_start[n + 1] - 2)
        place(k_read(T, 1) if n % 2 == 0 else v_read(T, 1), G + 2, slot_start[n + 1] - 2)
    G = 0
    for sl, items in timed:
        G = place_cluster(items, max(slot_start[sl] + 1, G + 1), max(slot_start[sl + 1] - 2, G + 2))
    def place_split(items, lo_, hi_, step):
        G0 = None; G = lo_
        for k, x in enumerate(items):
            G = place_cluster([x], min(G, N - 1), min(hi_ + k*step, N - 1))
            if G0 is None: G0 = G
            last = G; G += step
        return G0, last
    lastw = -1
    for m in range(mu0 + 3, mu1, 4):
        sig, J = m // 32, (m % 32) // 4
        G = pos_mu[m]
        if J == 0: place(adv64(S_WB, 8192)[0], max(lastw + 1, G - 6), G - 1)
        lastw = place_cluster([w_load(sig + 2, J)], G, G + 3)
    for sig in range(mu0 // 32, mu1 // 32):
        if sig >= 1:
            G = pos_mu[32*sig]
            G = place(adv64(S_HB, 8192)[0], G, G + 2)
            place_split([h_load(sig - 1 + RH, i, True) for i in range(4)], G + 2, G + 8, 7)
    for it in range(lo // 16, hi // 16):
        for part in range(2):
            s0 = 16*it + (7 if it == 0 else 8 if it == 1 else 1) + (2 if it == 1 else 3)*part
            cl = [kv_dma(it + 1, part, j) for j in range(4)]
            if it == 7: cl[-1]["vm2"] = ("wd", SF0 + 3)
            G0, G = place_split(cl, slot_start[s0] + 3, slot_start[s0] + (9 if loop else 5), 5 if loop else 2)
            assert G < slot_start[s0 + 2]
            place(I(f"s_add_u32 m0, s{S_M0C}, {part*4096}"), G0 - 3, G0 - 1)
        G = place(adv64(S_KVB, 32768)[0], G + 1)
        G = place(I(f"s_xor_b32 s{S_M0C}, s{S_M0C}, 0x8000"), G + 1)
        if loop:
            idx = it - 2
            cl = [I(f"global_load_lds_dwordx4 v{V_L16}, s[{S_XB}:{S_XB+1}] offset:{j*1024} sc1", vm=("wd", SF0 + idx // 2)) for j in range(4)]
            G0, G = place_split(cl, slot_start[16*it + 9] + 4, slot_start[16*it + 9] + 10, 5)
            place(I(f"s_mov_b32 m0, s{S_SPM}"), G0 - 3, G0 - 1)
            G = place(adv64(S_XB, 4096)[0], G + 1)
            G = place(I(f"s_add_u32 s{S_SPM}, s{S_SPM}, 4096"), G + 1)
            G = place(I(f"s_sub_u32 s{S_CNT}, s{S_CNT}, 1"), G + 1)
            G = place(I(f"s_cmp_eq_u32 s{S_CNT}, {6 - 2*(NDOWN - SF0)}\ns_cselect_b32 s{S_XB}, s{S_WOB}, s{S_XB}\ns_cselect_b32 s{S_XB+1}, s{S_WOB+1}, s{S_XB+1}"), G + 1)
            G = place(I(f"s_cmp_eq_u32 s{S_CNT}, 1\ns_cselect_b32 s{S_KVB}, s66, s{S_KVB}\ns_cselect_b32 s{S_KVB+1}, s67, s{S_KVB+1}"), G + 1)
    V = []
    for n in range(lo, hi):
        Sx, Px = SB[n % 2], PB[n % 2]
        for r in range(0, 16, 2):
            V += [(8, f"v_exp_f32 v{Sx+r}, v{Sx+r}", n, "e"), (8, f"v_exp_f32 v{Sx+r+1}, v{Sx+r+1}", n, "e")]
            if r >= 2: V.append((4, f"v_cvt_pk_bf16_f32 v{Px+r//2-1}, v{Sx+r-2}, v{Sx+r-1}", n, r//2 - 1))
        V.append((4, f"v_cvt_pk_bf16_f32 v{Px+7}, v{Sx+14}, v{Sx+15}", n, 7))
    vidx = {(n, k): i for i, (_, _, n, k) in enumerate(V) if k != "e"}
    for sq in seq:
        n, k = sq["slot"], sq["k"]
        dep = -1
        if k is not None and n > lo:
            dep = vidx[(n - 1, 7)] if k in (0, 4, 5) else vidx[(n - 1, 3)] if k in (2, 3) else -1
        sq["dep"] = dep
    pos_att = {(sq["slot"], sq["k"]): g for g, sq in enumerate(seq) if sq["k"] is not None}
    tr = Trace()
    t = valu = pipe = 0
    ig = iv = cnt = 0
    emitted_at = {}; vem_at = {}
    while ig < N or iv < len(V):
        m_ok = ig < N and seq[ig]["dep"] < iv and (seq[ig]["dep"] < 0 or cnt - vem_at[seq[ig]["dep"]] >= 2) and cnt >= 2
        v_ok = False
        if iv < len(V):
            c, txt_, n, k = V[iv]
            v_ok = True
            if n > lo and k == "e":
                g = pos_att[(n - 1, 1)]
                v_ok = g in emitted_at and cnt - emitted_at[g][0] >= 12 and max(t, valu) >= emitted_at[g][1] + 56
            if k != "e" and n >= 2 and n > lo:
                v_ok = pos_att[(n - 1, 3 if k < 4 else 5)] in emitted_at
        now = max(t, valu)
        if m_ok and (pipe <= now or not v_ok):
            s_ = max(now, pipe); t = s_ + 4; valu = s_ + 8; pipe = s_ + seq[ig]["pipe"]
            tr.ins(seq[ig]["text"]); cnt += 1; emitted_at[ig] = (cnt, s_)
            prev = ""
            for x in gaps[ig]:
                tr.items.append(x); cnt += 1 if x["text"] and not x["text"].endswith(":") else 0
                tx = x["text"] or "s_"
                if tx.startswith("ds_"): t += 4 if prev.startswith("ds_") else 8
                elif tx.startswith("global_"): t += 8 if prev.startswith("global_") else 10
                elif tx.startswith("buffer_"): t += 12
                else: t += 4*(1 + tx.count("\n"))
                prev = tx
            ig += 1
        elif v_ok:
            t = valu = now + c
            tr.ins(txt_); cnt += 1; vem_at[iv] = cnt; iv += 1
        else:
            tr.ins("s_nop 0"); cnt += 1; t += 4
    txt = [x["text"] for x in tr.items if x["text"]]
    for k in range(1, len(txt)):
        if txt[k].startswith("v_cvt") and txt[k-1].startswith("v_exp"):
            d = txt[k-1].split()[1].rstrip(",")
            assert d + "," not in txt[k] + ",", (txt[k-1], txt[k])
    return tr

TSP = 2
def gemm_step(sig, extra=(), late=(), vq=None, latepos=13):
    gaps = [[] for _ in range(32)]
    pre = []
    w = w_need(sig, 0); w["needvm"] += [("h", sig, 0)]
    pre.append(w)
    for i in range(1, 4): gaps[i - 1].append(W(vm=[("h", sig, i)]))
    s2 = sig + 2
    for J in range(8):
        if J % 4 == 3 and s2 < NDOWN + 5:
            assert wsrc(s2) == "lds"
            if J == 3: gaps[4*J + 2].append(W(vm=[("wd", s2)]))
            gaps[4*J + 3].extend(w_load(s2, q) for q in range(J - 3, J + 1))
        if J < 7: gaps[4*J + 3].insert(0, w_need(sig, J + 1))
    stream = []
    def add(lo, items):
        cur = []
        for n_, x in enumerate(items):
            t = x["text"] or ""
            if t.startswith(("global_", "buffer_")): stream.append((lo, cur + [x])); cur = []
            elif n_ == len(items) - 1: stream[-1][1].append(x)
            else: cur.append(x)
    ex = list(extra)
    if ex: add(3, ex[0])
    s3 = sig + 1 + 4
    if sig + 1 >= SF0 and s3 < NDOWN + 5:
        for half in range(2):
            m_, d_ = fifo_fill(s3, half)
            add(4, ([x_base(s3), m_, W(lg=[("w", sig + 1, 7)]), I("s_nop 0")] if half == 0 else [m_, I("s_nop 0")]) + d_)
            if half == 0 and late: add(latepos, list(late)); late = ()
    if late: add(latepos, list(late))
    for e_ in ex[1:]: add(14, e_)
    G = -TSP
    for k, (lo, items) in enumerate(stream):
        G = min(max(lo, G + TSP), 31 - (len(stream) - 1 - k))
        gaps[G].extend(items)
    tr = Trace()
    tr.items.extend(pre)
    for mu in range(32):
        tr.ins(gemm_mfma(sig, mu // 4, mu % 4, False))
        tr.items.extend(gaps[mu])
        n = 0
        while vq and n < 2:
            x = vq.pop(0); tr.items.append(x)
            if not (x["text"] or "s_").startswith("s_") or "\n" in (x["text"] or ""): n += 1
            elif vq and (vq[0]["text"] or "s_").startswith("s_"): n += 1
    return tr
```

```python
from common import *
import p2
from p2 import I, W, adv64
import math, struct

KM = NAME + "_kernel"
LDS_X = 0; LDS_W = 65536
LDS_R = 131072
LDS_QS = LDS_R; LDS_KW = LDS_R + 4096; LDS_T = LDS_R + 16384
KM_LDS = 163840
NST = 16
OOB = 0x7f000000

def accn(j, i): return ("v", 32 + (j*8 + i)*4) if j < 7 else ("a", 128 + i*4)
def acc(j, i):
    p, b = accn(j, i); return vr(b, 4, p)
XF = [0, 64]; WF = [32, 96]
KVW, KVA, A_GX, A_GW, A_T, A_KX, A_DUM = 160, 168, 172, 188, 204, 208, 255
TREG = [196, 200, 204, 224, 228, 232, 236, 240, 244]
V_DQ, V_DX, V_DW = 0, 2, 6
V_RX = [10, 11]
V_RW, V_R3, V_R7, V_RKW, V_T, V_KX, V_LANE = 12, 15, 16, 17, 18, 19, 20
V_GROW, V_L16, V_RT, V_DT, V_DK = 26, 27, 28, 29, 30
S_WQ, S_X, S_G, S_U, S_KV, S_WS, S_GW, S_TSRD, S_WD, S_WO, S_DBG = 4, 8, 12, 16, 20, 24, 28, 32, 52, 76, 72
S_W, S_MT, S_NT, S_OK = 36, 37, 38, 39
S_OX, S_OX2, S_OG, S_OQ, S_TSRCS = 40, 41, 42, 43, 44
S_M0X, S_M0W, S_M0K, S_M0T, S_M0Q = 45, 46, 47, 51, 56
S_TOFF, S_TSTEP, S_TOG = 48, 49, 50
S_TSRC, S_TDST, S_TSRC2, S_TDST2, S_GROW = 3, 94, 95, 100, 101
S_EF = 88
S_LMASK, S_T2D = 58, 59
S_TAG = 89
A_TAG = 254
S_FLG = 57

KVD = 1
def dma_group(s, ntw):
    b = s % 2
    g = []
    nt = " nt" if ntw else ""
    for half in range(2):
        so = S_OX if half == 0 else S_OX2
        for j in range(4):
            pre = f"s_add_u32 m0, s{S_M0X}, {b*32768 + half*4096}" if j == 0 else None
            g.append((pre, I(f"buffer_load_dwordx4 v{V_DX+j}, s[{S_X}:{S_X+3}], s{so} offen offset:{j*1024} lds", vm=("st", s))))
    for part in range(2):
        srdn = S_G if part == 0 else S_U
        for j in range(4):
            pre = f"s_add_u32 m0, s{S_M0W}, {b*32768 + part*16384}" if j == 0 else None
            g.append((pre, I(f"buffer_load_dwordx4 v{V_DW+j}, s[{srdn}:{srdn+3}], s{S_OG} offen offset:{j*1024}{nt} lds", vm=("st", s))))
    g.append((f"s_add_u32 m0, s{S_M0Q}, {b*2048}", I(f"buffer_load_dwordx4 v{V_DQ}, s[{S_WQ}:{S_WQ+3}], s{S_OQ} offen{nt} lds", vm=("st", s))))
    adv = {7: [f"s_add_u32 s{S_OX}, s{S_OX}, 128", f"s_add_u32 s{S_OX2}, s{S_OX2}, 128"],
           15: [f"s_add_u32 s{S_OG}, s{S_OG}, {64*7168}"], 16: [f"s_add_u32 s{S_OQ}, s{S_OQ}, 0x20000"]}
    if 1 <= s - KVD <= 8:
        g.append((f"s_add_u32 m0, s{S_M0K}, {b*8192}", I(f"buffer_load_dwordx4 v{V_DK}, s[{S_KV}:{S_KV+3}], s{S_OK} offen lds", vm=("st", s))))
        adv[17] = [f"s_add_u32 s{S_OK}, s{S_OK}, 8192"]
    return g, adv
def xread(s, kk, i):
    return I(f"ds_read_b128 {ar(XF[kk]+4*i,4)}, v{V_RX[kk]} offset:{(s%2)*32768 + i*2048}", lg=("fr", s, kk))
def wread(s, kk, j, h):
    if j % 4 == 3:
        reg, off = (V_R3 if j == 3 else V_R7), h*1024 + kk*8192
    else:
        reg, off = V_RW + (j & 3), (s % 2)*32768 + h*1024 + kk*8192 + (16384 if j >= 4 else 0)
    return I(f"ds_read_b64_tr_b16 {ar(WF[kk]+4*j+2*h,2)}, v{reg} offset:{off}", lg=("fr", s, kk))
def reads(s, kk):
    r = [wread(s, kk, 0, 0), wread(s, kk, 0, 1)] + [xread(s, kk, i) for i in range(8)]
    for j in range(1, 8): r += [wread(s, kk, j, 0), wread(s, kk, j, 1)]
    return r
def mfma(kk, j, i, first=False):
    return f"v_mfma_f32_16x16x32_bf16 {acc(j,i)}, {ar(WF[kk]+4*j,4)}, {ar(XF[kk]+4*i,4)}, {'0' if first else acc(j,i)}"
def vcap(items):
    c = 2
    for x in items:
        t = x["text"] or "s_"
        if t.startswith("ds_"): c -= 1
        elif t.startswith(("buffer_", "global_")): c -= 2
        elif t.startswith("v_"): c -= 1
    return max(c, 0)
from k1 import g_ops as _g_ops
import k1 as _k1
_k1.A_GX, _k1.A_GW = A_GX, A_GW

def gen(dbg=False, hdbg=None, lead=True, lphase=0, nhd=1, psp=2, xpeel=False, xhead=True, al1=None, al2=None, gsm=True, tsp0=4, hstart=0, xmask=0x1f, tt0=0, wv0=1, cl=1, gc=(10, 8), dc=8, slack=0, ph2new=True, tp2=False, tb=8, tlb=0, tlbpos=17, tdefer=False, tpro=0, tpos=0, gl=2, pads=0, epos=10, chain_at=1, ot=99, touch=1, nhead=13, p1=13, npro0=8, gs=11, tq0=5, ntw=False, ntt=True, exp='',
        g0=25, hsig=5, hpoll=16, opre=1, nb=(1, 2)):
    esig = KVD + 11
    if tp2:
        tq0 = 100
    p2.configure(nhd); p2.KV1 = max(8, hpoll - 13)
    NIN = p2.NIN
    a = Asm()
    L = f"v{V_LANE}"
    a("s_cmp_ge_u32 s2, 256")
    a("s_cbranch_scc1 KM_END")
    st = Stamps(a, dbg)
    st.stamp()
    a("s_memrealtime s[72:73]")
    a("s_load_dwordx8 s[56:63], s[0:1], 0")
    a("s_load_dwordx8 s[64:71], s[0:1], 48")
    a("s_load_dwordx2 s[74:75], s[0:1], 32")
    a("s_load_dwordx4 s[96:99], s[0:1], 80")
    a("s_load_dwordx2 s[86:87], s[0:1], 96")
    code_prefetch(a, "KM", 32, "a255", 3)
    a(f"""
    v_and_b32 {L}, 63, v0
    v_lshrrev_b32 v1, 6, v0
    s_and_b32 s80, s2, 7
    v_readfirstlane_b32 s{S_W}, v1
    s_lshr_b32 s81, s2, 3
    s_and_b32 s{S_MT}, s81, 7
    s_lshr_b32 s83, s81, 3
    s_lshl_b32 s80, s80, 2
    s_add_u32 s{S_NT}, s80, s83
    s_mul_i32 s85, s{S_NT}, 224
    s_mov_b32 s{S_OG}, 0
    s_mov_b32 s{S_OQ}, 0
    v_lshrrev_b32 v21, 3, {L}
    s_lshl_b32 s81, s{S_MT}, 8
    s_lshl_b32 s82, s{S_W}, 6
    s_add_u32 s81, s81, s82
    v_add_u32 v21, s81, v21
    v_lshlrev_b32 v21, 11, v21
    v_and_b32 v22, 7, {L}
    v_lshrrev_b32 v23, 4, {L}
    v_xor_b32 v22, v22, v23
    v_lshlrev_b32 v22, 4, v22
    v_xor_b32 v24, 64, v22
    """)
    for j in range(4):
        a(f"v_add_u32 v{V_DX+j}, v21, {'v22' if j % 2 == 0 else 'v24'}")
        if j: a(f"v_add_u32 v{V_DX+j}, {j*8*2048 - j*1024}, v{V_DX+j}")
    a(f"""
    s_mov_b32 s{S_OX}, 0
    s_mov_b32 s{S_OX2}, 65536
    s_mov_b32 s{S_OK}, 0
    s_lshl_b32 s81, s{S_W}, 4
    s_movk_i32 s84, 7168
    v_add_u32 v21, s81, v23
    v_mul_lo_u32 v21, v21, s84
    v_add_u32 v21, s85, v21
    v_and_b32 v25, 1, {L}
    v_lshl_add_u32 v21, v25, 4, v21
    v_bfe_u32 v22, {L}, 1, 3
    v_xor_b32 v22, v22, v23
    v_xor_b32 v24, 4, v22
    v_min_u32 v22, 6, v22
    v_min_u32 v24, 6, v24
    v_lshl_add_u32 v{V_DW}, v22, 5, v21
    v_add_u32 v{V_DW+1}, {4*7168 - 1024}, v{V_DW}
    v_lshl_add_u32 v{V_DW+2}, v24, 5, v21
    v_add_u32 v{V_DW+2}, {2*(4*7168 - 1024)}, v{V_DW+2}
    v_add_u32 v{V_DW+3}, {4*7168 - 1024}, v{V_DW+2}
    s_lshl_b32 s{S_M0X}, s{S_W}, 13
    s_lshl_b32 s{S_M0W}, s{S_W}, 12
    s_add_u32 s{S_M0W}, s{S_M0W}, {LDS_W}
    s_lshl_b32 s{S_M0K}, s{S_W}, 10
    s_add_u32 s{S_M0T}, s{S_M0K}, {LDS_T}
    s_add_u32 s{S_M0K}, s{S_M0K}, {LDS_KW}
    s_lshr_b32 s81, s{S_W}, 1
    s_and_b32 s80, s{S_W}, 1
    """)
    a(f"""
    v_lshlrev_b32 v21, 3, v23
    v_bfe_u32 v22, {L}, 2, 2
    v_add_u32 v21, v21, v22
    s_lshl_b32 s82, s81, 5
    s_lshl_b32 s83, s80, 2
    s_add_u32 s82, s82, s83
    v_add_u32 v21, s82, v21
    v_lshlrev_b32 v21, 11, v21
    v_bfe_u32 v22, {L}, 1, 1
    v_bfe_u32 v24, {L}, 4, 1
    v_xor_b32 v22, v22, v24
    v_lshl_add_u32 v21, v22, 5, v21
    v_lshl_add_u32 v21, v25, 4, v21
    s_lshl_b32 s82, s{S_NT}, 6
    v_add_u32 v{V_DQ}, s82, v21
    s_lshl_b32 s90, s81, 13
    s_lshl_b32 s83, s80, 10
    s_add_u32 s90, s90, s83
    s_waitcnt lgkmcnt(0)
    """)
    st.n and None
    a(f"s_or_b32 s{S_TAG}, s72, 1")
    srd(a, S_X, 56, 2048*1024*2)
    srd(a, S_G, 64, 1024*3584*2)
    srd(a, S_U, 66, 1024*3584*2)
    srd(a, S_WQ, 58, 1024*1024*2)
    a(f"s_add_u32 s{S_M0Q}, s90, {LDS_QS}")
    st.stamp()
    pro = Trace()
    def dma_items(s, lo, hi):
        g, adv = dma_group(s, ntw)
        out = []
        for k in range(lo, min(hi, len(g))):
            pre, it = g[k]
            out.append(([I(pre), I("s_nop 0")] if pre else []) + [it] + [I(x) for x in adv.get(k, [])])
        return out
    pc = Asm()
    pc(f"""
    v_lshlrev_b32 v{V_L16}, 4, {L}
    v_and_b32 v21, 15, {L}
    s_lshl_b32 s83, s81, 14
    v_lshlrev_b32 v22, 7, v21
    v_lshrrev_b32 v24, 1, v21
    v_xor_b32 v24, v24, v23
    v_lshl_add_u32 v22, v24, 4, v22
    v_add_u32 v{V_RX[0]}, s83, v22
    v_xor_b32 v{V_RX[1]}, 64, v{V_RX[0]}
    v_bfe_u32 v21, {L}, 2, 2
    v_lshl_add_u32 v22, v23, 3, v21
    v_and_b32 v24, 3, {L}
    v_lshlrev_b32 v24, 3, v24
    v_lshl_add_u32 v{V_RKW}, v22, 5, v24
    s_lshl_b32 s83, s81, 11
    s_add_u32 s83, s83, {LDS_KW}
    v_add_u32 v{V_RKW}, s83, v{V_RKW}
    v_lshl_add_u32 v22, v22, 8, v24
    v_add_u32 v22, {LDS_W}, v22
    v_and_b32 v25, 1, v23
    v_lshl_or_b32 v1, v25, 2, v21
    s_lshl_b32 s82, s80, 2
    """)
    for j in range(4):
        pc(f"s_add_u32 s83, s82, {j}")
        pc(f"v_xor_b32 v{V_T}, s83, v1")
        pc(f"v_lshl_add_u32 v{V_RW+j}, v{V_T}, 5, v22")
    pc(f"""
    v_add_u32 v{V_R7}, 16384, v{V_R3}
    v_lshl_add_u32 v22, v23, 2, v21
    v_lshl_add_u32 v22, v22, 6, v24
    v_lshl_add_u32 v22, v25, 5, v22
    v_add_u32 v22, {LDS_QS}, v22
    v_xor_b32 v1, 32, v22
    s_cmp_eq_u32 s80, 1
    s_cselect_b64 vcc, -1, 0
    s_movk_i32 s{S_TOG}, 2048
    s_cselect_b32 s{S_TOG}, s{S_TOG}, 0x8000
    v_cndmask_b32 v{V_R3}, v{V_R3}, v22, vcc
    v_cndmask_b32 v{V_R7}, v{V_R7}, v1, vcc
    """)
    p = Asm()
    p(f"""
    v_lshrrev_b32 v1, 3, {L}
    v_lshlrev_b32 v1, 11, v1
    v_bfe_u32 v25, {L}, 1, 2
    v_xor_b32 v25, v25, v23
    v_lshl_add_u32 v1, v25, 5, v1
    v_and_b32 v25, 1, {L}
    v_lshl_add_u32 v{V_DT}, v25, 4, v1
    v_lshl_add_u32 v1, v23, 2, v21
    v_bfe_u32 v25, v1, 1, 2
    v_xor_b32 v25, s{S_W}, v25
    v_lshlrev_b32 v1, 7, v1
    v_lshl_add_u32 v1, v25, 5, v1
    v_add_u32 v1, v1, v24
    v_add_u32 v{V_RT}, {LDS_T}, v1
    s_lshr_b32 s82, s2, 4
    s_and_b32 s83, s2, 15
    s_mul_i32 s{S_TSRC}, s82, {224*2048}
    s_lshl_b32 s90, s83, 7
    s_add_u32 s{S_TSRC}, s{S_TSRC}, s90
    s_lshl_b32 s{S_TSRC2}, s82, 17
    s_add_u32 s{S_TSRC2}, s{S_TSRC2}, s90
    s_mul_i32 s90, s80, {112*2048}
    s_add_u32 s{S_TSRCS}, s{S_TSRC}, s90
    s_lshl_b32 s90, s81, 13
    s_add_u32 s{S_TSRCS}, s{S_TSRCS}, s90
    s_add_u32 s{S_TSRCS}, s{S_TSRCS}, {96*2048}
    s_lshl_b32 s90, s{S_W}, 14
    s_add_u32 s{S_TSRC}, s{S_TSRC}, s90
    s_lshl_b32 s90, s80, 15
    s_add_u32 s{S_TSRC2}, s{S_TSRC2}, s90
    s_lshl_b32 s90, s81, 14
    s_add_u32 s{S_TSRC2}, s{S_TSRC2}, s90
    s_lshr_b32 s90, s83, 1
    s_mul_i32 s90, s90, {144*8192}
    s_and_b32 s83, s83, 1
    s_lshl_b32 s83, s83, 12
    s_add_u32 s90, s90, s83
    s_lshl_b32 s83, s{S_W}, 10
    s_add_u32 s90, s90, s83
    s_add_u32 s90, s90, {WS_WT:#x}
    s_mul_i32 s{S_TDST}, s82, {7*8192}
    s_add_u32 s{S_TDST}, s{S_TDST}, s90
    s_lshl_b32 s{S_TDST2}, s82, 14
    s_add_u32 s{S_TDST2}, s{S_TDST2}, s90
    s_add_u32 s{S_TDST2}, s{S_TDST2}, {112*8192}
    s_lshl_b32 s82, s2, 3
    s_lshl_b32 s83, s{S_W}, 1
    s_add_u32 s82, s82, s83
    s_lshl_b32 s{S_GROW}, s82, 11
    v_lshrrev_b32 v1, 5, {L}
    v_add_u32 v{V_GROW}, s82, v1
    v_lshlrev_b32 v{V_GROW}, 3, v{V_GROW}
    v_add_u32 v{V_GROW}, {WS_G:#x}, v{V_GROW}
    s_lshl_b32 s82, s{S_MT}, 2
    s_add_u32 s82, s82, s{S_W}
    s_lshl_b32 s82, s82, 5
    s_add_u32 s82, s82, s{S_NT}
    s_lshl_b32 s82, s82, 7
    s_add_u32 s{S_FLG}, s82, {WS_FLAG:#x}
    """)
    ps = Asm() if tlb else p
    ps(f"""
    s_and_b32 s82, s{S_NT}, 2
    s_cmp_eq_u32 s82, 0
    s_cselect_b32 s{S_KV}, s60, s62
    s_cselect_b32 s{S_KV+1}, s61, s63
    s_and_b32 s{S_KV+1}, s{S_KV+1}, 0xffff
    s_mov_b32 s{S_KV+2}, 65536
    s_mov_b32 s{S_KV+3}, 0x00020000
    """)
    srd(ps, S_WS, 86, WS_SIZE)
    srd(ps, S_GW, 70, 2048)
    srd(ps, S_WD, 68, 3584*1024*2)
    srd(ps, S_WO, 74, 1024*1024*2)
    srd(ps, S_DBG, 98, 256)
    p(f"""
    v_lshrrev_b32 v21, 1, {L}
    v_lshlrev_b32 v21, 6, v21
    v_and_b32 v22, 1, {L}
    v_lshl_add_u32 v21, v22, 4, v21
    s_and_b32 s82, s{S_NT}, 1
    s_lshl_b32 s82, s82, 5
    s_lshl_b32 s83, s{S_W}, 11
    s_add_u32 s82, s82, s83
    v_add_u32 v{V_DK}, s82, v21
    s_lshl_b32 s82, s{S_MT}, 8
    s_lshr_b32 s83, s{S_NT}, 2
    s_lshl_b32 s83, s83, 5
    s_add_u32 s82, s82, s83
    s_lshl_b32 s83, s80, 4
    s_add_u32 s82, s82, s83
    s_lshl_b32 s82, s82, 11
    s_lshl_b32 s83, s81, 7
    s_add_u32 s82, s82, s83
    v_and_b32 v21, 15, {L}
    v_lshlrev_b32 v22, 11, v21
    v_lshl_add_u32 v22, v23, 4, v22
    v_add_u32 v{V_KX}, s82, v22
    """)
    pt = Asm()
    plain_addr = f"""s_lshl_b32 s82, s{S_MT}, 3
        v_bfe_u32 v24, {L}, 2, 3
        v_add_u32 v24, s82, v24
        v_lshlrev_b32 v21, 11, v24
        v_mul_lo_u32 v24, v24, s84
        v_and_b32 v1, 3, {L}
        v_lshlrev_b32 v1, 7, v1
        v_min_u32 v1, 220, v1
        v_add3_u32 v24, v24, v1, s85
        s_lshl_b32 s82, s{S_NT}, 6
        v_add_u32 v21, s82, v21"""
    lead_addr = f"""s_mov_b32 s{S_TSTEP}, {OOB:#x}
        s_and_b32 s82, s{S_NT}, 3
        s_lshl_b32 s82, s82, 4
        v_lshrrev_b32 v24, 3, {L}
        v_add_u32 v24, s82, v24
        v_mul_lo_u32 v24, v24, s84
        v_and_b32 v1, 7, {L}
        v_min_u32 v1, 6, v1
        v_lshl_add_u32 v24, v1, 7, v24
        s_lshr_b32 s83, s{S_NT}, 2
        s_mul_i32 s90, s83, 896
        v_add_u32 v24, s90, v24
        v_bfe_u32 v21, {L}, 1, 4
        v_add_u32 v21, s82, v21
        v_lshlrev_b32 v21, 11, v21
        v_and_b32 v1, 1, {L}
        v_lshl_add_u32 v21, v1, 7, v21
        s_lshl_b32 s83, s83, 8
        v_add_u32 v21, s83, v21
        s_lshl_b32 s{S_LMASK}, 0x10101, s{S_MT}
        s_cmp_eq_u32 s{S_W}, 0
        s_cselect_b32 s{S_LMASK}, {xmask:#x}, s{S_LMASK}
        s_add_u32 s82, s{S_W}, 1
        s_and_b32 s82, s82, 2
        s_cselect_b32 s{S_T2D}, {8*7168}, s{S_TSTEP}"""
    if touch:
        (pt if tpro else p)(f"""
        s_and_b32 s82, s{S_NT}, 3
        s_lshl_b32 s82, s82, 6
        s_lshl_b32 s83, s{S_MT}, 8
        s_add_u32 s82, s82, s83
        v_add_u32 v25, s82, {L}
        v_lshlrev_b32 v25, 11, v25
        {lead_addr if lead else plain_addr}
        s_mov_b32 s{S_TSTEP}, {64*7168}
        s_cmp_eq_u32 s{S_W}, 0
        s_cselect_b64 vcc, -1, 0
        s_cselect_b32 s{S_TSRD}, s{S_X}, s{S_G}
        s_cselect_b32 s{S_TSRD+1}, s{S_X+1}, s{S_G+1}
        s_cselect_b32 s{S_TSRD+2}, s{S_X+2}, s{S_G+2}
        s_cselect_b32 s{S_TSTEP}, 128, s{S_TSTEP}
        v_cndmask_b32 v{V_T}, v24, v25, vcc
        s_cmp_eq_u32 s{S_W}, 2
        s_cselect_b32 s{S_TSRD}, s{S_U}, s{S_TSRD}
        s_cselect_b32 s{S_TSRD+1}, s{S_U+1}, s{S_TSRD+1}
        s_cmp_eq_u32 s{S_W}, 3
        s_cselect_b64 vcc, -1, 0
        s_cselect_b32 s{S_TSRD}, s{S_WQ}, s{S_TSRD}
        s_cselect_b32 s{S_TSRD+1}, s{S_WQ+1}, s{S_TSRD+1}
        s_cselect_b32 s{S_TSRD+2}, s{S_WQ+2}, s{S_TSRD+2}
        s_cselect_b32 s{S_TSTEP}, 0x20000, s{S_TSTEP}
        v_cndmask_b32 v{V_T}, v{V_T}, v21, vcc
        s_mov_b32 s{S_TSRD+3}, 0x00020000
        s_mul_i32 s{S_TOFF}, s{S_TSTEP}, {3 if lead else 2 if tpro else (touch + 1 if touch >= 2 else touch + 2)}
        """)
    late = []
    for l in [l.strip() for l in p.lines]:
        if late and l.startswith(("s_cselect", "s_addc", "v_cndmask", "s_movk_i32 s50")): late[-1].append(l)
        else: late.append([l])
    late += [[f"v_and_b32 v1, 31, {L}"], ["v_lshlrev_b32 v1, 7, v1"], ["s_lshr_b32 s82, s2, 3"], ["s_and_b32 s82, s82, 15"], ["s_lshl_b32 s82, s82, 12"]]
    d0 = dma_items(0, 0, 17)
    for grp in d0[:tlbpos]: pro.items.extend(grp)
    if tlb:
        for l in ps.lines: pro.ins(l.strip())
        pro.raw(f"""
        s_mov_b32 s80, s96
        s_and_b32 s81, s97, 0xffff
        s_mov_b32 s82, {2048*1024*2:#x}
        s_mov_b32 s83, 0x00020000
        v_lshlrev_b32 v1, {tlb}, {L}
        v_min_u32 v1, 0x7f000000, v1
        """)
        for sr_ in (S_G, S_U, S_WS, S_WD, S_WO, S_KV, S_GW, S_DBG, 80, S_X):
            pro.ins(f"buffer_load_dword a{A_DUM}, v1, s[{sr_}:{sr_+3}], 0 offen")
        pro.raw(f"s_lshr_b32 s81, s{S_W}, 1\ns_and_b32 s80, s{S_W}, 1")
    for grp in d0[tlbpos:]: pro.items.extend(grp)
    for l in pt.lines: pro.ins(l.strip())
    tch = lambda: [I(f"buffer_load_dword a{A_DUM}, v{V_T}, s[{S_TSRD}:{S_TSRD+3}], s{S_TOFF} offen", vm=("touch", 0)), I(f"s_add_u32 s{S_TOFF}, s{S_TOFF}, s{S_TSTEP}")]
    if tpos == 0:
        for _ in range(tpro): pro.items.extend(tch())
    for l in pc.lines: pro.ins(l.strip().replace(f"v{V_T},", "v22x,").replace("v22x", "v19"))
    for grp in dma_items(1, 0, p1): pro.items.extend(grp)
    if tpos == 1:
        for _ in range(tpro): pro.items.extend(tch())
    one_time = [I(f"buffer_load_dword a{A_DUM}, v1, s[{S_KV}:{S_KV+3}], s82 offen"), I(f"buffer_load_dword a{A_DUM}, v1, s[{S_GW}:{S_GW+3}], 0 offen")]
    touch_ins = lambda: I(f"buffer_load_dword a{A_DUM}, v{V_T}, s[{S_TSRD}:{S_TSRD+3}], s{S_TOFF} offen", vm=("touch", 0))
    touch_adv = f"s_add_u32 s{S_TOFF}, s{S_TOFF}, s{S_TSTEP}"
    pro2 = Trace()
    pro2.wait(vm=[("st", 0)])
    pro2.ins("s_barrier")
    pro2.items.extend(reads(0, 0))

    gfast, gslow = _g_ops()
    gslow += ["v_max_f32 v25, 0x2b800000, v25", "v_rcp_f32 v23, v25", "v_mul_f32 v24, v24, v23"]
    GSPLIT = 70
    c_q = struct.unpack("<I", struct.pack("<f", math.log2(math.e) / math.sqrt(32.0)))[0]
    kvfin = [f"v_accvgpr_read_b32 v{21+r}, a{KVA+r}" for r in range(4)]
    for r in range(4): kvfin += [f"v_accvgpr_read_b32 v1, a{KVW+r}", f"v_add_f32 v{21+r}, v{21+r}, v1", f"v_mul_f32 v{21+r}, s84, v{21+r}"]
    kvfin += ["v_cvt_pk_bf16_f32 v22, v21, v22", "v_cvt_pk_bf16_f32 v23, v23, v24",
              f"v_and_b32 v1, 15, {L}", "v_lshlrev_b32 v1, 4, v1", f"v_bfe_u32 v21, {L}, 4, 1", "v_lshl_add_u32 v1, v21, 9, v1",
              f"v_lshrrev_b32 v21, 5, {L}", "v_lshl_add_u32 v1, v21, 3, v1",
              f"buffer_store_dwordx2 v[22:23], v1, s[{S_WS}:{S_WS+3}], s82 offen offset:2048 sc1",
              f"v_bfe_u32 v24, {L}, 3, 1", "v_lshlrev_b32 v24, 10, v24", f"v_bfe_u32 v21, {L}, 2, 1", "v_lshl_add_u32 v24, v21, 9, v24",
              f"v_lshrrev_b32 v21, 4, {L}", "v_lshl_add_u32 v24, v21, 6, v24", f"v_and_b32 v21, 3, {L}", "v_lshl_add_u32 v24, v21, 1, v24",
              f"buffer_store_short v22, v24, s[{S_WS}:{S_WS+3}], s83 offen sc1",
              f"buffer_store_short_d16_hi v22, v24, s[{S_WS}:{S_WS+3}], s83 offen offset:16 sc1",
              f"buffer_store_short v23, v24, s[{S_WS}:{S_WS+3}], s83 offen offset:32 sc1",
              f"buffer_store_short_d16_hi v23, v24, s[{S_WS}:{S_WS+3}], s83 offen offset:48 sc1"]
    kvsal = f"""s_lshl_b32 s82, s{S_MT}, 3
    s_lshr_b32 s83, s{S_NT}, 2
    s_add_u32 s82, s82, s83
    s_lshl_b32 s82, s82, 12
    s_add_u32 s82, s82, {WS_KV:#x}
    s_and_b32 s85, s{S_NT}, 1
    s_lshl_b32 s83, s85, 3
    s_add_u32 s83, s83, s82
    s_lshl_b32 s85, s85, 8
    s_add_u32 s82, s82, s85
    s_lshl_b32 s85, s{S_W}, 10
    s_add_u32 s82, s82, s85
    s_lshl_b32 s85, s{S_W}, 8
    s_add_u32 s83, s83, s85
    s_and_b32 s85, s{S_NT}, 2
    s_cmp_eq_u32 s85, 0
    s_cselect_b32 s84, {c_q:#x}, 1.0
    s_cselect_b32 s82, {OOB:#x}, s82
    s_cselect_b32 s83, s83, {OOB:#x}
    s_cmp_ge_u32 s{S_W}, 2
    s_cselect_b32 s82, {OOB:#x}, s82
    s_cselect_b32 s83, {OOB:#x}, s83""".split("\n")
    kvsal = [x.strip() for x in kvsal]
    kvsal = kvsal[:-7] + ["\n".join(kvsal[-7:-3]), "\n".join(kvsal[-3:])]
    segs = []
    grest = []
    def tstore(q):
        so = S_TDST if q < 7 else S_TDST2
        return [I(f"buffer_store_dwordx4 {ar(TREG[q] if tdefer else A_T,4)}, v{p2.V_L16 if tdefer else V_L16}, s[{S_WS}:{S_WS+3}], s{so} offen sc1", vm=("ts", q)), I(f"s_add_u32 s{so}, s{so}, 8192")]
    for s in range(NST - 1):
        tr = Trace()
        gaps = [[] for _ in range(66)]
        rl = reads(s, 1)
        u = s - KVD
        if 1 <= u <= 8:
            for e in range(2):
                for h in range(2):
                    rl.append(I(f"ds_read_b64_tr_b16 {ar(KVW+4*e+2*h,2)}, v{V_RKW} offset:{(s%2)*8192 + e*1024 + h*128}", lg=("kvf", s)))
        if u == 9:
            gaps[1].append(I(f"v_add_u32 v21, {LDS_KW + 8192*(s%2)}, v{V_L16}"))
            gaps[3].append(I(f"s_lshl_b32 s82, s{S_W}, 10")); gaps[5].append(I("v_add_u32 v22, s82, v21"))
            gaps[7].append(I("s_xor_b32 s82, s82, 2048")); gaps[9].append(I("v_add_u32 v21, s82, v21"))
            rl.append(I(f"ds_write_b128 v22, {ar(KVA,4)}", lg=("kvf", s)))
        for k, it in enumerate(rl): gaps[2*k].append(it)
        gaps[57].append(I(f"v_xor_b32 v{V_R3}, s{S_TOG}, v{V_R3}")); gaps[59].append(I(f"v_xor_b32 v{V_R7}, s{S_TOG}, v{V_R7}"))
        g, adv = dma_group(s + 1, ntw)
        lo = p1 if s == 0 else nhead
        G = 11 if u == 9 else 1
        for k in range(lo, len(g)):
            pre, it = g[k]
            if pre: gaps[G - 1].append(I(pre))
            gaps[G].append(it)
            for x in adv.get(k, []): gaps[G + 1].append(I(x))
            G += tsp0 if s else 4
        G = max(G - (tsp0 if s else 4) + 2, 3)
        if touch and (s >= 1 or tpro) and s + touch + 1 < NST and not (tpro and s + touch + 1 < 2 + tpro):
            if lead:
                for r_ in range(touch if s == 1 else 1):
                    gaps[G - 1].append(I(f"s_bitcmp1_b32 s{S_LMASK}, {s + r_ + lphase}\ns_cselect_b32 s60, s{S_TOFF}, {OOB:#x}"))
                    gaps[G].append(I(f"buffer_load_dword a{A_DUM}, v{V_T}, s[{S_TSRD}:{S_TSRD+3}], s60 offen"))
                    gaps[G + 1].append(I(f"s_add_u32 s60, s60, s{S_T2D}")); gaps[G + 1].append(I(touch_adv))
                    gaps[G + 2].append(I(f"buffer_load_dword a{A_DUM}, v{V_T}, s[{S_TSRD}:{S_TSRD+3}], s60 offen")); G += 4
            else:
              for _ in range(2 if (s == 1 and touch >= 2 and not tpro) else 1):
                gaps[G].append(touch_ins()); gaps[G + 1].append(I(touch_adv)); G += 2
        if tt0 and tt0 <= s < tt0 + 4:
            if s == tt0:
                pre_ = f"""v_lshrrev_b32 v21, 3, {L}
                v_min_u32 v21, 5, v21
                v_lshlrev_b32 v22, 16, v21
                v_cmp_lt_u32 vcc, 2, v21
                v_and_b32 v21, 7, {L}
                v_lshl_add_u32 v22, v21, 11, v22
                v_add_u32 v23, {16*2048}, v22
                v_cndmask_b32 v22, v22, v23, vcc
                v_bfe_u32 v23, {L}, 2, 1
                v_lshl_add_u32 v23, v23, 2, v21
                v_lshlrev_b32 v23, 11, v23
                v_and_b32 v24, 0x1ffff, v22
                s_lshr_b32 s61, s{S_MT}, 1""".split("\n")
                for k_, x in enumerate(pre_): gaps[2*k_ + 1].append(I(x.strip()))
                G = max(G, 28)
            gaps[G - 1].append(I(f"s_cmp_eq_u32 s61, {s - tt0}\ns_cselect_b32 s62, s{S_TSRC}, {OOB:#x}\ns_cselect_b32 s63, s{S_TSRCS}, {OOB:#x}\ns_cselect_b32 s60, s{S_TSRC2}, {OOB:#x}"))
            gaps[G].append(I(f"buffer_load_dword a{A_DUM}, v22, s[{S_WD}:{S_WD+3}], s62 offen")); G += 2
            gaps[G].append(I(f"buffer_load_dword a{A_DUM}, v23, s[{S_WD}:{S_WD+3}], s63 offen")); G += 2
            gaps[G].append(I(f"buffer_load_dword a{A_DUM}, v24, s[{S_WO}:{S_WO+3}], s60 offen")); G += 2
        if 0 <= u <= 7:
            for e in range(2):
                gaps[G].append(I(f"buffer_load_dwordx4 {ar(A_KX + 8*(u%2) + 4*e,4)}, v{V_KX}, s[{S_X}:{S_X+3}], 0 offen offset:{u*256 + e*64}", vm=("kx", u))); G += 2
        q = s - tq0
        if 0 <= q < 9:
            fl = " nt" if ntt else ""
            gaps[G - 1].append(I(f"s_add_u32 m0, s{S_M0T}, {(q%3)*4096}"))
            if q == 6:
                gaps[G - 2].append(I(f"v_lshrrev_b32 v{V_KX}, 5, {L}")); gaps[G - 1].append(I(f"v_lshl_add_u32 v{V_KX}, v{V_KX}, 13, v{V_DT}"))
                gaps[G].append(I(f"buffer_load_dwordx4 v{V_KX}, s[{S_WD}:{S_WD+3}], s{S_TSRCS} offen{fl} lds", vm=("t", q)))
            else:
                srdn, so = (S_WD, S_TSRC) if q < 7 else (S_WO, S_TSRC2)
                gaps[G].append(I(f"buffer_load_dwordx4 v{V_DT}, s[{srdn}:{srdn+3}], s{so} offen{fl} lds", vm=("t", q)))
                gaps[G + 1].append(I(f"s_add_u32 s{so}, s{so}, {48*2048 if q == 2 else 0x10000}"))
            G += 2
        q = s - tq0 - 2
        if 0 <= q < 9 and not tdefer:
            x, y = tstore(q); gaps[G].append(x); gaps[G + 1].append(y); G += 2
        if s == ot:
            for x in one_time: gaps[G].append(x); G += 2
        if s == 2:
            gaps[G - 1].append(I(f"v_mov_b32 v21, s{S_TAG}"))
            gaps[G].append(I(f"s_or_b32 s83, s2, s{S_W}\ns_cselect_b32 s83, {OOB:#x}, 0")); G += 2
            gaps[G].extend([I("s_mov_b64 exec, 1"), I(f"buffer_store_dword v21, off, s[{S_DBG}:{S_DBG+3}], s83 sc1"), I("s_mov_b64 exec, -1")]); G += 2
        if s == (11 if gsm else 6):
            gaps[G].append(I(f"buffer_load_dword a{A_TAG}, off, s[{S_DBG}:{S_DBG+3}], 0 sc1", vm=("zp", 0))); G += 2
        if s == esig + 1:
            gaps[G - 2].append(I(f"s_lshl_b32 s82, s{S_MT}, 5")); gaps[G - 1].append(I(f"s_add_u32 s82, s82, s{S_NT}\ns_lshl_b32 s82, s82, 7")); gaps[G].append(I(f"s_add_u32 s82, s82, {WS_FLAG + 0x28000:#x}"))
            gaps[G + 1].append(I(f"s_cmp_eq_u32 s{S_W}, 0\ns_cselect_b32 s82, s82, {OOB:#x}")); G += 2
            gaps[G].extend([I("s_mov_b64 exec, 1"), I(f"buffer_store_dword a{A_TAG}, off, s[{S_WS}:{S_WS+3}], s82 sc1"), I("s_mov_b64 exec, -1")]); G += 2
        if gsm and s == 10:
            gaps[G].extend([I("s_mov_b32 exec_lo, 1\ns_mov_b32 exec_hi, 1"), I(f"buffer_store_dwordx2 v[24:25], v{V_GROW}, s[{S_WS}:{S_WS+3}], 0 offen sc1"), I("s_mov_b64 exec, -1")]); G += 2
        kvstart = G
        if s == gl:
            for q_ in range(4):
                gaps[G].append(I(f"buffer_load_dwordx4 {ar(A_GX+4*q_,4)}, v{V_L16}, s[{S_X}:{S_X+3}], s{S_GROW} offen offset:{1024*q_}", vm=("g", 0))); G += 2
            for q_ in range(2):
                gaps[G].append(I(f"buffer_load_dwordx4 {ar(A_GW+4*q_,4)}, v{V_L16}, s[{S_GW}:{S_GW+3}], 0 offen offset:{1024*q_}", vm=("g", 0))); G += 2
        assert G < 64, (s, G)
        tr.wait(lg=[("fr", s, 0)] + ([("tf", q)] if 0 <= q < 9 else []) + ([("kvp", 0)] if u == 10 else []))
        vq = []
        if (gl + 2 <= s <= 9) if gsm else s in (gs + 2, gs + 3): vq = gfast
        if u == 10: vq = list(kvfin)
        k = 0
        for j in range(8):
            for i in range(8):
                tr.ins(mfma(0, j, i, first=(s == 0)))
                tr.items.extend(gaps[k])
                cap = vcap(gaps[k])
                if gsm and vq is gfast: cap = 0 if gaps[k] else 1
                if s == 0:
                    for _ in range(2):
                        if late and cap > 0:
                            for l in late.pop(0): tr.ins(l)
                            cap -= 1
                while vq and cap > 0 and not (u == 10 and k < kvstart - 8):
                    if vq[0].startswith("buffer_"):
                        if cap < 2: break
                        tr.ins(vq.pop(0), vm=("kvst", 0)); cap -= 2
                    else:
                        tr.ins(vq.pop(0)); cap -= 1
                k += 1
        if (s >= 9) if gsm else s != gs + 2: assert not vq
        need = [("st", s + 1)]
        if 0 <= s - tq0 - 1 < 9: need.append(("t", s - tq0 - 1))
        if s == (gl + 1 if gsm else gs + 1): need.append(("g", 0))
        if 1 <= u <= 8: need.append(("kx", u - 1))
        if s == (12 if gsm else 7): need.append(("zp", 0))
        if s == esig: need.append(("kvst", 0))
        if pads and s == chain_at: tr.ins("@CHAIN1")
        tr.wait(vm=need, lg=[("fr", s, 1)] + ([("kvf", s)] if 1 <= u <= 9 else []))
        tr.ins("s_barrier")
        segs.append(tr)
        tr = Trace()
        gaps = [[] for _ in range(68)]
        for k, it in enumerate(reads(s + 1, 0)): gaps[2*k + 1].append(it)
        q = s - tq0 - 1
        if 0 <= q < 9:
            for h in range(2):
                gaps[49 + 2*h].append(I(f"ds_read_b64_tr_b16 {ar((TREG[q] if tdefer else A_T)+2*h,2)}, v{V_RT} offset:{(q%3)*4096 + h*2048}", lg=("tf", q)))
        if u == 9:
            gaps[53].append(I(f"ds_read_b128 {ar(KVW,4)}, v21", lg=("kvp", 0)))
            for k, x in enumerate(kvsal): gaps[2*k + 3 if 2*k + 3 < 48 else 55].append(I(x.strip()))
        if s + 2 < NST:
            g, adv = dma_group(s + 2, ntw)
            hg = [hstart + 2*round(k*(62 - hstart)/(2*nhead)) for k in range(nhead)]
            for k in range(nhead):
                pre, it = g[k]
                if pre:
                    if hg[k]: gaps[hg[k] - 1].insert(0, I(pre))
                    else: tr.ins(pre)
                gaps[hg[k]].append(it)
                for x in adv.get(k, []): gaps[hg[k] + 2].append(I(x))
        if s == (12 if gsm else 7):
            gaps[54].append(I(f"v_accvgpr_read_b32 v1, a{A_TAG}"))
            gaps[56].append(I(f"v_cmp_eq_u32 vcc, 0, v1")); gaps[58].append(I("s_cbranch_vccnz KM_ZSPIN\nKM_ZBACK:"))
            gaps[60].append(I(f"v_accvgpr_write_b32 a{A_TAG}, v1")); gaps[62].append(I(f"v_readfirstlane_b32 s{S_TAG}, v1"))
        if s == 14:
            gaps[0].append(I(f"v_lshlrev_b32 v{V_T}, 7, {L}"))
            gaps[2].append(I(f"s_mov_b32 s{S_EF}, {WS_FLAG + 0x28000:#x}"))
            gaps[epos].append(I(f"buffer_load_dword v{V_KX}, v{V_T}, s[{S_WS}:{S_WS+3}], s{S_EF} offen sc1", vm=("ep", 0)))
            if pads:
                gaps[50].append(I("s_getpc_b64 s[32:33]\nKM_PC2:\ns_add_u32 s32, s32, KM_NORM-0x4000-KM_PC2\ns_addc_u32 s33, s33, 0"))
                gaps[52].append(I("s_and_b32 s33, s33, 0xffff")); gaps[53].append(I("s_mov_b32 s34, KM_END-KM_NORM+0x4000"))
                gaps[54].append(I("s_mov_b32 s35, 0x00020000")); gaps[55].append(I(f"s_lshl_b32 s82, s{S_W}, 13"))
                gaps[56].append(I(f"buffer_load_dword a{A_DUM}, v{V_T}, s[32:35], s82 offen"))
        vq = []; slow = []; slow_from = None
        if (gl + 1 <= s <= 8) if gsm else s in (gs + 1, gs + 2): vq = gfast
        if s == (9 if gsm else gs + 3): slow = list(gslow)
        ml = [mfma(1, j, i) for j in range(8) for i in range(8)]
        if 1 <= u <= 8:
            for e in range(2):
                ml.insert(30 + 20*e, f"v_mfma_f32_16x16x32_bf16 {ar(KVA,4)}, {ar(A_KX + 8*((u-1)%2) + 4*e,4)}, {ar(KVW+4*e,4)}, {'0' if (u == 1 and e == 0) else ar(KVA,4)}")
        for k, m in enumerate(ml):
            tr.ins(m)
            tr.items.extend(gaps[k])
            for _ in range((0 if gaps[k] else 1) if (gsm and vq) else vcap(gaps[k])):
                if vq: tr.ins(vq.pop(0))
                elif s == 0 and late:
                    for l in late.pop(0): tr.ins(l)
            if slow and not vq:
                if slow_from is None: slow_from = k + 2
                if k >= slow_from and (k - slow_from) % 2 == 0: tr.ins(slow.pop(0))
        for k in range(len(ml), 68): assert not gaps[k], (s, k)
        assert not slow and not late
        segs.append(tr)

    P = p2
    ec = Trace()
    ec.wait(vm=[("ep", 0)])
    ec.raw(f"""
    v_cmp_ne_u32 vcc, s{S_TAG}, v{V_KX}
    s_and_b32 s80, s2, 7
    s_lshr_b32 s81, s80, 1
    s_lshl_b32 s{P.S_MT}, s{S_MT}, 2
    s_cbranch_vccnz KM_ESPIN
    KM_EBACK:
    s_add_u32 s{P.S_MT}, s{P.S_MT}, s81
    s_lshl_b32 s{P.S_M0KV}, s{S_W}, 13
    s_add_u32 s82, s{P.S_M0KV}, {WS_KV:#x}
    s_add_u32 s{P.S_KVB}, s86, s82
    s_addc_u32 s{P.S_KVB+1}, s87, 0
    v_add_u32 v{V_DK}, 4096, v{V_L16}
    """)
    su2 = f"""
    s_and_b32 s80, s80, 1
    s_lshl_b32 s80, s80, 2
    s_and_b32 s90, s{S_NT}, 3
    s_add_u32 s{P.S_NT}, s80, s90
    s_lshr_b32 s90, s{P.S_MT}, 1
    s_mul_i32 s90, s90, 112
    s_mul_i32 s91, s{S_W}, 28
    s_add_u32 s90, s90, s91
    s_lshl_b32 s90, s90, 13
    s_and_b32 s42, s{P.S_MT}, 1
    s_lshl_b32 s42, s42, 12
    s_add_u32 s90, s90, s42
    s_add_u32 s58, s86, s90\ns_addc_u32 s59, s87, 0
    s_add_u32 s60, s58, 0x2000\ns_addc_u32 s61, s59, 0
    s_add_u32 s62, s58, 0x4000\ns_addc_u32 s63, s59, 0
    s_add_u32 s70, s58, 0x6000\ns_addc_u32 s71, s59, 0
    s_mov_b64 s[{P.S_HB}:{P.S_HB+1}], {'s[70:71]' if nhd else 's[62:63]'}
    s_mul_i32 s90, s{P.S_NT}, 144
    s_add_u32 s91, s91, s90
    s_lshl_b32 s91, s91, 13
    s_add_u32 s91, s91, {WS_WT:#x}
    s_add_u32 s64, s86, s91\ns_addc_u32 s65, s87, 0
    s_add_u32 s68, s64, 0x2000\ns_addc_u32 s69, s65, 0
    s_mov_b64 s[{P.S_WB}:{P.S_WB+1}], s[68:69]
    s_add_u32 s{P.S_XB}, s64, {P.SF0*8192}\ns_addc_u32 s{P.S_XB+1}, s65, 0
    s_lshl_b32 s91, s{S_W}, 3
    s_add_u32 s90, s90, s91
    s_lshl_b32 s90, s90, 13
    s_add_u32 s90, s90, {WS_WT + 112*8192:#x}
    s_add_u32 s{P.S_WOB}, s86, s90\ns_addc_u32 s{P.S_WOB+1}, s87, 0
    s_mul_i32 s{P.S_M0SP}, s{S_W}, 24576
    s_add_u32 s{P.S_M0SP}, s{P.S_M0SP}, {P.LDS_SP}
    s_mov_b32 s{P.S_SPM}, s{P.S_M0SP}
    s_add_u32 s{P.S_M0C}, s{P.S_M0KV}, 0x8000
    s_mov_b32 s{P.S_CNT}, 6
    s_add_u32 s66, s{P.S_WOB}, {(P.SF0 + 3 - P.NDOWN)*8192}\ns_addc_u32 s67, s{P.S_WOB+1}, 0
    s_mov_b32 s{P.S_OUT}, s96
    s_and_b32 s{P.S_OUT+1}, s97, 0xffff
    s_mov_b32 s{P.S_OUT+2}, {2048*1024*2:#x}
    s_mov_b32 s{P.S_OUT+3}, 0x00020000
    s_mov_b32 s{P.S_OF}, s{S_FLG}
    s_lshl_b32 s90, s{P.S_MT}, 12
    s_add_u32 s{P.S_OP}, s90, {WS_FLAG:#x}
    s_lshl_b32 s90, s{S_W}, 13
    s_add_u32 s{P.S_HP}, s90, {WS_FLAG + 0x20000:#x}
    s_lshl_b32 s90, s2, 7
    s_add_u32 s90, s90, {WS_FLAG + 0x20000:#x}
    s_cmp_eq_u32 s{S_W}, 0\ns_cselect_b32 s{P.S_HF}, s90, {OOB:#x}
    """
    su2 = [x.strip() for x in su2.strip().split("\n    ")]

    def last_stage(wn):
        tr = Trace()
        s = NST - 1
        su = f"""
        s_lshr_b32 s81, s{S_W}, 1
        s_lshl_b32 s82, s{S_MT}, 1
        s_add_u32 s82, s82, s81
        s_mul_i32 s82, s82, 112
        s_lshr_b32 s83, s{S_NT}, 1
        s_mul_i32 s83, s83, 7
        s_add_u32 s82, s82, s83
        s_and_b32 s84, s{S_NT}, 1
        s_add_u32 s85, s82, 6
        s_lshl_b32 s85, s85, 13
        s_mul_i32 s83, s84, 3
        s_add_u32 s82, s82, s83
        s_add_u32 s82, s82, {2*wn}
        s_lshl_b32 s82, s82, 13
        s_add_u32 s83, s82, 8192
        """
        if wn:
            su += f"""
            s_lshl_b32 s84, s84, 9
            s_add_u32 s85, s85, s84
            v_and_b32 v21, 15, {L}
            v_lshlrev_b32 v21, 4, v21
            v_bfe_u32 v24, {L}, 4, 1
            v_lshl_add_u32 v22, v24, 9, v21
            v_lshl_add_u32 v21, v24, 10, v21
            v_lshrrev_b32 v24, 5, {L}
            v_lshl_add_u32 v22, v24, 10, v22
            v_lshl_add_u32 v21, v24, 8, v21
            s_lshl_b32 s81, s81, 13
            s_add_u32 s81, s81, {P.LDS_Q}
            v_add_u32 v22, s81, v22
            v_add_u32 v23, 4096, v21
            """
        setup = [l.strip() for l in su.strip().split("\n") if l.strip()] + su2
        ffn = lambda t, i: dict(kind="f", t=t, i=i, mf=[(2*t, i), (4 + 2*t, i), (2*t + 1, i), (5 + 2*t, i)])
        if wn == 0:
            halves = [[ffn(0, i) for i in range(8)], [ffn(1, i) for i in range(8)]]
        else:
            halves = [[dict(kind="q", i=i, mf=[(3, i), (7, i)]) for i in range(8)] +
                      [dict(kind="s", i=i, mf=[(2, i), (6, i), (2, i + 1), (6, i + 1)]) for i in range(0, 8, 2)],
                      [ffn(0, i) for i in range(8)]]
        pieces = halves[0] + halves[1]
        half = len(halves[0])
        jsets = [sorted(set(j for pc in hv for j, _ in pc["mf"])) for hv in halves]
        def piece_ops(pc, pk):
            o = []
            i = pc["i"]
            tmp = 12 + 4*(i % 2)
            def reg(j, i):
                p_, b = accn(j, i)
                if p_ == "v": return b
                for r in range(4): o.append(f"v_accvgpr_read_b32 v{tmp+r}, a{b+r}")
                return tmp
            r_ = [reg(j, i_) for j, i_ in pc["mf"]]
            if pc["kind"] == "q":
                g0_, g1_ = r_
            else:
                g0_, u0, g1_, u1 = r_
                for g_, u_ in ((g0_, u0), (g1_, u1)):
                    for r in range(4): o.append(f"v_max_f32 v{g_+r}, 0, v{g_+r}")
                    if pk:
                        o.append(f"v_pk_mul_f32 {vr(g_,2)}, {vr(g_,2)}, {vr(u_,2)}")
                        o.append(f"v_pk_mul_f32 {vr(g_+2,2)}, {vr(g_+2,2)}, {vr(u_+2,2)}")
                    else:
                        for r in range(4): o.append(f"v_mul_f32 v{g_+r}, v{g_+r}, v{u_+r}")
            o += [f"v_cvt_pk_bf16_f32 v{g0_}, v{g0_}, v{g0_+1}", f"v_cvt_pk_bf16_f32 v{g0_+1}, v{g0_+2}, v{g0_+3}",
                  f"v_cvt_pk_bf16_f32 v{g0_+2}, v{g1_}, v{g1_+1}", f"v_cvt_pk_bf16_f32 v{g0_+3}, v{g1_+2}, v{g1_+3}"]
            if pc["kind"] == "q":
                o.append(f"ds_write_b128 v22, {vr(g0_,4)} offset:{(i//2)*2048 + (i%2)*256}")
            elif pc["kind"] == "s":
                o += ["s_nop 1", f"v_permlane16_swap_b32 v{g0_}, v{g0_+2}", f"v_permlane16_swap_b32 v{g0_+1}, v{g0_+3}",
                      f"buffer_store_dwordx4 {vr(g0_,4)}, {'v21' if i < 4 else 'v23'}, s[{S_WS}:{S_WS+3}], s85 offen offset:{(i%4)*1024} sc1"]
            else:
                o.append(f"buffer_store_dwordx4 {vr(g0_,4)}, {'v%d' % (V_L16 if i < 4 else V_DK)}, s[{S_WS}:{S_WS+3}], {'s82' if pc['t'] == 0 else 's83'} offen offset:{(i%4)*1024} sc1")
            return o
        rl = [xread(s, 1, i) for i in range(8)]
        for j in jsets[0]: rl += [wread(s, 1, j, 0), wread(s, 1, j, 1)]
        for x in rl: x["lg"] = ("frA", 0)
        for j in jsets[1]: rl += [wread(s, 1, j, 0), wread(s, 1, j, 1)]
        kv0 = []
        for part in range(2):
            cl = [P.kv_dma(0, part, j) for j in range(4)]
            for x in cl: x["text"] = x["text"].replace(f"v{P.V_L16},", f"v{V_L16},").replace(f"v{P.V_L16B},", f"v{V_DK},")
            kv0.append(cl)
        q = s - tq0 - 2
        tr.wait(lg=[("fr", s, 0)] + ([("tf", q)] if 0 <= q < 9 else []))
        first = []
        if gs + 4 == s and not gsm:
            first.append([I("s_mov_b32 exec_lo, 1\ns_mov_b32 exec_hi, 1"), I(f"buffer_store_dwordx2 v[24:25], v{V_GROW}, s[{S_WS}:{S_WS+3}], 0 offen sc1", vm=("hst", 0)), I("s_mov_b64 exec, -1")])
        if 0 <= q < 9 and not tdefer: first.append([tstore(q)[0]])
        for k, (j, i) in enumerate([(j, i) for j in jsets[0] for i in range(8)]):
            tr.ins(mfma(0, j, i))
            if first:
                tr.items.extend(first.pop(0)); continue
            if k in (26, 29): tr.ins(f"s_add_u32 m0, s{P.S_M0KV}, {4096 if k == 29 else 0}")
            elif k in (27, 30): tr.items.extend(kv0.pop(0))
            elif rl: tr.items.append(rl.pop(0))
            for _ in range(2):
                if setup: tr.ins(setup.pop(0))
        assert not rl
        tr.items.extend(adv64(P.S_KVB, 32768))
        for x in setup: tr.ins(x)
        tr.wait(lg=[("frA", 0)])
        ml = []
        for pi, pc in enumerate(pieces):
            if pi == half:
                ml.append((W(lg=[("fr", s, 1)]), None))
                ml += [(mfma(0, j, i), None) for j in jsets[1] for i in range(8)]
            for j, i in pc["mf"]: ml.append((mfma(1, j, i), pi))
        done_at = {}; cnt = 0; vq = []; nextp = 0
        def put(x):
            tr.ins(x, vm=("hst", 0) if x.startswith("buffer_") else None, lg=("qw", 0) if x.startswith("ds_") else None)
        for k, (m, pi) in enumerate(ml):
            if isinstance(m, dict):
                tr.items.append(m); continue
            tr.ins(m); cnt += 1
            if pi is not None and (k + 1 == len(ml) or ml[k + 1][1] != pi): done_at[pi] = cnt
            budget = 2
            while budget > 0:
                if not vq and nextp in done_at and cnt - done_at[nextp] >= 9:
                    vq = piece_ops(pieces[nextp], False); nextp += 1
                if not vq: break
                c_ = 2 if vq[0].startswith(("buffer_", "ds_")) else 1
                if c_ > budget: break
                put(vq.pop(0)); cnt += 1; budget -= c_
        for x in vq: put(x); cnt += 1
        while nextp < len(pieces):
            if cnt - done_at[nextp] < 9: tr.ins("s_nop 7"); cnt += 8
            for x in piece_ops(pieces[nextp], True): put(x); cnt += 1
            nextp += 1
        return tr
    l0, l1 = last_stage(0), last_stage(1)

    L2 = f"v{P.V_LANE}"
    h2 = Trace()
    h2.raw(f"""
    v_mov_b32 {L2}, {L}
    v_mov_b32 v{P.V_L16}, v{V_L16}
    v_mov_b32 v{P.V_L16B}, v{V_DK}
    v_mov_b32 v{P.V_KVR}, v{V_L16}
    s_lshl_b32 s80, s{S_W}, 12
    s_add_u32 s80, s80, {P.LDS_Q}
    v_add_u32 v24, s80, v{V_L16}
    """)
    h2.wait(vm=[("kv", 0)])
    h2.raw("s_waitcnt lgkmcnt(0)\ns_barrier")
    for q in range(4): h2.ins(f"ds_read_b128 {ar(P.A_Q + 4*q,4)}, v24 offset:{q*1024}", lg=("q", 0))
    for half in range(2): h2.items.append(P.k_read(0, half))
    for half in range(2): h2.items.append(P.v_read(0, half))
    for pp in range(4):
        h2.raw(f"""
        s_add_u32 s80, s{S_W}, {pp}
        s_and_b32 s80, s80, 3
        s_lshl_b32 s80, s80, 11
        v_add_u32 v{P.V_W+pp}, s80, v{P.V_L16}
        """)
    h2.wait(lg=[("k", 0)])
    h2.ins(P.qk(0, 0)); h2.ins(P.qk(0, 1))
    for q in range(4):
        h2.ins(f"v_add_u32 v{P.V_SP+q}, s{P.S_M0SP}, v{P.V_W+q}")
        h2.ins(f"v_add_u32 v{P.V_KP+q}, s{P.S_M0KV}, v{P.V_W+q}")
    h2.raw(f"""
    v_bfe_u32 v26, {L2}, 4, 1
    v_bfe_u32 v27, {L2}, 2, 1
    v_cmp_eq_u32 vcc, v26, v27
    v_mov_b32 v26, 0x3f803f80
    s_lshl_b32 s40, s{P.S_MT}, 9
    s_add_u32 s40, s40, {WS_G:#x}
    v_cndmask_b32 v26, 0, v26, vcc
    """)
    for r in range(4): h2.ins(f"v_accvgpr_write_b32 a{P.A_SEL+r}, v26")
    h2.raw(f"""
    s_lshl_b32 s41, s{S_MT}, 11
    s_lshl_b32 s80, s{S_W}, 9
    s_add_u32 s41, s41, s80
    s_add_u32 s41, s41, {WS_G:#x}
    v_and_b32 v26, 31, {L2}
    v_lshlrev_b32 v26, 3, v26
    v_and_b32 v27, 15, {L2}
    v_lshlrev_b32 v27, 3, v27
    v_lshlrev_b32 v25, 7, {L2}
    v_mov_b32 v24, s{S_TAG}
    """)
    def rebase(x, frm, to):
        x["text"] = x["text"].replace(f"s[{frm}:{frm+1}]", f"s[{to}:{to+1}]"); return x
    wl = lambda sg, J0, b: [rebase(P.w_load(sg, J), P.S_WB, b) for J in range(J0, J0 + 4)]
    hl = lambda sg, b: [rebase(P.h_load(sg, i), P.S_HB, b) for i in range(4)]
    early = []
    timed = [(1 + q // 3, tstore(q)) for q in range(9)] if tdefer else []
    if tp2:
        LT2 = 81920
        h2.raw(f"""
        v_lshrrev_b32 v17, 5, {L2}
        v_lshl_add_u32 v17, v17, 13, v{V_DT}
        v_add_u32 v{V_RT}, {LT2 - LDS_T}, v{V_RT}
        s_add_u32 s{S_M0T}, s{S_M0T}, {LT2 - LDS_T}
        """)
        fl = " nt" if ntt else ""
        for q in range(9):
            it_ = [I(f"s_add_u32 m0, s{S_M0T}, {q*4096}"), I("s_nop 0")]
            if q == 6: it_.append(I(f"buffer_load_dwordx4 v17, s[{S_WD}:{S_WD+3}], s{S_TSRCS} offen{fl} lds", vm=("t", q)))
            else:
                srdn, so = (S_WD, S_TSRC) if q < 7 else (S_WO, S_TSRC2)
                it_ += [I(f"buffer_load_dwordx4 v{V_DT}, s[{srdn}:{srdn+3}], s{so} offen{fl} lds", vm=("t", q)), I(f"s_add_u32 s{so}, s{so}, {48*2048 if q == 2 else 0x10000}")]
            timed.append((1 + q // 3, it_))
        timed.append((tb, [W(vm=[("t", 8)]), I("s_barrier")]))
        for q in range(9):
            timed.append((tb + q // 3, [I(f"ds_read_b64_tr_b16 {ar(P.A_WR + 4*q + 2*h,2)}, v{V_RT} offset:{q*4096 + h*2048}", lg=("tf", q)) for h in range(2)]))
        for q in range(9):
            so = S_TDST if q < 7 else S_TDST2
            timed.append((tb + 3 + q // 3, [W(lg=[("tf", q)]), I(f"buffer_store_dwordx4 {ar(P.A_WR + 4*q,4)}, v{P.V_L16}, s[{S_WS}:{S_WS+3}], s{so} offen sc1", vm=("ts", q)), I(f"s_add_u32 s{so}, s{so}, 8192")]))
    timed += [(hsig, [W(vm=[("hst", 0), ("ts", 8)]), I("s_barrier"), I("s_mov_b64 exec, 1"), I(f"buffer_store_dword v24, off, s[{S_WS}:{S_WS+3}], s{P.S_HF} sc1"), I("s_mov_b64 exec, -1")]),
             (hpoll, [I(f"buffer_load_dword v28, v25, s[{S_WS}:{S_WS+3}], s{P.S_HP} offen sc1", vm=("hp", 0))]),
             (hpoll + 2, [W(vm=[("hp", 0)]), I(f"v_cmp_ne_u32 vcc, s{S_TAG}, v28"), I("s_nop 0"), I("s_cbranch_vccnz KM_HSPIN"), I("KM_HBACK:"), I("s_barrier")] + hl(0, 58)),
             ]
    gl_ = [[I(f"buffer_load_dword v{P.V_G+hh}, v26, s[{S_WS}:{S_WS+3}], s41 offen offset:{hh*256} sc1", vm=("g2", 0)) for hh in range(2)],
           [I(f"buffer_load_dword v{P.V_OMG+i}, v27, s[{S_WS}:{S_WS+3}], s40 offen offset:{4 + i*128} sc1", vm=("g2", 0)) for i in range(4)]]
    if nhd:
        timed += [(hpoll + 2, wl(0, 0, 64)), (hpoll + 3, wl(0, 4, 64)), (hpoll + 4, wl(1, 0, 68)), (hpoll + 5, wl(1, 4, 68)),
                  (hpoll + 6, hl(1, 60)), (hpoll + 7, hl(2, 62)), (hpoll + 8, hl(3, 70)), (hpoll + 12, gl_[0]), (hpoll + 13, gl_[1])]
    else:
        sl_ = lambda k: min(hpoll + 2 + (k*psp) // 2, 30)
        timed += [(sl_(k + 1), x) for k, x in enumerate([wl(0, 0, 64), wl(0, 4, 64), hl(1, 60), wl(1, 0, 68), wl(1, 4, 68), hl(2, 62), gl_[0], gl_[1]])]
        zl = [I(f"v_mov_b32 v{P.ACC + r}, 0") for r in range(128)]
        timed = [(1 + k // 2, zl[8*k: 8*k + 8]) for k in range(8)] + [timed[0]] + [(hsig + 1 + k // 2, zl[64 + 8*k: 72 + 8*k]) for k in range(8)] + timed[1:]
    NDOWN = P.NDOWN
    xl = [([P.x_base(sg)] if J0 == 0 else []) + [P.w_load(sg, J) for J in range(J0, J0 + 4)] for sg in (NDOWN + 6, NDOWN + 7) for J0 in (0, 4)]
    def xfix(grps, s):
        for g_ in grps:
            for x in g_: x["text"] = x["text"].replace(f"s[{P.S_XB}:{P.S_XB+1}]", "s[52:53]").replace(f"s_add_u32 s{P.S_XB},", "s_add_u32 s52,").replace(f"s_addc_u32 s{P.S_XB+1},", "s_addc_u32 s53,")
        return grps
    xfix(xl, 0)
    if xhead:
        timed = timed[:-2] + [(hpoll + 9 + k, xl.pop(0)) for k in range(4)] + [(hpoll + 13, timed[-2][1]), (hpoll + 14, timed[-1][1])]
    peel = []
    if xpeel:
        flat = [x for g_ in xl for x in g_]; xl.clear()
        k_ = 0
        for x in flat:
            if peel and peel[-1][1][-1]["text"].startswith("s_"): peel[-1][1].append(x)
            else: peel.append((32 + k_, [x])); k_ = min(k_ + 1, 15)
        peel = [(32 + (n_*15)//16, it_) for n_, (_, it_) in enumerate(peel)]
    headseg = P.segment(0, 32, 0, 32*P.NHEAD, g0, timed)
    bodies = [P.segment(16*it, 16*it + 16, 32*(P.NHEAD + 4*(it - 2)), 32*(P.NHEAD + 4*(it - 1)), 16*it, timed=peel if it == 2 else (), loop=True) for it in range(2, 8)]
    for b_ in bodies: b_.ins(f"s_cmp_lg_u32 s{P.S_CNT}, 0")
    NDOWN, NWO, ACC = P.NDOWN, P.NWO, P.ACC
    t1 = Trace()
    n = P.NSLOT - 1
    t1.wait(lg=[("v", 63)])
    t1.ins("s_nop 1")
    t1.ins(P.pv(n, 0)); t1.ins(P.summ(n, 0)); t1.ins(P.pv(n, 1)); t1.ins(P.summ(n, 1))
    VO = P.V_O
    q_ = Trace()
    q_.raw(f"""
    v_bfe_u32 v26, {L2}, 4, 1
    s_lshl_b32 s78, s{S_MT}, 1
    v_lshlrev_b32 v26, 10, v26
    s_lshr_b32 s79, s{S_W}, 1
    v_and_b32 v27, 15, {L2}
    s_add_u32 s78, s78, s79
    v_lshl_add_u32 v26, v27, 4, v26
    s_lshl_b32 s78, s78, 5
    v_lshrrev_b32 v27, 5, {L2}
    s_add_u32 s78, s78, s{S_NT}
    v_lshl_add_u32 v26, v27, 8, v26
    s_lshl_b32 s78, s78, 13
    s_and_b32 s79, s{S_W}, 1
    s_lshl_b32 s79, s79, 12
    s_add_u32 s78, s78, s79
    s_add_u32 s54, s78, {WS_O:#x}
    s_mov_b32 s78, 0x1f800000
    s_mov_b32 s79, 0x5f800000
    s_mov_b32 s55, 0
    v_accvgpr_read_b32 v80, a{P.A_L}
    v_accvgpr_read_b32 v81, a{P.A_L+4}
    """)
    q_.wait(vm=[("g2", 0)])
    q_.raw(f"""
    v_min_f32 v83, v80, v81
    v_max_f32 v84, v80, v81
    v_add_f32 v85, v80, v81
    v_cmp_nle_f32 s[82:83], s78, v83
    v_cmp_nge_f32 s[84:85], s79, v84
    v_cmp_u_f32 vcc, v85, v85
    """)
    q_.ins("s_nop 1\ns_or_b64 s[82:83], s[82:83], s[84:85]\ns_or_b64 vcc, vcc, s[82:83]\ns_cbranch_vccnz KM_FALLBACK\nKM_NORM:\nv_rcp_f32 v80, v80")
    q_.raw(f"""
    v_rcp_f32 v82, v81
    v_mul_f32 v80, v80, v{P.V_G}
    v_mul_f32 v82, v82, v{P.V_G+1}
    """)
    for hh in range(2):
        for pc in range(2):
            b = VO + 16*hh + 8*pc
            for r in range(8): q_.ins(f"v_mul_f32 v{b+r}, v{b+r}, v{80+2*hh}")
            for q in range(4): q_.ins(f"v_cvt_pk_bf16_f32 v{64+8*hh+4*pc+q}, v{b+2*q}, v{b+2*q+1}")
            q_.ins(f"buffer_store_dwordx4 {vr(64+8*hh+4*pc,4)}, v26, s[{S_WS}:{S_WS+3}], s54 offen offset:{hh*2048 + pc*512} sc1", vm=("ost", 0))
    vq = q_.items
    nA, nB = nb
    stepsA = [P.gemm_step(s, vq=vq) for s in range(NIN, NIN + nA)]
    t2 = Trace()
    t2.items.extend(vq)
    t2.ins("s_nop 1")
    for q in range(4):
        t2.ins(f"v_mfma_f32_16x16x32_bf16 v[84:87], {ar(P.A_SEL,4)}, {vr(64+4*q,4)}, {'0' if q == 0 else 'v[84:87]'}")
    stepsA.append(t2)
    polli = lambda: I(f"buffer_load_dword v28, v25, s[{S_WS}:{S_WS+3}], s{P.S_OP} offen sc1", vm=("op", 0))
    x33 = xfix([[P.x_base(NDOWN + 5)] + [P.w_load(NDOWN + 5, J) for J in range(4)], [P.w_load(NDOWN + 5, J) for J in range(4, 8)]], 0)
    xq = [x33] + [[xl.pop(0), xl.pop(0)] for _ in range(len(xl)//2)]
    stepsB = [P.gemm_step(s, extra=xq.pop(0) if xq else [], late=[polli()] if s == NIN + nA + nB - 1 else []) for s in range(NIN + nA, NIN + nA + nB)]
    assert not xl and not xq
    sig = Trace()
    sig.raw(f"""
    v_and_b32 v25, 31, {L2}
    v_lshlrev_b32 v25, 7, v25
    s_lshr_b32 s78, s{P.S_MT}, 1
    s_lshl_b32 s78, s78, 18
    s_add_u32 s78, s78, s42
    s_lshl_b32 s79, s{S_W}, 16
    s_add_u32 s78, s78, s79
    s_add_u32 s78, s78, {WS_O:#x}
    s_add_u32 s56, s86, s78
    s_addc_u32 s57, s87, 0
    """)
    sig.raw(f"""
    v_sub_f32 v84, v84, v84
    s_cmp_lg_u32 s55, 0
    v_cmp_u_f32 vcc, v84, v84
    s_cbranch_scc1 KM_CHECKED
    s_cbranch_vccnz KM_FALLBACK2
    KM_CHECKED:
    """)
    sig.wait(vm=[("ost", 0)])
    sig.raw(f"""
    s_mov_b64 exec, 1
    buffer_store_dword v24, off, s[{S_WS}:{S_WS+3}], s{P.S_OF} sc1
    s_mov_b64 exec, -1
    """)
    t3 = Trace()
    t3.wait(vm=[("op", 0)])
    t3.raw(f"""
    v_cmp_ne_u32 vcc, s{S_TAG}, v28
    s_nop 0
    s_cbranch_vccnz KM_OSPIN
    KM_OBACK:
    """)
    ol = []
    for s in range(NDOWN, NDOWN + NWO):
        ol.append([rebase(P.h_load(s, i), P.S_HB, 56) for i in range(4)] + (adv64(56, 8192) if s < NDOWN + NWO - 1 else []))
    t4 = Trace()
    for grp in ol[:opre]: t4.items.extend(grp)
    k = opre
    stepsC = []
    for s in range(NIN + nA + nB, NDOWN):
        ex = []
        while len(ex) < 2 and k < 5: ex.append(ol[k]); k += 1
        stepsC.append(P.gemm_step(s, ex))
    wos = []
    for s in range(NDOWN, NDOWN + 4):
        ex = []
        while len(ex) < 2 and k < NWO: ex.append(ol[k]); k += 1
        wos.append(P.gemm_step(s, ex))
    ph = Trace()
    su = Asm()
    for pp in range(1, 4):
        su(f"s_add_u32 s78, s{S_W}, {pp}\ns_and_b32 s78, s78, 3\ns_mul_i32 s78, s78, 24576\ns_add_u32 s78, s78, {(pp-1)*8192}\nv_add_u32 v{26+pp}, s78, v{P.V_L16}")
    su(f"""
    s_mul_i32 s78, s{S_W}, 24576
    v_add_u32 v26, s78, v{P.V_L16}
    s_lshl_b32 s78, s{P.S_MT}, 17
    s_lshl_b32 s79, s{P.S_NT}, 8
    s_add_u32 s78, s78, s79
    s_lshl_b32 s79, s{S_W}, 6
    s_add_u32 s78, s78, s79
    s_add_u32 s79, s78, 0x8000
    s_add_u32 s80, s78, 0x10000
    s_add_u32 s81, s78, 0x18000
    v_and_b32 v30, 15, {L2}
    v_lshlrev_b32 v30, 11, v30
    v_bfe_u32 v25, {L2}, 4, 1
    v_lshl_add_u32 v30, v25, 5, v30
    v_lshrrev_b32 v25, 5, {L2}
    v_lshl_add_u32 v30, v25, 4, v30
    """)
    su = [l.strip() for l in su.lines]
    S2 = list(range(NDOWN + 4, NDOWN + 8))
    ph.wait(vm=[("w", s, J) for s in S2[1:] for J in range(8)], lg=[("w", s, J) for s in S2[:1] for J in range(8)])
    ph.ins("s_barrier")
    R0, R1, R2 = ACC + 32, ACC + 64, ACC + 96
    assert ph2new
    for idx, pp in enumerate((1, 2, 3, 0)):
        fill = [[] for _ in range(32)]
        if idx == 0:
            for q, x in enumerate(su): fill[q].append(I(x))
        else:
            prev = (1, 2, 3)[idx - 1]
            for t in range(8):
                fill[(4 + 3*t) if idx < 3 or not ph2new else (1 + t + (3 if t >= 4 else 0))].append(I(f"ds_write_b128 v{26+prev}, {vr(ACC + (prev*8 + t)*4, 4)} offset:{t*1024}", lg=("rw", prev)))
        if idx == 3:
            rd = [I(f"ds_read_b128 {vr((R0, R1, R2)[s_] + t*4, 4)}, v26 offset:{s_*8192 + t*1024}", lg=("rr", s_)) for s_ in range(3) for t in range(8)]
            if ph2new:
                for k_, x in enumerate(rd[:16]): fill[12 + k_ // 2].append(x)
                fill[21] += [W(lg=[("rw", 3)]), I("s_barrier")]
                for k_, x in enumerate(rd[16:]): fill[22 + k_ // 2].append(x)
                fill[26].append(W(lg=[("rr", 1)]))
                for k_ in range(10): fill[26 + k_ // 2].append(I(f"v_add_f32 v{R0+k_}, v{R0+k_}, v{R1+k_}"))
            else:
                free = [g for g in range(32) if not fill[g]]
                for x, g in zip(rd[:16], free): fill[g].append(x)
            ph.wait(lg=[("rw", 2)])
            ph.ins("s_barrier")
        mu = 0
        for s in S2:
            if idx == 0: ph.wait(vm=[("h", s, i) for i in range(4)])
            for J in (2*pp, 2*pp + 1):
                for i in range(4):
                    ph.ins(P.gemm_mfma(s, J, i, False)); ph.items.extend(fill[mu]); mu += 1
    if ph2new:
        for r in range(10, 32, 2): ph.ins(f"v_pk_add_f32 {vr(R0+r,2)}, {vr(R0+r,2)}, {vr(R1+r,2)}")
        ph.wait(lg=[("rr", 2)])
        for r in range(0, 32, 2): ph.ins(f"v_pk_add_f32 {vr(R0+r,2)}, {vr(R0+r,2)}, {vr(R2+r,2)}")
    else:
        ph.wait(lg=[("rw", 3), ("rr", 1)])
        ph.ins("s_barrier")
        ph.items.extend(rd[16:])
        for r in range(0, 32, 2): ph.ins(f"v_pk_add_f32 {vr(R0+r,2)}, {vr(R0+r,2)}, {vr(R1+r,2)}")
        ph.wait(lg=[("rr", 2)])
        for r in range(0, 32, 2): ph.ins(f"v_pk_add_f32 {vr(R0+r,2)}, {vr(R0+r,2)}, {vr(R2+r,2)}")
    for i in range(4):
        b0, b1 = ACC + i*4, ACC + (4 + i)*4
        d = 64 + i*4
        om = P.V_OMG + i
        for b in (b0, b0 + 2, b1, b1 + 2):
            ph.ins(f"v_pk_add_f32 {vr(b,2)}, {vr(b,2)}, {vr(b + 32,2)}")
        for b in (b0, b0 + 2, b1, b1 + 2):
            ph.ins(f"v_pk_mul_f32 {vr(b,2)}, {vr(b,2)}, {vr(om,2)} op_sel_hi:[1,0]" if om % 2 == 0 else f"v_pk_mul_f32 {vr(b,2)}, {vr(b,2)}, {vr(om-1,2)} op_sel:[0,1] op_sel_hi:[1,1]")
        ph.raw(f"""
        v_cvt_pk_bf16_f32 v{d}, v{b0}, v{b0+1}
        v_cvt_pk_bf16_f32 v{d+1}, v{b0+2}, v{b0+3}
        v_cvt_pk_bf16_f32 v{d+2}, v{b1}, v{b1+1}
        v_cvt_pk_bf16_f32 v{d+3}, v{b1+2}, v{b1+3}
        s_nop 1
        v_permlane16_swap_b32 v{d}, v{d+2}
        v_permlane16_swap_b32 v{d+1}, v{d+3}
        buffer_store_dwordx4 {vr(d,4)}, v30, s[{P.S_OUT}:{P.S_OUT+3}], s{78+i} offen sc1 nt
        """)
    head = [pro, pro2] + segs + [ec]
    rest = [h2, headseg] + bodies + [t1] + stepsA + [sig] + stepsB + [t3, t4] + stepsC + wos + [ph]
    import copy
    resolve(head + [l0] + rest)
    saved = [[(x.get("wvm"), x.get("wlg")) for x in seg.items] for seg in rest]
    resolve(head + [l1] + rest)
    for seg, sv in zip(rest, saved):
        for x, (v, l) in zip(seg.items, sv):
            if x["text"] is None:
                mn = lambda p, q: q if p is None else p if q is None else min(p, q)
                x["wvm"], x["wlg"] = mn(x["wvm"], v), mn(x["wlg"], l)
    emit_trace(a, [pro]); st.stamp()
    if pads:
        a("s_branch KM_BODY")
        a.lines.append(".p2align 12")
        a.label("KM_BODY")
    if al1 is not None:
        a.lines.append(".p2align 6")
        for _ in range(al1): a("s_nop 0")
    emit_trace(a, [pro2]); st.stamp()
    for k, tr in enumerate(segs):
        if 'wv' in exp and k % 2 == 0 and wv0 <= k // 2 < wv0 + 5:
            t_ = Trace(); t_.items = tr.items[:-2]; emit_trace(a, [t_]); st.stamp()
            t_.items = tr.items[-2:-1]; emit_trace(a, [t_]); st.stamp()
            t_.items = tr.items[-1:]; emit_trace(a, [t_]); st.stamp()
            continue
        emit_trace(a, [tr])
        if 'stg' in exp and k % 2 == 0: st.stamp()
    st.stamp()
    emit_trace(a, [ec])
    if 'ec' in exp: st.stamp()
    a(f"s_bitcmp1_b32 s{S_W}, 0")
    a("s_cbranch_scc1 KM_LAST1")
    emit_trace(a, [l0])
    a("s_branch KM_P2")
    a.label("KM_LAST1")
    emit_trace(a, [l1])
    if al2 is not None:
        a.lines.append(".p2align 6")
        for _ in range(al2): a("s_nop 0")
    a.label("KM_P2")
    st.stamp()
    if pads: a.lines.append("@CHAIN2")
    emit_trace(a, [h2]); st.stamp()
    b = Asm(); emit_trace(b, [headseg])
    for l in b.lines:
        a.lines.append(l)
        if 'its' in exp and l.strip() in ("s_barrier", "KM_HBACK:"): st.stamp()
    st.stamp()
    if xpeel: emit_trace(a, bodies[:1])
    a.lines.append(".p2align 6")
    a.label("KM_LOOP")
    emit_trace(a, bodies[1:] if xpeel else bodies)
    a("s_cbranch_scc1 KM_LOOP")
    st.stamp()
    emit_trace(a, [t1]); st.stamp()
    for seg in stepsA + [sig]: emit_trace(a, [seg])
    st.stamp()
    for seg in stepsB: emit_trace(a, [seg])
    st.stamp()
    emit_trace(a, [t3]); st.stamp()
    for seg in [t4] + stepsC: emit_trace(a, [seg])
    st.stamp()
    for seg in wos: emit_trace(a, [seg])
    st.stamp()
    b = Asm(); emit_trace(b, [ph])
    nm = 0
    for l in b.lines:
        a.lines.append(l)
        if l.strip().startswith("v_mfma"): nm += 1
        if 'ph' in exp and ((l.strip().startswith("v_mfma") and nm % 32 == 0) or (l.strip() == "s_barrier" and nm == 0) or "s81 offen" in l): st.stamp()
    if dbg:
        a("s_waitcnt vmcnt(0)")
        st.stamp(force=True)
        st.dump(0, S_W, 86)
        if hdbg is not None:
            a(f"""
            s_lshl_b32 s90, s2, 2
            s_add_u32 s90, s90, s{S_W}
            s_cmp_eq_u32 s90, {4*hdbg}
            s_cbranch_scc0 KM_END
            v_readlane_b32 s90, v31, 32
            v_mbcnt_lo_u32_b32 v0, -1, 0
            v_mbcnt_hi_u32_b32 v0, -1, v0
            v_subrev_u32 v31, s90, v31
            v_subrev_u32 v0, 32, v0
            v_lshlrev_b32 v0, 2, v0
            s_mov_b32 exec_lo, 0
            s_mov_b32 exec_hi, 0xfffe
            buffer_store_dword v31, v0, s[{S_DBG}:{S_DBG+3}], 0 offen
            """)
    a("s_endpgm")
    for nm, ld, val in (("Z", f"buffer_load_dword v1, off, s[{S_DBG}:{S_DBG+3}], 0 sc1", f"eq_u32 vcc, 0, v1"),
                        ("E", f"buffer_load_dword v{V_KX}, v{V_T}, s[{S_WS}:{S_WS+3}], s{S_EF} offen sc1", f"ne_u32 vcc, s{S_TAG}, v{V_KX}"),
                        ("H", f"buffer_load_dword v28, v25, s[{S_WS}:{S_WS+3}], s{P.S_HP} offen sc1", f"ne_u32 vcc, s{S_TAG}, v28"),
                        ("O", f"buffer_load_dword v28, v25, s[{S_WS}:{S_WS+3}], s{P.S_OP} offen sc1", f"ne_u32 vcc, s{S_TAG}, v28")):
        a(f"""
        KM_{nm}SPIN:
        s_mov_b32 s91, 0x40000
        KM_{nm}SPIN1:
        {ld}
        s_waitcnt vmcnt(0)
        v_cmp_{val}
        s_sub_u32 s91, s91, 1
        s_cbranch_vccz KM_{nm}BACK
        s_cmp_eq_u32 s91, 0
        s_cbranch_scc1 KM_{nm}BACK
        s_sleep 1
        s_branch KM_{nm}SPIN1
        """)
    A_K, A_Q = P.A_K, P.A_Q
    a.label("KM_FALLBACK2")
    a("s_mov_b32 s55, 2")
    a.label("KM_FALLBACK")
    a(f"""
    s_or_b32 s55, s55, 1
    s_waitcnt vmcnt(0) lgkmcnt(0)
    s_nop 15
    v_mov_b32 v82, 0xff7fffff
    v_mov_b32 v83, 0xff7fffff
    v_mov_b32 v80, 0
    v_mov_b32 v81, 0
    s_mov_b32 s78, {WS_KV:#x}
    """)
    for r in range(32): a(f"v_mov_b32 v{VO+r}, 0")
    a.label("KM_FB_LOOP")
    for q in range(4):
        a(f"buffer_load_dwordx4 {ar(A_K+4*q,4)}, v{P.V_L16}, s[{S_WS}:{S_WS+3}], s78 offen offset:{q*1024} sc1")
    a("s_waitcnt vmcnt(0)")
    for hh in range(2):
        O = VO + 16*hh; m = 82 + hh; l = 80 + hh
        a(f"v_mfma_f32_32x32x16_bf16 v[64:79], {ar(A_K,4)}, {ar(A_Q+8*hh,4)}, 0")
        a(f"v_mfma_f32_32x32x16_bf16 v[64:79], {ar(A_K+4,4)}, {ar(A_Q+8*hh+4,4)}, v[64:79]")
        a("s_nop 15")
        a("v_max_f32 v84, v64, v65")
        for r in range(2, 16, 2): a(f"v_max3_f32 v84, v{64+r}, v{65+r}, v84")
        a(f"""
        v_mov_b32 v85, v84
        s_nop 1
        v_permlane32_swap_b32 v84, v85
        s_nop 1
        v_max3_f32 v84, v84, v85, v{m}
        v_sub_f32 v85, v{m}, v84
        v_exp_f32 v85, v85
        v_mov_b32 v{m}, v84
        v_mul_f32 v{l}, v{l}, v85
        """)
        for r in range(16):
            a(f"v_sub_f32 v{64+r}, v{64+r}, v84")
            a(f"v_exp_f32 v{64+r}, v{64+r}")
            a(f"v_mul_f32 v{O+r}, v{O+r}, v85")
        for r in range(8): a(f"v_cvt_pk_bf16_f32 v{64+r}, v{64+2*r}, v{65+2*r}")
        for r in range(8):
            a(f"v_lshlrev_b32 v86, 16, v{64+r}\nv_and_b32 v87, 0xffff0000, v{64+r}\nv_add_f32 v{l}, v{l}, v86\nv_add_f32 v{l}, v{l}, v87")
        a(f"v_mfma_f32_32x32x16_bf16 {vr(O,16)}, {ar(A_K+8,4)}, v[64:67], {vr(O,16)}")
        a(f"v_mfma_f32_32x32x16_bf16 {vr(O,16)}, {ar(A_K+12,4)}, v[68:71], {vr(O,16)}")
        a("s_nop 15")
    a(f"""
    s_add_u32 s78, s78, 4096
    s_cmp_lt_u32 s78, {WS_KV + 64*4096:#x}
    s_cbranch_scc1 KM_FB_LOOP
    v_mov_b32 v84, v80
    v_mov_b32 v85, v81
    s_nop 1
    v_permlane32_swap_b32 v80, v84
    v_permlane32_swap_b32 v81, v85
    s_nop 1
    v_add_f32 v80, v80, v84
    v_add_f32 v81, v81, v85
    s_cmp_eq_u32 s55, 1
    s_cbranch_scc1 KM_NORM
    v_rcp_f32 v80, v80
    v_rcp_f32 v82, v81
    s_nop 0
    v_mul_f32 v80, v80, v{P.V_G}
    v_mul_f32 v82, v82, v{P.V_G+1}
    """)
    for hh in range(2):
        for pc in range(2):
            b = VO + 16*hh + 8*pc
            for r in range(8): a(f"v_mul_f32 v{b+r}, v{b+r}, v{80+2*hh}")
            for q in range(4): a(f"v_cvt_pk_bf16_f32 v{64+8*hh+4*pc+q}, v{b+2*q}, v{b+2*q+1}")
            a(f"buffer_store_dwordx4 {vr(64+8*hh+4*pc,4)}, v26, s[{S_WS}:{S_WS+3}], s54 offen offset:{hh*2048 + pc*512} sc1")
    a(f"""
    s_waitcnt vmcnt(0)
    s_branch KM_CHECKED
    KM_END:
    s_endpgm
    """)
    return a.text()
```

```python
from common import *
import math, struct

LDS_SP = 65536
K2_LDS = 163840

V_L16, V_L16B, V_KVR = 1, 2, 3
V_W = 4
V_SP, V_KP = 8, 12
V_LANE, V_OMG, V_G = 16, 18, 22
SB = [32, 48]; PB = [64, 72]
ACC = 128
A_O, A_L, A_SEL, A_Q, A_K, A_V = 0, 32, 40, 44, 60, 76
A_WR, RW = 92, 16
A_HR, RH = 156, 4
A_WX = 220
S_OUT, S_WS = 20, 24
S_HB, S_WB, S_KVB, S_XB = 12, 14, 16, 18
S_W, S_MT, S_NT, S_M0KV, S_M0SP = 36, 28, 29, 30, 31
S_WOB = 32
S_HF, S_HP, S_OF, S_OP = 8, 9, 10, 11
LDS_Q = 65536
NDOWN, NWO = 28, 8
NSLOT = 128

I = lambda text, vm=None, lg=None: dict(text=text, vm=vm, lg=lg)
W = lambda vm=(), lg=(): dict(text=None, needvm=list(vm), needlg=list(lg))
def adv64(s, n): return [I(f"s_add_u32 s{s}, s{s}, {n:#x}\ns_addc_u32 s{s+1}, s{s+1}, 0")]

def accr(J, i): return vr(ACC + (J*4 + i)*4, 4)
V_O = 96
def wreg(sig, J):
    if sig == NDOWN + 7: return ar(A_WX + 4*J, 4)
    if sig == NDOWN + 6: return ar(A_O + 4*J, 4)
    if sig == NDOWN + 5: return vr(32 + 4*J, 4)
    return ar(A_WR + 4*((8*sig + J) % RW), 4)
OREGS = [ar(A_Q + 4*k, 4) for k in range(12)] + [vr(V_O + 4*k, 4) for k in range(8)] + [ar(A_HR + 4*k, 4) for k in range(4*RH)]
def hreg(sig, i, ring=False):
    if sig >= NDOWN and not ring: return OREGS[4*(sig - NDOWN) + i]
    return ar(A_HR + 16*(sig % RH) + 4*i, 4)
def gemm_mfma(sig, J, i, first):
    return f"v_mfma_f32_16x16x32_bf16 {accr(J,i)}, {wreg(sig,J)}, {hreg(sig,i)}, {'0' if first else accr(J,i)}"
def h_load(sig, i, ring=False):
    return I(f"global_load_dwordx4 {hreg(sig,i,ring)}, v{V_L16}, s[{S_HB}:{S_HB+1}] offset:{i*1024} sc1", vm=("hx" if ring and sig >= NDOWN else "h", sig, i))
NIN = 25
NHEAD = 1
KV1 = 8
def configure(nh):
    global NHEAD, NIN, SF0
    NHEAD = nh; NIN = 24 + nh; SF0 = NIN + 2
SF0 = NIN + 2
S_WB0 = 64
S_M0C, S_SPM, S_CNT = 34, 35, 39
def wsrc(sig):
    if sig < SF0: return "ring"
    if sig < NDOWN + 5: return "lds"
    return "x"
def slot_of(sig): return (sig - SF0) % 4
def w_load(sig, J):
    src = wsrc(sig)
    if src == "ring":
        return I(f"global_load_dwordx4 {wreg(sig,J)}, v{V_W + J//2}, s[{S_WB}:{S_WB+1}] offset:{(J%2)*1024} sc1", vm=("w", sig, J))
    if src == "x":
        return I(f"global_load_dwordx4 {wreg(sig,J)}, v{V_W + J//2}, s[{S_XB}:{S_XB+1}] offset:{(J%2)*1024} sc1", vm=("w", sig, J))
    k = slot_of(sig)
    reg, off = (V_SP, k*8192) if k < 3 else (V_KP, 0)
    return I(f"ds_read_b128 {wreg(sig,J)}, v{reg + J//2} offset:{off + (J%2)*1024}", lg=("w", sig, J))
def w_need(sig, J):
    return W(lg=[("w", sig, J)]) if wsrc(sig) == "lds" else W(vm=[("w", sig, J)])
def x_base(sig):
    b, o = (S_WB0, sig*8192) if sig < NDOWN else (S_WOB, (sig - NDOWN)*8192)
    return I(f"s_add_u32 s{S_XB}, s{b}, {o}\ns_addc_u32 s{S_XB+1}, s{b+1}, 0")
def fifo_fill(sig, half):
    k = slot_of(sig)
    m0 = I(f"s_add_u32 m0, s{S_M0SP}, {k*8192 + half*4096}") if k < 3 else I(f"s_add_u32 m0, s{S_M0KV}, {half*4096}")
    return m0, [I(f"global_load_lds_dwordx4 v{V_L16B if half else V_L16}, s[{S_XB}:{S_XB+1}] offset:{j*1024} sc1", vm=("wd", sig)) for j in range(4)]
def qk(n, half):
    T = n // 2; Sx = SB[n % 2]
    c = "0" if half == 0 else vr(Sx, 16)
    return f"v_mfma_f32_32x32x16_bf16 {vr(Sx,16)}, {ar(A_K + 8*(T%2) + 4*half,4)}, {ar(A_Q + 8*(n%2) + 4*half,4)}, {c}"
def pv(n, half):
    T = n // 2; O = V_O + 16*(n % 2)
    c = "0" if (n < 2 and half == 0) else vr(O, 16)
    return f"v_mfma_f32_32x32x16_bf16 {vr(O,16)}, {ar(A_V + 8*(T%2) + 4*half,4)}, {vr(PB[n%2] + 4*half,4)}, {c}"
def summ(n, half):
    Lr = A_L + 4*(n % 2)
    c = "0" if (n < 2 and half == 0) else ar(Lr, 4)
    return f"v_mfma_f32_16x16x32_bf16 {ar(Lr,4)}, {ar(A_SEL,4)}, {vr(PB[n%2] + 4*half,4)}, {c}"
def kv_off(T): return (T % 8)*4096
def k_read(T, half):
    return I(f"ds_read_b128 {ar(A_K + 8*(T%2) + 4*half,4)}, v{V_KVR} offset:{kv_off(T) + half*1024}", lg=("k", T))
def v_read(T, half):
    return I(f"ds_read_b128 {ar(A_V + 8*(T%2) + 4*half,4)}, v{V_KVR} offset:{kv_off(T) + 2048 + half*1024}", lg=("v", T))
def kv_dma(stage, part, j):
    v = V_L16 if part == 0 else V_L16B
    return I(f"global_load_lds_dwordx4 v{v}, s[{S_KVB}:{S_KVB+1}] offset:{j*1024} sc1", vm=("kv", stage))

def xcost(x):
    t = x["text"] or "s_"
    if t.startswith("ds_"): return 4
    if t.startswith("global_"): return 5
    if t.startswith("buffer_"): return 8
    if t.startswith("v_"): return 4
    if "\n" in t: return 4
    return 0

def segment(lo, hi, mu0, mu1, g0, timed=(), loop=False):
    seq = []
    mu = mu0
    for n in range(lo, hi):
        att = [(qk(n+1, 0), 32), (qk(n+1, 1), 32)]
        if n >= 1: att += [(pv(n-1, 0), 32), (summ(n-1, 0), 16), (pv(n-1, 1), 32), (summ(n-1, 1), 16)]
        top = mu0 if n < g0 else mu0 + round((mu1 - mu0)*(n + 1 - g0)/(hi - g0))
        cnt = top - mu
        for k, (t, p_) in enumerate(att):
            seq.append(dict(text=t, pipe=p_, slot=n, mu=None, k=k))
            for _ in range(round(cnt*(k + 1)/len(att)) - round(cnt*k/len(att))):
                sig, J, i = mu // 32, (mu % 32) // 4, mu % 4
                seq.append(dict(text=gemm_mfma(sig, J, i, sig == 0 and NHEAD > 0), pipe=16, slot=n, mu=mu, k=None)); mu += 1
    assert mu == mu1
    N = len(seq)
    gaps = [[] for _ in range(N)]
    pos_mu = {s["mu"]: g for g, s in enumerate(seq) if s["mu"] is not None}
    slot_start = {}
    for g, s in enumerate(seq): slot_start.setdefault(s["slot"], g)
    slot_start[hi] = N
    def place(item, lo_, hi_=None):
        G = lo_
        while G < N and gaps[G]: G += 1
        if hi_ is not None and G > hi_:
            lo_ = min(lo_, hi_)
            G = min(range(lo_, hi_ + 1), key=lambda g: (sum(xcost(x) + 1 for x in gaps[g]), g))
        assert G < N, (item, lo_, hi_, G)
        gaps[G].append(item); return G
    def place_cluster(items, lo_, hi_):
        hi_ = min(hi_, N - 1); lo_ = min(lo_, hi_)
        cands = [g for g in range(lo_, hi_ + 1) if not gaps[g]]
        big = [g for g in cands if seq[g]["pipe"] == 32]
        G = big[0] if big else cands[0] if cands else min(range(lo_, hi_ + 1), key=lambda g: (sum(xcost(x) + 1 for x in gaps[g]), g))
        gaps[G].extend(items); return G
    for m in range(mu0, mu1, 4):
        sig, J = m // 32, (m % 32) // 4
        w = w_need(sig, J)
        if J == 0: w["needvm"] += [("h", sig, q) for q in range(4)]
        gaps[pos_mu[m] - 1].append(w)
    for n in range(lo, hi, 2):
        gaps[slot_start[n + 1] - 1].append(W(lg=[("k", n // 2 + 1)]))
    for it in range(lo // 16, hi // 16):
        G = slot_start[16*it + 14]
        gaps[G] = [W(vm=[("kv", it + 1)], lg=[("v", 8*it + 7)]), I("s_barrier"), I(f"v_xor_b32 v{V_KVR}, 0x8000, v{V_KVR}")] + gaps[G]
    for n in range(lo, hi):
        T = n // 2 + 1
        l_ = slot_start[n] + (1 if n % 16 == 14 else 0) + 1
        G = place(k_read(T, 0) if n % 2 == 0 else v_read(T, 0), l_, slot_start[n + 1] - 2)
        place(k_read(T, 1) if n % 2 == 0 else v_read(T, 1), G + 2, slot_start[n + 1] - 2)
    G = 0
    for sl, items in timed:
        G = place_cluster(items, max(slot_start[sl] + 1, G + 1), max(slot_start[sl + 1] - 2, G + 2))
    def place_split(items, lo_, hi_, step):
        G0 = None; G = lo_
        for k, x in enumerate(items):
            G = place_cluster([x], min(G, N - 1), min(hi_ + k*step, N - 1))
            if G0 is None: G0 = G
            last = G; G += step
        return G0, last
    lastw = -1
    for m in range(mu0 + 3, mu1, 4):
        sig, J = m // 32, (m % 32) // 4
        G = pos_mu[m]
        if J == 0: place(adv64(S_WB, 8192)[0], max(lastw + 1, G - 6), G - 1)
        lastw = place_cluster([w_load(sig + 2, J)], G, G + 3)
    for sig in range(mu0 // 32, mu1 // 32):
        if sig >= 1 or loop:
            G = pos_mu[32*sig]
            G = place(adv64(S_HB, 8192)[0], G, G + 2)
            place_split([h_load(sig - 1 + RH, i, True) for i in range(4)], G + 2, G + 8, 7)
    for it in range(lo // 16, hi // 16):
        for part in range(2):
            s0 = 16*it + (7 if it == 0 else KV1 if it == 1 else 1) + (2 if it == 1 else 3)*part
            cl = [kv_dma(it + 1, part, j) for j in range(4)]
            if it == 7: cl[-1]["vm2"] = ("wd", SF0 + 3)
            G0, G = place_split(cl, slot_start[s0] + 3, slot_start[s0] + (9 if loop else 5), 5 if loop else 2)
            assert G < slot_start[s0 + 2]
            place(I(f"s_add_u32 m0, s{S_M0C}, {part*4096}"), G0 - 3, G0 - 1)
        G = place(adv64(S_KVB, 32768)[0], G + 1)
        G = place(I(f"s_xor_b32 s{S_M0C}, s{S_M0C}, 0x8000"), G + 1)
        if loop:
            idx = it - 2
            cl = [I(f"global_load_lds_dwordx4 v{V_L16}, s[{S_XB}:{S_XB+1}] offset:{j*1024} sc1", vm=("wd", SF0 + idx // 2)) for j in range(4)]
            G0, G = place_split(cl, slot_start[16*it + 9] + 4, slot_start[16*it + 9] + 10, 5)
            place(I(f"s_mov_b32 m0, s{S_SPM}"), G0 - 3, G0 - 1)
            G = place(adv64(S_XB, 4096)[0], G + 1)
            G = place(I(f"s_add_u32 s{S_SPM}, s{S_SPM}, 4096"), G + 1)
            G = place(I(f"s_sub_u32 s{S_CNT}, s{S_CNT}, 1"), G + 1)
            G = place(I(f"s_cmp_eq_u32 s{S_CNT}, {6 - 2*(NDOWN - SF0)}\ns_cselect_b32 s{S_XB}, s{S_WOB}, s{S_XB}\ns_cselect_b32 s{S_XB+1}, s{S_WOB+1}, s{S_XB+1}"), G + 1)
            G = place(I(f"s_cmp_eq_u32 s{S_CNT}, 1\ns_cselect_b32 s{S_KVB}, s66, s{S_KVB}\ns_cselect_b32 s{S_KVB+1}, s67, s{S_KVB+1}"), G + 1)
    V = []
    for n in range(lo, hi):
        Sx, Px = SB[n % 2], PB[n % 2]
        for r in range(0, 16, 2):
            V += [(8, f"v_exp_f32 v{Sx+r}, v{Sx+r}", n, "e"), (8, f"v_exp_f32 v{Sx+r+1}, v{Sx+r+1}", n, "e")]
            if r >= 2: V.append((4, f"v_cvt_pk_bf16_f32 v{Px+r//2-1}, v{Sx+r-2}, v{Sx+r-1}", n, r//2 - 1))
        V.append((4, f"v_cvt_pk_bf16_f32 v{Px+7}, v{Sx+14}, v{Sx+15}", n, 7))
    vidx = {(n, k): i for i, (_, _, n, k) in enumerate(V) if k != "e"}
    for sq in seq:
        n, k = sq["slot"], sq["k"]
        dep = -1
        if k is not None and n > lo:
            dep = vidx[(n - 1, 7)] if k in (0, 4, 5) else vidx[(n - 1, 3)] if k in (2, 3) else -1
        sq["dep"] = dep
    pos_att = {(sq["slot"], sq["k"]): g for g, sq in enumerate(seq) if sq["k"] is not None}
    tr = Trace()
    t = valu = pipe = 0
    ig = iv = cnt = 0
    emitted_at = {}; vem_at = {}
    while ig < N or iv < len(V):
        m_ok = ig < N and seq[ig]["dep"] < iv and (seq[ig]["dep"] < 0 or cnt - vem_at[seq[ig]["dep"]] >= 2) and cnt >= 2
        v_ok = False
        if iv < len(V):
            c, txt_, n, k = V[iv]
            v_ok = True
            if n > lo and k == "e":
                g = pos_att[(n - 1, 1)]
                v_ok = g in emitted_at and cnt - emitted_at[g][0] >= 12 and max(t, valu) >= emitted_at[g][1] + 56
            if k != "e" and n >= 2 and n > lo:
                v_ok = pos_att[(n - 1, 3 if k < 4 else 5)] in emitted_at
        now = max(t, valu)
        if m_ok and (pipe <= now or not v_ok):
            s_ = max(now, pipe); t = s_ + 4; valu = s_ + 8; pipe = s_ + seq[ig]["pipe"]
            tr.ins(seq[ig]["text"]); cnt += 1; emitted_at[ig] = (cnt, s_)
            prev = ""
            for x in gaps[ig]:
                tr.items.append(x); cnt += 1 if x["text"] and not x["text"].endswith(":") else 0
                tx = x["text"] or "s_"
                if tx.startswith("ds_"): t += 4 if prev.startswith("ds_") else 8
                elif tx.startswith("global_"): t += 8 if prev.startswith("global_") else 10
                elif tx.startswith("buffer_"): t += 12
                else: t += 4*(1 + tx.count("\n"))
                prev = tx
            ig += 1
        elif v_ok:
            t = valu = now + c
            tr.ins(txt_); cnt += 1; vem_at[iv] = cnt; iv += 1
        else:
            tr.ins("s_nop 0"); cnt += 1; t += 4
    txt = [x["text"] for x in tr.items if x["text"]]
    for k in range(1, len(txt)):
        if txt[k].startswith("v_cvt") and txt[k-1].startswith("v_exp"):
            d = txt[k-1].split()[1].rstrip(",")
            assert d + "," not in txt[k] + ",", (txt[k-1], txt[k])
    return tr

TSP = 2
def gemm_step(sig, extra=(), late=(), vq=None, latepos=13):
    gaps = [[] for _ in range(32)]
    pre = []
    w = w_need(sig, 0); w["needvm"] += [("h", sig, 0)]
    pre.append(w)
    for i in range(1, 4): gaps[i - 1].append(W(vm=[("h", sig, i)]))
    s2 = sig + 2
    for J in range(8):
        if J % 4 == 3 and s2 < NDOWN + 5:
            assert wsrc(s2) == "lds"
            if J == 3: gaps[4*J + 2].append(W(vm=[("wd", s2)]))
            gaps[4*J + 3].extend(w_load(s2, q) for q in range(J - 3, J + 1))
        if J < 7: gaps[4*J + 3].insert(0, w_need(sig, J + 1))
    stream = []
    def add(lo, items):
        cur = []
        for n_, x in enumerate(items):
            t = x["text"] or ""
            if t.startswith(("global_", "buffer_")): stream.append((lo, cur + [x])); cur = []
            elif n_ == len(items) - 1: stream[-1][1].append(x)
            else: cur.append(x)
    ex = list(extra)
    if sig - 1 + RH < NDOWN: add(1, adv64(S_HB, 8192) + [h_load(sig - 1 + RH, i) for i in range(4)])
    if ex: add(3, ex[0])
    s3 = sig + 1 + 4
    if sig + 1 >= SF0 and s3 < NDOWN + 5:
        for half in range(2):
            m_, d_ = fifo_fill(s3, half)
            add(4, ([x_base(s3), m_, W(lg=[("w", sig + 1, 7)]), I("s_nop 0")] if half == 0 else [m_, I("s_nop 0")]) + d_)
            if half == 0 and late: add(latepos, list(late)); late = ()
    if late: add(latepos, list(late))
    for e_ in ex[1:]: add(14, e_)
    G = -TSP
    for k, (lo, items) in enumerate(stream):
        G = min(max(lo, G + TSP), 31 - (len(stream) - 1 - k))
        gaps[G].extend(items)
    tr = Trace()
    tr.items.extend(pre)
    for mu in range(32):
        tr.ins(gemm_mfma(sig, mu // 4, mu % 4, False))
        tr.items.extend(gaps[mu])
        n = 0
        while vq and n < 2:
            x = vq.pop(0); tr.items.append(x)
            if not (x["text"] or "s_").startswith("s_") or "\n" in (x["text"] or ""): n += 1
            elif vq and (vq[0]["text"] or "s_").startswith("s_"): n += 1
    return tr
```

```python
from common import *
import p2
from p2 import I, W, adv64
import math, struct

KM = NAME + "_kernel"
LDS_X = 0; LDS_W = 65536
LDS_R = 131072
LDS_QS = LDS_R; LDS_KW = LDS_R + 4096; LDS_T = LDS_R + 16384
KM_LDS = 163840
NST = 16
OOB = 0x7f000000

def accn(j, i): return ("v", 32 + (j*8 + i)*4) if j < 7 else ("a", 128 + i*4)
def acc(j, i):
    p, b = accn(j, i); return vr(b, 4, p)
XF = [0, 64]; WF = [32, 96]
KVW, KVA, A_GX, A_GW, A_T, A_KX, A_DUM = 160, 168, 172, 188, 204, 208, 255
TREG = [196, 200, 204, 224, 228, 232, 236, 240, 244]
V_DQ, V_DX, V_DW = 0, 2, 6
V_RX = [10, 11]
V_RW, V_R3, V_R7, V_RKW, V_T, V_KX, V_LANE = 12, 15, 16, 17, 18, 19, 20
V_GROW, V_L16, V_RT, V_DT, V_DK = 26, 27, 28, 29, 30
S_WQ, S_X, S_G, S_U, S_KV, S_WS, S_GW, S_TSRD, S_WD, S_WO, S_DBG = 4, 8, 12, 16, 20, 24, 28, 32, 52, 76, 72
S_W, S_MT, S_NT, S_OK = 36, 37, 38, 39
S_OX, S_OX2, S_OG, S_OQ, S_TSRCS = 40, 41, 42, 43, 44
S_M0X, S_M0W, S_M0K, S_M0T, S_M0Q = 45, 46, 47, 51, 56
S_TOFF, S_TSTEP, S_TOG = 48, 49, 50
S_TSRC, S_TDST, S_TSRC2, S_TDST2, S_GROW = 3, 94, 95, 100, 101
S_EF = 88
S_LMASK, S_T2D = 58, 59
S_TAG = 89
A_TAG = 254
S_FLG = 57

KVD = 1
def dma_group(s, ntw):
    b = s % 2
    g = []
    nt = " nt" if ntw else ""
    for half in range(2):
        so = S_OX if half == 0 else S_OX2
        for j in range(4):
            pre = f"s_add_u32 m0, s{S_M0X}, {b*32768 + half*4096}" if j == 0 else None
            g.append((pre, I(f"buffer_load_dwordx4 v{V_DX+j}, s[{S_X}:{S_X+3}], s{so} offen offset:{j*1024} lds", vm=("st", s))))
    for part in range(2):
        srdn = S_G if part == 0 else S_U
        for j in range(4):
            pre = f"s_add_u32 m0, s{S_M0W}, {b*32768 + part*16384}" if j == 0 else None
            g.append((pre, I(f"buffer_load_dwordx4 v{V_DW+j}, s[{srdn}:{srdn+3}], s{S_OG} offen offset:{j*1024}{nt} lds", vm=("st", s))))
    g.append((f"s_add_u32 m0, s{S_M0Q}, {b*2048}", I(f"buffer_load_dwordx4 v{V_DQ}, s[{S_WQ}:{S_WQ+3}], s{S_OQ} offen{nt} lds", vm=("st", s))))
    adv = {7: [f"s_add_u32 s{S_OX}, s{S_OX}, 128", f"s_add_u32 s{S_OX2}, s{S_OX2}, 128"],
           15: [f"s_add_u32 s{S_OG}, s{S_OG}, {64*7168}"], 16: [f"s_add_u32 s{S_OQ}, s{S_OQ}, 0x20000"]}
    if 1 <= s - KVD <= 8:
        g.append((f"s_add_u32 m0, s{S_M0K}, {b*8192}", I(f"buffer_load_dwordx4 v{V_DK}, s[{S_KV}:{S_KV+3}], s{S_OK} offen lds", vm=("st", s))))
        adv[17] = [f"s_add_u32 s{S_OK}, s{S_OK}, 8192"]
    return g, adv
def xread(s, kk, i):
    return I(f"ds_read_b128 {ar(XF[kk]+4*i,4)}, v{V_RX[kk]} offset:{(s%2)*32768 + i*2048}", lg=("fr", s, kk))
def wread(s, kk, j, h):
    if j % 4 == 3:
        reg, off = (V_R3 if j == 3 else V_R7), h*1024 + kk*8192
    else:
        reg, off = V_RW + (j & 3), (s % 2)*32768 + h*1024 + kk*8192 + (16384 if j >= 4 else 0)
    return I(f"ds_read_b64_tr_b16 {ar(WF[kk]+4*j+2*h,2)}, v{reg} offset:{off}", lg=("fr", s, kk))
def reads(s, kk):
    r = [wread(s, kk, 0, 0), wread(s, kk, 0, 1)] + [xread(s, kk, i) for i in range(8)]
    for j in range(1, 8): r += [wread(s, kk, j, 0), wread(s, kk, j, 1)]
    return r
def mfma(kk, j, i, first=False):
    return f"v_mfma_f32_16x16x32_bf16 {acc(j,i)}, {ar(WF[kk]+4*j,4)}, {ar(XF[kk]+4*i,4)}, {'0' if first else acc(j,i)}"
def vcap(items):
    c = 2
    for x in items:
        t = x["text"] or "s_"
        if t.startswith("ds_"): c -= 1
        elif t.startswith(("buffer_", "global_")): c -= 2
        elif t.startswith("v_"): c -= 1
    return max(c, 0)
from k1 import g_ops as _g_ops
import k1 as _k1
_k1.A_GX, _k1.A_GW = A_GX, A_GW

def gen(dbg=False, hdbg=None, lead=True, lphase=0, nhd=1, psp=2, ptc=0, tpos2=18, fflag=False, fpoll=2, xpeel=False, xhead=True, al1=None, al2=None, gsm=True, tsp0=4, hstart=0, xmask=0x1f, tt0=0, wv0=1, cl=1, gc=(10, 8), dc=8, slack=0, ph2new=True, tp2=False, tb=8, tlb=0, tlbpos=17, tdefer=False, tpro=0, tpos=0, gl=2, pads=0, epos=10, chain_at=1, ot=99, touch=1, nhead=13, p1=13, npro0=8, gs=11, tq0=5, ntw=False, ntt=True, exp='',
        g0=25, hsig=5, hpoll=16, opre=1, nb=(1, 2)):
    esig = KVD + 11
    if tp2:
        tq0 = 100
    p2.TCH = bool(ptc); p2.TPOS = tpos2
    p2.configure(nhd); p2.KV1 = 8 if fflag else max(8, hpoll - 13)
    if fflag: tq0 = 3
    NIN = p2.NIN
    a = Asm()
    L = f"v{V_LANE}"
    a("s_cmp_ge_u32 s2, 256")
    a("s_cbranch_scc1 KM_END")
    st = Stamps(a, dbg)
    st.stamp()
    a("s_memrealtime s[72:73]")
    a("s_load_dwordx8 s[56:63], s[0:1], 0")
    a("s_load_dwordx8 s[64:71], s[0:1], 48")
    a("s_load_dwordx2 s[74:75], s[0:1], 32")
    a("s_load_dwordx4 s[96:99], s[0:1], 80")
    a("s_load_dwordx2 s[86:87], s[0:1], 96")
    code_prefetch(a, "KM", 32, "a255", 3)
    a(f"""
    v_and_b32 {L}, 63, v0
    v_lshrrev_b32 v1, 6, v0
    s_and_b32 s80, s2, 7
    v_readfirstlane_b32 s{S_W}, v1
    s_lshr_b32 s81, s2, 3
    s_and_b32 s{S_MT}, s81, 7
    s_lshr_b32 s83, s81, 3
    s_lshl_b32 s80, s80, 2
    s_add_u32 s{S_NT}, s80, s83
    s_mul_i32 s85, s{S_NT}, 224
    s_mov_b32 s{S_OG}, 0
    s_mov_b32 s{S_OQ}, 0
    v_lshrrev_b32 v21, 3, {L}
    s_lshl_b32 s81, s{S_MT}, 8
    s_lshl_b32 s82, s{S_W}, 6
    s_add_u32 s81, s81, s82
    v_add_u32 v21, s81, v21
    v_lshlrev_b32 v21, 11, v21
    v_and_b32 v22, 7, {L}
    v_lshrrev_b32 v23, 4, {L}
    v_xor_b32 v22, v22, v23
    v_lshlrev_b32 v22, 4, v22
    v_xor_b32 v24, 64, v22
    """)
    for j in range(4):
        a(f"v_add_u32 v{V_DX+j}, v21, {'v22' if j % 2 == 0 else 'v24'}")
        if j: a(f"v_add_u32 v{V_DX+j}, {j*8*2048 - j*1024}, v{V_DX+j}")
    a(f"""
    s_mov_b32 s{S_OX}, 0
    s_mov_b32 s{S_OX2}, 65536
    s_mov_b32 s{S_OK}, 0
    s_lshl_b32 s81, s{S_W}, 4
    s_movk_i32 s84, 7168
    v_add_u32 v21, s81, v23
    v_mul_lo_u32 v21, v21, s84
    v_add_u32 v21, s85, v21
    v_and_b32 v25, 1, {L}
    v_lshl_add_u32 v21, v25, 4, v21
    v_bfe_u32 v22, {L}, 1, 3
    v_xor_b32 v22, v22, v23
    v_xor_b32 v24, 4, v22
    v_min_u32 v22, 6, v22
    v_min_u32 v24, 6, v24
    v_lshl_add_u32 v{V_DW}, v22, 5, v21
    v_add_u32 v{V_DW+1}, {4*7168 - 1024}, v{V_DW}
    v_lshl_add_u32 v{V_DW+2}, v24, 5, v21
    v_add_u32 v{V_DW+2}, {2*(4*7168 - 1024)}, v{V_DW+2}
    v_add_u32 v{V_DW+3}, {4*7168 - 1024}, v{V_DW+2}
    s_lshl_b32 s{S_M0X}, s{S_W}, 13
    s_lshl_b32 s{S_M0W}, s{S_W}, 12
    s_add_u32 s{S_M0W}, s{S_M0W}, {LDS_W}
    s_lshl_b32 s{S_M0K}, s{S_W}, 10
    s_add_u32 s{S_M0T}, s{S_M0K}, {LDS_T}
    s_add_u32 s{S_M0K}, s{S_M0K}, {LDS_KW}
    s_lshr_b32 s81, s{S_W}, 1
    s_and_b32 s80, s{S_W}, 1
    """)
    a(f"""
    v_lshlrev_b32 v21, 3, v23
    v_bfe_u32 v22, {L}, 2, 2
    v_add_u32 v21, v21, v22
    s_lshl_b32 s82, s81, 5
    s_lshl_b32 s83, s80, 2
    s_add_u32 s82, s82, s83
    v_add_u32 v21, s82, v21
    v_lshlrev_b32 v21, 11, v21
    v_bfe_u32 v22, {L}, 1, 1
    v_bfe_u32 v24, {L}, 4, 1
    v_xor_b32 v22, v22, v24
    v_lshl_add_u32 v21, v22, 5, v21
    v_lshl_add_u32 v21, v25, 4, v21
    s_lshl_b32 s82, s{S_NT}, 6
    v_add_u32 v{V_DQ}, s82, v21
    s_lshl_b32 s90, s81, 13
    s_lshl_b32 s83, s80, 10
    s_add_u32 s90, s90, s83
    s_waitcnt lgkmcnt(0)
    """)
    st.n and None
    a(f"s_or_b32 s{S_TAG}, s72, 1")
    srd(a, S_X, 56, 2048*1024*2)
    srd(a, S_G, 64, 1024*3584*2)
    srd(a, S_U, 66, 1024*3584*2)
    srd(a, S_WQ, 58, 1024*1024*2)
    a(f"s_add_u32 s{S_M0Q}, s90, {LDS_QS}")
    st.stamp()
    pro = Trace()
    def dma_items(s, lo, hi):
        g, adv = dma_group(s, ntw)
        out = []
        for k in range(lo, min(hi, len(g))):
            pre, it = g[k]
            out.append(([I(pre), I("s_nop 0")] if pre else []) + [it] + [I(x) for x in adv.get(k, [])])
        return out
    pc = Asm()
    pc(f"""
    v_lshlrev_b32 v{V_L16}, 4, {L}
    v_and_b32 v21, 15, {L}
    s_lshl_b32 s83, s81, 14
    v_lshlrev_b32 v22, 7, v21
    v_lshrrev_b32 v24, 1, v21
    v_xor_b32 v24, v24, v23
    v_lshl_add_u32 v22, v24, 4, v22
    v_add_u32 v{V_RX[0]}, s83, v22
    v_xor_b32 v{V_RX[1]}, 64, v{V_RX[0]}
    v_bfe_u32 v21, {L}, 2, 2
    v_lshl_add_u32 v22, v23, 3, v21
    v_and_b32 v24, 3, {L}
    v_lshlrev_b32 v24, 3, v24
    v_lshl_add_u32 v{V_RKW}, v22, 5, v24
    s_lshl_b32 s83, s81, 11
    s_add_u32 s83, s83, {LDS_KW}
    v_add_u32 v{V_RKW}, s83, v{V_RKW}
    v_lshl_add_u32 v22, v22, 8, v24
    v_add_u32 v22, {LDS_W}, v22
    v_and_b32 v25, 1, v23
    v_lshl_or_b32 v1, v25, 2, v21
    s_lshl_b32 s82, s80, 2
    """)
    for j in range(4):
        pc(f"s_add_u32 s83, s82, {j}")
        pc(f"v_xor_b32 v{V_T}, s83, v1")
        pc(f"v_lshl_add_u32 v{V_RW+j}, v{V_T}, 5, v22")
    pc(f"""
    v_add_u32 v{V_R7}, 16384, v{V_R3}
    v_lshl_add_u32 v22, v23, 2, v21
    v_lshl_add_u32 v22, v22, 6, v24
    v_lshl_add_u32 v22, v25, 5, v22
    v_add_u32 v22, {LDS_QS}, v22
    v_xor_b32 v1, 32, v22
    s_cmp_eq_u32 s80, 1
    s_cselect_b64 vcc, -1, 0
    s_movk_i32 s{S_TOG}, 2048
    s_cselect_b32 s{S_TOG}, s{S_TOG}, 0x8000
    v_cndmask_b32 v{V_R3}, v{V_R3}, v22, vcc
    v_cndmask_b32 v{V_R7}, v{V_R7}, v1, vcc
    """)
    p = Asm()
    p(f"""
    v_lshrrev_b32 v1, 3, {L}
    v_lshlrev_b32 v1, 11, v1
    v_bfe_u32 v25, {L}, 1, 2
    v_xor_b32 v25, v25, v23
    v_lshl_add_u32 v1, v25, 5, v1
    v_and_b32 v25, 1, {L}
    v_lshl_add_u32 v{V_DT}, v25, 4, v1
    v_lshl_add_u32 v1, v23, 2, v21
    v_bfe_u32 v25, v1, 1, 2
    v_xor_b32 v25, s{S_W}, v25
    v_lshlrev_b32 v1, 7, v1
    v_lshl_add_u32 v1, v25, 5, v1
    v_add_u32 v1, v1, v24
    v_add_u32 v{V_RT}, {LDS_T}, v1
    s_lshr_b32 s82, s2, 4
    s_and_b32 s83, s2, 15
    s_mul_i32 s{S_TSRC}, s82, {224*2048}
    s_lshl_b32 s90, s83, 7
    s_add_u32 s{S_TSRC}, s{S_TSRC}, s90
    s_lshl_b32 s{S_TSRC2}, s82, 17
    s_add_u32 s{S_TSRC2}, s{S_TSRC2}, s90
    s_mul_i32 s90, s80, {112*2048}
    s_add_u32 s{S_TSRCS}, s{S_TSRC}, s90
    s_lshl_b32 s90, s81, 13
    s_add_u32 s{S_TSRCS}, s{S_TSRCS}, s90
    s_add_u32 s{S_TSRCS}, s{S_TSRCS}, {96*2048}
    s_lshl_b32 s90, s{S_W}, 14
    s_add_u32 s{S_TSRC}, s{S_TSRC}, s90
    s_lshl_b32 s90, s80, 15
    s_add_u32 s{S_TSRC2}, s{S_TSRC2}, s90
    s_lshl_b32 s90, s81, 14
    s_add_u32 s{S_TSRC2}, s{S_TSRC2}, s90
    s_lshr_b32 s90, s83, 1
    s_mul_i32 s90, s90, {144*8192}
    s_and_b32 s83, s83, 1
    s_lshl_b32 s83, s83, 12
    s_add_u32 s90, s90, s83
    s_lshl_b32 s83, s{S_W}, 10
    s_add_u32 s90, s90, s83
    s_add_u32 s90, s90, {WS_WT:#x}
    s_mul_i32 s{S_TDST}, s82, {7*8192}
    s_add_u32 s{S_TDST}, s{S_TDST}, s90
    s_lshl_b32 s{S_TDST2}, s82, 14
    s_add_u32 s{S_TDST2}, s{S_TDST2}, s90
    s_add_u32 s{S_TDST2}, s{S_TDST2}, {112*8192}
    s_lshl_b32 s82, s2, 3
    s_lshl_b32 s83, s{S_W}, 1
    s_add_u32 s82, s82, s83
    s_lshl_b32 s{S_GROW}, s82, 11
    v_lshrrev_b32 v1, 5, {L}
    v_add_u32 v{V_GROW}, s82, v1
    v_lshlrev_b32 v{V_GROW}, 3, v{V_GROW}
    v_add_u32 v{V_GROW}, {WS_G:#x}, v{V_GROW}
    s_lshl_b32 s82, s{S_MT}, 2
    s_add_u32 s82, s82, s{S_W}
    s_lshl_b32 s82, s82, 5
    s_add_u32 s82, s82, s{S_NT}
    s_lshl_b32 s82, s82, 7
    s_add_u32 s{S_FLG}, s82, {WS_FLAG:#x}
    """)
    ps = Asm() if tlb else p
    ps(f"""
    s_and_b32 s82, s{S_NT}, 2
    s_cmp_eq_u32 s82, 0
    s_cselect_b32 s{S_KV}, s60, s62
    s_cselect_b32 s{S_KV+1}, s61, s63
    s_and_b32 s{S_KV+1}, s{S_KV+1}, 0xffff
    s_mov_b32 s{S_KV+2}, 65536
    s_mov_b32 s{S_KV+3}, 0x00020000
    """)
    srd(ps, S_WS, 86, WS_SIZE)
    srd(ps, S_GW, 70, 2048)
    srd(ps, S_WD, 68, 3584*1024*2)
    srd(ps, S_WO, 74, 1024*1024*2)
    srd(ps, S_DBG, 98, 256)
    p(f"""
    v_lshrrev_b32 v21, 1, {L}
    v_lshlrev_b32 v21, 6, v21
    v_and_b32 v22, 1, {L}
    v_lshl_add_u32 v21, v22, 4, v21
    s_and_b32 s82, s{S_NT}, 1
    s_lshl_b32 s82, s82, 5
    s_lshl_b32 s83, s{S_W}, 11
    s_add_u32 s82, s82, s83
    v_add_u32 v{V_DK}, s82, v21
    s_lshl_b32 s82, s{S_MT}, 8
    s_lshr_b32 s83, s{S_NT}, 2
    s_lshl_b32 s83, s83, 5
    s_add_u32 s82, s82, s83
    s_lshl_b32 s83, s80, 4
    s_add_u32 s82, s82, s83
    s_lshl_b32 s82, s82, 11
    s_lshl_b32 s83, s81, 7
    s_add_u32 s82, s82, s83
    v_and_b32 v21, 15, {L}
    v_lshlrev_b32 v22, 11, v21
    v_lshl_add_u32 v22, v23, 4, v22
    v_add_u32 v{V_KX}, s82, v22
    """)
    pt = Asm()
    plain_addr = f"""s_lshl_b32 s82, s{S_MT}, 3
        v_bfe_u32 v24, {L}, 2, 3
        v_add_u32 v24, s82, v24
        v_lshlrev_b32 v21, 11, v24
        v_mul_lo_u32 v24, v24, s84
        v_and_b32 v1, 3, {L}
        v_lshlrev_b32 v1, 7, v1
        v_min_u32 v1, 220, v1
        v_add3_u32 v24, v24, v1, s85
        s_lshl_b32 s82, s{S_NT}, 6
        v_add_u32 v21, s82, v21"""
    lead_addr = f"""s_mov_b32 s{S_TSTEP}, {OOB:#x}
        s_and_b32 s82, s{S_NT}, 3
        s_lshl_b32 s82, s82, 4
        v_lshrrev_b32 v24, 3, {L}
        v_add_u32 v24, s82, v24
        v_mul_lo_u32 v24, v24, s84
        v_and_b32 v1, 7, {L}
        v_min_u32 v1, 6, v1
        v_lshl_add_u32 v24, v1, 7, v24
        s_lshr_b32 s83, s{S_NT}, 2
        s_mul_i32 s90, s83, 896
        v_add_u32 v24, s90, v24
        v_bfe_u32 v21, {L}, 1, 4
        v_add_u32 v21, s82, v21
        v_lshlrev_b32 v21, 11, v21
        v_and_b32 v1, 1, {L}
        v_lshl_add_u32 v21, v1, 7, v21
        s_lshl_b32 s83, s83, 8
        v_add_u32 v21, s83, v21
        s_lshl_b32 s{S_LMASK}, 0x10101, s{S_MT}
        s_cmp_eq_u32 s{S_W}, 0
        s_cselect_b32 s{S_LMASK}, {xmask:#x}, s{S_LMASK}
        s_add_u32 s82, s{S_W}, 1
        s_and_b32 s82, s82, 2
        s_cselect_b32 s{S_T2D}, {8*7168}, s{S_TSTEP}"""
    if touch:
        (pt if tpro else p)(f"""
        s_and_b32 s82, s{S_NT}, 3
        s_lshl_b32 s82, s82, 6
        s_lshl_b32 s83, s{S_MT}, 8
        s_add_u32 s82, s82, s83
        v_add_u32 v25, s82, {L}
        v_lshlrev_b32 v25, 11, v25
        {lead_addr if lead else plain_addr}
        s_mov_b32 s{S_TSTEP}, {64*7168}
        s_cmp_eq_u32 s{S_W}, 0
        s_cselect_b64 vcc, -1, 0
        s_cselect_b32 s{S_TSRD}, s{S_X}, s{S_G}
        s_cselect_b32 s{S_TSRD+1}, s{S_X+1}, s{S_G+1}
        s_cselect_b32 s{S_TSRD+2}, s{S_X+2}, s{S_G+2}
        s_cselect_b32 s{S_TSTEP}, 128, s{S_TSTEP}
        v_cndmask_b32 v{V_T}, v24, v25, vcc
        s_cmp_eq_u32 s{S_W}, 2
        s_cselect_b32 s{S_TSRD}, s{S_U}, s{S_TSRD}
        s_cselect_b32 s{S_TSRD+1}, s{S_U+1}, s{S_TSRD+1}
        s_cmp_eq_u32 s{S_W}, 3
        s_cselect_b64 vcc, -1, 0
        s_cselect_b32 s{S_TSRD}, s{S_WQ}, s{S_TSRD}
        s_cselect_b32 s{S_TSRD+1}, s{S_WQ+1}, s{S_TSRD+1}
        s_cselect_b32 s{S_TSRD+2}, s{S_WQ+2}, s{S_TSRD+2}
        s_cselect_b32 s{S_TSTEP}, 0x20000, s{S_TSTEP}
        v_cndmask_b32 v{V_T}, v{V_T}, v21, vcc
        s_mov_b32 s{S_TSRD+3}, 0x00020000
        s_mul_i32 s{S_TOFF}, s{S_TSTEP}, {3 if lead else 2 if tpro else (touch + 1 if touch >= 2 else touch + 2)}
        """)
    late = []
    for l in [l.strip() for l in p.lines]:
        if late and l.startswith(("s_cselect", "s_addc", "v_cndmask", "s_movk_i32 s50")): late[-1].append(l)
        else: late.append([l])
    late += [[f"v_and_b32 v1, 31, {L}"], ["v_lshlrev_b32 v1, 7, v1"], ["s_lshr_b32 s82, s2, 3"], ["s_and_b32 s82, s82, 15"], ["s_lshl_b32 s82, s82, 12"]]
    d0 = dma_items(0, 0, 17)
    for grp in d0[:tlbpos]: pro.items.extend(grp)
    if tlb:
        for l in ps.lines: pro.ins(l.strip())
        pro.raw(f"""
        s_mov_b32 s80, s96
        s_and_b32 s81, s97, 0xffff
        s_mov_b32 s82, {2048*1024*2:#x}
        s_mov_b32 s83, 0x00020000
        v_lshlrev_b32 v1, {tlb}, {L}
        v_min_u32 v1, 0x7f000000, v1
        """)
        for sr_ in (S_G, S_U, S_WS, S_WD, S_WO, S_KV, S_GW, S_DBG, 80, S_X):
            pro.ins(f"buffer_load_dword a{A_DUM}, v1, s[{sr_}:{sr_+3}], 0 offen")
        pro.raw(f"s_lshr_b32 s81, s{S_W}, 1\ns_and_b32 s80, s{S_W}, 1")
    for grp in d0[tlbpos:]: pro.items.extend(grp)
    for l in pt.lines: pro.ins(l.strip())
    tch = lambda: [I(f"buffer_load_dword a{A_DUM}, v{V_T}, s[{S_TSRD}:{S_TSRD+3}], s{S_TOFF} offen", vm=("touch", 0)), I(f"s_add_u32 s{S_TOFF}, s{S_TOFF}, s{S_TSTEP}")]
    if tpos == 0:
        for _ in range(tpro): pro.items.extend(tch())
    for l in pc.lines: pro.ins(l.strip().replace(f"v{V_T},", "v22x,").replace("v22x", "v19"))
    for grp in dma_items(1, 0, p1): pro.items.extend(grp)
    if tpos == 1:
        for _ in range(tpro): pro.items.extend(tch())
    one_time = [I(f"buffer_load_dword a{A_DUM}, v1, s[{S_KV}:{S_KV+3}], s82 offen"), I(f"buffer_load_dword a{A_DUM}, v1, s[{S_GW}:{S_GW+3}], 0 offen")]
    touch_ins = lambda: I(f"buffer_load_dword a{A_DUM}, v{V_T}, s[{S_TSRD}:{S_TSRD+3}], s{S_TOFF} offen", vm=("touch", 0))
    touch_adv = f"s_add_u32 s{S_TOFF}, s{S_TOFF}, s{S_TSTEP}"
    pro2 = Trace()
    pro2.wait(vm=[("st", 0)])
    pro2.ins("s_barrier")
    pro2.items.extend(reads(0, 0))

    gfast, gslow = _g_ops()
    gslow += ["v_max_f32 v25, 0x2b800000, v25", "v_rcp_f32 v23, v25", "v_mul_f32 v24, v24, v23"]
    GSPLIT = 70
    c_q = struct.unpack("<I", struct.pack("<f", math.log2(math.e) / math.sqrt(32.0)))[0]
    kvfin = [f"v_accvgpr_read_b32 v{21+r}, a{KVA+r}" for r in range(4)]
    for r in range(4): kvfin += [f"v_accvgpr_read_b32 v1, a{KVW+r}", f"v_add_f32 v{21+r}, v{21+r}, v1", f"v_mul_f32 v{21+r}, s84, v{21+r}"]
    kvfin += ["v_cvt_pk_bf16_f32 v22, v21, v22", "v_cvt_pk_bf16_f32 v23, v23, v24",
              f"v_and_b32 v1, 15, {L}", "v_lshlrev_b32 v1, 4, v1", f"v_bfe_u32 v21, {L}, 4, 1", "v_lshl_add_u32 v1, v21, 9, v1",
              f"v_lshrrev_b32 v21, 5, {L}", "v_lshl_add_u32 v1, v21, 3, v1",
              f"buffer_store_dwordx2 v[22:23], v1, s[{S_WS}:{S_WS+3}], s82 offen offset:2048 sc1",
              f"v_bfe_u32 v24, {L}, 3, 1", "v_lshlrev_b32 v24, 10, v24", f"v_bfe_u32 v21, {L}, 2, 1", "v_lshl_add_u32 v24, v21, 9, v24",
              f"v_lshrrev_b32 v21, 4, {L}", "v_lshl_add_u32 v24, v21, 6, v24", f"v_and_b32 v21, 3, {L}", "v_lshl_add_u32 v24, v21, 1, v24",
              f"buffer_store_short v22, v24, s[{S_WS}:{S_WS+3}], s83 offen sc1",
              f"buffer_store_short_d16_hi v22, v24, s[{S_WS}:{S_WS+3}], s83 offen offset:16 sc1",
              f"buffer_store_short v23, v24, s[{S_WS}:{S_WS+3}], s83 offen offset:32 sc1",
              f"buffer_store_short_d16_hi v23, v24, s[{S_WS}:{S_WS+3}], s83 offen offset:48 sc1"]
    kvsal = f"""s_lshl_b32 s82, s{S_MT}, 3
    s_lshr_b32 s83, s{S_NT}, 2
    s_add_u32 s82, s82, s83
    s_lshl_b32 s82, s82, 12
    s_add_u32 s82, s82, {WS_KV:#x}
    s_and_b32 s85, s{S_NT}, 1
    s_lshl_b32 s83, s85, 3
    s_add_u32 s83, s83, s82
    s_lshl_b32 s85, s85, 8
    s_add_u32 s82, s82, s85
    s_lshl_b32 s85, s{S_W}, 10
    s_add_u32 s82, s82, s85
    s_lshl_b32 s85, s{S_W}, 8
    s_add_u32 s83, s83, s85
    s_and_b32 s85, s{S_NT}, 2
    s_cmp_eq_u32 s85, 0
    s_cselect_b32 s84, {c_q:#x}, 1.0
    s_cselect_b32 s82, {OOB:#x}, s82
    s_cselect_b32 s83, s83, {OOB:#x}
    s_cmp_ge_u32 s{S_W}, 2
    s_cselect_b32 s82, {OOB:#x}, s82
    s_cselect_b32 s83, {OOB:#x}, s83""".split("\n")
    kvsal = [x.strip() for x in kvsal]
    kvsal = kvsal[:-7] + ["\n".join(kvsal[-7:-3]), "\n".join(kvsal[-3:])]
    segs = []
    grest = []
    def tstore(q):
        so = S_TDST if q < 7 else S_TDST2
        return [I(f"buffer_store_dwordx4 {ar(TREG[q] if tdefer else A_T,4)}, v{p2.V_L16 if tdefer else V_L16}, s[{S_WS}:{S_WS+3}], s{so} offen sc1", vm=("ts", q)), I(f"s_add_u32 s{so}, s{so}, 8192")]
    for s in range(NST - 1):
        tr = Trace()
        gaps = [[] for _ in range(66)]
        rl = reads(s, 1)
        u = s - KVD
        if 1 <= u <= 8:
            for e in range(2):
                for h in range(2):
                    rl.append(I(f"ds_read_b64_tr_b16 {ar(KVW+4*e+2*h,2)}, v{V_RKW} offset:{(s%2)*8192 + e*1024 + h*128}", lg=("kvf", s)))
        if u == 9:
            gaps[1].append(I(f"v_add_u32 v21, {LDS_KW + 8192*(s%2)}, v{V_L16}"))
            gaps[3].append(I(f"s_lshl_b32 s82, s{S_W}, 10")); gaps[5].append(I("v_add_u32 v22, s82, v21"))
            gaps[7].append(I("s_xor_b32 s82, s82, 2048")); gaps[9].append(I("v_add_u32 v21, s82, v21"))
            rl.append(I(f"ds_write_b128 v22, {ar(KVA,4)}", lg=("kvf", s)))
        for k, it in enumerate(rl): gaps[2*k].append(it)
        gaps[57].append(I(f"v_xor_b32 v{V_R3}, s{S_TOG}, v{V_R3}")); gaps[59].append(I(f"v_xor_b32 v{V_R7}, s{S_TOG}, v{V_R7}"))
        g, adv = dma_group(s + 1, ntw)
        lo = p1 if s == 0 else nhead
        G = 11 if u == 9 else 1
        for k in range(lo, len(g)):
            pre, it = g[k]
            if pre: gaps[G - 1].append(I(pre))
            gaps[G].append(it)
            for x in adv.get(k, []): gaps[G + 1].append(I(x))
            G += tsp0 if s else 4
        G = max(G - (tsp0 if s else 4) + 2, 3)
        if touch and (s >= 1 or tpro) and s + touch + 1 < NST and not (tpro and s + touch + 1 < 2 + tpro):
            if lead:
                for r_ in range(touch if s == 1 else 1):
                    gaps[G - 1].append(I(f"s_bitcmp1_b32 s{S_LMASK}, {s + r_ + lphase}\ns_cselect_b32 s60, s{S_TOFF}, {OOB:#x}"))
                    gaps[G].append(I(f"buffer_load_dword a{A_DUM}, v{V_T}, s[{S_TSRD}:{S_TSRD+3}], s60 offen"))
                    gaps[G + 1].append(I(f"s_add_u32 s60, s60, s{S_T2D}")); gaps[G + 1].append(I(touch_adv))
                    gaps[G + 2].append(I(f"buffer_load_dword a{A_DUM}, v{V_T}, s[{S_TSRD}:{S_TSRD+3}], s60 offen")); G += 4
            else:
              for _ in range(2 if (s == 1 and touch >= 2 and not tpro) else 1):
                gaps[G].append(touch_ins()); gaps[G + 1].append(I(touch_adv)); G += 2
        if tt0 and tt0 <= s < tt0 + 4:
            if s == tt0:
                pre_ = f"""v_lshrrev_b32 v21, 3, {L}
                v_min_u32 v21, 5, v21
                v_lshlrev_b32 v22, 16, v21
                v_cmp_lt_u32 vcc, 2, v21
                v_and_b32 v21, 7, {L}
                v_lshl_add_u32 v22, v21, 11, v22
                v_add_u32 v23, {16*2048}, v22
                v_cndmask_b32 v22, v22, v23, vcc
                v_bfe_u32 v23, {L}, 2, 1
                v_lshl_add_u32 v23, v23, 2, v21
                v_lshlrev_b32 v23, 11, v23
                v_and_b32 v24, 0x1ffff, v22
                s_lshr_b32 s61, s{S_MT}, 1""".split("\n")
                for k_, x in enumerate(pre_): gaps[2*k_ + 1].append(I(x.strip()))
                G = max(G, 28)
            gaps[G - 1].append(I(f"s_cmp_eq_u32 s61, {s - tt0}\ns_cselect_b32 s62, s{S_TSRC}, {OOB:#x}\ns_cselect_b32 s63, s{S_TSRCS}, {OOB:#x}\ns_cselect_b32 s60, s{S_TSRC2}, {OOB:#x}"))
            gaps[G].append(I(f"buffer_load_dword a{A_DUM}, v22, s[{S_WD}:{S_WD+3}], s62 offen")); G += 2
            gaps[G].append(I(f"buffer_load_dword a{A_DUM}, v23, s[{S_WD}:{S_WD+3}], s63 offen")); G += 2
            gaps[G].append(I(f"buffer_load_dword a{A_DUM}, v24, s[{S_WO}:{S_WO+3}], s60 offen")); G += 2
        if 0 <= u <= 7:
            for e in range(2):
                gaps[G].append(I(f"buffer_load_dwordx4 {ar(A_KX + 8*(u%2) + 4*e,4)}, v{V_KX}, s[{S_X}:{S_X+3}], 0 offen offset:{u*256 + e*64}", vm=("kx", u))); G += 2
        q = s - tq0
        if 0 <= q < 9:
            fl = " nt" if ntt else ""
            gaps[G - 1].append(I(f"s_add_u32 m0, s{S_M0T}, {(q%3)*4096}"))
            if q == 6:
                gaps[G - 2].append(I(f"v_lshrrev_b32 v{V_KX}, 5, {L}")); gaps[G - 1].append(I(f"v_lshl_add_u32 v{V_KX}, v{V_KX}, 13, v{V_DT}"))
                gaps[G].append(I(f"buffer_load_dwordx4 v{V_KX}, s[{S_WD}:{S_WD+3}], s{S_TSRCS} offen{fl} lds", vm=("t", q)))
            else:
                srdn, so = (S_WD, S_TSRC) if q < 7 else (S_WO, S_TSRC2)
                gaps[G].append(I(f"buffer_load_dwordx4 v{V_DT}, s[{srdn}:{srdn+3}], s{so} offen{fl} lds", vm=("t", q)))
                gaps[G + 1].append(I(f"s_add_u32 s{so}, s{so}, {48*2048 if q == 2 else 0x10000}"))
            G += 2
        q = s - tq0 - 2
        if 0 <= q < 9 and not tdefer:
            x, y = tstore(q); gaps[G].append(x); gaps[G + 1].append(y); G += 2
        if s == ot:
            for x in one_time: gaps[G].append(x); G += 2
        if s == 2:
            gaps[G - 1].append(I(f"v_mov_b32 v21, s{S_TAG}"))
            gaps[G].append(I(f"s_or_b32 s83, s2, s{S_W}\ns_cselect_b32 s83, {OOB:#x}, 0")); G += 2
            gaps[G].extend([I("s_mov_b64 exec, 1"), I(f"buffer_store_dword v21, off, s[{S_DBG}:{S_DBG+3}], s83 sc1"), I("s_mov_b64 exec, -1")]); G += 2
        if s == (11 if gsm else 6):
            gaps[G].append(I(f"buffer_load_dword a{A_TAG}, off, s[{S_DBG}:{S_DBG+3}], 0 sc1", vm=("zp", 0))); G += 2
        if s == esig + 1:
            gaps[G - 2].append(I(f"s_lshl_b32 s82, s{S_MT}, 5")); gaps[G - 1].append(I(f"s_add_u32 s82, s82, s{S_NT}\ns_lshl_b32 s82, s82, 7")); gaps[G].append(I(f"s_add_u32 s82, s82, {WS_FLAG + 0x28000:#x}"))
            gaps[G + 1].append(I(f"s_cmp_eq_u32 s{S_W}, 0\ns_cselect_b32 s82, s82, {OOB:#x}")); G += 2
            gaps[G].extend([I("s_mov_b64 exec, 1"), I(f"buffer_store_dword a{A_TAG}, off, s[{S_WS}:{S_WS+3}], s82 sc1"), I("s_mov_b64 exec, -1")]); G += 2
        if gsm and s == 10:
            gaps[G].extend([I("s_mov_b32 exec_lo, 1\ns_mov_b32 exec_hi, 1"), I(f"buffer_store_dwordx2 v[24:25], v{V_GROW}, s[{S_WS}:{S_WS+3}], 0 offen sc1"), I("s_mov_b64 exec, -1")]); G += 2
        kvstart = G
        if s == gl:
            for q_ in range(4):
                gaps[G].append(I(f"buffer_load_dwordx4 {ar(A_GX+4*q_,4)}, v{V_L16}, s[{S_X}:{S_X+3}], s{S_GROW} offen offset:{1024*q_}", vm=("g", 0))); G += 2
            for q_ in range(2):
                gaps[G].append(I(f"buffer_load_dwordx4 {ar(A_GW+4*q_,4)}, v{V_L16}, s[{S_GW}:{S_GW+3}], 0 offen offset:{1024*q_}", vm=("g", 0))); G += 2
        assert G < 64, (s, G)
        tr.wait(lg=[("fr", s, 0)] + ([("tf", q)] if 0 <= q < 9 else []) + ([("kvp", 0)] if u == 10 else []))
        vq = []
        if (gl + 2 <= s <= 9) if gsm else s in (gs + 2, gs + 3): vq = gfast
        if u == 10: vq = list(kvfin)
        k = 0
        for j in range(8):
            for i in range(8):
                tr.ins(mfma(0, j, i, first=(s == 0)))
                tr.items.extend(gaps[k])
                cap = vcap(gaps[k])
                if gsm and vq is gfast: cap = 0 if gaps[k] else 1
                if s == 0:
                    for _ in range(2):
                        if late and cap > 0:
                            for l in late.pop(0): tr.ins(l)
                            cap -= 1
                while vq and cap > 0 and not (u == 10 and k < kvstart - 8):
                    if vq[0].startswith("buffer_"):
                        if cap < 2: break
                        tr.ins(vq.pop(0), vm=("kvst", 0)); cap -= 2
                    else:
                        tr.ins(vq.pop(0)); cap -= 1
                k += 1
        if (s >= 9) if gsm else s != gs + 2: assert not vq
        need = [("st", s + 1)]
        if 0 <= s - tq0 - 1 < 9: need.append(("t", s - tq0 - 1))
        if s == (gl + 1 if gsm else gs + 1): need.append(("g", 0))
        if 1 <= u <= 8: need.append(("kx", u - 1))
        if s == (12 if gsm else 7): need.append(("zp", 0))
        if s == esig: need.append(("kvst", 0))
        if fflag and s == 14: need.append(("ts", 8))
        if pads and s == chain_at: tr.ins("@CHAIN1")
        tr.wait(vm=need, lg=[("fr", s, 1)] + ([("kvf", s)] if 1 <= u <= 9 else []))
        tr.ins("s_barrier")
        segs.append(tr)
        tr = Trace()
        gaps = [[] for _ in range(68)]
        for k, it in enumerate(reads(s + 1, 0)): gaps[2*k + 1].append(it)
        q = s - tq0 - 1
        if 0 <= q < 9:
            for h in range(2):
                gaps[49 + 2*h].append(I(f"ds_read_b64_tr_b16 {ar((TREG[q] if tdefer else A_T)+2*h,2)}, v{V_RT} offset:{(q%3)*4096 + h*2048}", lg=("tf", q)))
        if u == 9:
            gaps[53].append(I(f"ds_read_b128 {ar(KVW,4)}, v21", lg=("kvp", 0)))
            for k, x in enumerate(kvsal): gaps[2*k + 3 if 2*k + 3 < 48 else 55].append(I(x.strip()))
        if s + 2 < NST:
            g, adv = dma_group(s + 2, ntw)
            hg = [hstart + 2*round(k*(62 - hstart)/(2*nhead)) for k in range(nhead)]
            for k in range(nhead):
                pre, it = g[k]
                if pre:
                    if hg[k]: gaps[hg[k] - 1].insert(0, I(pre))
                    else: tr.ins(pre)
                gaps[hg[k]].append(it)
                for x in adv.get(k, []): gaps[hg[k] + 2].append(I(x))
        if s == (12 if gsm else 7):
            gaps[54].append(I(f"v_accvgpr_read_b32 v1, a{A_TAG}"))
            gaps[56].append(I(f"v_cmp_eq_u32 vcc, 0, v1")); gaps[58].append(I("s_cbranch_vccnz KM_ZSPIN\nKM_ZBACK:"))
            gaps[60].append(I(f"v_accvgpr_write_b32 a{A_TAG}, v1")); gaps[62].append(I(f"v_readfirstlane_b32 s{S_TAG}, v1"))
        if s == 14:
            gaps[0].append(I(f"v_lshlrev_b32 v{V_T}, 7, {L}"))
            gaps[2].append(I(f"s_mov_b32 s{S_EF}, {WS_FLAG + 0x28000:#x}"))
            gaps[epos].append(I(f"buffer_load_dword v{V_KX}, v{V_T}, s[{S_WS}:{S_WS+3}], s{S_EF} offen sc1", vm=("ep", 0)))
            if pads:
                gaps[50].append(I("s_getpc_b64 s[32:33]\nKM_PC2:\ns_add_u32 s32, s32, KM_NORM-0x4000-KM_PC2\ns_addc_u32 s33, s33, 0"))
                gaps[52].append(I("s_and_b32 s33, s33, 0xffff")); gaps[53].append(I("s_mov_b32 s34, KM_END-KM_NORM+0x4000"))
                gaps[54].append(I("s_mov_b32 s35, 0x00020000")); gaps[55].append(I(f"s_lshl_b32 s82, s{S_W}, 13"))
                gaps[56].append(I(f"buffer_load_dword a{A_DUM}, v{V_T}, s[32:35], s82 offen"))
        vq = []; slow = []; slow_from = None
        if (gl + 1 <= s <= 8) if gsm else s in (gs + 1, gs + 2): vq = gfast
        if s == (9 if gsm else gs + 3): slow = list(gslow)
        ml = [mfma(1, j, i) for j in range(8) for i in range(8)]
        if 1 <= u <= 8:
            for e in range(2):
                ml.insert(30 + 20*e, f"v_mfma_f32_16x16x32_bf16 {ar(KVA,4)}, {ar(A_KX + 8*((u-1)%2) + 4*e,4)}, {ar(KVW+4*e,4)}, {'0' if (u == 1 and e == 0) else ar(KVA,4)}")
        for k, m in enumerate(ml):
            tr.ins(m)
            tr.items.extend(gaps[k])
            for _ in range((0 if gaps[k] else 1) if (gsm and vq) else vcap(gaps[k])):
                if vq: tr.ins(vq.pop(0))
                elif s == 0 and late:
                    for l in late.pop(0): tr.ins(l)
            if slow and not vq:
                if slow_from is None: slow_from = k + 2
                if k >= slow_from and (k - slow_from) % 2 == 0: tr.ins(slow.pop(0))
        for k in range(len(ml), 68): assert not gaps[k], (s, k)
        assert not slow and not late
        segs.append(tr)

    P = p2
    ec = Trace()
    ec.wait(vm=[("ep", 0)])
    ec.raw(f"""
    v_cmp_ne_u32 vcc, s{S_TAG}, v{V_KX}
    s_and_b32 s80, s2, 7
    s_lshr_b32 s81, s80, 1
    s_lshl_b32 s{P.S_MT}, s{S_MT}, 2
    s_cbranch_vccnz KM_ESPIN
    KM_EBACK:
    s_add_u32 s{P.S_MT}, s{P.S_MT}, s81
    s_lshl_b32 s{P.S_M0KV}, s{S_W}, 13
    s_add_u32 s82, s{P.S_M0KV}, {WS_KV:#x}
    s_add_u32 s{P.S_KVB}, s86, s82
    s_addc_u32 s{P.S_KVB+1}, s87, 0
    v_add_u32 v{V_DK}, 4096, v{V_L16}
    """)
    su2 = f"""
    s_and_b32 s80, s80, 1
    s_lshl_b32 s80, s80, 2
    s_and_b32 s90, s{S_NT}, 3
    s_add_u32 s{P.S_NT}, s80, s90
    s_lshr_b32 s90, s{P.S_MT}, 1
    s_mul_i32 s90, s90, 112
    s_mul_i32 s91, s{S_W}, 28
    s_add_u32 s90, s90, s91
    s_lshl_b32 s90, s90, 13
    s_and_b32 s42, s{P.S_MT}, 1
    s_lshl_b32 s42, s42, 12
    s_add_u32 s90, s90, s42
    s_add_u32 s58, s86, s90\ns_addc_u32 s59, s87, 0
    s_add_u32 s60, s58, 0x2000\ns_addc_u32 s61, s59, 0
    s_add_u32 s62, s58, 0x4000\ns_addc_u32 s63, s59, 0
    s_add_u32 s70, s58, 0x6000\ns_addc_u32 s71, s59, 0
    s_mov_b64 s[{P.S_HB}:{P.S_HB+1}], {'s[70:71]' if nhd else 's[62:63]'}
    s_mul_i32 s90, s{P.S_NT}, 144
    s_add_u32 s91, s91, s90
    s_lshl_b32 s91, s91, 13
    s_add_u32 s91, s91, {WS_WT:#x}
    s_add_u32 s64, s86, s91\ns_addc_u32 s65, s87, 0
    s_add_u32 s68, s64, 0x2000\ns_addc_u32 s69, s65, 0
    s_mov_b64 s[{P.S_WB}:{P.S_WB+1}], s[68:69]
    s_add_u32 s{P.S_XB}, s64, {P.SF0*8192}\ns_addc_u32 s{P.S_XB+1}, s65, 0
    s_lshl_b32 s91, s{S_W}, 3
    s_add_u32 s90, s90, s91
    s_lshl_b32 s90, s90, 13
    s_add_u32 s90, s90, {WS_WT + 112*8192:#x}
    s_add_u32 s{P.S_WOB}, s86, s90\ns_addc_u32 s{P.S_WOB+1}, s87, 0
    s_mul_i32 s{P.S_M0SP}, s{S_W}, 24576
    s_add_u32 s{P.S_M0SP}, s{P.S_M0SP}, {P.LDS_SP}
    s_mov_b32 s{P.S_SPM}, s{P.S_M0SP}
    s_add_u32 s{P.S_M0C}, s{P.S_M0KV}, 0x8000
    s_mov_b32 s{P.S_CNT}, 6
    s_add_u32 s66, s{P.S_WOB}, {(P.SF0 + 3 - P.NDOWN)*8192}\ns_addc_u32 s67, s{P.S_WOB+1}, 0
    s_mov_b32 s{P.S_OUT}, s96
    s_and_b32 s{P.S_OUT+1}, s97, 0xffff
    s_mov_b32 s{P.S_OUT+2}, {2048*1024*2:#x}
    s_mov_b32 s{P.S_OUT+3}, 0x00020000
    s_mov_b32 s{P.S_OF}, s{S_FLG}
    s_lshl_b32 s90, s{P.S_MT}, 12
    s_add_u32 s{P.S_OP}, s90, {WS_FLAG:#x}
    s_lshl_b32 s90, s{S_W}, 13
    s_add_u32 s{P.S_HP}, s90, {WS_FLAG + 0x20000:#x}
    s_lshl_b32 s90, s2, 7
    s_add_u32 s90, s90, {WS_FLAG + 0x20000:#x}
    s_cmp_eq_u32 s{S_W}, 0\ns_cselect_b32 s{P.S_HF}, s90, {OOB:#x}
    """
    su2 = [x.strip() for x in su2.strip().split("\n    ")]

    def last_stage(wn):
        tr = Trace()
        s = NST - 1
        su = f"""
        s_lshr_b32 s81, s{S_W}, 1
        s_lshl_b32 s82, s{S_MT}, 1
        s_add_u32 s82, s82, s81
        s_mul_i32 s82, s82, 112
        s_lshr_b32 s83, s{S_NT}, 1
        s_mul_i32 s83, s83, 7
        s_add_u32 s82, s82, s83
        s_and_b32 s84, s{S_NT}, 1
        s_add_u32 s85, s82, 6
        s_lshl_b32 s85, s85, 13
        s_mul_i32 s83, s84, 3
        s_add_u32 s82, s82, s83
        s_add_u32 s82, s82, {2*wn}
        s_lshl_b32 s82, s82, 13
        s_add_u32 s83, s82, 8192
        """
        if wn:
            su += f"""
            s_lshl_b32 s84, s84, 9
            s_add_u32 s85, s85, s84
            v_and_b32 v21, 15, {L}
            v_lshlrev_b32 v21, 4, v21
            v_bfe_u32 v24, {L}, 4, 1
            v_lshl_add_u32 v22, v24, 9, v21
            v_lshl_add_u32 v21, v24, 10, v21
            v_lshrrev_b32 v24, 5, {L}
            v_lshl_add_u32 v22, v24, 10, v22
            v_lshl_add_u32 v21, v24, 8, v21
            s_lshl_b32 s81, s81, 13
            s_add_u32 s81, s81, {P.LDS_Q}
            v_add_u32 v22, s81, v22
            v_add_u32 v23, 4096, v21
            """
        setup = [l.strip() for l in su.strip().split("\n") if l.strip()] + su2
        ffn = lambda t, i: dict(kind="f", t=t, i=i, mf=[(2*t, i), (4 + 2*t, i), (2*t + 1, i), (5 + 2*t, i)])
        if wn == 0:
            halves = [[ffn(0, i) for i in range(8)], [ffn(1, i) for i in range(8)]]
        else:
            halves = [[dict(kind="q", i=i, mf=[(3, i), (7, i)]) for i in range(8)] +
                      [dict(kind="s", i=i, mf=[(2, i), (6, i), (2, i + 1), (6, i + 1)]) for i in range(0, 8, 2)],
                      [ffn(0, i) for i in range(8)]]
        pieces = halves[0] + halves[1]
        half = len(halves[0])
        jsets = [sorted(set(j for pc in hv for j, _ in pc["mf"])) for hv in halves]
        def piece_ops(pc, pk):
            o = []
            i = pc["i"]
            tmp = 12 + 4*(i % 2)
            def reg(j, i):
                p_, b = accn(j, i)
                if p_ == "v": return b
                for r in range(4): o.append(f"v_accvgpr_read_b32 v{tmp+r}, a{b+r}")
                return tmp
            r_ = [reg(j, i_) for j, i_ in pc["mf"]]
            if pc["kind"] == "q":
                g0_, g1_ = r_
            else:
                g0_, u0, g1_, u1 = r_
                for g_, u_ in ((g0_, u0), (g1_, u1)):
                    for r in range(4): o.append(f"v_max_f32 v{g_+r}, 0, v{g_+r}")
                    if pk:
                        o.append(f"v_pk_mul_f32 {vr(g_,2)}, {vr(g_,2)}, {vr(u_,2)}")
                        o.append(f"v_pk_mul_f32 {vr(g_+2,2)}, {vr(g_+2,2)}, {vr(u_+2,2)}")
                    else:
                        for r in range(4): o.append(f"v_mul_f32 v{g_+r}, v{g_+r}, v{u_+r}")
            o += [f"v_cvt_pk_bf16_f32 v{g0_}, v{g0_}, v{g0_+1}", f"v_cvt_pk_bf16_f32 v{g0_+1}, v{g0_+2}, v{g0_+3}",
                  f"v_cvt_pk_bf16_f32 v{g0_+2}, v{g1_}, v{g1_+1}", f"v_cvt_pk_bf16_f32 v{g0_+3}, v{g1_+2}, v{g1_+3}"]
            if pc["kind"] == "q":
                o.append(f"ds_write_b128 v22, {vr(g0_,4)} offset:{(i//2)*2048 + (i%2)*256}")
            elif pc["kind"] == "s":
                o += ["s_nop 1", f"v_permlane16_swap_b32 v{g0_}, v{g0_+2}", f"v_permlane16_swap_b32 v{g0_+1}, v{g0_+3}",
                      f"buffer_store_dwordx4 {vr(g0_,4)}, {'v21' if i < 4 else 'v23'}, s[{S_WS}:{S_WS+3}], s85 offen offset:{(i%4)*1024} sc1"]
            else:
                o.append(f"buffer_store_dwordx4 {vr(g0_,4)}, {'v%d' % (V_L16 if i < 4 else V_DK)}, s[{S_WS}:{S_WS+3}], {'s82' if pc['t'] == 0 else 's83'} offen offset:{(i%4)*1024} sc1")
            return o
        rl = [xread(s, 1, i) for i in range(8)]
        for j in jsets[0]: rl += [wread(s, 1, j, 0), wread(s, 1, j, 1)]
        for x in rl: x["lg"] = ("frA", 0)
        for j in jsets[1]: rl += [wread(s, 1, j, 0), wread(s, 1, j, 1)]
        kv0 = []
        for part in range(2):
            cl = [P.kv_dma(0, part, j) for j in range(4)]
            for x in cl: x["text"] = x["text"].replace(f"v{P.V_L16},", f"v{V_L16},").replace(f"v{P.V_L16B},", f"v{V_DK},")
            kv0.append(cl)
        q = s - tq0 - 2
        tr.wait(lg=[("fr", s, 0)] + ([("tf", q)] if 0 <= q < 9 else []))
        first = []
        if fflag:
            first.append([I(f"s_lshl_b32 s82, s2, 7\ns_add_u32 s82, s82, {WS_FLAG + 0x30000:#x}\ns_cmp_eq_u32 s{S_W}, 0\ns_cselect_b32 s82, s82, {OOB:#x}")])
            first.append([I("s_mov_b64 exec, 1"), I(f"buffer_store_dword a{A_TAG}, off, s[{S_WS}:{S_WS+3}], s82 sc1"), I("s_mov_b64 exec, -1")])
        if gs + 4 == s and not gsm:
            first.append([I("s_mov_b32 exec_lo, 1\ns_mov_b32 exec_hi, 1"), I(f"buffer_store_dwordx2 v[24:25], v{V_GROW}, s[{S_WS}:{S_WS+3}], 0 offen sc1", vm=("hst", 0)), I("s_mov_b64 exec, -1")])
        if 0 <= q < 9 and not tdefer: first.append([tstore(q)[0]])
        for k, (j, i) in enumerate([(j, i) for j in jsets[0] for i in range(8)]):
            tr.ins(mfma(0, j, i))
            if first:
                tr.items.extend(first.pop(0)); continue
            if k in (26, 29): tr.ins(f"s_add_u32 m0, s{P.S_M0KV}, {4096 if k == 29 else 0}")
            elif k in (27, 30): tr.items.extend(kv0.pop(0))
            elif rl: tr.items.append(rl.pop(0))
            for _ in range(2):
                if setup: tr.ins(setup.pop(0))
        assert not rl
        tr.items.extend(adv64(P.S_KVB, 32768))
        for x in setup: tr.ins(x)
        tr.wait(lg=[("frA", 0)])
        ml = []
        for pi, pc in enumerate(pieces):
            if pi == half:
                ml.append((W(lg=[("fr", s, 1)]), None))
                ml += [(mfma(0, j, i), None) for j in jsets[1] for i in range(8)]
            for j, i in pc["mf"]: ml.append((mfma(1, j, i), pi))
        done_at = {}; cnt = 0; vq = []; nextp = 0
        def put(x):
            tr.ins(x, vm=("hst", 0) if x.startswith("buffer_") else None, lg=("qw", 0) if x.startswith("ds_") else None)
        for k, (m, pi) in enumerate(ml):
            if isinstance(m, dict):
                tr.items.append(m); continue
            tr.ins(m); cnt += 1
            if pi is not None and (k + 1 == len(ml) or ml[k + 1][1] != pi): done_at[pi] = cnt
            budget = 2
            while budget > 0:
                if not vq and nextp in done_at and cnt - done_at[nextp] >= 9:
                    vq = piece_ops(pieces[nextp], False); nextp += 1
                if not vq: break
                c_ = 2 if vq[0].startswith(("buffer_", "ds_")) else 1
                if c_ > budget: break
                put(vq.pop(0)); cnt += 1; budget -= c_
        for x in vq: put(x); cnt += 1
        while nextp < len(pieces):
            if cnt - done_at[nextp] < 9: tr.ins("s_nop 7"); cnt += 8
            for x in piece_ops(pieces[nextp], True): put(x); cnt += 1
            nextp += 1
        return tr
    l0, l1 = last_stage(0), last_stage(1)

    L2 = f"v{P.V_LANE}"
    h2 = Trace()
    h2.raw(f"""
    v_mov_b32 {L2}, {L}
    v_mov_b32 v{P.V_L16}, v{V_L16}
    v_mov_b32 v{P.V_L16B}, v{V_DK}
    v_mov_b32 v{P.V_KVR}, v{V_L16}
    s_lshl_b32 s80, s{S_W}, 12
    s_add_u32 s80, s80, {P.LDS_Q}
    v_add_u32 v24, s80, v{V_L16}
    """)
    h2.wait(vm=[("kv", 0)])
    h2.raw("s_waitcnt lgkmcnt(0)\ns_barrier")
    for q in range(4): h2.ins(f"ds_read_b128 {ar(P.A_Q + 4*q,4)}, v24 offset:{q*1024}", lg=("q", 0))
    for half in range(2): h2.items.append(P.k_read(0, half))
    for half in range(2): h2.items.append(P.v_read(0, half))
    for pp in range(4):
        h2.raw(f"""
        s_add_u32 s80, s{S_W}, {pp}
        s_and_b32 s80, s80, 3
        s_lshl_b32 s80, s80, 11
        v_add_u32 v{P.V_W+pp}, s80, v{P.V_L16}
        """)
    h2.wait(lg=[("k", 0)])
    h2.ins(P.qk(0, 0)); h2.ins(P.qk(0, 1))
    for q in range(4):
        h2.ins(f"v_add_u32 v{P.V_SP+q}, s{P.S_M0SP}, v{P.V_W+q}")
        h2.ins(f"v_add_u32 v{P.V_KP+q}, s{P.S_M0KV}, v{P.V_W+q}")
    h2.raw(f"""
    v_bfe_u32 v26, {L2}, 4, 1
    v_bfe_u32 v27, {L2}, 2, 1
    v_cmp_eq_u32 vcc, v26, v27
    v_mov_b32 v26, 0x3f803f80
    s_lshl_b32 s40, s{P.S_MT}, 9
    s_add_u32 s40, s40, {WS_G:#x}
    v_cndmask_b32 v26, 0, v26, vcc
    """)
    for r in range(4): h2.ins(f"v_accvgpr_write_b32 a{P.A_SEL+r}, v26")
    h2.raw(f"""
    s_lshl_b32 s41, s{S_MT}, 11
    s_lshl_b32 s80, s{S_W}, 9
    s_add_u32 s41, s41, s80
    s_add_u32 s41, s41, {WS_G:#x}
    v_and_b32 v26, 31, {L2}
    v_lshlrev_b32 v26, 3, v26
    v_and_b32 v27, 15, {L2}
    v_lshlrev_b32 v27, 3, v27
    v_lshlrev_b32 v25, 7, {L2}
    v_mov_b32 v24, s{S_TAG}
    """)
    if ptc:
        h2.raw(f"""
        s_sub_u32 s80, s64, s86
        s_lshl_b32 s81, s{S_MT}, 10
        s_add_u32 s80, s80, s81
        s_sub_u32 s81, s58, s86
        s_and_b32 s82, s{S_NT}, 3
        s_lshl_b32 s82, s82, 10
        s_add_u32 s81, s81, s82
        s_add_u32 s81, s81, 8192
        v_and_b32 v29, 7, {L2}
        v_lshlrev_b32 v29, 7, v29
        v_add_u32 v30, s81, v29
        v_add_u32 v29, s80, v29
        v_and_b32 v{P.V_TCH}, 8, {L2}
        v_cmp_eq_u32 vcc, 0, v{P.V_TCH}
        s_mov_b32 s{P.S_TCO}, 0
        s_nop 0
        v_cndmask_b32 v{P.V_TCH}, v30, v29, vcc
        """)
    def rebase(x, frm, to):
        x["text"] = x["text"].replace(f"s[{frm}:{frm+1}]", f"s[{to}:{to+1}]"); return x
    wl = lambda sg, J0, b: [rebase(P.w_load(sg, J), P.S_WB, b) for J in range(J0, J0 + 4)]
    hl = lambda sg, b: [rebase(P.h_load(sg, i), P.S_HB, b) for i in range(4)]
    early = []
    timed = [(1 + q // 3, tstore(q)) for q in range(9)] if tdefer else []
    if tp2:
        LT2 = 81920
        h2.raw(f"""
        v_lshrrev_b32 v17, 5, {L2}
        v_lshl_add_u32 v17, v17, 13, v{V_DT}
        v_add_u32 v{V_RT}, {LT2 - LDS_T}, v{V_RT}
        s_add_u32 s{S_M0T}, s{S_M0T}, {LT2 - LDS_T}
        """)
        fl = " nt" if ntt else ""
        for q in range(9):
            it_ = [I(f"s_add_u32 m0, s{S_M0T}, {q*4096}"), I("s_nop 0")]
            if q == 6: it_.append(I(f"buffer_load_dwordx4 v17, s[{S_WD}:{S_WD+3}], s{S_TSRCS} offen{fl} lds", vm=("t", q)))
            else:
                srdn, so = (S_WD, S_TSRC) if q < 7 else (S_WO, S_TSRC2)
                it_ += [I(f"buffer_load_dwordx4 v{V_DT}, s[{srdn}:{srdn+3}], s{so} offen{fl} lds", vm=("t", q)), I(f"s_add_u32 s{so}, s{so}, {48*2048 if q == 2 else 0x10000}")]
            timed.append((1 + q // 3, it_))
        timed.append((tb, [W(vm=[("t", 8)]), I("s_barrier")]))
        for q in range(9):
            timed.append((tb + q // 3, [I(f"ds_read_b64_tr_b16 {ar(P.A_WR + 4*q + 2*h,2)}, v{V_RT} offset:{q*4096 + h*2048}", lg=("tf", q)) for h in range(2)]))
        for q in range(9):
            so = S_TDST if q < 7 else S_TDST2
            timed.append((tb + 3 + q // 3, [W(lg=[("tf", q)]), I(f"buffer_store_dwordx4 {ar(P.A_WR + 4*q,4)}, v{P.V_L16}, s[{S_WS}:{S_WS+3}], s{so} offen sc1", vm=("ts", q)), I(f"s_add_u32 s{so}, s{so}, 8192")]))
    timed += [(hsig, [W(vm=[("hst", 0), ("ts", 8)]), I("s_barrier"), I("s_mov_b64 exec, 1"), I(f"buffer_store_dword v24, off, s[{S_WS}:{S_WS+3}], s{P.S_HF} sc1"), I("s_mov_b64 exec, -1")]),
             (hpoll, [I(f"buffer_load_dword v28, v25, s[{S_WS}:{S_WS+3}], s{P.S_HP} offen sc1", vm=("hp", 0))]),
             (hpoll + 2, [W(vm=[("hp", 0)]), I(f"v_cmp_ne_u32 vcc, s{S_TAG}, v28"), I("s_nop 0"), I("s_cbranch_vccnz KM_HSPIN"), I("KM_HBACK:"), I("s_barrier")] + sum([[P.tch_ins(), I(f"s_add_u32 s{P.S_TCO}, s{P.S_TCO}, 8192")] for _ in range(ptc)], []) + hl(0, 58)),
             ]
    gl_ = [[I(f"buffer_load_dword v{P.V_G+hh}, v26, s[{S_WS}:{S_WS+3}], s41 offen offset:{hh*256} sc1", vm=("g2", 0)) for hh in range(2)],
           [I(f"buffer_load_dword v{P.V_OMG+i}, v27, s[{S_WS}:{S_WS+3}], s40 offen offset:{4 + i*128} sc1", vm=("g2", 0)) for i in range(4)]]
    if fflag:
        hs, hp, hc = timed
        hs[1][0]["needvm"].append(("fp", 0))
        hs = (hs[0], [hs[1][0], I(f"v_cmp_ne_u32 vcc, s{S_TAG}, v28"), I("s_nop 0"), I("s_cbranch_vccnz KM_FSPIN"), I("KM_FBACK:")] + hs[1][1:])
        fp = (fpoll, [I(f"s_add_u32 s43, s{P.S_HP}, 0x10000"), I(f"buffer_load_dword v28, v25, s[{S_WS}:{S_WS+3}], s43 offen sc1", vm=("fp", 0))])
        pre_d = [wl(0, 0, 64), wl(0, 4, 64), wl(1, 0, 68), wl(1, 4, 68), gl_[0], gl_[1]]
        post_d = [(hpoll + 3, hl(1, 60)), (hpoll + 4, hl(2, 62)), (hpoll + 5, hl(3, 70))]
    elif nhd:
        timed += [(hpoll + 2, wl(0, 0, 64)), (hpoll + 3, wl(0, 4, 64)), (hpoll + 4, wl(1, 0, 68)), (hpoll + 5, wl(1, 4, 68)),
                  (hpoll + 6, hl(1, 60)), (hpoll + 7, hl(2, 62)), (hpoll + 8, hl(3, 70)), (hpoll + 12, gl_[0]), (hpoll + 13, gl_[1])]
    else:
        sl_ = lambda k: min(hpoll + 2 + (k*psp) // 2, 30)
        timed += [(sl_(k + 1), x) for k, x in enumerate([wl(0, 0, 64), wl(0, 4, 64), hl(1, 60), wl(1, 0, 68), wl(1, 4, 68), hl(2, 62), gl_[0], gl_[1]])]
        zl = [I(f"v_mov_b32 v{P.ACC + r}, 0") for r in range(128)]
        timed = [(1 + k // 2, zl[8*k: 8*k + 8]) for k in range(8)] + [timed[0]] + [(hsig + 1 + k // 2, zl[64 + 8*k: 72 + 8*k]) for k in range(8)] + timed[1:]
    NDOWN = P.NDOWN
    xl = [([P.x_base(sg)] if J0 == 0 else []) + [P.w_load(sg, J) for J in range(J0, J0 + 4)] for sg in (NDOWN + 6, NDOWN + 7) for J0 in (0, 4)]
    def xfix(grps, s):
        for g_ in grps:
            for x in g_: x["text"] = x["text"].replace(f"s[{P.S_XB}:{P.S_XB+1}]", "s[52:53]").replace(f"s_add_u32 s{P.S_XB},", "s_add_u32 s52,").replace(f"s_addc_u32 s{P.S_XB+1},", "s_addc_u32 s53,")
        return grps
    xfix(xl, 0)
    if fflag:
        pre_d = pre_d + [xl.pop(0) for _ in range(4)]
        n_ = len(pre_d)
        mid = [(hsig + 1 + (k*(hpoll + 1 - hsig))//n_, x) for k, x in enumerate(pre_d)]
        timed = [fp, hs] + sorted(mid + [hp], key=lambda e: e[0]) + [hc] + post_d
    elif xhead:
        timed = timed[:-2] + [(min(hpoll + 9 + k, 30), xl.pop(0)) for k in range(4)] + [(min(hpoll + 13, 30), timed[-2][1]), (min(hpoll + 14, 31), timed[-1][1])]
    peel = []
    if xpeel:
        flat = [x for g_ in xl for x in g_]; xl.clear()
        k_ = 0
        for x in flat:
            if peel and peel[-1][1][-1]["text"].startswith("s_"): peel[-1][1].append(x)
            else: peel.append((32 + k_, [x])); k_ = min(k_ + 1, 15)
        peel = [(32 + (n_*15)//16, it_) for n_, (_, it_) in enumerate(peel)]
    headseg = P.segment(0, 32, 0, 32*P.NHEAD, g0, timed)
    bodies = [P.segment(16*it, 16*it + 16, 32*(P.NHEAD + 4*(it - 2)), 32*(P.NHEAD + 4*(it - 1)), 16*it, timed=peel if it == 2 else (), loop=True) for it in range(2, 8)]
    for b_ in bodies: b_.ins(f"s_cmp_lg_u32 s{P.S_CNT}, 0")
    NDOWN, NWO, ACC = P.NDOWN, P.NWO, P.ACC
    t1 = Trace()
    n = P.NSLOT - 1
    t1.wait(lg=[("v", 63)])
    t1.ins("s_nop 1")
    t1.ins(P.pv(n, 0)); t1.ins(P.summ(n, 0)); t1.ins(P.pv(n, 1)); t1.ins(P.summ(n, 1))
    VO = P.V_O
    q_ = Trace()
    q_.raw(f"""
    v_bfe_u32 v26, {L2}, 4, 1
    s_lshl_b32 s78, s{S_MT}, 1
    v_lshlrev_b32 v26, 10, v26
    s_lshr_b32 s79, s{S_W}, 1
    v_and_b32 v27, 15, {L2}
    s_add_u32 s78, s78, s79
    v_lshl_add_u32 v26, v27, 4, v26
    s_lshl_b32 s78, s78, 5
    v_lshrrev_b32 v27, 5, {L2}
    s_add_u32 s78, s78, s{S_NT}
    v_lshl_add_u32 v26, v27, 8, v26
    s_lshl_b32 s78, s78, 13
    s_and_b32 s79, s{S_W}, 1
    s_lshl_b32 s79, s79, 12
    s_add_u32 s78, s78, s79
    s_add_u32 s54, s78, {WS_O:#x}
    s_mov_b32 s78, 0x1f800000
    s_mov_b32 s79, 0x5f800000
    s_mov_b32 s55, 0
    v_accvgpr_read_b32 v80, a{P.A_L}
    v_accvgpr_read_b32 v81, a{P.A_L+4}
    """)
    q_.wait(vm=[("g2", 0)])
    q_.raw(f"""
    v_min_f32 v83, v80, v81
    v_max_f32 v84, v80, v81
    v_add_f32 v85, v80, v81
    v_cmp_nle_f32 s[82:83], s78, v83
    v_cmp_nge_f32 s[84:85], s79, v84
    v_cmp_u_f32 vcc, v85, v85
    """)
    q_.ins("s_nop 1\ns_or_b64 s[82:83], s[82:83], s[84:85]\ns_or_b64 vcc, vcc, s[82:83]\ns_cbranch_vccnz KM_FALLBACK\nKM_NORM:\nv_rcp_f32 v80, v80")
    q_.raw(f"""
    v_rcp_f32 v82, v81
    v_mul_f32 v80, v80, v{P.V_G}
    v_mul_f32 v82, v82, v{P.V_G+1}
    """)
    for hh in range(2):
        for pc in range(2):
            b = VO + 16*hh + 8*pc
            for r in range(8): q_.ins(f"v_mul_f32 v{b+r}, v{b+r}, v{80+2*hh}")
            for q in range(4): q_.ins(f"v_cvt_pk_bf16_f32 v{64+8*hh+4*pc+q}, v{b+2*q}, v{b+2*q+1}")
            q_.ins(f"buffer_store_dwordx4 {vr(64+8*hh+4*pc,4)}, v26, s[{S_WS}:{S_WS+3}], s54 offen offset:{hh*2048 + pc*512} sc1", vm=("ost", 0))
    vq = q_.items
    nA, nB = nb
    stepsA = [P.gemm_step(s, vq=vq) for s in range(NIN, NIN + nA)]
    t2 = Trace()
    t2.items.extend(vq)
    t2.ins("s_nop 1")
    for q in range(4):
        t2.ins(f"v_mfma_f32_16x16x32_bf16 v[84:87], {ar(P.A_SEL,4)}, {vr(64+4*q,4)}, {'0' if q == 0 else 'v[84:87]'}")
    stepsA.append(t2)
    polli = lambda: I(f"buffer_load_dword v28, v25, s[{S_WS}:{S_WS+3}], s{P.S_OP} offen sc1", vm=("op", 0))
    x33 = xfix([[P.x_base(NDOWN + 5)] + [P.w_load(NDOWN + 5, J) for J in range(4)], [P.w_load(NDOWN + 5, J) for J in range(4, 8)]], 0)
    xq = [x33] + [[xl.pop(0), xl.pop(0)] for _ in range(len(xl)//2)]
    stepsB = [P.gemm_step(s, extra=xq.pop(0) if xq else [], late=[polli()] if s == NIN + nA + nB - 1 else []) for s in range(NIN + nA, NIN + nA + nB)]
    assert not xl and not xq
    sig = Trace()
    sig.raw(f"""
    v_and_b32 v25, 31, {L2}
    v_lshlrev_b32 v25, 7, v25
    s_lshr_b32 s78, s{P.S_MT}, 1
    s_lshl_b32 s78, s78, 18
    s_add_u32 s78, s78, s42
    s_lshl_b32 s79, s{S_W}, 16
    s_add_u32 s78, s78, s79
    s_add_u32 s78, s78, {WS_O:#x}
    s_add_u32 s56, s86, s78
    s_addc_u32 s57, s87, 0
    """)
    sig.raw(f"""
    v_sub_f32 v84, v84, v84
    s_cmp_lg_u32 s55, 0
    v_cmp_u_f32 vcc, v84, v84
    s_cbranch_scc1 KM_CHECKED
    s_cbranch_vccnz KM_FALLBACK2
    KM_CHECKED:
    """)
    sig.wait(vm=[("ost", 0)])
    sig.raw(f"""
    s_mov_b64 exec, 1
    buffer_store_dword v24, off, s[{S_WS}:{S_WS+3}], s{P.S_OF} sc1
    s_mov_b64 exec, -1
    """)
    t3 = Trace()
    t3.wait(vm=[("op", 0)])
    t3.raw(f"""
    v_cmp_ne_u32 vcc, s{S_TAG}, v28
    s_nop 0
    s_cbranch_vccnz KM_OSPIN
    KM_OBACK:
    """)
    ol = []
    for s in range(NDOWN, NDOWN + NWO):
        ol.append([rebase(P.h_load(s, i), P.S_HB, 56) for i in range(4)] + (adv64(56, 8192) if s < NDOWN + NWO - 1 else []))
    t4 = Trace()
    for grp in ol[:opre]: t4.items.extend(grp)
    k = opre
    stepsC = []
    for s in range(NIN + nA + nB, NDOWN):
        ex = []
        while len(ex) < 2 and k < 5: ex.append(ol[k]); k += 1
        stepsC.append(P.gemm_step(s, ex))
    wos = []
    for s in range(NDOWN, NDOWN + 4):
        ex = []
        while len(ex) < 2 and k < NWO: ex.append(ol[k]); k += 1
        wos.append(P.gemm_step(s, ex))
    ph = Trace()
    su = Asm()
    for pp in range(1, 4):
        su(f"s_add_u32 s78, s{S_W}, {pp}\ns_and_b32 s78, s78, 3\ns_mul_i32 s78, s78, 24576\ns_add_u32 s78, s78, {(pp-1)*8192}\nv_add_u32 v{26+pp}, s78, v{P.V_L16}")
    su(f"""
    s_mul_i32 s78, s{S_W}, 24576
    v_add_u32 v26, s78, v{P.V_L16}
    s_lshl_b32 s78, s{P.S_MT}, 17
    s_lshl_b32 s79, s{P.S_NT}, 8
    s_add_u32 s78, s78, s79
    s_lshl_b32 s79, s{S_W}, 6
    s_add_u32 s78, s78, s79
    s_add_u32 s79, s78, 0x8000
    s_add_u32 s80, s78, 0x10000
    s_add_u32 s81, s78, 0x18000
    v_and_b32 v30, 15, {L2}
    v_lshlrev_b32 v30, 11, v30
    v_bfe_u32 v25, {L2}, 4, 1
    v_lshl_add_u32 v30, v25, 5, v30
    v_lshrrev_b32 v25, 5, {L2}
    v_lshl_add_u32 v30, v25, 4, v30
    """)
    su = [l.strip() for l in su.lines]
    S2 = list(range(NDOWN + 4, NDOWN + 8))
    ph.wait(vm=[("w", s, J) for s in S2[1:] for J in range(8)], lg=[("w", s, J) for s in S2[:1] for J in range(8)])
    ph.ins("s_barrier")
    R0, R1, R2 = ACC + 32, ACC + 64, ACC + 96
    assert ph2new
    for idx, pp in enumerate((1, 2, 3, 0)):
        fill = [[] for _ in range(32)]
        if idx == 0:
            for q, x in enumerate(su): fill[q].append(I(x))
        else:
            prev = (1, 2, 3)[idx - 1]
            for t in range(8):
                fill[(4 + 3*t) if idx < 3 or not ph2new else (1 + t + (3 if t >= 4 else 0))].append(I(f"ds_write_b128 v{26+prev}, {vr(ACC + (prev*8 + t)*4, 4)} offset:{t*1024}", lg=("rw", prev)))
        if idx == 3:
            rd = [I(f"ds_read_b128 {vr((R0, R1, R2)[s_] + t*4, 4)}, v26 offset:{s_*8192 + t*1024}", lg=("rr", s_)) for s_ in range(3) for t in range(8)]
            if ph2new:
                for k_, x in enumerate(rd[:16]): fill[12 + k_ // 2].append(x)
                fill[21] += [W(lg=[("rw", 3)]), I("s_barrier")]
                for k_, x in enumerate(rd[16:]): fill[22 + k_ // 2].append(x)
                fill[26].append(W(lg=[("rr", 1)]))
                for k_ in range(10): fill[26 + k_ // 2].append(I(f"v_add_f32 v{R0+k_}, v{R0+k_}, v{R1+k_}"))
            else:
                free = [g for g in range(32) if not fill[g]]
                for x, g in zip(rd[:16], free): fill[g].append(x)
            ph.wait(lg=[("rw", 2)])
            ph.ins("s_barrier")
        mu = 0
        for s in S2:
            if idx == 0: ph.wait(vm=[("h", s, i) for i in range(4)])
            for J in (2*pp, 2*pp + 1):
                for i in range(4):
                    ph.ins(P.gemm_mfma(s, J, i, False)); ph.items.extend(fill[mu]); mu += 1
    if ph2new:
        for r in range(10, 32, 2): ph.ins(f"v_pk_add_f32 {vr(R0+r,2)}, {vr(R0+r,2)}, {vr(R1+r,2)}")
        ph.wait(lg=[("rr", 2)])
        for r in range(0, 32, 2): ph.ins(f"v_pk_add_f32 {vr(R0+r,2)}, {vr(R0+r,2)}, {vr(R2+r,2)}")
    else:
        ph.wait(lg=[("rw", 3), ("rr", 1)])
        ph.ins("s_barrier")
        ph.items.extend(rd[16:])
        for r in range(0, 32, 2): ph.ins(f"v_pk_add_f32 {vr(R0+r,2)}, {vr(R0+r,2)}, {vr(R1+r,2)}")
        ph.wait(lg=[("rr", 2)])
        for r in range(0, 32, 2): ph.ins(f"v_pk_add_f32 {vr(R0+r,2)}, {vr(R0+r,2)}, {vr(R2+r,2)}")
    for i in range(4):
        b0, b1 = ACC + i*4, ACC + (4 + i)*4
        d = 64 + i*4
        om = P.V_OMG + i
        for b in (b0, b0 + 2, b1, b1 + 2):
            ph.ins(f"v_pk_add_f32 {vr(b,2)}, {vr(b,2)}, {vr(b + 32,2)}")
        for b in (b0, b0 + 2, b1, b1 + 2):
            ph.ins(f"v_pk_mul_f32 {vr(b,2)}, {vr(b,2)}, {vr(om,2)} op_sel_hi:[1,0]" if om % 2 == 0 else f"v_pk_mul_f32 {vr(b,2)}, {vr(b,2)}, {vr(om-1,2)} op_sel:[0,1] op_sel_hi:[1,1]")
        ph.raw(f"""
        v_cvt_pk_bf16_f32 v{d}, v{b0}, v{b0+1}
        v_cvt_pk_bf16_f32 v{d+1}, v{b0+2}, v{b0+3}
        v_cvt_pk_bf16_f32 v{d+2}, v{b1}, v{b1+1}
        v_cvt_pk_bf16_f32 v{d+3}, v{b1+2}, v{b1+3}
        s_nop 1
        v_permlane16_swap_b32 v{d}, v{d+2}
        v_permlane16_swap_b32 v{d+1}, v{d+3}
        buffer_store_dwordx4 {vr(d,4)}, v30, s[{P.S_OUT}:{P.S_OUT+3}], s{78+i} offen sc1 nt
        """)
    head = [pro, pro2] + segs + [ec]
    rest = [h2, headseg] + bodies + [t1] + stepsA + [sig] + stepsB + [t3, t4] + stepsC + wos + [ph]
    import copy
    resolve(head + [l0] + rest)
    saved = [[(x.get("wvm"), x.get("wlg")) for x in seg.items] for seg in rest]
    resolve(head + [l1] + rest)
    for seg, sv in zip(rest, saved):
        for x, (v, l) in zip(seg.items, sv):
            if x["text"] is None:
                mn = lambda p, q: q if p is None else p if q is None else min(p, q)
                x["wvm"], x["wlg"] = mn(x["wvm"], v), mn(x["wlg"], l)
    emit_trace(a, [pro]); st.stamp()
    if pads:
        a("s_branch KM_BODY")
        a.lines.append(".p2align 12")
        a.label("KM_BODY")
    if al1 is not None:
        a.lines.append(".p2align 6")
        for _ in range(al1): a("s_nop 0")
    emit_trace(a, [pro2]); st.stamp()
    for k, tr in enumerate(segs):
        if 'wv' in exp and k % 2 == 0 and wv0 <= k // 2 < wv0 + 5:
            t_ = Trace(); t_.items = tr.items[:-2]; emit_trace(a, [t_]); st.stamp()
            t_.items = tr.items[-2:-1]; emit_trace(a, [t_]); st.stamp()
            t_.items = tr.items[-1:]; emit_trace(a, [t_]); st.stamp()
            continue
        emit_trace(a, [tr])
        if 'stg' in exp and k % 2 == 0: st.stamp()
    st.stamp()
    emit_trace(a, [ec])
    if 'ec' in exp: st.stamp()
    a(f"s_bitcmp1_b32 s{S_W}, 0")
    a("s_cbranch_scc1 KM_LAST1")
    emit_trace(a, [l0])
    a("s_branch KM_P2")
    a.label("KM_LAST1")
    emit_trace(a, [l1])
    if al2 is not None:
        a.lines.append(".p2align 6")
        for _ in range(al2): a("s_nop 0")
    a.label("KM_P2")
    st.stamp()
    if pads: a.lines.append("@CHAIN2")
    emit_trace(a, [h2]); st.stamp()
    b = Asm(); emit_trace(b, [headseg])
    for l in b.lines:
        a.lines.append(l)
        if 'its' in exp and l.strip() in ("s_barrier", "KM_HBACK:"): st.stamp()
    st.stamp()
    if xpeel: emit_trace(a, bodies[:1])
    a.lines.append(".p2align 6")
    a.label("KM_LOOP")
    emit_trace(a, bodies[1:] if xpeel else bodies)
    a("s_cbranch_scc1 KM_LOOP")
    st.stamp()
    emit_trace(a, [t1]); st.stamp()
    for seg in stepsA + [sig]: emit_trace(a, [seg])
    st.stamp()
    for seg in stepsB: emit_trace(a, [seg])
    st.stamp()
    emit_trace(a, [t3]); st.stamp()
    for seg in [t4] + stepsC: emit_trace(a, [seg])
    st.stamp()
    for seg in wos: emit_trace(a, [seg])
    st.stamp()
    b = Asm(); emit_trace(b, [ph])
    nm = 0
    for l in b.lines:
        a.lines.append(l)
        if l.strip().startswith("v_mfma"): nm += 1
        if 'ph' in exp and ((l.strip().startswith("v_mfma") and nm % 32 == 0) or (l.strip() == "s_barrier" and nm == 0) or "s81 offen" in l): st.stamp()
    if dbg:
        a("s_waitcnt vmcnt(0)")
        st.stamp(force=True)
        st.dump(0, S_W, 86)
        if hdbg is not None:
            a(f"""
            s_lshl_b32 s90, s2, 2
            s_add_u32 s90, s90, s{S_W}
            s_cmp_eq_u32 s90, {4*hdbg}
            s_cbranch_scc0 KM_END
            v_readlane_b32 s90, v31, 32
            v_mbcnt_lo_u32_b32 v0, -1, 0
            v_mbcnt_hi_u32_b32 v0, -1, v0
            v_subrev_u32 v31, s90, v31
            v_subrev_u32 v0, 32, v0
            v_lshlrev_b32 v0, 2, v0
            s_mov_b32 exec_lo, 0
            s_mov_b32 exec_hi, 0xfffe
            buffer_store_dword v31, v0, s[{S_DBG}:{S_DBG+3}], 0 offen
            """)
    a("s_endpgm")
    for nm, ld, val in (("Z", f"buffer_load_dword v1, off, s[{S_DBG}:{S_DBG+3}], 0 sc1", f"eq_u32 vcc, 0, v1"),
                        ("E", f"buffer_load_dword v{V_KX}, v{V_T}, s[{S_WS}:{S_WS+3}], s{S_EF} offen sc1", f"ne_u32 vcc, s{S_TAG}, v{V_KX}"),
                        ("H", f"buffer_load_dword v28, v25, s[{S_WS}:{S_WS+3}], s{P.S_HP} offen sc1", f"ne_u32 vcc, s{S_TAG}, v28"),
                        ("F", f"buffer_load_dword v28, v25, s[{S_WS}:{S_WS+3}], s43 offen sc1", f"ne_u32 vcc, s{S_TAG}, v28"),
                        ("O", f"buffer_load_dword v28, v25, s[{S_WS}:{S_WS+3}], s{P.S_OP} offen sc1", f"ne_u32 vcc, s{S_TAG}, v28")):
        if nm == 'F' and not fflag: continue
        a(f"""
        KM_{nm}SPIN:
        s_mov_b32 s91, 0x40000
        KM_{nm}SPIN1:
        {ld}
        s_waitcnt vmcnt(0)
        v_cmp_{val}
        s_sub_u32 s91, s91, 1
        s_cbranch_vccz KM_{nm}BACK
        s_cmp_eq_u32 s91, 0
        s_cbranch_scc1 KM_{nm}BACK
        s_sleep 1
        s_branch KM_{nm}SPIN1
        """)
    A_K, A_Q = P.A_K, P.A_Q
    a.label("KM_FALLBACK2")
    a("s_mov_b32 s55, 2")
    a.label("KM_FALLBACK")
    a(f"""
    s_or_b32 s55, s55, 1
    s_waitcnt vmcnt(0) lgkmcnt(0)
    s_nop 15
    v_mov_b32 v82, 0xff7fffff
    v_mov_b32 v83, 0xff7fffff
    v_mov_b32 v80, 0
    v_mov_b32 v81, 0
    s_mov_b32 s78, {WS_KV:#x}
    """)
    for r in range(32): a(f"v_mov_b32 v{VO+r}, 0")
    a.label("KM_FB_LOOP")
    for q in range(4):
        a(f"buffer_load_dwordx4 {ar(A_K+4*q,4)}, v{P.V_L16}, s[{S_WS}:{S_WS+3}], s78 offen offset:{q*1024} sc1")
    a("s_waitcnt vmcnt(0)")
    for hh in range(2):
        O = VO + 16*hh; m = 82 + hh; l = 80 + hh
        a(f"v_mfma_f32_32x32x16_bf16 v[64:79], {ar(A_K,4)}, {ar(A_Q+8*hh,4)}, 0")
        a(f"v_mfma_f32_32x32x16_bf16 v[64:79], {ar(A_K+4,4)}, {ar(A_Q+8*hh+4,4)}, v[64:79]")
        a("s_nop 15")
        a("v_max_f32 v84, v64, v65")
        for r in range(2, 16, 2): a(f"v_max3_f32 v84, v{64+r}, v{65+r}, v84")
        a(f"""
        v_mov_b32 v85, v84
        s_nop 1
        v_permlane32_swap_b32 v84, v85
        s_nop 1
        v_max3_f32 v84, v84, v85, v{m}
        v_sub_f32 v85, v{m}, v84
        v_exp_f32 v85, v85
        v_mov_b32 v{m}, v84
        v_mul_f32 v{l}, v{l}, v85
        """)
        for r in range(16):
            a(f"v_sub_f32 v{64+r}, v{64+r}, v84")
            a(f"v_exp_f32 v{64+r}, v{64+r}")
            a(f"v_mul_f32 v{O+r}, v{O+r}, v85")
        for r in range(8): a(f"v_cvt_pk_bf16_f32 v{64+r}, v{64+2*r}, v{65+2*r}")
        for r in range(8):
            a(f"v_lshlrev_b32 v86, 16, v{64+r}\nv_and_b32 v87, 0xffff0000, v{64+r}\nv_add_f32 v{l}, v{l}, v86\nv_add_f32 v{l}, v{l}, v87")
        a(f"v_mfma_f32_32x32x16_bf16 {vr(O,16)}, {ar(A_K+8,4)}, v[64:67], {vr(O,16)}")
        a(f"v_mfma_f32_32x32x16_bf16 {vr(O,16)}, {ar(A_K+12,4)}, v[68:71], {vr(O,16)}")
        a("s_nop 15")
    a(f"""
    s_add_u32 s78, s78, 4096
    s_cmp_lt_u32 s78, {WS_KV + 64*4096:#x}
    s_cbranch_scc1 KM_FB_LOOP
    v_mov_b32 v84, v80
    v_mov_b32 v85, v81
    s_nop 1
    v_permlane32_swap_b32 v80, v84
    v_permlane32_swap_b32 v81, v85
    s_nop 1
    v_add_f32 v80, v80, v84
    v_add_f32 v81, v81, v85
    s_cmp_eq_u32 s55, 1
    s_cbranch_scc1 KM_NORM
    v_rcp_f32 v80, v80
    v_rcp_f32 v82, v81
    s_nop 0
    v_mul_f32 v80, v80, v{P.V_G}
    v_mul_f32 v82, v82, v{P.V_G+1}
    """)
    for hh in range(2):
        for pc in range(2):
            b = VO + 16*hh + 8*pc
            for r in range(8): a(f"v_mul_f32 v{b+r}, v{b+r}, v{80+2*hh}")
            for q in range(4): a(f"v_cvt_pk_bf16_f32 v{64+8*hh+4*pc+q}, v{b+2*q}, v{b+2*q+1}")
            a(f"buffer_store_dwordx4 {vr(64+8*hh+4*pc,4)}, v26, s[{S_WS}:{S_WS+3}], s54 offen offset:{hh*2048 + pc*512} sc1")
    a(f"""
    s_waitcnt vmcnt(0)
    s_branch KM_CHECKED
    KM_END:
    s_endpgm
    """)
    return a.text()
```

```python
from common import *
import math, struct

LDS_SP = 65536
K2_LDS = 163840

V_L16, V_L16B, V_KVR = 1, 2, 3
V_W = 4
V_SP, V_KP = 8, 12
V_LANE, V_OMG, V_G = 16, 18, 22
SB = [32, 48]; PB = [64, 72]
ACC = 128
A_O, A_L, A_SEL, A_Q, A_K, A_V = 0, 32, 40, 44, 60, 76
A_WR, RW = 92, 16
A_HR, RH = 156, 4
A_WX = 220
S_OUT, S_WS = 20, 24
S_HB, S_WB, S_KVB, S_XB = 12, 14, 16, 18
S_W, S_MT, S_NT, S_M0KV, S_M0SP = 36, 28, 29, 30, 31
S_WOB = 32
S_HF, S_HP, S_OF, S_OP = 8, 9, 10, 11
LDS_Q = 65536
NDOWN, NWO = 28, 8
NSLOT = 128

I = lambda text, vm=None, lg=None: dict(text=text, vm=vm, lg=lg)
W = lambda vm=(), lg=(): dict(text=None, needvm=list(vm), needlg=list(lg))
def adv64(s, n): return [I(f"s_add_u32 s{s}, s{s}, {n:#x}\ns_addc_u32 s{s+1}, s{s+1}, 0")]

def accr(J, i): return vr(ACC + (J*4 + i)*4, 4)
V_O = 96
def wreg(sig, J):
    if sig == NDOWN + 7: return ar(A_WX + 4*J, 4)
    if sig == NDOWN + 6: return ar(A_O + 4*J, 4)
    if sig == NDOWN + 5: return vr(32 + 4*J, 4)
    return ar(A_WR + 4*((8*sig + J) % RW), 4)
OREGS = [ar(A_Q + 4*k, 4) for k in range(12)] + [vr(V_O + 4*k, 4) for k in range(8)] + [ar(A_HR + 4*k, 4) for k in range(4*RH)]
def hreg(sig, i, ring=False):
    if sig >= NDOWN and not ring: return OREGS[4*(sig - NDOWN) + i]
    return ar(A_HR + 16*(sig % RH) + 4*i, 4)
def gemm_mfma(sig, J, i, first):
    return f"v_mfma_f32_16x16x32_bf16 {accr(J,i)}, {wreg(sig,J)}, {hreg(sig,i)}, {'0' if first else accr(J,i)}"
def h_load(sig, i, ring=False):
    return I(f"global_load_dwordx4 {hreg(sig,i,ring)}, v{V_L16}, s[{S_HB}:{S_HB+1}] offset:{i*1024} sc1", vm=("hx" if ring and sig >= NDOWN else "h", sig, i))
NIN = 25
NHEAD = 1
KV1 = 8
TCH, TPOS, V_TCH, S_TCO = False, 18, 17, 43
def tch_ins(): return I(f"buffer_load_dword a255, v{V_TCH}, s[{S_WS}:{S_WS+3}], s{S_TCO} offen sc1")
def configure(nh):
    global NHEAD, NIN, SF0
    NHEAD = nh; NIN = 24 + nh; SF0 = NIN + 2
SF0 = NIN + 2
S_WB0 = 64
S_M0C, S_SPM, S_CNT = 34, 35, 39
def wsrc(sig):
    if sig < SF0: return "ring"
    if sig < NDOWN + 5: return "lds"
    return "x"
def slot_of(sig): return (sig - SF0) % 4
def w_load(sig, J):
    src = wsrc(sig)
    if src == "ring":
        return I(f"global_load_dwordx4 {wreg(sig,J)}, v{V_W + J//2}, s[{S_WB}:{S_WB+1}] offset:{(J%2)*1024} sc1", vm=("w", sig, J))
    if src == "x":
        return I(f"global_load_dwordx4 {wreg(sig,J)}, v{V_W + J//2}, s[{S_XB}:{S_XB+1}] offset:{(J%2)*1024} sc1", vm=("w", sig, J))
    k = slot_of(sig)
    reg, off = (V_SP, k*8192) if k < 3 else (V_KP, 0)
    return I(f"ds_read_b128 {wreg(sig,J)}, v{reg + J//2} offset:{off + (J%2)*1024}", lg=("w", sig, J))
def w_need(sig, J):
    return W(lg=[("w", sig, J)]) if wsrc(sig) == "lds" else W(vm=[("w", sig, J)])
def x_base(sig):
    b, o = (S_WB0, sig*8192) if sig < NDOWN else (S_WOB, (sig - NDOWN)*8192)
    return I(f"s_add_u32 s{S_XB}, s{b}, {o}\ns_addc_u32 s{S_XB+1}, s{b+1}, 0")
def fifo_fill(sig, half):
    k = slot_of(sig)
    m0 = I(f"s_add_u32 m0, s{S_M0SP}, {k*8192 + half*4096}") if k < 3 else I(f"s_add_u32 m0, s{S_M0KV}, {half*4096}")
    return m0, [I(f"global_load_lds_dwordx4 v{V_L16B if half else V_L16}, s[{S_XB}:{S_XB+1}] offset:{j*1024} sc1", vm=("wd", sig)) for j in range(4)]
def qk(n, half):
    T = n // 2; Sx = SB[n % 2]
    c = "0" if half == 0 else vr(Sx, 16)
    return f"v_mfma_f32_32x32x16_bf16 {vr(Sx,16)}, {ar(A_K + 8*(T%2) + 4*half,4)}, {ar(A_Q + 8*(n%2) + 4*half,4)}, {c}"
def pv(n, half):
    T = n // 2; O = V_O + 16*(n % 2)
    c = "0" if (n < 2 and half == 0) else vr(O, 16)
    return f"v_mfma_f32_32x32x16_bf16 {vr(O,16)}, {ar(A_V + 8*(T%2) + 4*half,4)}, {vr(PB[n%2] + 4*half,4)}, {c}"
def summ(n, half):
    Lr = A_L + 4*(n % 2)
    c = "0" if (n < 2 and half == 0) else ar(Lr, 4)
    return f"v_mfma_f32_16x16x32_bf16 {ar(Lr,4)}, {ar(A_SEL,4)}, {vr(PB[n%2] + 4*half,4)}, {c}"
def kv_off(T): return (T % 8)*4096
def k_read(T, half):
    return I(f"ds_read_b128 {ar(A_K + 8*(T%2) + 4*half,4)}, v{V_KVR} offset:{kv_off(T) + half*1024}", lg=("k", T))
def v_read(T, half):
    return I(f"ds_read_b128 {ar(A_V + 8*(T%2) + 4*half,4)}, v{V_KVR} offset:{kv_off(T) + 2048 + half*1024}", lg=("v", T))
def kv_dma(stage, part, j):
    v = V_L16 if part == 0 else V_L16B
    return I(f"global_load_lds_dwordx4 v{v}, s[{S_KVB}:{S_KVB+1}] offset:{j*1024} sc1", vm=("kv", stage))

def xcost(x):
    t = x["text"] or "s_"
    if t.startswith("ds_"): return 4
    if t.startswith("global_"): return 5
    if t.startswith("buffer_"): return 8
    if t.startswith("v_"): return 4
    if "\n" in t: return 4
    return 0

def segment(lo, hi, mu0, mu1, g0, timed=(), loop=False):
    seq = []
    mu = mu0
    for n in range(lo, hi):
        att = [(qk(n+1, 0), 32), (qk(n+1, 1), 32)]
        if n >= 1: att += [(pv(n-1, 0), 32), (summ(n-1, 0), 16), (pv(n-1, 1), 32), (summ(n-1, 1), 16)]
        top = mu0 if n < g0 else mu0 + round((mu1 - mu0)*(n + 1 - g0)/(hi - g0))
        cnt = top - mu
        for k, (t, p_) in enumerate(att):
            seq.append(dict(text=t, pipe=p_, slot=n, mu=None, k=k))
            for _ in range(round(cnt*(k + 1)/len(att)) - round(cnt*k/len(att))):
                sig, J, i = mu // 32, (mu % 32) // 4, mu % 4
                seq.append(dict(text=gemm_mfma(sig, J, i, sig == 0 and NHEAD > 0), pipe=16, slot=n, mu=mu, k=None)); mu += 1
    assert mu == mu1
    N = len(seq)
    gaps = [[] for _ in range(N)]
    pos_mu = {s["mu"]: g for g, s in enumerate(seq) if s["mu"] is not None}
    slot_start = {}
    for g, s in enumerate(seq): slot_start.setdefault(s["slot"], g)
    slot_start[hi] = N
    def place(item, lo_, hi_=None):
        G = lo_
        while G < N and gaps[G]: G += 1
        if hi_ is not None and G > hi_:
            lo_ = min(lo_, hi_)
            G = min(range(lo_, hi_ + 1), key=lambda g: (sum(xcost(x) + 1 for x in gaps[g]), g))
        assert G < N, (item, lo_, hi_, G)
        gaps[G].append(item); return G
    def place_cluster(items, lo_, hi_):
        hi_ = min(hi_, N - 1); lo_ = min(lo_, hi_)
        cands = [g for g in range(lo_, hi_ + 1) if not gaps[g]]
        big = [g for g in cands if seq[g]["pipe"] == 32]
        G = big[0] if big else cands[0] if cands else min(range(lo_, hi_ + 1), key=lambda g: (sum(xcost(x) + 1 for x in gaps[g]), g))
        gaps[G].extend(items); return G
    for m in range(mu0, mu1, 4):
        sig, J = m // 32, (m % 32) // 4
        w = w_need(sig, J)
        if J == 0: w["needvm"] += [("h", sig, q) for q in range(4)]
        gaps[pos_mu[m] - 1].append(w)
    for n in range(lo, hi, 2):
        gaps[slot_start[n + 1] - 1].append(W(lg=[("k", n // 2 + 1)]))
    for it in range(lo // 16, hi // 16):
        G = slot_start[16*it + 14]
        gaps[G] = [W(vm=[("kv", it + 1)], lg=[("v", 8*it + 7)]), I("s_barrier"), I(f"v_xor_b32 v{V_KVR}, 0x8000, v{V_KVR}")] + gaps[G]
    for n in range(lo, hi):
        T = n // 2 + 1
        l_ = slot_start[n] + (1 if n % 16 == 14 else 0) + 1
        G = place(k_read(T, 0) if n % 2 == 0 else v_read(T, 0), l_, slot_start[n + 1] - 2)
        place(k_read(T, 1) if n % 2 == 0 else v_read(T, 1), G + 2, slot_start[n + 1] - 2)
    G = 0
    for sl, items in timed:
        G = place_cluster(items, max(slot_start[sl] + 1, G + 1), max(slot_start[sl + 1] - 2, G + 2))
    def place_split(items, lo_, hi_, step):
        G0 = None; G = lo_
        for k, x in enumerate(items):
            G = place_cluster([x], min(G, N - 1), min(hi_ + k*step, N - 1))
            if G0 is None: G0 = G
            last = G; G += step
        return G0, last
    lastw = -1
    for m in range(mu0 + 3, mu1, 4):
        sig, J = m // 32, (m % 32) // 4
        G = pos_mu[m]
        if J == 0: place(adv64(S_WB, 8192)[0], max(lastw + 1, G - 6), G - 1)
        lastw = place_cluster([w_load(sig + 2, J)], G, G + 3)
    if TCH:
        for sig in range(mu0 // 32, mu1 // 32):
            G = place_cluster([tch_ins()], pos_mu[32*sig + TPOS], pos_mu[32*sig + TPOS] + 4)
            place(I(f"s_add_u32 s{S_TCO}, s{S_TCO}, 8192"), G + 1)
    for sig in range(mu0 // 32, mu1 // 32):
        if sig >= 1 or loop:
            G = pos_mu[32*sig]
            G = place(adv64(S_HB, 8192)[0], G, G + 2)
            place_split([h_load(sig - 1 + RH, i, True) for i in range(4)], G + 2, G + 8, 7)
    for it in range(lo // 16, hi // 16):
        for part in range(2):
            s0 = 16*it + (7 if it == 0 else KV1 if it == 1 else 1) + (2 if it == 1 else 3)*part
            cl = [kv_dma(it + 1, part, j) for j in range(4)]
            if it == 7: cl[-1]["vm2"] = ("wd", SF0 + 3)
            G0, G = place_split(cl, slot_start[s0] + 3, slot_start[s0] + (9 if loop else 5), 5 if loop else 2)
            assert G < slot_start[s0 + 2]
            place(I(f"s_add_u32 m0, s{S_M0C}, {part*4096}"), G0 - 3, G0 - 1)
        G = place(adv64(S_KVB, 32768)[0], G + 1)
        G = place(I(f"s_xor_b32 s{S_M0C}, s{S_M0C}, 0x8000"), G + 1)
        if loop:
            idx = it - 2
            cl = [I(f"global_load_lds_dwordx4 v{V_L16}, s[{S_XB}:{S_XB+1}] offset:{j*1024} sc1", vm=("wd", SF0 + idx // 2)) for j in range(4)]
            G0, G = place_split(cl, slot_start[16*it + 9] + 4, slot_start[16*it + 9] + 10, 5)
            place(I(f"s_mov_b32 m0, s{S_SPM}"), G0 - 3, G0 - 1)
            G = place(adv64(S_XB, 4096)[0], G + 1)
            G = place(I(f"s_add_u32 s{S_SPM}, s{S_SPM}, 4096"), G + 1)
            G = place(I(f"s_sub_u32 s{S_CNT}, s{S_CNT}, 1"), G + 1)
            G = place(I(f"s_cmp_eq_u32 s{S_CNT}, {6 - 2*(NDOWN - SF0)}\ns_cselect_b32 s{S_XB}, s{S_WOB}, s{S_XB}\ns_cselect_b32 s{S_XB+1}, s{S_WOB+1}, s{S_XB+1}"), G + 1)
            G = place(I(f"s_cmp_eq_u32 s{S_CNT}, 1\ns_cselect_b32 s{S_KVB}, s66, s{S_KVB}\ns_cselect_b32 s{S_KVB+1}, s67, s{S_KVB+1}"), G + 1)
    V = []
    for n in range(lo, hi):
        Sx, Px = SB[n % 2], PB[n % 2]
        for r in range(0, 16, 2):
            V += [(8, f"v_exp_f32 v{Sx+r}, v{Sx+r}", n, "e"), (8, f"v_exp_f32 v{Sx+r+1}, v{Sx+r+1}", n, "e")]
            if r >= 2: V.append((4, f"v_cvt_pk_bf16_f32 v{Px+r//2-1}, v{Sx+r-2}, v{Sx+r-1}", n, r//2 - 1))
        V.append((4, f"v_cvt_pk_bf16_f32 v{Px+7}, v{Sx+14}, v{Sx+15}", n, 7))
    vidx = {(n, k): i for i, (_, _, n, k) in enumerate(V) if k != "e"}
    for sq in seq:
        n, k = sq["slot"], sq["k"]
        dep = -1
        if k is not None and n > lo:
            dep = vidx[(n - 1, 7)] if k in (0, 4, 5) else vidx[(n - 1, 3)] if k in (2, 3) else -1
        sq["dep"] = dep
    pos_att = {(sq["slot"], sq["k"]): g for g, sq in enumerate(seq) if sq["k"] is not None}
    tr = Trace()
    t = valu = pipe = 0
    ig = iv = cnt = 0
    emitted_at = {}; vem_at = {}
    while ig < N or iv < len(V):
        m_ok = ig < N and seq[ig]["dep"] < iv and (seq[ig]["dep"] < 0 or cnt - vem_at[seq[ig]["dep"]] >= 2) and cnt >= 2
        v_ok = False
        if iv < len(V):
            c, txt_, n, k = V[iv]
            v_ok = True
            if n > lo and k == "e":
                g = pos_att[(n - 1, 1)]
                v_ok = g in emitted_at and cnt - emitted_at[g][0] >= 12 and max(t, valu) >= emitted_at[g][1] + 56
            if k != "e" and n >= 2 and n > lo:
                v_ok = pos_att[(n - 1, 3 if k < 4 else 5)] in emitted_at
        now = max(t, valu)
        if m_ok and (pipe <= now or not v_ok):
            s_ = max(now, pipe); t = s_ + 4; valu = s_ + 8; pipe = s_ + seq[ig]["pipe"]
            tr.ins(seq[ig]["text"]); cnt += 1; emitted_at[ig] = (cnt, s_)
            prev = ""
            for x in gaps[ig]:
                tr.items.append(x); cnt += 1 if x["text"] and not x["text"].endswith(":") else 0
                tx = x["text"] or "s_"
                if tx.startswith("ds_"): t += 4 if prev.startswith("ds_") else 8
                elif tx.startswith("global_"): t += 8 if prev.startswith("global_") else 10
                elif tx.startswith("buffer_"): t += 12
                else: t += 4*(1 + tx.count("\n"))
                prev = tx
            ig += 1
        elif v_ok:
            t = valu = now + c
            tr.ins(txt_); cnt += 1; vem_at[iv] = cnt; iv += 1
        else:
            tr.ins("s_nop 0"); cnt += 1; t += 4
    txt = [x["text"] for x in tr.items if x["text"]]
    for k in range(1, len(txt)):
        if txt[k].startswith("v_cvt") and txt[k-1].startswith("v_exp"):
            d = txt[k-1].split()[1].rstrip(",")
            assert d + "," not in txt[k] + ",", (txt[k-1], txt[k])
    return tr

TSP = 2
def gemm_step(sig, extra=(), late=(), vq=None, latepos=13):
    gaps = [[] for _ in range(32)]
    pre = []
    w = w_need(sig, 0); w["needvm"] += [("h", sig, 0)]
    pre.append(w)
    for i in range(1, 4): gaps[i - 1].append(W(vm=[("h", sig, i)]))
    s2 = sig + 2
    for J in range(8):
        if J % 4 == 3 and s2 < NDOWN + 5:
            assert wsrc(s2) == "lds"
            if J == 3: gaps[4*J + 2].append(W(vm=[("wd", s2)]))
            gaps[4*J + 3].extend(w_load(s2, q) for q in range(J - 3, J + 1))
        if J < 7: gaps[4*J + 3].insert(0, w_need(sig, J + 1))
    stream = []
    def add(lo, items):
        cur = []
        for n_, x in enumerate(items):
            t = x["text"] or ""
            if t.startswith(("global_", "buffer_")): stream.append((lo, cur + [x])); cur = []
            elif n_ == len(items) - 1: stream[-1][1].append(x)
            else: cur.append(x)
    ex = list(extra)
    if sig - 1 + RH < NDOWN: add(1, adv64(S_HB, 8192) + [h_load(sig - 1 + RH, i) for i in range(4)])
    if ex: add(3, ex[0])
    s3 = sig + 1 + 4
    if sig + 1 >= SF0 and s3 < NDOWN + 5:
        for half in range(2):
            m_, d_ = fifo_fill(s3, half)
            add(4, ([x_base(s3), m_, W(lg=[("w", sig + 1, 7)]), I("s_nop 0")] if half == 0 else [m_, I("s_nop 0")]) + d_)
            if half == 0 and late: add(latepos, list(late)); late = ()
    if late: add(latepos, list(late))
    for e_ in ex[1:]: add(14, e_)
    G = -TSP
    for k, (lo, items) in enumerate(stream):
        G = min(max(lo, G + TSP), 31 - (len(stream) - 1 - k))
        gaps[G].extend(items)
    tr = Trace()
    tr.items.extend(pre)
    for mu in range(32):
        tr.ins(gemm_mfma(sig, mu // 4, mu % 4, False))
        tr.items.extend(gaps[mu])
        n = 0
        while vq and n < 2:
            x = vq.pop(0); tr.items.append(x)
            if not (x["text"] or "s_").startswith("s_") or "\n" in (x["text"] or ""): n += 1
            elif vq and (vq[0]["text"] or "s_").startswith("s_"): n += 1
    return tr
```

```python
from common import *
import p2
from p2 import I, W, adv64
import math, struct

KM = NAME + "_kernel"
LDS_X = 0; LDS_W = 65536
LDS_R = 131072
LDS_QS = LDS_R; LDS_KW = LDS_R + 4096; LDS_T = LDS_R + 16384
KM_LDS = 163840
NST = 16
OOB = 0x7f000000

def accn(j, i): return ("v", 32 + (j*8 + i)*4) if j < 7 else ("a", 128 + i*4)
def acc(j, i):
    p, b = accn(j, i); return vr(b, 4, p)
XF = [0, 64]; WF = [32, 96]
KVW, KVA, A_GX, A_GW, A_T, A_KX, A_DUM = 160, 168, 172, 188, 204, 208, 255
TREG = [196, 200, 204, 224, 228, 232, 236, 240, 244]
V_DQ, V_DX, V_DW = 0, 2, 6
V_RX = [10, 11]
V_RW, V_R3, V_R7, V_RKW, V_T, V_KX, V_LANE = 12, 15, 16, 17, 18, 19, 20
V_GROW, V_L16, V_RT, V_DT, V_DK = 26, 27, 28, 29, 30
S_WQ, S_X, S_G, S_U, S_KV, S_WS, S_GW, S_TSRD, S_WD, S_WO, S_DBG = 4, 8, 12, 16, 20, 24, 28, 32, 52, 76, 72
S_W, S_MT, S_NT, S_OK = 36, 37, 38, 39
S_OX, S_OX2, S_OG, S_OQ, S_TSRCS = 40, 41, 42, 43, 44
S_M0X, S_M0W, S_M0K, S_M0T, S_M0Q = 45, 46, 47, 51, 56
S_TOFF, S_TSTEP, S_TOG = 48, 49, 50
S_TSRC, S_TDST, S_TSRC2, S_TDST2, S_GROW = 3, 94, 95, 100, 101
S_EF = 88
S_LMASK, S_T2D = 58, 59
S_TAG = 89
A_TAG = 254
S_FLG = 57

KVD = 1
def dma_group_buf(s, ntw):
    b = s % 2
    g = []
    nt = " nt" if ntw else ""
    for half in range(2):
        so = S_OX if half == 0 else S_OX2
        for j in range(4):
            pre = f"s_add_u32 m0, s{S_M0X}, {b*32768 + half*4096}" if j == 0 else None
            g.append((pre, I(f"buffer_load_dwordx4 v{V_DX+j}, s[{S_X}:{S_X+3}], s{so} offen offset:{j*1024} lds", vm=("st", s))))
    for part in range(2):
        srdn = S_G if part == 0 else S_U
        for j in range(4):
            pre = f"s_add_u32 m0, s{S_M0W}, {b*32768 + part*16384}" if j == 0 else None
            g.append((pre, I(f"buffer_load_dwordx4 v{V_DW+j}, s[{srdn}:{srdn+3}], s{S_OG} offen offset:{j*1024}{nt} lds", vm=("st", s))))
    g.append((f"s_add_u32 m0, s{S_M0Q}, {b*2048}", I(f"buffer_load_dwordx4 v{V_DQ}, s[{S_WQ}:{S_WQ+3}], s{S_OQ} offen{nt} lds", vm=("st", s))))
    adv = {7: [f"s_add_u32 s{S_OX}, s{S_OX}, 128", f"s_add_u32 s{S_OX2}, s{S_OX2}, 128"],
           15: [f"s_add_u32 s{S_OG}, s{S_OG}, {64*7168}"], 16: [f"s_add_u32 s{S_OQ}, s{S_OQ}, 0x20000"]}
    if 1 <= s - KVD <= 8:
        g.append((f"s_add_u32 m0, s{S_M0K}, {b*8192}", I(f"buffer_load_dwordx4 v{V_DK}, s[{S_KV}:{S_KV+3}], s{S_OK} offen lds", vm=("st", s))))
        adv[17] = [f"s_add_u32 s{S_OK}, s{S_OK}, 8192"]
    return g, adv
GDMA = False
B_X, B_X2, B_G, B_U, B_Q = 40, 90, 64, 66, 42
B_X2 = 62
def dma_group(s, ntw):
    g, adv = dma_group_buf(s, ntw)
    if not GDMA: return g, adv
    out = []
    for k, (pre, it) in enumerate(g):
        if k < 17:
            base = B_X if k < 4 else B_X2 if k < 8 else B_G if k < 12 else B_U if k < 16 else B_Q
            reg = V_DX + k % 4 if k < 8 else V_DW + k % 4 if k < 16 else V_DQ
            it = I(f"global_load_lds_dwordx4 v{reg}, s[{base}:{base+1}] offset:{(k % 4)*1024 if k < 16 else 0}", vm=("st", s))
        out.append((pre, it))
    a64 = lambda b, n: f"s_add_u32 s{b}, s{b}, {n}\ns_addc_u32 s{b+1}, s{b+1}, 0"
    adv2 = {3: [a64(B_X, 128)], 7: [a64(B_X2, 128)], 11: [a64(B_G, 64*7168)], 15: [a64(B_U, 64*7168)], 16: [a64(B_Q, 0x20000)]}
    if 17 in adv: adv2[17] = adv[17]
    return out, adv2
def xread(s, kk, i):
    return I(f"ds_read_b128 {ar(XF[kk]+4*i,4)}, v{V_RX[kk]} offset:{(s%2)*32768 + i*2048}", lg=("fr", s, kk))
def wread(s, kk, j, h):
    if j % 4 == 3:
        reg, off = (V_R3 if j == 3 else V_R7), h*1024 + kk*8192
    else:
        reg, off = V_RW + (j & 3), (s % 2)*32768 + h*1024 + kk*8192 + (16384 if j >= 4 else 0)
    return I(f"ds_read_b64_tr_b16 {ar(WF[kk]+4*j+2*h,2)}, v{reg} offset:{off}", lg=("fr", s, kk))
def reads(s, kk):
    r = [wread(s, kk, 0, 0), wread(s, kk, 0, 1)] + [xread(s, kk, i) for i in range(8)]
    for j in range(1, 8): r += [wread(s, kk, j, 0), wread(s, kk, j, 1)]
    return r
def mfma(kk, j, i, first=False):
    return f"v_mfma_f32_16x16x32_bf16 {acc(j,i)}, {ar(WF[kk]+4*j,4)}, {ar(XF[kk]+4*i,4)}, {'0' if first else acc(j,i)}"
def vcap(items):
    c = 2
    for x in items:
        t = x["text"] or "s_"
        if t.startswith("ds_"): c -= 1
        elif t.startswith(("buffer_", "global_")): c -= 2
        elif t.startswith("v_"): c -= 1
    return max(c, 0)
from k1 import g_ops as _g_ops
import k1 as _k1
_k1.A_GX, _k1.A_GW = A_GX, A_GW

def gen(dbg=False, hdbg=None, lead=True, lphase=0, nhd=1, psp=2, cpf='full', gdma=False, ndef=0, dsl=1, ptc=0, tpos2=18, fflag=False, fpoll=2, xpeel=False, xhead=True, al1=None, al2=None, gsm=True, tsp0=4, hstart=0, xmask=0x1f, tt0=0, wv0=1, cl=1, gc=(10, 8), dc=8, slack=0, ph2new=True, tp2=False, tb=8, tlb=0, tlbpos=17, tdefer=False, tpro=0, tpos=0, gl=2, pads=0, epos=10, chain_at=1, ot=99, touch=1, nhead=13, p1=13, npro0=8, gs=11, tq0=5, ntw=False, ntt=True, exp='',
        g0=25, hsig=5, hpoll=16, opre=1, nb=(1, 2)):
    esig = KVD + 11
    global GDMA
    GDMA = gdma
    if tp2:
        tq0 = 100
    p2.TCH = bool(ptc); p2.TPOS = tpos2
    p2.configure(nhd); p2.KV1 = 8 if fflag else max(8, hpoll - 13)
    if fflag: tq0 = 3
    NIN = p2.NIN
    a = Asm()
    L = f"v{V_LANE}"
    a("s_cmp_ge_u32 s2, 256")
    a("s_cbranch_scc1 KM_END")
    st = Stamps(a, dbg)
    st.stamp()
    a("s_memrealtime s[72:73]")
    a("s_load_dwordx8 s[56:63], s[0:1], 0")
    a("s_load_dwordx8 s[64:71], s[0:1], 48")
    a("s_load_dwordx2 s[74:75], s[0:1], 32")
    a("s_load_dwordx4 s[96:99], s[0:1], 80")
    a("s_load_dwordx2 s[86:87], s[0:1], 96")
    if cpf == "full": code_prefetch(a, "KM", 32, "a255", 3)
    else:
        a("s_getpc_b64 s[32:33]")
        a.label("KM_PC")
        if cpf == "share":
            a("""
            s_and_b32 s33, s33, 0xffff
            s_mov_b32 s34, KM_END-KM_PC
            s_mov_b32 s35, 0x00020000
            v_lshrrev_b32 v1, 4, v0
            v_and_b32 v1, 12, v1
            v_and_or_b32 v1, v0, 3, v1
            v_lshlrev_b32 v1, 7, v1
            s_lshr_b32 s36, s2, 3
            s_lshl_b32 s36, s36, 11
            buffer_load_dword a255, v1, s[32:35], s36 offen
            """)
    a(f"""
    v_and_b32 {L}, 63, v0
    v_lshrrev_b32 v1, 6, v0
    s_and_b32 s80, s2, 7
    v_readfirstlane_b32 s{S_W}, v1
    s_lshr_b32 s81, s2, 3
    s_and_b32 s{S_MT}, s81, 7
    s_lshr_b32 s83, s81, 3
    s_lshl_b32 s80, s80, 2
    s_add_u32 s{S_NT}, s80, s83
    s_mul_i32 s85, s{S_NT}, 224
    s_mov_b32 s{S_OG}, 0
    s_mov_b32 s{S_OQ}, 0
    v_lshrrev_b32 v21, 3, {L}
    s_lshl_b32 s81, s{S_MT}, 8
    s_lshl_b32 s82, s{S_W}, 6
    s_add_u32 s81, s81, s82
    v_add_u32 v21, s81, v21
    v_lshlrev_b32 v21, 11, v21
    v_and_b32 v22, 7, {L}
    v_lshrrev_b32 v23, 4, {L}
    v_xor_b32 v22, v22, v23
    v_lshlrev_b32 v22, 4, v22
    v_xor_b32 v24, 64, v22
    """)
    for j in range(4):
        a(f"v_add_u32 v{V_DX+j}, v21, {'v22' if j % 2 == 0 else 'v24'}")
        if j: a(f"v_add_u32 v{V_DX+j}, {j*8*2048 - j*1024}, v{V_DX+j}")
    a(f"""
    s_mov_b32 s{S_OX}, 0
    s_mov_b32 s{S_OX2}, 65536
    s_mov_b32 s{S_OK}, 0
    s_lshl_b32 s81, s{S_W}, 4
    s_movk_i32 s84, 7168
    v_add_u32 v21, s81, v23
    v_mul_lo_u32 v21, v21, s84
    v_add_u32 v21, s85, v21
    v_and_b32 v25, 1, {L}
    v_lshl_add_u32 v21, v25, 4, v21
    v_bfe_u32 v22, {L}, 1, 3
    v_xor_b32 v22, v22, v23
    v_xor_b32 v24, 4, v22
    v_min_u32 v22, 6, v22
    v_min_u32 v24, 6, v24
    v_lshl_add_u32 v{V_DW}, v22, 5, v21
    v_add_u32 v{V_DW+1}, {4*7168 - 1024}, v{V_DW}
    v_lshl_add_u32 v{V_DW+2}, v24, 5, v21
    v_add_u32 v{V_DW+2}, {2*(4*7168 - 1024)}, v{V_DW+2}
    v_add_u32 v{V_DW+3}, {4*7168 - 1024}, v{V_DW+2}
    s_lshl_b32 s{S_M0X}, s{S_W}, 13
    s_lshl_b32 s{S_M0W}, s{S_W}, 12
    s_add_u32 s{S_M0W}, s{S_M0W}, {LDS_W}
    s_lshl_b32 s{S_M0K}, s{S_W}, 10
    s_add_u32 s{S_M0T}, s{S_M0K}, {LDS_T}
    s_add_u32 s{S_M0K}, s{S_M0K}, {LDS_KW}
    s_lshr_b32 s81, s{S_W}, 1
    s_and_b32 s80, s{S_W}, 1
    """)
    a(f"""
    v_lshlrev_b32 v21, 3, v23
    v_bfe_u32 v22, {L}, 2, 2
    v_add_u32 v21, v21, v22
    s_lshl_b32 s82, s81, 5
    s_lshl_b32 s83, s80, 2
    s_add_u32 s82, s82, s83
    v_add_u32 v21, s82, v21
    v_lshlrev_b32 v21, 11, v21
    v_bfe_u32 v22, {L}, 1, 1
    v_bfe_u32 v24, {L}, 4, 1
    v_xor_b32 v22, v22, v24
    v_lshl_add_u32 v21, v22, 5, v21
    v_lshl_add_u32 v21, v25, 4, v21
    s_lshl_b32 s82, s{S_NT}, 6
    v_add_u32 v{V_DQ}, s82, v21
    s_lshl_b32 s90, s81, 13
    s_lshl_b32 s83, s80, 10
    s_add_u32 s90, s90, s83
    s_waitcnt lgkmcnt(0)
    """)
    st.n and None
    a(f"s_or_b32 s{S_TAG}, s72, 1")
    srd(a, S_X, 56, 2048*1024*2)
    srd(a, S_G, 64, 1024*3584*2)
    srd(a, S_U, 66, 1024*3584*2)
    srd(a, S_WQ, 58, 1024*1024*2)
    if gdma:
        a(f"""
        s_and_b32 s82, s{S_NT}, 2
        s_cmp_eq_u32 s82, 0
        s_cselect_b32 s60, s60, s62
        s_cselect_b32 s61, s61, s63
        s_mov_b64 s[{B_X}:{B_X+1}], s[56:57]
        s_add_u32 s{B_X2}, s56, 0x10000
        s_addc_u32 s{B_X2+1}, s57, 0
        s_mov_b64 s[{B_Q}:{B_Q+1}], s[58:59]
        """)
    a(f"s_add_u32 s{S_M0Q}, s90, {LDS_QS}")
    st.stamp()
    pro = Trace()
    def dma_items(s, lo, hi):
        g, adv = dma_group(s, ntw)
        out = []
        for k in range(lo, min(hi, len(g))):
            pre, it = g[k]
            out.append(([I(pre), I("s_nop 0")] if pre else []) + [it] + [I(x) for x in adv.get(k, [])])
        return out
    pc = Asm()
    pc(f"""
    v_lshlrev_b32 v{V_L16}, 4, {L}
    v_and_b32 v21, 15, {L}
    s_lshl_b32 s83, s81, 14
    v_lshlrev_b32 v22, 7, v21
    v_lshrrev_b32 v24, 1, v21
    v_xor_b32 v24, v24, v23
    v_lshl_add_u32 v22, v24, 4, v22
    v_add_u32 v{V_RX[0]}, s83, v22
    v_xor_b32 v{V_RX[1]}, 64, v{V_RX[0]}
    v_bfe_u32 v21, {L}, 2, 2
    v_lshl_add_u32 v22, v23, 3, v21
    v_and_b32 v24, 3, {L}
    v_lshlrev_b32 v24, 3, v24
    v_lshl_add_u32 v{V_RKW}, v22, 5, v24
    s_lshl_b32 s83, s81, 11
    s_add_u32 s83, s83, {LDS_KW}
    v_add_u32 v{V_RKW}, s83, v{V_RKW}
    v_lshl_add_u32 v22, v22, 8, v24
    v_add_u32 v22, {LDS_W}, v22
    v_and_b32 v25, 1, v23
    v_lshl_or_b32 v1, v25, 2, v21
    s_lshl_b32 s82, s80, 2
    """)
    for j in range(4):
        pc(f"s_add_u32 s83, s82, {j}")
        pc(f"v_xor_b32 v{V_T}, s83, v1")
        pc(f"v_lshl_add_u32 v{V_RW+j}, v{V_T}, 5, v22")
    pc(f"""
    v_add_u32 v{V_R7}, 16384, v{V_R3}
    v_lshl_add_u32 v22, v23, 2, v21
    v_lshl_add_u32 v22, v22, 6, v24
    v_lshl_add_u32 v22, v25, 5, v22
    v_add_u32 v22, {LDS_QS}, v22
    v_xor_b32 v1, 32, v22
    s_cmp_eq_u32 s80, 1
    s_cselect_b64 vcc, -1, 0
    s_movk_i32 s{S_TOG}, 2048
    s_cselect_b32 s{S_TOG}, s{S_TOG}, 0x8000
    v_cndmask_b32 v{V_R3}, v{V_R3}, v22, vcc
    v_cndmask_b32 v{V_R7}, v{V_R7}, v1, vcc
    """)
    p = Asm()
    p(f"""
    v_lshrrev_b32 v1, 3, {L}
    v_lshlrev_b32 v1, 11, v1
    v_bfe_u32 v25, {L}, 1, 2
    v_xor_b32 v25, v25, v23
    v_lshl_add_u32 v1, v25, 5, v1
    v_and_b32 v25, 1, {L}
    v_lshl_add_u32 v{V_DT}, v25, 4, v1
    v_lshl_add_u32 v1, v23, 2, v21
    v_bfe_u32 v25, v1, 1, 2
    v_xor_b32 v25, s{S_W}, v25
    v_lshlrev_b32 v1, 7, v1
    v_lshl_add_u32 v1, v25, 5, v1
    v_add_u32 v1, v1, v24
    v_add_u32 v{V_RT}, {LDS_T}, v1
    s_lshr_b32 s82, s2, 4
    s_and_b32 s83, s2, 15
    s_mul_i32 s{S_TSRC}, s82, {224*2048}
    s_lshl_b32 s90, s83, 7
    s_add_u32 s{S_TSRC}, s{S_TSRC}, s90
    s_lshl_b32 s{S_TSRC2}, s82, 17
    s_add_u32 s{S_TSRC2}, s{S_TSRC2}, s90
    s_mul_i32 s90, s80, {112*2048}
    s_add_u32 s{S_TSRCS}, s{S_TSRC}, s90
    s_lshl_b32 s90, s81, 13
    s_add_u32 s{S_TSRCS}, s{S_TSRCS}, s90
    s_add_u32 s{S_TSRCS}, s{S_TSRCS}, {96*2048}
    s_lshl_b32 s90, s{S_W}, 14
    s_add_u32 s{S_TSRC}, s{S_TSRC}, s90
    s_lshl_b32 s90, s80, 15
    s_add_u32 s{S_TSRC2}, s{S_TSRC2}, s90
    s_lshl_b32 s90, s81, 14
    s_add_u32 s{S_TSRC2}, s{S_TSRC2}, s90
    s_lshr_b32 s90, s83, 1
    s_mul_i32 s90, s90, {144*8192}
    s_and_b32 s83, s83, 1
    s_lshl_b32 s83, s83, 12
    s_add_u32 s90, s90, s83
    s_lshl_b32 s83, s{S_W}, 10
    s_add_u32 s90, s90, s83
    s_add_u32 s90, s90, {WS_WT:#x}
    s_mul_i32 s{S_TDST}, s82, {7*8192}
    s_add_u32 s{S_TDST}, s{S_TDST}, s90
    s_lshl_b32 s{S_TDST2}, s82, 14
    s_add_u32 s{S_TDST2}, s{S_TDST2}, s90
    s_add_u32 s{S_TDST2}, s{S_TDST2}, {112*8192}
    s_lshl_b32 s82, s2, 3
    s_lshl_b32 s83, s{S_W}, 1
    s_add_u32 s82, s82, s83
    s_lshl_b32 s{S_GROW}, s82, 11
    v_lshrrev_b32 v1, 5, {L}
    v_add_u32 v{V_GROW}, s82, v1
    v_lshlrev_b32 v{V_GROW}, 3, v{V_GROW}
    v_add_u32 v{V_GROW}, {WS_G:#x}, v{V_GROW}
    s_lshl_b32 s82, s{S_MT}, 2
    s_add_u32 s82, s82, s{S_W}
    s_lshl_b32 s82, s82, 5
    s_add_u32 s82, s82, s{S_NT}
    s_lshl_b32 s82, s82, 7
    s_add_u32 s{S_FLG}, s82, {WS_FLAG:#x}
    """)
    ps = Asm() if tlb else p
    ps(f"""
    s_and_b32 s82, s{S_NT}, 2
    s_cmp_eq_u32 s82, 0
    s_cselect_b32 s{S_KV}, s60, {'s60' if gdma else 's62'}
    s_cselect_b32 s{S_KV+1}, s61, {'s61' if gdma else 's63'}
    s_and_b32 s{S_KV+1}, s{S_KV+1}, 0xffff
    s_mov_b32 s{S_KV+2}, 65536
    s_mov_b32 s{S_KV+3}, 0x00020000
    """)
    srd(ps, S_WS, 86, WS_SIZE)
    srd(ps, S_GW, 70, 2048)
    srd(ps, S_WD, 68, 3584*1024*2)
    srd(ps, S_WO, 74, 1024*1024*2)
    srd(ps, S_DBG, 98, 256)
    p(f"""
    v_lshrrev_b32 v21, 1, {L}
    v_lshlrev_b32 v21, 6, v21
    v_and_b32 v22, 1, {L}
    v_lshl_add_u32 v21, v22, 4, v21
    s_and_b32 s82, s{S_NT}, 1
    s_lshl_b32 s82, s82, 5
    s_lshl_b32 s83, s{S_W}, 11
    s_add_u32 s82, s82, s83
    v_add_u32 v{V_DK}, s82, v21
    s_lshl_b32 s82, s{S_MT}, 8
    s_lshr_b32 s83, s{S_NT}, 2
    s_lshl_b32 s83, s83, 5
    s_add_u32 s82, s82, s83
    s_lshl_b32 s83, s80, 4
    s_add_u32 s82, s82, s83
    s_lshl_b32 s82, s82, 11
    s_lshl_b32 s83, s81, 7
    s_add_u32 s82, s82, s83
    v_and_b32 v21, 15, {L}
    v_lshlrev_b32 v22, 11, v21
    v_lshl_add_u32 v22, v23, 4, v22
    v_add_u32 v{V_KX}, s82, v22
    """)
    pt = Asm()
    plain_addr = f"""s_lshl_b32 s82, s{S_MT}, 3
        v_bfe_u32 v24, {L}, 2, 3
        v_add_u32 v24, s82, v24
        v_lshlrev_b32 v21, 11, v24
        v_mul_lo_u32 v24, v24, s84
        v_and_b32 v1, 3, {L}
        v_lshlrev_b32 v1, 7, v1
        v_min_u32 v1, 220, v1
        v_add3_u32 v24, v24, v1, s85
        s_lshl_b32 s82, s{S_NT}, 6
        v_add_u32 v21, s82, v21"""
    lead_addr = f"""s_mov_b32 s{S_TSTEP}, {OOB:#x}
        s_and_b32 s82, s{S_NT}, 3
        s_lshl_b32 s82, s82, 4
        v_lshrrev_b32 v24, 3, {L}
        v_add_u32 v24, s82, v24
        v_mul_lo_u32 v24, v24, s84
        v_and_b32 v1, 7, {L}
        v_min_u32 v1, 6, v1
        v_lshl_add_u32 v24, v1, 7, v24
        s_lshr_b32 s83, s{S_NT}, 2
        s_mul_i32 s90, s83, 896
        v_add_u32 v24, s90, v24
        v_bfe_u32 v21, {L}, 1, 4
        v_add_u32 v21, s82, v21
        v_lshlrev_b32 v21, 11, v21
        v_and_b32 v1, 1, {L}
        v_lshl_add_u32 v21, v1, 7, v21
        s_lshl_b32 s83, s83, 8
        v_add_u32 v21, s83, v21
        s_lshl_b32 s{S_LMASK}, 0x10101, s{S_MT}
        s_cmp_eq_u32 s{S_W}, 0
        s_cselect_b32 s{S_LMASK}, {xmask:#x}, s{S_LMASK}
        s_add_u32 s82, s{S_W}, 1
        s_and_b32 s82, s82, 2
        s_cselect_b32 s{S_T2D}, {8*7168}, s{S_TSTEP}"""
    if touch:
        (pt if tpro else p)(f"""
        s_and_b32 s82, s{S_NT}, 3
        s_lshl_b32 s82, s82, 6
        s_lshl_b32 s83, s{S_MT}, 8
        s_add_u32 s82, s82, s83
        v_add_u32 v25, s82, {L}
        v_lshlrev_b32 v25, 11, v25
        {lead_addr if lead else plain_addr}
        s_mov_b32 s{S_TSTEP}, {64*7168}
        s_cmp_eq_u32 s{S_W}, 0
        s_cselect_b64 vcc, -1, 0
        s_cselect_b32 s{S_TSRD}, s{S_X}, s{S_G}
        s_cselect_b32 s{S_TSRD+1}, s{S_X+1}, s{S_G+1}
        s_cselect_b32 s{S_TSRD+2}, s{S_X+2}, s{S_G+2}
        s_cselect_b32 s{S_TSTEP}, 128, s{S_TSTEP}
        v_cndmask_b32 v{V_T}, v24, v25, vcc
        s_cmp_eq_u32 s{S_W}, 2
        s_cselect_b32 s{S_TSRD}, s{S_U}, s{S_TSRD}
        s_cselect_b32 s{S_TSRD+1}, s{S_U+1}, s{S_TSRD+1}
        s_cmp_eq_u32 s{S_W}, 3
        s_cselect_b64 vcc, -1, 0
        s_cselect_b32 s{S_TSRD}, s{S_WQ}, s{S_TSRD}
        s_cselect_b32 s{S_TSRD+1}, s{S_WQ+1}, s{S_TSRD+1}
        s_cselect_b32 s{S_TSRD+2}, s{S_WQ+2}, s{S_TSRD+2}
        s_cselect_b32 s{S_TSTEP}, 0x20000, s{S_TSTEP}
        v_cndmask_b32 v{V_T}, v{V_T}, v21, vcc
        s_mov_b32 s{S_TSRD+3}, 0x00020000
        s_mul_i32 s{S_TOFF}, s{S_TSTEP}, {3 if lead else 2 if tpro else (touch + 1 if touch >= 2 else touch + 2)}
        """)
    late = []
    for l in [l.strip() for l in p.lines]:
        if late and l.startswith(("s_cselect", "s_addc", "v_cndmask", "s_movk_i32 s50")): late[-1].append(l)
        else: late.append([l])
    late += [[f"v_and_b32 v1, 31, {L}"], ["v_lshlrev_b32 v1, 7, v1"], ["s_lshr_b32 s82, s2, 3"], ["s_and_b32 s82, s82, 15"], ["s_lshl_b32 s82, s82, 12"]]
    d0 = dma_items(0, 0, 17)
    for grp in d0[:tlbpos]: pro.items.extend(grp)
    if tlb:
        for l in ps.lines: pro.ins(l.strip())
        pro.raw(f"""
        s_mov_b32 s80, s96
        s_and_b32 s81, s97, 0xffff
        s_mov_b32 s82, {2048*1024*2:#x}
        s_mov_b32 s83, 0x00020000
        v_lshlrev_b32 v1, {tlb}, {L}
        v_min_u32 v1, 0x7f000000, v1
        """)
        for sr_ in (S_G, S_U, S_WS, S_WD, S_WO, S_KV, S_GW, S_DBG, 80, S_X):
            pro.ins(f"buffer_load_dword a{A_DUM}, v1, s[{sr_}:{sr_+3}], 0 offen")
        pro.raw(f"s_lshr_b32 s81, s{S_W}, 1\ns_and_b32 s80, s{S_W}, 1")
    for grp in d0[tlbpos:]: pro.items.extend(grp)
    for l in pt.lines: pro.ins(l.strip())
    tch = lambda: [I(f"buffer_load_dword a{A_DUM}, v{V_T}, s[{S_TSRD}:{S_TSRD+3}], s{S_TOFF} offen", vm=("touch", 0)), I(f"s_add_u32 s{S_TOFF}, s{S_TOFF}, s{S_TSTEP}")]
    if tpos == 0:
        for _ in range(tpro): pro.items.extend(tch())
    for l in pc.lines: pro.ins(l.strip().replace(f"v{V_T},", "v22x,").replace("v22x", "v19"))
    for grp in dma_items(1, 0, p1): pro.items.extend(grp)
    if tpos == 1:
        for _ in range(tpro): pro.items.extend(tch())
    one_time = [I(f"buffer_load_dword a{A_DUM}, v1, s[{S_KV}:{S_KV+3}], s82 offen"), I(f"buffer_load_dword a{A_DUM}, v1, s[{S_GW}:{S_GW+3}], 0 offen")]
    touch_ins = lambda: I(f"buffer_load_dword a{A_DUM}, v{V_T}, s[{S_TSRD}:{S_TSRD+3}], s{S_TOFF} offen", vm=("touch", 0))
    touch_adv = f"s_add_u32 s{S_TOFF}, s{S_TOFF}, s{S_TSTEP}"
    pro2 = Trace()
    pro2.wait(vm=[("st", 0)])
    pro2.ins("s_barrier")
    pro2.items.extend(reads(0, 0))

    gfast, gslow = _g_ops()
    gslow += ["v_max_f32 v25, 0x2b800000, v25", "v_rcp_f32 v23, v25", "v_mul_f32 v24, v24, v23"]
    GSPLIT = 70
    c_q = struct.unpack("<I", struct.pack("<f", math.log2(math.e) / math.sqrt(32.0)))[0]
    kvfin = [f"v_accvgpr_read_b32 v{21+r}, a{KVA+r}" for r in range(4)]
    for r in range(4): kvfin += [f"v_accvgpr_read_b32 v1, a{KVW+r}", f"v_add_f32 v{21+r}, v{21+r}, v1", f"v_mul_f32 v{21+r}, s84, v{21+r}"]
    kvfin += ["v_cvt_pk_bf16_f32 v22, v21, v22", "v_cvt_pk_bf16_f32 v23, v23, v24",
              f"v_and_b32 v1, 15, {L}", "v_lshlrev_b32 v1, 4, v1", f"v_bfe_u32 v21, {L}, 4, 1", "v_lshl_add_u32 v1, v21, 9, v1",
              f"v_lshrrev_b32 v21, 5, {L}", "v_lshl_add_u32 v1, v21, 3, v1",
              f"buffer_store_dwordx2 v[22:23], v1, s[{S_WS}:{S_WS+3}], s82 offen offset:2048 sc1",
              f"v_bfe_u32 v24, {L}, 3, 1", "v_lshlrev_b32 v24, 10, v24", f"v_bfe_u32 v21, {L}, 2, 1", "v_lshl_add_u32 v24, v21, 9, v24",
              f"v_lshrrev_b32 v21, 4, {L}", "v_lshl_add_u32 v24, v21, 6, v24", f"v_and_b32 v21, 3, {L}", "v_lshl_add_u32 v24, v21, 1, v24",
              f"buffer_store_short v22, v24, s[{S_WS}:{S_WS+3}], s83 offen sc1",
              f"buffer_store_short_d16_hi v22, v24, s[{S_WS}:{S_WS+3}], s83 offen offset:16 sc1",
              f"buffer_store_short v23, v24, s[{S_WS}:{S_WS+3}], s83 offen offset:32 sc1",
              f"buffer_store_short_d16_hi v23, v24, s[{S_WS}:{S_WS+3}], s83 offen offset:48 sc1"]
    kvsal = f"""s_lshl_b32 s82, s{S_MT}, 3
    s_lshr_b32 s83, s{S_NT}, 2
    s_add_u32 s82, s82, s83
    s_lshl_b32 s82, s82, 12
    s_add_u32 s82, s82, {WS_KV:#x}
    s_and_b32 s85, s{S_NT}, 1
    s_lshl_b32 s83, s85, 3
    s_add_u32 s83, s83, s82
    s_lshl_b32 s85, s85, 8
    s_add_u32 s82, s82, s85
    s_lshl_b32 s85, s{S_W}, 10
    s_add_u32 s82, s82, s85
    s_lshl_b32 s85, s{S_W}, 8
    s_add_u32 s83, s83, s85
    s_and_b32 s85, s{S_NT}, 2
    s_cmp_eq_u32 s85, 0
    s_cselect_b32 s84, {c_q:#x}, 1.0
    s_cselect_b32 s82, {OOB:#x}, s82
    s_cselect_b32 s83, s83, {OOB:#x}
    s_cmp_ge_u32 s{S_W}, 2
    s_cselect_b32 s82, {OOB:#x}, s82
    s_cselect_b32 s83, {OOB:#x}, s83""".split("\n")
    kvsal = [x.strip() for x in kvsal]
    kvsal = kvsal[:-7] + ["\n".join(kvsal[-7:-3]), "\n".join(kvsal[-3:])]
    segs = []
    grest = []
    def tstore(q):
        so = S_TDST if q < 7 else S_TDST2
        return [I(f"buffer_store_dwordx4 {ar(TREG[q] if tdefer else A_T,4)}, v{p2.V_L16 if tdefer else V_L16}, s[{S_WS}:{S_WS+3}], s{so} offen sc1", vm=("ts", q)), I(f"s_add_u32 s{so}, s{so}, 8192")]
    for s in range(NST - 1):
        tr = Trace()
        gaps = [[] for _ in range(66)]
        rl = reads(s, 1)
        u = s - KVD
        if 1 <= u <= 8:
            for e in range(2):
                for h in range(2):
                    rl.append(I(f"ds_read_b64_tr_b16 {ar(KVW+4*e+2*h,2)}, v{V_RKW} offset:{(s%2)*8192 + e*1024 + h*128}", lg=("kvf", s)))
        if u == 9:
            gaps[1].append(I(f"v_add_u32 v21, {LDS_KW + 8192*(s%2)}, v{V_L16}"))
            gaps[3].append(I(f"s_lshl_b32 s82, s{S_W}, 10")); gaps[5].append(I("v_add_u32 v22, s82, v21"))
            gaps[7].append(I("s_xor_b32 s82, s82, 2048")); gaps[9].append(I("v_add_u32 v21, s82, v21"))
            rl.append(I(f"ds_write_b128 v22, {ar(KVA,4)}", lg=("kvf", s)))
        for k, it in enumerate(rl): gaps[2*k].append(it)
        gaps[57].append(I(f"v_xor_b32 v{V_R3}, s{S_TOG}, v{V_R3}")); gaps[59].append(I(f"v_xor_b32 v{V_R7}, s{S_TOG}, v{V_R7}"))
        g, adv = dma_group(s + 1, ntw)
        lo = p1 if s == 0 else nhead
        G = 11 if u == 9 else 1
        for k in range(lo, len(g)):
            pre, it = g[k]
            if pre: gaps[G - 1].append(I(pre))
            gaps[G].append(it)
            for x in adv.get(k, []): gaps[G + 1].append(I(x))
            G += tsp0 if s else 4
        G = max(G - (tsp0 if s else 4) + 2, 3)
        if touch and (s >= 1 or tpro) and s + touch + 1 < NST and not (tpro and s + touch + 1 < 2 + tpro):
            if lead:
                for r_ in range(touch if s == 1 else 1):
                    gaps[G - 1].append(I(f"s_bitcmp1_b32 s{S_LMASK}, {s + r_ + lphase}\ns_cselect_b32 s60, s{S_TOFF}, {OOB:#x}"))
                    gaps[G].append(I(f"buffer_load_dword a{A_DUM}, v{V_T}, s[{S_TSRD}:{S_TSRD+3}], s60 offen"))
                    gaps[G + 1].append(I(f"s_add_u32 s60, s60, s{S_T2D}")); gaps[G + 1].append(I(touch_adv))
                    gaps[G + 2].append(I(f"buffer_load_dword a{A_DUM}, v{V_T}, s[{S_TSRD}:{S_TSRD+3}], s60 offen")); G += 4
            else:
              for _ in range(2 if (s == 1 and touch >= 2 and not tpro) else 1):
                gaps[G].append(touch_ins()); gaps[G + 1].append(I(touch_adv)); G += 2
        if tt0 and tt0 <= s < tt0 + 4:
            if s == tt0:
                pre_ = f"""v_lshrrev_b32 v21, 3, {L}
                v_min_u32 v21, 5, v21
                v_lshlrev_b32 v22, 16, v21
                v_cmp_lt_u32 vcc, 2, v21
                v_and_b32 v21, 7, {L}
                v_lshl_add_u32 v22, v21, 11, v22
                v_add_u32 v23, {16*2048}, v22
                v_cndmask_b32 v22, v22, v23, vcc
                v_bfe_u32 v23, {L}, 2, 1
                v_lshl_add_u32 v23, v23, 2, v21
                v_lshlrev_b32 v23, 11, v23
                v_and_b32 v24, 0x1ffff, v22
                s_lshr_b32 s61, s{S_MT}, 1""".split("\n")
                for k_, x in enumerate(pre_): gaps[2*k_ + 1].append(I(x.strip()))
                G = max(G, 28)
            gaps[G - 1].append(I(f"s_cmp_eq_u32 s61, {s - tt0}\ns_cselect_b32 s62, s{S_TSRC}, {OOB:#x}\ns_cselect_b32 s63, s{S_TSRCS}, {OOB:#x}\ns_cselect_b32 s60, s{S_TSRC2}, {OOB:#x}"))
            gaps[G].append(I(f"buffer_load_dword a{A_DUM}, v22, s[{S_WD}:{S_WD+3}], s62 offen")); G += 2
            gaps[G].append(I(f"buffer_load_dword a{A_DUM}, v23, s[{S_WD}:{S_WD+3}], s63 offen")); G += 2
            gaps[G].append(I(f"buffer_load_dword a{A_DUM}, v24, s[{S_WO}:{S_WO+3}], s60 offen")); G += 2
        if 0 <= u <= 7:
            for e in range(2):
                gaps[G].append(I(f"buffer_load_dwordx4 {ar(A_KX + 8*(u%2) + 4*e,4)}, v{V_KX}, s[{S_X}:{S_X+3}], 0 offen offset:{u*256 + e*64}", vm=("kx", u))); G += 2
        q = s - tq0
        if 0 <= q < 9:
            fl = " nt" if ntt else ""
            gaps[G - 1].append(I(f"s_add_u32 m0, s{S_M0T}, {(q%3)*4096}"))
            if q == 6:
                gaps[G - 2].append(I(f"v_lshrrev_b32 v{V_KX}, 5, {L}")); gaps[G - 1].append(I(f"v_lshl_add_u32 v{V_KX}, v{V_KX}, 13, v{V_DT}"))
                gaps[G].append(I(f"buffer_load_dwordx4 v{V_KX}, s[{S_WD}:{S_WD+3}], s{S_TSRCS} offen{fl} lds", vm=("t", q)))
            else:
                srdn, so = (S_WD, S_TSRC) if q < 7 else (S_WO, S_TSRC2)
                gaps[G].append(I(f"buffer_load_dwordx4 v{V_DT}, s[{srdn}:{srdn+3}], s{so} offen{fl} lds", vm=("t", q)))
                gaps[G + 1].append(I(f"s_add_u32 s{so}, s{so}, {48*2048 if q == 2 else 0x10000}"))
            G += 2
        q = s - tq0 - 2
        if 0 <= q < 9 and not tdefer:
            x, y = tstore(q); gaps[G].append(x); gaps[G + 1].append(y); G += 2
        if s == ot:
            for x in one_time: gaps[G].append(x); G += 2
        if s == 2:
            gaps[G - 1].append(I(f"v_mov_b32 v21, s{S_TAG}"))
            gaps[G].append(I(f"s_or_b32 s83, s2, s{S_W}\ns_cselect_b32 s83, {OOB:#x}, 0")); G += 2
            gaps[G].extend([I("s_mov_b64 exec, 1"), I(f"buffer_store_dword v21, off, s[{S_DBG}:{S_DBG+3}], s83 sc1"), I("s_mov_b64 exec, -1")]); G += 2
        if s == (11 if gsm else 6):
            gaps[G].append(I(f"buffer_load_dword a{A_TAG}, off, s[{S_DBG}:{S_DBG+3}], 0 sc1", vm=("zp", 0))); G += 2
        if s == esig + 1:
            gaps[G - 2].append(I(f"s_lshl_b32 s82, s{S_MT}, 5")); gaps[G - 1].append(I(f"s_add_u32 s82, s82, s{S_NT}\ns_lshl_b32 s82, s82, 7")); gaps[G].append(I(f"s_add_u32 s82, s82, {WS_FLAG + 0x28000:#x}"))
            gaps[G + 1].append(I(f"s_cmp_eq_u32 s{S_W}, 0\ns_cselect_b32 s82, s82, {OOB:#x}")); G += 2
            gaps[G].extend([I("s_mov_b64 exec, 1"), I(f"buffer_store_dword a{A_TAG}, off, s[{S_WS}:{S_WS+3}], s82 sc1"), I("s_mov_b64 exec, -1")]); G += 2
        if gsm and s == 10:
            gaps[G].extend([I("s_mov_b32 exec_lo, 1\ns_mov_b32 exec_hi, 1"), I(f"buffer_store_dwordx2 v[24:25], v{V_GROW}, s[{S_WS}:{S_WS+3}], 0 offen sc1"), I("s_mov_b64 exec, -1")]); G += 2
        kvstart = G
        if s == gl:
            for q_ in range(4):
                gaps[G].append(I(f"buffer_load_dwordx4 {ar(A_GX+4*q_,4)}, v{V_L16}, s[{S_X}:{S_X+3}], s{S_GROW} offen offset:{1024*q_}", vm=("g", 0))); G += 2
            for q_ in range(2):
                gaps[G].append(I(f"buffer_load_dwordx4 {ar(A_GW+4*q_,4)}, v{V_L16}, s[{S_GW}:{S_GW+3}], 0 offen offset:{1024*q_}", vm=("g", 0))); G += 2
        assert G < 64, (s, G)
        tr.wait(lg=[("fr", s, 0)] + ([("tf", q)] if 0 <= q < 9 else []) + ([("kvp", 0)] if u == 10 else []))
        vq = []
        if (gl + 2 <= s <= 9) if gsm else s in (gs + 2, gs + 3): vq = gfast
        if u == 10: vq = list(kvfin)
        k = 0
        for j in range(8):
            for i in range(8):
                tr.ins(mfma(0, j, i, first=(s == 0)))
                tr.items.extend(gaps[k])
                cap = vcap(gaps[k])
                if gsm and vq is gfast: cap = 0 if gaps[k] else 1
                if s == 0:
                    for _ in range(2):
                        if late and cap > 0:
                            for l in late.pop(0): tr.ins(l)
                            cap -= 1
                while vq and cap > 0 and not (u == 10 and k < kvstart - 8):
                    if vq[0].startswith("buffer_"):
                        if cap < 2: break
                        tr.ins(vq.pop(0), vm=("kvst", 0)); cap -= 2
                    else:
                        tr.ins(vq.pop(0)); cap -= 1
                k += 1
        if (s >= 9) if gsm else s != gs + 2: assert not vq
        need = [("st", s + 1)]
        if 0 <= s - tq0 - 1 < 9: need.append(("t", s - tq0 - 1))
        if s == (gl + 1 if gsm else gs + 1): need.append(("g", 0))
        if 1 <= u <= 8: need.append(("kx", u - 1))
        if s == (12 if gsm else 7): need.append(("zp", 0))
        if s == esig: need.append(("kvst", 0))
        if fflag and s == 14: need.append(("ts", 8))
        if pads and s == chain_at: tr.ins("@CHAIN1")
        tr.wait(vm=need, lg=[("fr", s, 1)] + ([("kvf", s)] if 1 <= u <= 9 else []))
        tr.ins("s_barrier")
        segs.append(tr)
        tr = Trace()
        gaps = [[] for _ in range(68)]
        for k, it in enumerate(reads(s + 1, 0)): gaps[2*k + 1].append(it)
        q = s - tq0 - 1
        if 0 <= q < 9:
            for h in range(2):
                gaps[49 + 2*h].append(I(f"ds_read_b64_tr_b16 {ar((TREG[q] if tdefer else A_T)+2*h,2)}, v{V_RT} offset:{(q%3)*4096 + h*2048}", lg=("tf", q)))
        if u == 9:
            gaps[53].append(I(f"ds_read_b128 {ar(KVW,4)}, v21", lg=("kvp", 0)))
            for k, x in enumerate(kvsal): gaps[2*k + 3 if 2*k + 3 < 48 else 55].append(I(x.strip()))
        if s + 2 < NST:
            g, adv = dma_group(s + 2, ntw)
            hg = [hstart + 2*round(k*(62 - hstart)/(2*nhead)) for k in range(nhead)]
            for k in range(nhead):
                pre, it = g[k]
                if pre:
                    if hg[k]: gaps[hg[k] - 1].insert(0, I(pre))
                    else: tr.ins(pre)
                gaps[hg[k]].append(it)
                for x in adv.get(k, []): gaps[hg[k] + 2].append(I(x))
        if s == (12 if gsm else 7):
            gaps[54].append(I(f"v_accvgpr_read_b32 v1, a{A_TAG}"))
            gaps[56].append(I(f"v_cmp_eq_u32 vcc, 0, v1")); gaps[58].append(I("s_cbranch_vccnz KM_ZSPIN\nKM_ZBACK:"))
            gaps[60].append(I(f"v_accvgpr_write_b32 a{A_TAG}, v1")); gaps[62].append(I(f"v_readfirstlane_b32 s{S_TAG}, v1"))
        if s == 14:
            gaps[0].append(I(f"v_lshlrev_b32 v{V_T}, 7, {L}"))
            gaps[2].append(I(f"s_mov_b32 s{S_EF}, {WS_FLAG + 0x28000:#x}"))
            gaps[epos].append(I(f"buffer_load_dword v{V_KX}, v{V_T}, s[{S_WS}:{S_WS+3}], s{S_EF} offen sc1", vm=("ep", 0)))
            if pads:
                gaps[50].append(I("s_getpc_b64 s[32:33]\nKM_PC2:\ns_add_u32 s32, s32, KM_NORM-0x4000-KM_PC2\ns_addc_u32 s33, s33, 0"))
                gaps[52].append(I("s_and_b32 s33, s33, 0xffff")); gaps[53].append(I("s_mov_b32 s34, KM_END-KM_NORM+0x4000"))
                gaps[54].append(I("s_mov_b32 s35, 0x00020000")); gaps[55].append(I(f"s_lshl_b32 s82, s{S_W}, 13"))
                gaps[56].append(I(f"buffer_load_dword a{A_DUM}, v{V_T}, s[32:35], s82 offen"))
        vq = []; slow = []; slow_from = None
        if (gl + 1 <= s <= 8) if gsm else s in (gs + 1, gs + 2): vq = gfast
        if s == (9 if gsm else gs + 3): slow = list(gslow)
        ml = [mfma(1, j, i) for j in range(8) for i in range(8)]
        if 1 <= u <= 8:
            for e in range(2):
                ml.insert(30 + 20*e, f"v_mfma_f32_16x16x32_bf16 {ar(KVA,4)}, {ar(A_KX + 8*((u-1)%2) + 4*e,4)}, {ar(KVW+4*e,4)}, {'0' if (u == 1 and e == 0) else ar(KVA,4)}")
        for k, m in enumerate(ml):
            tr.ins(m)
            tr.items.extend(gaps[k])
            for _ in range((0 if gaps[k] else 1) if (gsm and vq) else vcap(gaps[k])):
                if vq: tr.ins(vq.pop(0))
                elif s == 0 and late:
                    for l in late.pop(0): tr.ins(l)
            if slow and not vq:
                if slow_from is None: slow_from = k + 2
                if k >= slow_from and (k - slow_from) % 2 == 0: tr.ins(slow.pop(0))
        for k in range(len(ml), 68): assert not gaps[k], (s, k)
        assert not slow and not late
        segs.append(tr)

    P = p2
    ec = Trace()
    ec.wait(vm=[("ep", 0)])
    ec.raw(f"""
    v_cmp_ne_u32 vcc, s{S_TAG}, v{V_KX}
    s_and_b32 s80, s2, 7
    s_lshr_b32 s81, s80, 1
    s_lshl_b32 s{P.S_MT}, s{S_MT}, 2
    s_cbranch_vccnz KM_ESPIN
    KM_EBACK:
    s_add_u32 s{P.S_MT}, s{P.S_MT}, s81
    s_lshl_b32 s{P.S_M0KV}, s{S_W}, 13
    s_add_u32 s82, s{P.S_M0KV}, {WS_KV:#x}
    s_add_u32 s{P.S_KVB}, s86, s82
    s_addc_u32 s{P.S_KVB+1}, s87, 0
    v_add_u32 v{V_DK}, 4096, v{V_L16}
    """)
    su2 = f"""
    s_and_b32 s80, s80, 1
    s_lshl_b32 s80, s80, 2
    s_and_b32 s90, s{S_NT}, 3
    s_add_u32 s{P.S_NT}, s80, s90
    s_lshr_b32 s90, s{P.S_MT}, 1
    s_mul_i32 s90, s90, 112
    s_mul_i32 s91, s{S_W}, 28
    s_add_u32 s90, s90, s91
    s_lshl_b32 s90, s90, 13
    s_and_b32 s42, s{P.S_MT}, 1
    s_lshl_b32 s42, s42, 12
    s_add_u32 s90, s90, s42
    s_add_u32 s58, s86, s90\ns_addc_u32 s59, s87, 0
    s_add_u32 s60, s58, 0x2000\ns_addc_u32 s61, s59, 0
    s_add_u32 s62, s58, 0x4000\ns_addc_u32 s63, s59, 0
    s_add_u32 s70, s58, 0x6000\ns_addc_u32 s71, s59, 0
    s_mov_b64 s[{P.S_HB}:{P.S_HB+1}], {'s[70:71]' if nhd else 's[62:63]'}
    s_mul_i32 s90, s{P.S_NT}, 144
    s_add_u32 s91, s91, s90
    s_lshl_b32 s91, s91, 13
    s_add_u32 s91, s91, {WS_WT:#x}
    s_add_u32 s64, s86, s91\ns_addc_u32 s65, s87, 0
    s_add_u32 s68, s64, 0x2000\ns_addc_u32 s69, s65, 0
    s_mov_b64 s[{P.S_WB}:{P.S_WB+1}], s[68:69]
    s_add_u32 s{P.S_XB}, s64, {P.SF0*8192}\ns_addc_u32 s{P.S_XB+1}, s65, 0
    s_lshl_b32 s91, s{S_W}, 3
    s_add_u32 s90, s90, s91
    s_lshl_b32 s90, s90, 13
    s_add_u32 s90, s90, {WS_WT + 112*8192:#x}
    s_add_u32 s{P.S_WOB}, s86, s90\ns_addc_u32 s{P.S_WOB+1}, s87, 0
    s_mul_i32 s{P.S_M0SP}, s{S_W}, 24576
    s_add_u32 s{P.S_M0SP}, s{P.S_M0SP}, {P.LDS_SP}
    s_mov_b32 s{P.S_SPM}, s{P.S_M0SP}
    s_add_u32 s{P.S_M0C}, s{P.S_M0KV}, 0x8000
    s_mov_b32 s{P.S_CNT}, 6
    s_add_u32 s66, s{P.S_WOB}, {(P.SF0 + 3 - P.NDOWN)*8192}\ns_addc_u32 s67, s{P.S_WOB+1}, 0
    s_mov_b32 s{P.S_OUT}, s96
    s_and_b32 s{P.S_OUT+1}, s97, 0xffff
    s_mov_b32 s{P.S_OUT+2}, {2048*1024*2:#x}
    s_mov_b32 s{P.S_OUT+3}, 0x00020000
    s_mov_b32 s{P.S_OF}, s{S_FLG}
    s_lshl_b32 s90, s{P.S_MT}, 12
    s_add_u32 s{P.S_OP}, s90, {WS_FLAG:#x}
    s_lshl_b32 s90, s{S_W}, 13
    s_add_u32 s{P.S_HP}, s90, {WS_FLAG + 0x20000:#x}
    s_lshl_b32 s90, s2, 7
    s_add_u32 s90, s90, {WS_FLAG + 0x20000:#x}
    s_cmp_eq_u32 s{S_W}, 0\ns_cselect_b32 s{P.S_HF}, s90, {OOB:#x}
    """
    su2 = [x.strip() for x in su2.strip().split("\n    ")]

    def last_stage(wn):
        tr = Trace()
        s = NST - 1
        su = f"""
        s_lshr_b32 s81, s{S_W}, 1
        s_lshl_b32 s82, s{S_MT}, 1
        s_add_u32 s82, s82, s81
        s_mul_i32 s82, s82, 112
        s_lshr_b32 s83, s{S_NT}, 1
        s_mul_i32 s83, s83, 7
        s_add_u32 s82, s82, s83
        s_and_b32 s84, s{S_NT}, 1
        s_add_u32 s85, s82, 6
        s_lshl_b32 s85, s85, 13
        s_mul_i32 s83, s84, 3
        s_add_u32 s82, s82, s83
        s_add_u32 s82, s82, {2*wn}
        s_lshl_b32 s82, s82, 13
        s_add_u32 s83, s82, 8192
        """
        if wn:
            su += f"""
            s_lshl_b32 s84, s84, 9
            s_add_u32 s85, s85, s84
            v_and_b32 v21, 15, {L}
            v_lshlrev_b32 v21, 4, v21
            v_bfe_u32 v24, {L}, 4, 1
            v_lshl_add_u32 v22, v24, 9, v21
            v_lshl_add_u32 v21, v24, 10, v21
            v_lshrrev_b32 v24, 5, {L}
            v_lshl_add_u32 v22, v24, 10, v22
            v_lshl_add_u32 v21, v24, 8, v21
            s_lshl_b32 s81, s81, 13
            s_add_u32 s81, s81, {P.LDS_Q}
            v_add_u32 v22, s81, v22
            v_add_u32 v23, 4096, v21
            """
        setup = [l.strip() for l in su.strip().split("\n") if l.strip()] + su2
        ffn = lambda t, i: dict(kind="f", t=t, i=i, mf=[(2*t, i), (4 + 2*t, i), (2*t + 1, i), (5 + 2*t, i)])
        if wn == 0:
            halves = [[ffn(0, i) for i in range(8)], [ffn(1, i) for i in range(8)]]
        else:
            halves = [[dict(kind="q", i=i, mf=[(3, i), (7, i)]) for i in range(8)] +
                      [dict(kind="s", i=i, mf=[(2, i), (6, i), (2, i + 1), (6, i + 1)]) for i in range(0, 8, 2)],
                      [ffn(0, i) for i in range(8)]]
        for pc in halves[1][8 - ndef:]: pc["defer"] = True
        setup.append(f"s_mov_b32 s3, {'s82' if wn else 's83'}")
        pieces = halves[0] + halves[1]
        half = len(halves[0])
        jsets = [sorted(set(j for pc in hv for j, _ in pc["mf"])) for hv in halves]
        def piece_ops(pc, pk):
            o = []
            i = pc["i"]
            tmp = 12 + 4*(i % 2)
            def reg(j, i):
                p_, b = accn(j, i)
                if p_ == "v": return b
                for r in range(4): o.append(f"v_accvgpr_read_b32 v{tmp+r}, a{b+r}")
                return tmp
            r_ = [reg(j, i_) for j, i_ in pc["mf"]]
            if pc["kind"] == "q":
                g0_, g1_ = r_
            else:
                g0_, u0, g1_, u1 = r_
                for g_, u_ in ((g0_, u0), (g1_, u1)):
                    for r in range(4): o.append(f"v_max_f32 v{g_+r}, 0, v{g_+r}")
                    if pk:
                        o.append(f"v_pk_mul_f32 {vr(g_,2)}, {vr(g_,2)}, {vr(u_,2)}")
                        o.append(f"v_pk_mul_f32 {vr(g_+2,2)}, {vr(g_+2,2)}, {vr(u_+2,2)}")
                    else:
                        for r in range(4): o.append(f"v_mul_f32 v{g_+r}, v{g_+r}, v{u_+r}")
            dfr = pc.get("defer")
            d_ = 160 + 4*i if dfr else g0_
            o += [f"v_cvt_pk_bf16_f32 v{d_}, v{g0_}, v{g0_+1}", f"v_cvt_pk_bf16_f32 v{d_+1}, v{g0_+2}, v{g0_+3}",
                  f"v_cvt_pk_bf16_f32 v{d_+2}, v{g1_}, v{g1_+1}", f"v_cvt_pk_bf16_f32 v{d_+3}, v{g1_+2}, v{g1_+3}"]
            if dfr: return o
            if pc["kind"] == "q":
                o.append(f"ds_write_b128 v22, {vr(g0_,4)} offset:{(i//2)*2048 + (i%2)*256}")
            elif pc["kind"] == "s":
                o += ["s_nop 1", f"v_permlane16_swap_b32 v{g0_}, v{g0_+2}", f"v_permlane16_swap_b32 v{g0_+1}, v{g0_+3}",
                      f"buffer_store_dwordx4 {vr(g0_,4)}, {'v21' if i < 4 else 'v23'}, s[{S_WS}:{S_WS+3}], s85 offen offset:{(i%4)*1024} sc1"]
            else:
                o.append(f"buffer_store_dwordx4 {vr(g0_,4)}, {'v%d' % (V_L16 if i < 4 else V_DK)}, s[{S_WS}:{S_WS+3}], {'s82' if pc['t'] == 0 else 's83'} offen offset:{(i%4)*1024} sc1")
            return o
        rl = [xread(s, 1, i) for i in range(8)]
        for j in jsets[0]: rl += [wread(s, 1, j, 0), wread(s, 1, j, 1)]
        for x in rl: x["lg"] = ("frA", 0)
        for j in jsets[1]: rl += [wread(s, 1, j, 0), wread(s, 1, j, 1)]
        kv0 = []
        for part in range(2):
            cl = [P.kv_dma(0, part, j) for j in range(4)]
            for x in cl: x["text"] = x["text"].replace(f"v{P.V_L16},", f"v{V_L16},").replace(f"v{P.V_L16B},", f"v{V_DK},")
            kv0.append(cl)
        q = s - tq0 - 2
        tr.wait(lg=[("fr", s, 0)] + ([("tf", q)] if 0 <= q < 9 else []))
        first = []
        if fflag:
            first.append([I(f"s_lshl_b32 s82, s2, 7\ns_add_u32 s82, s82, {WS_FLAG + 0x30000:#x}\ns_cmp_eq_u32 s{S_W}, 0\ns_cselect_b32 s82, s82, {OOB:#x}")])
            first.append([I("s_mov_b64 exec, 1"), I(f"buffer_store_dword a{A_TAG}, off, s[{S_WS}:{S_WS+3}], s82 sc1"), I("s_mov_b64 exec, -1")])
        if gs + 4 == s and not gsm:
            first.append([I("s_mov_b32 exec_lo, 1\ns_mov_b32 exec_hi, 1"), I(f"buffer_store_dwordx2 v[24:25], v{V_GROW}, s[{S_WS}:{S_WS+3}], 0 offen sc1", vm=("hst", 0)), I("s_mov_b64 exec, -1")])
        if 0 <= q < 9 and not tdefer: first.append([tstore(q)[0]])
        for k, (j, i) in enumerate([(j, i) for j in jsets[0] for i in range(8)]):
            tr.ins(mfma(0, j, i))
            if first:
                tr.items.extend(first.pop(0)); continue
            if k in (26, 29): tr.ins(f"s_add_u32 m0, s{P.S_M0KV}, {4096 if k == 29 else 0}")
            elif k in (27, 30): tr.items.extend(kv0.pop(0))
            elif rl: tr.items.append(rl.pop(0))
            for _ in range(2):
                if setup: tr.ins(setup.pop(0))
        assert not rl
        tr.items.extend(adv64(P.S_KVB, 32768))
        for x in setup: tr.ins(x)
        tr.wait(lg=[("frA", 0)])
        ml = []
        for pi, pc in enumerate(pieces):
            if pi == half:
                ml.append((W(lg=[("fr", s, 1)]), None))
                ml += [(mfma(0, j, i), None) for j in jsets[1] for i in range(8)]
            for j, i in pc["mf"]: ml.append((mfma(1, j, i), pi))
        done_at = {}; cnt = 0; vq = []; nextp = 0
        def put(x):
            tr.ins(x, vm=("hst", 0) if x.startswith("buffer_") else None, lg=("qw", 0) if x.startswith("ds_") else None)
        for k, (m, pi) in enumerate(ml):
            if isinstance(m, dict):
                tr.items.append(m); continue
            tr.ins(m); cnt += 1
            if pi is not None and (k + 1 == len(ml) or ml[k + 1][1] != pi): done_at[pi] = cnt
            budget = 2
            while budget > 0:
                if not vq and nextp in done_at and cnt - done_at[nextp] >= 9:
                    vq = piece_ops(pieces[nextp], False); nextp += 1
                if not vq: break
                c_ = 2 if vq[0].startswith(("buffer_", "ds_")) else 1
                if c_ > budget: break
                put(vq.pop(0)); cnt += 1; budget -= c_
        for x in vq: put(x); cnt += 1
        while nextp < len(pieces):
            if cnt - done_at[nextp] < 9: tr.ins("s_nop 7"); cnt += 8
            for x in piece_ops(pieces[nextp], True): put(x); cnt += 1
            nextp += 1
        return tr
    l0, l1 = last_stage(0), last_stage(1)

    L2 = f"v{P.V_LANE}"
    h2 = Trace()
    h2.raw(f"""
    v_mov_b32 {L2}, {L}
    v_mov_b32 v{P.V_L16}, v{V_L16}
    v_mov_b32 v{P.V_L16B}, v{V_DK}
    v_mov_b32 v{P.V_KVR}, v{V_L16}
    s_lshl_b32 s80, s{S_W}, 12
    s_add_u32 s80, s80, {P.LDS_Q}
    v_add_u32 v24, s80, v{V_L16}
    """)
    h2.wait(vm=[("kv", 0)])
    h2.raw("s_waitcnt lgkmcnt(0)\ns_barrier")
    for q in range(4): h2.ins(f"ds_read_b128 {ar(P.A_Q + 4*q,4)}, v24 offset:{q*1024}", lg=("q", 0))
    for half in range(2): h2.items.append(P.k_read(0, half))
    for half in range(2): h2.items.append(P.v_read(0, half))
    for pp in range(4):
        h2.raw(f"""
        s_add_u32 s80, s{S_W}, {pp}
        s_and_b32 s80, s80, 3
        s_lshl_b32 s80, s80, 11
        v_add_u32 v{P.V_W+pp}, s80, v{P.V_L16}
        """)
    h2.wait(lg=[("k", 0)])
    h2.ins(P.qk(0, 0)); h2.ins(P.qk(0, 1))
    for q in range(4):
        h2.ins(f"v_add_u32 v{P.V_SP+q}, s{P.S_M0SP}, v{P.V_W+q}")
        h2.ins(f"v_add_u32 v{P.V_KP+q}, s{P.S_M0KV}, v{P.V_W+q}")
    h2.raw(f"""
    v_bfe_u32 v26, {L2}, 4, 1
    v_bfe_u32 v27, {L2}, 2, 1
    v_cmp_eq_u32 vcc, v26, v27
    v_mov_b32 v26, 0x3f803f80
    s_lshl_b32 s40, s{P.S_MT}, 9
    s_add_u32 s40, s40, {WS_G:#x}
    v_cndmask_b32 v26, 0, v26, vcc
    """)
    for r in range(4): h2.ins(f"v_accvgpr_write_b32 a{P.A_SEL+r}, v26")
    h2.raw(f"""
    s_lshl_b32 s41, s{S_MT}, 11
    s_lshl_b32 s80, s{S_W}, 9
    s_add_u32 s41, s41, s80
    s_add_u32 s41, s41, {WS_G:#x}
    v_and_b32 v26, 31, {L2}
    v_lshlrev_b32 v26, 3, v26
    v_and_b32 v27, 15, {L2}
    v_lshlrev_b32 v27, 3, v27
    v_lshlrev_b32 v25, 7, {L2}
    v_mov_b32 v24, s{S_TAG}
    """)
    if ptc:
        h2.raw(f"""
        s_sub_u32 s80, s64, s86
        s_lshl_b32 s81, s{S_MT}, 10
        s_add_u32 s80, s80, s81
        s_sub_u32 s81, s58, s86
        s_and_b32 s82, s{S_NT}, 3
        s_lshl_b32 s82, s82, 10
        s_add_u32 s81, s81, s82
        s_add_u32 s81, s81, 8192
        v_and_b32 v29, 7, {L2}
        v_lshlrev_b32 v29, 7, v29
        v_add_u32 v30, s81, v29
        v_add_u32 v29, s80, v29
        v_and_b32 v{P.V_TCH}, 8, {L2}
        v_cmp_eq_u32 vcc, 0, v{P.V_TCH}
        s_mov_b32 s{P.S_TCO}, 0
        s_nop 0
        v_cndmask_b32 v{P.V_TCH}, v30, v29, vcc
        """)
    def rebase(x, frm, to):
        x["text"] = x["text"].replace(f"s[{frm}:{frm+1}]", f"s[{to}:{to+1}]"); return x
    wl = lambda sg, J0, b: [rebase(P.w_load(sg, J), P.S_WB, b) for J in range(J0, J0 + 4)]
    hl = lambda sg, b: [rebase(P.h_load(sg, i), P.S_HB, b) for i in range(4)]
    early = []
    timed = [(1 + q // 3, tstore(q)) for q in range(9)] if tdefer else []
    if tp2:
        LT2 = 81920
        h2.raw(f"""
        v_lshrrev_b32 v17, 5, {L2}
        v_lshl_add_u32 v17, v17, 13, v{V_DT}
        v_add_u32 v{V_RT}, {LT2 - LDS_T}, v{V_RT}
        s_add_u32 s{S_M0T}, s{S_M0T}, {LT2 - LDS_T}
        """)
        fl = " nt" if ntt else ""
        for q in range(9):
            it_ = [I(f"s_add_u32 m0, s{S_M0T}, {q*4096}"), I("s_nop 0")]
            if q == 6: it_.append(I(f"buffer_load_dwordx4 v17, s[{S_WD}:{S_WD+3}], s{S_TSRCS} offen{fl} lds", vm=("t", q)))
            else:
                srdn, so = (S_WD, S_TSRC) if q < 7 else (S_WO, S_TSRC2)
                it_ += [I(f"buffer_load_dwordx4 v{V_DT}, s[{srdn}:{srdn+3}], s{so} offen{fl} lds", vm=("t", q)), I(f"s_add_u32 s{so}, s{so}, {48*2048 if q == 2 else 0x10000}")]
            timed.append((1 + q // 3, it_))
        timed.append((tb, [W(vm=[("t", 8)]), I("s_barrier")]))
        for q in range(9):
            timed.append((tb + q // 3, [I(f"ds_read_b64_tr_b16 {ar(P.A_WR + 4*q + 2*h,2)}, v{V_RT} offset:{q*4096 + h*2048}", lg=("tf", q)) for h in range(2)]))
        for q in range(9):
            so = S_TDST if q < 7 else S_TDST2
            timed.append((tb + 3 + q // 3, [W(lg=[("tf", q)]), I(f"buffer_store_dwordx4 {ar(P.A_WR + 4*q,4)}, v{P.V_L16}, s[{S_WS}:{S_WS+3}], s{so} offen sc1", vm=("ts", q)), I(f"s_add_u32 s{so}, s{so}, 8192")]))
    timed += [(dsl + k // 2, [I(f"buffer_store_dwordx4 {vr(160 + 4*i,4)}, v{P.V_L16 if i < 4 else P.V_L16B}, s[{S_WS}:{S_WS+3}], s3 offen offset:{(i%4)*1024} sc1", vm=("hst", 0))]) for k, i in enumerate(range(8 - ndef, 8))]
    timed += [(hsig, [W(vm=[("hst", 0), ("ts", 8)]), I("s_barrier"), I("s_mov_b64 exec, 1"), I(f"buffer_store_dword v24, off, s[{S_WS}:{S_WS+3}], s{P.S_HF} sc1"), I("s_mov_b64 exec, -1")]),
             (hpoll, [I(f"buffer_load_dword v28, v25, s[{S_WS}:{S_WS+3}], s{P.S_HP} offen sc1", vm=("hp", 0))]),
             (hpoll + 2, [W(vm=[("hp", 0)]), I(f"v_cmp_ne_u32 vcc, s{S_TAG}, v28"), I("s_nop 0"), I("s_cbranch_vccnz KM_HSPIN"), I("KM_HBACK:"), I("s_barrier")] + sum([[P.tch_ins(), I(f"s_add_u32 s{P.S_TCO}, s{P.S_TCO}, 8192")] for _ in range(ptc)], []) + hl(0, 58)),
             ]
    gl_ = [[I(f"buffer_load_dword v{P.V_G+hh}, v26, s[{S_WS}:{S_WS+3}], s41 offen offset:{hh*256} sc1", vm=("g2", 0)) for hh in range(2)],
           [I(f"buffer_load_dword v{P.V_OMG+i}, v27, s[{S_WS}:{S_WS+3}], s40 offen offset:{4 + i*128} sc1", vm=("g2", 0)) for i in range(4)]]
    if fflag:
        hs, hp, hc = timed
        hs[1][0]["needvm"].append(("fp", 0))
        hs = (hs[0], [hs[1][0], I(f"v_cmp_ne_u32 vcc, s{S_TAG}, v28"), I("s_nop 0"), I("s_cbranch_vccnz KM_FSPIN"), I("KM_FBACK:")] + hs[1][1:])
        fp = (fpoll, [I(f"s_add_u32 s43, s{P.S_HP}, 0x10000"), I(f"buffer_load_dword v28, v25, s[{S_WS}:{S_WS+3}], s43 offen sc1", vm=("fp", 0))])
        pre_d = [wl(0, 0, 64), wl(0, 4, 64), wl(1, 0, 68), wl(1, 4, 68), gl_[0], gl_[1]]
        post_d = [(hpoll + 3, hl(1, 60)), (hpoll + 4, hl(2, 62)), (hpoll + 5, hl(3, 70))]
    elif nhd:
        timed += [(hpoll + 2, wl(0, 0, 64)), (hpoll + 3, wl(0, 4, 64)), (hpoll + 4, wl(1, 0, 68)), (hpoll + 5, wl(1, 4, 68)),
                  (hpoll + 6, hl(1, 60)), (hpoll + 7, hl(2, 62)), (hpoll + 8, hl(3, 70)), (hpoll + 12, gl_[0]), (hpoll + 13, gl_[1])]
    else:
        sl_ = lambda k: min(hpoll + 2 + (k*psp) // 2, 30)
        timed += [(sl_(k + 1), x) for k, x in enumerate([wl(0, 0, 64), wl(0, 4, 64), hl(1, 60), wl(1, 0, 68), wl(1, 4, 68), hl(2, 62), gl_[0], gl_[1]])]
        zl = [I(f"v_mov_b32 v{P.ACC + r}, 0") for r in range(128)]
        timed = [(1 + k // 2, zl[8*k: 8*k + 8]) for k in range(8)] + [timed[0]] + [(hsig + 1 + k // 2, zl[64 + 8*k: 72 + 8*k]) for k in range(8)] + timed[1:]
    NDOWN = P.NDOWN
    xl = [([P.x_base(sg)] if J0 == 0 else []) + [P.w_load(sg, J) for J in range(J0, J0 + 4)] for sg in (NDOWN + 6, NDOWN + 7) for J0 in (0, 4)]
    def xfix(grps, s):
        for g_ in grps:
            for x in g_: x["text"] = x["text"].replace(f"s[{P.S_XB}:{P.S_XB+1}]", "s[52:53]").replace(f"s_add_u32 s{P.S_XB},", "s_add_u32 s52,").replace(f"s_addc_u32 s{P.S_XB+1},", "s_addc_u32 s53,")
        return grps
    xfix(xl, 0)
    if fflag:
        pre_d = pre_d + [xl.pop(0) for _ in range(4)]
        n_ = len(pre_d)
        mid = [(hsig + 1 + (k*(hpoll + 1 - hsig))//n_, x) for k, x in enumerate(pre_d)]
        timed = [fp, hs] + sorted(mid + [hp], key=lambda e: e[0]) + [hc] + post_d
    elif xhead:
        timed = timed[:-2] + [(min(hpoll + 9 + k, 30), xl.pop(0)) for k in range(4)] + [(min(hpoll + 13, 30), timed[-2][1]), (min(hpoll + 14, 31), timed[-1][1])]
    peel = []
    if xpeel:
        flat = [x for g_ in xl for x in g_]; xl.clear()
        k_ = 0
        for x in flat:
            if peel and peel[-1][1][-1]["text"].startswith("s_"): peel[-1][1].append(x)
            else: peel.append((32 + k_, [x])); k_ = min(k_ + 1, 15)
        peel = [(32 + (n_*15)//16, it_) for n_, (_, it_) in enumerate(peel)]
    headseg = P.segment(0, 32, 0, 32*P.NHEAD, g0, timed)
    bodies = [P.segment(16*it, 16*it + 16, 32*(P.NHEAD + 4*(it - 2)), 32*(P.NHEAD + 4*(it - 1)), 16*it, timed=peel if it == 2 else (), loop=True) for it in range(2, 8)]
    for b_ in bodies: b_.ins(f"s_cmp_lg_u32 s{P.S_CNT}, 0")
    NDOWN, NWO, ACC = P.NDOWN, P.NWO, P.ACC
    t1 = Trace()
    n = P.NSLOT - 1
    t1.wait(lg=[("v", 63)])
    t1.ins("s_nop 1")
    t1.ins(P.pv(n, 0)); t1.ins(P.summ(n, 0)); t1.ins(P.pv(n, 1)); t1.ins(P.summ(n, 1))
    VO = P.V_O
    q_ = Trace()
    q_.raw(f"""
    v_bfe_u32 v26, {L2}, 4, 1
    s_lshl_b32 s78, s{S_MT}, 1
    v_lshlrev_b32 v26, 10, v26
    s_lshr_b32 s79, s{S_W}, 1
    v_and_b32 v27, 15, {L2}
    s_add_u32 s78, s78, s79
    v_lshl_add_u32 v26, v27, 4, v26
    s_lshl_b32 s78, s78, 5
    v_lshrrev_b32 v27, 5, {L2}
    s_add_u32 s78, s78, s{S_NT}
    v_lshl_add_u32 v26, v27, 8, v26
    s_lshl_b32 s78, s78, 13
    s_and_b32 s79, s{S_W}, 1
    s_lshl_b32 s79, s79, 12
    s_add_u32 s78, s78, s79
    s_add_u32 s54, s78, {WS_O:#x}
    s_mov_b32 s78, 0x1f800000
    s_mov_b32 s79, 0x5f800000
    s_mov_b32 s55, 0
    v_accvgpr_read_b32 v80, a{P.A_L}
    v_accvgpr_read_b32 v81, a{P.A_L+4}
    """)
    q_.wait(vm=[("g2", 0)])
    q_.raw(f"""
    v_min_f32 v83, v80, v81
    v_max_f32 v84, v80, v81
    v_add_f32 v85, v80, v81
    v_cmp_nle_f32 s[82:83], s78, v83
    v_cmp_nge_f32 s[84:85], s79, v84
    v_cmp_u_f32 vcc, v85, v85
    """)
    q_.ins("s_nop 1\ns_or_b64 s[82:83], s[82:83], s[84:85]\ns_or_b64 vcc, vcc, s[82:83]\ns_cbranch_vccnz KM_FALLBACK\nKM_NORM:\nv_rcp_f32 v80, v80")
    q_.raw(f"""
    v_rcp_f32 v82, v81
    v_mul_f32 v80, v80, v{P.V_G}
    v_mul_f32 v82, v82, v{P.V_G+1}
    """)
    for hh in range(2):
        for pc in range(2):
            b = VO + 16*hh + 8*pc
            for r in range(8): q_.ins(f"v_mul_f32 v{b+r}, v{b+r}, v{80+2*hh}")
            for q in range(4): q_.ins(f"v_cvt_pk_bf16_f32 v{64+8*hh+4*pc+q}, v{b+2*q}, v{b+2*q+1}")
            q_.ins(f"buffer_store_dwordx4 {vr(64+8*hh+4*pc,4)}, v26, s[{S_WS}:{S_WS+3}], s54 offen offset:{hh*2048 + pc*512} sc1", vm=("ost", 0))
    vq = q_.items
    nA, nB = nb
    stepsA = [P.gemm_step(s, vq=vq) for s in range(NIN, NIN + nA)]
    t2 = Trace()
    t2.items.extend(vq)
    t2.ins("s_nop 1")
    for q in range(4):
        t2.ins(f"v_mfma_f32_16x16x32_bf16 v[84:87], {ar(P.A_SEL,4)}, {vr(64+4*q,4)}, {'0' if q == 0 else 'v[84:87]'}")
    stepsA.append(t2)
    polli = lambda: I(f"buffer_load_dword v28, v25, s[{S_WS}:{S_WS+3}], s{P.S_OP} offen sc1", vm=("op", 0))
    x33 = xfix([[P.x_base(NDOWN + 5)] + [P.w_load(NDOWN + 5, J) for J in range(4)], [P.w_load(NDOWN + 5, J) for J in range(4, 8)]], 0)
    xq = [x33] + [[xl.pop(0), xl.pop(0)] for _ in range(len(xl)//2)]
    stepsB = [P.gemm_step(s, extra=xq.pop(0) if xq else [], late=[polli()] if s == NIN + nA + nB - 1 else []) for s in range(NIN + nA, NIN + nA + nB)]
    assert not xl and not xq
    sig = Trace()
    sig.raw(f"""
    v_and_b32 v25, 31, {L2}
    v_lshlrev_b32 v25, 7, v25
    s_lshr_b32 s78, s{P.S_MT}, 1
    s_lshl_b32 s78, s78, 18
    s_add_u32 s78, s78, s42
    s_lshl_b32 s79, s{S_W}, 16
    s_add_u32 s78, s78, s79
    s_add_u32 s78, s78, {WS_O:#x}
    s_add_u32 s56, s86, s78
    s_addc_u32 s57, s87, 0
    """)
    sig.raw(f"""
    v_sub_f32 v84, v84, v84
    s_cmp_lg_u32 s55, 0
    v_cmp_u_f32 vcc, v84, v84
    s_cbranch_scc1 KM_CHECKED
    s_cbranch_vccnz KM_FALLBACK2
    KM_CHECKED:
    """)
    sig.wait(vm=[("ost", 0)])
    sig.raw(f"""
    s_mov_b64 exec, 1
    buffer_store_dword v24, off, s[{S_WS}:{S_WS+3}], s{P.S_OF} sc1
    s_mov_b64 exec, -1
    """)
    t3 = Trace()
    t3.wait(vm=[("op", 0)])
    t3.raw(f"""
    v_cmp_ne_u32 vcc, s{S_TAG}, v28
    s_nop 0
    s_cbranch_vccnz KM_OSPIN
    KM_OBACK:
    """)
    ol = []
    for s in range(NDOWN, NDOWN + NWO):
        ol.append([rebase(P.h_load(s, i), P.S_HB, 56) for i in range(4)] + (adv64(56, 8192) if s < NDOWN + NWO - 1 else []))
    t4 = Trace()
    for grp in ol[:opre]: t4.items.extend(grp)
    k = opre
    stepsC = []
    for s in range(NIN + nA + nB, NDOWN):
        ex = []
        while len(ex) < 2 and k < 5: ex.append(ol[k]); k += 1
        stepsC.append(P.gemm_step(s, ex))
    wos = []
    for s in range(NDOWN, NDOWN + 4):
        ex = []
        while len(ex) < 2 and k < NWO: ex.append(ol[k]); k += 1
        wos.append(P.gemm_step(s, ex))
    ph = Trace()
    su = Asm()
    for pp in range(1, 4):
        su(f"s_add_u32 s78, s{S_W}, {pp}\ns_and_b32 s78, s78, 3\ns_mul_i32 s78, s78, 24576\ns_add_u32 s78, s78, {(pp-1)*8192}\nv_add_u32 v{26+pp}, s78, v{P.V_L16}")
    su(f"""
    s_mul_i32 s78, s{S_W}, 24576
    v_add_u32 v26, s78, v{P.V_L16}
    s_lshl_b32 s78, s{P.S_MT}, 17
    s_lshl_b32 s79, s{P.S_NT}, 8
    s_add_u32 s78, s78, s79
    s_lshl_b32 s79, s{S_W}, 6
    s_add_u32 s78, s78, s79
    s_add_u32 s79, s78, 0x8000
    s_add_u32 s80, s78, 0x10000
    s_add_u32 s81, s78, 0x18000
    v_and_b32 v30, 15, {L2}
    v_lshlrev_b32 v30, 11, v30
    v_bfe_u32 v25, {L2}, 4, 1
    v_lshl_add_u32 v30, v25, 5, v30
    v_lshrrev_b32 v25, 5, {L2}
    v_lshl_add_u32 v30, v25, 4, v30
    """)
    su = [l.strip() for l in su.lines]
    S2 = list(range(NDOWN + 4, NDOWN + 8))
    ph.wait(vm=[("w", s, J) for s in S2[1:] for J in range(8)], lg=[("w", s, J) for s in S2[:1] for J in range(8)])
    ph.ins("s_barrier")
    R0, R1, R2 = ACC + 32, ACC + 64, ACC + 96
    assert ph2new
    for idx, pp in enumerate((1, 2, 3, 0)):
        fill = [[] for _ in range(32)]
        if idx == 0:
            for q, x in enumerate(su): fill[q].append(I(x))
        else:
            prev = (1, 2, 3)[idx - 1]
            for t in range(8):
                fill[(4 + 3*t) if idx < 3 or not ph2new else (1 + t + (3 if t >= 4 else 0))].append(I(f"ds_write_b128 v{26+prev}, {vr(ACC + (prev*8 + t)*4, 4)} offset:{t*1024}", lg=("rw", prev)))
        if idx == 3:
            rd = [I(f"ds_read_b128 {vr((R0, R1, R2)[s_] + t*4, 4)}, v26 offset:{s_*8192 + t*1024}", lg=("rr", s_)) for s_ in range(3) for t in range(8)]
            if ph2new:
                for k_, x in enumerate(rd[:16]): fill[12 + k_ // 2].append(x)
                fill[21] += [W(lg=[("rw", 3)]), I("s_barrier")]
                for k_, x in enumerate(rd[16:]): fill[22 + k_ // 2].append(x)
                fill[26].append(W(lg=[("rr", 1)]))
                for k_ in range(10): fill[26 + k_ // 2].append(I(f"v_add_f32 v{R0+k_}, v{R0+k_}, v{R1+k_}"))
            else:
                free = [g for g in range(32) if not fill[g]]
                for x, g in zip(rd[:16], free): fill[g].append(x)
            ph.wait(lg=[("rw", 2)])
            ph.ins("s_barrier")
        mu = 0
        for s in S2:
            if idx == 0: ph.wait(vm=[("h", s, i) for i in range(4)])
            for J in (2*pp, 2*pp + 1):
                for i in range(4):
                    ph.ins(P.gemm_mfma(s, J, i, False)); ph.items.extend(fill[mu]); mu += 1
    if ph2new:
        for r in range(10, 32, 2): ph.ins(f"v_pk_add_f32 {vr(R0+r,2)}, {vr(R0+r,2)}, {vr(R1+r,2)}")
        ph.wait(lg=[("rr", 2)])
        for r in range(0, 32, 2): ph.ins(f"v_pk_add_f32 {vr(R0+r,2)}, {vr(R0+r,2)}, {vr(R2+r,2)}")
    else:
        ph.wait(lg=[("rw", 3), ("rr", 1)])
        ph.ins("s_barrier")
        ph.items.extend(rd[16:])
        for r in range(0, 32, 2): ph.ins(f"v_pk_add_f32 {vr(R0+r,2)}, {vr(R0+r,2)}, {vr(R1+r,2)}")
        ph.wait(lg=[("rr", 2)])
        for r in range(0, 32, 2): ph.ins(f"v_pk_add_f32 {vr(R0+r,2)}, {vr(R0+r,2)}, {vr(R2+r,2)}")
    for i in range(4):
        b0, b1 = ACC + i*4, ACC + (4 + i)*4
        d = 64 + i*4
        om = P.V_OMG + i
        for b in (b0, b0 + 2, b1, b1 + 2):
            ph.ins(f"v_pk_add_f32 {vr(b,2)}, {vr(b,2)}, {vr(b + 32,2)}")
        for b in (b0, b0 + 2, b1, b1 + 2):
            ph.ins(f"v_pk_mul_f32 {vr(b,2)}, {vr(b,2)}, {vr(om,2)} op_sel_hi:[1,0]" if om % 2 == 0 else f"v_pk_mul_f32 {vr(b,2)}, {vr(b,2)}, {vr(om-1,2)} op_sel:[0,1] op_sel_hi:[1,1]")
        ph.raw(f"""
        v_cvt_pk_bf16_f32 v{d}, v{b0}, v{b0+1}
        v_cvt_pk_bf16_f32 v{d+1}, v{b0+2}, v{b0+3}
        v_cvt_pk_bf16_f32 v{d+2}, v{b1}, v{b1+1}
        v_cvt_pk_bf16_f32 v{d+3}, v{b1+2}, v{b1+3}
        s_nop 1
        v_permlane16_swap_b32 v{d}, v{d+2}
        v_permlane16_swap_b32 v{d+1}, v{d+3}
        buffer_store_dwordx4 {vr(d,4)}, v30, s[{P.S_OUT}:{P.S_OUT+3}], s{78+i} offen sc1 nt
        """)
    head = [pro, pro2] + segs + [ec]
    rest = [h2, headseg] + bodies + [t1] + stepsA + [sig] + stepsB + [t3, t4] + stepsC + wos + [ph]
    import copy
    resolve(head + [l0] + rest)
    saved = [[(x.get("wvm"), x.get("wlg")) for x in seg.items] for seg in rest]
    resolve(head + [l1] + rest)
    for seg, sv in zip(rest, saved):
        for x, (v, l) in zip(seg.items, sv):
            if x["text"] is None:
                mn = lambda p, q: q if p is None else p if q is None else min(p, q)
                x["wvm"], x["wlg"] = mn(x["wvm"], v), mn(x["wlg"], l)
    emit_trace(a, [pro]); st.stamp()
    if pads:
        a("s_branch KM_BODY")
        a.lines.append(".p2align 12")
        a.label("KM_BODY")
    if al1 is not None:
        a.lines.append(".p2align 6")
        for _ in range(al1): a("s_nop 0")
    emit_trace(a, [pro2]); st.stamp()
    for k, tr in enumerate(segs):
        if 'wv' in exp and k % 2 == 0 and wv0 <= k // 2 < wv0 + 5:
            t_ = Trace(); t_.items = tr.items[:-2]; emit_trace(a, [t_]); st.stamp()
            t_.items = tr.items[-2:-1]; emit_trace(a, [t_]); st.stamp()
            t_.items = tr.items[-1:]; emit_trace(a, [t_]); st.stamp()
            continue
        emit_trace(a, [tr])
        if 'stg' in exp and k % 2 == 0: st.stamp()
    st.stamp()
    emit_trace(a, [ec])
    if 'ec' in exp: st.stamp()
    a(f"s_bitcmp1_b32 s{S_W}, 0")
    a("s_cbranch_scc1 KM_LAST1")
    emit_trace(a, [l0])
    a("s_branch KM_P2")
    a.label("KM_LAST1")
    emit_trace(a, [l1])
    if al2 is not None:
        a.lines.append(".p2align 6")
        for _ in range(al2): a("s_nop 0")
    a.label("KM_P2")
    st.stamp()
    if pads: a.lines.append("@CHAIN2")
    emit_trace(a, [h2]); st.stamp()
    b = Asm(); emit_trace(b, [headseg])
    for l in b.lines:
        a.lines.append(l)
        if 'its' in exp and l.strip() in ("s_barrier", "KM_HBACK:"): st.stamp()
    st.stamp()
    if xpeel: emit_trace(a, bodies[:1])
    a.lines.append(".p2align 6")
    a.label("KM_LOOP")
    emit_trace(a, bodies[1:] if xpeel else bodies)
    a("s_cbranch_scc1 KM_LOOP")
    st.stamp()
    emit_trace(a, [t1]); st.stamp()
    for seg in stepsA + [sig]: emit_trace(a, [seg])
    st.stamp()
    for seg in stepsB: emit_trace(a, [seg])
    st.stamp()
    emit_trace(a, [t3]); st.stamp()
    for seg in [t4] + stepsC: emit_trace(a, [seg])
    st.stamp()
    for seg in wos: emit_trace(a, [seg])
    st.stamp()
    b = Asm(); emit_trace(b, [ph])
    nm = 0
    for l in b.lines:
        a.lines.append(l)
        if l.strip().startswith("v_mfma"): nm += 1
        if 'ph' in exp and ((l.strip().startswith("v_mfma") and nm % 32 == 0) or (l.strip() == "s_barrier" and nm == 0) or "s81 offen" in l): st.stamp()
    if dbg:
        a("s_waitcnt vmcnt(0)")
        st.stamp(force=True)
        st.dump(0, S_W, 86)
        if hdbg is not None:
            a(f"""
            s_lshl_b32 s90, s2, 2
            s_add_u32 s90, s90, s{S_W}
            s_cmp_eq_u32 s90, {4*hdbg}
            s_cbranch_scc0 KM_END
            v_readlane_b32 s90, v31, 32
            v_mbcnt_lo_u32_b32 v0, -1, 0
            v_mbcnt_hi_u32_b32 v0, -1, v0
            v_subrev_u32 v31, s90, v31
            v_subrev_u32 v0, 32, v0
            v_lshlrev_b32 v0, 2, v0
            s_mov_b32 exec_lo, 0
            s_mov_b32 exec_hi, 0xfffe
            buffer_store_dword v31, v0, s[{S_DBG}:{S_DBG+3}], 0 offen
            """)
    a("s_endpgm")
    for nm, ld, val in (("Z", f"buffer_load_dword v1, off, s[{S_DBG}:{S_DBG+3}], 0 sc1", f"eq_u32 vcc, 0, v1"),
                        ("E", f"buffer_load_dword v{V_KX}, v{V_T}, s[{S_WS}:{S_WS+3}], s{S_EF} offen sc1", f"ne_u32 vcc, s{S_TAG}, v{V_KX}"),
                        ("H", f"buffer_load_dword v28, v25, s[{S_WS}:{S_WS+3}], s{P.S_HP} offen sc1", f"ne_u32 vcc, s{S_TAG}, v28"),
                        ("F", f"buffer_load_dword v28, v25, s[{S_WS}:{S_WS+3}], s43 offen sc1", f"ne_u32 vcc, s{S_TAG}, v28"),
                        ("O", f"buffer_load_dword v28, v25, s[{S_WS}:{S_WS+3}], s{P.S_OP} offen sc1", f"ne_u32 vcc, s{S_TAG}, v28")):
        if nm == 'F' and not fflag: continue
        a(f"""
        KM_{nm}SPIN:
        s_mov_b32 s91, 0x40000
        KM_{nm}SPIN1:
        {ld}
        s_waitcnt vmcnt(0)
        v_cmp_{val}
        s_sub_u32 s91, s91, 1
        s_cbranch_vccz KM_{nm}BACK
        s_cmp_eq_u32 s91, 0
        s_cbranch_scc1 KM_{nm}BACK
        s_sleep 1
        s_branch KM_{nm}SPIN1
        """)
    A_K, A_Q = P.A_K, P.A_Q
    a.label("KM_FALLBACK2")
    a("s_mov_b32 s55, 2")
    a.label("KM_FALLBACK")
    a(f"""
    s_or_b32 s55, s55, 1
    s_waitcnt vmcnt(0) lgkmcnt(0)
    s_nop 15
    v_mov_b32 v82, 0xff7fffff
    v_mov_b32 v83, 0xff7fffff
    v_mov_b32 v80, 0
    v_mov_b32 v81, 0
    s_mov_b32 s78, {WS_KV:#x}
    """)
    for r in range(32): a(f"v_mov_b32 v{VO+r}, 0")
    a.label("KM_FB_LOOP")
    for q in range(4):
        a(f"buffer_load_dwordx4 {ar(A_K+4*q,4)}, v{P.V_L16}, s[{S_WS}:{S_WS+3}], s78 offen offset:{q*1024} sc1")
    a("s_waitcnt vmcnt(0)")
    for hh in range(2):
        O = VO + 16*hh; m = 82 + hh; l = 80 + hh
        a(f"v_mfma_f32_32x32x16_bf16 v[64:79], {ar(A_K,4)}, {ar(A_Q+8*hh,4)}, 0")
        a(f"v_mfma_f32_32x32x16_bf16 v[64:79], {ar(A_K+4,4)}, {ar(A_Q+8*hh+4,4)}, v[64:79]")
        a("s_nop 15")
        a("v_max_f32 v84, v64, v65")
        for r in range(2, 16, 2): a(f"v_max3_f32 v84, v{64+r}, v{65+r}, v84")
        a(f"""
        v_mov_b32 v85, v84
        s_nop 1
        v_permlane32_swap_b32 v84, v85
        s_nop 1
        v_max3_f32 v84, v84, v85, v{m}
        v_sub_f32 v85, v{m}, v84
        v_exp_f32 v85, v85
        v_mov_b32 v{m}, v84
        v_mul_f32 v{l}, v{l}, v85
        """)
        for r in range(16):
            a(f"v_sub_f32 v{64+r}, v{64+r}, v84")
            a(f"v_exp_f32 v{64+r}, v{64+r}")
            a(f"v_mul_f32 v{O+r}, v{O+r}, v85")
        for r in range(8): a(f"v_cvt_pk_bf16_f32 v{64+r}, v{64+2*r}, v{65+2*r}")
        for r in range(8):
            a(f"v_lshlrev_b32 v86, 16, v{64+r}\nv_and_b32 v87, 0xffff0000, v{64+r}\nv_add_f32 v{l}, v{l}, v86\nv_add_f32 v{l}, v{l}, v87")
        a(f"v_mfma_f32_32x32x16_bf16 {vr(O,16)}, {ar(A_K+8,4)}, v[64:67], {vr(O,16)}")
        a(f"v_mfma_f32_32x32x16_bf16 {vr(O,16)}, {ar(A_K+12,4)}, v[68:71], {vr(O,16)}")
        a("s_nop 15")
    a(f"""
    s_add_u32 s78, s78, 4096
    s_cmp_lt_u32 s78, {WS_KV + 64*4096:#x}
    s_cbranch_scc1 KM_FB_LOOP
    v_mov_b32 v84, v80
    v_mov_b32 v85, v81
    s_nop 1
    v_permlane32_swap_b32 v80, v84
    v_permlane32_swap_b32 v81, v85
    s_nop 1
    v_add_f32 v80, v80, v84
    v_add_f32 v81, v81, v85
    s_cmp_eq_u32 s55, 1
    s_cbranch_scc1 KM_NORM
    v_rcp_f32 v80, v80
    v_rcp_f32 v82, v81
    s_nop 0
    v_mul_f32 v80, v80, v{P.V_G}
    v_mul_f32 v82, v82, v{P.V_G+1}
    """)
    for hh in range(2):
        for pc in range(2):
            b = VO + 16*hh + 8*pc
            for r in range(8): a(f"v_mul_f32 v{b+r}, v{b+r}, v{80+2*hh}")
            for q in range(4): a(f"v_cvt_pk_bf16_f32 v{64+8*hh+4*pc+q}, v{b+2*q}, v{b+2*q+1}")
            a(f"buffer_store_dwordx4 {vr(64+8*hh+4*pc,4)}, v26, s[{S_WS}:{S_WS+3}], s54 offen offset:{hh*2048 + pc*512} sc1")
    a(f"""
    s_waitcnt vmcnt(0)
    s_branch KM_CHECKED
    KM_END:
    s_endpgm
    """)
    return a.text()
```

```python
from common import *
import p2
from p2 import I, W, adv64
import math, struct

KM = NAME + "_kernel"
LDS_X = 0; LDS_W = 65536
LDS_R = 131072
LDS_QS = LDS_R; LDS_KW = LDS_R + 4096; LDS_T = LDS_R + 16384
KM_LDS = 163840
NST = 16
OOB = 0x7f000000

def accn(j, i): return ("v", 32 + (j*8 + i)*4) if j < 7 else ("a", 128 + i*4)
def acc(j, i):
    p, b = accn(j, i); return vr(b, 4, p)
XF = [0, 64]; WF = [32, 96]
KVW, KVA, A_GX, A_GW, A_T, A_KX, A_DUM = 160, 168, 172, 188, 204, 208, 255
TREG = [196, 200, 204, 224, 228, 232, 236, 240, 244]
V_DQ, V_DX, V_DW = 0, 2, 6
V_RX = [10, 11]
V_RW, V_R3, V_R7, V_RKW, V_T, V_KX, V_LANE = 12, 15, 16, 17, 18, 19, 20
V_GROW, V_L16, V_RT, V_DT, V_DK = 26, 27, 28, 29, 30
S_WQ, S_X, S_G, S_U, S_KV, S_WS, S_GW, S_TSRD, S_WD, S_WO, S_DBG = 4, 8, 12, 16, 20, 24, 28, 32, 52, 76, 72
S_W, S_MT, S_NT, S_OK = 36, 37, 38, 39
S_OX, S_OX2, S_OG, S_OQ, S_TSRCS = 40, 41, 42, 43, 44
S_M0X, S_M0W, S_M0K, S_M0T, S_M0Q = 45, 46, 47, 51, 56
S_TOFF, S_TSTEP, S_TOG = 48, 49, 50
S_TSRC, S_TDST, S_TSRC2, S_TDST2, S_GROW = 3, 94, 95, 100, 101
S_EF = 88
S_LMASK, S_T2D = 58, 59
S_TAG = 89
A_TAG = 254
S_FLG = 57

KVD = 1
def dma_group_buf(s, ntw):
    b = s % 2
    g = []
    nt = " nt" if ntw else ""
    for half in range(2):
        so = S_OX if half == 0 else S_OX2
        for j in range(4):
            pre = f"s_add_u32 m0, s{S_M0X}, {b*32768 + half*4096}" if j == 0 else None
            g.append((pre, I(f"buffer_load_dwordx4 v{V_DX+j}, s[{S_X}:{S_X+3}], s{so} offen offset:{j*1024} lds", vm=("st", s))))
    for part in range(2):
        srdn = S_G if part == 0 else S_U
        for j in range(4):
            pre = f"s_add_u32 m0, s{S_M0W}, {b*32768 + part*16384}" if j == 0 else None
            g.append((pre, I(f"buffer_load_dwordx4 v{V_DW+j}, s[{srdn}:{srdn+3}], s{S_OG} offen offset:{j*1024}{nt} lds", vm=("st", s))))
    g.append((f"s_add_u32 m0, s{S_M0Q}, {b*2048}", I(f"buffer_load_dwordx4 v{V_DQ}, s[{S_WQ}:{S_WQ+3}], s{S_OQ} offen{nt} lds", vm=("st", s))))
    adv = {7: [f"s_add_u32 s{S_OX}, s{S_OX}, 128", f"s_add_u32 s{S_OX2}, s{S_OX2}, 128"],
           15: [f"s_add_u32 s{S_OG}, s{S_OG}, {64*7168}"], 16: [f"s_add_u32 s{S_OQ}, s{S_OQ}, 0x20000"]}
    if 1 <= s - KVD <= 8:
        g.append((f"s_add_u32 m0, s{S_M0K}, {b*8192}", I(f"buffer_load_dwordx4 v{V_DK}, s[{S_KV}:{S_KV+3}], s{S_OK} offen lds", vm=("st", s))))
        adv[17] = [f"s_add_u32 s{S_OK}, s{S_OK}, 8192"]
    return g, adv
GDMA = False
B_X, B_X2, B_G, B_U, B_Q = 40, 90, 64, 66, 42
B_X2 = 62
def dma_group(s, ntw):
    g, adv = dma_group_buf(s, ntw)
    if not GDMA: return g, adv
    out = []
    for k, (pre, it) in enumerate(g):
        if k < 17:
            base = B_X if k < 4 else B_X2 if k < 8 else B_G if k < 12 else B_U if k < 16 else B_Q
            reg = V_DX + k % 4 if k < 8 else V_DW + k % 4 if k < 16 else V_DQ
            it = I(f"global_load_lds_dwordx4 v{reg}, s[{base}:{base+1}] offset:{(k % 4)*1024 if k < 16 else 0}", vm=("st", s))
        out.append((pre, it))
    a64 = lambda b, n: f"s_add_u32 s{b}, s{b}, {n}\ns_addc_u32 s{b+1}, s{b+1}, 0"
    adv2 = {3: [a64(B_X, 128)], 7: [a64(B_X2, 128)], 11: [a64(B_G, 64*7168)], 15: [a64(B_U, 64*7168)], 16: [a64(B_Q, 0x20000)]}
    if 17 in adv: adv2[17] = adv[17]
    return out, adv2
def xread(s, kk, i):
    return I(f"ds_read_b128 {ar(XF[kk]+4*i,4)}, v{V_RX[kk]} offset:{(s%2)*32768 + i*2048}", lg=("fr", s, kk))
def wread(s, kk, j, h):
    if j % 4 == 3:
        reg, off = (V_R3 if j == 3 else V_R7), h*1024 + kk*8192
    else:
        reg, off = V_RW + (j & 3), (s % 2)*32768 + h*1024 + kk*8192 + (16384 if j >= 4 else 0)
    return I(f"ds_read_b64_tr_b16 {ar(WF[kk]+4*j+2*h,2)}, v{reg} offset:{off}", lg=("fr", s, kk))
def reads(s, kk):
    r = [wread(s, kk, 0, 0), wread(s, kk, 0, 1)] + [xread(s, kk, i) for i in range(8)]
    for j in range(1, 8): r += [wread(s, kk, j, 0), wread(s, kk, j, 1)]
    return r
def mfma(kk, j, i, first=False):
    return f"v_mfma_f32_16x16x32_bf16 {acc(j,i)}, {ar(WF[kk]+4*j,4)}, {ar(XF[kk]+4*i,4)}, {'0' if first else acc(j,i)}"
def vcap(items):
    c = 2
    for x in items:
        t = x["text"] or "s_"
        if t.startswith("ds_"): c -= 1
        elif t.startswith(("buffer_", "global_")): c -= 2
        elif t.startswith("v_"): c -= 1
    return max(c, 0)
from k1 import g_ops as _g_ops
import k1 as _k1
_k1.A_GX, _k1.A_GW = A_GX, A_GW

def gen(dbg=False, hdbg=None, lead=True, lphase=0, nhd=1, psp=2, retouch=0, cpf='share', gdma=False, ndef=0, dsl=1, ptc=0, tpos2=18, fflag=False, fpoll=2, xpeel=False, xhead=True, al1=None, al2=None, gsm=True, tsp0=4, hstart=0, xmask=0x1f, tt0=0, wv0=1, cl=1, gc=(10, 8), dc=8, slack=0, ph2new=True, tp2=False, tb=8, tlb=0, tlbpos=17, tdefer=False, tpro=0, tpos=0, gl=2, pads=0, epos=10, chain_at=1, ot=99, touch=1, nhead=13, p1=13, npro0=8, gs=11, tq0=5, ntw=False, ntt=True, exp='',
        g0=25, hsig=5, hpoll=16, opre=1, nb=(1, 2)):
    esig = KVD + 11
    global GDMA
    GDMA = gdma
    if tp2:
        tq0 = 100
    p2.TCH = bool(ptc); p2.TPOS = tpos2
    p2.configure(nhd); p2.KV1 = 8 if fflag else max(8, hpoll - 13)
    if fflag: tq0 = 3
    NIN = p2.NIN
    a = Asm()
    L = f"v{V_LANE}"
    a("s_cmp_ge_u32 s2, 256")
    a("s_cbranch_scc1 KM_END")
    st = Stamps(a, dbg)
    st.stamp()
    a("s_memrealtime s[72:73]")
    a("s_load_dwordx8 s[56:63], s[0:1], 0")
    a("s_load_dwordx8 s[64:71], s[0:1], 48")
    a("s_load_dwordx2 s[74:75], s[0:1], 32")
    a("s_load_dwordx4 s[96:99], s[0:1], 80")
    a("s_load_dwordx2 s[86:87], s[0:1], 96")
    if cpf == "full": code_prefetch(a, "KM", 32, "a255", 3)
    else:
        a("s_getpc_b64 s[32:33]")
        a.label("KM_PC")
        if cpf == "share":
            a("""
            s_and_b32 s33, s33, 0xffff
            s_mov_b32 s34, KM_END-KM_PC
            s_mov_b32 s35, 0x00020000
            v_lshrrev_b32 v1, 4, v0
            v_and_b32 v1, 12, v1
            v_and_or_b32 v1, v0, 3, v1
            v_lshlrev_b32 v1, 7, v1
            s_lshr_b32 s36, s2, 3
            s_lshl_b32 s36, s36, 11
            buffer_load_dword a255, v1, s[32:35], s36 offen
            """)
    a(f"""
    v_and_b32 {L}, 63, v0
    v_lshrrev_b32 v1, 6, v0
    s_and_b32 s80, s2, 7
    v_readfirstlane_b32 s{S_W}, v1
    s_lshr_b32 s81, s2, 3
    s_and_b32 s{S_MT}, s81, 7
    s_lshr_b32 s83, s81, 3
    s_lshl_b32 s80, s80, 2
    s_add_u32 s{S_NT}, s80, s83
    s_mul_i32 s85, s{S_NT}, 224
    s_mov_b32 s{S_OG}, 0
    s_mov_b32 s{S_OQ}, 0
    v_lshrrev_b32 v21, 3, {L}
    s_lshl_b32 s81, s{S_MT}, 8
    s_lshl_b32 s82, s{S_W}, 6
    s_add_u32 s81, s81, s82
    v_add_u32 v21, s81, v21
    v_lshlrev_b32 v21, 11, v21
    v_and_b32 v22, 7, {L}
    v_lshrrev_b32 v23, 4, {L}
    v_xor_b32 v22, v22, v23
    v_lshlrev_b32 v22, 4, v22
    v_xor_b32 v24, 64, v22
    """)
    for j in range(4):
        a(f"v_add_u32 v{V_DX+j}, v21, {'v22' if j % 2 == 0 else 'v24'}")
        if j: a(f"v_add_u32 v{V_DX+j}, {j*8*2048 - j*1024}, v{V_DX+j}")
    a(f"""
    s_mov_b32 s{S_OX}, 0
    s_mov_b32 s{S_OX2}, 65536
    s_mov_b32 s{S_OK}, 0
    s_lshl_b32 s81, s{S_W}, 4
    s_movk_i32 s84, 7168
    v_add_u32 v21, s81, v23
    v_mul_lo_u32 v21, v21, s84
    v_add_u32 v21, s85, v21
    v_and_b32 v25, 1, {L}
    v_lshl_add_u32 v21, v25, 4, v21
    v_bfe_u32 v22, {L}, 1, 3
    v_xor_b32 v22, v22, v23
    v_xor_b32 v24, 4, v22
    v_min_u32 v22, 6, v22
    v_min_u32 v24, 6, v24
    v_lshl_add_u32 v{V_DW}, v22, 5, v21
    v_add_u32 v{V_DW+1}, {4*7168 - 1024}, v{V_DW}
    v_lshl_add_u32 v{V_DW+2}, v24, 5, v21
    v_add_u32 v{V_DW+2}, {2*(4*7168 - 1024)}, v{V_DW+2}
    v_add_u32 v{V_DW+3}, {4*7168 - 1024}, v{V_DW+2}
    s_lshl_b32 s{S_M0X}, s{S_W}, 13
    s_lshl_b32 s{S_M0W}, s{S_W}, 12
    s_add_u32 s{S_M0W}, s{S_M0W}, {LDS_W}
    s_lshl_b32 s{S_M0K}, s{S_W}, 10
    s_add_u32 s{S_M0T}, s{S_M0K}, {LDS_T}
    s_add_u32 s{S_M0K}, s{S_M0K}, {LDS_KW}
    s_lshr_b32 s81, s{S_W}, 1
    s_and_b32 s80, s{S_W}, 1
    """)
    a(f"""
    v_lshlrev_b32 v21, 3, v23
    v_bfe_u32 v22, {L}, 2, 2
    v_add_u32 v21, v21, v22
    s_lshl_b32 s82, s81, 5
    s_lshl_b32 s83, s80, 2
    s_add_u32 s82, s82, s83
    v_add_u32 v21, s82, v21
    v_lshlrev_b32 v21, 11, v21
    v_bfe_u32 v22, {L}, 1, 1
    v_bfe_u32 v24, {L}, 4, 1
    v_xor_b32 v22, v22, v24
    v_lshl_add_u32 v21, v22, 5, v21
    v_lshl_add_u32 v21, v25, 4, v21
    s_lshl_b32 s82, s{S_NT}, 6
    v_add_u32 v{V_DQ}, s82, v21
    s_lshl_b32 s90, s81, 13
    s_lshl_b32 s83, s80, 10
    s_add_u32 s90, s90, s83
    s_waitcnt lgkmcnt(0)
    """)
    st.n and None
    a(f"s_or_b32 s{S_TAG}, s72, 1")
    srd(a, S_X, 56, 2048*1024*2)
    srd(a, S_G, 64, 1024*3584*2)
    srd(a, S_U, 66, 1024*3584*2)
    srd(a, S_WQ, 58, 1024*1024*2)
    if gdma:
        a(f"""
        s_and_b32 s82, s{S_NT}, 2
        s_cmp_eq_u32 s82, 0
        s_cselect_b32 s60, s60, s62
        s_cselect_b32 s61, s61, s63
        s_mov_b64 s[{B_X}:{B_X+1}], s[56:57]
        s_add_u32 s{B_X2}, s56, 0x10000
        s_addc_u32 s{B_X2+1}, s57, 0
        s_mov_b64 s[{B_Q}:{B_Q+1}], s[58:59]
        """)
    a(f"s_add_u32 s{S_M0Q}, s90, {LDS_QS}")
    st.stamp()
    pro = Trace()
    def dma_items(s, lo, hi):
        g, adv = dma_group(s, ntw)
        out = []
        for k in range(lo, min(hi, len(g))):
            pre, it = g[k]
            out.append(([I(pre), I("s_nop 0")] if pre else []) + [it] + [I(x) for x in adv.get(k, [])])
        return out
    pc = Asm()
    pc(f"""
    v_lshlrev_b32 v{V_L16}, 4, {L}
    v_and_b32 v21, 15, {L}
    s_lshl_b32 s83, s81, 14
    v_lshlrev_b32 v22, 7, v21
    v_lshrrev_b32 v24, 1, v21
    v_xor_b32 v24, v24, v23
    v_lshl_add_u32 v22, v24, 4, v22
    v_add_u32 v{V_RX[0]}, s83, v22
    v_xor_b32 v{V_RX[1]}, 64, v{V_RX[0]}
    v_bfe_u32 v21, {L}, 2, 2
    v_lshl_add_u32 v22, v23, 3, v21
    v_and_b32 v24, 3, {L}
    v_lshlrev_b32 v24, 3, v24
    v_lshl_add_u32 v{V_RKW}, v22, 5, v24
    s_lshl_b32 s83, s81, 11
    s_add_u32 s83, s83, {LDS_KW}
    v_add_u32 v{V_RKW}, s83, v{V_RKW}
    v_lshl_add_u32 v22, v22, 8, v24
    v_add_u32 v22, {LDS_W}, v22
    v_and_b32 v25, 1, v23
    v_lshl_or_b32 v1, v25, 2, v21
    s_lshl_b32 s82, s80, 2
    """)
    for j in range(4):
        pc(f"s_add_u32 s83, s82, {j}")
        pc(f"v_xor_b32 v{V_T}, s83, v1")
        pc(f"v_lshl_add_u32 v{V_RW+j}, v{V_T}, 5, v22")
    pc(f"""
    v_add_u32 v{V_R7}, 16384, v{V_R3}
    v_lshl_add_u32 v22, v23, 2, v21
    v_lshl_add_u32 v22, v22, 6, v24
    v_lshl_add_u32 v22, v25, 5, v22
    v_add_u32 v22, {LDS_QS}, v22
    v_xor_b32 v1, 32, v22
    s_cmp_eq_u32 s80, 1
    s_cselect_b64 vcc, -1, 0
    s_movk_i32 s{S_TOG}, 2048
    s_cselect_b32 s{S_TOG}, s{S_TOG}, 0x8000
    v_cndmask_b32 v{V_R3}, v{V_R3}, v22, vcc
    v_cndmask_b32 v{V_R7}, v{V_R7}, v1, vcc
    """)
    p = Asm()
    p(f"""
    v_lshrrev_b32 v1, 3, {L}
    v_lshlrev_b32 v1, 11, v1
    v_bfe_u32 v25, {L}, 1, 2
    v_xor_b32 v25, v25, v23
    v_lshl_add_u32 v1, v25, 5, v1
    v_and_b32 v25, 1, {L}
    v_lshl_add_u32 v{V_DT}, v25, 4, v1
    v_lshl_add_u32 v1, v23, 2, v21
    v_bfe_u32 v25, v1, 1, 2
    v_xor_b32 v25, s{S_W}, v25
    v_lshlrev_b32 v1, 7, v1
    v_lshl_add_u32 v1, v25, 5, v1
    v_add_u32 v1, v1, v24
    v_add_u32 v{V_RT}, {LDS_T}, v1
    s_lshr_b32 s82, s2, 4
    s_and_b32 s83, s2, 15
    s_mul_i32 s{S_TSRC}, s82, {224*2048}
    s_lshl_b32 s90, s83, 7
    s_add_u32 s{S_TSRC}, s{S_TSRC}, s90
    s_lshl_b32 s{S_TSRC2}, s82, 17
    s_add_u32 s{S_TSRC2}, s{S_TSRC2}, s90
    s_mul_i32 s90, s80, {112*2048}
    s_add_u32 s{S_TSRCS}, s{S_TSRC}, s90
    s_lshl_b32 s90, s81, 13
    s_add_u32 s{S_TSRCS}, s{S_TSRCS}, s90
    s_add_u32 s{S_TSRCS}, s{S_TSRCS}, {96*2048}
    s_lshl_b32 s90, s{S_W}, 14
    s_add_u32 s{S_TSRC}, s{S_TSRC}, s90
    s_lshl_b32 s90, s80, 15
    s_add_u32 s{S_TSRC2}, s{S_TSRC2}, s90
    s_lshl_b32 s90, s81, 14
    s_add_u32 s{S_TSRC2}, s{S_TSRC2}, s90
    s_lshr_b32 s90, s83, 1
    s_mul_i32 s90, s90, {144*8192}
    s_and_b32 s83, s83, 1
    s_lshl_b32 s83, s83, 12
    s_add_u32 s90, s90, s83
    s_lshl_b32 s83, s{S_W}, 10
    s_add_u32 s90, s90, s83
    s_add_u32 s90, s90, {WS_WT:#x}
    s_mul_i32 s{S_TDST}, s82, {7*8192}
    s_add_u32 s{S_TDST}, s{S_TDST}, s90
    s_lshl_b32 s{S_TDST2}, s82, 14
    s_add_u32 s{S_TDST2}, s{S_TDST2}, s90
    s_add_u32 s{S_TDST2}, s{S_TDST2}, {112*8192}
    s_lshl_b32 s82, s2, 3
    s_lshl_b32 s83, s{S_W}, 1
    s_add_u32 s82, s82, s83
    s_lshl_b32 s{S_GROW}, s82, 11
    v_lshrrev_b32 v1, 5, {L}
    v_add_u32 v{V_GROW}, s82, v1
    v_lshlrev_b32 v{V_GROW}, 3, v{V_GROW}
    v_add_u32 v{V_GROW}, {WS_G:#x}, v{V_GROW}
    s_lshl_b32 s82, s{S_MT}, 2
    s_add_u32 s82, s82, s{S_W}
    s_lshl_b32 s82, s82, 5
    s_add_u32 s82, s82, s{S_NT}
    s_lshl_b32 s82, s82, 7
    s_add_u32 s{S_FLG}, s82, {WS_FLAG:#x}
    """)
    ps = Asm() if tlb else p
    ps(f"""
    s_and_b32 s82, s{S_NT}, 2
    s_cmp_eq_u32 s82, 0
    s_cselect_b32 s{S_KV}, s60, {'s60' if gdma else 's62'}
    s_cselect_b32 s{S_KV+1}, s61, {'s61' if gdma else 's63'}
    s_and_b32 s{S_KV+1}, s{S_KV+1}, 0xffff
    s_mov_b32 s{S_KV+2}, 65536
    s_mov_b32 s{S_KV+3}, 0x00020000
    """)
    srd(ps, S_WS, 86, WS_SIZE)
    srd(ps, S_GW, 70, 2048)
    srd(ps, S_WD, 68, 3584*1024*2)
    srd(ps, S_WO, 74, 1024*1024*2)
    srd(ps, S_DBG, 98, 256)
    p(f"""
    v_lshrrev_b32 v21, 1, {L}
    v_lshlrev_b32 v21, 6, v21
    v_and_b32 v22, 1, {L}
    v_lshl_add_u32 v21, v22, 4, v21
    s_and_b32 s82, s{S_NT}, 1
    s_lshl_b32 s82, s82, 5
    s_lshl_b32 s83, s{S_W}, 11
    s_add_u32 s82, s82, s83
    v_add_u32 v{V_DK}, s82, v21
    s_lshl_b32 s82, s{S_MT}, 8
    s_lshr_b32 s83, s{S_NT}, 2
    s_lshl_b32 s83, s83, 5
    s_add_u32 s82, s82, s83
    s_lshl_b32 s83, s80, 4
    s_add_u32 s82, s82, s83
    s_lshl_b32 s82, s82, 11
    s_lshl_b32 s83, s81, 7
    s_add_u32 s82, s82, s83
    v_and_b32 v21, 15, {L}
    v_lshlrev_b32 v22, 11, v21
    v_lshl_add_u32 v22, v23, 4, v22
    v_add_u32 v{V_KX}, s82, v22
    """)
    pt = Asm()
    plain_addr = f"""s_lshl_b32 s82, s{S_MT}, 3
        v_bfe_u32 v24, {L}, 2, 3
        v_add_u32 v24, s82, v24
        v_lshlrev_b32 v21, 11, v24
        v_mul_lo_u32 v24, v24, s84
        v_and_b32 v1, 3, {L}
        v_lshlrev_b32 v1, 7, v1
        v_min_u32 v1, 220, v1
        v_add3_u32 v24, v24, v1, s85
        s_lshl_b32 s82, s{S_NT}, 6
        v_add_u32 v21, s82, v21"""
    lead_addr = f"""s_mov_b32 s{S_TSTEP}, {OOB:#x}
        s_and_b32 s82, s{S_NT}, 3
        s_lshl_b32 s82, s82, 4
        v_lshrrev_b32 v24, 3, {L}
        v_add_u32 v24, s82, v24
        v_mul_lo_u32 v24, v24, s84
        v_and_b32 v1, 7, {L}
        v_min_u32 v1, 6, v1
        v_lshl_add_u32 v24, v1, 7, v24
        s_lshr_b32 s83, s{S_NT}, 2
        s_mul_i32 s90, s83, 896
        v_add_u32 v24, s90, v24
        v_bfe_u32 v21, {L}, 1, 4
        v_add_u32 v21, s82, v21
        v_lshlrev_b32 v21, 11, v21
        v_and_b32 v1, 1, {L}
        v_lshl_add_u32 v21, v1, 7, v21
        s_lshl_b32 s83, s83, 8
        v_add_u32 v21, s83, v21
        s_lshl_b32 s{S_LMASK}, 0x10101, s{S_MT}
        s_cmp_eq_u32 s{S_W}, 0
        s_cselect_b32 s{S_LMASK}, {xmask:#x}, s{S_LMASK}
        s_add_u32 s82, s{S_W}, 1
        s_and_b32 s82, s82, 2
        s_cselect_b32 s{S_T2D}, {8*7168}, s{S_TSTEP}"""
    if touch:
        (pt if tpro else p)(f"""
        s_and_b32 s82, s{S_NT}, 3
        s_lshl_b32 s82, s82, 6
        s_lshl_b32 s83, s{S_MT}, 8
        s_add_u32 s82, s82, s83
        v_add_u32 v25, s82, {L}
        v_lshlrev_b32 v25, 11, v25
        {lead_addr if lead else plain_addr}
        s_mov_b32 s{S_TSTEP}, {64*7168}
        s_cmp_eq_u32 s{S_W}, 0
        s_cselect_b64 vcc, -1, 0
        s_cselect_b32 s{S_TSRD}, s{S_X}, s{S_G}
        s_cselect_b32 s{S_TSRD+1}, s{S_X+1}, s{S_G+1}
        s_cselect_b32 s{S_TSRD+2}, s{S_X+2}, s{S_G+2}
        s_cselect_b32 s{S_TSTEP}, 128, s{S_TSTEP}
        v_cndmask_b32 v{V_T}, v24, v25, vcc
        s_cmp_eq_u32 s{S_W}, 2
        s_cselect_b32 s{S_TSRD}, s{S_U}, s{S_TSRD}
        s_cselect_b32 s{S_TSRD+1}, s{S_U+1}, s{S_TSRD+1}
        s_cmp_eq_u32 s{S_W}, 3
        s_cselect_b64 vcc, -1, 0
        s_cselect_b32 s{S_TSRD}, s{S_WQ}, s{S_TSRD}
        s_cselect_b32 s{S_TSRD+1}, s{S_WQ+1}, s{S_TSRD+1}
        s_cselect_b32 s{S_TSRD+2}, s{S_WQ+2}, s{S_TSRD+2}
        s_cselect_b32 s{S_TSTEP}, 0x20000, s{S_TSTEP}
        v_cndmask_b32 v{V_T}, v{V_T}, v21, vcc
        s_mov_b32 s{S_TSRD+3}, 0x00020000
        s_mul_i32 s{S_TOFF}, s{S_TSTEP}, {3 if lead else 2 if tpro else (touch + 1 if touch >= 2 else touch + 2)}
        """)
    late = []
    for l in [l.strip() for l in p.lines]:
        if late and l.startswith(("s_cselect", "s_addc", "v_cndmask", "s_movk_i32 s50")): late[-1].append(l)
        else: late.append([l])
    late += [[f"v_and_b32 v1, 31, {L}"], ["v_lshlrev_b32 v1, 7, v1"], ["s_lshr_b32 s82, s2, 3"], ["s_and_b32 s82, s82, 15"], ["s_lshl_b32 s82, s82, 12"]]
    d0 = dma_items(0, 0, 17)
    for grp in d0[:tlbpos]: pro.items.extend(grp)
    if tlb:
        for l in ps.lines: pro.ins(l.strip())
        pro.raw(f"""
        s_mov_b32 s80, s96
        s_and_b32 s81, s97, 0xffff
        s_mov_b32 s82, {2048*1024*2:#x}
        s_mov_b32 s83, 0x00020000
        v_lshlrev_b32 v1, {tlb}, {L}
        v_min_u32 v1, 0x7f000000, v1
        """)
        for sr_ in (S_G, S_U, S_WS, S_WD, S_WO, S_KV, S_GW, S_DBG, 80, S_X):
            pro.ins(f"buffer_load_dword a{A_DUM}, v1, s[{sr_}:{sr_+3}], 0 offen")
        pro.raw(f"s_lshr_b32 s81, s{S_W}, 1\ns_and_b32 s80, s{S_W}, 1")
    for grp in d0[tlbpos:]: pro.items.extend(grp)
    for l in pt.lines: pro.ins(l.strip())
    tch = lambda: [I(f"buffer_load_dword a{A_DUM}, v{V_T}, s[{S_TSRD}:{S_TSRD+3}], s{S_TOFF} offen", vm=("touch", 0)), I(f"s_add_u32 s{S_TOFF}, s{S_TOFF}, s{S_TSTEP}")]
    if tpos == 0:
        for _ in range(tpro): pro.items.extend(tch())
    for l in pc.lines: pro.ins(l.strip().replace(f"v{V_T},", "v22x,").replace("v22x", "v19"))
    for grp in dma_items(1, 0, p1): pro.items.extend(grp)
    if tpos == 1:
        for _ in range(tpro): pro.items.extend(tch())
    one_time = [I(f"buffer_load_dword a{A_DUM}, v1, s[{S_KV}:{S_KV+3}], s82 offen"), I(f"buffer_load_dword a{A_DUM}, v1, s[{S_GW}:{S_GW+3}], 0 offen")]
    touch_ins = lambda: I(f"buffer_load_dword a{A_DUM}, v{V_T}, s[{S_TSRD}:{S_TSRD+3}], s{S_TOFF} offen", vm=("touch", 0))
    touch_adv = f"s_add_u32 s{S_TOFF}, s{S_TOFF}, s{S_TSTEP}"
    pro2 = Trace()
    pro2.wait(vm=[("st", 0)])
    pro2.ins("s_barrier")
    pro2.items.extend(reads(0, 0))

    gfast, gslow = _g_ops()
    gslow += ["v_max_f32 v25, 0x2b800000, v25", "v_rcp_f32 v23, v25", "v_mul_f32 v24, v24, v23"]
    GSPLIT = 70
    c_q = struct.unpack("<I", struct.pack("<f", math.log2(math.e) / math.sqrt(32.0)))[0]
    kvfin = [f"v_accvgpr_read_b32 v{21+r}, a{KVA+r}" for r in range(4)]
    for r in range(4): kvfin += [f"v_accvgpr_read_b32 v1, a{KVW+r}", f"v_add_f32 v{21+r}, v{21+r}, v1", f"v_mul_f32 v{21+r}, s84, v{21+r}"]
    kvfin += ["v_cvt_pk_bf16_f32 v22, v21, v22", "v_cvt_pk_bf16_f32 v23, v23, v24",
              f"v_and_b32 v1, 15, {L}", "v_lshlrev_b32 v1, 4, v1", f"v_bfe_u32 v21, {L}, 4, 1", "v_lshl_add_u32 v1, v21, 9, v1",
              f"v_lshrrev_b32 v21, 5, {L}", "v_lshl_add_u32 v1, v21, 3, v1",
              f"buffer_store_dwordx2 v[22:23], v1, s[{S_WS}:{S_WS+3}], s82 offen offset:2048 sc1",
              f"v_bfe_u32 v24, {L}, 3, 1", "v_lshlrev_b32 v24, 10, v24", f"v_bfe_u32 v21, {L}, 2, 1", "v_lshl_add_u32 v24, v21, 9, v24",
              f"v_lshrrev_b32 v21, 4, {L}", "v_lshl_add_u32 v24, v21, 6, v24", f"v_and_b32 v21, 3, {L}", "v_lshl_add_u32 v24, v21, 1, v24",
              f"buffer_store_short v22, v24, s[{S_WS}:{S_WS+3}], s83 offen sc1",
              f"buffer_store_short_d16_hi v22, v24, s[{S_WS}:{S_WS+3}], s83 offen offset:16 sc1",
              f"buffer_store_short v23, v24, s[{S_WS}:{S_WS+3}], s83 offen offset:32 sc1",
              f"buffer_store_short_d16_hi v23, v24, s[{S_WS}:{S_WS+3}], s83 offen offset:48 sc1"]
    kvsal = f"""s_lshl_b32 s82, s{S_MT}, 3
    s_lshr_b32 s83, s{S_NT}, 2
    s_add_u32 s82, s82, s83
    s_lshl_b32 s82, s82, 12
    s_add_u32 s82, s82, {WS_KV:#x}
    s_and_b32 s85, s{S_NT}, 1
    s_lshl_b32 s83, s85, 3
    s_add_u32 s83, s83, s82
    s_lshl_b32 s85, s85, 8
    s_add_u32 s82, s82, s85
    s_lshl_b32 s85, s{S_W}, 10
    s_add_u32 s82, s82, s85
    s_lshl_b32 s85, s{S_W}, 8
    s_add_u32 s83, s83, s85
    s_and_b32 s85, s{S_NT}, 2
    s_cmp_eq_u32 s85, 0
    s_cselect_b32 s84, {c_q:#x}, 1.0
    s_cselect_b32 s82, {OOB:#x}, s82
    s_cselect_b32 s83, s83, {OOB:#x}
    s_cmp_ge_u32 s{S_W}, 2
    s_cselect_b32 s82, {OOB:#x}, s82
    s_cselect_b32 s83, {OOB:#x}, s83""".split("\n")
    kvsal = [x.strip() for x in kvsal]
    kvsal = kvsal[:-7] + ["\n".join(kvsal[-7:-3]), "\n".join(kvsal[-3:])]
    segs = []
    grest = []
    def tstore(q):
        so = S_TDST if q < 7 else S_TDST2
        return [I(f"buffer_store_dwordx4 {ar(TREG[q] if tdefer else A_T,4)}, v{p2.V_L16 if tdefer else V_L16}, s[{S_WS}:{S_WS+3}], s{so} offen sc1", vm=("ts", q)), I(f"s_add_u32 s{so}, s{so}, 8192")]
    for s in range(NST - 1):
        tr = Trace()
        gaps = [[] for _ in range(66)]
        rl = reads(s, 1)
        u = s - KVD
        if 1 <= u <= 8:
            for e in range(2):
                for h in range(2):
                    rl.append(I(f"ds_read_b64_tr_b16 {ar(KVW+4*e+2*h,2)}, v{V_RKW} offset:{(s%2)*8192 + e*1024 + h*128}", lg=("kvf", s)))
        if u == 9:
            gaps[1].append(I(f"v_add_u32 v21, {LDS_KW + 8192*(s%2)}, v{V_L16}"))
            gaps[3].append(I(f"s_lshl_b32 s82, s{S_W}, 10")); gaps[5].append(I("v_add_u32 v22, s82, v21"))
            gaps[7].append(I("s_xor_b32 s82, s82, 2048")); gaps[9].append(I("v_add_u32 v21, s82, v21"))
            rl.append(I(f"ds_write_b128 v22, {ar(KVA,4)}", lg=("kvf", s)))
        for k, it in enumerate(rl): gaps[2*k].append(it)
        gaps[57].append(I(f"v_xor_b32 v{V_R3}, s{S_TOG}, v{V_R3}")); gaps[59].append(I(f"v_xor_b32 v{V_R7}, s{S_TOG}, v{V_R7}"))
        g, adv = dma_group(s + 1, ntw)
        lo = p1 if s == 0 else nhead
        G = 11 if u == 9 else 1
        for k in range(lo, len(g)):
            pre, it = g[k]
            if pre: gaps[G - 1].append(I(pre))
            gaps[G].append(it)
            for x in adv.get(k, []): gaps[G + 1].append(I(x))
            G += tsp0 if s else 4
        G = max(G - (tsp0 if s else 4) + 2, 3)
        if touch and (s >= 1 or tpro) and s + touch + 1 < NST and not (tpro and s + touch + 1 < 2 + tpro):
            if lead:
                for r_ in range(touch if s == 1 else 1):
                    gaps[G - 1].append(I(f"s_bitcmp1_b32 s{S_LMASK}, {s + r_ + lphase}\ns_cselect_b32 s60, s{S_TOFF}, {OOB:#x}"))
                    gaps[G].append(I(f"buffer_load_dword a{A_DUM}, v{V_T}, s[{S_TSRD}:{S_TSRD+3}], s60 offen"))
                    gaps[G + 1].append(I(f"s_add_u32 s60, s60, s{S_T2D}")); gaps[G + 1].append(I(touch_adv))
                    gaps[G + 2].append(I(f"buffer_load_dword a{A_DUM}, v{V_T}, s[{S_TSRD}:{S_TSRD+3}], s60 offen")); G += 4
            else:
              for _ in range(2 if (s == 1 and touch >= 2 and not tpro) else 1):
                gaps[G].append(touch_ins()); gaps[G + 1].append(I(touch_adv)); G += 2
        if tt0 and tt0 <= s < tt0 + 4:
            if s == tt0:
                pre_ = f"""v_lshrrev_b32 v21, 3, {L}
                v_min_u32 v21, 5, v21
                v_lshlrev_b32 v22, 16, v21
                v_cmp_lt_u32 vcc, 2, v21
                v_and_b32 v21, 7, {L}
                v_lshl_add_u32 v22, v21, 11, v22
                v_add_u32 v23, {16*2048}, v22
                v_cndmask_b32 v22, v22, v23, vcc
                v_bfe_u32 v23, {L}, 2, 1
                v_lshl_add_u32 v23, v23, 2, v21
                v_lshlrev_b32 v23, 11, v23
                v_and_b32 v24, 0x1ffff, v22
                s_lshr_b32 s61, s{S_MT}, 1""".split("\n")
                for k_, x in enumerate(pre_): gaps[2*k_ + 1].append(I(x.strip()))
                G = max(G, 28)
            gaps[G - 1].append(I(f"s_cmp_eq_u32 s61, {s - tt0}\ns_cselect_b32 s62, s{S_TSRC}, {OOB:#x}\ns_cselect_b32 s63, s{S_TSRCS}, {OOB:#x}\ns_cselect_b32 s60, s{S_TSRC2}, {OOB:#x}"))
            gaps[G].append(I(f"buffer_load_dword a{A_DUM}, v22, s[{S_WD}:{S_WD+3}], s62 offen")); G += 2
            gaps[G].append(I(f"buffer_load_dword a{A_DUM}, v23, s[{S_WD}:{S_WD+3}], s63 offen")); G += 2
            gaps[G].append(I(f"buffer_load_dword a{A_DUM}, v24, s[{S_WO}:{S_WO+3}], s60 offen")); G += 2
        if 0 <= u <= 7:
            for e in range(2):
                gaps[G].append(I(f"buffer_load_dwordx4 {ar(A_KX + 8*(u%2) + 4*e,4)}, v{V_KX}, s[{S_X}:{S_X+3}], 0 offen offset:{u*256 + e*64}", vm=("kx", u))); G += 2
        q = s - tq0
        if 0 <= q < 9:
            fl = " nt" if ntt else ""
            gaps[G - 1].append(I(f"s_add_u32 m0, s{S_M0T}, {(q%3)*4096}"))
            if q == 6:
                gaps[G - 2].append(I(f"v_lshrrev_b32 v{V_KX}, 5, {L}")); gaps[G - 1].append(I(f"v_lshl_add_u32 v{V_KX}, v{V_KX}, 13, v{V_DT}"))
                gaps[G].append(I(f"buffer_load_dwordx4 v{V_KX}, s[{S_WD}:{S_WD+3}], s{S_TSRCS} offen{fl} lds", vm=("t", q)))
            else:
                srdn, so = (S_WD, S_TSRC) if q < 7 else (S_WO, S_TSRC2)
                gaps[G].append(I(f"buffer_load_dwordx4 v{V_DT}, s[{srdn}:{srdn+3}], s{so} offen{fl} lds", vm=("t", q)))
                gaps[G + 1].append(I(f"s_add_u32 s{so}, s{so}, {48*2048 if q == 2 else 0x10000}"))
            G += 2
        q = s - tq0 - 2
        if 0 <= q < 9 and not tdefer:
            x, y = tstore(q); gaps[G].append(x); gaps[G + 1].append(y); G += 2
        if s == ot:
            for x in one_time: gaps[G].append(x); G += 2
        if s == 2:
            gaps[G - 1].append(I(f"v_mov_b32 v21, s{S_TAG}"))
            gaps[G].append(I(f"s_or_b32 s83, s2, s{S_W}\ns_cselect_b32 s83, {OOB:#x}, 0")); G += 2
            gaps[G].extend([I("s_mov_b64 exec, 1"), I(f"buffer_store_dword v21, off, s[{S_DBG}:{S_DBG+3}], s83 sc1"), I("s_mov_b64 exec, -1")]); G += 2
        if s == (11 if gsm else 6):
            gaps[G].append(I(f"buffer_load_dword a{A_TAG}, off, s[{S_DBG}:{S_DBG+3}], 0 sc1", vm=("zp", 0))); G += 2
        if s == esig + 1:
            gaps[G - 2].append(I(f"s_lshl_b32 s82, s{S_MT}, 5")); gaps[G - 1].append(I(f"s_add_u32 s82, s82, s{S_NT}\ns_lshl_b32 s82, s82, 7")); gaps[G].append(I(f"s_add_u32 s82, s82, {WS_FLAG + 0x28000:#x}"))
            gaps[G + 1].append(I(f"s_cmp_eq_u32 s{S_W}, 0\ns_cselect_b32 s82, s82, {OOB:#x}")); G += 2
            gaps[G].extend([I("s_mov_b64 exec, 1"), I(f"buffer_store_dword a{A_TAG}, off, s[{S_WS}:{S_WS+3}], s82 sc1"), I("s_mov_b64 exec, -1")]); G += 2
        if gsm and s == 10:
            gaps[G].extend([I("s_mov_b32 exec_lo, 1\ns_mov_b32 exec_hi, 1"), I(f"buffer_store_dwordx2 v[24:25], v{V_GROW}, s[{S_WS}:{S_WS+3}], 0 offen sc1"), I("s_mov_b64 exec, -1")]); G += 2
        kvstart = G
        if s == gl:
            for q_ in range(4):
                gaps[G].append(I(f"buffer_load_dwordx4 {ar(A_GX+4*q_,4)}, v{V_L16}, s[{S_X}:{S_X+3}], s{S_GROW} offen offset:{1024*q_}", vm=("g", 0))); G += 2
            for q_ in range(2):
                gaps[G].append(I(f"buffer_load_dwordx4 {ar(A_GW+4*q_,4)}, v{V_L16}, s[{S_GW}:{S_GW+3}], 0 offen offset:{1024*q_}", vm=("g", 0))); G += 2
        assert G < 64, (s, G)
        tr.wait(lg=[("fr", s, 0)] + ([("tf", q)] if 0 <= q < 9 else []) + ([("kvp", 0)] if u == 10 else []))
        vq = []
        if (gl + 2 <= s <= 9) if gsm else s in (gs + 2, gs + 3): vq = gfast
        if u == 10: vq = list(kvfin)
        k = 0
        for j in range(8):
            for i in range(8):
                tr.ins(mfma(0, j, i, first=(s == 0)))
                tr.items.extend(gaps[k])
                cap = vcap(gaps[k])
                if gsm and vq is gfast: cap = 0 if gaps[k] else 1
                if s == 0:
                    for _ in range(2):
                        if late and cap > 0:
                            for l in late.pop(0): tr.ins(l)
                            cap -= 1
                while vq and cap > 0 and not (u == 10 and k < kvstart - 8):
                    if vq[0].startswith("buffer_"):
                        if cap < 2: break
                        tr.ins(vq.pop(0), vm=("kvst", 0)); cap -= 2
                    else:
                        tr.ins(vq.pop(0)); cap -= 1
                k += 1
        if (s >= 9) if gsm else s != gs + 2: assert not vq
        need = [("st", s + 1)]
        if 0 <= s - tq0 - 1 < 9: need.append(("t", s - tq0 - 1))
        if s == (gl + 1 if gsm else gs + 1): need.append(("g", 0))
        if 1 <= u <= 8: need.append(("kx", u - 1))
        if s == (12 if gsm else 7): need.append(("zp", 0))
        if s == esig: need.append(("kvst", 0))
        if fflag and s == 14: need.append(("ts", 8))
        if pads and s == chain_at: tr.ins("@CHAIN1")
        tr.wait(vm=need, lg=[("fr", s, 1)] + ([("kvf", s)] if 1 <= u <= 9 else []))
        tr.ins("s_barrier")
        segs.append(tr)
        tr = Trace()
        gaps = [[] for _ in range(68)]
        for k, it in enumerate(reads(s + 1, 0)): gaps[2*k + 1].append(it)
        q = s - tq0 - 1
        if 0 <= q < 9:
            for h in range(2):
                gaps[49 + 2*h].append(I(f"ds_read_b64_tr_b16 {ar((TREG[q] if tdefer else A_T)+2*h,2)}, v{V_RT} offset:{(q%3)*4096 + h*2048}", lg=("tf", q)))
        if u == 9:
            gaps[53].append(I(f"ds_read_b128 {ar(KVW,4)}, v21", lg=("kvp", 0)))
            for k, x in enumerate(kvsal): gaps[2*k + 3 if 2*k + 3 < 48 else 55].append(I(x.strip()))
        if s + 2 < NST:
            g, adv = dma_group(s + 2, ntw)
            hg = [hstart + 2*round(k*(62 - hstart)/(2*nhead)) for k in range(nhead)]
            for k in range(nhead):
                pre, it = g[k]
                if pre:
                    if hg[k]: gaps[hg[k] - 1].insert(0, I(pre))
                    else: tr.ins(pre)
                gaps[hg[k]].append(it)
                for x in adv.get(k, []): gaps[hg[k] + 2].append(I(x))
        if s == (12 if gsm else 7):
            gaps[54].append(I(f"v_accvgpr_read_b32 v1, a{A_TAG}"))
            gaps[56].append(I(f"v_cmp_eq_u32 vcc, 0, v1")); gaps[58].append(I("s_cbranch_vccnz KM_ZSPIN\nKM_ZBACK:"))
            gaps[60].append(I(f"v_accvgpr_write_b32 a{A_TAG}, v1")); gaps[62].append(I(f"v_readfirstlane_b32 s{S_TAG}, v1"))
        if retouch and s == 13:
            gaps[30].append(I("s_getpc_b64 s[76:77]\nKM_PC2:\ns_add_u32 s76, s76, KM_EBACK-KM_PC2\ns_addc_u32 s77, s77, 0"))
            gaps[32].append(I("s_and_b32 s77, s77, 0xffff")); gaps[34].append(I("s_mov_b32 s78, KM_FALLBACK2-KM_EBACK"))
            gaps[36].append(I("s_mov_b32 s79, 0x00020000")); gaps[38].append(I("s_lshr_b32 s61, s2, 3"))
            gaps[40].append(I(f"s_lshl_b32 s61, s61, 2\ns_add_u32 s61, s61, s{S_W}")); gaps[42].append(I("s_lshl_b32 s61, s61, 8"))
            gaps[44].append(I(f"v_and_b32 v1, 1, {L}")); gaps[46].append(I("v_lshlrev_b32 v1, 7, v1"))
            gaps[52].append(I(f"buffer_load_dword a{A_DUM}, v1, s[76:79], s61 offen"))
        if s == 14:
            gaps[0].append(I(f"v_lshlrev_b32 v{V_T}, 7, {L}"))
            gaps[2].append(I(f"s_mov_b32 s{S_EF}, {WS_FLAG + 0x28000:#x}"))
            gaps[epos].append(I(f"buffer_load_dword v{V_KX}, v{V_T}, s[{S_WS}:{S_WS+3}], s{S_EF} offen sc1", vm=("ep", 0)))
            if pads:
                gaps[50].append(I("s_getpc_b64 s[32:33]\nKM_PC2:\ns_add_u32 s32, s32, KM_NORM-0x4000-KM_PC2\ns_addc_u32 s33, s33, 0"))
                gaps[52].append(I("s_and_b32 s33, s33, 0xffff")); gaps[53].append(I("s_mov_b32 s34, KM_END-KM_NORM+0x4000"))
                gaps[54].append(I("s_mov_b32 s35, 0x00020000")); gaps[55].append(I(f"s_lshl_b32 s82, s{S_W}, 13"))
                gaps[56].append(I(f"buffer_load_dword a{A_DUM}, v{V_T}, s[32:35], s82 offen"))
        vq = []; slow = []; slow_from = None
        if (gl + 1 <= s <= 8) if gsm else s in (gs + 1, gs + 2): vq = gfast
        if s == (9 if gsm else gs + 3): slow = list(gslow)
        ml = [mfma(1, j, i) for j in range(8) for i in range(8)]
        if 1 <= u <= 8:
            for e in range(2):
                ml.insert(30 + 20*e, f"v_mfma_f32_16x16x32_bf16 {ar(KVA,4)}, {ar(A_KX + 8*((u-1)%2) + 4*e,4)}, {ar(KVW+4*e,4)}, {'0' if (u == 1 and e == 0) else ar(KVA,4)}")
        for k, m in enumerate(ml):
            tr.ins(m)
            tr.items.extend(gaps[k])
            for _ in range((0 if gaps[k] else 1) if (gsm and vq) else vcap(gaps[k])):
                if vq: tr.ins(vq.pop(0))
                elif s == 0 and late:
                    for l in late.pop(0): tr.ins(l)
            if slow and not vq:
                if slow_from is None: slow_from = k + 2
                if k >= slow_from and (k - slow_from) % 2 == 0: tr.ins(slow.pop(0))
        for k in range(len(ml), 68): assert not gaps[k], (s, k)
        assert not slow and not late
        segs.append(tr)

    P = p2
    ec = Trace()
    ec.wait(vm=[("ep", 0)])
    ec.raw(f"""
    v_cmp_ne_u32 vcc, s{S_TAG}, v{V_KX}
    s_and_b32 s80, s2, 7
    s_lshr_b32 s81, s80, 1
    s_lshl_b32 s{P.S_MT}, s{S_MT}, 2
    s_cbranch_vccnz KM_ESPIN
    KM_EBACK:
    s_add_u32 s{P.S_MT}, s{P.S_MT}, s81
    s_lshl_b32 s{P.S_M0KV}, s{S_W}, 13
    s_add_u32 s82, s{P.S_M0KV}, {WS_KV:#x}
    s_add_u32 s{P.S_KVB}, s86, s82
    s_addc_u32 s{P.S_KVB+1}, s87, 0
    v_add_u32 v{V_DK}, 4096, v{V_L16}
    """)
    su2 = f"""
    s_and_b32 s80, s80, 1
    s_lshl_b32 s80, s80, 2
    s_and_b32 s90, s{S_NT}, 3
    s_add_u32 s{P.S_NT}, s80, s90
    s_lshr_b32 s90, s{P.S_MT}, 1
    s_mul_i32 s90, s90, 112
    s_mul_i32 s91, s{S_W}, 28
    s_add_u32 s90, s90, s91
    s_lshl_b32 s90, s90, 13
    s_and_b32 s42, s{P.S_MT}, 1
    s_lshl_b32 s42, s42, 12
    s_add_u32 s90, s90, s42
    s_add_u32 s58, s86, s90\ns_addc_u32 s59, s87, 0
    s_add_u32 s60, s58, 0x2000\ns_addc_u32 s61, s59, 0
    s_add_u32 s62, s58, 0x4000\ns_addc_u32 s63, s59, 0
    s_add_u32 s70, s58, 0x6000\ns_addc_u32 s71, s59, 0
    s_mov_b64 s[{P.S_HB}:{P.S_HB+1}], {'s[70:71]' if nhd else 's[62:63]'}
    s_mul_i32 s90, s{P.S_NT}, 144
    s_add_u32 s91, s91, s90
    s_lshl_b32 s91, s91, 13
    s_add_u32 s91, s91, {WS_WT:#x}
    s_add_u32 s64, s86, s91\ns_addc_u32 s65, s87, 0
    s_add_u32 s68, s64, 0x2000\ns_addc_u32 s69, s65, 0
    s_mov_b64 s[{P.S_WB}:{P.S_WB+1}], s[68:69]
    s_add_u32 s{P.S_XB}, s64, {P.SF0*8192}\ns_addc_u32 s{P.S_XB+1}, s65, 0
    s_lshl_b32 s91, s{S_W}, 3
    s_add_u32 s90, s90, s91
    s_lshl_b32 s90, s90, 13
    s_add_u32 s90, s90, {WS_WT + 112*8192:#x}
    s_add_u32 s{P.S_WOB}, s86, s90\ns_addc_u32 s{P.S_WOB+1}, s87, 0
    s_mul_i32 s{P.S_M0SP}, s{S_W}, 24576
    s_add_u32 s{P.S_M0SP}, s{P.S_M0SP}, {P.LDS_SP}
    s_mov_b32 s{P.S_SPM}, s{P.S_M0SP}
    s_add_u32 s{P.S_M0C}, s{P.S_M0KV}, 0x8000
    s_mov_b32 s{P.S_CNT}, 6
    s_add_u32 s66, s{P.S_WOB}, {(P.SF0 + 3 - P.NDOWN)*8192}\ns_addc_u32 s67, s{P.S_WOB+1}, 0
    s_mov_b32 s{P.S_OUT}, s96
    s_and_b32 s{P.S_OUT+1}, s97, 0xffff
    s_mov_b32 s{P.S_OUT+2}, {2048*1024*2:#x}
    s_mov_b32 s{P.S_OUT+3}, 0x00020000
    s_mov_b32 s{P.S_OF}, s{S_FLG}
    s_lshl_b32 s90, s{P.S_MT}, 12
    s_add_u32 s{P.S_OP}, s90, {WS_FLAG:#x}
    s_lshl_b32 s90, s{S_W}, 13
    s_add_u32 s{P.S_HP}, s90, {WS_FLAG + 0x20000:#x}
    s_lshl_b32 s90, s2, 7
    s_add_u32 s90, s90, {WS_FLAG + 0x20000:#x}
    s_cmp_eq_u32 s{S_W}, 0\ns_cselect_b32 s{P.S_HF}, s90, {OOB:#x}
    """
    su2 = [x.strip() for x in su2.strip().split("\n    ")]

    def last_stage(wn):
        tr = Trace()
        s = NST - 1
        su = f"""
        s_lshr_b32 s81, s{S_W}, 1
        s_lshl_b32 s82, s{S_MT}, 1
        s_add_u32 s82, s82, s81
        s_mul_i32 s82, s82, 112
        s_lshr_b32 s83, s{S_NT}, 1
        s_mul_i32 s83, s83, 7
        s_add_u32 s82, s82, s83
        s_and_b32 s84, s{S_NT}, 1
        s_add_u32 s85, s82, 6
        s_lshl_b32 s85, s85, 13
        s_mul_i32 s83, s84, 3
        s_add_u32 s82, s82, s83
        s_add_u32 s82, s82, {2*wn}
        s_lshl_b32 s82, s82, 13
        s_add_u32 s83, s82, 8192
        """
        if wn:
            su += f"""
            s_lshl_b32 s84, s84, 9
            s_add_u32 s85, s85, s84
            v_and_b32 v21, 15, {L}
            v_lshlrev_b32 v21, 4, v21
            v_bfe_u32 v24, {L}, 4, 1
            v_lshl_add_u32 v22, v24, 9, v21
            v_lshl_add_u32 v21, v24, 10, v21
            v_lshrrev_b32 v24, 5, {L}
            v_lshl_add_u32 v22, v24, 10, v22
            v_lshl_add_u32 v21, v24, 8, v21
            s_lshl_b32 s81, s81, 13
            s_add_u32 s81, s81, {P.LDS_Q}
            v_add_u32 v22, s81, v22
            v_add_u32 v23, 4096, v21
            """
        setup = [l.strip() for l in su.strip().split("\n") if l.strip()] + su2
        ffn = lambda t, i: dict(kind="f", t=t, i=i, mf=[(2*t, i), (4 + 2*t, i), (2*t + 1, i), (5 + 2*t, i)])
        if wn == 0:
            halves = [[ffn(0, i) for i in range(8)], [ffn(1, i) for i in range(8)]]
        else:
            halves = [[dict(kind="q", i=i, mf=[(3, i), (7, i)]) for i in range(8)] +
                      [dict(kind="s", i=i, mf=[(2, i), (6, i), (2, i + 1), (6, i + 1)]) for i in range(0, 8, 2)],
                      [ffn(0, i) for i in range(8)]]
        for pc in halves[1][8 - ndef:]: pc["defer"] = True
        setup.append(f"s_mov_b32 s3, {'s82' if wn else 's83'}")
        pieces = halves[0] + halves[1]
        half = len(halves[0])
        jsets = [sorted(set(j for pc in hv for j, _ in pc["mf"])) for hv in halves]
        def piece_ops(pc, pk):
            o = []
            i = pc["i"]
            tmp = 12 + 4*(i % 2)
            def reg(j, i):
                p_, b = accn(j, i)
                if p_ == "v": return b
                for r in range(4): o.append(f"v_accvgpr_read_b32 v{tmp+r}, a{b+r}")
                return tmp
            r_ = [reg(j, i_) for j, i_ in pc["mf"]]
            if pc["kind"] == "q":
                g0_, g1_ = r_
            else:
                g0_, u0, g1_, u1 = r_
                for g_, u_ in ((g0_, u0), (g1_, u1)):
                    for r in range(4): o.append(f"v_max_f32 v{g_+r}, 0, v{g_+r}")
                    if pk:
                        o.append(f"v_pk_mul_f32 {vr(g_,2)}, {vr(g_,2)}, {vr(u_,2)}")
                        o.append(f"v_pk_mul_f32 {vr(g_+2,2)}, {vr(g_+2,2)}, {vr(u_+2,2)}")
                    else:
                        for r in range(4): o.append(f"v_mul_f32 v{g_+r}, v{g_+r}, v{u_+r}")
            dfr = pc.get("defer")
            d_ = 160 + 4*i if dfr else g0_
            o += [f"v_cvt_pk_bf16_f32 v{d_}, v{g0_}, v{g0_+1}", f"v_cvt_pk_bf16_f32 v{d_+1}, v{g0_+2}, v{g0_+3}",
                  f"v_cvt_pk_bf16_f32 v{d_+2}, v{g1_}, v{g1_+1}", f"v_cvt_pk_bf16_f32 v{d_+3}, v{g1_+2}, v{g1_+3}"]
            if dfr: return o
            if pc["kind"] == "q":
                o.append(f"ds_write_b128 v22, {vr(g0_,4)} offset:{(i//2)*2048 + (i%2)*256}")
            elif pc["kind"] == "s":
                o += ["s_nop 1", f"v_permlane16_swap_b32 v{g0_}, v{g0_+2}", f"v_permlane16_swap_b32 v{g0_+1}, v{g0_+3}",
                      f"buffer_store_dwordx4 {vr(g0_,4)}, {'v21' if i < 4 else 'v23'}, s[{S_WS}:{S_WS+3}], s85 offen offset:{(i%4)*1024} sc1"]
            else:
                o.append(f"buffer_store_dwordx4 {vr(g0_,4)}, {'v%d' % (V_L16 if i < 4 else V_DK)}, s[{S_WS}:{S_WS+3}], {'s82' if pc['t'] == 0 else 's83'} offen offset:{(i%4)*1024} sc1")
            return o
        rl = [xread(s, 1, i) for i in range(8)]
        for j in jsets[0]: rl += [wread(s, 1, j, 0), wread(s, 1, j, 1)]
        for x in rl: x["lg"] = ("frA", 0)
        for j in jsets[1]: rl += [wread(s, 1, j, 0), wread(s, 1, j, 1)]
        kv0 = []
        for part in range(2):
            cl = [P.kv_dma(0, part, j) for j in range(4)]
            for x in cl: x["text"] = x["text"].replace(f"v{P.V_L16},", f"v{V_L16},").replace(f"v{P.V_L16B},", f"v{V_DK},")
            kv0.append(cl)
        q = s - tq0 - 2
        tr.wait(lg=[("fr", s, 0)] + ([("tf", q)] if 0 <= q < 9 else []))
        first = []
        if fflag:
            first.append([I(f"s_lshl_b32 s82, s2, 7\ns_add_u32 s82, s82, {WS_FLAG + 0x30000:#x}\ns_cmp_eq_u32 s{S_W}, 0\ns_cselect_b32 s82, s82, {OOB:#x}")])
            first.append([I("s_mov_b64 exec, 1"), I(f"buffer_store_dword a{A_TAG}, off, s[{S_WS}:{S_WS+3}], s82 sc1"), I("s_mov_b64 exec, -1")])
        if gs + 4 == s and not gsm:
            first.append([I("s_mov_b32 exec_lo, 1\ns_mov_b32 exec_hi, 1"), I(f"buffer_store_dwordx2 v[24:25], v{V_GROW}, s[{S_WS}:{S_WS+3}], 0 offen sc1", vm=("hst", 0)), I("s_mov_b64 exec, -1")])
        if 0 <= q < 9 and not tdefer: first.append([tstore(q)[0]])
        for k, (j, i) in enumerate([(j, i) for j in jsets[0] for i in range(8)]):
            tr.ins(mfma(0, j, i))
            if first:
                tr.items.extend(first.pop(0)); continue
            if k in (26, 29): tr.ins(f"s_add_u32 m0, s{P.S_M0KV}, {4096 if k == 29 else 0}")
            elif k in (27, 30): tr.items.extend(kv0.pop(0))
            elif rl: tr.items.append(rl.pop(0))
            for _ in range(2):
                if setup: tr.ins(setup.pop(0))
        assert not rl
        tr.items.extend(adv64(P.S_KVB, 32768))
        for x in setup: tr.ins(x)
        tr.wait(lg=[("frA", 0)])
        ml = []
        for pi, pc in enumerate(pieces):
            if pi == half:
                ml.append((W(lg=[("fr", s, 1)]), None))
                ml += [(mfma(0, j, i), None) for j in jsets[1] for i in range(8)]
            for j, i in pc["mf"]: ml.append((mfma(1, j, i), pi))
        done_at = {}; cnt = 0; vq = []; nextp = 0
        def put(x):
            tr.ins(x, vm=("hst", 0) if x.startswith("buffer_") else None, lg=("qw", 0) if x.startswith("ds_") else None)
        for k, (m, pi) in enumerate(ml):
            if isinstance(m, dict):
                tr.items.append(m); continue
            tr.ins(m); cnt += 1
            if pi is not None and (k + 1 == len(ml) or ml[k + 1][1] != pi): done_at[pi] = cnt
            budget = 2
            while budget > 0:
                if not vq and nextp in done_at and cnt - done_at[nextp] >= 9:
                    vq = piece_ops(pieces[nextp], False); nextp += 1
                if not vq: break
                c_ = 2 if vq[0].startswith(("buffer_", "ds_")) else 1
                if c_ > budget: break
                put(vq.pop(0)); cnt += 1; budget -= c_
        for x in vq: put(x); cnt += 1
        while nextp < len(pieces):
            if cnt - done_at[nextp] < 9: tr.ins("s_nop 7"); cnt += 8
            for x in piece_ops(pieces[nextp], True): put(x); cnt += 1
            nextp += 1
        return tr
    l0, l1 = last_stage(0), last_stage(1)

    L2 = f"v{P.V_LANE}"
    h2 = Trace()
    h2.raw(f"""
    v_mov_b32 {L2}, {L}
    v_mov_b32 v{P.V_L16}, v{V_L16}
    v_mov_b32 v{P.V_L16B}, v{V_DK}
    v_mov_b32 v{P.V_KVR}, v{V_L16}
    s_lshl_b32 s80, s{S_W}, 12
    s_add_u32 s80, s80, {P.LDS_Q}
    v_add_u32 v24, s80, v{V_L16}
    """)
    h2.wait(vm=[("kv", 0)])
    h2.raw("s_waitcnt lgkmcnt(0)\ns_barrier")
    for q in range(4): h2.ins(f"ds_read_b128 {ar(P.A_Q + 4*q,4)}, v24 offset:{q*1024}", lg=("q", 0))
    for half in range(2): h2.items.append(P.k_read(0, half))
    for half in range(2): h2.items.append(P.v_read(0, half))
    for pp in range(4):
        h2.raw(f"""
        s_add_u32 s80, s{S_W}, {pp}
        s_and_b32 s80, s80, 3
        s_lshl_b32 s80, s80, 11
        v_add_u32 v{P.V_W+pp}, s80, v{P.V_L16}
        """)
    h2.wait(lg=[("k", 0)])
    h2.ins(P.qk(0, 0)); h2.ins(P.qk(0, 1))
    for q in range(4):
        h2.ins(f"v_add_u32 v{P.V_SP+q}, s{P.S_M0SP}, v{P.V_W+q}")
        h2.ins(f"v_add_u32 v{P.V_KP+q}, s{P.S_M0KV}, v{P.V_W+q}")
    h2.raw(f"""
    v_bfe_u32 v26, {L2}, 4, 1
    v_bfe_u32 v27, {L2}, 2, 1
    v_cmp_eq_u32 vcc, v26, v27
    v_mov_b32 v26, 0x3f803f80
    s_lshl_b32 s40, s{P.S_MT}, 9
    s_add_u32 s40, s40, {WS_G:#x}
    v_cndmask_b32 v26, 0, v26, vcc
    """)
    for r in range(4): h2.ins(f"v_accvgpr_write_b32 a{P.A_SEL+r}, v26")
    h2.raw(f"""
    s_lshl_b32 s41, s{S_MT}, 11
    s_lshl_b32 s80, s{S_W}, 9
    s_add_u32 s41, s41, s80
    s_add_u32 s41, s41, {WS_G:#x}
    v_and_b32 v26, 31, {L2}
    v_lshlrev_b32 v26, 3, v26
    v_and_b32 v27, 15, {L2}
    v_lshlrev_b32 v27, 3, v27
    v_lshlrev_b32 v25, 7, {L2}
    v_mov_b32 v24, s{S_TAG}
    """)
    if ptc:
        h2.raw(f"""
        s_sub_u32 s80, s64, s86
        s_lshl_b32 s81, s{S_MT}, 10
        s_add_u32 s80, s80, s81
        s_sub_u32 s81, s58, s86
        s_and_b32 s82, s{S_NT}, 3
        s_lshl_b32 s82, s82, 10
        s_add_u32 s81, s81, s82
        s_add_u32 s81, s81, 8192
        v_and_b32 v29, 7, {L2}
        v_lshlrev_b32 v29, 7, v29
        v_add_u32 v30, s81, v29
        v_add_u32 v29, s80, v29
        v_and_b32 v{P.V_TCH}, 8, {L2}
        v_cmp_eq_u32 vcc, 0, v{P.V_TCH}
        s_mov_b32 s{P.S_TCO}, 0
        s_nop 0
        v_cndmask_b32 v{P.V_TCH}, v30, v29, vcc
        """)
    if retouch >= 2:
        h2.raw(f"v_and_b32 v17, 1, {L2}\nv_lshlrev_b32 v17, 7, v17\ns_and_b32 s43, s61, 0x1f00\ns_add_u32 s43, s43, KM_TAIL-KM_EBACK")
    def rebase(x, frm, to):
        x["text"] = x["text"].replace(f"s[{frm}:{frm+1}]", f"s[{to}:{to+1}]"); return x
    wl = lambda sg, J0, b: [rebase(P.w_load(sg, J), P.S_WB, b) for J in range(J0, J0 + 4)]
    hl = lambda sg, b: [rebase(P.h_load(sg, i), P.S_HB, b) for i in range(4)]
    early = []
    timed = [(1 + q // 3, tstore(q)) for q in range(9)] if tdefer else []
    if tp2:
        LT2 = 81920
        h2.raw(f"""
        v_lshrrev_b32 v17, 5, {L2}
        v_lshl_add_u32 v17, v17, 13, v{V_DT}
        v_add_u32 v{V_RT}, {LT2 - LDS_T}, v{V_RT}
        s_add_u32 s{S_M0T}, s{S_M0T}, {LT2 - LDS_T}
        """)
        fl = " nt" if ntt else ""
        for q in range(9):
            it_ = [I(f"s_add_u32 m0, s{S_M0T}, {q*4096}"), I("s_nop 0")]
            if q == 6: it_.append(I(f"buffer_load_dwordx4 v17, s[{S_WD}:{S_WD+3}], s{S_TSRCS} offen{fl} lds", vm=("t", q)))
            else:
                srdn, so = (S_WD, S_TSRC) if q < 7 else (S_WO, S_TSRC2)
                it_ += [I(f"buffer_load_dwordx4 v{V_DT}, s[{srdn}:{srdn+3}], s{so} offen{fl} lds", vm=("t", q)), I(f"s_add_u32 s{so}, s{so}, {48*2048 if q == 2 else 0x10000}")]
            timed.append((1 + q // 3, it_))
        timed.append((tb, [W(vm=[("t", 8)]), I("s_barrier")]))
        for q in range(9):
            timed.append((tb + q // 3, [I(f"ds_read_b64_tr_b16 {ar(P.A_WR + 4*q + 2*h,2)}, v{V_RT} offset:{q*4096 + h*2048}", lg=("tf", q)) for h in range(2)]))
        for q in range(9):
            so = S_TDST if q < 7 else S_TDST2
            timed.append((tb + 3 + q // 3, [W(lg=[("tf", q)]), I(f"buffer_store_dwordx4 {ar(P.A_WR + 4*q,4)}, v{P.V_L16}, s[{S_WS}:{S_WS+3}], s{so} offen sc1", vm=("ts", q)), I(f"s_add_u32 s{so}, s{so}, 8192")]))
    timed += [(dsl + k // 2, [I(f"buffer_store_dwordx4 {vr(160 + 4*i,4)}, v{P.V_L16 if i < 4 else P.V_L16B}, s[{S_WS}:{S_WS+3}], s3 offen offset:{(i%4)*1024} sc1", vm=("hst", 0))]) for k, i in enumerate(range(8 - ndef, 8))]
    timed += [(hsig, [W(vm=[("hst", 0), ("ts", 8)]), I("s_barrier"), I("s_mov_b64 exec, 1"), I(f"buffer_store_dword v24, off, s[{S_WS}:{S_WS+3}], s{P.S_HF} sc1"), I("s_mov_b64 exec, -1")]),
             (hpoll, [I(f"buffer_load_dword v28, v25, s[{S_WS}:{S_WS+3}], s{P.S_HP} offen sc1", vm=("hp", 0))]),
             (hpoll + 2, [W(vm=[("hp", 0)]), I(f"v_cmp_ne_u32 vcc, s{S_TAG}, v28"), I("s_nop 0"), I("s_cbranch_vccnz KM_HSPIN"), I("KM_HBACK:"), I("s_barrier")] + sum([[P.tch_ins(), I(f"s_add_u32 s{P.S_TCO}, s{P.S_TCO}, 8192")] for _ in range(ptc)], []) + hl(0, 58)),
             ]
    gl_ = [[I(f"buffer_load_dword v{P.V_G+hh}, v26, s[{S_WS}:{S_WS+3}], s41 offen offset:{hh*256} sc1", vm=("g2", 0)) for hh in range(2)],
           [I(f"buffer_load_dword v{P.V_OMG+i}, v27, s[{S_WS}:{S_WS+3}], s40 offen offset:{4 + i*128} sc1", vm=("g2", 0)) for i in range(4)]]
    if fflag:
        hs, hp, hc = timed
        hs[1][0]["needvm"].append(("fp", 0))
        hs = (hs[0], [hs[1][0], I(f"v_cmp_ne_u32 vcc, s{S_TAG}, v28"), I("s_nop 0"), I("s_cbranch_vccnz KM_FSPIN"), I("KM_FBACK:")] + hs[1][1:])
        fp = (fpoll, [I(f"s_add_u32 s43, s{P.S_HP}, 0x10000"), I(f"buffer_load_dword v28, v25, s[{S_WS}:{S_WS+3}], s43 offen sc1", vm=("fp", 0))])
        pre_d = [wl(0, 0, 64), wl(0, 4, 64), wl(1, 0, 68), wl(1, 4, 68), gl_[0], gl_[1]]
        post_d = [(hpoll + 3, hl(1, 60)), (hpoll + 4, hl(2, 62)), (hpoll + 5, hl(3, 70))]
    elif nhd:
        timed += [(hpoll + 2, wl(0, 0, 64)), (hpoll + 3, wl(0, 4, 64)), (hpoll + 4, wl(1, 0, 68)), (hpoll + 5, wl(1, 4, 68)),
                  (hpoll + 6, hl(1, 60)), (hpoll + 7, hl(2, 62)), (hpoll + 8, hl(3, 70)), (hpoll + 12, gl_[0]), (hpoll + 13, gl_[1])]
    else:
        sl_ = lambda k: min(hpoll + 2 + (k*psp) // 2, 30)
        timed += [(sl_(k + 1), x) for k, x in enumerate([wl(0, 0, 64), wl(0, 4, 64), hl(1, 60), wl(1, 0, 68), wl(1, 4, 68), hl(2, 62), gl_[0], gl_[1]])]
        zl = [I(f"v_mov_b32 v{P.ACC + r}, 0") for r in range(128)]
        timed = [(1 + k // 2, zl[8*k: 8*k + 8]) for k in range(8)] + [timed[0]] + [(hsig + 1 + k // 2, zl[64 + 8*k: 72 + 8*k]) for k in range(8)] + timed[1:]
    NDOWN = P.NDOWN
    xl = [([P.x_base(sg)] if J0 == 0 else []) + [P.w_load(sg, J) for J in range(J0, J0 + 4)] for sg in (NDOWN + 6, NDOWN + 7) for J0 in (0, 4)]
    def xfix(grps, s):
        for g_ in grps:
            for x in g_: x["text"] = x["text"].replace(f"s[{P.S_XB}:{P.S_XB+1}]", "s[52:53]").replace(f"s_add_u32 s{P.S_XB},", "s_add_u32 s52,").replace(f"s_addc_u32 s{P.S_XB+1},", "s_addc_u32 s53,")
        return grps
    xfix(xl, 0)
    if fflag:
        pre_d = pre_d + [xl.pop(0) for _ in range(4)]
        n_ = len(pre_d)
        mid = [(hsig + 1 + (k*(hpoll + 1 - hsig))//n_, x) for k, x in enumerate(pre_d)]
        timed = [fp, hs] + sorted(mid + [hp], key=lambda e: e[0]) + [hc] + post_d
    elif xhead:
        timed = timed[:-2] + [(min(hpoll + 9 + k, 30), xl.pop(0)) for k in range(4)] + [(min(hpoll + 13, 30), timed[-2][1]), (min(hpoll + 14, 31), timed[-1][1])]
    peel = []
    if xpeel:
        flat = [x for g_ in xl for x in g_]; xl.clear()
        k_ = 0
        for x in flat:
            if peel and peel[-1][1][-1]["text"].startswith("s_"): peel[-1][1].append(x)
            else: peel.append((32 + k_, [x])); k_ = min(k_ + 1, 15)
        peel = [(32 + (n_*15)//16, it_) for n_, (_, it_) in enumerate(peel)]
    headseg = P.segment(0, 32, 0, 32*P.NHEAD, g0, timed)
    bodies = [P.segment(16*it, 16*it + 16, 32*(P.NHEAD + 4*(it - 2)), 32*(P.NHEAD + 4*(it - 1)), 16*it, timed=[(16*it + 12, [I("buffer_load_dword a255, v17, s[76:79], s43 offen")])] if retouch >= 2 else (), loop=True) for it in range(2, 8)]
    for b_ in bodies: b_.ins(f"s_cmp_lg_u32 s{P.S_CNT}, 0")
    NDOWN, NWO, ACC = P.NDOWN, P.NWO, P.ACC
    t1 = Trace()
    n = P.NSLOT - 1
    t1.wait(lg=[("v", 63)])
    t1.ins("s_nop 1")
    t1.ins(P.pv(n, 0)); t1.ins(P.summ(n, 0)); t1.ins(P.pv(n, 1)); t1.ins(P.summ(n, 1))
    VO = P.V_O
    q_ = Trace()
    q_.raw(f"""
    v_bfe_u32 v26, {L2}, 4, 1
    s_lshl_b32 s78, s{S_MT}, 1
    v_lshlrev_b32 v26, 10, v26
    s_lshr_b32 s79, s{S_W}, 1
    v_and_b32 v27, 15, {L2}
    s_add_u32 s78, s78, s79
    v_lshl_add_u32 v26, v27, 4, v26
    s_lshl_b32 s78, s78, 5
    v_lshrrev_b32 v27, 5, {L2}
    s_add_u32 s78, s78, s{S_NT}
    v_lshl_add_u32 v26, v27, 8, v26
    s_lshl_b32 s78, s78, 13
    s_and_b32 s79, s{S_W}, 1
    s_lshl_b32 s79, s79, 12
    s_add_u32 s78, s78, s79
    s_add_u32 s54, s78, {WS_O:#x}
    s_mov_b32 s78, 0x1f800000
    s_mov_b32 s79, 0x5f800000
    s_mov_b32 s55, 0
    v_accvgpr_read_b32 v80, a{P.A_L}
    v_accvgpr_read_b32 v81, a{P.A_L+4}
    """)
    q_.wait(vm=[("g2", 0)])
    q_.raw(f"""
    v_min_f32 v83, v80, v81
    v_max_f32 v84, v80, v81
    v_add_f32 v85, v80, v81
    v_cmp_nle_f32 s[82:83], s78, v83
    v_cmp_nge_f32 s[84:85], s79, v84
    v_cmp_u_f32 vcc, v85, v85
    """)
    q_.ins("s_nop 1\ns_or_b64 s[82:83], s[82:83], s[84:85]\ns_or_b64 vcc, vcc, s[82:83]\ns_cbranch_vccnz KM_FALLBACK\nKM_NORM:\nv_rcp_f32 v80, v80")
    q_.raw(f"""
    v_rcp_f32 v82, v81
    v_mul_f32 v80, v80, v{P.V_G}
    v_mul_f32 v82, v82, v{P.V_G+1}
    """)
    for hh in range(2):
        for pc in range(2):
            b = VO + 16*hh + 8*pc
            for r in range(8): q_.ins(f"v_mul_f32 v{b+r}, v{b+r}, v{80+2*hh}")
            for q in range(4): q_.ins(f"v_cvt_pk_bf16_f32 v{64+8*hh+4*pc+q}, v{b+2*q}, v{b+2*q+1}")
            q_.ins(f"buffer_store_dwordx4 {vr(64+8*hh+4*pc,4)}, v26, s[{S_WS}:{S_WS+3}], s54 offen offset:{hh*2048 + pc*512} sc1", vm=("ost", 0))
    vq = q_.items
    nA, nB = nb
    stepsA = [P.gemm_step(s, vq=vq) for s in range(NIN, NIN + nA)]
    t2 = Trace()
    t2.items.extend(vq)
    t2.ins("s_nop 1")
    for q in range(4):
        t2.ins(f"v_mfma_f32_16x16x32_bf16 v[84:87], {ar(P.A_SEL,4)}, {vr(64+4*q,4)}, {'0' if q == 0 else 'v[84:87]'}")
    stepsA.append(t2)
    polli = lambda: I(f"buffer_load_dword v28, v25, s[{S_WS}:{S_WS+3}], s{P.S_OP} offen sc1", vm=("op", 0))
    x33 = xfix([[P.x_base(NDOWN + 5)] + [P.w_load(NDOWN + 5, J) for J in range(4)], [P.w_load(NDOWN + 5, J) for J in range(4, 8)]], 0)
    xq = [x33] + [[xl.pop(0), xl.pop(0)] for _ in range(len(xl)//2)]
    stepsB = [P.gemm_step(s, extra=xq.pop(0) if xq else [], late=[polli()] if s == NIN + nA + nB - 1 else []) for s in range(NIN + nA, NIN + nA + nB)]
    assert not xl and not xq
    sig = Trace()
    sig.raw(f"""
    v_and_b32 v25, 31, {L2}
    v_lshlrev_b32 v25, 7, v25
    s_lshr_b32 s78, s{P.S_MT}, 1
    s_lshl_b32 s78, s78, 18
    s_add_u32 s78, s78, s42
    s_lshl_b32 s79, s{S_W}, 16
    s_add_u32 s78, s78, s79
    s_add_u32 s78, s78, {WS_O:#x}
    s_add_u32 s56, s86, s78
    s_addc_u32 s57, s87, 0
    """)
    sig.raw(f"""
    v_sub_f32 v84, v84, v84
    s_cmp_lg_u32 s55, 0
    v_cmp_u_f32 vcc, v84, v84
    s_cbranch_scc1 KM_CHECKED
    s_cbranch_vccnz KM_FALLBACK2
    KM_CHECKED:
    """)
    sig.wait(vm=[("ost", 0)])
    sig.raw(f"""
    s_mov_b64 exec, 1
    buffer_store_dword v24, off, s[{S_WS}:{S_WS+3}], s{P.S_OF} sc1
    s_mov_b64 exec, -1
    """)
    t3 = Trace()
    t3.wait(vm=[("op", 0)])
    t3.raw(f"""
    v_cmp_ne_u32 vcc, s{S_TAG}, v28
    s_nop 0
    s_cbranch_vccnz KM_OSPIN
    KM_OBACK:
    """)
    ol = []
    for s in range(NDOWN, NDOWN + NWO):
        ol.append([rebase(P.h_load(s, i), P.S_HB, 56) for i in range(4)] + (adv64(56, 8192) if s < NDOWN + NWO - 1 else []))
    t4 = Trace()
    for grp in ol[:opre]: t4.items.extend(grp)
    k = opre
    stepsC = []
    for s in range(NIN + nA + nB, NDOWN):
        ex = []
        while len(ex) < 2 and k < 5: ex.append(ol[k]); k += 1
        stepsC.append(P.gemm_step(s, ex))
    wos = []
    for s in range(NDOWN, NDOWN + 4):
        ex = []
        while len(ex) < 2 and k < NWO: ex.append(ol[k]); k += 1
        wos.append(P.gemm_step(s, ex))
    ph = Trace()
    su = Asm()
    for pp in range(1, 4):
        su(f"s_add_u32 s78, s{S_W}, {pp}\ns_and_b32 s78, s78, 3\ns_mul_i32 s78, s78, 24576\ns_add_u32 s78, s78, {(pp-1)*8192}\nv_add_u32 v{26+pp}, s78, v{P.V_L16}")
    su(f"""
    s_mul_i32 s78, s{S_W}, 24576
    v_add_u32 v26, s78, v{P.V_L16}
    s_lshl_b32 s78, s{P.S_MT}, 17
    s_lshl_b32 s79, s{P.S_NT}, 8
    s_add_u32 s78, s78, s79
    s_lshl_b32 s79, s{S_W}, 6
    s_add_u32 s78, s78, s79
    s_add_u32 s79, s78, 0x8000
    s_add_u32 s80, s78, 0x10000
    s_add_u32 s81, s78, 0x18000
    v_and_b32 v30, 15, {L2}
    v_lshlrev_b32 v30, 11, v30
    v_bfe_u32 v25, {L2}, 4, 1
    v_lshl_add_u32 v30, v25, 5, v30
    v_lshrrev_b32 v25, 5, {L2}
    v_lshl_add_u32 v30, v25, 4, v30
    """)
    su = [l.strip() for l in su.lines]
    S2 = list(range(NDOWN + 4, NDOWN + 8))
    ph.wait(vm=[("w", s, J) for s in S2[1:] for J in range(8)], lg=[("w", s, J) for s in S2[:1] for J in range(8)])
    ph.ins("s_barrier")
    R0, R1, R2 = ACC + 32, ACC + 64, ACC + 96
    assert ph2new
    for idx, pp in enumerate((1, 2, 3, 0)):
        fill = [[] for _ in range(32)]
        if idx == 0:
            for q, x in enumerate(su): fill[q].append(I(x))
        else:
            prev = (1, 2, 3)[idx - 1]
            for t in range(8):
                fill[(4 + 3*t) if idx < 3 or not ph2new else (1 + t + (3 if t >= 4 else 0))].append(I(f"ds_write_b128 v{26+prev}, {vr(ACC + (prev*8 + t)*4, 4)} offset:{t*1024}", lg=("rw", prev)))
        if idx == 3:
            rd = [I(f"ds_read_b128 {vr((R0, R1, R2)[s_] + t*4, 4)}, v26 offset:{s_*8192 + t*1024}", lg=("rr", s_)) for s_ in range(3) for t in range(8)]
            if ph2new:
                for k_, x in enumerate(rd[:16]): fill[12 + k_ // 2].append(x)
                fill[21] += [W(lg=[("rw", 3)]), I("s_barrier")]
                for k_, x in enumerate(rd[16:]): fill[22 + k_ // 2].append(x)
                fill[26].append(W(lg=[("rr", 1)]))
                for k_ in range(10): fill[26 + k_ // 2].append(I(f"v_add_f32 v{R0+k_}, v{R0+k_}, v{R1+k_}"))
            else:
                free = [g for g in range(32) if not fill[g]]
                for x, g in zip(rd[:16], free): fill[g].append(x)
            ph.wait(lg=[("rw", 2)])
            ph.ins("s_barrier")
        mu = 0
        for s in S2:
            if idx == 0: ph.wait(vm=[("h", s, i) for i in range(4)])
            for J in (2*pp, 2*pp + 1):
                for i in range(4):
                    ph.ins(P.gemm_mfma(s, J, i, False)); ph.items.extend(fill[mu]); mu += 1
    if ph2new:
        for r in range(10, 32, 2): ph.ins(f"v_pk_add_f32 {vr(R0+r,2)}, {vr(R0+r,2)}, {vr(R1+r,2)}")
        ph.wait(lg=[("rr", 2)])
        for r in range(0, 32, 2): ph.ins(f"v_pk_add_f32 {vr(R0+r,2)}, {vr(R0+r,2)}, {vr(R2+r,2)}")
    else:
        ph.wait(lg=[("rw", 3), ("rr", 1)])
        ph.ins("s_barrier")
        ph.items.extend(rd[16:])
        for r in range(0, 32, 2): ph.ins(f"v_pk_add_f32 {vr(R0+r,2)}, {vr(R0+r,2)}, {vr(R1+r,2)}")
        ph.wait(lg=[("rr", 2)])
        for r in range(0, 32, 2): ph.ins(f"v_pk_add_f32 {vr(R0+r,2)}, {vr(R0+r,2)}, {vr(R2+r,2)}")
    for i in range(4):
        b0, b1 = ACC + i*4, ACC + (4 + i)*4
        d = 64 + i*4
        om = P.V_OMG + i
        for b in (b0, b0 + 2, b1, b1 + 2):
            ph.ins(f"v_pk_add_f32 {vr(b,2)}, {vr(b,2)}, {vr(b + 32,2)}")
        for b in (b0, b0 + 2, b1, b1 + 2):
            ph.ins(f"v_pk_mul_f32 {vr(b,2)}, {vr(b,2)}, {vr(om,2)} op_sel_hi:[1,0]" if om % 2 == 0 else f"v_pk_mul_f32 {vr(b,2)}, {vr(b,2)}, {vr(om-1,2)} op_sel:[0,1] op_sel_hi:[1,1]")
        ph.raw(f"""
        v_cvt_pk_bf16_f32 v{d}, v{b0}, v{b0+1}
        v_cvt_pk_bf16_f32 v{d+1}, v{b0+2}, v{b0+3}
        v_cvt_pk_bf16_f32 v{d+2}, v{b1}, v{b1+1}
        v_cvt_pk_bf16_f32 v{d+3}, v{b1+2}, v{b1+3}
        s_nop 1
        v_permlane16_swap_b32 v{d}, v{d+2}
        v_permlane16_swap_b32 v{d+1}, v{d+3}
        buffer_store_dwordx4 {vr(d,4)}, v30, s[{P.S_OUT}:{P.S_OUT+3}], s{78+i} offen sc1 nt
        """)
    head = [pro, pro2] + segs + [ec]
    rest = [h2, headseg] + bodies + [t1] + stepsA + [sig] + stepsB + [t3, t4] + stepsC + wos + [ph]
    import copy
    resolve(head + [l0] + rest)
    saved = [[(x.get("wvm"), x.get("wlg")) for x in seg.items] for seg in rest]
    resolve(head + [l1] + rest)
    for seg, sv in zip(rest, saved):
        for x, (v, l) in zip(seg.items, sv):
            if x["text"] is None:
                mn = lambda p, q: q if p is None else p if q is None else min(p, q)
                x["wvm"], x["wlg"] = mn(x["wvm"], v), mn(x["wlg"], l)
    emit_trace(a, [pro]); st.stamp()
    if pads:
        a("s_branch KM_BODY")
        a.lines.append(".p2align 12")
        a.label("KM_BODY")
    if al1 is not None:
        a.lines.append(".p2align 6")
        for _ in range(al1): a("s_nop 0")
    emit_trace(a, [pro2]); st.stamp()
    for k, tr in enumerate(segs):
        if 'wv' in exp and k % 2 == 0 and wv0 <= k // 2 < wv0 + 5:
            t_ = Trace(); t_.items = tr.items[:-2]; emit_trace(a, [t_]); st.stamp()
            t_.items = tr.items[-2:-1]; emit_trace(a, [t_]); st.stamp()
            t_.items = tr.items[-1:]; emit_trace(a, [t_]); st.stamp()
            continue
        emit_trace(a, [tr])
        if 'stg' in exp and k % 2 == 0: st.stamp()
    st.stamp()
    emit_trace(a, [ec])
    if 'ec' in exp: st.stamp()
    a(f"s_bitcmp1_b32 s{S_W}, 0")
    a("s_cbranch_scc1 KM_LAST1")
    emit_trace(a, [l0])
    a("s_branch KM_P2")
    a.label("KM_LAST1")
    emit_trace(a, [l1])
    if al2 is not None:
        a.lines.append(".p2align 6")
        for _ in range(al2): a("s_nop 0")
    a.label("KM_P2")
    st.stamp()
    if pads: a.lines.append("@CHAIN2")
    emit_trace(a, [h2]); st.stamp()
    b = Asm(); emit_trace(b, [headseg])
    for l in b.lines:
        a.lines.append(l)
        if 'its' in exp and l.strip() in ("s_barrier", "KM_HBACK:"): st.stamp()
    st.stamp()
    if xpeel: emit_trace(a, bodies[:1])
    a.lines.append(".p2align 6")
    a.label("KM_LOOP")
    emit_trace(a, bodies[1:] if xpeel else bodies)
    a("s_cbranch_scc1 KM_LOOP")
    a.label("KM_TAIL")
    st.stamp()
    emit_trace(a, [t1]); st.stamp()
    for seg in stepsA + [sig]: emit_trace(a, [seg])
    st.stamp()
    for seg in stepsB: emit_trace(a, [seg])
    st.stamp()
    emit_trace(a, [t3]); st.stamp()
    for seg in [t4] + stepsC: emit_trace(a, [seg])
    st.stamp()
    for seg in wos: emit_trace(a, [seg])
    st.stamp()
    b = Asm(); emit_trace(b, [ph])
    nm = 0
    for l in b.lines:
        a.lines.append(l)
        if l.strip().startswith("v_mfma"): nm += 1
        if 'ph' in exp and ((l.strip().startswith("v_mfma") and nm % 32 == 0) or (l.strip() == "s_barrier" and nm == 0) or "s81 offen" in l): st.stamp()
    if dbg:
        a("s_waitcnt vmcnt(0)")
        st.stamp(force=True)
        st.dump(0, S_W, 86)
        if hdbg is not None:
            a(f"""
            s_lshl_b32 s90, s2, 2
            s_add_u32 s90, s90, s{S_W}
            s_cmp_eq_u32 s90, {4*hdbg}
            s_cbranch_scc0 KM_END
            v_readlane_b32 s90, v31, 32
            v_mbcnt_lo_u32_b32 v0, -1, 0
            v_mbcnt_hi_u32_b32 v0, -1, v0
            v_subrev_u32 v31, s90, v31
            v_subrev_u32 v0, 32, v0
            v_lshlrev_b32 v0, 2, v0
            s_mov_b32 exec_lo, 0
            s_mov_b32 exec_hi, 0xfffe
            buffer_store_dword v31, v0, s[{S_DBG}:{S_DBG+3}], 0 offen
            """)
    a("s_endpgm")
    for nm, ld, val in (("Z", f"buffer_load_dword v1, off, s[{S_DBG}:{S_DBG+3}], 0 sc1", f"eq_u32 vcc, 0, v1"),
                        ("E", f"buffer_load_dword v{V_KX}, v{V_T}, s[{S_WS}:{S_WS+3}], s{S_EF} offen sc1", f"ne_u32 vcc, s{S_TAG}, v{V_KX}"),
                        ("H", f"buffer_load_dword v28, v25, s[{S_WS}:{S_WS+3}], s{P.S_HP} offen sc1", f"ne_u32 vcc, s{S_TAG}, v28"),
                        ("F", f"buffer_load_dword v28, v25, s[{S_WS}:{S_WS+3}], s43 offen sc1", f"ne_u32 vcc, s{S_TAG}, v28"),
                        ("O", f"buffer_load_dword v28, v25, s[{S_WS}:{S_WS+3}], s{P.S_OP} offen sc1", f"ne_u32 vcc, s{S_TAG}, v28")):
        if nm == 'F' and not fflag: continue
        a(f"""
        KM_{nm}SPIN:
        s_mov_b32 s91, 0x40000
        KM_{nm}SPIN1:
        {ld}
        s_waitcnt vmcnt(0)
        v_cmp_{val}
        s_sub_u32 s91, s91, 1
        s_cbranch_vccz KM_{nm}BACK
        s_cmp_eq_u32 s91, 0
        s_cbranch_scc1 KM_{nm}BACK
        s_sleep 1
        s_branch KM_{nm}SPIN1
        """)
    A_K, A_Q = P.A_K, P.A_Q
    a.label("KM_FALLBACK2")
    a("s_mov_b32 s55, 2")
    a.label("KM_FALLBACK")
    a(f"""
    s_or_b32 s55, s55, 1
    s_waitcnt vmcnt(0) lgkmcnt(0)
    s_nop 15
    v_mov_b32 v82, 0xff7fffff
    v_mov_b32 v83, 0xff7fffff
    v_mov_b32 v80, 0
    v_mov_b32 v81, 0
    s_mov_b32 s78, {WS_KV:#x}
    """)
    for r in range(32): a(f"v_mov_b32 v{VO+r}, 0")
    a.label("KM_FB_LOOP")
    for q in range(4):
        a(f"buffer_load_dwordx4 {ar(A_K+4*q,4)}, v{P.V_L16}, s[{S_WS}:{S_WS+3}], s78 offen offset:{q*1024} sc1")
    a("s_waitcnt vmcnt(0)")
    for hh in range(2):
        O = VO + 16*hh; m = 82 + hh; l = 80 + hh
        a(f"v_mfma_f32_32x32x16_bf16 v[64:79], {ar(A_K,4)}, {ar(A_Q+8*hh,4)}, 0")
        a(f"v_mfma_f32_32x32x16_bf16 v[64:79], {ar(A_K+4,4)}, {ar(A_Q+8*hh+4,4)}, v[64:79]")
        a("s_nop 15")
        a("v_max_f32 v84, v64, v65")
        for r in range(2, 16, 2): a(f"v_max3_f32 v84, v{64+r}, v{65+r}, v84")
        a(f"""
        v_mov_b32 v85, v84
        s_nop 1
        v_permlane32_swap_b32 v84, v85
        s_nop 1
        v_max3_f32 v84, v84, v85, v{m}
        v_sub_f32 v85, v{m}, v84
        v_exp_f32 v85, v85
        v_mov_b32 v{m}, v84
        v_mul_f32 v{l}, v{l}, v85
        """)
        for r in range(16):
            a(f"v_sub_f32 v{64+r}, v{64+r}, v84")
            a(f"v_exp_f32 v{64+r}, v{64+r}")
            a(f"v_mul_f32 v{O+r}, v{O+r}, v85")
        for r in range(8): a(f"v_cvt_pk_bf16_f32 v{64+r}, v{64+2*r}, v{65+2*r}")
        for r in range(8):
            a(f"v_lshlrev_b32 v86, 16, v{64+r}\nv_and_b32 v87, 0xffff0000, v{64+r}\nv_add_f32 v{l}, v{l}, v86\nv_add_f32 v{l}, v{l}, v87")
        a(f"v_mfma_f32_32x32x16_bf16 {vr(O,16)}, {ar(A_K+8,4)}, v[64:67], {vr(O,16)}")
        a(f"v_mfma_f32_32x32x16_bf16 {vr(O,16)}, {ar(A_K+12,4)}, v[68:71], {vr(O,16)}")
        a("s_nop 15")
    a(f"""
    s_add_u32 s78, s78, 4096
    s_cmp_lt_u32 s78, {WS_KV + 64*4096:#x}
    s_cbranch_scc1 KM_FB_LOOP
    v_mov_b32 v84, v80
    v_mov_b32 v85, v81
    s_nop 1
    v_permlane32_swap_b32 v80, v84
    v_permlane32_swap_b32 v81, v85
    s_nop 1
    v_add_f32 v80, v80, v84
    v_add_f32 v81, v81, v85
    s_cmp_eq_u32 s55, 1
    s_cbranch_scc1 KM_NORM
    v_rcp_f32 v80, v80
    v_rcp_f32 v82, v81
    s_nop 0
    v_mul_f32 v80, v80, v{P.V_G}
    v_mul_f32 v82, v82, v{P.V_G+1}
    """)
    for hh in range(2):
        for pc in range(2):
            b = VO + 16*hh + 8*pc
            for r in range(8): a(f"v_mul_f32 v{b+r}, v{b+r}, v{80+2*hh}")
            for q in range(4): a(f"v_cvt_pk_bf16_f32 v{64+8*hh+4*pc+q}, v{b+2*q}, v{b+2*q+1}")
            a(f"buffer_store_dwordx4 {vr(64+8*hh+4*pc,4)}, v26, s[{S_WS}:{S_WS+3}], s54 offen offset:{hh*2048 + pc*512} sc1")
    a(f"""
    s_waitcnt vmcnt(0)
    s_branch KM_CHECKED
    KM_END:
    s_endpgm
    """)
    return a.text()
```

```python
from common import *
import p2
from p2 import I, W, adv64
import math, struct

KM = NAME + "_kernel"
LDS_X = 0; LDS_W = 65536
LDS_R = 131072
LDS_QS = LDS_R; LDS_KW = LDS_R + 4096; LDS_T = LDS_R + 16384
KM_LDS = 163840
NST = 16
OOB = 0x7f000000

def accn(j, i): return ("v", 32 + (j*8 + i)*4) if j < 7 else ("a", 128 + i*4)
def acc(j, i):
    p, b = accn(j, i); return vr(b, 4, p)
XF = [0, 64]; WF = [32, 96]
KVW, KVA, A_GX, A_GW, A_T, A_KX, A_DUM = 160, 168, 172, 188, 204, 208, 255
TREG = [196, 200, 204, 224, 228, 232, 236, 240, 244]
V_DQ, V_DX, V_DW = 0, 2, 6
V_RX = [10, 11]
V_RW, V_R3, V_R7, V_RKW, V_T, V_KX, V_LANE = 12, 15, 16, 17, 18, 19, 20
V_GROW, V_L16, V_RT, V_DT, V_DK = 26, 27, 28, 29, 30
S_WQ, S_X, S_G, S_U, S_KV, S_WS, S_GW, S_TSRD, S_WD, S_WO, S_DBG = 4, 8, 12, 16, 20, 24, 28, 32, 52, 76, 72
S_W, S_MT, S_NT, S_OK = 36, 37, 38, 39
S_OX, S_OX2, S_OG, S_OQ, S_TSRCS = 40, 41, 42, 43, 44
S_M0X, S_M0W, S_M0K, S_M0T, S_M0Q = 45, 46, 47, 51, 56
S_TOFF, S_TSTEP, S_TOG = 48, 49, 50
S_TSRC, S_TDST, S_TSRC2, S_TDST2, S_GROW = 3, 94, 95, 100, 101
S_EF = 88
S_LMASK, S_T2D = 58, 59
S_TAG = 89
A_TAG = 254
S_FLG = 57

KVD = 1
def dma_group_buf(s, ntw):
    b = s % 2
    g = []
    nt = " nt" if ntw else ""
    for half in range(2):
        so = S_OX if half == 0 else S_OX2
        for j in range(4):
            pre = f"s_add_u32 m0, s{S_M0X}, {b*32768 + half*4096}" if j == 0 else None
            g.append((pre, I(f"buffer_load_dwordx4 v{V_DX+j}, s[{S_X}:{S_X+3}], s{so} offen offset:{j*1024} lds", vm=("st", s))))
    for part in range(2):
        srdn = S_G if part == 0 else S_U
        for j in range(4):
            pre = f"s_add_u32 m0, s{S_M0W}, {b*32768 + part*16384}" if j == 0 else None
            g.append((pre, I(f"buffer_load_dwordx4 v{V_DW+j}, s[{srdn}:{srdn+3}], s{S_OG} offen offset:{j*1024}{nt} lds", vm=("st", s))))
    g.append((f"s_add_u32 m0, s{S_M0Q}, {b*2048}", I(f"buffer_load_dwordx4 v{V_DQ}, s[{S_WQ}:{S_WQ+3}], s{S_OQ} offen{nt} lds", vm=("st", s))))
    adv = {7: [f"s_add_u32 s{S_OX}, s{S_OX}, 128", f"s_add_u32 s{S_OX2}, s{S_OX2}, 128"],
           15: [f"s_add_u32 s{S_OG}, s{S_OG}, {64*7168}"], 16: [f"s_add_u32 s{S_OQ}, s{S_OQ}, 0x20000"]}
    if 1 <= s - KVD <= 8:
        g.append((f"s_add_u32 m0, s{S_M0K}, {b*8192}", I(f"buffer_load_dwordx4 v{V_DK}, s[{S_KV}:{S_KV+3}], s{S_OK} offen lds", vm=("st", s))))
        adv[17] = [f"s_add_u32 s{S_OK}, s{S_OK}, 8192"]
    return g, adv
GDMA = False
B_X, B_X2, B_G, B_U, B_Q = 40, 90, 64, 66, 42
B_X2 = 62
def dma_group(s, ntw):
    g, adv = dma_group_buf(s, ntw)
    if not GDMA: return g, adv
    out = []
    for k, (pre, it) in enumerate(g):
        if k < 17:
            base = B_X if k < 4 else B_X2 if k < 8 else B_G if k < 12 else B_U if k < 16 else B_Q
            reg = V_DX + k % 4 if k < 8 else V_DW + k % 4 if k < 16 else V_DQ
            it = I(f"global_load_lds_dwordx4 v{reg}, s[{base}:{base+1}] offset:{(k % 4)*1024 if k < 16 else 0}", vm=("st", s))
        out.append((pre, it))
    a64 = lambda b, n: f"s_add_u32 s{b}, s{b}, {n}\ns_addc_u32 s{b+1}, s{b+1}, 0"
    adv2 = {3: [a64(B_X, 128)], 7: [a64(B_X2, 128)], 11: [a64(B_G, 64*7168)], 15: [a64(B_U, 64*7168)], 16: [a64(B_Q, 0x20000)]}
    if 17 in adv: adv2[17] = adv[17]
    return out, adv2
def xread(s, kk, i):
    return I(f"ds_read_b128 {ar(XF[kk]+4*i,4)}, v{V_RX[kk]} offset:{(s%2)*32768 + i*2048}", lg=("fr", s, kk))
def wread(s, kk, j, h):
    if j % 4 == 3:
        reg, off = (V_R3 if j == 3 else V_R7), h*1024 + kk*8192
    else:
        reg, off = V_RW + (j & 3), (s % 2)*32768 + h*1024 + kk*8192 + (16384 if j >= 4 else 0)
    return I(f"ds_read_b64_tr_b16 {ar(WF[kk]+4*j+2*h,2)}, v{reg} offset:{off}", lg=("fr", s, kk))
def reads(s, kk):
    r = [wread(s, kk, 0, 0), wread(s, kk, 0, 1)] + [xread(s, kk, i) for i in range(8)]
    for j in range(1, 8): r += [wread(s, kk, j, 0), wread(s, kk, j, 1)]
    return r
def mfma(kk, j, i, first=False):
    return f"v_mfma_f32_16x16x32_bf16 {acc(j,i)}, {ar(WF[kk]+4*j,4)}, {ar(XF[kk]+4*i,4)}, {'0' if first else acc(j,i)}"
def vcap(items):
    c = 2
    for x in items:
        t = x["text"] or "s_"
        if t.startswith("ds_"): c -= 1
        elif t.startswith(("buffer_", "global_")): c -= 2
        elif t.startswith("v_"): c -= 1
    return max(c, 0)
from k1 import g_ops as _g_ops
import k1 as _k1
_k1.A_GX, _k1.A_GW = A_GX, A_GW

def gen(dbg=False, hdbg=None, lead=True, lphase=0, nhd=1, psp=2, retouch=1, chain2=0, cpf='share', gdma=False, ndef=0, dsl=1, ptc=0, tpos2=18, fflag=False, fpoll=2, xpeel=False, xhead=True, al1=None, al2=None, gsm=True, tsp0=4, hstart=0, xmask=0x1f, tt0=0, wv0=1, cl=1, gc=(10, 8), dc=8, slack=0, ph2new=True, tp2=False, tb=8, tlb=0, tlbpos=17, tdefer=False, tpro=0, tpos=0, gl=2, pads=8, epos=10, chain_at=1, ot=99, touch=1, nhead=13, p1=13, npro0=8, gs=11, tq0=5, ntw=False, ntt=True, exp='',
        g0=25, hsig=5, hpoll=16, opre=1, nb=(1, 2)):
    esig = KVD + 11
    global GDMA
    GDMA = gdma
    if tp2:
        tq0 = 100
    p2.TCH = bool(ptc); p2.TPOS = tpos2
    p2.configure(nhd); p2.KV1 = 8 if fflag else max(8, hpoll - 13)
    if fflag: tq0 = 3
    NIN = p2.NIN
    a = Asm()
    L = f"v{V_LANE}"
    a("s_cmp_ge_u32 s2, 256")
    a("s_cbranch_scc1 KM_END")
    st = Stamps(a, dbg)
    st.stamp()
    a("s_memrealtime s[72:73]")
    a("s_load_dwordx8 s[56:63], s[0:1], 0")
    a("s_load_dwordx8 s[64:71], s[0:1], 48")
    a("s_load_dwordx2 s[74:75], s[0:1], 32")
    a("s_load_dwordx4 s[96:99], s[0:1], 80")
    a("s_load_dwordx2 s[86:87], s[0:1], 96")
    if cpf == "full": code_prefetch(a, "KM", 32, "a255", 3)
    else:
        a("s_getpc_b64 s[32:33]")
        a.label("KM_PC")
        if cpf == "share":
            a("""
            s_and_b32 s33, s33, 0xffff
            s_mov_b32 s34, KM_END-KM_PC
            s_mov_b32 s35, 0x00020000
            v_lshrrev_b32 v1, 4, v0
            v_and_b32 v1, 12, v1
            v_and_or_b32 v1, v0, 3, v1
            v_lshlrev_b32 v1, 7, v1
            s_lshr_b32 s36, s2, 3
            s_lshl_b32 s36, s36, 11
            buffer_load_dword a255, v1, s[32:35], s36 offen
            """)
    a(f"""
    v_and_b32 {L}, 63, v0
    v_lshrrev_b32 v1, 6, v0
    s_and_b32 s80, s2, 7
    v_readfirstlane_b32 s{S_W}, v1
    s_lshr_b32 s81, s2, 3
    s_and_b32 s{S_MT}, s81, 7
    s_lshr_b32 s83, s81, 3
    s_lshl_b32 s80, s80, 2
    s_add_u32 s{S_NT}, s80, s83
    s_mul_i32 s85, s{S_NT}, 224
    s_mov_b32 s{S_OG}, 0
    s_mov_b32 s{S_OQ}, 0
    v_lshrrev_b32 v21, 3, {L}
    s_lshl_b32 s81, s{S_MT}, 8
    s_lshl_b32 s82, s{S_W}, 6
    s_add_u32 s81, s81, s82
    v_add_u32 v21, s81, v21
    v_lshlrev_b32 v21, 11, v21
    v_and_b32 v22, 7, {L}
    v_lshrrev_b32 v23, 4, {L}
    v_xor_b32 v22, v22, v23
    v_lshlrev_b32 v22, 4, v22
    v_xor_b32 v24, 64, v22
    """)
    for j in range(4):
        a(f"v_add_u32 v{V_DX+j}, v21, {'v22' if j % 2 == 0 else 'v24'}")
        if j: a(f"v_add_u32 v{V_DX+j}, {j*8*2048 - j*1024}, v{V_DX+j}")
    a(f"""
    s_mov_b32 s{S_OX}, 0
    s_mov_b32 s{S_OX2}, 65536
    s_mov_b32 s{S_OK}, 0
    s_lshl_b32 s81, s{S_W}, 4
    s_movk_i32 s84, 7168
    v_add_u32 v21, s81, v23
    v_mul_lo_u32 v21, v21, s84
    v_add_u32 v21, s85, v21
    v_and_b32 v25, 1, {L}
    v_lshl_add_u32 v21, v25, 4, v21
    v_bfe_u32 v22, {L}, 1, 3
    v_xor_b32 v22, v22, v23
    v_xor_b32 v24, 4, v22
    v_min_u32 v22, 6, v22
    v_min_u32 v24, 6, v24
    v_lshl_add_u32 v{V_DW}, v22, 5, v21
    v_add_u32 v{V_DW+1}, {4*7168 - 1024}, v{V_DW}
    v_lshl_add_u32 v{V_DW+2}, v24, 5, v21
    v_add_u32 v{V_DW+2}, {2*(4*7168 - 1024)}, v{V_DW+2}
    v_add_u32 v{V_DW+3}, {4*7168 - 1024}, v{V_DW+2}
    s_lshl_b32 s{S_M0X}, s{S_W}, 13
    s_lshl_b32 s{S_M0W}, s{S_W}, 12
    s_add_u32 s{S_M0W}, s{S_M0W}, {LDS_W}
    s_lshl_b32 s{S_M0K}, s{S_W}, 10
    s_add_u32 s{S_M0T}, s{S_M0K}, {LDS_T}
    s_add_u32 s{S_M0K}, s{S_M0K}, {LDS_KW}
    s_lshr_b32 s81, s{S_W}, 1
    s_and_b32 s80, s{S_W}, 1
    """)
    a(f"""
    v_lshlrev_b32 v21, 3, v23
    v_bfe_u32 v22, {L}, 2, 2
    v_add_u32 v21, v21, v22
    s_lshl_b32 s82, s81, 5
    s_lshl_b32 s83, s80, 2
    s_add_u32 s82, s82, s83
    v_add_u32 v21, s82, v21
    v_lshlrev_b32 v21, 11, v21
    v_bfe_u32 v22, {L}, 1, 1
    v_bfe_u32 v24, {L}, 4, 1
    v_xor_b32 v22, v22, v24
    v_lshl_add_u32 v21, v22, 5, v21
    v_lshl_add_u32 v21, v25, 4, v21
    s_lshl_b32 s82, s{S_NT}, 6
    v_add_u32 v{V_DQ}, s82, v21
    s_lshl_b32 s90, s81, 13
    s_lshl_b32 s83, s80, 10
    s_add_u32 s90, s90, s83
    s_waitcnt lgkmcnt(0)
    """)
    st.n and None
    a(f"s_or_b32 s{S_TAG}, s72, 1")
    srd(a, S_X, 56, 2048*1024*2)
    srd(a, S_G, 64, 1024*3584*2)
    srd(a, S_U, 66, 1024*3584*2)
    srd(a, S_WQ, 58, 1024*1024*2)
    if gdma:
        a(f"""
        s_and_b32 s82, s{S_NT}, 2
        s_cmp_eq_u32 s82, 0
        s_cselect_b32 s60, s60, s62
        s_cselect_b32 s61, s61, s63
        s_mov_b64 s[{B_X}:{B_X+1}], s[56:57]
        s_add_u32 s{B_X2}, s56, 0x10000
        s_addc_u32 s{B_X2+1}, s57, 0
        s_mov_b64 s[{B_Q}:{B_Q+1}], s[58:59]
        """)
    a(f"s_add_u32 s{S_M0Q}, s90, {LDS_QS}")
    st.stamp()
    pro = Trace()
    def dma_items(s, lo, hi):
        g, adv = dma_group(s, ntw)
        out = []
        for k in range(lo, min(hi, len(g))):
            pre, it = g[k]
            out.append(([I(pre), I("s_nop 0")] if pre else []) + [it] + [I(x) for x in adv.get(k, [])])
        return out
    pc = Asm()
    pc(f"""
    v_lshlrev_b32 v{V_L16}, 4, {L}
    v_and_b32 v21, 15, {L}
    s_lshl_b32 s83, s81, 14
    v_lshlrev_b32 v22, 7, v21
    v_lshrrev_b32 v24, 1, v21
    v_xor_b32 v24, v24, v23
    v_lshl_add_u32 v22, v24, 4, v22
    v_add_u32 v{V_RX[0]}, s83, v22
    v_xor_b32 v{V_RX[1]}, 64, v{V_RX[0]}
    v_bfe_u32 v21, {L}, 2, 2
    v_lshl_add_u32 v22, v23, 3, v21
    v_and_b32 v24, 3, {L}
    v_lshlrev_b32 v24, 3, v24
    v_lshl_add_u32 v{V_RKW}, v22, 5, v24
    s_lshl_b32 s83, s81, 11
    s_add_u32 s83, s83, {LDS_KW}
    v_add_u32 v{V_RKW}, s83, v{V_RKW}
    v_lshl_add_u32 v22, v22, 8, v24
    v_add_u32 v22, {LDS_W}, v22
    v_and_b32 v25, 1, v23
    v_lshl_or_b32 v1, v25, 2, v21
    s_lshl_b32 s82, s80, 2
    """)
    for j in range(4):
        pc(f"s_add_u32 s83, s82, {j}")
        pc(f"v_xor_b32 v{V_T}, s83, v1")
        pc(f"v_lshl_add_u32 v{V_RW+j}, v{V_T}, 5, v22")
    pc(f"""
    v_add_u32 v{V_R7}, 16384, v{V_R3}
    v_lshl_add_u32 v22, v23, 2, v21
    v_lshl_add_u32 v22, v22, 6, v24
    v_lshl_add_u32 v22, v25, 5, v22
    v_add_u32 v22, {LDS_QS}, v22
    v_xor_b32 v1, 32, v22
    s_cmp_eq_u32 s80, 1
    s_cselect_b64 vcc, -1, 0
    s_movk_i32 s{S_TOG}, 2048
    s_cselect_b32 s{S_TOG}, s{S_TOG}, 0x8000
    v_cndmask_b32 v{V_R3}, v{V_R3}, v22, vcc
    v_cndmask_b32 v{V_R7}, v{V_R7}, v1, vcc
    """)
    p = Asm()
    p(f"""
    v_lshrrev_b32 v1, 3, {L}
    v_lshlrev_b32 v1, 11, v1
    v_bfe_u32 v25, {L}, 1, 2
    v_xor_b32 v25, v25, v23
    v_lshl_add_u32 v1, v25, 5, v1
    v_and_b32 v25, 1, {L}
    v_lshl_add_u32 v{V_DT}, v25, 4, v1
    v_lshl_add_u32 v1, v23, 2, v21
    v_bfe_u32 v25, v1, 1, 2
    v_xor_b32 v25, s{S_W}, v25
    v_lshlrev_b32 v1, 7, v1
    v_lshl_add_u32 v1, v25, 5, v1
    v_add_u32 v1, v1, v24
    v_add_u32 v{V_RT}, {LDS_T}, v1
    s_lshr_b32 s82, s2, 4
    s_and_b32 s83, s2, 15
    s_mul_i32 s{S_TSRC}, s82, {224*2048}
    s_lshl_b32 s90, s83, 7
    s_add_u32 s{S_TSRC}, s{S_TSRC}, s90
    s_lshl_b32 s{S_TSRC2}, s82, 17
    s_add_u32 s{S_TSRC2}, s{S_TSRC2}, s90
    s_mul_i32 s90, s80, {112*2048}
    s_add_u32 s{S_TSRCS}, s{S_TSRC}, s90
    s_lshl_b32 s90, s81, 13
    s_add_u32 s{S_TSRCS}, s{S_TSRCS}, s90
    s_add_u32 s{S_TSRCS}, s{S_TSRCS}, {96*2048}
    s_lshl_b32 s90, s{S_W}, 14
    s_add_u32 s{S_TSRC}, s{S_TSRC}, s90
    s_lshl_b32 s90, s80, 15
    s_add_u32 s{S_TSRC2}, s{S_TSRC2}, s90
    s_lshl_b32 s90, s81, 14
    s_add_u32 s{S_TSRC2}, s{S_TSRC2}, s90
    s_lshr_b32 s90, s83, 1
    s_mul_i32 s90, s90, {144*8192}
    s_and_b32 s83, s83, 1
    s_lshl_b32 s83, s83, 12
    s_add_u32 s90, s90, s83
    s_lshl_b32 s83, s{S_W}, 10
    s_add_u32 s90, s90, s83
    s_add_u32 s90, s90, {WS_WT:#x}
    s_mul_i32 s{S_TDST}, s82, {7*8192}
    s_add_u32 s{S_TDST}, s{S_TDST}, s90
    s_lshl_b32 s{S_TDST2}, s82, 14
    s_add_u32 s{S_TDST2}, s{S_TDST2}, s90
    s_add_u32 s{S_TDST2}, s{S_TDST2}, {112*8192}
    s_lshl_b32 s82, s2, 3
    s_lshl_b32 s83, s{S_W}, 1
    s_add_u32 s82, s82, s83
    s_lshl_b32 s{S_GROW}, s82, 11
    v_lshrrev_b32 v1, 5, {L}
    v_add_u32 v{V_GROW}, s82, v1
    v_lshlrev_b32 v{V_GROW}, 3, v{V_GROW}
    v_add_u32 v{V_GROW}, {WS_G:#x}, v{V_GROW}
    s_lshl_b32 s82, s{S_MT}, 2
    s_add_u32 s82, s82, s{S_W}
    s_lshl_b32 s82, s82, 5
    s_add_u32 s82, s82, s{S_NT}
    s_lshl_b32 s82, s82, 7
    s_add_u32 s{S_FLG}, s82, {WS_FLAG:#x}
    """)
    ps = Asm() if tlb else p
    ps(f"""
    s_and_b32 s82, s{S_NT}, 2
    s_cmp_eq_u32 s82, 0
    s_cselect_b32 s{S_KV}, s60, {'s60' if gdma else 's62'}
    s_cselect_b32 s{S_KV+1}, s61, {'s61' if gdma else 's63'}
    s_and_b32 s{S_KV+1}, s{S_KV+1}, 0xffff
    s_mov_b32 s{S_KV+2}, 65536
    s_mov_b32 s{S_KV+3}, 0x00020000
    """)
    srd(ps, S_WS, 86, WS_SIZE)
    srd(ps, S_GW, 70, 2048)
    srd(ps, S_WD, 68, 3584*1024*2)
    srd(ps, S_WO, 74, 1024*1024*2)
    srd(ps, S_DBG, 98, 256)
    p(f"""
    v_lshrrev_b32 v21, 1, {L}
    v_lshlrev_b32 v21, 6, v21
    v_and_b32 v22, 1, {L}
    v_lshl_add_u32 v21, v22, 4, v21
    s_and_b32 s82, s{S_NT}, 1
    s_lshl_b32 s82, s82, 5
    s_lshl_b32 s83, s{S_W}, 11
    s_add_u32 s82, s82, s83
    v_add_u32 v{V_DK}, s82, v21
    s_lshl_b32 s82, s{S_MT}, 8
    s_lshr_b32 s83, s{S_NT}, 2
    s_lshl_b32 s83, s83, 5
    s_add_u32 s82, s82, s83
    s_lshl_b32 s83, s80, 4
    s_add_u32 s82, s82, s83
    s_lshl_b32 s82, s82, 11
    s_lshl_b32 s83, s81, 7
    s_add_u32 s82, s82, s83
    v_and_b32 v21, 15, {L}
    v_lshlrev_b32 v22, 11, v21
    v_lshl_add_u32 v22, v23, 4, v22
    v_add_u32 v{V_KX}, s82, v22
    """)
    pt = Asm()
    plain_addr = f"""s_lshl_b32 s82, s{S_MT}, 3
        v_bfe_u32 v24, {L}, 2, 3
        v_add_u32 v24, s82, v24
        v_lshlrev_b32 v21, 11, v24
        v_mul_lo_u32 v24, v24, s84
        v_and_b32 v1, 3, {L}
        v_lshlrev_b32 v1, 7, v1
        v_min_u32 v1, 220, v1
        v_add3_u32 v24, v24, v1, s85
        s_lshl_b32 s82, s{S_NT}, 6
        v_add_u32 v21, s82, v21"""
    lead_addr = f"""s_mov_b32 s{S_TSTEP}, {OOB:#x}
        s_and_b32 s82, s{S_NT}, 3
        s_lshl_b32 s82, s82, 4
        v_lshrrev_b32 v24, 3, {L}
        v_add_u32 v24, s82, v24
        v_mul_lo_u32 v24, v24, s84
        v_and_b32 v1, 7, {L}
        v_min_u32 v1, 6, v1
        v_lshl_add_u32 v24, v1, 7, v24
        s_lshr_b32 s83, s{S_NT}, 2
        s_mul_i32 s90, s83, 896
        v_add_u32 v24, s90, v24
        v_bfe_u32 v21, {L}, 1, 4
        v_add_u32 v21, s82, v21
        v_lshlrev_b32 v21, 11, v21
        v_and_b32 v1, 1, {L}
        v_lshl_add_u32 v21, v1, 7, v21
        s_lshl_b32 s83, s83, 8
        v_add_u32 v21, s83, v21
        s_lshl_b32 s{S_LMASK}, 0x10101, s{S_MT}
        s_cmp_eq_u32 s{S_W}, 0
        s_cselect_b32 s{S_LMASK}, {xmask:#x}, s{S_LMASK}
        s_add_u32 s82, s{S_W}, 1
        s_and_b32 s82, s82, 2
        s_cselect_b32 s{S_T2D}, {8*7168}, s{S_TSTEP}"""
    if touch:
        (pt if tpro else p)(f"""
        s_and_b32 s82, s{S_NT}, 3
        s_lshl_b32 s82, s82, 6
        s_lshl_b32 s83, s{S_MT}, 8
        s_add_u32 s82, s82, s83
        v_add_u32 v25, s82, {L}
        v_lshlrev_b32 v25, 11, v25
        {lead_addr if lead else plain_addr}
        s_mov_b32 s{S_TSTEP}, {64*7168}
        s_cmp_eq_u32 s{S_W}, 0
        s_cselect_b64 vcc, -1, 0
        s_cselect_b32 s{S_TSRD}, s{S_X}, s{S_G}
        s_cselect_b32 s{S_TSRD+1}, s{S_X+1}, s{S_G+1}
        s_cselect_b32 s{S_TSRD+2}, s{S_X+2}, s{S_G+2}
        s_cselect_b32 s{S_TSTEP}, 128, s{S_TSTEP}
        v_cndmask_b32 v{V_T}, v24, v25, vcc
        s_cmp_eq_u32 s{S_W}, 2
        s_cselect_b32 s{S_TSRD}, s{S_U}, s{S_TSRD}
        s_cselect_b32 s{S_TSRD+1}, s{S_U+1}, s{S_TSRD+1}
        s_cmp_eq_u32 s{S_W}, 3
        s_cselect_b64 vcc, -1, 0
        s_cselect_b32 s{S_TSRD}, s{S_WQ}, s{S_TSRD}
        s_cselect_b32 s{S_TSRD+1}, s{S_WQ+1}, s{S_TSRD+1}
        s_cselect_b32 s{S_TSRD+2}, s{S_WQ+2}, s{S_TSRD+2}
        s_cselect_b32 s{S_TSTEP}, 0x20000, s{S_TSTEP}
        v_cndmask_b32 v{V_T}, v{V_T}, v21, vcc
        s_mov_b32 s{S_TSRD+3}, 0x00020000
        s_mul_i32 s{S_TOFF}, s{S_TSTEP}, {3 if lead else 2 if tpro else (touch + 1 if touch >= 2 else touch + 2)}
        """)
    late = []
    for l in [l.strip() for l in p.lines]:
        if late and l.startswith(("s_cselect", "s_addc", "v_cndmask", "s_movk_i32 s50")): late[-1].append(l)
        else: late.append([l])
    late += [[f"v_and_b32 v1, 31, {L}"], ["v_lshlrev_b32 v1, 7, v1"], ["s_lshr_b32 s82, s2, 3"], ["s_and_b32 s82, s82, 15"], ["s_lshl_b32 s82, s82, 12"]]
    d0 = dma_items(0, 0, 17)
    for grp in d0[:tlbpos]: pro.items.extend(grp)
    if tlb:
        for l in ps.lines: pro.ins(l.strip())
        pro.raw(f"""
        s_mov_b32 s80, s96
        s_and_b32 s81, s97, 0xffff
        s_mov_b32 s82, {2048*1024*2:#x}
        s_mov_b32 s83, 0x00020000
        v_lshlrev_b32 v1, {tlb}, {L}
        v_min_u32 v1, 0x7f000000, v1
        """)
        for sr_ in (S_G, S_U, S_WS, S_WD, S_WO, S_KV, S_GW, S_DBG, 80, S_X):
            pro.ins(f"buffer_load_dword a{A_DUM}, v1, s[{sr_}:{sr_+3}], 0 offen")
        pro.raw(f"s_lshr_b32 s81, s{S_W}, 1\ns_and_b32 s80, s{S_W}, 1")
    for grp in d0[tlbpos:]: pro.items.extend(grp)
    for l in pt.lines: pro.ins(l.strip())
    tch = lambda: [I(f"buffer_load_dword a{A_DUM}, v{V_T}, s[{S_TSRD}:{S_TSRD+3}], s{S_TOFF} offen", vm=("touch", 0)), I(f"s_add_u32 s{S_TOFF}, s{S_TOFF}, s{S_TSTEP}")]
    if tpos == 0:
        for _ in range(tpro): pro.items.extend(tch())
    for l in pc.lines: pro.ins(l.strip().replace(f"v{V_T},", "v22x,").replace("v22x", "v19"))
    for grp in dma_items(1, 0, p1): pro.items.extend(grp)
    if tpos == 1:
        for _ in range(tpro): pro.items.extend(tch())
    one_time = [I(f"buffer_load_dword a{A_DUM}, v1, s[{S_KV}:{S_KV+3}], s82 offen"), I(f"buffer_load_dword a{A_DUM}, v1, s[{S_GW}:{S_GW+3}], 0 offen")]
    touch_ins = lambda: I(f"buffer_load_dword a{A_DUM}, v{V_T}, s[{S_TSRD}:{S_TSRD+3}], s{S_TOFF} offen", vm=("touch", 0))
    touch_adv = f"s_add_u32 s{S_TOFF}, s{S_TOFF}, s{S_TSTEP}"
    pro2 = Trace()
    pro2.wait(vm=[("st", 0)])
    pro2.ins("s_barrier")
    pro2.items.extend(reads(0, 0))

    gfast, gslow = _g_ops()
    gslow += ["v_max_f32 v25, 0x2b800000, v25", "v_rcp_f32 v23, v25", "v_mul_f32 v24, v24, v23"]
    GSPLIT = 70
    c_q = struct.unpack("<I", struct.pack("<f", math.log2(math.e) / math.sqrt(32.0)))[0]
    kvfin = [f"v_accvgpr_read_b32 v{21+r}, a{KVA+r}" for r in range(4)]
    for r in range(4): kvfin += [f"v_accvgpr_read_b32 v1, a{KVW+r}", f"v_add_f32 v{21+r}, v{21+r}, v1", f"v_mul_f32 v{21+r}, s84, v{21+r}"]
    kvfin += ["v_cvt_pk_bf16_f32 v22, v21, v22", "v_cvt_pk_bf16_f32 v23, v23, v24",
              f"v_and_b32 v1, 15, {L}", "v_lshlrev_b32 v1, 4, v1", f"v_bfe_u32 v21, {L}, 4, 1", "v_lshl_add_u32 v1, v21, 9, v1",
              f"v_lshrrev_b32 v21, 5, {L}", "v_lshl_add_u32 v1, v21, 3, v1",
              f"buffer_store_dwordx2 v[22:23], v1, s[{S_WS}:{S_WS+3}], s82 offen offset:2048 sc1",
              f"v_bfe_u32 v24, {L}, 3, 1", "v_lshlrev_b32 v24, 10, v24", f"v_bfe_u32 v21, {L}, 2, 1", "v_lshl_add_u32 v24, v21, 9, v24",
              f"v_lshrrev_b32 v21, 4, {L}", "v_lshl_add_u32 v24, v21, 6, v24", f"v_and_b32 v21, 3, {L}", "v_lshl_add_u32 v24, v21, 1, v24",
              f"buffer_store_short v22, v24, s[{S_WS}:{S_WS+3}], s83 offen sc1",
              f"buffer_store_short_d16_hi v22, v24, s[{S_WS}:{S_WS+3}], s83 offen offset:16 sc1",
              f"buffer_store_short v23, v24, s[{S_WS}:{S_WS+3}], s83 offen offset:32 sc1",
              f"buffer_store_short_d16_hi v23, v24, s[{S_WS}:{S_WS+3}], s83 offen offset:48 sc1"]
    kvsal = f"""s_lshl_b32 s82, s{S_MT}, 3
    s_lshr_b32 s83, s{S_NT}, 2
    s_add_u32 s82, s82, s83
    s_lshl_b32 s82, s82, 12
    s_add_u32 s82, s82, {WS_KV:#x}
    s_and_b32 s85, s{S_NT}, 1
    s_lshl_b32 s83, s85, 3
    s_add_u32 s83, s83, s82
    s_lshl_b32 s85, s85, 8
    s_add_u32 s82, s82, s85
    s_lshl_b32 s85, s{S_W}, 10
    s_add_u32 s82, s82, s85
    s_lshl_b32 s85, s{S_W}, 8
    s_add_u32 s83, s83, s85
    s_and_b32 s85, s{S_NT}, 2
    s_cmp_eq_u32 s85, 0
    s_cselect_b32 s84, {c_q:#x}, 1.0
    s_cselect_b32 s82, {OOB:#x}, s82
    s_cselect_b32 s83, s83, {OOB:#x}
    s_cmp_ge_u32 s{S_W}, 2
    s_cselect_b32 s82, {OOB:#x}, s82
    s_cselect_b32 s83, {OOB:#x}, s83""".split("\n")
    kvsal = [x.strip() for x in kvsal]
    kvsal = kvsal[:-7] + ["\n".join(kvsal[-7:-3]), "\n".join(kvsal[-3:])]
    segs = []
    grest = []
    def tstore(q):
        so = S_TDST if q < 7 else S_TDST2
        return [I(f"buffer_store_dwordx4 {ar(TREG[q] if tdefer else A_T,4)}, v{p2.V_L16 if tdefer else V_L16}, s[{S_WS}:{S_WS+3}], s{so} offen sc1", vm=("ts", q)), I(f"s_add_u32 s{so}, s{so}, 8192")]
    for s in range(NST - 1):
        tr = Trace()
        gaps = [[] for _ in range(66)]
        rl = reads(s, 1)
        u = s - KVD
        if 1 <= u <= 8:
            for e in range(2):
                for h in range(2):
                    rl.append(I(f"ds_read_b64_tr_b16 {ar(KVW+4*e+2*h,2)}, v{V_RKW} offset:{(s%2)*8192 + e*1024 + h*128}", lg=("kvf", s)))
        if u == 9:
            gaps[1].append(I(f"v_add_u32 v21, {LDS_KW + 8192*(s%2)}, v{V_L16}"))
            gaps[3].append(I(f"s_lshl_b32 s82, s{S_W}, 10")); gaps[5].append(I("v_add_u32 v22, s82, v21"))
            gaps[7].append(I("s_xor_b32 s82, s82, 2048")); gaps[9].append(I("v_add_u32 v21, s82, v21"))
            rl.append(I(f"ds_write_b128 v22, {ar(KVA,4)}", lg=("kvf", s)))
        for k, it in enumerate(rl): gaps[2*k].append(it)
        gaps[57].append(I(f"v_xor_b32 v{V_R3}, s{S_TOG}, v{V_R3}")); gaps[59].append(I(f"v_xor_b32 v{V_R7}, s{S_TOG}, v{V_R7}"))
        g, adv = dma_group(s + 1, ntw)
        lo = p1 if s == 0 else nhead
        G = 11 if u == 9 else 1
        for k in range(lo, len(g)):
            pre, it = g[k]
            if pre: gaps[G - 1].append(I(pre))
            gaps[G].append(it)
            for x in adv.get(k, []): gaps[G + 1].append(I(x))
            G += tsp0 if s else 4
        G = max(G - (tsp0 if s else 4) + 2, 3)
        if touch and (s >= 1 or tpro) and s + touch + 1 < NST and not (tpro and s + touch + 1 < 2 + tpro):
            if lead:
                for r_ in range(touch if s == 1 else 1):
                    gaps[G - 1].append(I(f"s_bitcmp1_b32 s{S_LMASK}, {s + r_ + lphase}\ns_cselect_b32 s60, s{S_TOFF}, {OOB:#x}"))
                    gaps[G].append(I(f"buffer_load_dword a{A_DUM}, v{V_T}, s[{S_TSRD}:{S_TSRD+3}], s60 offen"))
                    gaps[G + 1].append(I(f"s_add_u32 s60, s60, s{S_T2D}")); gaps[G + 1].append(I(touch_adv))
                    gaps[G + 2].append(I(f"buffer_load_dword a{A_DUM}, v{V_T}, s[{S_TSRD}:{S_TSRD+3}], s60 offen")); G += 4
            else:
              for _ in range(2 if (s == 1 and touch >= 2 and not tpro) else 1):
                gaps[G].append(touch_ins()); gaps[G + 1].append(I(touch_adv)); G += 2
        if tt0 and tt0 <= s < tt0 + 4:
            if s == tt0:
                pre_ = f"""v_lshrrev_b32 v21, 3, {L}
                v_min_u32 v21, 5, v21
                v_lshlrev_b32 v22, 16, v21
                v_cmp_lt_u32 vcc, 2, v21
                v_and_b32 v21, 7, {L}
                v_lshl_add_u32 v22, v21, 11, v22
                v_add_u32 v23, {16*2048}, v22
                v_cndmask_b32 v22, v22, v23, vcc
                v_bfe_u32 v23, {L}, 2, 1
                v_lshl_add_u32 v23, v23, 2, v21
                v_lshlrev_b32 v23, 11, v23
                v_and_b32 v24, 0x1ffff, v22
                s_lshr_b32 s61, s{S_MT}, 1""".split("\n")
                for k_, x in enumerate(pre_): gaps[2*k_ + 1].append(I(x.strip()))
                G = max(G, 28)
            gaps[G - 1].append(I(f"s_cmp_eq_u32 s61, {s - tt0}\ns_cselect_b32 s62, s{S_TSRC}, {OOB:#x}\ns_cselect_b32 s63, s{S_TSRCS}, {OOB:#x}\ns_cselect_b32 s60, s{S_TSRC2}, {OOB:#x}"))
            gaps[G].append(I(f"buffer_load_dword a{A_DUM}, v22, s[{S_WD}:{S_WD+3}], s62 offen")); G += 2
            gaps[G].append(I(f"buffer_load_dword a{A_DUM}, v23, s[{S_WD}:{S_WD+3}], s63 offen")); G += 2
            gaps[G].append(I(f"buffer_load_dword a{A_DUM}, v24, s[{S_WO}:{S_WO+3}], s60 offen")); G += 2
        if 0 <= u <= 7:
            for e in range(2):
                gaps[G].append(I(f"buffer_load_dwordx4 {ar(A_KX + 8*(u%2) + 4*e,4)}, v{V_KX}, s[{S_X}:{S_X+3}], 0 offen offset:{u*256 + e*64}", vm=("kx", u))); G += 2
        q = s - tq0
        if 0 <= q < 9:
            fl = " nt" if ntt else ""
            gaps[G - 1].append(I(f"s_add_u32 m0, s{S_M0T}, {(q%3)*4096}"))
            if q == 6:
                gaps[G - 2].append(I(f"v_lshrrev_b32 v{V_KX}, 5, {L}")); gaps[G - 1].append(I(f"v_lshl_add_u32 v{V_KX}, v{V_KX}, 13, v{V_DT}"))
                gaps[G].append(I(f"buffer_load_dwordx4 v{V_KX}, s[{S_WD}:{S_WD+3}], s{S_TSRCS} offen{fl} lds", vm=("t", q)))
            else:
                srdn, so = (S_WD, S_TSRC) if q < 7 else (S_WO, S_TSRC2)
                gaps[G].append(I(f"buffer_load_dwordx4 v{V_DT}, s[{srdn}:{srdn+3}], s{so} offen{fl} lds", vm=("t", q)))
                gaps[G + 1].append(I(f"s_add_u32 s{so}, s{so}, {48*2048 if q == 2 else 0x10000}"))
            G += 2
        q = s - tq0 - 2
        if 0 <= q < 9 and not tdefer:
            x, y = tstore(q); gaps[G].append(x); gaps[G + 1].append(y); G += 2
        if s == ot:
            for x in one_time: gaps[G].append(x); G += 2
        if s == 2:
            gaps[G - 1].append(I(f"v_mov_b32 v21, s{S_TAG}"))
            gaps[G].append(I(f"s_or_b32 s83, s2, s{S_W}\ns_cselect_b32 s83, {OOB:#x}, 0")); G += 2
            gaps[G].extend([I("s_mov_b64 exec, 1"), I(f"buffer_store_dword v21, off, s[{S_DBG}:{S_DBG+3}], s83 sc1"), I("s_mov_b64 exec, -1")]); G += 2
        if s == (11 if gsm else 6):
            gaps[G].append(I(f"buffer_load_dword a{A_TAG}, off, s[{S_DBG}:{S_DBG+3}], 0 sc1", vm=("zp", 0))); G += 2
        if s == esig + 1:
            gaps[G - 2].append(I(f"s_lshl_b32 s82, s{S_MT}, 5")); gaps[G - 1].append(I(f"s_add_u32 s82, s82, s{S_NT}\ns_lshl_b32 s82, s82, 7")); gaps[G].append(I(f"s_add_u32 s82, s82, {WS_FLAG + 0x28000:#x}"))
            gaps[G + 1].append(I(f"s_cmp_eq_u32 s{S_W}, 0\ns_cselect_b32 s82, s82, {OOB:#x}")); G += 2
            gaps[G].extend([I("s_mov_b64 exec, 1"), I(f"buffer_store_dword a{A_TAG}, off, s[{S_WS}:{S_WS+3}], s82 sc1"), I("s_mov_b64 exec, -1")]); G += 2
        if gsm and s == 10:
            gaps[G].extend([I("s_mov_b32 exec_lo, 1\ns_mov_b32 exec_hi, 1"), I(f"buffer_store_dwordx2 v[24:25], v{V_GROW}, s[{S_WS}:{S_WS+3}], 0 offen sc1"), I("s_mov_b64 exec, -1")]); G += 2
        kvstart = G
        if s == gl:
            for q_ in range(4):
                gaps[G].append(I(f"buffer_load_dwordx4 {ar(A_GX+4*q_,4)}, v{V_L16}, s[{S_X}:{S_X+3}], s{S_GROW} offen offset:{1024*q_}", vm=("g", 0))); G += 2
            for q_ in range(2):
                gaps[G].append(I(f"buffer_load_dwordx4 {ar(A_GW+4*q_,4)}, v{V_L16}, s[{S_GW}:{S_GW+3}], 0 offen offset:{1024*q_}", vm=("g", 0))); G += 2
        assert G < 64, (s, G)
        tr.wait(lg=[("fr", s, 0)] + ([("tf", q)] if 0 <= q < 9 else []) + ([("kvp", 0)] if u == 10 else []))
        vq = []
        if (gl + 2 <= s <= 9) if gsm else s in (gs + 2, gs + 3): vq = gfast
        if u == 10: vq = list(kvfin)
        k = 0
        for j in range(8):
            for i in range(8):
                tr.ins(mfma(0, j, i, first=(s == 0)))
                tr.items.extend(gaps[k])
                cap = vcap(gaps[k])
                if gsm and vq is gfast: cap = 0 if gaps[k] else 1
                if s == 0:
                    for _ in range(2):
                        if late and cap > 0:
                            for l in late.pop(0): tr.ins(l)
                            cap -= 1
                while vq and cap > 0 and not (u == 10 and k < kvstart - 8):
                    if vq[0].startswith("buffer_"):
                        if cap < 2: break
                        tr.ins(vq.pop(0), vm=("kvst", 0)); cap -= 2
                    else:
                        tr.ins(vq.pop(0)); cap -= 1
                k += 1
        if (s >= 9) if gsm else s != gs + 2: assert not vq
        need = [("st", s + 1)]
        if 0 <= s - tq0 - 1 < 9: need.append(("t", s - tq0 - 1))
        if s == (gl + 1 if gsm else gs + 1): need.append(("g", 0))
        if 1 <= u <= 8: need.append(("kx", u - 1))
        if s == (12 if gsm else 7): need.append(("zp", 0))
        if s == esig: need.append(("kvst", 0))
        if fflag and s == 14: need.append(("ts", 8))
        if pads and s == chain_at: tr.ins("@CHAIN1")
        tr.wait(vm=need, lg=[("fr", s, 1)] + ([("kvf", s)] if 1 <= u <= 9 else []))
        tr.ins("s_barrier")
        segs.append(tr)
        tr = Trace()
        gaps = [[] for _ in range(68)]
        for k, it in enumerate(reads(s + 1, 0)): gaps[2*k + 1].append(it)
        q = s - tq0 - 1
        if 0 <= q < 9:
            for h in range(2):
                gaps[49 + 2*h].append(I(f"ds_read_b64_tr_b16 {ar((TREG[q] if tdefer else A_T)+2*h,2)}, v{V_RT} offset:{(q%3)*4096 + h*2048}", lg=("tf", q)))
        if u == 9:
            gaps[53].append(I(f"ds_read_b128 {ar(KVW,4)}, v21", lg=("kvp", 0)))
            for k, x in enumerate(kvsal): gaps[2*k + 3 if 2*k + 3 < 48 else 55].append(I(x.strip()))
        if s + 2 < NST:
            g, adv = dma_group(s + 2, ntw)
            hg = [hstart + 2*round(k*(62 - hstart)/(2*nhead)) for k in range(nhead)]
            for k in range(nhead):
                pre, it = g[k]
                if pre:
                    if hg[k]: gaps[hg[k] - 1].insert(0, I(pre))
                    else: tr.ins(pre)
                gaps[hg[k]].append(it)
                for x in adv.get(k, []): gaps[hg[k] + 2].append(I(x))
        if s == (12 if gsm else 7):
            gaps[54].append(I(f"v_accvgpr_read_b32 v1, a{A_TAG}"))
            gaps[56].append(I(f"v_cmp_eq_u32 vcc, 0, v1")); gaps[58].append(I("s_cbranch_vccnz KM_ZSPIN\nKM_ZBACK:"))
            gaps[60].append(I(f"v_accvgpr_write_b32 a{A_TAG}, v1")); gaps[62].append(I(f"v_readfirstlane_b32 s{S_TAG}, v1"))
        if retouch and s == 13:
            gaps[30].append(I("s_getpc_b64 s[76:77]\nKM_PC2:\ns_add_u32 s76, s76, KM_EBACK-KM_PC2\ns_addc_u32 s77, s77, 0"))
            gaps[32].append(I("s_and_b32 s77, s77, 0xffff")); gaps[34].append(I("s_mov_b32 s78, KM_FALLBACK2-KM_EBACK"))
            gaps[36].append(I("s_mov_b32 s79, 0x00020000")); gaps[38].append(I("s_lshr_b32 s51, s2, 3"))
            gaps[40].append(I(f"s_lshl_b32 s51, s51, 2\ns_add_u32 s51, s51, s{S_W}")); gaps[42].append(I("s_lshl_b32 s51, s51, 8"))
            gaps[44].append(I(f"v_and_b32 v1, 1, {L}")); gaps[46].append(I("v_lshlrev_b32 v1, 7, v1"))
            gaps[52].append(I(f"buffer_load_dword a{A_DUM}, v1, s[76:79], s51 offen"))
        if s == 14:
            gaps[0].append(I(f"v_lshlrev_b32 v{V_T}, 7, {L}"))
            gaps[2].append(I(f"s_mov_b32 s{S_EF}, {WS_FLAG + 0x28000:#x}"))
            gaps[epos].append(I(f"buffer_load_dword v{V_KX}, v{V_T}, s[{S_WS}:{S_WS+3}], s{S_EF} offen sc1", vm=("ep", 0)))
        vq = []; slow = []; slow_from = None
        if (gl + 1 <= s <= 8) if gsm else s in (gs + 1, gs + 2): vq = gfast
        if s == (9 if gsm else gs + 3): slow = list(gslow)
        ml = [mfma(1, j, i) for j in range(8) for i in range(8)]
        if 1 <= u <= 8:
            for e in range(2):
                ml.insert(30 + 20*e, f"v_mfma_f32_16x16x32_bf16 {ar(KVA,4)}, {ar(A_KX + 8*((u-1)%2) + 4*e,4)}, {ar(KVW+4*e,4)}, {'0' if (u == 1 and e == 0) else ar(KVA,4)}")
        for k, m in enumerate(ml):
            tr.ins(m)
            tr.items.extend(gaps[k])
            for _ in range((0 if gaps[k] else 1) if (gsm and vq) else vcap(gaps[k])):
                if vq: tr.ins(vq.pop(0))
                elif s == 0 and late:
                    for l in late.pop(0): tr.ins(l)
            if slow and not vq:
                if slow_from is None: slow_from = k + 2
                if k >= slow_from and (k - slow_from) % 2 == 0: tr.ins(slow.pop(0))
        for k in range(len(ml), 68): assert not gaps[k], (s, k)
        assert not slow and not late
        segs.append(tr)

    P = p2
    ec = Trace()
    ec.wait(vm=[("ep", 0)])
    ec.raw(f"""
    v_cmp_ne_u32 vcc, s{S_TAG}, v{V_KX}
    s_and_b32 s80, s2, 7
    s_lshr_b32 s81, s80, 1
    s_lshl_b32 s{P.S_MT}, s{S_MT}, 2
    s_cbranch_vccnz KM_ESPIN
    KM_EBACK:
    s_add_u32 s{P.S_MT}, s{P.S_MT}, s81
    s_lshl_b32 s{P.S_M0KV}, s{S_W}, 13
    s_add_u32 s82, s{P.S_M0KV}, {WS_KV:#x}
    s_add_u32 s{P.S_KVB}, s86, s82
    s_addc_u32 s{P.S_KVB+1}, s87, 0
    v_add_u32 v{V_DK}, 4096, v{V_L16}
    """)
    su2 = f"""
    s_and_b32 s80, s80, 1
    s_lshl_b32 s80, s80, 2
    s_and_b32 s90, s{S_NT}, 3
    s_add_u32 s{P.S_NT}, s80, s90
    s_lshr_b32 s90, s{P.S_MT}, 1
    s_mul_i32 s90, s90, 112
    s_mul_i32 s91, s{S_W}, 28
    s_add_u32 s90, s90, s91
    s_lshl_b32 s90, s90, 13
    s_and_b32 s42, s{P.S_MT}, 1
    s_lshl_b32 s42, s42, 12
    s_add_u32 s90, s90, s42
    s_add_u32 s58, s86, s90\ns_addc_u32 s59, s87, 0
    s_add_u32 s60, s58, 0x2000\ns_addc_u32 s61, s59, 0
    s_add_u32 s62, s58, 0x4000\ns_addc_u32 s63, s59, 0
    s_add_u32 s70, s58, 0x6000\ns_addc_u32 s71, s59, 0
    s_mov_b64 s[{P.S_HB}:{P.S_HB+1}], {'s[70:71]' if nhd else 's[62:63]'}
    s_mul_i32 s90, s{P.S_NT}, 144
    s_add_u32 s91, s91, s90
    s_lshl_b32 s91, s91, 13
    s_add_u32 s91, s91, {WS_WT:#x}
    s_add_u32 s64, s86, s91\ns_addc_u32 s65, s87, 0
    s_add_u32 s68, s64, 0x2000\ns_addc_u32 s69, s65, 0
    s_mov_b64 s[{P.S_WB}:{P.S_WB+1}], s[68:69]
    s_add_u32 s{P.S_XB}, s64, {P.SF0*8192}\ns_addc_u32 s{P.S_XB+1}, s65, 0
    s_lshl_b32 s91, s{S_W}, 3
    s_add_u32 s90, s90, s91
    s_lshl_b32 s90, s90, 13
    s_add_u32 s90, s90, {WS_WT + 112*8192:#x}
    s_add_u32 s{P.S_WOB}, s86, s90\ns_addc_u32 s{P.S_WOB+1}, s87, 0
    s_mul_i32 s{P.S_M0SP}, s{S_W}, 24576
    s_add_u32 s{P.S_M0SP}, s{P.S_M0SP}, {P.LDS_SP}
    s_mov_b32 s{P.S_SPM}, s{P.S_M0SP}
    s_add_u32 s{P.S_M0C}, s{P.S_M0KV}, 0x8000
    s_mov_b32 s{P.S_CNT}, 6
    s_add_u32 s66, s{P.S_WOB}, {(P.SF0 + 3 - P.NDOWN)*8192}\ns_addc_u32 s67, s{P.S_WOB+1}, 0
    s_mov_b32 s{P.S_OUT}, s96
    s_and_b32 s{P.S_OUT+1}, s97, 0xffff
    s_mov_b32 s{P.S_OUT+2}, {2048*1024*2:#x}
    s_mov_b32 s{P.S_OUT+3}, 0x00020000
    s_mov_b32 s{P.S_OF}, s{S_FLG}
    s_lshl_b32 s90, s{P.S_MT}, 12
    s_add_u32 s{P.S_OP}, s90, {WS_FLAG:#x}
    s_lshl_b32 s90, s{S_W}, 13
    s_add_u32 s{P.S_HP}, s90, {WS_FLAG + 0x20000:#x}
    s_lshl_b32 s90, s2, 7
    s_add_u32 s90, s90, {WS_FLAG + 0x20000:#x}
    s_cmp_eq_u32 s{S_W}, 0\ns_cselect_b32 s{P.S_HF}, s90, {OOB:#x}
    """
    su2 = [x.strip() for x in su2.strip().split("\n    ")]

    def last_stage(wn):
        tr = Trace()
        s = NST - 1
        su = f"""
        s_lshr_b32 s81, s{S_W}, 1
        s_lshl_b32 s82, s{S_MT}, 1
        s_add_u32 s82, s82, s81
        s_mul_i32 s82, s82, 112
        s_lshr_b32 s83, s{S_NT}, 1
        s_mul_i32 s83, s83, 7
        s_add_u32 s82, s82, s83
        s_and_b32 s84, s{S_NT}, 1
        s_add_u32 s85, s82, 6
        s_lshl_b32 s85, s85, 13
        s_mul_i32 s83, s84, 3
        s_add_u32 s82, s82, s83
        s_add_u32 s82, s82, {2*wn}
        s_lshl_b32 s82, s82, 13
        s_add_u32 s83, s82, 8192
        """
        if wn:
            su += f"""
            s_lshl_b32 s84, s84, 9
            s_add_u32 s85, s85, s84
            v_and_b32 v21, 15, {L}
            v_lshlrev_b32 v21, 4, v21
            v_bfe_u32 v24, {L}, 4, 1
            v_lshl_add_u32 v22, v24, 9, v21
            v_lshl_add_u32 v21, v24, 10, v21
            v_lshrrev_b32 v24, 5, {L}
            v_lshl_add_u32 v22, v24, 10, v22
            v_lshl_add_u32 v21, v24, 8, v21
            s_lshl_b32 s81, s81, 13
            s_add_u32 s81, s81, {P.LDS_Q}
            v_add_u32 v22, s81, v22
            v_add_u32 v23, 4096, v21
            """
        setup = [l.strip() for l in su.strip().split("\n") if l.strip()] + su2
        ffn = lambda t, i: dict(kind="f", t=t, i=i, mf=[(2*t, i), (4 + 2*t, i), (2*t + 1, i), (5 + 2*t, i)])
        if wn == 0:
            halves = [[ffn(0, i) for i in range(8)], [ffn(1, i) for i in range(8)]]
        else:
            halves = [[dict(kind="q", i=i, mf=[(3, i), (7, i)]) for i in range(8)] +
                      [dict(kind="s", i=i, mf=[(2, i), (6, i), (2, i + 1), (6, i + 1)]) for i in range(0, 8, 2)],
                      [ffn(0, i) for i in range(8)]]
        for pc in halves[1][8 - ndef:]: pc["defer"] = True
        setup.append(f"s_mov_b32 s3, {'s82' if wn else 's83'}")
        pieces = halves[0] + halves[1]
        half = len(halves[0])
        jsets = [sorted(set(j for pc in hv for j, _ in pc["mf"])) for hv in halves]
        def piece_ops(pc, pk):
            o = []
            i = pc["i"]
            tmp = 12 + 4*(i % 2)
            def reg(j, i):
                p_, b = accn(j, i)
                if p_ == "v": return b
                for r in range(4): o.append(f"v_accvgpr_read_b32 v{tmp+r}, a{b+r}")
                return tmp
            r_ = [reg(j, i_) for j, i_ in pc["mf"]]
            if pc["kind"] == "q":
                g0_, g1_ = r_
            else:
                g0_, u0, g1_, u1 = r_
                for g_, u_ in ((g0_, u0), (g1_, u1)):
                    for r in range(4): o.append(f"v_max_f32 v{g_+r}, 0, v{g_+r}")
                    if pk:
                        o.append(f"v_pk_mul_f32 {vr(g_,2)}, {vr(g_,2)}, {vr(u_,2)}")
                        o.append(f"v_pk_mul_f32 {vr(g_+2,2)}, {vr(g_+2,2)}, {vr(u_+2,2)}")
                    else:
                        for r in range(4): o.append(f"v_mul_f32 v{g_+r}, v{g_+r}, v{u_+r}")
            dfr = pc.get("defer")
            d_ = 160 + 4*i if dfr else g0_
            o += [f"v_cvt_pk_bf16_f32 v{d_}, v{g0_}, v{g0_+1}", f"v_cvt_pk_bf16_f32 v{d_+1}, v{g0_+2}, v{g0_+3}",
                  f"v_cvt_pk_bf16_f32 v{d_+2}, v{g1_}, v{g1_+1}", f"v_cvt_pk_bf16_f32 v{d_+3}, v{g1_+2}, v{g1_+3}"]
            if dfr: return o
            if pc["kind"] == "q":
                o.append(f"ds_write_b128 v22, {vr(g0_,4)} offset:{(i//2)*2048 + (i%2)*256}")
            elif pc["kind"] == "s":
                o += ["s_nop 1", f"v_permlane16_swap_b32 v{g0_}, v{g0_+2}", f"v_permlane16_swap_b32 v{g0_+1}, v{g0_+3}",
                      f"buffer_store_dwordx4 {vr(g0_,4)}, {'v21' if i < 4 else 'v23'}, s[{S_WS}:{S_WS+3}], s85 offen offset:{(i%4)*1024} sc1"]
            else:
                o.append(f"buffer_store_dwordx4 {vr(g0_,4)}, {'v%d' % (V_L16 if i < 4 else V_DK)}, s[{S_WS}:{S_WS+3}], {'s82' if pc['t'] == 0 else 's83'} offen offset:{(i%4)*1024} sc1")
            return o
        rl = [xread(s, 1, i) for i in range(8)]
        for j in jsets[0]: rl += [wread(s, 1, j, 0), wread(s, 1, j, 1)]
        for x in rl: x["lg"] = ("frA", 0)
        for j in jsets[1]: rl += [wread(s, 1, j, 0), wread(s, 1, j, 1)]
        kv0 = []
        for part in range(2):
            cl = [P.kv_dma(0, part, j) for j in range(4)]
            for x in cl: x["text"] = x["text"].replace(f"v{P.V_L16},", f"v{V_L16},").replace(f"v{P.V_L16B},", f"v{V_DK},")
            kv0.append(cl)
        q = s - tq0 - 2
        tr.wait(lg=[("fr", s, 0)] + ([("tf", q)] if 0 <= q < 9 else []))
        first = []
        if fflag:
            first.append([I(f"s_lshl_b32 s82, s2, 7\ns_add_u32 s82, s82, {WS_FLAG + 0x30000:#x}\ns_cmp_eq_u32 s{S_W}, 0\ns_cselect_b32 s82, s82, {OOB:#x}")])
            first.append([I("s_mov_b64 exec, 1"), I(f"buffer_store_dword a{A_TAG}, off, s[{S_WS}:{S_WS+3}], s82 sc1"), I("s_mov_b64 exec, -1")])
        if gs + 4 == s and not gsm:
            first.append([I("s_mov_b32 exec_lo, 1\ns_mov_b32 exec_hi, 1"), I(f"buffer_store_dwordx2 v[24:25], v{V_GROW}, s[{S_WS}:{S_WS+3}], 0 offen sc1", vm=("hst", 0)), I("s_mov_b64 exec, -1")])
        if 0 <= q < 9 and not tdefer: first.append([tstore(q)[0]])
        for k, (j, i) in enumerate([(j, i) for j in jsets[0] for i in range(8)]):
            tr.ins(mfma(0, j, i))
            if first:
                tr.items.extend(first.pop(0)); continue
            if k in (26, 29): tr.ins(f"s_add_u32 m0, s{P.S_M0KV}, {4096 if k == 29 else 0}")
            elif k in (27, 30): tr.items.extend(kv0.pop(0))
            elif rl: tr.items.append(rl.pop(0))
            for _ in range(2):
                if setup: tr.ins(setup.pop(0))
        assert not rl
        tr.items.extend(adv64(P.S_KVB, 32768))
        for x in setup: tr.ins(x)
        tr.wait(lg=[("frA", 0)])
        ml = []
        for pi, pc in enumerate(pieces):
            if pi == half:
                ml.append((W(lg=[("fr", s, 1)]), None))
                ml += [(mfma(0, j, i), None) for j in jsets[1] for i in range(8)]
            for j, i in pc["mf"]: ml.append((mfma(1, j, i), pi))
        done_at = {}; cnt = 0; vq = []; nextp = 0
        def put(x):
            tr.ins(x, vm=("hst", 0) if x.startswith("buffer_") else None, lg=("qw", 0) if x.startswith("ds_") else None)
        for k, (m, pi) in enumerate(ml):
            if isinstance(m, dict):
                tr.items.append(m); continue
            tr.ins(m); cnt += 1
            if pi is not None and (k + 1 == len(ml) or ml[k + 1][1] != pi): done_at[pi] = cnt
            budget = 2
            while budget > 0:
                if not vq and nextp in done_at and cnt - done_at[nextp] >= 9:
                    vq = piece_ops(pieces[nextp], False); nextp += 1
                if not vq: break
                c_ = 2 if vq[0].startswith(("buffer_", "ds_")) else 1
                if c_ > budget: break
                put(vq.pop(0)); cnt += 1; budget -= c_
        for x in vq: put(x); cnt += 1
        while nextp < len(pieces):
            if cnt - done_at[nextp] < 9: tr.ins("s_nop 7"); cnt += 8
            for x in piece_ops(pieces[nextp], True): put(x); cnt += 1
            nextp += 1
        return tr
    l0, l1 = last_stage(0), last_stage(1)

    L2 = f"v{P.V_LANE}"
    h2 = Trace()
    h2.raw(f"""
    v_mov_b32 {L2}, {L}
    v_mov_b32 v{P.V_L16}, v{V_L16}
    v_mov_b32 v{P.V_L16B}, v{V_DK}
    v_mov_b32 v{P.V_KVR}, v{V_L16}
    s_lshl_b32 s80, s{S_W}, 12
    s_add_u32 s80, s80, {P.LDS_Q}
    v_add_u32 v24, s80, v{V_L16}
    """)
    h2.wait(vm=[("kv", 0)])
    h2.raw("s_waitcnt lgkmcnt(0)\ns_barrier")
    for q in range(4): h2.ins(f"ds_read_b128 {ar(P.A_Q + 4*q,4)}, v24 offset:{q*1024}", lg=("q", 0))
    for half in range(2): h2.items.append(P.k_read(0, half))
    for half in range(2): h2.items.append(P.v_read(0, half))
    for pp in range(4):
        h2.raw(f"""
        s_add_u32 s80, s{S_W}, {pp}
        s_and_b32 s80, s80, 3
        s_lshl_b32 s80, s80, 11
        v_add_u32 v{P.V_W+pp}, s80, v{P.V_L16}
        """)
    h2.wait(lg=[("k", 0)])
    h2.ins(P.qk(0, 0)); h2.ins(P.qk(0, 1))
    for q in range(4):
        h2.ins(f"v_add_u32 v{P.V_SP+q}, s{P.S_M0SP}, v{P.V_W+q}")
        h2.ins(f"v_add_u32 v{P.V_KP+q}, s{P.S_M0KV}, v{P.V_W+q}")
    h2.raw(f"""
    v_bfe_u32 v26, {L2}, 4, 1
    v_bfe_u32 v27, {L2}, 2, 1
    v_cmp_eq_u32 vcc, v26, v27
    v_mov_b32 v26, 0x3f803f80
    s_lshl_b32 s40, s{P.S_MT}, 9
    s_add_u32 s40, s40, {WS_G:#x}
    v_cndmask_b32 v26, 0, v26, vcc
    """)
    for r in range(4): h2.ins(f"v_accvgpr_write_b32 a{P.A_SEL+r}, v26")
    h2.raw(f"""
    s_lshl_b32 s41, s{S_MT}, 11
    s_lshl_b32 s80, s{S_W}, 9
    s_add_u32 s41, s41, s80
    s_add_u32 s41, s41, {WS_G:#x}
    v_and_b32 v26, 31, {L2}
    v_lshlrev_b32 v26, 3, v26
    v_and_b32 v27, 15, {L2}
    v_lshlrev_b32 v27, 3, v27
    v_lshlrev_b32 v25, 7, {L2}
    v_mov_b32 v24, s{S_TAG}
    """)
    if ptc:
        h2.raw(f"""
        s_sub_u32 s80, s64, s86
        s_lshl_b32 s81, s{S_MT}, 10
        s_add_u32 s80, s80, s81
        s_sub_u32 s81, s58, s86
        s_and_b32 s82, s{S_NT}, 3
        s_lshl_b32 s82, s82, 10
        s_add_u32 s81, s81, s82
        s_add_u32 s81, s81, 8192
        v_and_b32 v29, 7, {L2}
        v_lshlrev_b32 v29, 7, v29
        v_add_u32 v30, s81, v29
        v_add_u32 v29, s80, v29
        v_and_b32 v{P.V_TCH}, 8, {L2}
        v_cmp_eq_u32 vcc, 0, v{P.V_TCH}
        s_mov_b32 s{P.S_TCO}, 0
        s_nop 0
        v_cndmask_b32 v{P.V_TCH}, v30, v29, vcc
        """)
    if retouch >= 2:
        h2.raw(f"v_and_b32 v17, 1, {L2}\nv_lshlrev_b32 v17, 7, v17\ns_and_b32 s43, s51, 0x1f00\ns_add_u32 s43, s43, KM_TAIL-KM_EBACK")
    def rebase(x, frm, to):
        x["text"] = x["text"].replace(f"s[{frm}:{frm+1}]", f"s[{to}:{to+1}]"); return x
    wl = lambda sg, J0, b: [rebase(P.w_load(sg, J), P.S_WB, b) for J in range(J0, J0 + 4)]
    hl = lambda sg, b: [rebase(P.h_load(sg, i), P.S_HB, b) for i in range(4)]
    early = []
    timed = [(1 + q // 3, tstore(q)) for q in range(9)] if tdefer else []
    if tp2:
        LT2 = 81920
        h2.raw(f"""
        v_lshrrev_b32 v17, 5, {L2}
        v_lshl_add_u32 v17, v17, 13, v{V_DT}
        v_add_u32 v{V_RT}, {LT2 - LDS_T}, v{V_RT}
        s_add_u32 s{S_M0T}, s{S_M0T}, {LT2 - LDS_T}
        """)
        fl = " nt" if ntt else ""
        for q in range(9):
            it_ = [I(f"s_add_u32 m0, s{S_M0T}, {q*4096}"), I("s_nop 0")]
            if q == 6: it_.append(I(f"buffer_load_dwordx4 v17, s[{S_WD}:{S_WD+3}], s{S_TSRCS} offen{fl} lds", vm=("t", q)))
            else:
                srdn, so = (S_WD, S_TSRC) if q < 7 else (S_WO, S_TSRC2)
                it_ += [I(f"buffer_load_dwordx4 v{V_DT}, s[{srdn}:{srdn+3}], s{so} offen{fl} lds", vm=("t", q)), I(f"s_add_u32 s{so}, s{so}, {48*2048 if q == 2 else 0x10000}")]
            timed.append((1 + q // 3, it_))
        timed.append((tb, [W(vm=[("t", 8)]), I("s_barrier")]))
        for q in range(9):
            timed.append((tb + q // 3, [I(f"ds_read_b64_tr_b16 {ar(P.A_WR + 4*q + 2*h,2)}, v{V_RT} offset:{q*4096 + h*2048}", lg=("tf", q)) for h in range(2)]))
        for q in range(9):
            so = S_TDST if q < 7 else S_TDST2
            timed.append((tb + 3 + q // 3, [W(lg=[("tf", q)]), I(f"buffer_store_dwordx4 {ar(P.A_WR + 4*q,4)}, v{P.V_L16}, s[{S_WS}:{S_WS+3}], s{so} offen sc1", vm=("ts", q)), I(f"s_add_u32 s{so}, s{so}, 8192")]))
    timed += [(dsl + k // 2, [I(f"buffer_store_dwordx4 {vr(160 + 4*i,4)}, v{P.V_L16 if i < 4 else P.V_L16B}, s[{S_WS}:{S_WS+3}], s3 offen offset:{(i%4)*1024} sc1", vm=("hst", 0))]) for k, i in enumerate(range(8 - ndef, 8))]
    timed += [(hsig, [W(vm=[("hst", 0), ("ts", 8)]), I("s_barrier"), I("s_mov_b64 exec, 1"), I(f"buffer_store_dword v24, off, s[{S_WS}:{S_WS+3}], s{P.S_HF} sc1"), I("s_mov_b64 exec, -1")]),
             (hpoll, [I(f"buffer_load_dword v28, v25, s[{S_WS}:{S_WS+3}], s{P.S_HP} offen sc1", vm=("hp", 0))]),
             (hpoll + 2, [W(vm=[("hp", 0)]), I(f"v_cmp_ne_u32 vcc, s{S_TAG}, v28"), I("s_nop 0"), I("s_cbranch_vccnz KM_HSPIN"), I("KM_HBACK:"), I("s_barrier")] + sum([[P.tch_ins(), I(f"s_add_u32 s{P.S_TCO}, s{P.S_TCO}, 8192")] for _ in range(ptc)], []) + hl(0, 58)),
             ]
    gl_ = [[I(f"buffer_load_dword v{P.V_G+hh}, v26, s[{S_WS}:{S_WS+3}], s41 offen offset:{hh*256} sc1", vm=("g2", 0)) for hh in range(2)],
           [I(f"buffer_load_dword v{P.V_OMG+i}, v27, s[{S_WS}:{S_WS+3}], s40 offen offset:{4 + i*128} sc1", vm=("g2", 0)) for i in range(4)]]
    if fflag:
        hs, hp, hc = timed
        hs[1][0]["needvm"].append(("fp", 0))
        hs = (hs[0], [hs[1][0], I(f"v_cmp_ne_u32 vcc, s{S_TAG}, v28"), I("s_nop 0"), I("s_cbranch_vccnz KM_FSPIN"), I("KM_FBACK:")] + hs[1][1:])
        fp = (fpoll, [I(f"s_add_u32 s43, s{P.S_HP}, 0x10000"), I(f"buffer_load_dword v28, v25, s[{S_WS}:{S_WS+3}], s43 offen sc1", vm=("fp", 0))])
        pre_d = [wl(0, 0, 64), wl(0, 4, 64), wl(1, 0, 68), wl(1, 4, 68), gl_[0], gl_[1]]
        post_d = [(hpoll + 3, hl(1, 60)), (hpoll + 4, hl(2, 62)), (hpoll + 5, hl(3, 70))]
    elif nhd:
        timed += [(hpoll + 2, wl(0, 0, 64)), (hpoll + 3, wl(0, 4, 64)), (hpoll + 4, wl(1, 0, 68)), (hpoll + 5, wl(1, 4, 68)),
                  (hpoll + 6, hl(1, 60)), (hpoll + 7, hl(2, 62)), (hpoll + 8, hl(3, 70)), (hpoll + 12, gl_[0]), (hpoll + 13, gl_[1])]
    else:
        sl_ = lambda k: min(hpoll + 2 + (k*psp) // 2, 30)
        timed += [(sl_(k + 1), x) for k, x in enumerate([wl(0, 0, 64), wl(0, 4, 64), hl(1, 60), wl(1, 0, 68), wl(1, 4, 68), hl(2, 62), gl_[0], gl_[1]])]
        zl = [I(f"v_mov_b32 v{P.ACC + r}, 0") for r in range(128)]
        timed = [(1 + k // 2, zl[8*k: 8*k + 8]) for k in range(8)] + [timed[0]] + [(hsig + 1 + k // 2, zl[64 + 8*k: 72 + 8*k]) for k in range(8)] + timed[1:]
    NDOWN = P.NDOWN
    xl = [([P.x_base(sg)] if J0 == 0 else []) + [P.w_load(sg, J) for J in range(J0, J0 + 4)] for sg in (NDOWN + 6, NDOWN + 7) for J0 in (0, 4)]
    def xfix(grps, s):
        for g_ in grps:
            for x in g_: x["text"] = x["text"].replace(f"s[{P.S_XB}:{P.S_XB+1}]", "s[52:53]").replace(f"s_add_u32 s{P.S_XB},", "s_add_u32 s52,").replace(f"s_addc_u32 s{P.S_XB+1},", "s_addc_u32 s53,")
        return grps
    xfix(xl, 0)
    if fflag:
        pre_d = pre_d + [xl.pop(0) for _ in range(4)]
        n_ = len(pre_d)
        mid = [(hsig + 1 + (k*(hpoll + 1 - hsig))//n_, x) for k, x in enumerate(pre_d)]
        timed = [fp, hs] + sorted(mid + [hp], key=lambda e: e[0]) + [hc] + post_d
    elif xhead:
        timed = timed[:-2] + [(min(hpoll + 9 + k, 30), xl.pop(0)) for k in range(4)] + [(min(hpoll + 13, 30), timed[-2][1]), (min(hpoll + 14, 31), timed[-1][1])]
    peel = []
    if xpeel:
        flat = [x for g_ in xl for x in g_]; xl.clear()
        k_ = 0
        for x in flat:
            if peel and peel[-1][1][-1]["text"].startswith("s_"): peel[-1][1].append(x)
            else: peel.append((32 + k_, [x])); k_ = min(k_ + 1, 15)
        peel = [(32 + (n_*15)//16, it_) for n_, (_, it_) in enumerate(peel)]
    headseg = P.segment(0, 32, 0, 32*P.NHEAD, g0, timed)
    bodies = [P.segment(16*it, 16*it + 16, 32*(P.NHEAD + 4*(it - 2)), 32*(P.NHEAD + 4*(it - 1)), 16*it, timed=[(16*it + 12, [I("buffer_load_dword a255, v17, s[76:79], s43 offen")])] if retouch >= 2 else (), loop=True) for it in range(2, 8)]
    for b_ in bodies: b_.ins(f"s_cmp_lg_u32 s{P.S_CNT}, 0")
    NDOWN, NWO, ACC = P.NDOWN, P.NWO, P.ACC
    t1 = Trace()
    n = P.NSLOT - 1
    t1.wait(lg=[("v", 63)])
    t1.ins("s_nop 1")
    t1.ins(P.pv(n, 0)); t1.ins(P.summ(n, 0)); t1.ins(P.pv(n, 1)); t1.ins(P.summ(n, 1))
    VO = P.V_O
    q_ = Trace()
    q_.raw(f"""
    v_bfe_u32 v26, {L2}, 4, 1
    s_lshl_b32 s78, s{S_MT}, 1
    v_lshlrev_b32 v26, 10, v26
    s_lshr_b32 s79, s{S_W}, 1
    v_and_b32 v27, 15, {L2}
    s_add_u32 s78, s78, s79
    v_lshl_add_u32 v26, v27, 4, v26
    s_lshl_b32 s78, s78, 5
    v_lshrrev_b32 v27, 5, {L2}
    s_add_u32 s78, s78, s{S_NT}
    v_lshl_add_u32 v26, v27, 8, v26
    s_lshl_b32 s78, s78, 13
    s_and_b32 s79, s{S_W}, 1
    s_lshl_b32 s79, s79, 12
    s_add_u32 s78, s78, s79
    s_add_u32 s54, s78, {WS_O:#x}
    s_mov_b32 s78, 0x1f800000
    s_mov_b32 s79, 0x5f800000
    s_mov_b32 s55, 0
    v_accvgpr_read_b32 v80, a{P.A_L}
    v_accvgpr_read_b32 v81, a{P.A_L+4}
    """)
    q_.wait(vm=[("g2", 0)])
    q_.raw(f"""
    v_min_f32 v83, v80, v81
    v_max_f32 v84, v80, v81
    v_add_f32 v85, v80, v81
    v_cmp_nle_f32 s[82:83], s78, v83
    v_cmp_nge_f32 s[84:85], s79, v84
    v_cmp_u_f32 vcc, v85, v85
    """)
    q_.ins("s_nop 1\ns_or_b64 s[82:83], s[82:83], s[84:85]\ns_or_b64 vcc, vcc, s[82:83]\ns_cbranch_vccnz KM_FALLBACK\nKM_NORM:\nv_rcp_f32 v80, v80")
    q_.raw(f"""
    v_rcp_f32 v82, v81
    v_mul_f32 v80, v80, v{P.V_G}
    v_mul_f32 v82, v82, v{P.V_G+1}
    """)
    for hh in range(2):
        for pc in range(2):
            b = VO + 16*hh + 8*pc
            for r in range(8): q_.ins(f"v_mul_f32 v{b+r}, v{b+r}, v{80+2*hh}")
            for q in range(4): q_.ins(f"v_cvt_pk_bf16_f32 v{64+8*hh+4*pc+q}, v{b+2*q}, v{b+2*q+1}")
            q_.ins(f"buffer_store_dwordx4 {vr(64+8*hh+4*pc,4)}, v26, s[{S_WS}:{S_WS+3}], s54 offen offset:{hh*2048 + pc*512} sc1", vm=("ost", 0))
    vq = q_.items
    nA, nB = nb
    stepsA = [P.gemm_step(s, vq=vq) for s in range(NIN, NIN + nA)]
    t2 = Trace()
    t2.items.extend(vq)
    t2.ins("s_nop 1")
    for q in range(4):
        t2.ins(f"v_mfma_f32_16x16x32_bf16 v[84:87], {ar(P.A_SEL,4)}, {vr(64+4*q,4)}, {'0' if q == 0 else 'v[84:87]'}")
    stepsA.append(t2)
    polli = lambda: I(f"buffer_load_dword v28, v25, s[{S_WS}:{S_WS+3}], s{P.S_OP} offen sc1", vm=("op", 0))
    x33 = xfix([[P.x_base(NDOWN + 5)] + [P.w_load(NDOWN + 5, J) for J in range(4)], [P.w_load(NDOWN + 5, J) for J in range(4, 8)]], 0)
    xq = [x33] + [[xl.pop(0), xl.pop(0)] for _ in range(len(xl)//2)]
    stepsB = [P.gemm_step(s, extra=xq.pop(0) if xq else [], late=[polli()] if s == NIN + nA + nB - 1 else []) for s in range(NIN + nA, NIN + nA + nB)]
    assert not xl and not xq
    sig = Trace()
    sig.raw(f"""
    v_and_b32 v25, 31, {L2}
    v_lshlrev_b32 v25, 7, v25
    s_lshr_b32 s78, s{P.S_MT}, 1
    s_lshl_b32 s78, s78, 18
    s_add_u32 s78, s78, s42
    s_lshl_b32 s79, s{S_W}, 16
    s_add_u32 s78, s78, s79
    s_add_u32 s78, s78, {WS_O:#x}
    s_add_u32 s56, s86, s78
    s_addc_u32 s57, s87, 0
    """)
    sig.raw(f"""
    v_sub_f32 v84, v84, v84
    s_cmp_lg_u32 s55, 0
    v_cmp_u_f32 vcc, v84, v84
    s_cbranch_scc1 KM_CHECKED
    s_cbranch_vccnz KM_FALLBACK2
    KM_CHECKED:
    """)
    sig.wait(vm=[("ost", 0)])
    sig.raw(f"""
    s_mov_b64 exec, 1
    buffer_store_dword v24, off, s[{S_WS}:{S_WS+3}], s{P.S_OF} sc1
    s_mov_b64 exec, -1
    """)
    t3 = Trace()
    t3.wait(vm=[("op", 0)])
    t3.raw(f"""
    v_cmp_ne_u32 vcc, s{S_TAG}, v28
    s_nop 0
    s_cbranch_vccnz KM_OSPIN
    KM_OBACK:
    """)
    ol = []
    for s in range(NDOWN, NDOWN + NWO):
        ol.append([rebase(P.h_load(s, i), P.S_HB, 56) for i in range(4)] + (adv64(56, 8192) if s < NDOWN + NWO - 1 else []))
    t4 = Trace()
    for grp in ol[:opre]: t4.items.extend(grp)
    k = opre
    stepsC = []
    for s in range(NIN + nA + nB, NDOWN):
        ex = []
        while len(ex) < 2 and k < 5: ex.append(ol[k]); k += 1
        stepsC.append(P.gemm_step(s, ex))
    wos = []
    for s in range(NDOWN, NDOWN + 4):
        ex = []
        while len(ex) < 2 and k < NWO: ex.append(ol[k]); k += 1
        wos.append(P.gemm_step(s, ex))
    ph = Trace()
    su = Asm()
    for pp in range(1, 4):
        su(f"s_add_u32 s78, s{S_W}, {pp}\ns_and_b32 s78, s78, 3\ns_mul_i32 s78, s78, 24576\ns_add_u32 s78, s78, {(pp-1)*8192}\nv_add_u32 v{26+pp}, s78, v{P.V_L16}")
    su(f"""
    s_mul_i32 s78, s{S_W}, 24576
    v_add_u32 v26, s78, v{P.V_L16}
    s_lshl_b32 s78, s{P.S_MT}, 17
    s_lshl_b32 s79, s{P.S_NT}, 8
    s_add_u32 s78, s78, s79
    s_lshl_b32 s79, s{S_W}, 6
    s_add_u32 s78, s78, s79
    s_add_u32 s79, s78, 0x8000
    s_add_u32 s80, s78, 0x10000
    s_add_u32 s81, s78, 0x18000
    v_and_b32 v30, 15, {L2}
    v_lshlrev_b32 v30, 11, v30
    v_bfe_u32 v25, {L2}, 4, 1
    v_lshl_add_u32 v30, v25, 5, v30
    v_lshrrev_b32 v25, 5, {L2}
    v_lshl_add_u32 v30, v25, 4, v30
    """)
    su = [l.strip() for l in su.lines]
    S2 = list(range(NDOWN + 4, NDOWN + 8))
    ph.wait(vm=[("w", s, J) for s in S2[1:] for J in range(8)], lg=[("w", s, J) for s in S2[:1] for J in range(8)])
    ph.ins("s_barrier")
    R0, R1, R2 = ACC + 32, ACC + 64, ACC + 96
    assert ph2new
    for idx, pp in enumerate((1, 2, 3, 0)):
        fill = [[] for _ in range(32)]
        if idx == 0:
            for q, x in enumerate(su): fill[q].append(I(x))
        else:
            prev = (1, 2, 3)[idx - 1]
            for t in range(8):
                fill[(4 + 3*t) if idx < 3 or not ph2new else (1 + t + (3 if t >= 4 else 0))].append(I(f"ds_write_b128 v{26+prev}, {vr(ACC + (prev*8 + t)*4, 4)} offset:{t*1024}", lg=("rw", prev)))
        if idx == 3:
            rd = [I(f"ds_read_b128 {vr((R0, R1, R2)[s_] + t*4, 4)}, v26 offset:{s_*8192 + t*1024}", lg=("rr", s_)) for s_ in range(3) for t in range(8)]
            if ph2new:
                for k_, x in enumerate(rd[:16]): fill[12 + k_ // 2].append(x)
                fill[21] += [W(lg=[("rw", 3)]), I("s_barrier")]
                for k_, x in enumerate(rd[16:]): fill[22 + k_ // 2].append(x)
                fill[26].append(W(lg=[("rr", 1)]))
                for k_ in range(10): fill[26 + k_ // 2].append(I(f"v_add_f32 v{R0+k_}, v{R0+k_}, v{R1+k_}"))
            else:
                free = [g for g in range(32) if not fill[g]]
                for x, g in zip(rd[:16], free): fill[g].append(x)
            ph.wait(lg=[("rw", 2)])
            ph.ins("s_barrier")
        mu = 0
        for s in S2:
            if idx == 0: ph.wait(vm=[("h", s, i) for i in range(4)])
            for J in (2*pp, 2*pp + 1):
                for i in range(4):
                    ph.ins(P.gemm_mfma(s, J, i, False)); ph.items.extend(fill[mu]); mu += 1
    if ph2new:
        for r in range(10, 32, 2): ph.ins(f"v_pk_add_f32 {vr(R0+r,2)}, {vr(R0+r,2)}, {vr(R1+r,2)}")
        ph.wait(lg=[("rr", 2)])
        for r in range(0, 32, 2): ph.ins(f"v_pk_add_f32 {vr(R0+r,2)}, {vr(R0+r,2)}, {vr(R2+r,2)}")
    else:
        ph.wait(lg=[("rw", 3), ("rr", 1)])
        ph.ins("s_barrier")
        ph.items.extend(rd[16:])
        for r in range(0, 32, 2): ph.ins(f"v_pk_add_f32 {vr(R0+r,2)}, {vr(R0+r,2)}, {vr(R1+r,2)}")
        ph.wait(lg=[("rr", 2)])
        for r in range(0, 32, 2): ph.ins(f"v_pk_add_f32 {vr(R0+r,2)}, {vr(R0+r,2)}, {vr(R2+r,2)}")
    for i in range(4):
        b0, b1 = ACC + i*4, ACC + (4 + i)*4
        d = 64 + i*4
        om = P.V_OMG + i
        for b in (b0, b0 + 2, b1, b1 + 2):
            ph.ins(f"v_pk_add_f32 {vr(b,2)}, {vr(b,2)}, {vr(b + 32,2)}")
        for b in (b0, b0 + 2, b1, b1 + 2):
            ph.ins(f"v_pk_mul_f32 {vr(b,2)}, {vr(b,2)}, {vr(om,2)} op_sel_hi:[1,0]" if om % 2 == 0 else f"v_pk_mul_f32 {vr(b,2)}, {vr(b,2)}, {vr(om-1,2)} op_sel:[0,1] op_sel_hi:[1,1]")
        ph.raw(f"""
        v_cvt_pk_bf16_f32 v{d}, v{b0}, v{b0+1}
        v_cvt_pk_bf16_f32 v{d+1}, v{b0+2}, v{b0+3}
        v_cvt_pk_bf16_f32 v{d+2}, v{b1}, v{b1+1}
        v_cvt_pk_bf16_f32 v{d+3}, v{b1+2}, v{b1+3}
        s_nop 1
        v_permlane16_swap_b32 v{d}, v{d+2}
        v_permlane16_swap_b32 v{d+1}, v{d+3}
        buffer_store_dwordx4 {vr(d,4)}, v30, s[{P.S_OUT}:{P.S_OUT+3}], s{78+i} offen sc1 nt
        """)
    head = [pro, pro2] + segs + [ec]
    rest = [h2, headseg] + bodies + [t1] + stepsA + [sig] + stepsB + [t3, t4] + stepsC + wos + [ph]
    import copy
    resolve(head + [l0] + rest)
    saved = [[(x.get("wvm"), x.get("wlg")) for x in seg.items] for seg in rest]
    resolve(head + [l1] + rest)
    for seg, sv in zip(rest, saved):
        for x, (v, l) in zip(seg.items, sv):
            if x["text"] is None:
                mn = lambda p, q: q if p is None else p if q is None else min(p, q)
                x["wvm"], x["wlg"] = mn(x["wvm"], v), mn(x["wlg"], l)
    emit_trace(a, [pro]); st.stamp()
    if pads:
        a("s_branch KM_BODY")
        a.lines.append(".p2align 12")
        a.label("KM_BODY")
    if al1 is not None:
        a.lines.append(".p2align 6")
        for _ in range(al1): a("s_nop 0")
    emit_trace(a, [pro2]); st.stamp()
    for k, tr in enumerate(segs):
        if 'wv' in exp and k % 2 == 0 and wv0 <= k // 2 < wv0 + 5:
            t_ = Trace(); t_.items = tr.items[:-2]; emit_trace(a, [t_]); st.stamp()
            t_.items = tr.items[-2:-1]; emit_trace(a, [t_]); st.stamp()
            t_.items = tr.items[-1:]; emit_trace(a, [t_]); st.stamp()
            continue
        emit_trace(a, [tr])
        if 'stg' in exp and k % 2 == 0: st.stamp()
    st.stamp()
    if pads and chain2: a.lines.append("    @CHAIN2")
    emit_trace(a, [ec])
    if 'ec' in exp: st.stamp()
    a(f"s_bitcmp1_b32 s{S_W}, 0")
    a("s_cbranch_scc1 KM_LAST1")
    emit_trace(a, [l0])
    a("s_branch KM_P2")
    a.label("KM_LAST1")
    emit_trace(a, [l1])
    if al2 is not None:
        a.lines.append(".p2align 6")
        for _ in range(al2): a("s_nop 0")
    a.label("KM_P2")
    st.stamp()
    emit_trace(a, [h2]); st.stamp()
    b = Asm(); emit_trace(b, [headseg])
    for l in b.lines:
        a.lines.append(l)
        if 'its' in exp and l.strip() in ("s_barrier", "KM_HBACK:"): st.stamp()
    st.stamp()
    if xpeel: emit_trace(a, bodies[:1])
    a.lines.append(".p2align 6")
    a.label("KM_LOOP")
    emit_trace(a, bodies[1:] if xpeel else bodies)
    a("s_cbranch_scc1 KM_LOOP")
    a.label("KM_TAIL")
    st.stamp()
    emit_trace(a, [t1]); st.stamp()
    for seg in stepsA + [sig]: emit_trace(a, [seg])
    st.stamp()
    for seg in stepsB: emit_trace(a, [seg])
    st.stamp()
    emit_trace(a, [t3]); st.stamp()
    for seg in [t4] + stepsC: emit_trace(a, [seg])
    st.stamp()
    for seg in wos: emit_trace(a, [seg])
    st.stamp()
    b = Asm(); emit_trace(b, [ph])
    nm = 0
    for l in b.lines:
        a.lines.append(l)
        if l.strip().startswith("v_mfma"): nm += 1
        if 'ph' in exp and ((l.strip().startswith("v_mfma") and nm % 32 == 0) or (l.strip() == "s_barrier" and nm == 0) or "s81 offen" in l): st.stamp()
    if dbg:
        a("s_waitcnt vmcnt(0)")
        st.stamp(force=True)
        st.dump(0, S_W, 86)
        if hdbg is not None:
            a(f"""
            s_lshl_b32 s90, s2, 2
            s_add_u32 s90, s90, s{S_W}
            s_cmp_eq_u32 s90, {4*hdbg}
            s_cbranch_scc0 KM_END
            v_readlane_b32 s90, v31, 32
            v_mbcnt_lo_u32_b32 v0, -1, 0
            v_mbcnt_hi_u32_b32 v0, -1, v0
            v_subrev_u32 v31, s90, v31
            v_subrev_u32 v0, 32, v0
            v_lshlrev_b32 v0, 2, v0
            s_mov_b32 exec_lo, 0
            s_mov_b32 exec_hi, 0xfffe
            buffer_store_dword v31, v0, s[{S_DBG}:{S_DBG+3}], 0 offen
            """)
    a("s_endpgm")
    for nm, ld, val in (("Z", f"buffer_load_dword v1, off, s[{S_DBG}:{S_DBG+3}], 0 sc1", f"eq_u32 vcc, 0, v1"),
                        ("E", f"buffer_load_dword v{V_KX}, v{V_T}, s[{S_WS}:{S_WS+3}], s{S_EF} offen sc1", f"ne_u32 vcc, s{S_TAG}, v{V_KX}"),
                        ("H", f"buffer_load_dword v28, v25, s[{S_WS}:{S_WS+3}], s{P.S_HP} offen sc1", f"ne_u32 vcc, s{S_TAG}, v28"),
                        ("F", f"buffer_load_dword v28, v25, s[{S_WS}:{S_WS+3}], s43 offen sc1", f"ne_u32 vcc, s{S_TAG}, v28"),
                        ("O", f"buffer_load_dword v28, v25, s[{S_WS}:{S_WS+3}], s{P.S_OP} offen sc1", f"ne_u32 vcc, s{S_TAG}, v28")):
        if nm == 'F' and not fflag: continue
        a(f"""
        KM_{nm}SPIN:
        s_mov_b32 s91, 0x40000
        KM_{nm}SPIN1:
        {ld}
        s_waitcnt vmcnt(0)
        v_cmp_{val}
        s_sub_u32 s91, s91, 1
        s_cbranch_vccz KM_{nm}BACK
        s_cmp_eq_u32 s91, 0
        s_cbranch_scc1 KM_{nm}BACK
        s_sleep 1
        s_branch KM_{nm}SPIN1
        """)
    A_K, A_Q = P.A_K, P.A_Q
    a.label("KM_FALLBACK2")
    a("s_mov_b32 s55, 2")
    a.label("KM_FALLBACK")
    a(f"""
    s_or_b32 s55, s55, 1
    s_waitcnt vmcnt(0) lgkmcnt(0)
    s_nop 15
    v_mov_b32 v82, 0xff7fffff
    v_mov_b32 v83, 0xff7fffff
    v_mov_b32 v80, 0
    v_mov_b32 v81, 0
    s_mov_b32 s78, {WS_KV:#x}
    """)
    for r in range(32): a(f"v_mov_b32 v{VO+r}, 0")
    a.label("KM_FB_LOOP")
    for q in range(4):
        a(f"buffer_load_dwordx4 {ar(A_K+4*q,4)}, v{P.V_L16}, s[{S_WS}:{S_WS+3}], s78 offen offset:{q*1024} sc1")
    a("s_waitcnt vmcnt(0)")
    for hh in range(2):
        O = VO + 16*hh; m = 82 + hh; l = 80 + hh
        a(f"v_mfma_f32_32x32x16_bf16 v[64:79], {ar(A_K,4)}, {ar(A_Q+8*hh,4)}, 0")
        a(f"v_mfma_f32_32x32x16_bf16 v[64:79], {ar(A_K+4,4)}, {ar(A_Q+8*hh+4,4)}, v[64:79]")
        a("s_nop 15")
        a("v_max_f32 v84, v64, v65")
        for r in range(2, 16, 2): a(f"v_max3_f32 v84, v{64+r}, v{65+r}, v84")
        a(f"""
        v_mov_b32 v85, v84
        s_nop 1
        v_permlane32_swap_b32 v84, v85
        s_nop 1
        v_max3_f32 v84, v84, v85, v{m}
        v_sub_f32 v85, v{m}, v84
        v_exp_f32 v85, v85
        v_mov_b32 v{m}, v84
        v_mul_f32 v{l}, v{l}, v85
        """)
        for r in range(16):
            a(f"v_sub_f32 v{64+r}, v{64+r}, v84")
            a(f"v_exp_f32 v{64+r}, v{64+r}")
            a(f"v_mul_f32 v{O+r}, v{O+r}, v85")
        for r in range(8): a(f"v_cvt_pk_bf16_f32 v{64+r}, v{64+2*r}, v{65+2*r}")
        for r in range(8):
            a(f"v_lshlrev_b32 v86, 16, v{64+r}\nv_and_b32 v87, 0xffff0000, v{64+r}\nv_add_f32 v{l}, v{l}, v86\nv_add_f32 v{l}, v{l}, v87")
        a(f"v_mfma_f32_32x32x16_bf16 {vr(O,16)}, {ar(A_K+8,4)}, v[64:67], {vr(O,16)}")
        a(f"v_mfma_f32_32x32x16_bf16 {vr(O,16)}, {ar(A_K+12,4)}, v[68:71], {vr(O,16)}")
        a("s_nop 15")
    a(f"""
    s_add_u32 s78, s78, 4096
    s_cmp_lt_u32 s78, {WS_KV + 64*4096:#x}
    s_cbranch_scc1 KM_FB_LOOP
    v_mov_b32 v84, v80
    v_mov_b32 v85, v81
    s_nop 1
    v_permlane32_swap_b32 v80, v84
    v_permlane32_swap_b32 v81, v85
    s_nop 1
    v_add_f32 v80, v80, v84
    v_add_f32 v81, v81, v85
    s_cmp_eq_u32 s55, 1
    s_cbranch_scc1 KM_NORM
    v_rcp_f32 v80, v80
    v_rcp_f32 v82, v81
    s_nop 0
    v_mul_f32 v80, v80, v{P.V_G}
    v_mul_f32 v82, v82, v{P.V_G+1}
    """)
    for hh in range(2):
        for pc in range(2):
            b = VO + 16*hh + 8*pc
            for r in range(8): a(f"v_mul_f32 v{b+r}, v{b+r}, v{80+2*hh}")
            for q in range(4): a(f"v_cvt_pk_bf16_f32 v{64+8*hh+4*pc+q}, v{b+2*q}, v{b+2*q+1}")
            a(f"buffer_store_dwordx4 {vr(64+8*hh+4*pc,4)}, v26, s[{S_WS}:{S_WS+3}], s54 offen offset:{hh*2048 + pc*512} sc1")
    a(f"""
    s_waitcnt vmcnt(0)
    s_branch KM_CHECKED
    KM_END:
    s_endpgm
    """)
    return a.text()
```

```python
from common import *
import p2
from p2 import I, W, adv64
import math, struct

KM = NAME + "_kernel"
LDS_X = 0; LDS_W = 65536
LDS_R = 131072
LDS_QS = LDS_R; LDS_KW = LDS_R + 4096; LDS_T = LDS_R + 16384
KM_LDS = 163840
NST = 16
OOB = 0x7f000000

def accn(j, i): return ("v", 32 + (j*8 + i)*4) if j < 7 else ("a", 128 + i*4)
def acc(j, i):
    p, b = accn(j, i); return vr(b, 4, p)
XF = [0, 64]; WF = [32, 96]
KVW, KVA, A_GX, A_GW, A_T, A_KX, A_DUM = 160, 168, 172, 188, 204, 208, 255
TREG = [196, 200, 204, 224, 228, 232, 236, 240, 244]
V_DQ, V_DX, V_DW = 0, 2, 6
V_RX = [10, 11]
V_RW, V_R3, V_R7, V_RKW, V_T, V_KX, V_LANE = 12, 15, 16, 17, 18, 19, 20
V_GROW, V_L16, V_RT, V_DT, V_DK = 26, 27, 28, 29, 30
S_WQ, S_X, S_G, S_U, S_KV, S_WS, S_GW, S_TSRD, S_WD, S_WO, S_DBG = 4, 8, 12, 16, 20, 24, 28, 32, 52, 76, 72
S_W, S_MT, S_NT, S_OK = 36, 37, 38, 39
S_OX, S_OX2, S_OG, S_OQ, S_TSRCS = 40, 41, 42, 43, 44
S_M0X, S_M0W, S_M0K, S_M0T, S_M0Q = 45, 46, 47, 51, 56
S_TOFF, S_TSTEP, S_TOG = 48, 49, 50
S_TSRC, S_TDST, S_TSRC2, S_TDST2, S_GROW = 3, 94, 95, 100, 101
S_EF = 88
S_LMASK, S_T2D = 58, 59
S_TAG = 89
A_TAG = 254
S_FLG = 57

KVD = 1
def dma_group_buf(s, ntw):
    b = s % 2
    g = []
    nt = " nt" if ntw else ""
    for half in range(2):
        so = S_OX if half == 0 else S_OX2
        for j in range(4):
            pre = f"s_add_u32 m0, s{S_M0X}, {b*32768 + half*4096}" if j == 0 else None
            g.append((pre, I(f"buffer_load_dwordx4 v{V_DX+j}, s[{S_X}:{S_X+3}], s{so} offen offset:{j*1024} lds", vm=("st", s))))
    for part in range(2):
        srdn = S_G if part == 0 else S_U
        for j in range(4):
            pre = f"s_add_u32 m0, s{S_M0W}, {b*32768 + part*16384}" if j == 0 else None
            g.append((pre, I(f"buffer_load_dwordx4 v{V_DW+j}, s[{srdn}:{srdn+3}], s{S_OG} offen offset:{j*1024}{nt} lds", vm=("st", s))))
    g.append((f"s_add_u32 m0, s{S_M0Q}, {b*2048}", I(f"buffer_load_dwordx4 v{V_DQ}, s[{S_WQ}:{S_WQ+3}], s{S_OQ} offen{nt} lds", vm=("st", s))))
    adv = {7: [f"s_add_u32 s{S_OX}, s{S_OX}, 128", f"s_add_u32 s{S_OX2}, s{S_OX2}, 128"],
           15: [f"s_add_u32 s{S_OG}, s{S_OG}, {64*7168}"], 16: [f"s_add_u32 s{S_OQ}, s{S_OQ}, 0x20000"]}
    if 1 <= s - KVD <= 8:
        g.append((f"s_add_u32 m0, s{S_M0K}, {b*8192}", I(f"buffer_load_dwordx4 v{V_DK}, s[{S_KV}:{S_KV+3}], s{S_OK} offen lds", vm=("st", s))))
        adv[17] = [f"s_add_u32 s{S_OK}, s{S_OK}, 8192"]
    return g, adv
GDMA = False
B_X, B_X2, B_G, B_U, B_Q = 40, 90, 64, 66, 42
B_X2 = 62
def dma_group(s, ntw):
    g, adv = dma_group_buf(s, ntw)
    if not GDMA: return g, adv
    out = []
    for k, (pre, it) in enumerate(g):
        if k < 17:
            base = B_X if k < 4 else B_X2 if k < 8 else B_G if k < 12 else B_U if k < 16 else B_Q
            reg = V_DX + k % 4 if k < 8 else V_DW + k % 4 if k < 16 else V_DQ
            it = I(f"global_load_lds_dwordx4 v{reg}, s[{base}:{base+1}] offset:{(k % 4)*1024 if k < 16 else 0}", vm=("st", s))
        out.append((pre, it))
    a64 = lambda b, n: f"s_add_u32 s{b}, s{b}, {n}\ns_addc_u32 s{b+1}, s{b+1}, 0"
    adv2 = {3: [a64(B_X, 128)], 7: [a64(B_X2, 128)], 11: [a64(B_G, 64*7168)], 15: [a64(B_U, 64*7168)], 16: [a64(B_Q, 0x20000)]}
    if 17 in adv: adv2[17] = adv[17]
    return out, adv2
def xread(s, kk, i):
    return I(f"ds_read_b128 {ar(XF[kk]+4*i,4)}, v{V_RX[kk]} offset:{(s%2)*32768 + i*2048}", lg=("fr", s, kk))
def wread(s, kk, j, h):
    if j % 4 == 3:
        reg, off = (V_R3 if j == 3 else V_R7), h*1024 + kk*8192
    else:
        reg, off = V_RW + (j & 3), (s % 2)*32768 + h*1024 + kk*8192 + (16384 if j >= 4 else 0)
    return I(f"ds_read_b64_tr_b16 {ar(WF[kk]+4*j+2*h,2)}, v{reg} offset:{off}", lg=("fr", s, kk))
def reads(s, kk):
    r = [wread(s, kk, 0, 0), wread(s, kk, 0, 1)] + [xread(s, kk, i) for i in range(8)]
    for j in range(1, 8): r += [wread(s, kk, j, 0), wread(s, kk, j, 1)]
    return r
def mfma(kk, j, i, first=False):
    return f"v_mfma_f32_16x16x32_bf16 {acc(j,i)}, {ar(WF[kk]+4*j,4)}, {ar(XF[kk]+4*i,4)}, {'0' if first else acc(j,i)}"
def vcap(items):
    c = 2
    for x in items:
        t = x["text"] or "s_"
        if t.startswith("ds_"): c -= 1
        elif t.startswith(("buffer_", "global_")): c -= 2
        elif t.startswith("v_"): c -= 1
    return max(c, 0)
from k1 import g_ops as _g_ops
import k1 as _k1
_k1.A_GX, _k1.A_GW = A_GX, A_GW

def gen(dbg=False, hdbg=None, lead=True, lphase=0, nhd=1, psp=2, retouch=1, chain2=0, cpf='share', gdma=False, ndef=0, dsl=1, ptc=0, tpos2=18, fflag=False, fpoll=2, cdel=2, pend=1, xpeel=False, xhead=True, al1=None, al2=None, gsm=True, tsp0=4, hstart=0, xmask=0x1f, tt0=0, wv0=1, cl=1, gc=(10, 8), dc=8, slack=0, ph2new=True, tp2=False, tb=8, tlb=0, tlbpos=17, tdefer=False, tpro=0, tpos=0, gl=2, pads=8, epos=10, chain_at=1, ot=99, touch=1, nhead=13, p1=13, npro0=8, gs=11, tq0=5, ntw=False, ntt=True, exp='',
        g0=25, hsig=5, hpoll=16, opre=1, nb=(1, 2)):
    esig = KVD + 11
    global GDMA
    GDMA = gdma
    if tp2:
        tq0 = 100
    p2.TCH = bool(ptc); p2.TPOS = tpos2
    p2.configure(nhd); p2.KV1 = 8 if fflag else max(8, hpoll - 13)
    if fflag: tq0 = 3
    NIN = p2.NIN
    a = Asm()
    L = f"v{V_LANE}"
    a("s_cmp_ge_u32 s2, 256")
    a("s_cbranch_scc1 KM_END")
    st = Stamps(a, dbg)
    st.stamp()
    a("s_memrealtime s[72:73]")
    a("s_load_dwordx8 s[56:63], s[0:1], 0")
    a("s_load_dwordx8 s[64:71], s[0:1], 48")
    a("s_load_dwordx2 s[74:75], s[0:1], 32")
    a("s_load_dwordx4 s[96:99], s[0:1], 80")
    a("s_load_dwordx2 s[86:87], s[0:1], 96")
    if cpf == "full": code_prefetch(a, "KM", 32, "a255", 3)
    else:
        a("s_getpc_b64 s[32:33]")
        a.label("KM_PC")
        if cpf == "share":
            a("""
            s_and_b32 s33, s33, 0xffff
            s_mov_b32 s34, KM_END-KM_PC
            s_mov_b32 s35, 0x00020000
            v_lshrrev_b32 v1, 4, v0
            v_and_b32 v1, 12, v1
            v_and_or_b32 v1, v0, 3, v1
            v_lshlrev_b32 v1, 7, v1
            s_lshr_b32 s36, s2, 3
            s_lshl_b32 s36, s36, 11
            buffer_load_dword a255, v1, s[32:35], s36 offen
            """)
    a(f"""
    v_and_b32 {L}, 63, v0
    v_lshrrev_b32 v1, 6, v0
    s_and_b32 s80, s2, 7
    v_readfirstlane_b32 s{S_W}, v1
    s_lshr_b32 s81, s2, 3
    s_and_b32 s{S_MT}, s81, 7
    s_lshr_b32 s83, s81, 3
    s_lshl_b32 s80, s80, 2
    s_add_u32 s{S_NT}, s80, s83
    s_mul_i32 s85, s{S_NT}, 224
    s_mov_b32 s{S_OG}, 0
    s_mov_b32 s{S_OQ}, 0
    v_lshrrev_b32 v21, 3, {L}
    s_lshl_b32 s81, s{S_MT}, 8
    s_lshl_b32 s82, s{S_W}, 6
    s_add_u32 s81, s81, s82
    v_add_u32 v21, s81, v21
    v_lshlrev_b32 v21, 11, v21
    v_and_b32 v22, 7, {L}
    v_lshrrev_b32 v23, 4, {L}
    v_xor_b32 v22, v22, v23
    v_lshlrev_b32 v22, 4, v22
    v_xor_b32 v24, 64, v22
    """)
    for j in range(4):
        a(f"v_add_u32 v{V_DX+j}, v21, {'v22' if j % 2 == 0 else 'v24'}")
        if j: a(f"v_add_u32 v{V_DX+j}, {j*8*2048 - j*1024}, v{V_DX+j}")
    a(f"""
    s_mov_b32 s{S_OX}, 0
    s_mov_b32 s{S_OX2}, 65536
    s_mov_b32 s{S_OK}, 0
    s_lshl_b32 s81, s{S_W}, 4
    s_movk_i32 s84, 7168
    v_add_u32 v21, s81, v23
    v_mul_lo_u32 v21, v21, s84
    v_add_u32 v21, s85, v21
    v_and_b32 v25, 1, {L}
    v_lshl_add_u32 v21, v25, 4, v21
    v_bfe_u32 v22, {L}, 1, 3
    v_xor_b32 v22, v22, v23
    v_xor_b32 v24, 4, v22
    v_min_u32 v22, 6, v22
    v_min_u32 v24, 6, v24
    v_lshl_add_u32 v{V_DW}, v22, 5, v21
    v_add_u32 v{V_DW+1}, {4*7168 - 1024}, v{V_DW}
    v_lshl_add_u32 v{V_DW+2}, v24, 5, v21
    v_add_u32 v{V_DW+2}, {2*(4*7168 - 1024)}, v{V_DW+2}
    v_add_u32 v{V_DW+3}, {4*7168 - 1024}, v{V_DW+2}
    s_lshl_b32 s{S_M0X}, s{S_W}, 13
    s_lshl_b32 s{S_M0W}, s{S_W}, 12
    s_add_u32 s{S_M0W}, s{S_M0W}, {LDS_W}
    s_lshl_b32 s{S_M0K}, s{S_W}, 10
    s_add_u32 s{S_M0T}, s{S_M0K}, {LDS_T}
    s_add_u32 s{S_M0K}, s{S_M0K}, {LDS_KW}
    s_lshr_b32 s81, s{S_W}, 1
    s_and_b32 s80, s{S_W}, 1
    """)
    a(f"""
    v_lshlrev_b32 v21, 3, v23
    v_bfe_u32 v22, {L}, 2, 2
    v_add_u32 v21, v21, v22
    s_lshl_b32 s82, s81, 5
    s_lshl_b32 s83, s80, 2
    s_add_u32 s82, s82, s83
    v_add_u32 v21, s82, v21
    v_lshlrev_b32 v21, 11, v21
    v_bfe_u32 v22, {L}, 1, 1
    v_bfe_u32 v24, {L}, 4, 1
    v_xor_b32 v22, v22, v24
    v_lshl_add_u32 v21, v22, 5, v21
    v_lshl_add_u32 v21, v25, 4, v21
    s_lshl_b32 s82, s{S_NT}, 6
    v_add_u32 v{V_DQ}, s82, v21
    s_lshl_b32 s90, s81, 13
    s_lshl_b32 s83, s80, 10
    s_add_u32 s90, s90, s83
    s_waitcnt lgkmcnt(0)
    """)
    st.n and None
    a(f"s_or_b32 s{S_TAG}, s72, 1")
    srd(a, S_X, 56, 2048*1024*2)
    srd(a, S_G, 64, 1024*3584*2)
    srd(a, S_U, 66, 1024*3584*2)
    srd(a, S_WQ, 58, 1024*1024*2)
    if gdma:
        a(f"""
        s_and_b32 s82, s{S_NT}, 2
        s_cmp_eq_u32 s82, 0
        s_cselect_b32 s60, s60, s62
        s_cselect_b32 s61, s61, s63
        s_mov_b64 s[{B_X}:{B_X+1}], s[56:57]
        s_add_u32 s{B_X2}, s56, 0x10000
        s_addc_u32 s{B_X2+1}, s57, 0
        s_mov_b64 s[{B_Q}:{B_Q+1}], s[58:59]
        """)
    a(f"s_add_u32 s{S_M0Q}, s90, {LDS_QS}")
    st.stamp()
    pro = Trace()
    def dma_items(s, lo, hi):
        g, adv = dma_group(s, ntw)
        out = []
        for k in range(lo, min(hi, len(g))):
            pre, it = g[k]
            out.append(([I(pre), I("s_nop 0")] if pre else []) + [it] + [I(x) for x in adv.get(k, [])])
        return out
    pc = Asm()
    pc(f"""
    v_lshlrev_b32 v{V_L16}, 4, {L}
    v_and_b32 v21, 15, {L}
    s_lshl_b32 s83, s81, 14
    v_lshlrev_b32 v22, 7, v21
    v_lshrrev_b32 v24, 1, v21
    v_xor_b32 v24, v24, v23
    v_lshl_add_u32 v22, v24, 4, v22
    v_add_u32 v{V_RX[0]}, s83, v22
    v_xor_b32 v{V_RX[1]}, 64, v{V_RX[0]}
    v_bfe_u32 v21, {L}, 2, 2
    v_lshl_add_u32 v22, v23, 3, v21
    v_and_b32 v24, 3, {L}
    v_lshlrev_b32 v24, 3, v24
    v_lshl_add_u32 v{V_RKW}, v22, 5, v24
    s_lshl_b32 s83, s81, 11
    s_add_u32 s83, s83, {LDS_KW}
    v_add_u32 v{V_RKW}, s83, v{V_RKW}
    v_lshl_add_u32 v22, v22, 8, v24
    v_add_u32 v22, {LDS_W}, v22
    v_and_b32 v25, 1, v23
    v_lshl_or_b32 v1, v25, 2, v21
    s_lshl_b32 s82, s80, 2
    """)
    for j in range(4):
        pc(f"s_add_u32 s83, s82, {j}")
        pc(f"v_xor_b32 v{V_T}, s83, v1")
        pc(f"v_lshl_add_u32 v{V_RW+j}, v{V_T}, 5, v22")
    pc(f"""
    v_add_u32 v{V_R7}, 16384, v{V_R3}
    v_lshl_add_u32 v22, v23, 2, v21
    v_lshl_add_u32 v22, v22, 6, v24
    v_lshl_add_u32 v22, v25, 5, v22
    v_add_u32 v22, {LDS_QS}, v22
    v_xor_b32 v1, 32, v22
    s_cmp_eq_u32 s80, 1
    s_cselect_b64 vcc, -1, 0
    s_movk_i32 s{S_TOG}, 2048
    s_cselect_b32 s{S_TOG}, s{S_TOG}, 0x8000
    v_cndmask_b32 v{V_R3}, v{V_R3}, v22, vcc
    v_cndmask_b32 v{V_R7}, v{V_R7}, v1, vcc
    """)
    p = Asm()
    p(f"""
    v_lshrrev_b32 v1, 3, {L}
    v_lshlrev_b32 v1, 11, v1
    v_bfe_u32 v25, {L}, 1, 2
    v_xor_b32 v25, v25, v23
    v_lshl_add_u32 v1, v25, 5, v1
    v_and_b32 v25, 1, {L}
    v_lshl_add_u32 v{V_DT}, v25, 4, v1
    v_lshl_add_u32 v1, v23, 2, v21
    v_bfe_u32 v25, v1, 1, 2
    v_xor_b32 v25, s{S_W}, v25
    v_lshlrev_b32 v1, 7, v1
    v_lshl_add_u32 v1, v25, 5, v1
    v_add_u32 v1, v1, v24
    v_add_u32 v{V_RT}, {LDS_T}, v1
    s_lshr_b32 s82, s2, 4
    s_and_b32 s83, s2, 15
    s_mul_i32 s{S_TSRC}, s82, {224*2048}
    s_lshl_b32 s90, s83, 7
    s_add_u32 s{S_TSRC}, s{S_TSRC}, s90
    s_lshl_b32 s{S_TSRC2}, s82, 17
    s_add_u32 s{S_TSRC2}, s{S_TSRC2}, s90
    s_mul_i32 s90, s80, {112*2048}
    s_add_u32 s{S_TSRCS}, s{S_TSRC}, s90
    s_lshl_b32 s90, s81, 13
    s_add_u32 s{S_TSRCS}, s{S_TSRCS}, s90
    s_add_u32 s{S_TSRCS}, s{S_TSRCS}, {96*2048}
    s_lshl_b32 s90, s{S_W}, 14
    s_add_u32 s{S_TSRC}, s{S_TSRC}, s90
    s_lshl_b32 s90, s80, 15
    s_add_u32 s{S_TSRC2}, s{S_TSRC2}, s90
    s_lshl_b32 s90, s81, 14
    s_add_u32 s{S_TSRC2}, s{S_TSRC2}, s90
    s_lshr_b32 s90, s83, 1
    s_mul_i32 s90, s90, {144*8192}
    s_and_b32 s83, s83, 1
    s_lshl_b32 s83, s83, 12
    s_add_u32 s90, s90, s83
    s_lshl_b32 s83, s{S_W}, 10
    s_add_u32 s90, s90, s83
    s_add_u32 s90, s90, {WS_WT:#x}
    s_mul_i32 s{S_TDST}, s82, {7*8192}
    s_add_u32 s{S_TDST}, s{S_TDST}, s90
    s_lshl_b32 s{S_TDST2}, s82, 14
    s_add_u32 s{S_TDST2}, s{S_TDST2}, s90
    s_add_u32 s{S_TDST2}, s{S_TDST2}, {112*8192}
    s_lshl_b32 s82, s2, 3
    s_lshl_b32 s83, s{S_W}, 1
    s_add_u32 s82, s82, s83
    s_lshl_b32 s{S_GROW}, s82, 11
    v_lshrrev_b32 v1, 5, {L}
    v_add_u32 v{V_GROW}, s82, v1
    v_lshlrev_b32 v{V_GROW}, 3, v{V_GROW}
    v_add_u32 v{V_GROW}, {WS_G:#x}, v{V_GROW}
    s_lshl_b32 s82, s{S_MT}, 2
    s_add_u32 s82, s82, s{S_W}
    s_lshl_b32 s82, s82, 5
    s_add_u32 s82, s82, s{S_NT}
    s_lshl_b32 s82, s82, 7
    s_add_u32 s{S_FLG}, s82, {WS_FLAG:#x}
    """)
    ps = Asm() if tlb else p
    ps(f"""
    s_and_b32 s82, s{S_NT}, 2
    s_cmp_eq_u32 s82, 0
    s_cselect_b32 s{S_KV}, s60, {'s60' if gdma else 's62'}
    s_cselect_b32 s{S_KV+1}, s61, {'s61' if gdma else 's63'}
    s_and_b32 s{S_KV+1}, s{S_KV+1}, 0xffff
    s_mov_b32 s{S_KV+2}, 65536
    s_mov_b32 s{S_KV+3}, 0x00020000
    """)
    srd(ps, S_WS, 86, WS_SIZE)
    srd(ps, S_GW, 70, 2048)
    srd(ps, S_WD, 68, 3584*1024*2)
    srd(ps, S_WO, 74, 1024*1024*2)
    srd(ps, S_DBG, 98, 256)
    p(f"""
    v_lshrrev_b32 v21, 1, {L}
    v_lshlrev_b32 v21, 6, v21
    v_and_b32 v22, 1, {L}
    v_lshl_add_u32 v21, v22, 4, v21
    s_and_b32 s82, s{S_NT}, 1
    s_lshl_b32 s82, s82, 5
    s_lshl_b32 s83, s{S_W}, 11
    s_add_u32 s82, s82, s83
    v_add_u32 v{V_DK}, s82, v21
    s_lshl_b32 s82, s{S_MT}, 8
    s_lshr_b32 s83, s{S_NT}, 2
    s_lshl_b32 s83, s83, 5
    s_add_u32 s82, s82, s83
    s_lshl_b32 s83, s80, 4
    s_add_u32 s82, s82, s83
    s_lshl_b32 s82, s82, 11
    s_lshl_b32 s83, s81, 7
    s_add_u32 s82, s82, s83
    v_and_b32 v21, 15, {L}
    v_lshlrev_b32 v22, 11, v21
    v_lshl_add_u32 v22, v23, 4, v22
    v_add_u32 v{V_KX}, s82, v22
    """)
    pt = Asm()
    plain_addr = f"""s_lshl_b32 s82, s{S_MT}, 3
        v_bfe_u32 v24, {L}, 2, 3
        v_add_u32 v24, s82, v24
        v_lshlrev_b32 v21, 11, v24
        v_mul_lo_u32 v24, v24, s84
        v_and_b32 v1, 3, {L}
        v_lshlrev_b32 v1, 7, v1
        v_min_u32 v1, 220, v1
        v_add3_u32 v24, v24, v1, s85
        s_lshl_b32 s82, s{S_NT}, 6
        v_add_u32 v21, s82, v21"""
    lead_addr = f"""s_mov_b32 s{S_TSTEP}, {OOB:#x}
        s_and_b32 s82, s{S_NT}, 3
        s_lshl_b32 s82, s82, 4
        v_lshrrev_b32 v24, 3, {L}
        v_add_u32 v24, s82, v24
        v_mul_lo_u32 v24, v24, s84
        v_and_b32 v1, 7, {L}
        v_min_u32 v1, 6, v1
        v_lshl_add_u32 v24, v1, 7, v24
        s_lshr_b32 s83, s{S_NT}, 2
        s_mul_i32 s90, s83, 896
        v_add_u32 v24, s90, v24
        v_bfe_u32 v21, {L}, 1, 4
        v_add_u32 v21, s82, v21
        v_lshlrev_b32 v21, 11, v21
        v_and_b32 v1, 1, {L}
        v_lshl_add_u32 v21, v1, 7, v21
        s_lshl_b32 s83, s83, 8
        v_add_u32 v21, s83, v21
        s_lshl_b32 s{S_LMASK}, 0x10101, s{S_MT}
        s_cmp_eq_u32 s{S_W}, 0
        s_cselect_b32 s{S_LMASK}, {xmask:#x}, s{S_LMASK}
        s_add_u32 s82, s{S_W}, 1
        s_and_b32 s82, s82, 2
        s_cselect_b32 s{S_T2D}, {8*7168}, s{S_TSTEP}"""
    if touch:
        (pt if tpro else p)(f"""
        s_and_b32 s82, s{S_NT}, 3
        s_lshl_b32 s82, s82, 6
        s_lshl_b32 s83, s{S_MT}, 8
        s_add_u32 s82, s82, s83
        v_add_u32 v25, s82, {L}
        v_lshlrev_b32 v25, 11, v25
        {lead_addr if lead else plain_addr}
        s_mov_b32 s{S_TSTEP}, {64*7168}
        s_cmp_eq_u32 s{S_W}, 0
        s_cselect_b64 vcc, -1, 0
        s_cselect_b32 s{S_TSRD}, s{S_X}, s{S_G}
        s_cselect_b32 s{S_TSRD+1}, s{S_X+1}, s{S_G+1}
        s_cselect_b32 s{S_TSRD+2}, s{S_X+2}, s{S_G+2}
        s_cselect_b32 s{S_TSTEP}, 128, s{S_TSTEP}
        v_cndmask_b32 v{V_T}, v24, v25, vcc
        s_cmp_eq_u32 s{S_W}, 2
        s_cselect_b32 s{S_TSRD}, s{S_U}, s{S_TSRD}
        s_cselect_b32 s{S_TSRD+1}, s{S_U+1}, s{S_TSRD+1}
        s_cmp_eq_u32 s{S_W}, 3
        s_cselect_b64 vcc, -1, 0
        s_cselect_b32 s{S_TSRD}, s{S_WQ}, s{S_TSRD}
        s_cselect_b32 s{S_TSRD+1}, s{S_WQ+1}, s{S_TSRD+1}
        s_cselect_b32 s{S_TSRD+2}, s{S_WQ+2}, s{S_TSRD+2}
        s_cselect_b32 s{S_TSTEP}, 0x20000, s{S_TSTEP}
        v_cndmask_b32 v{V_T}, v{V_T}, v21, vcc
        s_mov_b32 s{S_TSRD+3}, 0x00020000
        s_mul_i32 s{S_TOFF}, s{S_TSTEP}, {3 if lead else 2 if tpro else (touch + 1 if touch >= 2 else touch + 2)}
        """)
    late = []
    for l in [l.strip() for l in p.lines]:
        if late and l.startswith(("s_cselect", "s_addc", "v_cndmask", "s_movk_i32 s50")): late[-1].append(l)
        else: late.append([l])
    late += [[f"v_and_b32 v1, 31, {L}"], ["v_lshlrev_b32 v1, 7, v1"], ["s_lshr_b32 s82, s2, 3"], ["s_and_b32 s82, s82, 15"], ["s_lshl_b32 s82, s82, 12"]]
    d0 = dma_items(0, 0, 17)
    for grp in d0[:tlbpos]: pro.items.extend(grp)
    if tlb:
        for l in ps.lines: pro.ins(l.strip())
        pro.raw(f"""
        s_mov_b32 s80, s96
        s_and_b32 s81, s97, 0xffff
        s_mov_b32 s82, {2048*1024*2:#x}
        s_mov_b32 s83, 0x00020000
        v_lshlrev_b32 v1, {tlb}, {L}
        v_min_u32 v1, 0x7f000000, v1
        """)
        for sr_ in (S_G, S_U, S_WS, S_WD, S_WO, S_KV, S_GW, S_DBG, 80, S_X):
            pro.ins(f"buffer_load_dword a{A_DUM}, v1, s[{sr_}:{sr_+3}], 0 offen")
        pro.raw(f"s_lshr_b32 s81, s{S_W}, 1\ns_and_b32 s80, s{S_W}, 1")
    for grp in d0[tlbpos:]: pro.items.extend(grp)
    for l in pt.lines: pro.ins(l.strip())
    tch = lambda: [I(f"buffer_load_dword a{A_DUM}, v{V_T}, s[{S_TSRD}:{S_TSRD+3}], s{S_TOFF} offen", vm=("touch", 0)), I(f"s_add_u32 s{S_TOFF}, s{S_TOFF}, s{S_TSTEP}")]
    if tpos == 0:
        for _ in range(tpro): pro.items.extend(tch())
    for l in pc.lines: pro.ins(l.strip().replace(f"v{V_T},", "v22x,").replace("v22x", "v19"))
    for grp in dma_items(1, 0, p1): pro.items.extend(grp)
    if tpos == 1:
        for _ in range(tpro): pro.items.extend(tch())
    one_time = [I(f"buffer_load_dword a{A_DUM}, v1, s[{S_KV}:{S_KV+3}], s82 offen"), I(f"buffer_load_dword a{A_DUM}, v1, s[{S_GW}:{S_GW+3}], 0 offen")]
    touch_ins = lambda: I(f"buffer_load_dword a{A_DUM}, v{V_T}, s[{S_TSRD}:{S_TSRD+3}], s{S_TOFF} offen", vm=("touch", 0))
    touch_adv = f"s_add_u32 s{S_TOFF}, s{S_TOFF}, s{S_TSTEP}"
    pro2 = Trace()
    pro2.wait(vm=[("st", 0)])
    pro2.ins("s_barrier")
    pro2.items.extend(reads(0, 0))

    gfast, gslow = _g_ops()
    gslow += ["v_max_f32 v25, 0x2b800000, v25", "v_rcp_f32 v23, v25", "v_mul_f32 v24, v24, v23"]
    GSPLIT = 70
    c_q = struct.unpack("<I", struct.pack("<f", math.log2(math.e) / math.sqrt(32.0)))[0]
    kvfin = [f"v_accvgpr_read_b32 v{21+r}, a{KVA+r}" for r in range(4)]
    for r in range(4): kvfin += [f"v_accvgpr_read_b32 v1, a{KVW+r}", f"v_add_f32 v{21+r}, v{21+r}, v1", f"v_mul_f32 v{21+r}, s84, v{21+r}"]
    kvfin += ["v_cvt_pk_bf16_f32 v22, v21, v22", "v_cvt_pk_bf16_f32 v23, v23, v24",
              f"v_and_b32 v1, 15, {L}", "v_lshlrev_b32 v1, 4, v1", f"v_bfe_u32 v21, {L}, 4, 1", "v_lshl_add_u32 v1, v21, 9, v1",
              f"v_lshrrev_b32 v21, 5, {L}", "v_lshl_add_u32 v1, v21, 3, v1",
              f"buffer_store_dwordx2 v[22:23], v1, s[{S_WS}:{S_WS+3}], s82 offen offset:2048 sc1",
              f"v_bfe_u32 v24, {L}, 3, 1", "v_lshlrev_b32 v24, 10, v24", f"v_bfe_u32 v21, {L}, 2, 1", "v_lshl_add_u32 v24, v21, 9, v24",
              f"v_lshrrev_b32 v21, 4, {L}", "v_lshl_add_u32 v24, v21, 6, v24", f"v_and_b32 v21, 3, {L}", "v_lshl_add_u32 v24, v21, 1, v24",
              f"buffer_store_short v22, v24, s[{S_WS}:{S_WS+3}], s83 offen sc1",
              f"buffer_store_short_d16_hi v22, v24, s[{S_WS}:{S_WS+3}], s83 offen offset:16 sc1",
              f"buffer_store_short v23, v24, s[{S_WS}:{S_WS+3}], s83 offen offset:32 sc1",
              f"buffer_store_short_d16_hi v23, v24, s[{S_WS}:{S_WS+3}], s83 offen offset:48 sc1"]
    kvsal = f"""s_lshl_b32 s82, s{S_MT}, 3
    s_lshr_b32 s83, s{S_NT}, 2
    s_add_u32 s82, s82, s83
    s_lshl_b32 s82, s82, 12
    s_add_u32 s82, s82, {WS_KV:#x}
    s_and_b32 s85, s{S_NT}, 1
    s_lshl_b32 s83, s85, 3
    s_add_u32 s83, s83, s82
    s_lshl_b32 s85, s85, 8
    s_add_u32 s82, s82, s85
    s_lshl_b32 s85, s{S_W}, 10
    s_add_u32 s82, s82, s85
    s_lshl_b32 s85, s{S_W}, 8
    s_add_u32 s83, s83, s85
    s_and_b32 s85, s{S_NT}, 2
    s_cmp_eq_u32 s85, 0
    s_cselect_b32 s84, {c_q:#x}, 1.0
    s_cselect_b32 s82, {OOB:#x}, s82
    s_cselect_b32 s83, s83, {OOB:#x}
    s_cmp_ge_u32 s{S_W}, 2
    s_cselect_b32 s82, {OOB:#x}, s82
    s_cselect_b32 s83, {OOB:#x}, s83""".split("\n")
    kvsal = [x.strip() for x in kvsal]
    kvsal = kvsal[:-7] + ["\n".join(kvsal[-7:-3]), "\n".join(kvsal[-3:])]
    segs = []
    grest = []
    def tstore(q):
        so = S_TDST if q < 7 else S_TDST2
        return [I(f"buffer_store_dwordx4 {ar(TREG[q] if tdefer else A_T,4)}, v{p2.V_L16 if tdefer else V_L16}, s[{S_WS}:{S_WS+3}], s{so} offen sc1", vm=("ts", q)), I(f"s_add_u32 s{so}, s{so}, 8192")]
    for s in range(NST - 1):
        tr = Trace()
        gaps = [[] for _ in range(66)]
        rl = reads(s, 1)
        u = s - KVD
        if 1 <= u <= 8:
            for e in range(2):
                for h in range(2):
                    rl.append(I(f"ds_read_b64_tr_b16 {ar(KVW+4*e+2*h,2)}, v{V_RKW} offset:{(s%2)*8192 + e*1024 + h*128}", lg=("kvf", s)))
        if u == 9:
            gaps[1].append(I(f"v_add_u32 v21, {LDS_KW + 8192*(s%2)}, v{V_L16}"))
            gaps[3].append(I(f"s_lshl_b32 s82, s{S_W}, 10")); gaps[5].append(I("v_add_u32 v22, s82, v21"))
            gaps[7].append(I("s_xor_b32 s82, s82, 2048")); gaps[9].append(I("v_add_u32 v21, s82, v21"))
            rl.append(I(f"ds_write_b128 v22, {ar(KVA,4)}", lg=("kvf", s)))
        for k, it in enumerate(rl): gaps[2*k].append(it)
        gaps[57].append(I(f"v_xor_b32 v{V_R3}, s{S_TOG}, v{V_R3}")); gaps[59].append(I(f"v_xor_b32 v{V_R7}, s{S_TOG}, v{V_R7}"))
        g, adv = dma_group(s + 1, ntw)
        lo = p1 if s == 0 else nhead
        G = 11 if u == 9 else 1
        for k in range(lo, len(g)):
            pre, it = g[k]
            if pre: gaps[G - 1].append(I(pre))
            gaps[G].append(it)
            for x in adv.get(k, []): gaps[G + 1].append(I(x))
            G += tsp0 if s else 4
        G = max(G - (tsp0 if s else 4) + 2, 3)
        if touch and (s >= 1 or tpro) and s + touch + 1 < NST and not (tpro and s + touch + 1 < 2 + tpro):
            if lead:
                for r_ in range(touch if s == 1 else 1):
                    gaps[G - 1].append(I(f"s_bitcmp1_b32 s{S_LMASK}, {s + r_ + lphase}\ns_cselect_b32 s60, s{S_TOFF}, {OOB:#x}"))
                    gaps[G].append(I(f"buffer_load_dword a{A_DUM}, v{V_T}, s[{S_TSRD}:{S_TSRD+3}], s60 offen"))
                    gaps[G + 1].append(I(f"s_add_u32 s60, s60, s{S_T2D}")); gaps[G + 1].append(I(touch_adv))
                    gaps[G + 2].append(I(f"buffer_load_dword a{A_DUM}, v{V_T}, s[{S_TSRD}:{S_TSRD+3}], s60 offen")); G += 4
            else:
              for _ in range(2 if (s == 1 and touch >= 2 and not tpro) else 1):
                gaps[G].append(touch_ins()); gaps[G + 1].append(I(touch_adv)); G += 2
        if tt0 and tt0 <= s < tt0 + 4:
            if s == tt0:
                pre_ = f"""v_lshrrev_b32 v21, 3, {L}
                v_min_u32 v21, 5, v21
                v_lshlrev_b32 v22, 16, v21
                v_cmp_lt_u32 vcc, 2, v21
                v_and_b32 v21, 7, {L}
                v_lshl_add_u32 v22, v21, 11, v22
                v_add_u32 v23, {16*2048}, v22
                v_cndmask_b32 v22, v22, v23, vcc
                v_bfe_u32 v23, {L}, 2, 1
                v_lshl_add_u32 v23, v23, 2, v21
                v_lshlrev_b32 v23, 11, v23
                v_and_b32 v24, 0x1ffff, v22
                s_lshr_b32 s61, s{S_MT}, 1""".split("\n")
                for k_, x in enumerate(pre_): gaps[2*k_ + 1].append(I(x.strip()))
                G = max(G, 28)
            gaps[G - 1].append(I(f"s_cmp_eq_u32 s61, {s - tt0}\ns_cselect_b32 s62, s{S_TSRC}, {OOB:#x}\ns_cselect_b32 s63, s{S_TSRCS}, {OOB:#x}\ns_cselect_b32 s60, s{S_TSRC2}, {OOB:#x}"))
            gaps[G].append(I(f"buffer_load_dword a{A_DUM}, v22, s[{S_WD}:{S_WD+3}], s62 offen")); G += 2
            gaps[G].append(I(f"buffer_load_dword a{A_DUM}, v23, s[{S_WD}:{S_WD+3}], s63 offen")); G += 2
            gaps[G].append(I(f"buffer_load_dword a{A_DUM}, v24, s[{S_WO}:{S_WO+3}], s60 offen")); G += 2
        if 0 <= u <= 7:
            for e in range(2):
                gaps[G].append(I(f"buffer_load_dwordx4 {ar(A_KX + 8*(u%2) + 4*e,4)}, v{V_KX}, s[{S_X}:{S_X+3}], 0 offen offset:{u*256 + e*64}", vm=("kx", u))); G += 2
        q = s - tq0
        if 0 <= q < 9:
            fl = " nt" if ntt else ""
            gaps[G - 1].append(I(f"s_add_u32 m0, s{S_M0T}, {(q%3)*4096}"))
            if q == 6:
                gaps[G - 2].append(I(f"v_lshrrev_b32 v{V_KX}, 5, {L}")); gaps[G - 1].append(I(f"v_lshl_add_u32 v{V_KX}, v{V_KX}, 13, v{V_DT}"))
                gaps[G].append(I(f"buffer_load_dwordx4 v{V_KX}, s[{S_WD}:{S_WD+3}], s{S_TSRCS} offen{fl} lds", vm=("t", q)))
            else:
                srdn, so = (S_WD, S_TSRC) if q < 7 else (S_WO, S_TSRC2)
                gaps[G].append(I(f"buffer_load_dwordx4 v{V_DT}, s[{srdn}:{srdn+3}], s{so} offen{fl} lds", vm=("t", q)))
                gaps[G + 1].append(I(f"s_add_u32 s{so}, s{so}, {48*2048 if q == 2 else 0x10000}"))
            G += 2
        q = s - tq0 - 2
        if 0 <= q < 9 and not tdefer:
            x, y = tstore(q); gaps[G].append(x); gaps[G + 1].append(y); G += 2
        if s == ot:
            for x in one_time: gaps[G].append(x); G += 2
        if s == 2:
            gaps[G - 1].append(I(f"v_mov_b32 v21, s{S_TAG}"))
            gaps[G].append(I(f"s_or_b32 s83, s2, s{S_W}\ns_cselect_b32 s83, {OOB:#x}, 0")); G += 2
            gaps[G].extend([I("s_mov_b64 exec, 1"), I(f"buffer_store_dword v21, off, s[{S_DBG}:{S_DBG+3}], s83 sc1"), I("s_mov_b64 exec, -1")]); G += 2
        if s == (11 if gsm else 6):
            gaps[G].append(I(f"buffer_load_dword a{A_TAG}, off, s[{S_DBG}:{S_DBG+3}], 0 sc1", vm=("zp", 0))); G += 2
        if s == esig + 1:
            gaps[G - 2].append(I(f"s_lshl_b32 s82, s{S_MT}, 5")); gaps[G - 1].append(I(f"s_add_u32 s82, s82, s{S_NT}\ns_lshl_b32 s82, s82, 7")); gaps[G].append(I(f"s_add_u32 s82, s82, {WS_FLAG + 0x28000:#x}"))
            gaps[G + 1].append(I(f"s_cmp_eq_u32 s{S_W}, 0\ns_cselect_b32 s82, s82, {OOB:#x}")); G += 2
            gaps[G].extend([I("s_mov_b64 exec, 1"), I(f"buffer_store_dword a{A_TAG}, off, s[{S_WS}:{S_WS+3}], s82 sc1"), I("s_mov_b64 exec, -1")]); G += 2
        if gsm and s == 10:
            gaps[G].extend([I("s_mov_b32 exec_lo, 1\ns_mov_b32 exec_hi, 1"), I(f"buffer_store_dwordx2 v[24:25], v{V_GROW}, s[{S_WS}:{S_WS+3}], 0 offen sc1"), I("s_mov_b64 exec, -1")]); G += 2
        kvstart = G
        if s == gl:
            for q_ in range(4):
                gaps[G].append(I(f"buffer_load_dwordx4 {ar(A_GX+4*q_,4)}, v{V_L16}, s[{S_X}:{S_X+3}], s{S_GROW} offen offset:{1024*q_}", vm=("g", 0))); G += 2
            for q_ in range(2):
                gaps[G].append(I(f"buffer_load_dwordx4 {ar(A_GW+4*q_,4)}, v{V_L16}, s[{S_GW}:{S_GW+3}], 0 offen offset:{1024*q_}", vm=("g", 0))); G += 2
        assert G < 64, (s, G)
        tr.wait(lg=[("fr", s, 0)] + ([("tf", q)] if 0 <= q < 9 else []) + ([("kvp", 0)] if u == 10 else []))
        vq = []
        if (gl + 2 <= s <= 9) if gsm else s in (gs + 2, gs + 3): vq = gfast
        if u == 10: vq = list(kvfin)
        k = 0
        for j in range(8):
            for i in range(8):
                tr.ins(mfma(0, j, i, first=(s == 0)))
                tr.items.extend(gaps[k])
                cap = vcap(gaps[k])
                if gsm and vq is gfast: cap = 0 if gaps[k] else 1
                if s == 0:
                    for _ in range(2):
                        if late and cap > 0:
                            for l in late.pop(0): tr.ins(l)
                            cap -= 1
                while vq and cap > 0 and not (u == 10 and k < kvstart - 8):
                    if vq[0].startswith("buffer_"):
                        if cap < 2: break
                        tr.ins(vq.pop(0), vm=("kvst", 0)); cap -= 2
                    else:
                        tr.ins(vq.pop(0)); cap -= 1
                k += 1
        if (s >= 9) if gsm else s != gs + 2: assert not vq
        need = [("st", s + 1)]
        if 0 <= s - tq0 - 1 < 9: need.append(("t", s - tq0 - 1))
        if s == (gl + 1 if gsm else gs + 1): need.append(("g", 0))
        if 1 <= u <= 8: need.append(("kx", u - 1))
        if s == (12 if gsm else 7): need.append(("zp", 0))
        if s == esig: need.append(("kvst", 0))
        if fflag and s == 14: need.append(("ts", 8))
        if pads and s == chain_at: tr.ins("@CHAIN1")
        tr.wait(vm=need, lg=[("fr", s, 1)] + ([("kvf", s)] if 1 <= u <= 9 else []))
        tr.ins("s_barrier")
        segs.append(tr)
        tr = Trace()
        gaps = [[] for _ in range(68)]
        for k, it in enumerate(reads(s + 1, 0)): gaps[2*k + 1].append(it)
        q = s - tq0 - 1
        if 0 <= q < 9:
            for h in range(2):
                gaps[49 + 2*h].append(I(f"ds_read_b64_tr_b16 {ar((TREG[q] if tdefer else A_T)+2*h,2)}, v{V_RT} offset:{(q%3)*4096 + h*2048}", lg=("tf", q)))
        if u == 9:
            gaps[53].append(I(f"ds_read_b128 {ar(KVW,4)}, v21", lg=("kvp", 0)))
            for k, x in enumerate(kvsal): gaps[2*k + 3 if 2*k + 3 < 48 else 55].append(I(x.strip()))
        if s + 2 < NST:
            g, adv = dma_group(s + 2, ntw)
            hg = [hstart + 2*round(k*(62 - hstart)/(2*nhead)) for k in range(nhead)]
            for k in range(nhead):
                pre, it = g[k]
                if pre:
                    if hg[k]: gaps[hg[k] - 1].insert(0, I(pre))
                    else: tr.ins(pre)
                gaps[hg[k]].append(it)
                for x in adv.get(k, []): gaps[hg[k] + 2].append(I(x))
        if s == (12 if gsm else 7):
            gaps[54].append(I(f"v_accvgpr_read_b32 v1, a{A_TAG}"))
            gaps[56].append(I(f"v_cmp_eq_u32 vcc, 0, v1")); gaps[58].append(I("s_cbranch_vccnz KM_ZSPIN\nKM_ZBACK:"))
            gaps[60].append(I(f"v_accvgpr_write_b32 a{A_TAG}, v1")); gaps[62].append(I(f"v_readfirstlane_b32 s{S_TAG}, v1"))
        if retouch and s == 13:
            gaps[30].append(I("s_getpc_b64 s[76:77]\nKM_PC2:\ns_add_u32 s76, s76, KM_EBACK-KM_PC2\ns_addc_u32 s77, s77, 0"))
            gaps[32].append(I("s_and_b32 s77, s77, 0xffff")); gaps[34].append(I("s_mov_b32 s78, KM_FALLBACK2-KM_EBACK"))
            gaps[36].append(I("s_mov_b32 s79, 0x00020000")); gaps[38].append(I("s_lshr_b32 s51, s2, 3"))
            gaps[40].append(I(f"s_lshl_b32 s51, s51, 2\ns_add_u32 s51, s51, s{S_W}")); gaps[42].append(I("s_lshl_b32 s51, s51, 8"))
            gaps[44].append(I(f"v_and_b32 v1, 1, {L}")); gaps[46].append(I("v_lshlrev_b32 v1, 7, v1"))
            gaps[52].append(I(f"buffer_load_dword a{A_DUM}, v1, s[76:79], s51 offen"))
        if s == 14:
            gaps[0].append(I(f"v_lshlrev_b32 v{V_T}, 7, {L}"))
            gaps[2].append(I(f"s_mov_b32 s{S_EF}, {WS_FLAG + 0x28000:#x}"))
            gaps[epos].append(I(f"buffer_load_dword v{V_KX}, v{V_T}, s[{S_WS}:{S_WS+3}], s{S_EF} offen sc1", vm=("ep", 0)))
        vq = []; slow = []; slow_from = None
        if (gl + 1 <= s <= 8) if gsm else s in (gs + 1, gs + 2): vq = gfast
        if s == (9 if gsm else gs + 3): slow = list(gslow)
        ml = [mfma(1, j, i) for j in range(8) for i in range(8)]
        if 1 <= u <= 8:
            for e in range(2):
                ml.insert(30 + 20*e, f"v_mfma_f32_16x16x32_bf16 {ar(KVA,4)}, {ar(A_KX + 8*((u-1)%2) + 4*e,4)}, {ar(KVW+4*e,4)}, {'0' if (u == 1 and e == 0) else ar(KVA,4)}")
        for k, m in enumerate(ml):
            tr.ins(m)
            tr.items.extend(gaps[k])
            for _ in range((0 if gaps[k] else 1) if (gsm and vq) else vcap(gaps[k])):
                if vq: tr.ins(vq.pop(0))
                elif s == 0 and late:
                    for l in late.pop(0): tr.ins(l)
            if slow and not vq:
                if slow_from is None: slow_from = k + 2
                if k >= slow_from and (k - slow_from) % 2 == 0: tr.ins(slow.pop(0))
        for k in range(len(ml), 68): assert not gaps[k], (s, k)
        assert not slow and not late
        segs.append(tr)

    P = p2
    ec = Trace()
    ec.wait(vm=[("ep", 0)])
    ec.raw(f"""
    v_cmp_ne_u32 vcc, s{S_TAG}, v{V_KX}
    s_and_b32 s80, s2, 7
    s_lshr_b32 s81, s80, 1
    s_lshl_b32 s{P.S_MT}, s{S_MT}, 2
    s_cbranch_vccnz KM_ESPIN
    KM_EBACK:
    s_add_u32 s{P.S_MT}, s{P.S_MT}, s81
    s_lshl_b32 s{P.S_M0KV}, s{S_W}, 13
    s_add_u32 s82, s{P.S_M0KV}, {WS_KV:#x}
    s_add_u32 s{P.S_KVB}, s86, s82
    s_addc_u32 s{P.S_KVB+1}, s87, 0
    v_add_u32 v{V_DK}, 4096, v{V_L16}
    """)
    su2 = f"""
    s_and_b32 s80, s80, 1
    s_lshl_b32 s80, s80, 2
    s_and_b32 s90, s{S_NT}, 3
    s_add_u32 s{P.S_NT}, s80, s90
    s_lshr_b32 s90, s{P.S_MT}, 1
    s_mul_i32 s90, s90, 112
    s_mul_i32 s91, s{S_W}, 28
    s_add_u32 s90, s90, s91
    s_lshl_b32 s90, s90, 13
    s_and_b32 s42, s{P.S_MT}, 1
    s_lshl_b32 s42, s42, 12
    s_add_u32 s90, s90, s42
    s_add_u32 s58, s86, s90\ns_addc_u32 s59, s87, 0
    s_add_u32 s60, s58, 0x2000\ns_addc_u32 s61, s59, 0
    s_add_u32 s62, s58, 0x4000\ns_addc_u32 s63, s59, 0
    s_add_u32 s70, s58, 0x6000\ns_addc_u32 s71, s59, 0
    s_mov_b64 s[{P.S_HB}:{P.S_HB+1}], {'s[70:71]' if nhd else 's[62:63]'}
    s_mul_i32 s90, s{P.S_NT}, 144
    s_add_u32 s91, s91, s90
    s_lshl_b32 s91, s91, 13
    s_add_u32 s91, s91, {WS_WT:#x}
    s_add_u32 s64, s86, s91\ns_addc_u32 s65, s87, 0
    s_add_u32 s68, s64, 0x2000\ns_addc_u32 s69, s65, 0
    s_mov_b64 s[{P.S_WB}:{P.S_WB+1}], s[68:69]
    s_add_u32 s{P.S_XB}, s64, {P.SF0*8192}\ns_addc_u32 s{P.S_XB+1}, s65, 0
    s_lshl_b32 s91, s{S_W}, 3
    s_add_u32 s90, s90, s91
    s_lshl_b32 s90, s90, 13
    s_add_u32 s90, s90, {WS_WT + 112*8192:#x}
    s_add_u32 s{P.S_WOB}, s86, s90\ns_addc_u32 s{P.S_WOB+1}, s87, 0
    s_mul_i32 s{P.S_M0SP}, s{S_W}, 24576
    s_add_u32 s{P.S_M0SP}, s{P.S_M0SP}, {P.LDS_SP}
    s_mov_b32 s{P.S_SPM}, s{P.S_M0SP}
    s_add_u32 s{P.S_M0C}, s{P.S_M0KV}, 0x8000
    s_mov_b32 s{P.S_CNT}, 6
    s_add_u32 s66, s{P.S_WOB}, {(P.SF0 + 3 - P.NDOWN)*8192}\ns_addc_u32 s67, s{P.S_WOB+1}, 0
    s_mov_b32 s{P.S_OUT}, s96
    s_and_b32 s{P.S_OUT+1}, s97, 0xffff
    s_mov_b32 s{P.S_OUT+2}, {2048*1024*2:#x}
    s_mov_b32 s{P.S_OUT+3}, 0x00020000
    s_mov_b32 s{P.S_OF}, s{S_FLG}
    s_lshl_b32 s90, s{P.S_MT}, 12
    s_add_u32 s{P.S_OP}, s90, {WS_FLAG:#x}
    s_lshl_b32 s90, s{S_W}, 13
    s_add_u32 s{P.S_HP}, s90, {WS_FLAG + 0x20000:#x}
    s_lshl_b32 s90, s2, 7
    s_add_u32 s90, s90, {WS_FLAG + 0x20000:#x}
    s_cmp_eq_u32 s{S_W}, 0\ns_cselect_b32 s{P.S_HF}, s90, {OOB:#x}
    """
    su2 = [x.strip() for x in su2.strip().split("\n    ")]

    def last_stage(wn):
        tr = Trace()
        s = NST - 1
        su = f"""
        s_lshr_b32 s81, s{S_W}, 1
        s_lshl_b32 s82, s{S_MT}, 1
        s_add_u32 s82, s82, s81
        s_mul_i32 s82, s82, 112
        s_lshr_b32 s83, s{S_NT}, 1
        s_mul_i32 s83, s83, 7
        s_add_u32 s82, s82, s83
        s_and_b32 s84, s{S_NT}, 1
        s_add_u32 s85, s82, 6
        s_lshl_b32 s85, s85, 13
        s_mul_i32 s83, s84, 3
        s_add_u32 s82, s82, s83
        s_add_u32 s82, s82, {2*wn}
        s_lshl_b32 s82, s82, 13
        s_add_u32 s83, s82, 8192
        """
        if wn:
            su += f"""
            s_lshl_b32 s84, s84, 9
            s_add_u32 s85, s85, s84
            v_and_b32 v21, 15, {L}
            v_lshlrev_b32 v21, 4, v21
            v_bfe_u32 v24, {L}, 4, 1
            v_lshl_add_u32 v22, v24, 9, v21
            v_lshl_add_u32 v21, v24, 10, v21
            v_lshrrev_b32 v24, 5, {L}
            v_lshl_add_u32 v22, v24, 10, v22
            v_lshl_add_u32 v21, v24, 8, v21
            s_lshl_b32 s81, s81, 13
            s_add_u32 s81, s81, {P.LDS_Q}
            v_add_u32 v22, s81, v22
            v_add_u32 v23, 4096, v21
            """
        setup = [l.strip() for l in su.strip().split("\n") if l.strip()] + su2
        ffn = lambda t, i: dict(kind="f", t=t, i=i, mf=[(2*t, i), (4 + 2*t, i), (2*t + 1, i), (5 + 2*t, i)])
        if wn == 0:
            halves = [[ffn(0, i) for i in range(8)], [ffn(1, i) for i in range(8)]]
        else:
            halves = [[dict(kind="q", i=i, mf=[(3, i), (7, i)]) for i in range(8)] +
                      [dict(kind="s", i=i, mf=[(2, i), (6, i), (2, i + 1), (6, i + 1)]) for i in range(0, 8, 2)],
                      [ffn(0, i) for i in range(8)]]
        for pc in halves[1][8 - ndef:]: pc["defer"] = True
        setup.append(f"s_mov_b32 s3, {'s82' if wn else 's83'}")
        pieces = halves[0] + halves[1]
        half = len(halves[0])
        jsets = [sorted(set(j for pc in hv for j, _ in pc["mf"])) for hv in halves]
        def piece_ops(pc, pk):
            o = []
            i = pc["i"]
            tmp = 12 + 4*(i % 2)
            def reg(j, i):
                p_, b = accn(j, i)
                if p_ == "v": return b
                for r in range(4): o.append(f"v_accvgpr_read_b32 v{tmp+r}, a{b+r}")
                return tmp
            r_ = [reg(j, i_) for j, i_ in pc["mf"]]
            if pc["kind"] == "q":
                g0_, g1_ = r_
            else:
                g0_, u0, g1_, u1 = r_
                for g_, u_ in ((g0_, u0), (g1_, u1)):
                    for r in range(4): o.append(f"v_max_f32 v{g_+r}, 0, v{g_+r}")
                    if pk:
                        o.append(f"v_pk_mul_f32 {vr(g_,2)}, {vr(g_,2)}, {vr(u_,2)}")
                        o.append(f"v_pk_mul_f32 {vr(g_+2,2)}, {vr(g_+2,2)}, {vr(u_+2,2)}")
                    else:
                        for r in range(4): o.append(f"v_mul_f32 v{g_+r}, v{g_+r}, v{u_+r}")
            dfr = pc.get("defer")
            d_ = 160 + 4*i if dfr else g0_
            o += [f"v_cvt_pk_bf16_f32 v{d_}, v{g0_}, v{g0_+1}", f"v_cvt_pk_bf16_f32 v{d_+1}, v{g0_+2}, v{g0_+3}",
                  f"v_cvt_pk_bf16_f32 v{d_+2}, v{g1_}, v{g1_+1}", f"v_cvt_pk_bf16_f32 v{d_+3}, v{g1_+2}, v{g1_+3}"]
            if dfr: return o
            if pc["kind"] == "q":
                o.append(f"ds_write_b128 v22, {vr(g0_,4)} offset:{(i//2)*2048 + (i%2)*256}")
            elif pc["kind"] == "s":
                o += ["s_nop 1", f"v_permlane16_swap_b32 v{g0_}, v{g0_+2}", f"v_permlane16_swap_b32 v{g0_+1}, v{g0_+3}",
                      f"buffer_store_dwordx4 {vr(g0_,4)}, {'v21' if i < 4 else 'v23'}, s[{S_WS}:{S_WS+3}], s85 offen offset:{(i%4)*1024} sc1"]
            else:
                o.append(f"buffer_store_dwordx4 {vr(g0_,4)}, {'v%d' % (V_L16 if i < 4 else V_DK)}, s[{S_WS}:{S_WS+3}], {'s82' if pc['t'] == 0 else 's83'} offen offset:{(i%4)*1024} sc1")
            return o
        rl = [xread(s, 1, i) for i in range(8)]
        for j in jsets[0]: rl += [wread(s, 1, j, 0), wread(s, 1, j, 1)]
        for x in rl: x["lg"] = ("frA", 0)
        for j in jsets[1]: rl += [wread(s, 1, j, 0), wread(s, 1, j, 1)]
        kv0 = []
        for part in range(2):
            cl = [P.kv_dma(0, part, j) for j in range(4)]
            for x in cl: x["text"] = x["text"].replace(f"v{P.V_L16},", f"v{V_L16},").replace(f"v{P.V_L16B},", f"v{V_DK},")
            kv0.append(cl)
        q = s - tq0 - 2
        tr.wait(lg=[("fr", s, 0)] + ([("tf", q)] if 0 <= q < 9 else []))
        first = []
        if fflag:
            first.append([I(f"s_lshl_b32 s82, s2, 7\ns_add_u32 s82, s82, {WS_FLAG + 0x30000:#x}\ns_cmp_eq_u32 s{S_W}, 0\ns_cselect_b32 s82, s82, {OOB:#x}")])
            first.append([I("s_mov_b64 exec, 1"), I(f"buffer_store_dword a{A_TAG}, off, s[{S_WS}:{S_WS+3}], s82 sc1"), I("s_mov_b64 exec, -1")])
        if gs + 4 == s and not gsm:
            first.append([I("s_mov_b32 exec_lo, 1\ns_mov_b32 exec_hi, 1"), I(f"buffer_store_dwordx2 v[24:25], v{V_GROW}, s[{S_WS}:{S_WS+3}], 0 offen sc1", vm=("hst", 0)), I("s_mov_b64 exec, -1")])
        if 0 <= q < 9 and not tdefer: first.append([tstore(q)[0]])
        for k, (j, i) in enumerate([(j, i) for j in jsets[0] for i in range(8)]):
            tr.ins(mfma(0, j, i))
            if first:
                tr.items.extend(first.pop(0)); continue
            if k in (26, 29): tr.ins(f"s_add_u32 m0, s{P.S_M0KV}, {4096 if k == 29 else 0}")
            elif k in (27, 30): tr.items.extend(kv0.pop(0))
            elif rl: tr.items.append(rl.pop(0))
            for _ in range(2):
                if setup: tr.ins(setup.pop(0))
        assert not rl
        tr.items.extend(adv64(P.S_KVB, 32768))
        for x in setup: tr.ins(x)
        tr.wait(lg=[("frA", 0)])
        ml = []
        for pi, pc in enumerate(pieces):
            if pi == half:
                ml.append((W(lg=[("fr", s, 1)]), None))
                ml += [(mfma(0, j, i), None) for j in jsets[1] for i in range(8)]
            for j, i in pc["mf"]: ml.append((mfma(1, j, i), pi))
        done_at = {}; cnt = 0; vq = []; nextp = 0
        def put(x):
            tr.ins(x, vm=("hst", 0) if x.startswith("buffer_") else None, lg=("qw", 0) if x.startswith("ds_") else None)
        for k, (m, pi) in enumerate(ml):
            if isinstance(m, dict):
                tr.items.append(m); continue
            tr.ins(m); cnt += 1
            if pi is not None and (k + 1 == len(ml) or ml[k + 1][1] != pi): done_at[pi] = cnt
            budget = 2
            while budget > 0:
                if not vq and nextp in done_at and cnt - done_at[nextp] >= 9:
                    vq = piece_ops(pieces[nextp], False); nextp += 1
                if not vq: break
                c_ = 2 if vq[0].startswith(("buffer_", "ds_")) else 1
                if c_ > budget: break
                put(vq.pop(0)); cnt += 1; budget -= c_
        for x in vq: put(x); cnt += 1
        while nextp < len(pieces):
            if cnt - done_at[nextp] < 9: tr.ins("s_nop 7"); cnt += 8
            for x in piece_ops(pieces[nextp], True): put(x); cnt += 1
            nextp += 1
        return tr
    l0, l1 = last_stage(0), last_stage(1)

    L2 = f"v{P.V_LANE}"
    h2 = Trace()
    h2.raw(f"""
    v_mov_b32 {L2}, {L}
    v_mov_b32 v{P.V_L16}, v{V_L16}
    v_mov_b32 v{P.V_L16B}, v{V_DK}
    v_mov_b32 v{P.V_KVR}, v{V_L16}
    s_lshl_b32 s80, s{S_W}, 12
    s_add_u32 s80, s80, {P.LDS_Q}
    v_add_u32 v24, s80, v{V_L16}
    """)
    h2.wait(vm=[("kv", 0)])
    h2.raw("s_waitcnt lgkmcnt(0)\ns_barrier")
    for q in range(4): h2.ins(f"ds_read_b128 {ar(P.A_Q + 4*q,4)}, v24 offset:{q*1024}", lg=("q", 0))
    for half in range(2): h2.items.append(P.k_read(0, half))
    for half in range(2): h2.items.append(P.v_read(0, half))
    for pp in range(4):
        h2.raw(f"""
        s_add_u32 s80, s{S_W}, {pp}
        s_and_b32 s80, s80, 3
        s_lshl_b32 s80, s80, 11
        v_add_u32 v{P.V_W+pp}, s80, v{P.V_L16}
        """)
    h2.wait(lg=[("k", 0)])
    h2.ins(P.qk(0, 0)); h2.ins(P.qk(0, 1))
    for q in range(4):
        h2.ins(f"v_add_u32 v{P.V_SP+q}, s{P.S_M0SP}, v{P.V_W+q}")
        h2.ins(f"v_add_u32 v{P.V_KP+q}, s{P.S_M0KV}, v{P.V_W+q}")
    h2.raw(f"""
    v_bfe_u32 v26, {L2}, 4, 1
    v_bfe_u32 v27, {L2}, 2, 1
    v_cmp_eq_u32 vcc, v26, v27
    v_mov_b32 v26, 0x3f803f80
    s_lshl_b32 s40, s{P.S_MT}, 9
    s_add_u32 s40, s40, {WS_G:#x}
    v_cndmask_b32 v26, 0, v26, vcc
    """)
    for r in range(4): h2.ins(f"v_accvgpr_write_b32 a{P.A_SEL+r}, v26")
    h2.raw(f"""
    s_lshl_b32 s41, s{S_MT}, 11
    s_lshl_b32 s80, s{S_W}, 9
    s_add_u32 s41, s41, s80
    s_add_u32 s41, s41, {WS_G:#x}
    v_and_b32 v26, 31, {L2}
    v_lshlrev_b32 v26, 3, v26
    v_and_b32 v27, 15, {L2}
    v_lshlrev_b32 v27, 3, v27
    v_lshlrev_b32 v25, 7, {L2}
    v_mov_b32 v24, s{S_TAG}
    """)
    if ptc:
        h2.raw(f"""
        s_sub_u32 s80, s64, s86
        s_lshl_b32 s81, s{S_MT}, 10
        s_add_u32 s80, s80, s81
        s_sub_u32 s81, s58, s86
        s_and_b32 s82, s{S_NT}, 3
        s_lshl_b32 s82, s82, 10
        s_add_u32 s81, s81, s82
        s_add_u32 s81, s81, 8192
        v_and_b32 v29, 7, {L2}
        v_lshlrev_b32 v29, 7, v29
        v_add_u32 v30, s81, v29
        v_add_u32 v29, s80, v29
        v_and_b32 v{P.V_TCH}, 8, {L2}
        v_cmp_eq_u32 vcc, 0, v{P.V_TCH}
        s_mov_b32 s{P.S_TCO}, 0
        s_nop 0
        v_cndmask_b32 v{P.V_TCH}, v30, v29, vcc
        """)
    if retouch >= 2:
        h2.raw(f"v_and_b32 v17, 1, {L2}\nv_lshlrev_b32 v17, 7, v17\ns_and_b32 s43, s51, 0x1f00\ns_add_u32 s43, s43, KM_TAIL-KM_EBACK")
    def rebase(x, frm, to):
        x["text"] = x["text"].replace(f"s[{frm}:{frm+1}]", f"s[{to}:{to+1}]"); return x
    wl = lambda sg, J0, b: [rebase(P.w_load(sg, J), P.S_WB, b) for J in range(J0, J0 + 4)]
    hl = lambda sg, b: [rebase(P.h_load(sg, i), P.S_HB, b) for i in range(4)]
    early = []
    timed = [(1 + q // 3, tstore(q)) for q in range(9)] if tdefer else []
    if tp2:
        LT2 = 81920
        h2.raw(f"""
        v_lshrrev_b32 v17, 5, {L2}
        v_lshl_add_u32 v17, v17, 13, v{V_DT}
        v_add_u32 v{V_RT}, {LT2 - LDS_T}, v{V_RT}
        s_add_u32 s{S_M0T}, s{S_M0T}, {LT2 - LDS_T}
        """)
        fl = " nt" if ntt else ""
        for q in range(9):
            it_ = [I(f"s_add_u32 m0, s{S_M0T}, {q*4096}"), I("s_nop 0")]
            if q == 6: it_.append(I(f"buffer_load_dwordx4 v17, s[{S_WD}:{S_WD+3}], s{S_TSRCS} offen{fl} lds", vm=("t", q)))
            else:
                srdn, so = (S_WD, S_TSRC) if q < 7 else (S_WO, S_TSRC2)
                it_ += [I(f"buffer_load_dwordx4 v{V_DT}, s[{srdn}:{srdn+3}], s{so} offen{fl} lds", vm=("t", q)), I(f"s_add_u32 s{so}, s{so}, {48*2048 if q == 2 else 0x10000}")]
            timed.append((1 + q // 3, it_))
        timed.append((tb, [W(vm=[("t", 8)]), I("s_barrier")]))
        for q in range(9):
            timed.append((tb + q // 3, [I(f"ds_read_b64_tr_b16 {ar(P.A_WR + 4*q + 2*h,2)}, v{V_RT} offset:{q*4096 + h*2048}", lg=("tf", q)) for h in range(2)]))
        for q in range(9):
            so = S_TDST if q < 7 else S_TDST2
            timed.append((tb + 3 + q // 3, [W(lg=[("tf", q)]), I(f"buffer_store_dwordx4 {ar(P.A_WR + 4*q,4)}, v{P.V_L16}, s[{S_WS}:{S_WS+3}], s{so} offen sc1", vm=("ts", q)), I(f"s_add_u32 s{so}, s{so}, 8192")]))
    timed += [(dsl + k // 2, [I(f"buffer_store_dwordx4 {vr(160 + 4*i,4)}, v{P.V_L16 if i < 4 else P.V_L16B}, s[{S_WS}:{S_WS+3}], s3 offen offset:{(i%4)*1024} sc1", vm=("hst", 0))]) for k, i in enumerate(range(8 - ndef, 8))]
    timed += [(hsig, [W(vm=[("hst", 0), ("ts", 8)]), I("s_barrier"), I("s_mov_b64 exec, 1"), I(f"buffer_store_dword v24, off, s[{S_WS}:{S_WS+3}], s{P.S_HF} sc1"), I("s_mov_b64 exec, -1")]),
             (hpoll, [I(f"buffer_load_dword v28, v25, s[{S_WS}:{S_WS+3}], s{P.S_HP} offen sc1", vm=("hp", 0))]),
             (hpoll + 2, [W(vm=[("hp", 0)]), I(f"v_cmp_ne_u32 vcc, s{S_TAG}, v28"), I("s_nop 0"), I("s_cbranch_vccnz KM_HSPIN"), I("KM_HBACK:"), I("s_barrier")] + sum([[P.tch_ins(), I(f"s_add_u32 s{P.S_TCO}, s{P.S_TCO}, 8192")] for _ in range(ptc)], []) + hl(0, 58)),
             ]
    gl_ = [[I(f"buffer_load_dword v{P.V_G+hh}, v26, s[{S_WS}:{S_WS+3}], s41 offen offset:{hh*256} sc1", vm=("g2", 0)) for hh in range(2)],
           [I(f"buffer_load_dword v{P.V_OMG+i}, v27, s[{S_WS}:{S_WS+3}], s40 offen offset:{4 + i*128} sc1", vm=("g2", 0)) for i in range(4)]]
    if fflag:
        hs, hp, hc = timed
        hs[1][0]["needvm"].append(("fp", 0))
        hs = (hs[0], [hs[1][0], I(f"v_cmp_ne_u32 vcc, s{S_TAG}, v28"), I("s_nop 0"), I("s_cbranch_vccnz KM_FSPIN"), I("KM_FBACK:")] + hs[1][1:])
        fp = (fpoll, [I(f"s_add_u32 s43, s{P.S_HP}, 0x10000"), I(f"buffer_load_dword v28, v25, s[{S_WS}:{S_WS+3}], s43 offen sc1", vm=("fp", 0))])
        pre_d = [wl(0, 0, 64), wl(0, 4, 64), wl(1, 0, 68), wl(1, 4, 68), gl_[0], gl_[1]]
        hc = (hpoll + cdel, hc[1])
        post_d = [(hpoll + cdel + 1, hl(1, 60)), (hpoll + cdel + 3, hl(2, 62)), (hpoll + cdel + 5, hl(3, 70))]
    elif nhd:
        timed += [(hpoll + 2, wl(0, 0, 64)), (hpoll + 3, wl(0, 4, 64)), (hpoll + 4, wl(1, 0, 68)), (hpoll + 5, wl(1, 4, 68)),
                  (hpoll + 6, hl(1, 60)), (hpoll + 7, hl(2, 62)), (hpoll + 8, hl(3, 70)), (hpoll + 12, gl_[0]), (hpoll + 13, gl_[1])]
    else:
        sl_ = lambda k: min(hpoll + 2 + (k*psp) // 2, 30)
        timed += [(sl_(k + 1), x) for k, x in enumerate([wl(0, 0, 64), wl(0, 4, 64), hl(1, 60), wl(1, 0, 68), wl(1, 4, 68), hl(2, 62), gl_[0], gl_[1]])]
        zl = [I(f"v_mov_b32 v{P.ACC + r}, 0") for r in range(128)]
        timed = [(1 + k // 2, zl[8*k: 8*k + 8]) for k in range(8)] + [timed[0]] + [(hsig + 1 + k // 2, zl[64 + 8*k: 72 + 8*k]) for k in range(8)] + timed[1:]
    NDOWN = P.NDOWN
    xl = [([P.x_base(sg)] if J0 == 0 else []) + [P.w_load(sg, J) for J in range(J0, J0 + 4)] for sg in (NDOWN + 6, NDOWN + 7) for J0 in (0, 4)]
    def xfix(grps, s):
        for g_ in grps:
            for x in g_: x["text"] = x["text"].replace(f"s[{P.S_XB}:{P.S_XB+1}]", "s[52:53]").replace(f"s_add_u32 s{P.S_XB},", "s_add_u32 s52,").replace(f"s_addc_u32 s{P.S_XB+1},", "s_addc_u32 s53,")
        return grps
    xfix(xl, 0)
    if fflag:
        pre_d = pre_d + [xl.pop(0) for _ in range(4)]
        n_ = len(pre_d)
        mid = [(hsig + 1 + (k*(hpoll + pend - hsig))//n_, x) for k, x in enumerate(pre_d)]
        timed = [fp, hs] + sorted(mid + [hp], key=lambda e: e[0]) + [hc] + post_d
    elif xhead:
        timed = timed[:-2] + [(min(hpoll + 9 + k, 30), xl.pop(0)) for k in range(4)] + [(min(hpoll + 13, 30), timed[-2][1]), (min(hpoll + 14, 31), timed[-1][1])]
    peel = []
    if xpeel:
        flat = [x for g_ in xl for x in g_]; xl.clear()
        k_ = 0
        for x in flat:
            if peel and peel[-1][1][-1]["text"].startswith("s_"): peel[-1][1].append(x)
            else: peel.append((32 + k_, [x])); k_ = min(k_ + 1, 15)
        peel = [(32 + (n_*15)//16, it_) for n_, (_, it_) in enumerate(peel)]
    headseg = P.segment(0, 32, 0, 32*P.NHEAD, g0, timed)
    bodies = [P.segment(16*it, 16*it + 16, 32*(P.NHEAD + 4*(it - 2)), 32*(P.NHEAD + 4*(it - 1)), 16*it, timed=[(16*it + 12, [I("buffer_load_dword a255, v17, s[76:79], s43 offen")])] if retouch >= 2 else (), loop=True) for it in range(2, 8)]
    for b_ in bodies: b_.ins(f"s_cmp_lg_u32 s{P.S_CNT}, 0")
    NDOWN, NWO, ACC = P.NDOWN, P.NWO, P.ACC
    t1 = Trace()
    n = P.NSLOT - 1
    t1.wait(lg=[("v", 63)])
    t1.ins("s_nop 1")
    t1.ins(P.pv(n, 0)); t1.ins(P.summ(n, 0)); t1.ins(P.pv(n, 1)); t1.ins(P.summ(n, 1))
    VO = P.V_O
    q_ = Trace()
    q_.raw(f"""
    v_bfe_u32 v26, {L2}, 4, 1
    s_lshl_b32 s78, s{S_MT}, 1
    v_lshlrev_b32 v26, 10, v26
    s_lshr_b32 s79, s{S_W}, 1
    v_and_b32 v27, 15, {L2}
    s_add_u32 s78, s78, s79
    v_lshl_add_u32 v26, v27, 4, v26
    s_lshl_b32 s78, s78, 5
    v_lshrrev_b32 v27, 5, {L2}
    s_add_u32 s78, s78, s{S_NT}
    v_lshl_add_u32 v26, v27, 8, v26
    s_lshl_b32 s78, s78, 13
    s_and_b32 s79, s{S_W}, 1
    s_lshl_b32 s79, s79, 12
    s_add_u32 s78, s78, s79
    s_add_u32 s54, s78, {WS_O:#x}
    s_mov_b32 s78, 0x1f800000
    s_mov_b32 s79, 0x5f800000
    s_mov_b32 s55, 0
    v_accvgpr_read_b32 v80, a{P.A_L}
    v_accvgpr_read_b32 v81, a{P.A_L+4}
    """)
    q_.wait(vm=[("g2", 0)])
    q_.raw(f"""
    v_min_f32 v83, v80, v81
    v_max_f32 v84, v80, v81
    v_add_f32 v85, v80, v81
    v_cmp_nle_f32 s[82:83], s78, v83
    v_cmp_nge_f32 s[84:85], s79, v84
    v_cmp_u_f32 vcc, v85, v85
    """)
    q_.ins("s_nop 1\ns_or_b64 s[82:83], s[82:83], s[84:85]\ns_or_b64 vcc, vcc, s[82:83]\ns_cbranch_vccnz KM_FALLBACK\nKM_NORM:\nv_rcp_f32 v80, v80")
    q_.raw(f"""
    v_rcp_f32 v82, v81
    v_mul_f32 v80, v80, v{P.V_G}
    v_mul_f32 v82, v82, v{P.V_G+1}
    """)
    for hh in range(2):
        for pc in range(2):
            b = VO + 16*hh + 8*pc
            for r in range(8): q_.ins(f"v_mul_f32 v{b+r}, v{b+r}, v{80+2*hh}")
            for q in range(4): q_.ins(f"v_cvt_pk_bf16_f32 v{64+8*hh+4*pc+q}, v{b+2*q}, v{b+2*q+1}")
            q_.ins(f"buffer_store_dwordx4 {vr(64+8*hh+4*pc,4)}, v26, s[{S_WS}:{S_WS+3}], s54 offen offset:{hh*2048 + pc*512} sc1", vm=("ost", 0))
    vq = q_.items
    nA, nB = nb
    stepsA = [P.gemm_step(s, vq=vq) for s in range(NIN, NIN + nA)]
    t2 = Trace()
    t2.items.extend(vq)
    t2.ins("s_nop 1")
    for q in range(4):
        t2.ins(f"v_mfma_f32_16x16x32_bf16 v[84:87], {ar(P.A_SEL,4)}, {vr(64+4*q,4)}, {'0' if q == 0 else 'v[84:87]'}")
    stepsA.append(t2)
    polli = lambda: I(f"buffer_load_dword v28, v25, s[{S_WS}:{S_WS+3}], s{P.S_OP} offen sc1", vm=("op", 0))
    x33 = xfix([[P.x_base(NDOWN + 5)] + [P.w_load(NDOWN + 5, J) for J in range(4)], [P.w_load(NDOWN + 5, J) for J in range(4, 8)]], 0)
    xq = [x33] + [[xl.pop(0), xl.pop(0)] for _ in range(len(xl)//2)]
    stepsB = [P.gemm_step(s, extra=xq.pop(0) if xq else [], late=[polli()] if s == NIN + nA + nB - 1 else []) for s in range(NIN + nA, NIN + nA + nB)]
    assert not xl and not xq
    sig = Trace()
    sig.raw(f"""
    v_and_b32 v25, 31, {L2}
    v_lshlrev_b32 v25, 7, v25
    s_lshr_b32 s78, s{P.S_MT}, 1
    s_lshl_b32 s78, s78, 18
    s_add_u32 s78, s78, s42
    s_lshl_b32 s79, s{S_W}, 16
    s_add_u32 s78, s78, s79
    s_add_u32 s78, s78, {WS_O:#x}
    s_add_u32 s56, s86, s78
    s_addc_u32 s57, s87, 0
    """)
    sig.raw(f"""
    v_sub_f32 v84, v84, v84
    s_cmp_lg_u32 s55, 0
    v_cmp_u_f32 vcc, v84, v84
    s_cbranch_scc1 KM_CHECKED
    s_cbranch_vccnz KM_FALLBACK2
    KM_CHECKED:
    """)
    sig.wait(vm=[("ost", 0)])
    sig.raw(f"""
    s_mov_b64 exec, 1
    buffer_store_dword v24, off, s[{S_WS}:{S_WS+3}], s{P.S_OF} sc1
    s_mov_b64 exec, -1
    """)
    t3 = Trace()
    t3.wait(vm=[("op", 0)])
    t3.raw(f"""
    v_cmp_ne_u32 vcc, s{S_TAG}, v28
    s_nop 0
    s_cbranch_vccnz KM_OSPIN
    KM_OBACK:
    """)
    ol = []
    for s in range(NDOWN, NDOWN + NWO):
        ol.append([rebase(P.h_load(s, i), P.S_HB, 56) for i in range(4)] + (adv64(56, 8192) if s < NDOWN + NWO - 1 else []))
    t4 = Trace()
    for grp in ol[:opre]: t4.items.extend(grp)
    k = opre
    stepsC = []
    for s in range(NIN + nA + nB, NDOWN):
        ex = []
        while len(ex) < 2 and k < 5: ex.append(ol[k]); k += 1
        stepsC.append(P.gemm_step(s, ex))
    wos = []
    for s in range(NDOWN, NDOWN + 4):
        ex = []
        while len(ex) < 2 and k < NWO: ex.append(ol[k]); k += 1
        wos.append(P.gemm_step(s, ex))
    ph = Trace()
    su = Asm()
    for pp in range(1, 4):
        su(f"s_add_u32 s78, s{S_W}, {pp}\ns_and_b32 s78, s78, 3\ns_mul_i32 s78, s78, 24576\ns_add_u32 s78, s78, {(pp-1)*8192}\nv_add_u32 v{26+pp}, s78, v{P.V_L16}")
    su(f"""
    s_mul_i32 s78, s{S_W}, 24576
    v_add_u32 v26, s78, v{P.V_L16}
    s_lshl_b32 s78, s{P.S_MT}, 17
    s_lshl_b32 s79, s{P.S_NT}, 8
    s_add_u32 s78, s78, s79
    s_lshl_b32 s79, s{S_W}, 6
    s_add_u32 s78, s78, s79
    s_add_u32 s79, s78, 0x8000
    s_add_u32 s80, s78, 0x10000
    s_add_u32 s81, s78, 0x18000
    v_and_b32 v30, 15, {L2}
    v_lshlrev_b32 v30, 11, v30
    v_bfe_u32 v25, {L2}, 4, 1
    v_lshl_add_u32 v30, v25, 5, v30
    v_lshrrev_b32 v25, 5, {L2}
    v_lshl_add_u32 v30, v25, 4, v30
    """)
    su = [l.strip() for l in su.lines]
    S2 = list(range(NDOWN + 4, NDOWN + 8))
    ph.wait(vm=[("w", s, J) for s in S2[1:] for J in range(8)], lg=[("w", s, J) for s in S2[:1] for J in range(8)])
    ph.ins("s_barrier")
    R0, R1, R2 = ACC + 32, ACC + 64, ACC + 96
    assert ph2new
    for idx, pp in enumerate((1, 2, 3, 0)):
        fill = [[] for _ in range(32)]
        if idx == 0:
            for q, x in enumerate(su): fill[q].append(I(x))
        else:
            prev = (1, 2, 3)[idx - 1]
            for t in range(8):
                fill[(4 + 3*t) if idx < 3 or not ph2new else (1 + t + (3 if t >= 4 else 0))].append(I(f"ds_write_b128 v{26+prev}, {vr(ACC + (prev*8 + t)*4, 4)} offset:{t*1024}", lg=("rw", prev)))
        if idx == 3:
            rd = [I(f"ds_read_b128 {vr((R0, R1, R2)[s_] + t*4, 4)}, v26 offset:{s_*8192 + t*1024}", lg=("rr", s_)) for s_ in range(3) for t in range(8)]
            if ph2new:
                for k_, x in enumerate(rd[:16]): fill[12 + k_ // 2].append(x)
                fill[21] += [W(lg=[("rw", 3)]), I("s_barrier")]
                for k_, x in enumerate(rd[16:]): fill[22 + k_ // 2].append(x)
                fill[26].append(W(lg=[("rr", 1)]))
                for k_ in range(10): fill[26 + k_ // 2].append(I(f"v_add_f32 v{R0+k_}, v{R0+k_}, v{R1+k_}"))
            else:
                free = [g for g in range(32) if not fill[g]]
                for x, g in zip(rd[:16], free): fill[g].append(x)
            ph.wait(lg=[("rw", 2)])
            ph.ins("s_barrier")
        mu = 0
        for s in S2:
            if idx == 0: ph.wait(vm=[("h", s, i) for i in range(4)])
            for J in (2*pp, 2*pp + 1):
                for i in range(4):
                    ph.ins(P.gemm_mfma(s, J, i, False)); ph.items.extend(fill[mu]); mu += 1
    if ph2new:
        for r in range(10, 32, 2): ph.ins(f"v_pk_add_f32 {vr(R0+r,2)}, {vr(R0+r,2)}, {vr(R1+r,2)}")
        ph.wait(lg=[("rr", 2)])
        for r in range(0, 32, 2): ph.ins(f"v_pk_add_f32 {vr(R0+r,2)}, {vr(R0+r,2)}, {vr(R2+r,2)}")
    else:
        ph.wait(lg=[("rw", 3), ("rr", 1)])
        ph.ins("s_barrier")
        ph.items.extend(rd[16:])
        for r in range(0, 32, 2): ph.ins(f"v_pk_add_f32 {vr(R0+r,2)}, {vr(R0+r,2)}, {vr(R1+r,2)}")
        ph.wait(lg=[("rr", 2)])
        for r in range(0, 32, 2): ph.ins(f"v_pk_add_f32 {vr(R0+r,2)}, {vr(R0+r,2)}, {vr(R2+r,2)}")
    for i in range(4):
        b0, b1 = ACC + i*4, ACC + (4 + i)*4
        d = 64 + i*4
        om = P.V_OMG + i
        for b in (b0, b0 + 2, b1, b1 + 2):
            ph.ins(f"v_pk_add_f32 {vr(b,2)}, {vr(b,2)}, {vr(b + 32,2)}")
        for b in (b0, b0 + 2, b1, b1 + 2):
            ph.ins(f"v_pk_mul_f32 {vr(b,2)}, {vr(b,2)}, {vr(om,2)} op_sel_hi:[1,0]" if om % 2 == 0 else f"v_pk_mul_f32 {vr(b,2)}, {vr(b,2)}, {vr(om-1,2)} op_sel:[0,1] op_sel_hi:[1,1]")
        ph.raw(f"""
        v_cvt_pk_bf16_f32 v{d}, v{b0}, v{b0+1}
        v_cvt_pk_bf16_f32 v{d+1}, v{b0+2}, v{b0+3}
        v_cvt_pk_bf16_f32 v{d+2}, v{b1}, v{b1+1}
        v_cvt_pk_bf16_f32 v{d+3}, v{b1+2}, v{b1+3}
        s_nop 1
        v_permlane16_swap_b32 v{d}, v{d+2}
        v_permlane16_swap_b32 v{d+1}, v{d+3}
        buffer_store_dwordx4 {vr(d,4)}, v30, s[{P.S_OUT}:{P.S_OUT+3}], s{78+i} offen sc1 nt
        """)
    head = [pro, pro2] + segs + [ec]
    rest = [h2, headseg] + bodies + [t1] + stepsA + [sig] + stepsB + [t3, t4] + stepsC + wos + [ph]
    import copy
    resolve(head + [l0] + rest)
    saved = [[(x.get("wvm"), x.get("wlg")) for x in seg.items] for seg in rest]
    resolve(head + [l1] + rest)
    for seg, sv in zip(rest, saved):
        for x, (v, l) in zip(seg.items, sv):
            if x["text"] is None:
                mn = lambda p, q: q if p is None else p if q is None else min(p, q)
                x["wvm"], x["wlg"] = mn(x["wvm"], v), mn(x["wlg"], l)
    emit_trace(a, [pro]); st.stamp()
    if pads:
        a("s_branch KM_BODY")
        a.lines.append(".p2align 12")
        a.label("KM_BODY")
    if al1 is not None:
        a.lines.append(".p2align 6")
        for _ in range(al1): a("s_nop 0")
    emit_trace(a, [pro2]); st.stamp()
    for k, tr in enumerate(segs):
        if 'wv' in exp and k % 2 == 0 and wv0 <= k // 2 < wv0 + 5:
            t_ = Trace(); t_.items = tr.items[:-2]; emit_trace(a, [t_]); st.stamp()
            t_.items = tr.items[-2:-1]; emit_trace(a, [t_]); st.stamp()
            t_.items = tr.items[-1:]; emit_trace(a, [t_]); st.stamp()
            continue
        emit_trace(a, [tr])
        if 'stg' in exp and k % 2 == 0: st.stamp()
    st.stamp()
    if pads and chain2: a.lines.append("    @CHAIN2")
    emit_trace(a, [ec])
    if 'ec' in exp: st.stamp()
    a(f"s_bitcmp1_b32 s{S_W}, 0")
    a("s_cbranch_scc1 KM_LAST1")
    emit_trace(a, [l0])
    a("s_branch KM_P2")
    a.label("KM_LAST1")
    emit_trace(a, [l1])
    if al2 is not None:
        a.lines.append(".p2align 6")
        for _ in range(al2): a("s_nop 0")
    a.label("KM_P2")
    st.stamp()
    emit_trace(a, [h2]); st.stamp()
    b = Asm(); emit_trace(b, [headseg])
    for l in b.lines:
        a.lines.append(l)
        if 'its' in exp and l.strip() in ("s_barrier", "KM_HBACK:"): st.stamp()
    st.stamp()
    if xpeel: emit_trace(a, bodies[:1])
    a.lines.append(".p2align 6")
    a.label("KM_LOOP")
    emit_trace(a, bodies[1:] if xpeel else bodies)
    a("s_cbranch_scc1 KM_LOOP")
    a.label("KM_TAIL")
    st.stamp()
    emit_trace(a, [t1]); st.stamp()
    for seg in stepsA + [sig]: emit_trace(a, [seg])
    st.stamp()
    for seg in stepsB: emit_trace(a, [seg])
    st.stamp()
    emit_trace(a, [t3]); st.stamp()
    for seg in [t4] + stepsC: emit_trace(a, [seg])
    st.stamp()
    for seg in wos: emit_trace(a, [seg])
    st.stamp()
    b = Asm(); emit_trace(b, [ph])
    nm = 0
    for l in b.lines:
        a.lines.append(l)
        if l.strip().startswith("v_mfma"): nm += 1
        if 'ph' in exp and ((l.strip().startswith("v_mfma") and nm % 32 == 0) or (l.strip() == "s_barrier" and nm == 0) or "s81 offen" in l): st.stamp()
    if dbg:
        a("s_waitcnt vmcnt(0)")
        st.stamp(force=True)
        st.dump(0, S_W, 86)
        if hdbg is not None:
            a(f"""
            s_lshl_b32 s90, s2, 2
            s_add_u32 s90, s90, s{S_W}
            s_cmp_eq_u32 s90, {4*hdbg}
            s_cbranch_scc0 KM_END
            v_readlane_b32 s90, v31, 32
            v_mbcnt_lo_u32_b32 v0, -1, 0
            v_mbcnt_hi_u32_b32 v0, -1, v0
            v_subrev_u32 v31, s90, v31
            v_subrev_u32 v0, 32, v0
            v_lshlrev_b32 v0, 2, v0
            s_mov_b32 exec_lo, 0
            s_mov_b32 exec_hi, 0xfffe
            buffer_store_dword v31, v0, s[{S_DBG}:{S_DBG+3}], 0 offen
            """)
    a("s_endpgm")
    for nm, ld, val in (("Z", f"buffer_load_dword v1, off, s[{S_DBG}:{S_DBG+3}], 0 sc1", f"eq_u32 vcc, 0, v1"),
                        ("E", f"buffer_load_dword v{V_KX}, v{V_T}, s[{S_WS}:{S_WS+3}], s{S_EF} offen sc1", f"ne_u32 vcc, s{S_TAG}, v{V_KX}"),
                        ("H", f"buffer_load_dword v28, v25, s[{S_WS}:{S_WS+3}], s{P.S_HP} offen sc1", f"ne_u32 vcc, s{S_TAG}, v28"),
                        ("F", f"buffer_load_dword v28, v25, s[{S_WS}:{S_WS+3}], s43 offen sc1", f"ne_u32 vcc, s{S_TAG}, v28"),
                        ("O", f"buffer_load_dword v28, v25, s[{S_WS}:{S_WS+3}], s{P.S_OP} offen sc1", f"ne_u32 vcc, s{S_TAG}, v28")):
        if nm == 'F' and not fflag: continue
        a(f"""
        KM_{nm}SPIN:
        s_mov_b32 s91, 0x40000
        KM_{nm}SPIN1:
        {ld}
        s_waitcnt vmcnt(0)
        v_cmp_{val}
        s_sub_u32 s91, s91, 1
        s_cbranch_vccz KM_{nm}BACK
        s_cmp_eq_u32 s91, 0
        s_cbranch_scc1 KM_{nm}BACK
        s_sleep 1
        s_branch KM_{nm}SPIN1
        """)
    A_K, A_Q = P.A_K, P.A_Q
    a.label("KM_FALLBACK2")
    a("s_mov_b32 s55, 2")
    a.label("KM_FALLBACK")
    a(f"""
    s_or_b32 s55, s55, 1
    s_waitcnt vmcnt(0) lgkmcnt(0)
    s_nop 15
    v_mov_b32 v82, 0xff7fffff
    v_mov_b32 v83, 0xff7fffff
    v_mov_b32 v80, 0
    v_mov_b32 v81, 0
    s_mov_b32 s78, {WS_KV:#x}
    """)
    for r in range(32): a(f"v_mov_b32 v{VO+r}, 0")
    a.label("KM_FB_LOOP")
    for q in range(4):
        a(f"buffer_load_dwordx4 {ar(A_K+4*q,4)}, v{P.V_L16}, s[{S_WS}:{S_WS+3}], s78 offen offset:{q*1024} sc1")
    a("s_waitcnt vmcnt(0)")
    for hh in range(2):
        O = VO + 16*hh; m = 82 + hh; l = 80 + hh
        a(f"v_mfma_f32_32x32x16_bf16 v[64:79], {ar(A_K,4)}, {ar(A_Q+8*hh,4)}, 0")
        a(f"v_mfma_f32_32x32x16_bf16 v[64:79], {ar(A_K+4,4)}, {ar(A_Q+8*hh+4,4)}, v[64:79]")
        a("s_nop 15")
        a("v_max_f32 v84, v64, v65")
        for r in range(2, 16, 2): a(f"v_max3_f32 v84, v{64+r}, v{65+r}, v84")
        a(f"""
        v_mov_b32 v85, v84
        s_nop 1
        v_permlane32_swap_b32 v84, v85
        s_nop 1
        v_max3_f32 v84, v84, v85, v{m}
        v_sub_f32 v85, v{m}, v84
        v_exp_f32 v85, v85
        v_mov_b32 v{m}, v84
        v_mul_f32 v{l}, v{l}, v85
        """)
        for r in range(16):
            a(f"v_sub_f32 v{64+r}, v{64+r}, v84")
            a(f"v_exp_f32 v{64+r}, v{64+r}")
            a(f"v_mul_f32 v{O+r}, v{O+r}, v85")
        for r in range(8): a(f"v_cvt_pk_bf16_f32 v{64+r}, v{64+2*r}, v{65+2*r}")
        for r in range(8):
            a(f"v_lshlrev_b32 v86, 16, v{64+r}\nv_and_b32 v87, 0xffff0000, v{64+r}\nv_add_f32 v{l}, v{l}, v86\nv_add_f32 v{l}, v{l}, v87")
        a(f"v_mfma_f32_32x32x16_bf16 {vr(O,16)}, {ar(A_K+8,4)}, v[64:67], {vr(O,16)}")
        a(f"v_mfma_f32_32x32x16_bf16 {vr(O,16)}, {ar(A_K+12,4)}, v[68:71], {vr(O,16)}")
        a("s_nop 15")
    a(f"""
    s_add_u32 s78, s78, 4096
    s_cmp_lt_u32 s78, {WS_KV + 64*4096:#x}
    s_cbranch_scc1 KM_FB_LOOP
    v_mov_b32 v84, v80
    v_mov_b32 v85, v81
    s_nop 1
    v_permlane32_swap_b32 v80, v84
    v_permlane32_swap_b32 v81, v85
    s_nop 1
    v_add_f32 v80, v80, v84
    v_add_f32 v81, v81, v85
    s_cmp_eq_u32 s55, 1
    s_cbranch_scc1 KM_NORM
    v_rcp_f32 v80, v80
    v_rcp_f32 v82, v81
    s_nop 0
    v_mul_f32 v80, v80, v{P.V_G}
    v_mul_f32 v82, v82, v{P.V_G+1}
    """)
    for hh in range(2):
        for pc in range(2):
            b = VO + 16*hh + 8*pc
            for r in range(8): a(f"v_mul_f32 v{b+r}, v{b+r}, v{80+2*hh}")
            for q in range(4): a(f"v_cvt_pk_bf16_f32 v{64+8*hh+4*pc+q}, v{b+2*q}, v{b+2*q+1}")
            a(f"buffer_store_dwordx4 {vr(64+8*hh+4*pc,4)}, v26, s[{S_WS}:{S_WS+3}], s54 offen offset:{hh*2048 + pc*512} sc1")
    a(f"""
    s_waitcnt vmcnt(0)
    s_branch KM_CHECKED
    KM_END:
    s_endpgm
    """)
    return a.text()
```
